```python
import torch

def _softmax(x, axis=-1):
    return torch.softmax(x, dim=axis)
def _gelu(x):
    return torch.nn.functional.gelu(x, approximate="tanh")
def _silu(x):
    return torch.nn.functional.silu(x)
def _sigmoid(x):
    return torch.sigmoid(x)
def _layernorm(x, axis=-1, eps=1e-5):
    m = x.mean(dim=axis, keepdim=True)
    v = x.var(dim=axis, keepdim=True, unbiased=False)
    return (x - m) / torch.sqrt(v + eps)
def _scatter_add(tgt, idx, src, axis=0):
    return tgt.clone().index_add_(axis, idx, src)
def _segment_sum(src, seg, n):
    out = torch.zeros((n,) + src.shape[1:], dtype=src.dtype)
    return out.index_add_(0, seg, src)
def _pad(x, pw):
    flat = tuple(v for pair in reversed(pw) for v in pair)
    return torch.nn.functional.pad(x, flat)

kernel_name = 'standalone__edge_featured_mpnn_gatedgcn__graph'

def setup_inputs():

    _w = (lambda a: (lambda t: t.to(torch.bfloat16) if t.is_floating_point() else t)(torch.as_tensor(a)))
    N, deg, D, De = 10000, 64, 64, max(0, 1)
    E = N * deg
    return {
        "x": _w((lambda *s: torch.randn(*s, dtype=torch.bfloat16) * 0.8)(N, D)),
        "e_attr": _w((lambda *s: torch.randn(*s, dtype=torch.bfloat16) * 1.6)(E, De)),
        "src": _w((lambda lo, hi, *s: torch.randint(lo, hi, s))(0, N, E).to(torch.int64)),
        "dst": _w((lambda lo, hi, *s: torch.randint(lo, hi, s))(0, N, E).to(torch.int64)),
        "w_a": _w((lambda *s: torch.randn(*s, dtype=torch.bfloat16) * 0.8)(D, D)),
        "w_b": _w((lambda *s: torch.randn(*s, dtype=torch.bfloat16) * 0.8)(D, D)),
        "w_c": _w((lambda *s: torch.randn(*s, dtype=torch.bfloat16) * 1.6)(De, D)),
        "w_u": _w((lambda *s: torch.randn(*s, dtype=torch.bfloat16) * 0.05)(D, D)),
        "w_v": _w((lambda *s: torch.randn(*s, dtype=torch.bfloat16) * 0.05)(D, D)),
    }

def reference(x, e_attr, src, dst, w_a, w_b, w_c, w_u, w_v):
    N, D = x.shape
    hv = x @ w_v
    g = x[dst] @ w_a + x[src] @ w_b + e_attr @ w_c
    eta = _sigmoid(g)
    denom = _segment_sum(eta, dst, N) + 1e-6
    eta_n = eta / denom[dst]
    agg = _segment_sum(eta_n * hv[src], dst, N)
    z = x @ w_u + agg
    relu_z = torch.where(z > 0, z, 0 * z)
    return x + relu_z
```

```python
import sys, math

N = 10000; E = 640000
NPB = 40
NB = 250
EPC = 2560
NC = 250
LOG2E = 1.4426950408889634

WS_REC  = 0
REC_STRIDE = EPC*8
WS_DESC = 5242880
DESC_STRIDE = 1024
WS_T    = 6291456
WS_AU   = 9437184
T_BYTES = (N+1)*256
AU_BYTES = N*256

import struct
def f2u(f): return struct.unpack('<I', struct.pack('<f', f))[0]

class Asm:
    def __init__(self): self.l = []
    def __call__(self, s=''):
        for line in s.split('\n'):
            self.l.append(line)
    def label(self, n): self.l.append(n + ':')
    def text(self): return '\n'.join(self.l) + '\n'

def srd(a, sreg, base_lo, base_hi, nbytes, off=0, stride=0, nrec=None):
    if off:
        a(f'    s_add_u32 s{sreg}, s{base_lo}, {off}')
        a(f'    s_addc_u32 s{sreg+1}, s{base_hi}, 0')
    else:
        a(f'    s_mov_b32 s{sreg}, s{base_lo}')
        a(f'    s_mov_b32 s{sreg+1}, s{base_hi}')
    if stride:
        a(f'    s_and_b32 s{sreg+1}, s{sreg+1}, 0xffff')
        a(f'    s_or_b32 s{sreg+1}, s{sreg+1}, {stride << 16}')
        a(f'    s_mov_b32 s{sreg+2}, {nrec}')
    else:
        a(f'    s_mov_b32 s{sreg+2}, {nbytes}')
    a(f'    s_mov_b32 s{sreg+3}, 0x00020000')

def dpp_scan(a, v):
    for sh in (1, 2, 4, 8):
        a('    s_nop 1')
        a(f'    v_add_u32_dpp v{v}, v{v}, v{v} row_shr:{sh} row_mask:0xf bank_mask:0xf')
    a('    s_nop 1')
    a(f'    v_add_u32_dpp v{v}, v{v}, v{v} row_bcast:15 row_mask:0xa bank_mask:0xf')
    a('    s_nop 1')
    a(f'    v_add_u32_dpp v{v}, v{v}, v{v} row_bcast:31 row_mask:0xc bank_mask:0xf')
    a('    s_nop 1')

K1_TWG = 125
K1_GRID = NC + K1_TWG
K1_LDS = 32768
L1_HIST = 0; L1_START = 1024; L1_STAGE = 2048

def gen_k1(a):
    a('.p2align 8')
    a('.type k1_kernel,@function')
    a.label('k1_kernel')
    a(f'    s_cmp_ge_u32 s2, {K1_GRID}')
    a('    s_cbranch_scc1 K1_END')
    a(f'    s_cmp_ge_u32 s2, {NC}')
    a('    s_cbranch_scc1 K1_TABLE')
    a('    s_load_dwordx2 s[4:5], s[0:1], 8      ; e_attr')
    a('    s_load_dwordx4 s[8:11], s[0:1], 16')
    a('    s_load_dwordx2 s[6:7], s[0:1], 88     ; ws')
    a('    v_mov_b32 v2, 0')
    a('    v_lshlrev_b32 v1, 2, v0               ; t*4')
    a('    v_cmp_gt_u32 vcc, 256, v0')
    a('    s_and_saveexec_b64 s[30:31], vcc')
    a(f'    ds_write_b32 v1, v2 offset:{L1_HIST}')
    a('    s_mov_b64 exec, s[30:31]')
    a('    v_lshlrev_b32 v3, 4, v0               ; t*16')
    a('    v_lshlrev_b32 v4, 3, v0               ; t*8')
    a(f'    s_mul_i32 s20, s2, {EPC*4}')
    a(f'    s_mul_i32 s21, s2, {EPC*2}')
    a('    s_waitcnt lgkmcnt(0)')
    srd(a, 12, 10, 11, E*4)
    srd(a, 16, 8, 9, E*4)
    srd(a, 24, 4, 5, E*2)
    a('    buffer_load_dwordx4 v[8:11], v3, s[12:15], s20 offen     ; dst x4')
    a('    buffer_load_dwordx4 v[12:15], v3, s[16:19], s20 offen    ; src x4')
    a('    buffer_load_dwordx2 v[16:17], v4, s[24:27], s21 offen')
    srd(a, 32, 6, 7, NC*REC_STRIDE, off=WS_REC)
    srd(a, 36, 6, 7, NC*DESC_STRIDE, off=WS_DESC)
    a('    s_barrier')
    a('    s_mov_b32 s22, 52429')
    a('    s_waitcnt vmcnt(2)')
    for k in range(4):
        a(f'    v_mul_u32_u24 v{20+k}, s22, v{8+k}')
        a(f'    v_lshrrev_b32 v{20+k}, 21, v{20+k}      ; bucket')
    for k in range(4):
        a(f'    v_lshlrev_b32 v{24+k}, 2, v{20+k}       ; bucket*4')
    a('    v_mov_b32 v5, 1')
    for k in range(4):
        a(f'    ds_add_rtn_u32 v{28+k}, v{24+k}, v5 offset:{L1_HIST}')
    for k in range(4):
        a(f'    v_mul_u32_u24 v{20+k}, {NPB}, v{20+k}')
        a(f'    v_sub_u32 v{20+k}, v{8+k}, v{20+k}')
    a('    s_waitcnt vmcnt(0)')
    for k in range(4):
        a(f'    v_lshl_or_b32 v{32+2*k}, v{20+k}, 16, v{12+k}')
    a('    v_lshlrev_b32 v33, 16, v16')
    a('    v_and_b32 v35, 0xffff0000, v16')
    a('    v_lshlrev_b32 v37, 16, v17')
    a('    v_and_b32 v39, 0xffff0000, v17')
    a('    s_waitcnt lgkmcnt(0)')
    a('    s_barrier')
    a('    v_and_b32 v6, 63, v0')
    a('    v_lshlrev_b32 v6, 4, v6                ; lane*16')
    a(f'    ds_read_b128 v[40:43], v6 offset:{L1_HIST}')
    a('    s_waitcnt lgkmcnt(0)')
    a('    v_add_u32 v44, v40, v41                ; h0+h1')
    a('    v_add_u32 v45, v44, v42                ; h0+h1+h2')
    a('    v_add_u32 v46, v45, v43                ; sum4')
    a('    v_mov_b32 v47, v46')
    dpp_scan(a, 47)
    a('    v_sub_u32 v48, v47, v46')
    a('    v_add_u32 v49, v48, v40')
    a('    v_add_u32 v50, v48, v44')
    a('    v_add_u32 v51, v48, v45')
    a(f'    ds_write_b128 v6, v[48:51] offset:{L1_START}')
    a('    v_cmp_gt_u32 vcc, 64, v0')
    a('    s_and_saveexec_b64 s[30:31], vcc')
    a('    s_cbranch_execz K1_NODESC')
    for k in range(4):
        a(f'    v_lshl_or_b32 v{52+k}, v{40+k}, 16, v{48+k}')
    a(f'    s_mul_i32 s23, s2, {DESC_STRIDE}')
    a('    buffer_store_dwordx4 v[52:55], v6, s[36:39], s23 offen')
    a.label('K1_NODESC')
    a('    s_mov_b64 exec, s[30:31]')
    a('    s_waitcnt lgkmcnt(0)')
    for k in range(4):
        a(f'    ds_read_b32 v{40+k}, v{24+k} offset:{L1_START}')
    a('    s_waitcnt lgkmcnt(0)')
    for k in range(4):
        a(f'    v_add_lshl_u32 v{40+k}, v{40+k}, v{28+k}, 3   ; (start+rank)*8')
    for k in range(4):
        a(f'    ds_write_b64 v{40+k}, v[{32+2*k}:{33+2*k}] offset:{L1_STAGE}')
    a('    s_waitcnt lgkmcnt(0)')
    a('    s_barrier')
    a(f'    ds_read_b128 v[8:11], v3 offset:{L1_STAGE}')
    a(f'    ds_read_b128 v[12:15], v3 offset:{L1_STAGE + 10240}')
    a(f'    s_mul_i32 s23, s2, {REC_STRIDE}')
    a('    v_add_u32 v4, 10240, v3')
    a('    s_waitcnt lgkmcnt(1)')
    a('    buffer_store_dwordx4 v[8:11], v3, s[32:35], s23 offen')
    a('    s_waitcnt lgkmcnt(0)')
    a('    buffer_store_dwordx4 v[12:15], v4, s[32:35], s23 offen')
    a('    s_endpgm')
    a.label('K1_TABLE')
    a('    s_load_dwordx2 s[4:5], s[0:1], 0       ; x')
    a('    s_load_dwordx4 s[8:11], s[0:1], 32     ; w_a, w_b')
    a('    s_load_dwordx4 s[12:15], s[0:1], 56    ; w_u, w_v')
    a('    s_load_dwordx2 s[6:7], s[0:1], 88      ; ws')
    a(f'    s_sub_u32 s3, s2, {NC}')
    a('    v_lshlrev_b32 v3, 4, v0                ; t*16')
    a('    v_lshrrev_b32 v1, 6, v0')
    a('    s_nop 0')
    a('    v_readfirstlane_b32 s20, v1')
    a('    v_and_b32 v2, 63, v0                   ; lane')
    a('    s_waitcnt lgkmcnt(0)')
    srd(a, 16, 10, 11, 8192)
    srd(a, 24, 14, 15, 8192)
    srd(a, 28, 8, 9, 8192)
    srd(a, 32, 12, 13, 8192)
    srd(a, 36, 4, 5, N*128)
    a('    v_cmp_gt_u32 vcc, 512, v0')
    a('    s_and_saveexec_b64 s[40:41], vcc')
    a('    s_cbranch_execz K1_T_NOLD')
    a('    buffer_load_dwordx4 v[8:11], v3, s[16:19], 0 offen')
    a('    buffer_load_dwordx4 v[12:15], v3, s[24:27], 0 offen')
    a('    buffer_load_dwordx4 v[16:19], v3, s[28:31], 0 offen')
    a('    buffer_load_dwordx4 v[20:23], v3, s[32:35], 0 offen')
    a.label('K1_T_NOLD')
    a('    s_mov_b64 exec, s[40:41]')
    a('    s_lshr_b32 s21, s20, 1')
    a('    s_lshl_b32 s21, s21, 4')
    a('    s_mul_i32 s22, s3, 80')
    a('    s_add_u32 s21, s21, s22                ; n0')
    a('    v_and_b32 v4, 15, v2')
    a('    v_add_u32 v4, s21, v4                  ; node')
    a('    v_lshrrev_b32 v5, 4, v2                ; g')
    a('    v_lshlrev_b32 v6, 7, v4')
    a('    v_lshl_add_u32 v6, v5, 4, v6')
    a('    buffer_load_dwordx4 v[24:27], v6, s[36:39], 0 offen')
    a('    buffer_load_dwordx4 v[28:31], v6, s[36:39], 0 offen offset:64')
    a('    v_cmp_gt_u32 vcc, 512, v0')
    a('    s_and_saveexec_b64 s[40:41], vcc')
    a('    s_cbranch_execz K1_T_NOST')
    a('    s_waitcnt vmcnt(2)')
    a('    ds_write_b128 v3, v[8:11]')
    a('    ds_write_b128 v3, v[12:15] offset:8192')
    a('    ds_write_b128 v3, v[16:19] offset:16384')
    a('    ds_write_b128 v3, v[20:23] offset:24576')
    a.label('K1_T_NOST')
    a('    s_mov_b64 exec, s[40:41]')
    a('    s_and_b32 s23, s20, 1                  ; type')
    a('    s_lshl_b32 s24, s23, 14')
    a('    v_bfe_u32 v7, v2, 2, 2')
    a('    v_lshl_add_u32 v7, v5, 3, v7           ; 8g + r')
    a('    v_lshlrev_b32 v7, 7, v7')
    a('    v_and_b32 v8, 3, v2')
    a('    v_lshl_add_u32 v7, v8, 3, v7')
    a('    v_add_u32 v7, s24, v7')
    a(f'    s_mov_b32 s25, {WS_T}')
    a(f'    s_mov_b32 s26, {WS_AU}')
    a('    s_cmp_eq_u32 s23, 0')
    a('    s_cselect_b32 s25, s25, s26')
    a('    s_add_u32 s44, s6, s25')
    a('    s_addc_u32 s45, s7, 0')
    a(f'    s_mov_b32 s46, {T_BYTES}')
    a('    s_mov_b32 s47, 0x00020000')
    a('    s_waitcnt vmcnt(0) lgkmcnt(0)')
    a('    s_barrier')
    for r in range(32, 64):
        a(f'    v_mov_b32 v{r}, 0')
    steps = [(jt, ks) for jt in range(4) for ks in range(2)]
    def rd(i):
        jt, ks = steps[i]
        b = 64 + (i & 1) * 8
        off = ks*32*128 + jt*32
        a(f'    ds_read_b64_tr_b16 v[{b}:{b+1}], v7 offset:{off}')
        a(f'    ds_read_b64_tr_b16 v[{b+2}:{b+3}], v7 offset:{off+512}')
        a(f'    ds_read_b64_tr_b16 v[{b+4}:{b+5}], v7 offset:{off+8192}')
        a(f'    ds_read_b64_tr_b16 v[{b+6}:{b+7}], v7 offset:{off+8192+512}')
    rd(0)
    for i in range(8):
        jt, ks = steps[i]
        b = 64 + (i & 1) * 8
        if i + 1 < 8:
            rd(i + 1)
            a('    s_waitcnt lgkmcnt(4)')
        else:
            a('    s_waitcnt lgkmcnt(0)')
        x = 24 + 4*ks
        a(f'    v_mfma_f32_16x16x32_bf16 v[{32+4*jt}:{35+4*jt}], v[{b}:{b+3}], v[{x}:{x+3}], v[{32+4*jt}:{35+4*jt}]')
        a(f'    v_mfma_f32_16x16x32_bf16 v[{48+4*jt}:{51+4*jt}], v[{b+4}:{b+7}], v[{x}:{x+3}], v[{48+4*jt}:{51+4*jt}]')
    a('    s_nop 7')
    a('    s_nop 3')
    a(f'    s_mov_b32 s27, {hex(f2u(-LOG2E))}')
    a('    s_mov_b32 s28, 0xffff0000')
    a('    s_mov_b32 s29, 0x80000000')
    a('    v_lshlrev_b32 v9, 8, v4')
    a('    v_lshl_add_u32 v9, v5, 4, v9')
    for jt in range(4):
        for r in range(4):
            p = 32 + 4*jt + r; q = 48 + 4*jt + r
            a(f'    v_mul_f32 v{p}, s27, v{p}')
            a(f'    v_cvt_f16_f32 v{p}, v{p}')
            a(f'    v_and_b32 v{p}, 0xffff, v{p}')
            a(f'    v_and_b32 v10, 0x7fffffff, v{q}')
            a(f'    v_sub_u32 v10, v10, v{p}')
            a(f'    v_add_u32 v10, 0x8000, v10')
            a(f'    v_max_i32 v10, 0, v10')
            a(f'    v_and_or_b32 v10, v10, s28, v{p}')
            a(f'    v_and_or_b32 v{p}, v{q}, s29, v10')
        a(f'    buffer_store_dwordx4 v[{32+4*jt}:{35+4*jt}], v9, s[44:47], 0 offen offset:{jt*64}')
    a('    s_cmp_eq_u32 s3, 0')
    a('    s_cbranch_scc0 K1_END')
    a('    s_cmp_eq_u32 s20, 0')
    a('    s_cbranch_scc0 K1_END')
    a('    v_mov_b32 v10, 0x7c00')
    a(f'    v_lshlrev_b32 v11, 2, v2')
    a(f'    v_add_u32 v11, {N*256}, v11')
    a('    buffer_store_dword v10, v11, s[44:47], 0 offen')
    a.label('K1_END')
    a('    s_endpgm')

CAP = 4096
L2_SRC = 0; L2_EAV = 16384; L2_ACC = 32768; L2_EAT = 53248; L2_CNT = 63488; L2_FLG = 63744
K2_LDS = 64000
U = 4

def gen_k2(a):
    sB = 2
    sWAVE = 3
    SRD_DESC = 12; SRD_REC = 16; SRD_T = 20; SRD_AU = 24; SRD_X = 28; SRD_OUT = 32; SRD_WC = 36
    sMODE = 40
    sPASS = 41
    sG0 = 42; sG1 = 43; sGEND = 44; sLEFT = 45; sNODE = 46; sT0 = 47; sT1 = 48; sSAFE = 49; sGT = 50
    sEX = 52
    sEX2 = 54
    vTID = 0; vLANE = 1
    vWC = 4
    vEA = 8
    vDEN = 12
    vNUM = 16
    vT = 20
    vDAT = 24
    vP = 40
    vEV = 48
    vSA = 50
    vACC = 51
    vEAA = 52
    vGS = 53
    vQ16 = 54
    vAU = 56
    vX = 60
    vR = 64
    vRK = 80
    vA = 88
    vCNT = 100; vRO = 101; vI = 102; vCN = 103; vB = 104

    a('.p2align 8')
    a('.type k2_kernel,@function')
    a.label('k2_kernel')
    a(f'    s_cmp_ge_u32 s2, {NB}')
    a('    s_cbranch_scc1 K2_END')
    a('    s_load_dwordx2 s[4:5], s[0:1], 0       ; x')
    a('    s_load_dwordx2 s[8:9], s[0:1], 48      ; w_c')
    a('    s_load_dwordx2 s[10:11], s[0:1], 72    ; out')
    a('    s_load_dwordx2 s[6:7], s[0:1], 88      ; ws')
    a(f'    v_and_b32 v{vLANE}, 63, v0')
    a(f'    v_lshrrev_b32 v{vA}, 6, v0')
    a('    s_nop 0')
    a(f'    v_readfirstlane_b32 s{sWAVE}, v{vA}')
    a(f'    v_and_b32 v{vQ16}, 15, v0')
    a(f'    v_lshlrev_b32 v{vQ16}, 4, v{vQ16}      ; q*16')
    a(f'    v_mov_b32 v{vA}, 0')
    a(f'    v_mov_b32 v{vA+1}, 0')
    a(f'    v_mov_b32 v{vA+2}, 0')
    a(f'    v_mov_b32 v{vA+3}, 0')
    a(f'    v_lshlrev_b32 v{vA+4}, 4, v0           ; t*16')
    a(f'    ds_write_b128 v{vA+4}, v[{vA}:{vA+3}] offset:{L2_ACC}')
    a(f'    v_cmp_gt_u32 vcc, {20480//16 - 1024}, v0')
    a(f'    s_and_saveexec_b64 s[{sEX}:{sEX+1}], vcc')
    a(f'    ds_write_b128 v{vA+4}, v[{vA}:{vA+3}] offset:{L2_ACC + 16384}')
    a(f'    s_mov_b64 exec, s[{sEX}:{sEX+1}]')
    a(f'    v_cmp_gt_u32 vcc, 4, v0')
    a(f'    s_and_saveexec_b64 s[{sEX}:{sEX+1}], vcc')
    a(f'    v_lshlrev_b32 v{vA+5}, 2, v0')
    a(f'    ds_write_b32 v{vA+5}, v{vA} offset:{L2_FLG}')
    a(f'    s_mov_b64 exec, s[{sEX}:{sEX+1}]')
    a('    s_waitcnt lgkmcnt(0)')
    srd(a, SRD_DESC, 6, 7, NC*DESC_STRIDE, off=WS_DESC)
    srd(a, SRD_REC, 6, 7, NC*REC_STRIDE, off=WS_REC)
    srd(a, SRD_T, 6, 7, 0, off=WS_T, stride=256, nrec=N+1)
    srd(a, SRD_AU, 6, 7, AU_BYTES, off=WS_AU)
    srd(a, SRD_X, 4, 5, N*128)
    srd(a, SRD_OUT, 10, 11, N*128)
    srd(a, SRD_WC, 8, 9, 128)
    a(f'    v_lshrrev_b32 v{vA}, 2, v0             ; c')
    a(f'    v_lshlrev_b32 v{vA}, 10, v{vA}         ; c*1024')
    a(f'    s_lshl_b32 s{sT0}, s{sB}, 2')
    a(f'    v_mov_b32 v{vCNT}, 0')
    a(f'    v_cmp_gt_u32 vcc, {NC*4}, v0')
    a(f'    s_and_saveexec_b64 s[{sEX}:{sEX+1}], vcc')
    a(f'    s_cbranch_execz K2_NODESC')
    a(f'    buffer_load_dword v{vCNT}, v{vA}, s[{SRD_DESC}:{SRD_DESC+3}], s{sT0} offen')
    a.label('K2_NODESC')
    a(f'    s_mov_b64 exec, s[{sEX}:{sEX+1}]')
    a(f'    s_mul_i32 s{sT0}, s{sB}, {NPB*256}')
    a(f'    s_mul_i32 s{sT1}, s{sB}, {NPB*128}')
    a(f'    v_lshlrev_b32 v{vA}, 4, v0             ; t*16 = node*256 + q*16')
    a(f'    v_lshlrev_b32 v{vA+1}, 3, v0           ; t*8')
    a(f'    v_mov_b32 v{vAU}, 0')
    a(f'    v_mov_b32 v{vAU+1}, 0')
    a(f'    v_mov_b32 v{vAU+2}, 0')
    a(f'    v_mov_b32 v{vAU+3}, 0')
    a(f'    v_cmp_gt_u32 vcc, {NPB*16}, v0')
    a(f'    s_and_saveexec_b64 s[{sEX}:{sEX+1}], vcc')
    a(f'    s_cbranch_execz K2_NOAU')
    a(f'    buffer_load_dwordx4 v[{vAU}:{vAU+3}], v{vA}, s[{SRD_AU}:{SRD_AU+3}], s{sT0} offen')
    a(f'    buffer_load_dwordx2 v[{vX}:{vX+1}], v{vA+1}, s[{SRD_X}:{SRD_X+3}], s{sT1} offen')
    a.label('K2_NOAU')
    a(f'    s_mov_b64 exec, s[{sEX}:{sEX+1}]')
    a(f'    v_lshrrev_b32 v{vA+2}, 1, v{vQ16}      ; q*8')
    a(f'    buffer_load_dwordx2 v[{vA+4}:{vA+5}], v{vA+2}, s[{SRD_WC}:{SRD_WC+3}], 0 offen')
    for k in range(U):
        a(f'    v_mov_b32 v{vP+2*k+1}, v{vQ16}')
    a(f'    s_mov_b32 s{sMODE}, 0')
    a(f'    s_mov_b32 s{sPASS}, 0')
    a('    s_waitcnt vmcnt(0)')
    a(f'    s_mov_b32 s{sT0}, {hex(f2u(-LOG2E))}')
    a(f'    v_lshlrev_b32 v{vWC}, 16, v{vA+4}')
    a(f'    v_and_b32 v{vWC+1}, 0xffff0000, v{vA+4}')
    a(f'    v_lshlrev_b32 v{vWC+2}, 16, v{vA+5}')
    a(f'    v_and_b32 v{vWC+3}, 0xffff0000, v{vA+5}')
    for k in range(4):
        a(f'    v_mul_f32 v{vWC+k}, s{sT0}, v{vWC+k}')
    for k in range(4):
        a(f'    v_cvt_f32_f16 v{vA+k}, v{vAU+k}')
    a(f'    v_max3_f32 v{vA+4}, |v{vA}|, |v{vA+1}|, |v{vA+2}|')
    a(f'    v_max_f32 v{vA+4}, v{vA+4}, |v{vA+3}|')
    a(f'    s_mov_b32 s{sT0}, {hex(f2u(60.0))}')
    a(f'    v_cmp_nle_f32 vcc, v{vA+4}, s{sT0}')
    a(f'    s_and_saveexec_b64 s[{sEX}:{sEX+1}], vcc')
    a(f'    s_cbranch_execz K2_GUARD_OK')
    a(f'    v_mov_b32 v{vA+5}, 1')
    a(f'    v_mov_b32 v{vA+6}, 0')
    a(f'    ds_write_b32 v{vA+6}, v{vA+5} offset:{L2_FLG+4}')
    a.label('K2_GUARD_OK')
    a(f'    s_mov_b64 exec, s[{sEX}:{sEX+1}]')
    a.label('K2_PASS')
    a(f'    v_mov_b32 v{vA+8}, {N}')
    a(f'    v_mov_b32 v{vA+9}, {N}')
    a(f'    v_mov_b32 v{vA+10}, {N}')
    a(f'    v_mov_b32 v{vA+11}, {N}')
    a(f'    v_lshlrev_b32 v{vA+5}, 4, v0')
    a(f'    ds_write_b128 v{vA+5}, v[{vA+8}:{vA+11}] offset:{L2_SRC}')
    a(f'    v_mov_b32 v{vA+8}, 0')
    a(f'    v_mov_b32 v{vA+9}, 0')
    a(f'    v_mov_b32 v{vA+10}, 0')
    a(f'    v_mov_b32 v{vA+11}, 0')
    a(f'    ds_write_b128 v{vA+5}, v[{vA+8}:{vA+11}] offset:{L2_EAV}')
    a(f'    v_cmp_gt_u32 vcc, 64, v0')
    a(f'    s_and_saveexec_b64 s[{sEX}:{sEX+1}], vcc')
    a(f'    v_lshlrev_b32 v{vA+5}, 2, v0')
    a(f'    ds_write_b32 v{vA+5}, v{vA+8} offset:{L2_CNT}')
    a(f'    s_mov_b64 exec, s[{sEX}:{sEX+1}]')
    a(f'    s_cmp_eq_u32 s{sMODE}, 0')
    a('    s_cbranch_scc0 K2_SLOWPARAM')
    a(f'    v_lshrrev_b32 v{vA}, 2, v0')
    a(f'    v_mul_u32_u24 v{vRO}, {REC_STRIDE}, v{vA}')
    a(f'    v_and_b32 v{vA+1}, 0xffff, v{vCNT}      ; start')
    a(f'    v_lshl_add_u32 v{vRO}, v{vA+1}, 3, v{vRO}')
    a(f'    v_and_b32 v{vI}, 3, v0')
    a(f'    v_lshl_add_u32 v{vRO}, v{vI}, 4, v{vRO}')
    a(f'    v_lshlrev_b32 v{vI}, 1, v{vI}')
    a(f'    v_lshrrev_b32 v{vCN}, 16, v{vCNT}     ; cnt')
    a(f'    s_mov_b32 s{sT1}, 8')
    a(f'    v_cmp_lt_u32 vcc, 32, v{vCN}')
    a(f'    s_and_saveexec_b64 s[{sEX}:{sEX+1}], vcc')
    a(f'    s_cbranch_execz K2_NOOVF')
    a(f'    v_mov_b32 v{vA+5}, 1')
    a(f'    v_mov_b32 v{vA+6}, 0')
    a(f'    ds_write_b32 v{vA+6}, v{vA+5} offset:{L2_FLG}')
    a.label('K2_NOOVF')
    a(f'    s_mov_b64 exec, s[{sEX}:{sEX+1}]')
    a('    s_branch K2_PARAMDONE')
    a.label('K2_SLOWPARAM')
    a(f'    s_mul_i32 s{sT0}, s{sPASS}, {DESC_STRIDE}')
    a(f'    s_lshl_b32 s{sT1}, s{sB}, 2')
    a(f'    s_add_u32 s{sT0}, s{sT0}, s{sT1}')
    a(f'    v_mov_b32 v{vA}, 0')
    a(f'    buffer_load_dword v{vCN}, v{vA}, s[{SRD_DESC}:{SRD_DESC+3}], s{sT0} offen')
    a(f'    s_mul_i32 s{sT0}, s{sPASS}, {REC_STRIDE}')
    a('    s_waitcnt vmcnt(0)')
    a(f'    v_and_b32 v{vA+1}, 0xffff, v{vCN}')
    a(f'    v_lshlrev_b32 v{vRO}, 3, v{vA+1}')
    a(f'    v_add_u32 v{vRO}, s{sT0}, v{vRO}')
    a(f'    v_lshl_add_u32 v{vRO}, v0, 4, v{vRO}')
    a(f'    v_lshlrev_b32 v{vI}, 1, v0')
    a(f'    v_lshrrev_b32 v{vCN}, 16, v{vCN}')
    a(f'    s_mov_b32 s{sT1}, 2048')
    a.label('K2_PARAMDONE')
    a(f'    s_lshl_b32 s{sT0}, s{sT1}, 3')
    a(f'    v_mov_b32 v{vA}, v{vI}')
    a(f'    v_mov_b32 v{vA+1}, v{vRO}')
    for r in range(4):
        a(f'    v_cmp_lt_u32 vcc, v{vA}, v{vCN}')
        a(f'    s_and_saveexec_b64 s[{sEX}:{sEX+1}], vcc')
        a(f'    s_cbranch_execz K2_LD{r}_SKIP')
        a(f'    buffer_load_dwordx4 v[{vR+4*r}:{vR+4*r+3}], v{vA+1}, s[{SRD_REC}:{SRD_REC+3}], 0 offen')
        a.label(f'K2_LD{r}_SKIP')
        a(f'    s_mov_b64 exec, s[{sEX}:{sEX+1}]')
        if r < 3:
            a(f'    v_add_u32 v{vA}, s{sT1}, v{vA}')
            a(f'    v_add_u32 v{vA+1}, s{sT0}, v{vA+1}')
    a('    s_waitcnt lgkmcnt(0)')
    a('    s_barrier')
    a('    s_waitcnt vmcnt(0)')
    a(f'    v_mov_b32 v{vA+2}, 1')
    a(f'    v_mov_b32 v{vA}, v{vI}')
    for r in range(4):
        for h in range(2):
            k = 2*r + h
            a(f'    v_add_u32 v{vA+3}, {h}, v{vA}')
            a(f'    v_cmp_lt_u32 vcc, v{vA+3}, v{vCN}')
            a(f'    s_and_saveexec_b64 s[{sEX}:{sEX+1}], vcc')
            a(f'    s_cbranch_execz K2_RK{k}_SKIP')
            a(f'    v_lshrrev_b32 v{vA+4}, 16, v{vR+4*r+2*h}')
            a(f'    v_lshlrev_b32 v{vA+4}, 2, v{vA+4}')
            a(f'    ds_add_rtn_u32 v{vRK+k}, v{vA+4}, v{vA+2} offset:{L2_CNT}')
            a.label(f'K2_RK{k}_SKIP')
            a(f'    s_mov_b64 exec, s[{sEX}:{sEX+1}]')
        if r < 3:
            a(f'    v_add_u32 v{vA}, s{sT1}, v{vA}')
    a('    s_waitcnt lgkmcnt(0)')
    a('    s_barrier')
    a(f'    v_mov_b32 v{vA}, 0')
    a(f'    ds_read_b64 v[{vA+4}:{vA+5}], v{vA} offset:{L2_FLG}')
    a(f'    v_lshlrev_b32 v{vA+1}, 2, v{vLANE}')
    a(f'    ds_read_b32 v{vA+6}, v{vA+1} offset:{L2_CNT}')
    a('    s_waitcnt lgkmcnt(0)')
    a(f'    v_readfirstlane_b32 s{sT0}, v{vA+4}')
    a(f'    v_readfirstlane_b32 s{sSAFE}, v{vA+5}')
    a(f'    v_add_u32 v{vA+6}, 3, v{vA+6}')
    a(f'    v_lshrrev_b32 v{vA+6}, 2, v{vA+6}')
    a(f'    v_mov_b32 v{vGS}, v{vA+6}')
    dpp_scan(a, vGS)
    a(f'    v_sub_u32 v{vGS}, v{vGS}, v{vA+6}')
    a('    s_nop 0')
    a(f'    v_readlane_b32 s{sGT}, v{vGS}, {NPB}')
    a(f'    v_cmp_lt_u32 vcc, {NPB}, v{vLANE}')
    a('    s_nop 1')
    a(f'    v_cndmask_b32 v{vGS}, v{vGS}, -1, vcc')
    a(f'    s_cmp_eq_u32 s{sMODE}, 0')
    a('    s_cbranch_scc0 K2_NOSWITCH')
    a(f'    s_cmp_gt_u32 s{sGT}, {(CAP - 64)//4}')
    a(f'    s_cselect_b32 s{sT1}, 1, 0')
    a(f'    s_or_b32 s{sT0}, s{sT0}, s{sT1}')
    a(f'    s_cmp_eq_u32 s{sT0}, 0')
    a('    s_cbranch_scc1 K2_NOSWITCH')
    a(f'    s_mov_b32 s{sMODE}, 1')
    a(f'    s_mov_b32 s{sPASS}, 0')
    a('    s_barrier')
    a('    s_branch K2_PASS')
    a.label('K2_NOSWITCH')
    a(f'    v_cmp_gt_u32 vcc, {NPB*16}, v0')
    a(f'    s_and_saveexec_b64 s[{sEX}:{sEX+1}], vcc')
    a(f'    s_cbranch_execz K2_NOEAT')
    for k in range(4):
        a(f'    v_cvt_f32_f16 v{vA+8+k}, v{vAU+k}')
    a(f'    s_cmp_eq_u32 s{sSAFE}, 0')
    a('    s_cbranch_scc0 K2_EAT_W')
    for k in range(4):
        a(f'    v_exp_f32 v{vA+8+k}, v{vA+8+k}')
    a.label('K2_EAT_W')
    a(f'    v_lshlrev_b32 v{vA+1}, 4, v0')
    a('    s_nop 0')
    a(f'    ds_write_b128 v{vA+1}, v[{vA+8}:{vA+11}] offset:{L2_EAT}')
    a.label('K2_NOEAT')
    a(f'    s_mov_b64 exec, s[{sEX}:{sEX+1}]')
    for k in range(8):
        rec = vR + 2*k
        a(f'    v_lshrrev_b32 v{vA+4}, 16, v{rec}')
        a(f'    v_and_b32 v{vA+4}, 63, v{vA+4}')
        a(f'    v_lshlrev_b32 v{vA+4}, 2, v{vA+4}')
        a(f'    ds_bpermute_b32 v{vB+k}, v{vA+4}, v{vGS}')
    a(f'    s_cmp_eq_u32 s{sMODE}, 0')
    a(f'    s_mov_b32 s{sT1}, 2048')
    a(f'    s_cselect_b32 s{sT1}, 8, s{sT1}')
    a(f'    v_mov_b32 v{vA}, v{vI}')
    a('    s_waitcnt lgkmcnt(0)')
    for r in range(4):
        for h in range(2):
            k = 2*r + h
            rec = vR + 2*k
            a(f'    v_add_u32 v{vA+3}, {h}, v{vA}')
            a(f'    v_cmp_lt_u32 vcc, v{vA+3}, v{vCN}')
            a(f'    s_and_saveexec_b64 s[{sEX}:{sEX+1}], vcc')
            a(f'    s_cbranch_execz K2_SC{k}_SKIP')
            a(f'    v_lshl_add_u32 v{vA+5}, v{vB+k}, 2, v{vRK+k}')
            a(f'    v_lshlrev_b32 v{vA+5}, 2, v{vA+5}')
            a(f'    v_and_b32 v{vA+6}, 0xffff, v{rec}')
            a(f'    ds_write_b32 v{vA+5}, v{vA+6} offset:{L2_SRC}')
            a(f'    ds_write_b32 v{vA+5}, v{rec+1} offset:{L2_EAV}')
            a.label(f'K2_SC{k}_SKIP')
            a(f'    s_mov_b64 exec, s[{sEX}:{sEX+1}]')
        if r < 3:
            a(f'    v_add_u32 v{vA}, s{sT1}, v{vA}')
    a('    s_waitcnt lgkmcnt(0)')
    a('    s_barrier')
    a(f'    s_mul_i32 s{sG0}, s{sGT}, s{sWAVE}')
    a(f'    s_add_u32 s{sG1}, s{sG0}, s{sGT}')
    a(f'    s_lshr_b32 s{sG0}, s{sG0}, 4')
    a(f'    s_lshr_b32 s{sG1}, s{sG1}, 4')
    a(f'    s_cmp_ge_u32 s{sG0}, s{sG1}')
    a('    s_cbranch_scc1 K2_MAIN_DONE')
    a(f'    v_lshrrev_b32 v{vSA}, 4, v{vLANE}')
    a(f'    v_lshlrev_b32 v{vSA}, 2, v{vSA}         ; slot*4')
    a(f'    s_lshl_b32 s{sT0}, s{sG0}, 4')
    a(f'    v_add_u32 v{vSA}, s{sT0}, v{vSA}')
    for k in range(U):
        a(f'    ds_read_b32 v{vP+2*k}, v{vSA} offset:{L2_SRC + 16*k}')
    a(f'    ds_read_b32 v{vEV}, v{vSA} offset:{L2_EAV}')
    a('    s_waitcnt lgkmcnt(0)')
    for k in range(U):
        a(f'    buffer_load_dwordx4 v[{vDAT+4*k}:{vDAT+4*k+3}], v[{vP+2*k}:{vP+2*k+1}], s[{SRD_T}:{SRD_T+3}], 0 idxen offen')
    a(f'    ds_read_b32 v{vP}, v{vSA} offset:{L2_SRC + 16*U}')
    a(f'    s_mov_b32 s{sGEND}, s{sG0}')
    a(f'    s_cmp_eq_u32 s{sSAFE}, 0')
    a('    s_cbranch_scc0 K2S_ENTER')
    a('    s_branch K2F_ENTER')

    def next_node(pfx, k):
        a(f'    v_cmp_ge_u32 vcc, s{sGEND}, v{vGS}')
        a(f'    s_bcnt1_i32_b64 s{sT0}, vcc')
        a(f'    s_nop 0')
        a(f'    v_readlane_b32 s{sT1}, v{vGS}, s{sT0}')
        a(f'    s_sub_u32 s{sNODE}, s{sT0}, 1')
        a(f'    s_lshl_b32 s{sT0}, s{sNODE}, 8')
        a(f'    v_add_u32 v{vEAA}, s{sT0}, v{vQ16}')
        a(f'    ds_read_b128 v[{vEA}:{vEA+3}], v{vEAA} offset:{L2_EAT}')
        a(f'    s_min_u32 s{sT1}, s{sT1}, s{sG1}')
        a(f'    s_sub_u32 s{sLEFT}, s{sT1}, s{sGEND}')
        a(f'    s_sub_u32 s{sLEFT}, s{sLEFT}, 1')
        a(f'    s_mov_b32 s{sGEND}, s{sT1}')

    def flush():
        for i in range(4):
            a(f'    ds_add_f32 v{vACC}, v{vDEN+i} offset:{L2_ACC + 4*i}')
        for i in range(4):
            a(f'    ds_add_f32 v{vACC}, v{vNUM+i} offset:{L2_ACC + 256 + 4*i}')

    def step(k, safe, init):
        d = vDAT + 4*k
        ev = vEV + (k & 1); evn = vEV + ((k+1) & 1)
        pn = vP + 2*((k+1) % U)
        for i in range(4):
            a(f'    v_fma_mix_f32 v{vT+i}, v{ev}, v{vWC+i}, v{d+i} op_sel:[0,0,0] op_sel_hi:[0,0,1]')
        a(f'    ds_read_b32 v{evn}, v{vSA} offset:{L2_EAV + 16*(k+1)}')
        a(f'    ds_read_b32 v{pn}, v{vSA} offset:{L2_SRC + 16*(k+1+U)}')
        if init:
            a('    s_waitcnt lgkmcnt(10)')
        if safe:
            a(f'    v_pk_add_f32 v[{vT}:{vT+1}], v[{vT}:{vT+1}], v[{vEA}:{vEA+1}]')
            a(f'    v_pk_add_f32 v[{vT+2}:{vT+3}], v[{vT+2}:{vT+3}], v[{vEA+2}:{vEA+3}]')
        for i in range(4):
            a(f'    v_exp_f32 v{vT+i}, v{vT+i}')
        if safe:
            a(f'    v_pk_add_f32 v[{vT}:{vT+1}], v[{vT}:{vT+1}], 1.0 op_sel_hi:[1,0]')
            a(f'    v_pk_add_f32 v[{vT+2}:{vT+3}], v[{vT+2}:{vT+3}], 1.0 op_sel_hi:[1,0]')
        else:
            a(f'    v_pk_fma_f32 v[{vT}:{vT+1}], v[{vEA}:{vEA+1}], v[{vT}:{vT+1}], 1.0 op_sel_hi:[1,1,0]')
            a(f'    v_pk_fma_f32 v[{vT+2}:{vT+3}], v[{vEA+2}:{vEA+3}], v[{vT+2}:{vT+3}], 1.0 op_sel_hi:[1,1,0]')
        if init:
            for i in range(4):
                a(f'    v_rcp_f32 v{vDEN+i}, v{vT+i}')
            a('    s_nop 0')
            a(f'    v_pk_mul_f32 v[{vNUM}:{vNUM+1}], v[{vDEN}:{vDEN+1}], v[{d}:{d+1}]')
            a(f'    v_pk_mul_f32 v[{vNUM+2}:{vNUM+3}], v[{vDEN+2}:{vDEN+3}], v[{d+2}:{d+3}]')
        else:
            for i in range(4):
                a(f'    v_rcp_f32 v{vT+i}, v{vT+i}')
            a(f'    v_pk_add_f32 v[{vDEN}:{vDEN+1}], v[{vDEN}:{vDEN+1}], v[{vT}:{vT+1}]')
            a(f'    v_pk_add_f32 v[{vDEN+2}:{vDEN+3}], v[{vDEN+2}:{vDEN+3}], v[{vT+2}:{vT+3}]')
            a(f'    v_pk_fma_f32 v[{vNUM}:{vNUM+1}], v[{vT}:{vT+1}], v[{d}:{d+1}], v[{vNUM}:{vNUM+1}]')
            a(f'    v_pk_fma_f32 v[{vNUM+2}:{vNUM+3}], v[{vT+2}:{vT+3}], v[{d+2}:{d+3}], v[{vNUM+2}:{vNUM+3}]')
        a(f'    buffer_load_dwordx4 v[{d}:{d+3}], v[{vP+2*k}:{vP+2*k+1}], s[{SRD_T}:{SRD_T+3}], 0 idxen offen')
        if k == U-1:
            a(f'    v_add_u32 v{vSA}, {16*U}, v{vSA}')

    for pfx, safe in (('K2F', False), ('K2S', True)):
        a.label(f'{pfx}_ENTER')
        next_node(pfx, 0)
        a(f'    s_lshl_b32 s{sT0}, s{sNODE}, 9')
        a(f'    v_add_u32 v{vACC}, s{sT0}, v{vQ16}')
        a('    s_waitcnt vmcnt(3) lgkmcnt(0)')
        step(0, safe, True)
        a(f'    s_branch {pfx}_STEP1')
        for k in range(U):
            a.label(f'{pfx}_STEP{k}')
            a(f'    s_waitcnt vmcnt({U-1}) lgkmcnt(0)')
            a(f'    s_sub_u32 s{sLEFT}, s{sLEFT}, 1')
            a(f'    s_cbranch_scc1 {pfx}_FLUSH{k}')
            step(k, safe, False)
            if k == U-1:
                a(f'    s_branch {pfx}_STEP0')
        for k in range(U):
            a.label(f'{pfx}_FLUSH{k}')
            a(f'    s_cmp_ge_u32 s{sGEND}, s{sG1}')
            a(f'    s_cbranch_scc1 K2_LAST')
            next_node(pfx, k)
            flush()
            a(f'    s_lshl_b32 s{sT0}, s{sNODE}, 9')
            a(f'    v_add_u32 v{vACC}, s{sT0}, v{vQ16}')
            step(k, safe, True)
            a(f'    s_branch {pfx}_STEP{(k+1) % U}')
    a.label('K2_LAST')
    flush()
    a.label('K2_MAIN_DONE')
    a('    s_waitcnt vmcnt(0) lgkmcnt(0)')
    a('    s_barrier')
    a(f'    s_cmp_eq_u32 s{sMODE}, 0')
    a('    s_cbranch_scc1 K2_EPI')
    a(f'    s_add_u32 s{sPASS}, s{sPASS}, 1')
    a(f'    s_cmp_lt_u32 s{sPASS}, {NC}')
    a('    s_cbranch_scc1 K2_PASS')
    a.label('K2_EPI')
    a(f'    v_cmp_gt_u32 vcc, {NPB*16}, v0')
    a(f'    s_and_saveexec_b64 s[{sEX}:{sEX+1}], vcc')
    a('    s_cbranch_execz K2_END')
    a(f'    v_lshrrev_b32 v{vA}, 4, v0')
    a(f'    v_lshlrev_b32 v{vA}, 9, v{vA}')
    a(f'    v_add_u32 v{vA}, v{vA}, v{vQ16}')
    a(f'    ds_read_b128 v[{vDEN}:{vDEN+3}], v{vA} offset:{L2_ACC}')
    a(f'    ds_read_b128 v[{vNUM}:{vNUM+3}], v{vA} offset:{L2_ACC+256}')
    a(f'    s_mov_b32 s{sT0}, {hex(f2u(1e-6))}')
    a(f'    v_lshlrev_b32 v{vT}, 16, v{vX}')
    a(f'    v_and_b32 v{vT+1}, 0xffff0000, v{vX}')
    a(f'    v_lshlrev_b32 v{vT+2}, 16, v{vX+1}')
    a(f'    v_and_b32 v{vT+3}, 0xffff0000, v{vX+1}')
    a('    s_waitcnt lgkmcnt(0)')
    for i in range(4):
        a(f'    v_add_f32 v{vDEN+i}, s{sT0}, v{vDEN+i}')
    for i in range(4):
        a(f'    v_rcp_f32 v{vDEN+i}, v{vDEN+i}')
    a('    s_nop 0')
    for i in range(4):
        a(f'    v_fma_f32 v{vNUM+i}, v{vNUM+i}, v{vDEN+i}, v{vAU+i}    ; z = U + agg')
    for i in range(4):
        a(f'    v_mul_f32 v{vDEN+i}, 0, v{vNUM+i}                     ; 0*z')
        a(f'    v_cmp_lt_f32 vcc, 0, v{vNUM+i}')
        a('    s_nop 1')
        a(f'    v_cndmask_b32 v{vNUM+i}, v{vDEN+i}, v{vNUM+i}, vcc')
        a(f'    v_add_f32 v{vNUM+i}, v{vNUM+i}, v{vT+i}')
    a(f'    v_cvt_pk_bf16_f32 v{vDEN}, v{vNUM}, v{vNUM+1}')
    a(f'    v_cvt_pk_bf16_f32 v{vDEN+1}, v{vNUM+2}, v{vNUM+3}')
    a(f'    s_mul_i32 s{sT1}, s{sB}, {NPB*128}')
    a(f'    v_lshlrev_b32 v{vA+1}, 3, v0')
    a(f'    buffer_store_dwordx2 v[{vDEN}:{vDEN+1}], v{vA+1}, s[{SRD_OUT}:{SRD_OUT+3}], s{sT1} offen')
    a.label('K2_END')
    a('    s_endpgm')

def kd(a, name, vgpr, sgpr):
    a(f'.amdhsa_kernel {name}')
    a(f'  .amdhsa_next_free_vgpr {vgpr}')
    a(f'  .amdhsa_next_free_sgpr {sgpr}')
    a(f'  .amdhsa_accum_offset {((vgpr+3)//4)*4}')
    a('  .amdhsa_group_segment_fixed_size 0')
    a('  .amdhsa_kernarg_size 96')
    a('  .amdhsa_user_sgpr_count 2')
    a('  .amdhsa_user_sgpr_kernarg_segment_ptr 1')
    a('  .amdhsa_system_sgpr_workgroup_id_x 1')
    a('  .amdhsa_float_denorm_mode_32 3')
    a('.end_amdhsa_kernel')

def main(out):
    a = Asm()
    a(f'; @launch kernel=k1_kernel grid=({K1_GRID},1,1) block=(640,1,1) lds={K1_LDS}')
    a(f'; @launch kernel=k2_kernel grid=({NB},1,1) block=(1024,1,1) lds={K2_LDS}')
    a('.amdgcn_target "amdgcn-amd-amdhsa--gfx950"')
    a('.text')
    a('.globl k1_kernel')
    gen_k1(a)
    a('.globl k2_kernel')
    gen_k2(a)
    a('.section .rodata,"a"')
    a('.p2align 6')
    kd(a, 'k1_kernel', 80, 64)
    a('.p2align 6')
    kd(a, 'k2_kernel', 112, 64)
    open(out, 'w').write(a.text())

if __name__ == '__main__':
    main(sys.argv[1] if len(sys.argv) > 1 else 'standalone__edge_featured_mpnn_gatedgcn__graph.s')
```

```python
import sys, math

N = 10000; E = 640000
NPB = 40
NB = 250
EPC = 2560
NC = 250
LOG2E = 1.4426950408889634

WS_REC  = 0
REC_STRIDE = EPC*8
WS_DESC = 5242880
DESC_STRIDE = 1024
WS_T    = 6291456
WS_AU   = 9437184
T_BYTES = (N+1)*256
AU_BYTES = N*256

import struct
def f2u(f): return struct.unpack('<I', struct.pack('<f', f))[0]

import os
STAMP = int(os.environ.get('STAMP', '0'))
WS_STAMP = 128 << 20
ST0 = 64
def stamp(a, i, real=False):
    if STAMP:
        a(f"    {'s_memrealtime' if real else 's_memtime'} s[{ST0+2*i}:{ST0+2*i+1}]")
def stamp_flush(a, nst, wave_sgpr, wg_sgpr, base_kernel, tidreg='v0'):
    if not STAMP: return
    a('    s_waitcnt lgkmcnt(0)')
    a(f'    s_add_u32 s96, s6, {WS_STAMP + base_kernel*(4<<20)}')
    a('    s_addc_u32 s97, s7, 0')
    a(f'    s_mov_b32 s98, {4<<20}')
    a('    s_mov_b32 s99, 0x00020000')
    a(f'    s_lshl_b32 s100, s{wg_sgpr}, 4')
    a(f'    s_add_u32 s100, s100, s{wave_sgpr}')
    a(f'    s_lshl_b32 s100, s100, 6')
    a('    s_mov_b64 exec, 1')
    a('    v_mov_b32 v2, 0')
    for i in range(nst):
        a(f'    v_mov_b32 v3, s{ST0+2*i}')
        a(f'    buffer_store_dword v3, v2, s[96:99], s100 offen offset:{4*i}')
    a('    s_waitcnt vmcnt(0)')

class Asm:
    def __init__(self): self.l = []
    def __call__(self, s=''):
        for line in s.split('\n'):
            self.l.append(line)
    def label(self, n): self.l.append(n + ':')
    def text(self): return '\n'.join(self.l) + '\n'

def srd(a, sreg, base_lo, base_hi, nbytes, off=0, stride=0, nrec=None):
    if off:
        a(f'    s_add_u32 s{sreg}, s{base_lo}, {off}')
        a(f'    s_addc_u32 s{sreg+1}, s{base_hi}, 0')
    else:
        a(f'    s_mov_b32 s{sreg}, s{base_lo}')
        a(f'    s_mov_b32 s{sreg+1}, s{base_hi}')
    if stride:
        a(f'    s_and_b32 s{sreg+1}, s{sreg+1}, 0xffff')
        a(f'    s_or_b32 s{sreg+1}, s{sreg+1}, {stride << 16}')
        a(f'    s_mov_b32 s{sreg+2}, {nrec}')
    else:
        a(f'    s_mov_b32 s{sreg+2}, {nbytes}')
    a(f'    s_mov_b32 s{sreg+3}, 0x00020000')

def dpp_scan(a, v):
    for sh in (1, 2, 4, 8):
        a('    s_nop 1')
        a(f'    v_add_u32_dpp v{v}, v{v}, v{v} row_shr:{sh} row_mask:0xf bank_mask:0xf')
    a('    s_nop 1')
    a(f'    v_add_u32_dpp v{v}, v{v}, v{v} row_bcast:15 row_mask:0xa bank_mask:0xf')
    a('    s_nop 1')
    a(f'    v_add_u32_dpp v{v}, v{v}, v{v} row_bcast:31 row_mask:0xc bank_mask:0xf')
    a('    s_nop 1')

K1_TWG = 125
K1_GRID = NC + K1_TWG
K1_LDS = 32768
L1_HIST = 0; L1_START = 1024; L1_STAGE = 2048

def gen_k1(a):
    a('.p2align 8')
    a('.type k1_kernel,@function')
    a.label('k1_kernel')
    a(f'    s_cmp_ge_u32 s2, {K1_GRID}')
    a('    s_cbranch_scc1 K1_END')
    a(f'    s_cmp_ge_u32 s2, {NC}')
    a('    s_cbranch_scc1 K1_TABLE')
    stamp(a, 0); stamp(a, 10, True)
    a('    s_load_dwordx2 s[4:5], s[0:1], 8      ; e_attr')
    a('    s_load_dwordx4 s[8:11], s[0:1], 16')
    a('    s_load_dwordx2 s[6:7], s[0:1], 88     ; ws')
    a('    v_mov_b32 v2, 0')
    a('    v_lshlrev_b32 v1, 2, v0               ; t*4')
    a('    v_cmp_gt_u32 vcc, 256, v0')
    a('    s_and_saveexec_b64 s[30:31], vcc')
    a(f'    ds_write_b32 v1, v2 offset:{L1_HIST}')
    a('    s_mov_b64 exec, s[30:31]')
    a('    v_lshlrev_b32 v3, 4, v0               ; t*16')
    a('    v_lshlrev_b32 v4, 3, v0               ; t*8')
    a(f'    s_mul_i32 s20, s2, {EPC*4}')
    a(f'    s_mul_i32 s21, s2, {EPC*2}')
    a('    s_waitcnt lgkmcnt(0)')
    srd(a, 12, 10, 11, E*4)
    srd(a, 16, 8, 9, E*4)
    srd(a, 24, 4, 5, E*2)
    a('    buffer_load_dwordx4 v[8:11], v3, s[12:15], s20 offen     ; dst x4')
    a('    buffer_load_dwordx4 v[12:15], v3, s[16:19], s20 offen    ; src x4')
    a('    buffer_load_dwordx2 v[16:17], v4, s[24:27], s21 offen')
    srd(a, 32, 6, 7, NC*REC_STRIDE, off=WS_REC)
    srd(a, 36, 6, 7, NC*DESC_STRIDE, off=WS_DESC)
    stamp(a, 1)
    a('    s_barrier')
    a('    s_mov_b32 s22, 52429')
    a('    s_waitcnt vmcnt(2)')
    stamp(a, 2)
    for k in range(4):
        a(f'    v_mul_u32_u24 v{20+k}, s22, v{8+k}')
        a(f'    v_lshrrev_b32 v{20+k}, 21, v{20+k}      ; bucket')
    for k in range(4):
        a(f'    v_lshlrev_b32 v{24+k}, 2, v{20+k}       ; bucket*4')
    a('    v_mov_b32 v5, 1')
    for k in range(4):
        a(f'    ds_add_rtn_u32 v{28+k}, v{24+k}, v5 offset:{L1_HIST}')
    for k in range(4):
        a(f'    v_mul_u32_u24 v{20+k}, {NPB}, v{20+k}')
        a(f'    v_sub_u32 v{20+k}, v{8+k}, v{20+k}')
    a('    s_waitcnt vmcnt(0)')
    for k in range(4):
        a(f'    v_lshl_or_b32 v{32+2*k}, v{20+k}, 16, v{12+k}')
    a('    v_lshlrev_b32 v33, 16, v16')
    a('    v_and_b32 v35, 0xffff0000, v16')
    a('    v_lshlrev_b32 v37, 16, v17')
    a('    v_and_b32 v39, 0xffff0000, v17')
    a('    s_waitcnt lgkmcnt(0)')
    stamp(a, 3)
    a('    s_barrier')
    stamp(a, 4)
    a('    v_and_b32 v6, 63, v0')
    a('    v_lshlrev_b32 v6, 4, v6                ; lane*16')
    a(f'    ds_read_b128 v[40:43], v6 offset:{L1_HIST}')
    a('    s_waitcnt lgkmcnt(0)')
    a('    v_add_u32 v44, v40, v41                ; h0+h1')
    a('    v_add_u32 v45, v44, v42                ; h0+h1+h2')
    a('    v_add_u32 v46, v45, v43                ; sum4')
    a('    v_mov_b32 v47, v46')
    dpp_scan(a, 47)
    a('    v_sub_u32 v48, v47, v46')
    a('    v_add_u32 v49, v48, v40')
    a('    v_add_u32 v50, v48, v44')
    a('    v_add_u32 v51, v48, v45')
    a(f'    ds_write_b128 v6, v[48:51] offset:{L1_START}')
    a('    v_cmp_gt_u32 vcc, 64, v0')
    a('    s_and_saveexec_b64 s[30:31], vcc')
    a('    s_cbranch_execz K1_NODESC')
    for k in range(4):
        a(f'    v_lshl_or_b32 v{52+k}, v{40+k}, 16, v{48+k}')
    a(f'    s_mul_i32 s23, s2, {DESC_STRIDE}')
    a('    buffer_store_dwordx4 v[52:55], v6, s[36:39], s23 offen')
    a.label('K1_NODESC')
    a('    s_mov_b64 exec, s[30:31]')
    a('    s_waitcnt lgkmcnt(0)')
    for k in range(4):
        a(f'    ds_read_b32 v{40+k}, v{24+k} offset:{L1_START}')
    a('    s_waitcnt lgkmcnt(0)')
    for k in range(4):
        a(f'    v_add_lshl_u32 v{40+k}, v{40+k}, v{28+k}, 3   ; (start+rank)*8')
    for k in range(4):
        a(f'    ds_write_b64 v{40+k}, v[{32+2*k}:{33+2*k}] offset:{L1_STAGE}')
    a('    s_waitcnt lgkmcnt(0)')
    stamp(a, 5)
    a('    s_barrier')
    stamp(a, 6)
    a(f'    ds_read_b128 v[8:11], v3 offset:{L1_STAGE}')
    a(f'    ds_read_b128 v[12:15], v3 offset:{L1_STAGE + 10240}')
    a(f'    s_mul_i32 s23, s2, {REC_STRIDE}')
    a('    v_add_u32 v4, 10240, v3')
    a('    s_waitcnt lgkmcnt(1)')
    a('    buffer_store_dwordx4 v[8:11], v3, s[32:35], s23 offen')
    a('    s_waitcnt lgkmcnt(0)')
    a('    buffer_store_dwordx4 v[12:15], v4, s[32:35], s23 offen')
    if STAMP:
        stamp(a, 7)
        a('    s_waitcnt vmcnt(0)')
        stamp(a, 8); stamp(a, 11, True); stamp(a, 9)
        a('    v_lshrrev_b32 v1, 6, v0')
        a('    s_nop 0')
        a('    v_readfirstlane_b32 s3, v1')
        stamp_flush(a, 12, 3, 2, 0)
    a('    s_endpgm')
    a.label('K1_TABLE')
    stamp(a, 0); stamp(a, 10, True)
    a('    s_load_dwordx2 s[4:5], s[0:1], 0       ; x')
    a('    s_load_dwordx4 s[8:11], s[0:1], 32     ; w_a, w_b')
    a('    s_load_dwordx4 s[12:15], s[0:1], 56    ; w_u, w_v')
    a('    s_load_dwordx2 s[6:7], s[0:1], 88      ; ws')
    a(f'    s_sub_u32 s3, s2, {NC}')
    a('    v_lshlrev_b32 v3, 4, v0                ; t*16')
    a('    v_lshrrev_b32 v1, 6, v0')
    a('    s_nop 0')
    a('    v_readfirstlane_b32 s20, v1')
    a('    v_and_b32 v2, 63, v0                   ; lane')
    a('    s_waitcnt lgkmcnt(0)')
    srd(a, 16, 10, 11, 8192)
    srd(a, 24, 14, 15, 8192)
    srd(a, 28, 8, 9, 8192)
    srd(a, 32, 12, 13, 8192)
    srd(a, 36, 4, 5, N*128)
    a('    v_cmp_gt_u32 vcc, 512, v0')
    a('    s_and_saveexec_b64 s[40:41], vcc')
    a('    s_cbranch_execz K1_T_NOLD')
    a('    buffer_load_dwordx4 v[8:11], v3, s[16:19], 0 offen')
    a('    buffer_load_dwordx4 v[12:15], v3, s[24:27], 0 offen')
    a('    buffer_load_dwordx4 v[16:19], v3, s[28:31], 0 offen')
    a('    buffer_load_dwordx4 v[20:23], v3, s[32:35], 0 offen')
    a.label('K1_T_NOLD')
    a('    s_mov_b64 exec, s[40:41]')
    a('    s_lshr_b32 s21, s20, 1')
    a('    s_lshl_b32 s21, s21, 4')
    a('    s_mul_i32 s22, s3, 80')
    a('    s_add_u32 s21, s21, s22                ; n0')
    a('    v_and_b32 v4, 15, v2')
    a('    v_add_u32 v4, s21, v4                  ; node')
    a('    v_lshrrev_b32 v5, 4, v2                ; g')
    a('    v_lshlrev_b32 v6, 7, v4')
    a('    v_lshl_add_u32 v6, v5, 4, v6')
    a('    buffer_load_dwordx4 v[24:27], v6, s[36:39], 0 offen')
    a('    buffer_load_dwordx4 v[28:31], v6, s[36:39], 0 offen offset:64')
    a('    v_cmp_gt_u32 vcc, 512, v0')
    a('    s_and_saveexec_b64 s[40:41], vcc')
    a('    s_cbranch_execz K1_T_NOST')
    a('    s_waitcnt vmcnt(2)')
    a('    ds_write_b128 v3, v[8:11]')
    a('    ds_write_b128 v3, v[12:15] offset:8192')
    a('    ds_write_b128 v3, v[16:19] offset:16384')
    a('    ds_write_b128 v3, v[20:23] offset:24576')
    a.label('K1_T_NOST')
    a('    s_mov_b64 exec, s[40:41]')
    a('    s_and_b32 s23, s20, 1                  ; type')
    a('    s_lshl_b32 s24, s23, 14')
    a('    v_bfe_u32 v7, v2, 2, 2')
    a('    v_lshl_add_u32 v7, v5, 3, v7           ; 8g + r')
    a('    v_lshlrev_b32 v7, 7, v7')
    a('    v_and_b32 v8, 3, v2')
    a('    v_lshl_add_u32 v7, v8, 3, v7')
    a('    v_add_u32 v7, s24, v7')
    a(f'    s_mov_b32 s25, {WS_T}')
    a(f'    s_mov_b32 s26, {WS_AU}')
    a('    s_cmp_eq_u32 s23, 0')
    a('    s_cselect_b32 s25, s25, s26')
    a('    s_add_u32 s44, s6, s25')
    a('    s_addc_u32 s45, s7, 0')
    a(f'    s_mov_b32 s46, {T_BYTES}')
    a('    s_mov_b32 s47, 0x00020000')
    a('    s_waitcnt vmcnt(0) lgkmcnt(0)')
    stamp(a, 1)
    a('    s_barrier')
    stamp(a, 2)
    for r in range(32, 64):
        a(f'    v_mov_b32 v{r}, 0')
    steps = [(jt, ks) for jt in range(4) for ks in range(2)]
    def rd(i):
        jt, ks = steps[i]
        b = 64 + (i & 1) * 8
        off = ks*32*128 + jt*32
        a(f'    ds_read_b64_tr_b16 v[{b}:{b+1}], v7 offset:{off}')
        a(f'    ds_read_b64_tr_b16 v[{b+2}:{b+3}], v7 offset:{off+512}')
        a(f'    ds_read_b64_tr_b16 v[{b+4}:{b+5}], v7 offset:{off+8192}')
        a(f'    ds_read_b64_tr_b16 v[{b+6}:{b+7}], v7 offset:{off+8192+512}')
    rd(0)
    for i in range(8):
        jt, ks = steps[i]
        b = 64 + (i & 1) * 8
        if i + 1 < 8:
            rd(i + 1)
            a('    s_waitcnt lgkmcnt(4)')
        else:
            a('    s_waitcnt lgkmcnt(0)')
        x = 24 + 4*ks
        a(f'    v_mfma_f32_16x16x32_bf16 v[{32+4*jt}:{35+4*jt}], v[{b}:{b+3}], v[{x}:{x+3}], v[{32+4*jt}:{35+4*jt}]')
        a(f'    v_mfma_f32_16x16x32_bf16 v[{48+4*jt}:{51+4*jt}], v[{b+4}:{b+7}], v[{x}:{x+3}], v[{48+4*jt}:{51+4*jt}]')
    a('    s_nop 7')
    a('    s_nop 3')
    stamp(a, 3)
    a(f'    s_mov_b32 s27, {hex(f2u(-LOG2E))}')
    a('    s_mov_b32 s28, 0xffff0000')
    a('    s_mov_b32 s29, 0x80000000')
    a('    v_lshlrev_b32 v9, 8, v4')
    a('    v_lshl_add_u32 v9, v5, 4, v9')
    for jt in range(4):
        for r in range(4):
            p = 32 + 4*jt + r; q = 48 + 4*jt + r
            a(f'    v_mul_f32 v{p}, s27, v{p}')
            a(f'    v_cvt_f16_f32 v{p}, v{p}')
            a(f'    v_and_b32 v{p}, 0xffff, v{p}')
            a(f'    v_and_b32 v10, 0x7fffffff, v{q}')
            a(f'    v_sub_u32 v10, v10, v{p}')
            a(f'    v_add_u32 v10, 0x8000, v10')
            a(f'    v_max_i32 v10, 0, v10')
            a(f'    v_and_or_b32 v10, v10, s28, v{p}')
            a(f'    v_and_or_b32 v{p}, v{q}, s29, v10')
        a(f'    buffer_store_dwordx4 v[{32+4*jt}:{35+4*jt}], v9, s[44:47], 0 offen offset:{jt*64}')
    a('    s_cmp_eq_u32 s3, 0')
    a('    s_cbranch_scc0 K1_TFIN')
    a('    s_cmp_eq_u32 s20, 0')
    a('    s_cbranch_scc0 K1_TFIN')
    a('    v_mov_b32 v10, 0x7c00')
    a(f'    v_lshlrev_b32 v11, 2, v2')
    a(f'    v_add_u32 v11, {N*256}, v11')
    a('    buffer_store_dword v10, v11, s[44:47], 0 offen')
    a.label('K1_TFIN')
    if STAMP:
        stamp(a, 4)
        a('    s_waitcnt vmcnt(0)')
        stamp(a, 8); stamp(a, 11, True); stamp(a, 9)
        stamp_flush(a, 12, 20, 2, 0)
    a.label('K1_END')
    a('    s_endpgm')

CAP = 4096
L2_SRC = 0; L2_EAV = 16384; L2_ACC = 32768; L2_EAT = 53248; L2_CNT = 63488; L2_FLG = 63744
K2_LDS = 64000
U = 4
IDXEN = int(os.environ.get('IDXEN', '0'))

def gen_k2(a):
    sB = 2
    sWAVE = 3
    SRD_DESC = 12; SRD_REC = 16; SRD_T = 20; SRD_AU = 24; SRD_X = 28; SRD_OUT = 32; SRD_WC = 36
    sMODE = 40
    sPASS = 41
    sG0 = 42; sG1 = 43; sGEND = 44; sLEFT = 45; sNODE = 46; sT0 = 47; sT1 = 48; sSAFE = 49; sGT = 50
    sEX = 52
    sEX2 = 54
    vTID = 0; vLANE = 1
    vWC = 4
    vEA = 8
    vDEN = 12
    vNUM = 16
    vT = 20
    vDAT = 24
    vP = 40
    vEV = 48
    vSA = 50
    vACC = 51
    vEAA = 52
    vGS = 53
    vQ16 = 54
    vAU = 56
    vX = 60
    vR = 64
    vRK = 80
    vA = 88
    vCNT = 100; vRO = 101; vI = 102; vCN = 103; vB = 104

    a('.p2align 8')
    a('.type k2_kernel,@function')
    a.label('k2_kernel')
    a(f'    s_cmp_ge_u32 s2, {NB}')
    a('    s_cbranch_scc1 K2_END')
    stamp(a, 0); stamp(a, 10, True)
    a('    s_load_dwordx2 s[4:5], s[0:1], 0       ; x')
    a('    s_load_dwordx2 s[8:9], s[0:1], 48      ; w_c')
    a('    s_load_dwordx2 s[10:11], s[0:1], 72    ; out')
    a('    s_load_dwordx2 s[6:7], s[0:1], 88      ; ws')
    a(f'    v_and_b32 v{vLANE}, 63, v0')
    a(f'    v_lshrrev_b32 v{vA}, 6, v0')
    a('    s_nop 0')
    a(f'    v_readfirstlane_b32 s{sWAVE}, v{vA}')
    a(f'    v_and_b32 v{vQ16}, 15, v0')
    a(f'    v_lshlrev_b32 v{vQ16}, 4, v{vQ16}      ; q*16')
    a(f'    v_mov_b32 v{vA}, 0')
    a(f'    v_mov_b32 v{vA+1}, 0')
    a(f'    v_mov_b32 v{vA+2}, 0')
    a(f'    v_mov_b32 v{vA+3}, 0')
    a(f'    v_lshlrev_b32 v{vA+4}, 4, v0           ; t*16')
    a(f'    ds_write_b128 v{vA+4}, v[{vA}:{vA+3}] offset:{L2_ACC}')
    a(f'    v_cmp_gt_u32 vcc, {20480//16 - 1024}, v0')
    a(f'    s_and_saveexec_b64 s[{sEX}:{sEX+1}], vcc')
    a(f'    ds_write_b128 v{vA+4}, v[{vA}:{vA+3}] offset:{L2_ACC + 16384}')
    a(f'    s_mov_b64 exec, s[{sEX}:{sEX+1}]')
    a(f'    v_cmp_gt_u32 vcc, 4, v0')
    a(f'    s_and_saveexec_b64 s[{sEX}:{sEX+1}], vcc')
    a(f'    v_lshlrev_b32 v{vA+5}, 2, v0')
    a(f'    ds_write_b32 v{vA+5}, v{vA} offset:{L2_FLG}')
    a(f'    s_mov_b64 exec, s[{sEX}:{sEX+1}]')
    a('    s_waitcnt lgkmcnt(0)')
    srd(a, SRD_DESC, 6, 7, NC*DESC_STRIDE, off=WS_DESC)
    srd(a, SRD_REC, 6, 7, NC*REC_STRIDE, off=WS_REC)
    if IDXEN:
        srd(a, SRD_T, 6, 7, 0, off=WS_T, stride=256, nrec=N+1)
    else:
        srd(a, SRD_T, 6, 7, T_BYTES, off=WS_T)
    srd(a, SRD_AU, 6, 7, AU_BYTES, off=WS_AU)
    srd(a, SRD_X, 4, 5, N*128)
    srd(a, SRD_OUT, 10, 11, N*128)
    srd(a, SRD_WC, 8, 9, 128)
    a(f'    v_lshrrev_b32 v{vA}, 2, v0             ; c')
    a(f'    v_lshlrev_b32 v{vA}, 10, v{vA}         ; c*1024')
    a(f'    s_lshl_b32 s{sT0}, s{sB}, 2')
    a(f'    v_mov_b32 v{vCNT}, 0')
    a(f'    v_cmp_gt_u32 vcc, {NC*4}, v0')
    a(f'    s_and_saveexec_b64 s[{sEX}:{sEX+1}], vcc')
    a(f'    s_cbranch_execz K2_NODESC')
    a(f'    buffer_load_dword v{vCNT}, v{vA}, s[{SRD_DESC}:{SRD_DESC+3}], s{sT0} offen')
    a.label('K2_NODESC')
    a(f'    s_mov_b64 exec, s[{sEX}:{sEX+1}]')
    a(f'    s_mul_i32 s{sT0}, s{sB}, {NPB*256}')
    a(f'    s_mul_i32 s{sT1}, s{sB}, {NPB*128}')
    a(f'    v_lshlrev_b32 v{vA}, 4, v0             ; t*16 = node*256 + q*16')
    a(f'    v_lshlrev_b32 v{vA+1}, 3, v0           ; t*8')
    a(f'    v_mov_b32 v{vAU}, 0')
    a(f'    v_mov_b32 v{vAU+1}, 0')
    a(f'    v_mov_b32 v{vAU+2}, 0')
    a(f'    v_mov_b32 v{vAU+3}, 0')
    a(f'    v_cmp_gt_u32 vcc, {NPB*16}, v0')
    a(f'    s_and_saveexec_b64 s[{sEX}:{sEX+1}], vcc')
    a(f'    s_cbranch_execz K2_NOAU')
    a(f'    buffer_load_dwordx4 v[{vAU}:{vAU+3}], v{vA}, s[{SRD_AU}:{SRD_AU+3}], s{sT0} offen')
    a(f'    buffer_load_dwordx2 v[{vX}:{vX+1}], v{vA+1}, s[{SRD_X}:{SRD_X+3}], s{sT1} offen')
    a.label('K2_NOAU')
    a(f'    s_mov_b64 exec, s[{sEX}:{sEX+1}]')
    a(f'    v_lshrrev_b32 v{vA+2}, 1, v{vQ16}      ; q*8')
    a(f'    buffer_load_dwordx2 v[{vA+4}:{vA+5}], v{vA+2}, s[{SRD_WC}:{SRD_WC+3}], 0 offen')
    for k in range(U):
        a(f'    v_mov_b32 v{vP+2*k+1}, v{vQ16}')
    a(f'    s_mov_b32 s{sMODE}, 0')
    a(f'    s_mov_b32 s{sPASS}, 0')
    a('    s_waitcnt vmcnt(0)')
    stamp(a, 1)
    a(f'    s_mov_b32 s{sT0}, {hex(f2u(-LOG2E))}')
    a(f'    v_lshlrev_b32 v{vWC}, 16, v{vA+4}')
    a(f'    v_and_b32 v{vWC+1}, 0xffff0000, v{vA+4}')
    a(f'    v_lshlrev_b32 v{vWC+2}, 16, v{vA+5}')
    a(f'    v_and_b32 v{vWC+3}, 0xffff0000, v{vA+5}')
    for k in range(4):
        a(f'    v_mul_f32 v{vWC+k}, s{sT0}, v{vWC+k}')
    for k in range(4):
        a(f'    v_cvt_f32_f16 v{vA+k}, v{vAU+k}')
    a(f'    v_max3_f32 v{vA+4}, |v{vA}|, |v{vA+1}|, |v{vA+2}|')
    a(f'    v_max_f32 v{vA+4}, v{vA+4}, |v{vA+3}|')
    a(f'    s_mov_b32 s{sT0}, {hex(f2u(60.0))}')
    a(f'    v_cmp_nle_f32 vcc, v{vA+4}, s{sT0}')
    a(f'    s_and_saveexec_b64 s[{sEX}:{sEX+1}], vcc')
    a(f'    s_cbranch_execz K2_GUARD_OK')
    a(f'    v_mov_b32 v{vA+5}, 1')
    a(f'    v_mov_b32 v{vA+6}, 0')
    a(f'    ds_write_b32 v{vA+6}, v{vA+5} offset:{L2_FLG+4}')
    a.label('K2_GUARD_OK')
    a(f'    s_mov_b64 exec, s[{sEX}:{sEX+1}]')
    a.label('K2_PASS')
    dummy = N if IDXEN else N*256
    for i in range(4):
        a(f'    v_mov_b32 v{vA+8+i}, {dummy}')
    a(f'    v_lshlrev_b32 v{vA+5}, 4, v0')
    a(f'    ds_write_b128 v{vA+5}, v[{vA+8}:{vA+11}] offset:{L2_SRC}')
    a(f'    v_mov_b32 v{vA+8}, 0')
    a(f'    v_mov_b32 v{vA+9}, 0')
    a(f'    v_mov_b32 v{vA+10}, 0')
    a(f'    v_mov_b32 v{vA+11}, 0')
    a(f'    ds_write_b128 v{vA+5}, v[{vA+8}:{vA+11}] offset:{L2_EAV}')
    a(f'    v_cmp_gt_u32 vcc, 64, v0')
    a(f'    s_and_saveexec_b64 s[{sEX}:{sEX+1}], vcc')
    a(f'    v_lshlrev_b32 v{vA+5}, 2, v0')
    a(f'    ds_write_b32 v{vA+5}, v{vA+8} offset:{L2_CNT}')
    a(f'    s_mov_b64 exec, s[{sEX}:{sEX+1}]')
    a(f'    s_cmp_eq_u32 s{sMODE}, 0')
    a('    s_cbranch_scc0 K2_SLOWPARAM')
    a(f'    v_lshrrev_b32 v{vA}, 2, v0')
    a(f'    v_mul_u32_u24 v{vRO}, {REC_STRIDE}, v{vA}')
    a(f'    v_and_b32 v{vA+1}, 0xffff, v{vCNT}      ; start')
    a(f'    v_lshl_add_u32 v{vRO}, v{vA+1}, 3, v{vRO}')
    a(f'    v_and_b32 v{vI}, 3, v0')
    a(f'    v_lshl_add_u32 v{vRO}, v{vI}, 4, v{vRO}')
    a(f'    v_lshlrev_b32 v{vI}, 1, v{vI}')
    a(f'    v_lshrrev_b32 v{vCN}, 16, v{vCNT}     ; cnt')
    a(f'    s_mov_b32 s{sT1}, 8')
    a(f'    v_cmp_lt_u32 vcc, 32, v{vCN}')
    a(f'    s_and_saveexec_b64 s[{sEX}:{sEX+1}], vcc')
    a(f'    s_cbranch_execz K2_NOOVF')
    a(f'    v_mov_b32 v{vA+5}, 1')
    a(f'    v_mov_b32 v{vA+6}, 0')
    a(f'    ds_write_b32 v{vA+6}, v{vA+5} offset:{L2_FLG}')
    a.label('K2_NOOVF')
    a(f'    s_mov_b64 exec, s[{sEX}:{sEX+1}]')
    a('    s_branch K2_PARAMDONE')
    a.label('K2_SLOWPARAM')
    a(f'    s_mul_i32 s{sT0}, s{sPASS}, {DESC_STRIDE}')
    a(f'    s_lshl_b32 s{sT1}, s{sB}, 2')
    a(f'    s_add_u32 s{sT0}, s{sT0}, s{sT1}')
    a(f'    v_mov_b32 v{vA}, 0')
    a(f'    buffer_load_dword v{vCN}, v{vA}, s[{SRD_DESC}:{SRD_DESC+3}], s{sT0} offen')
    a(f'    s_mul_i32 s{sT0}, s{sPASS}, {REC_STRIDE}')
    a('    s_waitcnt vmcnt(0)')
    a(f'    v_and_b32 v{vA+1}, 0xffff, v{vCN}')
    a(f'    v_lshlrev_b32 v{vRO}, 3, v{vA+1}')
    a(f'    v_add_u32 v{vRO}, s{sT0}, v{vRO}')
    a(f'    v_lshl_add_u32 v{vRO}, v0, 4, v{vRO}')
    a(f'    v_lshlrev_b32 v{vI}, 1, v0')
    a(f'    v_lshrrev_b32 v{vCN}, 16, v{vCN}')
    a(f'    s_mov_b32 s{sT1}, 2048')
    a.label('K2_PARAMDONE')
    a(f'    s_lshl_b32 s{sT0}, s{sT1}, 3')
    a(f'    v_mov_b32 v{vA}, v{vI}')
    a(f'    v_mov_b32 v{vA+1}, v{vRO}')
    for r in range(4):
        a(f'    v_cmp_lt_u32 vcc, v{vA}, v{vCN}')
        a(f'    s_and_saveexec_b64 s[{sEX}:{sEX+1}], vcc')
        a(f'    s_cbranch_execz K2_LD{r}_SKIP')
        a(f'    buffer_load_dwordx4 v[{vR+4*r}:{vR+4*r+3}], v{vA+1}, s[{SRD_REC}:{SRD_REC+3}], 0 offen')
        a.label(f'K2_LD{r}_SKIP')
        a(f'    s_mov_b64 exec, s[{sEX}:{sEX+1}]')
        if r < 3:
            a(f'    v_add_u32 v{vA}, s{sT1}, v{vA}')
            a(f'    v_add_u32 v{vA+1}, s{sT0}, v{vA+1}')
    a('    s_waitcnt lgkmcnt(0)')
    a('    s_barrier')
    stamp(a, 2)
    a('    s_waitcnt vmcnt(0)')
    stamp(a, 3)
    a(f'    v_mov_b32 v{vA+2}, 1')
    a(f'    v_mov_b32 v{vA}, v{vI}')
    for r in range(4):
        for h in range(2):
            k = 2*r + h
            a(f'    v_add_u32 v{vA+3}, {h}, v{vA}')
            a(f'    v_cmp_lt_u32 vcc, v{vA+3}, v{vCN}')
            a(f'    s_and_saveexec_b64 s[{sEX}:{sEX+1}], vcc')
            a(f'    s_cbranch_execz K2_RK{k}_SKIP')
            a(f'    v_lshrrev_b32 v{vA+4}, 16, v{vR+4*r+2*h}')
            a(f'    v_lshlrev_b32 v{vA+4}, 2, v{vA+4}')
            a(f'    ds_add_rtn_u32 v{vRK+k}, v{vA+4}, v{vA+2} offset:{L2_CNT}')
            a.label(f'K2_RK{k}_SKIP')
            a(f'    s_mov_b64 exec, s[{sEX}:{sEX+1}]')
        if r < 3:
            a(f'    v_add_u32 v{vA}, s{sT1}, v{vA}')
    a('    s_waitcnt lgkmcnt(0)')
    a('    s_barrier')
    stamp(a, 4)
    a(f'    v_mov_b32 v{vA}, 0')
    a(f'    ds_read_b64 v[{vA+4}:{vA+5}], v{vA} offset:{L2_FLG}')
    a(f'    v_lshlrev_b32 v{vA+1}, 2, v{vLANE}')
    a(f'    ds_read_b32 v{vA+6}, v{vA+1} offset:{L2_CNT}')
    a('    s_waitcnt lgkmcnt(0)')
    a(f'    v_readfirstlane_b32 s{sT0}, v{vA+4}')
    a(f'    v_readfirstlane_b32 s{sSAFE}, v{vA+5}')
    a(f'    v_add_u32 v{vA+6}, 3, v{vA+6}')
    a(f'    v_lshrrev_b32 v{vA+6}, 2, v{vA+6}')
    a(f'    v_mov_b32 v{vGS}, v{vA+6}')
    dpp_scan(a, vGS)
    a(f'    v_sub_u32 v{vGS}, v{vGS}, v{vA+6}')
    a('    s_nop 0')
    a(f'    v_readlane_b32 s{sGT}, v{vGS}, {NPB}')
    a(f'    v_cmp_lt_u32 vcc, {NPB}, v{vLANE}')
    a('    s_nop 1')
    a(f'    v_cndmask_b32 v{vGS}, v{vGS}, -1, vcc')
    a(f'    s_cmp_eq_u32 s{sMODE}, 0')
    a('    s_cbranch_scc0 K2_NOSWITCH')
    a(f'    s_cmp_gt_u32 s{sGT}, {(CAP - 64)//4}')
    a(f'    s_cselect_b32 s{sT1}, 1, 0')
    a(f'    s_or_b32 s{sT0}, s{sT0}, s{sT1}')
    a(f'    s_cmp_eq_u32 s{sT0}, 0')
    a('    s_cbranch_scc1 K2_NOSWITCH')
    a(f'    s_mov_b32 s{sMODE}, 1')
    a(f'    s_mov_b32 s{sPASS}, 0')
    a('    s_barrier')
    a('    s_branch K2_PASS')
    a.label('K2_NOSWITCH')
    a(f'    v_cmp_gt_u32 vcc, {NPB*16}, v0')
    a(f'    s_and_saveexec_b64 s[{sEX}:{sEX+1}], vcc')
    a(f'    s_cbranch_execz K2_NOEAT')
    for k in range(4):
        a(f'    v_cvt_f32_f16 v{vA+8+k}, v{vAU+k}')
    a(f'    s_cmp_eq_u32 s{sSAFE}, 0')
    a('    s_cbranch_scc0 K2_EAT_W')
    for k in range(4):
        a(f'    v_exp_f32 v{vA+8+k}, v{vA+8+k}')
    a.label('K2_EAT_W')
    a(f'    v_lshlrev_b32 v{vA+1}, 4, v0')
    a('    s_nop 0')
    a(f'    ds_write_b128 v{vA+1}, v[{vA+8}:{vA+11}] offset:{L2_EAT}')
    a.label('K2_NOEAT')
    a(f'    s_mov_b64 exec, s[{sEX}:{sEX+1}]')
    for k in range(8):
        rec = vR + 2*k
        a(f'    v_lshrrev_b32 v{vA+4}, 16, v{rec}')
        a(f'    v_and_b32 v{vA+4}, 63, v{vA+4}')
        a(f'    v_lshlrev_b32 v{vA+4}, 2, v{vA+4}')
        a(f'    ds_bpermute_b32 v{vB+k}, v{vA+4}, v{vGS}')
    a(f'    s_cmp_eq_u32 s{sMODE}, 0')
    a(f'    s_mov_b32 s{sT1}, 2048')
    a(f'    s_cselect_b32 s{sT1}, 8, s{sT1}')
    a(f'    v_mov_b32 v{vA}, v{vI}')
    a('    s_waitcnt lgkmcnt(0)')
    for r in range(4):
        for h in range(2):
            k = 2*r + h
            rec = vR + 2*k
            a(f'    v_add_u32 v{vA+3}, {h}, v{vA}')
            a(f'    v_cmp_lt_u32 vcc, v{vA+3}, v{vCN}')
            a(f'    s_and_saveexec_b64 s[{sEX}:{sEX+1}], vcc')
            a(f'    s_cbranch_execz K2_SC{k}_SKIP')
            a(f'    v_lshl_add_u32 v{vA+5}, v{vB+k}, 2, v{vRK+k}')
            a(f'    v_lshlrev_b32 v{vA+5}, 2, v{vA+5}')
            a(f'    v_and_b32 v{vA+6}, 0xffff, v{rec}')
            if not IDXEN:
                a(f'    v_lshlrev_b32 v{vA+6}, 8, v{vA+6}')
            a(f'    ds_write_b32 v{vA+5}, v{vA+6} offset:{L2_SRC}')
            a(f'    ds_write_b32 v{vA+5}, v{rec+1} offset:{L2_EAV}')
            a.label(f'K2_SC{k}_SKIP')
            a(f'    s_mov_b64 exec, s[{sEX}:{sEX+1}]')
        if r < 3:
            a(f'    v_add_u32 v{vA}, s{sT1}, v{vA}')
    a('    s_waitcnt lgkmcnt(0)')
    a('    s_barrier')
    stamp(a, 5)
    def tload(k):
        d = vDAT + 4*k
        if IDXEN:
            a(f'    buffer_load_dwordx4 v[{d}:{d+3}], v[{vP+2*k}:{vP+2*k+1}], s[{SRD_T}:{SRD_T+3}], 0 idxen offen')
        else:
            a(f'    v_add_u32 v{vP+2*k}, v{vP+2*k}, v{vQ16}')
            a(f'    buffer_load_dwordx4 v[{d}:{d+3}], v{vP+2*k}, s[{SRD_T}:{SRD_T+3}], 0 offen')
    a(f'    s_mul_i32 s{sG0}, s{sGT}, s{sWAVE}')
    a(f'    s_add_u32 s{sG1}, s{sG0}, s{sGT}')
    a(f'    s_lshr_b32 s{sG0}, s{sG0}, 4')
    a(f'    s_lshr_b32 s{sG1}, s{sG1}, 4')
    a(f'    s_cmp_ge_u32 s{sG0}, s{sG1}')
    a('    s_cbranch_scc1 K2_MAIN_DONE')
    a(f'    v_lshrrev_b32 v{vSA}, 4, v{vLANE}')
    a(f'    v_lshlrev_b32 v{vSA}, 2, v{vSA}         ; slot*4')
    a(f'    s_lshl_b32 s{sT0}, s{sG0}, 4')
    a(f'    v_add_u32 v{vSA}, s{sT0}, v{vSA}')
    for k in range(U):
        a(f'    ds_read_b32 v{vP+2*k}, v{vSA} offset:{L2_SRC + 16*k}')
    a(f'    ds_read_b32 v{vEV}, v{vSA} offset:{L2_EAV}')
    a('    s_waitcnt lgkmcnt(0)')
    for k in range(U):
        tload(k)
    a(f'    ds_read_b32 v{vP}, v{vSA} offset:{L2_SRC + 16*U}')
    a(f'    s_mov_b32 s{sGEND}, s{sG0}')
    a(f'    s_cmp_eq_u32 s{sSAFE}, 0')
    a('    s_cbranch_scc0 K2S_ENTER')
    a('    s_branch K2F_ENTER')

    def next_node(pfx, k):
        a(f'    v_cmp_ge_u32 vcc, s{sGEND}, v{vGS}')
        a(f'    s_bcnt1_i32_b64 s{sT0}, vcc')
        a(f'    s_nop 0')
        a(f'    v_readlane_b32 s{sT1}, v{vGS}, s{sT0}')
        a(f'    s_sub_u32 s{sNODE}, s{sT0}, 1')
        a(f'    s_lshl_b32 s{sT0}, s{sNODE}, 8')
        a(f'    v_add_u32 v{vEAA}, s{sT0}, v{vQ16}')
        a(f'    ds_read_b128 v[{vEA}:{vEA+3}], v{vEAA} offset:{L2_EAT}')
        a(f'    s_min_u32 s{sT1}, s{sT1}, s{sG1}')
        a(f'    s_sub_u32 s{sLEFT}, s{sT1}, s{sGEND}')
        a(f'    s_sub_u32 s{sLEFT}, s{sLEFT}, 1')
        a(f'    s_mov_b32 s{sGEND}, s{sT1}')

    def flush():
        if os.environ.get('NOFLUSH'): return
        for i in range(4):
            a(f'    ds_add_f32 v{vACC}, v{vDEN+i} offset:{L2_ACC + 4*i}')
        for i in range(4):
            a(f'    ds_add_f32 v{vACC}, v{vNUM+i} offset:{L2_ACC + 256 + 4*i}')

    def step(k, safe, init):
        d = vDAT + 4*k
        ev = vEV + (k & 1); evn = vEV + ((k+1) & 1)
        pn = vP + 2*((k+1) % U)
        for i in range(4):
            a(f'    v_fma_mix_f32 v{vT+i}, v{ev}, v{vWC+i}, v{d+i} op_sel:[0,0,0] op_sel_hi:[0,0,1]')
        a(f'    ds_read_b32 v{evn}, v{vSA} offset:{L2_EAV + 16*(k+1)}')
        a(f'    ds_read_b32 v{pn}, v{vSA} offset:{L2_SRC + 16*(k+1+U)}')
        if init:
            a('    s_waitcnt lgkmcnt(10)')
        if safe:
            a(f'    v_pk_add_f32 v[{vT}:{vT+1}], v[{vT}:{vT+1}], v[{vEA}:{vEA+1}]')
            a(f'    v_pk_add_f32 v[{vT+2}:{vT+3}], v[{vT+2}:{vT+3}], v[{vEA+2}:{vEA+3}]')
        for i in range(4):
            a(f'    v_exp_f32 v{vT+i}, v{vT+i}')
        if safe:
            a(f'    v_pk_add_f32 v[{vT}:{vT+1}], v[{vT}:{vT+1}], 1.0 op_sel_hi:[1,0]')
            a(f'    v_pk_add_f32 v[{vT+2}:{vT+3}], v[{vT+2}:{vT+3}], 1.0 op_sel_hi:[1,0]')
        else:
            a(f'    v_pk_fma_f32 v[{vT}:{vT+1}], v[{vEA}:{vEA+1}], v[{vT}:{vT+1}], 1.0 op_sel_hi:[1,1,0]')
            a(f'    v_pk_fma_f32 v[{vT+2}:{vT+3}], v[{vEA+2}:{vEA+3}], v[{vT+2}:{vT+3}], 1.0 op_sel_hi:[1,1,0]')
        if init:
            for i in range(4):
                a(f'    v_rcp_f32 v{vDEN+i}, v{vT+i}')
            a('    s_nop 0')
            a(f'    v_pk_mul_f32 v[{vNUM}:{vNUM+1}], v[{vDEN}:{vDEN+1}], v[{d}:{d+1}]')
            a(f'    v_pk_mul_f32 v[{vNUM+2}:{vNUM+3}], v[{vDEN+2}:{vDEN+3}], v[{d+2}:{d+3}]')
        else:
            for i in range(4):
                a(f'    v_rcp_f32 v{vT+i}, v{vT+i}')
            a(f'    v_pk_add_f32 v[{vDEN}:{vDEN+1}], v[{vDEN}:{vDEN+1}], v[{vT}:{vT+1}]')
            a(f'    v_pk_add_f32 v[{vDEN+2}:{vDEN+3}], v[{vDEN+2}:{vDEN+3}], v[{vT+2}:{vT+3}]')
            a(f'    v_pk_fma_f32 v[{vNUM}:{vNUM+1}], v[{vT}:{vT+1}], v[{d}:{d+1}], v[{vNUM}:{vNUM+1}]')
            a(f'    v_pk_fma_f32 v[{vNUM+2}:{vNUM+3}], v[{vT+2}:{vT+3}], v[{d+2}:{d+3}], v[{vNUM+2}:{vNUM+3}]')
        tload(k)
        if k == U-1:
            a(f'    v_add_u32 v{vSA}, {16*U}, v{vSA}')

    for pfx, safe in (('K2F', False), ('K2S', True)):
        a.label(f'{pfx}_ENTER')
        next_node(pfx, 0)
        a(f'    s_lshl_b32 s{sT0}, s{sNODE}, 9')
        a(f'    v_add_u32 v{vACC}, s{sT0}, v{vQ16}')
        a('    s_waitcnt vmcnt(3) lgkmcnt(0)')
        step(0, safe, True)
        a(f'    s_branch {pfx}_STEP1')
        for k in range(U):
            a.label(f'{pfx}_STEP{k}')
            a(f'    s_waitcnt vmcnt({U-1}) lgkmcnt(0)')
            a(f'    s_sub_u32 s{sLEFT}, s{sLEFT}, 1')
            a(f'    s_cbranch_scc1 {pfx}_FLUSH{k}')
            step(k, safe, False)
            if k == U-1:
                a(f'    s_branch {pfx}_STEP0')
        for k in range(U):
            a.label(f'{pfx}_FLUSH{k}')
            a(f'    s_cmp_ge_u32 s{sGEND}, s{sG1}')
            a(f'    s_cbranch_scc1 K2_LAST')
            next_node(pfx, k)
            flush()
            a(f'    s_lshl_b32 s{sT0}, s{sNODE}, 9')
            a(f'    v_add_u32 v{vACC}, s{sT0}, v{vQ16}')
            step(k, safe, True)
            a(f'    s_branch {pfx}_STEP{(k+1) % U}')
    a.label('K2_LAST')
    flush()
    a.label('K2_MAIN_DONE')
    a('    s_waitcnt vmcnt(0) lgkmcnt(0)')
    stamp(a, 6)
    a('    s_barrier')
    stamp(a, 7)
    a(f'    s_cmp_eq_u32 s{sMODE}, 0')
    a('    s_cbranch_scc1 K2_EPI')
    a(f'    s_add_u32 s{sPASS}, s{sPASS}, 1')
    a(f'    s_cmp_lt_u32 s{sPASS}, {NC}')
    a('    s_cbranch_scc1 K2_PASS')
    a.label('K2_EPI')
    a(f'    v_cmp_gt_u32 vcc, {NPB*16}, v0')
    a(f'    s_and_saveexec_b64 s[{sEX}:{sEX+1}], vcc')
    a('    s_cbranch_execz K2_FIN')
    a(f'    v_lshrrev_b32 v{vA}, 4, v0')
    a(f'    v_lshlrev_b32 v{vA}, 9, v{vA}')
    a(f'    v_add_u32 v{vA}, v{vA}, v{vQ16}')
    a(f'    ds_read_b128 v[{vDEN}:{vDEN+3}], v{vA} offset:{L2_ACC}')
    a(f'    ds_read_b128 v[{vNUM}:{vNUM+3}], v{vA} offset:{L2_ACC+256}')
    a(f'    s_mov_b32 s{sT0}, {hex(f2u(1e-6))}')
    a(f'    v_lshlrev_b32 v{vT}, 16, v{vX}')
    a(f'    v_and_b32 v{vT+1}, 0xffff0000, v{vX}')
    a(f'    v_lshlrev_b32 v{vT+2}, 16, v{vX+1}')
    a(f'    v_and_b32 v{vT+3}, 0xffff0000, v{vX+1}')
    a('    s_waitcnt lgkmcnt(0)')
    for i in range(4):
        a(f'    v_add_f32 v{vDEN+i}, s{sT0}, v{vDEN+i}')
    for i in range(4):
        a(f'    v_rcp_f32 v{vDEN+i}, v{vDEN+i}')
    a('    s_nop 0')
    for i in range(4):
        a(f'    v_fma_f32 v{vNUM+i}, v{vNUM+i}, v{vDEN+i}, v{vAU+i}    ; z = U + agg')
    for i in range(4):
        a(f'    v_mul_f32 v{vDEN+i}, 0, v{vNUM+i}                     ; 0*z')
        a(f'    v_cmp_lt_f32 vcc, 0, v{vNUM+i}')
        a('    s_nop 1')
        a(f'    v_cndmask_b32 v{vNUM+i}, v{vDEN+i}, v{vNUM+i}, vcc')
        a(f'    v_add_f32 v{vNUM+i}, v{vNUM+i}, v{vT+i}')
    a(f'    v_cvt_pk_bf16_f32 v{vDEN}, v{vNUM}, v{vNUM+1}')
    a(f'    v_cvt_pk_bf16_f32 v{vDEN+1}, v{vNUM+2}, v{vNUM+3}')
    a(f'    s_mul_i32 s{sT1}, s{sB}, {NPB*128}')
    a(f'    v_lshlrev_b32 v{vA+1}, 3, v0')
    a(f'    buffer_store_dwordx2 v[{vDEN}:{vDEN+1}], v{vA+1}, s[{SRD_OUT}:{SRD_OUT+3}], s{sT1} offen')
    a.label('K2_FIN')
    if STAMP:
        a('    s_waitcnt vmcnt(0)')
    stamp(a, 8); stamp(a, 11, True); stamp(a, 9)
    stamp_flush(a, 12, sWAVE, sB, 1)
    a.label('K2_END')
    a('    s_endpgm')

def kd(a, name, vgpr, sgpr):
    a(f'.amdhsa_kernel {name}')
    a(f'  .amdhsa_next_free_vgpr {vgpr}')
    a(f'  .amdhsa_next_free_sgpr {sgpr}')
    a(f'  .amdhsa_accum_offset {((vgpr+3)//4)*4}')
    a('  .amdhsa_group_segment_fixed_size 0')
    a('  .amdhsa_kernarg_size 96')
    a('  .amdhsa_user_sgpr_count 2')
    a('  .amdhsa_user_sgpr_kernarg_segment_ptr 1')
    a('  .amdhsa_system_sgpr_workgroup_id_x 1')
    a('  .amdhsa_float_denorm_mode_32 3')
    a('.end_amdhsa_kernel')

def main(out):
    a = Asm()
    a(f'; @launch kernel=k1_kernel grid=({K1_GRID},1,1) block=(640,1,1) lds={K1_LDS}')
    a(f'; @launch kernel=k2_kernel grid=({NB},1,1) block=(1024,1,1) lds={K2_LDS}')
    a('.amdgcn_target "amdgcn-amd-amdhsa--gfx950"')
    a('.text')
    a('.globl k1_kernel')
    gen_k1(a)
    a('.globl k2_kernel')
    gen_k2(a)
    a('.section .rodata,"a"')
    a('.p2align 6')
    kd(a, 'k1_kernel', 80, 102 if STAMP else 64)
    a('.p2align 6')
    kd(a, 'k2_kernel', 112, 102 if STAMP else 64)
    open(out, 'w').write(a.text())

if __name__ == '__main__':
    main(sys.argv[1] if len(sys.argv) > 1 else 'standalone__edge_featured_mpnn_gatedgcn__graph.s')
```

```python
import sys, os, struct
def env(n, d): return os.environ.get(n, d)

N = 10000; E = 640000
NPB = 40; NB = 250; EPC = 2560; NC = 250
LOG2E = 1.4426950408889634
WS_REC  = 0
REC_STRIDE = EPC*8
WS_DESC = 5242880
DESC_STRIDE = 1024
WS_T    = 6291456
T_BYTES = (N+1)*256

STAMP = int(env('STAMP', '0'))
K1ST = env('K1ST', 'sc1')
PRIO = int(env('PRIO', '1'))
TFIRST = int(env('TFIRST', '1'))
WS_STAMP = 128 << 20
ST0 = 64

def f2u(f): return struct.unpack('<I', struct.pack('<f', f))[0]

class Asm:
    def __init__(self): self.l = []
    def __call__(self, s=''):
        for line in s.split('\n'): self.l.append(line)
    def label(self, n): self.l.append(n + ':')
    def text(self): return '\n'.join(self.l) + '\n'

def stamp(a, i, real=False):
    if STAMP:
        a(f"    {'s_memrealtime' if real else 's_memtime'} s[{ST0+2*i}:{ST0+2*i+1}]")
def stamp_flush(a, nst, wave_sgpr, wg_sgpr, kern, ws_lo, dbg_delta):
    if not STAMP: return
    a('    s_waitcnt lgkmcnt(0)')
    a('    s_mov_b64 exec, 1')
    a('    v_mov_b32 v2, 0')
    if STAMP == 1:
        a(f'    s_add_u32 s96, s{ws_lo}, {WS_STAMP + kern*(4<<20)}')
        a(f'    s_addc_u32 s97, s{ws_lo+1}, 0')
        a(f'    s_mov_b32 s98, {4<<20}')
        a('    s_mov_b32 s99, 0x00020000')
        a(f'    s_lshl_b32 s100, s{wg_sgpr}, 4')
        a(f'    s_add_u32 s100, s100, s{wave_sgpr}')
        a(f'    s_lshl_b32 s100, s100, 6')
        for i in range(nst):
            a(f'    v_mov_b32 v3, s{ST0+2*i}')
            a(f'    buffer_store_dword v3, v2, s[96:99], s100 offen offset:{4*i}')
        a('    s_waitcnt vmcnt(0)')

def srd(a, sreg, lo, hi, nbytes, off=0, stride=0, nrec=None):
    if off:
        a(f'    s_add_u32 s{sreg}, s{lo}, {off}')
        a(f'    s_addc_u32 s{sreg+1}, s{hi}, 0')
    else:
        a(f'    s_mov_b32 s{sreg}, s{lo}')
        a(f'    s_mov_b32 s{sreg+1}, s{hi}')
    if stride:
        a(f'    s_and_b32 s{sreg+1}, s{sreg+1}, 0xffff')
        a(f'    s_or_b32 s{sreg+1}, s{sreg+1}, {stride << 16}')
        a(f'    s_mov_b32 s{sreg+2}, {nrec}')
    else:
        a(f'    s_mov_b32 s{sreg+2}, {nbytes}')
    a(f'    s_mov_b32 s{sreg+3}, 0x00020000')

def dpp_scan(a, v):
    for sh in (1, 2, 4, 8):
        a('    s_nop 1')
        a(f'    v_add_u32_dpp v{v}, v{v}, v{v} row_shr:{sh} row_mask:0xf bank_mask:0xf')
    a('    s_nop 1')
    a(f'    v_add_u32_dpp v{v}, v{v}, v{v} row_bcast:15 row_mask:0xa bank_mask:0xf')
    a('    s_nop 1')
    a(f'    v_add_u32_dpp v{v}, v{v}, v{v} row_bcast:31 row_mask:0xc bank_mask:0xf')

def masked(a, cond, exreg, skip=None):
    a(f'    {cond}')
    a(f'    s_and_saveexec_b64 s[{exreg}:{exreg+1}], vcc')
    if skip: a(f'    s_cbranch_execz {skip}')
def unmask(a, exreg, skip=None):
    if skip: a.label(skip)
    a(f'    s_mov_b64 exec, s[{exreg}:{exreg+1}]')

K1_TWG = 125
K1_GRID = NC + K1_TWG
K1_LDS = 24576
L1_HIST = 0; L1_START = 1024; L1_STAGE = 2048

def gen_k1(a):
    a('.p2align 8')
    a('.type k1_kernel,@function')
    a.label('k1_kernel')
    a(f'    s_cmp_ge_u32 s2, {K1_GRID}')
    a('    s_cbranch_scc1 K1_END')
    stamp(a, 0); stamp(a, 10, True)
    if TFIRST:
        a(f'    s_cmp_lt_u32 s2, {K1_TWG}')
        a('    s_cbranch_scc1 K1_TABLE')
        a(f'    s_sub_u32 s3, s2, {K1_TWG}')
    else:
        a(f'    s_cmp_ge_u32 s2, {NC}')
        a('    s_cbranch_scc1 K1_TABLE')
        a('    s_mov_b32 s3, s2')
    a('    s_load_dwordx2 s[4:5], s[0:1], 8      ; e_attr')
    a('    s_load_dwordx4 s[8:11], s[0:1], 16')
    a('    s_load_dwordx2 s[6:7], s[0:1], 88     ; ws')
    a('    v_mov_b32 v2, 0')
    a('    v_lshlrev_b32 v1, 2, v0               ; t*4')
    masked(a, 'v_cmp_gt_u32 vcc, 256, v0', 30)
    a(f'    ds_write_b32 v1, v2 offset:{L1_HIST}')
    unmask(a, 30)
    a('    v_lshlrev_b32 v3, 4, v0               ; t*16')
    a('    v_lshlrev_b32 v4, 3, v0               ; t*8')
    a(f'    s_mul_i32 s20, s3, {EPC*4}')
    a(f'    s_mul_i32 s21, s3, {EPC*2}')
    a('    s_mov_b32 s22, 52429')
    a('    s_waitcnt lgkmcnt(0)')
    srd(a, 12, 10, 11, E*4)
    a('    buffer_load_dwordx4 v[8:11], v3, s[12:15], s20 offen     ; dst x4')
    srd(a, 16, 8, 9, E*4)
    a('    buffer_load_dwordx4 v[12:15], v3, s[16:19], s20 offen    ; src x4')
    srd(a, 24, 4, 5, E*2)
    a('    buffer_load_dwordx2 v[16:17], v4, s[24:27], s21 offen')
    srd(a, 32, 6, 7, NC*REC_STRIDE, off=WS_REC)
    srd(a, 36, 6, 7, NC*DESC_STRIDE, off=WS_DESC)
    stamp(a, 1)
    a('    s_barrier')
    a('    s_waitcnt vmcnt(2)')
    stamp(a, 2)
    for k in range(4):
        a(f'    v_mul_u32_u24 v{20+k}, s22, v{8+k}')
    for k in range(4):
        a(f'    v_lshrrev_b32 v{20+k}, 21, v{20+k}      ; bucket')
    for k in range(4):
        a(f'    v_lshlrev_b32 v{24+k}, 2, v{20+k}       ; bucket*4')
    a('    v_mov_b32 v5, 1')
    for k in range(4):
        a(f'    ds_add_rtn_u32 v{28+k}, v{24+k}, v5 offset:{L1_HIST}')
    for k in range(4):
        a(f'    v_mul_u32_u24 v{20+k}, {NPB}, v{20+k}')
        a(f'    v_sub_u32 v{20+k}, v{8+k}, v{20+k}')
    a('    s_waitcnt vmcnt(0)')
    for k in range(4):
        a(f'    v_lshl_or_b32 v{32+2*k}, v{20+k}, 16, v{12+k}')
    a('    v_lshlrev_b32 v33, 16, v16')
    a('    v_and_b32 v35, 0xffff0000, v16')
    a('    v_lshlrev_b32 v37, 16, v17')
    a('    v_and_b32 v39, 0xffff0000, v17')
    a('    v_and_b32 v6, 63, v0')
    a('    v_lshlrev_b32 v6, 4, v6                ; lane*16')
    a('    s_waitcnt lgkmcnt(0)')
    stamp(a, 3)
    a('    s_barrier')
    stamp(a, 4)
    a(f'    ds_read_b128 v[40:43], v6 offset:{L1_HIST}')
    a('    s_waitcnt lgkmcnt(0)')
    a('    v_add_u32 v44, v40, v41                ; h0+h1')
    a('    v_add_u32 v45, v44, v42')
    a('    v_add_u32 v46, v45, v43                ; sum4')
    a('    v_mov_b32 v47, v46')
    dpp_scan(a, 47)
    a('    v_sub_u32 v48, v47, v46')
    a('    v_add_u32 v49, v48, v40')
    a('    v_add_u32 v50, v48, v44')
    a('    v_add_u32 v51, v48, v45')
    a(f'    ds_write_b128 v6, v[48:51] offset:{L1_START}')
    a('    s_waitcnt lgkmcnt(0)')
    for k in range(4):
        a(f'    ds_read_b32 v{56+k}, v{24+k} offset:{L1_START}')
    masked(a, 'v_cmp_gt_u32 vcc, 64, v0', 30, 'K1_NODESC')
    for k in range(4):
        a(f'    v_lshl_or_b32 v{52+k}, v{40+k}, 16, v{48+k}')
    a(f'    s_mul_i32 s23, s3, {DESC_STRIDE}')
    a(f'    buffer_store_dwordx4 v[52:55], v6, s[36:39], s23 offen {K1ST}')
    unmask(a, 30, 'K1_NODESC')
    a('    s_waitcnt lgkmcnt(0)')
    for k in range(4):
        a(f'    v_add_lshl_u32 v{56+k}, v{56+k}, v{28+k}, 3   ; (start+rank)*8')
    for k in range(4):
        a(f'    ds_write_b64 v{56+k}, v[{32+2*k}:{33+2*k}] offset:{L1_STAGE}')
    a(f'    s_mul_i32 s23, s3, {REC_STRIDE}')
    a('    v_add_u32 v4, 10240, v3')
    a('    s_waitcnt lgkmcnt(0)')
    stamp(a, 5)
    a('    s_barrier')
    stamp(a, 6)
    a(f'    ds_read_b128 v[8:11], v3 offset:{L1_STAGE}')
    a(f'    ds_read_b128 v[12:15], v3 offset:{L1_STAGE + 10240}')
    a('    s_waitcnt lgkmcnt(1)')
    a(f'    buffer_store_dwordx4 v[8:11], v3, s[32:35], s23 offen {K1ST}')
    a('    s_waitcnt lgkmcnt(0)')
    a(f'    buffer_store_dwordx4 v[12:15], v4, s[32:35], s23 offen {K1ST}')
    if STAMP:
        stamp(a, 7)
        a('    s_waitcnt vmcnt(0)')
        stamp(a, 8); stamp(a, 11, True); stamp(a, 9)
        a('    v_lshrrev_b32 v1, 6, v0')
        a('    s_nop 0')
        a('    v_readfirstlane_b32 s20, v1')
        if TFIRST: a(f'    s_sub_u32 s21, s2, {K1_TWG}')
        else: a('    s_mov_b32 s21, s2')
        stamp_flush(a, 12, 20, 21, 0, 6, 0)
    a('    s_endpgm')
    a.label('K1_TABLE')
    a('    s_load_dwordx2 s[4:5], s[0:1], 0       ; x')
    a('    s_load_dwordx2 s[8:9], s[0:1], 40      ; w_b')
    a('    s_load_dwordx2 s[10:11], s[0:1], 64    ; w_v')
    a('    s_load_dwordx2 s[6:7], s[0:1], 88      ; ws')
    if TFIRST: a('    s_mov_b32 s3, s2')
    else: a(f'    s_sub_u32 s3, s2, {NC}')
    a('    v_lshrrev_b32 v1, 6, v0')
    a('    v_and_b32 v2, 63, v0                   ; lane')
    a('    v_readfirstlane_b32 s20, v1')
    a('    v_and_b32 v3, 511, v0')
    a('    v_lshlrev_b32 v3, 4, v3                ; (t&511)*16')
    a('    s_lshr_b32 s21, s20, 1')
    a('    s_lshl_b32 s21, s21, 4')
    a('    s_mul_i32 s22, s3, 80')
    a('    s_add_u32 s21, s21, s22                ; n0')
    a('    v_and_b32 v4, 15, v2')
    a('    v_add_u32 v4, s21, v4                  ; node')
    a('    v_lshrrev_b32 v5, 4, v2                ; g')
    a('    v_lshlrev_b32 v6, 7, v4')
    a('    v_lshl_add_u32 v6, v5, 4, v6')
    a('    s_waitcnt lgkmcnt(0)')
    srd(a, 16, 8, 9, 8192)
    srd(a, 24, 10, 11, 8192)
    masked(a, 'v_cmp_gt_u32 vcc, 512, v0', 40, 'K1_T_NOLD')
    a('    buffer_load_dwordx4 v[8:11], v3, s[16:19], 0 offen')
    a('    buffer_load_dwordx4 v[12:15], v3, s[24:27], 0 offen')
    unmask(a, 40, 'K1_T_NOLD')
    srd(a, 36, 4, 5, N*128)
    a('    buffer_load_dwordx4 v[24:27], v6, s[36:39], 0 offen')
    a('    buffer_load_dwordx4 v[28:31], v6, s[36:39], 0 offen offset:64')
    srd(a, 44, 6, 7, T_BYTES, off=WS_T)
    a('    s_and_b32 s23, s20, 1                  ; half')
    a('    s_lshl_b32 s24, s23, 6')
    a('    v_bfe_u32 v7, v2, 2, 2')
    a('    v_lshl_add_u32 v7, v5, 3, v7           ; 8g + r')
    a('    v_lshlrev_b32 v7, 7, v7')
    a('    v_and_b32 v16, 3, v2')
    a('    v_lshl_add_u32 v7, v16, 3, v7')
    a('    v_add_u32 v7, s24, v7')
    for r in range(32, 48):
        a(f'    v_mov_b32 v{r}, 0')
    masked(a, 'v_cmp_gt_u32 vcc, 512, v0', 40, 'K1_T_NOST')
    a('    s_waitcnt vmcnt(2)')
    a('    ds_write_b128 v3, v[8:11]')
    a('    ds_write_b128 v3, v[12:15] offset:8192')
    unmask(a, 40, 'K1_T_NOST')
    a('    s_waitcnt lgkmcnt(0)')
    stamp(a, 1)
    a('    s_barrier')
    stamp(a, 2)
    order = [(jj, ks, m) for jj in range(2) for ks in range(2) for m in range(2)]
    for i, (jj, ks, m) in enumerate(order):
        b = 48 + 4*i
        off = m*8192 + ks*32*128 + jj*32
        a(f'    ds_read_b64_tr_b16 v[{b}:{b+1}], v7 offset:{off}')
        a(f'    ds_read_b64_tr_b16 v[{b+2}:{b+3}], v7 offset:{off+512}')
    a('    s_waitcnt vmcnt(0)')
    for i, (jj, ks, m) in enumerate(order):
        b = 48 + 4*i
        a(f'    s_waitcnt lgkmcnt({min(15, 2*(7-i))})')
        acc = 32 + 8*m + 4*jj
        x = 24 + 4*ks
        a(f'    v_mfma_f32_16x16x32_bf16 v[{acc}:{acc+3}], v[{b}:{b+3}], v[{x}:{x+3}], v[{acc}:{acc+3}]')
    a(f'    s_mov_b32 s27, {hex(f2u(-LOG2E))}')
    a('    s_mov_b32 s28, 0xffff0000')
    a('    s_mov_b32 s29, 0x80000000')
    a('    v_lshlrev_b32 v9, 8, v4')
    a('    v_lshl_add_u32 v9, v5, 4, v9')
    a('    s_lshl_b32 s24, s23, 7')
    a('    v_add_u32 v9, s24, v9')
    a('    s_nop 3')
    stamp(a, 3)
    for jj in range(2):
        R = range(4)
        p = lambda r: 32 + 4*jj + r
        q = lambda r: 40 + 4*jj + r
        t = lambda r: 10 + r
        for r in R: a(f'    v_mul_f32 v{p(r)}, s27, v{p(r)}')
        for r in R: a(f'    v_cvt_f16_f32 v{p(r)}, v{p(r)}')
        for r in R: a(f'    v_and_b32 v{t(r)}, 0x7fffffff, v{q(r)}')
        for r in R: a(f'    v_and_b32 v{p(r)}, 0xffff, v{p(r)}')
        for r in R: a(f'    v_sub_u32 v{t(r)}, v{t(r)}, v{p(r)}')
        for r in R: a(f'    v_add_u32 v{t(r)}, 0x8000, v{t(r)}')
        for r in R: a(f'    v_max_i32 v{t(r)}, 0, v{t(r)}')
        for r in R: a(f'    v_and_or_b32 v{t(r)}, v{t(r)}, s28, v{p(r)}')
        for r in R: a(f'    v_and_or_b32 v{p(r)}, v{q(r)}, s29, v{t(r)}')
        a(f'    buffer_store_dwordx4 v[{32+4*jj}:{35+4*jj}], v9, s[44:47], 0 offen offset:{jj*64} {K1ST}')
    a('    s_cmp_eq_u32 s3, 0')
    a('    s_cbranch_scc0 K1_TFIN')
    a('    s_cmp_eq_u32 s20, 0')
    a('    s_cbranch_scc0 K1_TFIN')
    a('    v_mov_b32 v10, 0x7c00')
    a(f'    v_lshlrev_b32 v11, 2, v2')
    a(f'    v_add_u32 v11, {N*256}, v11')
    a(f'    buffer_store_dword v10, v11, s[44:47], 0 offen {K1ST}')
    a.label('K1_TFIN')
    if STAMP:
        stamp(a, 4)
        a('    s_waitcnt vmcnt(0)')
        stamp(a, 8); stamp(a, 11, True); stamp(a, 9)
        a(f'    s_add_u32 s21, s3, {NC}')
        stamp_flush(a, 12, 20, 21, 0, 6, 0)
    a.label('K1_END')
    a('    s_endpgm')

CAP = 4096
L2_CNT = 0; L2_FLG = 256
L2_SRC = 512; L2_EAV = 16896
L2_SLOT = 33280
L2_W = L2_SLOT
L2_EAT = 61952; L2_AT = 74240; L2_UT = 86528
K2_LDS = 98816
U = 4

def gen_k2(a):
    sB = 2; sWAVE = 3
    SRD_DESC = 12; SRD_REC = 16; SRD_T = 20; SRD_W = 24; SRD_X = 28; SRD_OUT = 32; SRD_WC = 36
    sMODE = 40; sPASS = 41
    sG0 = 42; sG1 = 43; sGEND = 44; sLEFT = 45; sNODE = 46; sT0 = 47; sT1 = 48; sSAFE = 49; sGT = 50; sR = 51
    sEX = 52; sEAB = 54; sPR = 55; sPQ = 56; sLVL = 57; sSLOT = 58
    vLANE = 1
    vWC = 4; vEA = 8; vDEN = 12; vNUM = 16; vT = 20; vDAT = 24; vP = 40; vEV = 48
    vSA = 50; vACC = 51; vEAA = 52; vGS = 53; vQ16 = 54; vSP = 55
    vDA = 56; vNA = 60
    vX = 64
    vFL = 66
    vXO = 68
    vR = 76
    vRK = 92
    vB = 100
    vA = 108
    vCNT = 120; vRO = 121; vI = 122; vCN = 123
    vW = 24
    vOP = 24
    vAC = 40

    a('.p2align 8')
    a('.type k2_kernel,@function')
    a.label('k2_kernel')
    a(f'    s_cmp_ge_u32 s2, {NB}')
    a('    s_cbranch_scc1 K2_END')
    stamp(a, 0); stamp(a, 10, True)
    a('    s_load_dwordx2 s[4:5], s[0:1], 0       ; x')
    a('    s_load_dwordx2 s[6:7], s[0:1], 88      ; ws')
    a('    s_load_dwordx2 s[8:9], s[0:1], 32      ; w_a')
    a('    s_load_dwordx4 s[60:63], s[0:1], 48    ; w_c, w_u')
    a('    s_load_dwordx2 s[10:11], s[0:1], 72    ; out')
    a(f'    v_and_b32 v{vLANE}, 63, v0')
    a(f'    v_lshrrev_b32 v{vA}, 6, v0')
    a(f'    v_and_b32 v{vQ16}, 15, v0')
    a(f'    v_readfirstlane_b32 s{sWAVE}, v{vA}')
    a(f'    v_lshlrev_b32 v{vQ16}, 4, v{vQ16}      ; q*16')
    a(f'    v_lshrrev_b32 v{vA}, 5, v{vLANE}')
    a(f'    v_lshl_add_u32 v{vFL}, v{vA}, 8, v{vQ16}')
    a(f'    v_bfe_u32 v{vA}, v{vLANE}, 4, 1')
    a(f'    v_lshl_add_u32 v{vFL}, v{vA}, 3, v{vFL}')
    for i in range(4):
        a(f'    v_mov_b32 v{vDA+i}, 0')
        a(f'    v_mov_b32 v{vNA+i}, 0')
    masked(a, 'v_cmp_gt_u32 vcc, 4, v0', sEX)
    a(f'    v_lshlrev_b32 v{vA+5}, 2, v0')
    a(f'    ds_write_b32 v{vA+5}, v{vDA} offset:{L2_FLG}')
    unmask(a, sEX)
    a(f'    v_lshrrev_b32 v{vA}, 2, v0             ; c')
    a(f'    v_lshlrev_b32 v{vA}, 10, v{vA}         ; c*1024')
    a(f'    s_lshl_b32 s{sT0}, s{sB}, 2')
    a(f'    v_mov_b32 v{vCNT}, 0')
    a(f'    v_and_b32 v{vA+1}, 511, v0')
    a(f'    v_lshlrev_b32 v{vA+1}, 4, v{vA+1}')
    a(f'    s_lshr_b32 s{sT1}, s{sWAVE}, 2')
    a(f'    s_lshl_b32 s{sT1}, s{sT1}, 4')
    a(f'    v_and_b32 v{vA+2}, 15, v{vLANE}')
    a(f'    v_add_u32 v{vA+2}, s{sT1}, v{vA+2}')
    a(f'    v_lshrrev_b32 v{vA+3}, 4, v{vLANE}     ; g')
    a(f'    v_lshlrev_b32 v{vA+4}, 7, v{vA+2}')
    a(f'    v_lshl_add_u32 v{vA+4}, v{vA+3}, 4, v{vA+4}')
    a(f'    v_lshlrev_b32 v{vA+6}, 3, v0           ; t*8 (epilogue x)')
    a(f'    v_lshrrev_b32 v{vA+7}, 1, v{vQ16}      ; q*8 (wc)')
    a('    s_waitcnt lgkmcnt(0)')
    srd(a, SRD_DESC, 6, 7, NC*DESC_STRIDE, off=WS_DESC)
    masked(a, f'v_cmp_gt_u32 vcc, {NC*4}, v0', sEX, 'K2_NODESC')
    a(f'    buffer_load_dword v{vCNT}, v{vA}, s[{SRD_DESC}:{SRD_DESC+3}], s{sT0} offen')
    unmask(a, sEX, 'K2_NODESC')
    a(f'    s_cmp_lt_u32 s{sWAVE}, 8')
    a(f'    s_cselect_b32 s{SRD_W}, s8, s62')
    a(f'    s_cselect_b32 s{SRD_W+1}, s9, s63')
    a(f'    s_mov_b32 s{SRD_W+2}, 8192')
    a(f'    s_mov_b32 s{SRD_W+3}, 0x00020000')
    a(f'    buffer_load_dwordx4 v[{vW}:{vW+3}], v{vA+1}, s[{SRD_W}:{SRD_W+3}], 0 offen')
    srd(a, SRD_X, 4, 5, N*128)
    a(f'    s_mul_i32 s{sT1}, s{sB}, {NPB*128}')
    a(f'    buffer_load_dwordx4 v[{vXO}:{vXO+3}], v{vA+4}, s[{SRD_X}:{SRD_X+3}], s{sT1} offen')
    a(f'    buffer_load_dwordx4 v[{vXO+4}:{vXO+7}], v{vA+4}, s[{SRD_X}:{SRD_X+3}], s{sT1} offen offset:64')
    a(f'    buffer_load_dwordx2 v[{vX}:{vX+1}], v{vA+6}, s[{SRD_X}:{SRD_X+3}], s{sT1} offen')
    srd(a, SRD_WC, 60, 61, 128)
    a(f'    buffer_load_dwordx2 v[{vWC}:{vWC+1}], v{vA+7}, s[{SRD_WC}:{SRD_WC+3}], 0 offen')
    srd(a, SRD_REC, 6, 7, NC*REC_STRIDE, off=WS_REC)
    srd(a, SRD_T, 6, 7, 0, off=WS_T, stride=256, nrec=N+1)
    srd(a, SRD_OUT, 10, 11, N*128)
    a(f'    s_mov_b32 s{sMODE}, 0')
    a(f'    s_mov_b32 s{sPASS}, 0')
    a(f'    v_lshlrev_b32 v{vA+5}, 4, v0')
    a.label('K2_PASS')
    dummy = N
    for i in range(4):
        a(f'    v_mov_b32 v{vA+8+i}, {dummy}')
    a(f'    v_lshlrev_b32 v{vA+5}, 4, v0')
    a(f'    ds_write_b128 v{vA+5}, v[{vA+8}:{vA+11}] offset:{L2_SRC}')
    for i in range(4):
        a(f'    v_mov_b32 v{vA+8+i}, 0')
    a(f'    ds_write_b128 v{vA+5}, v[{vA+8}:{vA+11}] offset:{L2_EAV}')
    masked(a, 'v_cmp_gt_u32 vcc, 64, v0', sEX)
    a(f'    v_lshlrev_b32 v{vA+4}, 2, v0')
    a(f'    ds_write_b32 v{vA+4}, v{vA+8} offset:{L2_CNT}')
    unmask(a, sEX)
    a(f'    s_cmp_eq_u32 s{sMODE}, 0')
    a('    s_cbranch_scc0 K2_SLOWPARAM')
    a('    s_waitcnt vmcnt(4)')
    stamp(a, 1)
    a(f'    ds_write_b128 v{vA+5}, v[{vW}:{vW+3}] offset:{L2_W}')
    a(f'    v_lshrrev_b32 v{vA}, 2, v0')
    a(f'    v_mul_u32_u24 v{vRO}, {REC_STRIDE}, v{vA}')
    a(f'    v_and_b32 v{vA+1}, 0xffff, v{vCNT}      ; start')
    a(f'    v_lshl_add_u32 v{vRO}, v{vA+1}, 3, v{vRO}')
    a(f'    v_and_b32 v{vI}, 3, v0')
    a(f'    v_lshl_add_u32 v{vRO}, v{vI}, 4, v{vRO}')
    a(f'    v_lshlrev_b32 v{vI}, 1, v{vI}')
    a(f'    v_lshrrev_b32 v{vCN}, 16, v{vCNT}       ; cnt')
    a(f'    s_mov_b32 s{sT1}, 8')
    a('    s_waitcnt vmcnt(2)')
    a('    s_branch K2_PARAMDONE')
    a.label('K2_SLOWPARAM')
    a(f'    s_mul_i32 s{sT0}, s{sPASS}, {DESC_STRIDE}')
    a(f'    s_lshl_b32 s{sT1}, s{sB}, 2')
    a(f'    s_add_u32 s{sT0}, s{sT0}, s{sT1}')
    a(f'    v_mov_b32 v{vA}, 0')
    a(f'    buffer_load_dword v{vCN}, v{vA}, s[{SRD_DESC}:{SRD_DESC+3}], s{sT0} offen')
    a(f'    s_mul_i32 s{sT0}, s{sPASS}, {REC_STRIDE}')
    a('    s_waitcnt vmcnt(0)')
    a(f'    v_and_b32 v{vA+1}, 0xffff, v{vCN}')
    a(f'    v_lshlrev_b32 v{vRO}, 3, v{vA+1}')
    a(f'    v_add_u32 v{vRO}, s{sT0}, v{vRO}')
    a(f'    v_lshl_add_u32 v{vRO}, v0, 4, v{vRO}')
    a(f'    v_lshlrev_b32 v{vI}, 1, v0')
    a(f'    v_lshrrev_b32 v{vCN}, 16, v{vCN}')
    a(f'    s_mov_b32 s{sT1}, 2048')
    a.label('K2_PARAMDONE')
    a(f'    s_lshl_b32 s{sT0}, s{sT1}, 3')
    a(f'    v_mov_b32 v{vA}, v{vI}')
    a(f'    v_mov_b32 v{vA+1}, v{vRO}')
    for r in range(4):
        masked(a, f'v_cmp_lt_u32 vcc, v{vA}, v{vCN}', sEX, f'K2_LD{r}_SKIP')
        a(f'    buffer_load_dwordx4 v[{vR+4*r}:{vR+4*r+3}], v{vA+1}, s[{SRD_REC}:{SRD_REC+3}], 0 offen')
        unmask(a, sEX, f'K2_LD{r}_SKIP')
        if r < 3:
            a(f'    v_add_u32 v{vA}, s{sT1}, v{vA}')
            a(f'    v_add_u32 v{vA+1}, s{sT0}, v{vA+1}')
    a('    s_waitcnt lgkmcnt(0)')
    a('    s_barrier')
    stamp(a, 2)
    a(f'    s_or_b32 s{sT0}, s{sMODE}, s{sPASS}')
    a(f'    s_cmp_eq_u32 s{sT0}, 0')
    a('    s_cbranch_scc0 K2_NOMFMA')
    a(f'    s_cmp_lt_u32 s{sWAVE}, 12')
    a('    s_cbranch_scc0 K2_NOMFMA')
    a(f'    s_and_b32 s{sT0}, s{sWAVE}, 3')
    a(f'    s_lshl_b32 s{sT1}, s{sT0}, 5')
    a(f'    v_lshrrev_b32 v{vA+3}, 4, v{vLANE}     ; g')
    a(f'    v_bfe_u32 v{vA}, v{vLANE}, 2, 2')
    a(f'    v_lshl_add_u32 v{vA}, v{vA+3}, 3, v{vA}')
    a(f'    v_lshlrev_b32 v{vA}, 7, v{vA}')
    a(f'    v_and_b32 v{vA+1}, 3, v{vLANE}')
    a(f'    v_lshl_add_u32 v{vA}, v{vA+1}, 3, v{vA}')
    a(f'    v_add_u32 v{vA}, s{sT1}, v{vA}')
    order = [(m, ks) for ks in range(2) for m in range(2)]
    for i, (m, ks) in enumerate(order):
        b = vOP + 4*i
        off = L2_W + m*8192 + ks*32*128
        a(f'    ds_read_b64_tr_b16 v[{b}:{b+1}], v{vA} offset:{off}')
        a(f'    ds_read_b64_tr_b16 v[{b+2}:{b+3}], v{vA} offset:{off+512}')
    for i in range(8):
        a(f'    v_mov_b32 v{vAC+i}, 0')
    a(f'    s_lshr_b32 s{sT1}, s{sWAVE}, 2')
    a(f'    s_lshl_b32 s{sT1}, s{sT1}, 4')
    a(f'    v_and_b32 v{vA+2}, 15, v{vLANE}')
    a(f'    v_add_u32 v{vA+2}, s{sT1}, v{vA+2}     ; row')
    a(f'    v_lshlrev_b32 v{vA+4}, 8, v{vA+2}')
    a(f'    v_lshl_add_u32 v{vA+4}, v{vA+3}, 4, v{vA+4}')
    a(f'    s_lshl_b32 s{sT0}, s{sT0}, 6')
    a(f'    s_add_u32 s{sT0}, s{sT0}, {L2_EAT}')
    a(f'    v_add_u32 v{vA+4}, s{sT0}, v{vA+4}')
    for i, (m, ks) in enumerate(order):
        b = vOP + 4*i
        a(f'    s_waitcnt lgkmcnt({2*(3-i)})')
        acc = vAC + 4*m; x = vXO + 4*ks
        a(f'    v_mfma_f32_16x16x32_bf16 v[{acc}:{acc+3}], v[{b}:{b+3}], v[{x}:{x+3}], v[{acc}:{acc+3}]')
    a(f'    s_mov_b32 s{sT0}, {hex(f2u(-LOG2E))}')
    a(f'    s_mov_b32 s{sT1}, {hex(f2u(60.0))}')
    a('    s_nop 6')
    for i in range(4):
        a(f'    v_mul_f32 v{vAC+i}, s{sT0}, v{vAC+i}      ; A\'')
    a(f'    ds_write_b128 v{vA+4}, v[{vAC+4}:{vAC+7}] offset:{L2_UT-L2_EAT}')
    a(f'    ds_write_b128 v{vA+4}, v[{vAC}:{vAC+3}] offset:{L2_AT-L2_EAT}')
    for i in range(4):
        a(f'    v_exp_f32 v{vOP+i}, v{vAC+i}')
    a(f'    v_max3_f32 v{vA+5}, |v{vAC}|, |v{vAC+1}|, |v{vAC+2}|')
    a(f'    v_max_f32 v{vA+5}, v{vA+5}, |v{vAC+3}|')
    a(f'    ds_write_b128 v{vA+4}, v[{vOP}:{vOP+3}]')
    a(f'    v_cmp_nle_f32 vcc, v{vA+5}, s{sT1}')
    a(f'    v_cmp_gt_u32 s[{sEX}:{sEX+1}], {NPB}, v{vA+2}')
    a(f'    s_and_b64 vcc, vcc, s[{sEX}:{sEX+1}]')
    a(f'    s_and_saveexec_b64 s[{sEX}:{sEX+1}], vcc')
    a('    s_cbranch_execz K2_GUARD_OK')
    a(f'    v_mov_b32 v{vA+5}, 1')
    a(f'    v_mov_b32 v{vA+6}, 0')
    a(f'    ds_write_b32 v{vA+6}, v{vA+5} offset:{L2_FLG+4}')
    unmask(a, sEX, 'K2_GUARD_OK')
    a.label('K2_NOMFMA')
    masked(a, f'v_cmp_lt_u32 vcc, 32, v{vCN}', sEX, 'K2_NOOVF')
    a(f'    v_mov_b32 v{vA+2}, 1')
    a(f'    v_mov_b32 v{vA+3}, 0')
    a(f'    ds_write_b32 v{vA+3}, v{vA+2} offset:{L2_FLG}')
    unmask(a, sEX, 'K2_NOOVF')
    a(f'    s_cmp_eq_u32 s{sMODE}, 0')
    a(f'    s_mov_b32 s{sT1}, 2048')
    a(f'    s_cselect_b32 s{sT1}, 8, s{sT1}')
    a('    s_waitcnt vmcnt(0)')
    stamp(a, 3)
    a(f'    s_or_b32 s{sT0}, s{sMODE}, s{sPASS}')
    a(f'    s_cmp_eq_u32 s{sT0}, 0')
    a('    s_cbranch_scc0 K2_WCDONE')
    a(f'    s_mov_b32 s{sT0}, {hex(f2u(-LOG2E))}')
    a(f'    v_and_b32 v{vWC+3}, 0xffff0000, v{vWC+1}')
    a(f'    v_lshlrev_b32 v{vWC+2}, 16, v{vWC+1}')
    a(f'    v_and_b32 v{vWC+1}, 0xffff0000, v{vWC}')
    a(f'    v_lshlrev_b32 v{vWC}, 16, v{vWC}')
    for k in range(4):
        a(f'    v_mul_f32 v{vWC+k}, s{sT0}, v{vWC+k}')
    for k in range(U):
        a(f'    v_mov_b32 v{vP+2*k+1}, v{vQ16}')
    a.label('K2_WCDONE')
    a(f'    v_mov_b32 v{vA+2}, 1')
    a(f'    v_mov_b32 v{vA}, v{vI}')
    for r in range(4):
        for h in range(2):
            k = 2*r + h
            a(f'    v_add_u32 v{vA+3}, {h}, v{vA}')
            masked(a, f'v_cmp_lt_u32 vcc, v{vA+3}, v{vCN}', sEX, f'K2_RK{k}_SKIP')
            a(f'    v_lshrrev_b32 v{vA+4}, 16, v{vR+4*r+2*h}')
            a(f'    v_lshlrev_b32 v{vA+4}, 2, v{vA+4}')
            a(f'    ds_add_rtn_u32 v{vRK+k}, v{vA+4}, v{vA+2} offset:{L2_CNT}')
            unmask(a, sEX, f'K2_RK{k}_SKIP')
        if r < 3:
            a(f'    v_add_u32 v{vA}, s{sT1}, v{vA}')
    a('    s_waitcnt lgkmcnt(0)')
    a('    s_barrier')
    stamp(a, 4)
    a(f'    v_mov_b32 v{vA}, 0')
    a(f'    ds_read_b64 v[{vA+4}:{vA+5}], v{vA} offset:{L2_FLG}')
    a(f'    v_lshlrev_b32 v{vA+1}, 2, v{vLANE}')
    a(f'    ds_read_b32 v{vA+6}, v{vA+1} offset:{L2_CNT}')
    a('    s_waitcnt lgkmcnt(0)')
    a(f'    v_readfirstlane_b32 s{sT0}, v{vA+4}')
    a(f'    v_readfirstlane_b32 s{sSAFE}, v{vA+5}')
    a(f'    v_add_u32 v{vA+6}, 3, v{vA+6}')
    a(f'    v_lshrrev_b32 v{vA+6}, 2, v{vA+6}')
    a(f'    v_mov_b32 v{vGS}, v{vA+6}')
    dpp_scan(a, vGS)
    a('    s_nop 0')
    a(f'    v_readlane_b32 s{sGT}, v{vGS}, {NPB-1}')
    a(f'    v_mov_b32 v{vA+7}, v{vGS}')
    a(f'    v_sub_u32 v{vGS}, v{vGS}, v{vA+6}')
    a(f'    v_cmp_lt_u32 vcc, {NPB}, v{vLANE}')
    a(f'    s_add_u32 s{sR}, s{sGT}, 15')
    a(f'    s_lshr_b32 s{sR}, s{sR}, 4')
    a(f'    v_cndmask_b32 v{vGS}, v{vGS}, -1, vcc')
    a(f'    s_cmp_eq_u32 s{sMODE}, 0')
    a('    s_cbranch_scc0 K2_NOSWITCH')
    a(f'    s_cmp_gt_u32 s{sGT}, {(CAP - 64)//4}')
    a(f'    s_cselect_b32 s{sT1}, 1, 0')
    a(f'    s_or_b32 s{sT0}, s{sT0}, s{sT1}')
    a(f'    s_cmp_eq_u32 s{sT0}, 0')
    a('    s_cbranch_scc1 K2_NOSWITCH')
    a(f'    s_mov_b32 s{sMODE}, 1')
    a(f'    s_mov_b32 s{sPASS}, 0')
    a('    s_barrier')
    a('    s_branch K2_PASS')
    a.label('K2_NOSWITCH')
    for k in range(8):
        rec = vR + 2*k
        a(f'    v_lshrrev_b32 v{vA+4}, 16, v{rec}')
        a(f'    v_and_b32 v{vA+4}, 63, v{vA+4}')
        a(f'    v_lshlrev_b32 v{vA+4}, 2, v{vA+4}')
        a(f'    ds_bpermute_b32 v{vB+k}, v{vA+4}, v{vGS}')
    a(f'    v_cvt_f32_u32 v{vA}, s{sR}')
    a(f'    v_cvt_f32_u32 v{vA+1}, v{vGS}')
    a(f'    v_rcp_f32 v{vA}, v{vA}')
    a(f'    v_cvt_f32_u32 v{vA+2}, v{vA+7}')
    a(f'    v_add_f32 v{vA+1}, 0.5, v{vA+1}')
    a(f'    v_add_f32 v{vA+2}, -0.5, v{vA+2}')
    a(f'    v_mul_f32 v{vA+1}, v{vA+1}, v{vA}')
    a(f'    v_mul_f32 v{vA+2}, v{vA+2}, v{vA}')
    a(f'    v_cvt_u32_f32 v{vA+1}, v{vA+1}          ; wlo')
    a(f'    v_cvt_u32_f32 v{vA+2}, v{vA+2}          ; whi')
    a(f'    v_sub_u32 v{vA+2}, v{vA+2}, v{vA+1}')
    a(f'    v_add_u32 v{vA+2}, 1, v{vA+2}')
    a(f'    v_cmp_eq_u32 vcc, 0, v{vA+6}')
    a(f'    v_add_u32 v{vA+1}, v{vA+1}, v{vLANE}')
    a(f'    v_and_b32 v{vA+1}, 0xffff, v{vA+1}')
    a(f'    v_cndmask_b32 v{vA+2}, v{vA+2}, 0, vcc')
    a(f'    v_lshl_or_b32 v{vSP}, v{vA+2}, 16, v{vA+1}')
    a(f'    s_cmp_eq_u32 s{sMODE}, 0')
    a(f'    s_mov_b32 s{sT1}, 2048')
    a(f'    s_cselect_b32 s{sT1}, 8, s{sT1}')
    a(f'    v_mov_b32 v{vA}, v{vI}')
    a('    s_waitcnt lgkmcnt(0)')
    for r in range(4):
        for h in range(2):
            k = 2*r + h
            rec = vR + 2*k
            a(f'    v_add_u32 v{vA+3}, {h}, v{vA}')
            masked(a, f'v_cmp_lt_u32 vcc, v{vA+3}, v{vCN}', sEX, f'K2_SC{k}_SKIP')
            a(f'    v_lshl_add_u32 v{vA+5}, v{vB+k}, 2, v{vRK+k}')
            a(f'    v_lshlrev_b32 v{vA+5}, 2, v{vA+5}')
            a(f'    v_and_b32 v{vA+6}, 0xffff, v{rec}')
            a(f'    ds_write_b32 v{vA+5}, v{vA+6} offset:{L2_SRC}')
            a(f'    ds_write_b32 v{vA+5}, v{rec+1} offset:{L2_EAV}')
            unmask(a, sEX, f'K2_SC{k}_SKIP')
        if r < 3:
            a(f'    v_add_u32 v{vA}, s{sT1}, v{vA}')
    a('    s_waitcnt lgkmcnt(0)')
    a('    s_barrier')
    stamp(a, 5)

    def tload(k):
        d = vDAT + 4*k
        a(f'    buffer_load_dwordx4 v[{d}:{d+3}], v[{vP+2*k}:{vP+2*k+1}], s[{SRD_T}:{SRD_T+3}], 0 idxen offen')

    a(f'    s_mul_i32 s{sG0}, s{sR}, s{sWAVE}')
    a(f'    s_add_u32 s{sG1}, s{sG0}, s{sR}')
    a(f'    s_min_u32 s{sG1}, s{sG1}, s{sGT}')
    a(f'    s_cmp_ge_u32 s{sG0}, s{sG1}')
    a('    s_cbranch_scc1 K2_MAIN_DONE')
    a(f'    v_lshrrev_b32 v{vSA}, 4, v{vLANE}')
    a(f'    v_lshlrev_b32 v{vSA}, 2, v{vSA}         ; slot*4')
    a(f'    s_lshl_b32 s{sT0}, s{sG0}, 4')
    a(f'    v_add_u32 v{vSA}, s{sT0}, v{vSA}')
    for k in range(U):
        a(f'    ds_read_b32 v{vP+2*k}, v{vSA} offset:{L2_SRC + 16*k}')
    a(f'    ds_read_b32 v{vEV}, v{vSA} offset:{L2_EAV}')
    a(f'    s_cmp_eq_u32 s{sSAFE}, 0')
    a(f'    s_cselect_b32 s{sEAB}, {L2_EAT}, {L2_AT}') if False else None
    a(f'    s_mov_b32 s{sEAB}, {L2_AT}')
    a(f'    s_cselect_b32 s{sEAB}, {L2_EAT}, s{sEAB}')
    if PRIO:
        a(f'    s_lshr_b32 s{sPQ}, s{sR}, 4')
        a(f'    s_add_u32 s{sPQ}, s{sPQ}, 1')
        a(f'    s_mov_b32 s{sPR}, s{sPQ}')
        a(f'    s_mov_b32 s{sLVL}, 3')
        a('    s_setprio 3')
    a('    s_waitcnt lgkmcnt(0)')
    for k in range(U):
        tload(k)
    a(f'    ds_read_b32 v{vP}, v{vSA} offset:{L2_SRC + 16*U}')
    a(f'    s_mov_b32 s{sGEND}, s{sG0}')
    a(f'    s_cmp_eq_u32 s{sSAFE}, 0')
    a('    s_cbranch_scc0 K2S_ENTER')
    a('    s_branch K2F_ENTER')

    def next_node():
        a(f'    v_cmp_ge_u32 vcc, s{sGEND}, v{vGS}')
        a(f'    s_bcnt1_i32_b64 s{sT0}, vcc')
        a(f'    s_sub_u32 s{sNODE}, s{sT0}, 1')
        a(f'    v_readlane_b32 s{sT1}, v{vGS}, s{sT0}')
        a(f'    s_lshl_b32 s{sT0}, s{sNODE}, 8')
        a(f'    s_add_u32 s{sT0}, s{sT0}, s{sEAB}')
        a(f'    v_add_u32 v{vEAA}, s{sT0}, v{vQ16}')
        a(f'    ds_read_b128 v[{vEA}:{vEA+3}], v{vEAA}')
        a(f'    s_min_u32 s{sT1}, s{sT1}, s{sG1}')
        a(f'    s_sub_u32 s{sLEFT}, s{sT1}, s{sGEND}')
        a(f'    s_sub_u32 s{sLEFT}, s{sLEFT}, 1')
        a(f'    s_mov_b32 s{sGEND}, s{sT1}')

    def set_slot():
        a(f'    s_add_u32 s{sSLOT}, s{sNODE}, s{sWAVE}')
        a(f'    s_lshl_b32 s{sSLOT}, s{sSLOT}, 9')

    def flush():
        a(f'    v_add_u32 v{vACC}, s{sSLOT}, v{vFL}')
        for i in range(4):
            a(f'    v_permlane32_swap_b32 v{vDEN+i}, v{vNUM+i}')
        a(f'    v_pk_add_f32 v[{vDEN}:{vDEN+1}], v[{vDEN}:{vDEN+1}], v[{vNUM}:{vNUM+1}]')
        a(f'    v_pk_add_f32 v[{vDEN+2}:{vDEN+3}], v[{vDEN+2}:{vDEN+3}], v[{vNUM+2}:{vNUM+3}]')
        a('    s_nop 1')
        a(f'    v_permlane16_swap_b32 v{vDEN}, v{vDEN+2}')
        a(f'    v_permlane16_swap_b32 v{vDEN+1}, v{vDEN+3}')
        a(f'    v_pk_add_f32 v[{vNUM}:{vNUM+1}], v[{vDEN}:{vDEN+1}], v[{vDEN+2}:{vDEN+3}]')
        a(f'    ds_write_b64 v{vACC}, v[{vNUM}:{vNUM+1}] offset:{L2_SLOT}')

    def step(k, safe, init):
        d = vDAT + 4*k
        ev = vEV + (k & 1); evn = vEV + ((k+1) & 1)
        pn = vP + 2*((k+1) % U)
        for i in range(4):
            a(f'    v_fma_mix_f32 v{vT+i}, v{ev}, v{vWC+i}, v{d+i} op_sel:[0,0,0] op_sel_hi:[0,0,1]')
        a(f'    ds_read_b32 v{evn}, v{vSA} offset:{L2_EAV + 16*(k+1)}')
        a(f'    ds_read_b32 v{pn}, v{vSA} offset:{L2_SRC + 16*(k+1+U)}')
        if init and safe:
            a('    s_waitcnt lgkmcnt(3)')
        if safe:
            a(f'    v_pk_add_f32 v[{vT}:{vT+1}], v[{vT}:{vT+1}], v[{vEA}:{vEA+1}]')
            a(f'    v_pk_add_f32 v[{vT+2}:{vT+3}], v[{vT+2}:{vT+3}], v[{vEA+2}:{vEA+3}]')
        for i in range(4):
            a(f'    v_exp_f32 v{vT+i}, v{vT+i}')
        if init and not safe:
            a('    s_waitcnt lgkmcnt(3)')
        if safe:
            a(f'    v_pk_add_f32 v[{vT}:{vT+1}], v[{vT}:{vT+1}], 1.0 op_sel_hi:[1,0]')
            a(f'    v_pk_add_f32 v[{vT+2}:{vT+3}], v[{vT+2}:{vT+3}], 1.0 op_sel_hi:[1,0]')
        else:
            a(f'    v_pk_fma_f32 v[{vT}:{vT+1}], v[{vEA}:{vEA+1}], v[{vT}:{vT+1}], 1.0 op_sel_hi:[1,1,0]')
            a(f'    v_pk_fma_f32 v[{vT+2}:{vT+3}], v[{vEA+2}:{vEA+3}], v[{vT+2}:{vT+3}], 1.0 op_sel_hi:[1,1,0]')
        if init:
            for i in range(4):
                a(f'    v_rcp_f32 v{vDEN+i}, v{vT+i}')
            a('    s_nop 0')
            a(f'    v_pk_mul_f32 v[{vNUM}:{vNUM+1}], v[{vDEN}:{vDEN+1}], v[{d}:{d+1}]')
            a(f'    v_pk_mul_f32 v[{vNUM+2}:{vNUM+3}], v[{vDEN+2}:{vDEN+3}], v[{d+2}:{d+3}]')
        else:
            for i in range(4):
                a(f'    v_rcp_f32 v{vT+i}, v{vT+i}')
            a(f'    v_pk_add_f32 v[{vDEN}:{vDEN+1}], v[{vDEN}:{vDEN+1}], v[{vT}:{vT+1}]')
            a(f'    v_pk_add_f32 v[{vDEN+2}:{vDEN+3}], v[{vDEN+2}:{vDEN+3}], v[{vT+2}:{vT+3}]')
            a(f'    v_pk_fma_f32 v[{vNUM}:{vNUM+1}], v[{vT}:{vT+1}], v[{d}:{d+1}], v[{vNUM}:{vNUM+1}]')
            a(f'    v_pk_fma_f32 v[{vNUM+2}:{vNUM+3}], v[{vT+2}:{vT+3}], v[{d+2}:{d+3}], v[{vNUM+2}:{vNUM+3}]')
        tload(k)
        if k == U-1:
            a(f'    v_add_u32 v{vSA}, {16*U}, v{vSA}')

    def loopback(pfx):
        if PRIO:
            a(f'    s_sub_u32 s{sPR}, s{sPR}, 1')
            a(f'    s_cmp_lg_u32 s{sPR}, 0')
            a(f'    s_cbranch_scc1 {pfx}_STEP0')
            a(f'    s_branch {pfx}_PRIO')
        else:
            a(f'    s_branch {pfx}_STEP0')

    for pfx, safe in (('K2F', False), ('K2S', True)):
        a.label(f'{pfx}_ENTER')
        next_node()
        set_slot()
        a('    s_waitcnt vmcnt(3) lgkmcnt(0)')
        step(0, safe, True)
        a(f'    s_branch {pfx}_STEP1')
        for k in range(U):
            a.label(f'{pfx}_STEP{k}')
            a(f'    s_waitcnt vmcnt({U-1}) lgkmcnt(0)')
            a(f'    s_sub_u32 s{sLEFT}, s{sLEFT}, 1')
            a(f'    s_cbranch_scc1 {pfx}_FLUSH{k}')
            step(k, safe, False)
            if k == U-1:
                loopback(pfx)
        for k in range(U):
            a.label(f'{pfx}_FLUSH{k}')
            a(f'    s_cmp_ge_u32 s{sGEND}, s{sG1}')
            a(f'    s_cbranch_scc1 K2_LAST')
            next_node()
            flush()
            set_slot()
            step(k, safe, True)
            if k == U-1:
                loopback(pfx)
            else:
                a(f'    s_branch {pfx}_STEP{k+1}')
        if PRIO:
            a.label(f'{pfx}_PRIO')
            a(f'    s_mov_b32 s{sPR}, s{sPQ}')
            a(f'    s_sub_u32 s{sLVL}, s{sLVL}, 1')
            a(f'    s_cmp_eq_u32 s{sLVL}, 2')
            a(f'    s_cbranch_scc1 {pfx}_PRIO2')
            a(f'    s_cmp_eq_u32 s{sLVL}, 1')
            a(f'    s_cbranch_scc1 {pfx}_PRIO1')
            a('    s_setprio 0')
            a(f'    s_branch {pfx}_STEP0')
            a.label(f'{pfx}_PRIO2')
            a('    s_setprio 2')
            a(f'    s_branch {pfx}_STEP0')
            a.label(f'{pfx}_PRIO1')
            a('    s_setprio 1')
            a(f'    s_branch {pfx}_STEP0')
    a.label('K2_LAST')
    flush()
    a.label('K2_MAIN_DONE')
    if PRIO: a('    s_setprio 0')
    a('    s_waitcnt vmcnt(0) lgkmcnt(0)')
    stamp(a, 6)
    a('    s_barrier')
    stamp(a, 7)
    a(f'    v_lshrrev_b32 v{vA}, 4, v0              ; node')
    a(f'    v_and_b32 v{vA}, 63, v{vA}')
    a(f'    v_lshlrev_b32 v{vA}, 2, v{vA}')
    a(f'    ds_bpermute_b32 v{vA+1}, v{vA}, v{vSP}')
    a('    s_waitcnt lgkmcnt(0)')
    a(f'    v_cmp_gt_u32 vcc, {NPB*16}, v0')
    a(f'    v_lshrrev_b32 v{vA+2}, 16, v{vA+1}')
    a(f'    v_and_b32 v{vA+1}, 0xffff, v{vA+1}')
    a(f'    v_cndmask_b32 v{vA+2}, 0, v{vA+2}, vcc')
    a(f'    v_lshl_add_u32 v{vA+1}, v{vA+1}, 9, v{vQ16}')
    a.label('K2_FOLD')
    masked(a, f'v_cmp_lt_u32 vcc, 0, v{vA+2}', sEX, 'K2_FOLD_DONE')
    a(f'    ds_read_b128 v[{vDEN}:{vDEN+3}], v{vA+1} offset:{L2_SLOT}')
    a(f'    ds_read_b128 v[{vNUM}:{vNUM+3}], v{vA+1} offset:{L2_SLOT+256}')
    a(f'    v_add_u32 v{vA+1}, 512, v{vA+1}')
    a(f'    v_add_u32 v{vA+2}, -1, v{vA+2}')
    a('    s_waitcnt lgkmcnt(1)')
    a(f'    v_pk_add_f32 v[{vDA}:{vDA+1}], v[{vDA}:{vDA+1}], v[{vDEN}:{vDEN+1}]')
    a(f'    v_pk_add_f32 v[{vDA+2}:{vDA+3}], v[{vDA+2}:{vDA+3}], v[{vDEN+2}:{vDEN+3}]')
    a('    s_waitcnt lgkmcnt(0)')
    a(f'    v_pk_add_f32 v[{vNA}:{vNA+1}], v[{vNA}:{vNA+1}], v[{vNUM}:{vNUM+1}]')
    a(f'    v_pk_add_f32 v[{vNA+2}:{vNA+3}], v[{vNA+2}:{vNA+3}], v[{vNUM+2}:{vNUM+3}]')
    unmask(a, sEX)
    a('    s_branch K2_FOLD')
    unmask(a, sEX, 'K2_FOLD_DONE')
    a(f'    s_cmp_eq_u32 s{sMODE}, 0')
    a('    s_cbranch_scc1 K2_EPI')
    a(f'    s_add_u32 s{sPASS}, s{sPASS}, 1')
    a(f'    s_cmp_lt_u32 s{sPASS}, {NC}')
    a('    s_cbranch_scc0 K2_EPI')
    a('    s_barrier')
    a('    s_branch K2_PASS')
    a.label('K2_EPI')
    masked(a, f'v_cmp_gt_u32 vcc, {NPB*16}, v0', sEX, 'K2_FIN')
    a(f'    v_lshlrev_b32 v{vA}, 4, v0              ; node*256 + q*16')
    a(f'    v_add_u32 v{vA}, {L2_UT}, v{vA}')
    a(f'    ds_read_b128 v[{vDEN}:{vDEN+3}], v{vA}')
    a(f'    s_mov_b32 s{sT0}, {hex(f2u(1e-6))}')
    a(f'    v_lshlrev_b32 v{vT}, 16, v{vX}')
    a(f'    v_and_b32 v{vT+1}, 0xffff0000, v{vX}')
    a(f'    v_lshlrev_b32 v{vT+2}, 16, v{vX+1}')
    a(f'    v_and_b32 v{vT+3}, 0xffff0000, v{vX+1}')
    for i in range(4):
        a(f'    v_add_f32 v{vDA+i}, s{sT0}, v{vDA+i}')
    for i in range(4):
        a(f'    v_rcp_f32 v{vDA+i}, v{vDA+i}')
    a('    s_waitcnt lgkmcnt(0)')
    for i in range(4):
        a(f'    v_fma_f32 v{vNA+i}, v{vNA+i}, v{vDA+i}, v{vDEN+i}    ; z = U + agg')
    for i in range(4):
        a(f'    v_mul_f32 v{vDEN+i}, 0, v{vNA+i}                     ; 0*z')
        a(f'    v_cmp_lt_f32 vcc, 0, v{vNA+i}')
        a('    s_nop 1')
        a(f'    v_cndmask_b32 v{vNA+i}, v{vDEN+i}, v{vNA+i}, vcc')
        a(f'    v_add_f32 v{vNA+i}, v{vNA+i}, v{vT+i}')
    a(f'    v_cvt_pk_bf16_f32 v{vDEN}, v{vNA}, v{vNA+1}')
    a(f'    v_cvt_pk_bf16_f32 v{vDEN+1}, v{vNA+2}, v{vNA+3}')
    a(f'    s_mul_i32 s{sT1}, s{sB}, {NPB*128}')
    a(f'    v_lshlrev_b32 v{vA+1}, 3, v0')
    a(f'    buffer_store_dwordx2 v[{vDEN}:{vDEN+1}], v{vA+1}, s[{SRD_OUT}:{SRD_OUT+3}], s{sT1} offen')
    a.label('K2_FIN')
    if STAMP:
        a('    s_mov_b64 exec, -1')
        a('    s_waitcnt vmcnt(0)')
    stamp(a, 8); stamp(a, 11, True); stamp(a, 9)
    stamp_flush(a, 12, sWAVE, sB, 1, 6, -512)
    a.label('K2_END')
    a('    s_endpgm')

def kd(a, name, vgpr, sgpr):
    a(f'.amdhsa_kernel {name}')
    a(f'  .amdhsa_next_free_vgpr {vgpr}')
    a(f'  .amdhsa_next_free_sgpr {sgpr}')
    a(f'  .amdhsa_accum_offset {((vgpr+3)//4)*4}')
    a('  .amdhsa_group_segment_fixed_size 0')
    a('  .amdhsa_kernarg_size 96')
    a('  .amdhsa_user_sgpr_count 2')
    a('  .amdhsa_user_sgpr_kernarg_segment_ptr 1')
    a('  .amdhsa_system_sgpr_workgroup_id_x 1')
    a('  .amdhsa_float_denorm_mode_32 3')
    a('.end_amdhsa_kernel')

def main(out):
    a = Asm()
    a(f'; @launch kernel=k1_kernel grid=({K1_GRID},1,1) block=(640,1,1) lds={K1_LDS}')
    a(f'; @launch kernel=k2_kernel grid=({NB},1,1) block=(1024,1,1) lds={K2_LDS}')
    a('.amdgcn_target "amdgcn-amd-amdhsa--gfx950"')
    a('.text')
    a('.globl k1_kernel')
    gen_k1(a)
    a('.globl k2_kernel')
    gen_k2(a)
    a('.section .rodata,"a"')
    a('.p2align 6')
    kd(a, 'k1_kernel', 80, 102 if STAMP else 64)
    a('.p2align 6')
    kd(a, 'k2_kernel', 124, 102 if STAMP else 64)
    a.l = [x for x in a.l if x is not None]
    open(out, 'w').write(a.text())

if __name__ == '__main__':
    main(sys.argv[1] if len(sys.argv) > 1 else 'standalone__edge_featured_mpnn_gatedgcn__graph.s')
```

```python
import sys, os, struct
def env(n, d): return os.environ.get(n, d)

N = 10000; E = 640000
NPB = 40; NB = 250; EPC = 2560; NC = 250
LOG2E = 1.4426950408889634
WS_REC  = 0
REC_STRIDE = EPC*8
WS_DESC = 5242880
DESC_STRIDE = 1024
WS_T    = 6291456
T_BYTES = (N+1)*256

STAMP = int(env('STAMP', '0'))
K1ST = env('K1ST', 'sc1')
PRIO = int(env('PRIO', '1'))
TFIRST = int(env('TFIRST', '1'))
WS_STAMP = 128 << 20
ST0 = 80

def f2u(f): return struct.unpack('<I', struct.pack('<f', f))[0]

class Asm:
    def __init__(self): self.l = []
    def __call__(self, s=''):
        for line in s.split('\n'): self.l.append(line)
    def label(self, n): self.l.append(n + ':')
    def text(self): return '\n'.join(self.l) + '\n'

def stamp(a, i, real=False):
    if STAMP:
        r = ST0 + 2*(8+i if real else i)
        a(f"    {'s_memrealtime' if real else 's_memtime'} s[{r}:{r+1}]")
def stamp_flush(a, wave_sgpr, wg_sgpr, kern, ws_lo):
    if not STAMP: return
    a('    s_waitcnt lgkmcnt(0)')
    a('    s_mov_b64 exec, 1')
    a('    v_mov_b32 v2, 0')
    a(f'    s_add_u32 s12, s{ws_lo}, {WS_STAMP + kern*(4<<20)}')
    a(f'    s_addc_u32 s13, s{ws_lo+1}, 0')
    a(f'    s_mov_b32 s14, {4<<20}')
    a('    s_mov_b32 s15, 0x00020000')
    a(f'    s_lshl_b32 s16, s{wg_sgpr}, 4')
    a(f'    s_add_u32 s16, s16, s{wave_sgpr}')
    a(f'    s_lshl_b32 s16, s16, 6')
    for i in range(8):
        a(f'    v_mov_b32 v3, s{ST0+2*i}')
        a(f'    buffer_store_dword v3, v2, s[12:15], s16 offen offset:{4*i}')
    for i in range(2):
        a(f'    v_mov_b32 v3, s{ST0+2*(8+i)}')
        a(f'    buffer_store_dword v3, v2, s[12:15], s16 offen offset:{4*(10+i)}')
    a('    s_waitcnt vmcnt(0)')

def srd(a, sreg, lo, hi, nbytes, off=0, stride=0, nrec=None):
    if off:
        a(f'    s_add_u32 s{sreg}, s{lo}, {off}')
        a(f'    s_addc_u32 s{sreg+1}, s{hi}, 0')
    else:
        a(f'    s_mov_b32 s{sreg}, s{lo}')
        a(f'    s_mov_b32 s{sreg+1}, s{hi}')
    if stride:
        a(f'    s_and_b32 s{sreg+1}, s{sreg+1}, 0xffff')
        a(f'    s_or_b32 s{sreg+1}, s{sreg+1}, {stride << 16}')
        a(f'    s_mov_b32 s{sreg+2}, {nrec}')
    else:
        a(f'    s_mov_b32 s{sreg+2}, {nbytes}')
    a(f'    s_mov_b32 s{sreg+3}, 0x00020000')

def dpp_scan(a, v):
    for sh in (1, 2, 4, 8):
        a('    s_nop 1')
        a(f'    v_add_u32_dpp v{v}, v{v}, v{v} row_shr:{sh} row_mask:0xf bank_mask:0xf')
    a('    s_nop 1')
    a(f'    v_add_u32_dpp v{v}, v{v}, v{v} row_bcast:15 row_mask:0xa bank_mask:0xf')
    a('    s_nop 1')
    a(f'    v_add_u32_dpp v{v}, v{v}, v{v} row_bcast:31 row_mask:0xc bank_mask:0xf')

def masked(a, cond, exreg, skip=None):
    a(f'    {cond}')
    a(f'    s_and_saveexec_b64 s[{exreg}:{exreg+1}], vcc')
    if skip: a(f'    s_cbranch_execz {skip}')
def unmask(a, exreg, skip=None):
    if skip: a.label(skip)
    a(f'    s_mov_b64 exec, s[{exreg}:{exreg+1}]')

K1_GRID = NC
L1_HIST = 0; L1_START = 1024; L1_STAGE = 2048; L1_W = 22528
K1_LDS = L1_W + 16384

def gen_k1(a):
    a('.p2align 8')
    a('.type k1_kernel,@function')
    a.label('k1_kernel')
    a(f'    s_cmp_ge_u32 s2, {K1_GRID}')
    a('    s_cbranch_scc1 K1_END')
    stamp(a, 0); stamp(a, 0, True)
    a('    s_load_dwordx2 s[4:5], s[0:1], 8      ; e_attr')
    a('    s_load_dwordx4 s[8:11], s[0:1], 16')
    a('    s_load_dwordx2 s[6:7], s[0:1], 88     ; ws')
    a('    s_load_dwordx2 s[40:41], s[0:1], 40   ; w_b')
    a('    s_load_dwordx2 s[42:43], s[0:1], 64   ; w_v')
    a('    s_load_dwordx2 s[44:45], s[0:1], 0    ; x')
    a('    v_lshrrev_b32 v1, 6, v0')
    a('    v_and_b32 v2, 63, v0                   ; lane')
    a('    v_readfirstlane_b32 s20, v1')
    a('    v_mov_b32 v5, 0')
    a('    v_lshlrev_b32 v6, 2, v0               ; t*4')
    masked(a, 'v_cmp_gt_u32 vcc, 256, v0', 30)
    a(f'    ds_write_b32 v6, v5 offset:{L1_HIST}')
    unmask(a, 30)
    a('    v_lshlrev_b32 v3, 4, v0               ; t*16')
    a('    v_and_b32 v7, 511, v0')
    a('    v_lshlrev_b32 v7, 4, v7')
    a('    s_cmp_ge_u32 s20, 10')
    a('    s_cbranch_scc1 K1_TABLE')
    a('    v_lshlrev_b32 v4, 3, v0               ; t*8')
    a(f'    s_mul_i32 s21, s2, {EPC*4}')
    a(f'    s_mul_i32 s22, s2, {EPC*2}')
    a('    s_mov_b32 s23, 52429')
    a('    s_waitcnt lgkmcnt(0)')
    srd(a, 12, 10, 11, E*4)
    a('    buffer_load_dwordx4 v[8:11], v3, s[12:15], s21 offen     ; dst x4')
    srd(a, 16, 8, 9, E*4)
    a('    buffer_load_dwordx4 v[12:15], v3, s[16:19], s21 offen    ; src x4')
    srd(a, 24, 4, 5, E*2)
    a('    buffer_load_dwordx2 v[16:17], v4, s[24:27], s22 offen')
    a('    s_cmp_lt_u32 s20, 8')
    a('    s_cselect_b32 s48, s40, s42')
    a('    s_cselect_b32 s49, s41, s43')
    a('    s_mov_b32 s50, 8192')
    a('    s_mov_b32 s51, 0x00020000')
    a('    buffer_load_dwordx4 v[60:63], v7, s[48:51], 0 offen')
    srd(a, 32, 6, 7, NC*REC_STRIDE, off=WS_REC)
    srd(a, 36, 6, 7, NC*DESC_STRIDE, off=WS_DESC)
    stamp(a, 1)
    a('    s_barrier')
    a('    s_waitcnt vmcnt(3)')
    stamp(a, 2)
    for k in range(4):
        a(f'    v_mul_u32_u24 v{20+k}, s23, v{8+k}')
    for k in range(4):
        a(f'    v_lshrrev_b32 v{20+k}, 21, v{20+k}      ; bucket')
    for k in range(4):
        a(f'    v_lshlrev_b32 v{24+k}, 2, v{20+k}       ; bucket*4')
    a('    v_mov_b32 v5, 1')
    for k in range(4):
        a(f'    ds_add_rtn_u32 v{28+k}, v{24+k}, v5 offset:{L1_HIST}')
    for k in range(4):
        a(f'    v_mul_u32_u24 v{20+k}, {NPB}, v{20+k}')
    for k in range(4):
        a(f'    v_sub_u32 v{20+k}, v{8+k}, v{20+k}')
    a('    s_waitcnt vmcnt(1)')
    for k in range(4):
        a(f'    v_lshl_or_b32 v{32+2*k}, v{20+k}, 18, v{12+k}')
    a('    v_lshlrev_b32 v33, 16, v16')
    a('    v_and_b32 v35, 0xffff0000, v16')
    a('    v_lshlrev_b32 v37, 16, v17')
    a('    v_and_b32 v39, 0xffff0000, v17')
    a('    v_lshlrev_b32 v6, 4, v2                ; lane*16')
    a('    s_waitcnt vmcnt(0)')
    a(f'    ds_write_b128 v3, v[60:63] offset:{L1_W}')
    a('    s_waitcnt lgkmcnt(0)')
    stamp(a, 3)
    a('    s_barrier')
    stamp(a, 4)
    a(f'    ds_read_b128 v[40:43], v6 offset:{L1_HIST}')
    a(f'    s_mul_i32 s22, s2, {DESC_STRIDE}')
    a(f'    s_mul_i32 s23, s2, {REC_STRIDE}')
    a('    v_add_u32 v4, 10240, v3')
    a('    s_waitcnt lgkmcnt(0)')
    a('    v_add_u32 v44, v40, v41                ; h0+h1')
    a('    v_add_u32 v45, v44, v42')
    a('    v_add_u32 v46, v45, v43                ; sum4')
    a('    v_mov_b32 v47, v46')
    dpp_scan(a, 47)
    a('    v_sub_u32 v48, v47, v46')
    a('    v_add_u32 v49, v48, v40')
    a('    v_add_u32 v50, v48, v44')
    a('    v_add_u32 v51, v48, v45')
    a(f'    ds_write_b128 v6, v[48:51] offset:{L1_START}')
    a('    s_waitcnt lgkmcnt(0)')
    for k in range(4):
        a(f'    ds_read_b32 v{56+k}, v{24+k} offset:{L1_START}')
    a('    s_cmp_eq_u32 s20, 0')
    a('    s_cbranch_scc0 K1_NODESC')
    for k in range(4):
        a(f'    v_lshl_or_b32 v{52+k}, v{40+k}, 16, v{48+k}')
    a(f'    buffer_store_dwordx4 v[52:55], v6, s[36:39], s22 offen {K1ST}')
    a.label('K1_NODESC')
    a('    s_waitcnt lgkmcnt(0)')
    for k in range(4):
        a(f'    v_add_lshl_u32 v{56+k}, v{56+k}, v{28+k}, 3   ; (start+rank)*8')
    for k in range(4):
        a(f'    ds_write_b64 v{56+k}, v[{32+2*k}:{33+2*k}] offset:{L1_STAGE}')
    a('    s_waitcnt lgkmcnt(0)')
    stamp(a, 5)
    a('    s_barrier')
    a(f'    ds_read_b128 v[8:11], v3 offset:{L1_STAGE}')
    a(f'    ds_read_b128 v[12:15], v3 offset:{L1_STAGE + 10240}')
    a('    s_waitcnt lgkmcnt(1)')
    a(f'    buffer_store_dwordx4 v[8:11], v3, s[32:35], s23 offen {K1ST}')
    a('    s_waitcnt lgkmcnt(0)')
    a(f'    buffer_store_dwordx4 v[12:15], v4, s[32:35], s23 offen {K1ST}')
    if STAMP:
        stamp(a, 6)
        a('    s_waitcnt vmcnt(0)')
        stamp(a, 7); stamp(a, 1, True)
        stamp_flush(a, 20, 2, 0, 6)
    a('    s_endpgm')
    a.label('K1_TABLE')
    a('    s_sub_u32 s21, s20, 10                 ; tw')
    a('    s_lshr_b32 s22, s21, 1')
    a('    s_lshl_b32 s22, s22, 4                 ; 16*rt')
    a('    v_and_b32 v4, 15, v2')
    a('    v_add_u32 v4, s22, v4')
    a('    v_lshrrev_b32 v5, 4, v2                ; g')
    a('    v_lshlrev_b32 v6, 7, v4')
    a('    v_lshl_add_u32 v6, v5, 4, v6')
    a(f'    s_mul_i32 s24, s2, {NPB*128}')
    a('    s_waitcnt lgkmcnt(0)')
    srd(a, 48, 42, 43, 8192)
    a('    buffer_load_dwordx4 v[60:63], v7, s[48:51], 0 offen')
    srd(a, 36, 44, 45, N*128)
    a('    buffer_load_dwordx4 v[24:27], v6, s[36:39], s24 offen')
    a('    buffer_load_dwordx4 v[28:31], v6, s[36:39], s24 offen offset:64')
    srd(a, 44, 6, 7, T_BYTES, off=WS_T)
    a('    s_and_b32 s23, s21, 1                  ; half')
    a('    s_lshl_b32 s25, s23, 6')
    a('    v_bfe_u32 v7, v2, 2, 2')
    a('    v_lshl_add_u32 v7, v5, 3, v7           ; 8g + r')
    a('    v_lshlrev_b32 v7, 7, v7')
    a('    v_and_b32 v16, 3, v2')
    a('    v_lshl_add_u32 v7, v16, 3, v7')
    a('    v_add_u32 v7, s25, v7')
    for r in range(32, 48):
        a(f'    v_mov_b32 v{r}, 0')
    stamp(a, 1)
    a('    s_barrier')
    a('    s_waitcnt vmcnt(2)')
    a(f'    ds_write_b128 v3, v[60:63] offset:{L1_W}')
    a('    s_waitcnt lgkmcnt(0)')
    stamp(a, 3)
    a('    s_barrier')
    stamp(a, 4)
    order = [(jj, ks, m) for jj in range(2) for ks in range(2) for m in range(2)]
    for i, (jj, ks, m) in enumerate(order):
        b = 64 + 4*i
        off = L1_W + m*8192 + ks*32*128 + jj*32
        a(f'    ds_read_b64_tr_b16 v[{b}:{b+1}], v7 offset:{off}')
        a(f'    ds_read_b64_tr_b16 v[{b+2}:{b+3}], v7 offset:{off+512}')
    a(f'    s_mov_b32 s27, {hex(f2u(-LOG2E))}')
    a('    s_mov_b32 s28, 0xffff0000')
    a('    s_mov_b32 s29, 0x80000000')
    a('    v_lshlrev_b32 v9, 8, v4')
    a('    v_lshl_add_u32 v9, v5, 4, v9')
    a('    s_lshl_b32 s25, s23, 7')
    a(f'    s_mul_i32 s26, s2, {NPB*256}')
    a('    s_add_u32 s25, s25, s26')
    a('    v_add_u32 v9, s25, v9')
    a(f'    v_cmp_gt_u32 vcc, {NPB}, v4')
    a('    s_waitcnt vmcnt(0)')
    a(f'    v_mov_b32 v10, {1<<30}')
    a('    v_cndmask_b32 v9, v10, v9, vcc')
    for i, (jj, ks, m) in enumerate(order):
        b = 64 + 4*i
        a(f'    s_waitcnt lgkmcnt({min(15, 2*(7-i))})')
        acc = 32 + 8*m + 4*jj
        x = 24 + 4*ks
        a(f'    v_mfma_f32_16x16x32_bf16 v[{acc}:{acc+3}], v[{b}:{b+3}], v[{x}:{x+3}], v[{acc}:{acc+3}]')
    a('    s_nop 4')
    for jj in range(2):
        R = range(4)
        p = lambda r: 32 + 4*jj + r
        q = lambda r: 40 + 4*jj + r
        t = lambda r: 10 + r
        if jj == 1: a('    s_nop 2')
        for r in R: a(f'    v_mul_f32 v{p(r)}, s27, v{p(r)}')
        for r in R: a(f'    v_cvt_f16_f32 v{p(r)}, v{p(r)}')
        for r in R: a(f'    v_and_b32 v{t(r)}, 0x7fffffff, v{q(r)}')
        for r in R: a(f'    v_and_b32 v{p(r)}, 0xffff, v{p(r)}')
        for r in R: a(f'    v_sub_u32 v{t(r)}, v{t(r)}, v{p(r)}')
        for r in R: a(f'    v_add_u32 v{t(r)}, 0x8000, v{t(r)}')
        for r in R: a(f'    v_max_i32 v{t(r)}, 0, v{t(r)}')
        for r in R: a(f'    v_and_or_b32 v{t(r)}, v{t(r)}, s28, v{p(r)}')
        for r in R: a(f'    v_and_or_b32 v{p(r)}, v{q(r)}, s29, v{t(r)}')
        a(f'    buffer_store_dwordx4 v[{32+4*jj}:{35+4*jj}], v9, s[44:47], 0 offen offset:{jj*64} {K1ST}')
    a('    s_cmp_eq_u32 s2, 0')
    a('    s_cbranch_scc0 K1_TFIN')
    a('    s_cmp_eq_u32 s21, 0')
    a('    s_cbranch_scc0 K1_TFIN')
    a('    v_mov_b32 v10, 0x7c00')
    a(f'    v_lshlrev_b32 v11, 2, v2')
    a(f'    v_add_u32 v11, {N*256}, v11')
    a(f'    buffer_store_dword v10, v11, s[44:47], 0 offen {K1ST}')
    a.label('K1_TFIN')
    if STAMP:
        stamp(a, 5); stamp(a, 6)
        a('    s_waitcnt vmcnt(0)')
        stamp(a, 7); stamp(a, 1, True); stamp(a, 2)
        stamp_flush(a, 20, 2, 0, 6)
    a.label('K1_END')
    a('    s_endpgm')

CAP = 4096
TS = 272
L2_CNT = 0; L2_FLG = 256
L2_LIST = 512
L2_SLOT = L2_LIST + CAP*4
L2_W = L2_SLOT
L2_EAT = L2_SLOT + 56*512; L2_AT = L2_EAT + 48*TS; L2_UT = L2_AT + 48*TS
K2_LDS = L2_UT + 48*TS
U = 4
TLBPF = int(env('TLBPF', '1'))

def gen_k2(a):
    sB = 2; sWAVE = 3
    SRD_DESC = 12; SRD_REC = 16; SRD_T = 20; SRD_W = 24; SRD_X = 28; SRD_OUT = 32; SRD_WC = 36
    sMODE = 40; sPASS = 41
    sG0 = 42; sG1 = 43; sGEND = 44; sLEFT = 45; sNODE = 46; sT0 = 47; sT1 = 48; sSAFE = 49; sGT = 50; sR = 51
    sEX = 52; sEAB = 54; sPR = 55; sPQ = 56; sLVL = 57; sSLOT = 58; sNR = 59
    sM = 64
    vLANE = 1
    vWC = 4; vEA = 8; vDEN = 12; vNUM = 16; vT = 20; vDAT = 24; vP = 40; vEV = 48
    vSA = 50; vACC = 51; vEAA = 52; vGS = 53; vQ16 = 54; vNG = 55
    vDA = 56; vNA = 60
    vX = 64
    vFL = 66
    vGE = 67
    vXO = 68
    vR = 76
    vRK = 92
    vLA = 100
    vA = 108
    vB = 68
    vCNT = 118; vRO = 119; vI = 120; vRM = 121; vPF = 122
    vW = 24; vOP = 24; vAC = 40

    a('.p2align 8')
    a('.type k2_kernel,@function')
    a.label('k2_kernel')
    a(f'    s_cmp_ge_u32 s2, {NB}')
    a('    s_cbranch_scc1 K2_END')
    stamp(a, 0); stamp(a, 0, True)
    a('    s_load_dwordx2 s[6:7], s[0:1], 88      ; ws')
    a('    s_load_dwordx2 s[4:5], s[0:1], 0       ; x')
    a('    s_load_dwordx2 s[8:9], s[0:1], 32      ; w_a')
    a('    s_load_dwordx4 s[60:63], s[0:1], 48    ; w_c, w_u')
    a('    s_load_dwordx2 s[10:11], s[0:1], 72    ; out')
    a(f'    v_and_b32 v{vLANE}, 63, v0')
    a(f'    v_lshrrev_b32 v{vA}, 6, v0')
    a(f'    v_and_b32 v{vQ16}, 15, v0')
    a(f'    v_readfirstlane_b32 s{sWAVE}, v{vA}')
    a(f'    v_lshlrev_b32 v{vQ16}, 4, v{vQ16}      ; q*16')
    a(f'    v_lshrrev_b32 v{vA}, 2, v0             ; c')
    a(f'    v_lshlrev_b32 v{vA}, 10, v{vA}         ; c*1024')
    a(f'    s_lshl_b32 s{sT0}, s{sB}, 2')
    a(f'    v_mov_b32 v{vCNT}, 0')
    a(f'    v_and_b32 v{vA+1}, 511, v0')
    a(f'    v_lshlrev_b32 v{vA+1}, 4, v{vA+1}')
    a(f'    s_lshr_b32 s{sT1}, s{sWAVE}, 2')
    a(f'    s_lshl_b32 s{sT1}, s{sT1}, 4')
    a(f'    v_and_b32 v{vA+2}, 15, v{vLANE}')
    a(f'    v_add_u32 v{vA+2}, s{sT1}, v{vA+2}')
    a(f'    v_lshrrev_b32 v{vA+3}, 4, v{vLANE}     ; g')
    a(f'    v_lshlrev_b32 v{vA+4}, 7, v{vA+2}')
    a(f'    v_lshl_add_u32 v{vA+4}, v{vA+3}, 4, v{vA+4}')
    a(f'    v_lshlrev_b32 v{vA+6}, 3, v0           ; t*8 (epilogue x)')
    a(f'    v_lshrrev_b32 v{vA+7}, 1, v{vQ16}      ; q*8 (wc)')
    if TLBPF:
        a(f'    v_lshlrev_b32 v{vPF}, 21, v{vLANE}')
    a(f'    v_cmp_gt_u32 vcc, {NC*4}, v0')
    a(f'    v_mov_b32 v{vA+8}, {1<<30}')
    a('    s_nop 0')
    a(f'    v_cndmask_b32 v{vA}, v{vA+8}, v{vA}, vcc')
    a('    s_waitcnt lgkmcnt(0)')
    srd(a, SRD_DESC, 6, 7, NC*DESC_STRIDE, off=WS_DESC)
    a(f'    buffer_load_dword v{vCNT}, v{vA}, s[{SRD_DESC}:{SRD_DESC+3}], s{sT0} offen')
    a(f'    s_cmp_lt_u32 s{sWAVE}, 8')
    a(f'    s_cselect_b32 s{SRD_W}, s8, s62')
    a(f'    s_cselect_b32 s{SRD_W+1}, s9, s63')
    a(f'    s_mov_b32 s{SRD_W+2}, 8192')
    a(f'    s_mov_b32 s{SRD_W+3}, 0x00020000')
    a(f'    buffer_load_dwordx4 v[{vW}:{vW+3}], v{vA+1}, s[{SRD_W}:{SRD_W+3}], 0 offen')
    srd(a, SRD_X, 4, 5, N*128)
    a(f'    s_mul_i32 s{sT1}, s{sB}, {NPB*128}')
    a(f'    buffer_load_dwordx4 v[{vXO}:{vXO+3}], v{vA+4}, s[{SRD_X}:{SRD_X+3}], s{sT1} offen')
    a(f'    buffer_load_dwordx4 v[{vXO+4}:{vXO+7}], v{vA+4}, s[{SRD_X}:{SRD_X+3}], s{sT1} offen offset:64')
    a(f'    buffer_load_dwordx2 v[{vX}:{vX+1}], v{vA+6}, s[{SRD_X}:{SRD_X+3}], s{sT1} offen')
    srd(a, SRD_WC, 60, 61, 128)
    a(f'    buffer_load_dwordx2 v[{vWC}:{vWC+1}], v{vA+7}, s[{SRD_WC}:{SRD_WC+3}], 0 offen')
    NYOUNG = 2
    if TLBPF:
        srd(a, SRD_REC, 6, 7, WS_T + T_BYTES, off=0)
        a(f'    buffer_load_dword v{vPF}, v{vPF}, s[{SRD_REC}:{SRD_REC+3}], 0 offen')
        NYOUNG = 3
    srd(a, SRD_REC, 6, 7, NC*REC_STRIDE, off=WS_REC)
    srd(a, SRD_T, 6, 7, 0, off=WS_T, stride=256, nrec=N+1)
    srd(a, SRD_OUT, 10, 11, N*128)
    a(f'    s_mov_b32 s{sMODE}, 0')
    a(f'    s_mov_b32 s{sPASS}, 0')
    a(f'    v_lshrrev_b32 v{vA}, 5, v{vLANE}')
    a(f'    v_lshl_add_u32 v{vFL}, v{vA}, 8, v{vQ16}')
    a(f'    v_bfe_u32 v{vA}, v{vLANE}, 4, 1')
    a(f'    v_lshl_add_u32 v{vFL}, v{vA}, 3, v{vFL}')
    for i in range(4):
        a(f'    v_mov_b32 v{vDA+i}, 0')
        a(f'    v_mov_b32 v{vNA+i}, 0')
    a(f'    v_mov_b32 v{vEV}, 0')
    a(f'    v_mov_b32 v{vEV+1}, 0')
    masked(a, 'v_cmp_gt_u32 vcc, 4, v0', sEX)
    a(f'    v_lshlrev_b32 v{vA+5}, 2, v0')
    a(f'    ds_write_b32 v{vA+5}, v{vDA} offset:{L2_FLG}')
    unmask(a, sEX)
    a.label('K2_PASS')
    for i in range(4):
        a(f'    v_mov_b32 v{vA+6+i}, {N}')
    a(f'    v_lshlrev_b32 v{vA+5}, 4, v0')
    a(f'    ds_write_b128 v{vA+5}, v[{vA+6}:{vA+9}] offset:{L2_LIST}')
    masked(a, 'v_cmp_gt_u32 vcc, 64, v0', sEX)
    a(f'    v_lshlrev_b32 v{vA+4}, 2, v0')
    a(f'    v_mov_b32 v{vA+3}, 0')
    a(f'    ds_write_b32 v{vA+4}, v{vA+3} offset:{L2_CNT}')
    unmask(a, sEX)
    a(f'    s_cmp_eq_u32 s{sMODE}, 0')
    a('    s_cbranch_scc0 K2_SLOWPARAM')
    a(f'    s_waitcnt vmcnt({NYOUNG+2})')
    stamp(a, 1)
    a(f'    ds_write_b128 v{vA+5}, v[{vW}:{vW+3}] offset:{L2_W}')
    a(f'    v_lshrrev_b32 v{vA}, 2, v0')
    a(f'    v_mul_u32_u24 v{vRO}, {REC_STRIDE}, v{vA}')
    a(f'    v_and_b32 v{vA+1}, 0xffff, v{vCNT}      ; start')
    a(f'    v_lshl_add_u32 v{vRO}, v{vA+1}, 3, v{vRO}')
    a(f'    v_and_b32 v{vI}, 3, v0')
    a(f'    v_lshl_add_u32 v{vRO}, v{vI}, 4, v{vRO}')
    a(f'    v_lshlrev_b32 v{vI}, 1, v{vI}')
    a(f'    v_lshrrev_b32 v{vCNT}, 16, v{vCNT}      ; cnt')
    a(f'    s_mov_b32 s{sT1}, 8')
    a(f'    s_waitcnt vmcnt({NYOUNG})')
    a('    s_branch K2_PARAMDONE')
    a.label('K2_SLOWPARAM')
    a(f'    s_mul_i32 s{sT0}, s{sPASS}, {DESC_STRIDE}')
    a(f'    s_lshl_b32 s{sT1}, s{sB}, 2')
    a(f'    s_add_u32 s{sT0}, s{sT0}, s{sT1}')
    a(f'    v_mov_b32 v{vA}, 0')
    a(f'    buffer_load_dword v{vCNT}, v{vA}, s[{SRD_DESC}:{SRD_DESC+3}], s{sT0} offen')
    a(f'    s_mul_i32 s{sT0}, s{sPASS}, {REC_STRIDE}')
    a('    s_waitcnt vmcnt(0)')
    a(f'    v_and_b32 v{vA+1}, 0xffff, v{vCNT}')
    a(f'    v_lshlrev_b32 v{vRO}, 3, v{vA+1}')
    a(f'    v_add_u32 v{vRO}, s{sT0}, v{vRO}')
    a(f'    v_lshl_add_u32 v{vRO}, v0, 4, v{vRO}')
    a(f'    v_lshlrev_b32 v{vI}, 1, v0')
    a(f'    v_lshrrev_b32 v{vCNT}, 16, v{vCNT}')
    a(f'    s_mov_b32 s{sT1}, 2048')
    a.label('K2_PARAMDONE')
    a(f'    v_sub_u32 v{vRM}, v{vCNT}, v{vI}')
    a(f'    s_lshl_b32 s{sT0}, s{sT1}, 3')
    a(f'    s_mov_b32 s{sNR}, 0')
    a(f'    s_mov_b32 s{sEX}, 0')
    for r in range(4):
        m0 = sM + 4*r; m1 = m0 + 2
        a(f'    v_cmp_gt_i32 s[{m0}:{m0+1}], v{vRM}, s{sEX}')
        a(f'    s_add_u32 s{sEX+1}, s{sEX}, 1')
        a(f'    v_cmp_gt_i32 s[{m1}:{m1+1}], v{vRM}, s{sEX+1}')
        a(f'    s_add_u32 s{sEX}, s{sEX}, s{sT1}')
        a(f'    s_cmp_eq_u64 s[{m0}:{m0+1}], 0')
        a(f'    s_cbranch_scc1 K2_LD_DONE')
        a(f'    s_mov_b64 exec, s[{m0}:{m0+1}]')
        a(f'    buffer_load_dwordx4 v[{vR+4*r}:{vR+4*r+3}], v{vRO}, s[{SRD_REC}:{SRD_REC+3}], 0 offen')
        a(f'    s_mov_b64 exec, -1')
        a(f'    s_mov_b32 s{sNR}, {r+1}')
        if r < 3:
            a(f'    v_add_u32 v{vRO}, s{sT0}, v{vRO}')
    a.label('K2_LD_DONE')
    a('    s_waitcnt lgkmcnt(0)')
    a('    s_barrier')
    stamp(a, 2)
    a(f'    s_or_b32 s{sT0}, s{sMODE}, s{sPASS}')
    a(f'    s_cmp_eq_u32 s{sT0}, 0')
    a('    s_cbranch_scc0 K2_NOMFMA')
    a(f'    s_cmp_lt_u32 s{sWAVE}, 12')
    a('    s_cbranch_scc0 K2_NOMFMA')
    a(f'    s_and_b32 s{sT0}, s{sWAVE}, 3')
    a(f'    s_lshl_b32 s{sT1}, s{sT0}, 5')
    a(f'    v_lshrrev_b32 v{vA+3}, 4, v{vLANE}     ; g')
    a(f'    v_bfe_u32 v{vA}, v{vLANE}, 2, 2')
    a(f'    v_lshl_add_u32 v{vA}, v{vA+3}, 3, v{vA}')
    a(f'    v_lshlrev_b32 v{vA}, 7, v{vA}')
    a(f'    v_and_b32 v{vA+1}, 3, v{vLANE}')
    a(f'    v_lshl_add_u32 v{vA}, v{vA+1}, 3, v{vA}')
    a(f'    v_add_u32 v{vA}, s{sT1}, v{vA}')
    order = [(m, ks) for ks in range(2) for m in range(2)]
    for i, (m, ks) in enumerate(order):
        b = vOP + 4*i
        off = L2_W + m*8192 + ks*32*128
        a(f'    ds_read_b64_tr_b16 v[{b}:{b+1}], v{vA} offset:{off}')
        a(f'    ds_read_b64_tr_b16 v[{b+2}:{b+3}], v{vA} offset:{off+512}')
    for i in range(8):
        a(f'    v_mov_b32 v{vAC+i}, 0')
    a(f'    s_lshr_b32 s{sT1}, s{sWAVE}, 2')
    a(f'    s_lshl_b32 s{sT1}, s{sT1}, 4')
    a(f'    v_and_b32 v{vA+2}, 15, v{vLANE}')
    a(f'    v_add_u32 v{vA+2}, s{sT1}, v{vA+2}     ; row')
    a(f'    v_mul_u32_u24 v{vA+4}, {TS}, v{vA+2}')
    a(f'    v_lshl_add_u32 v{vA+4}, v{vA+3}, 4, v{vA+4}')
    a(f'    s_lshl_b32 s{sT0}, s{sT0}, 6')
    a(f'    s_add_u32 s{sT0}, s{sT0}, {L2_EAT}')
    a(f'    v_add_u32 v{vA+4}, s{sT0}, v{vA+4}')
    for i, (m, ks) in enumerate(order):
        b = vOP + 4*i
        a(f'    s_waitcnt lgkmcnt({2*(3-i)})')
        acc = vAC + 4*m; x = vXO + 4*ks
        a(f'    v_mfma_f32_16x16x32_bf16 v[{acc}:{acc+3}], v[{b}:{b+3}], v[{x}:{x+3}], v[{acc}:{acc+3}]')
    a(f'    s_mov_b32 s{sT0}, {hex(f2u(-LOG2E))}')
    a(f'    s_mov_b32 s{sT1}, {hex(f2u(60.0))}')
    a('    s_nop 6')
    for i in range(4):
        a(f'    v_mul_f32 v{vAC+i}, s{sT0}, v{vAC+i}')
    a(f'    ds_write_b128 v{vA+4}, v[{vAC+4}:{vAC+7}] offset:{L2_UT-L2_EAT}')
    a(f'    ds_write_b128 v{vA+4}, v[{vAC}:{vAC+3}] offset:{L2_AT-L2_EAT}')
    for i in range(4):
        a(f'    v_exp_f32 v{vOP+i}, v{vAC+i}')
    a(f'    v_max3_f32 v{vA+5}, |v{vAC}|, |v{vAC+1}|, |v{vAC+2}|')
    a(f'    v_max_f32 v{vA+5}, v{vA+5}, |v{vAC+3}|')
    a(f'    ds_write_b128 v{vA+4}, v[{vOP}:{vOP+3}]')
    a(f'    v_cmp_nle_f32 vcc, v{vA+5}, s{sT1}')
    a(f'    v_cmp_gt_u32 s[{sEX}:{sEX+1}], {NPB}, v{vA+2}')
    a(f'    s_and_b64 vcc, vcc, s[{sEX}:{sEX+1}]')
    a(f'    s_and_saveexec_b64 s[{sEX}:{sEX+1}], vcc')
    a('    s_cbranch_execz K2_GUARD_OK')
    a(f'    v_mov_b32 v{vA+5}, 1')
    a(f'    v_mov_b32 v{vA+6}, 0')
    a(f'    ds_write_b32 v{vA+6}, v{vA+5} offset:{L2_FLG+4}')
    unmask(a, sEX, 'K2_GUARD_OK')
    a.label('K2_NOMFMA')
    masked(a, f'v_cmp_lt_u32 vcc, 32, v{vCNT}', sEX, 'K2_NOOVF')
    a(f'    v_mov_b32 v{vA+2}, 1')
    a(f'    v_mov_b32 v{vA+3}, 0')
    a(f'    ds_write_b32 v{vA+3}, v{vA+2} offset:{L2_FLG}')
    unmask(a, sEX, 'K2_NOOVF')
    a(f'    v_mov_b32 v{vA+2}, 1')
    a('    s_waitcnt vmcnt(0)')
    stamp(a, 3)
    for r in range(4):
        a(f'    s_cmp_le_u32 s{sNR}, {r}')
        a('    s_cbranch_scc1 K2_RK_DONE')
        for h in range(2):
            k = 2*r + h
            a(f'    s_mov_b64 exec, s[{sM+2*k}:{sM+2*k+1}]')
            a(f'    v_lshrrev_b32 v{vLA+k}, 16, v{vR+2*k}')
            a(f'    ds_add_rtn_u32 v{vRK+k}, v{vLA+k}, v{vA+2} offset:{L2_CNT}')
    a.label('K2_RK_DONE')
    a('    s_mov_b64 exec, -1')
    a(f'    s_or_b32 s{sT0}, s{sMODE}, s{sPASS}')
    a(f'    s_cmp_eq_u32 s{sT0}, 0')
    a('    s_cbranch_scc0 K2_WCDONE')
    a(f'    s_mov_b32 s{sT0}, {hex(f2u(-LOG2E))}')
    a(f'    v_and_b32 v{vWC+3}, 0xffff0000, v{vWC+1}')
    a(f'    v_lshlrev_b32 v{vWC+2}, 16, v{vWC+1}')
    a(f'    v_and_b32 v{vWC+1}, 0xffff0000, v{vWC}')
    a(f'    v_lshlrev_b32 v{vWC}, 16, v{vWC}')
    for k in range(4):
        a(f'    v_mul_f32 v{vWC+k}, s{sT0}, v{vWC+k}')
    for k in range(U):
        a(f'    v_mov_b32 v{vP+2*k+1}, v{vQ16}')
    a.label('K2_WCDONE')
    a(f'    v_lshlrev_b32 v{vA+1}, 2, v{vLANE}')
    a(f'    v_mov_b32 v{vA}, 0')
    a('    s_waitcnt lgkmcnt(0)')
    a('    s_barrier')
    stamp(a, 4)
    a(f'    ds_read_b32 v{vNG}, v{vA+1} offset:{L2_CNT}')
    a(f'    ds_read_b64 v[{vA+4}:{vA+5}], v{vA} offset:{L2_FLG}')
    a('    s_waitcnt lgkmcnt(1)')
    a(f'    v_add_u32 v{vNG}, 3, v{vNG}')
    a(f'    v_lshrrev_b32 v{vNG}, 2, v{vNG}')
    a(f'    v_mov_b32 v{vGE}, v{vNG}')
    dpp_scan(a, vGE)
    a('    s_waitcnt lgkmcnt(0)')
    a(f'    v_readlane_b32 s{sGT}, v{vGE}, {NPB-1}')
    a(f'    v_sub_u32 v{vGS}, v{vGE}, v{vNG}')
    a(f'    v_readfirstlane_b32 s{sT0}, v{vA+4}')
    a(f'    v_readfirstlane_b32 s{sSAFE}, v{vA+5}')
    a(f'    v_lshlrev_b32 v{vA+6}, 4, v{vGS}')
    a(f'    v_cmp_lt_u32 vcc, {NPB}, v{vLANE}')
    a(f'    s_add_u32 s{sR}, s{sGT}, 15')
    a(f'    s_lshr_b32 s{sR}, s{sR}, 4')
    a(f'    v_cndmask_b32 v{vGS}, v{vGS}, -1, vcc')
    a(f'    s_cmp_eq_u32 s{sMODE}, 0')
    a('    s_cbranch_scc0 K2_NOSWITCH')
    a(f'    s_cmp_gt_u32 s{sGT}, {(CAP - 64)//4}')
    a(f'    s_cselect_b32 s{sT1}, 1, 0')
    a(f'    s_or_b32 s{sT0}, s{sT0}, s{sT1}')
    a(f'    s_cmp_eq_u32 s{sT0}, 0')
    a('    s_cbranch_scc1 K2_NOSWITCH')
    a(f'    s_mov_b32 s{sMODE}, 1')
    a(f'    s_mov_b32 s{sPASS}, 0')
    a('    s_barrier')
    a('    s_branch K2_PASS')
    a.label('K2_NOSWITCH')
    a(f'    s_mov_b32 s{sT0}, 0xffff')
    for r in range(4):
        a(f'    s_cmp_le_u32 s{sNR}, {r}')
        a('    s_cbranch_scc1 K2_LK_DONE')
        for h in range(2):
            k = 2*r + h
            a(f'    ds_bpermute_b32 v{vB+k}, v{vLA+k}, v{vA+6}')
            a(f'    v_bfi_b32 v{vR+2*k}, s{sT0}, v{vR+2*k}, v{vR+2*k+1}')
    a.label('K2_LK_DONE')
    a('    s_waitcnt lgkmcnt(0)')
    for r in range(4):
        a(f'    s_cmp_le_u32 s{sNR}, {r}')
        a('    s_cbranch_scc1 K2_SC_DONE')
        for h in range(2):
            k = 2*r + h
            a(f'    s_mov_b64 exec, s[{sM+2*k}:{sM+2*k+1}]')
            a(f'    v_lshl_add_u32 v{vB+k}, v{vRK+k}, 2, v{vB+k}')
            a(f'    ds_write_b32 v{vB+k}, v{vR+2*k} offset:{L2_LIST}')
    a.label('K2_SC_DONE')
    a('    s_mov_b64 exec, -1')
    a(f'    s_mul_i32 s{sG0}, s{sR}, s{sWAVE}')
    a(f'    s_add_u32 s{sG1}, s{sG0}, s{sR}')
    a(f'    s_min_u32 s{sG1}, s{sG1}, s{sGT}')
    a(f'    v_lshrrev_b32 v{vSA}, 4, v{vLANE}')
    a(f'    v_lshlrev_b32 v{vSA}, 2, v{vSA}         ; slot*4')
    a(f'    s_lshl_b32 s{sT0}, s{sG0}, 4')
    a(f'    v_add_u32 v{vSA}, s{sT0}, v{vSA}')
    a(f'    s_cmp_eq_u32 s{sSAFE}, 0')
    a(f'    s_mov_b32 s{sEAB}, {L2_AT}')
    a(f'    s_cselect_b32 s{sEAB}, {L2_EAT}, s{sEAB}')
    a('    s_waitcnt lgkmcnt(0)')
    a('    s_barrier')
    stamp(a, 5)

    def tload(k):
        d = vDAT + 4*k
        a(f'    buffer_load_dwordx4 v[{d}:{d+3}], v[{vP+2*k}:{vP+2*k+1}], s[{SRD_T}:{SRD_T+3}], 0 idxen offen')

    a(f'    s_cmp_ge_u32 s{sG0}, s{sG1}')
    a('    s_cbranch_scc1 K2_MAIN_DONE')
    for k in range(U):
        a(f'    ds_read_u16 v{vP+2*k}, v{vSA} offset:{L2_LIST + 16*k}')
    a(f'    ds_read_u16_d16_hi v{vEV}, v{vSA} offset:{L2_LIST + 2}')
    if PRIO:
        a(f'    s_lshr_b32 s{sPQ}, s{sR}, 4')
        a(f'    s_add_u32 s{sPQ}, s{sPQ}, 1')
        a(f'    s_mov_b32 s{sPR}, s{sPQ}')
        a(f'    s_mov_b32 s{sLVL}, 3')
        a('    s_setprio 3')
    a(f'    s_mov_b32 s{sGEND}, s{sG0}')
    a('    s_waitcnt lgkmcnt(0)')
    for k in range(U):
        tload(k)
    a(f'    ds_read_u16 v{vP}, v{vSA} offset:{L2_LIST + 16*U}')
    a(f'    s_cmp_eq_u32 s{sSAFE}, 0')
    a('    s_cbranch_scc0 K2S_ENTER')
    a('    s_branch K2F_ENTER')

    def next_node():
        a(f'    v_cmp_ge_u32 vcc, s{sGEND}, v{vGS}')
        a(f'    s_bcnt1_i32_b64 s{sT0}, vcc')
        a(f'    s_sub_u32 s{sNODE}, s{sT0}, 1')
        a(f'    v_readlane_b32 s{sT1}, v{vGS}, s{sT0}')
        a(f'    s_mul_i32 s{sT0}, s{sNODE}, {TS}')
        a(f'    s_add_u32 s{sT0}, s{sT0}, s{sEAB}')
        a(f'    v_add_u32 v{vEAA}, s{sT0}, v{vQ16}')
        a(f'    ds_read_b128 v[{vEA}:{vEA+3}], v{vEAA}')
        a(f'    s_min_u32 s{sT1}, s{sT1}, s{sG1}')
        a(f'    s_sub_u32 s{sLEFT}, s{sT1}, s{sGEND}')
        a(f'    s_sub_u32 s{sLEFT}, s{sLEFT}, 1')
        a(f'    s_mov_b32 s{sGEND}, s{sT1}')

    def set_slot():
        a(f'    s_add_u32 s{sSLOT}, s{sNODE}, s{sWAVE}')
        a(f'    s_lshl_b32 s{sSLOT}, s{sSLOT}, 9')

    def flush():
        a(f'    v_add_u32 v{vACC}, s{sSLOT}, v{vFL}')
        for i in range(4):
            a(f'    v_permlane32_swap_b32 v{vDEN+i}, v{vNUM+i}')
        a(f'    v_pk_add_f32 v[{vDEN}:{vDEN+1}], v[{vDEN}:{vDEN+1}], v[{vNUM}:{vNUM+1}]')
        a(f'    v_pk_add_f32 v[{vDEN+2}:{vDEN+3}], v[{vDEN+2}:{vDEN+3}], v[{vNUM+2}:{vNUM+3}]')
        a('    s_nop 1')
        a(f'    v_permlane16_swap_b32 v{vDEN}, v{vDEN+2}')
        a(f'    v_permlane16_swap_b32 v{vDEN+1}, v{vDEN+3}')
        a(f'    v_pk_add_f32 v[{vNUM}:{vNUM+1}], v[{vDEN}:{vDEN+1}], v[{vDEN+2}:{vDEN+3}]')
        a(f'    ds_write_b64 v{vACC}, v[{vNUM}:{vNUM+1}] offset:{L2_SLOT}')

    def step(k, safe, init):
        d = vDAT + 4*k
        ev = vEV + (k & 1); evn = vEV + ((k+1) & 1)
        pn = vP + 2*((k+1) % U)
        for i in range(4):
            a(f'    v_fma_mix_f32 v{vT+i}, v{ev}, v{vWC+i}, v{d+i} op_sel:[0,0,0] op_sel_hi:[0,0,1]')
        a(f'    ds_read_u16_d16_hi v{evn}, v{vSA} offset:{L2_LIST + 16*(k+1) + 2}')
        a(f'    ds_read_u16 v{pn}, v{vSA} offset:{L2_LIST + 16*(k+1+U)}')
        if init and safe:
            a('    s_waitcnt lgkmcnt(3)')
        if safe:
            a(f'    v_pk_add_f32 v[{vT}:{vT+1}], v[{vT}:{vT+1}], v[{vEA}:{vEA+1}]')
            a(f'    v_pk_add_f32 v[{vT+2}:{vT+3}], v[{vT+2}:{vT+3}], v[{vEA+2}:{vEA+3}]')
        for i in range(4):
            a(f'    v_exp_f32 v{vT+i}, v{vT+i}')
        if init and not safe:
            a('    s_waitcnt lgkmcnt(3)')
        if safe:
            a(f'    v_pk_add_f32 v[{vT}:{vT+1}], v[{vT}:{vT+1}], 1.0 op_sel_hi:[1,0]')
            a(f'    v_pk_add_f32 v[{vT+2}:{vT+3}], v[{vT+2}:{vT+3}], 1.0 op_sel_hi:[1,0]')
        else:
            a(f'    v_pk_fma_f32 v[{vT}:{vT+1}], v[{vEA}:{vEA+1}], v[{vT}:{vT+1}], 1.0 op_sel_hi:[1,1,0]')
            a(f'    v_pk_fma_f32 v[{vT+2}:{vT+3}], v[{vEA+2}:{vEA+3}], v[{vT+2}:{vT+3}], 1.0 op_sel_hi:[1,1,0]')
        if init:
            for i in range(4):
                a(f'    v_rcp_f32 v{vDEN+i}, v{vT+i}')
            a('    s_nop 0')
            a(f'    v_pk_mul_f32 v[{vNUM}:{vNUM+1}], v[{vDEN}:{vDEN+1}], v[{d}:{d+1}]')
            a(f'    v_pk_mul_f32 v[{vNUM+2}:{vNUM+3}], v[{vDEN+2}:{vDEN+3}], v[{d+2}:{d+3}]')
        else:
            for i in range(4):
                a(f'    v_rcp_f32 v{vT+i}, v{vT+i}')
            a(f'    v_pk_add_f32 v[{vDEN}:{vDEN+1}], v[{vDEN}:{vDEN+1}], v[{vT}:{vT+1}]')
            a(f'    v_pk_add_f32 v[{vDEN+2}:{vDEN+3}], v[{vDEN+2}:{vDEN+3}], v[{vT+2}:{vT+3}]')
            a(f'    v_pk_fma_f32 v[{vNUM}:{vNUM+1}], v[{vT}:{vT+1}], v[{d}:{d+1}], v[{vNUM}:{vNUM+1}]')
            a(f'    v_pk_fma_f32 v[{vNUM+2}:{vNUM+3}], v[{vT+2}:{vT+3}], v[{d+2}:{d+3}], v[{vNUM+2}:{vNUM+3}]')
        tload(k)
        if k == U-1:
            a(f'    v_add_u32 v{vSA}, {16*U}, v{vSA}')

    def loopback(pfx):
        if PRIO:
            a(f'    s_sub_u32 s{sPR}, s{sPR}, 1')
            a(f'    s_cmp_lg_u32 s{sPR}, 0')
            a(f'    s_cbranch_scc1 {pfx}_STEP0')
            a(f'    s_branch {pfx}_PRIO')
        else:
            a(f'    s_branch {pfx}_STEP0')

    for pfx, safe in (('K2F', False), ('K2S', True)):
        a.label(f'{pfx}_ENTER')
        next_node()
        set_slot()
        a('    s_waitcnt vmcnt(3) lgkmcnt(0)')
        step(0, safe, True)
        a(f'    s_branch {pfx}_STEP1')
        for k in range(U):
            a.label(f'{pfx}_STEP{k}')
            a(f'    s_waitcnt vmcnt({U-1}) lgkmcnt(0)')
            a(f'    s_sub_u32 s{sLEFT}, s{sLEFT}, 1')
            a(f'    s_cbranch_scc1 {pfx}_FLUSH{k}')
            step(k, safe, False)
            if k == U-1:
                loopback(pfx)
        for k in range(U):
            a.label(f'{pfx}_FLUSH{k}')
            a(f'    s_cmp_ge_u32 s{sGEND}, s{sG1}')
            a(f'    s_cbranch_scc1 K2_LAST')
            next_node()
            flush()
            set_slot()
            step(k, safe, True)
            if k == U-1:
                loopback(pfx)
            else:
                a(f'    s_branch {pfx}_STEP{k+1}')
        if PRIO:
            a.label(f'{pfx}_PRIO')
            a(f'    s_mov_b32 s{sPR}, s{sPQ}')
            a(f'    s_sub_u32 s{sLVL}, s{sLVL}, 1')
            a(f'    s_cmp_eq_u32 s{sLVL}, 2')
            a(f'    s_cbranch_scc1 {pfx}_PRIO2')
            a(f'    s_cmp_eq_u32 s{sLVL}, 1')
            a(f'    s_cbranch_scc1 {pfx}_PRIO1')
            a('    s_setprio 0')
            a(f'    s_branch {pfx}_STEP0')
            a.label(f'{pfx}_PRIO2')
            a('    s_setprio 2')
            a(f'    s_branch {pfx}_STEP0')
            a.label(f'{pfx}_PRIO1')
            a('    s_setprio 1')
            a(f'    s_branch {pfx}_STEP0')
    a.label('K2_LAST')
    flush()
    a.label('K2_MAIN_DONE')
    if PRIO: a('    s_setprio 0')
    a(f'    v_cvt_f32_u32 v{vA}, s{sR}')
    a(f'    v_cvt_f32_u32 v{vA+1}, v{vGS}')
    a(f'    v_rcp_f32 v{vA}, v{vA}')
    a(f'    v_cvt_f32_u32 v{vA+2}, v{vGE}')
    a(f'    v_add_f32 v{vA+1}, 0.5, v{vA+1}')
    a(f'    v_add_f32 v{vA+2}, -0.5, v{vA+2}')
    a(f'    v_mul_f32 v{vA+1}, v{vA+1}, v{vA}')
    a(f'    v_mul_f32 v{vA+2}, v{vA+2}, v{vA}')
    a(f'    v_cvt_u32_f32 v{vA+1}, v{vA+1}          ; wlo')
    a(f'    v_cvt_u32_f32 v{vA+2}, v{vA+2}          ; whi')
    a(f'    v_sub_u32 v{vA+2}, v{vA+2}, v{vA+1}')
    a(f'    v_add_u32 v{vA+2}, 1, v{vA+2}')
    a(f'    v_cmp_eq_u32 vcc, 0, v{vNG}')
    a(f'    v_add_u32 v{vA+1}, v{vA+1}, v{vLANE}')
    a(f'    v_and_b32 v{vA+1}, 0xffff, v{vA+1}')
    a(f'    v_cndmask_b32 v{vA+2}, v{vA+2}, 0, vcc')
    a(f'    v_lshl_or_b32 v{vA+3}, v{vA+2}, 16, v{vA+1}')
    a(f'    v_lshrrev_b32 v{vA}, 4, v0')
    a(f'    v_and_b32 v{vA+4}, 63, v{vA}')
    a(f'    v_lshlrev_b32 v{vA+4}, 2, v{vA+4}')
    a(f'    ds_bpermute_b32 v{vA+1}, v{vA+4}, v{vA+3}')
    a(f'    v_mul_u32_u24 v{vA+5}, {TS}, v{vA}')
    a(f'    v_add3_u32 v{vA+5}, v{vA+5}, v{vQ16}, s{sEAB}') if False else None
    a('    s_waitcnt vmcnt(0) lgkmcnt(0)')
    a(f'    v_cmp_gt_u32 vcc, {NPB*16}, v0')
    a(f'    v_lshrrev_b32 v{vA+2}, 16, v{vA+1}')
    a(f'    v_and_b32 v{vA+1}, 0xffff, v{vA+1}')
    a(f'    v_cndmask_b32 v{vA+2}, 0, v{vA+2}, vcc')
    a(f'    v_lshl_add_u32 v{vA+1}, v{vA+1}, 9, v{vQ16}')
    stamp(a, 6)
    a('    s_barrier')
    a.label('K2_FOLD')
    masked(a, f'v_cmp_lt_u32 vcc, 0, v{vA+2}', sEX, 'K2_FOLD_DONE')
    a(f'    ds_read_b128 v[{vDEN}:{vDEN+3}], v{vA+1} offset:{L2_SLOT}')
    a(f'    ds_read_b128 v[{vNUM}:{vNUM+3}], v{vA+1} offset:{L2_SLOT+256}')
    a(f'    v_add_u32 v{vA+1}, 512, v{vA+1}')
    a(f'    v_add_u32 v{vA+2}, -1, v{vA+2}')
    a('    s_waitcnt lgkmcnt(1)')
    a(f'    v_pk_add_f32 v[{vDA}:{vDA+1}], v[{vDA}:{vDA+1}], v[{vDEN}:{vDEN+1}]')
    a(f'    v_pk_add_f32 v[{vDA+2}:{vDA+3}], v[{vDA+2}:{vDA+3}], v[{vDEN+2}:{vDEN+3}]')
    a('    s_waitcnt lgkmcnt(0)')
    a(f'    v_pk_add_f32 v[{vNA}:{vNA+1}], v[{vNA}:{vNA+1}], v[{vNUM}:{vNUM+1}]')
    a(f'    v_pk_add_f32 v[{vNA+2}:{vNA+3}], v[{vNA+2}:{vNA+3}], v[{vNUM+2}:{vNUM+3}]')
    unmask(a, sEX)
    a('    s_branch K2_FOLD')
    unmask(a, sEX, 'K2_FOLD_DONE')
    a(f'    s_cmp_eq_u32 s{sMODE}, 0')
    a('    s_cbranch_scc1 K2_EPI')
    a(f'    s_add_u32 s{sPASS}, s{sPASS}, 1')
    a(f'    s_cmp_lt_u32 s{sPASS}, {NC}')
    a('    s_cbranch_scc0 K2_EPI')
    a('    s_barrier')
    a('    s_branch K2_PASS')
    a.label('K2_EPI')
    masked(a, f'v_cmp_gt_u32 vcc, {NPB*16}, v0', sEX, 'K2_FIN')
    a(f'    v_add_u32 v{vA+5}, v{vA+5}, v{vQ16}')
    a(f'    v_add_u32 v{vA+5}, {L2_UT}, v{vA+5}')
    a(f'    ds_read_b128 v[{vDEN}:{vDEN+3}], v{vA+5}')
    a(f'    s_mov_b32 s{sT0}, {hex(f2u(1e-6))}')
    a(f'    v_lshlrev_b32 v{vT}, 16, v{vX}')
    a(f'    v_and_b32 v{vT+1}, 0xffff0000, v{vX}')
    a(f'    v_lshlrev_b32 v{vT+2}, 16, v{vX+1}')
    a(f'    v_and_b32 v{vT+3}, 0xffff0000, v{vX+1}')
    for i in range(4):
        a(f'    v_add_f32 v{vDA+i}, s{sT0}, v{vDA+i}')
    for i in range(4):
        a(f'    v_rcp_f32 v{vDA+i}, v{vDA+i}')
    a('    s_waitcnt lgkmcnt(0)')
    for i in range(4):
        a(f'    v_fma_f32 v{vNA+i}, v{vNA+i}, v{vDA+i}, v{vDEN+i}    ; z = U + agg')
    for i in range(4):
        a(f'    v_mul_f32 v{vDEN+i}, 0, v{vNA+i}                     ; 0*z')
        a(f'    v_cmp_lt_f32 vcc, 0, v{vNA+i}')
        a('    s_nop 1')
        a(f'    v_cndmask_b32 v{vNA+i}, v{vDEN+i}, v{vNA+i}, vcc')
        a(f'    v_add_f32 v{vNA+i}, v{vNA+i}, v{vT+i}')
    a(f'    v_cvt_pk_bf16_f32 v{vDEN}, v{vNA}, v{vNA+1}')
    a(f'    v_cvt_pk_bf16_f32 v{vDEN+1}, v{vNA+2}, v{vNA+3}')
    a(f'    s_mul_i32 s{sT1}, s{sB}, {NPB*128}')
    a(f'    v_lshlrev_b32 v{vA+1}, 3, v0')
    a(f'    buffer_store_dwordx2 v[{vDEN}:{vDEN+1}], v{vA+1}, s[{SRD_OUT}:{SRD_OUT+3}], s{sT1} offen')
    a.label('K2_FIN')
    if STAMP:
        a('    s_mov_b64 exec, -1')
        a('    s_waitcnt vmcnt(0)')
    stamp(a, 7); stamp(a, 1, True)
    stamp_flush(a, sWAVE, sB, 1, 6)
    a.label('K2_END')
    a('    s_endpgm')

def kd(a, name, vgpr, sgpr):
    a(f'.amdhsa_kernel {name}')
    a(f'  .amdhsa_next_free_vgpr {vgpr}')
    a(f'  .amdhsa_next_free_sgpr {sgpr}')
    a(f'  .amdhsa_accum_offset {((vgpr+3)//4)*4}')
    a('  .amdhsa_group_segment_fixed_size 0')
    a('  .amdhsa_kernarg_size 96')
    a('  .amdhsa_user_sgpr_count 2')
    a('  .amdhsa_user_sgpr_kernarg_segment_ptr 1')
    a('  .amdhsa_system_sgpr_workgroup_id_x 1')
    a('  .amdhsa_float_denorm_mode_32 3')
    a('.end_amdhsa_kernel')

def main(out):
    a = Asm()
    a(f'; @launch kernel=k1_kernel grid=({K1_GRID},1,1) block=(1024,1,1) lds={K1_LDS}')
    a(f'; @launch kernel=k2_kernel grid=({NB},1,1) block=(1024,1,1) lds={K2_LDS}')
    a('.amdgcn_target "amdgcn-amd-amdhsa--gfx950"')
    a('.text')
    a('.globl k1_kernel')
    gen_k1(a)
    a('.globl k2_kernel')
    gen_k2(a)
    a('.section .rodata,"a"')
    a('.p2align 6')
    kd(a, 'k1_kernel', 96, 102 if STAMP else 64)
    a('.p2align 6')
    kd(a, 'k2_kernel', 124, 102 if STAMP else 80)
    a.l = [x for x in a.l if x is not None]
    open(out, 'w').write(a.text())

if __name__ == '__main__':
    main(sys.argv[1] if len(sys.argv) > 1 else 'standalone__edge_featured_mpnn_gatedgcn__graph.s')
```

```python
import sys, os, struct
def env(n, d): return os.environ.get(n, d)

N = 10000; E = 640000
NPB = 40; NB = 250; EPC = 2560; NC = 250
LOG2E = 1.4426950408889634
WS_REC  = 0
REC_STRIDE = EPC*5
WS_DESC = 3407872
DESC_STRIDE = 1024
WS_T    = 4194304
T_BYTES = (N+1)*256

STAMP = int(env('STAMP', '0'))
K1ST = env('K1ST', 'sc1')
PRIO = int(env('PRIO', '1'))
TFIRST = int(env('TFIRST', '1'))
WS_STAMP = 128 << 20
ST0 = 80

def f2u(f): return struct.unpack('<I', struct.pack('<f', f))[0]

class Asm:
    def __init__(self): self.l = []
    def __call__(self, s=''):
        for line in s.split('\n'): self.l.append(line)
    def label(self, n): self.l.append(n + ':')
    def text(self): return '\n'.join(self.l) + '\n'

def stamp(a, i, real=False):
    if STAMP:
        r = ST0 + 2*(8+i if real else i)
        a(f"    {'s_memrealtime' if real else 's_memtime'} s[{r}:{r+1}]")
def stamp_flush(a, wave_sgpr, wg_sgpr, kern, ws_lo):
    if not STAMP: return
    a('    s_waitcnt lgkmcnt(0)')
    a('    s_mov_b64 exec, 1')
    a('    v_mov_b32 v2, 0')
    a(f'    s_add_u32 s12, s{ws_lo}, {WS_STAMP + kern*(4<<20)}')
    a(f'    s_addc_u32 s13, s{ws_lo+1}, 0')
    a(f'    s_mov_b32 s14, {4<<20}')
    a('    s_mov_b32 s15, 0x00020000')
    a(f'    s_lshl_b32 s16, s{wg_sgpr}, 4')
    a(f'    s_add_u32 s16, s16, s{wave_sgpr}')
    a(f'    s_lshl_b32 s16, s16, 6')
    for i in range(8):
        a(f'    v_mov_b32 v3, s{ST0+2*i}')
        a(f'    buffer_store_dword v3, v2, s[12:15], s16 offen offset:{4*i}')
    for i in range(2):
        a(f'    v_mov_b32 v3, s{ST0+2*(8+i)}')
        a(f'    buffer_store_dword v3, v2, s[12:15], s16 offen offset:{4*(10+i)}')
    a('    s_waitcnt vmcnt(0)')

def srd(a, sreg, lo, hi, nbytes, off=0, stride=0, nrec=None):
    if off:
        a(f'    s_add_u32 s{sreg}, s{lo}, {off}')
        a(f'    s_addc_u32 s{sreg+1}, s{hi}, 0')
    else:
        a(f'    s_mov_b32 s{sreg}, s{lo}')
        a(f'    s_mov_b32 s{sreg+1}, s{hi}')
    if stride:
        a(f'    s_and_b32 s{sreg+1}, s{sreg+1}, 0xffff')
        a(f'    s_or_b32 s{sreg+1}, s{sreg+1}, {stride << 16}')
        a(f'    s_mov_b32 s{sreg+2}, {nrec}')
    else:
        a(f'    s_mov_b32 s{sreg+2}, {nbytes}')
    a(f'    s_mov_b32 s{sreg+3}, 0x00020000')

def dpp_scan(a, v):
    for sh in (1, 2, 4, 8):
        a('    s_nop 1')
        a(f'    v_add_u32_dpp v{v}, v{v}, v{v} row_shr:{sh} row_mask:0xf bank_mask:0xf')
    a('    s_nop 1')
    a(f'    v_add_u32_dpp v{v}, v{v}, v{v} row_bcast:15 row_mask:0xa bank_mask:0xf')
    a('    s_nop 1')
    a(f'    v_add_u32_dpp v{v}, v{v}, v{v} row_bcast:31 row_mask:0xc bank_mask:0xf')

def masked(a, cond, exreg, skip=None):
    a(f'    {cond}')
    a(f'    s_and_saveexec_b64 s[{exreg}:{exreg+1}], vcc')
    if skip: a(f'    s_cbranch_execz {skip}')
def unmask(a, exreg, skip=None):
    if skip: a.label(skip)
    a(f'    s_mov_b64 exec, s[{exreg}:{exreg+1}]')

K1_GRID = NC
L1_HIST = 0; L1_START = 1024; L1_SYNC = 2048
L1_ST32 = 2304; L1_ST8 = L1_ST32 + EPC*4; L1_W = 15360
K1_LDS = L1_W + 16384
K1PF = int(env('K1PF', '0'))
XMAP = int(env('XMAP', '1'))
DESCST = env('DESCST', '')
RECST = env('RECST', K1ST)
TST = env('TST', K1ST)
TFIRST = int(env('TFIRST', '1'))

def gen_k1(a):
    a('.p2align 8')
    a('.type k1_kernel,@function')
    a.label('k1_kernel')
    a(f'    s_cmp_ge_u32 s2, {K1_GRID}')
    a('    s_cbranch_scc1 K1_END')
    stamp(a, 0); stamp(a, 0, True)
    if XMAP:
        a('    s_and_b32 s20, s2, 7')
        a('    s_lshr_b32 s21, s2, 3')
        a('    s_mul_i32 s22, s20, 31')
        a('    s_min_u32 s20, s20, 2')
        a('    s_add_u32 s22, s22, s20')
        a('    s_add_u32 s2, s22, s21')
    a('    v_lshrrev_b32 v1, 6, v0')
    a('    s_load_dwordx4 s[8:11], s[0:1], 16')
    a('    v_readfirstlane_b32 s20, v1')
    a('    s_load_dwordx2 s[4:5], s[0:1], 8      ; e_attr')
    a('    s_load_dwordx2 s[6:7], s[0:1], 88     ; ws')
    a('    v_and_b32 v2, 63, v0                   ; lane')
    if TFIRST:
        a('    s_cmp_lt_u32 s20, 6')
        a('    s_cbranch_scc1 K1_TABLE')
        a('    v_subrev_u32 v0, 384, v0')
        a('    s_sub_u32 s20, s20, 6')
    else:
        a('    s_cmp_ge_u32 s20, 10')
        a('    s_cbranch_scc1 K1_TABLE')
    a('    v_mov_b32 v5, 0')
    a('    v_lshlrev_b32 v6, 2, v0               ; t*4')
    masked(a, 'v_cmp_gt_u32 vcc, 256, v0', 30)
    a(f'    ds_write_b32 v6, v5 offset:{L1_HIST}')
    unmask(a, 30)
    a('    v_lshlrev_b32 v3, 4, v0               ; t*16')
    a('    v_lshlrev_b32 v4, 3, v0               ; t*8')
    a(f'    s_mul_i32 s21, s2, {EPC*4}')
    a(f'    s_mul_i32 s22, s2, {EPC*2}')
    a('    s_mov_b32 s23, 52429')
    a('    s_waitcnt lgkmcnt(0)')
    srd(a, 12, 10, 11, E*4)
    a('    buffer_load_dwordx4 v[8:11], v3, s[12:15], s21 offen     ; dst x4')
    srd(a, 16, 8, 9, E*4)
    a('    buffer_load_dwordx4 v[12:15], v3, s[16:19], s21 offen    ; src x4')
    srd(a, 24, 4, 5, E*2)
    a('    buffer_load_dwordx2 v[16:17], v4, s[24:27], s22 offen')
    srd(a, 32, 6, 7, NC*REC_STRIDE, off=WS_REC)
    srd(a, 36, 6, 7, NB*DESC_STRIDE, off=WS_DESC)
    a('    v_lshlrev_b32 v6, 4, v2                ; lane*16')
    a('    v_mul_u32_u24 v7, 20, v0')
    a('    v_lshlrev_b32 v18, 12, v2')
    a(f'    s_mul_i32 s25, s2, {REC_STRIDE}')
    a('    s_lshl_b32 s26, s2, 2')
    a('    s_mov_b32 s40, 0x06050400')
    a('    s_mov_b32 s41, 0x05040003')
    a('    s_mov_b32 s42, 0x03020500')
    a('    s_mov_b32 s43, 0x04000302')
    a('    s_mov_b32 s44, 0x03060100')
    a('    s_mov_b32 s45, 0x07030201')
    stamp(a, 1)
    a('    s_barrier')
    a('    v_mov_b32 v5, 1')
    a('    s_waitcnt vmcnt(2)')
    stamp(a, 2)
    for k in range(4):
        a(f'    v_mul_u32_u24 v{20+k}, s23, v{8+k}')
    for k in range(4):
        a(f'    v_lshrrev_b32 v{20+k}, 21, v{20+k}      ; bucket')
    for k in range(4):
        a(f'    v_lshlrev_b32 v{24+k}, 2, v{20+k}       ; bucket*4')
    for k in range(4):
        a(f'    ds_add_rtn_u32 v{28+k}, v{24+k}, v5 offset:{L1_HIST}')
    for k in range(4):
        a(f'    v_mul_u32_u24 v{20+k}, {NPB*4}, v{20+k}')
    for k in range(4):
        a(f'    v_lshlrev_b32 v{8+k}, 2, v{8+k}')
    for k in range(4):
        a(f'    v_sub_u32 v{20+k}, v{8+k}, v{20+k}')
    a('    s_waitcnt vmcnt(0)')
    a('    v_lshl_or_b32 v32, v16, 16, v12')
    a('    s_mov_b32 s24, 0xffff0000')
    a('    v_and_or_b32 v33, v16, s24, v13')
    a('    v_lshl_or_b32 v34, v17, 16, v14')
    a('    v_and_or_b32 v35, v17, s24, v15')
    a('    s_waitcnt lgkmcnt(0)')
    stamp(a, 3)
    a('    s_barrier')
    stamp(a, 4)
    a(f'    ds_read_b128 v[40:43], v6 offset:{L1_HIST}')
    a('    s_waitcnt lgkmcnt(0)')
    a('    v_add_u32 v44, v40, v41                ; h0+h1')
    a('    v_add_u32 v45, v44, v42')
    a('    v_add_u32 v46, v45, v43                ; sum4')
    a('    v_mov_b32 v47, v46')
    dpp_scan(a, 47)
    a('    v_sub_u32 v48, v47, v46')
    a('    v_add_u32 v49, v48, v40')
    a('    v_add_u32 v50, v48, v44')
    a('    v_add_u32 v51, v48, v45')
    a(f'    ds_write_b128 v6, v[48:51] offset:{L1_START}')
    a('    s_waitcnt lgkmcnt(0)')
    for k in range(4):
        a(f'    ds_read_b32 v{56+k}, v{24+k} offset:{L1_START}')
    for k in range(4):
        a(f'    v_lshl_or_b32 v{52+k}, v{40+k}, 16, v{48+k}')
    a('    s_waitcnt lgkmcnt(0)')
    for k in range(4):
        a(f'    v_add_u32 v{56+k}, v{56+k}, v{28+k}      ; position')
    for k in range(4):
        a(f'    ds_write_b8 v{56+k}, v{20+k} offset:{L1_ST8}')
        a(f'    v_lshlrev_b32 v{60+k}, 2, v{56+k}')
    for k in range(4):
        a(f'    ds_write_b32 v{60+k}, v{32+k} offset:{L1_ST32}')
    a('    s_waitcnt lgkmcnt(0)')
    stamp(a, 5)
    a('    s_barrier')
    a(f'    ds_read_b128 v[8:11], v3 offset:{L1_ST32}')
    a('    v_lshrrev_b32 v4, 2, v3                ; t*4')
    a(f'    ds_read_b32 v12, v4 offset:{L1_ST8}')
    a('    s_waitcnt lgkmcnt(0)')
    a('    v_perm_b32 v21, v9, v12, s40           ; d1 = L0 r1.b0 r1.b1 r1.b2')
    a('    v_perm_b32 v22, v10, v9, s41           ; r1.b3 . r2.b0 r2.b1')
    a('    v_perm_b32 v23, v11, v10, s43          ; r2.b2 r2.b3 . r3.b0')
    a('    v_mov_b32 v20, v8')
    a('    v_perm_b32 v22, v12, v22, s42          ; d2 : insert L1')
    a('    v_perm_b32 v23, v12, v23, s44          ; d3 : insert L2')
    a('    v_perm_b32 v24, v12, v11, s45          ; d4 = r3.b1 r3.b2 r3.b3 L3')
    a(f'    buffer_store_dwordx4 v[20:23], v7, s[32:35], s25 offen {RECST}')
    a(f'    buffer_store_dword v24, v7, s[32:35], s25 offen offset:16 {RECST}')
    a('    s_cmp_eq_u32 s20, 0')
    a('    s_cbranch_scc0 K1_SFIN')
    for k in range(4):
        a(f'    buffer_store_dword v{52+k}, v18, s[36:39], s26 offen offset:{1024*k} {DESCST}')
    a.label('K1_SFIN')
    if STAMP:
        stamp(a, 6)
        a('    s_waitcnt vmcnt(0)')
        stamp(a, 7); stamp(a, 1, True)
        stamp_flush(a, 20, 2, 0, 6)
    a('    s_endpgm')
    a.label('K1_TABLE')
    a('    s_load_dwordx2 s[40:41], s[0:1], 40   ; w_b')
    a('    s_load_dwordx2 s[42:43], s[0:1], 64   ; w_v')
    a('    s_load_dwordx2 s[44:45], s[0:1], 0    ; x')
    if K1PF:
        a('    s_load_dwordx2 s[60:61], s[0:1], 32   ; w_a')
        a('    s_load_dwordx4 s[64:67], s[0:1], 48   ; w_c, w_u')
        a('    s_load_dwordx2 s[62:63], s[0:1], 72   ; out')
    a('    s_mov_b32 s21, s20                     ; tw' if TFIRST else '    s_sub_u32 s21, s20, 10                 ; tw')
    a('    v_mov_b32 v5, 0')
    a('    v_lshlrev_b32 v6, 2, v2')
    a('    s_cmp_eq_u32 s21, 0')
    a('    s_cbranch_scc0 K1_T_NOZ')
    masked(a, 'v_cmp_gt_u32 vcc, 4, v2', 30)
    a(f'    ds_write_b32 v6, v5 offset:{L1_SYNC}')
    unmask(a, 30)
    a.label('K1_T_NOZ')
    a('    s_lshr_b32 s22, s21, 1')
    a('    s_lshl_b32 s22, s22, 4                 ; 16*rt')
    a('    v_and_b32 v4, 15, v2')
    a('    v_add_u32 v4, s22, v4')
    a('    v_lshrrev_b32 v5, 4, v2                ; g')
    a('    v_lshlrev_b32 v6, 7, v4')
    a('    v_lshl_add_u32 v6, v5, 4, v6')
    a(f'    s_mul_i32 s24, s2, {NPB*128}')
    a('    v_lshlrev_b32 v7, 4, v2                ; lane*16')
    a('    v_bfe_u32 v8, v2, 4, 1')
    a('    v_lshlrev_b32 v8, 1, v8')
    a('    v_and_b32 v9, 7, v2')
    a('    v_xor_b32 v8, v8, v9')
    a('    v_lshrrev_b32 v9, 3, v2')
    a('    v_lshlrev_b32 v9, 7, v9                ; (lane>>3)*128')
    a('    s_waitcnt lgkmcnt(0)')
    for i in range(3):
        a(f'    s_add_u32 s26, s21, {6*i}              ; p')
        a('    s_cmp_lt_u32 s26, 8')
        a('    s_cselect_b32 s48, s40, s42')
        a('    s_cselect_b32 s49, s41, s43')
        a('    s_mov_b32 s50, 8192')
        a('    s_mov_b32 s51, 0x00020000')
        a('    s_and_b32 s27, s26, 7')
        a('    s_lshl_b32 s27, s27, 10')
        a('    s_cmp_lt_u32 s26, 16')
        a(f'    s_cselect_b32 s27, s27, {1<<20}')
        a(f'    buffer_load_dwordx4 v[{48+4*i}:{51+4*i}], v7, s[48:51], s27 offen')
    srd(a, 36, 44, 45, N*128)
    a('    buffer_load_dwordx4 v[24:27], v6, s[36:39], s24 offen')
    a('    buffer_load_dwordx4 v[28:31], v6, s[36:39], s24 offen offset:64')
    if K1PF:
        a('    s_cmp_eq_u32 s21, 5')
        a('    s_cbranch_scc0 K1_T_NOPF')
        a('    v_lshlrev_b32 v60, 8, v2')
        a('    v_lshlrev_b32 v61, 7, v2')
        a('    global_load_dword v62, v61, s[60:61]')
        a('    global_load_dword v62, v61, s[66:67]')
        a('    v_mov_b32 v63, 0')
        a('    global_load_dword v62, v63, s[64:65]')
        a(f'    s_mul_i32 s26, s2, {NPB*128}')
        a('    v_mov_b32 v63, s26')
        a('    global_load_dword v62, v63, s[62:63]')
        srd(a, 52, 6, 7, WS_T + T_BYTES, off=0)
        a(f'    s_mul_i32 s26, s2, {REC_STRIDE}')
        a('    v_mov_b32 v63, s26')
        a('    buffer_load_dword v62, v63, s[52:55], 0 offen')
        a(f'    s_mul_i32 s26, s2, {NPB*256}')
        a(f'    s_add_u32 s26, s26, {WS_T}')
        a('    v_mov_b32 v63, s26')
        a('    buffer_load_dword v62, v63, s[52:55], 0 offen')
        a(f'    s_mul_i32 s26, s2, {DESC_STRIDE}')
        a(f'    s_add_u32 s26, s26, {WS_DESC}')
        a('    v_mov_b32 v63, s26')
        a('    buffer_load_dword v62, v63, s[52:55], 0 offen')
        a('    s_barrier')
        a('    s_waitcnt vmcnt(9)')
        a('    s_branch K1_T_PFJOIN')
        a.label('K1_T_NOPF')
    a('    s_barrier')
    a('    s_waitcnt vmcnt(2)')
    if K1PF: a.label('K1_T_PFJOIN')
    stamp(a, 1)
    for i in range(3):
        a(f'    s_add_u32 s26, s21, {6*i}              ; p')
        a('    s_cmp_lt_u32 s26, 16')
        a(f'    s_cbranch_scc0 K1_T_ST{i}')
        a('    s_and_b32 s27, s26, 1')
        a('    s_lshl_b32 s27, s27, 2')
        a('    v_xor_b32 v10, s27, v8')
        a('    v_lshl_add_u32 v10, v10, 4, v9')
        a('    s_lshl_b32 s27, s26, 10                ; m*8192 + (p&7)*1024 = p*1024')
        a('    v_add_u32 v10, s27, v10')
        a(f'    ds_write_b128 v10, v[{48+4*i}:{51+4*i}] offset:{L1_W}')
        a.label(f'K1_T_ST{i}')
    srd(a, 44, 6, 7, T_BYTES, off=WS_T)
    a('    s_waitcnt lgkmcnt(0)')
    a('    v_mov_b32 v10, 0')
    a('    v_mov_b32 v11, 1')
    a('    s_mov_b64 exec, 1')
    a(f'    ds_add_u32 v10, v11 offset:{L1_SYNC}')
    a('    s_mov_b64 exec, -1')
    a('    s_and_b32 s23, s21, 1                  ; half')
    a('    v_bfe_u32 v12, v2, 2, 2                ; r')
    a('    v_lshl_add_u32 v13, v5, 3, v12         ; rho')
    a('    v_lshlrev_b32 v13, 7, v13')
    a('    v_and_b32 v14, 1, v2')
    a('    v_lshl_add_u32 v13, v14, 3, v13        ; + (c&1)*8')
    a('    v_bfe_u32 v14, v2, 1, 1                ; c>>1')
    a('    v_lshrrev_b32 v12, 1, v12')
    a('    v_and_b32 v15, 1, v5                   ; g&1')
    a('    v_lshlrev_b32 v15, 1, v15')
    a('    v_or_b32 v12, v12, v15                 ; swz/2')
    a('    s_lshl_b32 s25, s23, 1')
    a('    v_xor_b32 v15, s25, v12')
    a('    v_lshl_or_b32 v15, v15, 1, v14')
    a('    v_lshl_add_u32 v16, v15, 4, v13')
    a('    s_add_u32 s25, s25, 1')
    a('    v_xor_b32 v15, s25, v12')
    a('    v_lshl_or_b32 v15, v15, 1, v14')
    a('    v_lshl_add_u32 v17, v15, 4, v13')
    for r in range(32, 48):
        a(f'    v_mov_b32 v{r}, 0')
    a.label('K1_T_SPIN')
    a(f'    ds_read_b32 v11, v10 offset:{L1_SYNC}')
    a('    s_waitcnt lgkmcnt(0)')
    a('    v_readfirstlane_b32 s26, v11')
    a('    s_cmp_lt_u32 s26, 6')
    a('    s_cbranch_scc1 K1_T_SPIN')
    stamp(a, 3)
    order = [(jj, ks, m) for jj in range(2) for ks in range(2) for m in range(2)]
    for i, (jj, ks, m) in enumerate(order):
        b = 64 + 4*i
        off = L1_W + m*8192 + ks*32*128
        a(f'    ds_read_b64_tr_b16 v[{b}:{b+1}], v{16+jj} offset:{off}')
        a(f'    ds_read_b64_tr_b16 v[{b+2}:{b+3}], v{16+jj} offset:{off+512}')
    a(f'    s_mov_b32 s27, {hex(f2u(-LOG2E))}')
    a('    s_mov_b32 s28, 0xffff0000')
    a('    s_mov_b32 s29, 0x80000000')
    a('    v_lshlrev_b32 v9, 8, v4')
    a('    v_lshl_add_u32 v9, v5, 4, v9')
    a('    s_lshl_b32 s25, s23, 7')
    a(f'    s_mul_i32 s26, s2, {NPB*256}')
    a('    s_add_u32 s25, s25, s26')
    a('    v_add_u32 v9, s25, v9')
    a(f'    v_cmp_gt_u32 vcc, {NPB}, v4')
    a(f'    v_mov_b32 v10, {1<<30}')
    a('    s_waitcnt vmcnt(0)' if not K1PF else '    s_waitcnt vmcnt(7)')
    a('    v_cndmask_b32 v9, v10, v9, vcc')
    if K1PF:
        a('    s_cmp_eq_u32 s21, 5')
        a('    s_cbranch_scc1 K1_T_XOK')
        a('    s_waitcnt vmcnt(0)')
        a.label('K1_T_XOK')
    for i, (jj, ks, m) in enumerate(order):
        b = 64 + 4*i
        a(f'    s_waitcnt lgkmcnt({min(15, 2*(7-i))})')
        acc = 32 + 8*m + 4*jj
        x = 24 + 4*ks
        a(f'    v_mfma_f32_16x16x32_bf16 v[{acc}:{acc+3}], v[{b}:{b+3}], v[{x}:{x+3}], v[{acc}:{acc+3}]')
    stamp(a, 4)
    a('    s_nop 4')
    for jj in range(2):
        R = range(4)
        p = lambda r: 32 + 4*jj + r
        q = lambda r: 40 + 4*jj + r
        t = lambda r: 10 + r
        if jj == 1: a('    s_nop 2')
        for r in R: a(f'    v_mul_f32 v{p(r)}, s27, v{p(r)}')
        for r in R: a(f'    v_cvt_f16_f32 v{p(r)}, v{p(r)}')
        for r in R: a(f'    v_and_b32 v{t(r)}, 0x7fffffff, v{q(r)}')
        for r in R: a(f'    v_and_b32 v{p(r)}, 0xffff, v{p(r)}')
        for r in R: a(f'    v_sub_u32 v{t(r)}, v{t(r)}, v{p(r)}')
        for r in R: a(f'    v_add_u32 v{t(r)}, 0x8000, v{t(r)}')
        for r in R: a(f'    v_max_i32 v{t(r)}, 0, v{t(r)}')
        for r in R: a(f'    v_and_or_b32 v{t(r)}, v{t(r)}, s28, v{p(r)}')
        for r in R: a(f'    v_and_or_b32 v{p(r)}, v{q(r)}, s29, v{t(r)}')
        a(f'    buffer_store_dwordx4 v[{32+4*jj}:{35+4*jj}], v9, s[44:47], 0 offen offset:{jj*64} {TST}')
    a('    s_cmp_eq_u32 s2, 0')
    a('    s_cbranch_scc0 K1_TFIN')
    a('    s_cmp_eq_u32 s21, 0')
    a('    s_cbranch_scc0 K1_TFIN')
    a('    v_mov_b32 v10, 0x7c00')
    a(f'    v_lshlrev_b32 v11, 2, v2')
    a(f'    v_add_u32 v11, {N*256}, v11')
    a(f'    buffer_store_dword v10, v11, s[44:47], 0 offen {TST}')
    a.label('K1_TFIN')
    stamp(a, 5)
    a('    s_barrier                              ; (ranks)')
    a('    s_barrier                              ; (scatter)')
    if STAMP:
        stamp(a, 6)
        a('    s_waitcnt vmcnt(0)')
        stamp(a, 7); stamp(a, 1, True); stamp(a, 2)
        if TFIRST: a('    s_add_u32 s20, s20, 10')
        stamp_flush(a, 20, 2, 0, 6)
    a.label('K1_END')
    a('    s_endpgm')

CAP = 4096
TS = 272
L2_CNT = 0; L2_FLG = 256
L2_LIST = 512
L2_SLOT = L2_LIST + CAP*4
L2_W = L2_SLOT
L2_EAT = L2_SLOT + 56*512; L2_AT = L2_EAT + 48*TS; L2_UT = L2_AT + 48*TS
XS = 144
L2_XT = L2_UT + 48*TS
K2_LDS = L2_XT + 48*XS
U = 4
TPF = int(env('TPF', '1'))
PFPOS = int(env('PFPOS', '1'))
PFN = int(env('PFN', '40'))
PRT = [int(x) for x in env('PRT', '4,4,4').split(',')]

def gen_k2(a):
    sB = 2; sWAVE = 3
    SRD_DESC = 12; SRD_REC = 16; SRD_T = 20; SRD_W = 24; SRD_X = 28; SRD_OUT = 32; SRD_WC = 36
    sMODE = 40; sPASS = 41
    sG0 = 42; sG1 = 43; sGEND = 44; sLEFT = 45; sNODE = 46; sT0 = 47; sT1 = 48; sSAFE = 49; sGT = 50; sR = 51
    sEX = 52; sEAB = 54; sPR = 55; sPQ = 56; sLVL = 57; sSLOT = 58; sNR = 59; sPQ2 = 60; sXT = 61; sJ = 58
    sM = 64
    vLANE = 1
    vWC = 4; vEA = 8; vDEN = 12; vNUM = 16; vT = 20; vDAT = 24; vP = 40; vEV = 48
    vSA = 50; vACC = 51; vEAA = 52; vGS = 53; vQ16 = 54; vNG = 55
    vDA = 56; vNA = 60
    vX = 64
    vFL = 66
    vGE = 67
    vXO = 68
    vR = 76
    vB = 84
    vRK = 92
    vLA = 100
    vA = 108
    vCNT = 118; vRO = 119; vI = 120; vRM = 121; vTRA = 122; vXRA = 123; vROW = 50; vPFA = 51
    vLC = 12
    vPF = 16
    vXO2 = vXO
    SRD_LOC = 8; SRD_PF = 24
    vW = 24; vOP = 24; vAC = 40

    a('.p2align 8')
    a('.type k2_kernel,@function')
    a.label('k2_kernel')
    a(f'    s_cmp_ge_u32 s2, {NB}')
    a('    s_cbranch_scc1 K2_END')
    stamp(a, 0); stamp(a, 0, True)
    if XMAP:
        a(f'    s_and_b32 s{sT0}, s2, 7')
        a(f'    s_lshr_b32 s{sJ}, s2, 3')
        a(f'    s_mul_i32 s{sT1}, s{sT0}, 31')
        a(f'    s_min_u32 s{sT0}, s{sT0}, 2')
        a(f'    s_add_u32 s{sT1}, s{sT1}, s{sT0}')
        a(f'    s_add_u32 s2, s{sT1}, s{sJ}')
    else:
        a(f'    s_lshr_b32 s{sJ}, s2, 3')
    a('    s_load_dwordx2 s[6:7], s[0:1], 88      ; ws')
    a('    s_load_dwordx2 s[4:5], s[0:1], 0       ; x')
    a('    s_load_dwordx2 s[8:9], s[0:1], 32      ; w_a')
    a('    s_load_dwordx4 s[60:63], s[0:1], 48    ; w_c, w_u')
    a('    s_load_dwordx2 s[10:11], s[0:1], 72    ; out')
    a(f'    v_and_b32 v{vLANE}, 63, v0')
    a(f'    v_lshrrev_b32 v{vA}, 6, v0')
    a(f'    v_and_b32 v{vQ16}, 15, v0')
    a(f'    v_readfirstlane_b32 s{sWAVE}, v{vA}')
    a(f'    v_lshlrev_b32 v{vQ16}, 4, v{vQ16}      ; q*16')
    a(f'    v_and_b32 v{vA}, 0x3fc, v0             ; (t>>2)*4')
    a(f'    v_cmp_gt_u32 vcc, {NC*4}, v0')
    a(f'    v_mov_b32 v{vA+8}, {1<<30}')
    a(f'    s_lshl_b32 s{sT0}, s{sB}, 10')
    a(f'    v_cndmask_b32 v{vA}, v{vA+8}, v{vA}, vcc')
    for i in range(4):
        a(f'    v_mov_b32 v{vDA+i}, 0')
        a(f'    v_mov_b32 v{vNA+i}, 0')
    masked(a, 'v_cmp_gt_u32 vcc, 4, v0', sEX)
    a(f'    v_lshlrev_b32 v{vA+5}, 2, v0')
    a(f'    ds_write_b32 v{vA+5}, v{vDA} offset:{L2_FLG}')
    unmask(a, sEX)
    a(f'    s_mov_b32 s{sMODE}, 0')
    a(f'    s_mov_b32 s{sPASS}, 0')
    a(f'    v_mov_b32 v{vEV}, 0')
    a(f'    v_mov_b32 v{vEV+1}, 0')
    a(f'    v_lshrrev_b32 v{vA+1}, 5, v{vLANE}')
    a(f'    v_lshl_add_u32 v{vFL}, v{vA+1}, 8, v{vQ16}')
    a(f'    v_bfe_u32 v{vA+1}, v{vLANE}, 4, 1')
    a(f'    v_lshl_add_u32 v{vFL}, v{vA+1}, 3, v{vFL}')
    a.label('K2_PASS')
    for i in range(4):
        a(f'    v_mov_b32 v{vA+6+i}, {N}')
    a(f'    v_lshlrev_b32 v{vA+5}, 4, v0')
    a(f'    ds_write_b128 v{vA+5}, v[{vA+6}:{vA+9}] offset:{L2_LIST}')
    masked(a, 'v_cmp_gt_u32 vcc, 64, v0', sEX)
    a(f'    v_lshlrev_b32 v{vA+4}, 2, v0')
    a(f'    v_mov_b32 v{vA+3}, 0')
    a(f'    ds_write_b32 v{vA+4}, v{vA+3} offset:{L2_CNT}')
    unmask(a, sEX)
    a(f'    s_cmp_eq_u32 s{sMODE}, 0')
    a('    s_cbranch_scc0 K2_SLOWPARAM')
    a('    s_waitcnt lgkmcnt(0)')
    srd(a, SRD_DESC, 6, 7, NB*DESC_STRIDE, off=WS_DESC)
    a(f'    buffer_load_dword v{vCNT}, v{vA}, s[{SRD_DESC}:{SRD_DESC+3}], s{sT0} offen')
    a(f'    s_cmp_lt_u32 s{sWAVE}, 8')
    a(f'    s_cselect_b32 s{SRD_W}, s8, s62')
    a(f'    s_cselect_b32 s{SRD_W+1}, s9, s63')
    a(f'    s_mov_b32 s{SRD_W+2}, 8192')
    a(f'    s_mov_b32 s{SRD_W+3}, 0x00020000')
    srd(a, SRD_X, 4, 5, N*128)
    srd(a, SRD_WC, 60, 61, 128)
    a(f'    v_and_b32 v{vA+1}, 511, v0')
    a(f'    v_lshlrev_b32 v{vA+1}, 4, v{vA+1}')
    a(f'    buffer_load_dwordx4 v[{vW}:{vW+3}], v{vA+1}, s[{SRD_W}:{SRD_W+3}], 0 offen')
    a(f'    v_lshlrev_b32 v{vA+4}, 4, v0')
    a(f'    v_cmp_gt_u32 vcc, 384, v0')
    a(f'    v_mov_b32 v{vA+3}, {1<<30}')
    a(f'    s_mul_i32 s{sT1}, s{sB}, {NPB*128}')
    a(f'    v_cndmask_b32 v{vA+4}, v{vA+3}, v{vA+4}, vcc')
    a(f'    buffer_load_dwordx4 v[{vXO}:{vXO+3}], v{vA+4}, s[{SRD_X}:{SRD_X+3}], s{sT1} offen')
    a(f'    v_lshrrev_b32 v{vA+7}, 1, v{vQ16}      ; q*8 (wc)')
    a(f'    buffer_load_dwordx2 v[{vWC}:{vWC+1}], v{vA+7}, s[{SRD_WC}:{SRD_WC+3}], 0 offen')
    a('    s_barrier')
    srd(a, SRD_OUT, 10, 11, N*128)
    srd(a, SRD_REC, 6, 7, NC*REC_STRIDE + 64, off=WS_REC)
    srd(a, SRD_T, 6, 7, 0, off=WS_T, stride=256, nrec=N+1)
    a(f'    v_lshrrev_b32 v{vA}, 2, v0             ; c')
    a(f'    v_mul_u32_u24 v{vRO}, {REC_STRIDE}, v{vA}')
    a(f'    v_and_b32 v{vI}, 3, v0')
    a(f'    v_lshlrev_b32 v{vI}, 2, v{vI}')
    a(f'    v_mad_u32_u24 v{vRO}, v{vI}, 5, v{vRO}')
    a(f'    s_mov_b32 s{sT1}, 16')
    a('    s_waitcnt vmcnt(3)                      ; descriptor')
    stamp(a, 1)
    a(f'    v_and_b32 v{vA+1}, 0xffff, v{vCNT}      ; start')
    a(f'    v_lshrrev_b32 v{vCNT}, 16, v{vCNT}      ; cnt')
    a(f'    v_mad_u32_u24 v{vRO}, v{vA+1}, 5, v{vRO}')
    a('    s_branch K2_PARAMDONE')
    a.label('K2_SLOWPARAM')
    a(f'    s_lshl_b32 s{sT0}, s{sB}, 10')
    a(f'    s_lshl_b32 s{sT1}, s{sPASS}, 2')
    a(f'    s_add_u32 s{sT0}, s{sT0}, s{sT1}')
    a(f'    v_mov_b32 v{vA}, 0')
    a(f'    buffer_load_dword v{vCNT}, v{vA}, s[{SRD_DESC}:{SRD_DESC+3}], s{sT0} offen')
    a(f'    s_mul_i32 s{sT0}, s{sPASS}, {REC_STRIDE}')
    a('    s_waitcnt vmcnt(0) lgkmcnt(0)')
    a('    s_barrier')
    a(f'    v_and_b32 v{vA+1}, 0xffff, v{vCNT}')
    a(f'    v_lshlrev_b32 v{vI}, 2, v0')
    a(f'    v_add_u32 v{vA+1}, v{vA+1}, v{vI}')
    a(f'    v_mul_u32_u24 v{vRO}, 5, v{vA+1}')
    a(f'    v_add_u32 v{vRO}, s{sT0}, v{vRO}')
    a(f'    v_lshrrev_b32 v{vCNT}, 16, v{vCNT}')
    a(f'    s_mov_b32 s{sT1}, 4096')
    a.label('K2_PARAMDONE')
    a(f'    v_sub_u32 v{vRM}, v{vCNT}, v{vI}')
    a(f'    s_mul_i32 s{sT0}, s{sT1}, 5')
    a(f'    s_mov_b32 s{sNR}, 0')
    for r in range(2):
        m0 = sM + 8*r
        if r == 1:
            a(f'    v_subrev_u32 v{vRM}, s{sT1}, v{vRM}')
        for h in range(4):
            a(f'    v_cmp_gt_i32 s[{m0+2*h}:{m0+2*h+1}], v{vRM}, {h}' if h else f'    v_cmp_lt_i32 s[{m0}:{m0+1}], 0, v{vRM}')
        a(f'    s_cmp_eq_u64 s[{m0}:{m0+1}], 0')
        a(f'    s_cbranch_scc1 K2_LD_DONE')
        a(f'    s_mov_b64 exec, s[{m0}:{m0+1}]')
        a(f'    buffer_load_dwordx4 v[{vR+4*r}:{vR+4*r+3}], v{vRO}, s[{SRD_REC}:{SRD_REC+3}], 0 offen')
        a(f'    buffer_load_dword v{vLC+r}, v{vRO}, s[{SRD_REC}:{SRD_REC+3}], 0 offen offset:16')
        a(f'    s_mov_b64 exec, -1')
        a(f'    s_mov_b32 s{sNR}, {r+1}')
        if r < 1:
            a(f'    v_add_u32 v{vRO}, s{sT0}, v{vRO}')
    a.label('K2_LD_DONE')
    a(f'    s_or_b32 s{sT0}, s{sMODE}, s{sPASS}')
    a(f'    s_cmp_eq_u32 s{sT0}, 0')
    a('    s_cbranch_scc0 K2_LATER_PASS')
    a(f'    v_lshrrev_b32 v{vA+8}, 3, v0')
    a(f'    v_mul_u32_u24 v{vA+8}, {XS}, v{vA+8}')
    a(f'    v_and_b32 v{vA+7}, 7, v0')
    a(f'    v_lshl_add_u32 v{vA+8}, v{vA+7}, 4, v{vA+8}')
    a(f'    v_add_u32 v{vA+8}, {L2_XT}, v{vA+8}')
    NPF = 1 if TPF else 0
    a(f'    v_bfe_u32 v{vA+1}, v0, 4, 1')
    a(f'    v_bfe_u32 v{vA+2}, v0, 6, 1')
    a(f'    v_lshlrev_b32 v{vA+1}, 1, v{vA+1}')
    a(f'    v_lshl_or_b32 v{vA+1}, v{vA+2}, 2, v{vA+1}')
    a(f'    v_and_b32 v{vA+2}, 7, v0')
    a(f'    v_xor_b32 v{vA+1}, v{vA+1}, v{vA+2}')
    a(f'    v_lshrrev_b32 v{vA+2}, 3, v0')
    a(f'    v_lshlrev_b32 v{vA+2}, 7, v{vA+2}')
    a(f'    v_lshl_add_u32 v{vA+9}, v{vA+1}, 4, v{vA+2}')
    a(f'    v_lshrrev_b32 v{vA+3}, 4, v{vLANE}     ; g')
    a(f'    v_bfe_u32 v{vA}, v{vLANE}, 2, 2        ; r')
    a(f'    v_lshl_add_u32 v{vA+1}, v{vA+3}, 3, v{vA}')
    a(f'    v_lshlrev_b32 v{vA+1}, 7, v{vA+1}')
    a(f'    v_and_b32 v{vA+2}, 1, v{vLANE}')
    a(f'    v_lshl_add_u32 v{vA+1}, v{vA+2}, 3, v{vA+1}')
    a(f'    v_lshrrev_b32 v{vA}, 1, v{vA}')
    a(f'    v_and_b32 v{vA+2}, 1, v{vA+3}')
    a(f'    v_lshl_or_b32 v{vA}, v{vA+2}, 1, v{vA}     ; swz/2')
    a(f'    s_and_b32 s{sT0}, s{sWAVE}, 3')
    a(f'    v_xor_b32 v{vA}, s{sT0}, v{vA}')
    a(f'    v_bfe_u32 v{vA+2}, v{vLANE}, 1, 1')
    a(f'    v_lshl_or_b32 v{vA}, v{vA}, 1, v{vA+2}')
    a(f'    v_lshl_add_u32 v{vTRA}, v{vA}, 4, v{vA+1}')
    a(f'    s_lshr_b32 s{sT1}, s{sWAVE}, 2')
    a(f'    s_lshl_b32 s{sT1}, s{sT1}, 4')
    a(f'    v_and_b32 v{vA+2}, 15, v{vLANE}')
    a(f'    v_add_u32 v{vROW}, s{sT1}, v{vA+2}     ; row')
    a(f'    v_mul_u32_u24 v{vA+1}, {XS}, v{vROW}')
    a(f'    v_lshl_add_u32 v{vA+1}, v{vA+3}, 4, v{vA+1}')
    a(f'    v_add_u32 v{vXRA}, {L2_XT}, v{vA+1}')
    a(f'    v_mul_u32_u24 v{vA+4}, {TS}, v{vROW}')
    a(f'    v_lshl_add_u32 v{vA+4}, v{vA+3}, 4, v{vA+4}')
    a(f'    s_lshl_b32 s{sT0}, s{sT0}, 6')
    a(f'    s_add_u32 s{sT0}, s{sT0}, {L2_EAT}')
    a(f'    v_add_u32 v{vEAA}, s{sT0}, v{vA+4}')
    if TPF:
        srd(a, SRD_PF, 6, 7, T_BYTES, off=WS_T)
        a(f'    s_mul_i32 s{sT0}, s{sJ}, {640*128}')
        a(f'    s_mul_i32 s{sT1}, s{sWAVE}, {40*128}')
        a(f'    s_add_u32 s{sJ}, s{sT0}, s{sT1}')
        a(f'    v_lshlrev_b32 v{vA+3}, 7, v{vLANE}')
        a(f'    v_cmp_gt_u32 vcc, {PFN}, v{vLANE}')
        a(f'    v_mov_b32 v{vA+4}, {1<<30}')
        a('    s_nop 0')
        a(f'    v_cndmask_b32 v{vPFA}, v{vA+4}, v{vA+3}, vcc')
    a(f'    v_mov_b32 v{vA+2}, 1')
    a(f'    s_waitcnt vmcnt(0)')
    if TPF and PFPOS == 1:
        a(f'    buffer_load_dword v{vPF}, v{vPFA}, s[{SRD_PF}:{SRD_PF+3}], s{sJ} offen')
    a('    s_branch K2_RANKS')
    a.label('K2_LATER_PASS')
    a(f'    v_mov_b32 v{vA+2}, 1')
    a('    s_waitcnt vmcnt(0)')
    a.label('K2_RANKS')
    stamp(a, 2)
    for r in range(2):
        a(f'    s_cmp_le_u32 s{sNR}, {r}')
        a('    s_cbranch_scc1 K2_RK_DONE')
        d = vR + 4*r
        a(f'    v_and_b32 v{vLA+4*r}, 0xff, v{d+1}')
        a(f'    v_bfe_u32 v{vLA+4*r+1}, v{d+2}, 8, 8')
        a(f'    v_bfe_u32 v{vLA+4*r+2}, v{d+3}, 16, 8')
        a(f'    v_lshrrev_b32 v{vLA+4*r+3}, 24, v{vLC+r}')
        for h in range(4):
            k = 4*r + h
            a(f'    s_mov_b64 exec, s[{sM+2*k}:{sM+2*k+1}]')
            a(f'    ds_add_rtn_u32 v{vRK+k}, v{vLA+k}, v{vA+2} offset:{L2_CNT}')
        a('    s_mov_b64 exec, -1')
        a(f'    v_alignbyte_b32 v{d+1}, v{d+2}, v{d+1}, 1')
        a(f'    v_alignbyte_b32 v{d+2}, v{d+3}, v{d+2}, 2')
        a(f'    v_alignbyte_b32 v{d+3}, v{vLC+r}, v{d+3}, 3')
    a.label('K2_RK_DONE')
    masked(a, f'v_cmp_lt_u32 vcc, 32, v{vCNT}', sEX, 'K2_NOOVF')
    a(f'    v_mov_b32 v{vA+3}, 0')
    a(f'    ds_write_b32 v{vA+3}, v{vA+2} offset:{L2_FLG}')
    unmask(a, sEX, 'K2_NOOVF')
    a(f'    s_or_b32 s{sT0}, s{sMODE}, s{sPASS}')
    a(f'    s_cmp_eq_u32 s{sT0}, 0')
    a('    s_cbranch_scc0 K2_NOWST')
    a(f'    ds_write_b128 v{vA+9}, v[{vW}:{vW+3}] offset:{L2_W}')
    a(f'    s_cmp_lt_u32 s{sWAVE}, 6')
    a('    s_cbranch_scc0 K2_NOXST')
    a(f'    ds_write_b128 v{vA+8}, v[{vXO}:{vXO+3}]')
    a.label('K2_NOXST')
    a.label('K2_NOWST')
    a(f'    v_lshlrev_b32 v{vA+1}, 2, v{vLANE}')
    a(f'    v_mov_b32 v{vA}, 0')
    a('    s_waitcnt lgkmcnt(0)')
    stamp(a, 3)
    a('    s_barrier')
    stamp(a, 4)
    if TPF and PFPOS == 0:
        a(f'    s_or_b32 s{sT0}, s{sMODE}, s{sPASS}')
        a(f'    s_cmp_eq_u32 s{sT0}, 0')
        a('    s_cbranch_scc0 K2_NOPF')
        a(f'    buffer_load_dword v{vPF}, v{vPFA}, s[{SRD_PF}:{SRD_PF+3}], s{sJ} offen')
        a.label('K2_NOPF')
    a(f'    ds_read_b32 v{vNG}, v{vA+1} offset:{L2_CNT}')
    a(f'    ds_read_b32 v{vA+4}, v{vA} offset:{L2_FLG}')
    a('    s_waitcnt lgkmcnt(1)')
    a(f'    v_add_u32 v{vNG}, 3, v{vNG}')
    a(f'    v_lshrrev_b32 v{vNG}, 2, v{vNG}')
    a(f'    v_mov_b32 v{vGE}, v{vNG}')
    dpp_scan(a, vGE)
    a('    s_waitcnt lgkmcnt(0)')
    a(f'    v_readlane_b32 s{sGT}, v{vGE}, {NPB-1}')
    a(f'    v_sub_u32 v{vGS}, v{vGE}, v{vNG}')
    a(f'    v_readfirstlane_b32 s{sT0}, v{vA+4}')
    a(f'    v_lshlrev_b32 v{vA+6}, 4, v{vGS}')
    a(f'    v_cmp_lt_u32 vcc, {NPB}, v{vLANE}')
    a(f'    s_add_u32 s{sR}, s{sGT}, 15')
    a(f'    s_lshr_b32 s{sR}, s{sR}, 4')
    a(f'    v_cndmask_b32 v{vGS}, v{vGS}, -1, vcc')
    a(f'    s_cmp_eq_u32 s{sMODE}, 0')
    a('    s_cbranch_scc0 K2_NOSWITCH')
    a(f'    s_cmp_gt_u32 s{sGT}, {(CAP - 64)//4}')
    a(f'    s_cselect_b32 s{sT1}, 1, 0')
    a(f'    s_or_b32 s{sT0}, s{sT0}, s{sT1}')
    a(f'    s_cmp_eq_u32 s{sT0}, 0')
    a('    s_cbranch_scc1 K2_NOSWITCH')
    a(f'    s_mov_b32 s{sNR}, 0')
    a(f'    s_mov_b32 s{sGT}, 0')
    a(f'    s_mov_b32 s{sR}, 0')
    a(f'    s_mov_b32 s{sMODE}, 2')
    a.label('K2_NOSWITCH')
    for r in range(2):
        a(f'    s_cmp_le_u32 s{sNR}, {r}')
        a('    s_cbranch_scc1 K2_LK_DONE')
        for h in range(4):
            k = 4*r + h
            a(f'    ds_bpermute_b32 v{vB+k}, v{vLA+k}, v{vA+6}')
    a.label('K2_LK_DONE')
    a(f'    s_cmp_eq_u32 s{sPASS}, 0')
    a('    s_cbranch_scc0 K2_NOTAB')
    a(f'    s_cmp_eq_u32 s{sMODE}, 1')
    a('    s_cbranch_scc1 K2_NOTAB')
    a(f'    s_cmp_lt_u32 s{sWAVE}, 12')
    a('    s_cbranch_scc0 K2_WC')
    a(f'    ds_read_b128 v[{vXO}:{vXO+3}], v{vXRA}')
    a(f'    ds_read_b128 v[{vXO+4}:{vXO+7}], v{vXRA} offset:64')
    order = [(m, ks) for ks in range(2) for m in range(2)]
    for i, (m, ks) in enumerate(order):
        b = vOP + 4*i
        off = L2_W + m*8192 + ks*32*128
        a(f'    ds_read_b64_tr_b16 v[{b}:{b+1}], v{vTRA} offset:{off}')
        a(f'    ds_read_b64_tr_b16 v[{b+2}:{b+3}], v{vTRA} offset:{off+512}')
    for i, (m, ks) in enumerate(order):
        b = vOP + 4*i
        a(f'    s_waitcnt lgkmcnt({2*(3-i)})')
        acc = vAC + 4*m; x = vXO2 + 4*ks
        c = '0' if ks == 0 else f'v[{acc}:{acc+3}]'
        a(f'    v_mfma_f32_16x16x32_bf16 v[{acc}:{acc+3}], v[{b}:{b+3}], v[{x}:{x+3}], {c}')
    a(f'    s_mov_b32 s{sT0}, {hex(f2u(-LOG2E))}')
    a(f'    s_mov_b32 s{sT1}, {hex(f2u(60.0))}')
    a('    s_nop 6')
    for i in range(4):
        a(f'    v_mul_f32 v{vAC+i}, s{sT0}, v{vAC+i}')
    a(f'    ds_write_b128 v{vEAA}, v[{vAC+4}:{vAC+7}] offset:{L2_UT-L2_EAT}')
    a(f'    ds_write_b128 v{vEAA}, v[{vAC}:{vAC+3}] offset:{L2_AT-L2_EAT}')
    for i in range(4):
        a(f'    v_exp_f32 v{vOP+i}, v{vAC+i}')
    a(f'    v_max3_f32 v{vA+5}, |v{vAC}|, |v{vAC+1}|, |v{vAC+2}|')
    a(f'    v_max_f32 v{vA+5}, v{vA+5}, |v{vAC+3}|')
    a(f'    ds_write_b128 v{vEAA}, v[{vOP}:{vOP+3}]')
    a(f'    v_cmp_nle_f32 vcc, v{vA+5}, s{sT1}')
    a(f'    v_cmp_gt_u32 s[{sEX}:{sEX+1}], {NPB}, v{vROW}')
    a(f'    s_and_b64 vcc, vcc, s[{sEX}:{sEX+1}]')
    a(f'    s_and_saveexec_b64 s[{sEX}:{sEX+1}], vcc')
    a('    s_cbranch_execz K2_GUARD_OK')
    a(f'    v_mov_b32 v{vA+5}, 1')
    a(f'    v_mov_b32 v{vA+7}, 0')
    a(f'    ds_write_b32 v{vA+7}, v{vA+5} offset:{L2_FLG+4}')
    unmask(a, sEX, 'K2_GUARD_OK')
    a.label('K2_WC')
    a(f'    s_mov_b32 s{sT0}, {hex(f2u(-LOG2E))}')
    a(f'    v_and_b32 v{vWC+3}, 0xffff0000, v{vWC+1}')
    a(f'    v_lshlrev_b32 v{vWC+2}, 16, v{vWC+1}')
    a(f'    v_and_b32 v{vWC+1}, 0xffff0000, v{vWC}')
    a(f'    v_lshlrev_b32 v{vWC}, 16, v{vWC}')
    for k in range(4):
        a(f'    v_mul_f32 v{vWC+k}, s{sT0}, v{vWC+k}')
    for k in range(U):
        a(f'    v_mov_b32 v{vP+2*k+1}, v{vQ16}')
    a.label('K2_NOTAB')
    a('    s_waitcnt lgkmcnt(0)')
    for r in range(2):
        a(f'    s_cmp_le_u32 s{sNR}, {r}')
        a('    s_cbranch_scc1 K2_SC_DONE')
        for h in range(4):
            k = 4*r + h
            a(f'    s_mov_b64 exec, s[{sM+2*k}:{sM+2*k+1}]')
            a(f'    v_lshl_add_u32 v{vB+k}, v{vRK+k}, 2, v{vB+k}')
            a(f'    ds_write_b32 v{vB+k}, v{vR+k} offset:{L2_LIST}')
    a.label('K2_SC_DONE')
    a('    s_mov_b64 exec, -1')
    a(f'    s_mul_i32 s{sG0}, s{sR}, s{sWAVE}')
    a(f'    s_add_u32 s{sG1}, s{sG0}, s{sR}')
    a(f'    s_min_u32 s{sG1}, s{sG1}, s{sGT}')
    a(f'    v_lshrrev_b32 v{vSA}, 4, v{vLANE}')
    a(f'    v_lshlrev_b32 v{vSA}, 2, v{vSA}         ; slot*4')
    a(f'    s_lshl_b32 s{sT0}, s{sG0}, 4')
    a(f'    v_add_u32 v{vSA}, s{sT0}, v{vSA}')
    a(f'    v_mov_b32 v{vA}, 0')
    a('    s_waitcnt lgkmcnt(0)')
    a('    s_barrier')
    stamp(a, 5)

    def tload(k):
        d = vDAT + 4*k
        a(f'    buffer_load_dwordx4 v[{d}:{d+3}], v[{vP+2*k}:{vP+2*k+1}], s[{SRD_T}:{SRD_T+3}], 0 idxen offen')

    a(f'    s_cmp_ge_u32 s{sG0}, s{sG1}')
    a('    s_cbranch_scc1 K2_MAIN_DONE')
    a(f'    ds_read_b32 v{vA+5}, v{vA} offset:{L2_FLG+4}')
    for k in range(U):
        a(f'    ds_read_u16 v{vP+2*k}, v{vSA} offset:{L2_LIST + 16*k}')
    a(f'    ds_read_u16_d16_hi v{vEV}, v{vSA} offset:{L2_LIST + 2}')
    if PRIO:
        a(f'    s_add_u32 s{sT0}, s{sR}, 3')
        a(f'    s_lshr_b32 s{sT0}, s{sT0}, 2            ; iterations')
        for n, reg in zip(PRT, (sPR, sPQ, sPQ2)):
            a(f'    s_mul_i32 s{reg}, s{sT0}, {n}')
            a(f'    s_lshr_b32 s{reg}, s{reg}, 4')
            a(f'    s_add_u32 s{reg}, s{reg}, 1')
        a(f'    s_mov_b32 s{sLVL}, 3')
        a('    s_setprio 3')
    a(f'    s_mov_b32 s{sGEND}, s{sG0}')
    a('    s_waitcnt lgkmcnt(0)')
    for k in range(U):
        tload(k)
    a(f'    v_readfirstlane_b32 s{sSAFE}, v{vA+5}')
    a(f'    ds_read_u16 v{vP}, v{vSA} offset:{L2_LIST + 16*U}')
    a(f'    s_cmp_eq_u32 s{sSAFE}, 0')
    a(f'    s_mov_b32 s{sEAB}, {L2_AT}')
    a(f'    s_cselect_b32 s{sEAB}, {L2_EAT}, s{sEAB}')
    a('    s_cbranch_scc0 K2S_ENTER')
    a('    s_branch K2F_ENTER')

    def next_node():
        a(f'    v_cmp_ge_u32 vcc, s{sGEND}, v{vGS}')
        a(f'    s_bcnt1_i32_b64 s{sT0}, vcc')
        a(f'    s_sub_u32 s{sNODE}, s{sT0}, 1')
        a(f'    v_readlane_b32 s{sT1}, v{vGS}, s{sT0}')
        a(f'    s_mul_i32 s{sT0}, s{sNODE}, {TS}')
        a(f'    s_add_u32 s{sT0}, s{sT0}, s{sEAB}')
        a(f'    v_add_u32 v{vEAA}, s{sT0}, v{vQ16}')
        a(f'    ds_read_b128 v[{vEA}:{vEA+3}], v{vEAA}')
        a(f'    s_min_u32 s{sT1}, s{sT1}, s{sG1}')
        a(f'    s_sub_u32 s{sLEFT}, s{sT1}, s{sGEND}')
        a(f'    s_sub_u32 s{sLEFT}, s{sLEFT}, 1')
        a(f'    s_mov_b32 s{sGEND}, s{sT1}')

    def set_slot():
        a(f'    s_add_u32 s{sSLOT}, s{sNODE}, s{sWAVE}')
        a(f'    s_lshl_b32 s{sSLOT}, s{sSLOT}, 9')

    def flush():
        a(f'    v_add_u32 v{vACC}, s{sSLOT}, v{vFL}')
        for i in range(4):
            a(f'    v_permlane32_swap_b32 v{vDEN+i}, v{vNUM+i}')
        a(f'    v_pk_add_f32 v[{vDEN}:{vDEN+1}], v[{vDEN}:{vDEN+1}], v[{vNUM}:{vNUM+1}]')
        a(f'    v_pk_add_f32 v[{vDEN+2}:{vDEN+3}], v[{vDEN+2}:{vDEN+3}], v[{vNUM+2}:{vNUM+3}]')
        a('    s_nop 1')
        a(f'    v_permlane16_swap_b32 v{vDEN}, v{vDEN+2}')
        a(f'    v_permlane16_swap_b32 v{vDEN+1}, v{vDEN+3}')
        a(f'    v_pk_add_f32 v[{vNUM}:{vNUM+1}], v[{vDEN}:{vDEN+1}], v[{vDEN+2}:{vDEN+3}]')
        a(f'    ds_write_b64 v{vACC}, v[{vNUM}:{vNUM+1}] offset:{L2_SLOT}')

    def step(k, safe, init):
        d = vDAT + 4*k
        ev = vEV + (k & 1); evn = vEV + ((k+1) & 1)
        pn = vP + 2*((k+1) % U)
        for i in range(4):
            a(f'    v_fma_mix_f32 v{vT+i}, v{ev}, v{vWC+i}, v{d+i} op_sel:[0,0,0] op_sel_hi:[0,0,1]')
        a(f'    ds_read_u16_d16_hi v{evn}, v{vSA} offset:{L2_LIST + 16*(k+1) + 2}')
        a(f'    ds_read_u16 v{pn}, v{vSA} offset:{L2_LIST + 16*(k+1+U)}')
        if init and safe:
            a('    s_waitcnt lgkmcnt(3)')
        if safe:
            a(f'    v_pk_add_f32 v[{vT}:{vT+1}], v[{vT}:{vT+1}], v[{vEA}:{vEA+1}]')
            a(f'    v_pk_add_f32 v[{vT+2}:{vT+3}], v[{vT+2}:{vT+3}], v[{vEA+2}:{vEA+3}]')
        for i in range(4):
            a(f'    v_exp_f32 v{vT+i}, v{vT+i}')
        if init and not safe:
            a('    s_waitcnt lgkmcnt(3)')
        if safe:
            a(f'    v_pk_add_f32 v[{vT}:{vT+1}], v[{vT}:{vT+1}], 1.0 op_sel_hi:[1,0]')
            a(f'    v_pk_add_f32 v[{vT+2}:{vT+3}], v[{vT+2}:{vT+3}], 1.0 op_sel_hi:[1,0]')
        else:
            a(f'    v_pk_fma_f32 v[{vT}:{vT+1}], v[{vEA}:{vEA+1}], v[{vT}:{vT+1}], 1.0 op_sel_hi:[1,1,0]')
            a(f'    v_pk_fma_f32 v[{vT+2}:{vT+3}], v[{vEA+2}:{vEA+3}], v[{vT+2}:{vT+3}], 1.0 op_sel_hi:[1,1,0]')
        if init:
            for i in range(4):
                a(f'    v_rcp_f32 v{vDEN+i}, v{vT+i}')
            a('    s_nop 0')
            a(f'    v_pk_mul_f32 v[{vNUM}:{vNUM+1}], v[{vDEN}:{vDEN+1}], v[{d}:{d+1}]')
            a(f'    v_pk_mul_f32 v[{vNUM+2}:{vNUM+3}], v[{vDEN+2}:{vDEN+3}], v[{d+2}:{d+3}]')
        else:
            for i in range(4):
                a(f'    v_rcp_f32 v{vT+i}, v{vT+i}')
            a(f'    v_pk_add_f32 v[{vDEN}:{vDEN+1}], v[{vDEN}:{vDEN+1}], v[{vT}:{vT+1}]')
            a(f'    v_pk_add_f32 v[{vDEN+2}:{vDEN+3}], v[{vDEN+2}:{vDEN+3}], v[{vT+2}:{vT+3}]')
            a(f'    v_pk_fma_f32 v[{vNUM}:{vNUM+1}], v[{vT}:{vT+1}], v[{d}:{d+1}], v[{vNUM}:{vNUM+1}]')
            a(f'    v_pk_fma_f32 v[{vNUM+2}:{vNUM+3}], v[{vT+2}:{vT+3}], v[{d+2}:{d+3}], v[{vNUM+2}:{vNUM+3}]')
        tload(k)
        if k == U-1:
            a(f'    v_add_u32 v{vSA}, {16*U}, v{vSA}')

    def loopback(pfx):
        if PRIO:
            a(f'    s_sub_u32 s{sPR}, s{sPR}, 1')
            a(f'    s_cmp_lg_u32 s{sPR}, 0')
            a(f'    s_cbranch_scc1 {pfx}_STEP0')
            a(f'    s_branch {pfx}_PRIO')
        else:
            a(f'    s_branch {pfx}_STEP0')

    for pfx, safe in (('K2F', False), ('K2S', True)):
        a.label(f'{pfx}_ENTER')
        next_node()
        set_slot()
        a('    s_waitcnt vmcnt(3) lgkmcnt(0)')
        step(0, safe, True)
        a(f'    s_branch {pfx}_STEP1')
        for k in range(U):
            a.label(f'{pfx}_STEP{k}')
            a(f'    s_waitcnt vmcnt({U-1}) lgkmcnt(0)')
            a(f'    s_sub_u32 s{sLEFT}, s{sLEFT}, 1')
            a(f'    s_cbranch_scc1 {pfx}_FLUSH{k}')
            step(k, safe, False)
            if k == U-1:
                loopback(pfx)
        for k in range(U):
            a.label(f'{pfx}_FLUSH{k}')
            a(f'    s_cmp_ge_u32 s{sGEND}, s{sG1}')
            a(f'    s_cbranch_scc1 K2_LAST')
            next_node()
            flush()
            set_slot()
            step(k, safe, True)
            if k == U-1:
                loopback(pfx)
            else:
                a(f'    s_branch {pfx}_STEP{k+1}')
        if PRIO:
            a.label(f'{pfx}_PRIO')
            a(f'    s_sub_u32 s{sLVL}, s{sLVL}, 1')
            a(f'    s_cmp_eq_u32 s{sLVL}, 2')
            a(f'    s_cbranch_scc1 {pfx}_PRIO2')
            a(f'    s_cmp_eq_u32 s{sLVL}, 1')
            a(f'    s_cbranch_scc1 {pfx}_PRIO1')
            a(f'    s_mov_b32 s{sPR}, 0x7fffffff')
            a('    s_setprio 0')
            a(f'    s_branch {pfx}_STEP0')
            a.label(f'{pfx}_PRIO2')
            a(f'    s_mov_b32 s{sPR}, s{sPQ}')
            a('    s_setprio 2')
            a(f'    s_branch {pfx}_STEP0')
            a.label(f'{pfx}_PRIO1')
            a(f'    s_mov_b32 s{sPR}, s{sPQ2}')
            a('    s_setprio 1')
            a(f'    s_branch {pfx}_STEP0')
    a.label('K2_LAST')
    flush()
    a.label('K2_MAIN_DONE')
    if PRIO: a('    s_setprio 0')
    a(f'    s_cmp_eq_u32 s{sMODE}, 2')
    a('    s_cbranch_scc0 K2_NOABORT')
    a(f'    s_mov_b32 s{sMODE}, 1')
    a(f'    s_mov_b32 s{sPASS}, 0')
    a('    s_waitcnt vmcnt(0) lgkmcnt(0)')
    a('    s_barrier')
    a('    s_branch K2_PASS')
    a.label('K2_NOABORT')
    a(f'    v_cvt_f32_u32 v{vA}, s{sR}')
    a(f'    v_cvt_f32_u32 v{vA+1}, v{vGS}')
    a(f'    v_rcp_f32 v{vA}, v{vA}')
    a(f'    v_cvt_f32_u32 v{vA+2}, v{vGE}')
    a(f'    v_add_f32 v{vA+1}, 0.5, v{vA+1}')
    a(f'    v_add_f32 v{vA+2}, -0.5, v{vA+2}')
    a(f'    v_mul_f32 v{vA+1}, v{vA+1}, v{vA}')
    a(f'    v_mul_f32 v{vA+2}, v{vA+2}, v{vA}')
    a(f'    v_cvt_u32_f32 v{vA+1}, v{vA+1}          ; wlo')
    a(f'    v_cvt_u32_f32 v{vA+2}, v{vA+2}          ; whi')
    a(f'    v_sub_u32 v{vA+2}, v{vA+2}, v{vA+1}')
    a(f'    v_add_u32 v{vA+2}, 1, v{vA+2}')
    a(f'    v_cmp_eq_u32 vcc, 0, v{vNG}')
    a(f'    v_add_u32 v{vA+1}, v{vA+1}, v{vLANE}')
    a(f'    v_and_b32 v{vA+1}, 0xffff, v{vA+1}')
    a(f'    v_cndmask_b32 v{vA+2}, v{vA+2}, 0, vcc')
    a(f'    v_lshl_or_b32 v{vA+3}, v{vA+2}, 16, v{vA+1}')
    a(f'    v_lshrrev_b32 v{vA}, 4, v0')
    a(f'    v_and_b32 v{vA+4}, 63, v{vA}')
    a(f'    v_lshlrev_b32 v{vA+4}, 2, v{vA+4}')
    a(f'    ds_bpermute_b32 v{vA+1}, v{vA+4}, v{vA+3}')
    a(f'    v_mul_u32_u24 v{vA+5}, {TS}, v{vA}')
    a('    s_waitcnt vmcnt(0) lgkmcnt(0)')
    a(f'    v_cmp_gt_u32 vcc, {NPB*16}, v0')
    a(f'    v_lshrrev_b32 v{vA+2}, 16, v{vA+1}')
    a(f'    v_and_b32 v{vA+1}, 0xffff, v{vA+1}')
    a(f'    v_cndmask_b32 v{vA+2}, 0, v{vA+2}, vcc')
    a(f'    v_lshl_add_u32 v{vA+1}, v{vA+1}, 9, v{vQ16}')
    stamp(a, 6)
    a('    s_barrier')
    a.label('K2_FOLD')
    masked(a, f'v_cmp_lt_u32 vcc, 0, v{vA+2}', sEX, 'K2_FOLD_DONE')
    a(f'    ds_read_b128 v[{vDEN}:{vDEN+3}], v{vA+1} offset:{L2_SLOT}')
    a(f'    ds_read_b128 v[{vNUM}:{vNUM+3}], v{vA+1} offset:{L2_SLOT+256}')
    a(f'    v_add_u32 v{vA+1}, 512, v{vA+1}')
    a(f'    v_add_u32 v{vA+2}, -1, v{vA+2}')
    a('    s_waitcnt lgkmcnt(1)')
    a(f'    v_pk_add_f32 v[{vDA}:{vDA+1}], v[{vDA}:{vDA+1}], v[{vDEN}:{vDEN+1}]')
    a(f'    v_pk_add_f32 v[{vDA+2}:{vDA+3}], v[{vDA+2}:{vDA+3}], v[{vDEN+2}:{vDEN+3}]')
    a('    s_waitcnt lgkmcnt(0)')
    a(f'    v_pk_add_f32 v[{vNA}:{vNA+1}], v[{vNA}:{vNA+1}], v[{vNUM}:{vNUM+1}]')
    a(f'    v_pk_add_f32 v[{vNA+2}:{vNA+3}], v[{vNA+2}:{vNA+3}], v[{vNUM+2}:{vNUM+3}]')
    unmask(a, sEX)
    a('    s_branch K2_FOLD')
    unmask(a, sEX, 'K2_FOLD_DONE')
    a(f'    s_cmp_eq_u32 s{sMODE}, 0')
    a('    s_cbranch_scc1 K2_EPI')
    a(f'    s_add_u32 s{sPASS}, s{sPASS}, 1')
    a(f'    s_cmp_lt_u32 s{sPASS}, {NC}')
    a('    s_cbranch_scc0 K2_EPI')
    a('    s_barrier')
    a('    s_branch K2_PASS')
    a.label('K2_EPI')
    a(f'    s_mov_b32 s{sXT}, {L2_XT}')
    masked(a, f'v_cmp_gt_u32 vcc, {NPB*16}, v0', sEX, 'K2_FIN')
    a(f'    v_add_u32 v{vA+5}, v{vA+5}, v{vQ16}')
    a(f'    v_add_u32 v{vA+5}, {L2_UT}, v{vA+5}')
    a(f'    ds_read_b128 v[{vDEN}:{vDEN+3}], v{vA+5}')
    a(f'    v_lshrrev_b32 v{vA+6}, 4, v0')
    a(f'    v_mul_u32_u24 v{vA+6}, {XS}, v{vA+6}')
    a(f'    v_lshrrev_b32 v{vA+7}, 1, v{vQ16}')
    a(f'    v_add3_u32 v{vA+6}, v{vA+6}, v{vA+7}, s{sXT}')
    a(f'    ds_read_b64 v[{vX}:{vX+1}], v{vA+6}')
    a(f'    s_mov_b32 s{sT0}, {hex(f2u(1e-6))}')
    a('    s_waitcnt lgkmcnt(0)')
    a(f'    v_lshlrev_b32 v{vT}, 16, v{vX}')
    a(f'    v_and_b32 v{vT+1}, 0xffff0000, v{vX}')
    a(f'    v_lshlrev_b32 v{vT+2}, 16, v{vX+1}')
    a(f'    v_and_b32 v{vT+3}, 0xffff0000, v{vX+1}')
    for i in range(4):
        a(f'    v_add_f32 v{vDA+i}, s{sT0}, v{vDA+i}')
    for i in range(4):
        a(f'    v_rcp_f32 v{vDA+i}, v{vDA+i}')
    a('    s_waitcnt lgkmcnt(0)')
    for i in range(4):
        a(f'    v_fma_f32 v{vNA+i}, v{vNA+i}, v{vDA+i}, v{vDEN+i}    ; z = U + agg')
    for i in range(4):
        a(f'    v_mul_f32 v{vDEN+i}, 0, v{vNA+i}                     ; 0*z')
        a(f'    v_cmp_lt_f32 vcc, 0, v{vNA+i}')
        a('    s_nop 1')
        a(f'    v_cndmask_b32 v{vNA+i}, v{vDEN+i}, v{vNA+i}, vcc')
        a(f'    v_add_f32 v{vNA+i}, v{vNA+i}, v{vT+i}')
    a(f'    v_cvt_pk_bf16_f32 v{vDEN}, v{vNA}, v{vNA+1}')
    a(f'    v_cvt_pk_bf16_f32 v{vDEN+1}, v{vNA+2}, v{vNA+3}')
    a(f'    s_mul_i32 s{sT1}, s{sB}, {NPB*128}')
    a(f'    v_lshlrev_b32 v{vA+1}, 3, v0')
    a(f'    buffer_store_dwordx2 v[{vDEN}:{vDEN+1}], v{vA+1}, s[{SRD_OUT}:{SRD_OUT+3}], s{sT1} offen')
    a.label('K2_FIN')
    if STAMP:
        a('    s_mov_b64 exec, -1')
        a('    s_waitcnt vmcnt(0)')
    stamp(a, 7); stamp(a, 1, True)
    stamp_flush(a, sWAVE, sB, 1, 6)
    a.label('K2_END')
    a('    s_endpgm')

def kd(a, name, vgpr, sgpr):
    a(f'.amdhsa_kernel {name}')
    a(f'  .amdhsa_next_free_vgpr {vgpr}')
    a(f'  .amdhsa_next_free_sgpr {sgpr}')
    a(f'  .amdhsa_accum_offset {((vgpr+3)//4)*4}')
    a('  .amdhsa_group_segment_fixed_size 0')
    a('  .amdhsa_kernarg_size 96')
    a('  .amdhsa_user_sgpr_count 2')
    a('  .amdhsa_user_sgpr_kernarg_segment_ptr 1')
    a('  .amdhsa_system_sgpr_workgroup_id_x 1')
    a('  .amdhsa_float_denorm_mode_32 3')
    a('.end_amdhsa_kernel')

def main(out):
    a = Asm()
    a(f'; @launch kernel=k1_kernel grid=({K1_GRID},1,1) block=(1024,1,1) lds={K1_LDS}')
    a(f'; @launch kernel=k2_kernel grid=({NB},1,1) block=(1024,1,1) lds={K2_LDS}')
    a('.amdgcn_target "amdgcn-amd-amdhsa--gfx950"')
    a('.text')
    a('.globl k1_kernel')
    gen_k1(a)
    a('.globl k2_kernel')
    gen_k2(a)
    a('.section .rodata,"a"')
    a('.p2align 6')
    kd(a, 'k1_kernel', 96, 102 if STAMP else 72)
    a('.p2align 6')
    kd(a, 'k2_kernel', 124, 102 if STAMP else 80)
    a.l = [x for x in a.l if x is not None]
    open(out, 'w').write(a.text())

if __name__ == '__main__':
    main(sys.argv[1] if len(sys.argv) > 1 else 'standalone__edge_featured_mpnn_gatedgcn__graph.s')
```

```python
import sys, os, struct
def env(n, d): return os.environ.get(n, d)

N = 10000; E = 640000
NPB = 40; NB = 250; EPC = 2560; NC = 250
LOG2E = 1.4426950408889634
WS_REC  = 0
REC_STRIDE = EPC*5
WS_DESC = 3407872
DESC_STRIDE = 1024
WS_T    = 4194304
T_BYTES = (N+1)*256

STAMP = int(env('STAMP', '0'))
K1ST = env('K1ST', 'sc1')
PRIO = int(env('PRIO', '1'))
TFIRST = int(env('TFIRST', '1'))
WS_STAMP = 128 << 20
ST0 = 80

def f2u(f): return struct.unpack('<I', struct.pack('<f', f))[0]

class Asm:
    def __init__(self): self.l = []
    def __call__(self, s=''):
        for line in s.split('\n'): self.l.append(line)
    def label(self, n): self.l.append(n + ':')
    def text(self): return '\n'.join(self.l) + '\n'

def stamp(a, i, real=False):
    if STAMP:
        r = ST0 + 2*(8+i if real else i)
        a(f"    {'s_memrealtime' if (real or STAMP == 3) else 's_memtime'} s[{r}:{r+1}]")
def stamp_flush(a, wave_sgpr, wg_sgpr, kern, ws_lo):
    if not STAMP: return
    a('    s_waitcnt lgkmcnt(0)')
    a('    s_mov_b64 exec, 1')
    a('    v_mov_b32 v2, 0')
    if STAMP == 3:
        a('    s_load_dwordx2 s[12:13], s[0:1], 80')
        a('    s_waitcnt lgkmcnt(0)')
        if kern == 1:
            a('    s_sub_u32 s12, s12, 512')
            a('    s_subb_u32 s13, s13, 0')
        slots = [(0, 8, True), (1, 8, False), (2, 2, False), (3, 4, False), (4, 6, False), (5, 9, False)] if kern == 0 else \
                [(6, 8, True), (7, 8, False), (8, 1, False), (9, 2, False), (10, 4, False), (11, 5, False), (12, 6, False), (13, 9, False), (14, 6, True)]
        for slot, st, inv in slots:
            a(f'    v_mov_b32 v3, s{ST0+2*st}')
            if inv: a('    v_not_b32 v3, v3')
            a(f'    global_atomic_umax v2, v3, s[12:13] offset:{4*slot}')
        a('    s_waitcnt vmcnt(0)')
        return
    a(f'    s_add_u32 s12, s{ws_lo}, {WS_STAMP + kern*(4<<20)}')
    a(f'    s_addc_u32 s13, s{ws_lo+1}, 0')
    a(f'    s_mov_b32 s14, {4<<20}')
    a('    s_mov_b32 s15, 0x00020000')
    a(f'    s_lshl_b32 s16, s{wg_sgpr}, 4')
    a(f'    s_add_u32 s16, s16, s{wave_sgpr}')
    a(f'    s_lshl_b32 s16, s16, 6')
    for i in range(8):
        a(f'    v_mov_b32 v3, s{ST0+2*i}')
        a(f'    buffer_store_dword v3, v2, s[12:15], s16 offen offset:{4*i}')
    for i in range(2):
        a(f'    v_mov_b32 v3, s{ST0+2*(8+i)}')
        a(f'    buffer_store_dword v3, v2, s[12:15], s16 offen offset:{4*(10+i)}')
    a('    s_waitcnt vmcnt(0)')

def srd(a, sreg, lo, hi, nbytes, off=0, stride=0, nrec=None):
    if off:
        a(f'    s_add_u32 s{sreg}, s{lo}, {off}')
        a(f'    s_addc_u32 s{sreg+1}, s{hi}, 0')
    else:
        a(f'    s_mov_b32 s{sreg}, s{lo}')
        a(f'    s_mov_b32 s{sreg+1}, s{hi}')
    if stride:
        a(f'    s_and_b32 s{sreg+1}, s{sreg+1}, 0xffff')
        a(f'    s_or_b32 s{sreg+1}, s{sreg+1}, {stride << 16}')
        a(f'    s_mov_b32 s{sreg+2}, {nrec}')
    else:
        a(f'    s_mov_b32 s{sreg+2}, {nbytes}')
    a(f'    s_mov_b32 s{sreg+3}, 0x00020000')

def dpp_scan(a, v):
    for sh in (1, 2, 4, 8):
        a('    s_nop 1')
        a(f'    v_add_u32_dpp v{v}, v{v}, v{v} row_shr:{sh} row_mask:0xf bank_mask:0xf')
    a('    s_nop 1')
    a(f'    v_add_u32_dpp v{v}, v{v}, v{v} row_bcast:15 row_mask:0xa bank_mask:0xf')
    a('    s_nop 1')
    a(f'    v_add_u32_dpp v{v}, v{v}, v{v} row_bcast:31 row_mask:0xc bank_mask:0xf')

def masked(a, cond, exreg, skip=None):
    a(f'    {cond}')
    a(f'    s_and_saveexec_b64 s[{exreg}:{exreg+1}], vcc')
    if skip: a(f'    s_cbranch_execz {skip}')
def unmask(a, exreg, skip=None):
    if skip: a.label(skip)
    a(f'    s_mov_b64 exec, s[{exreg}:{exreg+1}]')

K1_GRID = NC
L1_HIST = 0; L1_START = 1024; L1_SYNC = 2048
L1_ST32 = 2304; L1_ST8 = L1_ST32 + EPC*4; L1_W = 15360
K1_LDS = L1_W + 16384
K1PF = int(env('K1PF', '0'))
XMAP = int(env('XMAP', '1'))
DESCST = env('DESCST', '')
RECST = env('RECST', K1ST)
TST = env('TST', K1ST)
TFIRST = int(env('TFIRST', '1'))

def gen_k1(a):
    a('.p2align 8')
    a('.type k1_kernel,@function')
    a.label('k1_kernel')
    a(f'    s_cmp_ge_u32 s2, {K1_GRID}')
    a('    s_cbranch_scc1 K1_END')
    stamp(a, 0); stamp(a, 0, True)
    if XMAP:
        a('    s_and_b32 s20, s2, 7')
        a('    s_lshr_b32 s21, s2, 3')
        a('    s_mul_i32 s22, s20, 31')
        a('    s_min_u32 s20, s20, 2')
        a('    s_add_u32 s22, s22, s20')
        a('    s_add_u32 s2, s22, s21')
    a('    v_lshrrev_b32 v1, 6, v0')
    a('    s_load_dwordx4 s[8:11], s[0:1], 16')
    a('    v_readfirstlane_b32 s20, v1')
    a('    s_load_dwordx2 s[4:5], s[0:1], 8      ; e_attr')
    a('    s_load_dwordx2 s[6:7], s[0:1], 88     ; ws')
    a('    v_and_b32 v2, 63, v0                   ; lane')
    if TFIRST:
        a('    s_cmp_lt_u32 s20, 6')
        a('    s_cbranch_scc1 K1_TABLE')
        a('    v_subrev_u32 v0, 384, v0')
        a('    s_sub_u32 s20, s20, 6')
    else:
        a('    s_cmp_ge_u32 s20, 10')
        a('    s_cbranch_scc1 K1_TABLE')
    a('    v_mov_b32 v5, 0')
    a('    v_lshlrev_b32 v6, 2, v0               ; t*4')
    masked(a, 'v_cmp_gt_u32 vcc, 256, v0', 30)
    a(f'    ds_write_b32 v6, v5 offset:{L1_HIST}')
    unmask(a, 30)
    a('    v_lshlrev_b32 v3, 4, v0               ; t*16')
    a('    v_lshlrev_b32 v4, 3, v0               ; t*8')
    a(f'    s_mul_i32 s21, s2, {EPC*4}')
    a(f'    s_mul_i32 s22, s2, {EPC*2}')
    a('    s_mov_b32 s23, 52429')
    a('    s_waitcnt lgkmcnt(0)')
    srd(a, 12, 10, 11, E*4)
    a('    buffer_load_dwordx4 v[8:11], v3, s[12:15], s21 offen     ; dst x4')
    srd(a, 16, 8, 9, E*4)
    a('    buffer_load_dwordx4 v[12:15], v3, s[16:19], s21 offen    ; src x4')
    srd(a, 24, 4, 5, E*2)
    a('    buffer_load_dwordx2 v[16:17], v4, s[24:27], s22 offen')
    srd(a, 32, 6, 7, NC*REC_STRIDE, off=WS_REC)
    srd(a, 36, 6, 7, NB*DESC_STRIDE, off=WS_DESC)
    a('    v_lshlrev_b32 v6, 4, v2                ; lane*16')
    a('    v_mul_u32_u24 v7, 20, v0')
    a('    v_lshlrev_b32 v18, 12, v2')
    a(f'    s_mul_i32 s25, s2, {REC_STRIDE}')
    a('    s_lshl_b32 s26, s2, 2')
    a('    s_mov_b32 s40, 0x06050400')
    a('    s_mov_b32 s41, 0x05040003')
    a('    s_mov_b32 s42, 0x03020500')
    a('    s_mov_b32 s43, 0x04000302')
    a('    s_mov_b32 s44, 0x03060100')
    a('    s_mov_b32 s45, 0x07030201')
    stamp(a, 1)
    a('    s_barrier')
    a('    v_mov_b32 v5, 1')
    a('    s_waitcnt vmcnt(2)')
    stamp(a, 2)
    for k in range(4):
        a(f'    v_mul_u32_u24 v{20+k}, s23, v{8+k}')
    for k in range(4):
        a(f'    v_lshrrev_b32 v{20+k}, 21, v{20+k}      ; bucket')
    for k in range(4):
        a(f'    v_lshlrev_b32 v{24+k}, 2, v{20+k}       ; bucket*4')
    for k in range(4):
        a(f'    ds_add_rtn_u32 v{28+k}, v{24+k}, v5 offset:{L1_HIST}')
    for k in range(4):
        a(f'    v_mul_u32_u24 v{20+k}, {NPB*4}, v{20+k}')
    for k in range(4):
        a(f'    v_lshlrev_b32 v{8+k}, 2, v{8+k}')
    for k in range(4):
        a(f'    v_sub_u32 v{20+k}, v{8+k}, v{20+k}')
    a('    s_waitcnt vmcnt(0)')
    a('    v_lshl_or_b32 v32, v16, 16, v12')
    a('    s_mov_b32 s24, 0xffff0000')
    a('    v_and_or_b32 v33, v16, s24, v13')
    a('    v_lshl_or_b32 v34, v17, 16, v14')
    a('    v_and_or_b32 v35, v17, s24, v15')
    a('    s_waitcnt lgkmcnt(0)')
    stamp(a, 3)
    a('    s_barrier')
    stamp(a, 4)
    a(f'    ds_read_b128 v[40:43], v6 offset:{L1_HIST}')
    a('    s_waitcnt lgkmcnt(0)')
    a('    v_add_u32 v44, v40, v41                ; h0+h1')
    a('    v_add_u32 v45, v44, v42')
    a('    v_add_u32 v46, v45, v43                ; sum4')
    a('    v_mov_b32 v47, v46')
    dpp_scan(a, 47)
    a('    v_sub_u32 v48, v47, v46')
    a('    v_add_u32 v49, v48, v40')
    a('    v_add_u32 v50, v48, v44')
    a('    v_add_u32 v51, v48, v45')
    a(f'    ds_write_b128 v6, v[48:51] offset:{L1_START}')
    a('    s_waitcnt lgkmcnt(0)')
    for k in range(4):
        a(f'    ds_read_b32 v{56+k}, v{24+k} offset:{L1_START}')
    for k in range(4):
        a(f'    v_lshl_or_b32 v{52+k}, v{40+k}, 16, v{48+k}')
    a('    s_waitcnt lgkmcnt(0)')
    for k in range(4):
        a(f'    v_add_u32 v{56+k}, v{56+k}, v{28+k}      ; position')
    for k in range(4):
        a(f'    ds_write_b8 v{56+k}, v{20+k} offset:{L1_ST8}')
        a(f'    v_lshlrev_b32 v{60+k}, 2, v{56+k}')
    for k in range(4):
        a(f'    ds_write_b32 v{60+k}, v{32+k} offset:{L1_ST32}')
    a('    s_waitcnt lgkmcnt(0)')
    stamp(a, 5)
    a('    s_barrier')
    a(f'    ds_read_b128 v[8:11], v3 offset:{L1_ST32}')
    a('    v_lshrrev_b32 v4, 2, v3                ; t*4')
    a(f'    ds_read_b32 v12, v4 offset:{L1_ST8}')
    a('    s_waitcnt lgkmcnt(0)')
    a('    v_perm_b32 v21, v9, v12, s40           ; d1 = L0 r1.b0 r1.b1 r1.b2')
    a('    v_perm_b32 v22, v10, v9, s41           ; r1.b3 . r2.b0 r2.b1')
    a('    v_perm_b32 v23, v11, v10, s43          ; r2.b2 r2.b3 . r3.b0')
    a('    v_mov_b32 v20, v8')
    a('    v_perm_b32 v22, v12, v22, s42          ; d2 : insert L1')
    a('    v_perm_b32 v23, v12, v23, s44          ; d3 : insert L2')
    a('    v_perm_b32 v24, v12, v11, s45          ; d4 = r3.b1 r3.b2 r3.b3 L3')
    a(f'    buffer_store_dwordx4 v[20:23], v7, s[32:35], s25 offen {RECST}')
    a(f'    buffer_store_dword v24, v7, s[32:35], s25 offen offset:16 {RECST}')
    a('    s_cmp_eq_u32 s20, 0')
    a('    s_cbranch_scc0 K1_SFIN')
    for k in range(4):
        a(f'    buffer_store_dword v{52+k}, v18, s[36:39], s26 offen offset:{1024*k} {DESCST}')
    a.label('K1_SFIN')
    if STAMP:
        stamp(a, 6)
        a('    s_waitcnt vmcnt(0)')
        stamp(a, 7); stamp(a, 1, True)
        stamp_flush(a, 20, 2, 0, 6)
    a('    s_endpgm')
    a.label('K1_TABLE')
    a('    s_load_dwordx2 s[40:41], s[0:1], 40   ; w_b')
    a('    s_load_dwordx2 s[42:43], s[0:1], 64   ; w_v')
    a('    s_load_dwordx2 s[44:45], s[0:1], 0    ; x')
    if K1PF:
        a('    s_load_dwordx2 s[60:61], s[0:1], 32   ; w_a')
        a('    s_load_dwordx4 s[64:67], s[0:1], 48   ; w_c, w_u')
        a('    s_load_dwordx2 s[62:63], s[0:1], 72   ; out')
    a('    s_mov_b32 s21, s20                     ; tw' if TFIRST else '    s_sub_u32 s21, s20, 10                 ; tw')
    a('    v_mov_b32 v5, 0')
    a('    v_lshlrev_b32 v6, 2, v2')
    a('    s_cmp_eq_u32 s21, 0')
    a('    s_cbranch_scc0 K1_T_NOZ')
    masked(a, 'v_cmp_gt_u32 vcc, 4, v2', 30)
    a(f'    ds_write_b32 v6, v5 offset:{L1_SYNC}')
    unmask(a, 30)
    a.label('K1_T_NOZ')
    a('    s_lshr_b32 s22, s21, 1')
    a('    s_lshl_b32 s22, s22, 4                 ; 16*rt')
    a('    v_and_b32 v4, 15, v2')
    a('    v_add_u32 v4, s22, v4')
    a('    v_lshrrev_b32 v5, 4, v2                ; g')
    a('    v_lshlrev_b32 v6, 7, v4')
    a('    v_lshl_add_u32 v6, v5, 4, v6')
    a(f'    s_mul_i32 s24, s2, {NPB*128}')
    a('    v_lshlrev_b32 v7, 4, v2                ; lane*16')
    a('    v_bfe_u32 v8, v2, 4, 1')
    a('    v_lshlrev_b32 v8, 1, v8')
    a('    v_and_b32 v9, 7, v2')
    a('    v_xor_b32 v8, v8, v9')
    a('    v_lshrrev_b32 v9, 3, v2')
    a('    v_lshlrev_b32 v9, 7, v9                ; (lane>>3)*128')
    a('    s_waitcnt lgkmcnt(0)')
    for i in range(3):
        a(f'    s_add_u32 s26, s21, {6*i}              ; p')
        a('    s_cmp_lt_u32 s26, 8')
        a('    s_cselect_b32 s48, s40, s42')
        a('    s_cselect_b32 s49, s41, s43')
        a('    s_mov_b32 s50, 8192')
        a('    s_mov_b32 s51, 0x00020000')
        a('    s_and_b32 s27, s26, 7')
        a('    s_lshl_b32 s27, s27, 10')
        a('    s_cmp_lt_u32 s26, 16')
        a(f'    s_cselect_b32 s27, s27, {1<<20}')
        a(f'    buffer_load_dwordx4 v[{48+4*i}:{51+4*i}], v7, s[48:51], s27 offen')
    srd(a, 36, 44, 45, N*128)
    a('    buffer_load_dwordx4 v[24:27], v6, s[36:39], s24 offen')
    a('    buffer_load_dwordx4 v[28:31], v6, s[36:39], s24 offen offset:64')
    if K1PF:
        a('    s_cmp_eq_u32 s21, 5')
        a('    s_cbranch_scc0 K1_T_NOPF')
        a('    v_lshlrev_b32 v60, 8, v2')
        a('    v_lshlrev_b32 v61, 7, v2')
        a('    global_load_dword v62, v61, s[60:61]')
        a('    global_load_dword v62, v61, s[66:67]')
        a('    v_mov_b32 v63, 0')
        a('    global_load_dword v62, v63, s[64:65]')
        a(f'    s_mul_i32 s26, s2, {NPB*128}')
        a('    v_mov_b32 v63, s26')
        a('    global_load_dword v62, v63, s[62:63]')
        srd(a, 52, 6, 7, WS_T + T_BYTES, off=0)
        a(f'    s_mul_i32 s26, s2, {REC_STRIDE}')
        a('    v_mov_b32 v63, s26')
        a('    buffer_load_dword v62, v63, s[52:55], 0 offen')
        a(f'    s_mul_i32 s26, s2, {NPB*256}')
        a(f'    s_add_u32 s26, s26, {WS_T}')
        a('    v_mov_b32 v63, s26')
        a('    buffer_load_dword v62, v63, s[52:55], 0 offen')
        a(f'    s_mul_i32 s26, s2, {DESC_STRIDE}')
        a(f'    s_add_u32 s26, s26, {WS_DESC}')
        a('    v_mov_b32 v63, s26')
        a('    buffer_load_dword v62, v63, s[52:55], 0 offen')
        a('    s_barrier')
        a('    s_waitcnt vmcnt(9)')
        a('    s_branch K1_T_PFJOIN')
        a.label('K1_T_NOPF')
    a('    s_barrier')
    a('    s_waitcnt vmcnt(2)')
    if K1PF: a.label('K1_T_PFJOIN')
    stamp(a, 1)
    for i in range(3):
        a(f'    s_add_u32 s26, s21, {6*i}              ; p')
        a('    s_cmp_lt_u32 s26, 16')
        a(f'    s_cbranch_scc0 K1_T_ST{i}')
        a('    s_and_b32 s27, s26, 1')
        a('    s_lshl_b32 s27, s27, 2')
        a('    v_xor_b32 v10, s27, v8')
        a('    v_lshl_add_u32 v10, v10, 4, v9')
        a('    s_lshl_b32 s27, s26, 10                ; m*8192 + (p&7)*1024 = p*1024')
        a('    v_add_u32 v10, s27, v10')
        a(f'    ds_write_b128 v10, v[{48+4*i}:{51+4*i}] offset:{L1_W}')
        a.label(f'K1_T_ST{i}')
    srd(a, 44, 6, 7, T_BYTES, off=WS_T)
    a('    s_waitcnt lgkmcnt(0)')
    a('    v_mov_b32 v10, 0')
    a('    v_mov_b32 v11, 1')
    a('    s_mov_b64 exec, 1')
    a(f'    ds_add_u32 v10, v11 offset:{L1_SYNC}')
    a('    s_mov_b64 exec, -1')
    a('    s_and_b32 s23, s21, 1                  ; half')
    a('    v_bfe_u32 v12, v2, 2, 2                ; r')
    a('    v_lshl_add_u32 v13, v5, 3, v12         ; rho')
    a('    v_lshlrev_b32 v13, 7, v13')
    a('    v_and_b32 v14, 1, v2')
    a('    v_lshl_add_u32 v13, v14, 3, v13        ; + (c&1)*8')
    a('    v_bfe_u32 v14, v2, 1, 1                ; c>>1')
    a('    v_lshrrev_b32 v12, 1, v12')
    a('    v_and_b32 v15, 1, v5                   ; g&1')
    a('    v_lshlrev_b32 v15, 1, v15')
    a('    v_or_b32 v12, v12, v15                 ; swz/2')
    a('    s_lshl_b32 s25, s23, 1')
    a('    v_xor_b32 v15, s25, v12')
    a('    v_lshl_or_b32 v15, v15, 1, v14')
    a('    v_lshl_add_u32 v16, v15, 4, v13')
    a('    s_add_u32 s25, s25, 1')
    a('    v_xor_b32 v15, s25, v12')
    a('    v_lshl_or_b32 v15, v15, 1, v14')
    a('    v_lshl_add_u32 v17, v15, 4, v13')
    for r in range(32, 48):
        a(f'    v_mov_b32 v{r}, 0')
    a.label('K1_T_SPIN')
    a(f'    ds_read_b32 v11, v10 offset:{L1_SYNC}')
    a('    s_waitcnt lgkmcnt(0)')
    a('    v_readfirstlane_b32 s26, v11')
    a('    s_cmp_lt_u32 s26, 6')
    a('    s_cbranch_scc1 K1_T_SPIN')
    stamp(a, 3)
    order = [(jj, ks, m) for jj in range(2) for ks in range(2) for m in range(2)]
    for i, (jj, ks, m) in enumerate(order):
        b = 64 + 4*i
        off = L1_W + m*8192 + ks*32*128
        a(f'    ds_read_b64_tr_b16 v[{b}:{b+1}], v{16+jj} offset:{off}')
        a(f'    ds_read_b64_tr_b16 v[{b+2}:{b+3}], v{16+jj} offset:{off+512}')
    a(f'    s_mov_b32 s27, {hex(f2u(-LOG2E))}')
    a('    s_mov_b32 s28, 0xffff0000')
    a('    s_mov_b32 s29, 0x80000000')
    a('    v_lshlrev_b32 v9, 8, v4')
    a('    v_lshl_add_u32 v9, v5, 4, v9')
    a('    s_lshl_b32 s25, s23, 7')
    a(f'    s_mul_i32 s26, s2, {NPB*256}')
    a('    s_add_u32 s25, s25, s26')
    a('    v_add_u32 v9, s25, v9')
    a(f'    v_cmp_gt_u32 vcc, {NPB}, v4')
    a(f'    v_mov_b32 v10, {1<<30}')
    a('    s_waitcnt vmcnt(0)' if not K1PF else '    s_waitcnt vmcnt(7)')
    a('    v_cndmask_b32 v9, v10, v9, vcc')
    if K1PF:
        a('    s_cmp_eq_u32 s21, 5')
        a('    s_cbranch_scc1 K1_T_XOK')
        a('    s_waitcnt vmcnt(0)')
        a.label('K1_T_XOK')
    for i, (jj, ks, m) in enumerate(order):
        b = 64 + 4*i
        a(f'    s_waitcnt lgkmcnt({min(15, 2*(7-i))})')
        acc = 32 + 8*m + 4*jj
        x = 24 + 4*ks
        a(f'    v_mfma_f32_16x16x32_bf16 v[{acc}:{acc+3}], v[{b}:{b+3}], v[{x}:{x+3}], v[{acc}:{acc+3}]')
    stamp(a, 4)
    a('    s_nop 4')
    for jj in range(2):
        R = range(4)
        p = lambda r: 32 + 4*jj + r
        q = lambda r: 40 + 4*jj + r
        t = lambda r: 10 + r
        if jj == 1: a('    s_nop 2')
        for r in R: a(f'    v_mul_f32 v{p(r)}, s27, v{p(r)}')
        for r in R: a(f'    v_cvt_f16_f32 v{p(r)}, v{p(r)}')
        for r in R: a(f'    v_and_b32 v{t(r)}, 0x7fffffff, v{q(r)}')
        for r in R: a(f'    v_and_b32 v{p(r)}, 0xffff, v{p(r)}')
        for r in R: a(f'    v_sub_u32 v{t(r)}, v{t(r)}, v{p(r)}')
        for r in R: a(f'    v_add_u32 v{t(r)}, 0x8000, v{t(r)}')
        for r in R: a(f'    v_max_i32 v{t(r)}, 0, v{t(r)}')
        for r in R: a(f'    v_and_or_b32 v{t(r)}, v{t(r)}, s28, v{p(r)}')
        for r in R: a(f'    v_and_or_b32 v{p(r)}, v{q(r)}, s29, v{t(r)}')
        a(f'    buffer_store_dwordx4 v[{32+4*jj}:{35+4*jj}], v9, s[44:47], 0 offen offset:{jj*64} {TST}')
    a('    s_cmp_eq_u32 s2, 0')
    a('    s_cbranch_scc0 K1_TFIN')
    a('    s_cmp_eq_u32 s21, 0')
    a('    s_cbranch_scc0 K1_TFIN')
    a('    v_mov_b32 v10, 0x7c00')
    a(f'    v_lshlrev_b32 v11, 2, v2')
    a(f'    v_add_u32 v11, {N*256}, v11')
    a(f'    buffer_store_dword v10, v11, s[44:47], 0 offen {TST}')
    a.label('K1_TFIN')
    stamp(a, 5)
    a('    s_barrier                              ; (ranks)')
    a('    s_barrier                              ; (scatter)')
    if STAMP:
        stamp(a, 6)
        a('    s_waitcnt vmcnt(0)')
        stamp(a, 7); stamp(a, 1, True)
        if STAMP == 3:
            a('    s_waitcnt lgkmcnt(0)')
            a(f'    s_mov_b32 s{ST0+4}, s{ST0+16}')
        else: stamp(a, 2)
        if TFIRST: a('    s_add_u32 s20, s20, 10')
        stamp_flush(a, 20, 2, 0, 6)
    a.label('K1_END')
    a('    s_endpgm')

CAP = 4096
TS = 272
L2_CNT = 0; L2_FLG = 256
L2_LIST = 512
L2_SLOT = L2_LIST + CAP*4
L2_W = L2_SLOT
L2_EAT = L2_SLOT + 56*512; L2_AT = L2_EAT + 48*TS; L2_UT = L2_AT + 48*TS
XS = 144
L2_XT = L2_UT + 48*TS
K2_LDS = L2_XT + 48*XS
U = 4
TPF = int(env('TPF', '1'))
PFPOS = int(env('PFPOS', '1'))
PFN = int(env('PFN', '40'))
PRT = [int(x) for x in env('PRT', '4,4,4').split(',')]

def gen_k2(a):
    sB = 2; sWAVE = 3
    SRD_DESC = 12; SRD_REC = 16; SRD_T = 20; SRD_W = 24; SRD_X = 28; SRD_OUT = 32; SRD_WC = 36
    sMODE = 40; sPASS = 41
    sG0 = 42; sG1 = 43; sGEND = 44; sLEFT = 45; sNODE = 46; sT0 = 47; sT1 = 48; sSAFE = 49; sGT = 50; sR = 51
    sEX = 52; sEAB = 54; sPR = 55; sPQ = 56; sLVL = 57; sSLOT = 58; sNR = 59; sPQ2 = 60; sXT = 61; sJ = 58
    sM = 64
    vLANE = 1
    vWC = 4; vEA = 8; vDEN = 12; vNUM = 16; vT = 20; vDAT = 24; vP = 40; vEV = 48
    vSA = 50; vACC = 51; vEAA = 52; vGS = 53; vQ16 = 54; vNG = 55
    vDA = 56; vNA = 60
    vX = 64
    vFL = 66
    vGE = 67
    vXO = 68
    vR = 76
    vB = 84
    vRK = 92
    vLA = 100
    vA = 108
    vCNT = 118; vRO = 119; vI = 120; vRM = 121; vTRA = 122; vXRA = 123; vROW = 50; vPFA = 51
    vLC = 12
    vPF = 16
    vXO2 = vXO
    SRD_LOC = 8; SRD_PF = 24
    vW = 24; vOP = 24; vAC = 40

    a('.p2align 8')
    a('.type k2_kernel,@function')
    a.label('k2_kernel')
    a(f'    s_cmp_ge_u32 s2, {NB}')
    a('    s_cbranch_scc1 K2_END')
    stamp(a, 0); stamp(a, 0, True)
    if XMAP:
        a(f'    s_and_b32 s{sT0}, s2, 7')
        a(f'    s_lshr_b32 s{sJ}, s2, 3')
        a(f'    s_mul_i32 s{sT1}, s{sT0}, 31')
        a(f'    s_min_u32 s{sT0}, s{sT0}, 2')
        a(f'    s_add_u32 s{sT1}, s{sT1}, s{sT0}')
        a(f'    s_add_u32 s2, s{sT1}, s{sJ}')
    else:
        a(f'    s_lshr_b32 s{sJ}, s2, 3')
    a('    s_load_dwordx2 s[6:7], s[0:1], 88      ; ws')
    a('    s_load_dwordx2 s[4:5], s[0:1], 0       ; x')
    a('    s_load_dwordx2 s[8:9], s[0:1], 32      ; w_a')
    a('    s_load_dwordx4 s[60:63], s[0:1], 48    ; w_c, w_u')
    a('    s_load_dwordx2 s[10:11], s[0:1], 72    ; out')
    a(f'    v_and_b32 v{vLANE}, 63, v0')
    a(f'    v_lshrrev_b32 v{vA}, 6, v0')
    a(f'    v_and_b32 v{vQ16}, 15, v0')
    a(f'    v_readfirstlane_b32 s{sWAVE}, v{vA}')
    a(f'    v_lshlrev_b32 v{vQ16}, 4, v{vQ16}      ; q*16')
    a(f'    v_and_b32 v{vA}, 0x3fc, v0             ; (t>>2)*4')
    a(f'    v_cmp_gt_u32 vcc, {NC*4}, v0')
    a(f'    v_mov_b32 v{vA+8}, {1<<30}')
    a(f'    s_lshl_b32 s{sT0}, s{sB}, 10')
    a(f'    v_cndmask_b32 v{vA}, v{vA+8}, v{vA}, vcc')
    for i in range(4):
        a(f'    v_mov_b32 v{vDA+i}, 0')
        a(f'    v_mov_b32 v{vNA+i}, 0')
    masked(a, 'v_cmp_gt_u32 vcc, 4, v0', sEX)
    a(f'    v_lshlrev_b32 v{vA+5}, 2, v0')
    a(f'    ds_write_b32 v{vA+5}, v{vDA} offset:{L2_FLG}')
    unmask(a, sEX)
    a(f'    s_mov_b32 s{sMODE}, 0')
    a(f'    s_mov_b32 s{sPASS}, 0')
    a(f'    v_mov_b32 v{vEV}, 0')
    a(f'    v_mov_b32 v{vEV+1}, 0')
    a(f'    v_lshrrev_b32 v{vA+1}, 5, v{vLANE}')
    a(f'    v_lshl_add_u32 v{vFL}, v{vA+1}, 8, v{vQ16}')
    a(f'    v_bfe_u32 v{vA+1}, v{vLANE}, 4, 1')
    a(f'    v_lshl_add_u32 v{vFL}, v{vA+1}, 3, v{vFL}')
    a.label('K2_PASS')
    for i in range(4):
        a(f'    v_mov_b32 v{vA+6+i}, {N}')
    a(f'    v_lshlrev_b32 v{vA+5}, 4, v0')
    a(f'    ds_write_b128 v{vA+5}, v[{vA+6}:{vA+9}] offset:{L2_LIST}')
    masked(a, 'v_cmp_gt_u32 vcc, 64, v0', sEX)
    a(f'    v_lshlrev_b32 v{vA+4}, 2, v0')
    a(f'    v_mov_b32 v{vA+3}, 0')
    a(f'    ds_write_b32 v{vA+4}, v{vA+3} offset:{L2_CNT}')
    unmask(a, sEX)
    a(f'    s_cmp_eq_u32 s{sMODE}, 0')
    a('    s_cbranch_scc0 K2_SLOWPARAM')
    a('    s_waitcnt lgkmcnt(0)')
    srd(a, SRD_DESC, 6, 7, NB*DESC_STRIDE, off=WS_DESC)
    a(f'    buffer_load_dword v{vCNT}, v{vA}, s[{SRD_DESC}:{SRD_DESC+3}], s{sT0} offen')
    a(f'    s_cmp_lt_u32 s{sWAVE}, 8')
    a(f'    s_cselect_b32 s{SRD_W}, s8, s62')
    a(f'    s_cselect_b32 s{SRD_W+1}, s9, s63')
    a(f'    s_mov_b32 s{SRD_W+2}, 8192')
    a(f'    s_mov_b32 s{SRD_W+3}, 0x00020000')
    srd(a, SRD_X, 4, 5, N*128)
    srd(a, SRD_WC, 60, 61, 128)
    a(f'    v_and_b32 v{vA+1}, 511, v0')
    a(f'    v_lshlrev_b32 v{vA+1}, 4, v{vA+1}')
    a(f'    buffer_load_dwordx4 v[{vW}:{vW+3}], v{vA+1}, s[{SRD_W}:{SRD_W+3}], 0 offen')
    a(f'    v_lshlrev_b32 v{vA+4}, 4, v0')
    a(f'    v_cmp_gt_u32 vcc, 384, v0')
    a(f'    v_mov_b32 v{vA+3}, {1<<30}')
    a(f'    s_mul_i32 s{sT1}, s{sB}, {NPB*128}')
    a(f'    v_cndmask_b32 v{vA+4}, v{vA+3}, v{vA+4}, vcc')
    a(f'    buffer_load_dwordx4 v[{vXO}:{vXO+3}], v{vA+4}, s[{SRD_X}:{SRD_X+3}], s{sT1} offen')
    a(f'    v_lshrrev_b32 v{vA+7}, 1, v{vQ16}      ; q*8 (wc)')
    a(f'    buffer_load_dwordx2 v[{vWC}:{vWC+1}], v{vA+7}, s[{SRD_WC}:{SRD_WC+3}], 0 offen')
    a('    s_barrier')
    srd(a, SRD_OUT, 10, 11, N*128)
    srd(a, SRD_REC, 6, 7, NC*REC_STRIDE + 64, off=WS_REC)
    srd(a, SRD_T, 6, 7, 0, off=WS_T, stride=256, nrec=N+1)
    a(f'    v_lshrrev_b32 v{vA}, 2, v0             ; c')
    a(f'    v_mul_u32_u24 v{vRO}, {REC_STRIDE}, v{vA}')
    a(f'    v_and_b32 v{vI}, 3, v0')
    a(f'    v_lshlrev_b32 v{vI}, 2, v{vI}')
    a(f'    v_mad_u32_u24 v{vRO}, v{vI}, 5, v{vRO}')
    a(f'    s_mov_b32 s{sT1}, 16')
    a('    s_waitcnt vmcnt(3)                      ; descriptor')
    stamp(a, 1)
    a(f'    v_and_b32 v{vA+1}, 0xffff, v{vCNT}      ; start')
    a(f'    v_lshrrev_b32 v{vCNT}, 16, v{vCNT}      ; cnt')
    a(f'    v_mad_u32_u24 v{vRO}, v{vA+1}, 5, v{vRO}')
    a('    s_branch K2_PARAMDONE')
    a.label('K2_SLOWPARAM')
    a(f'    s_lshl_b32 s{sT0}, s{sB}, 10')
    a(f'    s_lshl_b32 s{sT1}, s{sPASS}, 2')
    a(f'    s_add_u32 s{sT0}, s{sT0}, s{sT1}')
    a(f'    v_mov_b32 v{vA}, 0')
    a(f'    buffer_load_dword v{vCNT}, v{vA}, s[{SRD_DESC}:{SRD_DESC+3}], s{sT0} offen')
    a(f'    s_mul_i32 s{sT0}, s{sPASS}, {REC_STRIDE}')
    a('    s_waitcnt vmcnt(0) lgkmcnt(0)')
    a('    s_barrier')
    a(f'    v_and_b32 v{vA+1}, 0xffff, v{vCNT}')
    a(f'    v_lshlrev_b32 v{vI}, 2, v0')
    a(f'    v_add_u32 v{vA+1}, v{vA+1}, v{vI}')
    a(f'    v_mul_u32_u24 v{vRO}, 5, v{vA+1}')
    a(f'    v_add_u32 v{vRO}, s{sT0}, v{vRO}')
    a(f'    v_lshrrev_b32 v{vCNT}, 16, v{vCNT}')
    a(f'    s_mov_b32 s{sT1}, 4096')
    a.label('K2_PARAMDONE')
    a(f'    v_sub_u32 v{vRM}, v{vCNT}, v{vI}')
    a(f'    s_mul_i32 s{sT0}, s{sT1}, 5')
    a(f'    s_mov_b32 s{sNR}, 0')
    for r in range(2):
        m0 = sM + 8*r
        if r == 1:
            a(f'    v_subrev_u32 v{vRM}, s{sT1}, v{vRM}')
        for h in range(4):
            a(f'    v_cmp_gt_i32 s[{m0+2*h}:{m0+2*h+1}], v{vRM}, {h}' if h else f'    v_cmp_lt_i32 s[{m0}:{m0+1}], 0, v{vRM}')
        a(f'    s_cmp_eq_u64 s[{m0}:{m0+1}], 0')
        a(f'    s_cbranch_scc1 K2_LD_DONE')
        a(f'    s_mov_b64 exec, s[{m0}:{m0+1}]')
        a(f'    buffer_load_dwordx4 v[{vR+4*r}:{vR+4*r+3}], v{vRO}, s[{SRD_REC}:{SRD_REC+3}], 0 offen')
        a(f'    buffer_load_dword v{vLC+r}, v{vRO}, s[{SRD_REC}:{SRD_REC+3}], 0 offen offset:16')
        a(f'    s_mov_b64 exec, -1')
        a(f'    s_mov_b32 s{sNR}, {r+1}')
        if r < 1:
            a(f'    v_add_u32 v{vRO}, s{sT0}, v{vRO}')
    a.label('K2_LD_DONE')
    a(f'    s_or_b32 s{sT0}, s{sMODE}, s{sPASS}')
    a(f'    s_cmp_eq_u32 s{sT0}, 0')
    a('    s_cbranch_scc0 K2_LATER_PASS')
    a(f'    v_lshrrev_b32 v{vA+8}, 3, v0')
    a(f'    v_mul_u32_u24 v{vA+8}, {XS}, v{vA+8}')
    a(f'    v_and_b32 v{vA+7}, 7, v0')
    a(f'    v_lshl_add_u32 v{vA+8}, v{vA+7}, 4, v{vA+8}')
    a(f'    v_add_u32 v{vA+8}, {L2_XT}, v{vA+8}')
    NPF = 1 if TPF else 0
    a(f'    v_bfe_u32 v{vA+1}, v0, 4, 1')
    a(f'    v_bfe_u32 v{vA+2}, v0, 6, 1')
    a(f'    v_lshlrev_b32 v{vA+1}, 1, v{vA+1}')
    a(f'    v_lshl_or_b32 v{vA+1}, v{vA+2}, 2, v{vA+1}')
    a(f'    v_and_b32 v{vA+2}, 7, v0')
    a(f'    v_xor_b32 v{vA+1}, v{vA+1}, v{vA+2}')
    a(f'    v_lshrrev_b32 v{vA+2}, 3, v0')
    a(f'    v_lshlrev_b32 v{vA+2}, 7, v{vA+2}')
    a(f'    v_lshl_add_u32 v{vA+9}, v{vA+1}, 4, v{vA+2}')
    a(f'    v_lshrrev_b32 v{vA+3}, 4, v{vLANE}     ; g')
    a(f'    v_bfe_u32 v{vA}, v{vLANE}, 2, 2        ; r')
    a(f'    v_lshl_add_u32 v{vA+1}, v{vA+3}, 3, v{vA}')
    a(f'    v_lshlrev_b32 v{vA+1}, 7, v{vA+1}')
    a(f'    v_and_b32 v{vA+2}, 1, v{vLANE}')
    a(f'    v_lshl_add_u32 v{vA+1}, v{vA+2}, 3, v{vA+1}')
    a(f'    v_lshrrev_b32 v{vA}, 1, v{vA}')
    a(f'    v_and_b32 v{vA+2}, 1, v{vA+3}')
    a(f'    v_lshl_or_b32 v{vA}, v{vA+2}, 1, v{vA}     ; swz/2')
    a(f'    s_and_b32 s{sT0}, s{sWAVE}, 3')
    a(f'    v_xor_b32 v{vA}, s{sT0}, v{vA}')
    a(f'    v_bfe_u32 v{vA+2}, v{vLANE}, 1, 1')
    a(f'    v_lshl_or_b32 v{vA}, v{vA}, 1, v{vA+2}')
    a(f'    v_lshl_add_u32 v{vTRA}, v{vA}, 4, v{vA+1}')
    a(f'    s_lshr_b32 s{sT1}, s{sWAVE}, 2')
    a(f'    s_lshl_b32 s{sT1}, s{sT1}, 4')
    a(f'    v_and_b32 v{vA+2}, 15, v{vLANE}')
    a(f'    v_add_u32 v{vROW}, s{sT1}, v{vA+2}     ; row')
    a(f'    v_mul_u32_u24 v{vA+1}, {XS}, v{vROW}')
    a(f'    v_lshl_add_u32 v{vA+1}, v{vA+3}, 4, v{vA+1}')
    a(f'    v_add_u32 v{vXRA}, {L2_XT}, v{vA+1}')
    a(f'    v_mul_u32_u24 v{vA+4}, {TS}, v{vROW}')
    a(f'    v_lshl_add_u32 v{vA+4}, v{vA+3}, 4, v{vA+4}')
    a(f'    s_lshl_b32 s{sT0}, s{sT0}, 6')
    a(f'    s_add_u32 s{sT0}, s{sT0}, {L2_EAT}')
    a(f'    v_add_u32 v{vEAA}, s{sT0}, v{vA+4}')
    if TPF:
        srd(a, SRD_PF, 6, 7, T_BYTES, off=WS_T)
        a(f'    s_mul_i32 s{sT0}, s{sJ}, {640*128}')
        a(f'    s_mul_i32 s{sT1}, s{sWAVE}, {40*128}')
        a(f'    s_add_u32 s{sJ}, s{sT0}, s{sT1}')
        a(f'    v_lshlrev_b32 v{vA+3}, 7, v{vLANE}')
        a(f'    v_cmp_gt_u32 vcc, {PFN}, v{vLANE}')
        a(f'    v_mov_b32 v{vA+4}, {1<<30}')
        a('    s_nop 0')
        a(f'    v_cndmask_b32 v{vPFA}, v{vA+4}, v{vA+3}, vcc')
    a(f'    v_mov_b32 v{vA+2}, 1')
    a(f'    s_waitcnt vmcnt(0)')
    if TPF and PFPOS == 1:
        a(f'    buffer_load_dword v{vPF}, v{vPFA}, s[{SRD_PF}:{SRD_PF+3}], s{sJ} offen')
    a('    s_branch K2_RANKS')
    a.label('K2_LATER_PASS')
    a(f'    v_mov_b32 v{vA+2}, 1')
    a('    s_waitcnt vmcnt(0)')
    a.label('K2_RANKS')
    stamp(a, 2)
    for r in range(2):
        a(f'    s_cmp_le_u32 s{sNR}, {r}')
        a('    s_cbranch_scc1 K2_RK_DONE')
        d = vR + 4*r
        a(f'    v_and_b32 v{vLA+4*r}, 0xff, v{d+1}')
        a(f'    v_bfe_u32 v{vLA+4*r+1}, v{d+2}, 8, 8')
        a(f'    v_bfe_u32 v{vLA+4*r+2}, v{d+3}, 16, 8')
        a(f'    v_lshrrev_b32 v{vLA+4*r+3}, 24, v{vLC+r}')
        for h in range(4):
            k = 4*r + h
            a(f'    s_mov_b64 exec, s[{sM+2*k}:{sM+2*k+1}]')
            a(f'    ds_add_rtn_u32 v{vRK+k}, v{vLA+k}, v{vA+2} offset:{L2_CNT}')
        a('    s_mov_b64 exec, -1')
        a(f'    v_alignbyte_b32 v{d+1}, v{d+2}, v{d+1}, 1')
        a(f'    v_alignbyte_b32 v{d+2}, v{d+3}, v{d+2}, 2')
        a(f'    v_alignbyte_b32 v{d+3}, v{vLC+r}, v{d+3}, 3')
    a.label('K2_RK_DONE')
    masked(a, f'v_cmp_lt_u32 vcc, 32, v{vCNT}', sEX, 'K2_NOOVF')
    a(f'    v_mov_b32 v{vA+3}, 0')
    a(f'    ds_write_b32 v{vA+3}, v{vA+2} offset:{L2_FLG}')
    unmask(a, sEX, 'K2_NOOVF')
    a(f'    s_or_b32 s{sT0}, s{sMODE}, s{sPASS}')
    a(f'    s_cmp_eq_u32 s{sT0}, 0')
    a('    s_cbranch_scc0 K2_NOWST')
    a(f'    ds_write_b128 v{vA+9}, v[{vW}:{vW+3}] offset:{L2_W}')
    a(f'    s_cmp_lt_u32 s{sWAVE}, 6')
    a('    s_cbranch_scc0 K2_NOXST')
    a(f'    ds_write_b128 v{vA+8}, v[{vXO}:{vXO+3}]')
    a.label('K2_NOXST')
    a.label('K2_NOWST')
    a(f'    v_lshlrev_b32 v{vA+1}, 2, v{vLANE}')
    a(f'    v_mov_b32 v{vA}, 0')
    a('    s_waitcnt lgkmcnt(0)')
    stamp(a, 3)
    a('    s_barrier')
    stamp(a, 4)
    if TPF and PFPOS == 0:
        a(f'    s_or_b32 s{sT0}, s{sMODE}, s{sPASS}')
        a(f'    s_cmp_eq_u32 s{sT0}, 0')
        a('    s_cbranch_scc0 K2_NOPF')
        a(f'    buffer_load_dword v{vPF}, v{vPFA}, s[{SRD_PF}:{SRD_PF+3}], s{sJ} offen')
        a.label('K2_NOPF')
    a(f'    ds_read_b32 v{vNG}, v{vA+1} offset:{L2_CNT}')
    a(f'    ds_read_b32 v{vA+4}, v{vA} offset:{L2_FLG}')
    a('    s_waitcnt lgkmcnt(1)')
    a(f'    v_add_u32 v{vNG}, 3, v{vNG}')
    a(f'    v_lshrrev_b32 v{vNG}, 2, v{vNG}')
    a(f'    v_mov_b32 v{vGE}, v{vNG}')
    dpp_scan(a, vGE)
    a('    s_waitcnt lgkmcnt(0)')
    a(f'    v_readlane_b32 s{sGT}, v{vGE}, {NPB-1}')
    a(f'    v_sub_u32 v{vGS}, v{vGE}, v{vNG}')
    a(f'    v_readfirstlane_b32 s{sT0}, v{vA+4}')
    a(f'    v_lshlrev_b32 v{vA+6}, 4, v{vGS}')
    a(f'    v_cmp_lt_u32 vcc, {NPB}, v{vLANE}')
    a(f'    s_add_u32 s{sR}, s{sGT}, 15')
    a(f'    s_lshr_b32 s{sR}, s{sR}, 4')
    a(f'    v_cndmask_b32 v{vGS}, v{vGS}, -1, vcc')
    a(f'    s_cmp_eq_u32 s{sMODE}, 0')
    a('    s_cbranch_scc0 K2_NOSWITCH')
    a(f'    s_cmp_gt_u32 s{sGT}, {(CAP - 64)//4}')
    a(f'    s_cselect_b32 s{sT1}, 1, 0')
    a(f'    s_or_b32 s{sT0}, s{sT0}, s{sT1}')
    a(f'    s_cmp_eq_u32 s{sT0}, 0')
    a('    s_cbranch_scc1 K2_NOSWITCH')
    a(f'    s_mov_b32 s{sNR}, 0')
    a(f'    s_mov_b32 s{sGT}, 0')
    a(f'    s_mov_b32 s{sR}, 0')
    a(f'    s_mov_b32 s{sMODE}, 2')
    a.label('K2_NOSWITCH')
    for r in range(2):
        a(f'    s_cmp_le_u32 s{sNR}, {r}')
        a('    s_cbranch_scc1 K2_LK_DONE')
        for h in range(4):
            k = 4*r + h
            a(f'    ds_bpermute_b32 v{vB+k}, v{vLA+k}, v{vA+6}')
    a.label('K2_LK_DONE')
    a(f'    s_cmp_eq_u32 s{sPASS}, 0')
    a('    s_cbranch_scc0 K2_NOTAB')
    a(f'    s_cmp_eq_u32 s{sMODE}, 1')
    a('    s_cbranch_scc1 K2_NOTAB')
    a(f'    s_cmp_lt_u32 s{sWAVE}, 12')
    a('    s_cbranch_scc0 K2_WC')
    a(f'    ds_read_b128 v[{vXO}:{vXO+3}], v{vXRA}')
    a(f'    ds_read_b128 v[{vXO+4}:{vXO+7}], v{vXRA} offset:64')
    order = [(m, ks) for ks in range(2) for m in range(2)]
    for i, (m, ks) in enumerate(order):
        b = vOP + 4*i
        off = L2_W + m*8192 + ks*32*128
        a(f'    ds_read_b64_tr_b16 v[{b}:{b+1}], v{vTRA} offset:{off}')
        a(f'    ds_read_b64_tr_b16 v[{b+2}:{b+3}], v{vTRA} offset:{off+512}')
    for i, (m, ks) in enumerate(order):
        b = vOP + 4*i
        a(f'    s_waitcnt lgkmcnt({2*(3-i)})')
        acc = vAC + 4*m; x = vXO2 + 4*ks
        c = '0' if ks == 0 else f'v[{acc}:{acc+3}]'
        a(f'    v_mfma_f32_16x16x32_bf16 v[{acc}:{acc+3}], v[{b}:{b+3}], v[{x}:{x+3}], {c}')
    a(f'    s_mov_b32 s{sT0}, {hex(f2u(-LOG2E))}')
    a(f'    s_mov_b32 s{sT1}, {hex(f2u(60.0))}')
    a('    s_nop 6')
    for i in range(4):
        a(f'    v_mul_f32 v{vAC+i}, s{sT0}, v{vAC+i}')
    a(f'    ds_write_b128 v{vEAA}, v[{vAC+4}:{vAC+7}] offset:{L2_UT-L2_EAT}')
    a(f'    ds_write_b128 v{vEAA}, v[{vAC}:{vAC+3}] offset:{L2_AT-L2_EAT}')
    for i in range(4):
        a(f'    v_exp_f32 v{vOP+i}, v{vAC+i}')
    a(f'    v_max3_f32 v{vA+5}, |v{vAC}|, |v{vAC+1}|, |v{vAC+2}|')
    a(f'    v_max_f32 v{vA+5}, v{vA+5}, |v{vAC+3}|')
    a(f'    ds_write_b128 v{vEAA}, v[{vOP}:{vOP+3}]')
    a(f'    v_cmp_nle_f32 vcc, v{vA+5}, s{sT1}')
    a(f'    v_cmp_gt_u32 s[{sEX}:{sEX+1}], {NPB}, v{vROW}')
    a(f'    s_and_b64 vcc, vcc, s[{sEX}:{sEX+1}]')
    a(f'    s_and_saveexec_b64 s[{sEX}:{sEX+1}], vcc')
    a('    s_cbranch_execz K2_GUARD_OK')
    a(f'    v_mov_b32 v{vA+5}, 1')
    a(f'    v_mov_b32 v{vA+7}, 0')
    a(f'    ds_write_b32 v{vA+7}, v{vA+5} offset:{L2_FLG+4}')
    unmask(a, sEX, 'K2_GUARD_OK')
    a.label('K2_WC')
    a(f'    s_mov_b32 s{sT0}, {hex(f2u(-LOG2E))}')
    a(f'    v_and_b32 v{vWC+3}, 0xffff0000, v{vWC+1}')
    a(f'    v_lshlrev_b32 v{vWC+2}, 16, v{vWC+1}')
    a(f'    v_and_b32 v{vWC+1}, 0xffff0000, v{vWC}')
    a(f'    v_lshlrev_b32 v{vWC}, 16, v{vWC}')
    for k in range(4):
        a(f'    v_mul_f32 v{vWC+k}, s{sT0}, v{vWC+k}')
    for k in range(U):
        a(f'    v_mov_b32 v{vP+2*k+1}, v{vQ16}')
    a.label('K2_NOTAB')
    a('    s_waitcnt lgkmcnt(0)')
    for r in range(2):
        a(f'    s_cmp_le_u32 s{sNR}, {r}')
        a('    s_cbranch_scc1 K2_SC_DONE')
        for h in range(4):
            k = 4*r + h
            a(f'    s_mov_b64 exec, s[{sM+2*k}:{sM+2*k+1}]')
            a(f'    v_lshl_add_u32 v{vB+k}, v{vRK+k}, 2, v{vB+k}')
            a(f'    ds_write_b32 v{vB+k}, v{vR+k} offset:{L2_LIST}')
    a.label('K2_SC_DONE')
    a('    s_mov_b64 exec, -1')
    a(f'    s_mul_i32 s{sG0}, s{sR}, s{sWAVE}')
    a(f'    s_add_u32 s{sG1}, s{sG0}, s{sR}')
    a(f'    s_min_u32 s{sG1}, s{sG1}, s{sGT}')
    a(f'    v_lshrrev_b32 v{vSA}, 4, v{vLANE}')
    a(f'    v_lshlrev_b32 v{vSA}, 2, v{vSA}         ; slot*4')
    a(f'    s_lshl_b32 s{sT0}, s{sG0}, 4')
    a(f'    v_add_u32 v{vSA}, s{sT0}, v{vSA}')
    a(f'    v_mov_b32 v{vA}, 0')
    a('    s_waitcnt lgkmcnt(0)')
    a('    s_barrier')
    stamp(a, 5)

    def tload(k):
        d = vDAT + 4*k
        a(f'    buffer_load_dwordx4 v[{d}:{d+3}], v[{vP+2*k}:{vP+2*k+1}], s[{SRD_T}:{SRD_T+3}], 0 idxen offen')

    a(f'    s_cmp_ge_u32 s{sG0}, s{sG1}')
    a('    s_cbranch_scc1 K2_MAIN_DONE')
    a(f'    ds_read_b32 v{vA+5}, v{vA} offset:{L2_FLG+4}')
    for k in range(U):
        a(f'    ds_read_u16 v{vP+2*k}, v{vSA} offset:{L2_LIST + 16*k}')
    a(f'    ds_read_u16_d16_hi v{vEV}, v{vSA} offset:{L2_LIST + 2}')
    if PRIO:
        a(f'    s_add_u32 s{sT0}, s{sR}, 3')
        a(f'    s_lshr_b32 s{sT0}, s{sT0}, 2            ; iterations')
        for n, reg in zip(PRT, (sPR, sPQ, sPQ2)):
            a(f'    s_mul_i32 s{reg}, s{sT0}, {n}')
            a(f'    s_lshr_b32 s{reg}, s{reg}, 4')
            a(f'    s_add_u32 s{reg}, s{reg}, 1')
        a(f'    s_mov_b32 s{sLVL}, 3')
        a('    s_setprio 3')
    a(f'    s_mov_b32 s{sGEND}, s{sG0}')
    a('    s_waitcnt lgkmcnt(0)')
    for k in range(U):
        tload(k)
    a(f'    v_readfirstlane_b32 s{sSAFE}, v{vA+5}')
    a(f'    ds_read_u16 v{vP}, v{vSA} offset:{L2_LIST + 16*U}')
    a(f'    s_cmp_eq_u32 s{sSAFE}, 0')
    a(f'    s_mov_b32 s{sEAB}, {L2_AT}')
    a(f'    s_cselect_b32 s{sEAB}, {L2_EAT}, s{sEAB}')
    a('    s_cbranch_scc0 K2S_ENTER')
    a('    s_branch K2F_ENTER')

    def next_node():
        a(f'    v_cmp_ge_u32 vcc, s{sGEND}, v{vGS}')
        a(f'    s_bcnt1_i32_b64 s{sT0}, vcc')
        a(f'    s_sub_u32 s{sNODE}, s{sT0}, 1')
        a(f'    v_readlane_b32 s{sT1}, v{vGS}, s{sT0}')
        a(f'    s_mul_i32 s{sT0}, s{sNODE}, {TS}')
        a(f'    s_add_u32 s{sT0}, s{sT0}, s{sEAB}')
        a(f'    v_add_u32 v{vEAA}, s{sT0}, v{vQ16}')
        a(f'    ds_read_b128 v[{vEA}:{vEA+3}], v{vEAA}')
        a(f'    s_min_u32 s{sT1}, s{sT1}, s{sG1}')
        a(f'    s_sub_u32 s{sLEFT}, s{sT1}, s{sGEND}')
        a(f'    s_sub_u32 s{sLEFT}, s{sLEFT}, 1')
        a(f'    s_mov_b32 s{sGEND}, s{sT1}')

    def set_slot():
        a(f'    s_add_u32 s{sSLOT}, s{sNODE}, s{sWAVE}')
        a(f'    s_lshl_b32 s{sSLOT}, s{sSLOT}, 9')

    def flush():
        a(f'    v_add_u32 v{vACC}, s{sSLOT}, v{vFL}')
        for i in range(4):
            a(f'    v_permlane32_swap_b32 v{vDEN+i}, v{vNUM+i}')
        a(f'    v_pk_add_f32 v[{vDEN}:{vDEN+1}], v[{vDEN}:{vDEN+1}], v[{vNUM}:{vNUM+1}]')
        a(f'    v_pk_add_f32 v[{vDEN+2}:{vDEN+3}], v[{vDEN+2}:{vDEN+3}], v[{vNUM+2}:{vNUM+3}]')
        a('    s_nop 1')
        a(f'    v_permlane16_swap_b32 v{vDEN}, v{vDEN+2}')
        a(f'    v_permlane16_swap_b32 v{vDEN+1}, v{vDEN+3}')
        a(f'    v_pk_add_f32 v[{vNUM}:{vNUM+1}], v[{vDEN}:{vDEN+1}], v[{vDEN+2}:{vDEN+3}]')
        a(f'    ds_write_b64 v{vACC}, v[{vNUM}:{vNUM+1}] offset:{L2_SLOT}')

    def step(k, safe, init):
        d = vDAT + 4*k
        ev = vEV + (k & 1); evn = vEV + ((k+1) & 1)
        pn = vP + 2*((k+1) % U)
        for i in range(4):
            a(f'    v_fma_mix_f32 v{vT+i}, v{ev}, v{vWC+i}, v{d+i} op_sel:[0,0,0] op_sel_hi:[0,0,1]')
        a(f'    ds_read_u16_d16_hi v{evn}, v{vSA} offset:{L2_LIST + 16*(k+1) + 2}')
        a(f'    ds_read_u16 v{pn}, v{vSA} offset:{L2_LIST + 16*(k+1+U)}')
        if init and safe:
            a('    s_waitcnt lgkmcnt(3)')
        if safe:
            a(f'    v_pk_add_f32 v[{vT}:{vT+1}], v[{vT}:{vT+1}], v[{vEA}:{vEA+1}]')
            a(f'    v_pk_add_f32 v[{vT+2}:{vT+3}], v[{vT+2}:{vT+3}], v[{vEA+2}:{vEA+3}]')
        for i in range(4):
            a(f'    v_exp_f32 v{vT+i}, v{vT+i}')
        if init and not safe:
            a('    s_waitcnt lgkmcnt(3)')
        if safe:
            a(f'    v_pk_add_f32 v[{vT}:{vT+1}], v[{vT}:{vT+1}], 1.0 op_sel_hi:[1,0]')
            a(f'    v_pk_add_f32 v[{vT+2}:{vT+3}], v[{vT+2}:{vT+3}], 1.0 op_sel_hi:[1,0]')
        else:
            a(f'    v_pk_fma_f32 v[{vT}:{vT+1}], v[{vEA}:{vEA+1}], v[{vT}:{vT+1}], 1.0 op_sel_hi:[1,1,0]')
            a(f'    v_pk_fma_f32 v[{vT+2}:{vT+3}], v[{vEA+2}:{vEA+3}], v[{vT+2}:{vT+3}], 1.0 op_sel_hi:[1,1,0]')
        if init:
            for i in range(4):
                a(f'    v_rcp_f32 v{vDEN+i}, v{vT+i}')
            a('    s_nop 0')
            a(f'    v_pk_mul_f32 v[{vNUM}:{vNUM+1}], v[{vDEN}:{vDEN+1}], v[{d}:{d+1}]')
            a(f'    v_pk_mul_f32 v[{vNUM+2}:{vNUM+3}], v[{vDEN+2}:{vDEN+3}], v[{d+2}:{d+3}]')
        else:
            for i in range(4):
                a(f'    v_rcp_f32 v{vT+i}, v{vT+i}')
            a(f'    v_pk_add_f32 v[{vDEN}:{vDEN+1}], v[{vDEN}:{vDEN+1}], v[{vT}:{vT+1}]')
            a(f'    v_pk_add_f32 v[{vDEN+2}:{vDEN+3}], v[{vDEN+2}:{vDEN+3}], v[{vT+2}:{vT+3}]')
            a(f'    v_pk_fma_f32 v[{vNUM}:{vNUM+1}], v[{vT}:{vT+1}], v[{d}:{d+1}], v[{vNUM}:{vNUM+1}]')
            a(f'    v_pk_fma_f32 v[{vNUM+2}:{vNUM+3}], v[{vT+2}:{vT+3}], v[{d+2}:{d+3}], v[{vNUM+2}:{vNUM+3}]')
        tload(k)
        if k == U-1:
            a(f'    v_add_u32 v{vSA}, {16*U}, v{vSA}')

    def loopback(pfx):
        if PRIO:
            a(f'    s_sub_u32 s{sPR}, s{sPR}, 1')
            a(f'    s_cmp_lg_u32 s{sPR}, 0')
            a(f'    s_cbranch_scc1 {pfx}_STEP0')
            a(f'    s_branch {pfx}_PRIO')
        else:
            a(f'    s_branch {pfx}_STEP0')

    for pfx, safe in (('K2F', False), ('K2S', True)):
        a.label(f'{pfx}_ENTER')
        next_node()
        set_slot()
        a('    s_waitcnt vmcnt(3) lgkmcnt(0)')
        step(0, safe, True)
        a(f'    s_branch {pfx}_STEP1')
        for k in range(U):
            a.label(f'{pfx}_STEP{k}')
            a(f'    s_waitcnt vmcnt({U-1}) lgkmcnt(0)')
            a(f'    s_sub_u32 s{sLEFT}, s{sLEFT}, 1')
            a(f'    s_cbranch_scc1 {pfx}_FLUSH{k}')
            step(k, safe, False)
            if k == U-1:
                loopback(pfx)
        for k in range(U):
            a.label(f'{pfx}_FLUSH{k}')
            a(f'    s_cmp_ge_u32 s{sGEND}, s{sG1}')
            a(f'    s_cbranch_scc1 K2_LAST')
            next_node()
            flush()
            set_slot()
            step(k, safe, True)
            if k == U-1:
                loopback(pfx)
            else:
                a(f'    s_branch {pfx}_STEP{k+1}')
        if PRIO:
            a.label(f'{pfx}_PRIO')
            a(f'    s_sub_u32 s{sLVL}, s{sLVL}, 1')
            a(f'    s_cmp_eq_u32 s{sLVL}, 2')
            a(f'    s_cbranch_scc1 {pfx}_PRIO2')
            a(f'    s_cmp_eq_u32 s{sLVL}, 1')
            a(f'    s_cbranch_scc1 {pfx}_PRIO1')
            a(f'    s_mov_b32 s{sPR}, 0x7fffffff')
            a('    s_setprio 0')
            a(f'    s_branch {pfx}_STEP0')
            a.label(f'{pfx}_PRIO2')
            a(f'    s_mov_b32 s{sPR}, s{sPQ}')
            a('    s_setprio 2')
            a(f'    s_branch {pfx}_STEP0')
            a.label(f'{pfx}_PRIO1')
            a(f'    s_mov_b32 s{sPR}, s{sPQ2}')
            a('    s_setprio 1')
            a(f'    s_branch {pfx}_STEP0')
    a.label('K2_LAST')
    flush()
    a.label('K2_MAIN_DONE')
    if PRIO: a('    s_setprio 0')
    a(f'    s_cmp_eq_u32 s{sMODE}, 2')
    a('    s_cbranch_scc0 K2_NOABORT')
    a(f'    s_mov_b32 s{sMODE}, 1')
    a(f'    s_mov_b32 s{sPASS}, 0')
    a('    s_waitcnt vmcnt(0) lgkmcnt(0)')
    a('    s_barrier')
    a('    s_branch K2_PASS')
    a.label('K2_NOABORT')
    a(f'    v_cvt_f32_u32 v{vA}, s{sR}')
    a(f'    v_cvt_f32_u32 v{vA+1}, v{vGS}')
    a(f'    v_rcp_f32 v{vA}, v{vA}')
    a(f'    v_cvt_f32_u32 v{vA+2}, v{vGE}')
    a(f'    v_add_f32 v{vA+1}, 0.5, v{vA+1}')
    a(f'    v_add_f32 v{vA+2}, -0.5, v{vA+2}')
    a(f'    v_mul_f32 v{vA+1}, v{vA+1}, v{vA}')
    a(f'    v_mul_f32 v{vA+2}, v{vA+2}, v{vA}')
    a(f'    v_cvt_u32_f32 v{vA+1}, v{vA+1}          ; wlo')
    a(f'    v_cvt_u32_f32 v{vA+2}, v{vA+2}          ; whi')
    a(f'    v_sub_u32 v{vA+2}, v{vA+2}, v{vA+1}')
    a(f'    v_add_u32 v{vA+2}, 1, v{vA+2}')
    a(f'    v_cmp_eq_u32 vcc, 0, v{vNG}')
    a(f'    v_add_u32 v{vA+1}, v{vA+1}, v{vLANE}')
    a(f'    v_and_b32 v{vA+1}, 0xffff, v{vA+1}')
    a(f'    v_cndmask_b32 v{vA+2}, v{vA+2}, 0, vcc')
    a(f'    v_lshl_or_b32 v{vA+3}, v{vA+2}, 16, v{vA+1}')
    a(f'    v_lshrrev_b32 v{vA}, 4, v0')
    a(f'    v_and_b32 v{vA+4}, 63, v{vA}')
    a(f'    v_lshlrev_b32 v{vA+4}, 2, v{vA+4}')
    a(f'    ds_bpermute_b32 v{vA+1}, v{vA+4}, v{vA+3}')
    a(f'    v_mul_u32_u24 v{vA+5}, {TS}, v{vA}')
    a('    s_waitcnt vmcnt(0) lgkmcnt(0)')
    a(f'    v_cmp_gt_u32 vcc, {NPB*16}, v0')
    a(f'    v_lshrrev_b32 v{vA+2}, 16, v{vA+1}')
    a(f'    v_and_b32 v{vA+1}, 0xffff, v{vA+1}')
    a(f'    v_cndmask_b32 v{vA+2}, 0, v{vA+2}, vcc')
    a(f'    v_lshl_add_u32 v{vA+1}, v{vA+1}, 9, v{vQ16}')
    stamp(a, 6)
    a('    s_barrier')
    a.label('K2_FOLD')
    masked(a, f'v_cmp_lt_u32 vcc, 0, v{vA+2}', sEX, 'K2_FOLD_DONE')
    a(f'    ds_read_b128 v[{vDEN}:{vDEN+3}], v{vA+1} offset:{L2_SLOT}')
    a(f'    ds_read_b128 v[{vNUM}:{vNUM+3}], v{vA+1} offset:{L2_SLOT+256}')
    a(f'    v_add_u32 v{vA+1}, 512, v{vA+1}')
    a(f'    v_add_u32 v{vA+2}, -1, v{vA+2}')
    a('    s_waitcnt lgkmcnt(1)')
    a(f'    v_pk_add_f32 v[{vDA}:{vDA+1}], v[{vDA}:{vDA+1}], v[{vDEN}:{vDEN+1}]')
    a(f'    v_pk_add_f32 v[{vDA+2}:{vDA+3}], v[{vDA+2}:{vDA+3}], v[{vDEN+2}:{vDEN+3}]')
    a('    s_waitcnt lgkmcnt(0)')
    a(f'    v_pk_add_f32 v[{vNA}:{vNA+1}], v[{vNA}:{vNA+1}], v[{vNUM}:{vNUM+1}]')
    a(f'    v_pk_add_f32 v[{vNA+2}:{vNA+3}], v[{vNA+2}:{vNA+3}], v[{vNUM+2}:{vNUM+3}]')
    unmask(a, sEX)
    a('    s_branch K2_FOLD')
    unmask(a, sEX, 'K2_FOLD_DONE')
    a(f'    s_cmp_eq_u32 s{sMODE}, 0')
    a('    s_cbranch_scc1 K2_EPI')
    a(f'    s_add_u32 s{sPASS}, s{sPASS}, 1')
    a(f'    s_cmp_lt_u32 s{sPASS}, {NC}')
    a('    s_cbranch_scc0 K2_EPI')
    a('    s_barrier')
    a('    s_branch K2_PASS')
    a.label('K2_EPI')
    a(f'    s_mov_b32 s{sXT}, {L2_XT}')
    masked(a, f'v_cmp_gt_u32 vcc, {NPB*16}, v0', sEX, 'K2_FIN')
    a(f'    v_add_u32 v{vA+5}, v{vA+5}, v{vQ16}')
    a(f'    v_add_u32 v{vA+5}, {L2_UT}, v{vA+5}')
    a(f'    ds_read_b128 v[{vDEN}:{vDEN+3}], v{vA+5}')
    a(f'    v_lshrrev_b32 v{vA+6}, 4, v0')
    a(f'    v_mul_u32_u24 v{vA+6}, {XS}, v{vA+6}')
    a(f'    v_lshrrev_b32 v{vA+7}, 1, v{vQ16}')
    a(f'    v_add3_u32 v{vA+6}, v{vA+6}, v{vA+7}, s{sXT}')
    a(f'    ds_read_b64 v[{vX}:{vX+1}], v{vA+6}')
    a(f'    s_mov_b32 s{sT0}, {hex(f2u(1e-6))}')
    a('    s_waitcnt lgkmcnt(0)')
    a(f'    v_lshlrev_b32 v{vT}, 16, v{vX}')
    a(f'    v_and_b32 v{vT+1}, 0xffff0000, v{vX}')
    a(f'    v_lshlrev_b32 v{vT+2}, 16, v{vX+1}')
    a(f'    v_and_b32 v{vT+3}, 0xffff0000, v{vX+1}')
    for i in range(4):
        a(f'    v_add_f32 v{vDA+i}, s{sT0}, v{vDA+i}')
    for i in range(4):
        a(f'    v_rcp_f32 v{vDA+i}, v{vDA+i}')
    a('    s_waitcnt lgkmcnt(0)')
    for i in range(4):
        a(f'    v_fma_f32 v{vNA+i}, v{vNA+i}, v{vDA+i}, v{vDEN+i}    ; z = U + agg')
    for i in range(4):
        a(f'    v_mul_f32 v{vDEN+i}, 0, v{vNA+i}                     ; 0*z')
        a(f'    v_cmp_lt_f32 vcc, 0, v{vNA+i}')
        a('    s_nop 1')
        a(f'    v_cndmask_b32 v{vNA+i}, v{vDEN+i}, v{vNA+i}, vcc')
        a(f'    v_add_f32 v{vNA+i}, v{vNA+i}, v{vT+i}')
    a(f'    v_cvt_pk_bf16_f32 v{vDEN}, v{vNA}, v{vNA+1}')
    a(f'    v_cvt_pk_bf16_f32 v{vDEN+1}, v{vNA+2}, v{vNA+3}')
    a(f'    s_mul_i32 s{sT1}, s{sB}, {NPB*128}')
    a(f'    v_lshlrev_b32 v{vA+1}, 3, v0')
    a(f'    buffer_store_dwordx2 v[{vDEN}:{vDEN+1}], v{vA+1}, s[{SRD_OUT}:{SRD_OUT+3}], s{sT1} offen')
    a.label('K2_FIN')
    if STAMP:
        a('    s_mov_b64 exec, -1')
        a('    s_waitcnt vmcnt(0)')
    stamp(a, 7); stamp(a, 1, True)
    stamp_flush(a, sWAVE, sB, 1, 6)
    a.label('K2_END')
    a('    s_endpgm')

def kd(a, name, vgpr, sgpr):
    a(f'.amdhsa_kernel {name}')
    a(f'  .amdhsa_next_free_vgpr {vgpr}')
    a(f'  .amdhsa_next_free_sgpr {sgpr}')
    a(f'  .amdhsa_accum_offset {((vgpr+3)//4)*4}')
    a('  .amdhsa_group_segment_fixed_size 0')
    a('  .amdhsa_kernarg_size 96')
    a('  .amdhsa_user_sgpr_count 2')
    a('  .amdhsa_user_sgpr_kernarg_segment_ptr 1')
    a('  .amdhsa_system_sgpr_workgroup_id_x 1')
    a('  .amdhsa_float_denorm_mode_32 3')
    a('.end_amdhsa_kernel')

def main(out):
    a = Asm()
    a(f'; @launch kernel=k1_kernel grid=({K1_GRID},1,1) block=(1024,1,1) lds={K1_LDS}')
    a(f'; @launch kernel=k2_kernel grid=({NB},1,1) block=(1024,1,1) lds={K2_LDS}')
    a('.amdgcn_target "amdgcn-amd-amdhsa--gfx950"')
    a('.text')
    a('.globl k1_kernel')
    gen_k1(a)
    a('.globl k2_kernel')
    gen_k2(a)
    a('.section .rodata,"a"')
    a('.p2align 6')
    kd(a, 'k1_kernel', 96, 102 if STAMP else 72)
    a('.p2align 6')
    kd(a, 'k2_kernel', 124, 102 if STAMP else 80)
    a.l = [x for x in a.l if x is not None]
    open(out, 'w').write(a.text())

if __name__ == '__main__':
    main(sys.argv[1] if len(sys.argv) > 1 else 'standalone__edge_featured_mpnn_gatedgcn__graph.s')
```

```python
import sys, os, struct
def env(n, d): return os.environ.get(n, d)

N = 10000; E = 640000
NPB = 40; NB = 250; EPC = 2560; NC = 250
LOG2E = 1.4426950408889634
WS_REC  = 0
REC_STRIDE = EPC*5
WS_DESC = 3407872
DESC_STRIDE = 1024
WS_T    = 4194304
T_BYTES = (N+1)*256

STAMP = int(env('STAMP', '0'))
K1ST = env('K1ST', 'sc1')
PRIO = int(env('PRIO', '1'))
TFIRST = int(env('TFIRST', '1'))
WS_STAMP = 128 << 20
ST0 = 80

def f2u(f): return struct.unpack('<I', struct.pack('<f', f))[0]

class Asm:
    def __init__(self): self.l = []
    def __call__(self, s=''):
        for line in s.split('\n'): self.l.append(line)
    def label(self, n): self.l.append(n + ':')
    def text(self): return '\n'.join(self.l) + '\n'

def stamp(a, i, real=False):
    if STAMP:
        r = ST0 + 2*(8+i if real else i)
        a(f"    {'s_memrealtime' if (real or STAMP == 3) else 's_memtime'} s[{r}:{r+1}]")
def stamp_flush(a, wave_sgpr, wg_sgpr, kern, ws_lo):
    if not STAMP: return
    a('    s_waitcnt lgkmcnt(0)')
    a('    s_mov_b64 exec, 1')
    a('    v_mov_b32 v2, 0')
    if STAMP == 3:
        lab = f'STSKIP{kern}_{len(a.l)}'
        a(f'    s_and_b32 s14, s{wg_sgpr}, 15')
        a('    s_cmp_eq_u32 s14, 0')
        a(f'    s_cbranch_scc0 {lab}')
        a('    s_load_dwordx2 s[12:13], s[0:1], 80')
        a('    s_waitcnt lgkmcnt(0)')
        if kern == 0:
            a('    s_add_u32 s12, s12, 512')
            a('    s_addc_u32 s13, s13, 0')
        slots = [(0, 8, True), (1, 8, False), (2, 2, False), (3, 4, False), (4, 6, False), (5, 9, False)] if kern == 0 else \
                [(6, 8, True), (7, 8, False), (8, 1, False), (9, 2, False), (10, 4, False), (11, 5, False), (12, 6, False), (13, 9, False), (14, 6, True)]
        for slot, st, inv in slots:
            a(f'    v_mov_b32 v3, s{ST0+2*st}')
            if inv: a('    v_not_b32 v3, v3')
            a(f'    global_atomic_umax v2, v3, s[12:13] offset:{4*slot}')
        a('    s_waitcnt vmcnt(0)')
        a.label(lab)
        return
    a(f'    s_add_u32 s12, s{ws_lo}, {WS_STAMP + kern*(4<<20)}')
    a(f'    s_addc_u32 s13, s{ws_lo+1}, 0')
    a(f'    s_mov_b32 s14, {4<<20}')
    a('    s_mov_b32 s15, 0x00020000')
    a(f'    s_lshl_b32 s16, s{wg_sgpr}, 4')
    a(f'    s_add_u32 s16, s16, s{wave_sgpr}')
    a(f'    s_lshl_b32 s16, s16, 6')
    for i in range(8):
        a(f'    v_mov_b32 v3, s{ST0+2*i}')
        a(f'    buffer_store_dword v3, v2, s[12:15], s16 offen offset:{4*i}')
    for i in range(2):
        a(f'    v_mov_b32 v3, s{ST0+2*(8+i)}')
        a(f'    buffer_store_dword v3, v2, s[12:15], s16 offen offset:{4*(10+i)}')
    a('    s_waitcnt vmcnt(0)')

def srd(a, sreg, lo, hi, nbytes, off=0, stride=0, nrec=None):
    if off:
        a(f'    s_add_u32 s{sreg}, s{lo}, {off}')
        a(f'    s_addc_u32 s{sreg+1}, s{hi}, 0')
    else:
        a(f'    s_mov_b32 s{sreg}, s{lo}')
        a(f'    s_mov_b32 s{sreg+1}, s{hi}')
    if stride:
        a(f'    s_and_b32 s{sreg+1}, s{sreg+1}, 0xffff')
        a(f'    s_or_b32 s{sreg+1}, s{sreg+1}, {stride << 16}')
        a(f'    s_mov_b32 s{sreg+2}, {nrec}')
    else:
        a(f'    s_mov_b32 s{sreg+2}, {nbytes}')
    a(f'    s_mov_b32 s{sreg+3}, 0x00020000')

def dpp_scan(a, v):
    for sh in (1, 2, 4, 8):
        a('    s_nop 1')
        a(f'    v_add_u32_dpp v{v}, v{v}, v{v} row_shr:{sh} row_mask:0xf bank_mask:0xf')
    a('    s_nop 1')
    a(f'    v_add_u32_dpp v{v}, v{v}, v{v} row_bcast:15 row_mask:0xa bank_mask:0xf')
    a('    s_nop 1')
    a(f'    v_add_u32_dpp v{v}, v{v}, v{v} row_bcast:31 row_mask:0xc bank_mask:0xf')

def masked(a, cond, exreg, skip=None):
    a(f'    {cond}')
    a(f'    s_and_saveexec_b64 s[{exreg}:{exreg+1}], vcc')
    if skip: a(f'    s_cbranch_execz {skip}')
def unmask(a, exreg, skip=None):
    if skip: a.label(skip)
    a(f'    s_mov_b64 exec, s[{exreg}:{exreg+1}]')

K1_GRID = NC
L1_HIST = 0; L1_START = 1024; L1_SYNC = 2048
L1_ST32 = 2304; L1_ST8 = L1_ST32 + EPC*4; L1_W = 15360
K1_LDS = L1_W + 16384
K1PF = int(env('K1PF', '0'))
XMAP = int(env('XMAP', '1'))
DESCST = env('DESCST', '')
RECST = env('RECST', K1ST)
TST = env('TST', K1ST)
TFIRST = int(env('TFIRST', '1'))

def gen_k1(a):
    a('.p2align 8')
    a('.type k1_kernel,@function')
    a.label('k1_kernel')
    a(f'    s_cmp_ge_u32 s2, {K1_GRID}')
    a('    s_cbranch_scc1 K1_END')
    stamp(a, 0); stamp(a, 0, True)
    if XMAP:
        a('    s_and_b32 s20, s2, 7')
        a('    s_lshr_b32 s21, s2, 3')
        a('    s_mul_i32 s22, s20, 31')
        a('    s_min_u32 s20, s20, 2')
        a('    s_add_u32 s22, s22, s20')
        a('    s_add_u32 s2, s22, s21')
    a('    v_lshrrev_b32 v1, 6, v0')
    a('    s_load_dwordx4 s[8:11], s[0:1], 16')
    a('    v_readfirstlane_b32 s20, v1')
    a('    s_load_dwordx2 s[4:5], s[0:1], 8      ; e_attr')
    a('    s_load_dwordx2 s[6:7], s[0:1], 88     ; ws')
    a('    v_and_b32 v2, 63, v0                   ; lane')
    if TFIRST:
        a('    s_cmp_lt_u32 s20, 6')
        a('    s_cbranch_scc1 K1_TABLE')
        a('    v_subrev_u32 v0, 384, v0')
        a('    s_sub_u32 s20, s20, 6')
    else:
        a('    s_cmp_ge_u32 s20, 10')
        a('    s_cbranch_scc1 K1_TABLE')
    a('    v_mov_b32 v5, 0')
    a('    v_lshlrev_b32 v6, 2, v0               ; t*4')
    masked(a, 'v_cmp_gt_u32 vcc, 256, v0', 30)
    a(f'    ds_write_b32 v6, v5 offset:{L1_HIST}')
    unmask(a, 30)
    a('    v_lshlrev_b32 v3, 4, v0               ; t*16')
    a('    v_lshlrev_b32 v4, 3, v0               ; t*8')
    a(f'    s_mul_i32 s21, s2, {EPC*4}')
    a(f'    s_mul_i32 s22, s2, {EPC*2}')
    a('    s_mov_b32 s23, 52429')
    a('    s_waitcnt lgkmcnt(0)')
    srd(a, 12, 10, 11, E*4)
    a('    buffer_load_dwordx4 v[8:11], v3, s[12:15], s21 offen     ; dst x4')
    srd(a, 16, 8, 9, E*4)
    a('    buffer_load_dwordx4 v[12:15], v3, s[16:19], s21 offen    ; src x4')
    srd(a, 24, 4, 5, E*2)
    a('    buffer_load_dwordx2 v[16:17], v4, s[24:27], s22 offen')
    srd(a, 32, 6, 7, NC*REC_STRIDE, off=WS_REC)
    srd(a, 36, 6, 7, NB*DESC_STRIDE, off=WS_DESC)
    a('    v_lshlrev_b32 v6, 4, v2                ; lane*16')
    a('    v_mul_u32_u24 v7, 20, v0')
    a('    v_lshlrev_b32 v18, 12, v2')
    a(f'    s_mul_i32 s25, s2, {REC_STRIDE}')
    a('    s_lshl_b32 s26, s2, 2')
    a('    s_mov_b32 s40, 0x06050400')
    a('    s_mov_b32 s41, 0x05040003')
    a('    s_mov_b32 s42, 0x03020500')
    a('    s_mov_b32 s43, 0x04000302')
    a('    s_mov_b32 s44, 0x03060100')
    a('    s_mov_b32 s45, 0x07030201')
    stamp(a, 1)
    a('    s_barrier')
    a('    v_mov_b32 v5, 1')
    a('    s_waitcnt vmcnt(2)')
    stamp(a, 2)
    for k in range(4):
        a(f'    v_mul_u32_u24 v{20+k}, s23, v{8+k}')
    for k in range(4):
        a(f'    v_lshrrev_b32 v{20+k}, 21, v{20+k}      ; bucket')
    for k in range(4):
        a(f'    v_lshlrev_b32 v{24+k}, 2, v{20+k}       ; bucket*4')
    for k in range(4):
        a(f'    ds_add_rtn_u32 v{28+k}, v{24+k}, v5 offset:{L1_HIST}')
    for k in range(4):
        a(f'    v_mul_u32_u24 v{20+k}, {NPB*4}, v{20+k}')
    for k in range(4):
        a(f'    v_lshlrev_b32 v{8+k}, 2, v{8+k}')
    for k in range(4):
        a(f'    v_sub_u32 v{20+k}, v{8+k}, v{20+k}')
    a('    s_waitcnt vmcnt(0)')
    a('    v_lshl_or_b32 v32, v16, 16, v12')
    a('    s_mov_b32 s24, 0xffff0000')
    a('    v_and_or_b32 v33, v16, s24, v13')
    a('    v_lshl_or_b32 v34, v17, 16, v14')
    a('    v_and_or_b32 v35, v17, s24, v15')
    a('    s_waitcnt lgkmcnt(0)')
    stamp(a, 3)
    a('    s_barrier')
    stamp(a, 4)
    a(f'    ds_read_b128 v[40:43], v6 offset:{L1_HIST}')
    a('    s_waitcnt lgkmcnt(0)')
    a('    v_add_u32 v44, v40, v41                ; h0+h1')
    a('    v_add_u32 v45, v44, v42')
    a('    v_add_u32 v46, v45, v43                ; sum4')
    a('    v_mov_b32 v47, v46')
    dpp_scan(a, 47)
    a('    v_sub_u32 v48, v47, v46')
    a('    v_add_u32 v49, v48, v40')
    a('    v_add_u32 v50, v48, v44')
    a('    v_add_u32 v51, v48, v45')
    a(f'    ds_write_b128 v6, v[48:51] offset:{L1_START}')
    a('    s_waitcnt lgkmcnt(0)')
    for k in range(4):
        a(f'    ds_read_b32 v{56+k}, v{24+k} offset:{L1_START}')
    for k in range(4):
        a(f'    v_lshl_or_b32 v{52+k}, v{40+k}, 16, v{48+k}')
    a('    s_waitcnt lgkmcnt(0)')
    for k in range(4):
        a(f'    v_add_u32 v{56+k}, v{56+k}, v{28+k}      ; position')
    for k in range(4):
        a(f'    ds_write_b8 v{56+k}, v{20+k} offset:{L1_ST8}')
        a(f'    v_lshlrev_b32 v{60+k}, 2, v{56+k}')
    for k in range(4):
        a(f'    ds_write_b32 v{60+k}, v{32+k} offset:{L1_ST32}')
    a('    s_waitcnt lgkmcnt(0)')
    stamp(a, 5)
    a('    s_barrier')
    a(f'    ds_read_b128 v[8:11], v3 offset:{L1_ST32}')
    a('    v_lshrrev_b32 v4, 2, v3                ; t*4')
    a(f'    ds_read_b32 v12, v4 offset:{L1_ST8}')
    a('    s_waitcnt lgkmcnt(0)')
    a('    v_perm_b32 v21, v9, v12, s40           ; d1 = L0 r1.b0 r1.b1 r1.b2')
    a('    v_perm_b32 v22, v10, v9, s41           ; r1.b3 . r2.b0 r2.b1')
    a('    v_perm_b32 v23, v11, v10, s43          ; r2.b2 r2.b3 . r3.b0')
    a('    v_mov_b32 v20, v8')
    a('    v_perm_b32 v22, v12, v22, s42          ; d2 : insert L1')
    a('    v_perm_b32 v23, v12, v23, s44          ; d3 : insert L2')
    a('    v_perm_b32 v24, v12, v11, s45          ; d4 = r3.b1 r3.b2 r3.b3 L3')
    a(f'    buffer_store_dwordx4 v[20:23], v7, s[32:35], s25 offen {RECST}')
    a(f'    buffer_store_dword v24, v7, s[32:35], s25 offen offset:16 {RECST}')
    a('    s_cmp_eq_u32 s20, 0')
    a('    s_cbranch_scc0 K1_SFIN')
    for k in range(4):
        a(f'    buffer_store_dword v{52+k}, v18, s[36:39], s26 offen offset:{1024*k} {DESCST}')
    a.label('K1_SFIN')
    if STAMP:
        stamp(a, 6)
        a('    s_waitcnt vmcnt(0)')
        stamp(a, 7); stamp(a, 1, True)
        stamp_flush(a, 20, 2, 0, 6)
    a('    s_endpgm')
    a.label('K1_TABLE')
    a('    s_load_dwordx2 s[40:41], s[0:1], 40   ; w_b')
    a('    s_load_dwordx2 s[42:43], s[0:1], 64   ; w_v')
    a('    s_load_dwordx2 s[44:45], s[0:1], 0    ; x')
    if K1PF:
        a('    s_load_dwordx2 s[60:61], s[0:1], 32   ; w_a')
        a('    s_load_dwordx4 s[64:67], s[0:1], 48   ; w_c, w_u')
        a('    s_load_dwordx2 s[62:63], s[0:1], 72   ; out')
    a('    s_mov_b32 s21, s20                     ; tw' if TFIRST else '    s_sub_u32 s21, s20, 10                 ; tw')
    a('    v_mov_b32 v5, 0')
    a('    v_lshlrev_b32 v6, 2, v2')
    a('    s_cmp_eq_u32 s21, 0')
    a('    s_cbranch_scc0 K1_T_NOZ')
    masked(a, 'v_cmp_gt_u32 vcc, 4, v2', 30)
    a(f'    ds_write_b32 v6, v5 offset:{L1_SYNC}')
    unmask(a, 30)
    a.label('K1_T_NOZ')
    a('    s_lshr_b32 s22, s21, 1')
    a('    s_lshl_b32 s22, s22, 4                 ; 16*rt')
    a('    v_and_b32 v4, 15, v2')
    a('    v_add_u32 v4, s22, v4')
    a('    v_lshrrev_b32 v5, 4, v2                ; g')
    a('    v_lshlrev_b32 v6, 7, v4')
    a('    v_lshl_add_u32 v6, v5, 4, v6')
    a(f'    s_mul_i32 s24, s2, {NPB*128}')
    a('    v_lshlrev_b32 v7, 4, v2                ; lane*16')
    a('    v_bfe_u32 v8, v2, 4, 1')
    a('    v_lshlrev_b32 v8, 1, v8')
    a('    v_and_b32 v9, 7, v2')
    a('    v_xor_b32 v8, v8, v9')
    a('    v_lshrrev_b32 v9, 3, v2')
    a('    v_lshlrev_b32 v9, 7, v9                ; (lane>>3)*128')
    a('    s_waitcnt lgkmcnt(0)')
    for i in range(3):
        a(f'    s_add_u32 s26, s21, {6*i}              ; p')
        a('    s_cmp_lt_u32 s26, 8')
        a('    s_cselect_b32 s48, s40, s42')
        a('    s_cselect_b32 s49, s41, s43')
        a('    s_mov_b32 s50, 8192')
        a('    s_mov_b32 s51, 0x00020000')
        a('    s_and_b32 s27, s26, 7')
        a('    s_lshl_b32 s27, s27, 10')
        a('    s_cmp_lt_u32 s26, 16')
        a(f'    s_cselect_b32 s27, s27, {1<<20}')
        a(f'    buffer_load_dwordx4 v[{48+4*i}:{51+4*i}], v7, s[48:51], s27 offen')
    srd(a, 36, 44, 45, N*128)
    a('    buffer_load_dwordx4 v[24:27], v6, s[36:39], s24 offen')
    a('    buffer_load_dwordx4 v[28:31], v6, s[36:39], s24 offen offset:64')
    if K1PF:
        a('    s_cmp_eq_u32 s21, 5')
        a('    s_cbranch_scc0 K1_T_NOPF')
        a('    v_lshlrev_b32 v60, 8, v2')
        a('    v_lshlrev_b32 v61, 7, v2')
        a('    global_load_dword v62, v61, s[60:61]')
        a('    global_load_dword v62, v61, s[66:67]')
        a('    v_mov_b32 v63, 0')
        a('    global_load_dword v62, v63, s[64:65]')
        a(f'    s_mul_i32 s26, s2, {NPB*128}')
        a('    v_mov_b32 v63, s26')
        a('    global_load_dword v62, v63, s[62:63]')
        srd(a, 52, 6, 7, WS_T + T_BYTES, off=0)
        a(f'    s_mul_i32 s26, s2, {REC_STRIDE}')
        a('    v_mov_b32 v63, s26')
        a('    buffer_load_dword v62, v63, s[52:55], 0 offen')
        a(f'    s_mul_i32 s26, s2, {NPB*256}')
        a(f'    s_add_u32 s26, s26, {WS_T}')
        a('    v_mov_b32 v63, s26')
        a('    buffer_load_dword v62, v63, s[52:55], 0 offen')
        a(f'    s_mul_i32 s26, s2, {DESC_STRIDE}')
        a(f'    s_add_u32 s26, s26, {WS_DESC}')
        a('    v_mov_b32 v63, s26')
        a('    buffer_load_dword v62, v63, s[52:55], 0 offen')
        a('    s_barrier')
        a('    s_waitcnt vmcnt(9)')
        a('    s_branch K1_T_PFJOIN')
        a.label('K1_T_NOPF')
    a('    s_barrier')
    a('    s_waitcnt vmcnt(2)')
    if K1PF: a.label('K1_T_PFJOIN')
    stamp(a, 1)
    for i in range(3):
        a(f'    s_add_u32 s26, s21, {6*i}              ; p')
        a('    s_cmp_lt_u32 s26, 16')
        a(f'    s_cbranch_scc0 K1_T_ST{i}')
        a('    s_and_b32 s27, s26, 1')
        a('    s_lshl_b32 s27, s27, 2')
        a('    v_xor_b32 v10, s27, v8')
        a('    v_lshl_add_u32 v10, v10, 4, v9')
        a('    s_lshl_b32 s27, s26, 10                ; m*8192 + (p&7)*1024 = p*1024')
        a('    v_add_u32 v10, s27, v10')
        a(f'    ds_write_b128 v10, v[{48+4*i}:{51+4*i}] offset:{L1_W}')
        a.label(f'K1_T_ST{i}')
    srd(a, 44, 6, 7, T_BYTES, off=WS_T)
    a('    s_waitcnt lgkmcnt(0)')
    a('    v_mov_b32 v10, 0')
    a('    v_mov_b32 v11, 1')
    a('    s_mov_b64 exec, 1')
    a(f'    ds_add_u32 v10, v11 offset:{L1_SYNC}')
    a('    s_mov_b64 exec, -1')
    a('    s_and_b32 s23, s21, 1                  ; half')
    a('    v_bfe_u32 v12, v2, 2, 2                ; r')
    a('    v_lshl_add_u32 v13, v5, 3, v12         ; rho')
    a('    v_lshlrev_b32 v13, 7, v13')
    a('    v_and_b32 v14, 1, v2')
    a('    v_lshl_add_u32 v13, v14, 3, v13        ; + (c&1)*8')
    a('    v_bfe_u32 v14, v2, 1, 1                ; c>>1')
    a('    v_lshrrev_b32 v12, 1, v12')
    a('    v_and_b32 v15, 1, v5                   ; g&1')
    a('    v_lshlrev_b32 v15, 1, v15')
    a('    v_or_b32 v12, v12, v15                 ; swz/2')
    a('    s_lshl_b32 s25, s23, 1')
    a('    v_xor_b32 v15, s25, v12')
    a('    v_lshl_or_b32 v15, v15, 1, v14')
    a('    v_lshl_add_u32 v16, v15, 4, v13')
    a('    s_add_u32 s25, s25, 1')
    a('    v_xor_b32 v15, s25, v12')
    a('    v_lshl_or_b32 v15, v15, 1, v14')
    a('    v_lshl_add_u32 v17, v15, 4, v13')
    for r in range(32, 48):
        a(f'    v_mov_b32 v{r}, 0')
    a.label('K1_T_SPIN')
    a(f'    ds_read_b32 v11, v10 offset:{L1_SYNC}')
    a('    s_waitcnt lgkmcnt(0)')
    a('    v_readfirstlane_b32 s26, v11')
    a('    s_cmp_lt_u32 s26, 6')
    a('    s_cbranch_scc1 K1_T_SPIN')
    stamp(a, 3)
    order = [(jj, ks, m) for jj in range(2) for ks in range(2) for m in range(2)]
    for i, (jj, ks, m) in enumerate(order):
        b = 64 + 4*i
        off = L1_W + m*8192 + ks*32*128
        a(f'    ds_read_b64_tr_b16 v[{b}:{b+1}], v{16+jj} offset:{off}')
        a(f'    ds_read_b64_tr_b16 v[{b+2}:{b+3}], v{16+jj} offset:{off+512}')
    a(f'    s_mov_b32 s27, {hex(f2u(-LOG2E))}')
    a('    s_mov_b32 s28, 0xffff0000')
    a('    s_mov_b32 s29, 0x80000000')
    a('    v_lshlrev_b32 v9, 8, v4')
    a('    v_lshl_add_u32 v9, v5, 4, v9')
    a('    s_lshl_b32 s25, s23, 7')
    a(f'    s_mul_i32 s26, s2, {NPB*256}')
    a('    s_add_u32 s25, s25, s26')
    a('    v_add_u32 v9, s25, v9')
    a(f'    v_cmp_gt_u32 vcc, {NPB}, v4')
    a(f'    v_mov_b32 v10, {1<<30}')
    a('    s_waitcnt vmcnt(0)' if not K1PF else '    s_waitcnt vmcnt(7)')
    a('    v_cndmask_b32 v9, v10, v9, vcc')
    if K1PF:
        a('    s_cmp_eq_u32 s21, 5')
        a('    s_cbranch_scc1 K1_T_XOK')
        a('    s_waitcnt vmcnt(0)')
        a.label('K1_T_XOK')
    for i, (jj, ks, m) in enumerate(order):
        b = 64 + 4*i
        a(f'    s_waitcnt lgkmcnt({min(15, 2*(7-i))})')
        acc = 32 + 8*m + 4*jj
        x = 24 + 4*ks
        a(f'    v_mfma_f32_16x16x32_bf16 v[{acc}:{acc+3}], v[{b}:{b+3}], v[{x}:{x+3}], v[{acc}:{acc+3}]')
    stamp(a, 4)
    a('    s_nop 4')
    for jj in range(2):
        R = range(4)
        p = lambda r: 32 + 4*jj + r
        q = lambda r: 40 + 4*jj + r
        t = lambda r: 10 + r
        if jj == 1: a('    s_nop 2')
        for r in R: a(f'    v_mul_f32 v{p(r)}, s27, v{p(r)}')
        for r in R: a(f'    v_cvt_f16_f32 v{p(r)}, v{p(r)}')
        for r in R: a(f'    v_and_b32 v{t(r)}, 0x7fffffff, v{q(r)}')
        for r in R: a(f'    v_and_b32 v{p(r)}, 0xffff, v{p(r)}')
        for r in R: a(f'    v_sub_u32 v{t(r)}, v{t(r)}, v{p(r)}')
        for r in R: a(f'    v_add_u32 v{t(r)}, 0x8000, v{t(r)}')
        for r in R: a(f'    v_max_i32 v{t(r)}, 0, v{t(r)}')
        for r in R: a(f'    v_and_or_b32 v{t(r)}, v{t(r)}, s28, v{p(r)}')
        for r in R: a(f'    v_and_or_b32 v{p(r)}, v{q(r)}, s29, v{t(r)}')
        a(f'    buffer_store_dwordx4 v[{32+4*jj}:{35+4*jj}], v9, s[44:47], 0 offen offset:{jj*64} {TST}')
    a('    s_cmp_eq_u32 s2, 0')
    a('    s_cbranch_scc0 K1_TFIN')
    a('    s_cmp_eq_u32 s21, 0')
    a('    s_cbranch_scc0 K1_TFIN')
    a('    v_mov_b32 v10, 0x7c00')
    a(f'    v_lshlrev_b32 v11, 2, v2')
    a(f'    v_add_u32 v11, {N*256}, v11')
    a(f'    buffer_store_dword v10, v11, s[44:47], 0 offen {TST}')
    a.label('K1_TFIN')
    stamp(a, 5)
    a('    s_barrier                              ; (ranks)')
    a('    s_barrier                              ; (scatter)')
    if STAMP:
        stamp(a, 6)
        a('    s_waitcnt vmcnt(0)')
        stamp(a, 7); stamp(a, 1, True)
        if STAMP == 3:
            a('    s_waitcnt lgkmcnt(0)')
            a(f'    s_mov_b32 s{ST0+4}, s{ST0+16}')
        else: stamp(a, 2)
        if TFIRST: a('    s_add_u32 s20, s20, 10')
        stamp_flush(a, 20, 2, 0, 6)
    a.label('K1_END')
    a('    s_endpgm')

CAP = 4096
TS = 272
L2_CNT = 0; L2_FLG = 256
L2_LIST = 512
L2_SLOT = L2_LIST + CAP*4
L2_W = L2_SLOT
L2_EAT = L2_SLOT + 56*512; L2_AT = L2_EAT + 48*TS; L2_UT = L2_AT + 48*TS
XS = 144
L2_XT = L2_UT + 48*TS
K2_LDS = L2_XT + 48*XS
U = 4
TPF = int(env('TPF', '1'))
PFPOS = int(env('PFPOS', '1'))
PFN = int(env('PFN', '40'))
PRT = [int(x) for x in env('PRT', '4,4,4').split(',')]

def gen_k2(a):
    sB = 2; sWAVE = 3
    SRD_DESC = 12; SRD_REC = 16; SRD_T = 20; SRD_W = 24; SRD_X = 28; SRD_OUT = 32; SRD_WC = 36
    sMODE = 40; sPASS = 41
    sG0 = 42; sG1 = 43; sGEND = 44; sLEFT = 45; sNODE = 46; sT0 = 47; sT1 = 48; sSAFE = 49; sGT = 50; sR = 51
    sEX = 52; sEAB = 54; sPR = 55; sPQ = 56; sLVL = 57; sSLOT = 58; sNR = 59; sPQ2 = 60; sXT = 61; sJ = 58
    sM = 64
    vLANE = 1
    vWC = 4; vEA = 8; vDEN = 12; vNUM = 16; vT = 20; vDAT = 24; vP = 40; vEV = 48
    vSA = 50; vACC = 51; vEAA = 52; vGS = 53; vQ16 = 54; vNG = 55
    vDA = 56; vNA = 60
    vX = 64
    vFL = 66
    vGE = 67
    vXO = 68
    vR = 76
    vB = 84
    vRK = 92
    vLA = 100
    vA = 108
    vCNT = 118; vRO = 119; vI = 120; vRM = 121; vTRA = 122; vXRA = 123; vROW = 50; vPFA = 51
    vLC = 12
    vPF = 16
    vXO2 = vXO
    SRD_LOC = 8; SRD_PF = 24
    vW = 24; vOP = 24; vAC = 40

    a('.p2align 8')
    a('.type k2_kernel,@function')
    a.label('k2_kernel')
    a(f'    s_cmp_ge_u32 s2, {NB}')
    a('    s_cbranch_scc1 K2_END')
    stamp(a, 0); stamp(a, 0, True)
    if XMAP:
        a(f'    s_and_b32 s{sT0}, s2, 7')
        a(f'    s_lshr_b32 s{sJ}, s2, 3')
        a(f'    s_mul_i32 s{sT1}, s{sT0}, 31')
        a(f'    s_min_u32 s{sT0}, s{sT0}, 2')
        a(f'    s_add_u32 s{sT1}, s{sT1}, s{sT0}')
        a(f'    s_add_u32 s2, s{sT1}, s{sJ}')
    else:
        a(f'    s_lshr_b32 s{sJ}, s2, 3')
    a('    s_load_dwordx2 s[6:7], s[0:1], 88      ; ws')
    a('    s_load_dwordx2 s[4:5], s[0:1], 0       ; x')
    a('    s_load_dwordx2 s[8:9], s[0:1], 32      ; w_a')
    a('    s_load_dwordx4 s[60:63], s[0:1], 48    ; w_c, w_u')
    a('    s_load_dwordx2 s[10:11], s[0:1], 72    ; out')
    a(f'    v_and_b32 v{vLANE}, 63, v0')
    a(f'    v_lshrrev_b32 v{vA}, 6, v0')
    a(f'    v_and_b32 v{vQ16}, 15, v0')
    a(f'    v_readfirstlane_b32 s{sWAVE}, v{vA}')
    a(f'    v_lshlrev_b32 v{vQ16}, 4, v{vQ16}      ; q*16')
    a(f'    v_and_b32 v{vA}, 0x3fc, v0             ; (t>>2)*4')
    a(f'    v_cmp_gt_u32 vcc, {NC*4}, v0')
    a(f'    v_mov_b32 v{vA+8}, {1<<30}')
    a(f'    s_lshl_b32 s{sT0}, s{sB}, 10')
    a(f'    v_cndmask_b32 v{vA}, v{vA+8}, v{vA}, vcc')
    for i in range(4):
        a(f'    v_mov_b32 v{vDA+i}, 0')
        a(f'    v_mov_b32 v{vNA+i}, 0')
    masked(a, 'v_cmp_gt_u32 vcc, 4, v0', sEX)
    a(f'    v_lshlrev_b32 v{vA+5}, 2, v0')
    a(f'    ds_write_b32 v{vA+5}, v{vDA} offset:{L2_FLG}')
    unmask(a, sEX)
    a(f'    s_mov_b32 s{sMODE}, 0')
    a(f'    s_mov_b32 s{sPASS}, 0')
    a(f'    v_mov_b32 v{vEV}, 0')
    a(f'    v_mov_b32 v{vEV+1}, 0')
    a(f'    v_lshrrev_b32 v{vA+1}, 5, v{vLANE}')
    a(f'    v_lshl_add_u32 v{vFL}, v{vA+1}, 8, v{vQ16}')
    a(f'    v_bfe_u32 v{vA+1}, v{vLANE}, 4, 1')
    a(f'    v_lshl_add_u32 v{vFL}, v{vA+1}, 3, v{vFL}')
    a.label('K2_PASS')
    for i in range(4):
        a(f'    v_mov_b32 v{vA+6+i}, {N}')
    a(f'    v_lshlrev_b32 v{vA+5}, 4, v0')
    a(f'    ds_write_b128 v{vA+5}, v[{vA+6}:{vA+9}] offset:{L2_LIST}')
    masked(a, 'v_cmp_gt_u32 vcc, 64, v0', sEX)
    a(f'    v_lshlrev_b32 v{vA+4}, 2, v0')
    a(f'    v_mov_b32 v{vA+3}, 0')
    a(f'    ds_write_b32 v{vA+4}, v{vA+3} offset:{L2_CNT}')
    unmask(a, sEX)
    a(f'    s_cmp_eq_u32 s{sMODE}, 0')
    a('    s_cbranch_scc0 K2_SLOWPARAM')
    a('    s_waitcnt lgkmcnt(0)')
    srd(a, SRD_DESC, 6, 7, NB*DESC_STRIDE, off=WS_DESC)
    a(f'    buffer_load_dword v{vCNT}, v{vA}, s[{SRD_DESC}:{SRD_DESC+3}], s{sT0} offen')
    a(f'    s_cmp_lt_u32 s{sWAVE}, 8')
    a(f'    s_cselect_b32 s{SRD_W}, s8, s62')
    a(f'    s_cselect_b32 s{SRD_W+1}, s9, s63')
    a(f'    s_mov_b32 s{SRD_W+2}, 8192')
    a(f'    s_mov_b32 s{SRD_W+3}, 0x00020000')
    srd(a, SRD_X, 4, 5, N*128)
    srd(a, SRD_WC, 60, 61, 128)
    a(f'    v_and_b32 v{vA+1}, 511, v0')
    a(f'    v_lshlrev_b32 v{vA+1}, 4, v{vA+1}')
    a(f'    buffer_load_dwordx4 v[{vW}:{vW+3}], v{vA+1}, s[{SRD_W}:{SRD_W+3}], 0 offen')
    a(f'    v_lshlrev_b32 v{vA+4}, 4, v0')
    a(f'    v_cmp_gt_u32 vcc, 384, v0')
    a(f'    v_mov_b32 v{vA+3}, {1<<30}')
    a(f'    s_mul_i32 s{sT1}, s{sB}, {NPB*128}')
    a(f'    v_cndmask_b32 v{vA+4}, v{vA+3}, v{vA+4}, vcc')
    a(f'    buffer_load_dwordx4 v[{vXO}:{vXO+3}], v{vA+4}, s[{SRD_X}:{SRD_X+3}], s{sT1} offen')
    a(f'    v_lshrrev_b32 v{vA+7}, 1, v{vQ16}      ; q*8 (wc)')
    a(f'    buffer_load_dwordx2 v[{vWC}:{vWC+1}], v{vA+7}, s[{SRD_WC}:{SRD_WC+3}], 0 offen')
    a('    s_barrier')
    srd(a, SRD_OUT, 10, 11, N*128)
    srd(a, SRD_REC, 6, 7, NC*REC_STRIDE + 64, off=WS_REC)
    srd(a, SRD_T, 6, 7, 0, off=WS_T, stride=256, nrec=N+1)
    a(f'    v_lshrrev_b32 v{vA}, 2, v0             ; c')
    a(f'    v_mul_u32_u24 v{vRO}, {REC_STRIDE}, v{vA}')
    a(f'    v_and_b32 v{vI}, 3, v0')
    a(f'    v_lshlrev_b32 v{vI}, 2, v{vI}')
    a(f'    v_mad_u32_u24 v{vRO}, v{vI}, 5, v{vRO}')
    a(f'    s_mov_b32 s{sT1}, 16')
    a('    s_waitcnt vmcnt(3)                      ; descriptor')
    stamp(a, 1)
    a(f'    v_and_b32 v{vA+1}, 0xffff, v{vCNT}      ; start')
    a(f'    v_lshrrev_b32 v{vCNT}, 16, v{vCNT}      ; cnt')
    a(f'    v_mad_u32_u24 v{vRO}, v{vA+1}, 5, v{vRO}')
    a('    s_branch K2_PARAMDONE')
    a.label('K2_SLOWPARAM')
    a(f'    s_lshl_b32 s{sT0}, s{sB}, 10')
    a(f'    s_lshl_b32 s{sT1}, s{sPASS}, 2')
    a(f'    s_add_u32 s{sT0}, s{sT0}, s{sT1}')
    a(f'    v_mov_b32 v{vA}, 0')
    a(f'    buffer_load_dword v{vCNT}, v{vA}, s[{SRD_DESC}:{SRD_DESC+3}], s{sT0} offen')
    a(f'    s_mul_i32 s{sT0}, s{sPASS}, {REC_STRIDE}')
    a('    s_waitcnt vmcnt(0) lgkmcnt(0)')
    a('    s_barrier')
    a(f'    v_and_b32 v{vA+1}, 0xffff, v{vCNT}')
    a(f'    v_lshlrev_b32 v{vI}, 2, v0')
    a(f'    v_add_u32 v{vA+1}, v{vA+1}, v{vI}')
    a(f'    v_mul_u32_u24 v{vRO}, 5, v{vA+1}')
    a(f'    v_add_u32 v{vRO}, s{sT0}, v{vRO}')
    a(f'    v_lshrrev_b32 v{vCNT}, 16, v{vCNT}')
    a(f'    s_mov_b32 s{sT1}, 4096')
    a.label('K2_PARAMDONE')
    a(f'    v_sub_u32 v{vRM}, v{vCNT}, v{vI}')
    a(f'    s_mul_i32 s{sT0}, s{sT1}, 5')
    a(f'    s_mov_b32 s{sNR}, 0')
    for r in range(2):
        m0 = sM + 8*r
        if r == 1:
            a(f'    v_subrev_u32 v{vRM}, s{sT1}, v{vRM}')
        for h in range(4):
            a(f'    v_cmp_gt_i32 s[{m0+2*h}:{m0+2*h+1}], v{vRM}, {h}' if h else f'    v_cmp_lt_i32 s[{m0}:{m0+1}], 0, v{vRM}')
        a(f'    s_cmp_eq_u64 s[{m0}:{m0+1}], 0')
        a(f'    s_cbranch_scc1 K2_LD_DONE')
        a(f'    s_mov_b64 exec, s[{m0}:{m0+1}]')
        a(f'    buffer_load_dwordx4 v[{vR+4*r}:{vR+4*r+3}], v{vRO}, s[{SRD_REC}:{SRD_REC+3}], 0 offen')
        a(f'    buffer_load_dword v{vLC+r}, v{vRO}, s[{SRD_REC}:{SRD_REC+3}], 0 offen offset:16')
        a(f'    s_mov_b64 exec, -1')
        a(f'    s_mov_b32 s{sNR}, {r+1}')
        if r < 1:
            a(f'    v_add_u32 v{vRO}, s{sT0}, v{vRO}')
    a.label('K2_LD_DONE')
    a(f'    s_or_b32 s{sT0}, s{sMODE}, s{sPASS}')
    a(f'    s_cmp_eq_u32 s{sT0}, 0')
    a('    s_cbranch_scc0 K2_LATER_PASS')
    a(f'    v_lshrrev_b32 v{vA+8}, 3, v0')
    a(f'    v_mul_u32_u24 v{vA+8}, {XS}, v{vA+8}')
    a(f'    v_and_b32 v{vA+7}, 7, v0')
    a(f'    v_lshl_add_u32 v{vA+8}, v{vA+7}, 4, v{vA+8}')
    a(f'    v_add_u32 v{vA+8}, {L2_XT}, v{vA+8}')
    NPF = 1 if TPF else 0
    a(f'    v_bfe_u32 v{vA+1}, v0, 4, 1')
    a(f'    v_bfe_u32 v{vA+2}, v0, 6, 1')
    a(f'    v_lshlrev_b32 v{vA+1}, 1, v{vA+1}')
    a(f'    v_lshl_or_b32 v{vA+1}, v{vA+2}, 2, v{vA+1}')
    a(f'    v_and_b32 v{vA+2}, 7, v0')
    a(f'    v_xor_b32 v{vA+1}, v{vA+1}, v{vA+2}')
    a(f'    v_lshrrev_b32 v{vA+2}, 3, v0')
    a(f'    v_lshlrev_b32 v{vA+2}, 7, v{vA+2}')
    a(f'    v_lshl_add_u32 v{vA+9}, v{vA+1}, 4, v{vA+2}')
    a(f'    v_lshrrev_b32 v{vA+3}, 4, v{vLANE}     ; g')
    a(f'    v_bfe_u32 v{vA}, v{vLANE}, 2, 2        ; r')
    a(f'    v_lshl_add_u32 v{vA+1}, v{vA+3}, 3, v{vA}')
    a(f'    v_lshlrev_b32 v{vA+1}, 7, v{vA+1}')
    a(f'    v_and_b32 v{vA+2}, 1, v{vLANE}')
    a(f'    v_lshl_add_u32 v{vA+1}, v{vA+2}, 3, v{vA+1}')
    a(f'    v_lshrrev_b32 v{vA}, 1, v{vA}')
    a(f'    v_and_b32 v{vA+2}, 1, v{vA+3}')
    a(f'    v_lshl_or_b32 v{vA}, v{vA+2}, 1, v{vA}     ; swz/2')
    a(f'    s_and_b32 s{sT0}, s{sWAVE}, 3')
    a(f'    v_xor_b32 v{vA}, s{sT0}, v{vA}')
    a(f'    v_bfe_u32 v{vA+2}, v{vLANE}, 1, 1')
    a(f'    v_lshl_or_b32 v{vA}, v{vA}, 1, v{vA+2}')
    a(f'    v_lshl_add_u32 v{vTRA}, v{vA}, 4, v{vA+1}')
    a(f'    s_lshr_b32 s{sT1}, s{sWAVE}, 2')
    a(f'    s_lshl_b32 s{sT1}, s{sT1}, 4')
    a(f'    v_and_b32 v{vA+2}, 15, v{vLANE}')
    a(f'    v_add_u32 v{vROW}, s{sT1}, v{vA+2}     ; row')
    a(f'    v_mul_u32_u24 v{vA+1}, {XS}, v{vROW}')
    a(f'    v_lshl_add_u32 v{vA+1}, v{vA+3}, 4, v{vA+1}')
    a(f'    v_add_u32 v{vXRA}, {L2_XT}, v{vA+1}')
    a(f'    v_mul_u32_u24 v{vA+4}, {TS}, v{vROW}')
    a(f'    v_lshl_add_u32 v{vA+4}, v{vA+3}, 4, v{vA+4}')
    a(f'    s_lshl_b32 s{sT0}, s{sT0}, 6')
    a(f'    s_add_u32 s{sT0}, s{sT0}, {L2_EAT}')
    a(f'    v_add_u32 v{vEAA}, s{sT0}, v{vA+4}')
    if TPF:
        srd(a, SRD_PF, 6, 7, T_BYTES, off=WS_T)
        a(f'    s_mul_i32 s{sT0}, s{sJ}, {640*128}')
        a(f'    s_mul_i32 s{sT1}, s{sWAVE}, {40*128}')
        a(f'    s_add_u32 s{sJ}, s{sT0}, s{sT1}')
        a(f'    v_lshlrev_b32 v{vA+3}, 7, v{vLANE}')
        a(f'    v_cmp_gt_u32 vcc, {PFN}, v{vLANE}')
        a(f'    v_mov_b32 v{vA+4}, {1<<30}')
        a('    s_nop 0')
        a(f'    v_cndmask_b32 v{vPFA}, v{vA+4}, v{vA+3}, vcc')
    a(f'    v_mov_b32 v{vA+2}, 1')
    a(f'    s_waitcnt vmcnt(0)')
    if TPF and PFPOS == 1:
        a(f'    buffer_load_dword v{vPF}, v{vPFA}, s[{SRD_PF}:{SRD_PF+3}], s{sJ} offen')
    a('    s_branch K2_RANKS')
    a.label('K2_LATER_PASS')
    a(f'    v_mov_b32 v{vA+2}, 1')
    a('    s_waitcnt vmcnt(0)')
    a.label('K2_RANKS')
    stamp(a, 2)
    for r in range(2):
        a(f'    s_cmp_le_u32 s{sNR}, {r}')
        a('    s_cbranch_scc1 K2_RK_DONE')
        d = vR + 4*r
        a(f'    v_and_b32 v{vLA+4*r}, 0xff, v{d+1}')
        a(f'    v_bfe_u32 v{vLA+4*r+1}, v{d+2}, 8, 8')
        a(f'    v_bfe_u32 v{vLA+4*r+2}, v{d+3}, 16, 8')
        a(f'    v_lshrrev_b32 v{vLA+4*r+3}, 24, v{vLC+r}')
        for h in range(4):
            k = 4*r + h
            a(f'    s_mov_b64 exec, s[{sM+2*k}:{sM+2*k+1}]')
            a(f'    ds_add_rtn_u32 v{vRK+k}, v{vLA+k}, v{vA+2} offset:{L2_CNT}')
        a('    s_mov_b64 exec, -1')
        a(f'    v_alignbyte_b32 v{d+1}, v{d+2}, v{d+1}, 1')
        a(f'    v_alignbyte_b32 v{d+2}, v{d+3}, v{d+2}, 2')
        a(f'    v_alignbyte_b32 v{d+3}, v{vLC+r}, v{d+3}, 3')
    a.label('K2_RK_DONE')
    masked(a, f'v_cmp_lt_u32 vcc, 32, v{vCNT}', sEX, 'K2_NOOVF')
    a(f'    v_mov_b32 v{vA+3}, 0')
    a(f'    ds_write_b32 v{vA+3}, v{vA+2} offset:{L2_FLG}')
    unmask(a, sEX, 'K2_NOOVF')
    a(f'    s_or_b32 s{sT0}, s{sMODE}, s{sPASS}')
    a(f'    s_cmp_eq_u32 s{sT0}, 0')
    a('    s_cbranch_scc0 K2_NOWST')
    a(f'    ds_write_b128 v{vA+9}, v[{vW}:{vW+3}] offset:{L2_W}')
    a(f'    s_cmp_lt_u32 s{sWAVE}, 6')
    a('    s_cbranch_scc0 K2_NOXST')
    a(f'    ds_write_b128 v{vA+8}, v[{vXO}:{vXO+3}]')
    a.label('K2_NOXST')
    a.label('K2_NOWST')
    a(f'    v_lshlrev_b32 v{vA+1}, 2, v{vLANE}')
    a(f'    v_mov_b32 v{vA}, 0')
    a('    s_waitcnt lgkmcnt(0)')
    stamp(a, 3)
    a('    s_barrier')
    stamp(a, 4)
    if TPF and PFPOS == 0:
        a(f'    s_or_b32 s{sT0}, s{sMODE}, s{sPASS}')
        a(f'    s_cmp_eq_u32 s{sT0}, 0')
        a('    s_cbranch_scc0 K2_NOPF')
        a(f'    buffer_load_dword v{vPF}, v{vPFA}, s[{SRD_PF}:{SRD_PF+3}], s{sJ} offen')
        a.label('K2_NOPF')
    a(f'    ds_read_b32 v{vNG}, v{vA+1} offset:{L2_CNT}')
    a(f'    ds_read_b32 v{vA+4}, v{vA} offset:{L2_FLG}')
    a('    s_waitcnt lgkmcnt(1)')
    a(f'    v_add_u32 v{vNG}, 3, v{vNG}')
    a(f'    v_lshrrev_b32 v{vNG}, 2, v{vNG}')
    a(f'    v_mov_b32 v{vGE}, v{vNG}')
    dpp_scan(a, vGE)
    a('    s_waitcnt lgkmcnt(0)')
    a(f'    v_readlane_b32 s{sGT}, v{vGE}, {NPB-1}')
    a(f'    v_sub_u32 v{vGS}, v{vGE}, v{vNG}')
    a(f'    v_readfirstlane_b32 s{sT0}, v{vA+4}')
    a(f'    v_lshlrev_b32 v{vA+6}, 4, v{vGS}')
    a(f'    v_cmp_lt_u32 vcc, {NPB}, v{vLANE}')
    a(f'    s_add_u32 s{sR}, s{sGT}, 15')
    a(f'    s_lshr_b32 s{sR}, s{sR}, 4')
    a(f'    v_cndmask_b32 v{vGS}, v{vGS}, -1, vcc')
    a(f'    s_cmp_eq_u32 s{sMODE}, 0')
    a('    s_cbranch_scc0 K2_NOSWITCH')
    a(f'    s_cmp_gt_u32 s{sGT}, {(CAP - 64)//4}')
    a(f'    s_cselect_b32 s{sT1}, 1, 0')
    a(f'    s_or_b32 s{sT0}, s{sT0}, s{sT1}')
    a(f'    s_cmp_eq_u32 s{sT0}, 0')
    a('    s_cbranch_scc1 K2_NOSWITCH')
    a(f'    s_mov_b32 s{sNR}, 0')
    a(f'    s_mov_b32 s{sGT}, 0')
    a(f'    s_mov_b32 s{sR}, 0')
    a(f'    s_mov_b32 s{sMODE}, 2')
    a.label('K2_NOSWITCH')
    for r in range(2):
        a(f'    s_cmp_le_u32 s{sNR}, {r}')
        a('    s_cbranch_scc1 K2_LK_DONE')
        for h in range(4):
            k = 4*r + h
            a(f'    ds_bpermute_b32 v{vB+k}, v{vLA+k}, v{vA+6}')
    a.label('K2_LK_DONE')
    a(f'    s_cmp_eq_u32 s{sPASS}, 0')
    a('    s_cbranch_scc0 K2_NOTAB')
    a(f'    s_cmp_eq_u32 s{sMODE}, 1')
    a('    s_cbranch_scc1 K2_NOTAB')
    a(f'    s_cmp_lt_u32 s{sWAVE}, 12')
    a('    s_cbranch_scc0 K2_WC')
    a(f'    ds_read_b128 v[{vXO}:{vXO+3}], v{vXRA}')
    a(f'    ds_read_b128 v[{vXO+4}:{vXO+7}], v{vXRA} offset:64')
    order = [(m, ks) for ks in range(2) for m in range(2)]
    for i, (m, ks) in enumerate(order):
        b = vOP + 4*i
        off = L2_W + m*8192 + ks*32*128
        a(f'    ds_read_b64_tr_b16 v[{b}:{b+1}], v{vTRA} offset:{off}')
        a(f'    ds_read_b64_tr_b16 v[{b+2}:{b+3}], v{vTRA} offset:{off+512}')
    for i, (m, ks) in enumerate(order):
        b = vOP + 4*i
        a(f'    s_waitcnt lgkmcnt({2*(3-i)})')
        acc = vAC + 4*m; x = vXO2 + 4*ks
        c = '0' if ks == 0 else f'v[{acc}:{acc+3}]'
        a(f'    v_mfma_f32_16x16x32_bf16 v[{acc}:{acc+3}], v[{b}:{b+3}], v[{x}:{x+3}], {c}')
    a(f'    s_mov_b32 s{sT0}, {hex(f2u(-LOG2E))}')
    a(f'    s_mov_b32 s{sT1}, {hex(f2u(60.0))}')
    a('    s_nop 6')
    for i in range(4):
        a(f'    v_mul_f32 v{vAC+i}, s{sT0}, v{vAC+i}')
    a(f'    ds_write_b128 v{vEAA}, v[{vAC+4}:{vAC+7}] offset:{L2_UT-L2_EAT}')
    a(f'    ds_write_b128 v{vEAA}, v[{vAC}:{vAC+3}] offset:{L2_AT-L2_EAT}')
    for i in range(4):
        a(f'    v_exp_f32 v{vOP+i}, v{vAC+i}')
    a(f'    v_max3_f32 v{vA+5}, |v{vAC}|, |v{vAC+1}|, |v{vAC+2}|')
    a(f'    v_max_f32 v{vA+5}, v{vA+5}, |v{vAC+3}|')
    a(f'    ds_write_b128 v{vEAA}, v[{vOP}:{vOP+3}]')
    a(f'    v_cmp_nle_f32 vcc, v{vA+5}, s{sT1}')
    a(f'    v_cmp_gt_u32 s[{sEX}:{sEX+1}], {NPB}, v{vROW}')
    a(f'    s_and_b64 vcc, vcc, s[{sEX}:{sEX+1}]')
    a(f'    s_and_saveexec_b64 s[{sEX}:{sEX+1}], vcc')
    a('    s_cbranch_execz K2_GUARD_OK')
    a(f'    v_mov_b32 v{vA+5}, 1')
    a(f'    v_mov_b32 v{vA+7}, 0')
    a(f'    ds_write_b32 v{vA+7}, v{vA+5} offset:{L2_FLG+4}')
    unmask(a, sEX, 'K2_GUARD_OK')
    a.label('K2_WC')
    a(f'    s_mov_b32 s{sT0}, {hex(f2u(-LOG2E))}')
    a(f'    v_and_b32 v{vWC+3}, 0xffff0000, v{vWC+1}')
    a(f'    v_lshlrev_b32 v{vWC+2}, 16, v{vWC+1}')
    a(f'    v_and_b32 v{vWC+1}, 0xffff0000, v{vWC}')
    a(f'    v_lshlrev_b32 v{vWC}, 16, v{vWC}')
    for k in range(4):
        a(f'    v_mul_f32 v{vWC+k}, s{sT0}, v{vWC+k}')
    for k in range(U):
        a(f'    v_mov_b32 v{vP+2*k+1}, v{vQ16}')
    a.label('K2_NOTAB')
    a('    s_waitcnt lgkmcnt(0)')
    for r in range(2):
        a(f'    s_cmp_le_u32 s{sNR}, {r}')
        a('    s_cbranch_scc1 K2_SC_DONE')
        for h in range(4):
            k = 4*r + h
            a(f'    s_mov_b64 exec, s[{sM+2*k}:{sM+2*k+1}]')
            a(f'    v_lshl_add_u32 v{vB+k}, v{vRK+k}, 2, v{vB+k}')
            a(f'    ds_write_b32 v{vB+k}, v{vR+k} offset:{L2_LIST}')
    a.label('K2_SC_DONE')
    a('    s_mov_b64 exec, -1')
    a(f'    s_mul_i32 s{sG0}, s{sR}, s{sWAVE}')
    a(f'    s_add_u32 s{sG1}, s{sG0}, s{sR}')
    a(f'    s_min_u32 s{sG1}, s{sG1}, s{sGT}')
    a(f'    v_lshrrev_b32 v{vSA}, 4, v{vLANE}')
    a(f'    v_lshlrev_b32 v{vSA}, 2, v{vSA}         ; slot*4')
    a(f'    s_lshl_b32 s{sT0}, s{sG0}, 4')
    a(f'    v_add_u32 v{vSA}, s{sT0}, v{vSA}')
    a(f'    v_mov_b32 v{vA}, 0')
    a('    s_waitcnt lgkmcnt(0)')
    a('    s_barrier')
    stamp(a, 5)

    def tload(k):
        d = vDAT + 4*k
        a(f'    buffer_load_dwordx4 v[{d}:{d+3}], v[{vP+2*k}:{vP+2*k+1}], s[{SRD_T}:{SRD_T+3}], 0 idxen offen')

    a(f'    s_cmp_ge_u32 s{sG0}, s{sG1}')
    a('    s_cbranch_scc1 K2_MAIN_DONE')
    a(f'    ds_read_b32 v{vA+5}, v{vA} offset:{L2_FLG+4}')
    for k in range(U):
        a(f'    ds_read_u16 v{vP+2*k}, v{vSA} offset:{L2_LIST + 16*k}')
    a(f'    ds_read_u16_d16_hi v{vEV}, v{vSA} offset:{L2_LIST + 2}')
    if PRIO:
        a(f'    s_add_u32 s{sT0}, s{sR}, 3')
        a(f'    s_lshr_b32 s{sT0}, s{sT0}, 2            ; iterations')
        for n, reg in zip(PRT, (sPR, sPQ, sPQ2)):
            a(f'    s_mul_i32 s{reg}, s{sT0}, {n}')
            a(f'    s_lshr_b32 s{reg}, s{reg}, 4')
            a(f'    s_add_u32 s{reg}, s{reg}, 1')
        a(f'    s_mov_b32 s{sLVL}, 3')
        a('    s_setprio 3')
    a(f'    s_mov_b32 s{sGEND}, s{sG0}')
    a('    s_waitcnt lgkmcnt(0)')
    for k in range(U):
        tload(k)
    a(f'    v_readfirstlane_b32 s{sSAFE}, v{vA+5}')
    a(f'    ds_read_u16 v{vP}, v{vSA} offset:{L2_LIST + 16*U}')
    a(f'    s_cmp_eq_u32 s{sSAFE}, 0')
    a(f'    s_mov_b32 s{sEAB}, {L2_AT}')
    a(f'    s_cselect_b32 s{sEAB}, {L2_EAT}, s{sEAB}')
    a('    s_cbranch_scc0 K2S_ENTER')
    a('    s_branch K2F_ENTER')

    def next_node():
        a(f'    v_cmp_ge_u32 vcc, s{sGEND}, v{vGS}')
        a(f'    s_bcnt1_i32_b64 s{sT0}, vcc')
        a(f'    s_sub_u32 s{sNODE}, s{sT0}, 1')
        a(f'    v_readlane_b32 s{sT1}, v{vGS}, s{sT0}')
        a(f'    s_mul_i32 s{sT0}, s{sNODE}, {TS}')
        a(f'    s_add_u32 s{sT0}, s{sT0}, s{sEAB}')
        a(f'    v_add_u32 v{vEAA}, s{sT0}, v{vQ16}')
        a(f'    ds_read_b128 v[{vEA}:{vEA+3}], v{vEAA}')
        a(f'    s_min_u32 s{sT1}, s{sT1}, s{sG1}')
        a(f'    s_sub_u32 s{sLEFT}, s{sT1}, s{sGEND}')
        a(f'    s_sub_u32 s{sLEFT}, s{sLEFT}, 1')
        a(f'    s_mov_b32 s{sGEND}, s{sT1}')

    def set_slot():
        a(f'    s_add_u32 s{sSLOT}, s{sNODE}, s{sWAVE}')
        a(f'    s_lshl_b32 s{sSLOT}, s{sSLOT}, 9')

    def flush():
        a(f'    v_add_u32 v{vACC}, s{sSLOT}, v{vFL}')
        for i in range(4):
            a(f'    v_permlane32_swap_b32 v{vDEN+i}, v{vNUM+i}')
        a(f'    v_pk_add_f32 v[{vDEN}:{vDEN+1}], v[{vDEN}:{vDEN+1}], v[{vNUM}:{vNUM+1}]')
        a(f'    v_pk_add_f32 v[{vDEN+2}:{vDEN+3}], v[{vDEN+2}:{vDEN+3}], v[{vNUM+2}:{vNUM+3}]')
        a('    s_nop 1')
        a(f'    v_permlane16_swap_b32 v{vDEN}, v{vDEN+2}')
        a(f'    v_permlane16_swap_b32 v{vDEN+1}, v{vDEN+3}')
        a(f'    v_pk_add_f32 v[{vNUM}:{vNUM+1}], v[{vDEN}:{vDEN+1}], v[{vDEN+2}:{vDEN+3}]')
        a(f'    ds_write_b64 v{vACC}, v[{vNUM}:{vNUM+1}] offset:{L2_SLOT}')

    def step(k, safe, init):
        d = vDAT + 4*k
        ev = vEV + (k & 1); evn = vEV + ((k+1) & 1)
        pn = vP + 2*((k+1) % U)
        for i in range(4):
            a(f'    v_fma_mix_f32 v{vT+i}, v{ev}, v{vWC+i}, v{d+i} op_sel:[0,0,0] op_sel_hi:[0,0,1]')
        a(f'    ds_read_u16_d16_hi v{evn}, v{vSA} offset:{L2_LIST + 16*(k+1) + 2}')
        a(f'    ds_read_u16 v{pn}, v{vSA} offset:{L2_LIST + 16*(k+1+U)}')
        if init and safe:
            a('    s_waitcnt lgkmcnt(3)')
        if safe:
            a(f'    v_pk_add_f32 v[{vT}:{vT+1}], v[{vT}:{vT+1}], v[{vEA}:{vEA+1}]')
            a(f'    v_pk_add_f32 v[{vT+2}:{vT+3}], v[{vT+2}:{vT+3}], v[{vEA+2}:{vEA+3}]')
        for i in range(4):
            a(f'    v_exp_f32 v{vT+i}, v{vT+i}')
        if init and not safe:
            a('    s_waitcnt lgkmcnt(3)')
        if safe:
            a(f'    v_pk_add_f32 v[{vT}:{vT+1}], v[{vT}:{vT+1}], 1.0 op_sel_hi:[1,0]')
            a(f'    v_pk_add_f32 v[{vT+2}:{vT+3}], v[{vT+2}:{vT+3}], 1.0 op_sel_hi:[1,0]')
        else:
            a(f'    v_pk_fma_f32 v[{vT}:{vT+1}], v[{vEA}:{vEA+1}], v[{vT}:{vT+1}], 1.0 op_sel_hi:[1,1,0]')
            a(f'    v_pk_fma_f32 v[{vT+2}:{vT+3}], v[{vEA+2}:{vEA+3}], v[{vT+2}:{vT+3}], 1.0 op_sel_hi:[1,1,0]')
        if init:
            for i in range(4):
                a(f'    v_rcp_f32 v{vDEN+i}, v{vT+i}')
            a('    s_nop 0')
            a(f'    v_pk_mul_f32 v[{vNUM}:{vNUM+1}], v[{vDEN}:{vDEN+1}], v[{d}:{d+1}]')
            a(f'    v_pk_mul_f32 v[{vNUM+2}:{vNUM+3}], v[{vDEN+2}:{vDEN+3}], v[{d+2}:{d+3}]')
        else:
            for i in range(4):
                a(f'    v_rcp_f32 v{vT+i}, v{vT+i}')
            a(f'    v_pk_add_f32 v[{vDEN}:{vDEN+1}], v[{vDEN}:{vDEN+1}], v[{vT}:{vT+1}]')
            a(f'    v_pk_add_f32 v[{vDEN+2}:{vDEN+3}], v[{vDEN+2}:{vDEN+3}], v[{vT+2}:{vT+3}]')
            a(f'    v_pk_fma_f32 v[{vNUM}:{vNUM+1}], v[{vT}:{vT+1}], v[{d}:{d+1}], v[{vNUM}:{vNUM+1}]')
            a(f'    v_pk_fma_f32 v[{vNUM+2}:{vNUM+3}], v[{vT+2}:{vT+3}], v[{d+2}:{d+3}], v[{vNUM+2}:{vNUM+3}]')
        tload(k)
        if k == U-1:
            a(f'    v_add_u32 v{vSA}, {16*U}, v{vSA}')

    def loopback(pfx):
        if PRIO:
            a(f'    s_sub_u32 s{sPR}, s{sPR}, 1')
            a(f'    s_cmp_lg_u32 s{sPR}, 0')
            a(f'    s_cbranch_scc1 {pfx}_STEP0')
            a(f'    s_branch {pfx}_PRIO')
        else:
            a(f'    s_branch {pfx}_STEP0')

    for pfx, safe in (('K2F', False), ('K2S', True)):
        a.label(f'{pfx}_ENTER')
        next_node()
        set_slot()
        a('    s_waitcnt vmcnt(3) lgkmcnt(0)')
        step(0, safe, True)
        a(f'    s_branch {pfx}_STEP1')
        for k in range(U):
            a.label(f'{pfx}_STEP{k}')
            a(f'    s_waitcnt vmcnt({U-1}) lgkmcnt(0)')
            a(f'    s_sub_u32 s{sLEFT}, s{sLEFT}, 1')
            a(f'    s_cbranch_scc1 {pfx}_FLUSH{k}')
            step(k, safe, False)
            if k == U-1:
                loopback(pfx)
        for k in range(U):
            a.label(f'{pfx}_FLUSH{k}')
            a(f'    s_cmp_ge_u32 s{sGEND}, s{sG1}')
            a(f'    s_cbranch_scc1 K2_LAST')
            next_node()
            flush()
            set_slot()
            step(k, safe, True)
            if k == U-1:
                loopback(pfx)
            else:
                a(f'    s_branch {pfx}_STEP{k+1}')
        if PRIO:
            a.label(f'{pfx}_PRIO')
            a(f'    s_sub_u32 s{sLVL}, s{sLVL}, 1')
            a(f'    s_cmp_eq_u32 s{sLVL}, 2')
            a(f'    s_cbranch_scc1 {pfx}_PRIO2')
            a(f'    s_cmp_eq_u32 s{sLVL}, 1')
            a(f'    s_cbranch_scc1 {pfx}_PRIO1')
            a(f'    s_mov_b32 s{sPR}, 0x7fffffff')
            a('    s_setprio 0')
            a(f'    s_branch {pfx}_STEP0')
            a.label(f'{pfx}_PRIO2')
            a(f'    s_mov_b32 s{sPR}, s{sPQ}')
            a('    s_setprio 2')
            a(f'    s_branch {pfx}_STEP0')
            a.label(f'{pfx}_PRIO1')
            a(f'    s_mov_b32 s{sPR}, s{sPQ2}')
            a('    s_setprio 1')
            a(f'    s_branch {pfx}_STEP0')
    a.label('K2_LAST')
    flush()
    a.label('K2_MAIN_DONE')
    if PRIO: a('    s_setprio 0')
    a(f'    s_cmp_eq_u32 s{sMODE}, 2')
    a('    s_cbranch_scc0 K2_NOABORT')
    a(f'    s_mov_b32 s{sMODE}, 1')
    a(f'    s_mov_b32 s{sPASS}, 0')
    a('    s_waitcnt vmcnt(0) lgkmcnt(0)')
    a('    s_barrier')
    a('    s_branch K2_PASS')
    a.label('K2_NOABORT')
    a(f'    v_cvt_f32_u32 v{vA}, s{sR}')
    a(f'    v_cvt_f32_u32 v{vA+1}, v{vGS}')
    a(f'    v_rcp_f32 v{vA}, v{vA}')
    a(f'    v_cvt_f32_u32 v{vA+2}, v{vGE}')
    a(f'    v_add_f32 v{vA+1}, 0.5, v{vA+1}')
    a(f'    v_add_f32 v{vA+2}, -0.5, v{vA+2}')
    a(f'    v_mul_f32 v{vA+1}, v{vA+1}, v{vA}')
    a(f'    v_mul_f32 v{vA+2}, v{vA+2}, v{vA}')
    a(f'    v_cvt_u32_f32 v{vA+1}, v{vA+1}          ; wlo')
    a(f'    v_cvt_u32_f32 v{vA+2}, v{vA+2}          ; whi')
    a(f'    v_sub_u32 v{vA+2}, v{vA+2}, v{vA+1}')
    a(f'    v_add_u32 v{vA+2}, 1, v{vA+2}')
    a(f'    v_cmp_eq_u32 vcc, 0, v{vNG}')
    a(f'    v_add_u32 v{vA+1}, v{vA+1}, v{vLANE}')
    a(f'    v_and_b32 v{vA+1}, 0xffff, v{vA+1}')
    a(f'    v_cndmask_b32 v{vA+2}, v{vA+2}, 0, vcc')
    a(f'    v_lshl_or_b32 v{vA+3}, v{vA+2}, 16, v{vA+1}')
    a(f'    v_lshrrev_b32 v{vA}, 4, v0')
    a(f'    v_and_b32 v{vA+4}, 63, v{vA}')
    a(f'    v_lshlrev_b32 v{vA+4}, 2, v{vA+4}')
    a(f'    ds_bpermute_b32 v{vA+1}, v{vA+4}, v{vA+3}')
    a(f'    v_mul_u32_u24 v{vA+5}, {TS}, v{vA}')
    a('    s_waitcnt vmcnt(0) lgkmcnt(0)')
    a(f'    v_cmp_gt_u32 vcc, {NPB*16}, v0')
    a(f'    v_lshrrev_b32 v{vA+2}, 16, v{vA+1}')
    a(f'    v_and_b32 v{vA+1}, 0xffff, v{vA+1}')
    a(f'    v_cndmask_b32 v{vA+2}, 0, v{vA+2}, vcc')
    a(f'    v_lshl_add_u32 v{vA+1}, v{vA+1}, 9, v{vQ16}')
    stamp(a, 6)
    a('    s_barrier')
    a.label('K2_FOLD')
    masked(a, f'v_cmp_lt_u32 vcc, 0, v{vA+2}', sEX, 'K2_FOLD_DONE')
    a(f'    ds_read_b128 v[{vDEN}:{vDEN+3}], v{vA+1} offset:{L2_SLOT}')
    a(f'    ds_read_b128 v[{vNUM}:{vNUM+3}], v{vA+1} offset:{L2_SLOT+256}')
    a(f'    v_add_u32 v{vA+1}, 512, v{vA+1}')
    a(f'    v_add_u32 v{vA+2}, -1, v{vA+2}')
    a('    s_waitcnt lgkmcnt(1)')
    a(f'    v_pk_add_f32 v[{vDA}:{vDA+1}], v[{vDA}:{vDA+1}], v[{vDEN}:{vDEN+1}]')
    a(f'    v_pk_add_f32 v[{vDA+2}:{vDA+3}], v[{vDA+2}:{vDA+3}], v[{vDEN+2}:{vDEN+3}]')
    a('    s_waitcnt lgkmcnt(0)')
    a(f'    v_pk_add_f32 v[{vNA}:{vNA+1}], v[{vNA}:{vNA+1}], v[{vNUM}:{vNUM+1}]')
    a(f'    v_pk_add_f32 v[{vNA+2}:{vNA+3}], v[{vNA+2}:{vNA+3}], v[{vNUM+2}:{vNUM+3}]')
    unmask(a, sEX)
    a('    s_branch K2_FOLD')
    unmask(a, sEX, 'K2_FOLD_DONE')
    a(f'    s_cmp_eq_u32 s{sMODE}, 0')
    a('    s_cbranch_scc1 K2_EPI')
    a(f'    s_add_u32 s{sPASS}, s{sPASS}, 1')
    a(f'    s_cmp_lt_u32 s{sPASS}, {NC}')
    a('    s_cbranch_scc0 K2_EPI')
    a('    s_barrier')
    a('    s_branch K2_PASS')
    a.label('K2_EPI')
    a(f'    s_mov_b32 s{sXT}, {L2_XT}')
    masked(a, f'v_cmp_gt_u32 vcc, {NPB*16}, v0', sEX, 'K2_FIN')
    a(f'    v_add_u32 v{vA+5}, v{vA+5}, v{vQ16}')
    a(f'    v_add_u32 v{vA+5}, {L2_UT}, v{vA+5}')
    a(f'    ds_read_b128 v[{vDEN}:{vDEN+3}], v{vA+5}')
    a(f'    v_lshrrev_b32 v{vA+6}, 4, v0')
    a(f'    v_mul_u32_u24 v{vA+6}, {XS}, v{vA+6}')
    a(f'    v_lshrrev_b32 v{vA+7}, 1, v{vQ16}')
    a(f'    v_add3_u32 v{vA+6}, v{vA+6}, v{vA+7}, s{sXT}')
    a(f'    ds_read_b64 v[{vX}:{vX+1}], v{vA+6}')
    a(f'    s_mov_b32 s{sT0}, {hex(f2u(1e-6))}')
    a('    s_waitcnt lgkmcnt(0)')
    a(f'    v_lshlrev_b32 v{vT}, 16, v{vX}')
    a(f'    v_and_b32 v{vT+1}, 0xffff0000, v{vX}')
    a(f'    v_lshlrev_b32 v{vT+2}, 16, v{vX+1}')
    a(f'    v_and_b32 v{vT+3}, 0xffff0000, v{vX+1}')
    for i in range(4):
        a(f'    v_add_f32 v{vDA+i}, s{sT0}, v{vDA+i}')
    for i in range(4):
        a(f'    v_rcp_f32 v{vDA+i}, v{vDA+i}')
    a('    s_waitcnt lgkmcnt(0)')
    for i in range(4):
        a(f'    v_fma_f32 v{vNA+i}, v{vNA+i}, v{vDA+i}, v{vDEN+i}    ; z = U + agg')
    for i in range(4):
        a(f'    v_mul_f32 v{vDEN+i}, 0, v{vNA+i}                     ; 0*z')
        a(f'    v_cmp_lt_f32 vcc, 0, v{vNA+i}')
        a('    s_nop 1')
        a(f'    v_cndmask_b32 v{vNA+i}, v{vDEN+i}, v{vNA+i}, vcc')
        a(f'    v_add_f32 v{vNA+i}, v{vNA+i}, v{vT+i}')
    a(f'    v_cvt_pk_bf16_f32 v{vDEN}, v{vNA}, v{vNA+1}')
    a(f'    v_cvt_pk_bf16_f32 v{vDEN+1}, v{vNA+2}, v{vNA+3}')
    a(f'    s_mul_i32 s{sT1}, s{sB}, {NPB*128}')
    a(f'    v_lshlrev_b32 v{vA+1}, 3, v0')
    a(f'    buffer_store_dwordx2 v[{vDEN}:{vDEN+1}], v{vA+1}, s[{SRD_OUT}:{SRD_OUT+3}], s{sT1} offen')
    a.label('K2_FIN')
    if STAMP:
        a('    s_mov_b64 exec, -1')
        a('    s_waitcnt vmcnt(0)')
    stamp(a, 7); stamp(a, 1, True)
    stamp_flush(a, sWAVE, sB, 1, 6)
    a.label('K2_END')
    a('    s_endpgm')

def kd(a, name, vgpr, sgpr):
    a(f'.amdhsa_kernel {name}')
    a(f'  .amdhsa_next_free_vgpr {vgpr}')
    a(f'  .amdhsa_next_free_sgpr {sgpr}')
    a(f'  .amdhsa_accum_offset {((vgpr+3)//4)*4}')
    a('  .amdhsa_group_segment_fixed_size 0')
    a('  .amdhsa_kernarg_size 96')
    a('  .amdhsa_user_sgpr_count 2')
    a('  .amdhsa_user_sgpr_kernarg_segment_ptr 1')
    a('  .amdhsa_system_sgpr_workgroup_id_x 1')
    a('  .amdhsa_float_denorm_mode_32 3')
    a('.end_amdhsa_kernel')

def main(out):
    a = Asm()
    a(f'; @launch kernel=k1_kernel grid=({K1_GRID},1,1) block=(1024,1,1) lds={K1_LDS}')
    a(f'; @launch kernel=k2_kernel grid=({NB},1,1) block=(1024,1,1) lds={K2_LDS}')
    a('.amdgcn_target "amdgcn-amd-amdhsa--gfx950"')
    a('.text')
    a('.globl k1_kernel')
    gen_k1(a)
    a('.globl k2_kernel')
    gen_k2(a)
    a('.section .rodata,"a"')
    a('.p2align 6')
    kd(a, 'k1_kernel', 96, 102 if STAMP else 72)
    a('.p2align 6')
    kd(a, 'k2_kernel', 124, 102 if STAMP else 80)
    a.l = [x for x in a.l if x is not None]
    open(out, 'w').write(a.text())

if __name__ == '__main__':
    main(sys.argv[1] if len(sys.argv) > 1 else 'standalone__edge_featured_mpnn_gatedgcn__graph.s')
```

```python
import sys, os, struct
def env(n, d): return os.environ.get(n, d)

N = 10000; E = 640000
NPB = 40; NB = 250; EPC = 2560; NC = 250
LOG2E = 1.4426950408889634
WS_REC  = 0
REC_STRIDE = EPC*5
WS_DESC = 3407872
DESC_STRIDE = 1024
WS_T    = 4194304
T_BYTES = (N+1)*256

STAMP = int(env('STAMP', '0'))
K1ST = env('K1ST', 'sc1')
PRIO = int(env('PRIO', '1'))
TFIRST = int(env('TFIRST', '1'))
WS_STAMP = 128 << 20
ST0 = 80

def f2u(f): return struct.unpack('<I', struct.pack('<f', f))[0]

class Asm:
    def __init__(self): self.l = []
    def __call__(self, s=''):
        for line in s.split('\n'): self.l.append(line)
    def label(self, n): self.l.append(n + ':')
    def text(self): return '\n'.join(self.l) + '\n'

def stamp(a, i, real=False):
    if STAMP:
        r = ST0 + 2*(8+i if real else i)
        a(f"    {'s_memrealtime' if (real or STAMP == 3) else 's_memtime'} s[{r}:{r+1}]")
def stamp_flush(a, wave_sgpr, wg_sgpr, kern, ws_lo):
    if not STAMP: return
    a('    s_waitcnt lgkmcnt(0)')
    a('    s_mov_b64 exec, 1')
    a('    v_mov_b32 v2, 0')
    if STAMP == 3:
        lab = f'STSKIP{kern}_{len(a.l)}'
        a(f'    s_and_b32 s14, s{wg_sgpr}, 15')
        a('    s_cmp_eq_u32 s14, 0')
        a(f'    s_cbranch_scc0 {lab}')
        a('    s_load_dwordx2 s[12:13], s[0:1], 80')
        a('    s_waitcnt lgkmcnt(0)')
        if kern == 0:
            a('    s_add_u32 s12, s12, 512')
            a('    s_addc_u32 s13, s13, 0')
        slots = [(0, 8, True), (1, 8, False), (2, 2, False), (3, 4, False), (4, 6, False), (5, 9, False)] if kern == 0 else \
                [(6, 8, True), (7, 8, False), (8, 1, False), (9, 2, False), (10, 4, False), (11, 5, False), (12, 6, False), (13, 9, False), (14, 6, True)]
        for slot, st, inv in slots:
            a(f'    v_mov_b32 v3, s{ST0+2*st}')
            if inv: a('    v_not_b32 v3, v3')
            a(f'    global_atomic_umax v2, v3, s[12:13] offset:{4*slot}')
        a('    s_waitcnt vmcnt(0)')
        a.label(lab)
        return
    a(f'    s_add_u32 s12, s{ws_lo}, {WS_STAMP + kern*(4<<20)}')
    a(f'    s_addc_u32 s13, s{ws_lo+1}, 0')
    a(f'    s_mov_b32 s14, {4<<20}')
    a('    s_mov_b32 s15, 0x00020000')
    a(f'    s_lshl_b32 s16, s{wg_sgpr}, 4')
    a(f'    s_add_u32 s16, s16, s{wave_sgpr}')
    a(f'    s_lshl_b32 s16, s16, 6')
    for i in range(8):
        a(f'    v_mov_b32 v3, s{ST0+2*i}')
        a(f'    buffer_store_dword v3, v2, s[12:15], s16 offen offset:{4*i}')
    for i in range(2):
        a(f'    v_mov_b32 v3, s{ST0+2*(8+i)}')
        a(f'    buffer_store_dword v3, v2, s[12:15], s16 offen offset:{4*(10+i)}')
    a('    s_waitcnt vmcnt(0)')

def srd(a, sreg, lo, hi, nbytes, off=0, stride=0, nrec=None):
    if off:
        a(f'    s_add_u32 s{sreg}, s{lo}, {off}')
        a(f'    s_addc_u32 s{sreg+1}, s{hi}, 0')
    else:
        a(f'    s_mov_b32 s{sreg}, s{lo}')
        a(f'    s_mov_b32 s{sreg+1}, s{hi}')
    if stride:
        a(f'    s_and_b32 s{sreg+1}, s{sreg+1}, 0xffff')
        a(f'    s_or_b32 s{sreg+1}, s{sreg+1}, {stride << 16}')
        a(f'    s_mov_b32 s{sreg+2}, {nrec}')
    else:
        a(f'    s_mov_b32 s{sreg+2}, {nbytes}')
    a(f'    s_mov_b32 s{sreg+3}, 0x00020000')

def dpp_scan(a, v):
    for sh in (1, 2, 4, 8):
        a('    s_nop 1')
        a(f'    v_add_u32_dpp v{v}, v{v}, v{v} row_shr:{sh} row_mask:0xf bank_mask:0xf')
    a('    s_nop 1')
    a(f'    v_add_u32_dpp v{v}, v{v}, v{v} row_bcast:15 row_mask:0xa bank_mask:0xf')
    a('    s_nop 1')
    a(f'    v_add_u32_dpp v{v}, v{v}, v{v} row_bcast:31 row_mask:0xc bank_mask:0xf')

def masked(a, cond, exreg, skip=None):
    a(f'    {cond}')
    a(f'    s_and_saveexec_b64 s[{exreg}:{exreg+1}], vcc')
    if skip: a(f'    s_cbranch_execz {skip}')
def unmask(a, exreg, skip=None):
    if skip: a.label(skip)
    a(f'    s_mov_b64 exec, s[{exreg}:{exreg+1}]')

K1_GRID = NC
L1_HIST = 0; L1_START = 1024; L1_SYNC = 2048
L1_ST32 = 2304; L1_ST8 = L1_ST32 + EPC*4; L1_W = 15360
K1_LDS = L1_W + 16384
K1PF = int(env('K1PF', '0'))
CPF = int(env('CPF', '1'))
XMAP = int(env('XMAP', '1'))
DESCST = env('DESCST', '')
RECST = env('RECST', K1ST)
TST = env('TST', K1ST)
TFIRST = int(env('TFIRST', '1'))

def gen_k1(a):
    a('.p2align 8')
    a('.type k1_kernel,@function')
    a.label('k1_kernel')
    a(f'    s_cmp_ge_u32 s2, {K1_GRID}')
    a('    s_cbranch_scc1 K1_END')
    stamp(a, 0); stamp(a, 0, True)
    if CPF:
        a('    s_getpc_b64 s[30:31]')
        a.label('K1_PC')
        a('    v_lshlrev_b32 v90, 7, v0')
        lim = 'CODE_END-K1_PC' if CPF >= 2 else 'k2_kernel-K1_PC'
        a(f'    v_cmp_gt_u32 vcc, {lim}, v90')
        a('    s_and_saveexec_b64 s[28:29], vcc')
        a('    s_cbranch_execz K1_NOCPF')
        a('    global_load_dword v91, v90, s[30:31]')
        a.label('K1_NOCPF')
        a('    s_mov_b64 exec, s[28:29]')
    if XMAP:
        a('    s_and_b32 s20, s2, 7')
        a('    s_lshr_b32 s21, s2, 3')
        a('    s_mul_i32 s22, s20, 31')
        a('    s_min_u32 s20, s20, 2')
        a('    s_add_u32 s22, s22, s20')
        a('    s_add_u32 s2, s22, s21')
    a('    v_lshrrev_b32 v1, 6, v0')
    a('    s_load_dwordx4 s[8:11], s[0:1], 16')
    a('    v_readfirstlane_b32 s20, v1')
    a('    s_load_dwordx2 s[4:5], s[0:1], 8      ; e_attr')
    a('    s_load_dwordx2 s[6:7], s[0:1], 88     ; ws')
    a('    v_and_b32 v2, 63, v0                   ; lane')
    if TFIRST:
        a('    s_cmp_lt_u32 s20, 6')
        a('    s_cbranch_scc1 K1_TABLE')
        a('    v_subrev_u32 v0, 384, v0')
        a('    s_sub_u32 s20, s20, 6')
    else:
        a('    s_cmp_ge_u32 s20, 10')
        a('    s_cbranch_scc1 K1_TABLE')
    a('    v_mov_b32 v5, 0')
    a('    v_lshlrev_b32 v6, 2, v0               ; t*4')
    masked(a, 'v_cmp_gt_u32 vcc, 256, v0', 30)
    a(f'    ds_write_b32 v6, v5 offset:{L1_HIST}')
    unmask(a, 30)
    a('    v_lshlrev_b32 v3, 4, v0               ; t*16')
    a('    v_lshlrev_b32 v4, 3, v0               ; t*8')
    a(f'    s_mul_i32 s21, s2, {EPC*4}')
    a(f'    s_mul_i32 s22, s2, {EPC*2}')
    a('    s_mov_b32 s23, 52429')
    a('    s_waitcnt lgkmcnt(0)')
    srd(a, 12, 10, 11, E*4)
    a('    buffer_load_dwordx4 v[8:11], v3, s[12:15], s21 offen     ; dst x4')
    srd(a, 16, 8, 9, E*4)
    a('    buffer_load_dwordx4 v[12:15], v3, s[16:19], s21 offen    ; src x4')
    srd(a, 24, 4, 5, E*2)
    a('    buffer_load_dwordx2 v[16:17], v4, s[24:27], s22 offen')
    srd(a, 32, 6, 7, NC*REC_STRIDE, off=WS_REC)
    srd(a, 36, 6, 7, NB*DESC_STRIDE, off=WS_DESC)
    a('    v_lshlrev_b32 v6, 4, v2                ; lane*16')
    a('    v_mul_u32_u24 v7, 20, v0')
    a('    v_lshlrev_b32 v18, 12, v2')
    a(f'    s_mul_i32 s25, s2, {REC_STRIDE}')
    a('    s_lshl_b32 s26, s2, 2')
    a('    s_mov_b32 s40, 0x06050400')
    a('    s_mov_b32 s41, 0x05040003')
    a('    s_mov_b32 s42, 0x03020500')
    a('    s_mov_b32 s43, 0x04000302')
    a('    s_mov_b32 s44, 0x03060100')
    a('    s_mov_b32 s45, 0x07030201')
    stamp(a, 1)
    a('    s_barrier')
    a('    v_mov_b32 v5, 1')
    a('    s_waitcnt vmcnt(2)')
    stamp(a, 2)
    for k in range(4):
        a(f'    v_mul_u32_u24 v{20+k}, s23, v{8+k}')
    for k in range(4):
        a(f'    v_lshrrev_b32 v{20+k}, 21, v{20+k}      ; bucket')
    for k in range(4):
        a(f'    v_lshlrev_b32 v{24+k}, 2, v{20+k}       ; bucket*4')
    for k in range(4):
        a(f'    ds_add_rtn_u32 v{28+k}, v{24+k}, v5 offset:{L1_HIST}')
    for k in range(4):
        a(f'    v_mul_u32_u24 v{20+k}, {NPB*4}, v{20+k}')
    for k in range(4):
        a(f'    v_lshlrev_b32 v{8+k}, 2, v{8+k}')
    for k in range(4):
        a(f'    v_sub_u32 v{20+k}, v{8+k}, v{20+k}')
    a('    s_waitcnt vmcnt(0)')
    a('    v_lshl_or_b32 v32, v16, 16, v12')
    a('    s_mov_b32 s24, 0xffff0000')
    a('    v_and_or_b32 v33, v16, s24, v13')
    a('    v_lshl_or_b32 v34, v17, 16, v14')
    a('    v_and_or_b32 v35, v17, s24, v15')
    a('    s_waitcnt lgkmcnt(0)')
    stamp(a, 3)
    a('    s_barrier')
    stamp(a, 4)
    a(f'    ds_read_b128 v[40:43], v6 offset:{L1_HIST}')
    a('    s_waitcnt lgkmcnt(0)')
    a('    v_add_u32 v44, v40, v41                ; h0+h1')
    a('    v_add_u32 v45, v44, v42')
    a('    v_add_u32 v46, v45, v43                ; sum4')
    a('    v_mov_b32 v47, v46')
    dpp_scan(a, 47)
    a('    v_sub_u32 v48, v47, v46')
    a('    v_add_u32 v49, v48, v40')
    a('    v_add_u32 v50, v48, v44')
    a('    v_add_u32 v51, v48, v45')
    a(f'    ds_write_b128 v6, v[48:51] offset:{L1_START}')
    a('    s_waitcnt lgkmcnt(0)')
    for k in range(4):
        a(f'    ds_read_b32 v{56+k}, v{24+k} offset:{L1_START}')
    for k in range(4):
        a(f'    v_lshl_or_b32 v{52+k}, v{40+k}, 16, v{48+k}')
    a('    s_waitcnt lgkmcnt(0)')
    for k in range(4):
        a(f'    v_add_u32 v{56+k}, v{56+k}, v{28+k}      ; position')
    for k in range(4):
        a(f'    ds_write_b8 v{56+k}, v{20+k} offset:{L1_ST8}')
        a(f'    v_lshlrev_b32 v{60+k}, 2, v{56+k}')
    for k in range(4):
        a(f'    ds_write_b32 v{60+k}, v{32+k} offset:{L1_ST32}')
    a('    s_waitcnt lgkmcnt(0)')
    stamp(a, 5)
    a('    s_barrier')
    a(f'    ds_read_b128 v[8:11], v3 offset:{L1_ST32}')
    a('    v_lshrrev_b32 v4, 2, v3                ; t*4')
    a(f'    ds_read_b32 v12, v4 offset:{L1_ST8}')
    a('    s_waitcnt lgkmcnt(0)')
    a('    v_perm_b32 v21, v9, v12, s40           ; d1 = L0 r1.b0 r1.b1 r1.b2')
    a('    v_perm_b32 v22, v10, v9, s41           ; r1.b3 . r2.b0 r2.b1')
    a('    v_perm_b32 v23, v11, v10, s43          ; r2.b2 r2.b3 . r3.b0')
    a('    v_mov_b32 v20, v8')
    a('    v_perm_b32 v22, v12, v22, s42          ; d2 : insert L1')
    a('    v_perm_b32 v23, v12, v23, s44          ; d3 : insert L2')
    a('    v_perm_b32 v24, v12, v11, s45          ; d4 = r3.b1 r3.b2 r3.b3 L3')
    a(f'    buffer_store_dwordx4 v[20:23], v7, s[32:35], s25 offen {RECST}')
    a(f'    buffer_store_dword v24, v7, s[32:35], s25 offen offset:16 {RECST}')
    a('    s_cmp_eq_u32 s20, 0')
    a('    s_cbranch_scc0 K1_SFIN')
    for k in range(4):
        a(f'    buffer_store_dword v{52+k}, v18, s[36:39], s26 offen offset:{1024*k} {DESCST}')
    a.label('K1_SFIN')
    if STAMP:
        stamp(a, 6)
        a('    s_waitcnt vmcnt(0)')
        stamp(a, 7); stamp(a, 1, True)
        stamp_flush(a, 20, 2, 0, 6)
    a('    s_endpgm')
    a.label('K1_TABLE')
    a('    s_load_dwordx2 s[40:41], s[0:1], 40   ; w_b')
    a('    s_load_dwordx2 s[42:43], s[0:1], 64   ; w_v')
    a('    s_load_dwordx2 s[44:45], s[0:1], 0    ; x')
    if K1PF:
        a('    s_load_dwordx2 s[60:61], s[0:1], 32   ; w_a')
        a('    s_load_dwordx4 s[64:67], s[0:1], 48   ; w_c, w_u')
        a('    s_load_dwordx2 s[62:63], s[0:1], 72   ; out')
    a('    s_mov_b32 s21, s20                     ; tw' if TFIRST else '    s_sub_u32 s21, s20, 10                 ; tw')
    a('    v_mov_b32 v5, 0')
    a('    v_lshlrev_b32 v6, 2, v2')
    a('    s_cmp_eq_u32 s21, 0')
    a('    s_cbranch_scc0 K1_T_NOZ')
    masked(a, 'v_cmp_gt_u32 vcc, 4, v2', 30)
    a(f'    ds_write_b32 v6, v5 offset:{L1_SYNC}')
    unmask(a, 30)
    a.label('K1_T_NOZ')
    a('    s_lshr_b32 s22, s21, 1')
    a('    s_lshl_b32 s22, s22, 4                 ; 16*rt')
    a('    v_and_b32 v4, 15, v2')
    a('    v_add_u32 v4, s22, v4')
    a('    v_lshrrev_b32 v5, 4, v2                ; g')
    a('    v_lshlrev_b32 v6, 7, v4')
    a('    v_lshl_add_u32 v6, v5, 4, v6')
    a(f'    s_mul_i32 s24, s2, {NPB*128}')
    a('    v_lshlrev_b32 v7, 4, v2                ; lane*16')
    a('    v_bfe_u32 v8, v2, 4, 1')
    a('    v_lshlrev_b32 v8, 1, v8')
    a('    v_and_b32 v9, 7, v2')
    a('    v_xor_b32 v8, v8, v9')
    a('    v_lshrrev_b32 v9, 3, v2')
    a('    v_lshlrev_b32 v9, 7, v9                ; (lane>>3)*128')
    a('    s_waitcnt lgkmcnt(0)')
    for i in range(3):
        a(f'    s_add_u32 s26, s21, {6*i}              ; p')
        a('    s_cmp_lt_u32 s26, 8')
        a('    s_cselect_b32 s48, s40, s42')
        a('    s_cselect_b32 s49, s41, s43')
        a('    s_mov_b32 s50, 8192')
        a('    s_mov_b32 s51, 0x00020000')
        a('    s_and_b32 s27, s26, 7')
        a('    s_lshl_b32 s27, s27, 10')
        a('    s_cmp_lt_u32 s26, 16')
        a(f'    s_cselect_b32 s27, s27, {1<<20}')
        a(f'    buffer_load_dwordx4 v[{48+4*i}:{51+4*i}], v7, s[48:51], s27 offen')
    srd(a, 36, 44, 45, N*128)
    a('    buffer_load_dwordx4 v[24:27], v6, s[36:39], s24 offen')
    a('    buffer_load_dwordx4 v[28:31], v6, s[36:39], s24 offen offset:64')
    if K1PF:
        a('    s_cmp_eq_u32 s21, 5')
        a('    s_cbranch_scc0 K1_T_NOPF')
        a('    v_lshlrev_b32 v60, 8, v2')
        a('    v_lshlrev_b32 v61, 7, v2')
        a('    global_load_dword v62, v61, s[60:61]')
        a('    global_load_dword v62, v61, s[66:67]')
        a('    v_mov_b32 v63, 0')
        a('    global_load_dword v62, v63, s[64:65]')
        a(f'    s_mul_i32 s26, s2, {NPB*128}')
        a('    v_mov_b32 v63, s26')
        a('    global_load_dword v62, v63, s[62:63]')
        srd(a, 52, 6, 7, WS_T + T_BYTES, off=0)
        a(f'    s_mul_i32 s26, s2, {REC_STRIDE}')
        a('    v_mov_b32 v63, s26')
        a('    buffer_load_dword v62, v63, s[52:55], 0 offen')
        a(f'    s_mul_i32 s26, s2, {NPB*256}')
        a(f'    s_add_u32 s26, s26, {WS_T}')
        a('    v_mov_b32 v63, s26')
        a('    buffer_load_dword v62, v63, s[52:55], 0 offen')
        a(f'    s_mul_i32 s26, s2, {DESC_STRIDE}')
        a(f'    s_add_u32 s26, s26, {WS_DESC}')
        a('    v_mov_b32 v63, s26')
        a('    buffer_load_dword v62, v63, s[52:55], 0 offen')
        a('    s_barrier')
        a('    s_waitcnt vmcnt(9)')
        a('    s_branch K1_T_PFJOIN')
        a.label('K1_T_NOPF')
    a('    s_barrier')
    a('    s_waitcnt vmcnt(2)')
    if K1PF: a.label('K1_T_PFJOIN')
    stamp(a, 1)
    for i in range(3):
        a(f'    s_add_u32 s26, s21, {6*i}              ; p')
        a('    s_cmp_lt_u32 s26, 16')
        a(f'    s_cbranch_scc0 K1_T_ST{i}')
        a('    s_and_b32 s27, s26, 1')
        a('    s_lshl_b32 s27, s27, 2')
        a('    v_xor_b32 v10, s27, v8')
        a('    v_lshl_add_u32 v10, v10, 4, v9')
        a('    s_lshl_b32 s27, s26, 10                ; m*8192 + (p&7)*1024 = p*1024')
        a('    v_add_u32 v10, s27, v10')
        a(f'    ds_write_b128 v10, v[{48+4*i}:{51+4*i}] offset:{L1_W}')
        a.label(f'K1_T_ST{i}')
    srd(a, 44, 6, 7, T_BYTES, off=WS_T)
    a('    s_waitcnt lgkmcnt(0)')
    a('    v_mov_b32 v10, 0')
    a('    v_mov_b32 v11, 1')
    a('    s_mov_b64 exec, 1')
    a(f'    ds_add_u32 v10, v11 offset:{L1_SYNC}')
    a('    s_mov_b64 exec, -1')
    a('    s_and_b32 s23, s21, 1                  ; half')
    a('    v_bfe_u32 v12, v2, 2, 2                ; r')
    a('    v_lshl_add_u32 v13, v5, 3, v12         ; rho')
    a('    v_lshlrev_b32 v13, 7, v13')
    a('    v_and_b32 v14, 1, v2')
    a('    v_lshl_add_u32 v13, v14, 3, v13        ; + (c&1)*8')
    a('    v_bfe_u32 v14, v2, 1, 1                ; c>>1')
    a('    v_lshrrev_b32 v12, 1, v12')
    a('    v_and_b32 v15, 1, v5                   ; g&1')
    a('    v_lshlrev_b32 v15, 1, v15')
    a('    v_or_b32 v12, v12, v15                 ; swz/2')
    a('    s_lshl_b32 s25, s23, 1')
    a('    v_xor_b32 v15, s25, v12')
    a('    v_lshl_or_b32 v15, v15, 1, v14')
    a('    v_lshl_add_u32 v16, v15, 4, v13')
    a('    s_add_u32 s25, s25, 1')
    a('    v_xor_b32 v15, s25, v12')
    a('    v_lshl_or_b32 v15, v15, 1, v14')
    a('    v_lshl_add_u32 v17, v15, 4, v13')
    for r in range(32, 48):
        a(f'    v_mov_b32 v{r}, 0')
    a.label('K1_T_SPIN')
    a(f'    ds_read_b32 v11, v10 offset:{L1_SYNC}')
    a('    s_waitcnt lgkmcnt(0)')
    a('    v_readfirstlane_b32 s26, v11')
    a('    s_cmp_lt_u32 s26, 6')
    a('    s_cbranch_scc1 K1_T_SPIN')
    stamp(a, 3)
    order = [(jj, ks, m) for jj in range(2) for ks in range(2) for m in range(2)]
    for i, (jj, ks, m) in enumerate(order):
        b = 64 + 4*i
        off = L1_W + m*8192 + ks*32*128
        a(f'    ds_read_b64_tr_b16 v[{b}:{b+1}], v{16+jj} offset:{off}')
        a(f'    ds_read_b64_tr_b16 v[{b+2}:{b+3}], v{16+jj} offset:{off+512}')
    a(f'    s_mov_b32 s27, {hex(f2u(-LOG2E))}')
    a('    s_mov_b32 s28, 0xffff0000')
    a('    s_mov_b32 s29, 0x80000000')
    a('    v_lshlrev_b32 v9, 8, v4')
    a('    v_lshl_add_u32 v9, v5, 4, v9')
    a('    s_lshl_b32 s25, s23, 7')
    a(f'    s_mul_i32 s26, s2, {NPB*256}')
    a('    s_add_u32 s25, s25, s26')
    a('    v_add_u32 v9, s25, v9')
    a(f'    v_cmp_gt_u32 vcc, {NPB}, v4')
    a(f'    v_mov_b32 v10, {1<<30}')
    a('    s_waitcnt vmcnt(0)' if not K1PF else '    s_waitcnt vmcnt(7)')
    a('    v_cndmask_b32 v9, v10, v9, vcc')
    if K1PF:
        a('    s_cmp_eq_u32 s21, 5')
        a('    s_cbranch_scc1 K1_T_XOK')
        a('    s_waitcnt vmcnt(0)')
        a.label('K1_T_XOK')
    for i, (jj, ks, m) in enumerate(order):
        b = 64 + 4*i
        a(f'    s_waitcnt lgkmcnt({min(15, 2*(7-i))})')
        acc = 32 + 8*m + 4*jj
        x = 24 + 4*ks
        a(f'    v_mfma_f32_16x16x32_bf16 v[{acc}:{acc+3}], v[{b}:{b+3}], v[{x}:{x+3}], v[{acc}:{acc+3}]')
    stamp(a, 4)
    a('    s_nop 4')
    for jj in range(2):
        R = range(4)
        p = lambda r: 32 + 4*jj + r
        q = lambda r: 40 + 4*jj + r
        t = lambda r: 10 + r
        if jj == 1: a('    s_nop 2')
        for r in R: a(f'    v_mul_f32 v{p(r)}, s27, v{p(r)}')
        for r in R: a(f'    v_cvt_f16_f32 v{p(r)}, v{p(r)}')
        for r in R: a(f'    v_and_b32 v{t(r)}, 0x7fffffff, v{q(r)}')
        for r in R: a(f'    v_and_b32 v{p(r)}, 0xffff, v{p(r)}')
        for r in R: a(f'    v_sub_u32 v{t(r)}, v{t(r)}, v{p(r)}')
        for r in R: a(f'    v_add_u32 v{t(r)}, 0x8000, v{t(r)}')
        for r in R: a(f'    v_max_i32 v{t(r)}, 0, v{t(r)}')
        for r in R: a(f'    v_and_or_b32 v{t(r)}, v{t(r)}, s28, v{p(r)}')
        for r in R: a(f'    v_and_or_b32 v{p(r)}, v{q(r)}, s29, v{t(r)}')
        a(f'    buffer_store_dwordx4 v[{32+4*jj}:{35+4*jj}], v9, s[44:47], 0 offen offset:{jj*64} {TST}')
    a('    s_cmp_eq_u32 s2, 0')
    a('    s_cbranch_scc0 K1_TFIN')
    a('    s_cmp_eq_u32 s21, 0')
    a('    s_cbranch_scc0 K1_TFIN')
    a('    v_mov_b32 v10, 0x7c00')
    a(f'    v_lshlrev_b32 v11, 2, v2')
    a(f'    v_add_u32 v11, {N*256}, v11')
    a(f'    buffer_store_dword v10, v11, s[44:47], 0 offen {TST}')
    a.label('K1_TFIN')
    stamp(a, 5)
    a('    s_barrier                              ; (ranks)')
    a('    s_barrier                              ; (scatter)')
    if STAMP:
        stamp(a, 6)
        a('    s_waitcnt vmcnt(0)')
        stamp(a, 7); stamp(a, 1, True)
        if STAMP == 3:
            a('    s_waitcnt lgkmcnt(0)')
            a(f'    s_mov_b32 s{ST0+4}, s{ST0+16}')
        else: stamp(a, 2)
        if TFIRST: a('    s_add_u32 s20, s20, 10')
        stamp_flush(a, 20, 2, 0, 6)
    a.label('K1_END')
    a('    s_endpgm')

CAP = 4096
TS = 272
L2_CNT = 0; L2_FLG = 256
L2_LIST = 512
L2_SLOT = L2_LIST + CAP*4
L2_W = L2_SLOT
L2_EAT = L2_SLOT + 56*512; L2_AT = L2_EAT + 48*TS; L2_UT = L2_AT + 48*TS
XS = 144
L2_XT = L2_UT + 48*TS
K2_LDS = L2_XT + 48*XS
U = 4
TPF = int(env('TPF', '1'))
PFPOS = int(env('PFPOS', '1'))
PFN = int(env('PFN', '40'))
PRT = [int(x) for x in env('PRT', '4,4,4').split(',')]

def gen_k2(a):
    sB = 2; sWAVE = 3
    SRD_DESC = 12; SRD_REC = 16; SRD_T = 20; SRD_W = 24; SRD_X = 28; SRD_OUT = 32; SRD_WC = 36
    sMODE = 40; sPASS = 41
    sG0 = 42; sG1 = 43; sGEND = 44; sLEFT = 45; sNODE = 46; sT0 = 47; sT1 = 48; sSAFE = 49; sGT = 50; sR = 51
    sEX = 52; sEAB = 54; sPR = 55; sPQ = 56; sLVL = 57; sSLOT = 58; sNR = 59; sPQ2 = 60; sXT = 61; sJ = 58
    sM = 64
    vLANE = 1
    vWC = 4; vEA = 8; vDEN = 12; vNUM = 16; vT = 20; vDAT = 24; vP = 40; vEV = 48
    vSA = 50; vACC = 51; vEAA = 52; vGS = 53; vQ16 = 54; vNG = 55
    vDA = 56; vNA = 60
    vX = 64
    vFL = 66
    vGE = 67
    vXO = 68
    vR = 76
    vB = 84
    vRK = 92
    vLA = 100
    vA = 108
    vCNT = 118; vRO = 119; vI = 120; vRM = 121; vTRA = 122; vXRA = 123; vROW = 50; vPFA = 51
    vLC = 12
    vPF = 16
    vXO2 = vXO
    SRD_LOC = 8; SRD_PF = 24
    vW = 24; vOP = 24; vAC = 40

    a('.p2align 8')
    a('.type k2_kernel,@function')
    a.label('k2_kernel')
    a(f'    s_cmp_ge_u32 s2, {NB}')
    a('    s_cbranch_scc1 K2_END')
    stamp(a, 0); stamp(a, 0, True)
    if CPF:
        a('    s_getpc_b64 s[30:31]')
        a.label('K2_PC')
        a('    v_lshlrev_b32 v124, 7, v0')
        a('    v_cmp_gt_u32 vcc, CODE_END-K2_PC, v124')
        a('    s_and_saveexec_b64 s[28:29], vcc')
        a('    s_cbranch_execz K2_NOCPF')
        a('    global_load_dword v125, v124, s[30:31]')
        a.label('K2_NOCPF')
        a('    s_mov_b64 exec, s[28:29]')
    if XMAP:
        a(f'    s_and_b32 s{sT0}, s2, 7')
        a(f'    s_lshr_b32 s{sJ}, s2, 3')
        a(f'    s_mul_i32 s{sT1}, s{sT0}, 31')
        a(f'    s_min_u32 s{sT0}, s{sT0}, 2')
        a(f'    s_add_u32 s{sT1}, s{sT1}, s{sT0}')
        a(f'    s_add_u32 s2, s{sT1}, s{sJ}')
    else:
        a(f'    s_lshr_b32 s{sJ}, s2, 3')
    a('    s_load_dwordx2 s[6:7], s[0:1], 88      ; ws')
    a('    s_load_dwordx2 s[4:5], s[0:1], 0       ; x')
    a('    s_load_dwordx2 s[8:9], s[0:1], 32      ; w_a')
    a('    s_load_dwordx4 s[60:63], s[0:1], 48    ; w_c, w_u')
    a('    s_load_dwordx2 s[10:11], s[0:1], 72    ; out')
    a(f'    v_and_b32 v{vLANE}, 63, v0')
    a(f'    v_lshrrev_b32 v{vA}, 6, v0')
    a(f'    v_and_b32 v{vQ16}, 15, v0')
    a(f'    v_readfirstlane_b32 s{sWAVE}, v{vA}')
    a(f'    v_lshlrev_b32 v{vQ16}, 4, v{vQ16}      ; q*16')
    a(f'    v_and_b32 v{vA}, 0x3fc, v0             ; (t>>2)*4')
    a(f'    v_cmp_gt_u32 vcc, {NC*4}, v0')
    a(f'    v_mov_b32 v{vA+8}, {1<<30}')
    a(f'    s_lshl_b32 s{sT0}, s{sB}, 10')
    a(f'    v_cndmask_b32 v{vA}, v{vA+8}, v{vA}, vcc')
    for i in range(4):
        a(f'    v_mov_b32 v{vDA+i}, 0')
        a(f'    v_mov_b32 v{vNA+i}, 0')
    masked(a, 'v_cmp_gt_u32 vcc, 4, v0', sEX)
    a(f'    v_lshlrev_b32 v{vA+5}, 2, v0')
    a(f'    ds_write_b32 v{vA+5}, v{vDA} offset:{L2_FLG}')
    unmask(a, sEX)
    a(f'    s_mov_b32 s{sMODE}, 0')
    a(f'    s_mov_b32 s{sPASS}, 0')
    a(f'    v_mov_b32 v{vEV}, 0')
    a(f'    v_mov_b32 v{vEV+1}, 0')
    a(f'    v_lshrrev_b32 v{vA+1}, 5, v{vLANE}')
    a(f'    v_lshl_add_u32 v{vFL}, v{vA+1}, 8, v{vQ16}')
    a(f'    v_bfe_u32 v{vA+1}, v{vLANE}, 4, 1')
    a(f'    v_lshl_add_u32 v{vFL}, v{vA+1}, 3, v{vFL}')
    a.label('K2_PASS')
    for i in range(4):
        a(f'    v_mov_b32 v{vA+6+i}, {N}')
    a(f'    v_lshlrev_b32 v{vA+5}, 4, v0')
    a(f'    ds_write_b128 v{vA+5}, v[{vA+6}:{vA+9}] offset:{L2_LIST}')
    masked(a, 'v_cmp_gt_u32 vcc, 64, v0', sEX)
    a(f'    v_lshlrev_b32 v{vA+4}, 2, v0')
    a(f'    v_mov_b32 v{vA+3}, 0')
    a(f'    ds_write_b32 v{vA+4}, v{vA+3} offset:{L2_CNT}')
    unmask(a, sEX)
    a(f'    s_cmp_eq_u32 s{sMODE}, 0')
    a('    s_cbranch_scc0 K2_SLOWPARAM')
    a('    s_waitcnt lgkmcnt(0)')
    srd(a, SRD_DESC, 6, 7, NB*DESC_STRIDE, off=WS_DESC)
    a(f'    buffer_load_dword v{vCNT}, v{vA}, s[{SRD_DESC}:{SRD_DESC+3}], s{sT0} offen')
    a(f'    s_cmp_lt_u32 s{sWAVE}, 8')
    a(f'    s_cselect_b32 s{SRD_W}, s8, s62')
    a(f'    s_cselect_b32 s{SRD_W+1}, s9, s63')
    a(f'    s_mov_b32 s{SRD_W+2}, 8192')
    a(f'    s_mov_b32 s{SRD_W+3}, 0x00020000')
    srd(a, SRD_X, 4, 5, N*128)
    srd(a, SRD_WC, 60, 61, 128)
    a(f'    v_and_b32 v{vA+1}, 511, v0')
    a(f'    v_lshlrev_b32 v{vA+1}, 4, v{vA+1}')
    a(f'    buffer_load_dwordx4 v[{vW}:{vW+3}], v{vA+1}, s[{SRD_W}:{SRD_W+3}], 0 offen')
    a(f'    v_lshlrev_b32 v{vA+4}, 4, v0')
    a(f'    v_cmp_gt_u32 vcc, 384, v0')
    a(f'    v_mov_b32 v{vA+3}, {1<<30}')
    a(f'    s_mul_i32 s{sT1}, s{sB}, {NPB*128}')
    a(f'    v_cndmask_b32 v{vA+4}, v{vA+3}, v{vA+4}, vcc')
    a(f'    buffer_load_dwordx4 v[{vXO}:{vXO+3}], v{vA+4}, s[{SRD_X}:{SRD_X+3}], s{sT1} offen')
    a(f'    v_lshrrev_b32 v{vA+7}, 1, v{vQ16}      ; q*8 (wc)')
    a(f'    buffer_load_dwordx2 v[{vWC}:{vWC+1}], v{vA+7}, s[{SRD_WC}:{SRD_WC+3}], 0 offen')
    a('    s_barrier')
    srd(a, SRD_OUT, 10, 11, N*128)
    srd(a, SRD_REC, 6, 7, NC*REC_STRIDE + 64, off=WS_REC)
    srd(a, SRD_T, 6, 7, 0, off=WS_T, stride=256, nrec=N+1)
    a(f'    v_lshrrev_b32 v{vA}, 2, v0             ; c')
    a(f'    v_mul_u32_u24 v{vRO}, {REC_STRIDE}, v{vA}')
    a(f'    v_and_b32 v{vI}, 3, v0')
    a(f'    v_lshlrev_b32 v{vI}, 2, v{vI}')
    a(f'    v_mad_u32_u24 v{vRO}, v{vI}, 5, v{vRO}')
    a(f'    s_mov_b32 s{sT1}, 16')
    a('    s_waitcnt vmcnt(3)                      ; descriptor')
    stamp(a, 1)
    a(f'    v_and_b32 v{vA+1}, 0xffff, v{vCNT}      ; start')
    a(f'    v_lshrrev_b32 v{vCNT}, 16, v{vCNT}      ; cnt')
    a(f'    v_mad_u32_u24 v{vRO}, v{vA+1}, 5, v{vRO}')
    a('    s_branch K2_PARAMDONE')
    a.label('K2_SLOWPARAM')
    a(f'    s_lshl_b32 s{sT0}, s{sB}, 10')
    a(f'    s_lshl_b32 s{sT1}, s{sPASS}, 2')
    a(f'    s_add_u32 s{sT0}, s{sT0}, s{sT1}')
    a(f'    v_mov_b32 v{vA}, 0')
    a(f'    buffer_load_dword v{vCNT}, v{vA}, s[{SRD_DESC}:{SRD_DESC+3}], s{sT0} offen')
    a(f'    s_mul_i32 s{sT0}, s{sPASS}, {REC_STRIDE}')
    a('    s_waitcnt vmcnt(0) lgkmcnt(0)')
    a('    s_barrier')
    a(f'    v_and_b32 v{vA+1}, 0xffff, v{vCNT}')
    a(f'    v_lshlrev_b32 v{vI}, 2, v0')
    a(f'    v_add_u32 v{vA+1}, v{vA+1}, v{vI}')
    a(f'    v_mul_u32_u24 v{vRO}, 5, v{vA+1}')
    a(f'    v_add_u32 v{vRO}, s{sT0}, v{vRO}')
    a(f'    v_lshrrev_b32 v{vCNT}, 16, v{vCNT}')
    a(f'    s_mov_b32 s{sT1}, 4096')
    a.label('K2_PARAMDONE')
    a(f'    v_sub_u32 v{vRM}, v{vCNT}, v{vI}')
    a(f'    s_mul_i32 s{sT0}, s{sT1}, 5')
    a(f'    s_mov_b32 s{sNR}, 0')
    for r in range(2):
        m0 = sM + 8*r
        if r == 1:
            a(f'    v_subrev_u32 v{vRM}, s{sT1}, v{vRM}')
        for h in range(4):
            a(f'    v_cmp_gt_i32 s[{m0+2*h}:{m0+2*h+1}], v{vRM}, {h}' if h else f'    v_cmp_lt_i32 s[{m0}:{m0+1}], 0, v{vRM}')
        a(f'    s_cmp_eq_u64 s[{m0}:{m0+1}], 0')
        a(f'    s_cbranch_scc1 K2_LD_DONE')
        a(f'    s_mov_b64 exec, s[{m0}:{m0+1}]')
        a(f'    buffer_load_dwordx4 v[{vR+4*r}:{vR+4*r+3}], v{vRO}, s[{SRD_REC}:{SRD_REC+3}], 0 offen')
        a(f'    buffer_load_dword v{vLC+r}, v{vRO}, s[{SRD_REC}:{SRD_REC+3}], 0 offen offset:16')
        a(f'    s_mov_b64 exec, -1')
        a(f'    s_mov_b32 s{sNR}, {r+1}')
        if r < 1:
            a(f'    v_add_u32 v{vRO}, s{sT0}, v{vRO}')
    a.label('K2_LD_DONE')
    a(f'    s_or_b32 s{sT0}, s{sMODE}, s{sPASS}')
    a(f'    s_cmp_eq_u32 s{sT0}, 0')
    a('    s_cbranch_scc0 K2_LATER_PASS')
    a(f'    v_lshrrev_b32 v{vA+8}, 3, v0')
    a(f'    v_mul_u32_u24 v{vA+8}, {XS}, v{vA+8}')
    a(f'    v_and_b32 v{vA+7}, 7, v0')
    a(f'    v_lshl_add_u32 v{vA+8}, v{vA+7}, 4, v{vA+8}')
    a(f'    v_add_u32 v{vA+8}, {L2_XT}, v{vA+8}')
    NPF = 1 if TPF else 0
    a(f'    v_bfe_u32 v{vA+1}, v0, 4, 1')
    a(f'    v_bfe_u32 v{vA+2}, v0, 6, 1')
    a(f'    v_lshlrev_b32 v{vA+1}, 1, v{vA+1}')
    a(f'    v_lshl_or_b32 v{vA+1}, v{vA+2}, 2, v{vA+1}')
    a(f'    v_and_b32 v{vA+2}, 7, v0')
    a(f'    v_xor_b32 v{vA+1}, v{vA+1}, v{vA+2}')
    a(f'    v_lshrrev_b32 v{vA+2}, 3, v0')
    a(f'    v_lshlrev_b32 v{vA+2}, 7, v{vA+2}')
    a(f'    v_lshl_add_u32 v{vA+9}, v{vA+1}, 4, v{vA+2}')
    a(f'    v_lshrrev_b32 v{vA+3}, 4, v{vLANE}     ; g')
    a(f'    v_bfe_u32 v{vA}, v{vLANE}, 2, 2        ; r')
    a(f'    v_lshl_add_u32 v{vA+1}, v{vA+3}, 3, v{vA}')
    a(f'    v_lshlrev_b32 v{vA+1}, 7, v{vA+1}')
    a(f'    v_and_b32 v{vA+2}, 1, v{vLANE}')
    a(f'    v_lshl_add_u32 v{vA+1}, v{vA+2}, 3, v{vA+1}')
    a(f'    v_lshrrev_b32 v{vA}, 1, v{vA}')
    a(f'    v_and_b32 v{vA+2}, 1, v{vA+3}')
    a(f'    v_lshl_or_b32 v{vA}, v{vA+2}, 1, v{vA}     ; swz/2')
    a(f'    s_and_b32 s{sT0}, s{sWAVE}, 3')
    a(f'    v_xor_b32 v{vA}, s{sT0}, v{vA}')
    a(f'    v_bfe_u32 v{vA+2}, v{vLANE}, 1, 1')
    a(f'    v_lshl_or_b32 v{vA}, v{vA}, 1, v{vA+2}')
    a(f'    v_lshl_add_u32 v{vTRA}, v{vA}, 4, v{vA+1}')
    a(f'    s_lshr_b32 s{sT1}, s{sWAVE}, 2')
    a(f'    s_lshl_b32 s{sT1}, s{sT1}, 4')
    a(f'    v_and_b32 v{vA+2}, 15, v{vLANE}')
    a(f'    v_add_u32 v{vROW}, s{sT1}, v{vA+2}     ; row')
    a(f'    v_mul_u32_u24 v{vA+1}, {XS}, v{vROW}')
    a(f'    v_lshl_add_u32 v{vA+1}, v{vA+3}, 4, v{vA+1}')
    a(f'    v_add_u32 v{vXRA}, {L2_XT}, v{vA+1}')
    a(f'    v_mul_u32_u24 v{vA+4}, {TS}, v{vROW}')
    a(f'    v_lshl_add_u32 v{vA+4}, v{vA+3}, 4, v{vA+4}')
    a(f'    s_lshl_b32 s{sT0}, s{sT0}, 6')
    a(f'    s_add_u32 s{sT0}, s{sT0}, {L2_EAT}')
    a(f'    v_add_u32 v{vEAA}, s{sT0}, v{vA+4}')
    if TPF:
        srd(a, SRD_PF, 6, 7, T_BYTES, off=WS_T)
        a(f'    s_mul_i32 s{sT0}, s{sJ}, {640*128}')
        a(f'    s_mul_i32 s{sT1}, s{sWAVE}, {40*128}')
        a(f'    s_add_u32 s{sJ}, s{sT0}, s{sT1}')
        a(f'    v_lshlrev_b32 v{vA+3}, 7, v{vLANE}')
        a(f'    v_cmp_gt_u32 vcc, {PFN}, v{vLANE}')
        a(f'    v_mov_b32 v{vA+4}, {1<<30}')
        a('    s_nop 0')
        a(f'    v_cndmask_b32 v{vPFA}, v{vA+4}, v{vA+3}, vcc')
    a(f'    v_mov_b32 v{vA+2}, 1')
    a(f'    s_waitcnt vmcnt(0)')
    if TPF and PFPOS == 1:
        a(f'    buffer_load_dword v{vPF}, v{vPFA}, s[{SRD_PF}:{SRD_PF+3}], s{sJ} offen')
    a('    s_branch K2_RANKS')
    a.label('K2_LATER_PASS')
    a(f'    v_mov_b32 v{vA+2}, 1')
    a('    s_waitcnt vmcnt(0)')
    a.label('K2_RANKS')
    stamp(a, 2)
    for r in range(2):
        a(f'    s_cmp_le_u32 s{sNR}, {r}')
        a('    s_cbranch_scc1 K2_RK_DONE')
        d = vR + 4*r
        a(f'    v_and_b32 v{vLA+4*r}, 0xff, v{d+1}')
        a(f'    v_bfe_u32 v{vLA+4*r+1}, v{d+2}, 8, 8')
        a(f'    v_bfe_u32 v{vLA+4*r+2}, v{d+3}, 16, 8')
        a(f'    v_lshrrev_b32 v{vLA+4*r+3}, 24, v{vLC+r}')
        for h in range(4):
            k = 4*r + h
            a(f'    s_mov_b64 exec, s[{sM+2*k}:{sM+2*k+1}]')
            a(f'    ds_add_rtn_u32 v{vRK+k}, v{vLA+k}, v{vA+2} offset:{L2_CNT}')
        a('    s_mov_b64 exec, -1')
        a(f'    v_alignbyte_b32 v{d+1}, v{d+2}, v{d+1}, 1')
        a(f'    v_alignbyte_b32 v{d+2}, v{d+3}, v{d+2}, 2')
        a(f'    v_alignbyte_b32 v{d+3}, v{vLC+r}, v{d+3}, 3')
    a.label('K2_RK_DONE')
    masked(a, f'v_cmp_lt_u32 vcc, 32, v{vCNT}', sEX, 'K2_NOOVF')
    a(f'    v_mov_b32 v{vA+3}, 0')
    a(f'    ds_write_b32 v{vA+3}, v{vA+2} offset:{L2_FLG}')
    unmask(a, sEX, 'K2_NOOVF')
    a(f'    s_or_b32 s{sT0}, s{sMODE}, s{sPASS}')
    a(f'    s_cmp_eq_u32 s{sT0}, 0')
    a('    s_cbranch_scc0 K2_NOWST')
    a(f'    ds_write_b128 v{vA+9}, v[{vW}:{vW+3}] offset:{L2_W}')
    a(f'    s_cmp_lt_u32 s{sWAVE}, 6')
    a('    s_cbranch_scc0 K2_NOXST')
    a(f'    ds_write_b128 v{vA+8}, v[{vXO}:{vXO+3}]')
    a.label('K2_NOXST')
    a.label('K2_NOWST')
    a(f'    v_lshlrev_b32 v{vA+1}, 2, v{vLANE}')
    a(f'    v_mov_b32 v{vA}, 0')
    a('    s_waitcnt lgkmcnt(0)')
    stamp(a, 3)
    a('    s_barrier')
    stamp(a, 4)
    if TPF and PFPOS == 0:
        a(f'    s_or_b32 s{sT0}, s{sMODE}, s{sPASS}')
        a(f'    s_cmp_eq_u32 s{sT0}, 0')
        a('    s_cbranch_scc0 K2_NOPF')
        a(f'    buffer_load_dword v{vPF}, v{vPFA}, s[{SRD_PF}:{SRD_PF+3}], s{sJ} offen')
        a.label('K2_NOPF')
    a(f'    ds_read_b32 v{vNG}, v{vA+1} offset:{L2_CNT}')
    a(f'    ds_read_b32 v{vA+4}, v{vA} offset:{L2_FLG}')
    a('    s_waitcnt lgkmcnt(1)')
    a(f'    v_add_u32 v{vNG}, 3, v{vNG}')
    a(f'    v_lshrrev_b32 v{vNG}, 2, v{vNG}')
    a(f'    v_mov_b32 v{vGE}, v{vNG}')
    dpp_scan(a, vGE)
    a('    s_waitcnt lgkmcnt(0)')
    a(f'    v_readlane_b32 s{sGT}, v{vGE}, {NPB-1}')
    a(f'    v_sub_u32 v{vGS}, v{vGE}, v{vNG}')
    a(f'    v_readfirstlane_b32 s{sT0}, v{vA+4}')
    a(f'    v_lshlrev_b32 v{vA+6}, 4, v{vGS}')
    a(f'    v_cmp_lt_u32 vcc, {NPB}, v{vLANE}')
    a(f'    s_add_u32 s{sR}, s{sGT}, 15')
    a(f'    s_lshr_b32 s{sR}, s{sR}, 4')
    a(f'    v_cndmask_b32 v{vGS}, v{vGS}, -1, vcc')
    a(f'    s_cmp_eq_u32 s{sMODE}, 0')
    a('    s_cbranch_scc0 K2_NOSWITCH')
    a(f'    s_cmp_gt_u32 s{sGT}, {(CAP - 64)//4}')
    a(f'    s_cselect_b32 s{sT1}, 1, 0')
    a(f'    s_or_b32 s{sT0}, s{sT0}, s{sT1}')
    a(f'    s_cmp_eq_u32 s{sT0}, 0')
    a('    s_cbranch_scc1 K2_NOSWITCH')
    a(f'    s_mov_b32 s{sNR}, 0')
    a(f'    s_mov_b32 s{sGT}, 0')
    a(f'    s_mov_b32 s{sR}, 0')
    a(f'    s_mov_b32 s{sMODE}, 2')
    a.label('K2_NOSWITCH')
    for r in range(2):
        a(f'    s_cmp_le_u32 s{sNR}, {r}')
        a('    s_cbranch_scc1 K2_LK_DONE')
        for h in range(4):
            k = 4*r + h
            a(f'    ds_bpermute_b32 v{vB+k}, v{vLA+k}, v{vA+6}')
    a.label('K2_LK_DONE')
    a(f'    s_cmp_eq_u32 s{sPASS}, 0')
    a('    s_cbranch_scc0 K2_NOTAB')
    a(f'    s_cmp_eq_u32 s{sMODE}, 1')
    a('    s_cbranch_scc1 K2_NOTAB')
    a(f'    s_cmp_lt_u32 s{sWAVE}, 12')
    a('    s_cbranch_scc0 K2_WC')
    a(f'    ds_read_b128 v[{vXO}:{vXO+3}], v{vXRA}')
    a(f'    ds_read_b128 v[{vXO+4}:{vXO+7}], v{vXRA} offset:64')
    order = [(m, ks) for ks in range(2) for m in range(2)]
    for i, (m, ks) in enumerate(order):
        b = vOP + 4*i
        off = L2_W + m*8192 + ks*32*128
        a(f'    ds_read_b64_tr_b16 v[{b}:{b+1}], v{vTRA} offset:{off}')
        a(f'    ds_read_b64_tr_b16 v[{b+2}:{b+3}], v{vTRA} offset:{off+512}')
    for i, (m, ks) in enumerate(order):
        b = vOP + 4*i
        a(f'    s_waitcnt lgkmcnt({2*(3-i)})')
        acc = vAC + 4*m; x = vXO2 + 4*ks
        c = '0' if ks == 0 else f'v[{acc}:{acc+3}]'
        a(f'    v_mfma_f32_16x16x32_bf16 v[{acc}:{acc+3}], v[{b}:{b+3}], v[{x}:{x+3}], {c}')
    a(f'    s_mov_b32 s{sT0}, {hex(f2u(-LOG2E))}')
    a(f'    s_mov_b32 s{sT1}, {hex(f2u(60.0))}')
    a('    s_nop 6')
    for i in range(4):
        a(f'    v_mul_f32 v{vAC+i}, s{sT0}, v{vAC+i}')
    a(f'    ds_write_b128 v{vEAA}, v[{vAC+4}:{vAC+7}] offset:{L2_UT-L2_EAT}')
    a(f'    ds_write_b128 v{vEAA}, v[{vAC}:{vAC+3}] offset:{L2_AT-L2_EAT}')
    for i in range(4):
        a(f'    v_exp_f32 v{vOP+i}, v{vAC+i}')
    a(f'    v_max3_f32 v{vA+5}, |v{vAC}|, |v{vAC+1}|, |v{vAC+2}|')
    a(f'    v_max_f32 v{vA+5}, v{vA+5}, |v{vAC+3}|')
    a(f'    ds_write_b128 v{vEAA}, v[{vOP}:{vOP+3}]')
    a(f'    v_cmp_nle_f32 vcc, v{vA+5}, s{sT1}')
    a(f'    v_cmp_gt_u32 s[{sEX}:{sEX+1}], {NPB}, v{vROW}')
    a(f'    s_and_b64 vcc, vcc, s[{sEX}:{sEX+1}]')
    a(f'    s_and_saveexec_b64 s[{sEX}:{sEX+1}], vcc')
    a('    s_cbranch_execz K2_GUARD_OK')
    a(f'    v_mov_b32 v{vA+5}, 1')
    a(f'    v_mov_b32 v{vA+7}, 0')
    a(f'    ds_write_b32 v{vA+7}, v{vA+5} offset:{L2_FLG+4}')
    unmask(a, sEX, 'K2_GUARD_OK')
    a.label('K2_WC')
    a(f'    s_mov_b32 s{sT0}, {hex(f2u(-LOG2E))}')
    a(f'    v_and_b32 v{vWC+3}, 0xffff0000, v{vWC+1}')
    a(f'    v_lshlrev_b32 v{vWC+2}, 16, v{vWC+1}')
    a(f'    v_and_b32 v{vWC+1}, 0xffff0000, v{vWC}')
    a(f'    v_lshlrev_b32 v{vWC}, 16, v{vWC}')
    for k in range(4):
        a(f'    v_mul_f32 v{vWC+k}, s{sT0}, v{vWC+k}')
    for k in range(U):
        a(f'    v_mov_b32 v{vP+2*k+1}, v{vQ16}')
    a.label('K2_NOTAB')
    a('    s_waitcnt lgkmcnt(0)')
    for r in range(2):
        a(f'    s_cmp_le_u32 s{sNR}, {r}')
        a('    s_cbranch_scc1 K2_SC_DONE')
        for h in range(4):
            k = 4*r + h
            a(f'    s_mov_b64 exec, s[{sM+2*k}:{sM+2*k+1}]')
            a(f'    v_lshl_add_u32 v{vB+k}, v{vRK+k}, 2, v{vB+k}')
            a(f'    ds_write_b32 v{vB+k}, v{vR+k} offset:{L2_LIST}')
    a.label('K2_SC_DONE')
    a('    s_mov_b64 exec, -1')
    a(f'    s_mul_i32 s{sG0}, s{sR}, s{sWAVE}')
    a(f'    s_add_u32 s{sG1}, s{sG0}, s{sR}')
    a(f'    s_min_u32 s{sG1}, s{sG1}, s{sGT}')
    a(f'    v_lshrrev_b32 v{vSA}, 4, v{vLANE}')
    a(f'    v_lshlrev_b32 v{vSA}, 2, v{vSA}         ; slot*4')
    a(f'    s_lshl_b32 s{sT0}, s{sG0}, 4')
    a(f'    v_add_u32 v{vSA}, s{sT0}, v{vSA}')
    a(f'    v_mov_b32 v{vA}, 0')
    a('    s_waitcnt lgkmcnt(0)')
    a('    s_barrier')
    stamp(a, 5)

    def tload(k):
        d = vDAT + 4*k
        a(f'    buffer_load_dwordx4 v[{d}:{d+3}], v[{vP+2*k}:{vP+2*k+1}], s[{SRD_T}:{SRD_T+3}], 0 idxen offen')

    a(f'    s_cmp_ge_u32 s{sG0}, s{sG1}')
    a('    s_cbranch_scc1 K2_MAIN_DONE')
    a(f'    ds_read_b32 v{vA+5}, v{vA} offset:{L2_FLG+4}')
    for k in range(U):
        a(f'    ds_read_u16 v{vP+2*k}, v{vSA} offset:{L2_LIST + 16*k}')
    a(f'    ds_read_u16_d16_hi v{vEV}, v{vSA} offset:{L2_LIST + 2}')
    if PRIO:
        a(f'    s_add_u32 s{sT0}, s{sR}, 3')
        a(f'    s_lshr_b32 s{sT0}, s{sT0}, 2            ; iterations')
        for n, reg in zip(PRT, (sPR, sPQ, sPQ2)):
            a(f'    s_mul_i32 s{reg}, s{sT0}, {n}')
            a(f'    s_lshr_b32 s{reg}, s{reg}, 4')
            a(f'    s_add_u32 s{reg}, s{reg}, 1')
        a(f'    s_mov_b32 s{sLVL}, 3')
        a('    s_setprio 3')
    a(f'    s_mov_b32 s{sGEND}, s{sG0}')
    a('    s_waitcnt lgkmcnt(0)')
    for k in range(U):
        tload(k)
    a(f'    v_readfirstlane_b32 s{sSAFE}, v{vA+5}')
    a(f'    ds_read_u16 v{vP}, v{vSA} offset:{L2_LIST + 16*U}')
    a(f'    s_cmp_eq_u32 s{sSAFE}, 0')
    a(f'    s_mov_b32 s{sEAB}, {L2_AT}')
    a(f'    s_cselect_b32 s{sEAB}, {L2_EAT}, s{sEAB}')
    a('    s_cbranch_scc0 K2S_ENTER')
    a('    s_branch K2F_ENTER')

    def next_node():
        a(f'    v_cmp_ge_u32 vcc, s{sGEND}, v{vGS}')
        a(f'    s_bcnt1_i32_b64 s{sT0}, vcc')
        a(f'    s_sub_u32 s{sNODE}, s{sT0}, 1')
        a(f'    v_readlane_b32 s{sT1}, v{vGS}, s{sT0}')
        a(f'    s_mul_i32 s{sT0}, s{sNODE}, {TS}')
        a(f'    s_add_u32 s{sT0}, s{sT0}, s{sEAB}')
        a(f'    v_add_u32 v{vEAA}, s{sT0}, v{vQ16}')
        a(f'    ds_read_b128 v[{vEA}:{vEA+3}], v{vEAA}')
        a(f'    s_min_u32 s{sT1}, s{sT1}, s{sG1}')
        a(f'    s_sub_u32 s{sLEFT}, s{sT1}, s{sGEND}')
        a(f'    s_sub_u32 s{sLEFT}, s{sLEFT}, 1')
        a(f'    s_mov_b32 s{sGEND}, s{sT1}')

    def set_slot():
        a(f'    s_add_u32 s{sSLOT}, s{sNODE}, s{sWAVE}')
        a(f'    s_lshl_b32 s{sSLOT}, s{sSLOT}, 9')

    def flush():
        a(f'    v_add_u32 v{vACC}, s{sSLOT}, v{vFL}')
        for i in range(4):
            a(f'    v_permlane32_swap_b32 v{vDEN+i}, v{vNUM+i}')
        a(f'    v_pk_add_f32 v[{vDEN}:{vDEN+1}], v[{vDEN}:{vDEN+1}], v[{vNUM}:{vNUM+1}]')
        a(f'    v_pk_add_f32 v[{vDEN+2}:{vDEN+3}], v[{vDEN+2}:{vDEN+3}], v[{vNUM+2}:{vNUM+3}]')
        a('    s_nop 1')
        a(f'    v_permlane16_swap_b32 v{vDEN}, v{vDEN+2}')
        a(f'    v_permlane16_swap_b32 v{vDEN+1}, v{vDEN+3}')
        a(f'    v_pk_add_f32 v[{vNUM}:{vNUM+1}], v[{vDEN}:{vDEN+1}], v[{vDEN+2}:{vDEN+3}]')
        a(f'    ds_write_b64 v{vACC}, v[{vNUM}:{vNUM+1}] offset:{L2_SLOT}')

    def step(k, safe, init):
        d = vDAT + 4*k
        ev = vEV + (k & 1); evn = vEV + ((k+1) & 1)
        pn = vP + 2*((k+1) % U)
        for i in range(4):
            a(f'    v_fma_mix_f32 v{vT+i}, v{ev}, v{vWC+i}, v{d+i} op_sel:[0,0,0] op_sel_hi:[0,0,1]')
        a(f'    ds_read_u16_d16_hi v{evn}, v{vSA} offset:{L2_LIST + 16*(k+1) + 2}')
        a(f'    ds_read_u16 v{pn}, v{vSA} offset:{L2_LIST + 16*(k+1+U)}')
        if init and safe:
            a('    s_waitcnt lgkmcnt(3)')
        if safe:
            a(f'    v_pk_add_f32 v[{vT}:{vT+1}], v[{vT}:{vT+1}], v[{vEA}:{vEA+1}]')
            a(f'    v_pk_add_f32 v[{vT+2}:{vT+3}], v[{vT+2}:{vT+3}], v[{vEA+2}:{vEA+3}]')
        for i in range(4):
            a(f'    v_exp_f32 v{vT+i}, v{vT+i}')
        if init and not safe:
            a('    s_waitcnt lgkmcnt(3)')
        if safe:
            a(f'    v_pk_add_f32 v[{vT}:{vT+1}], v[{vT}:{vT+1}], 1.0 op_sel_hi:[1,0]')
            a(f'    v_pk_add_f32 v[{vT+2}:{vT+3}], v[{vT+2}:{vT+3}], 1.0 op_sel_hi:[1,0]')
        else:
            a(f'    v_pk_fma_f32 v[{vT}:{vT+1}], v[{vEA}:{vEA+1}], v[{vT}:{vT+1}], 1.0 op_sel_hi:[1,1,0]')
            a(f'    v_pk_fma_f32 v[{vT+2}:{vT+3}], v[{vEA+2}:{vEA+3}], v[{vT+2}:{vT+3}], 1.0 op_sel_hi:[1,1,0]')
        if init:
            for i in range(4):
                a(f'    v_rcp_f32 v{vDEN+i}, v{vT+i}')
            a('    s_nop 0')
            a(f'    v_pk_mul_f32 v[{vNUM}:{vNUM+1}], v[{vDEN}:{vDEN+1}], v[{d}:{d+1}]')
            a(f'    v_pk_mul_f32 v[{vNUM+2}:{vNUM+3}], v[{vDEN+2}:{vDEN+3}], v[{d+2}:{d+3}]')
        else:
            for i in range(4):
                a(f'    v_rcp_f32 v{vT+i}, v{vT+i}')
            a(f'    v_pk_add_f32 v[{vDEN}:{vDEN+1}], v[{vDEN}:{vDEN+1}], v[{vT}:{vT+1}]')
            a(f'    v_pk_add_f32 v[{vDEN+2}:{vDEN+3}], v[{vDEN+2}:{vDEN+3}], v[{vT+2}:{vT+3}]')
            a(f'    v_pk_fma_f32 v[{vNUM}:{vNUM+1}], v[{vT}:{vT+1}], v[{d}:{d+1}], v[{vNUM}:{vNUM+1}]')
            a(f'    v_pk_fma_f32 v[{vNUM+2}:{vNUM+3}], v[{vT+2}:{vT+3}], v[{d+2}:{d+3}], v[{vNUM+2}:{vNUM+3}]')
        tload(k)
        if k == U-1:
            a(f'    v_add_u32 v{vSA}, {16*U}, v{vSA}')

    def loopback(pfx):
        if PRIO:
            a(f'    s_sub_u32 s{sPR}, s{sPR}, 1')
            a(f'    s_cmp_lg_u32 s{sPR}, 0')
            a(f'    s_cbranch_scc1 {pfx}_STEP0')
            a(f'    s_branch {pfx}_PRIO')
        else:
            a(f'    s_branch {pfx}_STEP0')

    for pfx, safe in (('K2F', False), ('K2S', True)):
        a.label(f'{pfx}_ENTER')
        next_node()
        set_slot()
        a('    s_waitcnt vmcnt(3) lgkmcnt(0)')
        step(0, safe, True)
        a(f'    s_branch {pfx}_STEP1')
        for k in range(U):
            a.label(f'{pfx}_STEP{k}')
            a(f'    s_waitcnt vmcnt({U-1}) lgkmcnt(0)')
            a(f'    s_sub_u32 s{sLEFT}, s{sLEFT}, 1')
            a(f'    s_cbranch_scc1 {pfx}_FLUSH{k}')
            step(k, safe, False)
            if k == U-1:
                loopback(pfx)
        for k in range(U):
            a.label(f'{pfx}_FLUSH{k}')
            a(f'    s_cmp_ge_u32 s{sGEND}, s{sG1}')
            a(f'    s_cbranch_scc1 K2_LAST')
            next_node()
            flush()
            set_slot()
            step(k, safe, True)
            if k == U-1:
                loopback(pfx)
            else:
                a(f'    s_branch {pfx}_STEP{k+1}')
        if PRIO:
            a.label(f'{pfx}_PRIO')
            a(f'    s_sub_u32 s{sLVL}, s{sLVL}, 1')
            a(f'    s_cmp_eq_u32 s{sLVL}, 2')
            a(f'    s_cbranch_scc1 {pfx}_PRIO2')
            a(f'    s_cmp_eq_u32 s{sLVL}, 1')
            a(f'    s_cbranch_scc1 {pfx}_PRIO1')
            a(f'    s_mov_b32 s{sPR}, 0x7fffffff')
            a('    s_setprio 0')
            a(f'    s_branch {pfx}_STEP0')
            a.label(f'{pfx}_PRIO2')
            a(f'    s_mov_b32 s{sPR}, s{sPQ}')
            a('    s_setprio 2')
            a(f'    s_branch {pfx}_STEP0')
            a.label(f'{pfx}_PRIO1')
            a(f'    s_mov_b32 s{sPR}, s{sPQ2}')
            a('    s_setprio 1')
            a(f'    s_branch {pfx}_STEP0')
    a.label('K2_LAST')
    flush()
    a.label('K2_MAIN_DONE')
    if PRIO: a('    s_setprio 0')
    a(f'    s_cmp_eq_u32 s{sMODE}, 2')
    a('    s_cbranch_scc0 K2_NOABORT')
    a(f'    s_mov_b32 s{sMODE}, 1')
    a(f'    s_mov_b32 s{sPASS}, 0')
    a('    s_waitcnt vmcnt(0) lgkmcnt(0)')
    a('    s_barrier')
    a('    s_branch K2_PASS')
    a.label('K2_NOABORT')
    a(f'    v_cvt_f32_u32 v{vA}, s{sR}')
    a(f'    v_cvt_f32_u32 v{vA+1}, v{vGS}')
    a(f'    v_rcp_f32 v{vA}, v{vA}')
    a(f'    v_cvt_f32_u32 v{vA+2}, v{vGE}')
    a(f'    v_add_f32 v{vA+1}, 0.5, v{vA+1}')
    a(f'    v_add_f32 v{vA+2}, -0.5, v{vA+2}')
    a(f'    v_mul_f32 v{vA+1}, v{vA+1}, v{vA}')
    a(f'    v_mul_f32 v{vA+2}, v{vA+2}, v{vA}')
    a(f'    v_cvt_u32_f32 v{vA+1}, v{vA+1}          ; wlo')
    a(f'    v_cvt_u32_f32 v{vA+2}, v{vA+2}          ; whi')
    a(f'    v_sub_u32 v{vA+2}, v{vA+2}, v{vA+1}')
    a(f'    v_add_u32 v{vA+2}, 1, v{vA+2}')
    a(f'    v_cmp_eq_u32 vcc, 0, v{vNG}')
    a(f'    v_add_u32 v{vA+1}, v{vA+1}, v{vLANE}')
    a(f'    v_and_b32 v{vA+1}, 0xffff, v{vA+1}')
    a(f'    v_cndmask_b32 v{vA+2}, v{vA+2}, 0, vcc')
    a(f'    v_lshl_or_b32 v{vA+3}, v{vA+2}, 16, v{vA+1}')
    a(f'    v_lshrrev_b32 v{vA}, 4, v0')
    a(f'    v_and_b32 v{vA+4}, 63, v{vA}')
    a(f'    v_lshlrev_b32 v{vA+4}, 2, v{vA+4}')
    a(f'    ds_bpermute_b32 v{vA+1}, v{vA+4}, v{vA+3}')
    a(f'    v_mul_u32_u24 v{vA+5}, {TS}, v{vA}')
    a('    s_waitcnt vmcnt(0) lgkmcnt(0)')
    a(f'    v_cmp_gt_u32 vcc, {NPB*16}, v0')
    a(f'    v_lshrrev_b32 v{vA+2}, 16, v{vA+1}')
    a(f'    v_and_b32 v{vA+1}, 0xffff, v{vA+1}')
    a(f'    v_cndmask_b32 v{vA+2}, 0, v{vA+2}, vcc')
    a(f'    v_lshl_add_u32 v{vA+1}, v{vA+1}, 9, v{vQ16}')
    stamp(a, 6)
    a('    s_barrier')
    a.label('K2_FOLD')
    masked(a, f'v_cmp_lt_u32 vcc, 0, v{vA+2}', sEX, 'K2_FOLD_DONE')
    a(f'    ds_read_b128 v[{vDEN}:{vDEN+3}], v{vA+1} offset:{L2_SLOT}')
    a(f'    ds_read_b128 v[{vNUM}:{vNUM+3}], v{vA+1} offset:{L2_SLOT+256}')
    a(f'    v_add_u32 v{vA+1}, 512, v{vA+1}')
    a(f'    v_add_u32 v{vA+2}, -1, v{vA+2}')
    a('    s_waitcnt lgkmcnt(1)')
    a(f'    v_pk_add_f32 v[{vDA}:{vDA+1}], v[{vDA}:{vDA+1}], v[{vDEN}:{vDEN+1}]')
    a(f'    v_pk_add_f32 v[{vDA+2}:{vDA+3}], v[{vDA+2}:{vDA+3}], v[{vDEN+2}:{vDEN+3}]')
    a('    s_waitcnt lgkmcnt(0)')
    a(f'    v_pk_add_f32 v[{vNA}:{vNA+1}], v[{vNA}:{vNA+1}], v[{vNUM}:{vNUM+1}]')
    a(f'    v_pk_add_f32 v[{vNA+2}:{vNA+3}], v[{vNA+2}:{vNA+3}], v[{vNUM+2}:{vNUM+3}]')
    unmask(a, sEX)
    a('    s_branch K2_FOLD')
    unmask(a, sEX, 'K2_FOLD_DONE')
    a(f'    s_cmp_eq_u32 s{sMODE}, 0')
    a('    s_cbranch_scc1 K2_EPI')
    a(f'    s_add_u32 s{sPASS}, s{sPASS}, 1')
    a(f'    s_cmp_lt_u32 s{sPASS}, {NC}')
    a('    s_cbranch_scc0 K2_EPI')
    a('    s_barrier')
    a('    s_branch K2_PASS')
    a.label('K2_EPI')
    a(f'    s_mov_b32 s{sXT}, {L2_XT}')
    masked(a, f'v_cmp_gt_u32 vcc, {NPB*16}, v0', sEX, 'K2_FIN')
    a(f'    v_add_u32 v{vA+5}, v{vA+5}, v{vQ16}')
    a(f'    v_add_u32 v{vA+5}, {L2_UT}, v{vA+5}')
    a(f'    ds_read_b128 v[{vDEN}:{vDEN+3}], v{vA+5}')
    a(f'    v_lshrrev_b32 v{vA+6}, 4, v0')
    a(f'    v_mul_u32_u24 v{vA+6}, {XS}, v{vA+6}')
    a(f'    v_lshrrev_b32 v{vA+7}, 1, v{vQ16}')
    a(f'    v_add3_u32 v{vA+6}, v{vA+6}, v{vA+7}, s{sXT}')
    a(f'    ds_read_b64 v[{vX}:{vX+1}], v{vA+6}')
    a(f'    s_mov_b32 s{sT0}, {hex(f2u(1e-6))}')
    a('    s_waitcnt lgkmcnt(0)')
    a(f'    v_lshlrev_b32 v{vT}, 16, v{vX}')
    a(f'    v_and_b32 v{vT+1}, 0xffff0000, v{vX}')
    a(f'    v_lshlrev_b32 v{vT+2}, 16, v{vX+1}')
    a(f'    v_and_b32 v{vT+3}, 0xffff0000, v{vX+1}')
    for i in range(4):
        a(f'    v_add_f32 v{vDA+i}, s{sT0}, v{vDA+i}')
    for i in range(4):
        a(f'    v_rcp_f32 v{vDA+i}, v{vDA+i}')
    a('    s_waitcnt lgkmcnt(0)')
    for i in range(4):
        a(f'    v_fma_f32 v{vNA+i}, v{vNA+i}, v{vDA+i}, v{vDEN+i}    ; z = U + agg')
    for i in range(4):
        a(f'    v_mul_f32 v{vDEN+i}, 0, v{vNA+i}                     ; 0*z')
        a(f'    v_cmp_lt_f32 vcc, 0, v{vNA+i}')
        a('    s_nop 1')
        a(f'    v_cndmask_b32 v{vNA+i}, v{vDEN+i}, v{vNA+i}, vcc')
        a(f'    v_add_f32 v{vNA+i}, v{vNA+i}, v{vT+i}')
    a(f'    v_cvt_pk_bf16_f32 v{vDEN}, v{vNA}, v{vNA+1}')
    a(f'    v_cvt_pk_bf16_f32 v{vDEN+1}, v{vNA+2}, v{vNA+3}')
    a(f'    s_mul_i32 s{sT1}, s{sB}, {NPB*128}')
    a(f'    v_lshlrev_b32 v{vA+1}, 3, v0')
    a(f'    buffer_store_dwordx2 v[{vDEN}:{vDEN+1}], v{vA+1}, s[{SRD_OUT}:{SRD_OUT+3}], s{sT1} offen')
    a.label('K2_FIN')
    if STAMP:
        a('    s_mov_b64 exec, -1')
        a('    s_waitcnt vmcnt(0)')
    stamp(a, 7); stamp(a, 1, True)
    stamp_flush(a, sWAVE, sB, 1, 6)
    a.label('K2_END')
    a('    s_endpgm')
    a.label('CODE_END')

def kd(a, name, vgpr, sgpr):
    a(f'.amdhsa_kernel {name}')
    a(f'  .amdhsa_next_free_vgpr {vgpr}')
    a(f'  .amdhsa_next_free_sgpr {sgpr}')
    a(f'  .amdhsa_accum_offset {((vgpr+3)//4)*4}')
    a('  .amdhsa_group_segment_fixed_size 0')
    a('  .amdhsa_kernarg_size 96')
    a('  .amdhsa_user_sgpr_count 2')
    a('  .amdhsa_user_sgpr_kernarg_segment_ptr 1')
    a('  .amdhsa_system_sgpr_workgroup_id_x 1')
    a('  .amdhsa_float_denorm_mode_32 3')
    a('.end_amdhsa_kernel')

def main(out):
    a = Asm()
    a(f'; @launch kernel=k1_kernel grid=({K1_GRID},1,1) block=(1024,1,1) lds={K1_LDS}')
    a(f'; @launch kernel=k2_kernel grid=({NB},1,1) block=(1024,1,1) lds={K2_LDS}')
    a('.amdgcn_target "amdgcn-amd-amdhsa--gfx950"')
    a('.text')
    a('.globl k1_kernel')
    gen_k1(a)
    a('.globl k2_kernel')
    gen_k2(a)
    a('.section .rodata,"a"')
    a('.p2align 6')
    kd(a, 'k1_kernel', 96, 102 if STAMP else 72)
    a('.p2align 6')
    kd(a, 'k2_kernel', 128, 102 if STAMP else 80)
    a.l = [x for x in a.l if x is not None]
    open(out, 'w').write(a.text())

if __name__ == '__main__':
    main(sys.argv[1] if len(sys.argv) > 1 else 'standalone__edge_featured_mpnn_gatedgcn__graph.s')
```

```python
import sys, os, struct
def env(n, d): return os.environ.get(n, d)

N = 10000; E = 640000
NPB = 40; NB = 250; EPC = 2560; NC = 250
LOG2E = 1.4426950408889634
WS_REC  = 0
REC_STRIDE = EPC*5
WS_DESC = 3407872
DESC_STRIDE = 1024
WS_T    = 4194304
T_BYTES = (N+1)*256

STAMP = int(env('STAMP', '0'))
K1ST = env('K1ST', 'sc1')
PRIO = int(env('PRIO', '1'))
TFIRST = int(env('TFIRST', '1'))
WS_STAMP = 128 << 20
ST0 = 80

def f2u(f): return struct.unpack('<I', struct.pack('<f', f))[0]

class Asm:
    def __init__(self): self.l = []
    def __call__(self, s=''):
        for line in s.split('\n'): self.l.append(line)
    def label(self, n): self.l.append(n + ':')
    def text(self): return '\n'.join(self.l) + '\n'

def stamp(a, i, real=False):
    if STAMP:
        r = ST0 + 2*(8+i if real else i)
        a(f"    {'s_memrealtime' if (real or STAMP >= 3) else 's_memtime'} s[{r}:{r+1}]")
def stamp_flush(a, wave_sgpr, wg_sgpr, kern, ws_lo):
    if not STAMP: return
    a('    s_waitcnt lgkmcnt(0)')
    a('    s_mov_b64 exec, 1')
    a('    v_mov_b32 v2, 0')
    if STAMP == 4:
        lab = f'STSKIP{kern}_{len(a.l)}'
        a(f'    s_and_b32 s14, s{wg_sgpr}, 31')
        a('    s_cmp_eq_u32 s14, 0')
        a(f'    s_cbranch_scc0 {lab}')
        a(f'    s_cmp_eq_u32 s{wave_sgpr}, 0')
        a(f'    s_cbranch_scc0 {lab}')
        a('    s_load_dwordx2 s[12:13], s[0:1], 80')
        a('    s_waitcnt lgkmcnt(0)')
        a(f'    s_add_u32 s12, s12, {1024 if kern == 0 else 512}')
        a('    s_addc_u32 s13, s13, 0')
        slots = [(0, 8, True), (1, 9, False), (7, 4, False), (8, 2, False)] if kern == 0 else \
                [(2, 8, True), (3, 4, False), (4, 5, False), (5, 6, False), (6, 9, False), (9, 2, False)]
        for slot, st, inv in slots:
            a(f'    v_mov_b32 v3, s{ST0+2*st}')
            if inv: a('    v_not_b32 v3, v3')
            a(f'    global_atomic_umax v2, v3, s[12:13] offset:{4*slot}')
        a('    s_waitcnt vmcnt(0)')
        a.label(lab)
        return
    a(f'    s_add_u32 s12, s{ws_lo}, {WS_STAMP + kern*(4<<20)}')
    a(f'    s_addc_u32 s13, s{ws_lo+1}, 0')
    a(f'    s_mov_b32 s14, {4<<20}')
    a('    s_mov_b32 s15, 0x00020000')
    a(f'    s_lshl_b32 s16, s{wg_sgpr}, 4')
    a(f'    s_add_u32 s16, s16, s{wave_sgpr}')
    a(f'    s_lshl_b32 s16, s16, 6')
    for i in range(8):
        a(f'    v_mov_b32 v3, s{ST0+2*i}')
        a(f'    buffer_store_dword v3, v2, s[12:15], s16 offen offset:{4*i}')
    for i in range(2):
        a(f'    v_mov_b32 v3, s{ST0+2*(8+i)}')
        a(f'    buffer_store_dword v3, v2, s[12:15], s16 offen offset:{4*(10+i)}')
    a('    s_waitcnt vmcnt(0)')

def srd(a, sreg, lo, hi, nbytes, off=0, stride=0, nrec=None):
    if off:
        a(f'    s_add_u32 s{sreg}, s{lo}, {off}')
        a(f'    s_addc_u32 s{sreg+1}, s{hi}, 0')
    else:
        a(f'    s_mov_b32 s{sreg}, s{lo}')
        a(f'    s_mov_b32 s{sreg+1}, s{hi}')
    if stride:
        a(f'    s_and_b32 s{sreg+1}, s{sreg+1}, 0xffff')
        a(f'    s_or_b32 s{sreg+1}, s{sreg+1}, {stride << 16}')
        a(f'    s_mov_b32 s{sreg+2}, {nrec}')
    else:
        a(f'    s_mov_b32 s{sreg+2}, {nbytes}')
    a(f'    s_mov_b32 s{sreg+3}, 0x00020000')

def dpp_scan(a, v):
    for sh in (1, 2, 4, 8):
        a('    s_nop 1')
        a(f'    v_add_u32_dpp v{v}, v{v}, v{v} row_shr:{sh} row_mask:0xf bank_mask:0xf')
    a('    s_nop 1')
    a(f'    v_add_u32_dpp v{v}, v{v}, v{v} row_bcast:15 row_mask:0xa bank_mask:0xf')
    a('    s_nop 1')
    a(f'    v_add_u32_dpp v{v}, v{v}, v{v} row_bcast:31 row_mask:0xc bank_mask:0xf')

def masked(a, cond, exreg, skip=None):
    a(f'    {cond}')
    a(f'    s_and_saveexec_b64 s[{exreg}:{exreg+1}], vcc')
    if skip: a(f'    s_cbranch_execz {skip}')
def unmask(a, exreg, skip=None):
    if skip: a.label(skip)
    a(f'    s_mov_b64 exec, s[{exreg}:{exreg+1}]')

K1_GRID = NC
L1_HIST = 0; L1_START = 1024; L1_SYNC = 2048
L1_ST32 = 2304; L1_ST8 = L1_ST32 + EPC*4; L1_W = 15360
K1_LDS = L1_W + 16384
K1PF = int(env('K1PF', '0'))
CPF = int(env('CPF', '1'))
XMAP = int(env('XMAP', '1'))
DESCST = env('DESCST', '')
RECST = env('RECST', K1ST)
TST = env('TST', K1ST)
TFIRST = int(env('TFIRST', '1'))

def gen_k1(a):
    a('.p2align 8')
    a('.type k1_kernel,@function')
    a.label('k1_kernel')
    a(f'    s_cmp_ge_u32 s2, {K1_GRID}')
    a('    s_cbranch_scc1 K1_END')
    stamp(a, 0); stamp(a, 0, True)
    if CPF:
        a('    s_getpc_b64 s[30:31]')
        a.label('K1_PC')
        a('    v_lshlrev_b32 v90, 7, v0')
        lim = 'CODE_END-K1_PC' if CPF >= 2 else 'k2_kernel-K1_PC'
        a(f'    v_cmp_gt_u32 vcc, {lim}, v90')
        a('    s_and_saveexec_b64 s[28:29], vcc')
        a('    s_cbranch_execz K1_NOCPF')
        a('    global_load_dword v91, v90, s[30:31]')
        a.label('K1_NOCPF')
        a('    s_mov_b64 exec, s[28:29]')
    if XMAP:
        a('    s_and_b32 s20, s2, 7')
        a('    s_lshr_b32 s21, s2, 3')
        a('    s_mul_i32 s22, s20, 31')
        a('    s_min_u32 s20, s20, 2')
        a('    s_add_u32 s22, s22, s20')
        a('    s_add_u32 s2, s22, s21')
    a('    v_lshrrev_b32 v1, 6, v0')
    a('    s_load_dwordx4 s[8:11], s[0:1], 16')
    a('    v_readfirstlane_b32 s20, v1')
    a('    s_load_dwordx2 s[4:5], s[0:1], 8      ; e_attr')
    a('    s_load_dwordx2 s[6:7], s[0:1], 88     ; ws')
    a('    v_and_b32 v2, 63, v0                   ; lane')
    if TFIRST:
        a('    s_cmp_lt_u32 s20, 6')
        a('    s_cbranch_scc1 K1_TABLE')
        a('    v_subrev_u32 v0, 384, v0')
        a('    s_sub_u32 s20, s20, 6')
    else:
        a('    s_cmp_ge_u32 s20, 10')
        a('    s_cbranch_scc1 K1_TABLE')
    a('    v_mov_b32 v5, 0')
    a('    v_lshlrev_b32 v6, 2, v0               ; t*4')
    masked(a, 'v_cmp_gt_u32 vcc, 256, v0', 30)
    a(f'    ds_write_b32 v6, v5 offset:{L1_HIST}')
    unmask(a, 30)
    a('    v_lshlrev_b32 v3, 4, v0               ; t*16')
    a('    v_lshlrev_b32 v4, 3, v0               ; t*8')
    a(f'    s_mul_i32 s21, s2, {EPC*4}')
    a(f'    s_mul_i32 s22, s2, {EPC*2}')
    a('    s_mov_b32 s23, 52429')
    a('    s_waitcnt lgkmcnt(0)')
    srd(a, 12, 10, 11, E*4)
    a('    buffer_load_dwordx4 v[8:11], v3, s[12:15], s21 offen     ; dst x4')
    srd(a, 16, 8, 9, E*4)
    a('    buffer_load_dwordx4 v[12:15], v3, s[16:19], s21 offen    ; src x4')
    srd(a, 24, 4, 5, E*2)
    a('    buffer_load_dwordx2 v[16:17], v4, s[24:27], s22 offen')
    srd(a, 32, 6, 7, NC*REC_STRIDE, off=WS_REC)
    srd(a, 36, 6, 7, NB*DESC_STRIDE, off=WS_DESC)
    a('    v_lshlrev_b32 v6, 4, v2                ; lane*16')
    a('    v_mul_u32_u24 v7, 20, v0')
    a('    v_lshlrev_b32 v18, 12, v2')
    a(f'    s_mul_i32 s25, s2, {REC_STRIDE}')
    a('    s_lshl_b32 s26, s2, 2')
    a('    s_mov_b32 s40, 0x06050400')
    a('    s_mov_b32 s41, 0x05040003')
    a('    s_mov_b32 s42, 0x03020500')
    a('    s_mov_b32 s43, 0x04000302')
    a('    s_mov_b32 s44, 0x03060100')
    a('    s_mov_b32 s45, 0x07030201')
    stamp(a, 1)
    a('    s_barrier')
    a('    v_mov_b32 v5, 1')
    a('    s_waitcnt vmcnt(2)')
    stamp(a, 2)
    for k in range(4):
        a(f'    v_mul_u32_u24 v{20+k}, s23, v{8+k}')
    for k in range(4):
        a(f'    v_lshrrev_b32 v{20+k}, 21, v{20+k}      ; bucket')
    for k in range(4):
        a(f'    v_lshlrev_b32 v{24+k}, 2, v{20+k}       ; bucket*4')
    for k in range(4):
        a(f'    ds_add_rtn_u32 v{28+k}, v{24+k}, v5 offset:{L1_HIST}')
    for k in range(4):
        a(f'    v_mul_u32_u24 v{20+k}, {NPB*4}, v{20+k}')
    for k in range(4):
        a(f'    v_lshlrev_b32 v{8+k}, 2, v{8+k}')
    for k in range(4):
        a(f'    v_sub_u32 v{20+k}, v{8+k}, v{20+k}')
    a('    s_waitcnt vmcnt(0)')
    a('    v_lshl_or_b32 v32, v16, 16, v12')
    a('    s_mov_b32 s24, 0xffff0000')
    a('    v_and_or_b32 v33, v16, s24, v13')
    a('    v_lshl_or_b32 v34, v17, 16, v14')
    a('    v_and_or_b32 v35, v17, s24, v15')
    a('    s_waitcnt lgkmcnt(0)')
    stamp(a, 3)
    a('    s_barrier')
    stamp(a, 4)
    a(f'    ds_read_b128 v[40:43], v6 offset:{L1_HIST}')
    a('    s_waitcnt lgkmcnt(0)')
    a('    v_add_u32 v44, v40, v41                ; h0+h1')
    a('    v_add_u32 v45, v44, v42')
    a('    v_add_u32 v46, v45, v43                ; sum4')
    a('    v_mov_b32 v47, v46')
    dpp_scan(a, 47)
    a('    v_sub_u32 v48, v47, v46')
    a('    v_add_u32 v49, v48, v40')
    a('    v_add_u32 v50, v48, v44')
    a('    v_add_u32 v51, v48, v45')
    a(f'    ds_write_b128 v6, v[48:51] offset:{L1_START}')
    a('    s_waitcnt lgkmcnt(0)')
    for k in range(4):
        a(f'    ds_read_b32 v{56+k}, v{24+k} offset:{L1_START}')
    for k in range(4):
        a(f'    v_lshl_or_b32 v{52+k}, v{40+k}, 16, v{48+k}')
    a('    s_waitcnt lgkmcnt(0)')
    for k in range(4):
        a(f'    v_add_u32 v{56+k}, v{56+k}, v{28+k}      ; position')
    for k in range(4):
        a(f'    ds_write_b8 v{56+k}, v{20+k} offset:{L1_ST8}')
        a(f'    v_lshlrev_b32 v{60+k}, 2, v{56+k}')
    for k in range(4):
        a(f'    ds_write_b32 v{60+k}, v{32+k} offset:{L1_ST32}')
    a('    s_waitcnt lgkmcnt(0)')
    stamp(a, 5)
    a('    s_barrier')
    a(f'    ds_read_b128 v[8:11], v3 offset:{L1_ST32}')
    a('    v_lshrrev_b32 v4, 2, v3                ; t*4')
    a(f'    ds_read_b32 v12, v4 offset:{L1_ST8}')
    a('    s_waitcnt lgkmcnt(0)')
    a('    v_perm_b32 v21, v9, v12, s40           ; d1 = L0 r1.b0 r1.b1 r1.b2')
    a('    v_perm_b32 v22, v10, v9, s41           ; r1.b3 . r2.b0 r2.b1')
    a('    v_perm_b32 v23, v11, v10, s43          ; r2.b2 r2.b3 . r3.b0')
    a('    v_mov_b32 v20, v8')
    a('    v_perm_b32 v22, v12, v22, s42          ; d2 : insert L1')
    a('    v_perm_b32 v23, v12, v23, s44          ; d3 : insert L2')
    a('    v_perm_b32 v24, v12, v11, s45          ; d4 = r3.b1 r3.b2 r3.b3 L3')
    a(f'    buffer_store_dwordx4 v[20:23], v7, s[32:35], s25 offen {RECST}')
    a(f'    buffer_store_dword v24, v7, s[32:35], s25 offen offset:16 {RECST}')
    a('    s_cmp_eq_u32 s20, 0')
    a('    s_cbranch_scc0 K1_SFIN')
    for k in range(4):
        a(f'    buffer_store_dword v{52+k}, v18, s[36:39], s26 offen offset:{1024*k} {DESCST}')
    a.label('K1_SFIN')
    if STAMP:
        stamp(a, 6)
        a('    s_waitcnt vmcnt(0)')
        stamp(a, 7); stamp(a, 1, True)
        stamp_flush(a, 20, 2, 0, 6)
    a('    s_endpgm')
    a.label('K1_TABLE')
    a('    s_load_dwordx2 s[40:41], s[0:1], 40   ; w_b')
    a('    s_load_dwordx2 s[42:43], s[0:1], 64   ; w_v')
    a('    s_load_dwordx2 s[44:45], s[0:1], 0    ; x')
    if K1PF:
        a('    s_load_dwordx2 s[60:61], s[0:1], 32   ; w_a')
        a('    s_load_dwordx4 s[64:67], s[0:1], 48   ; w_c, w_u')
        a('    s_load_dwordx2 s[62:63], s[0:1], 72   ; out')
    a('    s_mov_b32 s21, s20                     ; tw' if TFIRST else '    s_sub_u32 s21, s20, 10                 ; tw')
    a('    v_mov_b32 v5, 0')
    a('    v_lshlrev_b32 v6, 2, v2')
    a('    s_cmp_eq_u32 s21, 0')
    a('    s_cbranch_scc0 K1_T_NOZ')
    masked(a, 'v_cmp_gt_u32 vcc, 4, v2', 30)
    a(f'    ds_write_b32 v6, v5 offset:{L1_SYNC}')
    unmask(a, 30)
    a.label('K1_T_NOZ')
    a('    s_lshr_b32 s22, s21, 1')
    a('    s_lshl_b32 s22, s22, 4                 ; 16*rt')
    a('    v_and_b32 v4, 15, v2')
    a('    v_add_u32 v4, s22, v4')
    a('    v_lshrrev_b32 v5, 4, v2                ; g')
    a('    v_lshlrev_b32 v6, 7, v4')
    a('    v_lshl_add_u32 v6, v5, 4, v6')
    a(f'    s_mul_i32 s24, s2, {NPB*128}')
    a('    v_lshlrev_b32 v7, 4, v2                ; lane*16')
    a('    v_bfe_u32 v8, v2, 4, 1')
    a('    v_lshlrev_b32 v8, 1, v8')
    a('    v_and_b32 v9, 7, v2')
    a('    v_xor_b32 v8, v8, v9')
    a('    v_lshrrev_b32 v9, 3, v2')
    a('    v_lshlrev_b32 v9, 7, v9                ; (lane>>3)*128')
    a('    s_waitcnt lgkmcnt(0)')
    for i in range(3):
        a(f'    s_add_u32 s26, s21, {6*i}              ; p')
        a('    s_cmp_lt_u32 s26, 8')
        a('    s_cselect_b32 s48, s40, s42')
        a('    s_cselect_b32 s49, s41, s43')
        a('    s_mov_b32 s50, 8192')
        a('    s_mov_b32 s51, 0x00020000')
        a('    s_and_b32 s27, s26, 7')
        a('    s_lshl_b32 s27, s27, 10')
        a('    s_cmp_lt_u32 s26, 16')
        a(f'    s_cselect_b32 s27, s27, {1<<20}')
        a(f'    buffer_load_dwordx4 v[{48+4*i}:{51+4*i}], v7, s[48:51], s27 offen')
    srd(a, 36, 44, 45, N*128)
    a('    buffer_load_dwordx4 v[24:27], v6, s[36:39], s24 offen')
    a('    buffer_load_dwordx4 v[28:31], v6, s[36:39], s24 offen offset:64')
    if K1PF:
        a('    s_cmp_eq_u32 s21, 5')
        a('    s_cbranch_scc0 K1_T_NOPF')
        a('    v_lshlrev_b32 v60, 8, v2')
        a('    v_lshlrev_b32 v61, 7, v2')
        a('    global_load_dword v62, v61, s[60:61]')
        a('    global_load_dword v62, v61, s[66:67]')
        a('    v_mov_b32 v63, 0')
        a('    global_load_dword v62, v63, s[64:65]')
        a(f'    s_mul_i32 s26, s2, {NPB*128}')
        a('    v_mov_b32 v63, s26')
        a('    global_load_dword v62, v63, s[62:63]')
        srd(a, 52, 6, 7, WS_T + T_BYTES, off=0)
        a(f'    s_mul_i32 s26, s2, {REC_STRIDE}')
        a('    v_mov_b32 v63, s26')
        a('    buffer_load_dword v62, v63, s[52:55], 0 offen')
        a(f'    s_mul_i32 s26, s2, {NPB*256}')
        a(f'    s_add_u32 s26, s26, {WS_T}')
        a('    v_mov_b32 v63, s26')
        a('    buffer_load_dword v62, v63, s[52:55], 0 offen')
        a(f'    s_mul_i32 s26, s2, {DESC_STRIDE}')
        a(f'    s_add_u32 s26, s26, {WS_DESC}')
        a('    v_mov_b32 v63, s26')
        a('    buffer_load_dword v62, v63, s[52:55], 0 offen')
        a('    s_barrier')
        a('    s_waitcnt vmcnt(9)')
        a('    s_branch K1_T_PFJOIN')
        a.label('K1_T_NOPF')
    a('    s_barrier')
    a('    s_waitcnt vmcnt(2)')
    if K1PF: a.label('K1_T_PFJOIN')
    stamp(a, 1)
    for i in range(3):
        a(f'    s_add_u32 s26, s21, {6*i}              ; p')
        a('    s_cmp_lt_u32 s26, 16')
        a(f'    s_cbranch_scc0 K1_T_ST{i}')
        a('    s_and_b32 s27, s26, 1')
        a('    s_lshl_b32 s27, s27, 2')
        a('    v_xor_b32 v10, s27, v8')
        a('    v_lshl_add_u32 v10, v10, 4, v9')
        a('    s_lshl_b32 s27, s26, 10                ; m*8192 + (p&7)*1024 = p*1024')
        a('    v_add_u32 v10, s27, v10')
        a(f'    ds_write_b128 v10, v[{48+4*i}:{51+4*i}] offset:{L1_W}')
        a.label(f'K1_T_ST{i}')
    srd(a, 44, 6, 7, T_BYTES, off=WS_T)
    a('    s_waitcnt lgkmcnt(0)')
    a('    v_mov_b32 v10, 0')
    a('    v_mov_b32 v11, 1')
    a('    s_mov_b64 exec, 1')
    a(f'    ds_add_u32 v10, v11 offset:{L1_SYNC}')
    a('    s_mov_b64 exec, -1')
    a('    s_and_b32 s23, s21, 1                  ; half')
    a('    v_bfe_u32 v12, v2, 2, 2                ; r')
    a('    v_lshl_add_u32 v13, v5, 3, v12         ; rho')
    a('    v_lshlrev_b32 v13, 7, v13')
    a('    v_and_b32 v14, 1, v2')
    a('    v_lshl_add_u32 v13, v14, 3, v13        ; + (c&1)*8')
    a('    v_bfe_u32 v14, v2, 1, 1                ; c>>1')
    a('    v_lshrrev_b32 v12, 1, v12')
    a('    v_and_b32 v15, 1, v5                   ; g&1')
    a('    v_lshlrev_b32 v15, 1, v15')
    a('    v_or_b32 v12, v12, v15                 ; swz/2')
    a('    s_lshl_b32 s25, s23, 1')
    a('    v_xor_b32 v15, s25, v12')
    a('    v_lshl_or_b32 v15, v15, 1, v14')
    a('    v_lshl_add_u32 v16, v15, 4, v13')
    a('    s_add_u32 s25, s25, 1')
    a('    v_xor_b32 v15, s25, v12')
    a('    v_lshl_or_b32 v15, v15, 1, v14')
    a('    v_lshl_add_u32 v17, v15, 4, v13')
    for r in range(32, 48):
        a(f'    v_mov_b32 v{r}, 0')
    a.label('K1_T_SPIN')
    a(f'    ds_read_b32 v11, v10 offset:{L1_SYNC}')
    a('    s_waitcnt lgkmcnt(0)')
    a('    v_readfirstlane_b32 s26, v11')
    a('    s_cmp_lt_u32 s26, 6')
    a('    s_cbranch_scc1 K1_T_SPIN')
    stamp(a, 3)
    order = [(jj, ks, m) for jj in range(2) for ks in range(2) for m in range(2)]
    for i, (jj, ks, m) in enumerate(order):
        b = 64 + 4*i
        off = L1_W + m*8192 + ks*32*128
        a(f'    ds_read_b64_tr_b16 v[{b}:{b+1}], v{16+jj} offset:{off}')
        a(f'    ds_read_b64_tr_b16 v[{b+2}:{b+3}], v{16+jj} offset:{off+512}')
    a(f'    s_mov_b32 s27, {hex(f2u(-LOG2E))}')
    a('    s_mov_b32 s28, 0xffff0000')
    a('    s_mov_b32 s29, 0x80000000')
    a('    v_lshlrev_b32 v9, 8, v4')
    a('    v_lshl_add_u32 v9, v5, 4, v9')
    a('    s_lshl_b32 s25, s23, 7')
    a(f'    s_mul_i32 s26, s2, {NPB*256}')
    a('    s_add_u32 s25, s25, s26')
    a('    v_add_u32 v9, s25, v9')
    a(f'    v_cmp_gt_u32 vcc, {NPB}, v4')
    a(f'    v_mov_b32 v10, {1<<30}')
    a('    s_waitcnt vmcnt(0)' if not K1PF else '    s_waitcnt vmcnt(7)')
    a('    v_cndmask_b32 v9, v10, v9, vcc')
    if K1PF:
        a('    s_cmp_eq_u32 s21, 5')
        a('    s_cbranch_scc1 K1_T_XOK')
        a('    s_waitcnt vmcnt(0)')
        a.label('K1_T_XOK')
    for i, (jj, ks, m) in enumerate(order):
        b = 64 + 4*i
        a(f'    s_waitcnt lgkmcnt({min(15, 2*(7-i))})')
        acc = 32 + 8*m + 4*jj
        x = 24 + 4*ks
        a(f'    v_mfma_f32_16x16x32_bf16 v[{acc}:{acc+3}], v[{b}:{b+3}], v[{x}:{x+3}], v[{acc}:{acc+3}]')
    stamp(a, 4)
    a('    s_nop 4')
    for jj in range(2):
        R = range(4)
        p = lambda r: 32 + 4*jj + r
        q = lambda r: 40 + 4*jj + r
        t = lambda r: 10 + r
        if jj == 1: a('    s_nop 2')
        for r in R: a(f'    v_mul_f32 v{p(r)}, s27, v{p(r)}')
        for r in R: a(f'    v_cvt_f16_f32 v{p(r)}, v{p(r)}')
        for r in R: a(f'    v_and_b32 v{t(r)}, 0x7fffffff, v{q(r)}')
        for r in R: a(f'    v_and_b32 v{p(r)}, 0xffff, v{p(r)}')
        for r in R: a(f'    v_sub_u32 v{t(r)}, v{t(r)}, v{p(r)}')
        for r in R: a(f'    v_add_u32 v{t(r)}, 0x8000, v{t(r)}')
        for r in R: a(f'    v_max_i32 v{t(r)}, 0, v{t(r)}')
        for r in R: a(f'    v_and_or_b32 v{t(r)}, v{t(r)}, s28, v{p(r)}')
        for r in R: a(f'    v_and_or_b32 v{p(r)}, v{q(r)}, s29, v{t(r)}')
        a(f'    buffer_store_dwordx4 v[{32+4*jj}:{35+4*jj}], v9, s[44:47], 0 offen offset:{jj*64} {TST}')
    a('    s_cmp_eq_u32 s2, 0')
    a('    s_cbranch_scc0 K1_TFIN')
    a('    s_cmp_eq_u32 s21, 0')
    a('    s_cbranch_scc0 K1_TFIN')
    a('    v_mov_b32 v10, 0x7c00')
    a(f'    v_lshlrev_b32 v11, 2, v2')
    a(f'    v_add_u32 v11, {N*256}, v11')
    a(f'    buffer_store_dword v10, v11, s[44:47], 0 offen {TST}')
    a.label('K1_TFIN')
    stamp(a, 5)
    a('    s_barrier                              ; (ranks)')
    a('    s_barrier                              ; (scatter)')
    if STAMP:
        stamp(a, 6)
        a('    s_waitcnt vmcnt(0)')
        stamp(a, 7); stamp(a, 1, True)
        if STAMP >= 3:
            a('    s_waitcnt lgkmcnt(0)')
            a(f'    s_mov_b32 s{ST0+4}, s{ST0+16}')
        else: stamp(a, 2)
        if TFIRST: a('    s_add_u32 s20, s20, 10')
        stamp_flush(a, 20, 2, 0, 6)
    a.label('K1_END')
    a('    s_endpgm')

CAP = 4096
TS = 272
L2_CNT = 0; L2_FLG = 256
L2_LIST = 512
L2_SLOT = L2_LIST + CAP*4
L2_W = L2_SLOT
L2_EAT = L2_SLOT + 56*512; L2_AT = L2_EAT + 48*TS; L2_UT = L2_AT + 48*TS
XS = 144
L2_XT = L2_UT + 48*TS
K2_LDS = L2_XT + 48*XS
U = 4
TPF = int(env('TPF', '1'))
PFPOS = int(env('PFPOS', '1'))
PFN = int(env('PFN', '40'))
PRT = [int(x) for x in env('PRT', '4,4,4').split(',')]

def gen_k2(a):
    sB = 2; sWAVE = 3
    SRD_DESC = 12; SRD_REC = 16; SRD_T = 20; SRD_W = 24; SRD_X = 28; SRD_OUT = 32; SRD_WC = 36
    sMODE = 40; sPASS = 41
    sG0 = 42; sG1 = 43; sGEND = 44; sLEFT = 45; sNODE = 46; sT0 = 47; sT1 = 48; sSAFE = 49; sGT = 50; sR = 51
    sEX = 52; sEAB = 54; sPR = 55; sPQ = 56; sLVL = 57; sSLOT = 58; sNR = 59; sPQ2 = 60; sXT = 61; sJ = 58
    sM = 64
    vLANE = 1
    vWC = 4; vEA = 8; vDEN = 12; vNUM = 16; vT = 20; vDAT = 24; vP = 40; vEV = 48
    vSA = 50; vACC = 51; vEAA = 52; vGS = 53; vQ16 = 54; vNG = 55
    vDA = 56; vNA = 60
    vX = 64
    vFL = 66
    vGE = 67
    vXO = 68
    vR = 76
    vB = 84
    vRK = 92
    vLA = 100
    vA = 108
    vCNT = 118; vRO = 119; vI = 120; vRM = 121; vTRA = 122; vXRA = 123; vROW = 50; vPFA = 51
    vLC = 12
    vPF = 16
    vXO2 = vXO
    SRD_LOC = 8; SRD_PF = 24
    vW = 24; vOP = 24; vAC = 40

    a('.p2align 8')
    a('.type k2_kernel,@function')
    a.label('k2_kernel')
    a(f'    s_cmp_ge_u32 s2, {NB}')
    a('    s_cbranch_scc1 K2_END')
    stamp(a, 0); stamp(a, 0, True)
    if CPF:
        a('    s_getpc_b64 s[30:31]')
        a.label('K2_PC')
        a('    v_lshlrev_b32 v124, 7, v0')
        a('    v_cmp_gt_u32 vcc, CODE_END-K2_PC, v124')
        a('    s_and_saveexec_b64 s[28:29], vcc')
        a('    s_cbranch_execz K2_NOCPF')
        a('    global_load_dword v125, v124, s[30:31]')
        a.label('K2_NOCPF')
        a('    s_mov_b64 exec, s[28:29]')
    if XMAP:
        a(f'    s_and_b32 s{sT0}, s2, 7')
        a(f'    s_lshr_b32 s{sJ}, s2, 3')
        a(f'    s_mul_i32 s{sT1}, s{sT0}, 31')
        a(f'    s_min_u32 s{sT0}, s{sT0}, 2')
        a(f'    s_add_u32 s{sT1}, s{sT1}, s{sT0}')
        a(f'    s_add_u32 s2, s{sT1}, s{sJ}')
    else:
        a(f'    s_lshr_b32 s{sJ}, s2, 3')
    a('    s_load_dwordx2 s[6:7], s[0:1], 88      ; ws')
    a('    s_load_dwordx2 s[4:5], s[0:1], 0       ; x')
    a('    s_load_dwordx2 s[8:9], s[0:1], 32      ; w_a')
    a('    s_load_dwordx4 s[60:63], s[0:1], 48    ; w_c, w_u')
    a('    s_load_dwordx2 s[10:11], s[0:1], 72    ; out')
    a(f'    v_and_b32 v{vLANE}, 63, v0')
    a(f'    v_lshrrev_b32 v{vA}, 6, v0')
    a(f'    v_and_b32 v{vQ16}, 15, v0')
    a(f'    v_readfirstlane_b32 s{sWAVE}, v{vA}')
    a(f'    v_lshlrev_b32 v{vQ16}, 4, v{vQ16}      ; q*16')
    a(f'    v_and_b32 v{vA}, 0x3fc, v0             ; (t>>2)*4')
    a(f'    v_cmp_gt_u32 vcc, {NC*4}, v0')
    a(f'    v_mov_b32 v{vA+8}, {1<<30}')
    a(f'    s_lshl_b32 s{sT0}, s{sB}, 10')
    a(f'    v_cndmask_b32 v{vA}, v{vA+8}, v{vA}, vcc')
    for i in range(4):
        a(f'    v_mov_b32 v{vDA+i}, 0')
        a(f'    v_mov_b32 v{vNA+i}, 0')
    masked(a, 'v_cmp_gt_u32 vcc, 4, v0', sEX)
    a(f'    v_lshlrev_b32 v{vA+5}, 2, v0')
    a(f'    ds_write_b32 v{vA+5}, v{vDA} offset:{L2_FLG}')
    unmask(a, sEX)
    a(f'    s_mov_b32 s{sMODE}, 0')
    a(f'    s_mov_b32 s{sPASS}, 0')
    a(f'    v_mov_b32 v{vEV}, 0')
    a(f'    v_mov_b32 v{vEV+1}, 0')
    a(f'    v_lshrrev_b32 v{vA+1}, 5, v{vLANE}')
    a(f'    v_lshl_add_u32 v{vFL}, v{vA+1}, 8, v{vQ16}')
    a(f'    v_bfe_u32 v{vA+1}, v{vLANE}, 4, 1')
    a(f'    v_lshl_add_u32 v{vFL}, v{vA+1}, 3, v{vFL}')
    a.label('K2_PASS')
    for i in range(4):
        a(f'    v_mov_b32 v{vA+6+i}, {N}')
    a(f'    v_lshlrev_b32 v{vA+5}, 4, v0')
    a(f'    ds_write_b128 v{vA+5}, v[{vA+6}:{vA+9}] offset:{L2_LIST}')
    masked(a, 'v_cmp_gt_u32 vcc, 64, v0', sEX)
    a(f'    v_lshlrev_b32 v{vA+4}, 2, v0')
    a(f'    v_mov_b32 v{vA+3}, 0')
    a(f'    ds_write_b32 v{vA+4}, v{vA+3} offset:{L2_CNT}')
    unmask(a, sEX)
    a(f'    s_cmp_eq_u32 s{sMODE}, 0')
    a('    s_cbranch_scc0 K2_SLOWPARAM')
    a('    s_waitcnt lgkmcnt(0)')
    srd(a, SRD_DESC, 6, 7, NB*DESC_STRIDE, off=WS_DESC)
    a(f'    buffer_load_dword v{vCNT}, v{vA}, s[{SRD_DESC}:{SRD_DESC+3}], s{sT0} offen')
    a(f'    s_cmp_lt_u32 s{sWAVE}, 8')
    a(f'    s_cselect_b32 s{SRD_W}, s8, s62')
    a(f'    s_cselect_b32 s{SRD_W+1}, s9, s63')
    a(f'    s_mov_b32 s{SRD_W+2}, 8192')
    a(f'    s_mov_b32 s{SRD_W+3}, 0x00020000')
    srd(a, SRD_X, 4, 5, N*128)
    srd(a, SRD_WC, 60, 61, 128)
    a(f'    v_and_b32 v{vA+1}, 511, v0')
    a(f'    v_lshlrev_b32 v{vA+1}, 4, v{vA+1}')
    a(f'    buffer_load_dwordx4 v[{vW}:{vW+3}], v{vA+1}, s[{SRD_W}:{SRD_W+3}], 0 offen')
    a(f'    v_lshlrev_b32 v{vA+4}, 4, v0')
    a(f'    v_cmp_gt_u32 vcc, 384, v0')
    a(f'    v_mov_b32 v{vA+3}, {1<<30}')
    a(f'    s_mul_i32 s{sT1}, s{sB}, {NPB*128}')
    a(f'    v_cndmask_b32 v{vA+4}, v{vA+3}, v{vA+4}, vcc')
    a(f'    buffer_load_dwordx4 v[{vXO}:{vXO+3}], v{vA+4}, s[{SRD_X}:{SRD_X+3}], s{sT1} offen')
    a(f'    v_lshrrev_b32 v{vA+7}, 1, v{vQ16}      ; q*8 (wc)')
    a(f'    buffer_load_dwordx2 v[{vWC}:{vWC+1}], v{vA+7}, s[{SRD_WC}:{SRD_WC+3}], 0 offen')
    a('    s_barrier')
    srd(a, SRD_OUT, 10, 11, N*128)
    srd(a, SRD_REC, 6, 7, NC*REC_STRIDE + 64, off=WS_REC)
    srd(a, SRD_T, 6, 7, 0, off=WS_T, stride=256, nrec=N+1)
    a(f'    v_lshrrev_b32 v{vA}, 2, v0             ; c')
    a(f'    v_mul_u32_u24 v{vRO}, {REC_STRIDE}, v{vA}')
    a(f'    v_and_b32 v{vI}, 3, v0')
    a(f'    v_lshlrev_b32 v{vI}, 2, v{vI}')
    a(f'    v_mad_u32_u24 v{vRO}, v{vI}, 5, v{vRO}')
    a(f'    s_mov_b32 s{sT1}, 16')
    a('    s_waitcnt vmcnt(3)                      ; descriptor')
    stamp(a, 1)
    a(f'    v_and_b32 v{vA+1}, 0xffff, v{vCNT}      ; start')
    a(f'    v_lshrrev_b32 v{vCNT}, 16, v{vCNT}      ; cnt')
    a(f'    v_mad_u32_u24 v{vRO}, v{vA+1}, 5, v{vRO}')
    a('    s_branch K2_PARAMDONE')
    a.label('K2_SLOWPARAM')
    a(f'    s_lshl_b32 s{sT0}, s{sB}, 10')
    a(f'    s_lshl_b32 s{sT1}, s{sPASS}, 2')
    a(f'    s_add_u32 s{sT0}, s{sT0}, s{sT1}')
    a(f'    v_mov_b32 v{vA}, 0')
    a(f'    buffer_load_dword v{vCNT}, v{vA}, s[{SRD_DESC}:{SRD_DESC+3}], s{sT0} offen')
    a(f'    s_mul_i32 s{sT0}, s{sPASS}, {REC_STRIDE}')
    a('    s_waitcnt vmcnt(0) lgkmcnt(0)')
    a('    s_barrier')
    a(f'    v_and_b32 v{vA+1}, 0xffff, v{vCNT}')
    a(f'    v_lshlrev_b32 v{vI}, 2, v0')
    a(f'    v_add_u32 v{vA+1}, v{vA+1}, v{vI}')
    a(f'    v_mul_u32_u24 v{vRO}, 5, v{vA+1}')
    a(f'    v_add_u32 v{vRO}, s{sT0}, v{vRO}')
    a(f'    v_lshrrev_b32 v{vCNT}, 16, v{vCNT}')
    a(f'    s_mov_b32 s{sT1}, 4096')
    a.label('K2_PARAMDONE')
    a(f'    v_sub_u32 v{vRM}, v{vCNT}, v{vI}')
    a(f'    s_mul_i32 s{sT0}, s{sT1}, 5')
    a(f'    s_mov_b32 s{sNR}, 0')
    for r in range(2):
        m0 = sM + 8*r
        if r == 1:
            a(f'    v_subrev_u32 v{vRM}, s{sT1}, v{vRM}')
        for h in range(4):
            a(f'    v_cmp_gt_i32 s[{m0+2*h}:{m0+2*h+1}], v{vRM}, {h}' if h else f'    v_cmp_lt_i32 s[{m0}:{m0+1}], 0, v{vRM}')
        a(f'    s_cmp_eq_u64 s[{m0}:{m0+1}], 0')
        a(f'    s_cbranch_scc1 K2_LD_DONE')
        a(f'    s_mov_b64 exec, s[{m0}:{m0+1}]')
        a(f'    buffer_load_dwordx4 v[{vR+4*r}:{vR+4*r+3}], v{vRO}, s[{SRD_REC}:{SRD_REC+3}], 0 offen')
        a(f'    buffer_load_dword v{vLC+r}, v{vRO}, s[{SRD_REC}:{SRD_REC+3}], 0 offen offset:16')
        a(f'    s_mov_b64 exec, -1')
        a(f'    s_mov_b32 s{sNR}, {r+1}')
        if r < 1:
            a(f'    v_add_u32 v{vRO}, s{sT0}, v{vRO}')
    a.label('K2_LD_DONE')
    a(f'    s_or_b32 s{sT0}, s{sMODE}, s{sPASS}')
    a(f'    s_cmp_eq_u32 s{sT0}, 0')
    a('    s_cbranch_scc0 K2_LATER_PASS')
    a(f'    v_lshrrev_b32 v{vA+8}, 3, v0')
    a(f'    v_mul_u32_u24 v{vA+8}, {XS}, v{vA+8}')
    a(f'    v_and_b32 v{vA+7}, 7, v0')
    a(f'    v_lshl_add_u32 v{vA+8}, v{vA+7}, 4, v{vA+8}')
    a(f'    v_add_u32 v{vA+8}, {L2_XT}, v{vA+8}')
    NPF = 1 if TPF else 0
    a(f'    v_bfe_u32 v{vA+1}, v0, 4, 1')
    a(f'    v_bfe_u32 v{vA+2}, v0, 6, 1')
    a(f'    v_lshlrev_b32 v{vA+1}, 1, v{vA+1}')
    a(f'    v_lshl_or_b32 v{vA+1}, v{vA+2}, 2, v{vA+1}')
    a(f'    v_and_b32 v{vA+2}, 7, v0')
    a(f'    v_xor_b32 v{vA+1}, v{vA+1}, v{vA+2}')
    a(f'    v_lshrrev_b32 v{vA+2}, 3, v0')
    a(f'    v_lshlrev_b32 v{vA+2}, 7, v{vA+2}')
    a(f'    v_lshl_add_u32 v{vA+9}, v{vA+1}, 4, v{vA+2}')
    a(f'    v_lshrrev_b32 v{vA+3}, 4, v{vLANE}     ; g')
    a(f'    v_bfe_u32 v{vA}, v{vLANE}, 2, 2        ; r')
    a(f'    v_lshl_add_u32 v{vA+1}, v{vA+3}, 3, v{vA}')
    a(f'    v_lshlrev_b32 v{vA+1}, 7, v{vA+1}')
    a(f'    v_and_b32 v{vA+2}, 1, v{vLANE}')
    a(f'    v_lshl_add_u32 v{vA+1}, v{vA+2}, 3, v{vA+1}')
    a(f'    v_lshrrev_b32 v{vA}, 1, v{vA}')
    a(f'    v_and_b32 v{vA+2}, 1, v{vA+3}')
    a(f'    v_lshl_or_b32 v{vA}, v{vA+2}, 1, v{vA}     ; swz/2')
    a(f'    s_and_b32 s{sT0}, s{sWAVE}, 3')
    a(f'    v_xor_b32 v{vA}, s{sT0}, v{vA}')
    a(f'    v_bfe_u32 v{vA+2}, v{vLANE}, 1, 1')
    a(f'    v_lshl_or_b32 v{vA}, v{vA}, 1, v{vA+2}')
    a(f'    v_lshl_add_u32 v{vTRA}, v{vA}, 4, v{vA+1}')
    a(f'    s_lshr_b32 s{sT1}, s{sWAVE}, 2')
    a(f'    s_lshl_b32 s{sT1}, s{sT1}, 4')
    a(f'    v_and_b32 v{vA+2}, 15, v{vLANE}')
    a(f'    v_add_u32 v{vROW}, s{sT1}, v{vA+2}     ; row')
    a(f'    v_mul_u32_u24 v{vA+1}, {XS}, v{vROW}')
    a(f'    v_lshl_add_u32 v{vA+1}, v{vA+3}, 4, v{vA+1}')
    a(f'    v_add_u32 v{vXRA}, {L2_XT}, v{vA+1}')
    a(f'    v_mul_u32_u24 v{vA+4}, {TS}, v{vROW}')
    a(f'    v_lshl_add_u32 v{vA+4}, v{vA+3}, 4, v{vA+4}')
    a(f'    s_lshl_b32 s{sT0}, s{sT0}, 6')
    a(f'    s_add_u32 s{sT0}, s{sT0}, {L2_EAT}')
    a(f'    v_add_u32 v{vEAA}, s{sT0}, v{vA+4}')
    if TPF:
        srd(a, SRD_PF, 6, 7, T_BYTES, off=WS_T)
        a(f'    s_mul_i32 s{sT0}, s{sJ}, {640*128}')
        a(f'    s_mul_i32 s{sT1}, s{sWAVE}, {40*128}')
        a(f'    s_add_u32 s{sJ}, s{sT0}, s{sT1}')
        a(f'    v_lshlrev_b32 v{vA+3}, 7, v{vLANE}')
        a(f'    v_cmp_gt_u32 vcc, {PFN}, v{vLANE}')
        a(f'    v_mov_b32 v{vA+4}, {1<<30}')
        a('    s_nop 0')
        a(f'    v_cndmask_b32 v{vPFA}, v{vA+4}, v{vA+3}, vcc')
    a(f'    v_mov_b32 v{vA+2}, 1')
    a(f'    s_waitcnt vmcnt(0)')
    if TPF and PFPOS == 1:
        a(f'    buffer_load_dword v{vPF}, v{vPFA}, s[{SRD_PF}:{SRD_PF+3}], s{sJ} offen')
    a('    s_branch K2_RANKS')
    a.label('K2_LATER_PASS')
    a(f'    v_mov_b32 v{vA+2}, 1')
    a('    s_waitcnt vmcnt(0)')
    a.label('K2_RANKS')
    stamp(a, 2)
    for r in range(2):
        a(f'    s_cmp_le_u32 s{sNR}, {r}')
        a('    s_cbranch_scc1 K2_RK_DONE')
        d = vR + 4*r
        a(f'    v_and_b32 v{vLA+4*r}, 0xff, v{d+1}')
        a(f'    v_bfe_u32 v{vLA+4*r+1}, v{d+2}, 8, 8')
        a(f'    v_bfe_u32 v{vLA+4*r+2}, v{d+3}, 16, 8')
        a(f'    v_lshrrev_b32 v{vLA+4*r+3}, 24, v{vLC+r}')
        for h in range(4):
            k = 4*r + h
            a(f'    s_mov_b64 exec, s[{sM+2*k}:{sM+2*k+1}]')
            a(f'    ds_add_rtn_u32 v{vRK+k}, v{vLA+k}, v{vA+2} offset:{L2_CNT}')
        a('    s_mov_b64 exec, -1')
        a(f'    v_alignbyte_b32 v{d+1}, v{d+2}, v{d+1}, 1')
        a(f'    v_alignbyte_b32 v{d+2}, v{d+3}, v{d+2}, 2')
        a(f'    v_alignbyte_b32 v{d+3}, v{vLC+r}, v{d+3}, 3')
    a.label('K2_RK_DONE')
    masked(a, f'v_cmp_lt_u32 vcc, 32, v{vCNT}', sEX, 'K2_NOOVF')
    a(f'    v_mov_b32 v{vA+3}, 0')
    a(f'    ds_write_b32 v{vA+3}, v{vA+2} offset:{L2_FLG}')
    unmask(a, sEX, 'K2_NOOVF')
    a(f'    s_or_b32 s{sT0}, s{sMODE}, s{sPASS}')
    a(f'    s_cmp_eq_u32 s{sT0}, 0')
    a('    s_cbranch_scc0 K2_NOWST')
    a(f'    ds_write_b128 v{vA+9}, v[{vW}:{vW+3}] offset:{L2_W}')
    a(f'    s_cmp_lt_u32 s{sWAVE}, 6')
    a('    s_cbranch_scc0 K2_NOXST')
    a(f'    ds_write_b128 v{vA+8}, v[{vXO}:{vXO+3}]')
    a.label('K2_NOXST')
    a.label('K2_NOWST')
    a(f'    v_lshlrev_b32 v{vA+1}, 2, v{vLANE}')
    a(f'    v_mov_b32 v{vA}, 0')
    a('    s_waitcnt lgkmcnt(0)')
    stamp(a, 3)
    a('    s_barrier')
    stamp(a, 4)
    if TPF and PFPOS == 0:
        a(f'    s_or_b32 s{sT0}, s{sMODE}, s{sPASS}')
        a(f'    s_cmp_eq_u32 s{sT0}, 0')
        a('    s_cbranch_scc0 K2_NOPF')
        a(f'    buffer_load_dword v{vPF}, v{vPFA}, s[{SRD_PF}:{SRD_PF+3}], s{sJ} offen')
        a.label('K2_NOPF')
    a(f'    ds_read_b32 v{vNG}, v{vA+1} offset:{L2_CNT}')
    a(f'    ds_read_b32 v{vA+4}, v{vA} offset:{L2_FLG}')
    a('    s_waitcnt lgkmcnt(1)')
    a(f'    v_add_u32 v{vNG}, 3, v{vNG}')
    a(f'    v_lshrrev_b32 v{vNG}, 2, v{vNG}')
    a(f'    v_mov_b32 v{vGE}, v{vNG}')
    dpp_scan(a, vGE)
    a('    s_waitcnt lgkmcnt(0)')
    a(f'    v_readlane_b32 s{sGT}, v{vGE}, {NPB-1}')
    a(f'    v_sub_u32 v{vGS}, v{vGE}, v{vNG}')
    a(f'    v_readfirstlane_b32 s{sT0}, v{vA+4}')
    a(f'    v_lshlrev_b32 v{vA+6}, 4, v{vGS}')
    a(f'    v_cmp_lt_u32 vcc, {NPB}, v{vLANE}')
    a(f'    s_add_u32 s{sR}, s{sGT}, 15')
    a(f'    s_lshr_b32 s{sR}, s{sR}, 4')
    a(f'    v_cndmask_b32 v{vGS}, v{vGS}, -1, vcc')
    a(f'    s_cmp_eq_u32 s{sMODE}, 0')
    a('    s_cbranch_scc0 K2_NOSWITCH')
    a(f'    s_cmp_gt_u32 s{sGT}, {(CAP - 64)//4}')
    a(f'    s_cselect_b32 s{sT1}, 1, 0')
    a(f'    s_or_b32 s{sT0}, s{sT0}, s{sT1}')
    a(f'    s_cmp_eq_u32 s{sT0}, 0')
    a('    s_cbranch_scc1 K2_NOSWITCH')
    a(f'    s_mov_b32 s{sNR}, 0')
    a(f'    s_mov_b32 s{sGT}, 0')
    a(f'    s_mov_b32 s{sR}, 0')
    a(f'    s_mov_b32 s{sMODE}, 2')
    a.label('K2_NOSWITCH')
    for r in range(2):
        a(f'    s_cmp_le_u32 s{sNR}, {r}')
        a('    s_cbranch_scc1 K2_LK_DONE')
        for h in range(4):
            k = 4*r + h
            a(f'    ds_bpermute_b32 v{vB+k}, v{vLA+k}, v{vA+6}')
    a.label('K2_LK_DONE')
    a(f'    s_cmp_eq_u32 s{sPASS}, 0')
    a('    s_cbranch_scc0 K2_NOTAB')
    a(f'    s_cmp_eq_u32 s{sMODE}, 1')
    a('    s_cbranch_scc1 K2_NOTAB')
    a(f'    s_cmp_lt_u32 s{sWAVE}, 12')
    a('    s_cbranch_scc0 K2_WC')
    a(f'    ds_read_b128 v[{vXO}:{vXO+3}], v{vXRA}')
    a(f'    ds_read_b128 v[{vXO+4}:{vXO+7}], v{vXRA} offset:64')
    order = [(m, ks) for ks in range(2) for m in range(2)]
    for i, (m, ks) in enumerate(order):
        b = vOP + 4*i
        off = L2_W + m*8192 + ks*32*128
        a(f'    ds_read_b64_tr_b16 v[{b}:{b+1}], v{vTRA} offset:{off}')
        a(f'    ds_read_b64_tr_b16 v[{b+2}:{b+3}], v{vTRA} offset:{off+512}')
    for i, (m, ks) in enumerate(order):
        b = vOP + 4*i
        a(f'    s_waitcnt lgkmcnt({2*(3-i)})')
        acc = vAC + 4*m; x = vXO2 + 4*ks
        c = '0' if ks == 0 else f'v[{acc}:{acc+3}]'
        a(f'    v_mfma_f32_16x16x32_bf16 v[{acc}:{acc+3}], v[{b}:{b+3}], v[{x}:{x+3}], {c}')
    a(f'    s_mov_b32 s{sT0}, {hex(f2u(-LOG2E))}')
    a(f'    s_mov_b32 s{sT1}, {hex(f2u(60.0))}')
    a('    s_nop 6')
    for i in range(4):
        a(f'    v_mul_f32 v{vAC+i}, s{sT0}, v{vAC+i}')
    a(f'    ds_write_b128 v{vEAA}, v[{vAC+4}:{vAC+7}] offset:{L2_UT-L2_EAT}')
    a(f'    ds_write_b128 v{vEAA}, v[{vAC}:{vAC+3}] offset:{L2_AT-L2_EAT}')
    for i in range(4):
        a(f'    v_exp_f32 v{vOP+i}, v{vAC+i}')
    a(f'    v_max3_f32 v{vA+5}, |v{vAC}|, |v{vAC+1}|, |v{vAC+2}|')
    a(f'    v_max_f32 v{vA+5}, v{vA+5}, |v{vAC+3}|')
    a(f'    ds_write_b128 v{vEAA}, v[{vOP}:{vOP+3}]')
    a(f'    v_cmp_nle_f32 vcc, v{vA+5}, s{sT1}')
    a(f'    v_cmp_gt_u32 s[{sEX}:{sEX+1}], {NPB}, v{vROW}')
    a(f'    s_and_b64 vcc, vcc, s[{sEX}:{sEX+1}]')
    a(f'    s_and_saveexec_b64 s[{sEX}:{sEX+1}], vcc')
    a('    s_cbranch_execz K2_GUARD_OK')
    a(f'    v_mov_b32 v{vA+5}, 1')
    a(f'    v_mov_b32 v{vA+7}, 0')
    a(f'    ds_write_b32 v{vA+7}, v{vA+5} offset:{L2_FLG+4}')
    unmask(a, sEX, 'K2_GUARD_OK')
    a.label('K2_WC')
    a(f'    s_mov_b32 s{sT0}, {hex(f2u(-LOG2E))}')
    a(f'    v_and_b32 v{vWC+3}, 0xffff0000, v{vWC+1}')
    a(f'    v_lshlrev_b32 v{vWC+2}, 16, v{vWC+1}')
    a(f'    v_and_b32 v{vWC+1}, 0xffff0000, v{vWC}')
    a(f'    v_lshlrev_b32 v{vWC}, 16, v{vWC}')
    for k in range(4):
        a(f'    v_mul_f32 v{vWC+k}, s{sT0}, v{vWC+k}')
    for k in range(U):
        a(f'    v_mov_b32 v{vP+2*k+1}, v{vQ16}')
    a.label('K2_NOTAB')
    a('    s_waitcnt lgkmcnt(0)')
    for r in range(2):
        a(f'    s_cmp_le_u32 s{sNR}, {r}')
        a('    s_cbranch_scc1 K2_SC_DONE')
        for h in range(4):
            k = 4*r + h
            a(f'    s_mov_b64 exec, s[{sM+2*k}:{sM+2*k+1}]')
            a(f'    v_lshl_add_u32 v{vB+k}, v{vRK+k}, 2, v{vB+k}')
            a(f'    ds_write_b32 v{vB+k}, v{vR+k} offset:{L2_LIST}')
    a.label('K2_SC_DONE')
    a('    s_mov_b64 exec, -1')
    a(f'    s_mul_i32 s{sG0}, s{sR}, s{sWAVE}')
    a(f'    s_add_u32 s{sG1}, s{sG0}, s{sR}')
    a(f'    s_min_u32 s{sG1}, s{sG1}, s{sGT}')
    a(f'    v_lshrrev_b32 v{vSA}, 4, v{vLANE}')
    a(f'    v_lshlrev_b32 v{vSA}, 2, v{vSA}         ; slot*4')
    a(f'    s_lshl_b32 s{sT0}, s{sG0}, 4')
    a(f'    v_add_u32 v{vSA}, s{sT0}, v{vSA}')
    a(f'    v_mov_b32 v{vA}, 0')
    a('    s_waitcnt lgkmcnt(0)')
    a('    s_barrier')
    stamp(a, 5)

    def tload(k):
        d = vDAT + 4*k
        a(f'    buffer_load_dwordx4 v[{d}:{d+3}], v[{vP+2*k}:{vP+2*k+1}], s[{SRD_T}:{SRD_T+3}], 0 idxen offen')

    a(f'    s_cmp_ge_u32 s{sG0}, s{sG1}')
    a('    s_cbranch_scc1 K2_MAIN_DONE')
    a(f'    ds_read_b32 v{vA+5}, v{vA} offset:{L2_FLG+4}')
    for k in range(U):
        a(f'    ds_read_u16 v{vP+2*k}, v{vSA} offset:{L2_LIST + 16*k}')
    a(f'    ds_read_u16_d16_hi v{vEV}, v{vSA} offset:{L2_LIST + 2}')
    if PRIO:
        a(f'    s_add_u32 s{sT0}, s{sR}, 3')
        a(f'    s_lshr_b32 s{sT0}, s{sT0}, 2            ; iterations')
        for n, reg in zip(PRT, (sPR, sPQ, sPQ2)):
            a(f'    s_mul_i32 s{reg}, s{sT0}, {n}')
            a(f'    s_lshr_b32 s{reg}, s{reg}, 4')
            a(f'    s_add_u32 s{reg}, s{reg}, 1')
        a(f'    s_mov_b32 s{sLVL}, 3')
        a('    s_setprio 3')
    a(f'    s_mov_b32 s{sGEND}, s{sG0}')
    a('    s_waitcnt lgkmcnt(0)')
    for k in range(U):
        tload(k)
    a(f'    v_readfirstlane_b32 s{sSAFE}, v{vA+5}')
    a(f'    ds_read_u16 v{vP}, v{vSA} offset:{L2_LIST + 16*U}')
    a(f'    s_cmp_eq_u32 s{sSAFE}, 0')
    a(f'    s_mov_b32 s{sEAB}, {L2_AT}')
    a(f'    s_cselect_b32 s{sEAB}, {L2_EAT}, s{sEAB}')
    a('    s_cbranch_scc0 K2S_ENTER')
    a('    s_branch K2F_ENTER')

    def next_node():
        a(f'    v_cmp_ge_u32 vcc, s{sGEND}, v{vGS}')
        a(f'    s_bcnt1_i32_b64 s{sT0}, vcc')
        a(f'    s_sub_u32 s{sNODE}, s{sT0}, 1')
        a(f'    v_readlane_b32 s{sT1}, v{vGS}, s{sT0}')
        a(f'    s_mul_i32 s{sT0}, s{sNODE}, {TS}')
        a(f'    s_add_u32 s{sT0}, s{sT0}, s{sEAB}')
        a(f'    v_add_u32 v{vEAA}, s{sT0}, v{vQ16}')
        a(f'    ds_read_b128 v[{vEA}:{vEA+3}], v{vEAA}')
        a(f'    s_min_u32 s{sT1}, s{sT1}, s{sG1}')
        a(f'    s_sub_u32 s{sLEFT}, s{sT1}, s{sGEND}')
        a(f'    s_sub_u32 s{sLEFT}, s{sLEFT}, 1')
        a(f'    s_mov_b32 s{sGEND}, s{sT1}')

    def set_slot():
        a(f'    s_add_u32 s{sSLOT}, s{sNODE}, s{sWAVE}')
        a(f'    s_lshl_b32 s{sSLOT}, s{sSLOT}, 9')

    def flush():
        a(f'    v_add_u32 v{vACC}, s{sSLOT}, v{vFL}')
        for i in range(4):
            a(f'    v_permlane32_swap_b32 v{vDEN+i}, v{vNUM+i}')
        a(f'    v_pk_add_f32 v[{vDEN}:{vDEN+1}], v[{vDEN}:{vDEN+1}], v[{vNUM}:{vNUM+1}]')
        a(f'    v_pk_add_f32 v[{vDEN+2}:{vDEN+3}], v[{vDEN+2}:{vDEN+3}], v[{vNUM+2}:{vNUM+3}]')
        a('    s_nop 1')
        a(f'    v_permlane16_swap_b32 v{vDEN}, v{vDEN+2}')
        a(f'    v_permlane16_swap_b32 v{vDEN+1}, v{vDEN+3}')
        a(f'    v_pk_add_f32 v[{vNUM}:{vNUM+1}], v[{vDEN}:{vDEN+1}], v[{vDEN+2}:{vDEN+3}]')
        a(f'    ds_write_b64 v{vACC}, v[{vNUM}:{vNUM+1}] offset:{L2_SLOT}')

    def step(k, safe, init):
        d = vDAT + 4*k
        ev = vEV + (k & 1); evn = vEV + ((k+1) & 1)
        pn = vP + 2*((k+1) % U)
        for i in range(4):
            a(f'    v_fma_mix_f32 v{vT+i}, v{ev}, v{vWC+i}, v{d+i} op_sel:[0,0,0] op_sel_hi:[0,0,1]')
        a(f'    ds_read_u16_d16_hi v{evn}, v{vSA} offset:{L2_LIST + 16*(k+1) + 2}')
        a(f'    ds_read_u16 v{pn}, v{vSA} offset:{L2_LIST + 16*(k+1+U)}')
        if init and safe:
            a('    s_waitcnt lgkmcnt(3)')
        if safe:
            a(f'    v_pk_add_f32 v[{vT}:{vT+1}], v[{vT}:{vT+1}], v[{vEA}:{vEA+1}]')
            a(f'    v_pk_add_f32 v[{vT+2}:{vT+3}], v[{vT+2}:{vT+3}], v[{vEA+2}:{vEA+3}]')
        for i in range(4):
            a(f'    v_exp_f32 v{vT+i}, v{vT+i}')
        if init and not safe:
            a('    s_waitcnt lgkmcnt(3)')
        if safe:
            a(f'    v_pk_add_f32 v[{vT}:{vT+1}], v[{vT}:{vT+1}], 1.0 op_sel_hi:[1,0]')
            a(f'    v_pk_add_f32 v[{vT+2}:{vT+3}], v[{vT+2}:{vT+3}], 1.0 op_sel_hi:[1,0]')
        else:
            a(f'    v_pk_fma_f32 v[{vT}:{vT+1}], v[{vEA}:{vEA+1}], v[{vT}:{vT+1}], 1.0 op_sel_hi:[1,1,0]')
            a(f'    v_pk_fma_f32 v[{vT+2}:{vT+3}], v[{vEA+2}:{vEA+3}], v[{vT+2}:{vT+3}], 1.0 op_sel_hi:[1,1,0]')
        if init:
            for i in range(4):
                a(f'    v_rcp_f32 v{vDEN+i}, v{vT+i}')
            a('    s_nop 0')
            a(f'    v_pk_mul_f32 v[{vNUM}:{vNUM+1}], v[{vDEN}:{vDEN+1}], v[{d}:{d+1}]')
            a(f'    v_pk_mul_f32 v[{vNUM+2}:{vNUM+3}], v[{vDEN+2}:{vDEN+3}], v[{d+2}:{d+3}]')
        else:
            for i in range(4):
                a(f'    v_rcp_f32 v{vT+i}, v{vT+i}')
            a(f'    v_pk_add_f32 v[{vDEN}:{vDEN+1}], v[{vDEN}:{vDEN+1}], v[{vT}:{vT+1}]')
            a(f'    v_pk_add_f32 v[{vDEN+2}:{vDEN+3}], v[{vDEN+2}:{vDEN+3}], v[{vT+2}:{vT+3}]')
            a(f'    v_pk_fma_f32 v[{vNUM}:{vNUM+1}], v[{vT}:{vT+1}], v[{d}:{d+1}], v[{vNUM}:{vNUM+1}]')
            a(f'    v_pk_fma_f32 v[{vNUM+2}:{vNUM+3}], v[{vT+2}:{vT+3}], v[{d+2}:{d+3}], v[{vNUM+2}:{vNUM+3}]')
        tload(k)
        if k == U-1:
            a(f'    v_add_u32 v{vSA}, {16*U}, v{vSA}')

    def loopback(pfx):
        if PRIO:
            a(f'    s_sub_u32 s{sPR}, s{sPR}, 1')
            a(f'    s_cmp_lg_u32 s{sPR}, 0')
            a(f'    s_cbranch_scc1 {pfx}_STEP0')
            a(f'    s_branch {pfx}_PRIO')
        else:
            a(f'    s_branch {pfx}_STEP0')

    for pfx, safe in (('K2F', False), ('K2S', True)):
        a.label(f'{pfx}_ENTER')
        next_node()
        set_slot()
        a('    s_waitcnt vmcnt(3) lgkmcnt(0)')
        step(0, safe, True)
        a(f'    s_branch {pfx}_STEP1')
        for k in range(U):
            a.label(f'{pfx}_STEP{k}')
            a(f'    s_waitcnt vmcnt({U-1}) lgkmcnt(0)')
            a(f'    s_sub_u32 s{sLEFT}, s{sLEFT}, 1')
            a(f'    s_cbranch_scc1 {pfx}_FLUSH{k}')
            step(k, safe, False)
            if k == U-1:
                loopback(pfx)
        for k in range(U):
            a.label(f'{pfx}_FLUSH{k}')
            a(f'    s_cmp_ge_u32 s{sGEND}, s{sG1}')
            a(f'    s_cbranch_scc1 K2_LAST')
            next_node()
            flush()
            set_slot()
            step(k, safe, True)
            if k == U-1:
                loopback(pfx)
            else:
                a(f'    s_branch {pfx}_STEP{k+1}')
        if PRIO:
            a.label(f'{pfx}_PRIO')
            a(f'    s_sub_u32 s{sLVL}, s{sLVL}, 1')
            a(f'    s_cmp_eq_u32 s{sLVL}, 2')
            a(f'    s_cbranch_scc1 {pfx}_PRIO2')
            a(f'    s_cmp_eq_u32 s{sLVL}, 1')
            a(f'    s_cbranch_scc1 {pfx}_PRIO1')
            a(f'    s_mov_b32 s{sPR}, 0x7fffffff')
            a('    s_setprio 0')
            a(f'    s_branch {pfx}_STEP0')
            a.label(f'{pfx}_PRIO2')
            a(f'    s_mov_b32 s{sPR}, s{sPQ}')
            a('    s_setprio 2')
            a(f'    s_branch {pfx}_STEP0')
            a.label(f'{pfx}_PRIO1')
            a(f'    s_mov_b32 s{sPR}, s{sPQ2}')
            a('    s_setprio 1')
            a(f'    s_branch {pfx}_STEP0')
    a.label('K2_LAST')
    flush()
    a.label('K2_MAIN_DONE')
    if PRIO: a('    s_setprio 0')
    a(f'    s_cmp_eq_u32 s{sMODE}, 2')
    a('    s_cbranch_scc0 K2_NOABORT')
    a(f'    s_mov_b32 s{sMODE}, 1')
    a(f'    s_mov_b32 s{sPASS}, 0')
    a('    s_waitcnt vmcnt(0) lgkmcnt(0)')
    a('    s_barrier')
    a('    s_branch K2_PASS')
    a.label('K2_NOABORT')
    a(f'    v_cvt_f32_u32 v{vA}, s{sR}')
    a(f'    v_cvt_f32_u32 v{vA+1}, v{vGS}')
    a(f'    v_rcp_f32 v{vA}, v{vA}')
    a(f'    v_cvt_f32_u32 v{vA+2}, v{vGE}')
    a(f'    v_add_f32 v{vA+1}, 0.5, v{vA+1}')
    a(f'    v_add_f32 v{vA+2}, -0.5, v{vA+2}')
    a(f'    v_mul_f32 v{vA+1}, v{vA+1}, v{vA}')
    a(f'    v_mul_f32 v{vA+2}, v{vA+2}, v{vA}')
    a(f'    v_cvt_u32_f32 v{vA+1}, v{vA+1}          ; wlo')
    a(f'    v_cvt_u32_f32 v{vA+2}, v{vA+2}          ; whi')
    a(f'    v_sub_u32 v{vA+2}, v{vA+2}, v{vA+1}')
    a(f'    v_add_u32 v{vA+2}, 1, v{vA+2}')
    a(f'    v_cmp_eq_u32 vcc, 0, v{vNG}')
    a(f'    v_add_u32 v{vA+1}, v{vA+1}, v{vLANE}')
    a(f'    v_and_b32 v{vA+1}, 0xffff, v{vA+1}')
    a(f'    v_cndmask_b32 v{vA+2}, v{vA+2}, 0, vcc')
    a(f'    v_lshl_or_b32 v{vA+3}, v{vA+2}, 16, v{vA+1}')
    a(f'    v_lshrrev_b32 v{vA}, 4, v0')
    a(f'    v_and_b32 v{vA+4}, 63, v{vA}')
    a(f'    v_lshlrev_b32 v{vA+4}, 2, v{vA+4}')
    a(f'    ds_bpermute_b32 v{vA+1}, v{vA+4}, v{vA+3}')
    a(f'    v_mul_u32_u24 v{vA+5}, {TS}, v{vA}')
    a('    s_waitcnt vmcnt(0) lgkmcnt(0)')
    a(f'    v_cmp_gt_u32 vcc, {NPB*16}, v0')
    a(f'    v_lshrrev_b32 v{vA+2}, 16, v{vA+1}')
    a(f'    v_and_b32 v{vA+1}, 0xffff, v{vA+1}')
    a(f'    v_cndmask_b32 v{vA+2}, 0, v{vA+2}, vcc')
    a(f'    v_lshl_add_u32 v{vA+1}, v{vA+1}, 9, v{vQ16}')
    stamp(a, 6)
    a('    s_barrier')
    a.label('K2_FOLD')
    masked(a, f'v_cmp_lt_u32 vcc, 0, v{vA+2}', sEX, 'K2_FOLD_DONE')
    a(f'    ds_read_b128 v[{vDEN}:{vDEN+3}], v{vA+1} offset:{L2_SLOT}')
    a(f'    ds_read_b128 v[{vNUM}:{vNUM+3}], v{vA+1} offset:{L2_SLOT+256}')
    a(f'    v_add_u32 v{vA+1}, 512, v{vA+1}')
    a(f'    v_add_u32 v{vA+2}, -1, v{vA+2}')
    a('    s_waitcnt lgkmcnt(1)')
    a(f'    v_pk_add_f32 v[{vDA}:{vDA+1}], v[{vDA}:{vDA+1}], v[{vDEN}:{vDEN+1}]')
    a(f'    v_pk_add_f32 v[{vDA+2}:{vDA+3}], v[{vDA+2}:{vDA+3}], v[{vDEN+2}:{vDEN+3}]')
    a('    s_waitcnt lgkmcnt(0)')
    a(f'    v_pk_add_f32 v[{vNA}:{vNA+1}], v[{vNA}:{vNA+1}], v[{vNUM}:{vNUM+1}]')
    a(f'    v_pk_add_f32 v[{vNA+2}:{vNA+3}], v[{vNA+2}:{vNA+3}], v[{vNUM+2}:{vNUM+3}]')
    unmask(a, sEX)
    a('    s_branch K2_FOLD')
    unmask(a, sEX, 'K2_FOLD_DONE')
    a(f'    s_cmp_eq_u32 s{sMODE}, 0')
    a('    s_cbranch_scc1 K2_EPI')
    a(f'    s_add_u32 s{sPASS}, s{sPASS}, 1')
    a(f'    s_cmp_lt_u32 s{sPASS}, {NC}')
    a('    s_cbranch_scc0 K2_EPI')
    a('    s_barrier')
    a('    s_branch K2_PASS')
    a.label('K2_EPI')
    a(f'    s_mov_b32 s{sXT}, {L2_XT}')
    masked(a, f'v_cmp_gt_u32 vcc, {NPB*16}, v0', sEX, 'K2_FIN')
    a(f'    v_add_u32 v{vA+5}, v{vA+5}, v{vQ16}')
    a(f'    v_add_u32 v{vA+5}, {L2_UT}, v{vA+5}')
    a(f'    ds_read_b128 v[{vDEN}:{vDEN+3}], v{vA+5}')
    a(f'    v_lshrrev_b32 v{vA+6}, 4, v0')
    a(f'    v_mul_u32_u24 v{vA+6}, {XS}, v{vA+6}')
    a(f'    v_lshrrev_b32 v{vA+7}, 1, v{vQ16}')
    a(f'    v_add3_u32 v{vA+6}, v{vA+6}, v{vA+7}, s{sXT}')
    a(f'    ds_read_b64 v[{vX}:{vX+1}], v{vA+6}')
    a(f'    s_mov_b32 s{sT0}, {hex(f2u(1e-6))}')
    a('    s_waitcnt lgkmcnt(0)')
    a(f'    v_lshlrev_b32 v{vT}, 16, v{vX}')
    a(f'    v_and_b32 v{vT+1}, 0xffff0000, v{vX}')
    a(f'    v_lshlrev_b32 v{vT+2}, 16, v{vX+1}')
    a(f'    v_and_b32 v{vT+3}, 0xffff0000, v{vX+1}')
    for i in range(4):
        a(f'    v_add_f32 v{vDA+i}, s{sT0}, v{vDA+i}')
    for i in range(4):
        a(f'    v_rcp_f32 v{vDA+i}, v{vDA+i}')
    a('    s_waitcnt lgkmcnt(0)')
    for i in range(4):
        a(f'    v_fma_f32 v{vNA+i}, v{vNA+i}, v{vDA+i}, v{vDEN+i}    ; z = U + agg')
    for i in range(4):
        a(f'    v_mul_f32 v{vDEN+i}, 0, v{vNA+i}                     ; 0*z')
        a(f'    v_cmp_lt_f32 vcc, 0, v{vNA+i}')
        a('    s_nop 1')
        a(f'    v_cndmask_b32 v{vNA+i}, v{vDEN+i}, v{vNA+i}, vcc')
        a(f'    v_add_f32 v{vNA+i}, v{vNA+i}, v{vT+i}')
    a(f'    v_cvt_pk_bf16_f32 v{vDEN}, v{vNA}, v{vNA+1}')
    a(f'    v_cvt_pk_bf16_f32 v{vDEN+1}, v{vNA+2}, v{vNA+3}')
    a(f'    s_mul_i32 s{sT1}, s{sB}, {NPB*128}')
    a(f'    v_lshlrev_b32 v{vA+1}, 3, v0')
    a(f'    buffer_store_dwordx2 v[{vDEN}:{vDEN+1}], v{vA+1}, s[{SRD_OUT}:{SRD_OUT+3}], s{sT1} offen')
    a.label('K2_FIN')
    if STAMP:
        a('    s_mov_b64 exec, -1')
        a('    s_waitcnt vmcnt(0)')
    stamp(a, 7); stamp(a, 1, True)
    stamp_flush(a, sWAVE, sB, 1, 6)
    a.label('K2_END')
    a('    s_endpgm')
    a.label('CODE_END')

def gen_k3(a):
    i, j = [int(x) for x in env('INTERVAL', '0,0').split(',')]
    inv = {0: True, 2: True}
    a('.globl k3_kernel')
    a('.p2align 8')
    a('.type k3_kernel,@function')
    a.label('k3_kernel')
    a('    s_cmp_ge_u32 s2, 1')
    a('    s_cbranch_scc1 K3_END')
    a('    s_load_dwordx2 s[4:5], s[0:1], 80')
    a('    s_waitcnt lgkmcnt(0)')
    a('    v_mov_b32 v1, 0')
    a(f'    global_load_dword v2, v1, s[4:5] offset:{4*i} sc1')
    a(f'    global_load_dword v3, v1, s[4:5] offset:{4*j} sc1')
    a('    s_waitcnt vmcnt(0)')
    if inv.get(i): a('    v_not_b32 v2, v2')
    if inv.get(j): a('    v_not_b32 v3, v3')
    a('    v_sub_u32 v3, v3, v2')
    a('    s_nop 1')
    a('    v_readfirstlane_b32 s8, v3')
    a('    s_nop 3')
    a('    s_mul_i32 s8, s8, 10')
    a('    s_min_u32 s8, s8, 50000')
    a('    s_memrealtime s[10:11]')
    a('    s_waitcnt lgkmcnt(0)')
    a.label('K3_SPIN')
    a('    s_memrealtime s[12:13]')
    a('    s_waitcnt lgkmcnt(0)')
    a('    s_sub_u32 s9, s12, s10')
    a('    s_cmp_lt_u32 s9, s8')
    a('    s_cbranch_scc1 K3_SPIN')
    a.label('K3_END')
    a('    s_endpgm')

def kd(a, name, vgpr, sgpr):
    a(f'.amdhsa_kernel {name}')
    a(f'  .amdhsa_next_free_vgpr {vgpr}')
    a(f'  .amdhsa_next_free_sgpr {sgpr}')
    a(f'  .amdhsa_accum_offset {((vgpr+3)//4)*4}')
    a('  .amdhsa_group_segment_fixed_size 0')
    a('  .amdhsa_kernarg_size 96')
    a('  .amdhsa_user_sgpr_count 2')
    a('  .amdhsa_user_sgpr_kernarg_segment_ptr 1')
    a('  .amdhsa_system_sgpr_workgroup_id_x 1')
    a('  .amdhsa_float_denorm_mode_32 3')
    a('.end_amdhsa_kernel')

def main(out):
    a = Asm()
    a(f'; @launch kernel=k1_kernel grid=({K1_GRID},1,1) block=(1024,1,1) lds={K1_LDS}')
    a(f'; @launch kernel=k2_kernel grid=({NB},1,1) block=(1024,1,1) lds={K2_LDS}')
    if STAMP == 4: a('; @launch kernel=k3_kernel grid=(1,1,1) block=(64,1,1) lds=0')
    a('.amdgcn_target "amdgcn-amd-amdhsa--gfx950"')
    a('.text')
    a('.globl k1_kernel')
    gen_k1(a)
    a('.globl k2_kernel')
    gen_k2(a)
    if STAMP == 4: gen_k3(a)
    a('.section .rodata,"a"')
    a('.p2align 6')
    kd(a, 'k1_kernel', 96, 102 if STAMP else 72)
    a('.p2align 6')
    kd(a, 'k2_kernel', 128, 102 if STAMP else 80)
    if STAMP == 4:
        a('.p2align 6')
        kd(a, 'k3_kernel', 8, 32)
    a.l = [x for x in a.l if x is not None]
    open(out, 'w').write(a.text())

if __name__ == '__main__':
    main(sys.argv[1] if len(sys.argv) > 1 else 'standalone__edge_featured_mpnn_gatedgcn__graph.s')
```

```python
import sys, os, struct
def env(n, d): return os.environ.get(n, d)

N = 10000; E = 640000
NPB = 40; NB = 250; EPC = 2560; NC = 250
LOG2E = 1.4426950408889634
WS_REC  = 0
REC_STRIDE = EPC*5
WS_DESC = 3407872
DESC_STRIDE = 1024
WS_T    = 4194304
T_BYTES = (N+1)*256

STAMP = int(env('STAMP', '0'))
K1ST = env('K1ST', 'sc1')
PRIO = int(env('PRIO', '1'))
TFIRST = int(env('TFIRST', '1'))
WS_STAMP = 128 << 20
ST0 = 80

def f2u(f): return struct.unpack('<I', struct.pack('<f', f))[0]

class Asm:
    def __init__(self): self.l = []
    def __call__(self, s=''):
        for line in s.split('\n'): self.l.append(line)
    def label(self, n): self.l.append(n + ':')
    def text(self): return '\n'.join(self.l) + '\n'

def stamp(a, i, real=False):
    if STAMP:
        r = ST0 + 2*(8+i if real else i)
        a(f"    {'s_memrealtime' if (real or STAMP >= 3) else 's_memtime'} s[{r}:{r+1}]")
def stamp_flush(a, wave_sgpr, wg_sgpr, kern, ws_lo):
    if not STAMP: return
    a('    s_waitcnt lgkmcnt(0)')
    a('    s_mov_b64 exec, 1')
    a('    v_mov_b32 v2, 0')
    if STAMP == 4:
        lab = f'STSKIP{kern}_{len(a.l)}'
        a(f'    s_and_b32 s14, s{wg_sgpr}, 31')
        a('    s_cmp_eq_u32 s14, 0')
        a(f'    s_cbranch_scc0 {lab}')
        a(f'    s_cmp_eq_u32 s{wave_sgpr}, 0')
        a(f'    s_cbranch_scc0 {lab}')
        a('    s_load_dwordx2 s[12:13], s[0:1], 80')
        a('    s_waitcnt lgkmcnt(0)')
        a(f'    s_add_u32 s12, s12, {1024 if kern == 0 else 512}')
        a('    s_addc_u32 s13, s13, 0')
        slots = [(0, 8, True), (1, 9, False), (7, 4, False), (8, 2, False)] if kern == 0 else \
                [(2, 8, True), (3, 4, False), (4, 5, False), (5, 6, False), (6, 9, False), (9, 2, False)]
        for slot, st, inv in slots:
            a(f'    v_mov_b32 v3, s{ST0+2*st}')
            if inv: a('    v_not_b32 v3, v3')
            a(f'    global_atomic_umax v2, v3, s[12:13] offset:{4*slot}')
        a('    s_waitcnt vmcnt(0)')
        a.label(lab)
        return
    a(f'    s_add_u32 s12, s{ws_lo}, {WS_STAMP + kern*(4<<20)}')
    a(f'    s_addc_u32 s13, s{ws_lo+1}, 0')
    a(f'    s_mov_b32 s14, {4<<20}')
    a('    s_mov_b32 s15, 0x00020000')
    a(f'    s_lshl_b32 s16, s{wg_sgpr}, 4')
    a(f'    s_add_u32 s16, s16, s{wave_sgpr}')
    a(f'    s_lshl_b32 s16, s16, 6')
    for i in range(8):
        a(f'    v_mov_b32 v3, s{ST0+2*i}')
        a(f'    buffer_store_dword v3, v2, s[12:15], s16 offen offset:{4*i}')
    for i in range(2):
        a(f'    v_mov_b32 v3, s{ST0+2*(8+i)}')
        a(f'    buffer_store_dword v3, v2, s[12:15], s16 offen offset:{4*(10+i)}')
    a('    s_waitcnt vmcnt(0)')

def srd(a, sreg, lo, hi, nbytes, off=0, stride=0, nrec=None):
    if off:
        a(f'    s_add_u32 s{sreg}, s{lo}, {off}')
        a(f'    s_addc_u32 s{sreg+1}, s{hi}, 0')
    else:
        a(f'    s_mov_b32 s{sreg}, s{lo}')
        a(f'    s_mov_b32 s{sreg+1}, s{hi}')
    if stride:
        a(f'    s_and_b32 s{sreg+1}, s{sreg+1}, 0xffff')
        a(f'    s_or_b32 s{sreg+1}, s{sreg+1}, {stride << 16}')
        a(f'    s_mov_b32 s{sreg+2}, {nrec}')
    else:
        a(f'    s_mov_b32 s{sreg+2}, {nbytes}')
    a(f'    s_mov_b32 s{sreg+3}, 0x00020000')

def dpp_scan(a, v):
    for sh in (1, 2, 4, 8):
        a('    s_nop 1')
        a(f'    v_add_u32_dpp v{v}, v{v}, v{v} row_shr:{sh} row_mask:0xf bank_mask:0xf')
    a('    s_nop 1')
    a(f'    v_add_u32_dpp v{v}, v{v}, v{v} row_bcast:15 row_mask:0xa bank_mask:0xf')
    a('    s_nop 1')
    a(f'    v_add_u32_dpp v{v}, v{v}, v{v} row_bcast:31 row_mask:0xc bank_mask:0xf')

def masked(a, cond, exreg, skip=None):
    a(f'    {cond}')
    a(f'    s_and_saveexec_b64 s[{exreg}:{exreg+1}], vcc')
    if skip: a(f'    s_cbranch_execz {skip}')
def unmask(a, exreg, skip=None):
    if skip: a.label(skip)
    a(f'    s_mov_b64 exec, s[{exreg}:{exreg+1}]')

def lds_sync(a, name, off, n, vzero, vone, vt, st):
    a('    s_waitcnt lgkmcnt(0)')
    a('    s_mov_b64 exec, 1')
    a(f'    ds_add_u32 v{vzero}, v{vone} offset:{off}')
    a('    s_mov_b64 exec, -1')
    a.label(name)
    a(f'    ds_read_b32 v{vt}, v{vzero} offset:{off}')
    a('    s_waitcnt lgkmcnt(0)')
    a(f'    v_readfirstlane_b32 s{st}, v{vt}')
    a(f'    s_cmp_lt_u32 s{st}, {n}')
    a(f'    s_cbranch_scc1 {name}')

K1_GRID = NC
L1_HIST = 0; L1_START = 1024; L1_SYNC = 2048
L1_ST32 = 2304; L1_ST8 = L1_ST32 + EPC*4; L1_W = 15360
K1_LDS = L1_W + 16384
K1PF = int(env('K1PF', '0'))
CPF = int(env('CPF', '1'))
XMAP = int(env('XMAP', '1'))
DESCST = env('DESCST', '')
OUTST = env('OUTST', '')
RECST = env('RECST', K1ST)
TST = env('TST', K1ST)
TFIRST = int(env('TFIRST', '1'))

def gen_k1(a):
    a('.p2align 8')
    a('.type k1_kernel,@function')
    a.label('k1_kernel')
    a(f'    s_cmp_ge_u32 s2, {K1_GRID}')
    a('    s_cbranch_scc1 K1_END')
    stamp(a, 0); stamp(a, 0, True)
    if CPF:
        a('    s_getpc_b64 s[30:31]')
        a.label('K1_PC')
        a('    v_lshlrev_b32 v90, 7, v0')
        lim = 'CODE_END-K1_PC' if CPF >= 2 else 'k2_kernel-K1_PC'
        a(f'    v_cmp_gt_u32 vcc, {lim}, v90')
        a('    s_and_saveexec_b64 s[28:29], vcc')
        a('    s_cbranch_execz K1_NOCPF')
        a('    global_load_dword v91, v90, s[30:31]')
        a.label('K1_NOCPF')
        a('    s_mov_b64 exec, s[28:29]')
    if XMAP:
        a('    s_and_b32 s20, s2, 7')
        a('    s_lshr_b32 s21, s2, 3')
        a('    s_mul_i32 s22, s20, 31')
        a('    s_min_u32 s20, s20, 2')
        a('    s_add_u32 s22, s22, s20')
        a('    s_add_u32 s2, s22, s21')
    a('    v_lshrrev_b32 v1, 6, v0')
    a('    s_load_dwordx4 s[8:11], s[0:1], 16')
    a('    v_readfirstlane_b32 s20, v1')
    a('    s_load_dwordx2 s[4:5], s[0:1], 8      ; e_attr')
    a('    s_load_dwordx2 s[6:7], s[0:1], 88     ; ws')
    a('    v_and_b32 v2, 63, v0                   ; lane')
    if TFIRST:
        a('    s_cmp_lt_u32 s20, 6')
        a('    s_cbranch_scc1 K1_TABLE')
        a('    v_subrev_u32 v0, 384, v0')
        a('    s_sub_u32 s20, s20, 6')
    else:
        a('    s_cmp_ge_u32 s20, 10')
        a('    s_cbranch_scc1 K1_TABLE')
    a('    v_mov_b32 v5, 0')
    a('    v_lshlrev_b32 v6, 2, v0               ; t*4')
    masked(a, 'v_cmp_gt_u32 vcc, 256, v0', 30)
    a(f'    ds_write_b32 v6, v5 offset:{L1_HIST}')
    unmask(a, 30)
    a('    v_lshlrev_b32 v3, 4, v0               ; t*16')
    a('    v_lshlrev_b32 v4, 3, v0               ; t*8')
    a(f'    s_mul_i32 s21, s2, {EPC*4}')
    a(f'    s_mul_i32 s22, s2, {EPC*2}')
    a('    s_mov_b32 s23, 52429')
    a('    s_waitcnt lgkmcnt(0)')
    srd(a, 12, 10, 11, E*4)
    a('    buffer_load_dwordx4 v[8:11], v3, s[12:15], s21 offen     ; dst x4')
    srd(a, 16, 8, 9, E*4)
    a('    buffer_load_dwordx4 v[12:15], v3, s[16:19], s21 offen    ; src x4')
    srd(a, 24, 4, 5, E*2)
    a('    buffer_load_dwordx2 v[16:17], v4, s[24:27], s22 offen')
    srd(a, 32, 6, 7, NC*REC_STRIDE, off=WS_REC)
    srd(a, 36, 6, 7, NB*DESC_STRIDE, off=WS_DESC)
    a('    v_lshlrev_b32 v6, 4, v2                ; lane*16')
    a('    v_mul_u32_u24 v7, 20, v0')
    a('    v_lshlrev_b32 v18, 12, v2')
    a(f'    s_mul_i32 s25, s2, {REC_STRIDE}')
    a('    s_lshl_b32 s26, s2, 2')
    a('    s_mov_b32 s40, 0x06050400')
    a('    s_mov_b32 s41, 0x05040003')
    a('    s_mov_b32 s42, 0x03020500')
    a('    s_mov_b32 s43, 0x04000302')
    a('    s_mov_b32 s44, 0x03060100')
    a('    s_mov_b32 s45, 0x07030201')
    stamp(a, 1)
    a('    s_barrier')
    a('    v_mov_b32 v5, 1')
    a('    v_mov_b32 v19, 0')
    a('    s_waitcnt vmcnt(2)')
    stamp(a, 2)
    for k in range(4):
        a(f'    v_mul_u32_u24 v{20+k}, s23, v{8+k}')
    for k in range(4):
        a(f'    v_lshrrev_b32 v{20+k}, 21, v{20+k}      ; bucket')
    for k in range(4):
        a(f'    v_lshlrev_b32 v{24+k}, 2, v{20+k}       ; bucket*4')
    for k in range(4):
        a(f'    ds_add_rtn_u32 v{28+k}, v{24+k}, v5 offset:{L1_HIST}')
    for k in range(4):
        a(f'    v_mul_u32_u24 v{20+k}, {NPB*4}, v{20+k}')
    for k in range(4):
        a(f'    v_lshlrev_b32 v{8+k}, 2, v{8+k}')
    for k in range(4):
        a(f'    v_sub_u32 v{20+k}, v{8+k}, v{20+k}')
    a('    s_waitcnt vmcnt(0)')
    a('    v_lshl_or_b32 v32, v16, 16, v12')
    a('    s_mov_b32 s24, 0xffff0000')
    a('    v_and_or_b32 v33, v16, s24, v13')
    a('    v_lshl_or_b32 v34, v17, 16, v14')
    a('    v_and_or_b32 v35, v17, s24, v15')
    a('    s_waitcnt lgkmcnt(0)')
    stamp(a, 3)
    lds_sync(a, 'K1_SYNC2', L1_SYNC+4, 10, 19, 5, 25+40, 27)
    stamp(a, 4)
    a(f'    ds_read_b128 v[40:43], v6 offset:{L1_HIST}')
    a('    s_waitcnt lgkmcnt(0)')
    a('    v_add_u32 v44, v40, v41                ; h0+h1')
    a('    v_add_u32 v45, v44, v42')
    a('    v_add_u32 v46, v45, v43                ; sum4')
    a('    v_mov_b32 v47, v46')
    dpp_scan(a, 47)
    a('    v_sub_u32 v48, v47, v46')
    a('    v_add_u32 v49, v48, v40')
    a('    v_add_u32 v50, v48, v44')
    a('    v_add_u32 v51, v48, v45')
    a(f'    ds_write_b128 v6, v[48:51] offset:{L1_START}')
    a('    s_waitcnt lgkmcnt(0)')
    for k in range(4):
        a(f'    ds_read_b32 v{56+k}, v{24+k} offset:{L1_START}')
    for k in range(4):
        a(f'    v_lshl_or_b32 v{52+k}, v{40+k}, 16, v{48+k}')
    a('    s_waitcnt lgkmcnt(0)')
    for k in range(4):
        a(f'    v_add_u32 v{56+k}, v{56+k}, v{28+k}      ; position')
    for k in range(4):
        a(f'    ds_write_b8 v{56+k}, v{20+k} offset:{L1_ST8}')
        a(f'    v_lshlrev_b32 v{60+k}, 2, v{56+k}')
    for k in range(4):
        a(f'    ds_write_b32 v{60+k}, v{32+k} offset:{L1_ST32}')
    a('    s_waitcnt lgkmcnt(0)')
    stamp(a, 5)
    lds_sync(a, 'K1_SYNC3', L1_SYNC+8, 10, 19, 5, 25+40, 27)
    a(f'    ds_read_b128 v[8:11], v3 offset:{L1_ST32}')
    a('    v_lshrrev_b32 v4, 2, v3                ; t*4')
    a(f'    ds_read_b32 v12, v4 offset:{L1_ST8}')
    a('    s_waitcnt lgkmcnt(0)')
    a('    v_perm_b32 v21, v9, v12, s40           ; d1 = L0 r1.b0 r1.b1 r1.b2')
    a('    v_perm_b32 v22, v10, v9, s41           ; r1.b3 . r2.b0 r2.b1')
    a('    v_perm_b32 v23, v11, v10, s43          ; r2.b2 r2.b3 . r3.b0')
    a('    v_mov_b32 v20, v8')
    a('    v_perm_b32 v22, v12, v22, s42          ; d2 : insert L1')
    a('    v_perm_b32 v23, v12, v23, s44          ; d3 : insert L2')
    a('    v_perm_b32 v24, v12, v11, s45          ; d4 = r3.b1 r3.b2 r3.b3 L3')
    a(f'    buffer_store_dwordx4 v[20:23], v7, s[32:35], s25 offen {RECST}')
    a(f'    buffer_store_dword v24, v7, s[32:35], s25 offen offset:16 {RECST}')
    a('    s_cmp_eq_u32 s20, 0')
    a('    s_cbranch_scc0 K1_SFIN')
    for k in range(4):
        a(f'    buffer_store_dword v{52+k}, v18, s[36:39], s26 offen offset:{1024*k} {DESCST}')
    a.label('K1_SFIN')
    if STAMP:
        stamp(a, 6)
        a('    s_waitcnt vmcnt(0)')
        stamp(a, 7); stamp(a, 1, True)
        stamp_flush(a, 20, 2, 0, 6)
    a('    s_endpgm')
    a.label('K1_TABLE')
    a('    s_load_dwordx2 s[40:41], s[0:1], 40   ; w_b')
    a('    s_load_dwordx2 s[42:43], s[0:1], 64   ; w_v')
    a('    s_load_dwordx2 s[44:45], s[0:1], 0    ; x')
    if K1PF:
        a('    s_load_dwordx2 s[60:61], s[0:1], 32   ; w_a')
        a('    s_load_dwordx4 s[64:67], s[0:1], 48   ; w_c, w_u')
        a('    s_load_dwordx2 s[62:63], s[0:1], 72   ; out')
    a('    s_mov_b32 s21, s20                     ; tw' if TFIRST else '    s_sub_u32 s21, s20, 10                 ; tw')
    a('    v_mov_b32 v5, 0')
    a('    v_lshlrev_b32 v6, 2, v2')
    a('    s_cmp_eq_u32 s21, 0')
    a('    s_cbranch_scc0 K1_T_NOZ')
    masked(a, 'v_cmp_gt_u32 vcc, 4, v2', 30)
    a(f'    ds_write_b32 v6, v5 offset:{L1_SYNC}')
    unmask(a, 30)
    a.label('K1_T_NOZ')
    a('    s_lshr_b32 s22, s21, 1')
    a('    s_lshl_b32 s22, s22, 4                 ; 16*rt')
    a('    v_and_b32 v4, 15, v2')
    a('    v_add_u32 v4, s22, v4')
    a('    v_lshrrev_b32 v5, 4, v2                ; g')
    a('    v_lshlrev_b32 v6, 7, v4')
    a('    v_lshl_add_u32 v6, v5, 4, v6')
    a(f'    s_mul_i32 s24, s2, {NPB*128}')
    a('    v_lshlrev_b32 v7, 4, v2                ; lane*16')
    a('    v_bfe_u32 v8, v2, 4, 1')
    a('    v_lshlrev_b32 v8, 1, v8')
    a('    v_and_b32 v9, 7, v2')
    a('    v_xor_b32 v8, v8, v9')
    a('    v_lshrrev_b32 v9, 3, v2')
    a('    v_lshlrev_b32 v9, 7, v9                ; (lane>>3)*128')
    a('    s_waitcnt lgkmcnt(0)')
    for i in range(3):
        a(f'    s_add_u32 s26, s21, {6*i}              ; p')
        a('    s_cmp_lt_u32 s26, 8')
        a('    s_cselect_b32 s48, s40, s42')
        a('    s_cselect_b32 s49, s41, s43')
        a('    s_mov_b32 s50, 8192')
        a('    s_mov_b32 s51, 0x00020000')
        a('    s_and_b32 s27, s26, 7')
        a('    s_lshl_b32 s27, s27, 10')
        a('    s_cmp_lt_u32 s26, 16')
        a(f'    s_cselect_b32 s27, s27, {1<<20}')
        a(f'    buffer_load_dwordx4 v[{48+4*i}:{51+4*i}], v7, s[48:51], s27 offen')
    srd(a, 36, 44, 45, N*128)
    a('    buffer_load_dwordx4 v[24:27], v6, s[36:39], s24 offen')
    a('    buffer_load_dwordx4 v[28:31], v6, s[36:39], s24 offen offset:64')
    if K1PF:
        a('    s_cmp_eq_u32 s21, 5')
        a('    s_cbranch_scc0 K1_T_NOPF')
        a('    v_lshlrev_b32 v60, 8, v2')
        a('    v_lshlrev_b32 v61, 7, v2')
        a('    global_load_dword v62, v61, s[60:61]')
        a('    global_load_dword v62, v61, s[66:67]')
        a('    v_mov_b32 v63, 0')
        a('    global_load_dword v62, v63, s[64:65]')
        a(f'    s_mul_i32 s26, s2, {NPB*128}')
        a('    v_mov_b32 v63, s26')
        a('    global_load_dword v62, v63, s[62:63]')
        srd(a, 52, 6, 7, WS_T + T_BYTES, off=0)
        a(f'    s_mul_i32 s26, s2, {REC_STRIDE}')
        a('    v_mov_b32 v63, s26')
        a('    buffer_load_dword v62, v63, s[52:55], 0 offen')
        a(f'    s_mul_i32 s26, s2, {NPB*256}')
        a(f'    s_add_u32 s26, s26, {WS_T}')
        a('    v_mov_b32 v63, s26')
        a('    buffer_load_dword v62, v63, s[52:55], 0 offen')
        a(f'    s_mul_i32 s26, s2, {DESC_STRIDE}')
        a(f'    s_add_u32 s26, s26, {WS_DESC}')
        a('    v_mov_b32 v63, s26')
        a('    buffer_load_dword v62, v63, s[52:55], 0 offen')
        a.label('K1_T_NOPF')
    a('    s_barrier')
    if K1PF: a.label('K1_T_PFJOIN0')
    srd(a, 44, 6, 7, T_BYTES, off=WS_T)
    for i in range(3):
        a(f'    s_add_u32 s26, s21, {6*i}              ; p')
        a('    s_and_b32 s27, s26, 1')
        a('    s_lshl_b32 s27, s27, 2')
        a(f'    v_xor_b32 v{18+i}, s27, v8')
        a(f'    v_lshl_add_u32 v{18+i}, v{18+i}, 4, v9')
        a('    s_lshl_b32 s27, s26, 10                ; m*8192 + (p&7)*1024 = p*1024')
        a(f'    v_add_u32 v{18+i}, s27, v{18+i}')
    a('    s_and_b32 s23, s21, 1                  ; half')
    a('    v_bfe_u32 v12, v2, 2, 2                ; r')
    a('    v_lshl_add_u32 v13, v5, 3, v12         ; rho')
    a('    v_lshlrev_b32 v13, 7, v13')
    a('    v_and_b32 v14, 1, v2')
    a('    v_lshl_add_u32 v13, v14, 3, v13        ; + (c&1)*8')
    a('    v_bfe_u32 v14, v2, 1, 1                ; c>>1')
    a('    v_lshrrev_b32 v12, 1, v12')
    a('    v_and_b32 v15, 1, v5                   ; g&1')
    a('    v_lshlrev_b32 v15, 1, v15')
    a('    v_or_b32 v12, v12, v15                 ; swz/2')
    a('    s_lshl_b32 s25, s23, 1')
    a('    v_xor_b32 v15, s25, v12')
    a('    v_lshl_or_b32 v15, v15, 1, v14')
    a('    v_lshl_add_u32 v16, v15, 4, v13')
    a('    s_add_u32 s25, s25, 1')
    a('    v_xor_b32 v15, s25, v12')
    a('    v_lshl_or_b32 v15, v15, 1, v14')
    a('    v_lshl_add_u32 v17, v15, 4, v13')
    a('    v_lshlrev_b32 v21, 8, v4')
    a('    v_lshl_add_u32 v21, v5, 4, v21')
    a('    s_lshl_b32 s25, s23, 7')
    a(f'    s_mul_i32 s26, s2, {NPB*256}')
    a('    s_add_u32 s25, s25, s26')
    a('    v_add_u32 v21, s25, v21')
    a(f'    v_cmp_gt_u32 vcc, {NPB}, v4')
    a(f'    v_mov_b32 v22, {1<<30}')
    a(f'    s_mov_b32 s27, {hex(f2u(-LOG2E))}')
    a('    s_mov_b32 s28, 0xffff0000')
    a('    v_cndmask_b32 v9, v22, v21, vcc')
    a('    s_mov_b32 s29, 0x80000000')
    a('    v_mov_b32 v10, 0')
    a('    v_mov_b32 v11, 1')
    if K1PF:
        a('    s_cmp_eq_u32 s21, 5')
        a('    s_cbranch_scc0 K1_T_W2')
        a('    s_waitcnt vmcnt(9)')
        a('    s_branch K1_T_W9')
        a.label('K1_T_W2')
    a('    s_waitcnt vmcnt(2)')
    if K1PF: a.label('K1_T_W9')
    stamp(a, 1)
    for i in range(3):
        if i == 2:
            a('    s_cmp_lt_u32 s21, 4')
            a('    s_cbranch_scc0 K1_T_ST2')
        a(f'    ds_write_b128 v{18+i}, v[{48+4*i}:{51+4*i}] offset:{L1_W}')
    a.label('K1_T_ST2')
    lds_sync(a, 'K1_T_SPIN', L1_SYNC, 6, 10, 11, 12, 26)
    stamp(a, 3)
    order = [(jj, ks, m) for jj in range(2) for ks in range(2) for m in range(2)]
    for i, (jj, ks, m) in enumerate(order):
        b = 64 + 4*i
        off = L1_W + m*8192 + ks*32*128
        a(f'    ds_read_b64_tr_b16 v[{b}:{b+1}], v{16+jj} offset:{off}')
        a(f'    ds_read_b64_tr_b16 v[{b+2}:{b+3}], v{16+jj} offset:{off+512}')
    if K1PF:
        a('    s_cmp_eq_u32 s21, 5')
        a('    s_cbranch_scc0 K1_T_X0')
        a('    s_waitcnt vmcnt(7)')
        a('    s_branch K1_T_XOK')
        a.label('K1_T_X0')
    a('    s_waitcnt vmcnt(0)')
    if K1PF: a.label('K1_T_XOK')
    for i, (jj, ks, m) in enumerate(order):
        b = 64 + 4*i
        a(f'    s_waitcnt lgkmcnt({min(15, 2*(7-i))})')
        acc = 32 + 8*m + 4*jj
        x = 24 + 4*ks
        c = '0' if ks == 0 else f'v[{acc}:{acc+3}]'
        a(f'    v_mfma_f32_16x16x32_bf16 v[{acc}:{acc+3}], v[{b}:{b+3}], v[{x}:{x+3}], {c}')
    stamp(a, 4)
    a('    s_nop 4')
    for jj in range(2):
        R = range(4)
        p = lambda r: 32 + 4*jj + r
        q = lambda r: 40 + 4*jj + r
        t = lambda r: 10 + r
        if jj == 1: a('    s_nop 2')
        for r in R: a(f'    v_mul_f32 v{p(r)}, s27, v{p(r)}')
        for r in R: a(f'    v_cvt_f16_f32 v{p(r)}, v{p(r)}')
        for r in R: a(f'    v_and_b32 v{t(r)}, 0x7fffffff, v{q(r)}')
        for r in R: a(f'    v_and_b32 v{p(r)}, 0xffff, v{p(r)}')
        for r in R: a(f'    v_sub_u32 v{t(r)}, v{t(r)}, v{p(r)}')
        for r in R: a(f'    v_add_u32 v{t(r)}, 0x8000, v{t(r)}')
        for r in R: a(f'    v_max_i32 v{t(r)}, 0, v{t(r)}')
        for r in R: a(f'    v_and_or_b32 v{t(r)}, v{t(r)}, s28, v{p(r)}')
        for r in R: a(f'    v_and_or_b32 v{p(r)}, v{q(r)}, s29, v{t(r)}')
        a(f'    buffer_store_dwordx4 v[{32+4*jj}:{35+4*jj}], v9, s[44:47], 0 offen offset:{jj*64} {TST}')
    a('    s_cmp_eq_u32 s2, 0')
    a('    s_cbranch_scc0 K1_TFIN')
    a('    s_cmp_eq_u32 s21, 0')
    a('    s_cbranch_scc0 K1_TFIN')
    a('    v_mov_b32 v10, 0x7c00')
    a(f'    v_lshlrev_b32 v11, 2, v2')
    a(f'    v_add_u32 v11, {N*256}, v11')
    a(f'    buffer_store_dword v10, v11, s[44:47], 0 offen {TST}')
    a.label('K1_TFIN')
    stamp(a, 5)
    if STAMP:
        stamp(a, 6)
        a('    s_waitcnt vmcnt(0)')
        stamp(a, 7); stamp(a, 1, True)
        if STAMP >= 3:
            a('    s_waitcnt lgkmcnt(0)')
            a(f'    s_mov_b32 s{ST0+4}, s{ST0+16}')
        else: stamp(a, 2)
        if TFIRST: a('    s_add_u32 s20, s20, 10')
        stamp_flush(a, 20, 2, 0, 6)
    a.label('K1_END')
    a('    s_endpgm')

CAP = 4096
TS = 272
L2_CNT = 0; L2_FLG = 256
L2_LIST = 512
L2_SLOT = L2_LIST + CAP*4
L2_W = L2_SLOT
L2_EAT = L2_SLOT + 56*512; L2_AT = L2_EAT + 48*TS; L2_UT = L2_AT + 48*TS
XS = 144
L2_XT = L2_UT + 48*TS
K2_LDS = L2_XT + 48*XS
U = 4
TPF = int(env('TPF', '1'))
PFPOS = int(env('PFPOS', '1'))
PFN = int(env('PFN', '40'))
PRT = [int(x) for x in env('PRT', '4,4,4').split(',')]

def gen_k2(a):
    sB = 2; sWAVE = 3
    SRD_DESC = 12; SRD_REC = 16; SRD_T = 20; SRD_W = 24; SRD_X = 28; SRD_OUT = 32; SRD_WC = 36
    sMODE = 40; sPASS = 41
    sG0 = 42; sG1 = 43; sGEND = 44; sLEFT = 45; sNODE = 46; sT0 = 47; sT1 = 48; sSAFE = 49; sGT = 50; sR = 51
    sEX = 52; sEAB = 54; sPR = 55; sPQ = 56; sLVL = 57; sSLOT = 58; sNR = 59; sPQ2 = 60; sXT = 61; sJ = 58
    sM = 64
    vLANE = 1
    vWC = 4; vEA = 8; vDEN = 12; vNUM = 16; vT = 20; vDAT = 24; vP = 40; vEV = 48
    vSA = 50; vACC = 51; vEAA = 52; vGS = 53; vQ16 = 54; vNG = 55
    vDA = 56; vNA = 60
    vX = 64
    vFL = 66
    vGE = 67
    vXO = 68
    vR = 76
    vB = 84
    vRK = 92
    vLA = 100
    vA = 108
    vCNT = 118; vRO = 119; vI = 120; vRM = 121; vTRA = 122; vXRA = 123; vROW = 50; vPFA = 51
    vLC = 12
    vPF = 16
    vXO2 = vXO
    SRD_LOC = 8; SRD_PF = 24
    vW = 24; vOP = 24; vAC = 40

    a('.p2align 8')
    a('.type k2_kernel,@function')
    a.label('k2_kernel')
    a(f'    s_cmp_ge_u32 s2, {NB}')
    a('    s_cbranch_scc1 K2_END')
    stamp(a, 0); stamp(a, 0, True)
    if CPF:
        a('    s_getpc_b64 s[30:31]')
        a.label('K2_PC')
        a('    v_lshlrev_b32 v124, 7, v0')
        a('    v_cmp_gt_u32 vcc, CODE_END-K2_PC, v124')
        a('    s_and_saveexec_b64 s[28:29], vcc')
        a('    s_cbranch_execz K2_NOCPF')
        a('    global_load_dword v125, v124, s[30:31]')
        a.label('K2_NOCPF')
        a('    s_mov_b64 exec, s[28:29]')
    if XMAP:
        a(f'    s_and_b32 s{sT0}, s2, 7')
        a(f'    s_lshr_b32 s{sJ}, s2, 3')
        a(f'    s_mul_i32 s{sT1}, s{sT0}, 31')
        a(f'    s_min_u32 s{sT0}, s{sT0}, 2')
        a(f'    s_add_u32 s{sT1}, s{sT1}, s{sT0}')
        a(f'    s_add_u32 s2, s{sT1}, s{sJ}')
    else:
        a(f'    s_lshr_b32 s{sJ}, s2, 3')
    a('    s_load_dwordx2 s[6:7], s[0:1], 88      ; ws')
    a('    s_load_dwordx2 s[4:5], s[0:1], 0       ; x')
    a('    s_load_dwordx2 s[8:9], s[0:1], 32      ; w_a')
    a('    s_load_dwordx4 s[60:63], s[0:1], 48    ; w_c, w_u')
    a('    s_load_dwordx2 s[10:11], s[0:1], 72    ; out')
    a(f'    v_and_b32 v{vLANE}, 63, v0')
    a(f'    v_lshrrev_b32 v{vA}, 6, v0')
    a(f'    v_and_b32 v{vQ16}, 15, v0')
    a(f'    v_readfirstlane_b32 s{sWAVE}, v{vA}')
    a(f'    v_lshlrev_b32 v{vQ16}, 4, v{vQ16}      ; q*16')
    a(f'    v_and_b32 v{vA}, 0x3fc, v0             ; (t>>2)*4')
    a(f'    v_cmp_gt_u32 vcc, {NC*4}, v0')
    a(f'    v_mov_b32 v{vA+8}, {1<<30}')
    a(f'    s_lshl_b32 s{sT0}, s{sB}, 10')
    a(f'    v_cndmask_b32 v{vA}, v{vA+8}, v{vA}, vcc')
    for i in range(4):
        a(f'    v_mov_b32 v{vDA+i}, 0')
        a(f'    v_mov_b32 v{vNA+i}, 0')
    masked(a, 'v_cmp_gt_u32 vcc, 4, v0', sEX)
    a(f'    v_lshlrev_b32 v{vA+5}, 2, v0')
    a(f'    ds_write_b32 v{vA+5}, v{vDA} offset:{L2_FLG}')
    unmask(a, sEX)
    a(f'    s_mov_b32 s{sMODE}, 0')
    a(f'    s_mov_b32 s{sPASS}, 0')
    a(f'    v_mov_b32 v{vEV}, 0')
    a(f'    v_mov_b32 v{vEV+1}, 0')
    a(f'    v_lshrrev_b32 v{vA+1}, 5, v{vLANE}')
    a(f'    v_lshl_add_u32 v{vFL}, v{vA+1}, 8, v{vQ16}')
    a(f'    v_bfe_u32 v{vA+1}, v{vLANE}, 4, 1')
    a(f'    v_lshl_add_u32 v{vFL}, v{vA+1}, 3, v{vFL}')
    a.label('K2_PASS')
    for i in range(4):
        a(f'    v_mov_b32 v{vA+6+i}, {N}')
    a(f'    v_lshlrev_b32 v{vA+5}, 4, v0')
    a(f'    ds_write_b128 v{vA+5}, v[{vA+6}:{vA+9}] offset:{L2_LIST}')
    masked(a, 'v_cmp_gt_u32 vcc, 64, v0', sEX)
    a(f'    v_lshlrev_b32 v{vA+4}, 2, v0')
    a(f'    v_mov_b32 v{vA+3}, 0')
    a(f'    ds_write_b32 v{vA+4}, v{vA+3} offset:{L2_CNT}')
    unmask(a, sEX)
    a(f'    s_cmp_eq_u32 s{sMODE}, 0')
    a('    s_cbranch_scc0 K2_SLOWPARAM')
    a('    s_waitcnt lgkmcnt(0)')
    srd(a, SRD_DESC, 6, 7, NB*DESC_STRIDE, off=WS_DESC)
    a(f'    buffer_load_dword v{vCNT}, v{vA}, s[{SRD_DESC}:{SRD_DESC+3}], s{sT0} offen')
    a(f'    s_cmp_lt_u32 s{sWAVE}, 8')
    a(f'    s_cselect_b32 s{SRD_W}, s8, s62')
    a(f'    s_cselect_b32 s{SRD_W+1}, s9, s63')
    a(f'    s_mov_b32 s{SRD_W+2}, 8192')
    a(f'    s_mov_b32 s{SRD_W+3}, 0x00020000')
    srd(a, SRD_X, 4, 5, N*128)
    srd(a, SRD_WC, 60, 61, 128)
    a(f'    v_and_b32 v{vA+1}, 511, v0')
    a(f'    v_lshlrev_b32 v{vA+1}, 4, v{vA+1}')
    a(f'    buffer_load_dwordx4 v[{vW}:{vW+3}], v{vA+1}, s[{SRD_W}:{SRD_W+3}], 0 offen')
    a(f'    v_lshlrev_b32 v{vA+4}, 4, v0')
    a(f'    v_cmp_gt_u32 vcc, 384, v0')
    a(f'    v_mov_b32 v{vA+3}, {1<<30}')
    a(f'    s_mul_i32 s{sT1}, s{sB}, {NPB*128}')
    a(f'    v_cndmask_b32 v{vA+4}, v{vA+3}, v{vA+4}, vcc')
    a(f'    buffer_load_dwordx4 v[{vXO}:{vXO+3}], v{vA+4}, s[{SRD_X}:{SRD_X+3}], s{sT1} offen')
    a(f'    v_lshrrev_b32 v{vA+7}, 1, v{vQ16}      ; q*8 (wc)')
    a(f'    buffer_load_dwordx2 v[{vWC}:{vWC+1}], v{vA+7}, s[{SRD_WC}:{SRD_WC+3}], 0 offen')
    srd(a, SRD_OUT, 10, 11, N*128)
    srd(a, SRD_REC, 6, 7, NC*REC_STRIDE + 64, off=WS_REC)
    srd(a, SRD_T, 6, 7, 0, off=WS_T, stride=256, nrec=N+1)
    a(f'    v_lshrrev_b32 v{vA}, 2, v0             ; c')
    a(f'    v_mul_u32_u24 v{vRO}, {REC_STRIDE}, v{vA}')
    a(f'    v_and_b32 v{vI}, 3, v0')
    a(f'    v_lshlrev_b32 v{vI}, 2, v{vI}')
    a(f'    v_mad_u32_u24 v{vRO}, v{vI}, 5, v{vRO}')
    a(f'    s_mov_b32 s{sT1}, 16')
    a('    s_waitcnt vmcnt(3)                      ; descriptor')
    stamp(a, 1)
    a(f'    v_and_b32 v{vA+1}, 0xffff, v{vCNT}      ; start')
    a(f'    v_lshrrev_b32 v{vCNT}, 16, v{vCNT}      ; cnt')
    a(f'    v_mad_u32_u24 v{vRO}, v{vA+1}, 5, v{vRO}')
    a('    s_branch K2_PARAMDONE')
    a.label('K2_SLOWPARAM')
    a(f'    s_lshl_b32 s{sT0}, s{sB}, 10')
    a(f'    s_lshl_b32 s{sT1}, s{sPASS}, 2')
    a(f'    s_add_u32 s{sT0}, s{sT0}, s{sT1}')
    a(f'    v_mov_b32 v{vA}, 0')
    a(f'    buffer_load_dword v{vCNT}, v{vA}, s[{SRD_DESC}:{SRD_DESC+3}], s{sT0} offen')
    a(f'    s_mul_i32 s{sT0}, s{sPASS}, {REC_STRIDE}')
    a('    s_waitcnt vmcnt(0) lgkmcnt(0)')
    a('    s_barrier')
    a(f'    v_and_b32 v{vA+1}, 0xffff, v{vCNT}')
    a(f'    v_lshlrev_b32 v{vI}, 2, v0')
    a(f'    v_add_u32 v{vA+1}, v{vA+1}, v{vI}')
    a(f'    v_mul_u32_u24 v{vRO}, 5, v{vA+1}')
    a(f'    v_add_u32 v{vRO}, s{sT0}, v{vRO}')
    a(f'    v_lshrrev_b32 v{vCNT}, 16, v{vCNT}')
    a(f'    s_mov_b32 s{sT1}, 4096')
    a.label('K2_PARAMDONE')
    a(f'    v_sub_u32 v{vRM}, v{vCNT}, v{vI}')
    a(f'    s_mul_i32 s{sT0}, s{sT1}, 5')
    a(f'    s_mov_b32 s{sNR}, 0')
    for r in range(2):
        m0 = sM + 8*r
        if r == 1:
            a(f'    v_subrev_u32 v{vRM}, s{sT1}, v{vRM}')
        for h in range(4):
            a(f'    v_cmp_gt_i32 s[{m0+2*h}:{m0+2*h+1}], v{vRM}, {h}' if h else f'    v_cmp_lt_i32 s[{m0}:{m0+1}], 0, v{vRM}')
        a(f'    s_cmp_eq_u64 s[{m0}:{m0+1}], 0')
        a(f'    s_cbranch_scc1 K2_LD_DONE')
        a(f'    s_mov_b64 exec, s[{m0}:{m0+1}]')
        a(f'    buffer_load_dwordx4 v[{vR+4*r}:{vR+4*r+3}], v{vRO}, s[{SRD_REC}:{SRD_REC+3}], 0 offen')
        a(f'    buffer_load_dword v{vLC+r}, v{vRO}, s[{SRD_REC}:{SRD_REC+3}], 0 offen offset:16')
        a(f'    s_mov_b64 exec, -1')
        a(f'    s_mov_b32 s{sNR}, {r+1}')
        if r < 1:
            a(f'    v_add_u32 v{vRO}, s{sT0}, v{vRO}')
    a.label('K2_LD_DONE')
    a(f'    s_or_b32 s{sT0}, s{sMODE}, s{sPASS}')
    a(f'    s_cmp_eq_u32 s{sT0}, 0')
    a('    s_cbranch_scc0 K2_LATER_PASS')
    a(f'    v_lshrrev_b32 v{vA+8}, 3, v0')
    a(f'    v_mul_u32_u24 v{vA+8}, {XS}, v{vA+8}')
    a(f'    v_and_b32 v{vA+7}, 7, v0')
    a(f'    v_lshl_add_u32 v{vA+8}, v{vA+7}, 4, v{vA+8}')
    a(f'    v_add_u32 v{vA+8}, {L2_XT}, v{vA+8}')
    NPF = 1 if TPF else 0
    a(f'    v_bfe_u32 v{vA+1}, v0, 4, 1')
    a(f'    v_bfe_u32 v{vA+2}, v0, 6, 1')
    a(f'    v_lshlrev_b32 v{vA+1}, 1, v{vA+1}')
    a(f'    v_lshl_or_b32 v{vA+1}, v{vA+2}, 2, v{vA+1}')
    a(f'    v_and_b32 v{vA+2}, 7, v0')
    a(f'    v_xor_b32 v{vA+1}, v{vA+1}, v{vA+2}')
    a(f'    v_lshrrev_b32 v{vA+2}, 3, v0')
    a(f'    v_lshlrev_b32 v{vA+2}, 7, v{vA+2}')
    a(f'    v_lshl_add_u32 v{vA+9}, v{vA+1}, 4, v{vA+2}')
    a(f'    v_lshrrev_b32 v{vA+3}, 4, v{vLANE}     ; g')
    a(f'    v_bfe_u32 v{vA}, v{vLANE}, 2, 2        ; r')
    a(f'    v_lshl_add_u32 v{vA+1}, v{vA+3}, 3, v{vA}')
    a(f'    v_lshlrev_b32 v{vA+1}, 7, v{vA+1}')
    a(f'    v_and_b32 v{vA+2}, 1, v{vLANE}')
    a(f'    v_lshl_add_u32 v{vA+1}, v{vA+2}, 3, v{vA+1}')
    a(f'    v_lshrrev_b32 v{vA}, 1, v{vA}')
    a(f'    v_and_b32 v{vA+2}, 1, v{vA+3}')
    a(f'    v_lshl_or_b32 v{vA}, v{vA+2}, 1, v{vA}     ; swz/2')
    a(f'    s_and_b32 s{sT0}, s{sWAVE}, 3')
    a(f'    v_xor_b32 v{vA}, s{sT0}, v{vA}')
    a(f'    v_bfe_u32 v{vA+2}, v{vLANE}, 1, 1')
    a(f'    v_lshl_or_b32 v{vA}, v{vA}, 1, v{vA+2}')
    a(f'    v_lshl_add_u32 v{vTRA}, v{vA}, 4, v{vA+1}')
    a(f'    s_lshr_b32 s{sT1}, s{sWAVE}, 2')
    a(f'    s_lshl_b32 s{sT1}, s{sT1}, 4')
    a(f'    v_and_b32 v{vA+2}, 15, v{vLANE}')
    a(f'    v_add_u32 v{vROW}, s{sT1}, v{vA+2}     ; row')
    a(f'    v_mul_u32_u24 v{vA+1}, {XS}, v{vROW}')
    a(f'    v_lshl_add_u32 v{vA+1}, v{vA+3}, 4, v{vA+1}')
    a(f'    v_add_u32 v{vXRA}, {L2_XT}, v{vA+1}')
    a(f'    v_mul_u32_u24 v{vA+4}, {TS}, v{vROW}')
    a(f'    v_lshl_add_u32 v{vA+4}, v{vA+3}, 4, v{vA+4}')
    a(f'    s_lshl_b32 s{sT0}, s{sT0}, 6')
    a(f'    s_add_u32 s{sT0}, s{sT0}, {L2_EAT}')
    a(f'    v_add_u32 v{vEAA}, s{sT0}, v{vA+4}')
    if TPF:
        srd(a, SRD_PF, 6, 7, T_BYTES, off=WS_T)
        a(f'    s_mul_i32 s{sT0}, s{sJ}, {640*128}')
        a(f'    s_mul_i32 s{sT1}, s{sWAVE}, {40*128}')
        a(f'    s_add_u32 s{sJ}, s{sT0}, s{sT1}')
        a(f'    v_lshlrev_b32 v{vA+3}, 7, v{vLANE}')
        a(f'    v_cmp_gt_u32 vcc, {PFN}, v{vLANE}')
        a(f'    v_mov_b32 v{vA+4}, {1<<30}')
        a('    s_nop 0')
        a(f'    v_cndmask_b32 v{vPFA}, v{vA+4}, v{vA+3}, vcc')
    a(f'    s_cmp_eq_u32 s{sNR}, 2')
    a('    s_cbranch_scc1 K2_WW4')
    a(f'    s_cmp_eq_u32 s{sNR}, 1')
    a('    s_cbranch_scc1 K2_WW2')
    a('    s_waitcnt vmcnt(0)')
    a('    s_branch K2_WWD')
    a.label('K2_WW4')
    a('    s_waitcnt vmcnt(4)')
    a('    s_branch K2_WWD')
    a.label('K2_WW2')
    a('    s_waitcnt vmcnt(2)')
    a.label('K2_WWD')
    a(f'    ds_write_b128 v{vA+9}, v[{vW}:{vW+3}] offset:{L2_W}')
    a(f'    s_cmp_lt_u32 s{sWAVE}, 6')
    a('    s_cbranch_scc0 K2_NOXST')
    a(f'    ds_write_b128 v{vA+8}, v[{vXO}:{vXO+3}]')
    a.label('K2_NOXST')
    a('    s_waitcnt lgkmcnt(0)')
    a('    s_barrier')
    stamp(a, 3)
    a(f'    s_cmp_lt_u32 s{sWAVE}, 12')
    a('    s_cbranch_scc0 K2_WC')
    a(f'    ds_read_b128 v[{vXO}:{vXO+3}], v{vXRA}')
    a(f'    ds_read_b128 v[{vXO+4}:{vXO+7}], v{vXRA} offset:64')
    order = [(m, ks) for ks in range(2) for m in range(2)]
    for i, (m, ks) in enumerate(order):
        b = vOP + 4*i
        off = L2_W + m*8192 + ks*32*128
        a(f'    ds_read_b64_tr_b16 v[{b}:{b+1}], v{vTRA} offset:{off}')
        a(f'    ds_read_b64_tr_b16 v[{b+2}:{b+3}], v{vTRA} offset:{off+512}')
    for i, (m, ks) in enumerate(order):
        b = vOP + 4*i
        a(f'    s_waitcnt lgkmcnt({2*(3-i)})')
        acc = vAC + 4*m; x = vXO2 + 4*ks
        c = '0' if ks == 0 else f'v[{acc}:{acc+3}]'
        a(f'    v_mfma_f32_16x16x32_bf16 v[{acc}:{acc+3}], v[{b}:{b+3}], v[{x}:{x+3}], {c}')
    a(f'    s_mov_b32 s{sT0}, {hex(f2u(-LOG2E))}')
    a(f'    s_mov_b32 s{sT1}, {hex(f2u(60.0))}')
    a('    s_nop 6')
    for i in range(4):
        a(f'    v_mul_f32 v{vAC+i}, s{sT0}, v{vAC+i}')
    a(f'    ds_write_b128 v{vEAA}, v[{vAC+4}:{vAC+7}] offset:{L2_UT-L2_EAT}')
    a(f'    ds_write_b128 v{vEAA}, v[{vAC}:{vAC+3}] offset:{L2_AT-L2_EAT}')
    for i in range(4):
        a(f'    v_exp_f32 v{vOP+i}, v{vAC+i}')
    a(f'    v_max3_f32 v{vA+5}, |v{vAC}|, |v{vAC+1}|, |v{vAC+2}|')
    a(f'    v_max_f32 v{vA+5}, v{vA+5}, |v{vAC+3}|')
    a(f'    ds_write_b128 v{vEAA}, v[{vOP}:{vOP+3}]')
    a(f'    v_cmp_nle_f32 vcc, v{vA+5}, s{sT1}')
    a(f'    v_cmp_gt_u32 s[{sEX}:{sEX+1}], {NPB}, v{vROW}')
    a(f'    s_and_b64 vcc, vcc, s[{sEX}:{sEX+1}]')
    a(f'    s_and_saveexec_b64 s[{sEX}:{sEX+1}], vcc')
    a('    s_cbranch_execz K2_GUARD_OK')
    a(f'    v_mov_b32 v{vA+5}, 1')
    a(f'    v_mov_b32 v{vA+7}, 0')
    a(f'    ds_write_b32 v{vA+7}, v{vA+5} offset:{L2_FLG+4}')
    unmask(a, sEX, 'K2_GUARD_OK')
    a.label('K2_WC')
    a(f'    s_mov_b32 s{sT0}, {hex(f2u(-LOG2E))}')
    a(f'    v_and_b32 v{vWC+3}, 0xffff0000, v{vWC+1}')
    a(f'    v_lshlrev_b32 v{vWC+2}, 16, v{vWC+1}')
    a(f'    v_and_b32 v{vWC+1}, 0xffff0000, v{vWC}')
    a(f'    v_lshlrev_b32 v{vWC}, 16, v{vWC}')
    for k in range(4):
        a(f'    v_mul_f32 v{vWC+k}, s{sT0}, v{vWC+k}')
    for k in range(U):
        a(f'    v_mov_b32 v{vP+2*k+1}, v{vQ16}')
    a.label('K2_LATER_PASS')
    a(f'    v_mov_b32 v{vA+2}, 1')
    a('    s_waitcnt vmcnt(0)')
    if TPF and PFPOS == 1:
        a(f'    s_or_b32 s{sT0}, s{sMODE}, s{sPASS}')
        a(f'    s_cmp_eq_u32 s{sT0}, 0')
        a('    s_cbranch_scc0 K2_RANKS')
        a(f'    buffer_load_dword v{vPF}, v{vPFA}, s[{SRD_PF}:{SRD_PF+3}], s{sJ} offen')
    a.label('K2_RANKS')
    stamp(a, 2)
    for r in range(2):
        a(f'    s_cmp_le_u32 s{sNR}, {r}')
        a('    s_cbranch_scc1 K2_RK_DONE')
        d = vR + 4*r
        a(f'    v_and_b32 v{vLA+4*r}, 0xff, v{d+1}')
        a(f'    v_bfe_u32 v{vLA+4*r+1}, v{d+2}, 8, 8')
        a(f'    v_bfe_u32 v{vLA+4*r+2}, v{d+3}, 16, 8')
        a(f'    v_lshrrev_b32 v{vLA+4*r+3}, 24, v{vLC+r}')
        for h in range(4):
            k = 4*r + h
            a(f'    s_mov_b64 exec, s[{sM+2*k}:{sM+2*k+1}]')
            a(f'    ds_add_rtn_u32 v{vRK+k}, v{vLA+k}, v{vA+2} offset:{L2_CNT}')
        a('    s_mov_b64 exec, -1')
        a(f'    v_alignbyte_b32 v{d+1}, v{d+2}, v{d+1}, 1')
        a(f'    v_alignbyte_b32 v{d+2}, v{d+3}, v{d+2}, 2')
        a(f'    v_alignbyte_b32 v{d+3}, v{vLC+r}, v{d+3}, 3')
    a.label('K2_RK_DONE')
    masked(a, f'v_cmp_lt_u32 vcc, 32, v{vCNT}', sEX, 'K2_NOOVF')
    a(f'    v_mov_b32 v{vA+3}, 0')
    a(f'    ds_write_b32 v{vA+3}, v{vA+2} offset:{L2_FLG}')
    unmask(a, sEX, 'K2_NOOVF')
    a(f'    v_lshlrev_b32 v{vA+1}, 2, v{vLANE}')
    a(f'    v_mov_b32 v{vA}, 0')
    a('    s_waitcnt lgkmcnt(0)')
    a('    s_barrier')
    stamp(a, 4)
    if TPF and PFPOS == 0:
        a(f'    s_or_b32 s{sT0}, s{sMODE}, s{sPASS}')
        a(f'    s_cmp_eq_u32 s{sT0}, 0')
        a('    s_cbranch_scc0 K2_NOPF')
        a(f'    buffer_load_dword v{vPF}, v{vPFA}, s[{SRD_PF}:{SRD_PF+3}], s{sJ} offen')
        a.label('K2_NOPF')
    a(f'    ds_read_b32 v{vNG}, v{vA+1} offset:{L2_CNT}')
    a(f'    ds_read_b64 v[{vA+4}:{vA+5}], v{vA} offset:{L2_FLG}')
    a('    s_waitcnt lgkmcnt(1)')
    a(f'    v_add_u32 v{vNG}, 3, v{vNG}')
    a(f'    v_lshrrev_b32 v{vNG}, 2, v{vNG}')
    a(f'    v_mov_b32 v{vGE}, v{vNG}')
    dpp_scan(a, vGE)
    a('    s_waitcnt lgkmcnt(0)')
    a(f'    v_readlane_b32 s{sGT}, v{vGE}, {NPB-1}')
    a(f'    v_sub_u32 v{vGS}, v{vGE}, v{vNG}')
    a(f'    v_readfirstlane_b32 s{sT0}, v{vA+4}')
    a(f'    v_readfirstlane_b32 s{sSAFE}, v{vA+5}')
    a(f'    v_lshlrev_b32 v{vA+6}, 4, v{vGS}')
    a(f'    v_cmp_lt_u32 vcc, {NPB}, v{vLANE}')
    a(f'    s_add_u32 s{sR}, s{sGT}, 15')
    a(f'    s_lshr_b32 s{sR}, s{sR}, 4')
    a(f'    v_cndmask_b32 v{vGS}, v{vGS}, -1, vcc')
    a(f'    s_cmp_eq_u32 s{sMODE}, 0')
    a('    s_cbranch_scc0 K2_NOSWITCH')
    a(f'    s_cmp_gt_u32 s{sGT}, {(CAP - 64)//4}')
    a(f'    s_cselect_b32 s{sT1}, 1, 0')
    a(f'    s_or_b32 s{sT0}, s{sT0}, s{sT1}')
    a(f'    s_cmp_eq_u32 s{sT0}, 0')
    a('    s_cbranch_scc1 K2_NOSWITCH')
    a(f'    s_mov_b32 s{sNR}, 0')
    a(f'    s_mov_b32 s{sGT}, 0')
    a(f'    s_mov_b32 s{sR}, 0')
    a(f'    s_mov_b32 s{sMODE}, 2')
    a.label('K2_NOSWITCH')
    for r in range(2):
        a(f'    s_cmp_le_u32 s{sNR}, {r}')
        a('    s_cbranch_scc1 K2_LK_DONE')
        for h in range(4):
            k = 4*r + h
            a(f'    ds_bpermute_b32 v{vB+k}, v{vLA+k}, v{vA+6}')
    a.label('K2_LK_DONE')
    a('    s_waitcnt lgkmcnt(0)')
    for r in range(2):
        a(f'    s_cmp_le_u32 s{sNR}, {r}')
        a('    s_cbranch_scc1 K2_SC_DONE')
        for h in range(4):
            k = 4*r + h
            a(f'    s_mov_b64 exec, s[{sM+2*k}:{sM+2*k+1}]')
            a(f'    v_lshl_add_u32 v{vB+k}, v{vRK+k}, 2, v{vB+k}')
            a(f'    ds_write_b32 v{vB+k}, v{vR+k} offset:{L2_LIST}')
    a.label('K2_SC_DONE')
    a('    s_mov_b64 exec, -1')
    a(f'    s_mul_i32 s{sG0}, s{sR}, s{sWAVE}')
    a(f'    s_add_u32 s{sG1}, s{sG0}, s{sR}')
    a(f'    s_min_u32 s{sG1}, s{sG1}, s{sGT}')
    a(f'    v_lshrrev_b32 v{vSA}, 4, v{vLANE}')
    a(f'    v_lshlrev_b32 v{vSA}, 2, v{vSA}         ; slot*4')
    a(f'    s_lshl_b32 s{sT0}, s{sG0}, 4')
    a(f'    v_add_u32 v{vSA}, s{sT0}, v{vSA}')
    a(f'    v_mov_b32 v{vA}, 0')
    a('    s_waitcnt lgkmcnt(0)')
    a('    s_barrier')
    stamp(a, 5)

    def tload(k):
        d = vDAT + 4*k
        a(f'    buffer_load_dwordx4 v[{d}:{d+3}], v[{vP+2*k}:{vP+2*k+1}], s[{SRD_T}:{SRD_T+3}], 0 idxen offen')

    a(f'    s_cmp_ge_u32 s{sG0}, s{sG1}')
    a('    s_cbranch_scc1 K2_MAIN_DONE')
    for k in range(U):
        a(f'    ds_read_u16 v{vP+2*k}, v{vSA} offset:{L2_LIST + 16*k}')
    a(f'    ds_read_u16_d16_hi v{vEV}, v{vSA} offset:{L2_LIST + 2}')
    if PRIO:
        a(f'    s_add_u32 s{sT0}, s{sR}, 3')
        a(f'    s_lshr_b32 s{sT0}, s{sT0}, 2            ; iterations')
        for n, reg in zip(PRT, (sPR, sPQ, sPQ2)):
            a(f'    s_mul_i32 s{reg}, s{sT0}, {n}')
            a(f'    s_lshr_b32 s{reg}, s{reg}, 4')
            a(f'    s_add_u32 s{reg}, s{reg}, 1')
        a(f'    s_mov_b32 s{sLVL}, 3')
        a('    s_setprio 3')
    a(f'    s_mov_b32 s{sGEND}, s{sG0}')
    a('    s_waitcnt lgkmcnt(0)')
    for k in range(U):
        tload(k)
    a(f'    ds_read_u16 v{vP}, v{vSA} offset:{L2_LIST + 16*U}')
    a(f'    s_cmp_eq_u32 s{sSAFE}, 0')
    a(f'    s_mov_b32 s{sEAB}, {L2_AT}')
    a(f'    s_cselect_b32 s{sEAB}, {L2_EAT}, s{sEAB}')
    a('    s_cbranch_scc0 K2S_ENTER')
    a('    s_branch K2F_ENTER')

    def next_node():
        a(f'    v_cmp_ge_u32 vcc, s{sGEND}, v{vGS}')
        a(f'    s_bcnt1_i32_b64 s{sT0}, vcc')
        a(f'    s_sub_u32 s{sNODE}, s{sT0}, 1')
        a(f'    v_readlane_b32 s{sT1}, v{vGS}, s{sT0}')
        a(f'    s_mul_i32 s{sT0}, s{sNODE}, {TS}')
        a(f'    s_add_u32 s{sT0}, s{sT0}, s{sEAB}')
        a(f'    v_add_u32 v{vEAA}, s{sT0}, v{vQ16}')
        a(f'    ds_read_b128 v[{vEA}:{vEA+3}], v{vEAA}')
        a(f'    s_min_u32 s{sT1}, s{sT1}, s{sG1}')
        a(f'    s_sub_u32 s{sLEFT}, s{sT1}, s{sGEND}')
        a(f'    s_sub_u32 s{sLEFT}, s{sLEFT}, 1')
        a(f'    s_mov_b32 s{sGEND}, s{sT1}')

    def set_slot():
        a(f'    s_add_u32 s{sSLOT}, s{sNODE}, s{sWAVE}')
        a(f'    s_lshl_b32 s{sSLOT}, s{sSLOT}, 9')

    def flush():
        a(f'    v_add_u32 v{vACC}, s{sSLOT}, v{vFL}')
        for i in range(4):
            a(f'    v_permlane32_swap_b32 v{vDEN+i}, v{vNUM+i}')
        a(f'    v_pk_add_f32 v[{vDEN}:{vDEN+1}], v[{vDEN}:{vDEN+1}], v[{vNUM}:{vNUM+1}]')
        a(f'    v_pk_add_f32 v[{vDEN+2}:{vDEN+3}], v[{vDEN+2}:{vDEN+3}], v[{vNUM+2}:{vNUM+3}]')
        a('    s_nop 1')
        a(f'    v_permlane16_swap_b32 v{vDEN}, v{vDEN+2}')
        a(f'    v_permlane16_swap_b32 v{vDEN+1}, v{vDEN+3}')
        a(f'    v_pk_add_f32 v[{vNUM}:{vNUM+1}], v[{vDEN}:{vDEN+1}], v[{vDEN+2}:{vDEN+3}]')
        a(f'    ds_write_b64 v{vACC}, v[{vNUM}:{vNUM+1}] offset:{L2_SLOT}')

    def step(k, safe, init):
        d = vDAT + 4*k
        ev = vEV + (k & 1); evn = vEV + ((k+1) & 1)
        pn = vP + 2*((k+1) % U)
        for i in range(4):
            a(f'    v_fma_mix_f32 v{vT+i}, v{ev}, v{vWC+i}, v{d+i} op_sel:[0,0,0] op_sel_hi:[0,0,1]')
        a(f'    ds_read_u16_d16_hi v{evn}, v{vSA} offset:{L2_LIST + 16*(k+1) + 2}')
        a(f'    ds_read_u16 v{pn}, v{vSA} offset:{L2_LIST + 16*(k+1+U)}')
        if init and safe:
            a('    s_waitcnt lgkmcnt(3)')
        if safe:
            a(f'    v_pk_add_f32 v[{vT}:{vT+1}], v[{vT}:{vT+1}], v[{vEA}:{vEA+1}]')
            a(f'    v_pk_add_f32 v[{vT+2}:{vT+3}], v[{vT+2}:{vT+3}], v[{vEA+2}:{vEA+3}]')
        for i in range(4):
            a(f'    v_exp_f32 v{vT+i}, v{vT+i}')
        if init and not safe:
            a('    s_waitcnt lgkmcnt(3)')
        if safe:
            a(f'    v_pk_add_f32 v[{vT}:{vT+1}], v[{vT}:{vT+1}], 1.0 op_sel_hi:[1,0]')
            a(f'    v_pk_add_f32 v[{vT+2}:{vT+3}], v[{vT+2}:{vT+3}], 1.0 op_sel_hi:[1,0]')
        else:
            a(f'    v_pk_fma_f32 v[{vT}:{vT+1}], v[{vEA}:{vEA+1}], v[{vT}:{vT+1}], 1.0 op_sel_hi:[1,1,0]')
            a(f'    v_pk_fma_f32 v[{vT+2}:{vT+3}], v[{vEA+2}:{vEA+3}], v[{vT+2}:{vT+3}], 1.0 op_sel_hi:[1,1,0]')
        if init:
            for i in range(4):
                a(f'    v_rcp_f32 v{vDEN+i}, v{vT+i}')
            a('    s_nop 0')
            a(f'    v_pk_mul_f32 v[{vNUM}:{vNUM+1}], v[{vDEN}:{vDEN+1}], v[{d}:{d+1}]')
            a(f'    v_pk_mul_f32 v[{vNUM+2}:{vNUM+3}], v[{vDEN+2}:{vDEN+3}], v[{d+2}:{d+3}]')
        else:
            for i in range(4):
                a(f'    v_rcp_f32 v{vT+i}, v{vT+i}')
            a(f'    v_pk_add_f32 v[{vDEN}:{vDEN+1}], v[{vDEN}:{vDEN+1}], v[{vT}:{vT+1}]')
            a(f'    v_pk_add_f32 v[{vDEN+2}:{vDEN+3}], v[{vDEN+2}:{vDEN+3}], v[{vT+2}:{vT+3}]')
            a(f'    v_pk_fma_f32 v[{vNUM}:{vNUM+1}], v[{vT}:{vT+1}], v[{d}:{d+1}], v[{vNUM}:{vNUM+1}]')
            a(f'    v_pk_fma_f32 v[{vNUM+2}:{vNUM+3}], v[{vT+2}:{vT+3}], v[{d+2}:{d+3}], v[{vNUM+2}:{vNUM+3}]')
        tload(k)
        if k == U-1:
            a(f'    v_add_u32 v{vSA}, {16*U}, v{vSA}')

    def loopback(pfx):
        if PRIO:
            a(f'    s_sub_u32 s{sPR}, s{sPR}, 1')
            a(f'    s_cmp_lg_u32 s{sPR}, 0')
            a(f'    s_cbranch_scc1 {pfx}_STEP0')
            a(f'    s_branch {pfx}_PRIO')
        else:
            a(f'    s_branch {pfx}_STEP0')

    for pfx, safe in (('K2F', False), ('K2S', True)):
        a.label(f'{pfx}_ENTER')
        next_node()
        set_slot()
        a('    s_waitcnt vmcnt(3) lgkmcnt(0)')
        step(0, safe, True)
        a(f'    s_branch {pfx}_STEP1')
        for k in range(U):
            a.label(f'{pfx}_STEP{k}')
            a(f'    s_waitcnt vmcnt({U-1}) lgkmcnt(0)')
            a(f'    s_sub_u32 s{sLEFT}, s{sLEFT}, 1')
            a(f'    s_cbranch_scc1 {pfx}_FLUSH{k}')
            step(k, safe, False)
            if k == U-1:
                loopback(pfx)
        for k in range(U):
            a.label(f'{pfx}_FLUSH{k}')
            a(f'    s_cmp_ge_u32 s{sGEND}, s{sG1}')
            a(f'    s_cbranch_scc1 K2_LAST')
            next_node()
            flush()
            set_slot()
            step(k, safe, True)
            if k == U-1:
                loopback(pfx)
            else:
                a(f'    s_branch {pfx}_STEP{k+1}')
        if PRIO:
            a.label(f'{pfx}_PRIO')
            a(f'    s_sub_u32 s{sLVL}, s{sLVL}, 1')
            a(f'    s_cmp_eq_u32 s{sLVL}, 2')
            a(f'    s_cbranch_scc1 {pfx}_PRIO2')
            a(f'    s_cmp_eq_u32 s{sLVL}, 1')
            a(f'    s_cbranch_scc1 {pfx}_PRIO1')
            a(f'    s_mov_b32 s{sPR}, 0x7fffffff')
            a('    s_setprio 0')
            a(f'    s_branch {pfx}_STEP0')
            a.label(f'{pfx}_PRIO2')
            a(f'    s_mov_b32 s{sPR}, s{sPQ}')
            a('    s_setprio 2')
            a(f'    s_branch {pfx}_STEP0')
            a.label(f'{pfx}_PRIO1')
            a(f'    s_mov_b32 s{sPR}, s{sPQ2}')
            a('    s_setprio 1')
            a(f'    s_branch {pfx}_STEP0')
    a.label('K2_LAST')
    flush()
    a.label('K2_MAIN_DONE')
    if PRIO: a('    s_setprio 0')
    a(f'    s_cmp_eq_u32 s{sMODE}, 2')
    a('    s_cbranch_scc0 K2_NOABORT')
    a(f'    s_mov_b32 s{sMODE}, 1')
    a(f'    s_mov_b32 s{sPASS}, 0')
    a('    s_waitcnt vmcnt(0) lgkmcnt(0)')
    a('    s_barrier')
    a('    s_branch K2_PASS')
    a.label('K2_NOABORT')
    a(f'    v_cvt_f32_u32 v{vA}, s{sR}')
    a(f'    v_cvt_f32_u32 v{vA+1}, v{vGS}')
    a(f'    v_rcp_f32 v{vA}, v{vA}')
    a(f'    v_cvt_f32_u32 v{vA+2}, v{vGE}')
    a(f'    v_add_f32 v{vA+1}, 0.5, v{vA+1}')
    a(f'    v_add_f32 v{vA+2}, -0.5, v{vA+2}')
    a(f'    v_mul_f32 v{vA+1}, v{vA+1}, v{vA}')
    a(f'    v_mul_f32 v{vA+2}, v{vA+2}, v{vA}')
    a(f'    v_cvt_u32_f32 v{vA+1}, v{vA+1}          ; wlo')
    a(f'    v_cvt_u32_f32 v{vA+2}, v{vA+2}          ; whi')
    a(f'    v_sub_u32 v{vA+2}, v{vA+2}, v{vA+1}')
    a(f'    v_add_u32 v{vA+2}, 1, v{vA+2}')
    a(f'    v_cmp_eq_u32 vcc, 0, v{vNG}')
    a(f'    v_add_u32 v{vA+1}, v{vA+1}, v{vLANE}')
    a(f'    v_and_b32 v{vA+1}, 0xffff, v{vA+1}')
    a(f'    v_cndmask_b32 v{vA+2}, v{vA+2}, 0, vcc')
    a(f'    v_lshl_or_b32 v{vA+3}, v{vA+2}, 16, v{vA+1}')
    a(f'    v_lshrrev_b32 v{vA}, 4, v0')
    a(f'    v_and_b32 v{vA+4}, 63, v{vA}')
    a(f'    v_lshlrev_b32 v{vA+4}, 2, v{vA+4}')
    a(f'    ds_bpermute_b32 v{vA+1}, v{vA+4}, v{vA+3}')
    a(f'    v_mul_u32_u24 v{vA+5}, {TS}, v{vA}')
    a('    s_waitcnt vmcnt(0) lgkmcnt(0)')
    a(f'    v_cmp_gt_u32 vcc, {NPB*16}, v0')
    a(f'    v_lshrrev_b32 v{vA+2}, 16, v{vA+1}')
    a(f'    v_and_b32 v{vA+1}, 0xffff, v{vA+1}')
    a(f'    v_cndmask_b32 v{vA+2}, 0, v{vA+2}, vcc')
    a(f'    v_lshl_add_u32 v{vA+1}, v{vA+1}, 9, v{vQ16}')
    stamp(a, 6)
    a('    s_barrier')
    a.label('K2_FOLD')
    masked(a, f'v_cmp_lt_u32 vcc, 0, v{vA+2}', sEX, 'K2_FOLD_DONE')
    a(f'    ds_read_b128 v[{vDEN}:{vDEN+3}], v{vA+1} offset:{L2_SLOT}')
    a(f'    ds_read_b128 v[{vNUM}:{vNUM+3}], v{vA+1} offset:{L2_SLOT+256}')
    a(f'    v_add_u32 v{vA+1}, 512, v{vA+1}')
    a(f'    v_add_u32 v{vA+2}, -1, v{vA+2}')
    a('    s_waitcnt lgkmcnt(1)')
    a(f'    v_pk_add_f32 v[{vDA}:{vDA+1}], v[{vDA}:{vDA+1}], v[{vDEN}:{vDEN+1}]')
    a(f'    v_pk_add_f32 v[{vDA+2}:{vDA+3}], v[{vDA+2}:{vDA+3}], v[{vDEN+2}:{vDEN+3}]')
    a('    s_waitcnt lgkmcnt(0)')
    a(f'    v_pk_add_f32 v[{vNA}:{vNA+1}], v[{vNA}:{vNA+1}], v[{vNUM}:{vNUM+1}]')
    a(f'    v_pk_add_f32 v[{vNA+2}:{vNA+3}], v[{vNA+2}:{vNA+3}], v[{vNUM+2}:{vNUM+3}]')
    unmask(a, sEX)
    a('    s_branch K2_FOLD')
    unmask(a, sEX, 'K2_FOLD_DONE')
    a(f'    s_cmp_eq_u32 s{sMODE}, 0')
    a('    s_cbranch_scc1 K2_EPI')
    a(f'    s_add_u32 s{sPASS}, s{sPASS}, 1')
    a(f'    s_cmp_lt_u32 s{sPASS}, {NC}')
    a('    s_cbranch_scc0 K2_EPI')
    a('    s_barrier')
    a('    s_branch K2_PASS')
    a.label('K2_EPI')
    a(f'    s_mov_b32 s{sXT}, {L2_XT}')
    masked(a, f'v_cmp_gt_u32 vcc, {NPB*16}, v0', sEX, 'K2_FIN')
    a(f'    v_add_u32 v{vA+5}, v{vA+5}, v{vQ16}')
    a(f'    v_add_u32 v{vA+5}, {L2_UT}, v{vA+5}')
    a(f'    ds_read_b128 v[{vDEN}:{vDEN+3}], v{vA+5}')
    a(f'    v_lshrrev_b32 v{vA+6}, 4, v0')
    a(f'    v_mul_u32_u24 v{vA+6}, {XS}, v{vA+6}')
    a(f'    v_lshrrev_b32 v{vA+7}, 1, v{vQ16}')
    a(f'    v_add3_u32 v{vA+6}, v{vA+6}, v{vA+7}, s{sXT}')
    a(f'    ds_read_b64 v[{vX}:{vX+1}], v{vA+6}')
    a(f'    s_mov_b32 s{sT0}, {hex(f2u(1e-6))}')
    a('    s_waitcnt lgkmcnt(0)')
    a(f'    v_lshlrev_b32 v{vT}, 16, v{vX}')
    a(f'    v_and_b32 v{vT+1}, 0xffff0000, v{vX}')
    a(f'    v_lshlrev_b32 v{vT+2}, 16, v{vX+1}')
    a(f'    v_and_b32 v{vT+3}, 0xffff0000, v{vX+1}')
    for i in range(4):
        a(f'    v_add_f32 v{vDA+i}, s{sT0}, v{vDA+i}')
    for i in range(4):
        a(f'    v_rcp_f32 v{vDA+i}, v{vDA+i}')
    a('    s_waitcnt lgkmcnt(0)')
    for i in range(4):
        a(f'    v_fma_f32 v{vNA+i}, v{vNA+i}, v{vDA+i}, v{vDEN+i}    ; z = U + agg')
    for i in range(4):
        a(f'    v_mul_f32 v{vDEN+i}, 0, v{vNA+i}                     ; 0*z')
        a(f'    v_cmp_lt_f32 vcc, 0, v{vNA+i}')
        a('    s_nop 1')
        a(f'    v_cndmask_b32 v{vNA+i}, v{vDEN+i}, v{vNA+i}, vcc')
        a(f'    v_add_f32 v{vNA+i}, v{vNA+i}, v{vT+i}')
    a(f'    v_cvt_pk_bf16_f32 v{vDEN}, v{vNA}, v{vNA+1}')
    a(f'    v_cvt_pk_bf16_f32 v{vDEN+1}, v{vNA+2}, v{vNA+3}')
    a(f'    s_mul_i32 s{sT1}, s{sB}, {NPB*128}')
    a(f'    v_lshlrev_b32 v{vA+1}, 3, v0')
    a(f'    buffer_store_dwordx2 v[{vDEN}:{vDEN+1}], v{vA+1}, s[{SRD_OUT}:{SRD_OUT+3}], s{sT1} offen {OUTST}')
    a.label('K2_FIN')
    if STAMP:
        a('    s_mov_b64 exec, -1')
        a('    s_waitcnt vmcnt(0)')
    stamp(a, 7); stamp(a, 1, True)
    stamp_flush(a, sWAVE, sB, 1, 6)
    a.label('K2_END')
    a('    s_endpgm')
    a.label('CODE_END')

def gen_k3(a):
    i, j = [int(x) for x in env('INTERVAL', '0,0').split(',')]
    inv = {0: True, 2: True}
    a('.globl k3_kernel')
    a('.p2align 8')
    a('.type k3_kernel,@function')
    a.label('k3_kernel')
    a('    s_cmp_ge_u32 s2, 1')
    a('    s_cbranch_scc1 K3_END')
    a('    s_load_dwordx2 s[4:5], s[0:1], 80')
    a('    s_waitcnt lgkmcnt(0)')
    a('    v_mov_b32 v1, 0')
    a(f'    global_load_dword v2, v1, s[4:5] offset:{4*i} sc1')
    a(f'    global_load_dword v3, v1, s[4:5] offset:{4*j} sc1')
    a('    s_waitcnt vmcnt(0)')
    if inv.get(i): a('    v_not_b32 v2, v2')
    if inv.get(j): a('    v_not_b32 v3, v3')
    a('    v_sub_u32 v3, v3, v2')
    a('    s_nop 1')
    a('    v_readfirstlane_b32 s8, v3')
    a('    s_nop 3')
    a('    s_mul_i32 s8, s8, 10')
    a('    s_min_u32 s8, s8, 50000')
    a('    s_memrealtime s[10:11]')
    a('    s_waitcnt lgkmcnt(0)')
    a.label('K3_SPIN')
    a('    s_memrealtime s[12:13]')
    a('    s_waitcnt lgkmcnt(0)')
    a('    s_sub_u32 s9, s12, s10')
    a('    s_cmp_lt_u32 s9, s8')
    a('    s_cbranch_scc1 K3_SPIN')
    a.label('K3_END')
    a('    s_endpgm')

def kd(a, name, vgpr, sgpr):
    a(f'.amdhsa_kernel {name}')
    a(f'  .amdhsa_next_free_vgpr {vgpr}')
    a(f'  .amdhsa_next_free_sgpr {sgpr}')
    a(f'  .amdhsa_accum_offset {((vgpr+3)//4)*4}')
    a('  .amdhsa_group_segment_fixed_size 0')
    a('  .amdhsa_kernarg_size 96')
    a('  .amdhsa_user_sgpr_count 2')
    a('  .amdhsa_user_sgpr_kernarg_segment_ptr 1')
    a('  .amdhsa_system_sgpr_workgroup_id_x 1')
    a('  .amdhsa_float_denorm_mode_32 3')
    a('.end_amdhsa_kernel')

def main(out):
    a = Asm()
    a(f'; @launch kernel=k1_kernel grid=({K1_GRID},1,1) block=(1024,1,1) lds={K1_LDS}')
    a(f'; @launch kernel=k2_kernel grid=({NB},1,1) block=(1024,1,1) lds={K2_LDS}')
    if STAMP == 4: a('; @launch kernel=k3_kernel grid=(1,1,1) block=(64,1,1) lds=0')
    a('.amdgcn_target "amdgcn-amd-amdhsa--gfx950"')
    a('.text')
    a('.globl k1_kernel')
    gen_k1(a)
    a('.globl k2_kernel')
    gen_k2(a)
    if STAMP == 4: gen_k3(a)
    a('.section .rodata,"a"')
    a('.p2align 6')
    kd(a, 'k1_kernel', 96, 102 if STAMP else 72)
    a('.p2align 6')
    kd(a, 'k2_kernel', 128, 102 if STAMP else 80)
    if STAMP == 4:
        a('.p2align 6')
        kd(a, 'k3_kernel', 8, 32)
    a.l = [x for x in a.l if x is not None]
    open(out, 'w').write(a.text())

if __name__ == '__main__':
    main(sys.argv[1] if len(sys.argv) > 1 else 'standalone__edge_featured_mpnn_gatedgcn__graph.s')
```

```python
import sys, os, struct
def env(n, d): return os.environ.get(n, d)

N = 10000; E = 640000
NPB = 40; NB = 250; EPC = 2560; NC = 250
LOG2E = 1.4426950408889634
WS_REC  = 0
REC_STRIDE = EPC*5
WS_DESC = 3407872
DESC_STRIDE = 1024
WS_T    = 4194304
T_BYTES = (N+1)*256

STAMP = int(env('STAMP', '0'))
K1ST = env('K1ST', 'sc1')
PRIO = int(env('PRIO', '1'))
TFIRST = int(env('TFIRST', '1'))
WS_STAMP = 128 << 20
ST0 = 80

def f2u(f): return struct.unpack('<I', struct.pack('<f', f))[0]

class Asm:
    def __init__(self): self.l = []
    def __call__(self, s=''):
        for line in s.split('\n'): self.l.append(line)
    def label(self, n): self.l.append(n + ':')
    def text(self): return '\n'.join(self.l) + '\n'

def stamp(a, i, real=False):
    if STAMP:
        r = ST0 + 2*(8+i if real else i)
        a(f"    {'s_memrealtime' if (real or STAMP >= 3) else 's_memtime'} s[{r}:{r+1}]")
def stamp_flush(a, wave_sgpr, wg_sgpr, kern, ws_lo):
    if not STAMP: return
    a('    s_waitcnt lgkmcnt(0)')
    a('    s_mov_b64 exec, 1')
    a('    v_mov_b32 v2, 0')
    if STAMP == 4:
        lab = f'STSKIP{kern}_{len(a.l)}'
        a(f"    s_and_b32 s14, s{wg_sgpr}, {31 if kern == 0 else int(env('SAMP2', '31'))}")
        a('    s_cmp_eq_u32 s14, 0')
        a(f'    s_cbranch_scc0 {lab}')
        a(f'    s_cmp_eq_u32 s{wave_sgpr}, 0')
        a(f'    s_cbranch_scc0 {lab}')
        a('    s_load_dwordx2 s[12:13], s[0:1], 80')
        a('    s_waitcnt lgkmcnt(0)')
        a(f'    s_add_u32 s12, s12, {1024 if kern == 0 else 512}')
        a('    s_addc_u32 s13, s13, 0')
        slots = [(0, 8, True), (1, 9, False), (7, 4, False), (8, 2, False)] if kern == 0 else \
                [(2, 8, True), (3, 4, False), (4, 5, False), (5, 6, False), (6, 9, False), (9, 2, False)]
        for slot, st, inv in slots:
            a(f'    v_mov_b32 v3, s{ST0+2*st}')
            if inv: a('    v_not_b32 v3, v3')
            a(f'    global_atomic_umax v2, v3, s[12:13] offset:{4*slot}')
        a('    s_waitcnt vmcnt(0)')
        a.label(lab)
        return
    a(f'    s_add_u32 s12, s{ws_lo}, {WS_STAMP + kern*(4<<20)}')
    a(f'    s_addc_u32 s13, s{ws_lo+1}, 0')
    a(f'    s_mov_b32 s14, {4<<20}')
    a('    s_mov_b32 s15, 0x00020000')
    a(f'    s_lshl_b32 s16, s{wg_sgpr}, 4')
    a(f'    s_add_u32 s16, s16, s{wave_sgpr}')
    a(f'    s_lshl_b32 s16, s16, 6')
    for i in range(8):
        a(f'    v_mov_b32 v3, s{ST0+2*i}')
        a(f'    buffer_store_dword v3, v2, s[12:15], s16 offen offset:{4*i}')
    for i in range(2):
        a(f'    v_mov_b32 v3, s{ST0+2*(8+i)}')
        a(f'    buffer_store_dword v3, v2, s[12:15], s16 offen offset:{4*(10+i)}')
    a('    s_waitcnt vmcnt(0)')

def srd(a, sreg, lo, hi, nbytes, off=0, stride=0, nrec=None):
    if off:
        a(f'    s_add_u32 s{sreg}, s{lo}, {off}')
        a(f'    s_addc_u32 s{sreg+1}, s{hi}, 0')
    else:
        a(f'    s_mov_b32 s{sreg}, s{lo}')
        a(f'    s_mov_b32 s{sreg+1}, s{hi}')
    if stride:
        a(f'    s_and_b32 s{sreg+1}, s{sreg+1}, 0xffff')
        a(f'    s_or_b32 s{sreg+1}, s{sreg+1}, {stride << 16}')
        a(f'    s_mov_b32 s{sreg+2}, {nrec}')
    else:
        a(f'    s_mov_b32 s{sreg+2}, {nbytes}')
    a(f'    s_mov_b32 s{sreg+3}, 0x00020000')

def dpp_scan(a, v):
    for sh in (1, 2, 4, 8):
        a('    s_nop 1')
        a(f'    v_add_u32_dpp v{v}, v{v}, v{v} row_shr:{sh} row_mask:0xf bank_mask:0xf')
    a('    s_nop 1')
    a(f'    v_add_u32_dpp v{v}, v{v}, v{v} row_bcast:15 row_mask:0xa bank_mask:0xf')
    a('    s_nop 1')
    a(f'    v_add_u32_dpp v{v}, v{v}, v{v} row_bcast:31 row_mask:0xc bank_mask:0xf')

def masked(a, cond, exreg, skip=None):
    a(f'    {cond}')
    a(f'    s_and_saveexec_b64 s[{exreg}:{exreg+1}], vcc')
    if skip: a(f'    s_cbranch_execz {skip}')
def unmask(a, exreg, skip=None):
    if skip: a.label(skip)
    a(f'    s_mov_b64 exec, s[{exreg}:{exreg+1}]')

def lds_sync(a, name, off, n, vzero, vone, vt, st):
    a('    s_waitcnt lgkmcnt(0)')
    a('    s_mov_b64 exec, 1')
    a(f'    ds_add_u32 v{vzero}, v{vone} offset:{off}')
    a('    s_mov_b64 exec, -1')
    a.label(name)
    a(f'    ds_read_b32 v{vt}, v{vzero} offset:{off}')
    a('    s_waitcnt lgkmcnt(0)')
    a(f'    v_readfirstlane_b32 s{st}, v{vt}')
    a(f'    s_cmp_lt_u32 s{st}, {n}')
    a(f'    s_cbranch_scc1 {name}')

K1_GRID = NC
L1_HIST = 0; L1_START = 1024; L1_SYNC = 2048
L1_ST32 = 2304; L1_ST8 = L1_ST32 + EPC*4; L1_W = 15360
K1_LDS = L1_W + 16384
K1PF = int(env('K1PF', '0'))
CPF = int(env('CPF', '1'))
XMAP = int(env('XMAP', '1'))
DESCST = env('DESCST', '')
OUTST = env('OUTST', '')
RECST = env('RECST', K1ST)
TST = env('TST', K1ST)
TFIRST = int(env('TFIRST', '1'))

def gen_k1(a):
    a('.p2align 8')
    a('.type k1_kernel,@function')
    a.label('k1_kernel')
    a(f'    s_cmp_ge_u32 s2, {K1_GRID}')
    a('    s_cbranch_scc1 K1_END')
    stamp(a, 0); stamp(a, 0, True)
    if CPF:
        a('    s_getpc_b64 s[30:31]')
        a.label('K1_PC')
        a('    v_lshlrev_b32 v90, 7, v0')
        lim = 'CODE_END-K1_PC' if CPF >= 2 else 'k2_kernel-K1_PC'
        a(f'    v_cmp_gt_u32 vcc, {lim}, v90')
        a('    s_and_saveexec_b64 s[28:29], vcc')
        a('    s_cbranch_execz K1_NOCPF')
        a('    global_load_dword v91, v90, s[30:31]')
        a.label('K1_NOCPF')
        a('    s_mov_b64 exec, s[28:29]')
    if XMAP:
        a('    s_and_b32 s20, s2, 7')
        a('    s_lshr_b32 s21, s2, 3')
        a('    s_mul_i32 s22, s20, 31')
        a('    s_min_u32 s20, s20, 2')
        a('    s_add_u32 s22, s22, s20')
        a('    s_add_u32 s2, s22, s21')
    a('    v_lshrrev_b32 v1, 6, v0')
    a('    s_load_dwordx4 s[8:11], s[0:1], 16')
    a('    v_readfirstlane_b32 s20, v1')
    a('    s_load_dwordx2 s[4:5], s[0:1], 8      ; e_attr')
    a('    s_load_dwordx2 s[6:7], s[0:1], 88     ; ws')
    a('    v_and_b32 v2, 63, v0                   ; lane')
    if TFIRST:
        a('    s_cmp_lt_u32 s20, 6')
        a('    s_cbranch_scc1 K1_TABLE')
        a('    v_subrev_u32 v0, 384, v0')
        a('    s_sub_u32 s20, s20, 6')
    else:
        a('    s_cmp_ge_u32 s20, 10')
        a('    s_cbranch_scc1 K1_TABLE')
    a('    v_mov_b32 v5, 0')
    a('    v_lshlrev_b32 v6, 2, v0               ; t*4')
    masked(a, 'v_cmp_gt_u32 vcc, 256, v0', 30)
    a(f'    ds_write_b32 v6, v5 offset:{L1_HIST}')
    unmask(a, 30)
    a('    v_lshlrev_b32 v3, 4, v0               ; t*16')
    a('    v_lshlrev_b32 v4, 3, v0               ; t*8')
    a(f'    s_mul_i32 s21, s2, {EPC*4}')
    a(f'    s_mul_i32 s22, s2, {EPC*2}')
    a('    s_mov_b32 s23, 52429')
    a('    s_waitcnt lgkmcnt(0)')
    srd(a, 12, 10, 11, E*4)
    a('    buffer_load_dwordx4 v[8:11], v3, s[12:15], s21 offen     ; dst x4')
    srd(a, 16, 8, 9, E*4)
    a('    buffer_load_dwordx4 v[12:15], v3, s[16:19], s21 offen    ; src x4')
    srd(a, 24, 4, 5, E*2)
    a('    buffer_load_dwordx2 v[16:17], v4, s[24:27], s22 offen')
    srd(a, 32, 6, 7, NC*REC_STRIDE, off=WS_REC)
    srd(a, 36, 6, 7, NB*DESC_STRIDE, off=WS_DESC)
    a('    v_lshlrev_b32 v6, 4, v2                ; lane*16')
    a('    v_mul_u32_u24 v7, 20, v0')
    a('    v_lshlrev_b32 v18, 12, v2')
    a(f'    s_mul_i32 s25, s2, {REC_STRIDE}')
    a('    s_lshl_b32 s26, s2, 2')
    a('    s_mov_b32 s40, 0x06050400')
    a('    s_mov_b32 s41, 0x05040003')
    a('    s_mov_b32 s42, 0x03020500')
    a('    s_mov_b32 s43, 0x04000302')
    a('    s_mov_b32 s44, 0x03060100')
    a('    s_mov_b32 s45, 0x07030201')
    stamp(a, 1)
    a('    s_barrier')
    a('    v_mov_b32 v5, 1')
    a('    v_mov_b32 v19, 0')
    a('    s_waitcnt vmcnt(2)')
    stamp(a, 2)
    for k in range(4):
        a(f'    v_mul_u32_u24 v{20+k}, s23, v{8+k}')
    for k in range(4):
        a(f'    v_lshrrev_b32 v{20+k}, 21, v{20+k}      ; bucket')
    for k in range(4):
        a(f'    v_lshlrev_b32 v{24+k}, 2, v{20+k}       ; bucket*4')
    for k in range(4):
        a(f'    ds_add_rtn_u32 v{28+k}, v{24+k}, v5 offset:{L1_HIST}')
    for k in range(4):
        a(f'    v_mul_u32_u24 v{20+k}, {NPB*4}, v{20+k}')
    for k in range(4):
        a(f'    v_lshlrev_b32 v{8+k}, 2, v{8+k}')
    for k in range(4):
        a(f'    v_sub_u32 v{20+k}, v{8+k}, v{20+k}')
    a('    s_waitcnt vmcnt(0)')
    a('    v_lshl_or_b32 v32, v16, 16, v12')
    a('    s_mov_b32 s24, 0xffff0000')
    a('    v_and_or_b32 v33, v16, s24, v13')
    a('    v_lshl_or_b32 v34, v17, 16, v14')
    a('    v_and_or_b32 v35, v17, s24, v15')
    a('    s_waitcnt lgkmcnt(0)')
    stamp(a, 3)
    lds_sync(a, 'K1_SYNC2', L1_SYNC+4, 10, 19, 5, 25+40, 27)
    stamp(a, 4)
    a(f'    ds_read_b128 v[40:43], v6 offset:{L1_HIST}')
    a('    s_waitcnt lgkmcnt(0)')
    a('    v_add_u32 v44, v40, v41                ; h0+h1')
    a('    v_add_u32 v45, v44, v42')
    a('    v_add_u32 v46, v45, v43                ; sum4')
    a('    v_mov_b32 v47, v46')
    dpp_scan(a, 47)
    a('    v_sub_u32 v48, v47, v46')
    a('    v_add_u32 v49, v48, v40')
    a('    v_add_u32 v50, v48, v44')
    a('    v_add_u32 v51, v48, v45')
    a(f'    ds_write_b128 v6, v[48:51] offset:{L1_START}')
    a('    s_waitcnt lgkmcnt(0)')
    for k in range(4):
        a(f'    ds_read_b32 v{56+k}, v{24+k} offset:{L1_START}')
    for k in range(4):
        a(f'    v_lshl_or_b32 v{52+k}, v{40+k}, 16, v{48+k}')
    a('    s_waitcnt lgkmcnt(0)')
    for k in range(4):
        a(f'    v_add_u32 v{56+k}, v{56+k}, v{28+k}      ; position')
    for k in range(4):
        a(f'    ds_write_b8 v{56+k}, v{20+k} offset:{L1_ST8}')
        a(f'    v_lshlrev_b32 v{60+k}, 2, v{56+k}')
    for k in range(4):
        a(f'    ds_write_b32 v{60+k}, v{32+k} offset:{L1_ST32}')
    a('    s_waitcnt lgkmcnt(0)')
    stamp(a, 5)
    lds_sync(a, 'K1_SYNC3', L1_SYNC+8, 10, 19, 5, 25+40, 27)
    a(f'    ds_read_b128 v[8:11], v3 offset:{L1_ST32}')
    a('    v_lshrrev_b32 v4, 2, v3                ; t*4')
    a(f'    ds_read_b32 v12, v4 offset:{L1_ST8}')
    a('    s_waitcnt lgkmcnt(0)')
    a('    v_perm_b32 v21, v9, v12, s40           ; d1 = L0 r1.b0 r1.b1 r1.b2')
    a('    v_perm_b32 v22, v10, v9, s41           ; r1.b3 . r2.b0 r2.b1')
    a('    v_perm_b32 v23, v11, v10, s43          ; r2.b2 r2.b3 . r3.b0')
    a('    v_mov_b32 v20, v8')
    a('    v_perm_b32 v22, v12, v22, s42          ; d2 : insert L1')
    a('    v_perm_b32 v23, v12, v23, s44          ; d3 : insert L2')
    a('    v_perm_b32 v24, v12, v11, s45          ; d4 = r3.b1 r3.b2 r3.b3 L3')
    a(f'    buffer_store_dwordx4 v[20:23], v7, s[32:35], s25 offen {RECST}')
    a(f'    buffer_store_dword v24, v7, s[32:35], s25 offen offset:16 {RECST}')
    a('    s_cmp_eq_u32 s20, 0')
    a('    s_cbranch_scc0 K1_SFIN')
    for k in range(4):
        a(f'    buffer_store_dword v{52+k}, v18, s[36:39], s26 offen offset:{1024*k} {DESCST}')
    a.label('K1_SFIN')
    if STAMP:
        stamp(a, 6)
        a('    s_waitcnt vmcnt(0)')
        stamp(a, 7); stamp(a, 1, True)
        stamp_flush(a, 20, 2, 0, 6)
    a('    s_endpgm')
    a.label('K1_TABLE')
    a('    s_load_dwordx2 s[40:41], s[0:1], 40   ; w_b')
    a('    s_load_dwordx2 s[42:43], s[0:1], 64   ; w_v')
    a('    s_load_dwordx2 s[44:45], s[0:1], 0    ; x')
    if K1PF:
        a('    s_load_dwordx2 s[60:61], s[0:1], 32   ; w_a')
        a('    s_load_dwordx4 s[64:67], s[0:1], 48   ; w_c, w_u')
        a('    s_load_dwordx2 s[62:63], s[0:1], 72   ; out')
    a('    s_mov_b32 s21, s20                     ; tw' if TFIRST else '    s_sub_u32 s21, s20, 10                 ; tw')
    a('    v_mov_b32 v5, 0')
    a('    v_lshlrev_b32 v6, 2, v2')
    a('    s_cmp_eq_u32 s21, 0')
    a('    s_cbranch_scc0 K1_T_NOZ')
    masked(a, 'v_cmp_gt_u32 vcc, 4, v2', 30)
    a(f'    ds_write_b32 v6, v5 offset:{L1_SYNC}')
    unmask(a, 30)
    a.label('K1_T_NOZ')
    a('    s_lshr_b32 s22, s21, 1')
    a('    s_lshl_b32 s22, s22, 4                 ; 16*rt')
    a('    v_and_b32 v4, 15, v2')
    a('    v_add_u32 v4, s22, v4')
    a('    v_lshrrev_b32 v5, 4, v2                ; g')
    a('    v_lshlrev_b32 v6, 7, v4')
    a('    v_lshl_add_u32 v6, v5, 4, v6')
    a(f'    s_mul_i32 s24, s2, {NPB*128}')
    a('    v_lshlrev_b32 v7, 4, v2                ; lane*16')
    a('    v_bfe_u32 v8, v2, 4, 1')
    a('    v_lshlrev_b32 v8, 1, v8')
    a('    v_and_b32 v9, 7, v2')
    a('    v_xor_b32 v8, v8, v9')
    a('    v_lshrrev_b32 v9, 3, v2')
    a('    v_lshlrev_b32 v9, 7, v9                ; (lane>>3)*128')
    a('    s_waitcnt lgkmcnt(0)')
    for i in range(3):
        a(f'    s_add_u32 s26, s21, {6*i}              ; p')
        a('    s_cmp_lt_u32 s26, 8')
        a('    s_cselect_b32 s48, s40, s42')
        a('    s_cselect_b32 s49, s41, s43')
        a('    s_mov_b32 s50, 8192')
        a('    s_mov_b32 s51, 0x00020000')
        a('    s_and_b32 s27, s26, 7')
        a('    s_lshl_b32 s27, s27, 10')
        a('    s_cmp_lt_u32 s26, 16')
        a(f'    s_cselect_b32 s27, s27, {1<<20}')
        a(f'    buffer_load_dwordx4 v[{48+4*i}:{51+4*i}], v7, s[48:51], s27 offen')
    srd(a, 36, 44, 45, N*128)
    a('    buffer_load_dwordx4 v[24:27], v6, s[36:39], s24 offen')
    a('    buffer_load_dwordx4 v[28:31], v6, s[36:39], s24 offen offset:64')
    if K1PF:
        a('    s_cmp_eq_u32 s21, 5')
        a('    s_cbranch_scc0 K1_T_NOPF')
        a('    v_lshlrev_b32 v60, 8, v2')
        a('    v_lshlrev_b32 v61, 7, v2')
        a('    global_load_dword v62, v61, s[60:61]')
        a('    global_load_dword v62, v61, s[66:67]')
        a('    v_mov_b32 v63, 0')
        a('    global_load_dword v62, v63, s[64:65]')
        a(f'    s_mul_i32 s26, s2, {NPB*128}')
        a('    v_mov_b32 v63, s26')
        a('    global_load_dword v62, v63, s[62:63]')
        srd(a, 52, 6, 7, WS_T + T_BYTES, off=0)
        a(f'    s_mul_i32 s26, s2, {REC_STRIDE}')
        a('    v_mov_b32 v63, s26')
        a('    buffer_load_dword v62, v63, s[52:55], 0 offen')
        a(f'    s_mul_i32 s26, s2, {NPB*256}')
        a(f'    s_add_u32 s26, s26, {WS_T}')
        a('    v_mov_b32 v63, s26')
        a('    buffer_load_dword v62, v63, s[52:55], 0 offen')
        a(f'    s_mul_i32 s26, s2, {DESC_STRIDE}')
        a(f'    s_add_u32 s26, s26, {WS_DESC}')
        a('    v_mov_b32 v63, s26')
        a('    buffer_load_dword v62, v63, s[52:55], 0 offen')
        a.label('K1_T_NOPF')
    a('    s_barrier')
    if K1PF: a.label('K1_T_PFJOIN0')
    srd(a, 44, 6, 7, T_BYTES, off=WS_T)
    for i in range(3):
        a(f'    s_add_u32 s26, s21, {6*i}              ; p')
        a('    s_and_b32 s27, s26, 1')
        a('    s_lshl_b32 s27, s27, 2')
        a(f'    v_xor_b32 v{18+i}, s27, v8')
        a(f'    v_lshl_add_u32 v{18+i}, v{18+i}, 4, v9')
        a('    s_lshl_b32 s27, s26, 10                ; m*8192 + (p&7)*1024 = p*1024')
        a(f'    v_add_u32 v{18+i}, s27, v{18+i}')
    a('    s_and_b32 s23, s21, 1                  ; half')
    a('    v_bfe_u32 v12, v2, 2, 2                ; r')
    a('    v_lshl_add_u32 v13, v5, 3, v12         ; rho')
    a('    v_lshlrev_b32 v13, 7, v13')
    a('    v_and_b32 v14, 1, v2')
    a('    v_lshl_add_u32 v13, v14, 3, v13        ; + (c&1)*8')
    a('    v_bfe_u32 v14, v2, 1, 1                ; c>>1')
    a('    v_lshrrev_b32 v12, 1, v12')
    a('    v_and_b32 v15, 1, v5                   ; g&1')
    a('    v_lshlrev_b32 v15, 1, v15')
    a('    v_or_b32 v12, v12, v15                 ; swz/2')
    a('    s_lshl_b32 s25, s23, 1')
    a('    v_xor_b32 v15, s25, v12')
    a('    v_lshl_or_b32 v15, v15, 1, v14')
    a('    v_lshl_add_u32 v16, v15, 4, v13')
    a('    s_add_u32 s25, s25, 1')
    a('    v_xor_b32 v15, s25, v12')
    a('    v_lshl_or_b32 v15, v15, 1, v14')
    a('    v_lshl_add_u32 v17, v15, 4, v13')
    a('    v_lshlrev_b32 v21, 8, v4')
    a('    v_lshl_add_u32 v21, v5, 4, v21')
    a('    s_lshl_b32 s25, s23, 7')
    a(f'    s_mul_i32 s26, s2, {NPB*256}')
    a('    s_add_u32 s25, s25, s26')
    a('    v_add_u32 v21, s25, v21')
    a(f'    v_cmp_gt_u32 vcc, {NPB}, v4')
    a(f'    v_mov_b32 v22, {1<<30}')
    a(f'    s_mov_b32 s27, {hex(f2u(-LOG2E))}')
    a('    s_mov_b32 s28, 0xffff0000')
    a('    v_cndmask_b32 v9, v22, v21, vcc')
    a('    s_mov_b32 s29, 0x80000000')
    a('    v_mov_b32 v10, 0')
    a('    v_mov_b32 v11, 1')
    if K1PF:
        a('    s_cmp_eq_u32 s21, 5')
        a('    s_cbranch_scc0 K1_T_W2')
        a('    s_waitcnt vmcnt(9)')
        a('    s_branch K1_T_W9')
        a.label('K1_T_W2')
    a('    s_waitcnt vmcnt(2)')
    if K1PF: a.label('K1_T_W9')
    stamp(a, 1)
    for i in range(3):
        if i == 2:
            a('    s_cmp_lt_u32 s21, 4')
            a('    s_cbranch_scc0 K1_T_ST2')
        a(f'    ds_write_b128 v{18+i}, v[{48+4*i}:{51+4*i}] offset:{L1_W}')
    a.label('K1_T_ST2')
    lds_sync(a, 'K1_T_SPIN', L1_SYNC, 6, 10, 11, 12, 26)
    stamp(a, 3)
    order = [(jj, ks, m) for jj in range(2) for ks in range(2) for m in range(2)]
    for i, (jj, ks, m) in enumerate(order):
        b = 64 + 4*i
        off = L1_W + m*8192 + ks*32*128
        a(f'    ds_read_b64_tr_b16 v[{b}:{b+1}], v{16+jj} offset:{off}')
        a(f'    ds_read_b64_tr_b16 v[{b+2}:{b+3}], v{16+jj} offset:{off+512}')
    if K1PF:
        a('    s_cmp_eq_u32 s21, 5')
        a('    s_cbranch_scc0 K1_T_X0')
        a('    s_waitcnt vmcnt(7)')
        a('    s_branch K1_T_XOK')
        a.label('K1_T_X0')
    a('    s_waitcnt vmcnt(0)')
    if K1PF: a.label('K1_T_XOK')
    for i, (jj, ks, m) in enumerate(order):
        b = 64 + 4*i
        a(f'    s_waitcnt lgkmcnt({min(15, 2*(7-i))})')
        acc = 32 + 8*m + 4*jj
        x = 24 + 4*ks
        c = '0' if ks == 0 else f'v[{acc}:{acc+3}]'
        a(f'    v_mfma_f32_16x16x32_bf16 v[{acc}:{acc+3}], v[{b}:{b+3}], v[{x}:{x+3}], {c}')
    stamp(a, 4)
    a('    s_nop 4')
    for jj in range(2):
        R = range(4)
        p = lambda r: 32 + 4*jj + r
        q = lambda r: 40 + 4*jj + r
        t = lambda r: 10 + r
        if jj == 1: a('    s_nop 2')
        for r in R: a(f'    v_mul_f32 v{p(r)}, s27, v{p(r)}')
        for r in R: a(f'    v_cvt_f16_f32 v{p(r)}, v{p(r)}')
        for r in R: a(f'    v_and_b32 v{t(r)}, 0x7fffffff, v{q(r)}')
        for r in R: a(f'    v_and_b32 v{p(r)}, 0xffff, v{p(r)}')
        for r in R: a(f'    v_sub_u32 v{t(r)}, v{t(r)}, v{p(r)}')
        for r in R: a(f'    v_add_u32 v{t(r)}, 0x8000, v{t(r)}')
        for r in R: a(f'    v_max_i32 v{t(r)}, 0, v{t(r)}')
        for r in R: a(f'    v_and_or_b32 v{t(r)}, v{t(r)}, s28, v{p(r)}')
        for r in R: a(f'    v_and_or_b32 v{p(r)}, v{q(r)}, s29, v{t(r)}')
        a(f'    buffer_store_dwordx4 v[{32+4*jj}:{35+4*jj}], v9, s[44:47], 0 offen offset:{jj*64} {TST}')
    a('    s_cmp_eq_u32 s2, 0')
    a('    s_cbranch_scc0 K1_TFIN')
    a('    s_cmp_eq_u32 s21, 0')
    a('    s_cbranch_scc0 K1_TFIN')
    a('    v_mov_b32 v10, 0x7c00')
    a(f'    v_lshlrev_b32 v11, 2, v2')
    a(f'    v_add_u32 v11, {N*256}, v11')
    a(f'    buffer_store_dword v10, v11, s[44:47], 0 offen {TST}')
    a.label('K1_TFIN')
    stamp(a, 5)
    if STAMP:
        stamp(a, 6)
        a('    s_waitcnt vmcnt(0)')
        stamp(a, 7); stamp(a, 1, True)
        if STAMP >= 3:
            a('    s_waitcnt lgkmcnt(0)')
            a(f'    s_mov_b32 s{ST0+4}, s{ST0+16}')
        else: stamp(a, 2)
        if TFIRST: a('    s_add_u32 s20, s20, 10')
        stamp_flush(a, 20, 2, 0, 6)
    a.label('K1_END')
    a('    s_endpgm')

CAP = 4096
TS = 272
L2_CNT = 0; L2_FLG = 256
L2_LIST = 512
L2_SLOT = L2_LIST + CAP*4
L2_W = L2_SLOT
L2_EAT = L2_SLOT + 56*512; L2_AT = L2_EAT + 48*TS; L2_UT = L2_AT + 48*TS
XS = 144
L2_XT = L2_UT + 48*TS
K2_LDS = L2_XT + 48*XS
U = 4
TPF = int(env('TPF', '1'))
PFPOS = int(env('PFPOS', '1'))
PGT = int(env('PGT', '0'))
PFN = int(env('PFN', '40'))
PRT = [int(x) for x in env('PRT', '4,4,4').split(',')]

def gen_k2(a):
    sB = 2; sWAVE = 3
    SRD_DESC = 12; SRD_REC = 16; SRD_T = 20; SRD_W = 24; SRD_X = 28; SRD_OUT = 32; SRD_WC = 36
    sMODE = 40; sPASS = 41
    sG0 = 42; sG1 = 43; sGEND = 44; sLEFT = 45; sNODE = 46; sT0 = 47; sT1 = 48; sSAFE = 49; sGT = 50; sR = 51
    sEX = 52; sEAB = 54; sPR = 55; sPQ = 56; sLVL = 57; sSLOT = 58; sNR = 59; sPQ2 = 60; sXT = 61; sJ = 58
    sM = 64
    vLANE = 1
    vWC = 4; vEA = 8; vDEN = 12; vNUM = 16; vT = 20; vDAT = 24; vP = 40; vEV = 48
    vSA = 50; vACC = 51; vEAA = 52; vGS = 53; vQ16 = 54; vNG = 55
    vDA = 56; vNA = 60
    vX = 64
    vFL = 66
    vGE = 67
    vXO = 68
    vR = 76
    vB = 84
    vRK = 92
    vLA = 100
    vA = 108
    vCNT = 118; vRO = 119; vI = 120; vRM = 121; vTRA = 122; vXRA = 123; vROW = 121; vPFA = 51
    vLC = 12
    vPF = 16
    vXO2 = vXO
    SRD_LOC = 8; SRD_PF = 24
    vW = 24; vOP = 24; vAC = 40
    vOP2 = 76; vAC2 = 92

    a('.p2align 8')
    a('.type k2_kernel,@function')
    a.label('k2_kernel')
    a(f'    s_cmp_ge_u32 s2, {NB}')
    a('    s_cbranch_scc1 K2_END')
    stamp(a, 0); stamp(a, 0, True)
    if CPF:
        a('    s_getpc_b64 s[30:31]')
        a.label('K2_PC')
        a('    v_lshlrev_b32 v124, 7, v0')
        a('    v_cmp_gt_u32 vcc, CODE_END-K2_PC, v124')
        a('    s_and_saveexec_b64 s[28:29], vcc')
        a('    s_cbranch_execz K2_NOCPF')
        a('    global_load_dword v125, v124, s[30:31]')
        a.label('K2_NOCPF')
        a('    s_mov_b64 exec, s[28:29]')
    if XMAP:
        a(f'    s_and_b32 s{sT0}, s2, 7')
        a(f'    s_lshr_b32 s{sJ}, s2, 3')
        a(f'    s_mul_i32 s{sT1}, s{sT0}, 31')
        a(f'    s_min_u32 s{sT0}, s{sT0}, 2')
        a(f'    s_add_u32 s{sT1}, s{sT1}, s{sT0}')
        a(f'    s_add_u32 s2, s{sT1}, s{sJ}')
    else:
        a(f'    s_lshr_b32 s{sJ}, s2, 3')
    a('    s_load_dwordx2 s[6:7], s[0:1], 88      ; ws')
    a('    s_load_dwordx2 s[4:5], s[0:1], 0       ; x')
    a('    s_load_dwordx2 s[8:9], s[0:1], 32      ; w_a')
    a('    s_load_dwordx4 s[60:63], s[0:1], 48    ; w_c, w_u')
    a('    s_load_dwordx2 s[10:11], s[0:1], 72    ; out')
    a(f'    v_and_b32 v{vLANE}, 63, v0')
    a(f'    v_lshrrev_b32 v{vA}, 6, v0')
    a(f'    v_and_b32 v{vQ16}, 15, v0')
    a(f'    v_readfirstlane_b32 s{sWAVE}, v{vA}')
    a(f'    v_lshlrev_b32 v{vQ16}, 4, v{vQ16}      ; q*16')
    a(f'    v_and_b32 v{vA}, 0x3fc, v0             ; (t>>2)*4')
    a(f'    v_cmp_gt_u32 vcc, {NC*4}, v0')
    a(f'    v_mov_b32 v{vA+8}, {1<<30}')
    a(f'    s_lshl_b32 s{sT0}, s{sB}, 10')
    a(f'    v_cndmask_b32 v{vA}, v{vA+8}, v{vA}, vcc')
    for i in range(4):
        a(f'    v_mov_b32 v{vDA+i}, 0')
        a(f'    v_mov_b32 v{vNA+i}, 0')
    masked(a, 'v_cmp_gt_u32 vcc, 4, v0', sEX)
    a(f'    v_lshlrev_b32 v{vA+5}, 2, v0')
    a(f'    ds_write_b32 v{vA+5}, v{vDA} offset:{L2_FLG}')
    unmask(a, sEX)
    a(f'    s_mov_b32 s{sMODE}, 0')
    a(f'    s_mov_b32 s{sPASS}, 0')
    a(f'    v_mov_b32 v{vEV}, 0')
    a(f'    v_mov_b32 v{vEV+1}, 0')
    for k in range(U):
        a(f'    v_mov_b32 v{vP+2*k}, {N}')
        a(f'    v_mov_b32 v{vP+2*k+1}, v{vQ16}')
    a(f'    v_lshrrev_b32 v{vA+1}, 5, v{vLANE}')
    a(f'    v_lshl_add_u32 v{vFL}, v{vA+1}, 8, v{vQ16}')
    a(f'    v_bfe_u32 v{vA+1}, v{vLANE}, 4, 1')
    a(f'    v_lshl_add_u32 v{vFL}, v{vA+1}, 3, v{vFL}')
    a.label('K2_PASS')
    for i in range(4):
        a(f'    v_mov_b32 v{vA+6+i}, {N}')
    a(f'    v_lshlrev_b32 v{vA+5}, 4, v0')
    a(f'    ds_write_b128 v{vA+5}, v[{vA+6}:{vA+9}] offset:{L2_LIST}')
    masked(a, 'v_cmp_gt_u32 vcc, 64, v0', sEX)
    a(f'    v_lshlrev_b32 v{vA+4}, 2, v0')
    a(f'    v_mov_b32 v{vA+3}, 0')
    a(f'    ds_write_b32 v{vA+4}, v{vA+3} offset:{L2_CNT}')
    unmask(a, sEX)
    a(f'    s_cmp_eq_u32 s{sMODE}, 0')
    a('    s_cbranch_scc0 K2_SLOWPARAM')
    a('    s_waitcnt lgkmcnt(0)')
    srd(a, SRD_DESC, 6, 7, NB*DESC_STRIDE, off=WS_DESC)
    a(f'    buffer_load_dword v{vCNT}, v{vA}, s[{SRD_DESC}:{SRD_DESC+3}], s{sT0} offen')
    a(f'    s_cmp_lt_u32 s{sWAVE}, 8')
    a(f'    s_cselect_b32 s{SRD_W}, s8, s62')
    a(f'    s_cselect_b32 s{SRD_W+1}, s9, s63')
    a(f'    s_mov_b32 s{SRD_W+2}, 8192')
    a(f'    s_mov_b32 s{SRD_W+3}, 0x00020000')
    srd(a, SRD_X, 4, 5, N*128)
    srd(a, SRD_WC, 60, 61, 128)
    a(f'    v_and_b32 v{vA+1}, 511, v0')
    a(f'    v_lshlrev_b32 v{vA+1}, 4, v{vA+1}')
    a(f'    buffer_load_dwordx4 v[{vW}:{vW+3}], v{vA+1}, s[{SRD_W}:{SRD_W+3}], 0 offen')
    a(f'    v_lshlrev_b32 v{vA+4}, 4, v0')
    a(f'    v_cmp_gt_u32 vcc, 384, v0')
    a(f'    v_mov_b32 v{vA+3}, {1<<30}')
    a(f'    s_mul_i32 s{sT1}, s{sB}, {NPB*128}')
    a(f'    v_cndmask_b32 v{vA+4}, v{vA+3}, v{vA+4}, vcc')
    a(f'    buffer_load_dwordx4 v[{vXO}:{vXO+3}], v{vA+4}, s[{SRD_X}:{SRD_X+3}], s{sT1} offen')
    a(f'    v_lshrrev_b32 v{vA+7}, 1, v{vQ16}      ; q*8 (wc)')
    a(f'    buffer_load_dwordx2 v[{vWC}:{vWC+1}], v{vA+7}, s[{SRD_WC}:{SRD_WC+3}], 0 offen')
    if PGT:
        srd(a, SRD_REC, 6, 7, WS_T + T_BYTES, off=0)
        a(f'    v_lshlrev_b32 v{vPF+1}, 21, v{vLANE}')
        a(f'    buffer_load_dword v{vPF+1}, v{vPF+1}, s[{SRD_REC}:{SRD_REC+3}], 0 offen')
    a('    s_barrier')
    srd(a, SRD_OUT, 10, 11, N*128)
    srd(a, SRD_REC, 6, 7, NC*REC_STRIDE + 64, off=WS_REC)
    srd(a, SRD_T, 6, 7, 0, off=WS_T, stride=256, nrec=N+1)
    a(f'    v_lshrrev_b32 v{vA}, 2, v0             ; c')
    a(f'    v_mul_u32_u24 v{vRO}, {REC_STRIDE}, v{vA}')
    a(f'    v_and_b32 v{vI}, 3, v0')
    a(f'    v_lshlrev_b32 v{vI}, 2, v{vI}')
    a(f'    v_mad_u32_u24 v{vRO}, v{vI}, 5, v{vRO}')
    a(f'    s_mov_b32 s{sT1}, 16')
    a(f'    s_waitcnt vmcnt({3+PGT})                      ; descriptor')
    stamp(a, 1)
    a(f'    v_and_b32 v{vA+1}, 0xffff, v{vCNT}      ; start')
    a(f'    v_lshrrev_b32 v{vCNT}, 16, v{vCNT}      ; cnt')
    a(f'    v_mad_u32_u24 v{vRO}, v{vA+1}, 5, v{vRO}')
    a('    s_branch K2_PARAMDONE')
    a.label('K2_SLOWPARAM')
    a(f'    s_lshl_b32 s{sT0}, s{sB}, 10')
    a(f'    s_lshl_b32 s{sT1}, s{sPASS}, 2')
    a(f'    s_add_u32 s{sT0}, s{sT0}, s{sT1}')
    a(f'    v_mov_b32 v{vA}, 0')
    a(f'    buffer_load_dword v{vCNT}, v{vA}, s[{SRD_DESC}:{SRD_DESC+3}], s{sT0} offen')
    a(f'    s_mul_i32 s{sT0}, s{sPASS}, {REC_STRIDE}')
    a('    s_waitcnt vmcnt(0) lgkmcnt(0)')
    a('    s_barrier')
    a(f'    v_and_b32 v{vA+1}, 0xffff, v{vCNT}')
    a(f'    v_lshlrev_b32 v{vI}, 2, v0')
    a(f'    v_add_u32 v{vA+1}, v{vA+1}, v{vI}')
    a(f'    v_mul_u32_u24 v{vRO}, 5, v{vA+1}')
    a(f'    v_add_u32 v{vRO}, s{sT0}, v{vRO}')
    a(f'    v_lshrrev_b32 v{vCNT}, 16, v{vCNT}')
    a(f'    s_mov_b32 s{sT1}, 4096')
    a.label('K2_PARAMDONE')
    a(f'    v_sub_u32 v{vRM}, v{vCNT}, v{vI}')
    a(f'    s_mul_i32 s{sT0}, s{sT1}, 5')
    a(f'    s_mov_b32 s{sNR}, 0')
    for r in range(2):
        m0 = sM + 8*r
        if r == 1:
            a(f'    v_subrev_u32 v{vRM}, s{sT1}, v{vRM}')
        for h in range(4):
            a(f'    v_cmp_gt_i32 s[{m0+2*h}:{m0+2*h+1}], v{vRM}, {h}' if h else f'    v_cmp_lt_i32 s[{m0}:{m0+1}], 0, v{vRM}')
        a(f'    s_cmp_eq_u64 s[{m0}:{m0+1}], 0')
        a(f'    s_cbranch_scc1 K2_LD_DONE')
        a(f'    s_mov_b64 exec, s[{m0}:{m0+1}]')
        a(f'    buffer_load_dwordx4 v[{vR+4*r}:{vR+4*r+3}], v{vRO}, s[{SRD_REC}:{SRD_REC+3}], 0 offen')
        a(f'    buffer_load_dword v{vLC+r}, v{vRO}, s[{SRD_REC}:{SRD_REC+3}], 0 offen offset:16')
        a(f'    s_mov_b64 exec, -1')
        a(f'    s_mov_b32 s{sNR}, {r+1}')
        if r < 1:
            a(f'    v_add_u32 v{vRO}, s{sT0}, v{vRO}')
    a.label('K2_LD_DONE')
    a(f'    s_or_b32 s{sT0}, s{sMODE}, s{sPASS}')
    a(f'    s_cmp_eq_u32 s{sT0}, 0')
    a('    s_cbranch_scc0 K2_LATER_PASS')
    a(f'    v_lshrrev_b32 v{vA+8}, 3, v0')
    a(f'    v_mul_u32_u24 v{vA+8}, {XS}, v{vA+8}')
    a(f'    v_and_b32 v{vA+7}, 7, v0')
    a(f'    v_lshl_add_u32 v{vA+8}, v{vA+7}, 4, v{vA+8}')
    a(f'    v_add_u32 v{vA+8}, {L2_XT}, v{vA+8}')
    NPF = 1 if TPF else 0
    a(f'    v_bfe_u32 v{vA+1}, v0, 4, 1')
    a(f'    v_bfe_u32 v{vA+2}, v0, 6, 1')
    a(f'    v_lshlrev_b32 v{vA+1}, 1, v{vA+1}')
    a(f'    v_lshl_or_b32 v{vA+1}, v{vA+2}, 2, v{vA+1}')
    a(f'    v_and_b32 v{vA+2}, 7, v0')
    a(f'    v_xor_b32 v{vA+1}, v{vA+1}, v{vA+2}')
    a(f'    v_lshrrev_b32 v{vA+2}, 3, v0')
    a(f'    v_lshlrev_b32 v{vA+2}, 7, v{vA+2}')
    a(f'    v_lshl_add_u32 v{vA+9}, v{vA+1}, 4, v{vA+2}')
    a(f'    v_lshrrev_b32 v{vA+3}, 4, v{vLANE}     ; g')
    a(f'    v_bfe_u32 v{vA}, v{vLANE}, 2, 2        ; r')
    a(f'    v_lshl_add_u32 v{vA+1}, v{vA+3}, 3, v{vA}')
    a(f'    v_lshlrev_b32 v{vA+1}, 7, v{vA+1}')
    a(f'    v_and_b32 v{vA+2}, 1, v{vLANE}')
    a(f'    v_lshl_add_u32 v{vA+1}, v{vA+2}, 3, v{vA+1}')
    a(f'    v_lshrrev_b32 v{vA}, 1, v{vA}')
    a(f'    v_and_b32 v{vA+2}, 1, v{vA+3}')
    a(f'    v_lshl_or_b32 v{vA}, v{vA+2}, 1, v{vA}     ; swz/2')
    a(f'    s_and_b32 s{sT0}, s{sWAVE}, 3')
    a(f'    v_xor_b32 v{vA}, s{sT0}, v{vA}')
    a(f'    v_bfe_u32 v{vA+2}, v{vLANE}, 1, 1')
    a(f'    v_lshl_or_b32 v{vA}, v{vA}, 1, v{vA+2}')
    a(f'    v_lshl_add_u32 v{vTRA}, v{vA}, 4, v{vA+1}')
    a(f'    s_lshr_b32 s{sT1}, s{sWAVE}, 2')
    a(f'    s_lshl_b32 s{sT1}, s{sT1}, 4')
    a(f'    v_and_b32 v{vA+2}, 15, v{vLANE}')
    a(f'    v_add_u32 v{vROW}, s{sT1}, v{vA+2}     ; row')
    a(f'    v_mul_u32_u24 v{vA+1}, {XS}, v{vROW}')
    a(f'    v_lshl_add_u32 v{vA+1}, v{vA+3}, 4, v{vA+1}')
    a(f'    v_add_u32 v{vXRA}, {L2_XT}, v{vA+1}')
    a(f'    v_mul_u32_u24 v{vA+4}, {TS}, v{vROW}')
    a(f'    v_lshl_add_u32 v{vA+4}, v{vA+3}, 4, v{vA+4}')
    a(f'    s_lshl_b32 s{sT0}, s{sT0}, 6')
    a(f'    s_add_u32 s{sT0}, s{sT0}, {L2_EAT}')
    a(f'    v_add_u32 v{vEAA}, s{sT0}, v{vA+4}')
    if TPF:
        srd(a, SRD_PF, 6, 7, T_BYTES, off=WS_T)
        a(f'    s_mul_i32 s{sT0}, s{sJ}, {640*128}')
        a(f'    s_mul_i32 s{sT1}, s{sWAVE}, {40*128}')
        a(f'    s_add_u32 s{sJ}, s{sT0}, s{sT1}')
        a(f'    v_lshlrev_b32 v{vA+3}, 7, v{vLANE}')
        a(f'    v_cmp_gt_u32 vcc, {PFN}, v{vLANE}')
        a(f'    v_mov_b32 v{vA+4}, {1<<30}')
        a('    s_nop 0')
        a(f'    v_cndmask_b32 v{vPFA}, v{vA+4}, v{vA+3}, vcc')
    a.label('K2_LATER_PASS')
    a(f'    v_mov_b32 v{vA+2}, 1')
    a('    s_waitcnt vmcnt(0)')
    if TPF and PFPOS == 1:
        a(f'    s_or_b32 s{sT0}, s{sMODE}, s{sPASS}')
        a(f'    s_cmp_eq_u32 s{sT0}, 0')
        a('    s_cbranch_scc0 K2_RANKS')
        a(f'    buffer_load_dword v{vPF}, v{vPFA}, s[{SRD_PF}:{SRD_PF+3}], s{sJ} offen')
    a.label('K2_RANKS')
    stamp(a, 2)
    for r in range(2):
        a(f'    s_cmp_le_u32 s{sNR}, {r}')
        a('    s_cbranch_scc1 K2_RK_DONE')
        d = vR + 4*r
        a(f'    v_and_b32 v{vLA+4*r}, 0xff, v{d+1}')
        a(f'    v_bfe_u32 v{vLA+4*r+1}, v{d+2}, 8, 8')
        a(f'    v_bfe_u32 v{vLA+4*r+2}, v{d+3}, 16, 8')
        a(f'    v_lshrrev_b32 v{vLA+4*r+3}, 24, v{vLC+r}')
        for h in range(4):
            k = 4*r + h
            a(f'    s_mov_b64 exec, s[{sM+2*k}:{sM+2*k+1}]')
            a(f'    ds_add_rtn_u32 v{vRK+k}, v{vLA+k}, v{vA+2} offset:{L2_CNT}')
        a('    s_mov_b64 exec, -1')
        a(f'    v_alignbyte_b32 v{d+1}, v{d+2}, v{d+1}, 1')
        a(f'    v_alignbyte_b32 v{d+2}, v{d+3}, v{d+2}, 2')
        a(f'    v_alignbyte_b32 v{d+3}, v{vLC+r}, v{d+3}, 3')
    a.label('K2_RK_DONE')
    masked(a, f'v_cmp_lt_u32 vcc, 32, v{vCNT}', sEX, 'K2_NOOVF')
    a(f'    v_mov_b32 v{vA+3}, 0')
    a(f'    ds_write_b32 v{vA+3}, v{vA+2} offset:{L2_FLG}')
    unmask(a, sEX, 'K2_NOOVF')
    a(f'    s_or_b32 s{sT0}, s{sMODE}, s{sPASS}')
    a(f'    s_cmp_eq_u32 s{sT0}, 0')
    a('    s_cbranch_scc0 K2_NOWST')
    a(f'    ds_write_b128 v{vA+9}, v[{vW}:{vW+3}] offset:{L2_W}')
    a(f'    s_cmp_lt_u32 s{sWAVE}, 6')
    a('    s_cbranch_scc0 K2_NOXST')
    a(f'    ds_write_b128 v{vA+8}, v[{vXO}:{vXO+3}]')
    a.label('K2_NOXST')
    a(f'    s_mov_b32 s{sT0}, {hex(f2u(-LOG2E))}')
    a(f'    v_and_b32 v{vWC+3}, 0xffff0000, v{vWC+1}')
    a(f'    v_lshlrev_b32 v{vWC+2}, 16, v{vWC+1}')
    a(f'    v_and_b32 v{vWC+1}, 0xffff0000, v{vWC}')
    a(f'    v_lshlrev_b32 v{vWC}, 16, v{vWC}')
    for k in range(4):
        a(f'    v_mul_f32 v{vWC+k}, s{sT0}, v{vWC+k}')
    a.label('K2_NOWST')
    a(f'    v_lshlrev_b32 v{vA+1}, 2, v{vLANE}')
    a(f'    v_mov_b32 v{vA}, 0')
    a('    s_waitcnt lgkmcnt(0)')
    stamp(a, 3)
    a('    s_barrier')
    stamp(a, 4)
    if TPF and PFPOS == 0:
        a(f'    s_or_b32 s{sT0}, s{sMODE}, s{sPASS}')
        a(f'    s_cmp_eq_u32 s{sT0}, 0')
        a('    s_cbranch_scc0 K2_NOPF')
        a(f'    buffer_load_dword v{vPF}, v{vPFA}, s[{SRD_PF}:{SRD_PF+3}], s{sJ} offen')
        a.label('K2_NOPF')
    a(f'    ds_read_b32 v{vNG}, v{vA+1} offset:{L2_CNT}')
    a(f'    ds_read_b32 v{vA+4}, v{vA} offset:{L2_FLG}')
    a('    s_waitcnt lgkmcnt(1)')
    a(f'    v_add_u32 v{vNG}, 3, v{vNG}')
    a(f'    v_lshrrev_b32 v{vNG}, 2, v{vNG}')
    a(f'    v_mov_b32 v{vGE}, v{vNG}')
    dpp_scan(a, vGE)
    a('    s_waitcnt lgkmcnt(0)')
    a(f'    v_readlane_b32 s{sGT}, v{vGE}, {NPB-1}')
    a(f'    v_sub_u32 v{vGS}, v{vGE}, v{vNG}')
    a(f'    v_readfirstlane_b32 s{sT0}, v{vA+4}')
    a(f'    v_lshlrev_b32 v{vA+6}, 4, v{vGS}')
    a(f'    v_cmp_lt_u32 vcc, {NPB}, v{vLANE}')
    a(f'    s_add_u32 s{sR}, s{sGT}, 15')
    a(f'    s_lshr_b32 s{sR}, s{sR}, 4')
    a(f'    v_cndmask_b32 v{vGS}, v{vGS}, -1, vcc')
    a(f'    s_cmp_eq_u32 s{sMODE}, 0')
    a('    s_cbranch_scc0 K2_NOSWITCH')
    a(f'    s_cmp_gt_u32 s{sGT}, {(CAP - 64)//4}')
    a(f'    s_cselect_b32 s{sT1}, 1, 0')
    a(f'    s_or_b32 s{sT0}, s{sT0}, s{sT1}')
    a(f'    s_cmp_eq_u32 s{sT0}, 0')
    a('    s_cbranch_scc1 K2_NOSWITCH')
    a(f'    s_mov_b32 s{sNR}, 0')
    a(f'    s_mov_b32 s{sGT}, 0')
    a(f'    s_mov_b32 s{sR}, 0')
    a(f'    s_mov_b32 s{sMODE}, 2')
    a.label('K2_NOSWITCH')
    for r in range(2):
        a(f'    s_cmp_le_u32 s{sNR}, {r}')
        a('    s_cbranch_scc1 K2_LK_DONE')
        for h in range(4):
            k = 4*r + h
            a(f'    ds_bpermute_b32 v{vB+k}, v{vLA+k}, v{vA+6}')
    a.label('K2_LK_DONE')
    a('    s_waitcnt lgkmcnt(0)')
    for r in range(2):
        a(f'    s_cmp_le_u32 s{sNR}, {r}')
        a('    s_cbranch_scc1 K2_SC_DONE')
        for h in range(4):
            k = 4*r + h
            a(f'    s_mov_b64 exec, s[{sM+2*k}:{sM+2*k+1}]')
            a(f'    v_lshl_add_u32 v{vB+k}, v{vRK+k}, 2, v{vB+k}')
            a(f'    ds_write_b32 v{vB+k}, v{vR+k} offset:{L2_LIST}')
    a.label('K2_SC_DONE')
    a('    s_mov_b64 exec, -1')
    a(f'    s_mul_i32 s{sG0}, s{sR}, s{sWAVE}')
    a(f'    s_add_u32 s{sG1}, s{sG0}, s{sR}')
    a(f'    s_min_u32 s{sG1}, s{sG1}, s{sGT}')
    a(f'    v_lshrrev_b32 v{vSA}, 4, v{vLANE}')
    a(f'    v_lshlrev_b32 v{vSA}, 2, v{vSA}         ; slot*4')
    a(f'    s_lshl_b32 s{sT0}, s{sG0}, 4')
    a(f'    v_add_u32 v{vSA}, s{sT0}, v{vSA}')
    a(f'    v_mov_b32 v{vA}, 0')
    a('    s_waitcnt lgkmcnt(0)')
    a('    s_barrier')
    stamp(a, 5)

    def tload(k):
        d = vDAT + 4*k
        a(f'    buffer_load_dwordx4 v[{d}:{d+3}], v[{vP+2*k}:{vP+2*k+1}], s[{SRD_T}:{SRD_T+3}], 0 idxen offen')

    a(f'    s_cmp_ge_u32 s{sG0}, s{sG1}')
    a('    s_cbranch_scc1 K2_NOGATH')
    for k in range(U):
        a(f'    ds_read_u16 v{vP+2*k}, v{vSA} offset:{L2_LIST + 16*k}')
    a(f'    ds_read_u16_d16_hi v{vEV}, v{vSA} offset:{L2_LIST + 2}')
    a('    s_waitcnt lgkmcnt(0)')
    for k in range(U):
        tload(k)
    a(f'    ds_read_u16 v{vP}, v{vSA} offset:{L2_LIST + 16*U}')
    a.label('K2_NOGATH')
    a(f'    s_cmp_eq_u32 s{sPASS}, 0')
    a('    s_cbranch_scc0 K2_NOTAB')
    a(f'    s_cmp_eq_u32 s{sMODE}, 1')
    a('    s_cbranch_scc1 K2_NOTAB')
    a(f'    s_cmp_lt_u32 s{sWAVE}, 12')
    a('    s_cbranch_scc0 K2_NOMFMA')
    a(f'    ds_read_b128 v[{vXO}:{vXO+3}], v{vXRA}')
    a(f'    ds_read_b128 v[{vXO+4}:{vXO+7}], v{vXRA} offset:64')
    order = [(m, ks) for ks in range(2) for m in range(2)]
    for i, (m, ks) in enumerate(order):
        b = vOP2 + 4*i
        off = L2_W + m*8192 + ks*32*128
        a(f'    ds_read_b64_tr_b16 v[{b}:{b+1}], v{vTRA} offset:{off}')
        a(f'    ds_read_b64_tr_b16 v[{b+2}:{b+3}], v{vTRA} offset:{off+512}')
    for i, (m, ks) in enumerate(order):
        b = vOP2 + 4*i
        a(f'    s_waitcnt lgkmcnt({2*(3-i)})')
        acc = vAC2 + 4*m; x = vXO2 + 4*ks
        c = '0' if ks == 0 else f'v[{acc}:{acc+3}]'
        a(f'    v_mfma_f32_16x16x32_bf16 v[{acc}:{acc+3}], v[{b}:{b+3}], v[{x}:{x+3}], {c}')
    a(f'    s_mov_b32 s{sT0}, {hex(f2u(-LOG2E))}')
    a(f'    s_mov_b32 s{sT1}, {hex(f2u(60.0))}')
    a('    s_nop 6')
    for i in range(4):
        a(f'    v_mul_f32 v{vAC2+i}, s{sT0}, v{vAC2+i}')
    a(f'    ds_write_b128 v{vEAA}, v[{vAC2+4}:{vAC2+7}] offset:{L2_UT-L2_EAT}')
    a(f'    ds_write_b128 v{vEAA}, v[{vAC2}:{vAC2+3}] offset:{L2_AT-L2_EAT}')
    for i in range(4):
        a(f'    v_exp_f32 v{vOP2+i}, v{vAC2+i}')
    a(f'    v_max3_f32 v{vA+5}, |v{vAC2}|, |v{vAC2+1}|, |v{vAC2+2}|')
    a(f'    v_max_f32 v{vA+5}, v{vA+5}, |v{vAC2+3}|')
    a(f'    ds_write_b128 v{vEAA}, v[{vOP2}:{vOP2+3}]')
    a(f'    v_cmp_nle_f32 vcc, v{vA+5}, s{sT1}')
    a(f'    v_cmp_gt_u32 s[{sEX}:{sEX+1}], {NPB}, v{vROW}')
    a(f'    s_and_b64 vcc, vcc, s[{sEX}:{sEX+1}]')
    a(f'    s_and_saveexec_b64 s[{sEX}:{sEX+1}], vcc')
    a('    s_cbranch_execz K2_GUARD_OK')
    a(f'    v_mov_b32 v{vA+5}, 1')
    a(f'    v_mov_b32 v{vA+7}, 0')
    a(f'    ds_write_b32 v{vA+7}, v{vA+5} offset:{L2_FLG+4}')
    unmask(a, sEX, 'K2_GUARD_OK')
    a.label('K2_NOMFMA')
    a(f'    v_mov_b32 v{vA}, 0')
    a('    s_waitcnt lgkmcnt(0)')
    a('    s_barrier')
    a(f'    ds_read_b32 v{vA+5}, v{vA} offset:{L2_FLG+4}')
    a('    s_waitcnt lgkmcnt(0)')
    a(f'    v_readfirstlane_b32 s{sSAFE}, v{vA+5}')
    a.label('K2_NOTAB')
    a(f'    s_cmp_ge_u32 s{sG0}, s{sG1}')
    a('    s_cbranch_scc1 K2_MAIN_DONE')
    if PRIO:
        a(f'    s_add_u32 s{sT0}, s{sR}, 3')
        a(f'    s_lshr_b32 s{sT0}, s{sT0}, 2            ; iterations')
        for n, reg in zip(PRT, (sPR, sPQ, sPQ2)):
            a(f'    s_mul_i32 s{reg}, s{sT0}, {n}')
            a(f'    s_lshr_b32 s{reg}, s{reg}, 4')
            a(f'    s_add_u32 s{reg}, s{reg}, 1')
        a(f'    s_mov_b32 s{sLVL}, 3')
        a('    s_setprio 3')
    a(f'    s_mov_b32 s{sGEND}, s{sG0}')
    a(f'    s_cmp_eq_u32 s{sSAFE}, 0')
    a(f'    s_mov_b32 s{sEAB}, {L2_AT}')
    a(f'    s_cselect_b32 s{sEAB}, {L2_EAT}, s{sEAB}')
    a('    s_cbranch_scc0 K2S_ENTER')
    a('    s_branch K2F_ENTER')

    def next_node():
        a(f'    v_cmp_ge_u32 vcc, s{sGEND}, v{vGS}')
        a(f'    s_bcnt1_i32_b64 s{sT0}, vcc')
        a(f'    s_sub_u32 s{sNODE}, s{sT0}, 1')
        a(f'    v_readlane_b32 s{sT1}, v{vGS}, s{sT0}')
        a(f'    s_mul_i32 s{sT0}, s{sNODE}, {TS}')
        a(f'    s_add_u32 s{sT0}, s{sT0}, s{sEAB}')
        a(f'    v_add_u32 v{vEAA}, s{sT0}, v{vQ16}')
        a(f'    ds_read_b128 v[{vEA}:{vEA+3}], v{vEAA}')
        a(f'    s_min_u32 s{sT1}, s{sT1}, s{sG1}')
        a(f'    s_sub_u32 s{sLEFT}, s{sT1}, s{sGEND}')
        a(f'    s_sub_u32 s{sLEFT}, s{sLEFT}, 1')
        a(f'    s_mov_b32 s{sGEND}, s{sT1}')

    def set_slot():
        a(f'    s_add_u32 s{sSLOT}, s{sNODE}, s{sWAVE}')
        a(f'    s_lshl_b32 s{sSLOT}, s{sSLOT}, 9')

    def flush():
        a(f'    v_add_u32 v{vACC}, s{sSLOT}, v{vFL}')
        for i in range(4):
            a(f'    v_permlane32_swap_b32 v{vDEN+i}, v{vNUM+i}')
        a(f'    v_pk_add_f32 v[{vDEN}:{vDEN+1}], v[{vDEN}:{vDEN+1}], v[{vNUM}:{vNUM+1}]')
        a(f'    v_pk_add_f32 v[{vDEN+2}:{vDEN+3}], v[{vDEN+2}:{vDEN+3}], v[{vNUM+2}:{vNUM+3}]')
        a('    s_nop 1')
        a(f'    v_permlane16_swap_b32 v{vDEN}, v{vDEN+2}')
        a(f'    v_permlane16_swap_b32 v{vDEN+1}, v{vDEN+3}')
        a(f'    v_pk_add_f32 v[{vNUM}:{vNUM+1}], v[{vDEN}:{vDEN+1}], v[{vDEN+2}:{vDEN+3}]')
        a(f'    ds_write_b64 v{vACC}, v[{vNUM}:{vNUM+1}] offset:{L2_SLOT}')

    def step(k, safe, init):
        d = vDAT + 4*k
        ev = vEV + (k & 1); evn = vEV + ((k+1) & 1)
        pn = vP + 2*((k+1) % U)
        for i in range(4):
            a(f'    v_fma_mix_f32 v{vT+i}, v{ev}, v{vWC+i}, v{d+i} op_sel:[0,0,0] op_sel_hi:[0,0,1]')
        a(f'    ds_read_u16_d16_hi v{evn}, v{vSA} offset:{L2_LIST + 16*(k+1) + 2}')
        a(f'    ds_read_u16 v{pn}, v{vSA} offset:{L2_LIST + 16*(k+1+U)}')
        if init and safe:
            a('    s_waitcnt lgkmcnt(3)')
        if safe:
            a(f'    v_pk_add_f32 v[{vT}:{vT+1}], v[{vT}:{vT+1}], v[{vEA}:{vEA+1}]')
            a(f'    v_pk_add_f32 v[{vT+2}:{vT+3}], v[{vT+2}:{vT+3}], v[{vEA+2}:{vEA+3}]')
        for i in range(4):
            a(f'    v_exp_f32 v{vT+i}, v{vT+i}')
        if init and not safe:
            a('    s_waitcnt lgkmcnt(3)')
        if safe:
            a(f'    v_pk_add_f32 v[{vT}:{vT+1}], v[{vT}:{vT+1}], 1.0 op_sel_hi:[1,0]')
            a(f'    v_pk_add_f32 v[{vT+2}:{vT+3}], v[{vT+2}:{vT+3}], 1.0 op_sel_hi:[1,0]')
        else:
            a(f'    v_pk_fma_f32 v[{vT}:{vT+1}], v[{vEA}:{vEA+1}], v[{vT}:{vT+1}], 1.0 op_sel_hi:[1,1,0]')
            a(f'    v_pk_fma_f32 v[{vT+2}:{vT+3}], v[{vEA+2}:{vEA+3}], v[{vT+2}:{vT+3}], 1.0 op_sel_hi:[1,1,0]')
        if init:
            for i in range(4):
                a(f'    v_rcp_f32 v{vDEN+i}, v{vT+i}')
            a('    s_nop 0')
            a(f'    v_pk_mul_f32 v[{vNUM}:{vNUM+1}], v[{vDEN}:{vDEN+1}], v[{d}:{d+1}]')
            a(f'    v_pk_mul_f32 v[{vNUM+2}:{vNUM+3}], v[{vDEN+2}:{vDEN+3}], v[{d+2}:{d+3}]')
        else:
            for i in range(4):
                a(f'    v_rcp_f32 v{vT+i}, v{vT+i}')
            a(f'    v_pk_add_f32 v[{vDEN}:{vDEN+1}], v[{vDEN}:{vDEN+1}], v[{vT}:{vT+1}]')
            a(f'    v_pk_add_f32 v[{vDEN+2}:{vDEN+3}], v[{vDEN+2}:{vDEN+3}], v[{vT+2}:{vT+3}]')
            a(f'    v_pk_fma_f32 v[{vNUM}:{vNUM+1}], v[{vT}:{vT+1}], v[{d}:{d+1}], v[{vNUM}:{vNUM+1}]')
            a(f'    v_pk_fma_f32 v[{vNUM+2}:{vNUM+3}], v[{vT+2}:{vT+3}], v[{d+2}:{d+3}], v[{vNUM+2}:{vNUM+3}]')
        tload(k)
        if k == U-1:
            a(f'    v_add_u32 v{vSA}, {16*U}, v{vSA}')

    def loopback(pfx):
        if PRIO:
            a(f'    s_sub_u32 s{sPR}, s{sPR}, 1')
            a(f'    s_cmp_lg_u32 s{sPR}, 0')
            a(f'    s_cbranch_scc1 {pfx}_STEP0')
            a(f'    s_branch {pfx}_PRIO')
        else:
            a(f'    s_branch {pfx}_STEP0')

    for pfx, safe in (('K2F', False), ('K2S', True)):
        a.label(f'{pfx}_ENTER')
        next_node()
        set_slot()
        a('    s_waitcnt vmcnt(3) lgkmcnt(0)')
        step(0, safe, True)
        a(f'    s_branch {pfx}_STEP1')
        for k in range(U):
            a.label(f'{pfx}_STEP{k}')
            a(f'    s_waitcnt vmcnt({U-1}) lgkmcnt(0)')
            a(f'    s_sub_u32 s{sLEFT}, s{sLEFT}, 1')
            a(f'    s_cbranch_scc1 {pfx}_FLUSH{k}')
            step(k, safe, False)
            if k == U-1:
                loopback(pfx)
        for k in range(U):
            a.label(f'{pfx}_FLUSH{k}')
            a(f'    s_cmp_ge_u32 s{sGEND}, s{sG1}')
            a(f'    s_cbranch_scc1 K2_LAST')
            next_node()
            flush()
            set_slot()
            step(k, safe, True)
            if k == U-1:
                loopback(pfx)
            else:
                a(f'    s_branch {pfx}_STEP{k+1}')
        if PRIO:
            a.label(f'{pfx}_PRIO')
            a(f'    s_sub_u32 s{sLVL}, s{sLVL}, 1')
            a(f'    s_cmp_eq_u32 s{sLVL}, 2')
            a(f'    s_cbranch_scc1 {pfx}_PRIO2')
            a(f'    s_cmp_eq_u32 s{sLVL}, 1')
            a(f'    s_cbranch_scc1 {pfx}_PRIO1')
            a(f'    s_mov_b32 s{sPR}, 0x7fffffff')
            a('    s_setprio 0')
            a(f'    s_branch {pfx}_STEP0')
            a.label(f'{pfx}_PRIO2')
            a(f'    s_mov_b32 s{sPR}, s{sPQ}')
            a('    s_setprio 2')
            a(f'    s_branch {pfx}_STEP0')
            a.label(f'{pfx}_PRIO1')
            a(f'    s_mov_b32 s{sPR}, s{sPQ2}')
            a('    s_setprio 1')
            a(f'    s_branch {pfx}_STEP0')
    a.label('K2_LAST')
    flush()
    a.label('K2_MAIN_DONE')
    if PRIO: a('    s_setprio 0')
    a(f'    s_cmp_eq_u32 s{sMODE}, 2')
    a('    s_cbranch_scc0 K2_NOABORT')
    a(f'    s_mov_b32 s{sMODE}, 1')
    a(f'    s_mov_b32 s{sPASS}, 0')
    a('    s_waitcnt vmcnt(0) lgkmcnt(0)')
    a('    s_barrier')
    a('    s_branch K2_PASS')
    a.label('K2_NOABORT')
    a(f'    v_cvt_f32_u32 v{vA}, s{sR}')
    a(f'    v_cvt_f32_u32 v{vA+1}, v{vGS}')
    a(f'    v_rcp_f32 v{vA}, v{vA}')
    a(f'    v_cvt_f32_u32 v{vA+2}, v{vGE}')
    a(f'    v_add_f32 v{vA+1}, 0.5, v{vA+1}')
    a(f'    v_add_f32 v{vA+2}, -0.5, v{vA+2}')
    a(f'    v_mul_f32 v{vA+1}, v{vA+1}, v{vA}')
    a(f'    v_mul_f32 v{vA+2}, v{vA+2}, v{vA}')
    a(f'    v_cvt_u32_f32 v{vA+1}, v{vA+1}          ; wlo')
    a(f'    v_cvt_u32_f32 v{vA+2}, v{vA+2}          ; whi')
    a(f'    v_sub_u32 v{vA+2}, v{vA+2}, v{vA+1}')
    a(f'    v_add_u32 v{vA+2}, 1, v{vA+2}')
    a(f'    v_cmp_eq_u32 vcc, 0, v{vNG}')
    a(f'    v_add_u32 v{vA+1}, v{vA+1}, v{vLANE}')
    a(f'    v_and_b32 v{vA+1}, 0xffff, v{vA+1}')
    a(f'    v_cndmask_b32 v{vA+2}, v{vA+2}, 0, vcc')
    a(f'    v_lshl_or_b32 v{vA+3}, v{vA+2}, 16, v{vA+1}')
    a(f'    v_lshrrev_b32 v{vA}, 4, v0')
    a(f'    v_and_b32 v{vA+4}, 63, v{vA}')
    a(f'    v_lshlrev_b32 v{vA+4}, 2, v{vA+4}')
    a(f'    ds_bpermute_b32 v{vA+1}, v{vA+4}, v{vA+3}')
    a(f'    v_mul_u32_u24 v{vA+5}, {TS}, v{vA}')
    a('    s_waitcnt vmcnt(0) lgkmcnt(0)')
    a(f'    v_cmp_gt_u32 vcc, {NPB*16}, v0')
    a(f'    v_lshrrev_b32 v{vA+2}, 16, v{vA+1}')
    a(f'    v_and_b32 v{vA+1}, 0xffff, v{vA+1}')
    a(f'    v_cndmask_b32 v{vA+2}, 0, v{vA+2}, vcc')
    a(f'    v_lshl_add_u32 v{vA+1}, v{vA+1}, 9, v{vQ16}')
    stamp(a, 6)
    a('    s_barrier')
    a.label('K2_FOLD')
    masked(a, f'v_cmp_lt_u32 vcc, 0, v{vA+2}', sEX, 'K2_FOLD_DONE')
    a(f'    ds_read_b128 v[{vDEN}:{vDEN+3}], v{vA+1} offset:{L2_SLOT}')
    a(f'    ds_read_b128 v[{vNUM}:{vNUM+3}], v{vA+1} offset:{L2_SLOT+256}')
    a(f'    v_add_u32 v{vA+1}, 512, v{vA+1}')
    a(f'    v_add_u32 v{vA+2}, -1, v{vA+2}')
    a('    s_waitcnt lgkmcnt(1)')
    a(f'    v_pk_add_f32 v[{vDA}:{vDA+1}], v[{vDA}:{vDA+1}], v[{vDEN}:{vDEN+1}]')
    a(f'    v_pk_add_f32 v[{vDA+2}:{vDA+3}], v[{vDA+2}:{vDA+3}], v[{vDEN+2}:{vDEN+3}]')
    a('    s_waitcnt lgkmcnt(0)')
    a(f'    v_pk_add_f32 v[{vNA}:{vNA+1}], v[{vNA}:{vNA+1}], v[{vNUM}:{vNUM+1}]')
    a(f'    v_pk_add_f32 v[{vNA+2}:{vNA+3}], v[{vNA+2}:{vNA+3}], v[{vNUM+2}:{vNUM+3}]')
    unmask(a, sEX)
    a('    s_branch K2_FOLD')
    unmask(a, sEX, 'K2_FOLD_DONE')
    a(f'    s_cmp_eq_u32 s{sMODE}, 0')
    a('    s_cbranch_scc1 K2_EPI')
    a(f'    s_add_u32 s{sPASS}, s{sPASS}, 1')
    a(f'    s_cmp_lt_u32 s{sPASS}, {NC}')
    a('    s_cbranch_scc0 K2_EPI')
    a('    s_barrier')
    a('    s_branch K2_PASS')
    a.label('K2_EPI')
    a(f'    s_mov_b32 s{sXT}, {L2_XT}')
    masked(a, f'v_cmp_gt_u32 vcc, {NPB*16}, v0', sEX, 'K2_FIN')
    a(f'    v_add_u32 v{vA+5}, v{vA+5}, v{vQ16}')
    a(f'    v_add_u32 v{vA+5}, {L2_UT}, v{vA+5}')
    a(f'    ds_read_b128 v[{vDEN}:{vDEN+3}], v{vA+5}')
    a(f'    v_lshrrev_b32 v{vA+6}, 4, v0')
    a(f'    v_mul_u32_u24 v{vA+6}, {XS}, v{vA+6}')
    a(f'    v_lshrrev_b32 v{vA+7}, 1, v{vQ16}')
    a(f'    v_add3_u32 v{vA+6}, v{vA+6}, v{vA+7}, s{sXT}')
    a(f'    ds_read_b64 v[{vX}:{vX+1}], v{vA+6}')
    a(f'    s_mov_b32 s{sT0}, {hex(f2u(1e-6))}')
    a('    s_waitcnt lgkmcnt(0)')
    a(f'    v_lshlrev_b32 v{vT}, 16, v{vX}')
    a(f'    v_and_b32 v{vT+1}, 0xffff0000, v{vX}')
    a(f'    v_lshlrev_b32 v{vT+2}, 16, v{vX+1}')
    a(f'    v_and_b32 v{vT+3}, 0xffff0000, v{vX+1}')
    for i in range(4):
        a(f'    v_add_f32 v{vDA+i}, s{sT0}, v{vDA+i}')
    for i in range(4):
        a(f'    v_rcp_f32 v{vDA+i}, v{vDA+i}')
    a('    s_waitcnt lgkmcnt(0)')
    for i in range(4):
        a(f'    v_fma_f32 v{vNA+i}, v{vNA+i}, v{vDA+i}, v{vDEN+i}    ; z = U + agg')
    for i in range(4):
        a(f'    v_mul_f32 v{vDEN+i}, 0, v{vNA+i}                     ; 0*z')
        a(f'    v_cmp_lt_f32 vcc, 0, v{vNA+i}')
        a('    s_nop 1')
        a(f'    v_cndmask_b32 v{vNA+i}, v{vDEN+i}, v{vNA+i}, vcc')
        a(f'    v_add_f32 v{vNA+i}, v{vNA+i}, v{vT+i}')
    a(f'    v_cvt_pk_bf16_f32 v{vDEN}, v{vNA}, v{vNA+1}')
    a(f'    v_cvt_pk_bf16_f32 v{vDEN+1}, v{vNA+2}, v{vNA+3}')
    a(f'    s_mul_i32 s{sT1}, s{sB}, {NPB*128}')
    a(f'    v_lshlrev_b32 v{vA+1}, 3, v0')
    a(f'    buffer_store_dwordx2 v[{vDEN}:{vDEN+1}], v{vA+1}, s[{SRD_OUT}:{SRD_OUT+3}], s{sT1} offen {OUTST}')
    a.label('K2_FIN')
    if STAMP:
        a('    s_mov_b64 exec, -1')
        a('    s_waitcnt vmcnt(0)')
    stamp(a, 7); stamp(a, 1, True)
    stamp_flush(a, sWAVE, sB, 1, 6)
    a.label('K2_END')
    a('    s_endpgm')
    a.label('CODE_END')

def gen_k3(a):
    i, j = [int(x) for x in env('INTERVAL', '0,0').split(',')]
    inv = {0: True, 2: True}
    a('.globl k3_kernel')
    a('.p2align 8')
    a('.type k3_kernel,@function')
    a.label('k3_kernel')
    a('    s_cmp_ge_u32 s2, 1')
    a('    s_cbranch_scc1 K3_END')
    a('    s_load_dwordx2 s[4:5], s[0:1], 80')
    a('    s_waitcnt lgkmcnt(0)')
    a('    v_mov_b32 v1, 0')
    a(f'    global_load_dword v2, v1, s[4:5] offset:{4*i} sc1')
    a(f'    global_load_dword v3, v1, s[4:5] offset:{4*j} sc1')
    a('    s_waitcnt vmcnt(0)')
    if inv.get(i): a('    v_not_b32 v2, v2')
    if inv.get(j): a('    v_not_b32 v3, v3')
    a('    v_sub_u32 v3, v3, v2')
    a('    s_nop 1')
    a('    v_readfirstlane_b32 s8, v3')
    a('    s_nop 3')
    a('    s_mul_i32 s8, s8, 10')
    a('    s_min_u32 s8, s8, 50000')
    a('    s_memrealtime s[10:11]')
    a('    s_waitcnt lgkmcnt(0)')
    a.label('K3_SPIN')
    a('    s_memrealtime s[12:13]')
    a('    s_waitcnt lgkmcnt(0)')
    a('    s_sub_u32 s9, s12, s10')
    a('    s_cmp_lt_u32 s9, s8')
    a('    s_cbranch_scc1 K3_SPIN')
    a.label('K3_END')
    a('    s_endpgm')

def kd(a, name, vgpr, sgpr):
    a(f'.amdhsa_kernel {name}')
    a(f'  .amdhsa_next_free_vgpr {vgpr}')
    a(f'  .amdhsa_next_free_sgpr {sgpr}')
    a(f'  .amdhsa_accum_offset {((vgpr+3)//4)*4}')
    a('  .amdhsa_group_segment_fixed_size 0')
    a('  .amdhsa_kernarg_size 96')
    a('  .amdhsa_user_sgpr_count 2')
    a('  .amdhsa_user_sgpr_kernarg_segment_ptr 1')
    a('  .amdhsa_system_sgpr_workgroup_id_x 1')
    a('  .amdhsa_float_denorm_mode_32 3')
    a('.end_amdhsa_kernel')

def main(out):
    a = Asm()
    a(f'; @launch kernel=k1_kernel grid=({K1_GRID},1,1) block=(1024,1,1) lds={K1_LDS}')
    a(f'; @launch kernel=k2_kernel grid=({NB},1,1) block=(1024,1,1) lds={K2_LDS}')
    if STAMP == 4: a('; @launch kernel=k3_kernel grid=(1,1,1) block=(64,1,1) lds=0')
    a('.amdgcn_target "amdgcn-amd-amdhsa--gfx950"')
    a('.text')
    a('.globl k1_kernel')
    gen_k1(a)
    a('.globl k2_kernel')
    gen_k2(a)
    if STAMP == 4: gen_k3(a)
    a('.section .rodata,"a"')
    a('.p2align 6')
    kd(a, 'k1_kernel', 96, 102 if STAMP else 72)
    a('.p2align 6')
    kd(a, 'k2_kernel', 128, 102 if STAMP else 80)
    if STAMP == 4:
        a('.p2align 6')
        kd(a, 'k3_kernel', 8, 32)
    a.l = [x for x in a.l if x is not None]
    open(out, 'w').write(a.text())

if __name__ == '__main__':
    main(sys.argv[1] if len(sys.argv) > 1 else 'standalone__edge_featured_mpnn_gatedgcn__graph.s')
```

```python
import sys, os, struct
def env(n, d): return os.environ.get(n, d)

N = 10000; E = 640000
NPB = 40; NB = 250; EPC = 2560; NC = 250
LOG2E = 1.4426950408889634
WS_REC  = 0
REC_STRIDE = EPC*5
WS_DESC = 3407872
DESC_STRIDE = 1024
WS_T    = 4194304
T_BYTES = (N+1)*256

STAMP = int(env('STAMP', '0'))
K1ST = env('K1ST', 'sc1')
PRIO = int(env('PRIO', '1'))
TFIRST = int(env('TFIRST', '1'))
WS_STAMP = 128 << 20
ST0 = 80

def f2u(f): return struct.unpack('<I', struct.pack('<f', f))[0]

class Asm:
    def __init__(self): self.l = []
    def __call__(self, s=''):
        for line in s.split('\n'): self.l.append(line)
    def label(self, n): self.l.append(n + ':')
    def text(self): return '\n'.join(self.l) + '\n'

DETAIL = int(env('DETAIL', '0'))
def dstamp(a, i):
    if DETAIL: stamp(a, i, False, True)
def stamp(a, i, real=False, force=False):
    if DETAIL and not force and not real and getattr(a, 'k2', False) and i in (1, 2, 3): return
    if STAMP:
        r = ST0 + 2*(8+i if real else i)
        a(f"    {'s_memrealtime' if (real or STAMP >= 3) else 's_memtime'} s[{r}:{r+1}]")
def stamp_flush(a, wave_sgpr, wg_sgpr, kern, ws_lo):
    if not STAMP: return
    a('    s_waitcnt lgkmcnt(0)')
    a('    s_mov_b64 exec, 1')
    a('    v_mov_b32 v2, 0')
    if STAMP == 4:
        lab = f'STSKIP{kern}_{len(a.l)}'
        a(f"    s_and_b32 s14, s{wg_sgpr}, {31 if kern == 0 else int(env('SAMP2', '31'))}")
        a('    s_cmp_eq_u32 s14, 0')
        a(f'    s_cbranch_scc0 {lab}')
        a(f'    s_cmp_eq_u32 s{wave_sgpr}, 0')
        a(f'    s_cbranch_scc0 {lab}')
        a('    s_load_dwordx2 s[12:13], s[0:1], 80')
        a('    s_waitcnt lgkmcnt(0)')
        a(f'    s_add_u32 s12, s12, {1024 if kern == 0 else 512}')
        a('    s_addc_u32 s13, s13, 0')
        slots = [(0, 8, True), (1, 9, False), (7, 4, False), (8, 2, False)] if kern == 0 else \
                [(2, 8, True), (3, 4, False), (4, 5, False), (5, 6, False), (6, 9, False), (9, 2, False)]
        for slot, st, inv in slots:
            a(f'    v_mov_b32 v3, s{ST0+2*st}')
            if inv: a('    v_not_b32 v3, v3')
            a(f'    global_atomic_umax v2, v3, s[12:13] offset:{4*slot}')
        a('    s_waitcnt vmcnt(0)')
        a.label(lab)
        return
    a(f'    s_add_u32 s12, s{ws_lo}, {WS_STAMP + kern*(4<<20)}')
    a(f'    s_addc_u32 s13, s{ws_lo+1}, 0')
    a(f'    s_mov_b32 s14, {4<<20}')
    a('    s_mov_b32 s15, 0x00020000')
    a(f'    s_lshl_b32 s16, s{wg_sgpr}, 4')
    a(f'    s_add_u32 s16, s16, s{wave_sgpr}')
    a(f'    s_lshl_b32 s16, s16, 6')
    for i in range(8):
        a(f'    v_mov_b32 v3, s{ST0+2*i}')
        a(f'    buffer_store_dword v3, v2, s[12:15], s16 offen offset:{4*i}')
    for i in range(2):
        a(f'    v_mov_b32 v3, s{ST0+2*(8+i)}')
        a(f'    buffer_store_dword v3, v2, s[12:15], s16 offen offset:{4*(10+i)}')
    a('    s_waitcnt vmcnt(0)')

def srd(a, sreg, lo, hi, nbytes, off=0, stride=0, nrec=None):
    if off:
        a(f'    s_add_u32 s{sreg}, s{lo}, {off}')
        a(f'    s_addc_u32 s{sreg+1}, s{hi}, 0')
    else:
        a(f'    s_mov_b32 s{sreg}, s{lo}')
        a(f'    s_mov_b32 s{sreg+1}, s{hi}')
    if stride:
        a(f'    s_and_b32 s{sreg+1}, s{sreg+1}, 0xffff')
        a(f'    s_or_b32 s{sreg+1}, s{sreg+1}, {stride << 16}')
        a(f'    s_mov_b32 s{sreg+2}, {nrec}')
    else:
        a(f'    s_mov_b32 s{sreg+2}, {nbytes}')
    a(f'    s_mov_b32 s{sreg+3}, 0x00020000')

def dpp_scan(a, v):
    for sh in (1, 2, 4, 8):
        a('    s_nop 1')
        a(f'    v_add_u32_dpp v{v}, v{v}, v{v} row_shr:{sh} row_mask:0xf bank_mask:0xf')
    a('    s_nop 1')
    a(f'    v_add_u32_dpp v{v}, v{v}, v{v} row_bcast:15 row_mask:0xa bank_mask:0xf')
    a('    s_nop 1')
    a(f'    v_add_u32_dpp v{v}, v{v}, v{v} row_bcast:31 row_mask:0xc bank_mask:0xf')

def masked(a, cond, exreg, skip=None):
    a(f'    {cond}')
    a(f'    s_and_saveexec_b64 s[{exreg}:{exreg+1}], vcc')
    if skip: a(f'    s_cbranch_execz {skip}')
def unmask(a, exreg, skip=None):
    if skip: a.label(skip)
    a(f'    s_mov_b64 exec, s[{exreg}:{exreg+1}]')

def lds_sync(a, name, off, n, vzero, vone, vt, st):
    a('    s_waitcnt lgkmcnt(0)')
    a('    s_mov_b64 exec, 1')
    a(f'    ds_add_u32 v{vzero}, v{vone} offset:{off}')
    a('    s_mov_b64 exec, -1')
    a.label(name)
    a(f'    ds_read_b32 v{vt}, v{vzero} offset:{off}')
    a('    s_waitcnt lgkmcnt(0)')
    a(f'    v_readfirstlane_b32 s{st}, v{vt}')
    a(f'    s_cmp_lt_u32 s{st}, {n}')
    a(f'    s_cbranch_scc1 {name}')

K1_GRID = NC
L1_HIST = 0; L1_START = 1024; L1_SYNC = 2048
L1_ST32 = 2304; L1_ST8 = L1_ST32 + EPC*4; L1_W = 15360
K1_LDS = L1_W + 16384
K1PF = int(env('K1PF', '0'))
CPF = int(env('CPF', '1'))
XMAP = int(env('XMAP', '1'))
DESCST = env('DESCST', '')
OUTST = env('OUTST', '')
RECST = env('RECST', K1ST)
TST = env('TST', K1ST)
TFIRST = int(env('TFIRST', '1'))

def gen_k1(a):
    a('.p2align 8')
    a('.type k1_kernel,@function')
    a.label('k1_kernel')
    a(f'    s_cmp_ge_u32 s2, {K1_GRID}')
    a('    s_cbranch_scc1 K1_END')
    stamp(a, 0); stamp(a, 0, True)
    if CPF:
        a('    s_getpc_b64 s[30:31]')
        a.label('K1_PC')
        a('    v_lshlrev_b32 v90, 7, v0')
        lim = 'CODE_END-K1_PC' if CPF >= 2 else 'k2_kernel-K1_PC'
        a(f'    v_cmp_gt_u32 vcc, {lim}, v90')
        a('    s_and_saveexec_b64 s[28:29], vcc')
        a('    s_cbranch_execz K1_NOCPF')
        a('    global_load_dword v91, v90, s[30:31]')
        a.label('K1_NOCPF')
        a('    s_mov_b64 exec, s[28:29]')
    if XMAP:
        a('    s_and_b32 s20, s2, 7')
        a('    s_lshr_b32 s21, s2, 3')
        a('    s_mul_i32 s22, s20, 31')
        a('    s_min_u32 s20, s20, 2')
        a('    s_add_u32 s22, s22, s20')
        a('    s_add_u32 s2, s22, s21')
    a('    v_lshrrev_b32 v1, 6, v0')
    a('    s_load_dwordx4 s[8:11], s[0:1], 16')
    a('    v_readfirstlane_b32 s20, v1')
    a('    s_load_dwordx2 s[4:5], s[0:1], 8      ; e_attr')
    a('    s_load_dwordx2 s[6:7], s[0:1], 88     ; ws')
    a('    v_and_b32 v2, 63, v0                   ; lane')
    if TFIRST:
        a('    s_cmp_lt_u32 s20, 6')
        a('    s_cbranch_scc1 K1_TABLE')
        a('    v_subrev_u32 v0, 384, v0')
        a('    s_sub_u32 s20, s20, 6')
    else:
        a('    s_cmp_ge_u32 s20, 10')
        a('    s_cbranch_scc1 K1_TABLE')
    a('    v_mov_b32 v5, 0')
    a('    v_lshlrev_b32 v6, 2, v0               ; t*4')
    masked(a, 'v_cmp_gt_u32 vcc, 256, v0', 30)
    a(f'    ds_write_b32 v6, v5 offset:{L1_HIST}')
    unmask(a, 30)
    a('    v_lshlrev_b32 v3, 4, v0               ; t*16')
    a('    v_lshlrev_b32 v4, 3, v0               ; t*8')
    a(f'    s_mul_i32 s21, s2, {EPC*4}')
    a(f'    s_mul_i32 s22, s2, {EPC*2}')
    a('    s_mov_b32 s23, 52429')
    a('    s_waitcnt lgkmcnt(0)')
    srd(a, 12, 10, 11, E*4)
    a('    buffer_load_dwordx4 v[8:11], v3, s[12:15], s21 offen     ; dst x4')
    srd(a, 16, 8, 9, E*4)
    a('    buffer_load_dwordx4 v[12:15], v3, s[16:19], s21 offen    ; src x4')
    srd(a, 24, 4, 5, E*2)
    a('    buffer_load_dwordx2 v[16:17], v4, s[24:27], s22 offen')
    srd(a, 32, 6, 7, NC*REC_STRIDE, off=WS_REC)
    srd(a, 36, 6, 7, NB*DESC_STRIDE, off=WS_DESC)
    a('    v_lshlrev_b32 v6, 4, v2                ; lane*16')
    a('    v_mul_u32_u24 v7, 20, v0')
    a('    v_lshlrev_b32 v18, 12, v2')
    a(f'    s_mul_i32 s25, s2, {REC_STRIDE}')
    a('    s_lshl_b32 s26, s2, 2')
    a('    s_mov_b32 s40, 0x06050400')
    a('    s_mov_b32 s41, 0x05040003')
    a('    s_mov_b32 s42, 0x03020500')
    a('    s_mov_b32 s43, 0x04000302')
    a('    s_mov_b32 s44, 0x03060100')
    a('    s_mov_b32 s45, 0x07030201')
    stamp(a, 1)
    a('    s_barrier')
    a('    v_mov_b32 v5, 1')
    a('    v_mov_b32 v19, 0')
    a('    s_waitcnt vmcnt(2)')
    stamp(a, 2)
    for k in range(4):
        a(f'    v_mul_u32_u24 v{20+k}, s23, v{8+k}')
    for k in range(4):
        a(f'    v_lshrrev_b32 v{20+k}, 21, v{20+k}      ; bucket')
    for k in range(4):
        a(f'    v_lshlrev_b32 v{24+k}, 2, v{20+k}       ; bucket*4')
    for k in range(4):
        a(f'    ds_add_rtn_u32 v{28+k}, v{24+k}, v5 offset:{L1_HIST}')
    for k in range(4):
        a(f'    v_mul_u32_u24 v{20+k}, {NPB*4}, v{20+k}')
    for k in range(4):
        a(f'    v_lshlrev_b32 v{8+k}, 2, v{8+k}')
    for k in range(4):
        a(f'    v_sub_u32 v{20+k}, v{8+k}, v{20+k}')
    a('    s_waitcnt vmcnt(0)')
    a('    v_lshl_or_b32 v32, v16, 16, v12')
    a('    s_mov_b32 s24, 0xffff0000')
    a('    v_and_or_b32 v33, v16, s24, v13')
    a('    v_lshl_or_b32 v34, v17, 16, v14')
    a('    v_and_or_b32 v35, v17, s24, v15')
    a('    s_waitcnt lgkmcnt(0)')
    stamp(a, 3)
    lds_sync(a, 'K1_SYNC2', L1_SYNC+4, 10, 19, 5, 25+40, 27)
    stamp(a, 4)
    a(f'    ds_read_b128 v[40:43], v6 offset:{L1_HIST}')
    a('    s_waitcnt lgkmcnt(0)')
    a('    v_add_u32 v44, v40, v41                ; h0+h1')
    a('    v_add_u32 v45, v44, v42')
    a('    v_add_u32 v46, v45, v43                ; sum4')
    a('    v_mov_b32 v47, v46')
    dpp_scan(a, 47)
    a('    v_sub_u32 v48, v47, v46')
    a('    v_add_u32 v49, v48, v40')
    a('    v_add_u32 v50, v48, v44')
    a('    v_add_u32 v51, v48, v45')
    a(f'    ds_write_b128 v6, v[48:51] offset:{L1_START}')
    a('    s_waitcnt lgkmcnt(0)')
    for k in range(4):
        a(f'    ds_read_b32 v{56+k}, v{24+k} offset:{L1_START}')
    for k in range(4):
        a(f'    v_lshl_or_b32 v{52+k}, v{40+k}, 16, v{48+k}')
    a('    s_waitcnt lgkmcnt(0)')
    for k in range(4):
        a(f'    v_add_u32 v{56+k}, v{56+k}, v{28+k}      ; position')
    for k in range(4):
        a(f'    ds_write_b8 v{56+k}, v{20+k} offset:{L1_ST8}')
        a(f'    v_lshlrev_b32 v{60+k}, 2, v{56+k}')
    for k in range(4):
        a(f'    ds_write_b32 v{60+k}, v{32+k} offset:{L1_ST32}')
    a('    s_waitcnt lgkmcnt(0)')
    stamp(a, 5)
    lds_sync(a, 'K1_SYNC3', L1_SYNC+8, 10, 19, 5, 25+40, 27)
    a(f'    ds_read_b128 v[8:11], v3 offset:{L1_ST32}')
    a('    v_lshrrev_b32 v4, 2, v3                ; t*4')
    a(f'    ds_read_b32 v12, v4 offset:{L1_ST8}')
    a('    s_waitcnt lgkmcnt(0)')
    a('    v_perm_b32 v21, v9, v12, s40           ; d1 = L0 r1.b0 r1.b1 r1.b2')
    a('    v_perm_b32 v22, v10, v9, s41           ; r1.b3 . r2.b0 r2.b1')
    a('    v_perm_b32 v23, v11, v10, s43          ; r2.b2 r2.b3 . r3.b0')
    a('    v_mov_b32 v20, v8')
    a('    v_perm_b32 v22, v12, v22, s42          ; d2 : insert L1')
    a('    v_perm_b32 v23, v12, v23, s44          ; d3 : insert L2')
    a('    v_perm_b32 v24, v12, v11, s45          ; d4 = r3.b1 r3.b2 r3.b3 L3')
    a(f'    buffer_store_dwordx4 v[20:23], v7, s[32:35], s25 offen {RECST}')
    a(f'    buffer_store_dword v24, v7, s[32:35], s25 offen offset:16 {RECST}')
    a('    s_cmp_eq_u32 s20, 0')
    a('    s_cbranch_scc0 K1_SFIN')
    for k in range(4):
        a(f'    buffer_store_dword v{52+k}, v18, s[36:39], s26 offen offset:{1024*k} {DESCST}')
    a.label('K1_SFIN')
    if STAMP:
        stamp(a, 6)
        a('    s_waitcnt vmcnt(0)')
        stamp(a, 7); stamp(a, 1, True)
        stamp_flush(a, 20, 2, 0, 6)
    a('    s_endpgm')
    a.label('K1_TABLE')
    a('    s_load_dwordx2 s[40:41], s[0:1], 40   ; w_b')
    a('    s_load_dwordx2 s[42:43], s[0:1], 64   ; w_v')
    a('    s_load_dwordx2 s[44:45], s[0:1], 0    ; x')
    if K1PF:
        a('    s_load_dwordx2 s[60:61], s[0:1], 32   ; w_a')
        a('    s_load_dwordx4 s[64:67], s[0:1], 48   ; w_c, w_u')
        a('    s_load_dwordx2 s[62:63], s[0:1], 72   ; out')
    a('    s_mov_b32 s21, s20                     ; tw' if TFIRST else '    s_sub_u32 s21, s20, 10                 ; tw')
    a('    v_mov_b32 v5, 0')
    a('    v_lshlrev_b32 v6, 2, v2')
    a('    s_cmp_eq_u32 s21, 0')
    a('    s_cbranch_scc0 K1_T_NOZ')
    masked(a, 'v_cmp_gt_u32 vcc, 4, v2', 30)
    a(f'    ds_write_b32 v6, v5 offset:{L1_SYNC}')
    unmask(a, 30)
    a.label('K1_T_NOZ')
    a('    s_lshr_b32 s22, s21, 1')
    a('    s_lshl_b32 s22, s22, 4                 ; 16*rt')
    a('    v_and_b32 v4, 15, v2')
    a('    v_add_u32 v4, s22, v4')
    a('    v_lshrrev_b32 v5, 4, v2                ; g')
    a('    v_lshlrev_b32 v6, 7, v4')
    a('    v_lshl_add_u32 v6, v5, 4, v6')
    a(f'    s_mul_i32 s24, s2, {NPB*128}')
    a('    v_lshlrev_b32 v7, 4, v2                ; lane*16')
    a('    v_bfe_u32 v8, v2, 4, 1')
    a('    v_lshlrev_b32 v8, 1, v8')
    a('    v_and_b32 v9, 7, v2')
    a('    v_xor_b32 v8, v8, v9')
    a('    v_lshrrev_b32 v9, 3, v2')
    a('    v_lshlrev_b32 v9, 7, v9                ; (lane>>3)*128')
    a('    s_waitcnt lgkmcnt(0)')
    for i in range(3):
        a(f'    s_add_u32 s26, s21, {6*i}              ; p')
        a('    s_cmp_lt_u32 s26, 8')
        a('    s_cselect_b32 s48, s40, s42')
        a('    s_cselect_b32 s49, s41, s43')
        a('    s_mov_b32 s50, 8192')
        a('    s_mov_b32 s51, 0x00020000')
        a('    s_and_b32 s27, s26, 7')
        a('    s_lshl_b32 s27, s27, 10')
        a('    s_cmp_lt_u32 s26, 16')
        a(f'    s_cselect_b32 s27, s27, {1<<20}')
        a(f'    buffer_load_dwordx4 v[{48+4*i}:{51+4*i}], v7, s[48:51], s27 offen')
    srd(a, 36, 44, 45, N*128)
    a('    buffer_load_dwordx4 v[24:27], v6, s[36:39], s24 offen')
    a('    buffer_load_dwordx4 v[28:31], v6, s[36:39], s24 offen offset:64')
    if K1PF:
        a('    s_cmp_eq_u32 s21, 5')
        a('    s_cbranch_scc0 K1_T_NOPF')
        a('    v_lshlrev_b32 v60, 8, v2')
        a('    v_lshlrev_b32 v61, 7, v2')
        a('    global_load_dword v62, v61, s[60:61]')
        a('    global_load_dword v62, v61, s[66:67]')
        a('    v_mov_b32 v63, 0')
        a('    global_load_dword v62, v63, s[64:65]')
        a(f'    s_mul_i32 s26, s2, {NPB*128}')
        a('    v_mov_b32 v63, s26')
        a('    global_load_dword v62, v63, s[62:63]')
        srd(a, 52, 6, 7, WS_T + T_BYTES, off=0)
        a(f'    s_mul_i32 s26, s2, {REC_STRIDE}')
        a('    v_mov_b32 v63, s26')
        a('    buffer_load_dword v62, v63, s[52:55], 0 offen')
        a(f'    s_mul_i32 s26, s2, {NPB*256}')
        a(f'    s_add_u32 s26, s26, {WS_T}')
        a('    v_mov_b32 v63, s26')
        a('    buffer_load_dword v62, v63, s[52:55], 0 offen')
        a(f'    s_mul_i32 s26, s2, {DESC_STRIDE}')
        a(f'    s_add_u32 s26, s26, {WS_DESC}')
        a('    v_mov_b32 v63, s26')
        a('    buffer_load_dword v62, v63, s[52:55], 0 offen')
        a.label('K1_T_NOPF')
    a('    s_barrier')
    if K1PF: a.label('K1_T_PFJOIN0')
    srd(a, 44, 6, 7, T_BYTES, off=WS_T)
    for i in range(3):
        a(f'    s_add_u32 s26, s21, {6*i}              ; p')
        a('    s_and_b32 s27, s26, 1')
        a('    s_lshl_b32 s27, s27, 2')
        a(f'    v_xor_b32 v{18+i}, s27, v8')
        a(f'    v_lshl_add_u32 v{18+i}, v{18+i}, 4, v9')
        a('    s_lshl_b32 s27, s26, 10                ; m*8192 + (p&7)*1024 = p*1024')
        a(f'    v_add_u32 v{18+i}, s27, v{18+i}')
    a('    s_and_b32 s23, s21, 1                  ; half')
    a('    v_bfe_u32 v12, v2, 2, 2                ; r')
    a('    v_lshl_add_u32 v13, v5, 3, v12         ; rho')
    a('    v_lshlrev_b32 v13, 7, v13')
    a('    v_and_b32 v14, 1, v2')
    a('    v_lshl_add_u32 v13, v14, 3, v13        ; + (c&1)*8')
    a('    v_bfe_u32 v14, v2, 1, 1                ; c>>1')
    a('    v_lshrrev_b32 v12, 1, v12')
    a('    v_and_b32 v15, 1, v5                   ; g&1')
    a('    v_lshlrev_b32 v15, 1, v15')
    a('    v_or_b32 v12, v12, v15                 ; swz/2')
    a('    s_lshl_b32 s25, s23, 1')
    a('    v_xor_b32 v15, s25, v12')
    a('    v_lshl_or_b32 v15, v15, 1, v14')
    a('    v_lshl_add_u32 v16, v15, 4, v13')
    a('    s_add_u32 s25, s25, 1')
    a('    v_xor_b32 v15, s25, v12')
    a('    v_lshl_or_b32 v15, v15, 1, v14')
    a('    v_lshl_add_u32 v17, v15, 4, v13')
    a('    v_lshlrev_b32 v21, 8, v4')
    a('    v_lshl_add_u32 v21, v5, 4, v21')
    a('    s_lshl_b32 s25, s23, 7')
    a(f'    s_mul_i32 s26, s2, {NPB*256}')
    a('    s_add_u32 s25, s25, s26')
    a('    v_add_u32 v21, s25, v21')
    a(f'    v_cmp_gt_u32 vcc, {NPB}, v4')
    a(f'    v_mov_b32 v22, {1<<30}')
    a(f'    s_mov_b32 s27, {hex(f2u(-LOG2E))}')
    a('    s_mov_b32 s28, 0xffff0000')
    a('    v_cndmask_b32 v9, v22, v21, vcc')
    a('    s_mov_b32 s29, 0x80000000')
    a('    v_mov_b32 v10, 0')
    a('    v_mov_b32 v11, 1')
    if K1PF:
        a('    s_cmp_eq_u32 s21, 5')
        a('    s_cbranch_scc0 K1_T_W2')
        a('    s_waitcnt vmcnt(9)')
        a('    s_branch K1_T_W9')
        a.label('K1_T_W2')
    a('    s_waitcnt vmcnt(2)')
    if K1PF: a.label('K1_T_W9')
    stamp(a, 1)
    for i in range(3):
        if i == 2:
            a('    s_cmp_lt_u32 s21, 4')
            a('    s_cbranch_scc0 K1_T_ST2')
        a(f'    ds_write_b128 v{18+i}, v[{48+4*i}:{51+4*i}] offset:{L1_W}')
    a.label('K1_T_ST2')
    lds_sync(a, 'K1_T_SPIN', L1_SYNC, 6, 10, 11, 12, 26)
    stamp(a, 3)
    order = [(jj, ks, m) for jj in range(2) for ks in range(2) for m in range(2)]
    for i, (jj, ks, m) in enumerate(order):
        b = 64 + 4*i
        off = L1_W + m*8192 + ks*32*128
        a(f'    ds_read_b64_tr_b16 v[{b}:{b+1}], v{16+jj} offset:{off}')
        a(f'    ds_read_b64_tr_b16 v[{b+2}:{b+3}], v{16+jj} offset:{off+512}')
    if K1PF:
        a('    s_cmp_eq_u32 s21, 5')
        a('    s_cbranch_scc0 K1_T_X0')
        a('    s_waitcnt vmcnt(7)')
        a('    s_branch K1_T_XOK')
        a.label('K1_T_X0')
    a('    s_waitcnt vmcnt(0)')
    if K1PF: a.label('K1_T_XOK')
    for i, (jj, ks, m) in enumerate(order):
        b = 64 + 4*i
        a(f'    s_waitcnt lgkmcnt({min(15, 2*(7-i))})')
        acc = 32 + 8*m + 4*jj
        x = 24 + 4*ks
        c = '0' if ks == 0 else f'v[{acc}:{acc+3}]'
        a(f'    v_mfma_f32_16x16x32_bf16 v[{acc}:{acc+3}], v[{b}:{b+3}], v[{x}:{x+3}], {c}')
    stamp(a, 4)
    a('    s_nop 4')
    for jj in range(2):
        R = range(4)
        p = lambda r: 32 + 4*jj + r
        q = lambda r: 40 + 4*jj + r
        t = lambda r: 10 + r
        if jj == 1: a('    s_nop 2')
        for r in R: a(f'    v_mul_f32 v{p(r)}, s27, v{p(r)}')
        for r in R: a(f'    v_cvt_f16_f32 v{p(r)}, v{p(r)}')
        for r in R: a(f'    v_and_b32 v{t(r)}, 0x7fffffff, v{q(r)}')
        for r in R: a(f'    v_and_b32 v{p(r)}, 0xffff, v{p(r)}')
        for r in R: a(f'    v_sub_u32 v{t(r)}, v{t(r)}, v{p(r)}')
        for r in R: a(f'    v_add_u32 v{t(r)}, 0x8000, v{t(r)}')
        for r in R: a(f'    v_max_i32 v{t(r)}, 0, v{t(r)}')
        for r in R: a(f'    v_and_or_b32 v{t(r)}, v{t(r)}, s28, v{p(r)}')
        for r in R: a(f'    v_and_or_b32 v{p(r)}, v{q(r)}, s29, v{t(r)}')
        a(f'    buffer_store_dwordx4 v[{32+4*jj}:{35+4*jj}], v9, s[44:47], 0 offen offset:{jj*64} {TST}')
    a('    s_cmp_eq_u32 s2, 0')
    a('    s_cbranch_scc0 K1_TFIN')
    a('    s_cmp_eq_u32 s21, 0')
    a('    s_cbranch_scc0 K1_TFIN')
    a('    v_mov_b32 v10, 0x7c00')
    a(f'    v_lshlrev_b32 v11, 2, v2')
    a(f'    v_add_u32 v11, {N*256}, v11')
    a(f'    buffer_store_dword v10, v11, s[44:47], 0 offen {TST}')
    a.label('K1_TFIN')
    stamp(a, 5)
    if STAMP:
        stamp(a, 6)
        a('    s_waitcnt vmcnt(0)')
        stamp(a, 7); stamp(a, 1, True)
        if STAMP >= 3:
            a('    s_waitcnt lgkmcnt(0)')
            a(f'    s_mov_b32 s{ST0+4}, s{ST0+16}')
        else: stamp(a, 2)
        if TFIRST: a('    s_add_u32 s20, s20, 10')
        stamp_flush(a, 20, 2, 0, 6)
    a.label('K1_END')
    a('    s_endpgm')

CAP = 4096
TS = 272
L2_CNT = 0; L2_FLG = 256
L2_LIST = 512
L2_SLOT = L2_LIST + CAP*4
L2_EAT = L2_SLOT + 56*512; L2_UT = L2_EAT + 48*TS
XS = 144
L2_XT = L2_UT + 48*TS
L2_W = L2_XT + 48*XS
K2_LDS = L2_W + 16384
U = 4
TPF = int(env('TPF', '1'))
PFPOS = int(env('PFPOS', '1'))
PGT = int(env('PGT', '0'))
G0N = int(env('G0N', '1'))
PFW = int(env('PFW', '4'))
PFL = int(env('PFL', '640'))
PFN = int(env('PFN', '40'))
PRT = [int(x) for x in env('PRT', '4,4,4').split(',')]

def gen_k2(a):
    a.k2 = True
    sB = 2; sWAVE = 3
    SRD_DESC = 12; SRD_REC = 16; SRD_T = 20; SRD_W = 24; SRD_X = 28; SRD_OUT = 32; SRD_WC = 36
    sMODE = 40; sPASS = 41
    sG0 = 42; sG1 = 43; sGEND = 44; sLEFT = 45; sNODE = 46; sT0 = 47; sT1 = 48; sSAFE = 49; sGT = 50; sR = 51
    sEX = 52; sEAB = 54; sPR = 55; sPQ = 56; sLVL = 57; sSLOT = 58; sNR = 59; sPQ2 = 60; sXT = 61; sJ = 58
    sM = 64
    vLANE = 1
    vWC = 4; vEA = 8; vDEN = 12; vNUM = 16; vT = 20; vDAT = 24; vP = 40; vEV = 48
    vSA = 50; vACC = 51; vEAA = 52; vGS = 53; vQ16 = 54; vNG = 55
    vDA = 56; vNA = 60
    vX = 64
    vFL = 66
    vGE = 67
    vXO = 68
    vR = 76
    vB = 84
    vRK = 92
    vLA = 100
    vA = 108
    vCNT = 118; vRO = 119; vI = 120; vRM = 121; vTRA = 122; vXRA = 123; vROW = 121; vPFA = 51
    vLC = 12
    vPF = 16
    vXO2 = vXO
    SRD_LOC = 8; SRD_PF = 24
    vW = 24; vOP = 24; vAC = 40
    vOP2 = 76; vAC2 = 92
    vU = 96; vUA = 100

    a('.p2align 8')
    a('.type k2_kernel,@function')
    a.label('k2_kernel')
    a(f'    s_cmp_ge_u32 s2, {NB}')
    a('    s_cbranch_scc1 K2_END')
    stamp(a, 0); stamp(a, 0, True)
    if CPF:
        a('    s_getpc_b64 s[30:31]')
        a.label('K2_PC')
        a('    v_lshlrev_b32 v124, 7, v0')
        a('    v_cmp_gt_u32 vcc, CODE_END-K2_PC, v124')
        a('    s_and_saveexec_b64 s[28:29], vcc')
        a('    s_cbranch_execz K2_NOCPF')
        a('    global_load_dword v125, v124, s[30:31]')
        a.label('K2_NOCPF')
        a('    s_mov_b64 exec, s[28:29]')
    if XMAP:
        a(f'    s_and_b32 s{sT0}, s2, 7')
        a(f'    s_lshr_b32 s{sJ}, s2, 3')
        a(f'    s_mul_i32 s{sT1}, s{sT0}, 31')
        a(f'    s_min_u32 s{sT0}, s{sT0}, 2')
        a(f'    s_add_u32 s{sT1}, s{sT1}, s{sT0}')
        a(f'    s_add_u32 s2, s{sT1}, s{sJ}')
    else:
        a(f'    s_lshr_b32 s{sJ}, s2, 3')
    a('    s_load_dwordx2 s[6:7], s[0:1], 88      ; ws')
    a('    s_load_dwordx2 s[4:5], s[0:1], 0       ; x')
    a('    s_load_dwordx2 s[8:9], s[0:1], 32      ; w_a')
    a('    s_load_dwordx4 s[60:63], s[0:1], 48    ; w_c, w_u')
    a('    s_load_dwordx2 s[10:11], s[0:1], 72    ; out')
    a(f'    v_and_b32 v{vLANE}, 63, v0')
    a(f'    v_lshrrev_b32 v{vA}, 6, v0')
    a(f'    v_and_b32 v{vQ16}, 15, v0')
    a(f'    v_readfirstlane_b32 s{sWAVE}, v{vA}')
    a(f'    v_lshlrev_b32 v{vQ16}, 4, v{vQ16}      ; q*16')
    a(f'    v_and_b32 v{vA}, 0x3fc, v0             ; (t>>2)*4')
    a(f'    v_cmp_gt_u32 vcc, {NC*4}, v0')
    a(f'    v_mov_b32 v{vA+8}, {1<<30}')
    a(f'    s_lshl_b32 s{sT0}, s{sB}, 10')
    a(f'    v_cndmask_b32 v{vA}, v{vA+8}, v{vA}, vcc')
    for i in range(4):
        a(f'    v_mov_b32 v{vDA+i}, 0')
        a(f'    v_mov_b32 v{vNA+i}, 0')
    masked(a, 'v_cmp_gt_u32 vcc, 4, v0', sEX)
    a(f'    v_lshlrev_b32 v{vA+5}, 2, v0')
    a(f'    ds_write_b32 v{vA+5}, v{vDA} offset:{L2_FLG}')
    unmask(a, sEX)
    a(f'    s_mov_b32 s{sMODE}, 0')
    a(f'    s_mov_b32 s{sPASS}, 0')
    a(f'    v_mov_b32 v{vEV}, 0')
    a(f'    v_mov_b32 v{vEV+1}, 0')
    for k in range(U):
        a(f'    v_mov_b32 v{vP+2*k}, {N}')
        a(f'    v_mov_b32 v{vP+2*k+1}, v{vQ16}')
    a(f'    v_lshrrev_b32 v{vA+1}, 5, v{vLANE}')
    a(f'    v_lshl_add_u32 v{vFL}, v{vA+1}, 8, v{vQ16}')
    a(f'    v_bfe_u32 v{vA+1}, v{vLANE}, 4, 1')
    a(f'    v_lshl_add_u32 v{vFL}, v{vA+1}, 3, v{vFL}')
    a.label('K2_PASS')
    for i in range(4):
        a(f'    v_mov_b32 v{vA+6+i}, {N}')
    a(f'    v_lshlrev_b32 v{vA+5}, 4, v0')
    a(f'    ds_write_b128 v{vA+5}, v[{vA+6}:{vA+9}] offset:{L2_LIST}')
    masked(a, 'v_cmp_gt_u32 vcc, 64, v0', sEX)
    a(f'    v_lshlrev_b32 v{vA+4}, 2, v0')
    a(f'    v_mov_b32 v{vA+3}, 0')
    a(f'    ds_write_b32 v{vA+4}, v{vA+3} offset:{L2_CNT}')
    unmask(a, sEX)
    a(f'    s_cmp_eq_u32 s{sMODE}, 0')
    a('    s_cbranch_scc0 K2_SLOWPARAM')
    a('    s_waitcnt lgkmcnt(0)')
    srd(a, SRD_DESC, 6, 7, NB*DESC_STRIDE, off=WS_DESC)
    a(f'    buffer_load_dword v{vCNT}, v{vA}, s[{SRD_DESC}:{SRD_DESC+3}], s{sT0} offen')
    a(f'    s_cmp_lt_u32 s{sWAVE}, 8')
    a(f'    s_cselect_b32 s{SRD_W}, s8, s62')
    a(f'    s_cselect_b32 s{SRD_W+1}, s9, s63')
    a(f'    s_mov_b32 s{SRD_W+2}, 8192')
    a(f'    s_mov_b32 s{SRD_W+3}, 0x00020000')
    srd(a, SRD_X, 4, 5, N*128)
    srd(a, SRD_WC, 60, 61, 128)
    a(f'    v_and_b32 v{vA+1}, 511, v0')
    a(f'    v_lshlrev_b32 v{vA+1}, 4, v{vA+1}')
    a(f'    buffer_load_dwordx4 v[{vW}:{vW+3}], v{vA+1}, s[{SRD_W}:{SRD_W+3}], 0 offen')
    a(f'    v_lshlrev_b32 v{vA+4}, 4, v0')
    a(f'    v_cmp_gt_u32 vcc, 384, v0')
    a(f'    v_mov_b32 v{vA+3}, {1<<30}')
    a(f'    s_mul_i32 s{sT1}, s{sB}, {NPB*128}')
    a(f'    v_cndmask_b32 v{vA+4}, v{vA+3}, v{vA+4}, vcc')
    a(f'    buffer_load_dwordx4 v[{vXO}:{vXO+3}], v{vA+4}, s[{SRD_X}:{SRD_X+3}], s{sT1} offen')
    a(f'    v_lshrrev_b32 v{vA+7}, 1, v{vQ16}      ; q*8 (wc)')
    a(f'    buffer_load_dwordx2 v[{vWC}:{vWC+1}], v{vA+7}, s[{SRD_WC}:{SRD_WC+3}], 0 offen')
    if PGT:
        srd(a, SRD_REC, 6, 7, WS_T + T_BYTES, off=0)
        a(f'    v_lshlrev_b32 v{vPF+1}, 21, v{vLANE}')
        a(f'    buffer_load_dword v{vPF+1}, v{vPF+1}, s[{SRD_REC}:{SRD_REC+3}], 0 offen')
    a('    s_barrier')
    srd(a, SRD_OUT, 10, 11, N*128)
    srd(a, SRD_REC, 6, 7, NC*REC_STRIDE + 64, off=WS_REC)
    srd(a, SRD_T, 6, 7, 0, off=WS_T, stride=256, nrec=N+1)
    a(f'    v_lshrrev_b32 v{vA}, 2, v0             ; c')
    a(f'    v_mul_u32_u24 v{vRO}, {REC_STRIDE}, v{vA}')
    a(f'    v_and_b32 v{vI}, 3, v0')
    a(f'    v_lshlrev_b32 v{vI}, 2, v{vI}')
    a(f'    v_mad_u32_u24 v{vRO}, v{vI}, 5, v{vRO}')
    a(f'    s_mov_b32 s{sT1}, 16')
    a(f'    s_waitcnt vmcnt({3+PGT})                      ; descriptor')
    stamp(a, 1)
    a(f'    v_and_b32 v{vA+1}, 0xffff, v{vCNT}      ; start')
    a(f'    v_lshrrev_b32 v{vCNT}, 16, v{vCNT}      ; cnt')
    a(f'    v_mad_u32_u24 v{vRO}, v{vA+1}, 5, v{vRO}')
    a('    s_branch K2_PARAMDONE')
    a.label('K2_SLOWPARAM')
    a(f'    s_lshl_b32 s{sT0}, s{sB}, 10')
    a(f'    s_lshl_b32 s{sT1}, s{sPASS}, 2')
    a(f'    s_add_u32 s{sT0}, s{sT0}, s{sT1}')
    a(f'    v_mov_b32 v{vA}, 0')
    a(f'    buffer_load_dword v{vCNT}, v{vA}, s[{SRD_DESC}:{SRD_DESC+3}], s{sT0} offen')
    a(f'    s_mul_i32 s{sT0}, s{sPASS}, {REC_STRIDE}')
    a('    s_waitcnt vmcnt(0) lgkmcnt(0)')
    a('    s_barrier')
    a(f'    v_and_b32 v{vA+1}, 0xffff, v{vCNT}')
    a(f'    v_lshlrev_b32 v{vI}, 2, v0')
    a(f'    v_add_u32 v{vA+1}, v{vA+1}, v{vI}')
    a(f'    v_mul_u32_u24 v{vRO}, 5, v{vA+1}')
    a(f'    v_add_u32 v{vRO}, s{sT0}, v{vRO}')
    a(f'    v_lshrrev_b32 v{vCNT}, 16, v{vCNT}')
    a(f'    s_mov_b32 s{sT1}, 4096')
    a.label('K2_PARAMDONE')
    a(f'    v_sub_u32 v{vRM}, v{vCNT}, v{vI}')
    a(f'    s_mul_i32 s{sT0}, s{sT1}, 5')
    a(f'    s_mov_b32 s{sNR}, 0')
    for r in range(2):
        m0 = sM + 8*r
        if r == 1:
            a(f'    v_subrev_u32 v{vRM}, s{sT1}, v{vRM}')
        for h in range(4):
            a(f'    v_cmp_gt_i32 s[{m0+2*h}:{m0+2*h+1}], v{vRM}, {h}' if h else f'    v_cmp_lt_i32 s[{m0}:{m0+1}], 0, v{vRM}')
        a(f'    s_cmp_eq_u64 s[{m0}:{m0+1}], 0')
        a(f'    s_cbranch_scc1 K2_LD_DONE')
        a(f'    s_mov_b64 exec, s[{m0}:{m0+1}]')
        a(f'    buffer_load_dwordx4 v[{vR+4*r}:{vR+4*r+3}], v{vRO}, s[{SRD_REC}:{SRD_REC+3}], 0 offen')
        a(f'    buffer_load_dword v{vLC+r}, v{vRO}, s[{SRD_REC}:{SRD_REC+3}], 0 offen offset:16')
        a(f'    s_mov_b64 exec, -1')
        a(f'    s_mov_b32 s{sNR}, {r+1}')
        if r < 1:
            a(f'    v_add_u32 v{vRO}, s{sT0}, v{vRO}')
    a.label('K2_LD_DONE')
    a(f'    s_or_b32 s{sT0}, s{sMODE}, s{sPASS}')
    a(f'    s_cmp_eq_u32 s{sT0}, 0')
    a('    s_cbranch_scc0 K2_LATER_PASS')
    if TPF and PFPOS == 3:
        a(f'    s_mul_i32 s{sT0}, s{sJ}, {640*128}')
        a(f'    s_mul_i32 s{sT1}, s{sWAVE}, {40*128}')
        a(f'    s_add_u32 s{sT0}, s{sT0}, s{sT1}')
        a(f'    s_add_u32 s{sT0}, s{sT0}, {WS_T}')
        a(f'    s_add_u32 s24, s6, s{sT0}')
        a(f'    s_addc_u32 s25, s7, 0')
        for i in range(PFN):
            a(f'    s_load_dword s26, s[24:25], {128*i}')
    if TPF and PFPOS == 2:
        W0 = 16 - PFW
        per = PFL // PFW
        a(f'    s_cmp_ge_u32 s{sWAVE}, {W0}')
        a('    s_cbranch_scc0 K2_NOPF2')
        srd(a, SRD_PF, 6, 7, T_BYTES, off=WS_T)
        a(f'    s_mul_i32 s{sT0}, s{sJ}, {640*128}')
        a(f'    s_sub_u32 s{sT1}, s{sWAVE}, {W0}')
        a(f'    s_mul_i32 s{sT1}, s{sT1}, {per*128}')
        a(f'    s_add_u32 s{sT0}, s{sT0}, s{sT1}')
        a(f'    v_lshlrev_b32 v{vPFA}, 7, v{vLANE}')
        nin = (per + 63)//64
        for i in range(nin):
            left = per - 64*i
            if left < 64:
                a(f'    v_cmp_gt_u32 vcc, {left}, v{vLANE}')
                a(f'    v_mov_b32 v{vPF+1}, {1<<30}')
                a('    s_nop 0')
                a(f'    v_cndmask_b32 v{vPFA}, v{vPF+1}, v{vPFA}, vcc')
            a(f'    buffer_load_dword v{vPF}, v{vPFA}, s[{SRD_PF}:{SRD_PF+3}], s{sT0} offen')
            if i + 1 < nin: a(f'    s_add_u32 s{sT0}, s{sT0}, 8192')
        a.label('K2_NOPF2')
    a(f'    v_lshrrev_b32 v{vA+8}, 3, v0')
    a(f'    v_mul_u32_u24 v{vA+8}, {XS}, v{vA+8}')
    a(f'    v_and_b32 v{vA+7}, 7, v0')
    a(f'    v_lshl_add_u32 v{vA+8}, v{vA+7}, 4, v{vA+8}')
    a(f'    v_add_u32 v{vA+8}, {L2_XT}, v{vA+8}')
    NPF = 1 if TPF else 0
    a(f'    v_bfe_u32 v{vA+1}, v0, 4, 1')
    a(f'    v_bfe_u32 v{vA+2}, v0, 6, 1')
    a(f'    v_lshlrev_b32 v{vA+1}, 1, v{vA+1}')
    a(f'    v_lshl_or_b32 v{vA+1}, v{vA+2}, 2, v{vA+1}')
    a(f'    v_and_b32 v{vA+2}, 7, v0')
    a(f'    v_xor_b32 v{vA+1}, v{vA+1}, v{vA+2}')
    a(f'    v_lshrrev_b32 v{vA+2}, 3, v0')
    a(f'    v_lshlrev_b32 v{vA+2}, 7, v{vA+2}')
    a(f'    v_lshl_add_u32 v{vA+9}, v{vA+1}, 4, v{vA+2}')
    a(f'    v_add_u32 v{vA+9}, {L2_W}, v{vA+9}')
    a(f'    v_lshrrev_b32 v{vA+3}, 4, v{vLANE}     ; g')
    a(f'    v_bfe_u32 v{vA}, v{vLANE}, 2, 2        ; r')
    a(f'    v_lshl_add_u32 v{vA+1}, v{vA+3}, 3, v{vA}')
    a(f'    v_lshlrev_b32 v{vA+1}, 7, v{vA+1}')
    a(f'    v_and_b32 v{vA+2}, 1, v{vLANE}')
    a(f'    v_lshl_add_u32 v{vA+1}, v{vA+2}, 3, v{vA+1}')
    a(f'    v_lshrrev_b32 v{vA}, 1, v{vA}')
    a(f'    v_and_b32 v{vA+2}, 1, v{vA+3}')
    a(f'    v_lshl_or_b32 v{vA}, v{vA+2}, 1, v{vA}     ; swz/2')
    a(f'    s_and_b32 s{sT0}, s{sWAVE}, 3')
    a(f'    v_xor_b32 v{vA}, s{sT0}, v{vA}')
    a(f'    v_bfe_u32 v{vA+2}, v{vLANE}, 1, 1')
    a(f'    v_lshl_or_b32 v{vA}, v{vA}, 1, v{vA+2}')
    a(f'    v_lshl_add_u32 v{vTRA}, v{vA}, 4, v{vA+1}')
    a(f'    v_add_u32 v{vTRA}, {L2_W}, v{vTRA}')
    a(f'    s_lshr_b32 s{sT1}, s{sWAVE}, 2')
    a(f'    s_lshl_b32 s{sT1}, s{sT1}, 4')
    a(f'    v_and_b32 v{vA+2}, 15, v{vLANE}')
    a(f'    v_add_u32 v{vROW}, s{sT1}, v{vA+2}     ; row')
    a(f'    v_mul_u32_u24 v{vA+1}, {XS}, v{vROW}')
    a(f'    v_lshl_add_u32 v{vA+1}, v{vA+3}, 4, v{vA+1}')
    a(f'    v_add_u32 v{vXRA}, {L2_XT}, v{vA+1}')
    a(f'    v_mul_u32_u24 v{vA+4}, {TS}, v{vROW}')
    a(f'    v_lshl_add_u32 v{vA+4}, v{vA+3}, 4, v{vA+4}')
    a(f'    s_lshl_b32 s{sT0}, s{sT0}, 6')
    a(f'    s_add_u32 s{sT0}, s{sT0}, {L2_EAT}')
    a(f'    v_add_u32 v{vEAA}, s{sT0}, v{vA+4}')
    if TPF and PFPOS < 2:
        srd(a, SRD_PF, 6, 7, T_BYTES, off=WS_T)
        a(f'    s_mul_i32 s{sT0}, s{sJ}, {640*128}')
        a(f'    s_mul_i32 s{sT1}, s{sWAVE}, {40*128}')
        a(f'    s_add_u32 s{sJ}, s{sT0}, s{sT1}')
        a(f'    v_lshlrev_b32 v{vA+3}, 7, v{vLANE}')
        a(f'    v_cmp_gt_u32 vcc, {PFN}, v{vLANE}')
        a(f'    v_mov_b32 v{vA+4}, {1<<30}')
        a('    s_nop 0')
        a(f'    v_cndmask_b32 v{vPFA}, v{vA+4}, v{vA+3}, vcc')
    if TPF and PFPOS == 2:
        a(f'    v_mov_b32 v{vA+2}, 1')
        a(f'    s_cmp_ge_u32 s{sWAVE}, {16 - PFW}')
        a('    s_cbranch_scc0 K2_LATER_PASS')
        a(f'    s_waitcnt vmcnt({(PFL // PFW + 63)//64})')
        a('    s_branch K2_RANKS')
    a.label('K2_LATER_PASS')
    a(f'    v_mov_b32 v{vA+2}, 1')
    a('    s_waitcnt vmcnt(0)')
    if TPF and PFPOS == 1:
        a(f'    s_or_b32 s{sT0}, s{sMODE}, s{sPASS}')
        a(f'    s_cmp_eq_u32 s{sT0}, 0')
        a('    s_cbranch_scc0 K2_RANKS')
        a(f'    buffer_load_dword v{vPF}, v{vPFA}, s[{SRD_PF}:{SRD_PF+3}], s{sJ} offen')
    a.label('K2_RANKS')
    stamp(a, 2)
    for r in range(2):
        a(f'    s_cmp_le_u32 s{sNR}, {r}')
        a('    s_cbranch_scc1 K2_RK_DONE')
        d = vR + 4*r
        a(f'    v_and_b32 v{vLA+4*r}, 0xff, v{d+1}')
        a(f'    v_bfe_u32 v{vLA+4*r+1}, v{d+2}, 8, 8')
        a(f'    v_bfe_u32 v{vLA+4*r+2}, v{d+3}, 16, 8')
        a(f'    v_lshrrev_b32 v{vLA+4*r+3}, 24, v{vLC+r}')
        for h in range(4):
            k = 4*r + h
            a(f'    s_mov_b64 exec, s[{sM+2*k}:{sM+2*k+1}]')
            a(f'    ds_add_rtn_u32 v{vRK+k}, v{vLA+k}, v{vA+2} offset:{L2_CNT}')
        a('    s_mov_b64 exec, -1')
        a(f'    v_alignbyte_b32 v{d+1}, v{d+2}, v{d+1}, 1')
        a(f'    v_alignbyte_b32 v{d+2}, v{d+3}, v{d+2}, 2')
        a(f'    v_alignbyte_b32 v{d+3}, v{vLC+r}, v{d+3}, 3')
    a.label('K2_RK_DONE')
    masked(a, f'v_cmp_lt_u32 vcc, 32, v{vCNT}', sEX, 'K2_NOOVF')
    a(f'    v_mov_b32 v{vA+3}, 0')
    a(f'    ds_write_b32 v{vA+3}, v{vA+2} offset:{L2_FLG}')
    unmask(a, sEX, 'K2_NOOVF')
    a(f'    s_or_b32 s{sT0}, s{sMODE}, s{sPASS}')
    a(f'    s_cmp_eq_u32 s{sT0}, 0')
    a('    s_cbranch_scc0 K2_NOWST')
    a(f'    ds_write_b128 v{vA+9}, v[{vW}:{vW+3}]')
    a(f'    s_cmp_lt_u32 s{sWAVE}, 6')
    a('    s_cbranch_scc0 K2_NOXST')
    a(f'    ds_write_b128 v{vA+8}, v[{vXO}:{vXO+3}]')
    a.label('K2_NOXST')
    a(f'    s_mov_b32 s{sT0}, {hex(f2u(-LOG2E))}')
    a(f'    v_and_b32 v{vWC+3}, 0xffff0000, v{vWC+1}')
    a(f'    v_lshlrev_b32 v{vWC+2}, 16, v{vWC+1}')
    a(f'    v_and_b32 v{vWC+1}, 0xffff0000, v{vWC}')
    a(f'    v_lshlrev_b32 v{vWC}, 16, v{vWC}')
    for k in range(4):
        a(f'    v_mul_f32 v{vWC+k}, s{sT0}, v{vWC+k}')
    a.label('K2_NOWST')
    a(f'    v_lshlrev_b32 v{vA+1}, 2, v{vLANE}')
    a(f'    v_mov_b32 v{vA}, 0')
    a('    s_waitcnt lgkmcnt(0)')
    stamp(a, 3)
    a('    s_barrier')
    stamp(a, 4)
    if TPF and PFPOS == 0:
        a(f'    s_or_b32 s{sT0}, s{sMODE}, s{sPASS}')
        a(f'    s_cmp_eq_u32 s{sT0}, 0')
        a('    s_cbranch_scc0 K2_NOPF')
        a(f'    buffer_load_dword v{vPF}, v{vPFA}, s[{SRD_PF}:{SRD_PF+3}], s{sJ} offen')
        a.label('K2_NOPF')
    a(f'    ds_read_b32 v{vNG}, v{vA+1} offset:{L2_CNT}')
    a(f'    ds_read_b32 v{vA+4}, v{vA} offset:{L2_FLG}')
    a('    s_waitcnt lgkmcnt(1)')
    a(f'    v_add_u32 v{vNG}, 3, v{vNG}')
    a(f'    v_lshrrev_b32 v{vNG}, 2, v{vNG}')
    a(f'    v_mov_b32 v{vGE}, v{vNG}')
    dpp_scan(a, vGE)
    a('    s_waitcnt lgkmcnt(0)')
    a(f'    v_readlane_b32 s{sGT}, v{vGE}, {NPB-1}')
    a(f'    v_sub_u32 v{vGS}, v{vGE}, v{vNG}')
    a(f'    v_readfirstlane_b32 s{sT0}, v{vA+4}')
    a(f'    v_lshlrev_b32 v{vA+6}, 4, v{vGS}')
    a(f'    v_cmp_lt_u32 vcc, {NPB}, v{vLANE}')
    a(f'    s_add_u32 s{sR}, s{sGT}, 15')
    a(f'    s_lshr_b32 s{sR}, s{sR}, 4')
    a(f'    v_cndmask_b32 v{vGS}, v{vGS}, -1, vcc')
    a(f'    s_cmp_eq_u32 s{sMODE}, 0')
    a('    s_cbranch_scc0 K2_NOSWITCH')
    a(f'    s_cmp_gt_u32 s{sGT}, {(CAP - 64)//4}')
    a(f'    s_cselect_b32 s{sT1}, 1, 0')
    a(f'    s_or_b32 s{sT0}, s{sT0}, s{sT1}')
    a(f'    s_cmp_eq_u32 s{sT0}, 0')
    a('    s_cbranch_scc1 K2_NOSWITCH')
    a(f'    s_mov_b32 s{sNR}, 0')
    a(f'    s_mov_b32 s{sGT}, 0')
    a(f'    s_mov_b32 s{sR}, 0')
    a(f'    s_mov_b32 s{sMODE}, 2')
    a.label('K2_NOSWITCH')
    for r in range(2):
        a(f'    s_cmp_le_u32 s{sNR}, {r}')
        a('    s_cbranch_scc1 K2_LK_DONE')
        for h in range(4):
            k = 4*r + h
            a(f'    ds_bpermute_b32 v{vB+k}, v{vLA+k}, v{vA+6}')
    a.label('K2_LK_DONE')
    a('    s_waitcnt lgkmcnt(0)')
    for r in range(2):
        a(f'    s_cmp_le_u32 s{sNR}, {r}')
        a('    s_cbranch_scc1 K2_SC_DONE')
        for h in range(4):
            k = 4*r + h
            a(f'    s_mov_b64 exec, s[{sM+2*k}:{sM+2*k+1}]')
            a(f'    v_lshl_add_u32 v{vB+k}, v{vRK+k}, 2, v{vB+k}')
            a(f'    ds_write_b32 v{vB+k}, v{vR+k} offset:{L2_LIST}')
    a.label('K2_SC_DONE')
    a('    s_mov_b64 exec, -1')
    a(f'    s_mul_i32 s{sG0}, s{sR}, s{sWAVE}')
    a(f'    s_add_u32 s{sG1}, s{sG0}, s{sR}')
    a(f'    s_min_u32 s{sG1}, s{sG1}, s{sGT}')
    a(f'    v_lshrrev_b32 v{vSA}, 4, v{vLANE}')
    a(f'    v_lshlrev_b32 v{vSA}, 2, v{vSA}         ; slot*4')
    a(f'    s_lshl_b32 s{sT0}, s{sG0}, 4')
    a(f'    v_add_u32 v{vSA}, s{sT0}, v{vSA}')
    a(f'    v_mov_b32 v{vA}, 0')
    a('    s_waitcnt lgkmcnt(0)')
    a('    s_barrier')
    stamp(a, 5)

    def tload(k):
        d = vDAT + 4*k
        a(f'    buffer_load_dwordx4 v[{d}:{d+3}], v[{vP+2*k}:{vP+2*k+1}], s[{SRD_T}:{SRD_T+3}], 0 idxen offen')

    a(f'    s_cmp_ge_u32 s{sG0}, s{sG1}')
    a('    s_cbranch_scc1 K2_NOGATH')
    for k in range(U):
        a(f'    ds_read_u16 v{vP+2*k}, v{vSA} offset:{L2_LIST + 16*k}')
    a(f'    ds_read_u16_d16_hi v{vEV}, v{vSA} offset:{L2_LIST + 2}')
    a('    s_waitcnt lgkmcnt(0)')
    for k in range(G0N):
        tload(k)
    a(f'    ds_read_u16 v{vP}, v{vSA} offset:{L2_LIST + 16*U}')
    a.label('K2_NOGATH')
    a(f'    s_cmp_eq_u32 s{sPASS}, 0')
    a('    s_cbranch_scc0 K2_NOTAB')
    a(f'    s_cmp_eq_u32 s{sMODE}, 1')
    a('    s_cbranch_scc1 K2_NOTAB')
    a(f'    s_cmp_lt_u32 s{sWAVE}, 12')
    a('    s_cbranch_scc0 K2_NOMFMA')
    a(f'    ds_read_b128 v[{vXO}:{vXO+3}], v{vXRA}')
    a(f'    ds_read_b64_tr_b16 v[{vOP2}:{vOP2+1}], v{vTRA}')
    a(f'    ds_read_b64_tr_b16 v[{vOP2+2}:{vOP2+3}], v{vTRA} offset:{0+512}')
    a(f'    ds_read_b128 v[{vXO+4}:{vXO+7}], v{vXRA} offset:64')
    a(f'    ds_read_b64_tr_b16 v[{vOP2+4}:{vOP2+5}], v{vTRA} offset:{0+4096}')
    a(f'    ds_read_b64_tr_b16 v[{vOP2+6}:{vOP2+7}], v{vTRA} offset:{0+4096+512}')
    a(f'    s_mov_b32 s{sT0}, {hex(f2u(-LOG2E))}')
    a(f'    s_mov_b32 s{sT1}, {hex(f2u(60.0))}')
    a('    s_waitcnt lgkmcnt(3)')
    a(f'    v_mfma_f32_16x16x32_bf16 v[{vAC2}:{vAC2+3}], v[{vOP2}:{vOP2+3}], v[{vXO}:{vXO+3}], 0')
    a('    s_waitcnt lgkmcnt(0)')
    a(f'    v_mfma_f32_16x16x32_bf16 v[{vAC2}:{vAC2+3}], v[{vOP2+4}:{vOP2+7}], v[{vXO+4}:{vXO+7}], v[{vAC2}:{vAC2+3}]')
    a('    s_nop 7')
    for i in range(4):
        a(f'    v_mul_f32 v{vAC2+i}, s{sT0}, v{vAC2+i}')
    for i in range(4):
        a(f'    v_exp_f32 v{vOP2+i}, v{vAC2+i}')
    a(f'    v_max3_f32 v{vA+5}, |v{vAC2}|, |v{vAC2+1}|, |v{vAC2+2}|')
    a(f'    v_max_f32 v{vA+5}, v{vA+5}, |v{vAC2+3}|')
    a(f'    ds_write_b128 v{vEAA}, v[{vOP2}:{vOP2+3}]')
    a(f'    v_cmp_nle_f32 vcc, v{vA+5}, s{sT1}')
    a(f'    v_cmp_gt_u32 s[{sEX}:{sEX+1}], {NPB}, v{vROW}')
    a(f'    s_and_b64 vcc, vcc, s[{sEX}:{sEX+1}]')
    a(f'    s_and_saveexec_b64 s[{sEX}:{sEX+1}], vcc')
    a('    s_cbranch_execz K2_GUARD_OK')
    a(f'    v_mov_b32 v{vA+5}, 1')
    a(f'    v_mov_b32 v{vA+7}, 0')
    a(f'    ds_write_b32 v{vA+7}, v{vA+5} offset:{L2_FLG+4}')
    unmask(a, sEX, 'K2_GUARD_OK')
    a.label('K2_NOMFMA')
    a(f'    v_mov_b32 v{vA}, 0')
    a('    s_waitcnt lgkmcnt(0)')
    a('    s_barrier')
    a(f'    ds_read_b32 v{vA+5}, v{vA} offset:{L2_FLG+4}')
    a(f'    s_cmp_ge_u32 s{sG0}, s{sG1}')
    a('    s_cbranch_scc1 K2_NOGATH2')
    for k in range(G0N, U):
        tload(k)
    a.label('K2_NOGATH2')
    a(f'    s_cmp_lt_u32 s{sWAVE}, 12')
    a('    s_cbranch_scc0 K2_NOU')
    a(f'    ds_read_b64_tr_b16 v[{vOP2}:{vOP2+1}], v{vTRA} offset:{0+8192}')
    a(f'    ds_read_b64_tr_b16 v[{vOP2+2}:{vOP2+3}], v{vTRA} offset:{0+8192+512}')
    a(f'    ds_read_b64_tr_b16 v[{vOP2+4}:{vOP2+5}], v{vTRA} offset:{0+8192+4096}')
    a(f'    ds_read_b64_tr_b16 v[{vOP2+6}:{vOP2+7}], v{vTRA} offset:{0+8192+4096+512}')
    a('    s_waitcnt lgkmcnt(2)')
    a(f'    v_mfma_f32_16x16x32_bf16 v[{vU}:{vU+3}], v[{vOP2}:{vOP2+3}], v[{vXO}:{vXO+3}], 0')
    a('    s_waitcnt lgkmcnt(0)')
    a(f'    v_mfma_f32_16x16x32_bf16 v[{vU}:{vU+3}], v[{vOP2+4}:{vOP2+7}], v[{vXO+4}:{vXO+7}], v[{vU}:{vU+3}]')
    a(f'    v_mov_b32 v{vUA}, v{vEAA}')
    a.label('K2_NOU')
    a('    s_waitcnt lgkmcnt(0)')
    a(f'    v_readfirstlane_b32 s{sSAFE}, v{vA+5}')
    a('    s_nop 0')
    a(f'    s_cmp_eq_u32 s{sSAFE}, 0')
    a('    s_cbranch_scc1 K2_WAITW')
    a('    s_barrier')
    a(f'    s_cmp_lt_u32 s{sWAVE}, 12')
    a('    s_cbranch_scc0 K2_SAFE_NOW')
    a(f'    ds_write_b128 v{vEAA}, v[{vAC2}:{vAC2+3}]')
    a.label('K2_SAFE_NOW')
    a('    s_waitcnt lgkmcnt(0)')
    a('    s_barrier')
    a.label('K2_WAITW')
    a('    s_branch K2_TABDONE')
    a.label('K2_NOTAB')
    a(f'    s_cmp_ge_u32 s{sG0}, s{sG1}')
    a('    s_cbranch_scc1 K2_MAIN_DONE')
    for k in range(G0N, U):
        tload(k)
    a.label('K2_TABDONE')
    dstamp(a, 1)
    a(f'    s_cmp_ge_u32 s{sG0}, s{sG1}')
    a('    s_cbranch_scc1 K2_MAIN_DONE')
    if PRIO:
        a(f'    s_add_u32 s{sT0}, s{sR}, 3')
        a(f'    s_lshr_b32 s{sT0}, s{sT0}, 2            ; iterations')
        for n, reg in zip(PRT, (sPR, sPQ, sPQ2)):
            a(f'    s_mul_i32 s{reg}, s{sT0}, {n}')
            a(f'    s_lshr_b32 s{reg}, s{reg}, 4')
            a(f'    s_add_u32 s{reg}, s{reg}, 1')
        a(f'    s_mov_b32 s{sLVL}, 3')
        a('    s_setprio 3')
    a(f'    s_mov_b32 s{sGEND}, s{sG0}')
    a(f'    s_mov_b32 s{sEAB}, {L2_EAT}')
    a(f'    s_cmp_eq_u32 s{sSAFE}, 0')
    a('    s_cbranch_scc0 K2S_ENTER')
    a('    s_branch K2F_ENTER')

    def next_node():
        a(f'    v_cmp_ge_u32 vcc, s{sGEND}, v{vGS}')
        a(f'    s_bcnt1_i32_b64 s{sT0}, vcc')
        a(f'    s_sub_u32 s{sNODE}, s{sT0}, 1')
        a(f'    v_readlane_b32 s{sT1}, v{vGS}, s{sT0}')
        a(f'    s_mul_i32 s{sT0}, s{sNODE}, {TS}')
        a(f'    s_add_u32 s{sT0}, s{sT0}, s{sEAB}')
        a(f'    v_add_u32 v{vEAA}, s{sT0}, v{vQ16}')
        a(f'    ds_read_b128 v[{vEA}:{vEA+3}], v{vEAA}')
        a(f'    s_min_u32 s{sT1}, s{sT1}, s{sG1}')
        a(f'    s_sub_u32 s{sLEFT}, s{sT1}, s{sGEND}')
        a(f'    s_sub_u32 s{sLEFT}, s{sLEFT}, 1')
        a(f'    s_mov_b32 s{sGEND}, s{sT1}')

    def set_slot():
        a(f'    s_add_u32 s{sSLOT}, s{sNODE}, s{sWAVE}')
        a(f'    s_lshl_b32 s{sSLOT}, s{sSLOT}, 9')

    def flush():
        a(f'    v_add_u32 v{vACC}, s{sSLOT}, v{vFL}')
        for i in range(4):
            a(f'    v_permlane32_swap_b32 v{vDEN+i}, v{vNUM+i}')
        a(f'    v_pk_add_f32 v[{vDEN}:{vDEN+1}], v[{vDEN}:{vDEN+1}], v[{vNUM}:{vNUM+1}]')
        a(f'    v_pk_add_f32 v[{vDEN+2}:{vDEN+3}], v[{vDEN+2}:{vDEN+3}], v[{vNUM+2}:{vNUM+3}]')
        a('    s_nop 1')
        a(f'    v_permlane16_swap_b32 v{vDEN}, v{vDEN+2}')
        a(f'    v_permlane16_swap_b32 v{vDEN+1}, v{vDEN+3}')
        a(f'    v_pk_add_f32 v[{vNUM}:{vNUM+1}], v[{vDEN}:{vDEN+1}], v[{vDEN+2}:{vDEN+3}]')
        a(f'    ds_write_b64 v{vACC}, v[{vNUM}:{vNUM+1}] offset:{L2_SLOT}')

    def step(k, safe, init):
        d = vDAT + 4*k
        ev = vEV + (k & 1); evn = vEV + ((k+1) & 1)
        pn = vP + 2*((k+1) % U)
        for i in range(4):
            a(f'    v_fma_mix_f32 v{vT+i}, v{ev}, v{vWC+i}, v{d+i} op_sel:[0,0,0] op_sel_hi:[0,0,1]')
        a(f'    ds_read_u16_d16_hi v{evn}, v{vSA} offset:{L2_LIST + 16*(k+1) + 2}')
        a(f'    ds_read_u16 v{pn}, v{vSA} offset:{L2_LIST + 16*(k+1+U)}')
        if init and safe:
            a('    s_waitcnt lgkmcnt(3)')
        if safe:
            a(f'    v_pk_add_f32 v[{vT}:{vT+1}], v[{vT}:{vT+1}], v[{vEA}:{vEA+1}]')
            a(f'    v_pk_add_f32 v[{vT+2}:{vT+3}], v[{vT+2}:{vT+3}], v[{vEA+2}:{vEA+3}]')
        for i in range(4):
            a(f'    v_exp_f32 v{vT+i}, v{vT+i}')
        if init and not safe:
            a('    s_waitcnt lgkmcnt(3)')
        if safe:
            a(f'    v_pk_add_f32 v[{vT}:{vT+1}], v[{vT}:{vT+1}], 1.0 op_sel_hi:[1,0]')
            a(f'    v_pk_add_f32 v[{vT+2}:{vT+3}], v[{vT+2}:{vT+3}], 1.0 op_sel_hi:[1,0]')
        else:
            a(f'    v_pk_fma_f32 v[{vT}:{vT+1}], v[{vEA}:{vEA+1}], v[{vT}:{vT+1}], 1.0 op_sel_hi:[1,1,0]')
            a(f'    v_pk_fma_f32 v[{vT+2}:{vT+3}], v[{vEA+2}:{vEA+3}], v[{vT+2}:{vT+3}], 1.0 op_sel_hi:[1,1,0]')
        if init:
            for i in range(4):
                a(f'    v_rcp_f32 v{vDEN+i}, v{vT+i}')
            a('    s_nop 0')
            a(f'    v_pk_mul_f32 v[{vNUM}:{vNUM+1}], v[{vDEN}:{vDEN+1}], v[{d}:{d+1}]')
            a(f'    v_pk_mul_f32 v[{vNUM+2}:{vNUM+3}], v[{vDEN+2}:{vDEN+3}], v[{d+2}:{d+3}]')
        else:
            for i in range(4):
                a(f'    v_rcp_f32 v{vT+i}, v{vT+i}')
            a(f'    v_pk_add_f32 v[{vDEN}:{vDEN+1}], v[{vDEN}:{vDEN+1}], v[{vT}:{vT+1}]')
            a(f'    v_pk_add_f32 v[{vDEN+2}:{vDEN+3}], v[{vDEN+2}:{vDEN+3}], v[{vT+2}:{vT+3}]')
            a(f'    v_pk_fma_f32 v[{vNUM}:{vNUM+1}], v[{vT}:{vT+1}], v[{d}:{d+1}], v[{vNUM}:{vNUM+1}]')
            a(f'    v_pk_fma_f32 v[{vNUM+2}:{vNUM+3}], v[{vT+2}:{vT+3}], v[{d+2}:{d+3}], v[{vNUM+2}:{vNUM+3}]')
        tload(k)
        if k == U-1:
            a(f'    v_add_u32 v{vSA}, {16*U}, v{vSA}')

    def loopback(pfx):
        if PRIO:
            a(f'    s_sub_u32 s{sPR}, s{sPR}, 1')
            a(f'    s_cmp_lg_u32 s{sPR}, 0')
            a(f'    s_cbranch_scc1 {pfx}_STEP0')
            a(f'    s_branch {pfx}_PRIO')
        else:
            a(f'    s_branch {pfx}_STEP0')

    for pfx, safe in (('K2F', False), ('K2S', True)):
        a.label(f'{pfx}_ENTER')
        next_node()
        set_slot()
        a('    s_waitcnt vmcnt(3) lgkmcnt(0)')
        dstamp(a, 2)
        step(0, safe, True)
        a(f'    s_branch {pfx}_STEP1')
        for k in range(U):
            a.label(f'{pfx}_STEP{k}')
            a(f'    s_waitcnt vmcnt({U-1}) lgkmcnt(0)')
            a(f'    s_sub_u32 s{sLEFT}, s{sLEFT}, 1')
            a(f'    s_cbranch_scc1 {pfx}_FLUSH{k}')
            step(k, safe, False)
            if k == U-1:
                loopback(pfx)
        for k in range(U):
            a.label(f'{pfx}_FLUSH{k}')
            a(f'    s_cmp_ge_u32 s{sGEND}, s{sG1}')
            a(f'    s_cbranch_scc1 K2_LAST')
            next_node()
            flush()
            set_slot()
            step(k, safe, True)
            if k == U-1:
                loopback(pfx)
            else:
                a(f'    s_branch {pfx}_STEP{k+1}')
        if PRIO:
            a.label(f'{pfx}_PRIO')
            a(f'    s_sub_u32 s{sLVL}, s{sLVL}, 1')
            a(f'    s_cmp_eq_u32 s{sLVL}, 2')
            a(f'    s_cbranch_scc1 {pfx}_PRIO2')
            a(f'    s_cmp_eq_u32 s{sLVL}, 1')
            a(f'    s_cbranch_scc1 {pfx}_PRIO1')
            a(f'    s_mov_b32 s{sPR}, 0x7fffffff')
            a('    s_setprio 0')
            a(f'    s_branch {pfx}_STEP0')
            a.label(f'{pfx}_PRIO2')
            a(f'    s_mov_b32 s{sPR}, s{sPQ}')
            a('    s_setprio 2')
            a(f'    s_branch {pfx}_STEP0')
            a.label(f'{pfx}_PRIO1')
            a(f'    s_mov_b32 s{sPR}, s{sPQ2}')
            a('    s_setprio 1')
            a(f'    s_branch {pfx}_STEP0')
    a.label('K2_LAST')
    dstamp(a, 3)
    flush()
    a.label('K2_MAIN_DONE')
    if PRIO: a('    s_setprio 0')
    a(f'    s_cmp_eq_u32 s{sPASS}, 0')
    a('    s_cbranch_scc0 K2_NOUST')
    a(f'    s_cmp_eq_u32 s{sMODE}, 1')
    a('    s_cbranch_scc1 K2_NOUST')
    a(f'    s_cmp_lt_u32 s{sWAVE}, 12')
    a('    s_cbranch_scc0 K2_NOUST')
    a(f'    ds_write_b128 v{vUA}, v[{vU}:{vU+3}] offset:{L2_UT-L2_EAT}')
    a.label('K2_NOUST')
    a(f'    s_cmp_eq_u32 s{sMODE}, 2')
    a('    s_cbranch_scc0 K2_NOABORT')
    a(f'    s_mov_b32 s{sMODE}, 1')
    a(f'    s_mov_b32 s{sPASS}, 0')
    a('    s_waitcnt vmcnt(0) lgkmcnt(0)')
    a('    s_barrier')
    a('    s_branch K2_PASS')
    a.label('K2_NOABORT')
    a(f'    v_cvt_f32_u32 v{vA}, s{sR}')
    a(f'    v_cvt_f32_u32 v{vA+1}, v{vGS}')
    a(f'    v_rcp_f32 v{vA}, v{vA}')
    a(f'    v_cvt_f32_u32 v{vA+2}, v{vGE}')
    a(f'    v_add_f32 v{vA+1}, 0.5, v{vA+1}')
    a(f'    v_add_f32 v{vA+2}, -0.5, v{vA+2}')
    a(f'    v_mul_f32 v{vA+1}, v{vA+1}, v{vA}')
    a(f'    v_mul_f32 v{vA+2}, v{vA+2}, v{vA}')
    a(f'    v_cvt_u32_f32 v{vA+1}, v{vA+1}          ; wlo')
    a(f'    v_cvt_u32_f32 v{vA+2}, v{vA+2}          ; whi')
    a(f'    v_sub_u32 v{vA+2}, v{vA+2}, v{vA+1}')
    a(f'    v_add_u32 v{vA+2}, 1, v{vA+2}')
    a(f'    v_cmp_eq_u32 vcc, 0, v{vNG}')
    a(f'    v_add_u32 v{vA+1}, v{vA+1}, v{vLANE}')
    a(f'    v_and_b32 v{vA+1}, 0xffff, v{vA+1}')
    a(f'    v_cndmask_b32 v{vA+2}, v{vA+2}, 0, vcc')
    a(f'    v_lshl_or_b32 v{vA+3}, v{vA+2}, 16, v{vA+1}')
    a(f'    v_lshrrev_b32 v{vA}, 4, v0')
    a(f'    v_and_b32 v{vA+4}, 63, v{vA}')
    a(f'    v_lshlrev_b32 v{vA+4}, 2, v{vA+4}')
    a(f'    ds_bpermute_b32 v{vA+1}, v{vA+4}, v{vA+3}')
    a(f'    v_mul_u32_u24 v{vA+5}, {TS}, v{vA}')
    a('    s_waitcnt vmcnt(0) lgkmcnt(0)')
    a(f'    v_cmp_gt_u32 vcc, {NPB*16}, v0')
    a(f'    v_lshrrev_b32 v{vA+2}, 16, v{vA+1}')
    a(f'    v_and_b32 v{vA+1}, 0xffff, v{vA+1}')
    a(f'    v_cndmask_b32 v{vA+2}, 0, v{vA+2}, vcc')
    a(f'    v_lshl_add_u32 v{vA+1}, v{vA+1}, 9, v{vQ16}')
    stamp(a, 6)
    a('    s_barrier')
    a.label('K2_FOLD')
    masked(a, f'v_cmp_lt_u32 vcc, 0, v{vA+2}', sEX, 'K2_FOLD_DONE')
    a(f'    ds_read_b128 v[{vDEN}:{vDEN+3}], v{vA+1} offset:{L2_SLOT}')
    a(f'    ds_read_b128 v[{vNUM}:{vNUM+3}], v{vA+1} offset:{L2_SLOT+256}')
    a(f'    v_add_u32 v{vA+1}, 512, v{vA+1}')
    a(f'    v_add_u32 v{vA+2}, -1, v{vA+2}')
    a('    s_waitcnt lgkmcnt(1)')
    a(f'    v_pk_add_f32 v[{vDA}:{vDA+1}], v[{vDA}:{vDA+1}], v[{vDEN}:{vDEN+1}]')
    a(f'    v_pk_add_f32 v[{vDA+2}:{vDA+3}], v[{vDA+2}:{vDA+3}], v[{vDEN+2}:{vDEN+3}]')
    a('    s_waitcnt lgkmcnt(0)')
    a(f'    v_pk_add_f32 v[{vNA}:{vNA+1}], v[{vNA}:{vNA+1}], v[{vNUM}:{vNUM+1}]')
    a(f'    v_pk_add_f32 v[{vNA+2}:{vNA+3}], v[{vNA+2}:{vNA+3}], v[{vNUM+2}:{vNUM+3}]')
    unmask(a, sEX)
    a('    s_branch K2_FOLD')
    unmask(a, sEX, 'K2_FOLD_DONE')
    a(f'    s_cmp_eq_u32 s{sMODE}, 0')
    a('    s_cbranch_scc1 K2_EPI')
    a(f'    s_add_u32 s{sPASS}, s{sPASS}, 1')
    a(f'    s_cmp_lt_u32 s{sPASS}, {NC}')
    a('    s_cbranch_scc0 K2_EPI')
    a('    s_barrier')
    a('    s_branch K2_PASS')
    a.label('K2_EPI')
    a(f'    s_mov_b32 s{sXT}, {L2_XT}')
    masked(a, f'v_cmp_gt_u32 vcc, {NPB*16}, v0', sEX, 'K2_FIN')
    a(f'    v_add_u32 v{vA+5}, v{vA+5}, v{vQ16}')
    a(f'    v_add_u32 v{vA+5}, {L2_UT}, v{vA+5}')
    a(f'    ds_read_b128 v[{vDEN}:{vDEN+3}], v{vA+5}')
    a(f'    v_lshrrev_b32 v{vA+6}, 4, v0')
    a(f'    v_mul_u32_u24 v{vA+6}, {XS}, v{vA+6}')
    a(f'    v_lshrrev_b32 v{vA+7}, 1, v{vQ16}')
    a(f'    v_add3_u32 v{vA+6}, v{vA+6}, v{vA+7}, s{sXT}')
    a(f'    ds_read_b64 v[{vX}:{vX+1}], v{vA+6}')
    a(f'    s_mov_b32 s{sT0}, {hex(f2u(1e-6))}')
    a('    s_waitcnt lgkmcnt(0)')
    a(f'    v_lshlrev_b32 v{vT}, 16, v{vX}')
    a(f'    v_and_b32 v{vT+1}, 0xffff0000, v{vX}')
    a(f'    v_lshlrev_b32 v{vT+2}, 16, v{vX+1}')
    a(f'    v_and_b32 v{vT+3}, 0xffff0000, v{vX+1}')
    for i in range(4):
        a(f'    v_add_f32 v{vDA+i}, s{sT0}, v{vDA+i}')
    for i in range(4):
        a(f'    v_rcp_f32 v{vDA+i}, v{vDA+i}')
    a('    s_waitcnt lgkmcnt(0)')
    for i in range(4):
        a(f'    v_fma_f32 v{vNA+i}, v{vNA+i}, v{vDA+i}, v{vDEN+i}    ; z = U + agg')
    for i in range(4):
        a(f'    v_mul_f32 v{vDEN+i}, 0, v{vNA+i}                     ; 0*z')
        a(f'    v_cmp_lt_f32 vcc, 0, v{vNA+i}')
        a('    s_nop 1')
        a(f'    v_cndmask_b32 v{vNA+i}, v{vDEN+i}, v{vNA+i}, vcc')
        a(f'    v_add_f32 v{vNA+i}, v{vNA+i}, v{vT+i}')
    a(f'    v_cvt_pk_bf16_f32 v{vDEN}, v{vNA}, v{vNA+1}')
    a(f'    v_cvt_pk_bf16_f32 v{vDEN+1}, v{vNA+2}, v{vNA+3}')
    a(f'    s_mul_i32 s{sT1}, s{sB}, {NPB*128}')
    a(f'    v_lshlrev_b32 v{vA+1}, 3, v0')
    a(f'    buffer_store_dwordx2 v[{vDEN}:{vDEN+1}], v{vA+1}, s[{SRD_OUT}:{SRD_OUT+3}], s{sT1} offen {OUTST}')
    a.label('K2_FIN')
    if STAMP:
        a('    s_mov_b64 exec, -1')
        a('    s_waitcnt vmcnt(0)')
    stamp(a, 7); stamp(a, 1, True)
    stamp_flush(a, sWAVE, sB, 1, 6)
    a.label('K2_END')
    a('    s_endpgm')
    a.label('CODE_END')

def gen_k3(a):
    i, j = [int(x) for x in env('INTERVAL', '0,0').split(',')]
    inv = {0: True, 2: True}
    a('.globl k3_kernel')
    a('.p2align 8')
    a('.type k3_kernel,@function')
    a.label('k3_kernel')
    a('    s_cmp_ge_u32 s2, 1')
    a('    s_cbranch_scc1 K3_END')
    a('    s_load_dwordx2 s[4:5], s[0:1], 80')
    a('    s_waitcnt lgkmcnt(0)')
    a('    v_mov_b32 v1, 0')
    a(f'    global_load_dword v2, v1, s[4:5] offset:{4*i} sc1')
    a(f'    global_load_dword v3, v1, s[4:5] offset:{4*j} sc1')
    a('    s_waitcnt vmcnt(0)')
    if inv.get(i): a('    v_not_b32 v2, v2')
    if inv.get(j): a('    v_not_b32 v3, v3')
    a('    v_sub_u32 v3, v3, v2')
    a('    s_nop 1')
    a('    v_readfirstlane_b32 s8, v3')
    a('    s_nop 3')
    a('    s_mul_i32 s8, s8, 10')
    a('    s_min_u32 s8, s8, 50000')
    a('    s_memrealtime s[10:11]')
    a('    s_waitcnt lgkmcnt(0)')
    a.label('K3_SPIN')
    a('    s_memrealtime s[12:13]')
    a('    s_waitcnt lgkmcnt(0)')
    a('    s_sub_u32 s9, s12, s10')
    a('    s_cmp_lt_u32 s9, s8')
    a('    s_cbranch_scc1 K3_SPIN')
    a.label('K3_END')
    a('    s_endpgm')

def kd(a, name, vgpr, sgpr):
    a(f'.amdhsa_kernel {name}')
    a(f'  .amdhsa_next_free_vgpr {vgpr}')
    a(f'  .amdhsa_next_free_sgpr {sgpr}')
    a(f'  .amdhsa_accum_offset {((vgpr+3)//4)*4}')
    a('  .amdhsa_group_segment_fixed_size 0')
    a('  .amdhsa_kernarg_size 96')
    a('  .amdhsa_user_sgpr_count 2')
    a('  .amdhsa_user_sgpr_kernarg_segment_ptr 1')
    a('  .amdhsa_system_sgpr_workgroup_id_x 1')
    a('  .amdhsa_float_denorm_mode_32 3')
    a('.end_amdhsa_kernel')

def main(out):
    a = Asm()
    a(f'; @launch kernel=k1_kernel grid=({K1_GRID},1,1) block=(1024,1,1) lds={K1_LDS}')
    a(f'; @launch kernel=k2_kernel grid=({NB},1,1) block=(1024,1,1) lds={K2_LDS}')
    if STAMP == 4: a('; @launch kernel=k3_kernel grid=(1,1,1) block=(64,1,1) lds=0')
    a('.amdgcn_target "amdgcn-amd-amdhsa--gfx950"')
    a('.text')
    a('.globl k1_kernel')
    gen_k1(a)
    a('.globl k2_kernel')
    gen_k2(a)
    if STAMP == 4: gen_k3(a)
    a('.section .rodata,"a"')
    a('.p2align 6')
    kd(a, 'k1_kernel', 96, 102 if STAMP else 72)
    a('.p2align 6')
    kd(a, 'k2_kernel', 128, 102 if STAMP else 80)
    if STAMP == 4:
        a('.p2align 6')
        kd(a, 'k3_kernel', 8, 32)
    a.l = [x for x in a.l if x is not None]
    open(out, 'w').write(a.text())

if __name__ == '__main__':
    main(sys.argv[1] if len(sys.argv) > 1 else 'standalone__edge_featured_mpnn_gatedgcn__graph.s')
```

```python
import sys, os, struct
def env(n, d): return os.environ.get(n, d)

N = 10000; E = 640000
NPB = 40; NB = 256; EPC = 2500; NC = 256
TPC = EPC//4
BMAGIC = 109951163
LOG2E = 1.4426950408889634
WS_REC  = 0
REC_STRIDE = EPC*5
WS_DESC = 3407872
DESC_STRIDE = 1024
WS_T    = 4194304
T_BYTES = (N+1)*256

STAMP = int(env('STAMP', '0'))
K1ST = env('K1ST', 'sc1')
PRIO = int(env('PRIO', '1'))
TFIRST = int(env('TFIRST', '1'))
WS_STAMP = 128 << 20
ST0 = 80

def f2u(f): return struct.unpack('<I', struct.pack('<f', f))[0]

class Asm:
    def __init__(self): self.l = []
    def __call__(self, s=''):
        for line in s.split('\n'): self.l.append(line)
    def label(self, n): self.l.append(n + ':')
    def text(self): return '\n'.join(self.l) + '\n'

DETAIL = int(env('DETAIL', '0'))
def dstamp(a, i):
    if DETAIL: stamp(a, i, False, True)
def stamp(a, i, real=False, force=False):
    if DETAIL and not force and not real and getattr(a, 'k2', False) and i in (1, 2, 3): return
    if STAMP:
        r = ST0 + 2*(8+i if real else i)
        a(f"    {'s_memrealtime' if (real or STAMP >= 3) else 's_memtime'} s[{r}:{r+1}]")
def stamp_flush(a, wave_sgpr, wg_sgpr, kern, ws_lo):
    if not STAMP: return
    a('    s_waitcnt lgkmcnt(0)')
    a('    s_mov_b64 exec, 1')
    a('    v_mov_b32 v2, 0')
    if STAMP == 4:
        lab = f'STSKIP{kern}_{len(a.l)}'
        a(f"    s_and_b32 s14, s{wg_sgpr}, {31 if kern == 0 else int(env('SAMP2', '31'))}")
        a('    s_cmp_eq_u32 s14, 0')
        a(f'    s_cbranch_scc0 {lab}')
        a(f'    s_cmp_eq_u32 s{wave_sgpr}, 0')
        a(f'    s_cbranch_scc0 {lab}')
        a('    s_load_dwordx2 s[12:13], s[0:1], 80')
        a('    s_waitcnt lgkmcnt(0)')
        a(f'    s_add_u32 s12, s12, {1024 if kern == 0 else 512}')
        a('    s_addc_u32 s13, s13, 0')
        slots = [(0, 8, True), (1, 9, False), (7, 4, False), (8, 2, False)] if kern == 0 else \
                [(2, 8, True), (3, 4, False), (4, 5, False), (5, 6, False), (6, 9, False), (9, 2, False)]
        for slot, st, inv in slots:
            a(f'    v_mov_b32 v3, s{ST0+2*st}')
            if inv: a('    v_not_b32 v3, v3')
            a(f'    global_atomic_umax v2, v3, s[12:13] offset:{4*slot}')
        a('    s_waitcnt vmcnt(0)')
        a.label(lab)
        return
    a(f'    s_add_u32 s12, s{ws_lo}, {WS_STAMP + kern*(4<<20)}')
    a(f'    s_addc_u32 s13, s{ws_lo+1}, 0')
    a(f'    s_mov_b32 s14, {4<<20}')
    a('    s_mov_b32 s15, 0x00020000')
    a(f'    s_lshl_b32 s16, s{wg_sgpr}, 4')
    a(f'    s_add_u32 s16, s16, s{wave_sgpr}')
    a(f'    s_lshl_b32 s16, s16, 6')
    for i in range(8):
        a(f'    v_mov_b32 v3, s{ST0+2*i}')
        a(f'    buffer_store_dword v3, v2, s[12:15], s16 offen offset:{4*i}')
    for i in range(2):
        a(f'    v_mov_b32 v3, s{ST0+2*(8+i)}')
        a(f'    buffer_store_dword v3, v2, s[12:15], s16 offen offset:{4*(10+i)}')
    a('    s_waitcnt vmcnt(0)')

def srd(a, sreg, lo, hi, nbytes, off=0, stride=0, nrec=None):
    if off:
        a(f'    s_add_u32 s{sreg}, s{lo}, {off}')
        a(f'    s_addc_u32 s{sreg+1}, s{hi}, 0')
    else:
        a(f'    s_mov_b32 s{sreg}, s{lo}')
        a(f'    s_mov_b32 s{sreg+1}, s{hi}')
    if stride:
        a(f'    s_and_b32 s{sreg+1}, s{sreg+1}, 0xffff')
        a(f'    s_or_b32 s{sreg+1}, s{sreg+1}, {stride << 16}')
        a(f'    s_mov_b32 s{sreg+2}, {nrec}')
    else:
        a(f'    s_mov_b32 s{sreg+2}, {nbytes}')
    a(f'    s_mov_b32 s{sreg+3}, 0x00020000')

def dpp_scan(a, v):
    for sh in (1, 2, 4, 8):
        a('    s_nop 1')
        a(f'    v_add_u32_dpp v{v}, v{v}, v{v} row_shr:{sh} row_mask:0xf bank_mask:0xf')
    a('    s_nop 1')
    a(f'    v_add_u32_dpp v{v}, v{v}, v{v} row_bcast:15 row_mask:0xa bank_mask:0xf')
    a('    s_nop 1')
    a(f'    v_add_u32_dpp v{v}, v{v}, v{v} row_bcast:31 row_mask:0xc bank_mask:0xf')

def masked(a, cond, exreg, skip=None):
    a(f'    {cond}')
    a(f'    s_and_saveexec_b64 s[{exreg}:{exreg+1}], vcc')
    if skip: a(f'    s_cbranch_execz {skip}')
def unmask(a, exreg, skip=None):
    if skip: a.label(skip)
    a(f'    s_mov_b64 exec, s[{exreg}:{exreg+1}]')

def lds_sync(a, name, off, n, vzero, vone, vt, st):
    a('    s_waitcnt lgkmcnt(0)')
    a('    s_mov_b64 exec, 1')
    a(f'    ds_add_u32 v{vzero}, v{vone} offset:{off}')
    a('    s_mov_b64 exec, -1')
    a.label(name)
    a(f'    ds_read_b32 v{vt}, v{vzero} offset:{off}')
    a('    s_waitcnt lgkmcnt(0)')
    a(f'    v_readfirstlane_b32 s{st}, v{vt}')
    a(f'    s_cmp_lt_u32 s{st}, {n}')
    a(f'    s_cbranch_scc1 {name}')

K1_GRID = NC
L1_HIST = 0; L1_START = 1024; L1_SYNC = 2048
L1_ST32 = 2304; L1_ST8 = L1_ST32 + 2560*4; L1_W = 15360
K1_LDS = L1_W + 16384
K1PF = int(env('K1PF', '0'))
CPF = int(env('CPF', '1'))
XMAP = int(env('XMAP', '1'))
DESCST = env('DESCST', '')
OUTST = env('OUTST', '')
RECST = env('RECST', K1ST)
TST = env('TST', K1ST)
TFIRST = int(env('TFIRST', '1'))

def gen_k1(a):
    a('.p2align 8')
    a('.type k1_kernel,@function')
    a.label('k1_kernel')
    a(f'    s_cmp_ge_u32 s2, {K1_GRID}')
    a('    s_cbranch_scc1 K1_END')
    stamp(a, 0); stamp(a, 0, True)
    if CPF:
        a('    s_getpc_b64 s[30:31]')
        a.label('K1_PC')
        a('    v_lshlrev_b32 v90, 7, v0')
        lim = 'CODE_END-K1_PC' if CPF >= 2 else 'k2_kernel-K1_PC'
        a(f'    v_cmp_gt_u32 vcc, {lim}, v90')
        a('    s_and_saveexec_b64 s[28:29], vcc')
        a('    s_cbranch_execz K1_NOCPF')
        a('    global_load_dword v91, v90, s[30:31]')
        a.label('K1_NOCPF')
        a('    s_mov_b64 exec, s[28:29]')
    if XMAP:
        a('    s_and_b32 s20, s2, 7')
        a('    s_lshr_b32 s21, s2, 3')
        a('    s_lshl_b32 s20, s20, 5')
        a('    s_add_u32 s2, s20, s21')
    a('    v_lshrrev_b32 v1, 6, v0')
    a('    s_load_dwordx4 s[8:11], s[0:1], 16')
    a('    v_readfirstlane_b32 s20, v1')
    a('    s_load_dwordx2 s[4:5], s[0:1], 8      ; e_attr')
    a('    s_load_dwordx2 s[6:7], s[0:1], 88     ; ws')
    a('    v_and_b32 v2, 63, v0                   ; lane')
    if TFIRST:
        a('    s_cmp_lt_u32 s20, 6')
        a('    s_cbranch_scc1 K1_TABLE')
        a('    v_subrev_u32 v0, 384, v0')
        a('    s_sub_u32 s20, s20, 6')
    else:
        a('    s_cmp_ge_u32 s20, 10')
        a('    s_cbranch_scc1 K1_TABLE')
    a('    v_mov_b32 v5, 0')
    a('    v_lshlrev_b32 v6, 2, v0               ; t*4')
    masked(a, 'v_cmp_gt_u32 vcc, 256, v0', 30)
    a(f'    ds_write_b32 v6, v5 offset:{L1_HIST}')
    unmask(a, 30)
    a('    v_lshlrev_b32 v3, 4, v0               ; t*16')
    a('    v_lshlrev_b32 v4, 3, v0               ; t*8')
    a(f'    s_mul_i32 s21, s2, {EPC*4}')
    a(f'    s_mul_i32 s22, s2, {EPC*2}')
    a(f'    s_mov_b32 s23, {BMAGIC}')
    a(f'    v_mov_b32 v19, {TPC}')
    a('    v_cmp_gt_u32 s[46:47], v19, v0')
    a('    s_waitcnt lgkmcnt(0)')
    srd(a, 12, 10, 11, E*4)
    a('    buffer_load_dwordx4 v[8:11], v3, s[12:15], s21 offen     ; dst x4')
    srd(a, 16, 8, 9, E*4)
    a('    buffer_load_dwordx4 v[12:15], v3, s[16:19], s21 offen    ; src x4')
    srd(a, 24, 4, 5, E*2)
    a('    buffer_load_dwordx2 v[16:17], v4, s[24:27], s22 offen')
    srd(a, 32, 6, 7, NC*REC_STRIDE, off=WS_REC)
    srd(a, 36, 6, 7, NB*DESC_STRIDE, off=WS_DESC)
    a('    v_lshlrev_b32 v6, 4, v2                ; lane*16')
    a('    v_mul_u32_u24 v7, 20, v0')
    a('    v_lshlrev_b32 v18, 12, v2')
    a(f'    s_mul_i32 s25, s2, {REC_STRIDE}')
    a('    s_lshl_b32 s26, s2, 2')
    a('    s_mov_b32 s40, 0x06050400')
    a('    s_mov_b32 s41, 0x05040003')
    a('    s_mov_b32 s42, 0x03020500')
    a('    s_mov_b32 s43, 0x04000302')
    a('    s_mov_b32 s44, 0x03060100')
    a('    s_mov_b32 s45, 0x07030201')
    stamp(a, 1)
    a('    s_barrier')
    a('    v_mov_b32 v5, 1')
    a('    v_mov_b32 v19, 0')
    a('    s_waitcnt vmcnt(2)')
    stamp(a, 2)
    for k in range(4):
        a(f'    v_mul_hi_u32 v{20+k}, s23, v{8+k}        ; bucket')
    for k in range(4):
        a(f'    v_lshlrev_b32 v{24+k}, 2, v{20+k}       ; bucket*4')
    a('    s_mov_b64 exec, s[46:47]')
    for k in range(4):
        a(f'    ds_add_rtn_u32 v{28+k}, v{24+k}, v5 offset:{L1_HIST}')
    a('    s_mov_b64 exec, -1')
    a('    s_movk_i32 s27, 625')
    for k in range(4):
        a(f'    v_mad_u32_u24 v{20+k}, v{20+k}, s27, 15')
    for k in range(4):
        a(f'    v_lshrrev_b32 v{20+k}, 4, v{20+k}')
    for k in range(4):
        a(f'    v_sub_u32 v{20+k}, v{8+k}, v{20+k}')
    for k in range(4):
        a(f'    v_lshlrev_b32 v{20+k}, 2, v{20+k}')
    a('    s_waitcnt vmcnt(0)')
    a('    v_lshl_or_b32 v32, v16, 16, v12')
    a('    s_mov_b32 s24, 0xffff0000')
    a('    v_and_or_b32 v33, v16, s24, v13')
    a('    v_lshl_or_b32 v34, v17, 16, v14')
    a('    v_and_or_b32 v35, v17, s24, v15')
    a('    s_waitcnt lgkmcnt(0)')
    stamp(a, 3)
    lds_sync(a, 'K1_SYNC2', L1_SYNC+4, 10, 19, 5, 25+40, 27)
    stamp(a, 4)
    a(f'    ds_read_b128 v[40:43], v6 offset:{L1_HIST}')
    a('    s_waitcnt lgkmcnt(0)')
    a('    v_add_u32 v44, v40, v41                ; h0+h1')
    a('    v_add_u32 v45, v44, v42')
    a('    v_add_u32 v46, v45, v43                ; sum4')
    a('    v_mov_b32 v47, v46')
    dpp_scan(a, 47)
    a('    v_sub_u32 v48, v47, v46')
    a('    v_add_u32 v49, v48, v40')
    a('    v_add_u32 v50, v48, v44')
    a('    v_add_u32 v51, v48, v45')
    a(f'    ds_write_b128 v6, v[48:51] offset:{L1_START}')
    a('    s_waitcnt lgkmcnt(0)')
    for k in range(4):
        a(f'    ds_read_b32 v{56+k}, v{24+k} offset:{L1_START}')
    for k in range(4):
        a(f'    v_lshl_or_b32 v{52+k}, v{40+k}, 16, v{48+k}')
    a('    s_waitcnt lgkmcnt(0)')
    for k in range(4):
        a(f'    v_add_u32 v{56+k}, v{56+k}, v{28+k}      ; position')
    a('    s_mov_b64 exec, s[46:47]')
    for k in range(4):
        a(f'    ds_write_b8 v{56+k}, v{20+k} offset:{L1_ST8}')
        a(f'    v_lshlrev_b32 v{60+k}, 2, v{56+k}')
    for k in range(4):
        a(f'    ds_write_b32 v{60+k}, v{32+k} offset:{L1_ST32}')
    a('    s_mov_b64 exec, -1')
    a('    s_waitcnt lgkmcnt(0)')
    stamp(a, 5)
    lds_sync(a, 'K1_SYNC3', L1_SYNC+8, 10, 19, 5, 25+40, 27)
    a(f'    ds_read_b128 v[8:11], v3 offset:{L1_ST32}')
    a('    v_lshrrev_b32 v4, 2, v3                ; t*4')
    a(f'    ds_read_b32 v12, v4 offset:{L1_ST8}')
    a('    s_waitcnt lgkmcnt(0)')
    a('    v_perm_b32 v21, v9, v12, s40           ; d1 = L0 r1.b0 r1.b1 r1.b2')
    a('    v_perm_b32 v22, v10, v9, s41           ; r1.b3 . r2.b0 r2.b1')
    a('    v_perm_b32 v23, v11, v10, s43          ; r2.b2 r2.b3 . r3.b0')
    a('    v_mov_b32 v20, v8')
    a('    v_perm_b32 v22, v12, v22, s42          ; d2 : insert L1')
    a('    v_perm_b32 v23, v12, v23, s44          ; d3 : insert L2')
    a('    v_perm_b32 v24, v12, v11, s45          ; d4 = r3.b1 r3.b2 r3.b3 L3')
    a('    s_mov_b64 exec, s[46:47]')
    a(f'    buffer_store_dwordx4 v[20:23], v7, s[32:35], s25 offen {RECST}')
    a(f'    buffer_store_dword v24, v7, s[32:35], s25 offen offset:16 {RECST}')
    a('    s_mov_b64 exec, -1')
    a('    s_cmp_eq_u32 s20, 0')
    a('    s_cbranch_scc0 K1_SFIN')
    for k in range(4):
        a(f'    buffer_store_dword v{52+k}, v18, s[36:39], s26 offen offset:{1024*k} {DESCST}')
    a.label('K1_SFIN')
    if STAMP:
        stamp(a, 6)
        a('    s_waitcnt vmcnt(0)')
        stamp(a, 7); stamp(a, 1, True)
        stamp_flush(a, 20, 2, 0, 6)
    a('    s_endpgm')
    a.label('K1_TABLE')
    a('    s_load_dwordx2 s[40:41], s[0:1], 40   ; w_b')
    a('    s_load_dwordx2 s[42:43], s[0:1], 64   ; w_v')
    a('    s_load_dwordx2 s[44:45], s[0:1], 0    ; x')
    if K1PF:
        a('    s_load_dwordx2 s[60:61], s[0:1], 32   ; w_a')
        a('    s_load_dwordx4 s[64:67], s[0:1], 48   ; w_c, w_u')
        a('    s_load_dwordx2 s[62:63], s[0:1], 72   ; out')
    a('    s_mov_b32 s21, s20                     ; tw' if TFIRST else '    s_sub_u32 s21, s20, 10                 ; tw')
    a('    v_mov_b32 v5, 0')
    a('    v_lshlrev_b32 v6, 2, v2')
    a('    s_cmp_eq_u32 s21, 0')
    a('    s_cbranch_scc0 K1_T_NOZ')
    masked(a, 'v_cmp_gt_u32 vcc, 4, v2', 30)
    a(f'    ds_write_b32 v6, v5 offset:{L1_SYNC}')
    unmask(a, 30)
    a.label('K1_T_NOZ')
    a('    s_lshr_b32 s22, s21, 1')
    a('    s_lshl_b32 s22, s22, 4                 ; 16*rt')
    a('    v_and_b32 v4, 15, v2')
    a('    v_add_u32 v4, s22, v4')
    a('    v_lshrrev_b32 v5, 4, v2                ; g')
    a('    v_lshlrev_b32 v6, 7, v4')
    a('    v_lshl_add_u32 v6, v5, 4, v6')
    a('    s_mul_i32 s58, s2, 625')
    a('    s_add_u32 s59, s58, 640                ; 625*(c+1) + 15')
    a('    s_add_u32 s58, s58, 15')
    a('    s_lshr_b32 s58, s58, 4')
    a('    s_lshr_b32 s59, s59, 4')
    a('    s_sub_u32 s59, s59, s58')
    a('    s_lshl_b32 s24, s58, 7')
    a('    v_lshlrev_b32 v7, 4, v2                ; lane*16')
    a('    v_bfe_u32 v8, v2, 4, 1')
    a('    v_lshlrev_b32 v8, 1, v8')
    a('    v_and_b32 v9, 7, v2')
    a('    v_xor_b32 v8, v8, v9')
    a('    v_lshrrev_b32 v9, 3, v2')
    a('    v_lshlrev_b32 v9, 7, v9                ; (lane>>3)*128')
    a('    s_waitcnt lgkmcnt(0)')
    for i in range(3):
        a(f'    s_add_u32 s26, s21, {6*i}              ; p')
        a('    s_cmp_lt_u32 s26, 8')
        a('    s_cselect_b32 s48, s40, s42')
        a('    s_cselect_b32 s49, s41, s43')
        a('    s_mov_b32 s50, 8192')
        a('    s_mov_b32 s51, 0x00020000')
        a('    s_and_b32 s27, s26, 7')
        a('    s_lshl_b32 s27, s27, 10')
        a('    s_cmp_lt_u32 s26, 16')
        a(f'    s_cselect_b32 s27, s27, {1<<20}')
        a(f'    buffer_load_dwordx4 v[{48+4*i}:{51+4*i}], v7, s[48:51], s27 offen')
    srd(a, 36, 44, 45, N*128)
    a('    buffer_load_dwordx4 v[24:27], v6, s[36:39], s24 offen')
    a('    buffer_load_dwordx4 v[28:31], v6, s[36:39], s24 offen offset:64')
    if K1PF:
        a('    s_cmp_eq_u32 s21, 5')
        a('    s_cbranch_scc0 K1_T_NOPF')
        a('    v_lshlrev_b32 v60, 8, v2')
        a('    v_lshlrev_b32 v61, 7, v2')
        a('    global_load_dword v62, v61, s[60:61]')
        a('    global_load_dword v62, v61, s[66:67]')
        a('    v_mov_b32 v63, 0')
        a('    global_load_dword v62, v63, s[64:65]')
        a('    s_lshl_b32 s26, s58, 7')
        a('    v_mov_b32 v63, s26')
        a('    global_load_dword v62, v63, s[62:63]')
        srd(a, 52, 6, 7, WS_T + T_BYTES, off=0)
        a(f'    s_mul_i32 s26, s2, {REC_STRIDE}')
        a('    v_mov_b32 v63, s26')
        a('    buffer_load_dword v62, v63, s[52:55], 0 offen')
        a('    s_lshl_b32 s26, s58, 8')
        a(f'    s_add_u32 s26, s26, {WS_T}')
        a('    v_mov_b32 v63, s26')
        a('    buffer_load_dword v62, v63, s[52:55], 0 offen')
        a(f'    s_lshl_b32 s26, s2, 2')
        a(f'    s_add_u32 s26, s26, {WS_DESC}')
        a('    v_mov_b32 v63, s26')
        a('    buffer_load_dword v62, v63, s[52:55], 0 offen')
        a.label('K1_T_NOPF')
    a('    s_barrier')
    if K1PF: a.label('K1_T_PFJOIN0')
    srd(a, 44, 6, 7, T_BYTES, off=WS_T)
    for i in range(3):
        a(f'    s_add_u32 s26, s21, {6*i}              ; p')
        a('    s_and_b32 s27, s26, 1')
        a('    s_lshl_b32 s27, s27, 2')
        a(f'    v_xor_b32 v{18+i}, s27, v8')
        a(f'    v_lshl_add_u32 v{18+i}, v{18+i}, 4, v9')
        a('    s_lshl_b32 s27, s26, 10                ; m*8192 + (p&7)*1024 = p*1024')
        a(f'    v_add_u32 v{18+i}, s27, v{18+i}')
    a('    s_and_b32 s23, s21, 1                  ; half')
    a('    v_bfe_u32 v12, v2, 2, 2                ; r')
    a('    v_lshl_add_u32 v13, v5, 3, v12         ; rho')
    a('    v_lshlrev_b32 v13, 7, v13')
    a('    v_and_b32 v14, 1, v2')
    a('    v_lshl_add_u32 v13, v14, 3, v13        ; + (c&1)*8')
    a('    v_bfe_u32 v14, v2, 1, 1                ; c>>1')
    a('    v_lshrrev_b32 v12, 1, v12')
    a('    v_and_b32 v15, 1, v5                   ; g&1')
    a('    v_lshlrev_b32 v15, 1, v15')
    a('    v_or_b32 v12, v12, v15                 ; swz/2')
    a('    s_lshl_b32 s25, s23, 1')
    a('    v_xor_b32 v15, s25, v12')
    a('    v_lshl_or_b32 v15, v15, 1, v14')
    a('    v_lshl_add_u32 v16, v15, 4, v13')
    a('    s_add_u32 s25, s25, 1')
    a('    v_xor_b32 v15, s25, v12')
    a('    v_lshl_or_b32 v15, v15, 1, v14')
    a('    v_lshl_add_u32 v17, v15, 4, v13')
    a('    v_lshlrev_b32 v21, 8, v4')
    a('    v_lshl_add_u32 v21, v5, 4, v21')
    a('    s_lshl_b32 s25, s23, 7')
    a('    s_lshl_b32 s26, s58, 8')
    a('    s_add_u32 s25, s25, s26')
    a('    v_add_u32 v21, s25, v21')
    a('    v_cmp_gt_u32 vcc, s59, v4')
    a(f'    v_mov_b32 v22, {1<<30}')
    a(f'    s_mov_b32 s27, {hex(f2u(-LOG2E))}')
    a('    s_mov_b32 s28, 0xffff0000')
    a('    v_cndmask_b32 v9, v22, v21, vcc')
    a('    s_mov_b32 s29, 0x80000000')
    a('    v_mov_b32 v10, 0')
    a('    v_mov_b32 v11, 1')
    if K1PF:
        a('    s_cmp_eq_u32 s21, 5')
        a('    s_cbranch_scc0 K1_T_W2')
        a('    s_waitcnt vmcnt(9)')
        a('    s_branch K1_T_W9')
        a.label('K1_T_W2')
    a('    s_waitcnt vmcnt(2)')
    if K1PF: a.label('K1_T_W9')
    stamp(a, 1)
    for i in range(3):
        if i == 2:
            a('    s_cmp_lt_u32 s21, 4')
            a('    s_cbranch_scc0 K1_T_ST2')
        a(f'    ds_write_b128 v{18+i}, v[{48+4*i}:{51+4*i}] offset:{L1_W}')
    a.label('K1_T_ST2')
    lds_sync(a, 'K1_T_SPIN', L1_SYNC, 6, 10, 11, 12, 26)
    stamp(a, 3)
    order = [(jj, ks, m) for jj in range(2) for ks in range(2) for m in range(2)]
    for i, (jj, ks, m) in enumerate(order):
        b = 64 + 4*i
        off = L1_W + m*8192 + ks*32*128
        a(f'    ds_read_b64_tr_b16 v[{b}:{b+1}], v{16+jj} offset:{off}')
        a(f'    ds_read_b64_tr_b16 v[{b+2}:{b+3}], v{16+jj} offset:{off+512}')
    if K1PF:
        a('    s_cmp_eq_u32 s21, 5')
        a('    s_cbranch_scc0 K1_T_X0')
        a('    s_waitcnt vmcnt(7)')
        a('    s_branch K1_T_XOK')
        a.label('K1_T_X0')
    a('    s_waitcnt vmcnt(0)')
    if K1PF: a.label('K1_T_XOK')
    for i, (jj, ks, m) in enumerate(order):
        b = 64 + 4*i
        a(f'    s_waitcnt lgkmcnt({min(15, 2*(7-i))})')
        acc = 32 + 8*m + 4*jj
        x = 24 + 4*ks
        c = '0' if ks == 0 else f'v[{acc}:{acc+3}]'
        a(f'    v_mfma_f32_16x16x32_bf16 v[{acc}:{acc+3}], v[{b}:{b+3}], v[{x}:{x+3}], {c}')
    stamp(a, 4)
    a('    s_nop 4')
    for jj in range(2):
        R = range(4)
        p = lambda r: 32 + 4*jj + r
        q = lambda r: 40 + 4*jj + r
        t = lambda r: 10 + r
        if jj == 1: a('    s_nop 2')
        for r in R: a(f'    v_mul_f32 v{p(r)}, s27, v{p(r)}')
        for r in R: a(f'    v_cvt_f16_f32 v{p(r)}, v{p(r)}')
        for r in R: a(f'    v_and_b32 v{t(r)}, 0x7fffffff, v{q(r)}')
        for r in R: a(f'    v_and_b32 v{p(r)}, 0xffff, v{p(r)}')
        for r in R: a(f'    v_sub_u32 v{t(r)}, v{t(r)}, v{p(r)}')
        for r in R: a(f'    v_add_u32 v{t(r)}, 0x8000, v{t(r)}')
        for r in R: a(f'    v_max_i32 v{t(r)}, 0, v{t(r)}')
        for r in R: a(f'    v_and_or_b32 v{t(r)}, v{t(r)}, s28, v{p(r)}')
        for r in R: a(f'    v_and_or_b32 v{p(r)}, v{q(r)}, s29, v{t(r)}')
        a(f'    buffer_store_dwordx4 v[{32+4*jj}:{35+4*jj}], v9, s[44:47], 0 offen offset:{jj*64} {TST}')
    a('    s_cmp_eq_u32 s2, 0')
    a('    s_cbranch_scc0 K1_TFIN')
    a('    s_cmp_eq_u32 s21, 0')
    a('    s_cbranch_scc0 K1_TFIN')
    a('    v_mov_b32 v10, 0x7c00')
    a(f'    v_lshlrev_b32 v11, 2, v2')
    a(f'    v_add_u32 v11, {N*256}, v11')
    a(f'    buffer_store_dword v10, v11, s[44:47], 0 offen {TST}')
    a.label('K1_TFIN')
    stamp(a, 5)
    if STAMP:
        stamp(a, 6)
        a('    s_waitcnt vmcnt(0)')
        stamp(a, 7); stamp(a, 1, True)
        if STAMP >= 3:
            a('    s_waitcnt lgkmcnt(0)')
            a(f'    s_mov_b32 s{ST0+4}, s{ST0+16}')
        else: stamp(a, 2)
        if TFIRST: a('    s_add_u32 s20, s20, 10')
        stamp_flush(a, 20, 2, 0, 6)
    a.label('K1_END')
    a('    s_endpgm')

CAP = 4096
TS = 272
L2_CNT = 0; L2_FLG = 256
L2_LIST = 512
L2_SLOT = L2_LIST + CAP*4
L2_EAT = L2_SLOT + 56*512; L2_UT = L2_EAT + 48*TS
XS = 144
L2_XT = L2_UT + 48*TS
L2_W = L2_XT + 48*XS
K2_LDS = L2_W + 16384
U = 4
TPF = int(env('TPF', '1'))
PFPOS = int(env('PFPOS', '1'))
PGT = int(env('PGT', '0'))
G0N = int(env('G0N', '1'))
PFW = int(env('PFW', '4'))
PFL = int(env('PFL', '640'))
PFN = int(env('PFN', '40'))
PRT = [int(x) for x in env('PRT', '4,4,4').split(',')]

def gen_k2(a):
    a.k2 = True
    sB = 2; sWAVE = 3
    SRD_DESC = 12; SRD_REC = 16; SRD_T = 20; SRD_W = 24; SRD_X = 28; SRD_OUT = 32; SRD_WC = 36
    sMODE = 40; sPASS = 41
    sG0 = 42; sG1 = 43; sGEND = 44; sLEFT = 45; sNODE = 46; sT0 = 47; sT1 = 48; sSAFE = 49; sGT = 50; sR = 51
    sEX = 52; sEAB = 54; sPR = 55; sPQ = 56; sLVL = 57; sSLOT = 58; sNR = 59; sPQ2 = 60; sN0 = 62; sNN = 63; sNT = 61; sJ = 58
    sM = 64
    vLANE = 1
    vWC = 4; vEA = 8; vDEN = 12; vNUM = 16; vT = 20; vDAT = 24; vP = 40; vEV = 48
    vSA = 50; vACC = 51; vEAA = 52; vGS = 53; vQ16 = 54; vNG = 55
    vDA = 56; vNA = 60
    vX = 64
    vFL = 66
    vGE = 67
    vXO = 68
    vR = 76
    vB = 84
    vRK = 92
    vLA = 100
    vA = 108
    vCNT = 118; vRO = 119; vI = 120; vRM = 121; vTRA = 122; vXRA = 123; vROW = 121; vPFA = 51
    vLC = 12
    vPF = 16
    vXO2 = vXO
    SRD_LOC = 8; SRD_PF = 24
    vW = 24; vOP = 24; vAC = 40
    vOP2 = 76; vAC2 = 92
    vFS = 101; vFC = 102; vUTA = 103; vXTA = 106
    vU = 96; vUA = 100

    a('.p2align 8')
    a('.type k2_kernel,@function')
    a.label('k2_kernel')
    a(f'    s_cmp_ge_u32 s2, {NB}')
    a('    s_cbranch_scc1 K2_END')
    stamp(a, 0); stamp(a, 0, True)
    if CPF:
        a('    s_getpc_b64 s[30:31]')
        a.label('K2_PC')
        a('    v_lshlrev_b32 v124, 7, v0')
        a('    v_cmp_gt_u32 vcc, CODE_END-K2_PC, v124')
        a('    s_and_saveexec_b64 s[28:29], vcc')
        a('    s_cbranch_execz K2_NOCPF')
        a('    global_load_dword v125, v124, s[30:31]')
        a.label('K2_NOCPF')
        a('    s_mov_b64 exec, s[28:29]')
    a(f'    s_lshr_b32 s{sJ}, s2, 3')
    if XMAP:
        a(f'    s_and_b32 s{sT0}, s2, 7')
        a(f'    s_lshl_b32 s{sT0}, s{sT0}, 5')
        a(f'    s_add_u32 s2, s{sT0}, s{sJ}')
    a(f'    s_mul_i32 s{sN0}, s2, 625')
    a(f'    s_add_u32 s{sNN}, s{sN0}, 640')
    a(f'    s_add_u32 s{sN0}, s{sN0}, 15')
    a(f'    s_lshr_b32 s{sN0}, s{sN0}, 4')
    a(f'    s_lshr_b32 s{sNN}, s{sNN}, 4')
    a(f'    s_sub_u32 s{sNN}, s{sNN}, s{sN0}')
    a('    s_load_dwordx2 s[6:7], s[0:1], 88      ; ws')
    a('    s_load_dwordx2 s[4:5], s[0:1], 0       ; x')
    a('    s_load_dwordx2 s[8:9], s[0:1], 32      ; w_a')
    a('    s_load_dwordx4 s[76:79], s[0:1], 48    ; w_c, w_u')
    a('    s_load_dwordx2 s[10:11], s[0:1], 72    ; out')
    a(f'    v_and_b32 v{vLANE}, 63, v0')
    a(f'    v_lshrrev_b32 v{vA}, 6, v0')
    a(f'    v_and_b32 v{vQ16}, 15, v0')
    a(f'    v_readfirstlane_b32 s{sWAVE}, v{vA}')
    a(f'    v_lshlrev_b32 v{vQ16}, 4, v{vQ16}      ; q*16')
    a(f'    v_and_b32 v{vA}, 0x3fc, v0             ; (t>>2)*4')
    a(f'    s_lshl_b32 s{sT0}, s{sB}, 10')
    for i in range(4):
        a(f'    v_mov_b32 v{vDA+i}, 0')
        a(f'    v_mov_b32 v{vNA+i}, 0')
    masked(a, 'v_cmp_gt_u32 vcc, 4, v0', sEX)
    a(f'    v_lshlrev_b32 v{vA+5}, 2, v0')
    a(f'    ds_write_b32 v{vA+5}, v{vDA} offset:{L2_FLG}')
    unmask(a, sEX)
    a(f'    s_mov_b32 s{sMODE}, 0')
    a(f'    s_mov_b32 s{sPASS}, 0')
    a(f'    v_mov_b32 v{vEV}, 0')
    a(f'    v_mov_b32 v{vEV+1}, 0')
    for k in range(U):
        a(f'    v_mov_b32 v{vP+2*k}, {N}')
        a(f'    v_mov_b32 v{vP+2*k+1}, v{vQ16}')
    a(f'    v_lshrrev_b32 v{vA+1}, 5, v{vLANE}')
    a(f'    v_lshl_add_u32 v{vFL}, v{vA+1}, 8, v{vQ16}')
    a(f'    v_bfe_u32 v{vA+1}, v{vLANE}, 4, 1')
    a(f'    v_lshl_add_u32 v{vFL}, v{vA+1}, 3, v{vFL}')
    a.label('K2_PASS')
    for i in range(4):
        a(f'    v_mov_b32 v{vA+6+i}, {N}')
    a(f'    v_lshlrev_b32 v{vA+5}, 4, v0')
    a(f'    ds_write_b128 v{vA+5}, v[{vA+6}:{vA+9}] offset:{L2_LIST}')
    masked(a, 'v_cmp_gt_u32 vcc, 64, v0', sEX)
    a(f'    v_lshlrev_b32 v{vA+4}, 2, v0')
    a(f'    v_mov_b32 v{vA+3}, 0')
    a(f'    ds_write_b32 v{vA+4}, v{vA+3} offset:{L2_CNT}')
    unmask(a, sEX)
    a(f'    s_cmp_eq_u32 s{sMODE}, 0')
    a('    s_cbranch_scc0 K2_SLOWPARAM')
    a('    s_waitcnt lgkmcnt(0)')
    srd(a, SRD_DESC, 6, 7, NB*DESC_STRIDE, off=WS_DESC)
    a(f'    buffer_load_dword v{vCNT}, v{vA}, s[{SRD_DESC}:{SRD_DESC+3}], s{sT0} offen')
    a(f'    s_cmp_lt_u32 s{sWAVE}, 8')
    a(f'    s_cselect_b32 s{SRD_W}, s8, s78')
    a(f'    s_cselect_b32 s{SRD_W+1}, s9, s79')
    a(f'    s_mov_b32 s{SRD_W+2}, 8192')
    a(f'    s_mov_b32 s{SRD_W+3}, 0x00020000')
    srd(a, SRD_X, 4, 5, N*128)
    srd(a, SRD_WC, 76, 77, 128)
    a(f'    v_and_b32 v{vA+1}, 511, v0')
    a(f'    v_lshlrev_b32 v{vA+1}, 4, v{vA+1}')
    a(f'    buffer_load_dwordx4 v[{vW}:{vW+3}], v{vA+1}, s[{SRD_W}:{SRD_W+3}], 0 offen')
    a(f'    v_lshlrev_b32 v{vA+4}, 4, v0')
    a(f'    v_cmp_gt_u32 vcc, 384, v0')
    a(f'    v_mov_b32 v{vA+3}, {1<<30}')
    a(f'    s_lshl_b32 s{sT1}, s{sN0}, 7')
    a(f'    v_cndmask_b32 v{vA+4}, v{vA+3}, v{vA+4}, vcc')
    a(f'    buffer_load_dwordx4 v[{vXO}:{vXO+3}], v{vA+4}, s[{SRD_X}:{SRD_X+3}], s{sT1} offen')
    a(f'    v_lshrrev_b32 v{vA+7}, 1, v{vQ16}      ; q*8 (wc)')
    a(f'    buffer_load_dwordx2 v[{vWC}:{vWC+1}], v{vA+7}, s[{SRD_WC}:{SRD_WC+3}], 0 offen')
    if PGT:
        srd(a, SRD_REC, 6, 7, WS_T + T_BYTES, off=0)
        a(f'    v_lshlrev_b32 v{vPF+1}, 21, v{vLANE}')
        a(f'    buffer_load_dword v{vPF+1}, v{vPF+1}, s[{SRD_REC}:{SRD_REC+3}], 0 offen')
    a('    s_barrier')
    srd(a, SRD_OUT, 10, 11, N*128)
    srd(a, SRD_REC, 6, 7, NC*REC_STRIDE + 64, off=WS_REC)
    srd(a, SRD_T, 6, 7, 0, off=WS_T, stride=256, nrec=N+1)
    a(f'    v_lshrrev_b32 v{vA}, 2, v0             ; c')
    a(f'    v_mul_u32_u24 v{vRO}, {REC_STRIDE}, v{vA}')
    a(f'    v_and_b32 v{vI}, 3, v0')
    a(f'    v_lshlrev_b32 v{vI}, 2, v{vI}')
    a(f'    v_mad_u32_u24 v{vRO}, v{vI}, 5, v{vRO}')
    a(f'    s_mov_b32 s{sT1}, 16')
    a(f'    s_waitcnt vmcnt({3+PGT})                      ; descriptor')
    stamp(a, 1)
    a(f'    v_and_b32 v{vA+1}, 0xffff, v{vCNT}      ; start')
    a(f'    v_lshrrev_b32 v{vCNT}, 16, v{vCNT}      ; cnt')
    a(f'    v_mad_u32_u24 v{vRO}, v{vA+1}, 5, v{vRO}')
    a('    s_branch K2_PARAMDONE')
    a.label('K2_SLOWPARAM')
    a(f'    s_lshl_b32 s{sT0}, s{sB}, 10')
    a(f'    s_lshl_b32 s{sT1}, s{sPASS}, 2')
    a(f'    s_add_u32 s{sT0}, s{sT0}, s{sT1}')
    a(f'    v_mov_b32 v{vA}, 0')
    a(f'    buffer_load_dword v{vCNT}, v{vA}, s[{SRD_DESC}:{SRD_DESC+3}], s{sT0} offen')
    a(f'    s_mul_i32 s{sT0}, s{sPASS}, {REC_STRIDE}')
    a('    s_waitcnt vmcnt(0) lgkmcnt(0)')
    a('    s_barrier')
    a(f'    v_and_b32 v{vA+1}, 0xffff, v{vCNT}')
    a(f'    v_lshlrev_b32 v{vI}, 2, v0')
    a(f'    v_add_u32 v{vA+1}, v{vA+1}, v{vI}')
    a(f'    v_mul_u32_u24 v{vRO}, 5, v{vA+1}')
    a(f'    v_add_u32 v{vRO}, s{sT0}, v{vRO}')
    a(f'    v_lshrrev_b32 v{vCNT}, 16, v{vCNT}')
    a(f'    s_mov_b32 s{sT1}, 4096')
    a.label('K2_PARAMDONE')
    a(f'    v_sub_u32 v{vRM}, v{vCNT}, v{vI}')
    a(f'    s_mul_i32 s{sT0}, s{sT1}, 5')
    a(f'    s_mov_b32 s{sNR}, 0')
    for r in range(2):
        m0 = sM + 8*r
        if r == 1:
            a(f'    v_subrev_u32 v{vRM}, s{sT1}, v{vRM}')
        for h in range(4):
            a(f'    v_cmp_gt_i32 s[{m0+2*h}:{m0+2*h+1}], v{vRM}, {h}' if h else f'    v_cmp_lt_i32 s[{m0}:{m0+1}], 0, v{vRM}')
        a(f'    s_cmp_eq_u64 s[{m0}:{m0+1}], 0')
        a(f'    s_cbranch_scc1 K2_LD_DONE')
        a(f'    s_mov_b64 exec, s[{m0}:{m0+1}]')
        a(f'    buffer_load_dwordx4 v[{vR+4*r}:{vR+4*r+3}], v{vRO}, s[{SRD_REC}:{SRD_REC+3}], 0 offen')
        a(f'    buffer_load_dword v{vLC+r}, v{vRO}, s[{SRD_REC}:{SRD_REC+3}], 0 offen offset:16')
        a(f'    s_mov_b64 exec, -1')
        a(f'    s_mov_b32 s{sNR}, {r+1}')
        if r < 1:
            a(f'    v_add_u32 v{vRO}, s{sT0}, v{vRO}')
    a.label('K2_LD_DONE')
    a(f'    s_or_b32 s{sT0}, s{sMODE}, s{sPASS}')
    a(f'    s_cmp_eq_u32 s{sT0}, 0')
    a('    s_cbranch_scc0 K2_LATER_PASS')
    if TPF and PFPOS == 3:
        a(f'    s_mul_i32 s{sT0}, s{sJ}, {640*128}')
        a(f'    s_mul_i32 s{sT1}, s{sWAVE}, {40*128}')
        a(f'    s_add_u32 s{sT0}, s{sT0}, s{sT1}')
        a(f'    s_add_u32 s{sT0}, s{sT0}, {WS_T}')
        a(f'    s_add_u32 s24, s6, s{sT0}')
        a(f'    s_addc_u32 s25, s7, 0')
        for i in range(PFN):
            a(f'    s_load_dword s26, s[24:25], {128*i}')
    if TPF and PFPOS == 2:
        W0 = 16 - PFW
        per = PFL // PFW
        a(f'    s_cmp_ge_u32 s{sWAVE}, {W0}')
        a('    s_cbranch_scc0 K2_NOPF2')
        srd(a, SRD_PF, 6, 7, T_BYTES, off=WS_T)
        a(f'    s_mul_i32 s{sT0}, s{sJ}, {640*128}')
        a(f'    s_sub_u32 s{sT1}, s{sWAVE}, {W0}')
        a(f'    s_mul_i32 s{sT1}, s{sT1}, {per*128}')
        a(f'    s_add_u32 s{sT0}, s{sT0}, s{sT1}')
        a(f'    v_lshlrev_b32 v{vPFA}, 7, v{vLANE}')
        nin = (per + 63)//64
        for i in range(nin):
            left = per - 64*i
            if left < 64:
                a(f'    v_cmp_gt_u32 vcc, {left}, v{vLANE}')
                a(f'    v_mov_b32 v{vPF+1}, {1<<30}')
                a('    s_nop 0')
                a(f'    v_cndmask_b32 v{vPFA}, v{vPF+1}, v{vPFA}, vcc')
            a(f'    buffer_load_dword v{vPF}, v{vPFA}, s[{SRD_PF}:{SRD_PF+3}], s{sT0} offen')
            if i + 1 < nin: a(f'    s_add_u32 s{sT0}, s{sT0}, 8192')
        a.label('K2_NOPF2')
    a(f'    v_lshrrev_b32 v{vA+8}, 3, v0')
    a(f'    v_mul_u32_u24 v{vA+8}, {XS}, v{vA+8}')
    a(f'    v_and_b32 v{vA+7}, 7, v0')
    a(f'    v_lshl_add_u32 v{vA+8}, v{vA+7}, 4, v{vA+8}')
    a(f'    v_add_u32 v{vA+8}, {L2_XT}, v{vA+8}')
    NPF = 1 if TPF else 0
    a(f'    v_bfe_u32 v{vA+1}, v0, 4, 1')
    a(f'    v_bfe_u32 v{vA+2}, v0, 6, 1')
    a(f'    v_lshlrev_b32 v{vA+1}, 1, v{vA+1}')
    a(f'    v_lshl_or_b32 v{vA+1}, v{vA+2}, 2, v{vA+1}')
    a(f'    v_and_b32 v{vA+2}, 7, v0')
    a(f'    v_xor_b32 v{vA+1}, v{vA+1}, v{vA+2}')
    a(f'    v_lshrrev_b32 v{vA+2}, 3, v0')
    a(f'    v_lshlrev_b32 v{vA+2}, 7, v{vA+2}')
    a(f'    v_lshl_add_u32 v{vA+9}, v{vA+1}, 4, v{vA+2}')
    a(f'    v_add_u32 v{vA+9}, {L2_W}, v{vA+9}')
    a(f'    v_lshrrev_b32 v{vA+3}, 4, v{vLANE}     ; g')
    a(f'    v_bfe_u32 v{vA}, v{vLANE}, 2, 2        ; r')
    a(f'    v_lshl_add_u32 v{vA+1}, v{vA+3}, 3, v{vA}')
    a(f'    v_lshlrev_b32 v{vA+1}, 7, v{vA+1}')
    a(f'    v_and_b32 v{vA+2}, 1, v{vLANE}')
    a(f'    v_lshl_add_u32 v{vA+1}, v{vA+2}, 3, v{vA+1}')
    a(f'    v_lshrrev_b32 v{vA}, 1, v{vA}')
    a(f'    v_and_b32 v{vA+2}, 1, v{vA+3}')
    a(f'    v_lshl_or_b32 v{vA}, v{vA+2}, 1, v{vA}     ; swz/2')
    a(f'    s_and_b32 s{sT0}, s{sWAVE}, 3')
    a(f'    v_xor_b32 v{vA}, s{sT0}, v{vA}')
    a(f'    v_bfe_u32 v{vA+2}, v{vLANE}, 1, 1')
    a(f'    v_lshl_or_b32 v{vA}, v{vA}, 1, v{vA+2}')
    a(f'    v_lshl_add_u32 v{vTRA}, v{vA}, 4, v{vA+1}')
    a(f'    v_add_u32 v{vTRA}, {L2_W}, v{vTRA}')
    a(f'    s_lshr_b32 s{sT1}, s{sWAVE}, 2')
    a(f'    s_lshl_b32 s{sT1}, s{sT1}, 4')
    a(f'    v_and_b32 v{vA+2}, 15, v{vLANE}')
    a(f'    v_add_u32 v{vROW}, s{sT1}, v{vA+2}     ; row')
    a(f'    v_mul_u32_u24 v{vA+1}, {XS}, v{vROW}')
    a(f'    v_lshl_add_u32 v{vA+1}, v{vA+3}, 4, v{vA+1}')
    a(f'    v_add_u32 v{vXRA}, {L2_XT}, v{vA+1}')
    a(f'    v_mul_u32_u24 v{vA+4}, {TS}, v{vROW}')
    a(f'    v_lshl_add_u32 v{vA+4}, v{vA+3}, 4, v{vA+4}')
    a(f'    s_lshl_b32 s{sT0}, s{sT0}, 6')
    a(f'    s_add_u32 s{sT0}, s{sT0}, {L2_EAT}')
    a(f'    v_add_u32 v{vEAA}, s{sT0}, v{vA+4}')
    if TPF and PFPOS < 2:
        srd(a, SRD_PF, 6, 7, T_BYTES, off=WS_T)
        a(f'    s_mul_i32 s{sT0}, s{sJ}, {640*128}')
        a(f'    s_mul_i32 s{sT1}, s{sWAVE}, {40*128}')
        a(f'    s_add_u32 s{sJ}, s{sT0}, s{sT1}')
        a(f'    v_lshlrev_b32 v{vA+3}, 7, v{vLANE}')
        a(f'    v_cmp_gt_u32 vcc, {PFN}, v{vLANE}')
        a(f'    v_mov_b32 v{vA+4}, {1<<30}')
        a('    s_nop 0')
        a(f'    v_cndmask_b32 v{vPFA}, v{vA+4}, v{vA+3}, vcc')
    if TPF and PFPOS == 2:
        a(f'    v_mov_b32 v{vA+2}, 1')
        a(f'    s_cmp_ge_u32 s{sWAVE}, {16 - PFW}')
        a('    s_cbranch_scc0 K2_LATER_PASS')
        a(f'    s_waitcnt vmcnt({(PFL // PFW + 63)//64})')
        a('    s_branch K2_RANKS')
    a.label('K2_LATER_PASS')
    a(f'    v_mov_b32 v{vA+2}, 1')
    a('    s_waitcnt vmcnt(0)')
    if TPF and PFPOS == 1:
        a(f'    s_or_b32 s{sT0}, s{sMODE}, s{sPASS}')
        a(f'    s_cmp_eq_u32 s{sT0}, 0')
        a('    s_cbranch_scc0 K2_RANKS')
        a(f'    buffer_load_dword v{vPF}, v{vPFA}, s[{SRD_PF}:{SRD_PF+3}], s{sJ} offen')
    a.label('K2_RANKS')
    stamp(a, 2)
    for r in range(2):
        a(f'    s_cmp_le_u32 s{sNR}, {r}')
        a('    s_cbranch_scc1 K2_RK_DONE')
        d = vR + 4*r
        a(f'    v_and_b32 v{vLA+4*r}, 0xff, v{d+1}')
        a(f'    v_bfe_u32 v{vLA+4*r+1}, v{d+2}, 8, 8')
        a(f'    v_bfe_u32 v{vLA+4*r+2}, v{d+3}, 16, 8')
        a(f'    v_lshrrev_b32 v{vLA+4*r+3}, 24, v{vLC+r}')
        for h in range(4):
            k = 4*r + h
            a(f'    s_mov_b64 exec, s[{sM+2*k}:{sM+2*k+1}]')
            a(f'    ds_add_rtn_u32 v{vRK+k}, v{vLA+k}, v{vA+2} offset:{L2_CNT}')
        a('    s_mov_b64 exec, -1')
        a(f'    v_alignbyte_b32 v{d+1}, v{d+2}, v{d+1}, 1')
        a(f'    v_alignbyte_b32 v{d+2}, v{d+3}, v{d+2}, 2')
        a(f'    v_alignbyte_b32 v{d+3}, v{vLC+r}, v{d+3}, 3')
    a.label('K2_RK_DONE')
    masked(a, f'v_cmp_lt_u32 vcc, 32, v{vCNT}', sEX, 'K2_NOOVF')
    a(f'    v_mov_b32 v{vA+3}, 0')
    a(f'    ds_write_b32 v{vA+3}, v{vA+2} offset:{L2_FLG}')
    unmask(a, sEX, 'K2_NOOVF')
    a(f'    s_or_b32 s{sT0}, s{sMODE}, s{sPASS}')
    a(f'    s_cmp_eq_u32 s{sT0}, 0')
    a('    s_cbranch_scc0 K2_NOWST')
    a(f'    ds_write_b128 v{vA+9}, v[{vW}:{vW+3}]')
    a(f'    s_cmp_lt_u32 s{sWAVE}, 6')
    a('    s_cbranch_scc0 K2_NOXST')
    a(f'    ds_write_b128 v{vA+8}, v[{vXO}:{vXO+3}]')
    a.label('K2_NOXST')
    a(f'    s_mov_b32 s{sT0}, {hex(f2u(-LOG2E))}')
    a(f'    v_and_b32 v{vWC+3}, 0xffff0000, v{vWC+1}')
    a(f'    v_lshlrev_b32 v{vWC+2}, 16, v{vWC+1}')
    a(f'    v_and_b32 v{vWC+1}, 0xffff0000, v{vWC}')
    a(f'    v_lshlrev_b32 v{vWC}, 16, v{vWC}')
    for k in range(4):
        a(f'    v_mul_f32 v{vWC+k}, s{sT0}, v{vWC+k}')
    a.label('K2_NOWST')
    a(f'    v_lshlrev_b32 v{vA+1}, 2, v{vLANE}')
    a(f'    v_mov_b32 v{vA}, 0')
    a('    s_waitcnt lgkmcnt(0)')
    stamp(a, 3)
    a('    s_barrier')
    stamp(a, 4)
    if TPF and PFPOS == 0:
        a(f'    s_or_b32 s{sT0}, s{sMODE}, s{sPASS}')
        a(f'    s_cmp_eq_u32 s{sT0}, 0')
        a('    s_cbranch_scc0 K2_NOPF')
        a(f'    buffer_load_dword v{vPF}, v{vPFA}, s[{SRD_PF}:{SRD_PF+3}], s{sJ} offen')
        a.label('K2_NOPF')
    a(f'    ds_read_b32 v{vNG}, v{vA+1} offset:{L2_CNT}')
    a(f'    ds_read_b32 v{vA+4}, v{vA} offset:{L2_FLG}')
    a('    s_waitcnt lgkmcnt(1)')
    a(f'    v_add_u32 v{vNG}, 3, v{vNG}')
    a(f'    v_lshrrev_b32 v{vNG}, 2, v{vNG}')
    a(f'    v_mov_b32 v{vGE}, v{vNG}')
    dpp_scan(a, vGE)
    a('    s_waitcnt lgkmcnt(0)')
    a(f'    v_readlane_b32 s{sGT}, v{vGE}, {NPB-1}')
    a(f'    v_sub_u32 v{vGS}, v{vGE}, v{vNG}')
    a(f'    v_readfirstlane_b32 s{sT0}, v{vA+4}')
    a(f'    v_lshlrev_b32 v{vA+6}, 4, v{vGS}')
    a(f'    v_cmp_lt_u32 vcc, {NPB}, v{vLANE}')
    a(f'    s_add_u32 s{sR}, s{sGT}, 15')
    a(f'    s_lshr_b32 s{sR}, s{sR}, 4')
    a(f'    v_cndmask_b32 v{vGS}, v{vGS}, -1, vcc')
    a(f'    s_cmp_eq_u32 s{sMODE}, 0')
    a('    s_cbranch_scc0 K2_NOSWITCH')
    a(f'    s_cmp_gt_u32 s{sGT}, {(CAP - 64)//4}')
    a(f'    s_cselect_b32 s{sT1}, 1, 0')
    a(f'    s_or_b32 s{sT0}, s{sT0}, s{sT1}')
    a(f'    s_cmp_eq_u32 s{sT0}, 0')
    a('    s_cbranch_scc1 K2_NOSWITCH')
    a(f'    s_mov_b32 s{sNR}, 0')
    a(f'    s_mov_b32 s{sGT}, 0')
    a(f'    s_mov_b32 s{sR}, 0')
    a(f'    s_mov_b32 s{sMODE}, 2')
    a.label('K2_NOSWITCH')
    for r in range(2):
        a(f'    s_cmp_le_u32 s{sNR}, {r}')
        a('    s_cbranch_scc1 K2_LK_DONE')
        for h in range(4):
            k = 4*r + h
            a(f'    ds_bpermute_b32 v{vB+k}, v{vLA+k}, v{vA+6}')
    a.label('K2_LK_DONE')
    a('    s_waitcnt lgkmcnt(0)')
    for r in range(2):
        a(f'    s_cmp_le_u32 s{sNR}, {r}')
        a('    s_cbranch_scc1 K2_SC_DONE')
        for h in range(4):
            k = 4*r + h
            a(f'    s_mov_b64 exec, s[{sM+2*k}:{sM+2*k+1}]')
            a(f'    v_lshl_add_u32 v{vB+k}, v{vRK+k}, 2, v{vB+k}')
            a(f'    ds_write_b32 v{vB+k}, v{vR+k} offset:{L2_LIST}')
    a.label('K2_SC_DONE')
    a('    s_mov_b64 exec, -1')
    a(f'    s_mul_i32 s{sG0}, s{sR}, s{sWAVE}')
    a(f'    s_add_u32 s{sG1}, s{sG0}, s{sR}')
    a(f'    s_min_u32 s{sG1}, s{sG1}, s{sGT}')
    a(f'    v_lshrrev_b32 v{vSA}, 4, v{vLANE}')
    a(f'    v_lshlrev_b32 v{vSA}, 2, v{vSA}         ; slot*4')
    a(f'    s_lshl_b32 s{sT0}, s{sG0}, 4')
    a(f'    v_add_u32 v{vSA}, s{sT0}, v{vSA}')
    a(f'    v_mov_b32 v{vA}, 0')
    a('    s_waitcnt lgkmcnt(0)')
    a('    s_barrier')
    stamp(a, 5)

    def tload(k):
        d = vDAT + 4*k
        a(f'    buffer_load_dwordx4 v[{d}:{d+3}], v[{vP+2*k}:{vP+2*k+1}], s[{SRD_T}:{SRD_T+3}], 0 idxen offen')

    a(f'    s_cmp_ge_u32 s{sG0}, s{sG1}')
    a('    s_cbranch_scc1 K2_NOGATH')
    for k in range(U):
        a(f'    ds_read_u16 v{vP+2*k}, v{vSA} offset:{L2_LIST + 16*k}')
    a(f'    ds_read_u16_d16_hi v{vEV}, v{vSA} offset:{L2_LIST + 2}')
    a('    s_waitcnt lgkmcnt(0)')
    for k in range(G0N):
        tload(k)
    a(f'    ds_read_u16 v{vP}, v{vSA} offset:{L2_LIST + 16*U}')
    a.label('K2_NOGATH')
    a(f'    s_cmp_eq_u32 s{sPASS}, 0')
    a('    s_cbranch_scc0 K2_NOTAB')
    a(f'    s_cmp_eq_u32 s{sMODE}, 1')
    a('    s_cbranch_scc1 K2_NOTAB')
    a(f'    s_cmp_lt_u32 s{sWAVE}, 12')
    a('    s_cbranch_scc0 K2_NOMFMA')
    a(f'    ds_read_b128 v[{vXO}:{vXO+3}], v{vXRA}')
    a(f'    ds_read_b64_tr_b16 v[{vOP2}:{vOP2+1}], v{vTRA}')
    a(f'    ds_read_b64_tr_b16 v[{vOP2+2}:{vOP2+3}], v{vTRA} offset:{0+512}')
    a(f'    ds_read_b128 v[{vXO+4}:{vXO+7}], v{vXRA} offset:64')
    a(f'    ds_read_b64_tr_b16 v[{vOP2+4}:{vOP2+5}], v{vTRA} offset:{0+4096}')
    a(f'    ds_read_b64_tr_b16 v[{vOP2+6}:{vOP2+7}], v{vTRA} offset:{0+4096+512}')
    a(f'    s_mov_b32 s{sT0}, {hex(f2u(-LOG2E))}')
    a(f'    s_mov_b32 s{sT1}, {hex(f2u(60.0))}')
    a('    s_waitcnt lgkmcnt(3)')
    a(f'    v_mfma_f32_16x16x32_bf16 v[{vAC2}:{vAC2+3}], v[{vOP2}:{vOP2+3}], v[{vXO}:{vXO+3}], 0')
    a('    s_waitcnt lgkmcnt(0)')
    a(f'    v_mfma_f32_16x16x32_bf16 v[{vAC2}:{vAC2+3}], v[{vOP2+4}:{vOP2+7}], v[{vXO+4}:{vXO+7}], v[{vAC2}:{vAC2+3}]')
    a('    s_nop 7')
    for i in range(4):
        a(f'    v_mul_f32 v{vAC2+i}, s{sT0}, v{vAC2+i}')
    for i in range(4):
        a(f'    v_exp_f32 v{vOP2+i}, v{vAC2+i}')
    a(f'    v_max3_f32 v{vA+5}, |v{vAC2}|, |v{vAC2+1}|, |v{vAC2+2}|')
    a(f'    v_max_f32 v{vA+5}, v{vA+5}, |v{vAC2+3}|')
    a(f'    ds_write_b128 v{vEAA}, v[{vOP2}:{vOP2+3}]')
    a(f'    v_cmp_nle_f32 vcc, v{vA+5}, s{sT1}')
    a(f'    v_cmp_gt_u32 s[{sEX}:{sEX+1}], s{sNN}, v{vROW}')
    a(f'    s_and_b64 vcc, vcc, s[{sEX}:{sEX+1}]')
    a(f'    s_and_saveexec_b64 s[{sEX}:{sEX+1}], vcc')
    a('    s_cbranch_execz K2_GUARD_OK')
    a(f'    v_mov_b32 v{vA+5}, 1')
    a(f'    v_mov_b32 v{vA+7}, 0')
    a(f'    ds_write_b32 v{vA+7}, v{vA+5} offset:{L2_FLG+4}')
    unmask(a, sEX, 'K2_GUARD_OK')
    a.label('K2_NOMFMA')
    a(f'    v_mov_b32 v{vA}, 0')
    a('    s_waitcnt lgkmcnt(0)')
    a('    s_barrier')
    a(f'    ds_read_b32 v{vA+5}, v{vA} offset:{L2_FLG+4}')
    a(f'    s_cmp_ge_u32 s{sG0}, s{sG1}')
    a('    s_cbranch_scc1 K2_NOGATH2')
    for k in range(G0N, U):
        tload(k)
    a.label('K2_NOGATH2')
    a(f'    s_cmp_lt_u32 s{sWAVE}, 12')
    a('    s_cbranch_scc0 K2_NOU')
    a(f'    ds_read_b64_tr_b16 v[{vOP2}:{vOP2+1}], v{vTRA} offset:{0+8192}')
    a(f'    ds_read_b64_tr_b16 v[{vOP2+2}:{vOP2+3}], v{vTRA} offset:{0+8192+512}')
    a(f'    ds_read_b64_tr_b16 v[{vOP2+4}:{vOP2+5}], v{vTRA} offset:{0+8192+4096}')
    a(f'    ds_read_b64_tr_b16 v[{vOP2+6}:{vOP2+7}], v{vTRA} offset:{0+8192+4096+512}')
    a('    s_waitcnt lgkmcnt(2)')
    a(f'    v_mfma_f32_16x16x32_bf16 v[{vU}:{vU+3}], v[{vOP2}:{vOP2+3}], v[{vXO}:{vXO+3}], 0')
    a('    s_waitcnt lgkmcnt(0)')
    a(f'    v_mfma_f32_16x16x32_bf16 v[{vU}:{vU+3}], v[{vOP2+4}:{vOP2+7}], v[{vXO+4}:{vXO+7}], v[{vU}:{vU+3}]')
    a(f'    v_mov_b32 v{vUA}, v{vEAA}')
    a.label('K2_NOU')
    a('    s_waitcnt lgkmcnt(0)')
    a(f'    v_readfirstlane_b32 s{sSAFE}, v{vA+5}')
    a('    s_nop 0')
    a(f'    s_cmp_eq_u32 s{sSAFE}, 0')
    a('    s_cbranch_scc1 K2_WAITW')
    a('    s_barrier')
    a(f'    s_cmp_lt_u32 s{sWAVE}, 12')
    a('    s_cbranch_scc0 K2_SAFE_NOW')
    a(f'    ds_write_b128 v{vEAA}, v[{vAC2}:{vAC2+3}]')
    a.label('K2_SAFE_NOW')
    a('    s_waitcnt lgkmcnt(0)')
    a('    s_barrier')
    a.label('K2_WAITW')
    a('    s_branch K2_TABDONE')
    a.label('K2_NOTAB')
    a(f'    s_cmp_ge_u32 s{sG0}, s{sG1}')
    a('    s_cbranch_scc1 K2_TABDONE')
    for k in range(G0N, U):
        tload(k)
    a.label('K2_TABDONE')
    dstamp(a, 1)
    a(f'    v_cvt_f32_u32 v{vA}, s{sR}')
    a(f'    v_cvt_f32_u32 v{vA+1}, v{vGS}')
    a(f'    v_rcp_f32 v{vA}, v{vA}')
    a(f'    v_cvt_f32_u32 v{vA+2}, v{vGE}')
    a(f'    v_add_f32 v{vA+1}, 0.5, v{vA+1}')
    a(f'    v_add_f32 v{vA+2}, -0.5, v{vA+2}')
    a(f'    v_mul_f32 v{vA+1}, v{vA+1}, v{vA}')
    a(f'    v_mul_f32 v{vA+2}, v{vA+2}, v{vA}')
    a(f'    v_cvt_u32_f32 v{vA+1}, v{vA+1}          ; wlo')
    a(f'    v_cvt_u32_f32 v{vA+2}, v{vA+2}          ; whi')
    a(f'    v_sub_u32 v{vA+2}, v{vA+2}, v{vA+1}')
    a(f'    v_add_u32 v{vA+2}, 1, v{vA+2}')
    a(f'    v_cmp_eq_u32 vcc, 0, v{vNG}')
    a(f'    v_add_u32 v{vA+1}, v{vA+1}, v{vLANE}')
    a(f'    v_and_b32 v{vA+1}, 0xffff, v{vA+1}')
    a(f'    v_cndmask_b32 v{vA+2}, v{vA+2}, 0, vcc')
    a(f'    v_lshl_or_b32 v{vA+3}, v{vA+2}, 16, v{vA+1}')
    a(f'    v_lshrrev_b32 v{vA}, 4, v0')
    a(f'    v_and_b32 v{vA+4}, 63, v{vA}')
    a(f'    v_lshlrev_b32 v{vA+4}, 2, v{vA+4}')
    a(f'    ds_bpermute_b32 v{vA+1}, v{vA+4}, v{vA+3}')
    a(f'    v_mul_u32_u24 v{vUTA}, {TS}, v{vA}')
    a(f'    v_mul_u32_u24 v{vXTA}, {XS}, v{vA}')
    a(f'    v_lshrrev_b32 v{vA+7}, 1, v{vQ16}')
    a(f'    v_add_u32 v{vUTA}, v{vUTA}, v{vQ16}')
    a(f'    v_add_u32 v{vXTA}, v{vXTA}, v{vA+7}')
    a(f'    v_add_u32 v{vUTA}, {L2_UT}, v{vUTA}')
    a(f'    v_add_u32 v{vXTA}, {L2_XT}, v{vXTA}')
    a(f'    s_lshl_b32 s{sNT}, s{sNN}, 4')
    a(f'    v_cmp_gt_u32 vcc, s{sNT}, v0')
    a('    s_waitcnt lgkmcnt(0)')
    a(f'    v_lshrrev_b32 v{vFC}, 16, v{vA+1}')
    a(f'    v_and_b32 v{vA+1}, 0xffff, v{vA+1}')
    a(f'    v_cndmask_b32 v{vFC}, 0, v{vFC}, vcc')
    a(f'    v_lshl_add_u32 v{vFS}, v{vA+1}, 9, v{vQ16}')
    a(f'    v_cmp_lt_u32 s[{sM}:{sM+1}], 0, v{vFC}')
    a(f'    v_cmp_lt_u32 s[{sM+2}:{sM+3}], 1, v{vFC}')
    a(f'    v_cmp_lt_u32 s[{sM+4}:{sM+5}], 2, v{vFC}')
    a(f'    s_cmp_ge_u32 s{sG0}, s{sG1}')
    a('    s_cbranch_scc1 K2_MAIN_DONE')
    if PRIO:
        a(f'    s_add_u32 s{sT0}, s{sR}, 3')
        a(f'    s_lshr_b32 s{sT0}, s{sT0}, 2            ; iterations')
        for n, reg in zip(PRT, (sPR, sPQ, sPQ2)):
            a(f'    s_mul_i32 s{reg}, s{sT0}, {n}')
            a(f'    s_lshr_b32 s{reg}, s{reg}, 4')
            a(f'    s_add_u32 s{reg}, s{reg}, 1')
        a(f'    s_mov_b32 s{sLVL}, 3')
        a('    s_setprio 3')
    a(f'    s_mov_b32 s{sGEND}, s{sG0}')
    a(f'    s_mov_b32 s{sEAB}, {L2_EAT}')
    a(f'    s_cmp_eq_u32 s{sSAFE}, 0')
    a('    s_cbranch_scc0 K2S_ENTER')
    a('    s_branch K2F_ENTER')

    def next_node():
        a(f'    v_cmp_ge_u32 vcc, s{sGEND}, v{vGS}')
        a(f'    s_bcnt1_i32_b64 s{sT0}, vcc')
        a(f'    s_sub_u32 s{sNODE}, s{sT0}, 1')
        a(f'    v_readlane_b32 s{sT1}, v{vGS}, s{sT0}')
        a(f'    s_mul_i32 s{sT0}, s{sNODE}, {TS}')
        a(f'    s_add_u32 s{sT0}, s{sT0}, s{sEAB}')
        a(f'    v_add_u32 v{vEAA}, s{sT0}, v{vQ16}')
        a(f'    ds_read_b128 v[{vEA}:{vEA+3}], v{vEAA}')
        a(f'    s_min_u32 s{sT1}, s{sT1}, s{sG1}')
        a(f'    s_sub_u32 s{sLEFT}, s{sT1}, s{sGEND}')
        a(f'    s_sub_u32 s{sLEFT}, s{sLEFT}, 1')
        a(f'    s_mov_b32 s{sGEND}, s{sT1}')

    def set_slot():
        a(f'    s_add_u32 s{sSLOT}, s{sNODE}, s{sWAVE}')
        a(f'    s_lshl_b32 s{sSLOT}, s{sSLOT}, 9')

    def flush():
        a(f'    v_add_u32 v{vACC}, s{sSLOT}, v{vFL}')
        for i in range(4):
            a(f'    v_permlane32_swap_b32 v{vDEN+i}, v{vNUM+i}')
        a(f'    v_pk_add_f32 v[{vDEN}:{vDEN+1}], v[{vDEN}:{vDEN+1}], v[{vNUM}:{vNUM+1}]')
        a(f'    v_pk_add_f32 v[{vDEN+2}:{vDEN+3}], v[{vDEN+2}:{vDEN+3}], v[{vNUM+2}:{vNUM+3}]')
        a('    s_nop 1')
        a(f'    v_permlane16_swap_b32 v{vDEN}, v{vDEN+2}')
        a(f'    v_permlane16_swap_b32 v{vDEN+1}, v{vDEN+3}')
        a(f'    v_pk_add_f32 v[{vNUM}:{vNUM+1}], v[{vDEN}:{vDEN+1}], v[{vDEN+2}:{vDEN+3}]')
        a(f'    ds_write_b64 v{vACC}, v[{vNUM}:{vNUM+1}] offset:{L2_SLOT}')

    def step(k, safe, init):
        d = vDAT + 4*k
        ev = vEV + (k & 1); evn = vEV + ((k+1) & 1)
        pn = vP + 2*((k+1) % U)
        for i in range(4):
            a(f'    v_fma_mix_f32 v{vT+i}, v{ev}, v{vWC+i}, v{d+i} op_sel:[0,0,0] op_sel_hi:[0,0,1]')
        a(f'    ds_read_u16_d16_hi v{evn}, v{vSA} offset:{L2_LIST + 16*(k+1) + 2}')
        a(f'    ds_read_u16 v{pn}, v{vSA} offset:{L2_LIST + 16*(k+1+U)}')
        if init and safe:
            a('    s_waitcnt lgkmcnt(3)')
        if safe:
            a(f'    v_pk_add_f32 v[{vT}:{vT+1}], v[{vT}:{vT+1}], v[{vEA}:{vEA+1}]')
            a(f'    v_pk_add_f32 v[{vT+2}:{vT+3}], v[{vT+2}:{vT+3}], v[{vEA+2}:{vEA+3}]')
        for i in range(4):
            a(f'    v_exp_f32 v{vT+i}, v{vT+i}')
        if init and not safe:
            a('    s_waitcnt lgkmcnt(3)')
        if safe:
            a(f'    v_pk_add_f32 v[{vT}:{vT+1}], v[{vT}:{vT+1}], 1.0 op_sel_hi:[1,0]')
            a(f'    v_pk_add_f32 v[{vT+2}:{vT+3}], v[{vT+2}:{vT+3}], 1.0 op_sel_hi:[1,0]')
        else:
            a(f'    v_pk_fma_f32 v[{vT}:{vT+1}], v[{vEA}:{vEA+1}], v[{vT}:{vT+1}], 1.0 op_sel_hi:[1,1,0]')
            a(f'    v_pk_fma_f32 v[{vT+2}:{vT+3}], v[{vEA+2}:{vEA+3}], v[{vT+2}:{vT+3}], 1.0 op_sel_hi:[1,1,0]')
        if init:
            for i in range(4):
                a(f'    v_rcp_f32 v{vDEN+i}, v{vT+i}')
            a('    s_nop 0')
            a(f'    v_pk_mul_f32 v[{vNUM}:{vNUM+1}], v[{vDEN}:{vDEN+1}], v[{d}:{d+1}]')
            a(f'    v_pk_mul_f32 v[{vNUM+2}:{vNUM+3}], v[{vDEN+2}:{vDEN+3}], v[{d+2}:{d+3}]')
        else:
            for i in range(4):
                a(f'    v_rcp_f32 v{vT+i}, v{vT+i}')
            a(f'    v_pk_add_f32 v[{vDEN}:{vDEN+1}], v[{vDEN}:{vDEN+1}], v[{vT}:{vT+1}]')
            a(f'    v_pk_add_f32 v[{vDEN+2}:{vDEN+3}], v[{vDEN+2}:{vDEN+3}], v[{vT+2}:{vT+3}]')
            a(f'    v_pk_fma_f32 v[{vNUM}:{vNUM+1}], v[{vT}:{vT+1}], v[{d}:{d+1}], v[{vNUM}:{vNUM+1}]')
            a(f'    v_pk_fma_f32 v[{vNUM+2}:{vNUM+3}], v[{vT+2}:{vT+3}], v[{d+2}:{d+3}], v[{vNUM+2}:{vNUM+3}]')
        tload(k)
        if k == U-1:
            a(f'    v_add_u32 v{vSA}, {16*U}, v{vSA}')

    def loopback(pfx):
        if PRIO:
            a(f'    s_sub_u32 s{sPR}, s{sPR}, 1')
            a(f'    s_cmp_lg_u32 s{sPR}, 0')
            a(f'    s_cbranch_scc1 {pfx}_STEP0')
            a(f'    s_branch {pfx}_PRIO')
        else:
            a(f'    s_branch {pfx}_STEP0')

    for pfx, safe in (('K2F', False), ('K2S', True)):
        a.label(f'{pfx}_ENTER')
        next_node()
        set_slot()
        a('    s_waitcnt vmcnt(3) lgkmcnt(0)')
        dstamp(a, 2)
        step(0, safe, True)
        a(f'    s_branch {pfx}_STEP1')
        for k in range(U):
            a.label(f'{pfx}_STEP{k}')
            a(f'    s_waitcnt vmcnt({U-1}) lgkmcnt(0)')
            a(f'    s_sub_u32 s{sLEFT}, s{sLEFT}, 1')
            a(f'    s_cbranch_scc1 {pfx}_FLUSH{k}')
            step(k, safe, False)
            if k == U-1:
                loopback(pfx)
        for k in range(U):
            a.label(f'{pfx}_FLUSH{k}')
            a(f'    s_cmp_ge_u32 s{sGEND}, s{sG1}')
            a(f'    s_cbranch_scc1 K2_LAST')
            next_node()
            flush()
            set_slot()
            step(k, safe, True)
            if k == U-1:
                loopback(pfx)
            else:
                a(f'    s_branch {pfx}_STEP{k+1}')
        if PRIO:
            a.label(f'{pfx}_PRIO')
            a(f'    s_sub_u32 s{sLVL}, s{sLVL}, 1')
            a(f'    s_cmp_eq_u32 s{sLVL}, 2')
            a(f'    s_cbranch_scc1 {pfx}_PRIO2')
            a(f'    s_cmp_eq_u32 s{sLVL}, 1')
            a(f'    s_cbranch_scc1 {pfx}_PRIO1')
            a(f'    s_mov_b32 s{sPR}, 0x7fffffff')
            a('    s_setprio 0')
            a(f'    s_branch {pfx}_STEP0')
            a.label(f'{pfx}_PRIO2')
            a(f'    s_mov_b32 s{sPR}, s{sPQ}')
            a('    s_setprio 2')
            a(f'    s_branch {pfx}_STEP0')
            a.label(f'{pfx}_PRIO1')
            a(f'    s_mov_b32 s{sPR}, s{sPQ2}')
            a('    s_setprio 1')
            a(f'    s_branch {pfx}_STEP0')
    a.label('K2_LAST')
    dstamp(a, 3)
    flush()
    a.label('K2_MAIN_DONE')
    if PRIO: a('    s_setprio 0')
    a(f'    s_cmp_eq_u32 s{sPASS}, 0')
    a('    s_cbranch_scc0 K2_NOUST')
    a(f'    s_cmp_eq_u32 s{sMODE}, 1')
    a('    s_cbranch_scc1 K2_NOUST')
    a(f'    s_cmp_lt_u32 s{sWAVE}, 12')
    a('    s_cbranch_scc0 K2_NOUST')
    a(f'    ds_write_b128 v{vUA}, v[{vU}:{vU+3}] offset:{L2_UT-L2_EAT}')
    a.label('K2_NOUST')
    a(f'    s_cmp_eq_u32 s{sMODE}, 2')
    a('    s_cbranch_scc0 K2_NOABORT')
    a(f'    s_mov_b32 s{sMODE}, 1')
    a(f'    s_mov_b32 s{sPASS}, 0')
    a('    s_waitcnt vmcnt(0) lgkmcnt(0)')
    a('    s_barrier')
    a('    s_branch K2_PASS')
    a.label('K2_NOABORT')
    a('    s_waitcnt lgkmcnt(0)')
    stamp(a, 6)
    a('    s_barrier')
    S0 = 76; S1 = 84; UU = 92; XX = 104
    a(f'    s_mov_b64 exec, s[{sM}:{sM+1}]')
    a(f'    ds_read_b128 v[{S0}:{S0+3}], v{vFS} offset:{L2_SLOT}')
    a(f'    ds_read_b128 v[{S0+4}:{S0+7}], v{vFS} offset:{L2_SLOT+256}')
    a(f'    s_mov_b64 exec, s[{sM+2}:{sM+3}]')
    a(f'    ds_read_b128 v[{S1}:{S1+3}], v{vFS} offset:{L2_SLOT+512}')
    a(f'    ds_read_b128 v[{S1+4}:{S1+7}], v{vFS} offset:{L2_SLOT+512+256}')
    a('    s_mov_b64 exec, -1')
    a(f'    ds_read_b128 v[{UU}:{UU+3}], v{vUTA}')
    a(f'    ds_read_b64 v[{XX}:{XX+1}], v{vXTA}')
    a(f'    s_mov_b64 exec, s[{sM}:{sM+1}]')
    a('    s_waitcnt lgkmcnt(4)')
    for b, acc in ((S0, vDA), (S0+2, vDA+2), (S0+4, vNA), (S0+6, vNA+2)):
        a(f'    v_pk_add_f32 v[{acc}:{acc+1}], v[{acc}:{acc+1}], v[{b}:{b+1}]')
    a(f'    s_mov_b64 exec, s[{sM+2}:{sM+3}]')
    a('    s_waitcnt lgkmcnt(2)')
    for b, acc in ((S1, vDA), (S1+2, vDA+2), (S1+4, vNA), (S1+6, vNA+2)):
        a(f'    v_pk_add_f32 v[{acc}:{acc+1}], v[{acc}:{acc+1}], v[{b}:{b+1}]')
    a('    s_mov_b64 exec, -1')
    a(f'    s_cmp_eq_u64 s[{sM+4}:{sM+5}], 0')
    a('    s_cbranch_scc1 K2_FOLD_END')
    a(f'    v_add_u32 v{vFS}, 1024, v{vFS}')
    a(f'    v_add_u32 v{vFC}, -2, v{vFC}')
    a.label('K2_FOLD')
    masked(a, f'v_cmp_lt_i32 vcc, 0, v{vFC}', sEX, 'K2_FOLD_DONE')
    a(f'    ds_read_b128 v[{S0}:{S0+3}], v{vFS} offset:{L2_SLOT}')
    a(f'    ds_read_b128 v[{S0+4}:{S0+7}], v{vFS} offset:{L2_SLOT+256}')
    a(f'    v_add_u32 v{vFS}, 512, v{vFS}')
    a(f'    v_add_u32 v{vFC}, -1, v{vFC}')
    a('    s_waitcnt lgkmcnt(0)')
    for b, acc in ((S0, vDA), (S0+2, vDA+2), (S0+4, vNA), (S0+6, vNA+2)):
        a(f'    v_pk_add_f32 v[{acc}:{acc+1}], v[{acc}:{acc+1}], v[{b}:{b+1}]')
    unmask(a, sEX)
    a('    s_branch K2_FOLD')
    unmask(a, sEX, 'K2_FOLD_DONE')
    a.label('K2_FOLD_END')
    a(f'    s_cmp_eq_u32 s{sMODE}, 0')
    a('    s_cbranch_scc1 K2_EPI')
    a(f'    s_add_u32 s{sPASS}, s{sPASS}, 1')
    a(f'    s_cmp_lt_u32 s{sPASS}, {NC}')
    a('    s_cbranch_scc0 K2_EPI')
    a('    s_waitcnt vmcnt(0) lgkmcnt(0)')
    a('    s_barrier')
    a('    s_branch K2_PASS')
    a.label('K2_EPI')
    masked(a, f'v_cmp_gt_u32 vcc, s{sNT}, v0', sEX, 'K2_FIN')
    a(f'    s_mov_b32 s{sT0}, {hex(f2u(1e-6))}')
    for i in range(4):
        a(f'    v_add_f32 v{vDA+i}, s{sT0}, v{vDA+i}')
    for i in range(4):
        a(f'    v_rcp_f32 v{vDA+i}, v{vDA+i}')
    a('    s_waitcnt lgkmcnt(0)')
    a(f'    v_lshlrev_b32 v{vT}, 16, v{XX}')
    a(f'    v_and_b32 v{vT+1}, 0xffff0000, v{XX}')
    a(f'    v_lshlrev_b32 v{vT+2}, 16, v{XX+1}')
    a(f'    v_and_b32 v{vT+3}, 0xffff0000, v{XX+1}')
    for i in range(4):
        a(f'    v_fma_f32 v{vNA+i}, v{vNA+i}, v{vDA+i}, v{UU+i}    ; z = U + agg')
    for i in range(4):
        a(f'    v_cmp_lt_f32 s[{sM+2*i}:{sM+2*i+1}], 0, v{vNA+i}')
    for i in range(4):
        a(f'    v_mul_f32 v{vDEN+i}, 0, v{vNA+i}                     ; 0*z')
    for i in range(4):
        a(f'    v_cndmask_b32 v{vNA+i}, v{vDEN+i}, v{vNA+i}, s[{sM+2*i}:{sM+2*i+1}]')
    for i in range(4):
        a(f'    v_add_f32 v{vNA+i}, v{vNA+i}, v{vT+i}')
    a(f'    s_lshl_b32 s{sT1}, s{sN0}, 7')
    a(f'    v_lshlrev_b32 v{vA+1}, 3, v0')
    a(f'    v_cvt_pk_bf16_f32 v{vDEN}, v{vNA}, v{vNA+1}')
    a(f'    v_cvt_pk_bf16_f32 v{vDEN+1}, v{vNA+2}, v{vNA+3}')
    a(f'    buffer_store_dwordx2 v[{vDEN}:{vDEN+1}], v{vA+1}, s[{SRD_OUT}:{SRD_OUT+3}], s{sT1} offen {OUTST}')
    a.label('K2_FIN')
    if STAMP:
        a('    s_mov_b64 exec, -1')
        a('    s_waitcnt vmcnt(0)')
    stamp(a, 7); stamp(a, 1, True)
    stamp_flush(a, sWAVE, sB, 1, 6)
    a.label('K2_END')
    a('    s_endpgm')
    a.label('CODE_END')

def gen_k3(a):
    i, j = [int(x) for x in env('INTERVAL', '0,0').split(',')]
    inv = {0: True, 2: True}
    a('.globl k3_kernel')
    a('.p2align 8')
    a('.type k3_kernel,@function')
    a.label('k3_kernel')
    a('    s_cmp_ge_u32 s2, 1')
    a('    s_cbranch_scc1 K3_END')
    a('    s_load_dwordx2 s[4:5], s[0:1], 80')
    a('    s_waitcnt lgkmcnt(0)')
    a('    v_mov_b32 v1, 0')
    a(f'    global_load_dword v2, v1, s[4:5] offset:{4*i} sc1')
    a(f'    global_load_dword v3, v1, s[4:5] offset:{4*j} sc1')
    a('    s_waitcnt vmcnt(0)')
    if inv.get(i): a('    v_not_b32 v2, v2')
    if inv.get(j): a('    v_not_b32 v3, v3')
    a('    v_sub_u32 v3, v3, v2')
    a('    s_nop 1')
    a('    v_readfirstlane_b32 s8, v3')
    a('    s_nop 3')
    a('    s_mul_i32 s8, s8, 10')
    a('    s_min_u32 s8, s8, 50000')
    a('    s_memrealtime s[10:11]')
    a('    s_waitcnt lgkmcnt(0)')
    a.label('K3_SPIN')
    a('    s_memrealtime s[12:13]')
    a('    s_waitcnt lgkmcnt(0)')
    a('    s_sub_u32 s9, s12, s10')
    a('    s_cmp_lt_u32 s9, s8')
    a('    s_cbranch_scc1 K3_SPIN')
    a.label('K3_END')
    a('    s_endpgm')

def kd(a, name, vgpr, sgpr):
    a(f'.amdhsa_kernel {name}')
    a(f'  .amdhsa_next_free_vgpr {vgpr}')
    a(f'  .amdhsa_next_free_sgpr {sgpr}')
    a(f'  .amdhsa_accum_offset {((vgpr+3)//4)*4}')
    a('  .amdhsa_group_segment_fixed_size 0')
    a('  .amdhsa_kernarg_size 96')
    a('  .amdhsa_user_sgpr_count 2')
    a('  .amdhsa_user_sgpr_kernarg_segment_ptr 1')
    a('  .amdhsa_system_sgpr_workgroup_id_x 1')
    a('  .amdhsa_float_denorm_mode_32 3')
    a('.end_amdhsa_kernel')

def main(out):
    a = Asm()
    a(f'; @launch kernel=k1_kernel grid=({K1_GRID},1,1) block=(1024,1,1) lds={K1_LDS}')
    a(f'; @launch kernel=k2_kernel grid=({NB},1,1) block=(1024,1,1) lds={K2_LDS}')
    if STAMP == 4: a('; @launch kernel=k3_kernel grid=(1,1,1) block=(64,1,1) lds=0')
    a('.amdgcn_target "amdgcn-amd-amdhsa--gfx950"')
    a('.text')
    a('.globl k1_kernel')
    gen_k1(a)
    a('.globl k2_kernel')
    gen_k2(a)
    if STAMP == 4: gen_k3(a)
    a('.section .rodata,"a"')
    a('.p2align 6')
    kd(a, 'k1_kernel', 96, 102 if STAMP else 72)
    a('.p2align 6')
    kd(a, 'k2_kernel', 128, 102 if STAMP else 80)
    if STAMP == 4:
        a('.p2align 6')
        kd(a, 'k3_kernel', 8, 32)
    a.l = [x for x in a.l if x is not None]
    open(out, 'w').write(a.text())

if __name__ == '__main__':
    main(sys.argv[1] if len(sys.argv) > 1 else 'standalone__edge_featured_mpnn_gatedgcn__graph.s')
```

```python
import sys, os, struct
def env(n, d): return os.environ.get(n, d)

N = 10000; E = 640000
NPB = 40; NB = 256; EPC = 2500; NC = 256
TPC = EPC//4
BMAGIC = 109951163
LOG2E = 1.4426950408889634
WS_REC  = 0
REC_STRIDE = EPC*5
WS_DESC = 3407872
DESC_STRIDE = 1024
WS_T    = 4194304
T_BYTES = (N+1)*256

STAMP = int(env('STAMP', '0'))
K1ST = env('K1ST', 'sc1')
PRIO = int(env('PRIO', '1'))
TFIRST = int(env('TFIRST', '1'))
WS_STAMP = 128 << 20
ST0 = 80

def f2u(f): return struct.unpack('<I', struct.pack('<f', f))[0]

class Asm:
    def __init__(self): self.l = []
    def __call__(self, s=''):
        for line in s.split('\n'): self.l.append(line)
    def label(self, n): self.l.append(n + ':')
    def text(self): return '\n'.join(self.l) + '\n'

DETAIL = int(env('DETAIL', '0'))
def dstamp(a, i):
    if DETAIL: stamp(a, i, False, True)
def stamp(a, i, real=False, force=False):
    if DETAIL and not force and not real and getattr(a, 'k2', False) and i in (1, 2, 3): return
    if STAMP:
        r = ST0 + 2*(8+i if real else i)
        a(f"    {'s_memrealtime' if (real or STAMP >= 3) else 's_memtime'} s[{r}:{r+1}]")
def stamp_flush(a, wave_sgpr, wg_sgpr, kern, ws_lo):
    if not STAMP: return
    a('    s_waitcnt lgkmcnt(0)')
    a('    s_mov_b64 exec, 1')
    a('    v_mov_b32 v2, 0')
    if STAMP == 4:
        lab = f'STSKIP{kern}_{len(a.l)}'
        a(f"    s_and_b32 s14, s{wg_sgpr}, {31 if kern == 0 else int(env('SAMP2', '31'))}")
        a('    s_cmp_eq_u32 s14, 0')
        a(f'    s_cbranch_scc0 {lab}')
        a(f'    s_cmp_eq_u32 s{wave_sgpr}, 0')
        a(f'    s_cbranch_scc0 {lab}')
        a('    s_load_dwordx2 s[12:13], s[0:1], 80')
        a('    s_waitcnt lgkmcnt(0)')
        a(f'    s_add_u32 s12, s12, {1024 if kern == 0 else 512}')
        a('    s_addc_u32 s13, s13, 0')
        slots = [(0, 8, True), (1, 9, False), (7, 4, False), (8, 2, False)] if kern == 0 else \
                [(2, 8, True), (3, 4, False), (4, 5, False), (5, 6, False), (6, 9, False), (9, 2, False)]
        for slot, st, inv in slots:
            a(f'    v_mov_b32 v3, s{ST0+2*st}')
            if inv: a('    v_not_b32 v3, v3')
            a(f'    global_atomic_umax v2, v3, s[12:13] offset:{4*slot}')
        a('    s_waitcnt vmcnt(0)')
        a.label(lab)
        return
    a(f'    s_add_u32 s12, s{ws_lo}, {WS_STAMP + kern*(4<<20)}')
    a(f'    s_addc_u32 s13, s{ws_lo+1}, 0')
    a(f'    s_mov_b32 s14, {4<<20}')
    a('    s_mov_b32 s15, 0x00020000')
    a(f'    s_lshl_b32 s16, s{wg_sgpr}, 4')
    a(f'    s_add_u32 s16, s16, s{wave_sgpr}')
    a(f'    s_lshl_b32 s16, s16, 6')
    for i in range(8):
        a(f'    v_mov_b32 v3, s{ST0+2*i}')
        a(f'    buffer_store_dword v3, v2, s[12:15], s16 offen offset:{4*i}')
    for i in range(2):
        a(f'    v_mov_b32 v3, s{ST0+2*(8+i)}')
        a(f'    buffer_store_dword v3, v2, s[12:15], s16 offen offset:{4*(10+i)}')
    a('    s_waitcnt vmcnt(0)')

def srd(a, sreg, lo, hi, nbytes, off=0, stride=0, nrec=None):
    if off:
        a(f'    s_add_u32 s{sreg}, s{lo}, {off}')
        a(f'    s_addc_u32 s{sreg+1}, s{hi}, 0')
    else:
        a(f'    s_mov_b32 s{sreg}, s{lo}')
        a(f'    s_mov_b32 s{sreg+1}, s{hi}')
    if stride:
        a(f'    s_and_b32 s{sreg+1}, s{sreg+1}, 0xffff')
        a(f'    s_or_b32 s{sreg+1}, s{sreg+1}, {stride << 16}')
        a(f'    s_mov_b32 s{sreg+2}, {nrec}')
    else:
        a(f'    s_mov_b32 s{sreg+2}, {nbytes}')
    a(f'    s_mov_b32 s{sreg+3}, 0x00020000')

def dpp_scan(a, v):
    for sh in (1, 2, 4, 8):
        a('    s_nop 1')
        a(f'    v_add_u32_dpp v{v}, v{v}, v{v} row_shr:{sh} row_mask:0xf bank_mask:0xf')
    a('    s_nop 1')
    a(f'    v_add_u32_dpp v{v}, v{v}, v{v} row_bcast:15 row_mask:0xa bank_mask:0xf')
    a('    s_nop 1')
    a(f'    v_add_u32_dpp v{v}, v{v}, v{v} row_bcast:31 row_mask:0xc bank_mask:0xf')

def masked(a, cond, exreg, skip=None):
    a(f'    {cond}')
    a(f'    s_and_saveexec_b64 s[{exreg}:{exreg+1}], vcc')
    if skip: a(f'    s_cbranch_execz {skip}')
def unmask(a, exreg, skip=None):
    if skip: a.label(skip)
    a(f'    s_mov_b64 exec, s[{exreg}:{exreg+1}]')

def lds_sync(a, name, off, n, vzero, vone, vt, st):
    a('    s_waitcnt lgkmcnt(0)')
    a('    s_mov_b64 exec, 1')
    a(f'    ds_add_u32 v{vzero}, v{vone} offset:{off}')
    a('    s_mov_b64 exec, -1')
    a.label(name)
    a(f'    ds_read_b32 v{vt}, v{vzero} offset:{off}')
    a('    s_waitcnt lgkmcnt(0)')
    a(f'    v_readfirstlane_b32 s{st}, v{vt}')
    a(f'    s_cmp_lt_u32 s{st}, {n}')
    a(f'    s_cbranch_scc1 {name}')

K1_GRID = NC
L1_HIST = 0; L1_START = 1024; L1_SYNC = 2048
L1_ST32 = 2304; L1_ST8 = L1_ST32 + 2560*4; L1_W = 15360
K1_LDS = L1_W + 16384
K1PF = int(env('K1PF', '0'))
CPF = int(env('CPF', '1'))
XMAP = int(env('XMAP', '1'))
DESCT = int(env('DESCT', '1'))
DESCST = env('DESCST', '')
OUTST = env('OUTST', '')
RECST = env('RECST', K1ST)
TST = env('TST', K1ST)
TFIRST = int(env('TFIRST', '1'))

def gen_k1(a):
    a('.p2align 8')
    a('.type k1_kernel,@function')
    a.label('k1_kernel')
    a(f'    s_cmp_ge_u32 s2, {K1_GRID}')
    a('    s_cbranch_scc1 K1_END')
    stamp(a, 0); stamp(a, 0, True)
    if CPF:
        a('    s_getpc_b64 s[30:31]')
        a.label('K1_PC')
        a('    v_lshlrev_b32 v90, 7, v0')
        lim = 'CODE_END-K1_PC' if CPF >= 2 else 'k2_kernel-K1_PC'
        a(f'    v_cmp_gt_u32 vcc, {lim}, v90')
        a('    s_and_saveexec_b64 s[28:29], vcc')
        a('    s_cbranch_execz K1_NOCPF')
        a('    global_load_dword v91, v90, s[30:31]')
        a.label('K1_NOCPF')
        a('    s_mov_b64 exec, s[28:29]')
    if XMAP:
        a('    s_and_b32 s20, s2, 7')
        a('    s_lshr_b32 s21, s2, 3')
        a('    s_lshl_b32 s20, s20, 5')
        a('    s_add_u32 s2, s20, s21')
    a('    v_lshrrev_b32 v1, 6, v0')
    a('    s_load_dwordx4 s[8:11], s[0:1], 16')
    a('    v_readfirstlane_b32 s20, v1')
    a('    s_load_dwordx2 s[4:5], s[0:1], 8      ; e_attr')
    a('    s_load_dwordx2 s[6:7], s[0:1], 88     ; ws')
    a('    v_and_b32 v2, 63, v0                   ; lane')
    if TFIRST:
        a('    s_cmp_lt_u32 s20, 6')
        a('    s_cbranch_scc1 K1_TABLE')
        a('    v_subrev_u32 v0, 384, v0')
        a('    s_sub_u32 s20, s20, 6')
    else:
        a('    s_cmp_ge_u32 s20, 10')
        a('    s_cbranch_scc1 K1_TABLE')
    a('    v_mov_b32 v5, 0')
    a('    v_lshlrev_b32 v6, 2, v0               ; t*4')
    masked(a, 'v_cmp_gt_u32 vcc, 256, v0', 30)
    a(f'    ds_write_b32 v6, v5 offset:{L1_HIST}')
    unmask(a, 30)
    a('    v_lshlrev_b32 v3, 4, v0               ; t*16')
    a('    v_lshlrev_b32 v4, 3, v0               ; t*8')
    a(f'    s_mul_i32 s21, s2, {EPC*4}')
    a(f'    s_mul_i32 s22, s2, {EPC*2}')
    a(f'    s_mov_b32 s23, {BMAGIC}')
    a(f'    v_mov_b32 v19, {TPC}')
    a('    v_cmp_gt_u32 s[46:47], v19, v0')
    a('    s_waitcnt lgkmcnt(0)')
    srd(a, 12, 10, 11, E*4)
    a('    buffer_load_dwordx4 v[8:11], v3, s[12:15], s21 offen     ; dst x4')
    srd(a, 16, 8, 9, E*4)
    a('    buffer_load_dwordx4 v[12:15], v3, s[16:19], s21 offen    ; src x4')
    srd(a, 24, 4, 5, E*2)
    a('    buffer_load_dwordx2 v[16:17], v4, s[24:27], s22 offen')
    srd(a, 32, 6, 7, NC*REC_STRIDE, off=WS_REC)
    srd(a, 36, 6, 7, NB*DESC_STRIDE, off=WS_DESC)
    a('    v_lshlrev_b32 v6, 4, v2                ; lane*16')
    a('    v_mul_u32_u24 v7, 20, v0')
    a('    v_lshlrev_b32 v18, 12, v2')
    a(f'    s_mul_i32 s25, s2, {REC_STRIDE}')
    a('    s_lshl_b32 s26, s2, 2')
    a('    s_mov_b32 s40, 0x06050400')
    a('    s_mov_b32 s41, 0x05040003')
    a('    s_mov_b32 s42, 0x03020500')
    a('    s_mov_b32 s43, 0x04000302')
    a('    s_mov_b32 s44, 0x03060100')
    a('    s_mov_b32 s45, 0x07030201')
    stamp(a, 1)
    a('    s_barrier')
    a('    v_mov_b32 v5, 1')
    a('    v_mov_b32 v19, 0')
    a('    s_waitcnt vmcnt(2)')
    stamp(a, 2)
    for k in range(4):
        a(f'    v_mul_hi_u32 v{20+k}, s23, v{8+k}        ; bucket')
    for k in range(4):
        a(f'    v_lshlrev_b32 v{24+k}, 2, v{20+k}       ; bucket*4')
    a('    s_mov_b64 exec, s[46:47]')
    for k in range(4):
        a(f'    ds_add_rtn_u32 v{28+k}, v{24+k}, v5 offset:{L1_HIST}')
    a('    s_mov_b64 exec, -1')
    a('    s_movk_i32 s27, 625')
    for k in range(4):
        a(f'    v_mad_u32_u24 v{20+k}, v{20+k}, s27, 15')
    for k in range(4):
        a(f'    v_lshrrev_b32 v{20+k}, 4, v{20+k}')
    for k in range(4):
        a(f'    v_sub_u32 v{20+k}, v{8+k}, v{20+k}')
    for k in range(4):
        a(f'    v_lshlrev_b32 v{20+k}, 2, v{20+k}')
    a('    s_waitcnt vmcnt(0)')
    a('    v_lshl_or_b32 v32, v16, 16, v12')
    a('    s_mov_b32 s24, 0xffff0000')
    a('    v_and_or_b32 v33, v16, s24, v13')
    a('    v_lshl_or_b32 v34, v17, 16, v14')
    a('    v_and_or_b32 v35, v17, s24, v15')
    a('    s_waitcnt lgkmcnt(0)')
    stamp(a, 3)
    lds_sync(a, 'K1_SYNC2', L1_SYNC+4, 10, 19, 5, 25+40, 27)
    stamp(a, 4)
    a(f'    ds_read_b128 v[40:43], v6 offset:{L1_HIST}')
    a('    s_waitcnt lgkmcnt(0)')
    a('    v_add_u32 v44, v40, v41                ; h0+h1')
    a('    v_add_u32 v45, v44, v42')
    a('    v_add_u32 v46, v45, v43                ; sum4')
    a('    v_mov_b32 v47, v46')
    dpp_scan(a, 47)
    a('    v_sub_u32 v48, v47, v46')
    a('    v_add_u32 v49, v48, v40')
    a('    v_add_u32 v50, v48, v44')
    a('    v_add_u32 v51, v48, v45')
    a(f'    ds_write_b128 v6, v[48:51] offset:{L1_START}')
    a('    s_waitcnt lgkmcnt(0)')
    for k in range(4):
        a(f'    ds_read_b32 v{56+k}, v{24+k} offset:{L1_START}')
    for k in range(4):
        a(f'    v_lshl_or_b32 v{52+k}, v{40+k}, 16, v{48+k}')
    a('    s_waitcnt lgkmcnt(0)')
    for k in range(4):
        a(f'    v_add_u32 v{56+k}, v{56+k}, v{28+k}      ; position')
    a('    s_mov_b64 exec, s[46:47]')
    for k in range(4):
        a(f'    ds_write_b8 v{56+k}, v{20+k} offset:{L1_ST8}')
        a(f'    v_lshlrev_b32 v{60+k}, 2, v{56+k}')
    for k in range(4):
        a(f'    ds_write_b32 v{60+k}, v{32+k} offset:{L1_ST32}')
    a('    s_mov_b64 exec, -1')
    a('    s_waitcnt lgkmcnt(0)')
    stamp(a, 5)
    lds_sync(a, 'K1_SYNC3', L1_SYNC+8, 10, 19, 5, 25+40, 27)
    a(f'    ds_read_b128 v[8:11], v3 offset:{L1_ST32}')
    a('    v_lshrrev_b32 v4, 2, v3                ; t*4')
    a(f'    ds_read_b32 v12, v4 offset:{L1_ST8}')
    a('    s_waitcnt lgkmcnt(0)')
    a('    v_perm_b32 v21, v9, v12, s40           ; d1 = L0 r1.b0 r1.b1 r1.b2')
    a('    v_perm_b32 v22, v10, v9, s41           ; r1.b3 . r2.b0 r2.b1')
    a('    v_perm_b32 v23, v11, v10, s43          ; r2.b2 r2.b3 . r3.b0')
    a('    v_mov_b32 v20, v8')
    a('    v_perm_b32 v22, v12, v22, s42          ; d2 : insert L1')
    a('    v_perm_b32 v23, v12, v23, s44          ; d3 : insert L2')
    a('    v_perm_b32 v24, v12, v11, s45          ; d4 = r3.b1 r3.b2 r3.b3 L3')
    a('    s_mov_b64 exec, s[46:47]')
    a(f'    buffer_store_dwordx4 v[20:23], v7, s[32:35], s25 offen {RECST}')
    a(f'    buffer_store_dword v24, v7, s[32:35], s25 offen offset:16 {RECST}')
    a('    s_mov_b64 exec, -1')
    a('    s_cmp_eq_u32 s20, 0')
    a('    s_cbranch_scc0 K1_SFIN')
    if DESCT:
        for k in range(4):
            a(f'    buffer_store_dword v{52+k}, v18, s[36:39], s26 offen offset:{1024*k} {DESCST}')
    else:
        a('    s_lshl_b32 s26, s2, 10')
        a(f'    buffer_store_dwordx4 v[52:55], v6, s[36:39], s26 offen {DESCST}')
    a.label('K1_SFIN')
    if STAMP:
        stamp(a, 6)
        a('    s_waitcnt vmcnt(0)')
        stamp(a, 7); stamp(a, 1, True)
        stamp_flush(a, 20, 2, 0, 6)
    a('    s_endpgm')
    a.label('K1_TABLE')
    a('    s_load_dwordx2 s[40:41], s[0:1], 40   ; w_b')
    a('    s_load_dwordx2 s[42:43], s[0:1], 64   ; w_v')
    a('    s_load_dwordx2 s[44:45], s[0:1], 0    ; x')
    if K1PF:
        a('    s_load_dwordx2 s[60:61], s[0:1], 32   ; w_a')
        a('    s_load_dwordx4 s[64:67], s[0:1], 48   ; w_c, w_u')
        a('    s_load_dwordx2 s[62:63], s[0:1], 72   ; out')
    a('    s_mov_b32 s21, s20                     ; tw' if TFIRST else '    s_sub_u32 s21, s20, 10                 ; tw')
    a('    v_mov_b32 v5, 0')
    a('    v_lshlrev_b32 v6, 2, v2')
    a('    s_cmp_eq_u32 s21, 0')
    a('    s_cbranch_scc0 K1_T_NOZ')
    masked(a, 'v_cmp_gt_u32 vcc, 4, v2', 30)
    a(f'    ds_write_b32 v6, v5 offset:{L1_SYNC}')
    unmask(a, 30)
    a.label('K1_T_NOZ')
    a('    s_lshr_b32 s22, s21, 1')
    a('    s_lshl_b32 s22, s22, 4                 ; 16*rt')
    a('    v_and_b32 v4, 15, v2')
    a('    v_add_u32 v4, s22, v4')
    a('    v_lshrrev_b32 v5, 4, v2                ; g')
    a('    v_lshlrev_b32 v6, 7, v4')
    a('    v_lshl_add_u32 v6, v5, 4, v6')
    a('    s_mul_i32 s58, s2, 625')
    a('    s_add_u32 s59, s58, 640                ; 625*(c+1) + 15')
    a('    s_add_u32 s58, s58, 15')
    a('    s_lshr_b32 s58, s58, 4')
    a('    s_lshr_b32 s59, s59, 4')
    a('    s_sub_u32 s59, s59, s58')
    a('    s_lshl_b32 s24, s58, 7')
    a('    v_lshlrev_b32 v7, 4, v2                ; lane*16')
    a('    v_bfe_u32 v8, v2, 4, 1')
    a('    v_lshlrev_b32 v8, 1, v8')
    a('    v_and_b32 v9, 7, v2')
    a('    v_xor_b32 v8, v8, v9')
    a('    v_lshrrev_b32 v9, 3, v2')
    a('    v_lshlrev_b32 v9, 7, v9                ; (lane>>3)*128')
    a('    s_waitcnt lgkmcnt(0)')
    for i in range(3):
        a(f'    s_add_u32 s26, s21, {6*i}              ; p')
        a('    s_cmp_lt_u32 s26, 8')
        a('    s_cselect_b32 s48, s40, s42')
        a('    s_cselect_b32 s49, s41, s43')
        a('    s_mov_b32 s50, 8192')
        a('    s_mov_b32 s51, 0x00020000')
        a('    s_and_b32 s27, s26, 7')
        a('    s_lshl_b32 s27, s27, 10')
        a('    s_cmp_lt_u32 s26, 16')
        a(f'    s_cselect_b32 s27, s27, {1<<20}')
        a(f'    buffer_load_dwordx4 v[{48+4*i}:{51+4*i}], v7, s[48:51], s27 offen')
    srd(a, 36, 44, 45, N*128)
    a('    buffer_load_dwordx4 v[24:27], v6, s[36:39], s24 offen')
    a('    buffer_load_dwordx4 v[28:31], v6, s[36:39], s24 offen offset:64')
    if K1PF:
        a('    s_cmp_eq_u32 s21, 5')
        a('    s_cbranch_scc0 K1_T_NOPF')
        a('    v_lshlrev_b32 v60, 8, v2')
        a('    v_lshlrev_b32 v61, 7, v2')
        a('    global_load_dword v62, v61, s[60:61]')
        a('    global_load_dword v62, v61, s[66:67]')
        a('    v_mov_b32 v63, 0')
        a('    global_load_dword v62, v63, s[64:65]')
        a('    s_lshl_b32 s26, s58, 7')
        a('    v_mov_b32 v63, s26')
        a('    global_load_dword v62, v63, s[62:63]')
        srd(a, 52, 6, 7, WS_T + T_BYTES, off=0)
        a(f'    s_mul_i32 s26, s2, {REC_STRIDE}')
        a('    v_mov_b32 v63, s26')
        a('    buffer_load_dword v62, v63, s[52:55], 0 offen')
        a('    s_lshl_b32 s26, s58, 8')
        a(f'    s_add_u32 s26, s26, {WS_T}')
        a('    v_mov_b32 v63, s26')
        a('    buffer_load_dword v62, v63, s[52:55], 0 offen')
        a(f'    s_lshl_b32 s26, s2, 2')
        a(f'    s_add_u32 s26, s26, {WS_DESC}')
        a('    v_mov_b32 v63, s26')
        a('    buffer_load_dword v62, v63, s[52:55], 0 offen')
        a.label('K1_T_NOPF')
    a('    s_barrier')
    if K1PF: a.label('K1_T_PFJOIN0')
    srd(a, 44, 6, 7, T_BYTES, off=WS_T)
    for i in range(3):
        a(f'    s_add_u32 s26, s21, {6*i}              ; p')
        a('    s_and_b32 s27, s26, 1')
        a('    s_lshl_b32 s27, s27, 2')
        a(f'    v_xor_b32 v{18+i}, s27, v8')
        a(f'    v_lshl_add_u32 v{18+i}, v{18+i}, 4, v9')
        a('    s_lshl_b32 s27, s26, 10                ; m*8192 + (p&7)*1024 = p*1024')
        a(f'    v_add_u32 v{18+i}, s27, v{18+i}')
    a('    s_and_b32 s23, s21, 1                  ; half')
    a('    v_bfe_u32 v12, v2, 2, 2                ; r')
    a('    v_lshl_add_u32 v13, v5, 3, v12         ; rho')
    a('    v_lshlrev_b32 v13, 7, v13')
    a('    v_and_b32 v14, 1, v2')
    a('    v_lshl_add_u32 v13, v14, 3, v13        ; + (c&1)*8')
    a('    v_bfe_u32 v14, v2, 1, 1                ; c>>1')
    a('    v_lshrrev_b32 v12, 1, v12')
    a('    v_and_b32 v15, 1, v5                   ; g&1')
    a('    v_lshlrev_b32 v15, 1, v15')
    a('    v_or_b32 v12, v12, v15                 ; swz/2')
    a('    s_lshl_b32 s25, s23, 1')
    a('    v_xor_b32 v15, s25, v12')
    a('    v_lshl_or_b32 v15, v15, 1, v14')
    a('    v_lshl_add_u32 v16, v15, 4, v13')
    a('    s_add_u32 s25, s25, 1')
    a('    v_xor_b32 v15, s25, v12')
    a('    v_lshl_or_b32 v15, v15, 1, v14')
    a('    v_lshl_add_u32 v17, v15, 4, v13')
    a('    v_lshlrev_b32 v21, 8, v4')
    a('    v_lshl_add_u32 v21, v5, 4, v21')
    a('    s_lshl_b32 s25, s23, 7')
    a('    s_lshl_b32 s26, s58, 8')
    a('    s_add_u32 s25, s25, s26')
    a('    v_add_u32 v21, s25, v21')
    a('    v_cmp_gt_u32 vcc, s59, v4')
    a(f'    v_mov_b32 v22, {1<<30}')
    a(f'    s_mov_b32 s27, {hex(f2u(-LOG2E))}')
    a('    s_mov_b32 s28, 0xffff0000')
    a('    v_cndmask_b32 v9, v22, v21, vcc')
    a('    s_mov_b32 s29, 0x80000000')
    a('    v_mov_b32 v10, 0')
    a('    v_mov_b32 v11, 1')
    if K1PF:
        a('    s_cmp_eq_u32 s21, 5')
        a('    s_cbranch_scc0 K1_T_W2')
        a('    s_waitcnt vmcnt(9)')
        a('    s_branch K1_T_W9')
        a.label('K1_T_W2')
    a('    s_waitcnt vmcnt(2)')
    if K1PF: a.label('K1_T_W9')
    stamp(a, 1)
    for i in range(3):
        if i == 2:
            a('    s_cmp_lt_u32 s21, 4')
            a('    s_cbranch_scc0 K1_T_ST2')
        a(f'    ds_write_b128 v{18+i}, v[{48+4*i}:{51+4*i}] offset:{L1_W}')
    a.label('K1_T_ST2')
    lds_sync(a, 'K1_T_SPIN', L1_SYNC, 6, 10, 11, 12, 26)
    stamp(a, 3)
    order = [(jj, ks, m) for jj in range(2) for ks in range(2) for m in range(2)]
    for i, (jj, ks, m) in enumerate(order):
        b = 64 + 4*i
        off = L1_W + m*8192 + ks*32*128
        a(f'    ds_read_b64_tr_b16 v[{b}:{b+1}], v{16+jj} offset:{off}')
        a(f'    ds_read_b64_tr_b16 v[{b+2}:{b+3}], v{16+jj} offset:{off+512}')
    if K1PF:
        a('    s_cmp_eq_u32 s21, 5')
        a('    s_cbranch_scc0 K1_T_X0')
        a('    s_waitcnt vmcnt(7)')
        a('    s_branch K1_T_XOK')
        a.label('K1_T_X0')
    a('    s_waitcnt vmcnt(0)')
    if K1PF: a.label('K1_T_XOK')
    for i, (jj, ks, m) in enumerate(order):
        b = 64 + 4*i
        a(f'    s_waitcnt lgkmcnt({min(15, 2*(7-i))})')
        acc = 32 + 8*m + 4*jj
        x = 24 + 4*ks
        c = '0' if ks == 0 else f'v[{acc}:{acc+3}]'
        a(f'    v_mfma_f32_16x16x32_bf16 v[{acc}:{acc+3}], v[{b}:{b+3}], v[{x}:{x+3}], {c}')
    stamp(a, 4)
    a('    s_nop 4')
    for jj in range(2):
        R = range(4)
        p = lambda r: 32 + 4*jj + r
        q = lambda r: 40 + 4*jj + r
        t = lambda r: 10 + r
        if jj == 1: a('    s_nop 2')
        for r in R: a(f'    v_mul_f32 v{p(r)}, s27, v{p(r)}')
        for r in R: a(f'    v_cvt_f16_f32 v{p(r)}, v{p(r)}')
        for r in R: a(f'    v_and_b32 v{t(r)}, 0x7fffffff, v{q(r)}')
        for r in R: a(f'    v_and_b32 v{p(r)}, 0xffff, v{p(r)}')
        for r in R: a(f'    v_sub_u32 v{t(r)}, v{t(r)}, v{p(r)}')
        for r in R: a(f'    v_add_u32 v{t(r)}, 0x8000, v{t(r)}')
        for r in R: a(f'    v_max_i32 v{t(r)}, 0, v{t(r)}')
        for r in R: a(f'    v_and_or_b32 v{t(r)}, v{t(r)}, s28, v{p(r)}')
        for r in R: a(f'    v_and_or_b32 v{p(r)}, v{q(r)}, s29, v{t(r)}')
        a(f'    buffer_store_dwordx4 v[{32+4*jj}:{35+4*jj}], v9, s[44:47], 0 offen offset:{jj*64} {TST}')
    a('    s_cmp_eq_u32 s2, 0')
    a('    s_cbranch_scc0 K1_TFIN')
    a('    s_cmp_eq_u32 s21, 0')
    a('    s_cbranch_scc0 K1_TFIN')
    a('    v_mov_b32 v10, 0x7c00')
    a(f'    v_lshlrev_b32 v11, 2, v2')
    a(f'    v_add_u32 v11, {N*256}, v11')
    a(f'    buffer_store_dword v10, v11, s[44:47], 0 offen {TST}')
    a.label('K1_TFIN')
    stamp(a, 5)
    if STAMP:
        stamp(a, 6)
        a('    s_waitcnt vmcnt(0)')
        stamp(a, 7); stamp(a, 1, True)
        if STAMP >= 3:
            a('    s_waitcnt lgkmcnt(0)')
            a(f'    s_mov_b32 s{ST0+4}, s{ST0+16}')
        else: stamp(a, 2)
        if TFIRST: a('    s_add_u32 s20, s20, 10')
        stamp_flush(a, 20, 2, 0, 6)
    a.label('K1_END')
    a('    s_endpgm')

CAP = 4096
TS = 272
L2_CNT = 0; L2_FLG = 256
L2_LIST = 512
L2_SLOT = L2_LIST + CAP*4
L2_EAT = L2_SLOT + 56*512; L2_UT = L2_EAT + 48*TS
XS = 144
L2_XT = L2_UT + 48*TS
L2_W = L2_XT + 48*XS
K2_LDS = L2_W + 16384
U = 4
TPF = int(env('TPF', '1'))
PFPOS = int(env('PFPOS', '1'))
PGT = int(env('PGT', '0'))
G0N = int(env('G0N', '1'))
PFW = int(env('PFW', '4'))
PFL = int(env('PFL', '640'))
PFN = int(env('PFN', '40'))
PRT = [int(x) for x in env('PRT', '4,4,4').split(',')]

def gen_k2(a):
    a.k2 = True
    sB = 2; sWAVE = 3
    SRD_DESC = 12; SRD_REC = 16; SRD_T = 20; SRD_W = 24; SRD_X = 28; SRD_OUT = 32; SRD_WC = 36
    sMODE = 40; sPASS = 41
    sG0 = 42; sG1 = 43; sGEND = 44; sLEFT = 45; sNODE = 46; sT0 = 47; sT1 = 48; sSAFE = 49; sGT = 50; sR = 51
    sEX = 52; sEAB = 54; sPR = 55; sPQ = 56; sLVL = 57; sSLOT = 58; sNR = 59; sPQ2 = 60; sN0 = 62; sNN = 63; sNT = 61; sJ = 58
    sM = 64
    vLANE = 1
    vWC = 4; vEA = 8; vDEN = 12; vNUM = 16; vT = 20; vDAT = 24; vP = 40; vEV = 48
    vSA = 50; vACC = 51; vEAA = 52; vGS = 53; vQ16 = 54; vNG = 55
    vDA = 56; vNA = 60
    vX = 64
    vFL = 66
    vGE = 67
    vXO = 68
    vR = 76
    vB = 84
    vRK = 92
    vLA = 100
    vA = 108
    vCNT = 118; vRO = 119; vI = 120; vRM = 121; vTRA = 122; vXRA = 123; vROW = 121; vPFA = 51
    vLC = 12
    vPF = 16
    vXO2 = vXO
    SRD_LOC = 8; SRD_PF = 24
    vW = 24; vOP = 24; vAC = 40
    vOP2 = 76; vAC2 = 92
    vFS = 101; vFC = 102; vUTA = 103; vXTA = 106
    vU = 96; vUA = 100

    a('.p2align 8')
    a('.type k2_kernel,@function')
    a.label('k2_kernel')
    a(f'    s_cmp_ge_u32 s2, {NB}')
    a('    s_cbranch_scc1 K2_END')
    stamp(a, 0); stamp(a, 0, True)
    if CPF:
        a('    s_getpc_b64 s[30:31]')
        a.label('K2_PC')
        a('    v_lshlrev_b32 v124, 7, v0')
        a('    v_cmp_gt_u32 vcc, CODE_END-K2_PC, v124')
        a('    s_and_saveexec_b64 s[28:29], vcc')
        a('    s_cbranch_execz K2_NOCPF')
        a('    global_load_dword v125, v124, s[30:31]')
        a.label('K2_NOCPF')
        a('    s_mov_b64 exec, s[28:29]')
    a(f'    s_lshr_b32 s{sJ}, s2, 3')
    if XMAP:
        a(f'    s_and_b32 s{sT0}, s2, 7')
        a(f'    s_lshl_b32 s{sT0}, s{sT0}, 5')
        a(f'    s_add_u32 s2, s{sT0}, s{sJ}')
    a(f'    s_mul_i32 s{sN0}, s2, 625')
    a(f'    s_add_u32 s{sNN}, s{sN0}, 640')
    a(f'    s_add_u32 s{sN0}, s{sN0}, 15')
    a(f'    s_lshr_b32 s{sN0}, s{sN0}, 4')
    a(f'    s_lshr_b32 s{sNN}, s{sNN}, 4')
    a(f'    s_sub_u32 s{sNN}, s{sNN}, s{sN0}')
    a('    s_load_dwordx2 s[6:7], s[0:1], 88      ; ws')
    a('    s_load_dwordx2 s[4:5], s[0:1], 0       ; x')
    a('    s_load_dwordx2 s[8:9], s[0:1], 32      ; w_a')
    a('    s_load_dwordx4 s[76:79], s[0:1], 48    ; w_c, w_u')
    a('    s_load_dwordx2 s[10:11], s[0:1], 72    ; out')
    a(f'    v_and_b32 v{vLANE}, 63, v0')
    a(f'    v_lshrrev_b32 v{vA}, 6, v0')
    a(f'    v_and_b32 v{vQ16}, 15, v0')
    a(f'    v_readfirstlane_b32 s{sWAVE}, v{vA}')
    a(f'    v_lshlrev_b32 v{vQ16}, 4, v{vQ16}      ; q*16')
    if DESCT:
        a(f'    v_and_b32 v{vA}, 0x3fc, v0             ; (t>>2)*4')
        a(f'    s_lshl_b32 s{sT0}, s{sB}, 10')
    else:
        a(f'    v_lshrrev_b32 v{vA}, 2, v0')
        a(f'    v_lshlrev_b32 v{vA}, 10, v{vA}')
        a(f'    s_lshl_b32 s{sT0}, s{sB}, 2')
    for i in range(4):
        a(f'    v_mov_b32 v{vDA+i}, 0')
        a(f'    v_mov_b32 v{vNA+i}, 0')
    masked(a, 'v_cmp_gt_u32 vcc, 4, v0', sEX)
    a(f'    v_lshlrev_b32 v{vA+5}, 2, v0')
    a(f'    ds_write_b32 v{vA+5}, v{vDA} offset:{L2_FLG}')
    unmask(a, sEX)
    a(f'    s_mov_b32 s{sMODE}, 0')
    a(f'    s_mov_b32 s{sPASS}, 0')
    a(f'    v_mov_b32 v{vEV}, 0')
    a(f'    v_mov_b32 v{vEV+1}, 0')
    for k in range(U):
        a(f'    v_mov_b32 v{vP+2*k}, {N}')
        a(f'    v_mov_b32 v{vP+2*k+1}, v{vQ16}')
    a(f'    v_lshrrev_b32 v{vA+1}, 5, v{vLANE}')
    a(f'    v_lshl_add_u32 v{vFL}, v{vA+1}, 8, v{vQ16}')
    a(f'    v_bfe_u32 v{vA+1}, v{vLANE}, 4, 1')
    a(f'    v_lshl_add_u32 v{vFL}, v{vA+1}, 3, v{vFL}')
    a.label('K2_PASS')
    for i in range(4):
        a(f'    v_mov_b32 v{vA+6+i}, {N}')
    a(f'    v_lshlrev_b32 v{vA+5}, 4, v0')
    a(f'    ds_write_b128 v{vA+5}, v[{vA+6}:{vA+9}] offset:{L2_LIST}')
    masked(a, 'v_cmp_gt_u32 vcc, 64, v0', sEX)
    a(f'    v_lshlrev_b32 v{vA+4}, 2, v0')
    a(f'    v_mov_b32 v{vA+3}, 0')
    a(f'    ds_write_b32 v{vA+4}, v{vA+3} offset:{L2_CNT}')
    unmask(a, sEX)
    a(f'    s_cmp_eq_u32 s{sMODE}, 0')
    a('    s_cbranch_scc0 K2_SLOWPARAM')
    a('    s_waitcnt lgkmcnt(0)')
    srd(a, SRD_DESC, 6, 7, NB*DESC_STRIDE, off=WS_DESC)
    a(f'    buffer_load_dword v{vCNT}, v{vA}, s[{SRD_DESC}:{SRD_DESC+3}], s{sT0} offen')
    a(f'    s_cmp_lt_u32 s{sWAVE}, 8')
    a(f'    s_cselect_b32 s{SRD_W}, s8, s78')
    a(f'    s_cselect_b32 s{SRD_W+1}, s9, s79')
    a(f'    s_mov_b32 s{SRD_W+2}, 8192')
    a(f'    s_mov_b32 s{SRD_W+3}, 0x00020000')
    srd(a, SRD_X, 4, 5, N*128)
    srd(a, SRD_WC, 76, 77, 128)
    a(f'    v_and_b32 v{vA+1}, 511, v0')
    a(f'    v_lshlrev_b32 v{vA+1}, 4, v{vA+1}')
    a(f'    buffer_load_dwordx4 v[{vW}:{vW+3}], v{vA+1}, s[{SRD_W}:{SRD_W+3}], 0 offen')
    a(f'    v_lshlrev_b32 v{vA+4}, 4, v0')
    a(f'    v_cmp_gt_u32 vcc, 384, v0')
    a(f'    v_mov_b32 v{vA+3}, {1<<30}')
    a(f'    s_lshl_b32 s{sT1}, s{sN0}, 7')
    a(f'    v_cndmask_b32 v{vA+4}, v{vA+3}, v{vA+4}, vcc')
    a(f'    buffer_load_dwordx4 v[{vXO}:{vXO+3}], v{vA+4}, s[{SRD_X}:{SRD_X+3}], s{sT1} offen')
    a(f'    v_lshrrev_b32 v{vA+7}, 1, v{vQ16}      ; q*8 (wc)')
    a(f'    buffer_load_dwordx2 v[{vWC}:{vWC+1}], v{vA+7}, s[{SRD_WC}:{SRD_WC+3}], 0 offen')
    if PGT:
        srd(a, SRD_REC, 6, 7, WS_T + T_BYTES, off=0)
        a(f'    v_lshlrev_b32 v{vPF+1}, 21, v{vLANE}')
        a(f'    buffer_load_dword v{vPF+1}, v{vPF+1}, s[{SRD_REC}:{SRD_REC+3}], 0 offen')
    a('    s_barrier')
    srd(a, SRD_OUT, 10, 11, N*128)
    srd(a, SRD_REC, 6, 7, NC*REC_STRIDE + 64, off=WS_REC)
    srd(a, SRD_T, 6, 7, 0, off=WS_T, stride=256, nrec=N+1)
    a(f'    v_lshrrev_b32 v{vA}, 2, v0             ; c')
    a(f'    v_mul_u32_u24 v{vRO}, {REC_STRIDE}, v{vA}')
    a(f'    v_and_b32 v{vI}, 3, v0')
    a(f'    v_lshlrev_b32 v{vI}, 2, v{vI}')
    a(f'    v_mad_u32_u24 v{vRO}, v{vI}, 5, v{vRO}')
    a(f'    s_mov_b32 s{sT1}, 16')
    a(f'    s_waitcnt vmcnt({3+PGT})                      ; descriptor')
    stamp(a, 1)
    a(f'    v_and_b32 v{vA+1}, 0xffff, v{vCNT}      ; start')
    a(f'    v_lshrrev_b32 v{vCNT}, 16, v{vCNT}      ; cnt')
    a(f'    v_mad_u32_u24 v{vRO}, v{vA+1}, 5, v{vRO}')
    a('    s_branch K2_PARAMDONE')
    a.label('K2_SLOWPARAM')
    a(f'    s_lshl_b32 s{sT0}, s{sB}, {10 if DESCT else 2}')
    a(f'    s_lshl_b32 s{sT1}, s{sPASS}, {2 if DESCT else 10}')
    a(f'    s_add_u32 s{sT0}, s{sT0}, s{sT1}')
    a(f'    v_mov_b32 v{vA}, 0')
    a(f'    buffer_load_dword v{vCNT}, v{vA}, s[{SRD_DESC}:{SRD_DESC+3}], s{sT0} offen')
    a(f'    s_mul_i32 s{sT0}, s{sPASS}, {REC_STRIDE}')
    a('    s_waitcnt vmcnt(0) lgkmcnt(0)')
    a('    s_barrier')
    a(f'    v_and_b32 v{vA+1}, 0xffff, v{vCNT}')
    a(f'    v_lshlrev_b32 v{vI}, 2, v0')
    a(f'    v_add_u32 v{vA+1}, v{vA+1}, v{vI}')
    a(f'    v_mul_u32_u24 v{vRO}, 5, v{vA+1}')
    a(f'    v_add_u32 v{vRO}, s{sT0}, v{vRO}')
    a(f'    v_lshrrev_b32 v{vCNT}, 16, v{vCNT}')
    a(f'    s_mov_b32 s{sT1}, 4096')
    a.label('K2_PARAMDONE')
    a(f'    v_sub_u32 v{vRM}, v{vCNT}, v{vI}')
    a(f'    s_mul_i32 s{sT0}, s{sT1}, 5')
    a(f'    s_mov_b32 s{sNR}, 0')
    for r in range(2):
        m0 = sM + 8*r
        if r == 1:
            a(f'    v_subrev_u32 v{vRM}, s{sT1}, v{vRM}')
        for h in range(4):
            a(f'    v_cmp_gt_i32 s[{m0+2*h}:{m0+2*h+1}], v{vRM}, {h}' if h else f'    v_cmp_lt_i32 s[{m0}:{m0+1}], 0, v{vRM}')
        a(f'    s_cmp_eq_u64 s[{m0}:{m0+1}], 0')
        a(f'    s_cbranch_scc1 K2_LD_DONE')
        a(f'    s_mov_b64 exec, s[{m0}:{m0+1}]')
        a(f'    buffer_load_dwordx4 v[{vR+4*r}:{vR+4*r+3}], v{vRO}, s[{SRD_REC}:{SRD_REC+3}], 0 offen')
        a(f'    buffer_load_dword v{vLC+r}, v{vRO}, s[{SRD_REC}:{SRD_REC+3}], 0 offen offset:16')
        a(f'    s_mov_b64 exec, -1')
        a(f'    s_mov_b32 s{sNR}, {r+1}')
        if r < 1:
            a(f'    v_add_u32 v{vRO}, s{sT0}, v{vRO}')
    a.label('K2_LD_DONE')
    a(f'    s_or_b32 s{sT0}, s{sMODE}, s{sPASS}')
    a(f'    s_cmp_eq_u32 s{sT0}, 0')
    a('    s_cbranch_scc0 K2_LATER_PASS')
    if TPF and PFPOS == 3:
        a(f'    s_mul_i32 s{sT0}, s{sJ}, {640*128}')
        a(f'    s_mul_i32 s{sT1}, s{sWAVE}, {40*128}')
        a(f'    s_add_u32 s{sT0}, s{sT0}, s{sT1}')
        a(f'    s_add_u32 s{sT0}, s{sT0}, {WS_T}')
        a(f'    s_add_u32 s24, s6, s{sT0}')
        a(f'    s_addc_u32 s25, s7, 0')
        for i in range(PFN):
            a(f'    s_load_dword s26, s[24:25], {128*i}')
    if TPF and PFPOS == 2:
        W0 = 16 - PFW
        per = PFL // PFW
        a(f'    s_cmp_ge_u32 s{sWAVE}, {W0}')
        a('    s_cbranch_scc0 K2_NOPF2')
        srd(a, SRD_PF, 6, 7, T_BYTES, off=WS_T)
        a(f'    s_mul_i32 s{sT0}, s{sJ}, {640*128}')
        a(f'    s_sub_u32 s{sT1}, s{sWAVE}, {W0}')
        a(f'    s_mul_i32 s{sT1}, s{sT1}, {per*128}')
        a(f'    s_add_u32 s{sT0}, s{sT0}, s{sT1}')
        a(f'    v_lshlrev_b32 v{vPFA}, 7, v{vLANE}')
        nin = (per + 63)//64
        for i in range(nin):
            left = per - 64*i
            if left < 64:
                a(f'    v_cmp_gt_u32 vcc, {left}, v{vLANE}')
                a(f'    v_mov_b32 v{vPF+1}, {1<<30}')
                a('    s_nop 0')
                a(f'    v_cndmask_b32 v{vPFA}, v{vPF+1}, v{vPFA}, vcc')
            a(f'    buffer_load_dword v{vPF}, v{vPFA}, s[{SRD_PF}:{SRD_PF+3}], s{sT0} offen')
            if i + 1 < nin: a(f'    s_add_u32 s{sT0}, s{sT0}, 8192')
        a.label('K2_NOPF2')
    a(f'    v_lshrrev_b32 v{vA+8}, 3, v0')
    a(f'    v_mul_u32_u24 v{vA+8}, {XS}, v{vA+8}')
    a(f'    v_and_b32 v{vA+7}, 7, v0')
    a(f'    v_lshl_add_u32 v{vA+8}, v{vA+7}, 4, v{vA+8}')
    a(f'    v_add_u32 v{vA+8}, {L2_XT}, v{vA+8}')
    NPF = 1 if TPF else 0
    a(f'    v_bfe_u32 v{vA+1}, v0, 4, 1')
    a(f'    v_bfe_u32 v{vA+2}, v0, 6, 1')
    a(f'    v_lshlrev_b32 v{vA+1}, 1, v{vA+1}')
    a(f'    v_lshl_or_b32 v{vA+1}, v{vA+2}, 2, v{vA+1}')
    a(f'    v_and_b32 v{vA+2}, 7, v0')
    a(f'    v_xor_b32 v{vA+1}, v{vA+1}, v{vA+2}')
    a(f'    v_lshrrev_b32 v{vA+2}, 3, v0')
    a(f'    v_lshlrev_b32 v{vA+2}, 7, v{vA+2}')
    a(f'    v_lshl_add_u32 v{vA+9}, v{vA+1}, 4, v{vA+2}')
    a(f'    v_add_u32 v{vA+9}, {L2_W}, v{vA+9}')
    a(f'    v_lshrrev_b32 v{vA+3}, 4, v{vLANE}     ; g')
    a(f'    v_bfe_u32 v{vA}, v{vLANE}, 2, 2        ; r')
    a(f'    v_lshl_add_u32 v{vA+1}, v{vA+3}, 3, v{vA}')
    a(f'    v_lshlrev_b32 v{vA+1}, 7, v{vA+1}')
    a(f'    v_and_b32 v{vA+2}, 1, v{vLANE}')
    a(f'    v_lshl_add_u32 v{vA+1}, v{vA+2}, 3, v{vA+1}')
    a(f'    v_lshrrev_b32 v{vA}, 1, v{vA}')
    a(f'    v_and_b32 v{vA+2}, 1, v{vA+3}')
    a(f'    v_lshl_or_b32 v{vA}, v{vA+2}, 1, v{vA}     ; swz/2')
    a(f'    s_and_b32 s{sT0}, s{sWAVE}, 3')
    a(f'    v_xor_b32 v{vA}, s{sT0}, v{vA}')
    a(f'    v_bfe_u32 v{vA+2}, v{vLANE}, 1, 1')
    a(f'    v_lshl_or_b32 v{vA}, v{vA}, 1, v{vA+2}')
    a(f'    v_lshl_add_u32 v{vTRA}, v{vA}, 4, v{vA+1}')
    a(f'    v_add_u32 v{vTRA}, {L2_W}, v{vTRA}')
    a(f'    s_lshr_b32 s{sT1}, s{sWAVE}, 2')
    a(f'    s_lshl_b32 s{sT1}, s{sT1}, 4')
    a(f'    v_and_b32 v{vA+2}, 15, v{vLANE}')
    a(f'    v_add_u32 v{vROW}, s{sT1}, v{vA+2}     ; row')
    a(f'    v_mul_u32_u24 v{vA+1}, {XS}, v{vROW}')
    a(f'    v_lshl_add_u32 v{vA+1}, v{vA+3}, 4, v{vA+1}')
    a(f'    v_add_u32 v{vXRA}, {L2_XT}, v{vA+1}')
    a(f'    v_mul_u32_u24 v{vA+4}, {TS}, v{vROW}')
    a(f'    v_lshl_add_u32 v{vA+4}, v{vA+3}, 4, v{vA+4}')
    a(f'    s_lshl_b32 s{sT0}, s{sT0}, 6')
    a(f'    s_add_u32 s{sT0}, s{sT0}, {L2_EAT}')
    a(f'    v_add_u32 v{vEAA}, s{sT0}, v{vA+4}')
    if TPF and PFPOS < 2:
        srd(a, SRD_PF, 6, 7, T_BYTES, off=WS_T)
        a(f'    s_mul_i32 s{sT0}, s{sJ}, {640*128}')
        a(f'    s_mul_i32 s{sT1}, s{sWAVE}, {40*128}')
        a(f'    s_add_u32 s{sJ}, s{sT0}, s{sT1}')
        a(f'    v_lshlrev_b32 v{vA+3}, 7, v{vLANE}')
        a(f'    v_cmp_gt_u32 vcc, {PFN}, v{vLANE}')
        a(f'    v_mov_b32 v{vA+4}, {1<<30}')
        a('    s_nop 0')
        a(f'    v_cndmask_b32 v{vPFA}, v{vA+4}, v{vA+3}, vcc')
    if TPF and PFPOS == 2:
        a(f'    v_mov_b32 v{vA+2}, 1')
        a(f'    s_cmp_ge_u32 s{sWAVE}, {16 - PFW}')
        a('    s_cbranch_scc0 K2_LATER_PASS')
        a(f'    s_waitcnt vmcnt({(PFL // PFW + 63)//64})')
        a('    s_branch K2_RANKS')
    a.label('K2_LATER_PASS')
    a(f'    v_mov_b32 v{vA+2}, 1')
    a('    s_waitcnt vmcnt(0)')
    if TPF and PFPOS == 1:
        a(f'    s_or_b32 s{sT0}, s{sMODE}, s{sPASS}')
        a(f'    s_cmp_eq_u32 s{sT0}, 0')
        a('    s_cbranch_scc0 K2_RANKS')
        a(f'    buffer_load_dword v{vPF}, v{vPFA}, s[{SRD_PF}:{SRD_PF+3}], s{sJ} offen')
    a.label('K2_RANKS')
    stamp(a, 2)
    for r in range(2):
        a(f'    s_cmp_le_u32 s{sNR}, {r}')
        a('    s_cbranch_scc1 K2_RK_DONE')
        d = vR + 4*r
        a(f'    v_and_b32 v{vLA+4*r}, 0xff, v{d+1}')
        a(f'    v_bfe_u32 v{vLA+4*r+1}, v{d+2}, 8, 8')
        a(f'    v_bfe_u32 v{vLA+4*r+2}, v{d+3}, 16, 8')
        a(f'    v_lshrrev_b32 v{vLA+4*r+3}, 24, v{vLC+r}')
        for h in range(4):
            k = 4*r + h
            a(f'    s_mov_b64 exec, s[{sM+2*k}:{sM+2*k+1}]')
            a(f'    ds_add_rtn_u32 v{vRK+k}, v{vLA+k}, v{vA+2} offset:{L2_CNT}')
        a('    s_mov_b64 exec, -1')
        a(f'    v_alignbyte_b32 v{d+1}, v{d+2}, v{d+1}, 1')
        a(f'    v_alignbyte_b32 v{d+2}, v{d+3}, v{d+2}, 2')
        a(f'    v_alignbyte_b32 v{d+3}, v{vLC+r}, v{d+3}, 3')
    a.label('K2_RK_DONE')
    masked(a, f'v_cmp_lt_u32 vcc, 32, v{vCNT}', sEX, 'K2_NOOVF')
    a(f'    v_mov_b32 v{vA+3}, 0')
    a(f'    ds_write_b32 v{vA+3}, v{vA+2} offset:{L2_FLG}')
    unmask(a, sEX, 'K2_NOOVF')
    a(f'    s_or_b32 s{sT0}, s{sMODE}, s{sPASS}')
    a(f'    s_cmp_eq_u32 s{sT0}, 0')
    a('    s_cbranch_scc0 K2_NOWST')
    a(f'    ds_write_b128 v{vA+9}, v[{vW}:{vW+3}]')
    a(f'    s_cmp_lt_u32 s{sWAVE}, 6')
    a('    s_cbranch_scc0 K2_NOXST')
    a(f'    ds_write_b128 v{vA+8}, v[{vXO}:{vXO+3}]')
    a.label('K2_NOXST')
    a(f'    s_mov_b32 s{sT0}, {hex(f2u(-LOG2E))}')
    a(f'    v_and_b32 v{vWC+3}, 0xffff0000, v{vWC+1}')
    a(f'    v_lshlrev_b32 v{vWC+2}, 16, v{vWC+1}')
    a(f'    v_and_b32 v{vWC+1}, 0xffff0000, v{vWC}')
    a(f'    v_lshlrev_b32 v{vWC}, 16, v{vWC}')
    for k in range(4):
        a(f'    v_mul_f32 v{vWC+k}, s{sT0}, v{vWC+k}')
    a.label('K2_NOWST')
    a(f'    v_lshlrev_b32 v{vA+1}, 2, v{vLANE}')
    a(f'    v_mov_b32 v{vA}, 0')
    a('    s_waitcnt lgkmcnt(0)')
    stamp(a, 3)
    a('    s_barrier')
    stamp(a, 4)
    if TPF and PFPOS == 0:
        a(f'    s_or_b32 s{sT0}, s{sMODE}, s{sPASS}')
        a(f'    s_cmp_eq_u32 s{sT0}, 0')
        a('    s_cbranch_scc0 K2_NOPF')
        a(f'    buffer_load_dword v{vPF}, v{vPFA}, s[{SRD_PF}:{SRD_PF+3}], s{sJ} offen')
        a.label('K2_NOPF')
    a(f'    ds_read_b32 v{vNG}, v{vA+1} offset:{L2_CNT}')
    a(f'    ds_read_b32 v{vA+4}, v{vA} offset:{L2_FLG}')
    a('    s_waitcnt lgkmcnt(1)')
    a(f'    v_add_u32 v{vNG}, 3, v{vNG}')
    a(f'    v_lshrrev_b32 v{vNG}, 2, v{vNG}')
    a(f'    v_mov_b32 v{vGE}, v{vNG}')
    dpp_scan(a, vGE)
    a('    s_waitcnt lgkmcnt(0)')
    a(f'    v_readlane_b32 s{sGT}, v{vGE}, {NPB-1}')
    a(f'    v_sub_u32 v{vGS}, v{vGE}, v{vNG}')
    a(f'    v_readfirstlane_b32 s{sT0}, v{vA+4}')
    a(f'    v_lshlrev_b32 v{vA+6}, 4, v{vGS}')
    a(f'    v_cmp_lt_u32 vcc, {NPB}, v{vLANE}')
    a(f'    s_add_u32 s{sR}, s{sGT}, 15')
    a(f'    s_lshr_b32 s{sR}, s{sR}, 4')
    a(f'    v_cndmask_b32 v{vGS}, v{vGS}, -1, vcc')
    a(f'    s_cmp_eq_u32 s{sMODE}, 0')
    a('    s_cbranch_scc0 K2_NOSWITCH')
    a(f'    s_cmp_gt_u32 s{sGT}, {(CAP - 64)//4}')
    a(f'    s_cselect_b32 s{sT1}, 1, 0')
    a(f'    s_or_b32 s{sT0}, s{sT0}, s{sT1}')
    a(f'    s_cmp_eq_u32 s{sT0}, 0')
    a('    s_cbranch_scc1 K2_NOSWITCH')
    a(f'    s_mov_b32 s{sNR}, 0')
    a(f'    s_mov_b32 s{sGT}, 0')
    a(f'    s_mov_b32 s{sR}, 0')
    a(f'    s_mov_b32 s{sMODE}, 2')
    a.label('K2_NOSWITCH')
    for r in range(2):
        a(f'    s_cmp_le_u32 s{sNR}, {r}')
        a('    s_cbranch_scc1 K2_LK_DONE')
        for h in range(4):
            k = 4*r + h
            a(f'    ds_bpermute_b32 v{vB+k}, v{vLA+k}, v{vA+6}')
    a.label('K2_LK_DONE')
    a('    s_waitcnt lgkmcnt(0)')
    for r in range(2):
        a(f'    s_cmp_le_u32 s{sNR}, {r}')
        a('    s_cbranch_scc1 K2_SC_DONE')
        for h in range(4):
            k = 4*r + h
            a(f'    s_mov_b64 exec, s[{sM+2*k}:{sM+2*k+1}]')
            a(f'    v_lshl_add_u32 v{vB+k}, v{vRK+k}, 2, v{vB+k}')
            a(f'    ds_write_b32 v{vB+k}, v{vR+k} offset:{L2_LIST}')
    a.label('K2_SC_DONE')
    a('    s_mov_b64 exec, -1')
    a(f'    s_mul_i32 s{sG0}, s{sR}, s{sWAVE}')
    a(f'    s_add_u32 s{sG1}, s{sG0}, s{sR}')
    a(f'    s_min_u32 s{sG1}, s{sG1}, s{sGT}')
    a(f'    v_lshrrev_b32 v{vSA}, 4, v{vLANE}')
    a(f'    v_lshlrev_b32 v{vSA}, 2, v{vSA}         ; slot*4')
    a(f'    s_lshl_b32 s{sT0}, s{sG0}, 4')
    a(f'    v_add_u32 v{vSA}, s{sT0}, v{vSA}')
    a(f'    v_mov_b32 v{vA}, 0')
    a('    s_waitcnt lgkmcnt(0)')
    a('    s_barrier')
    stamp(a, 5)

    def tload(k):
        d = vDAT + 4*k
        a(f'    buffer_load_dwordx4 v[{d}:{d+3}], v[{vP+2*k}:{vP+2*k+1}], s[{SRD_T}:{SRD_T+3}], 0 idxen offen')

    a(f'    s_cmp_ge_u32 s{sG0}, s{sG1}')
    a('    s_cbranch_scc1 K2_NOGATH')
    for k in range(U):
        a(f'    ds_read_u16 v{vP+2*k}, v{vSA} offset:{L2_LIST + 16*k}')
    a(f'    ds_read_u16_d16_hi v{vEV}, v{vSA} offset:{L2_LIST + 2}')
    a('    s_waitcnt lgkmcnt(0)')
    for k in range(G0N):
        tload(k)
    a(f'    ds_read_u16 v{vP}, v{vSA} offset:{L2_LIST + 16*U}')
    a.label('K2_NOGATH')
    a(f'    s_cmp_eq_u32 s{sPASS}, 0')
    a('    s_cbranch_scc0 K2_NOTAB')
    a(f'    s_cmp_eq_u32 s{sMODE}, 1')
    a('    s_cbranch_scc1 K2_NOTAB')
    a(f'    s_cmp_lt_u32 s{sWAVE}, 12')
    a('    s_cbranch_scc0 K2_NOMFMA')
    a(f'    ds_read_b128 v[{vXO}:{vXO+3}], v{vXRA}')
    a(f'    ds_read_b64_tr_b16 v[{vOP2}:{vOP2+1}], v{vTRA}')
    a(f'    ds_read_b64_tr_b16 v[{vOP2+2}:{vOP2+3}], v{vTRA} offset:{0+512}')
    a(f'    ds_read_b128 v[{vXO+4}:{vXO+7}], v{vXRA} offset:64')
    a(f'    ds_read_b64_tr_b16 v[{vOP2+4}:{vOP2+5}], v{vTRA} offset:{0+4096}')
    a(f'    ds_read_b64_tr_b16 v[{vOP2+6}:{vOP2+7}], v{vTRA} offset:{0+4096+512}')
    a(f'    s_mov_b32 s{sT0}, {hex(f2u(-LOG2E))}')
    a(f'    s_mov_b32 s{sT1}, {hex(f2u(60.0))}')
    a('    s_waitcnt lgkmcnt(3)')
    a(f'    v_mfma_f32_16x16x32_bf16 v[{vAC2}:{vAC2+3}], v[{vOP2}:{vOP2+3}], v[{vXO}:{vXO+3}], 0')
    a('    s_waitcnt lgkmcnt(0)')
    a(f'    v_mfma_f32_16x16x32_bf16 v[{vAC2}:{vAC2+3}], v[{vOP2+4}:{vOP2+7}], v[{vXO+4}:{vXO+7}], v[{vAC2}:{vAC2+3}]')
    a('    s_nop 7')
    for i in range(4):
        a(f'    v_mul_f32 v{vAC2+i}, s{sT0}, v{vAC2+i}')
    for i in range(4):
        a(f'    v_exp_f32 v{vOP2+i}, v{vAC2+i}')
    a(f'    v_max3_f32 v{vA+5}, |v{vAC2}|, |v{vAC2+1}|, |v{vAC2+2}|')
    a(f'    v_max_f32 v{vA+5}, v{vA+5}, |v{vAC2+3}|')
    a(f'    ds_write_b128 v{vEAA}, v[{vOP2}:{vOP2+3}]')
    a(f'    v_cmp_nle_f32 vcc, v{vA+5}, s{sT1}')
    a(f'    v_cmp_gt_u32 s[{sEX}:{sEX+1}], s{sNN}, v{vROW}')
    a(f'    s_and_b64 vcc, vcc, s[{sEX}:{sEX+1}]')
    a(f'    s_and_saveexec_b64 s[{sEX}:{sEX+1}], vcc')
    a('    s_cbranch_execz K2_GUARD_OK')
    a(f'    v_mov_b32 v{vA+5}, 1')
    a(f'    v_mov_b32 v{vA+7}, 0')
    a(f'    ds_write_b32 v{vA+7}, v{vA+5} offset:{L2_FLG+4}')
    unmask(a, sEX, 'K2_GUARD_OK')
    a.label('K2_NOMFMA')
    a(f'    v_mov_b32 v{vA}, 0')
    a('    s_waitcnt lgkmcnt(0)')
    a('    s_barrier')
    a(f'    ds_read_b32 v{vA+5}, v{vA} offset:{L2_FLG+4}')
    a(f'    s_cmp_ge_u32 s{sG0}, s{sG1}')
    a('    s_cbranch_scc1 K2_NOGATH2')
    for k in range(G0N, U):
        tload(k)
    a.label('K2_NOGATH2')
    a(f'    s_cmp_lt_u32 s{sWAVE}, 12')
    a('    s_cbranch_scc0 K2_NOU')
    a(f'    ds_read_b64_tr_b16 v[{vOP2}:{vOP2+1}], v{vTRA} offset:{0+8192}')
    a(f'    ds_read_b64_tr_b16 v[{vOP2+2}:{vOP2+3}], v{vTRA} offset:{0+8192+512}')
    a(f'    ds_read_b64_tr_b16 v[{vOP2+4}:{vOP2+5}], v{vTRA} offset:{0+8192+4096}')
    a(f'    ds_read_b64_tr_b16 v[{vOP2+6}:{vOP2+7}], v{vTRA} offset:{0+8192+4096+512}')
    a('    s_waitcnt lgkmcnt(2)')
    a(f'    v_mfma_f32_16x16x32_bf16 v[{vU}:{vU+3}], v[{vOP2}:{vOP2+3}], v[{vXO}:{vXO+3}], 0')
    a('    s_waitcnt lgkmcnt(0)')
    a(f'    v_mfma_f32_16x16x32_bf16 v[{vU}:{vU+3}], v[{vOP2+4}:{vOP2+7}], v[{vXO+4}:{vXO+7}], v[{vU}:{vU+3}]')
    a(f'    v_mov_b32 v{vUA}, v{vEAA}')
    a.label('K2_NOU')
    a('    s_waitcnt lgkmcnt(0)')
    a(f'    v_readfirstlane_b32 s{sSAFE}, v{vA+5}')
    a('    s_nop 0')
    a(f'    s_cmp_eq_u32 s{sSAFE}, 0')
    a('    s_cbranch_scc1 K2_WAITW')
    a('    s_barrier')
    a(f'    s_cmp_lt_u32 s{sWAVE}, 12')
    a('    s_cbranch_scc0 K2_SAFE_NOW')
    a(f'    ds_write_b128 v{vEAA}, v[{vAC2}:{vAC2+3}]')
    a.label('K2_SAFE_NOW')
    a('    s_waitcnt lgkmcnt(0)')
    a('    s_barrier')
    a.label('K2_WAITW')
    a('    s_branch K2_TABDONE')
    a.label('K2_NOTAB')
    a(f'    s_cmp_ge_u32 s{sG0}, s{sG1}')
    a('    s_cbranch_scc1 K2_TABDONE')
    for k in range(G0N, U):
        tload(k)
    a.label('K2_TABDONE')
    dstamp(a, 1)
    a(f'    v_cvt_f32_u32 v{vA}, s{sR}')
    a(f'    v_cvt_f32_u32 v{vA+1}, v{vGS}')
    a(f'    v_rcp_f32 v{vA}, v{vA}')
    a(f'    v_cvt_f32_u32 v{vA+2}, v{vGE}')
    a(f'    v_add_f32 v{vA+1}, 0.5, v{vA+1}')
    a(f'    v_add_f32 v{vA+2}, -0.5, v{vA+2}')
    a(f'    v_mul_f32 v{vA+1}, v{vA+1}, v{vA}')
    a(f'    v_mul_f32 v{vA+2}, v{vA+2}, v{vA}')
    a(f'    v_cvt_u32_f32 v{vA+1}, v{vA+1}          ; wlo')
    a(f'    v_cvt_u32_f32 v{vA+2}, v{vA+2}          ; whi')
    a(f'    v_sub_u32 v{vA+2}, v{vA+2}, v{vA+1}')
    a(f'    v_add_u32 v{vA+2}, 1, v{vA+2}')
    a(f'    v_cmp_eq_u32 vcc, 0, v{vNG}')
    a(f'    v_add_u32 v{vA+1}, v{vA+1}, v{vLANE}')
    a(f'    v_and_b32 v{vA+1}, 0xffff, v{vA+1}')
    a(f'    v_cndmask_b32 v{vA+2}, v{vA+2}, 0, vcc')
    a(f'    v_lshl_or_b32 v{vA+3}, v{vA+2}, 16, v{vA+1}')
    a(f'    v_lshrrev_b32 v{vA}, 4, v0')
    a(f'    v_and_b32 v{vA+4}, 63, v{vA}')
    a(f'    v_lshlrev_b32 v{vA+4}, 2, v{vA+4}')
    a(f'    ds_bpermute_b32 v{vA+1}, v{vA+4}, v{vA+3}')
    a(f'    v_mul_u32_u24 v{vUTA}, {TS}, v{vA}')
    a(f'    v_mul_u32_u24 v{vXTA}, {XS}, v{vA}')
    a(f'    v_lshrrev_b32 v{vA+7}, 1, v{vQ16}')
    a(f'    v_add_u32 v{vUTA}, v{vUTA}, v{vQ16}')
    a(f'    v_add_u32 v{vXTA}, v{vXTA}, v{vA+7}')
    a(f'    v_add_u32 v{vUTA}, {L2_UT}, v{vUTA}')
    a(f'    v_add_u32 v{vXTA}, {L2_XT}, v{vXTA}')
    a(f'    s_lshl_b32 s{sNT}, s{sNN}, 4')
    a(f'    v_cmp_gt_u32 vcc, s{sNT}, v0')
    a('    s_waitcnt lgkmcnt(0)')
    a(f'    v_lshrrev_b32 v{vFC}, 16, v{vA+1}')
    a(f'    v_and_b32 v{vA+1}, 0xffff, v{vA+1}')
    a(f'    v_cndmask_b32 v{vFC}, 0, v{vFC}, vcc')
    a(f'    v_lshl_add_u32 v{vFS}, v{vA+1}, 9, v{vQ16}')
    a(f'    v_cmp_lt_u32 s[{sM}:{sM+1}], 0, v{vFC}')
    a(f'    v_cmp_lt_u32 s[{sM+2}:{sM+3}], 1, v{vFC}')
    a(f'    v_cmp_lt_u32 s[{sM+4}:{sM+5}], 2, v{vFC}')
    a(f'    s_cmp_ge_u32 s{sG0}, s{sG1}')
    a('    s_cbranch_scc1 K2_MAIN_DONE')
    if PRIO:
        a(f'    s_add_u32 s{sT0}, s{sR}, 3')
        a(f'    s_lshr_b32 s{sT0}, s{sT0}, 2            ; iterations')
        for n, reg in zip(PRT, (sPR, sPQ, sPQ2)):
            a(f'    s_mul_i32 s{reg}, s{sT0}, {n}')
            a(f'    s_lshr_b32 s{reg}, s{reg}, 4')
            a(f'    s_add_u32 s{reg}, s{reg}, 1')
        a(f'    s_mov_b32 s{sLVL}, 3')
        a('    s_setprio 3')
    a(f'    s_mov_b32 s{sGEND}, s{sG0}')
    a(f'    s_mov_b32 s{sEAB}, {L2_EAT}')
    a(f'    s_cmp_eq_u32 s{sSAFE}, 0')
    a('    s_cbranch_scc0 K2S_ENTER')
    a('    s_branch K2F_ENTER')

    def next_node():
        a(f'    v_cmp_ge_u32 vcc, s{sGEND}, v{vGS}')
        a(f'    s_bcnt1_i32_b64 s{sT0}, vcc')
        a(f'    s_sub_u32 s{sNODE}, s{sT0}, 1')
        a(f'    v_readlane_b32 s{sT1}, v{vGS}, s{sT0}')
        a(f'    s_mul_i32 s{sT0}, s{sNODE}, {TS}')
        a(f'    s_add_u32 s{sT0}, s{sT0}, s{sEAB}')
        a(f'    v_add_u32 v{vEAA}, s{sT0}, v{vQ16}')
        a(f'    ds_read_b128 v[{vEA}:{vEA+3}], v{vEAA}')
        a(f'    s_min_u32 s{sT1}, s{sT1}, s{sG1}')
        a(f'    s_sub_u32 s{sLEFT}, s{sT1}, s{sGEND}')
        a(f'    s_sub_u32 s{sLEFT}, s{sLEFT}, 1')
        a(f'    s_mov_b32 s{sGEND}, s{sT1}')

    def set_slot():
        a(f'    s_add_u32 s{sSLOT}, s{sNODE}, s{sWAVE}')
        a(f'    s_lshl_b32 s{sSLOT}, s{sSLOT}, 9')

    def flush():
        a(f'    v_add_u32 v{vACC}, s{sSLOT}, v{vFL}')
        for i in range(4):
            a(f'    v_permlane32_swap_b32 v{vDEN+i}, v{vNUM+i}')
        a(f'    v_pk_add_f32 v[{vDEN}:{vDEN+1}], v[{vDEN}:{vDEN+1}], v[{vNUM}:{vNUM+1}]')
        a(f'    v_pk_add_f32 v[{vDEN+2}:{vDEN+3}], v[{vDEN+2}:{vDEN+3}], v[{vNUM+2}:{vNUM+3}]')
        a('    s_nop 1')
        a(f'    v_permlane16_swap_b32 v{vDEN}, v{vDEN+2}')
        a(f'    v_permlane16_swap_b32 v{vDEN+1}, v{vDEN+3}')
        a(f'    v_pk_add_f32 v[{vNUM}:{vNUM+1}], v[{vDEN}:{vDEN+1}], v[{vDEN+2}:{vDEN+3}]')
        a(f'    ds_write_b64 v{vACC}, v[{vNUM}:{vNUM+1}] offset:{L2_SLOT}')

    def step(k, safe, init):
        d = vDAT + 4*k
        ev = vEV + (k & 1); evn = vEV + ((k+1) & 1)
        pn = vP + 2*((k+1) % U)
        for i in range(4):
            a(f'    v_fma_mix_f32 v{vT+i}, v{ev}, v{vWC+i}, v{d+i} op_sel:[0,0,0] op_sel_hi:[0,0,1]')
        a(f'    ds_read_u16_d16_hi v{evn}, v{vSA} offset:{L2_LIST + 16*(k+1) + 2}')
        a(f'    ds_read_u16 v{pn}, v{vSA} offset:{L2_LIST + 16*(k+1+U)}')
        if init and safe:
            a('    s_waitcnt lgkmcnt(3)')
        if safe:
            a(f'    v_pk_add_f32 v[{vT}:{vT+1}], v[{vT}:{vT+1}], v[{vEA}:{vEA+1}]')
            a(f'    v_pk_add_f32 v[{vT+2}:{vT+3}], v[{vT+2}:{vT+3}], v[{vEA+2}:{vEA+3}]')
        for i in range(4):
            a(f'    v_exp_f32 v{vT+i}, v{vT+i}')
        if init and not safe:
            a('    s_waitcnt lgkmcnt(3)')
        if safe:
            a(f'    v_pk_add_f32 v[{vT}:{vT+1}], v[{vT}:{vT+1}], 1.0 op_sel_hi:[1,0]')
            a(f'    v_pk_add_f32 v[{vT+2}:{vT+3}], v[{vT+2}:{vT+3}], 1.0 op_sel_hi:[1,0]')
        else:
            a(f'    v_pk_fma_f32 v[{vT}:{vT+1}], v[{vEA}:{vEA+1}], v[{vT}:{vT+1}], 1.0 op_sel_hi:[1,1,0]')
            a(f'    v_pk_fma_f32 v[{vT+2}:{vT+3}], v[{vEA+2}:{vEA+3}], v[{vT+2}:{vT+3}], 1.0 op_sel_hi:[1,1,0]')
        if init:
            for i in range(4):
                a(f'    v_rcp_f32 v{vDEN+i}, v{vT+i}')
            a('    s_nop 0')
            a(f'    v_pk_mul_f32 v[{vNUM}:{vNUM+1}], v[{vDEN}:{vDEN+1}], v[{d}:{d+1}]')
            a(f'    v_pk_mul_f32 v[{vNUM+2}:{vNUM+3}], v[{vDEN+2}:{vDEN+3}], v[{d+2}:{d+3}]')
        else:
            for i in range(4):
                a(f'    v_rcp_f32 v{vT+i}, v{vT+i}')
            a(f'    v_pk_add_f32 v[{vDEN}:{vDEN+1}], v[{vDEN}:{vDEN+1}], v[{vT}:{vT+1}]')
            a(f'    v_pk_add_f32 v[{vDEN+2}:{vDEN+3}], v[{vDEN+2}:{vDEN+3}], v[{vT+2}:{vT+3}]')
            a(f'    v_pk_fma_f32 v[{vNUM}:{vNUM+1}], v[{vT}:{vT+1}], v[{d}:{d+1}], v[{vNUM}:{vNUM+1}]')
            a(f'    v_pk_fma_f32 v[{vNUM+2}:{vNUM+3}], v[{vT+2}:{vT+3}], v[{d+2}:{d+3}], v[{vNUM+2}:{vNUM+3}]')
        tload(k)
        if k == U-1:
            a(f'    v_add_u32 v{vSA}, {16*U}, v{vSA}')

    def loopback(pfx):
        if PRIO:
            a(f'    s_sub_u32 s{sPR}, s{sPR}, 1')
            a(f'    s_cmp_lg_u32 s{sPR}, 0')
            a(f'    s_cbranch_scc1 {pfx}_STEP0')
            a(f'    s_branch {pfx}_PRIO')
        else:
            a(f'    s_branch {pfx}_STEP0')

    for pfx, safe in (('K2F', False), ('K2S', True)):
        a.label(f'{pfx}_ENTER')
        next_node()
        set_slot()
        a('    s_waitcnt vmcnt(3) lgkmcnt(0)')
        dstamp(a, 2)
        step(0, safe, True)
        a(f'    s_branch {pfx}_STEP1')
        for k in range(U):
            a.label(f'{pfx}_STEP{k}')
            a(f'    s_waitcnt vmcnt({U-1}) lgkmcnt(0)')
            a(f'    s_sub_u32 s{sLEFT}, s{sLEFT}, 1')
            a(f'    s_cbranch_scc1 {pfx}_FLUSH{k}')
            step(k, safe, False)
            if k == U-1:
                loopback(pfx)
        for k in range(U):
            a.label(f'{pfx}_FLUSH{k}')
            a(f'    s_cmp_ge_u32 s{sGEND}, s{sG1}')
            a(f'    s_cbranch_scc1 K2_LAST')
            next_node()
            flush()
            set_slot()
            step(k, safe, True)
            if k == U-1:
                loopback(pfx)
            else:
                a(f'    s_branch {pfx}_STEP{k+1}')
        if PRIO:
            a.label(f'{pfx}_PRIO')
            a(f'    s_sub_u32 s{sLVL}, s{sLVL}, 1')
            a(f'    s_cmp_eq_u32 s{sLVL}, 2')
            a(f'    s_cbranch_scc1 {pfx}_PRIO2')
            a(f'    s_cmp_eq_u32 s{sLVL}, 1')
            a(f'    s_cbranch_scc1 {pfx}_PRIO1')
            a(f'    s_mov_b32 s{sPR}, 0x7fffffff')
            a('    s_setprio 0')
            a(f'    s_branch {pfx}_STEP0')
            a.label(f'{pfx}_PRIO2')
            a(f'    s_mov_b32 s{sPR}, s{sPQ}')
            a('    s_setprio 2')
            a(f'    s_branch {pfx}_STEP0')
            a.label(f'{pfx}_PRIO1')
            a(f'    s_mov_b32 s{sPR}, s{sPQ2}')
            a('    s_setprio 1')
            a(f'    s_branch {pfx}_STEP0')
    a.label('K2_LAST')
    dstamp(a, 3)
    flush()
    a.label('K2_MAIN_DONE')
    if PRIO: a('    s_setprio 0')
    a(f'    s_cmp_eq_u32 s{sPASS}, 0')
    a('    s_cbranch_scc0 K2_NOUST')
    a(f'    s_cmp_eq_u32 s{sMODE}, 1')
    a('    s_cbranch_scc1 K2_NOUST')
    a(f'    s_cmp_lt_u32 s{sWAVE}, 12')
    a('    s_cbranch_scc0 K2_NOUST')
    a(f'    ds_write_b128 v{vUA}, v[{vU}:{vU+3}] offset:{L2_UT-L2_EAT}')
    a.label('K2_NOUST')
    a(f'    s_cmp_eq_u32 s{sMODE}, 2')
    a('    s_cbranch_scc0 K2_NOABORT')
    a(f'    s_mov_b32 s{sMODE}, 1')
    a(f'    s_mov_b32 s{sPASS}, 0')
    a('    s_waitcnt vmcnt(0) lgkmcnt(0)')
    a('    s_barrier')
    a('    s_branch K2_PASS')
    a.label('K2_NOABORT')
    a('    s_waitcnt lgkmcnt(0)')
    stamp(a, 6)
    a('    s_barrier')
    S0 = 76; S1 = 84; UU = 92; XX = 104
    a(f'    s_mov_b64 exec, s[{sM}:{sM+1}]')
    a(f'    ds_read_b128 v[{S0}:{S0+3}], v{vFS} offset:{L2_SLOT}')
    a(f'    ds_read_b128 v[{S0+4}:{S0+7}], v{vFS} offset:{L2_SLOT+256}')
    a(f'    s_mov_b64 exec, s[{sM+2}:{sM+3}]')
    a(f'    ds_read_b128 v[{S1}:{S1+3}], v{vFS} offset:{L2_SLOT+512}')
    a(f'    ds_read_b128 v[{S1+4}:{S1+7}], v{vFS} offset:{L2_SLOT+512+256}')
    a('    s_mov_b64 exec, -1')
    a(f'    ds_read_b128 v[{UU}:{UU+3}], v{vUTA}')
    a(f'    ds_read_b64 v[{XX}:{XX+1}], v{vXTA}')
    a(f'    s_mov_b64 exec, s[{sM}:{sM+1}]')
    a('    s_waitcnt lgkmcnt(4)')
    for b, acc in ((S0, vDA), (S0+2, vDA+2), (S0+4, vNA), (S0+6, vNA+2)):
        a(f'    v_pk_add_f32 v[{acc}:{acc+1}], v[{acc}:{acc+1}], v[{b}:{b+1}]')
    a(f'    s_mov_b64 exec, s[{sM+2}:{sM+3}]')
    a('    s_waitcnt lgkmcnt(2)')
    for b, acc in ((S1, vDA), (S1+2, vDA+2), (S1+4, vNA), (S1+6, vNA+2)):
        a(f'    v_pk_add_f32 v[{acc}:{acc+1}], v[{acc}:{acc+1}], v[{b}:{b+1}]')
    a('    s_mov_b64 exec, -1')
    a(f'    s_cmp_eq_u64 s[{sM+4}:{sM+5}], 0')
    a('    s_cbranch_scc1 K2_FOLD_END')
    a(f'    v_add_u32 v{vFS}, 1024, v{vFS}')
    a(f'    v_add_u32 v{vFC}, -2, v{vFC}')
    a.label('K2_FOLD')
    masked(a, f'v_cmp_lt_i32 vcc, 0, v{vFC}', sEX, 'K2_FOLD_DONE')
    a(f'    ds_read_b128 v[{S0}:{S0+3}], v{vFS} offset:{L2_SLOT}')
    a(f'    ds_read_b128 v[{S0+4}:{S0+7}], v{vFS} offset:{L2_SLOT+256}')
    a(f'    v_add_u32 v{vFS}, 512, v{vFS}')
    a(f'    v_add_u32 v{vFC}, -1, v{vFC}')
    a('    s_waitcnt lgkmcnt(0)')
    for b, acc in ((S0, vDA), (S0+2, vDA+2), (S0+4, vNA), (S0+6, vNA+2)):
        a(f'    v_pk_add_f32 v[{acc}:{acc+1}], v[{acc}:{acc+1}], v[{b}:{b+1}]')
    unmask(a, sEX)
    a('    s_branch K2_FOLD')
    unmask(a, sEX, 'K2_FOLD_DONE')
    a.label('K2_FOLD_END')
    a(f'    s_cmp_eq_u32 s{sMODE}, 0')
    a('    s_cbranch_scc1 K2_EPI')
    a(f'    s_add_u32 s{sPASS}, s{sPASS}, 1')
    a(f'    s_cmp_lt_u32 s{sPASS}, {NC}')
    a('    s_cbranch_scc0 K2_EPI')
    a('    s_waitcnt vmcnt(0) lgkmcnt(0)')
    a('    s_barrier')
    a('    s_branch K2_PASS')
    a.label('K2_EPI')
    masked(a, f'v_cmp_gt_u32 vcc, s{sNT}, v0', sEX, 'K2_FIN')
    a(f'    s_mov_b32 s{sT0}, {hex(f2u(1e-6))}')
    for i in range(4):
        a(f'    v_add_f32 v{vDA+i}, s{sT0}, v{vDA+i}')
    for i in range(4):
        a(f'    v_rcp_f32 v{vDA+i}, v{vDA+i}')
    a('    s_waitcnt lgkmcnt(0)')
    a(f'    v_lshlrev_b32 v{vT}, 16, v{XX}')
    a(f'    v_and_b32 v{vT+1}, 0xffff0000, v{XX}')
    a(f'    v_lshlrev_b32 v{vT+2}, 16, v{XX+1}')
    a(f'    v_and_b32 v{vT+3}, 0xffff0000, v{XX+1}')
    for i in range(4):
        a(f'    v_fma_f32 v{vNA+i}, v{vNA+i}, v{vDA+i}, v{UU+i}    ; z = U + agg')
    for i in range(4):
        a(f'    v_cmp_lt_f32 s[{sM+2*i}:{sM+2*i+1}], 0, v{vNA+i}')
    for i in range(4):
        a(f'    v_mul_f32 v{vDEN+i}, 0, v{vNA+i}                     ; 0*z')
    for i in range(4):
        a(f'    v_cndmask_b32 v{vNA+i}, v{vDEN+i}, v{vNA+i}, s[{sM+2*i}:{sM+2*i+1}]')
    for i in range(4):
        a(f'    v_add_f32 v{vNA+i}, v{vNA+i}, v{vT+i}')
    a(f'    s_lshl_b32 s{sT1}, s{sN0}, 7')
    a(f'    v_lshlrev_b32 v{vA+1}, 3, v0')
    a(f'    v_cvt_pk_bf16_f32 v{vDEN}, v{vNA}, v{vNA+1}')
    a(f'    v_cvt_pk_bf16_f32 v{vDEN+1}, v{vNA+2}, v{vNA+3}')
    a(f'    buffer_store_dwordx2 v[{vDEN}:{vDEN+1}], v{vA+1}, s[{SRD_OUT}:{SRD_OUT+3}], s{sT1} offen {OUTST}')
    a.label('K2_FIN')
    if STAMP:
        a('    s_mov_b64 exec, -1')
        a('    s_waitcnt vmcnt(0)')
    stamp(a, 7); stamp(a, 1, True)
    stamp_flush(a, sWAVE, sB, 1, 6)
    a.label('K2_END')
    a('    s_endpgm')
    a.label('CODE_END')

def gen_k3(a):
    i, j = [int(x) for x in env('INTERVAL', '0,0').split(',')]
    inv = {0: True, 2: True}
    a('.globl k3_kernel')
    a('.p2align 8')
    a('.type k3_kernel,@function')
    a.label('k3_kernel')
    a('    s_cmp_ge_u32 s2, 1')
    a('    s_cbranch_scc1 K3_END')
    a('    s_load_dwordx2 s[4:5], s[0:1], 80')
    a('    s_waitcnt lgkmcnt(0)')
    a('    v_mov_b32 v1, 0')
    a(f'    global_load_dword v2, v1, s[4:5] offset:{4*i} sc1')
    a(f'    global_load_dword v3, v1, s[4:5] offset:{4*j} sc1')
    a('    s_waitcnt vmcnt(0)')
    if inv.get(i): a('    v_not_b32 v2, v2')
    if inv.get(j): a('    v_not_b32 v3, v3')
    a('    v_sub_u32 v3, v3, v2')
    a('    s_nop 1')
    a('    v_readfirstlane_b32 s8, v3')
    a('    s_nop 3')
    a('    s_mul_i32 s8, s8, 10')
    a('    s_min_u32 s8, s8, 50000')
    a('    s_memrealtime s[10:11]')
    a('    s_waitcnt lgkmcnt(0)')
    a.label('K3_SPIN')
    a('    s_memrealtime s[12:13]')
    a('    s_waitcnt lgkmcnt(0)')
    a('    s_sub_u32 s9, s12, s10')
    a('    s_cmp_lt_u32 s9, s8')
    a('    s_cbranch_scc1 K3_SPIN')
    a.label('K3_END')
    a('    s_endpgm')

def kd(a, name, vgpr, sgpr):
    a(f'.amdhsa_kernel {name}')
    a(f'  .amdhsa_next_free_vgpr {vgpr}')
    a(f'  .amdhsa_next_free_sgpr {sgpr}')
    a(f'  .amdhsa_accum_offset {((vgpr+3)//4)*4}')
    a('  .amdhsa_group_segment_fixed_size 0')
    a('  .amdhsa_kernarg_size 96')
    a('  .amdhsa_user_sgpr_count 2')
    a('  .amdhsa_user_sgpr_kernarg_segment_ptr 1')
    a('  .amdhsa_system_sgpr_workgroup_id_x 1')
    a('  .amdhsa_float_denorm_mode_32 3')
    a('.end_amdhsa_kernel')

def main(out):
    a = Asm()
    a(f'; @launch kernel=k1_kernel grid=({K1_GRID},1,1) block=(1024,1,1) lds={K1_LDS}')
    a(f'; @launch kernel=k2_kernel grid=({NB},1,1) block=(1024,1,1) lds={K2_LDS}')
    if STAMP == 4: a('; @launch kernel=k3_kernel grid=(1,1,1) block=(64,1,1) lds=0')
    a('.amdgcn_target "amdgcn-amd-amdhsa--gfx950"')
    a('.text')
    a('.globl k1_kernel')
    gen_k1(a)
    a('.globl k2_kernel')
    gen_k2(a)
    if STAMP == 4: gen_k3(a)
    a('.section .rodata,"a"')
    a('.p2align 6')
    kd(a, 'k1_kernel', 96, 102 if STAMP else 72)
    a('.p2align 6')
    kd(a, 'k2_kernel', 128, 102 if STAMP else 80)
    if STAMP == 4:
        a('.p2align 6')
        kd(a, 'k3_kernel', 8, 32)
    a.l = [x for x in a.l if x is not None]
    open(out, 'w').write(a.text())

if __name__ == '__main__':
    main(sys.argv[1] if len(sys.argv) > 1 else 'standalone__edge_featured_mpnn_gatedgcn__graph.s')
```

```python
import sys, os, struct
def env(n, d): return os.environ.get(n, d)

N = 10000; E = 640000
NPB = 40; NB = 256; EPC = 2500; NC = 256
TPC = EPC//4
BMAGIC = 109951163
LOG2E = 1.4426950408889634
WS_REC  = 0
REC_STRIDE = EPC*5
WS_DESC = 3407872
DESC_STRIDE = 1024
WS_T    = 4194304
T_BYTES = (N+1)*256

STAMP = int(env('STAMP', '0'))
K1ST = env('K1ST', 'sc1')
PRIO = int(env('PRIO', '1'))
TFIRST = int(env('TFIRST', '1'))
WS_STAMP = 128 << 20
ST0 = 80

def f2u(f): return struct.unpack('<I', struct.pack('<f', f))[0]

class Asm:
    def __init__(self): self.l = []
    def __call__(self, s=''):
        for line in s.split('\n'): self.l.append(line)
    def label(self, n): self.l.append(n + ':')
    def text(self): return '\n'.join(self.l) + '\n'

DETAIL = int(env('DETAIL', '0'))
def dstamp(a, i):
    if DETAIL: stamp(a, i, False, True)
def stamp(a, i, real=False, force=False):
    if DETAIL and not force and not real and getattr(a, 'k2', False) and i in (1, 2, 3): return
    if STAMP:
        r = ST0 + 2*(8+i if real else i)
        a(f"    {'s_memrealtime' if (real or STAMP >= 3) else 's_memtime'} s[{r}:{r+1}]")
def stamp_flush(a, wave_sgpr, wg_sgpr, kern, ws_lo):
    if not STAMP: return
    a('    s_waitcnt lgkmcnt(0)')
    a('    s_mov_b64 exec, 1')
    a('    v_mov_b32 v2, 0')
    if STAMP == 4:
        lab = f'STSKIP{kern}_{len(a.l)}'
        a(f"    s_and_b32 s14, s{wg_sgpr}, {31 if kern == 0 else int(env('SAMP2', '31'))}")
        a('    s_cmp_eq_u32 s14, 0')
        a(f'    s_cbranch_scc0 {lab}')
        a(f'    s_cmp_eq_u32 s{wave_sgpr}, 0')
        a(f'    s_cbranch_scc0 {lab}')
        a('    s_load_dwordx2 s[12:13], s[0:1], 80')
        a('    s_waitcnt lgkmcnt(0)')
        a(f'    s_add_u32 s12, s12, {1024 if kern == 0 else 512}')
        a('    s_addc_u32 s13, s13, 0')
        slots = [(0, 8, True), (1, 9, False), (7, 4, False), (8, 2, False)] if kern == 0 else \
                [(2, 8, True), (3, 4, False), (4, 5, False), (5, 6, False), (6, 9, False), (9, 2, False)]
        for slot, st, inv in slots:
            a(f'    v_mov_b32 v3, s{ST0+2*st}')
            if inv: a('    v_not_b32 v3, v3')
            a(f'    global_atomic_umax v2, v3, s[12:13] offset:{4*slot}')
        a('    s_waitcnt vmcnt(0)')
        a.label(lab)
        return
    a(f'    s_add_u32 s12, s{ws_lo}, {WS_STAMP + kern*(4<<20)}')
    a(f'    s_addc_u32 s13, s{ws_lo+1}, 0')
    a(f'    s_mov_b32 s14, {4<<20}')
    a('    s_mov_b32 s15, 0x00020000')
    a(f'    s_lshl_b32 s16, s{wg_sgpr}, 4')
    a(f'    s_add_u32 s16, s16, s{wave_sgpr}')
    a(f'    s_lshl_b32 s16, s16, 6')
    for i in range(8):
        a(f'    v_mov_b32 v3, s{ST0+2*i}')
        a(f'    buffer_store_dword v3, v2, s[12:15], s16 offen offset:{4*i}')
    for i in range(2):
        a(f'    v_mov_b32 v3, s{ST0+2*(8+i)}')
        a(f'    buffer_store_dword v3, v2, s[12:15], s16 offen offset:{4*(10+i)}')
    a('    s_waitcnt vmcnt(0)')

def srd(a, sreg, lo, hi, nbytes, off=0, stride=0, nrec=None):
    if off:
        a(f'    s_add_u32 s{sreg}, s{lo}, {off}')
        a(f'    s_addc_u32 s{sreg+1}, s{hi}, 0')
    else:
        a(f'    s_mov_b32 s{sreg}, s{lo}')
        a(f'    s_mov_b32 s{sreg+1}, s{hi}')
    if stride:
        a(f'    s_and_b32 s{sreg+1}, s{sreg+1}, 0xffff')
        a(f'    s_or_b32 s{sreg+1}, s{sreg+1}, {stride << 16}')
        a(f'    s_mov_b32 s{sreg+2}, {nrec}')
    else:
        a(f'    s_mov_b32 s{sreg+2}, {nbytes}')
    a(f'    s_mov_b32 s{sreg+3}, 0x00020000')

def dpp_scan(a, v):
    for sh in (1, 2, 4, 8):
        a('    s_nop 1')
        a(f'    v_add_u32_dpp v{v}, v{v}, v{v} row_shr:{sh} row_mask:0xf bank_mask:0xf')
    a('    s_nop 1')
    a(f'    v_add_u32_dpp v{v}, v{v}, v{v} row_bcast:15 row_mask:0xa bank_mask:0xf')
    a('    s_nop 1')
    a(f'    v_add_u32_dpp v{v}, v{v}, v{v} row_bcast:31 row_mask:0xc bank_mask:0xf')

def masked(a, cond, exreg, skip=None):
    a(f'    {cond}')
    a(f'    s_and_saveexec_b64 s[{exreg}:{exreg+1}], vcc')
    if skip: a(f'    s_cbranch_execz {skip}')
def unmask(a, exreg, skip=None):
    if skip: a.label(skip)
    a(f'    s_mov_b64 exec, s[{exreg}:{exreg+1}]')

def lds_sync(a, name, off, n, vzero, vone, vt, st):
    a('    s_waitcnt lgkmcnt(0)')
    a('    s_mov_b64 exec, 1')
    a(f'    ds_add_u32 v{vzero}, v{vone} offset:{off}')
    a('    s_mov_b64 exec, -1')
    a.label(name)
    a(f'    ds_read_b32 v{vt}, v{vzero} offset:{off}')
    a('    s_waitcnt lgkmcnt(0)')
    a(f'    v_readfirstlane_b32 s{st}, v{vt}')
    a(f'    s_cmp_lt_u32 s{st}, {n}')
    a(f'    s_cbranch_scc1 {name}')

K1_GRID = NC
L1_HIST = 0; L1_START = 1024; L1_SYNC = 2048
L1_ST32 = 2304; L1_ST8 = L1_ST32 + 2560*4; L1_W = 15360
K1_LDS = L1_W + 16384
K1PF = int(env('K1PF', '0'))
CPF = int(env('CPF', '1'))
XMAP = int(env('XMAP', '1'))
DESCT = int(env('DESCT', '1'))
DESCST = env('DESCST', '')
OUTST = env('OUTST', '')
RECST = env('RECST', K1ST)
TST = env('TST', K1ST)
TFIRST = int(env('TFIRST', '1'))

def gen_k1(a):
    a('.p2align 8')
    a('.type k1_kernel,@function')
    a.label('k1_kernel')
    a(f'    s_cmp_ge_u32 s2, {K1_GRID}')
    a('    s_cbranch_scc1 K1_END')
    stamp(a, 0); stamp(a, 0, True)
    if CPF:
        a('    s_getpc_b64 s[30:31]')
        a.label('K1_PC')
        a('    v_lshlrev_b32 v90, 7, v0')
        lim = 'CODE_END-K1_PC' if CPF >= 2 else 'k2_kernel-K1_PC'
        a(f'    v_cmp_gt_u32 vcc, {lim}, v90')
        a('    s_and_saveexec_b64 s[28:29], vcc')
        a('    s_cbranch_execz K1_NOCPF')
        a('    global_load_dword v91, v90, s[30:31]')
        a.label('K1_NOCPF')
        a('    s_mov_b64 exec, s[28:29]')
    if XMAP:
        a('    s_and_b32 s20, s2, 7')
        a('    s_lshr_b32 s21, s2, 3')
        a('    s_lshl_b32 s20, s20, 5')
        a('    s_add_u32 s2, s20, s21')
    a('    v_lshrrev_b32 v1, 6, v0')
    a('    s_load_dwordx4 s[8:11], s[0:1], 16')
    a('    v_readfirstlane_b32 s20, v1')
    a('    s_load_dwordx2 s[4:5], s[0:1], 8      ; e_attr')
    a('    s_load_dwordx2 s[6:7], s[0:1], 88     ; ws')
    a('    v_and_b32 v2, 63, v0                   ; lane')
    if TFIRST:
        a('    s_cmp_lt_u32 s20, 6')
        a('    s_cbranch_scc1 K1_TABLE')
        a('    v_subrev_u32 v0, 384, v0')
        a('    s_sub_u32 s20, s20, 6')
    else:
        a('    s_cmp_ge_u32 s20, 10')
        a('    s_cbranch_scc1 K1_TABLE')
    a('    v_mov_b32 v5, 0')
    a('    v_lshlrev_b32 v6, 2, v0               ; t*4')
    masked(a, 'v_cmp_gt_u32 vcc, 256, v0', 30)
    a(f'    ds_write_b32 v6, v5 offset:{L1_HIST}')
    unmask(a, 30)
    a('    v_lshlrev_b32 v3, 4, v0               ; t*16')
    a('    v_lshlrev_b32 v4, 3, v0               ; t*8')
    a(f'    s_mul_i32 s21, s2, {EPC*4}')
    a(f'    s_mul_i32 s22, s2, {EPC*2}')
    a(f'    s_mov_b32 s23, {BMAGIC}')
    a(f'    v_mov_b32 v19, {TPC}')
    a('    v_cmp_gt_u32 s[46:47], v19, v0')
    a('    s_waitcnt lgkmcnt(0)')
    srd(a, 12, 10, 11, E*4)
    a('    buffer_load_dwordx4 v[8:11], v3, s[12:15], s21 offen     ; dst x4')
    srd(a, 16, 8, 9, E*4)
    a('    buffer_load_dwordx4 v[12:15], v3, s[16:19], s21 offen    ; src x4')
    srd(a, 24, 4, 5, E*2)
    a('    buffer_load_dwordx2 v[16:17], v4, s[24:27], s22 offen')
    srd(a, 32, 6, 7, NC*REC_STRIDE, off=WS_REC)
    srd(a, 36, 6, 7, NB*DESC_STRIDE, off=WS_DESC)
    a('    v_lshlrev_b32 v6, 4, v2                ; lane*16')
    a('    v_mul_u32_u24 v7, 20, v0')
    a('    v_lshlrev_b32 v18, 12, v2')
    a(f'    s_mul_i32 s25, s2, {REC_STRIDE}')
    a('    s_lshl_b32 s26, s2, 2')
    a('    s_mov_b32 s40, 0x06050400')
    a('    s_mov_b32 s41, 0x05040003')
    a('    s_mov_b32 s42, 0x03020500')
    a('    s_mov_b32 s43, 0x04000302')
    a('    s_mov_b32 s44, 0x03060100')
    a('    s_mov_b32 s45, 0x07030201')
    stamp(a, 1)
    a('    s_barrier')
    a('    v_mov_b32 v5, 1')
    a('    v_mov_b32 v19, 0')
    a('    s_waitcnt vmcnt(2)')
    stamp(a, 2)
    for k in range(4):
        a(f'    v_mul_hi_u32 v{20+k}, s23, v{8+k}        ; bucket')
    for k in range(4):
        a(f'    v_lshlrev_b32 v{24+k}, 2, v{20+k}       ; bucket*4')
    a('    s_mov_b64 exec, s[46:47]')
    for k in range(4):
        a(f'    ds_add_rtn_u32 v{28+k}, v{24+k}, v5 offset:{L1_HIST}')
    a('    s_mov_b64 exec, -1')
    a('    s_movk_i32 s27, 625')
    for k in range(4):
        a(f'    v_mad_u32_u24 v{20+k}, v{20+k}, s27, 15')
    for k in range(4):
        a(f'    v_lshrrev_b32 v{20+k}, 4, v{20+k}')
    for k in range(4):
        a(f'    v_sub_u32 v{20+k}, v{8+k}, v{20+k}')
    for k in range(4):
        a(f'    v_lshlrev_b32 v{20+k}, 2, v{20+k}')
    a('    s_waitcnt vmcnt(0)')
    a('    v_lshl_or_b32 v32, v16, 16, v12')
    a('    s_mov_b32 s24, 0xffff0000')
    a('    v_and_or_b32 v33, v16, s24, v13')
    a('    v_lshl_or_b32 v34, v17, 16, v14')
    a('    v_and_or_b32 v35, v17, s24, v15')
    a('    s_waitcnt lgkmcnt(0)')
    stamp(a, 3)
    lds_sync(a, 'K1_SYNC2', L1_SYNC+4, 10, 19, 5, 25+40, 27)
    stamp(a, 4)
    a(f'    ds_read_b128 v[40:43], v6 offset:{L1_HIST}')
    a('    s_waitcnt lgkmcnt(0)')
    a('    v_add_u32 v44, v40, v41                ; h0+h1')
    a('    v_add_u32 v45, v44, v42')
    a('    v_add_u32 v46, v45, v43                ; sum4')
    a('    v_mov_b32 v47, v46')
    dpp_scan(a, 47)
    a('    v_sub_u32 v48, v47, v46')
    a('    v_add_u32 v49, v48, v40')
    a('    v_add_u32 v50, v48, v44')
    a('    v_add_u32 v51, v48, v45')
    a(f'    ds_write_b128 v6, v[48:51] offset:{L1_START}')
    a('    s_waitcnt lgkmcnt(0)')
    for k in range(4):
        a(f'    ds_read_b32 v{56+k}, v{24+k} offset:{L1_START}')
    for k in range(4):
        a(f'    v_lshl_or_b32 v{52+k}, v{40+k}, 16, v{48+k}')
    a('    s_waitcnt lgkmcnt(0)')
    for k in range(4):
        a(f'    v_add_u32 v{56+k}, v{56+k}, v{28+k}      ; position')
    a('    s_mov_b64 exec, s[46:47]')
    for k in range(4):
        a(f'    ds_write_b8 v{56+k}, v{20+k} offset:{L1_ST8}')
        a(f'    v_lshlrev_b32 v{60+k}, 2, v{56+k}')
    for k in range(4):
        a(f'    ds_write_b32 v{60+k}, v{32+k} offset:{L1_ST32}')
    a('    s_mov_b64 exec, -1')
    a('    s_waitcnt lgkmcnt(0)')
    stamp(a, 5)
    lds_sync(a, 'K1_SYNC3', L1_SYNC+8, 10, 19, 5, 25+40, 27)
    a(f'    ds_read_b128 v[8:11], v3 offset:{L1_ST32}')
    a('    v_lshrrev_b32 v4, 2, v3                ; t*4')
    a(f'    ds_read_b32 v12, v4 offset:{L1_ST8}')
    a('    s_waitcnt lgkmcnt(0)')
    a('    v_perm_b32 v21, v9, v12, s40           ; d1 = L0 r1.b0 r1.b1 r1.b2')
    a('    v_perm_b32 v22, v10, v9, s41           ; r1.b3 . r2.b0 r2.b1')
    a('    v_perm_b32 v23, v11, v10, s43          ; r2.b2 r2.b3 . r3.b0')
    a('    v_mov_b32 v20, v8')
    a('    v_perm_b32 v22, v12, v22, s42          ; d2 : insert L1')
    a('    v_perm_b32 v23, v12, v23, s44          ; d3 : insert L2')
    a('    v_perm_b32 v24, v12, v11, s45          ; d4 = r3.b1 r3.b2 r3.b3 L3')
    a('    s_mov_b64 exec, s[46:47]')
    a(f'    buffer_store_dwordx4 v[20:23], v7, s[32:35], s25 offen {RECST}')
    a(f'    buffer_store_dword v24, v7, s[32:35], s25 offen offset:16 {RECST}')
    a('    s_mov_b64 exec, -1')
    a('    s_cmp_eq_u32 s20, 0')
    a('    s_cbranch_scc0 K1_SFIN')
    if DESCT:
        for k in range(4):
            a(f'    buffer_store_dword v{52+k}, v18, s[36:39], s26 offen offset:{1024*k} {DESCST}')
    else:
        a('    s_lshl_b32 s26, s2, 10')
        a(f'    buffer_store_dwordx4 v[52:55], v6, s[36:39], s26 offen {DESCST}')
    a.label('K1_SFIN')
    if STAMP:
        stamp(a, 6)
        a('    s_waitcnt vmcnt(0)')
        stamp(a, 7); stamp(a, 1, True)
        stamp_flush(a, 20, 2, 0, 6)
    a('    s_endpgm')
    a.label('K1_TABLE')
    a('    s_load_dwordx2 s[40:41], s[0:1], 40   ; w_b')
    a('    s_load_dwordx2 s[42:43], s[0:1], 64   ; w_v')
    a('    s_load_dwordx2 s[44:45], s[0:1], 0    ; x')
    if K1PF:
        a('    s_load_dwordx2 s[60:61], s[0:1], 32   ; w_a')
        a('    s_load_dwordx4 s[64:67], s[0:1], 48   ; w_c, w_u')
        a('    s_load_dwordx2 s[62:63], s[0:1], 72   ; out')
    a('    s_mov_b32 s21, s20                     ; tw' if TFIRST else '    s_sub_u32 s21, s20, 10                 ; tw')
    a('    v_mov_b32 v5, 0')
    a('    v_lshlrev_b32 v6, 2, v2')
    a('    s_cmp_eq_u32 s21, 0')
    a('    s_cbranch_scc0 K1_T_NOZ')
    masked(a, 'v_cmp_gt_u32 vcc, 4, v2', 30)
    a(f'    ds_write_b32 v6, v5 offset:{L1_SYNC}')
    unmask(a, 30)
    a.label('K1_T_NOZ')
    a('    s_lshr_b32 s22, s21, 1')
    a('    s_lshl_b32 s22, s22, 4                 ; 16*rt')
    a('    v_and_b32 v4, 15, v2')
    a('    v_add_u32 v4, s22, v4')
    a('    v_lshrrev_b32 v5, 4, v2                ; g')
    a('    v_lshlrev_b32 v6, 7, v4')
    a('    v_lshl_add_u32 v6, v5, 4, v6')
    a('    s_mul_i32 s58, s2, 625')
    a('    s_add_u32 s59, s58, 640                ; 625*(c+1) + 15')
    a('    s_add_u32 s58, s58, 15')
    a('    s_lshr_b32 s58, s58, 4')
    a('    s_lshr_b32 s59, s59, 4')
    a('    s_sub_u32 s59, s59, s58')
    a('    s_lshl_b32 s24, s58, 7')
    a('    v_lshlrev_b32 v7, 4, v2                ; lane*16')
    a('    v_bfe_u32 v8, v2, 4, 1')
    a('    v_lshlrev_b32 v8, 1, v8')
    a('    v_and_b32 v9, 7, v2')
    a('    v_xor_b32 v8, v8, v9')
    a('    v_lshrrev_b32 v9, 3, v2')
    a('    v_lshlrev_b32 v9, 7, v9                ; (lane>>3)*128')
    a('    s_waitcnt lgkmcnt(0)')
    for i in range(3):
        a(f'    s_add_u32 s26, s21, {6*i}              ; p')
        a('    s_cmp_lt_u32 s26, 8')
        a('    s_cselect_b32 s48, s40, s42')
        a('    s_cselect_b32 s49, s41, s43')
        a('    s_mov_b32 s50, 8192')
        a('    s_mov_b32 s51, 0x00020000')
        a('    s_and_b32 s27, s26, 7')
        a('    s_lshl_b32 s27, s27, 10')
        a('    s_cmp_lt_u32 s26, 16')
        a(f'    s_cselect_b32 s27, s27, {1<<20}')
        a(f'    buffer_load_dwordx4 v[{48+4*i}:{51+4*i}], v7, s[48:51], s27 offen')
    srd(a, 36, 44, 45, N*128)
    a('    buffer_load_dwordx4 v[24:27], v6, s[36:39], s24 offen')
    a('    buffer_load_dwordx4 v[28:31], v6, s[36:39], s24 offen offset:64')
    if K1PF:
        a('    s_cmp_eq_u32 s21, 5')
        a('    s_cbranch_scc0 K1_T_NOPF')
        a('    v_lshlrev_b32 v60, 8, v2')
        a('    v_lshlrev_b32 v61, 7, v2')
        a('    global_load_dword v62, v61, s[60:61]')
        a('    global_load_dword v62, v61, s[66:67]')
        a('    v_mov_b32 v63, 0')
        a('    global_load_dword v62, v63, s[64:65]')
        a('    s_lshl_b32 s26, s58, 7')
        a('    v_mov_b32 v63, s26')
        a('    global_load_dword v62, v63, s[62:63]')
        srd(a, 52, 6, 7, WS_T + T_BYTES, off=0)
        a(f'    s_mul_i32 s26, s2, {REC_STRIDE}')
        a('    v_mov_b32 v63, s26')
        a('    buffer_load_dword v62, v63, s[52:55], 0 offen')
        a('    s_lshl_b32 s26, s58, 8')
        a(f'    s_add_u32 s26, s26, {WS_T}')
        a('    v_mov_b32 v63, s26')
        a('    buffer_load_dword v62, v63, s[52:55], 0 offen')
        a(f'    s_lshl_b32 s26, s2, 2')
        a(f'    s_add_u32 s26, s26, {WS_DESC}')
        a('    v_mov_b32 v63, s26')
        a('    buffer_load_dword v62, v63, s[52:55], 0 offen')
        a.label('K1_T_NOPF')
    a('    s_barrier')
    if K1PF: a.label('K1_T_PFJOIN0')
    srd(a, 44, 6, 7, T_BYTES, off=WS_T)
    for i in range(3):
        a(f'    s_add_u32 s26, s21, {6*i}              ; p')
        a('    s_and_b32 s27, s26, 1')
        a('    s_lshl_b32 s27, s27, 2')
        a(f'    v_xor_b32 v{18+i}, s27, v8')
        a(f'    v_lshl_add_u32 v{18+i}, v{18+i}, 4, v9')
        a('    s_lshl_b32 s27, s26, 10                ; m*8192 + (p&7)*1024 = p*1024')
        a(f'    v_add_u32 v{18+i}, s27, v{18+i}')
    a('    s_and_b32 s23, s21, 1                  ; half')
    a('    v_bfe_u32 v12, v2, 2, 2                ; r')
    a('    v_lshl_add_u32 v13, v5, 3, v12         ; rho')
    a('    v_lshlrev_b32 v13, 7, v13')
    a('    v_and_b32 v14, 1, v2')
    a('    v_lshl_add_u32 v13, v14, 3, v13        ; + (c&1)*8')
    a('    v_bfe_u32 v14, v2, 1, 1                ; c>>1')
    a('    v_lshrrev_b32 v12, 1, v12')
    a('    v_and_b32 v15, 1, v5                   ; g&1')
    a('    v_lshlrev_b32 v15, 1, v15')
    a('    v_or_b32 v12, v12, v15                 ; swz/2')
    a('    s_lshl_b32 s25, s23, 1')
    a('    v_xor_b32 v15, s25, v12')
    a('    v_lshl_or_b32 v15, v15, 1, v14')
    a('    v_lshl_add_u32 v16, v15, 4, v13')
    a('    s_add_u32 s25, s25, 1')
    a('    v_xor_b32 v15, s25, v12')
    a('    v_lshl_or_b32 v15, v15, 1, v14')
    a('    v_lshl_add_u32 v17, v15, 4, v13')
    a('    v_lshlrev_b32 v21, 8, v4')
    a('    v_lshl_add_u32 v21, v5, 4, v21')
    a('    s_lshl_b32 s25, s23, 7')
    a('    s_lshl_b32 s26, s58, 8')
    a('    s_add_u32 s25, s25, s26')
    a('    v_add_u32 v21, s25, v21')
    a('    v_cmp_gt_u32 vcc, s59, v4')
    a(f'    v_mov_b32 v22, {1<<30}')
    a(f'    s_mov_b32 s27, {hex(f2u(-LOG2E))}')
    a('    s_mov_b32 s28, 0xffff0000')
    a('    v_cndmask_b32 v9, v22, v21, vcc')
    a('    s_mov_b32 s29, 0x80000000')
    a('    v_mov_b32 v10, 0')
    a('    v_mov_b32 v11, 1')
    if K1PF:
        a('    s_cmp_eq_u32 s21, 5')
        a('    s_cbranch_scc0 K1_T_W2')
        a('    s_waitcnt vmcnt(9)')
        a('    s_branch K1_T_W9')
        a.label('K1_T_W2')
    a('    s_waitcnt vmcnt(2)')
    if K1PF: a.label('K1_T_W9')
    stamp(a, 1)
    for i in range(3):
        if i == 2:
            a('    s_cmp_lt_u32 s21, 4')
            a('    s_cbranch_scc0 K1_T_ST2')
        a(f'    ds_write_b128 v{18+i}, v[{48+4*i}:{51+4*i}] offset:{L1_W}')
    a.label('K1_T_ST2')
    lds_sync(a, 'K1_T_SPIN', L1_SYNC, 6, 10, 11, 12, 26)
    stamp(a, 3)
    order = [(jj, ks, m) for jj in range(2) for ks in range(2) for m in range(2)]
    for i, (jj, ks, m) in enumerate(order):
        b = 64 + 4*i
        off = L1_W + m*8192 + ks*32*128
        a(f'    ds_read_b64_tr_b16 v[{b}:{b+1}], v{16+jj} offset:{off}')
        a(f'    ds_read_b64_tr_b16 v[{b+2}:{b+3}], v{16+jj} offset:{off+512}')
    if K1PF:
        a('    s_cmp_eq_u32 s21, 5')
        a('    s_cbranch_scc0 K1_T_X0')
        a('    s_waitcnt vmcnt(7)')
        a('    s_branch K1_T_XOK')
        a.label('K1_T_X0')
    a('    s_waitcnt vmcnt(0)')
    if K1PF: a.label('K1_T_XOK')
    for i, (jj, ks, m) in enumerate(order):
        b = 64 + 4*i
        a(f'    s_waitcnt lgkmcnt({min(15, 2*(7-i))})')
        acc = 32 + 8*m + 4*jj
        x = 24 + 4*ks
        c = '0' if ks == 0 else f'v[{acc}:{acc+3}]'
        a(f'    v_mfma_f32_16x16x32_bf16 v[{acc}:{acc+3}], v[{b}:{b+3}], v[{x}:{x+3}], {c}')
    stamp(a, 4)
    a('    s_nop 4')
    for jj in range(2):
        R = range(4)
        p = lambda r: 32 + 4*jj + r
        q = lambda r: 40 + 4*jj + r
        t = lambda r: 10 + r
        if jj == 1: a('    s_nop 2')
        for r in R: a(f'    v_mul_f32 v{p(r)}, s27, v{p(r)}')
        for r in R: a(f'    v_cvt_f16_f32 v{p(r)}, v{p(r)}')
        for r in R: a(f'    v_and_b32 v{t(r)}, 0x7fffffff, v{q(r)}')
        for r in R: a(f'    v_and_b32 v{p(r)}, 0xffff, v{p(r)}')
        for r in R: a(f'    v_sub_u32 v{t(r)}, v{t(r)}, v{p(r)}')
        for r in R: a(f'    v_add_u32 v{t(r)}, 0x8000, v{t(r)}')
        for r in R: a(f'    v_max_i32 v{t(r)}, 0, v{t(r)}')
        for r in R: a(f'    v_and_or_b32 v{t(r)}, v{t(r)}, s28, v{p(r)}')
        for r in R: a(f'    v_and_or_b32 v{p(r)}, v{q(r)}, s29, v{t(r)}')
        a(f'    buffer_store_dwordx4 v[{32+4*jj}:{35+4*jj}], v9, s[44:47], 0 offen offset:{jj*64} {TST}')
    a('    s_cmp_eq_u32 s2, 0')
    a('    s_cbranch_scc0 K1_TFIN')
    a('    s_cmp_eq_u32 s21, 0')
    a('    s_cbranch_scc0 K1_TFIN')
    a('    v_mov_b32 v10, 0x7c00')
    a(f'    v_lshlrev_b32 v11, 2, v2')
    a(f'    v_add_u32 v11, {N*256}, v11')
    a(f'    buffer_store_dword v10, v11, s[44:47], 0 offen {TST}')
    a.label('K1_TFIN')
    stamp(a, 5)
    if STAMP:
        stamp(a, 6)
        a('    s_waitcnt vmcnt(0)')
        stamp(a, 7); stamp(a, 1, True)
        if STAMP >= 3:
            a('    s_waitcnt lgkmcnt(0)')
            a(f'    s_mov_b32 s{ST0+4}, s{ST0+16}')
        else: stamp(a, 2)
        if TFIRST: a('    s_add_u32 s20, s20, 10')
        stamp_flush(a, 20, 2, 0, 6)
    a.label('K1_END')
    a('    s_endpgm')

CAP = 4096
TS = 272
L2_CNT = 0; L2_FLG = 256
L2_LIST = 512
L2_SLOT = L2_LIST + CAP*4
L2_EAT = L2_SLOT + 56*512; L2_UT = L2_EAT + 48*TS
XS = 144
L2_XT = L2_UT + 48*TS
L2_W = L2_XT + 48*XS
K2_LDS = L2_W + 16384
U = 4
TPF = int(env('TPF', '1'))
PFPOS = int(env('PFPOS', '1'))
PGT = int(env('PGT', '0'))
G0N = int(env('G0N', '1'))
PFW = int(env('PFW', '4'))
PFE = int(env('PFE', '0'))
PFL = int(env('PFL', '640'))
PFN = int(env('PFN', '40'))
PRT = [int(x) for x in env('PRT', '4,4,4').split(',')]

def gen_k2(a):
    a.k2 = True
    sB = 2; sWAVE = 3
    SRD_DESC = 12; SRD_REC = 16; SRD_T = 20; SRD_W = 24; SRD_X = 28; SRD_OUT = 32; SRD_WC = 36
    sMODE = 40; sPASS = 41
    sG0 = 42; sG1 = 43; sGEND = 44; sLEFT = 45; sNODE = 46; sT0 = 47; sT1 = 48; sSAFE = 49; sGT = 50; sR = 51
    sEX = 52; sEAB = 54; sPR = 55; sPQ = 56; sLVL = 57; sSLOT = 58; sNR = 59; sPQ2 = 60; sN0 = 62; sNN = 63; sNT = 61; sJ = 58
    sM = 64
    vLANE = 1
    vWC = 4; vEA = 8; vDEN = 12; vNUM = 16; vT = 20; vDAT = 24; vP = 40; vEV = 48
    vSA = 50; vACC = 51; vEAA = 52; vGS = 53; vQ16 = 54; vNG = 55
    vDA = 56; vNA = 60
    vX = 64
    vFL = 66
    vGE = 67
    vXO = 68
    vR = 76
    vB = 84
    vRK = 92
    vLA = 100
    vA = 108
    vCNT = 118; vRO = 119; vI = 120; vRM = 121; vTRA = 122; vXRA = 123; vROW = 121; vPFA = 51
    vLC = 12
    vPF = 16
    vXO2 = vXO
    SRD_LOC = 8; SRD_PF = 24
    vW = 24; vOP = 24; vAC = 40
    vOP2 = 76; vAC2 = 92
    vFS = 101; vFC = 102; vUTA = 103; vXTA = 106
    vU = 96; vUA = 100

    a('.p2align 8')
    a('.type k2_kernel,@function')
    a.label('k2_kernel')
    a(f'    s_cmp_ge_u32 s2, {NB}')
    a('    s_cbranch_scc1 K2_END')
    stamp(a, 0); stamp(a, 0, True)
    if CPF:
        a('    s_getpc_b64 s[30:31]')
        a.label('K2_PC')
        a('    v_lshlrev_b32 v124, 7, v0')
        a('    v_cmp_gt_u32 vcc, CODE_END-K2_PC, v124')
        a('    s_and_saveexec_b64 s[28:29], vcc')
        a('    s_cbranch_execz K2_NOCPF')
        a('    global_load_dword v125, v124, s[30:31]')
        a.label('K2_NOCPF')
        a('    s_mov_b64 exec, s[28:29]')
    a(f'    s_lshr_b32 s{sJ}, s2, 3')
    if XMAP:
        a(f'    s_and_b32 s{sT0}, s2, 7')
        a(f'    s_lshl_b32 s{sT0}, s{sT0}, 5')
        a(f'    s_add_u32 s2, s{sT0}, s{sJ}')
    a(f'    s_mul_i32 s{sN0}, s2, 625')
    a(f'    s_add_u32 s{sNN}, s{sN0}, 640')
    a(f'    s_add_u32 s{sN0}, s{sN0}, 15')
    a(f'    s_lshr_b32 s{sN0}, s{sN0}, 4')
    a(f'    s_lshr_b32 s{sNN}, s{sNN}, 4')
    a(f'    s_sub_u32 s{sNN}, s{sNN}, s{sN0}')
    a('    s_load_dwordx2 s[6:7], s[0:1], 88      ; ws')
    a('    s_load_dwordx2 s[4:5], s[0:1], 0       ; x')
    a('    s_load_dwordx2 s[8:9], s[0:1], 32      ; w_a')
    a('    s_load_dwordx4 s[76:79], s[0:1], 48    ; w_c, w_u')
    a('    s_load_dwordx2 s[10:11], s[0:1], 72    ; out')
    a(f'    v_and_b32 v{vLANE}, 63, v0')
    a(f'    v_lshrrev_b32 v{vA}, 6, v0')
    a(f'    v_and_b32 v{vQ16}, 15, v0')
    a(f'    v_readfirstlane_b32 s{sWAVE}, v{vA}')
    a(f'    v_lshlrev_b32 v{vQ16}, 4, v{vQ16}      ; q*16')
    if DESCT:
        a(f'    v_and_b32 v{vA}, 0x3fc, v0             ; (t>>2)*4')
        a(f'    s_lshl_b32 s{sT0}, s{sB}, 10')
    else:
        a(f'    v_lshrrev_b32 v{vA}, 2, v0')
        a(f'    v_lshlrev_b32 v{vA}, 10, v{vA}')
        a(f'    s_lshl_b32 s{sT0}, s{sB}, 2')
    for i in range(4):
        a(f'    v_mov_b32 v{vDA+i}, 0')
        a(f'    v_mov_b32 v{vNA+i}, 0')
    masked(a, 'v_cmp_gt_u32 vcc, 4, v0', sEX)
    a(f'    v_lshlrev_b32 v{vA+5}, 2, v0')
    a(f'    ds_write_b32 v{vA+5}, v{vDA} offset:{L2_FLG}')
    unmask(a, sEX)
    a(f'    s_mov_b32 s{sMODE}, 0')
    a(f'    s_mov_b32 s{sPASS}, 0')
    a(f'    v_mov_b32 v{vEV}, 0')
    a(f'    v_mov_b32 v{vEV+1}, 0')
    for k in range(U):
        a(f'    v_mov_b32 v{vP+2*k}, {N}')
        a(f'    v_mov_b32 v{vP+2*k+1}, v{vQ16}')
    a(f'    v_lshrrev_b32 v{vA+1}, 5, v{vLANE}')
    a(f'    v_lshl_add_u32 v{vFL}, v{vA+1}, 8, v{vQ16}')
    a(f'    v_bfe_u32 v{vA+1}, v{vLANE}, 4, 1')
    a(f'    v_lshl_add_u32 v{vFL}, v{vA+1}, 3, v{vFL}')
    a.label('K2_PASS')
    for i in range(4):
        a(f'    v_mov_b32 v{vA+6+i}, {N}')
    a(f'    v_lshlrev_b32 v{vA+5}, 4, v0')
    a(f'    ds_write_b128 v{vA+5}, v[{vA+6}:{vA+9}] offset:{L2_LIST}')
    masked(a, 'v_cmp_gt_u32 vcc, 64, v0', sEX)
    a(f'    v_lshlrev_b32 v{vA+4}, 2, v0')
    a(f'    v_mov_b32 v{vA+3}, 0')
    a(f'    ds_write_b32 v{vA+4}, v{vA+3} offset:{L2_CNT}')
    unmask(a, sEX)
    a(f'    s_cmp_eq_u32 s{sMODE}, 0')
    a('    s_cbranch_scc0 K2_SLOWPARAM')
    a('    s_waitcnt lgkmcnt(0)')
    srd(a, SRD_DESC, 6, 7, NB*DESC_STRIDE, off=WS_DESC)
    a(f'    buffer_load_dword v{vCNT}, v{vA}, s[{SRD_DESC}:{SRD_DESC+3}], s{sT0} offen')
    a(f'    s_cmp_lt_u32 s{sWAVE}, 8')
    a(f'    s_cselect_b32 s{SRD_W}, s8, s78')
    a(f'    s_cselect_b32 s{SRD_W+1}, s9, s79')
    a(f'    s_mov_b32 s{SRD_W+2}, 8192')
    a(f'    s_mov_b32 s{SRD_W+3}, 0x00020000')
    srd(a, SRD_X, 4, 5, N*128)
    srd(a, SRD_WC, 76, 77, 128)
    a(f'    v_and_b32 v{vA+1}, 511, v0')
    a(f'    v_lshlrev_b32 v{vA+1}, 4, v{vA+1}')
    a(f'    buffer_load_dwordx4 v[{vW}:{vW+3}], v{vA+1}, s[{SRD_W}:{SRD_W+3}], 0 offen')
    a(f'    v_lshlrev_b32 v{vA+4}, 4, v0')
    a(f'    v_cmp_gt_u32 vcc, 384, v0')
    a(f'    v_mov_b32 v{vA+3}, {1<<30}')
    a(f'    s_lshl_b32 s{sT1}, s{sN0}, 7')
    a(f'    v_cndmask_b32 v{vA+4}, v{vA+3}, v{vA+4}, vcc')
    a(f'    buffer_load_dwordx4 v[{vXO}:{vXO+3}], v{vA+4}, s[{SRD_X}:{SRD_X+3}], s{sT1} offen')
    a(f'    v_lshrrev_b32 v{vA+7}, 1, v{vQ16}      ; q*8 (wc)')
    a(f'    buffer_load_dwordx2 v[{vWC}:{vWC+1}], v{vA+7}, s[{SRD_WC}:{SRD_WC+3}], 0 offen')
    if PFE:
        srd(a, SRD_REC, 6, 7, T_BYTES, off=WS_T)
        a(f'    s_mul_i32 s{sT0}, s{sJ}, {640*128}')
        a(f'    s_mul_i32 s{sT1}, s{sWAVE}, {40*128}')
        a(f'    s_add_u32 s{sT0}, s{sT0}, s{sT1}')
        a(f'    s_add_u32 s{sT0}, s{sT0}, {PFN*128}')
        a(f'    v_lshlrev_b32 v{vPF+1}, 7, v{vLANE}')
        a(f'    v_cmp_gt_u32 vcc, {PFE}, v{vLANE}')
        a(f'    v_mov_b32 v{vPF+2}, {1<<30}')
        a('    s_nop 0')
        a(f'    v_cndmask_b32 v{vPF+1}, v{vPF+2}, v{vPF+1}, vcc')
        a(f'    buffer_load_dword v{vPF+1}, v{vPF+1}, s[{SRD_REC}:{SRD_REC+3}], s{sT0} offen')
    if PGT:
        srd(a, SRD_REC, 6, 7, WS_T + T_BYTES, off=0)
        a(f'    v_lshlrev_b32 v{vPF+1}, 21, v{vLANE}')
        a(f'    buffer_load_dword v{vPF+1}, v{vPF+1}, s[{SRD_REC}:{SRD_REC+3}], 0 offen')
    a('    s_barrier')
    srd(a, SRD_OUT, 10, 11, N*128)
    srd(a, SRD_REC, 6, 7, NC*REC_STRIDE + 64, off=WS_REC)
    srd(a, SRD_T, 6, 7, 0, off=WS_T, stride=256, nrec=N+1)
    a(f'    v_lshrrev_b32 v{vA}, 2, v0             ; c')
    a(f'    v_mul_u32_u24 v{vRO}, {REC_STRIDE}, v{vA}')
    a(f'    v_and_b32 v{vI}, 3, v0')
    a(f'    v_lshlrev_b32 v{vI}, 2, v{vI}')
    a(f'    v_mad_u32_u24 v{vRO}, v{vI}, 5, v{vRO}')
    a(f'    s_mov_b32 s{sT1}, 16')
    a(f'    s_waitcnt vmcnt({3+PGT+(1 if PFE else 0)})                      ; descriptor')
    stamp(a, 1)
    a(f'    v_and_b32 v{vA+1}, 0xffff, v{vCNT}      ; start')
    a(f'    v_lshrrev_b32 v{vCNT}, 16, v{vCNT}      ; cnt')
    a(f'    v_mad_u32_u24 v{vRO}, v{vA+1}, 5, v{vRO}')
    a('    s_branch K2_PARAMDONE')
    a.label('K2_SLOWPARAM')
    a(f'    s_lshl_b32 s{sT0}, s{sB}, {10 if DESCT else 2}')
    a(f'    s_lshl_b32 s{sT1}, s{sPASS}, {2 if DESCT else 10}')
    a(f'    s_add_u32 s{sT0}, s{sT0}, s{sT1}')
    a(f'    v_mov_b32 v{vA}, 0')
    a(f'    buffer_load_dword v{vCNT}, v{vA}, s[{SRD_DESC}:{SRD_DESC+3}], s{sT0} offen')
    a(f'    s_mul_i32 s{sT0}, s{sPASS}, {REC_STRIDE}')
    a('    s_waitcnt vmcnt(0) lgkmcnt(0)')
    a('    s_barrier')
    a(f'    v_and_b32 v{vA+1}, 0xffff, v{vCNT}')
    a(f'    v_lshlrev_b32 v{vI}, 2, v0')
    a(f'    v_add_u32 v{vA+1}, v{vA+1}, v{vI}')
    a(f'    v_mul_u32_u24 v{vRO}, 5, v{vA+1}')
    a(f'    v_add_u32 v{vRO}, s{sT0}, v{vRO}')
    a(f'    v_lshrrev_b32 v{vCNT}, 16, v{vCNT}')
    a(f'    s_mov_b32 s{sT1}, 4096')
    a.label('K2_PARAMDONE')
    a(f'    v_sub_u32 v{vRM}, v{vCNT}, v{vI}')
    a(f'    s_mul_i32 s{sT0}, s{sT1}, 5')
    a(f'    s_mov_b32 s{sNR}, 0')
    for r in range(2):
        m0 = sM + 8*r
        if r == 1:
            a(f'    v_subrev_u32 v{vRM}, s{sT1}, v{vRM}')
        for h in range(4):
            a(f'    v_cmp_gt_i32 s[{m0+2*h}:{m0+2*h+1}], v{vRM}, {h}' if h else f'    v_cmp_lt_i32 s[{m0}:{m0+1}], 0, v{vRM}')
        a(f'    s_cmp_eq_u64 s[{m0}:{m0+1}], 0')
        a(f'    s_cbranch_scc1 K2_LD_DONE')
        a(f'    s_mov_b64 exec, s[{m0}:{m0+1}]')
        a(f'    buffer_load_dwordx4 v[{vR+4*r}:{vR+4*r+3}], v{vRO}, s[{SRD_REC}:{SRD_REC+3}], 0 offen')
        a(f'    buffer_load_dword v{vLC+r}, v{vRO}, s[{SRD_REC}:{SRD_REC+3}], 0 offen offset:16')
        a(f'    s_mov_b64 exec, -1')
        a(f'    s_mov_b32 s{sNR}, {r+1}')
        if r < 1:
            a(f'    v_add_u32 v{vRO}, s{sT0}, v{vRO}')
    a.label('K2_LD_DONE')
    a(f'    s_or_b32 s{sT0}, s{sMODE}, s{sPASS}')
    a(f'    s_cmp_eq_u32 s{sT0}, 0')
    a('    s_cbranch_scc0 K2_LATER_PASS')
    if TPF and PFPOS == 3:
        a(f'    s_mul_i32 s{sT0}, s{sJ}, {640*128}')
        a(f'    s_mul_i32 s{sT1}, s{sWAVE}, {40*128}')
        a(f'    s_add_u32 s{sT0}, s{sT0}, s{sT1}')
        a(f'    s_add_u32 s{sT0}, s{sT0}, {WS_T}')
        a(f'    s_add_u32 s24, s6, s{sT0}')
        a(f'    s_addc_u32 s25, s7, 0')
        for i in range(PFN):
            a(f'    s_load_dword s26, s[24:25], {128*i}')
    if TPF and PFPOS == 2:
        W0 = 16 - PFW
        per = PFL // PFW
        a(f'    s_cmp_ge_u32 s{sWAVE}, {W0}')
        a('    s_cbranch_scc0 K2_NOPF2')
        srd(a, SRD_PF, 6, 7, T_BYTES, off=WS_T)
        a(f'    s_mul_i32 s{sT0}, s{sJ}, {640*128}')
        a(f'    s_sub_u32 s{sT1}, s{sWAVE}, {W0}')
        a(f'    s_mul_i32 s{sT1}, s{sT1}, {per*128}')
        a(f'    s_add_u32 s{sT0}, s{sT0}, s{sT1}')
        a(f'    v_lshlrev_b32 v{vPFA}, 7, v{vLANE}')
        nin = (per + 63)//64
        for i in range(nin):
            left = per - 64*i
            if left < 64:
                a(f'    v_cmp_gt_u32 vcc, {left}, v{vLANE}')
                a(f'    v_mov_b32 v{vPF+1}, {1<<30}')
                a('    s_nop 0')
                a(f'    v_cndmask_b32 v{vPFA}, v{vPF+1}, v{vPFA}, vcc')
            a(f'    buffer_load_dword v{vPF}, v{vPFA}, s[{SRD_PF}:{SRD_PF+3}], s{sT0} offen')
            if i + 1 < nin: a(f'    s_add_u32 s{sT0}, s{sT0}, 8192')
        a.label('K2_NOPF2')
    a(f'    v_lshrrev_b32 v{vA+8}, 3, v0')
    a(f'    v_mul_u32_u24 v{vA+8}, {XS}, v{vA+8}')
    a(f'    v_and_b32 v{vA+7}, 7, v0')
    a(f'    v_lshl_add_u32 v{vA+8}, v{vA+7}, 4, v{vA+8}')
    a(f'    v_add_u32 v{vA+8}, {L2_XT}, v{vA+8}')
    NPF = 1 if TPF else 0
    a(f'    v_bfe_u32 v{vA+1}, v0, 4, 1')
    a(f'    v_bfe_u32 v{vA+2}, v0, 6, 1')
    a(f'    v_lshlrev_b32 v{vA+1}, 1, v{vA+1}')
    a(f'    v_lshl_or_b32 v{vA+1}, v{vA+2}, 2, v{vA+1}')
    a(f'    v_and_b32 v{vA+2}, 7, v0')
    a(f'    v_xor_b32 v{vA+1}, v{vA+1}, v{vA+2}')
    a(f'    v_lshrrev_b32 v{vA+2}, 3, v0')
    a(f'    v_lshlrev_b32 v{vA+2}, 7, v{vA+2}')
    a(f'    v_lshl_add_u32 v{vA+9}, v{vA+1}, 4, v{vA+2}')
    a(f'    v_add_u32 v{vA+9}, {L2_W}, v{vA+9}')
    a(f'    v_lshrrev_b32 v{vA+3}, 4, v{vLANE}     ; g')
    a(f'    v_bfe_u32 v{vA}, v{vLANE}, 2, 2        ; r')
    a(f'    v_lshl_add_u32 v{vA+1}, v{vA+3}, 3, v{vA}')
    a(f'    v_lshlrev_b32 v{vA+1}, 7, v{vA+1}')
    a(f'    v_and_b32 v{vA+2}, 1, v{vLANE}')
    a(f'    v_lshl_add_u32 v{vA+1}, v{vA+2}, 3, v{vA+1}')
    a(f'    v_lshrrev_b32 v{vA}, 1, v{vA}')
    a(f'    v_and_b32 v{vA+2}, 1, v{vA+3}')
    a(f'    v_lshl_or_b32 v{vA}, v{vA+2}, 1, v{vA}     ; swz/2')
    a(f'    s_and_b32 s{sT0}, s{sWAVE}, 3')
    a(f'    v_xor_b32 v{vA}, s{sT0}, v{vA}')
    a(f'    v_bfe_u32 v{vA+2}, v{vLANE}, 1, 1')
    a(f'    v_lshl_or_b32 v{vA}, v{vA}, 1, v{vA+2}')
    a(f'    v_lshl_add_u32 v{vTRA}, v{vA}, 4, v{vA+1}')
    a(f'    v_add_u32 v{vTRA}, {L2_W}, v{vTRA}')
    a(f'    s_lshr_b32 s{sT1}, s{sWAVE}, 2')
    a(f'    s_lshl_b32 s{sT1}, s{sT1}, 4')
    a(f'    v_and_b32 v{vA+2}, 15, v{vLANE}')
    a(f'    v_add_u32 v{vROW}, s{sT1}, v{vA+2}     ; row')
    a(f'    v_mul_u32_u24 v{vA+1}, {XS}, v{vROW}')
    a(f'    v_lshl_add_u32 v{vA+1}, v{vA+3}, 4, v{vA+1}')
    a(f'    v_add_u32 v{vXRA}, {L2_XT}, v{vA+1}')
    a(f'    v_mul_u32_u24 v{vA+4}, {TS}, v{vROW}')
    a(f'    v_lshl_add_u32 v{vA+4}, v{vA+3}, 4, v{vA+4}')
    a(f'    s_lshl_b32 s{sT0}, s{sT0}, 6')
    a(f'    s_add_u32 s{sT0}, s{sT0}, {L2_EAT}')
    a(f'    v_add_u32 v{vEAA}, s{sT0}, v{vA+4}')
    if TPF and PFPOS < 2:
        srd(a, SRD_PF, 6, 7, T_BYTES, off=WS_T)
        a(f'    s_mul_i32 s{sT0}, s{sJ}, {640*128}')
        a(f'    s_mul_i32 s{sT1}, s{sWAVE}, {40*128}')
        a(f'    s_add_u32 s{sJ}, s{sT0}, s{sT1}')
        a(f'    v_lshlrev_b32 v{vA+3}, 7, v{vLANE}')
        a(f'    v_cmp_gt_u32 vcc, {PFN}, v{vLANE}')
        a(f'    v_mov_b32 v{vA+4}, {1<<30}')
        a('    s_nop 0')
        a(f'    v_cndmask_b32 v{vPFA}, v{vA+4}, v{vA+3}, vcc')
    if TPF and PFPOS == 2:
        a(f'    v_mov_b32 v{vA+2}, 1')
        a(f'    s_cmp_ge_u32 s{sWAVE}, {16 - PFW}')
        a('    s_cbranch_scc0 K2_LATER_PASS')
        a(f'    s_waitcnt vmcnt({(PFL // PFW + 63)//64})')
        a('    s_branch K2_RANKS')
    a.label('K2_LATER_PASS')
    a(f'    v_mov_b32 v{vA+2}, 1')
    a('    s_waitcnt vmcnt(0)')
    if TPF and PFPOS == 1:
        a(f'    s_or_b32 s{sT0}, s{sMODE}, s{sPASS}')
        a(f'    s_cmp_eq_u32 s{sT0}, 0')
        a('    s_cbranch_scc0 K2_RANKS')
        a(f'    buffer_load_dword v{vPF}, v{vPFA}, s[{SRD_PF}:{SRD_PF+3}], s{sJ} offen')
    a.label('K2_RANKS')
    stamp(a, 2)
    for r in range(2):
        a(f'    s_cmp_le_u32 s{sNR}, {r}')
        a('    s_cbranch_scc1 K2_RK_DONE')
        d = vR + 4*r
        a(f'    v_and_b32 v{vLA+4*r}, 0xff, v{d+1}')
        a(f'    v_bfe_u32 v{vLA+4*r+1}, v{d+2}, 8, 8')
        a(f'    v_bfe_u32 v{vLA+4*r+2}, v{d+3}, 16, 8')
        a(f'    v_lshrrev_b32 v{vLA+4*r+3}, 24, v{vLC+r}')
        for h in range(4):
            k = 4*r + h
            a(f'    s_mov_b64 exec, s[{sM+2*k}:{sM+2*k+1}]')
            a(f'    ds_add_rtn_u32 v{vRK+k}, v{vLA+k}, v{vA+2} offset:{L2_CNT}')
        a('    s_mov_b64 exec, -1')
        a(f'    v_alignbyte_b32 v{d+1}, v{d+2}, v{d+1}, 1')
        a(f'    v_alignbyte_b32 v{d+2}, v{d+3}, v{d+2}, 2')
        a(f'    v_alignbyte_b32 v{d+3}, v{vLC+r}, v{d+3}, 3')
    a.label('K2_RK_DONE')
    masked(a, f'v_cmp_lt_u32 vcc, 32, v{vCNT}', sEX, 'K2_NOOVF')
    a(f'    v_mov_b32 v{vA+3}, 0')
    a(f'    ds_write_b32 v{vA+3}, v{vA+2} offset:{L2_FLG}')
    unmask(a, sEX, 'K2_NOOVF')
    a(f'    s_or_b32 s{sT0}, s{sMODE}, s{sPASS}')
    a(f'    s_cmp_eq_u32 s{sT0}, 0')
    a('    s_cbranch_scc0 K2_NOWST')
    a(f'    ds_write_b128 v{vA+9}, v[{vW}:{vW+3}]')
    a(f'    s_cmp_lt_u32 s{sWAVE}, 6')
    a('    s_cbranch_scc0 K2_NOXST')
    a(f'    ds_write_b128 v{vA+8}, v[{vXO}:{vXO+3}]')
    a.label('K2_NOXST')
    a(f'    s_mov_b32 s{sT0}, {hex(f2u(-LOG2E))}')
    a(f'    v_and_b32 v{vWC+3}, 0xffff0000, v{vWC+1}')
    a(f'    v_lshlrev_b32 v{vWC+2}, 16, v{vWC+1}')
    a(f'    v_and_b32 v{vWC+1}, 0xffff0000, v{vWC}')
    a(f'    v_lshlrev_b32 v{vWC}, 16, v{vWC}')
    for k in range(4):
        a(f'    v_mul_f32 v{vWC+k}, s{sT0}, v{vWC+k}')
    a.label('K2_NOWST')
    a(f'    v_lshlrev_b32 v{vA+1}, 2, v{vLANE}')
    a(f'    v_mov_b32 v{vA}, 0')
    a('    s_waitcnt lgkmcnt(0)')
    stamp(a, 3)
    a('    s_barrier')
    stamp(a, 4)
    if TPF and PFPOS == 0:
        a(f'    s_or_b32 s{sT0}, s{sMODE}, s{sPASS}')
        a(f'    s_cmp_eq_u32 s{sT0}, 0')
        a('    s_cbranch_scc0 K2_NOPF')
        a(f'    buffer_load_dword v{vPF}, v{vPFA}, s[{SRD_PF}:{SRD_PF+3}], s{sJ} offen')
        a.label('K2_NOPF')
    a(f'    ds_read_b32 v{vNG}, v{vA+1} offset:{L2_CNT}')
    a(f'    ds_read_b32 v{vA+4}, v{vA} offset:{L2_FLG}')
    a('    s_waitcnt lgkmcnt(1)')
    a(f'    v_add_u32 v{vNG}, 3, v{vNG}')
    a(f'    v_lshrrev_b32 v{vNG}, 2, v{vNG}')
    a(f'    v_mov_b32 v{vGE}, v{vNG}')
    dpp_scan(a, vGE)
    a('    s_waitcnt lgkmcnt(0)')
    a(f'    v_readlane_b32 s{sGT}, v{vGE}, {NPB-1}')
    a(f'    v_sub_u32 v{vGS}, v{vGE}, v{vNG}')
    a(f'    v_readfirstlane_b32 s{sT0}, v{vA+4}')
    a(f'    v_lshlrev_b32 v{vA+6}, 4, v{vGS}')
    a(f'    v_cmp_lt_u32 vcc, {NPB}, v{vLANE}')
    a(f'    s_add_u32 s{sR}, s{sGT}, 15')
    a(f'    s_lshr_b32 s{sR}, s{sR}, 4')
    a(f'    v_cndmask_b32 v{vGS}, v{vGS}, -1, vcc')
    a(f'    s_cmp_eq_u32 s{sMODE}, 0')
    a('    s_cbranch_scc0 K2_NOSWITCH')
    a(f'    s_cmp_gt_u32 s{sGT}, {(CAP - 64)//4}')
    a(f'    s_cselect_b32 s{sT1}, 1, 0')
    a(f'    s_or_b32 s{sT0}, s{sT0}, s{sT1}')
    a(f'    s_cmp_eq_u32 s{sT0}, 0')
    a('    s_cbranch_scc1 K2_NOSWITCH')
    a(f'    s_mov_b32 s{sNR}, 0')
    a(f'    s_mov_b32 s{sGT}, 0')
    a(f'    s_mov_b32 s{sR}, 0')
    a(f'    s_mov_b32 s{sMODE}, 2')
    a.label('K2_NOSWITCH')
    for r in range(2):
        a(f'    s_cmp_le_u32 s{sNR}, {r}')
        a('    s_cbranch_scc1 K2_LK_DONE')
        for h in range(4):
            k = 4*r + h
            a(f'    ds_bpermute_b32 v{vB+k}, v{vLA+k}, v{vA+6}')
    a.label('K2_LK_DONE')
    a('    s_waitcnt lgkmcnt(0)')
    for r in range(2):
        a(f'    s_cmp_le_u32 s{sNR}, {r}')
        a('    s_cbranch_scc1 K2_SC_DONE')
        for h in range(4):
            k = 4*r + h
            a(f'    s_mov_b64 exec, s[{sM+2*k}:{sM+2*k+1}]')
            a(f'    v_lshl_add_u32 v{vB+k}, v{vRK+k}, 2, v{vB+k}')
            a(f'    ds_write_b32 v{vB+k}, v{vR+k} offset:{L2_LIST}')
    a.label('K2_SC_DONE')
    a('    s_mov_b64 exec, -1')
    a(f'    s_mul_i32 s{sG0}, s{sR}, s{sWAVE}')
    a(f'    s_add_u32 s{sG1}, s{sG0}, s{sR}')
    a(f'    s_min_u32 s{sG1}, s{sG1}, s{sGT}')
    a(f'    v_lshrrev_b32 v{vSA}, 4, v{vLANE}')
    a(f'    v_lshlrev_b32 v{vSA}, 2, v{vSA}         ; slot*4')
    a(f'    s_lshl_b32 s{sT0}, s{sG0}, 4')
    a(f'    v_add_u32 v{vSA}, s{sT0}, v{vSA}')
    a(f'    v_mov_b32 v{vA}, 0')
    a('    s_waitcnt lgkmcnt(0)')
    a('    s_barrier')
    stamp(a, 5)

    def tload(k):
        d = vDAT + 4*k
        a(f'    buffer_load_dwordx4 v[{d}:{d+3}], v[{vP+2*k}:{vP+2*k+1}], s[{SRD_T}:{SRD_T+3}], 0 idxen offen')

    a(f'    s_cmp_ge_u32 s{sG0}, s{sG1}')
    a('    s_cbranch_scc1 K2_NOGATH')
    for k in range(U):
        a(f'    ds_read_u16 v{vP+2*k}, v{vSA} offset:{L2_LIST + 16*k}')
    a(f'    ds_read_u16_d16_hi v{vEV}, v{vSA} offset:{L2_LIST + 2}')
    a('    s_waitcnt lgkmcnt(0)')
    for k in range(G0N):
        tload(k)
    a(f'    ds_read_u16 v{vP}, v{vSA} offset:{L2_LIST + 16*U}')
    a.label('K2_NOGATH')
    a(f'    s_cmp_eq_u32 s{sPASS}, 0')
    a('    s_cbranch_scc0 K2_NOTAB')
    a(f'    s_cmp_eq_u32 s{sMODE}, 1')
    a('    s_cbranch_scc1 K2_NOTAB')
    a(f'    s_cmp_lt_u32 s{sWAVE}, 12')
    a('    s_cbranch_scc0 K2_NOMFMA')
    a(f'    ds_read_b128 v[{vXO}:{vXO+3}], v{vXRA}')
    a(f'    ds_read_b64_tr_b16 v[{vOP2}:{vOP2+1}], v{vTRA}')
    a(f'    ds_read_b64_tr_b16 v[{vOP2+2}:{vOP2+3}], v{vTRA} offset:{0+512}')
    a(f'    ds_read_b128 v[{vXO+4}:{vXO+7}], v{vXRA} offset:64')
    a(f'    ds_read_b64_tr_b16 v[{vOP2+4}:{vOP2+5}], v{vTRA} offset:{0+4096}')
    a(f'    ds_read_b64_tr_b16 v[{vOP2+6}:{vOP2+7}], v{vTRA} offset:{0+4096+512}')
    a(f'    s_mov_b32 s{sT0}, {hex(f2u(-LOG2E))}')
    a(f'    s_mov_b32 s{sT1}, {hex(f2u(60.0))}')
    a('    s_waitcnt lgkmcnt(3)')
    a(f'    v_mfma_f32_16x16x32_bf16 v[{vAC2}:{vAC2+3}], v[{vOP2}:{vOP2+3}], v[{vXO}:{vXO+3}], 0')
    a('    s_waitcnt lgkmcnt(0)')
    a(f'    v_mfma_f32_16x16x32_bf16 v[{vAC2}:{vAC2+3}], v[{vOP2+4}:{vOP2+7}], v[{vXO+4}:{vXO+7}], v[{vAC2}:{vAC2+3}]')
    a('    s_nop 7')
    for i in range(4):
        a(f'    v_mul_f32 v{vAC2+i}, s{sT0}, v{vAC2+i}')
    for i in range(4):
        a(f'    v_exp_f32 v{vOP2+i}, v{vAC2+i}')
    a(f'    v_max3_f32 v{vA+5}, |v{vAC2}|, |v{vAC2+1}|, |v{vAC2+2}|')
    a(f'    v_max_f32 v{vA+5}, v{vA+5}, |v{vAC2+3}|')
    a(f'    ds_write_b128 v{vEAA}, v[{vOP2}:{vOP2+3}]')
    a(f'    v_cmp_nle_f32 vcc, v{vA+5}, s{sT1}')
    a(f'    v_cmp_gt_u32 s[{sEX}:{sEX+1}], s{sNN}, v{vROW}')
    a(f'    s_and_b64 vcc, vcc, s[{sEX}:{sEX+1}]')
    a(f'    s_and_saveexec_b64 s[{sEX}:{sEX+1}], vcc')
    a('    s_cbranch_execz K2_GUARD_OK')
    a(f'    v_mov_b32 v{vA+5}, 1')
    a(f'    v_mov_b32 v{vA+7}, 0')
    a(f'    ds_write_b32 v{vA+7}, v{vA+5} offset:{L2_FLG+4}')
    unmask(a, sEX, 'K2_GUARD_OK')
    a.label('K2_NOMFMA')
    a(f'    v_mov_b32 v{vA}, 0')
    a('    s_waitcnt lgkmcnt(0)')
    a('    s_barrier')
    a(f'    ds_read_b32 v{vA+5}, v{vA} offset:{L2_FLG+4}')
    a(f'    s_cmp_ge_u32 s{sG0}, s{sG1}')
    a('    s_cbranch_scc1 K2_NOGATH2')
    for k in range(G0N, U):
        tload(k)
    a.label('K2_NOGATH2')
    a(f'    s_cmp_lt_u32 s{sWAVE}, 12')
    a('    s_cbranch_scc0 K2_NOU')
    a(f'    ds_read_b64_tr_b16 v[{vOP2}:{vOP2+1}], v{vTRA} offset:{0+8192}')
    a(f'    ds_read_b64_tr_b16 v[{vOP2+2}:{vOP2+3}], v{vTRA} offset:{0+8192+512}')
    a(f'    ds_read_b64_tr_b16 v[{vOP2+4}:{vOP2+5}], v{vTRA} offset:{0+8192+4096}')
    a(f'    ds_read_b64_tr_b16 v[{vOP2+6}:{vOP2+7}], v{vTRA} offset:{0+8192+4096+512}')
    a('    s_waitcnt lgkmcnt(2)')
    a(f'    v_mfma_f32_16x16x32_bf16 v[{vU}:{vU+3}], v[{vOP2}:{vOP2+3}], v[{vXO}:{vXO+3}], 0')
    a('    s_waitcnt lgkmcnt(0)')
    a(f'    v_mfma_f32_16x16x32_bf16 v[{vU}:{vU+3}], v[{vOP2+4}:{vOP2+7}], v[{vXO+4}:{vXO+7}], v[{vU}:{vU+3}]')
    a(f'    v_mov_b32 v{vUA}, v{vEAA}')
    a.label('K2_NOU')
    a('    s_waitcnt lgkmcnt(0)')
    a(f'    v_readfirstlane_b32 s{sSAFE}, v{vA+5}')
    a('    s_nop 0')
    a(f'    s_cmp_eq_u32 s{sSAFE}, 0')
    a('    s_cbranch_scc1 K2_WAITW')
    a('    s_barrier')
    a(f'    s_cmp_lt_u32 s{sWAVE}, 12')
    a('    s_cbranch_scc0 K2_SAFE_NOW')
    a(f'    ds_write_b128 v{vEAA}, v[{vAC2}:{vAC2+3}]')
    a.label('K2_SAFE_NOW')
    a('    s_waitcnt lgkmcnt(0)')
    a('    s_barrier')
    a.label('K2_WAITW')
    a('    s_branch K2_TABDONE')
    a.label('K2_NOTAB')
    a(f'    s_cmp_ge_u32 s{sG0}, s{sG1}')
    a('    s_cbranch_scc1 K2_TABDONE')
    for k in range(G0N, U):
        tload(k)
    a.label('K2_TABDONE')
    dstamp(a, 1)
    a(f'    v_cvt_f32_u32 v{vA}, s{sR}')
    a(f'    v_cvt_f32_u32 v{vA+1}, v{vGS}')
    a(f'    v_rcp_f32 v{vA}, v{vA}')
    a(f'    v_cvt_f32_u32 v{vA+2}, v{vGE}')
    a(f'    v_add_f32 v{vA+1}, 0.5, v{vA+1}')
    a(f'    v_add_f32 v{vA+2}, -0.5, v{vA+2}')
    a(f'    v_mul_f32 v{vA+1}, v{vA+1}, v{vA}')
    a(f'    v_mul_f32 v{vA+2}, v{vA+2}, v{vA}')
    a(f'    v_cvt_u32_f32 v{vA+1}, v{vA+1}          ; wlo')
    a(f'    v_cvt_u32_f32 v{vA+2}, v{vA+2}          ; whi')
    a(f'    v_sub_u32 v{vA+2}, v{vA+2}, v{vA+1}')
    a(f'    v_add_u32 v{vA+2}, 1, v{vA+2}')
    a(f'    v_cmp_eq_u32 vcc, 0, v{vNG}')
    a(f'    v_add_u32 v{vA+1}, v{vA+1}, v{vLANE}')
    a(f'    v_and_b32 v{vA+1}, 0xffff, v{vA+1}')
    a(f'    v_cndmask_b32 v{vA+2}, v{vA+2}, 0, vcc')
    a(f'    v_lshl_or_b32 v{vA+3}, v{vA+2}, 16, v{vA+1}')
    a(f'    v_lshrrev_b32 v{vA}, 4, v0')
    a(f'    v_and_b32 v{vA+4}, 63, v{vA}')
    a(f'    v_lshlrev_b32 v{vA+4}, 2, v{vA+4}')
    a(f'    ds_bpermute_b32 v{vA+1}, v{vA+4}, v{vA+3}')
    a(f'    v_mul_u32_u24 v{vUTA}, {TS}, v{vA}')
    a(f'    v_mul_u32_u24 v{vXTA}, {XS}, v{vA}')
    a(f'    v_lshrrev_b32 v{vA+7}, 1, v{vQ16}')
    a(f'    v_add_u32 v{vUTA}, v{vUTA}, v{vQ16}')
    a(f'    v_add_u32 v{vXTA}, v{vXTA}, v{vA+7}')
    a(f'    v_add_u32 v{vUTA}, {L2_UT}, v{vUTA}')
    a(f'    v_add_u32 v{vXTA}, {L2_XT}, v{vXTA}')
    a(f'    s_lshl_b32 s{sNT}, s{sNN}, 4')
    a(f'    v_cmp_gt_u32 vcc, s{sNT}, v0')
    a('    s_waitcnt lgkmcnt(0)')
    a(f'    v_lshrrev_b32 v{vFC}, 16, v{vA+1}')
    a(f'    v_and_b32 v{vA+1}, 0xffff, v{vA+1}')
    a(f'    v_cndmask_b32 v{vFC}, 0, v{vFC}, vcc')
    a(f'    v_lshl_add_u32 v{vFS}, v{vA+1}, 9, v{vQ16}')
    a(f'    v_cmp_lt_u32 s[{sM}:{sM+1}], 0, v{vFC}')
    a(f'    v_cmp_lt_u32 s[{sM+2}:{sM+3}], 1, v{vFC}')
    a(f'    v_cmp_lt_u32 s[{sM+4}:{sM+5}], 2, v{vFC}')
    a(f'    s_cmp_ge_u32 s{sG0}, s{sG1}')
    a('    s_cbranch_scc1 K2_MAIN_DONE')
    if PRIO:
        a(f'    s_add_u32 s{sT0}, s{sR}, 3')
        a(f'    s_lshr_b32 s{sT0}, s{sT0}, 2            ; iterations')
        for n, reg in zip(PRT, (sPR, sPQ, sPQ2)):
            a(f'    s_mul_i32 s{reg}, s{sT0}, {n}')
            a(f'    s_lshr_b32 s{reg}, s{reg}, 4')
            a(f'    s_add_u32 s{reg}, s{reg}, 1')
        a(f'    s_mov_b32 s{sLVL}, 3')
        a('    s_setprio 3')
    a(f'    s_mov_b32 s{sGEND}, s{sG0}')
    a(f'    s_mov_b32 s{sEAB}, {L2_EAT}')
    a(f'    s_cmp_eq_u32 s{sSAFE}, 0')
    a('    s_cbranch_scc0 K2S_ENTER')
    a('    s_branch K2F_ENTER')

    def next_node():
        a(f'    v_cmp_ge_u32 vcc, s{sGEND}, v{vGS}')
        a(f'    s_bcnt1_i32_b64 s{sT0}, vcc')
        a(f'    s_sub_u32 s{sNODE}, s{sT0}, 1')
        a(f'    v_readlane_b32 s{sT1}, v{vGS}, s{sT0}')
        a(f'    s_mul_i32 s{sT0}, s{sNODE}, {TS}')
        a(f'    s_add_u32 s{sT0}, s{sT0}, s{sEAB}')
        a(f'    v_add_u32 v{vEAA}, s{sT0}, v{vQ16}')
        a(f'    ds_read_b128 v[{vEA}:{vEA+3}], v{vEAA}')
        a(f'    s_min_u32 s{sT1}, s{sT1}, s{sG1}')
        a(f'    s_sub_u32 s{sLEFT}, s{sT1}, s{sGEND}')
        a(f'    s_sub_u32 s{sLEFT}, s{sLEFT}, 1')
        a(f'    s_mov_b32 s{sGEND}, s{sT1}')

    def set_slot():
        a(f'    s_add_u32 s{sSLOT}, s{sNODE}, s{sWAVE}')
        a(f'    s_lshl_b32 s{sSLOT}, s{sSLOT}, 9')

    def flush():
        a(f'    v_add_u32 v{vACC}, s{sSLOT}, v{vFL}')
        for i in range(4):
            a(f'    v_permlane32_swap_b32 v{vDEN+i}, v{vNUM+i}')
        a(f'    v_pk_add_f32 v[{vDEN}:{vDEN+1}], v[{vDEN}:{vDEN+1}], v[{vNUM}:{vNUM+1}]')
        a(f'    v_pk_add_f32 v[{vDEN+2}:{vDEN+3}], v[{vDEN+2}:{vDEN+3}], v[{vNUM+2}:{vNUM+3}]')
        a('    s_nop 1')
        a(f'    v_permlane16_swap_b32 v{vDEN}, v{vDEN+2}')
        a(f'    v_permlane16_swap_b32 v{vDEN+1}, v{vDEN+3}')
        a(f'    v_pk_add_f32 v[{vNUM}:{vNUM+1}], v[{vDEN}:{vDEN+1}], v[{vDEN+2}:{vDEN+3}]')
        a(f'    ds_write_b64 v{vACC}, v[{vNUM}:{vNUM+1}] offset:{L2_SLOT}')

    def step(k, safe, init):
        d = vDAT + 4*k
        ev = vEV + (k & 1); evn = vEV + ((k+1) & 1)
        pn = vP + 2*((k+1) % U)
        for i in range(4):
            a(f'    v_fma_mix_f32 v{vT+i}, v{ev}, v{vWC+i}, v{d+i} op_sel:[0,0,0] op_sel_hi:[0,0,1]')
        a(f'    ds_read_u16_d16_hi v{evn}, v{vSA} offset:{L2_LIST + 16*(k+1) + 2}')
        a(f'    ds_read_u16 v{pn}, v{vSA} offset:{L2_LIST + 16*(k+1+U)}')
        if init and safe:
            a('    s_waitcnt lgkmcnt(3)')
        if safe:
            a(f'    v_pk_add_f32 v[{vT}:{vT+1}], v[{vT}:{vT+1}], v[{vEA}:{vEA+1}]')
            a(f'    v_pk_add_f32 v[{vT+2}:{vT+3}], v[{vT+2}:{vT+3}], v[{vEA+2}:{vEA+3}]')
        for i in range(4):
            a(f'    v_exp_f32 v{vT+i}, v{vT+i}')
        if init and not safe:
            a('    s_waitcnt lgkmcnt(3)')
        if safe:
            a(f'    v_pk_add_f32 v[{vT}:{vT+1}], v[{vT}:{vT+1}], 1.0 op_sel_hi:[1,0]')
            a(f'    v_pk_add_f32 v[{vT+2}:{vT+3}], v[{vT+2}:{vT+3}], 1.0 op_sel_hi:[1,0]')
        else:
            a(f'    v_pk_fma_f32 v[{vT}:{vT+1}], v[{vEA}:{vEA+1}], v[{vT}:{vT+1}], 1.0 op_sel_hi:[1,1,0]')
            a(f'    v_pk_fma_f32 v[{vT+2}:{vT+3}], v[{vEA+2}:{vEA+3}], v[{vT+2}:{vT+3}], 1.0 op_sel_hi:[1,1,0]')
        if init:
            for i in range(4):
                a(f'    v_rcp_f32 v{vDEN+i}, v{vT+i}')
            a('    s_nop 0')
            a(f'    v_pk_mul_f32 v[{vNUM}:{vNUM+1}], v[{vDEN}:{vDEN+1}], v[{d}:{d+1}]')
            a(f'    v_pk_mul_f32 v[{vNUM+2}:{vNUM+3}], v[{vDEN+2}:{vDEN+3}], v[{d+2}:{d+3}]')
        else:
            for i in range(4):
                a(f'    v_rcp_f32 v{vT+i}, v{vT+i}')
            a(f'    v_pk_add_f32 v[{vDEN}:{vDEN+1}], v[{vDEN}:{vDEN+1}], v[{vT}:{vT+1}]')
            a(f'    v_pk_add_f32 v[{vDEN+2}:{vDEN+3}], v[{vDEN+2}:{vDEN+3}], v[{vT+2}:{vT+3}]')
            a(f'    v_pk_fma_f32 v[{vNUM}:{vNUM+1}], v[{vT}:{vT+1}], v[{d}:{d+1}], v[{vNUM}:{vNUM+1}]')
            a(f'    v_pk_fma_f32 v[{vNUM+2}:{vNUM+3}], v[{vT+2}:{vT+3}], v[{d+2}:{d+3}], v[{vNUM+2}:{vNUM+3}]')
        tload(k)
        if k == U-1:
            a(f'    v_add_u32 v{vSA}, {16*U}, v{vSA}')

    def loopback(pfx):
        if PRIO:
            a(f'    s_sub_u32 s{sPR}, s{sPR}, 1')
            a(f'    s_cmp_lg_u32 s{sPR}, 0')
            a(f'    s_cbranch_scc1 {pfx}_STEP0')
            a(f'    s_branch {pfx}_PRIO')
        else:
            a(f'    s_branch {pfx}_STEP0')

    for pfx, safe in (('K2F', False), ('K2S', True)):
        a.label(f'{pfx}_ENTER')
        next_node()
        set_slot()
        a('    s_waitcnt vmcnt(3) lgkmcnt(0)')
        dstamp(a, 2)
        step(0, safe, True)
        a(f'    s_branch {pfx}_STEP1')
        for k in range(U):
            a.label(f'{pfx}_STEP{k}')
            a(f'    s_waitcnt vmcnt({U-1}) lgkmcnt(0)')
            a(f'    s_sub_u32 s{sLEFT}, s{sLEFT}, 1')
            a(f'    s_cbranch_scc1 {pfx}_FLUSH{k}')
            step(k, safe, False)
            if k == U-1:
                loopback(pfx)
        for k in range(U):
            a.label(f'{pfx}_FLUSH{k}')
            a(f'    s_cmp_ge_u32 s{sGEND}, s{sG1}')
            a(f'    s_cbranch_scc1 K2_LAST')
            next_node()
            flush()
            set_slot()
            step(k, safe, True)
            if k == U-1:
                loopback(pfx)
            else:
                a(f'    s_branch {pfx}_STEP{k+1}')
        if PRIO:
            a.label(f'{pfx}_PRIO')
            a(f'    s_sub_u32 s{sLVL}, s{sLVL}, 1')
            a(f'    s_cmp_eq_u32 s{sLVL}, 2')
            a(f'    s_cbranch_scc1 {pfx}_PRIO2')
            a(f'    s_cmp_eq_u32 s{sLVL}, 1')
            a(f'    s_cbranch_scc1 {pfx}_PRIO1')
            a(f'    s_mov_b32 s{sPR}, 0x7fffffff')
            a('    s_setprio 0')
            a(f'    s_branch {pfx}_STEP0')
            a.label(f'{pfx}_PRIO2')
            a(f'    s_mov_b32 s{sPR}, s{sPQ}')
            a('    s_setprio 2')
            a(f'    s_branch {pfx}_STEP0')
            a.label(f'{pfx}_PRIO1')
            a(f'    s_mov_b32 s{sPR}, s{sPQ2}')
            a('    s_setprio 1')
            a(f'    s_branch {pfx}_STEP0')
    a.label('K2_LAST')
    dstamp(a, 3)
    flush()
    a.label('K2_MAIN_DONE')
    if PRIO: a('    s_setprio 0')
    a(f'    s_cmp_eq_u32 s{sPASS}, 0')
    a('    s_cbranch_scc0 K2_NOUST')
    a(f'    s_cmp_eq_u32 s{sMODE}, 1')
    a('    s_cbranch_scc1 K2_NOUST')
    a(f'    s_cmp_lt_u32 s{sWAVE}, 12')
    a('    s_cbranch_scc0 K2_NOUST')
    a(f'    ds_write_b128 v{vUA}, v[{vU}:{vU+3}] offset:{L2_UT-L2_EAT}')
    a.label('K2_NOUST')
    a(f'    s_cmp_eq_u32 s{sMODE}, 2')
    a('    s_cbranch_scc0 K2_NOABORT')
    a(f'    s_mov_b32 s{sMODE}, 1')
    a(f'    s_mov_b32 s{sPASS}, 0')
    a('    s_waitcnt vmcnt(0) lgkmcnt(0)')
    a('    s_barrier')
    a('    s_branch K2_PASS')
    a.label('K2_NOABORT')
    a('    s_waitcnt lgkmcnt(0)')
    stamp(a, 6)
    a('    s_barrier')
    S0 = 76; S1 = 84; UU = 92; XX = 104
    a(f'    s_mov_b64 exec, s[{sM}:{sM+1}]')
    a(f'    ds_read_b128 v[{S0}:{S0+3}], v{vFS} offset:{L2_SLOT}')
    a(f'    ds_read_b128 v[{S0+4}:{S0+7}], v{vFS} offset:{L2_SLOT+256}')
    a(f'    s_mov_b64 exec, s[{sM+2}:{sM+3}]')
    a(f'    ds_read_b128 v[{S1}:{S1+3}], v{vFS} offset:{L2_SLOT+512}')
    a(f'    ds_read_b128 v[{S1+4}:{S1+7}], v{vFS} offset:{L2_SLOT+512+256}')
    a('    s_mov_b64 exec, -1')
    a(f'    ds_read_b128 v[{UU}:{UU+3}], v{vUTA}')
    a(f'    ds_read_b64 v[{XX}:{XX+1}], v{vXTA}')
    a(f'    s_mov_b64 exec, s[{sM}:{sM+1}]')
    a('    s_waitcnt lgkmcnt(4)')
    for b, acc in ((S0, vDA), (S0+2, vDA+2), (S0+4, vNA), (S0+6, vNA+2)):
        a(f'    v_pk_add_f32 v[{acc}:{acc+1}], v[{acc}:{acc+1}], v[{b}:{b+1}]')
    a(f'    s_mov_b64 exec, s[{sM+2}:{sM+3}]')
    a('    s_waitcnt lgkmcnt(2)')
    for b, acc in ((S1, vDA), (S1+2, vDA+2), (S1+4, vNA), (S1+6, vNA+2)):
        a(f'    v_pk_add_f32 v[{acc}:{acc+1}], v[{acc}:{acc+1}], v[{b}:{b+1}]')
    a('    s_mov_b64 exec, -1')
    a(f'    s_cmp_eq_u64 s[{sM+4}:{sM+5}], 0')
    a('    s_cbranch_scc1 K2_FOLD_END')
    a(f'    v_add_u32 v{vFS}, 1024, v{vFS}')
    a(f'    v_add_u32 v{vFC}, -2, v{vFC}')
    a.label('K2_FOLD')
    masked(a, f'v_cmp_lt_i32 vcc, 0, v{vFC}', sEX, 'K2_FOLD_DONE')
    a(f'    ds_read_b128 v[{S0}:{S0+3}], v{vFS} offset:{L2_SLOT}')
    a(f'    ds_read_b128 v[{S0+4}:{S0+7}], v{vFS} offset:{L2_SLOT+256}')
    a(f'    v_add_u32 v{vFS}, 512, v{vFS}')
    a(f'    v_add_u32 v{vFC}, -1, v{vFC}')
    a('    s_waitcnt lgkmcnt(0)')
    for b, acc in ((S0, vDA), (S0+2, vDA+2), (S0+4, vNA), (S0+6, vNA+2)):
        a(f'    v_pk_add_f32 v[{acc}:{acc+1}], v[{acc}:{acc+1}], v[{b}:{b+1}]')
    unmask(a, sEX)
    a('    s_branch K2_FOLD')
    unmask(a, sEX, 'K2_FOLD_DONE')
    a.label('K2_FOLD_END')
    a(f'    s_cmp_eq_u32 s{sMODE}, 0')
    a('    s_cbranch_scc1 K2_EPI')
    a(f'    s_add_u32 s{sPASS}, s{sPASS}, 1')
    a(f'    s_cmp_lt_u32 s{sPASS}, {NC}')
    a('    s_cbranch_scc0 K2_EPI')
    a('    s_waitcnt vmcnt(0) lgkmcnt(0)')
    a('    s_barrier')
    a('    s_branch K2_PASS')
    a.label('K2_EPI')
    masked(a, f'v_cmp_gt_u32 vcc, s{sNT}, v0', sEX, 'K2_FIN')
    a(f'    s_mov_b32 s{sT0}, {hex(f2u(1e-6))}')
    for i in range(4):
        a(f'    v_add_f32 v{vDA+i}, s{sT0}, v{vDA+i}')
    for i in range(4):
        a(f'    v_rcp_f32 v{vDA+i}, v{vDA+i}')
    a('    s_waitcnt lgkmcnt(0)')
    a(f'    v_lshlrev_b32 v{vT}, 16, v{XX}')
    a(f'    v_and_b32 v{vT+1}, 0xffff0000, v{XX}')
    a(f'    v_lshlrev_b32 v{vT+2}, 16, v{XX+1}')
    a(f'    v_and_b32 v{vT+3}, 0xffff0000, v{XX+1}')
    for i in range(4):
        a(f'    v_fma_f32 v{vNA+i}, v{vNA+i}, v{vDA+i}, v{UU+i}    ; z = U + agg')
    for i in range(4):
        a(f'    v_cmp_lt_f32 s[{sM+2*i}:{sM+2*i+1}], 0, v{vNA+i}')
    for i in range(4):
        a(f'    v_mul_f32 v{vDEN+i}, 0, v{vNA+i}                     ; 0*z')
    for i in range(4):
        a(f'    v_cndmask_b32 v{vNA+i}, v{vDEN+i}, v{vNA+i}, s[{sM+2*i}:{sM+2*i+1}]')
    for i in range(4):
        a(f'    v_add_f32 v{vNA+i}, v{vNA+i}, v{vT+i}')
    a(f'    s_lshl_b32 s{sT1}, s{sN0}, 7')
    a(f'    v_lshlrev_b32 v{vA+1}, 3, v0')
    a(f'    v_cvt_pk_bf16_f32 v{vDEN}, v{vNA}, v{vNA+1}')
    a(f'    v_cvt_pk_bf16_f32 v{vDEN+1}, v{vNA+2}, v{vNA+3}')
    a(f'    buffer_store_dwordx2 v[{vDEN}:{vDEN+1}], v{vA+1}, s[{SRD_OUT}:{SRD_OUT+3}], s{sT1} offen {OUTST}')
    a.label('K2_FIN')
    if STAMP:
        a('    s_mov_b64 exec, -1')
        a('    s_waitcnt vmcnt(0)')
    stamp(a, 7); stamp(a, 1, True)
    stamp_flush(a, sWAVE, sB, 1, 6)
    a.label('K2_END')
    a('    s_endpgm')
    a.label('CODE_END')

def gen_k3(a):
    i, j = [int(x) for x in env('INTERVAL', '0,0').split(',')]
    inv = {0: True, 2: True}
    a('.globl k3_kernel')
    a('.p2align 8')
    a('.type k3_kernel,@function')
    a.label('k3_kernel')
    a('    s_cmp_ge_u32 s2, 1')
    a('    s_cbranch_scc1 K3_END')
    a('    s_load_dwordx2 s[4:5], s[0:1], 80')
    a('    s_waitcnt lgkmcnt(0)')
    a('    v_mov_b32 v1, 0')
    a(f'    global_load_dword v2, v1, s[4:5] offset:{4*i} sc1')
    a(f'    global_load_dword v3, v1, s[4:5] offset:{4*j} sc1')
    a('    s_waitcnt vmcnt(0)')
    if inv.get(i): a('    v_not_b32 v2, v2')
    if inv.get(j): a('    v_not_b32 v3, v3')
    a('    v_sub_u32 v3, v3, v2')
    a('    s_nop 1')
    a('    v_readfirstlane_b32 s8, v3')
    a('    s_nop 3')
    a('    s_mul_i32 s8, s8, 10')
    a('    s_min_u32 s8, s8, 50000')
    a('    s_memrealtime s[10:11]')
    a('    s_waitcnt lgkmcnt(0)')
    a.label('K3_SPIN')
    a('    s_memrealtime s[12:13]')
    a('    s_waitcnt lgkmcnt(0)')
    a('    s_sub_u32 s9, s12, s10')
    a('    s_cmp_lt_u32 s9, s8')
    a('    s_cbranch_scc1 K3_SPIN')
    a.label('K3_END')
    a('    s_endpgm')

def kd(a, name, vgpr, sgpr):
    a(f'.amdhsa_kernel {name}')
    a(f'  .amdhsa_next_free_vgpr {vgpr}')
    a(f'  .amdhsa_next_free_sgpr {sgpr}')
    a(f'  .amdhsa_accum_offset {((vgpr+3)//4)*4}')
    a('  .amdhsa_group_segment_fixed_size 0')
    a('  .amdhsa_kernarg_size 96')
    a('  .amdhsa_user_sgpr_count 2')
    a('  .amdhsa_user_sgpr_kernarg_segment_ptr 1')
    a('  .amdhsa_system_sgpr_workgroup_id_x 1')
    a('  .amdhsa_float_denorm_mode_32 3')
    a('.end_amdhsa_kernel')

def main(out):
    a = Asm()
    a(f'; @launch kernel=k1_kernel grid=({K1_GRID},1,1) block=(1024,1,1) lds={K1_LDS}')
    a(f'; @launch kernel=k2_kernel grid=({NB},1,1) block=(1024,1,1) lds={K2_LDS}')
    if STAMP == 4: a('; @launch kernel=k3_kernel grid=(1,1,1) block=(64,1,1) lds=0')
    a('.amdgcn_target "amdgcn-amd-amdhsa--gfx950"')
    a('.text')
    a('.globl k1_kernel')
    gen_k1(a)
    a('.globl k2_kernel')
    gen_k2(a)
    if STAMP == 4: gen_k3(a)
    a('.section .rodata,"a"')
    a('.p2align 6')
    kd(a, 'k1_kernel', 96, 102 if STAMP else 72)
    a('.p2align 6')
    kd(a, 'k2_kernel', 128, 102 if STAMP else 80)
    if STAMP == 4:
        a('.p2align 6')
        kd(a, 'k3_kernel', 8, 32)
    a.l = [x for x in a.l if x is not None]
    open(out, 'w').write(a.text())

if __name__ == '__main__':
    main(sys.argv[1] if len(sys.argv) > 1 else 'standalone__edge_featured_mpnn_gatedgcn__graph.s')
```

```python
import sys, os, struct
def env(n, d): return os.environ.get(n, d)

N = 10000; E = 640000
NPB = 40; NB = 256; EPC = 2500; NC = 256
TPC = EPC//4
BMAGIC = 109951163
LOG2E = 1.4426950408889634
WS_REC  = 0
REC_STRIDE = EPC*5
WS_DESC = 3407872
DESC_STRIDE = 1024
WS_T    = 4194304
T_BYTES = (N+1)*256

STAMP = int(env('STAMP', '0'))
K1ST = env('K1ST', 'sc1')
PRIO = int(env('PRIO', '1'))
TFIRST = int(env('TFIRST', '1'))
WS_STAMP = 128 << 20
ST0 = 80

def f2u(f): return struct.unpack('<I', struct.pack('<f', f))[0]

class Asm:
    def __init__(self): self.l = []
    def __call__(self, s=''):
        for line in s.split('\n'): self.l.append(line)
    def label(self, n): self.l.append(n + ':')
    def text(self): return '\n'.join(self.l) + '\n'

DETAIL = int(env('DETAIL', '0'))
def dstamp(a, i):
    if DETAIL: stamp(a, i, False, True)
def stamp(a, i, real=False, force=False):
    if DETAIL and not force and not real and getattr(a, 'k2', False) and i in (1, 2, 3): return
    if STAMP:
        r = ST0 + 2*(8+i if real else i)
        a(f"    {'s_memrealtime' if (real or STAMP >= 3) else 's_memtime'} s[{r}:{r+1}]")
def stamp_flush(a, wave_sgpr, wg_sgpr, kern, ws_lo):
    if not STAMP: return
    a('    s_waitcnt lgkmcnt(0)')
    a('    s_mov_b64 exec, 1')
    a('    v_mov_b32 v2, 0')
    if STAMP == 4:
        lab = f'STSKIP{kern}_{len(a.l)}'
        a(f"    s_and_b32 s14, s{wg_sgpr}, {31 if kern == 0 else int(env('SAMP2', '31'))}")
        a('    s_cmp_eq_u32 s14, 0')
        a(f'    s_cbranch_scc0 {lab}')
        a(f'    s_cmp_eq_u32 s{wave_sgpr}, 0')
        a(f'    s_cbranch_scc0 {lab}')
        a('    s_load_dwordx2 s[12:13], s[0:1], 80')
        a('    s_waitcnt lgkmcnt(0)')
        a(f'    s_add_u32 s12, s12, {1024 if kern == 0 else 512}')
        a('    s_addc_u32 s13, s13, 0')
        slots = [(0, 8, True), (1, 9, False), (7, 4, False), (8, 2, False)] if kern == 0 else \
                [(2, 8, True), (3, 4, False), (4, 5, False), (5, 6, False), (6, 9, False), (9, 2, False)]
        for slot, st, inv in slots:
            a(f'    v_mov_b32 v3, s{ST0+2*st}')
            if inv: a('    v_not_b32 v3, v3')
            a(f'    global_atomic_umax v2, v3, s[12:13] offset:{4*slot}')
        a('    s_waitcnt vmcnt(0)')
        a.label(lab)
        return
    a(f'    s_add_u32 s12, s{ws_lo}, {WS_STAMP + kern*(4<<20)}')
    a(f'    s_addc_u32 s13, s{ws_lo+1}, 0')
    a(f'    s_mov_b32 s14, {4<<20}')
    a('    s_mov_b32 s15, 0x00020000')
    a(f'    s_lshl_b32 s16, s{wg_sgpr}, 4')
    a(f'    s_add_u32 s16, s16, s{wave_sgpr}')
    a(f'    s_lshl_b32 s16, s16, 6')
    for i in range(8):
        a(f'    v_mov_b32 v3, s{ST0+2*i}')
        a(f'    buffer_store_dword v3, v2, s[12:15], s16 offen offset:{4*i}')
    for i in range(2):
        a(f'    v_mov_b32 v3, s{ST0+2*(8+i)}')
        a(f'    buffer_store_dword v3, v2, s[12:15], s16 offen offset:{4*(10+i)}')
    a('    s_waitcnt vmcnt(0)')

def srd(a, sreg, lo, hi, nbytes, off=0, stride=0, nrec=None):
    if off:
        a(f'    s_add_u32 s{sreg}, s{lo}, {off}')
        a(f'    s_addc_u32 s{sreg+1}, s{hi}, 0')
    else:
        a(f'    s_mov_b32 s{sreg}, s{lo}')
        a(f'    s_mov_b32 s{sreg+1}, s{hi}')
    if stride:
        a(f'    s_and_b32 s{sreg+1}, s{sreg+1}, 0xffff')
        a(f'    s_or_b32 s{sreg+1}, s{sreg+1}, {stride << 16}')
        a(f'    s_mov_b32 s{sreg+2}, {nrec}')
    else:
        a(f'    s_mov_b32 s{sreg+2}, {nbytes}')
    a(f'    s_mov_b32 s{sreg+3}, 0x00020000')

def dpp_scan(a, v):
    for sh in (1, 2, 4, 8):
        a('    s_nop 1')
        a(f'    v_add_u32_dpp v{v}, v{v}, v{v} row_shr:{sh} row_mask:0xf bank_mask:0xf')
    a('    s_nop 1')
    a(f'    v_add_u32_dpp v{v}, v{v}, v{v} row_bcast:15 row_mask:0xa bank_mask:0xf')
    a('    s_nop 1')
    a(f'    v_add_u32_dpp v{v}, v{v}, v{v} row_bcast:31 row_mask:0xc bank_mask:0xf')

def masked(a, cond, exreg, skip=None):
    a(f'    {cond}')
    a(f'    s_and_saveexec_b64 s[{exreg}:{exreg+1}], vcc')
    if skip: a(f'    s_cbranch_execz {skip}')
def unmask(a, exreg, skip=None):
    if skip: a.label(skip)
    a(f'    s_mov_b64 exec, s[{exreg}:{exreg+1}]')

def lds_sync(a, name, off, n, vzero, vone, vt, st):
    a('    s_waitcnt lgkmcnt(0)')
    a('    s_mov_b64 exec, 1')
    a(f'    ds_add_u32 v{vzero}, v{vone} offset:{off}')
    a('    s_mov_b64 exec, -1')
    a.label(name)
    a(f'    ds_read_b32 v{vt}, v{vzero} offset:{off}')
    a('    s_waitcnt lgkmcnt(0)')
    a(f'    v_readfirstlane_b32 s{st}, v{vt}')
    a(f'    s_cmp_lt_u32 s{st}, {n}')
    a(f'    s_cbranch_scc1 {name}')

K1_GRID = NC
L1_HIST = 0; L1_START = 1024; L1_SYNC = 2048
L1_ST32 = 2304; L1_ST8 = L1_ST32 + 2560*4; L1_W = 15360
K1_LDS = L1_W + 16384
K1PF = int(env('K1PF', '0'))
CPF = int(env('CPF', '1'))
XMAP = int(env('XMAP', '1'))
DESCT = int(env('DESCT', '1'))
DESCST = env('DESCST', '')
OUTST = env('OUTST', '')
RECST = env('RECST', K1ST)
TST = env('TST', K1ST)
TFIRST = int(env('TFIRST', '1'))

def gen_k1(a):
    a('.p2align 8')
    a('.type k1_kernel,@function')
    a.label('k1_kernel')
    a(f'    s_cmp_ge_u32 s2, {K1_GRID}')
    a('    s_cbranch_scc1 K1_END')
    stamp(a, 0); stamp(a, 0, True)
    if CPF:
        a('    s_getpc_b64 s[30:31]')
        a.label('K1_PC')
        a('    v_lshlrev_b32 v90, 7, v0')
        lim = 'CODE_END-K1_PC' if CPF >= 2 else 'k2_kernel-K1_PC'
        a(f'    v_cmp_gt_u32 vcc, {lim}, v90')
        a('    s_and_saveexec_b64 s[28:29], vcc')
        a('    s_cbranch_execz K1_NOCPF')
        a('    global_load_dword v91, v90, s[30:31]')
        a.label('K1_NOCPF')
        a('    s_mov_b64 exec, s[28:29]')
    if XMAP:
        a('    s_and_b32 s20, s2, 7')
        a('    s_lshr_b32 s21, s2, 3')
        a('    s_lshl_b32 s20, s20, 5')
        a('    s_add_u32 s2, s20, s21')
    a('    v_lshrrev_b32 v1, 6, v0')
    a('    s_load_dwordx4 s[8:11], s[0:1], 16')
    a('    v_readfirstlane_b32 s20, v1')
    a('    s_load_dwordx2 s[4:5], s[0:1], 8      ; e_attr')
    a('    s_load_dwordx2 s[6:7], s[0:1], 88     ; ws')
    a('    v_and_b32 v2, 63, v0                   ; lane')
    if TFIRST:
        a('    s_cmp_lt_u32 s20, 6')
        a('    s_cbranch_scc1 K1_TABLE')
        a('    v_subrev_u32 v0, 384, v0')
        a('    s_sub_u32 s20, s20, 6')
    else:
        a('    s_cmp_ge_u32 s20, 10')
        a('    s_cbranch_scc1 K1_TABLE')
    a('    v_mov_b32 v5, 0')
    a('    v_lshlrev_b32 v6, 2, v0               ; t*4')
    masked(a, 'v_cmp_gt_u32 vcc, 256, v0', 30)
    a(f'    ds_write_b32 v6, v5 offset:{L1_HIST}')
    unmask(a, 30)
    a('    v_lshlrev_b32 v3, 4, v0               ; t*16')
    a('    v_lshlrev_b32 v4, 3, v0               ; t*8')
    a(f'    s_mul_i32 s21, s2, {EPC*4}')
    a(f'    s_mul_i32 s22, s2, {EPC*2}')
    a(f'    s_mov_b32 s23, {BMAGIC}')
    a(f'    v_mov_b32 v19, {TPC}')
    a('    v_cmp_gt_u32 s[46:47], v19, v0')
    a('    s_waitcnt lgkmcnt(0)')
    srd(a, 12, 10, 11, E*4)
    a('    buffer_load_dwordx4 v[8:11], v3, s[12:15], s21 offen     ; dst x4')
    srd(a, 16, 8, 9, E*4)
    a('    buffer_load_dwordx4 v[12:15], v3, s[16:19], s21 offen    ; src x4')
    srd(a, 24, 4, 5, E*2)
    a('    buffer_load_dwordx2 v[16:17], v4, s[24:27], s22 offen')
    srd(a, 32, 6, 7, NC*REC_STRIDE, off=WS_REC)
    srd(a, 36, 6, 7, NB*DESC_STRIDE, off=WS_DESC)
    a('    v_lshlrev_b32 v6, 4, v2                ; lane*16')
    a('    v_mul_u32_u24 v7, 20, v0')
    a('    v_lshlrev_b32 v18, 12, v2')
    a(f'    s_mul_i32 s25, s2, {REC_STRIDE}')
    a('    s_lshl_b32 s26, s2, 2')
    a('    s_mov_b32 s40, 0x06050400')
    a('    s_mov_b32 s41, 0x05040003')
    a('    s_mov_b32 s42, 0x03020500')
    a('    s_mov_b32 s43, 0x04000302')
    a('    s_mov_b32 s44, 0x03060100')
    a('    s_mov_b32 s45, 0x07030201')
    stamp(a, 1)
    a('    s_barrier')
    a('    v_mov_b32 v5, 1')
    a('    v_mov_b32 v19, 0')
    a('    s_waitcnt vmcnt(2)')
    stamp(a, 2)
    for k in range(4):
        a(f'    v_mul_hi_u32 v{20+k}, s23, v{8+k}        ; bucket')
    for k in range(4):
        a(f'    v_lshlrev_b32 v{24+k}, 2, v{20+k}       ; bucket*4')
    a('    s_mov_b64 exec, s[46:47]')
    for k in range(4):
        a(f'    ds_add_rtn_u32 v{28+k}, v{24+k}, v5 offset:{L1_HIST}')
    a('    s_mov_b64 exec, -1')
    a('    s_movk_i32 s27, 625')
    for k in range(4):
        a(f'    v_mad_u32_u24 v{20+k}, v{20+k}, s27, 15')
    for k in range(4):
        a(f'    v_lshrrev_b32 v{20+k}, 4, v{20+k}')
    for k in range(4):
        a(f'    v_sub_u32 v{20+k}, v{8+k}, v{20+k}')
    for k in range(4):
        a(f'    v_lshlrev_b32 v{20+k}, 2, v{20+k}')
    a('    s_waitcnt vmcnt(0)')
    a('    v_lshl_or_b32 v32, v16, 16, v12')
    a('    s_mov_b32 s24, 0xffff0000')
    a('    v_and_or_b32 v33, v16, s24, v13')
    a('    v_lshl_or_b32 v34, v17, 16, v14')
    a('    v_and_or_b32 v35, v17, s24, v15')
    a('    s_waitcnt lgkmcnt(0)')
    stamp(a, 3)
    lds_sync(a, 'K1_SYNC2', L1_SYNC+4, 10, 19, 5, 25+40, 27)
    stamp(a, 4)
    a(f'    ds_read_b128 v[40:43], v6 offset:{L1_HIST}')
    a('    s_waitcnt lgkmcnt(0)')
    a('    v_add_u32 v44, v40, v41                ; h0+h1')
    a('    v_add_u32 v45, v44, v42')
    a('    v_add_u32 v46, v45, v43                ; sum4')
    a('    v_mov_b32 v47, v46')
    dpp_scan(a, 47)
    a('    v_sub_u32 v48, v47, v46')
    a('    v_add_u32 v49, v48, v40')
    a('    v_add_u32 v50, v48, v44')
    a('    v_add_u32 v51, v48, v45')
    a(f'    ds_write_b128 v6, v[48:51] offset:{L1_START}')
    a('    s_waitcnt lgkmcnt(0)')
    for k in range(4):
        a(f'    ds_read_b32 v{56+k}, v{24+k} offset:{L1_START}')
    for k in range(4):
        a(f'    v_lshl_or_b32 v{52+k}, v{40+k}, 16, v{48+k}')
    a('    s_waitcnt lgkmcnt(0)')
    for k in range(4):
        a(f'    v_add_u32 v{56+k}, v{56+k}, v{28+k}      ; position')
    a('    s_mov_b64 exec, s[46:47]')
    for k in range(4):
        a(f'    ds_write_b8 v{56+k}, v{20+k} offset:{L1_ST8}')
        a(f'    v_lshlrev_b32 v{60+k}, 2, v{56+k}')
    for k in range(4):
        a(f'    ds_write_b32 v{60+k}, v{32+k} offset:{L1_ST32}')
    a('    s_mov_b64 exec, -1')
    a('    s_waitcnt lgkmcnt(0)')
    stamp(a, 5)
    lds_sync(a, 'K1_SYNC3', L1_SYNC+8, 10, 19, 5, 25+40, 27)
    a(f'    ds_read_b128 v[8:11], v3 offset:{L1_ST32}')
    a('    v_lshrrev_b32 v4, 2, v3                ; t*4')
    a(f'    ds_read_b32 v12, v4 offset:{L1_ST8}')
    a('    s_waitcnt lgkmcnt(0)')
    a('    v_perm_b32 v21, v9, v12, s40           ; d1 = L0 r1.b0 r1.b1 r1.b2')
    a('    v_perm_b32 v22, v10, v9, s41           ; r1.b3 . r2.b0 r2.b1')
    a('    v_perm_b32 v23, v11, v10, s43          ; r2.b2 r2.b3 . r3.b0')
    a('    v_mov_b32 v20, v8')
    a('    v_perm_b32 v22, v12, v22, s42          ; d2 : insert L1')
    a('    v_perm_b32 v23, v12, v23, s44          ; d3 : insert L2')
    a('    v_perm_b32 v24, v12, v11, s45          ; d4 = r3.b1 r3.b2 r3.b3 L3')
    a('    s_mov_b64 exec, s[46:47]')
    a(f'    buffer_store_dwordx4 v[20:23], v7, s[32:35], s25 offen {RECST}')
    a(f'    buffer_store_dword v24, v7, s[32:35], s25 offen offset:16 {RECST}')
    a('    s_mov_b64 exec, -1')
    a('    s_cmp_eq_u32 s20, 0')
    a('    s_cbranch_scc0 K1_SFIN')
    if DESCT:
        for k in range(4):
            a(f'    buffer_store_dword v{52+k}, v18, s[36:39], s26 offen offset:{1024*k} {DESCST}')
    else:
        a('    s_lshl_b32 s26, s2, 10')
        a(f'    buffer_store_dwordx4 v[52:55], v6, s[36:39], s26 offen {DESCST}')
    a.label('K1_SFIN')
    if STAMP:
        stamp(a, 6)
        a('    s_waitcnt vmcnt(0)')
        stamp(a, 7); stamp(a, 1, True)
        stamp_flush(a, 20, 2, 0, 6)
    a('    s_endpgm')
    a.label('K1_TABLE')
    a('    s_load_dwordx2 s[40:41], s[0:1], 40   ; w_b')
    a('    s_load_dwordx2 s[42:43], s[0:1], 64   ; w_v')
    a('    s_load_dwordx2 s[44:45], s[0:1], 0    ; x')
    if K1PF:
        a('    s_load_dwordx2 s[60:61], s[0:1], 32   ; w_a')
        a('    s_load_dwordx4 s[64:67], s[0:1], 48   ; w_c, w_u')
        a('    s_load_dwordx2 s[62:63], s[0:1], 72   ; out')
    a('    s_mov_b32 s21, s20                     ; tw' if TFIRST else '    s_sub_u32 s21, s20, 10                 ; tw')
    a('    v_mov_b32 v5, 0')
    a('    v_lshlrev_b32 v6, 2, v2')
    a('    s_cmp_eq_u32 s21, 0')
    a('    s_cbranch_scc0 K1_T_NOZ')
    masked(a, 'v_cmp_gt_u32 vcc, 4, v2', 30)
    a(f'    ds_write_b32 v6, v5 offset:{L1_SYNC}')
    unmask(a, 30)
    a.label('K1_T_NOZ')
    a('    s_lshr_b32 s22, s21, 1')
    a('    s_lshl_b32 s22, s22, 4                 ; 16*rt')
    a('    v_and_b32 v4, 15, v2')
    a('    v_add_u32 v4, s22, v4')
    a('    v_lshrrev_b32 v5, 4, v2                ; g')
    a('    v_lshlrev_b32 v6, 7, v4')
    a('    v_lshl_add_u32 v6, v5, 4, v6')
    a('    s_mul_i32 s58, s2, 625')
    a('    s_add_u32 s59, s58, 640                ; 625*(c+1) + 15')
    a('    s_add_u32 s58, s58, 15')
    a('    s_lshr_b32 s58, s58, 4')
    a('    s_lshr_b32 s59, s59, 4')
    a('    s_sub_u32 s59, s59, s58')
    a('    s_lshl_b32 s24, s58, 7')
    a('    v_lshlrev_b32 v7, 4, v2                ; lane*16')
    a('    v_bfe_u32 v8, v2, 4, 1')
    a('    v_lshlrev_b32 v8, 1, v8')
    a('    v_and_b32 v9, 7, v2')
    a('    v_xor_b32 v8, v8, v9')
    a('    v_lshrrev_b32 v9, 3, v2')
    a('    v_lshlrev_b32 v9, 7, v9                ; (lane>>3)*128')
    a('    s_waitcnt lgkmcnt(0)')
    for i in range(3):
        a(f'    s_add_u32 s26, s21, {6*i}              ; p')
        a('    s_cmp_lt_u32 s26, 8')
        a('    s_cselect_b32 s48, s40, s42')
        a('    s_cselect_b32 s49, s41, s43')
        a('    s_mov_b32 s50, 8192')
        a('    s_mov_b32 s51, 0x00020000')
        a('    s_and_b32 s27, s26, 7')
        a('    s_lshl_b32 s27, s27, 10')
        a('    s_cmp_lt_u32 s26, 16')
        a(f'    s_cselect_b32 s27, s27, {1<<20}')
        a(f'    buffer_load_dwordx4 v[{48+4*i}:{51+4*i}], v7, s[48:51], s27 offen')
    srd(a, 36, 44, 45, N*128)
    a('    buffer_load_dwordx4 v[24:27], v6, s[36:39], s24 offen')
    a('    buffer_load_dwordx4 v[28:31], v6, s[36:39], s24 offen offset:64')
    if K1PF:
        a('    s_cmp_eq_u32 s21, 5')
        a('    s_cbranch_scc0 K1_T_NOPF')
        a('    v_lshlrev_b32 v60, 8, v2')
        a('    v_lshlrev_b32 v61, 7, v2')
        a('    global_load_dword v62, v61, s[60:61]')
        a('    global_load_dword v62, v61, s[66:67]')
        a('    v_mov_b32 v63, 0')
        a('    global_load_dword v62, v63, s[64:65]')
        a('    s_lshl_b32 s26, s58, 7')
        a('    v_mov_b32 v63, s26')
        a('    global_load_dword v62, v63, s[62:63]')
        srd(a, 52, 6, 7, WS_T + T_BYTES, off=0)
        a(f'    s_mul_i32 s26, s2, {REC_STRIDE}')
        a('    v_mov_b32 v63, s26')
        a('    buffer_load_dword v62, v63, s[52:55], 0 offen')
        a('    s_lshl_b32 s26, s58, 8')
        a(f'    s_add_u32 s26, s26, {WS_T}')
        a('    v_mov_b32 v63, s26')
        a('    buffer_load_dword v62, v63, s[52:55], 0 offen')
        a(f'    s_lshl_b32 s26, s2, 2')
        a(f'    s_add_u32 s26, s26, {WS_DESC}')
        a('    v_mov_b32 v63, s26')
        a('    buffer_load_dword v62, v63, s[52:55], 0 offen')
        a.label('K1_T_NOPF')
    a('    s_barrier')
    if K1PF: a.label('K1_T_PFJOIN0')
    srd(a, 44, 6, 7, T_BYTES, off=WS_T)
    for i in range(3):
        a(f'    s_add_u32 s26, s21, {6*i}              ; p')
        a('    s_and_b32 s27, s26, 1')
        a('    s_lshl_b32 s27, s27, 2')
        a(f'    v_xor_b32 v{18+i}, s27, v8')
        a(f'    v_lshl_add_u32 v{18+i}, v{18+i}, 4, v9')
        a('    s_lshl_b32 s27, s26, 10                ; m*8192 + (p&7)*1024 = p*1024')
        a(f'    v_add_u32 v{18+i}, s27, v{18+i}')
    a('    s_and_b32 s23, s21, 1                  ; half')
    a('    v_bfe_u32 v12, v2, 2, 2                ; r')
    a('    v_lshl_add_u32 v13, v5, 3, v12         ; rho')
    a('    v_lshlrev_b32 v13, 7, v13')
    a('    v_and_b32 v14, 1, v2')
    a('    v_lshl_add_u32 v13, v14, 3, v13        ; + (c&1)*8')
    a('    v_bfe_u32 v14, v2, 1, 1                ; c>>1')
    a('    v_lshrrev_b32 v12, 1, v12')
    a('    v_and_b32 v15, 1, v5                   ; g&1')
    a('    v_lshlrev_b32 v15, 1, v15')
    a('    v_or_b32 v12, v12, v15                 ; swz/2')
    a('    s_lshl_b32 s25, s23, 1')
    a('    v_xor_b32 v15, s25, v12')
    a('    v_lshl_or_b32 v15, v15, 1, v14')
    a('    v_lshl_add_u32 v16, v15, 4, v13')
    a('    s_add_u32 s25, s25, 1')
    a('    v_xor_b32 v15, s25, v12')
    a('    v_lshl_or_b32 v15, v15, 1, v14')
    a('    v_lshl_add_u32 v17, v15, 4, v13')
    a('    v_lshlrev_b32 v21, 8, v4')
    a('    v_lshl_add_u32 v21, v5, 4, v21')
    a('    s_lshl_b32 s25, s23, 7')
    a('    s_lshl_b32 s26, s58, 8')
    a('    s_add_u32 s25, s25, s26')
    a('    v_add_u32 v21, s25, v21')
    a('    v_cmp_gt_u32 vcc, s59, v4')
    a(f'    v_mov_b32 v22, {1<<30}')
    a(f'    s_mov_b32 s27, {hex(f2u(-LOG2E))}')
    a('    s_mov_b32 s28, 0xffff0000')
    a('    v_cndmask_b32 v9, v22, v21, vcc')
    a('    s_mov_b32 s29, 0x80000000')
    a('    v_mov_b32 v10, 0')
    a('    v_mov_b32 v11, 1')
    if K1PF:
        a('    s_cmp_eq_u32 s21, 5')
        a('    s_cbranch_scc0 K1_T_W2')
        a('    s_waitcnt vmcnt(9)')
        a('    s_branch K1_T_W9')
        a.label('K1_T_W2')
    a('    s_waitcnt vmcnt(2)')
    if K1PF: a.label('K1_T_W9')
    stamp(a, 1)
    for i in range(3):
        if i == 2:
            a('    s_cmp_lt_u32 s21, 4')
            a('    s_cbranch_scc0 K1_T_ST2')
        a(f'    ds_write_b128 v{18+i}, v[{48+4*i}:{51+4*i}] offset:{L1_W}')
    a.label('K1_T_ST2')
    lds_sync(a, 'K1_T_SPIN', L1_SYNC, 6, 10, 11, 12, 26)
    stamp(a, 3)
    order = [(jj, ks, m) for jj in range(2) for ks in range(2) for m in range(2)]
    for i, (jj, ks, m) in enumerate(order):
        b = 64 + 4*i
        off = L1_W + m*8192 + ks*32*128
        a(f'    ds_read_b64_tr_b16 v[{b}:{b+1}], v{16+jj} offset:{off}')
        a(f'    ds_read_b64_tr_b16 v[{b+2}:{b+3}], v{16+jj} offset:{off+512}')
    if K1PF:
        a('    s_cmp_eq_u32 s21, 5')
        a('    s_cbranch_scc0 K1_T_X0')
        a('    s_waitcnt vmcnt(7)')
        a('    s_branch K1_T_XOK')
        a.label('K1_T_X0')
    a('    s_waitcnt vmcnt(0)')
    if K1PF: a.label('K1_T_XOK')
    for i, (jj, ks, m) in enumerate(order):
        b = 64 + 4*i
        a(f'    s_waitcnt lgkmcnt({min(15, 2*(7-i))})')
        acc = 32 + 8*m + 4*jj
        x = 24 + 4*ks
        c = '0' if ks == 0 else f'v[{acc}:{acc+3}]'
        a(f'    v_mfma_f32_16x16x32_bf16 v[{acc}:{acc+3}], v[{b}:{b+3}], v[{x}:{x+3}], {c}')
    stamp(a, 4)
    a('    s_nop 4')
    for jj in range(2):
        R = range(4)
        p = lambda r: 32 + 4*jj + r
        q = lambda r: 40 + 4*jj + r
        t = lambda r: 10 + r
        if jj == 1: a('    s_nop 2')
        for r in R: a(f'    v_mul_f32 v{p(r)}, s27, v{p(r)}')
        for r in R: a(f'    v_cvt_f16_f32 v{p(r)}, v{p(r)}')
        for r in R: a(f'    v_and_b32 v{t(r)}, 0x7fffffff, v{q(r)}')
        for r in R: a(f'    v_and_b32 v{p(r)}, 0xffff, v{p(r)}')
        for r in R: a(f'    v_sub_u32 v{t(r)}, v{t(r)}, v{p(r)}')
        for r in R: a(f'    v_add_u32 v{t(r)}, 0x8000, v{t(r)}')
        for r in R: a(f'    v_max_i32 v{t(r)}, 0, v{t(r)}')
        for r in R: a(f'    v_and_or_b32 v{t(r)}, v{t(r)}, s28, v{p(r)}')
        for r in R: a(f'    v_and_or_b32 v{p(r)}, v{q(r)}, s29, v{t(r)}')
        a(f'    buffer_store_dwordx4 v[{32+4*jj}:{35+4*jj}], v9, s[44:47], 0 offen offset:{jj*64} {TST}')
    a('    s_cmp_eq_u32 s2, 0')
    a('    s_cbranch_scc0 K1_TFIN')
    a('    s_cmp_eq_u32 s21, 0')
    a('    s_cbranch_scc0 K1_TFIN')
    a('    v_mov_b32 v10, 0x7c00')
    a(f'    v_lshlrev_b32 v11, 2, v2')
    a(f'    v_add_u32 v11, {N*256}, v11')
    a(f'    buffer_store_dword v10, v11, s[44:47], 0 offen {TST}')
    a.label('K1_TFIN')
    stamp(a, 5)
    if STAMP:
        stamp(a, 6)
        a('    s_waitcnt vmcnt(0)')
        stamp(a, 7); stamp(a, 1, True)
        if STAMP >= 3:
            a('    s_waitcnt lgkmcnt(0)')
            a(f'    s_mov_b32 s{ST0+4}, s{ST0+16}')
        else: stamp(a, 2)
        if TFIRST: a('    s_add_u32 s20, s20, 10')
        stamp_flush(a, 20, 2, 0, 6)
    a.label('K1_END')
    a('    s_endpgm')

CAP = 4096
TS = 272
L2_CNT = 0; L2_FLG = 256
L2_LIST = 512
L2_SLOT = L2_LIST + CAP*4
L2_EAT = L2_SLOT + 56*512; L2_UT = L2_EAT + 48*TS
XS = 144
L2_XT = L2_UT + 48*TS
L2_W = L2_XT + 48*XS
K2_LDS = L2_W + 16384
U = 4
TPF = int(env('TPF', '1'))
PFPOS = int(env('PFPOS', '1'))
PGT = int(env('PGT', '0'))
ASTAGE = int(env('ASTAGE', '1'))
G0N = int(env('G0N', '1'))
PFS = [int(x) for x in env('PFS', '6,6,6,6,8,8').split(',')]
PFW = int(env('PFW', '4'))
PFE = int(env('PFE', '0'))
PFL = int(env('PFL', '640'))
PFN = int(env('PFN', '40'))
PRT = [int(x) for x in env('PRT', '4,4,4').split(',')]

def gen_k2(a):
    a.k2 = True
    sB = 2; sWAVE = 3
    SRD_DESC = 12; SRD_REC = 16; SRD_T = 20; SRD_W = 24; SRD_X = 28; SRD_OUT = 32; SRD_WC = 36
    sMODE = 40; sPASS = 41
    sG0 = 42; sG1 = 43; sGEND = 44; sLEFT = 45; sNODE = 46; sT0 = 47; sT1 = 48; sSAFE = 49; sGT = 50; sR = 51
    sEX = 52; sEAB = 54; sPR = 55; sPQ = 56; sLVL = 57; sSLOT = 58; sNR = 59; sPQ2 = 60; sN0 = 62; sNN = 63; sNT = 61; sJ = 58
    sM = 64
    vLANE = 1
    vWC = 4; vEA = 8; vDEN = 12; vNUM = 16; vT = 20; vDAT = 24; vP = 40; vEV = 48
    vSA = 50; vACC = 51; vEAA = 52; vGS = 53; vQ16 = 54; vNG = 55
    vDA = 56; vNA = 60
    vX = 64
    vFL = 66
    vGE = 67
    vXO = 68
    vR = 76
    vB = 84
    vRK = 92
    vLA = 100
    vA = 108
    vCNT = 118; vRO = 119; vI = 120; vRM = 121; vTRA = 122; vXRA = 123; vROW = 121; vPFA = 51
    vLC = 12
    vPF = 16
    vXO2 = vXO
    SRD_LOC = 8; SRD_PF = 24
    vW = 24; vOP = 24; vAC = 40
    vOP2 = 76; vAC2 = 92
    vFS = 101; vFC = 102; vUTA = 103; vXTA = 106
    vOP3 = 24; vAC3 = 20; vAK = 20
    vU = 96; vUA = 100

    pf_state = {'next': 0}
    def pf(i):
        if not (TPF and PFPOS == 4) or PFS[i] == 0: return 0
        n = PFS[i]; st = pf_state['next']; pf_state['next'] += n
        assert pf_state['next'] <= 40
        base, off = (sJ, st*128) if st*128 < 4096 else (9, st*128 - 4096)
        a(f'    s_mov_b64 exec, {hex((1 << n) - 1)}')
        a(f'    buffer_load_dword v{vPF}, v{vPFA}, s[36:39], s{base} offen offset:{off}')
        a('    s_mov_b64 exec, -1')
        return 1
    npf = lambda *idx: sum(1 for i in idx if TPF and PFPOS == 4 and PFS[i] > 0)
    a('.p2align 8')
    a('.type k2_kernel,@function')
    a.label('k2_kernel')
    a(f'    s_cmp_ge_u32 s2, {NB}')
    a('    s_cbranch_scc1 K2_END')
    stamp(a, 0); stamp(a, 0, True)
    if CPF:
        a('    s_getpc_b64 s[30:31]')
        a.label('K2_PC')
        a('    v_lshlrev_b32 v124, 7, v0')
        a('    v_cmp_gt_u32 vcc, CODE_END-K2_PC, v124')
        a('    s_and_saveexec_b64 s[28:29], vcc')
        a('    s_cbranch_execz K2_NOCPF')
        a('    global_load_dword v125, v124, s[30:31]')
        a.label('K2_NOCPF')
        a('    s_mov_b64 exec, s[28:29]')
    a(f'    s_lshr_b32 s{sJ}, s2, 3')
    if XMAP:
        a(f'    s_and_b32 s{sT0}, s2, 7')
        a(f'    s_lshl_b32 s{sT0}, s{sT0}, 5')
        a(f'    s_add_u32 s2, s{sT0}, s{sJ}')
    a(f'    s_mul_i32 s{sN0}, s2, 625')
    a(f'    s_add_u32 s{sNN}, s{sN0}, 640')
    a(f'    s_add_u32 s{sN0}, s{sN0}, 15')
    a(f'    s_lshr_b32 s{sN0}, s{sN0}, 4')
    a(f'    s_lshr_b32 s{sNN}, s{sNN}, 4')
    a(f'    s_sub_u32 s{sNN}, s{sNN}, s{sN0}')
    a('    s_load_dwordx2 s[6:7], s[0:1], 88      ; ws')
    a('    s_load_dwordx2 s[4:5], s[0:1], 0       ; x')
    a('    s_load_dwordx2 s[8:9], s[0:1], 32      ; w_a')
    a('    s_load_dwordx4 s[76:79], s[0:1], 48    ; w_c, w_u')
    a('    s_load_dwordx2 s[10:11], s[0:1], 72    ; out')
    a(f'    v_and_b32 v{vLANE}, 63, v0')
    a(f'    v_lshrrev_b32 v{vA}, 6, v0')
    a(f'    v_and_b32 v{vQ16}, 15, v0')
    a(f'    v_readfirstlane_b32 s{sWAVE}, v{vA}')
    a(f'    v_lshlrev_b32 v{vQ16}, 4, v{vQ16}      ; q*16')
    if DESCT:
        a(f'    v_and_b32 v{vA}, 0x3fc, v0             ; (t>>2)*4')
        a(f'    s_lshl_b32 s{sT0}, s{sB}, 10')
    else:
        a(f'    v_lshrrev_b32 v{vA}, 2, v0')
        a(f'    v_lshlrev_b32 v{vA}, 10, v{vA}')
        a(f'    s_lshl_b32 s{sT0}, s{sB}, 2')
    for i in range(4):
        a(f'    v_mov_b32 v{vDA+i}, 0')
        a(f'    v_mov_b32 v{vNA+i}, 0')
    masked(a, 'v_cmp_gt_u32 vcc, 4, v0', sEX)
    a(f'    v_lshlrev_b32 v{vA+5}, 2, v0')
    a(f'    ds_write_b32 v{vA+5}, v{vDA} offset:{L2_FLG}')
    unmask(a, sEX)
    a(f'    s_mov_b32 s{sMODE}, 0')
    a(f'    s_mov_b32 s{sPASS}, 0')
    a(f'    v_mov_b32 v{vEV}, 0')
    a(f'    v_mov_b32 v{vEV+1}, 0')
    for k in range(U):
        a(f'    v_mov_b32 v{vP+2*k}, {N}')
        a(f'    v_mov_b32 v{vP+2*k+1}, v{vQ16}')
    a(f'    v_lshrrev_b32 v{vA+1}, 5, v{vLANE}')
    a(f'    v_lshl_add_u32 v{vFL}, v{vA+1}, 8, v{vQ16}')
    a(f'    v_bfe_u32 v{vA+1}, v{vLANE}, 4, 1')
    a(f'    v_lshl_add_u32 v{vFL}, v{vA+1}, 3, v{vFL}')
    a.label('K2_PASS')
    for i in range(4):
        a(f'    v_mov_b32 v{vA+6+i}, {N}')
    a(f'    v_lshlrev_b32 v{vA+5}, 4, v0')
    a(f'    ds_write_b128 v{vA+5}, v[{vA+6}:{vA+9}] offset:{L2_LIST}')
    masked(a, 'v_cmp_gt_u32 vcc, 64, v0', sEX)
    a(f'    v_lshlrev_b32 v{vA+4}, 2, v0')
    a(f'    v_mov_b32 v{vA+3}, 0')
    a(f'    ds_write_b32 v{vA+4}, v{vA+3} offset:{L2_CNT}')
    unmask(a, sEX)
    a(f'    s_cmp_eq_u32 s{sMODE}, 0')
    a('    s_cbranch_scc0 K2_SLOWPARAM')
    a('    s_waitcnt lgkmcnt(0)')
    srd(a, SRD_DESC, 6, 7, NB*DESC_STRIDE, off=WS_DESC)
    a(f'    buffer_load_dword v{vCNT}, v{vA}, s[{SRD_DESC}:{SRD_DESC+3}], s{sT0} offen')
    a(f'    s_cmp_lt_u32 s{sWAVE}, 8')
    a(f'    s_cselect_b32 s{SRD_W}, s8, s78')
    a(f'    s_cselect_b32 s{SRD_W+1}, s9, s79')
    a(f'    s_mov_b32 s{SRD_W+2}, 8192')
    a(f'    s_mov_b32 s{SRD_W+3}, 0x00020000')
    srd(a, SRD_X, 4, 5, N*128)
    srd(a, SRD_WC, 76, 77, 128)
    a(f'    v_and_b32 v{vA+1}, 511, v0')
    a(f'    v_lshlrev_b32 v{vA+1}, 4, v{vA+1}')
    a(f'    buffer_load_dwordx4 v[{vW}:{vW+3}], v{vA+1}, s[{SRD_W}:{SRD_W+3}], 0 offen')
    a(f'    v_lshlrev_b32 v{vA+4}, 4, v0')
    a(f'    v_cmp_gt_u32 vcc, 384, v0')
    a(f'    v_mov_b32 v{vA+3}, {1<<30}')
    a(f'    s_lshl_b32 s{sT1}, s{sN0}, 7')
    a(f'    v_cndmask_b32 v{vA+4}, v{vA+3}, v{vA+4}, vcc')
    a(f'    buffer_load_dwordx4 v[{vXO}:{vXO+3}], v{vA+4}, s[{SRD_X}:{SRD_X+3}], s{sT1} offen')
    a(f'    v_lshrrev_b32 v{vA+7}, 1, v{vQ16}      ; q*8 (wc)')
    a(f'    buffer_load_dwordx2 v[{vWC}:{vWC+1}], v{vA+7}, s[{SRD_WC}:{SRD_WC+3}], 0 offen')
    if TPF and PFPOS == 4:
        srd(a, 36, 6, 7, T_BYTES, off=WS_T)
        a(f'    s_mul_i32 s{sJ}, s{sJ}, {640*128}')
        a(f'    s_mul_i32 s9, s{sWAVE}, {40*128}')
        a(f'    s_add_u32 s{sJ}, s{sJ}, s9')
        a(f'    s_add_u32 s9, s{sJ}, 4096')
        a(f'    v_lshlrev_b32 v{vPFA}, 7, v{vLANE}')
        pf(0)
    if PFE:
        srd(a, SRD_REC, 6, 7, T_BYTES, off=WS_T)
        a(f'    s_mul_i32 s{sT0}, s{sJ}, {640*128}')
        a(f'    s_mul_i32 s{sT1}, s{sWAVE}, {40*128}')
        a(f'    s_add_u32 s{sT0}, s{sT0}, s{sT1}')
        a(f'    s_add_u32 s{sT0}, s{sT0}, {PFN*128}')
        a(f'    v_lshlrev_b32 v{vPF+1}, 7, v{vLANE}')
        a(f'    v_cmp_gt_u32 vcc, {PFE}, v{vLANE}')
        a(f'    v_mov_b32 v{vPF+2}, {1<<30}')
        a('    s_nop 0')
        a(f'    v_cndmask_b32 v{vPF+1}, v{vPF+2}, v{vPF+1}, vcc')
        a(f'    buffer_load_dword v{vPF+1}, v{vPF+1}, s[{SRD_REC}:{SRD_REC+3}], s{sT0} offen')
    if PGT:
        srd(a, SRD_REC, 6, 7, WS_T + T_BYTES, off=0)
        a(f'    v_lshlrev_b32 v{vPF+1}, 21, v{vLANE}')
        a(f'    buffer_load_dword v{vPF+1}, v{vPF+1}, s[{SRD_REC}:{SRD_REC+3}], 0 offen')
    if not ASTAGE: a('    s_barrier')
    srd(a, SRD_OUT, 10, 11, N*128)
    srd(a, SRD_REC, 6, 7, NC*REC_STRIDE + 64, off=WS_REC)
    srd(a, SRD_T, 6, 7, 0, off=WS_T, stride=256, nrec=N+1)
    a(f'    v_lshrrev_b32 v{vA}, 2, v0             ; c')
    a(f'    v_mul_u32_u24 v{vRO}, {REC_STRIDE}, v{vA}')
    a(f'    v_and_b32 v{vI}, 3, v0')
    a(f'    v_lshlrev_b32 v{vI}, 2, v{vI}')
    a(f'    v_mad_u32_u24 v{vRO}, v{vI}, 5, v{vRO}')
    a(f'    s_mov_b32 s{sT1}, 16')
    a(f'    s_waitcnt vmcnt({3+PGT+(1 if PFE else 0)+npf(0)})                      ; descriptor')
    stamp(a, 1)
    a(f'    v_and_b32 v{vA+1}, 0xffff, v{vCNT}      ; start')
    a(f'    v_lshrrev_b32 v{vCNT}, 16, v{vCNT}      ; cnt')
    a(f'    v_mad_u32_u24 v{vRO}, v{vA+1}, 5, v{vRO}')
    a('    s_branch K2_PARAMDONE')
    a.label('K2_SLOWPARAM')
    a(f'    s_lshl_b32 s{sT0}, s{sB}, {10 if DESCT else 2}')
    a(f'    s_lshl_b32 s{sT1}, s{sPASS}, {2 if DESCT else 10}')
    a(f'    s_add_u32 s{sT0}, s{sT0}, s{sT1}')
    a(f'    v_mov_b32 v{vA}, 0')
    a(f'    buffer_load_dword v{vCNT}, v{vA}, s[{SRD_DESC}:{SRD_DESC+3}], s{sT0} offen')
    a(f'    s_mul_i32 s{sT0}, s{sPASS}, {REC_STRIDE}')
    a('    s_waitcnt vmcnt(0) lgkmcnt(0)')
    a('    s_barrier')
    a(f'    v_and_b32 v{vA+1}, 0xffff, v{vCNT}')
    a(f'    v_lshlrev_b32 v{vI}, 2, v0')
    a(f'    v_add_u32 v{vA+1}, v{vA+1}, v{vI}')
    a(f'    v_mul_u32_u24 v{vRO}, 5, v{vA+1}')
    a(f'    v_add_u32 v{vRO}, s{sT0}, v{vRO}')
    a(f'    v_lshrrev_b32 v{vCNT}, 16, v{vCNT}')
    a(f'    s_mov_b32 s{sT1}, 4096')
    a.label('K2_PARAMDONE')
    a(f'    v_sub_u32 v{vRM}, v{vCNT}, v{vI}')
    a(f'    s_mul_i32 s{sT0}, s{sT1}, 5')
    a(f'    s_mov_b32 s{sNR}, 0')
    for r in range(2):
        m0 = sM + 8*r
        if r == 1:
            a(f'    v_subrev_u32 v{vRM}, s{sT1}, v{vRM}')
        for h in range(4):
            a(f'    v_cmp_gt_i32 s[{m0+2*h}:{m0+2*h+1}], v{vRM}, {h}' if h else f'    v_cmp_lt_i32 s[{m0}:{m0+1}], 0, v{vRM}')
        a(f'    s_cmp_eq_u64 s[{m0}:{m0+1}], 0')
        a(f'    s_cbranch_scc1 K2_LD_DONE')
        a(f'    s_mov_b64 exec, s[{m0}:{m0+1}]')
        a(f'    buffer_load_dwordx4 v[{vR+4*r}:{vR+4*r+3}], v{vRO}, s[{SRD_REC}:{SRD_REC+3}], 0 offen')
        a(f'    buffer_load_dword v{vLC+r}, v{vRO}, s[{SRD_REC}:{SRD_REC+3}], 0 offen offset:16')
        a(f'    s_mov_b64 exec, -1')
        a(f'    s_mov_b32 s{sNR}, {r+1}')
        if r < 1:
            a(f'    v_add_u32 v{vRO}, s{sT0}, v{vRO}')
    a.label('K2_LD_DONE')
    a(f'    s_or_b32 s{sT0}, s{sMODE}, s{sPASS}')
    a(f'    s_cmp_eq_u32 s{sT0}, 0')
    a('    s_cbranch_scc0 K2_LATER_PASS')
    pf(1)
    if TPF and PFPOS == 3:
        a(f'    s_mul_i32 s{sT0}, s{sJ}, {640*128}')
        a(f'    s_mul_i32 s{sT1}, s{sWAVE}, {40*128}')
        a(f'    s_add_u32 s{sT0}, s{sT0}, s{sT1}')
        a(f'    s_add_u32 s{sT0}, s{sT0}, {WS_T}')
        a(f'    s_add_u32 s24, s6, s{sT0}')
        a(f'    s_addc_u32 s25, s7, 0')
        for i in range(PFN):
            a(f'    s_load_dword s26, s[24:25], {128*i}')
    if TPF and PFPOS == 2:
        W0 = 16 - PFW
        per = PFL // PFW
        a(f'    s_cmp_ge_u32 s{sWAVE}, {W0}')
        a('    s_cbranch_scc0 K2_NOPF2')
        srd(a, SRD_PF, 6, 7, T_BYTES, off=WS_T)
        a(f'    s_mul_i32 s{sT0}, s{sJ}, {640*128}')
        a(f'    s_sub_u32 s{sT1}, s{sWAVE}, {W0}')
        a(f'    s_mul_i32 s{sT1}, s{sT1}, {per*128}')
        a(f'    s_add_u32 s{sT0}, s{sT0}, s{sT1}')
        a(f'    v_lshlrev_b32 v{vPFA}, 7, v{vLANE}')
        nin = (per + 63)//64
        for i in range(nin):
            left = per - 64*i
            if left < 64:
                a(f'    v_cmp_gt_u32 vcc, {left}, v{vLANE}')
                a(f'    v_mov_b32 v{vPF+1}, {1<<30}')
                a('    s_nop 0')
                a(f'    v_cndmask_b32 v{vPFA}, v{vPF+1}, v{vPFA}, vcc')
            a(f'    buffer_load_dword v{vPF}, v{vPFA}, s[{SRD_PF}:{SRD_PF+3}], s{sT0} offen')
            if i + 1 < nin: a(f'    s_add_u32 s{sT0}, s{sT0}, 8192')
        a.label('K2_NOPF2')
    a(f'    v_lshrrev_b32 v{vA+8}, 3, v0')
    a(f'    v_mul_u32_u24 v{vA+8}, {XS}, v{vA+8}')
    a(f'    v_and_b32 v{vA+7}, 7, v0')
    a(f'    v_lshl_add_u32 v{vA+8}, v{vA+7}, 4, v{vA+8}')
    a(f'    v_add_u32 v{vA+8}, {L2_XT}, v{vA+8}')
    NPF = 1 if TPF else 0
    a(f'    v_bfe_u32 v{vA+1}, v0, 4, 1')
    a(f'    v_bfe_u32 v{vA+2}, v0, 6, 1')
    a(f'    v_lshlrev_b32 v{vA+1}, 1, v{vA+1}')
    a(f'    v_lshl_or_b32 v{vA+1}, v{vA+2}, 2, v{vA+1}')
    a(f'    v_and_b32 v{vA+2}, 7, v0')
    a(f'    v_xor_b32 v{vA+1}, v{vA+1}, v{vA+2}')
    a(f'    v_lshrrev_b32 v{vA+2}, 3, v0')
    a(f'    v_lshlrev_b32 v{vA+2}, 7, v{vA+2}')
    a(f'    v_lshl_add_u32 v{vA+9}, v{vA+1}, 4, v{vA+2}')
    a(f'    v_add_u32 v{vA+9}, {L2_W}, v{vA+9}')
    a(f'    v_lshrrev_b32 v{vA+3}, 4, v{vLANE}     ; g')
    a(f'    v_bfe_u32 v{vA}, v{vLANE}, 2, 2        ; r')
    a(f'    v_lshl_add_u32 v{vA+1}, v{vA+3}, 3, v{vA}')
    a(f'    v_lshlrev_b32 v{vA+1}, 7, v{vA+1}')
    a(f'    v_and_b32 v{vA+2}, 1, v{vLANE}')
    a(f'    v_lshl_add_u32 v{vA+1}, v{vA+2}, 3, v{vA+1}')
    a(f'    v_lshrrev_b32 v{vA}, 1, v{vA}')
    a(f'    v_and_b32 v{vA+2}, 1, v{vA+3}')
    a(f'    v_lshl_or_b32 v{vA}, v{vA+2}, 1, v{vA}     ; swz/2')
    a(f'    s_and_b32 s{sT0}, s{sWAVE}, 3')
    a(f'    v_xor_b32 v{vA}, s{sT0}, v{vA}')
    a(f'    v_bfe_u32 v{vA+2}, v{vLANE}, 1, 1')
    a(f'    v_lshl_or_b32 v{vA}, v{vA}, 1, v{vA+2}')
    a(f'    v_lshl_add_u32 v{vTRA}, v{vA}, 4, v{vA+1}')
    a(f'    v_add_u32 v{vTRA}, {L2_W}, v{vTRA}')
    a(f'    s_lshr_b32 s{sT1}, s{sWAVE}, 2')
    a(f'    s_lshl_b32 s{sT1}, s{sT1}, 4')
    a(f'    v_and_b32 v{vA+2}, 15, v{vLANE}')
    a(f'    v_add_u32 v{vROW}, s{sT1}, v{vA+2}     ; row')
    a(f'    v_mul_u32_u24 v{vA+1}, {XS}, v{vROW}')
    a(f'    v_lshl_add_u32 v{vA+1}, v{vA+3}, 4, v{vA+1}')
    a(f'    v_add_u32 v{vXRA}, {L2_XT}, v{vA+1}')
    a(f'    v_mul_u32_u24 v{vA+4}, {TS}, v{vROW}')
    a(f'    v_lshl_add_u32 v{vA+4}, v{vA+3}, 4, v{vA+4}')
    a(f'    s_lshl_b32 s{sT0}, s{sT0}, 6')
    a(f'    s_add_u32 s{sT0}, s{sT0}, {L2_EAT}')
    a(f'    v_add_u32 v{vEAA}, s{sT0}, v{vA+4}')
    if TPF and PFPOS < 2:
        srd(a, SRD_PF, 6, 7, T_BYTES, off=WS_T)
        a(f'    s_mul_i32 s{sT0}, s{sJ}, {640*128}')
        a(f'    s_mul_i32 s{sT1}, s{sWAVE}, {40*128}')
        a(f'    s_add_u32 s{sJ}, s{sT0}, s{sT1}')
        a(f'    v_lshlrev_b32 v{vA+3}, 7, v{vLANE}')
        a(f'    v_cmp_gt_u32 vcc, {PFN}, v{vLANE}')
        a(f'    v_mov_b32 v{vA+4}, {1<<30}')
        a('    s_nop 0')
        a(f'    v_cndmask_b32 v{vPFA}, v{vA+4}, v{vA+3}, vcc')
    if ASTAGE:
        a(f'    s_cmp_eq_u32 s{sNR}, 2')
        a('    s_cbranch_scc1 K2_WW4')
        a(f'    s_cmp_eq_u32 s{sNR}, 1')
        a('    s_cbranch_scc1 K2_WW2')
        a(f'    s_waitcnt vmcnt({npf(1)})')
        a('    s_branch K2_WWD')
        a.label('K2_WW4')
        a(f'    s_waitcnt vmcnt({4+npf(1)})')
        a('    s_branch K2_WWD')
        a.label('K2_WW2')
        a(f'    s_waitcnt vmcnt({2+npf(1)})')
        a.label('K2_WWD')
        a(f'    ds_write_b128 v{vA+9}, v[{vW}:{vW+3}]')
        a(f'    s_cmp_lt_u32 s{sWAVE}, 6')
        a('    s_cbranch_scc0 K2_NOXST0')
        a(f'    ds_write_b128 v{vA+8}, v[{vXO}:{vXO+3}]')
        a.label('K2_NOXST0')
        a('    s_waitcnt lgkmcnt(0)')
        a('    s_barrier')
        pf(2)
        a(f'    s_cmp_lt_u32 s{sWAVE}, 12')
        a('    s_cbranch_scc0 K2_NOMFMA0')
        a(f'    ds_read_b128 v[{vXO}:{vXO+3}], v{vXRA}')
        a(f'    ds_read_b64_tr_b16 v[{vOP3}:{vOP3+1}], v{vTRA}')
        a(f'    ds_read_b64_tr_b16 v[{vOP3+2}:{vOP3+3}], v{vTRA} offset:{0+512}')
        a(f'    ds_read_b128 v[{vXO+4}:{vXO+7}], v{vXRA} offset:64')
        a(f'    ds_read_b64_tr_b16 v[{vOP3+4}:{vOP3+5}], v{vTRA} offset:{0+4096}')
        a(f'    ds_read_b64_tr_b16 v[{vOP3+6}:{vOP3+7}], v{vTRA} offset:{0+4096+512}')
        a(f'    s_mov_b32 s{sT0}, {hex(f2u(-LOG2E))}')
        a(f'    s_mov_b32 s{sT1}, {hex(f2u(60.0))}')
        a('    s_waitcnt lgkmcnt(3)')
        a(f'    v_mfma_f32_16x16x32_bf16 v[{vAC3}:{vAC3+3}], v[{vOP3}:{vOP3+3}], v[{vXO}:{vXO+3}], 0')
        a('    s_waitcnt lgkmcnt(0)')
        a(f'    v_mfma_f32_16x16x32_bf16 v[{vAC3}:{vAC3+3}], v[{vOP3+4}:{vOP3+7}], v[{vXO+4}:{vXO+7}], v[{vAC3}:{vAC3+3}]')
        a('    s_nop 7')
        for i in range(4):
            a(f'    v_mul_f32 v{vAC3+i}, s{sT0}, v{vAC3+i}')
        for i in range(4):
            a(f'    v_exp_f32 v{vOP3+i}, v{vAC3+i}')
        a(f'    v_max3_f32 v{vA+5}, |v{vAC3}|, |v{vAC3+1}|, |v{vAC3+2}|')
        a(f'    v_max_f32 v{vA+5}, v{vA+5}, |v{vAC3+3}|')
        a(f'    ds_write_b128 v{vEAA}, v[{vOP3}:{vOP3+3}]')
        a(f'    v_cmp_nle_f32 vcc, v{vA+5}, s{sT1}')
        a(f'    v_cmp_gt_u32 s[{sEX}:{sEX+1}], s{sNN}, v{vROW}')
        a(f'    s_and_b64 vcc, vcc, s[{sEX}:{sEX+1}]')
        a(f'    s_and_saveexec_b64 s[{sEX}:{sEX+1}], vcc')
        a('    s_cbranch_execz K2_GUARD_OK0')
        a(f'    v_mov_b32 v{vA+5}, 1')
        a(f'    v_mov_b32 v{vA+7}, 0')
        a(f'    ds_write_b32 v{vA+7}, v{vA+5} offset:{L2_FLG+4}')
        unmask(a, sEX, 'K2_GUARD_OK0')
        a.label('K2_NOMFMA0')
        pf(3)
        if TPF and PFPOS == 4:
            a(f'    v_mov_b32 v{vA+2}, 1')
            a(f'    s_waitcnt vmcnt({npf(1,2,3)})')
            pf(4)
            a('    s_branch K2_RANKS')
    if TPF and PFPOS == 2:
        a(f'    v_mov_b32 v{vA+2}, 1')
        a(f'    s_cmp_ge_u32 s{sWAVE}, {16 - PFW}')
        a('    s_cbranch_scc0 K2_LATER_PASS')
        a(f'    s_waitcnt vmcnt({(PFL // PFW + 63)//64})')
        a('    s_branch K2_RANKS')
    a.label('K2_LATER_PASS')
    a(f'    v_mov_b32 v{vA+2}, 1')
    a('    s_waitcnt vmcnt(0)')
    if TPF and PFPOS == 1:
        a(f'    s_or_b32 s{sT0}, s{sMODE}, s{sPASS}')
        a(f'    s_cmp_eq_u32 s{sT0}, 0')
        a('    s_cbranch_scc0 K2_RANKS')
        a(f'    buffer_load_dword v{vPF}, v{vPFA}, s[{SRD_PF}:{SRD_PF+3}], s{sJ} offen')
    a.label('K2_RANKS')
    stamp(a, 2)
    for r in range(2):
        a(f'    s_cmp_le_u32 s{sNR}, {r}')
        a('    s_cbranch_scc1 K2_RK_DONE')
        d = vR + 4*r
        a(f'    v_and_b32 v{vLA+4*r}, 0xff, v{d+1}')
        a(f'    v_bfe_u32 v{vLA+4*r+1}, v{d+2}, 8, 8')
        a(f'    v_bfe_u32 v{vLA+4*r+2}, v{d+3}, 16, 8')
        a(f'    v_lshrrev_b32 v{vLA+4*r+3}, 24, v{vLC+r}')
        for h in range(4):
            k = 4*r + h
            a(f'    s_mov_b64 exec, s[{sM+2*k}:{sM+2*k+1}]')
            a(f'    ds_add_rtn_u32 v{vRK+k}, v{vLA+k}, v{vA+2} offset:{L2_CNT}')
        a('    s_mov_b64 exec, -1')
        a(f'    v_alignbyte_b32 v{d+1}, v{d+2}, v{d+1}, 1')
        a(f'    v_alignbyte_b32 v{d+2}, v{d+3}, v{d+2}, 2')
        a(f'    v_alignbyte_b32 v{d+3}, v{vLC+r}, v{d+3}, 3')
    a.label('K2_RK_DONE')
    masked(a, f'v_cmp_lt_u32 vcc, 32, v{vCNT}', sEX, 'K2_NOOVF')
    a(f'    v_mov_b32 v{vA+3}, 0')
    a(f'    ds_write_b32 v{vA+3}, v{vA+2} offset:{L2_FLG}')
    unmask(a, sEX, 'K2_NOOVF')
    a(f'    s_or_b32 s{sT0}, s{sMODE}, s{sPASS}')
    a(f'    s_cmp_eq_u32 s{sT0}, 0')
    a('    s_cbranch_scc0 K2_NOWST')
    pf(5)
    if not ASTAGE:
        a(f'    ds_write_b128 v{vA+9}, v[{vW}:{vW+3}]')
        a(f'    s_cmp_lt_u32 s{sWAVE}, 6')
        a('    s_cbranch_scc0 K2_NOXST')
        a(f'    ds_write_b128 v{vA+8}, v[{vXO}:{vXO+3}]')
        a.label('K2_NOXST')
    a(f'    s_mov_b32 s{sT0}, {hex(f2u(-LOG2E))}')
    a(f'    v_and_b32 v{vWC+3}, 0xffff0000, v{vWC+1}')
    a(f'    v_lshlrev_b32 v{vWC+2}, 16, v{vWC+1}')
    a(f'    v_and_b32 v{vWC+1}, 0xffff0000, v{vWC}')
    a(f'    v_lshlrev_b32 v{vWC}, 16, v{vWC}')
    for k in range(4):
        a(f'    v_mul_f32 v{vWC+k}, s{sT0}, v{vWC+k}')
    a.label('K2_NOWST')
    a(f'    v_lshlrev_b32 v{vA+1}, 2, v{vLANE}')
    a(f'    v_mov_b32 v{vA}, 0')
    a('    s_waitcnt lgkmcnt(0)')
    stamp(a, 3)
    a('    s_barrier')
    stamp(a, 4)
    if TPF and PFPOS == 0:
        a(f'    s_or_b32 s{sT0}, s{sMODE}, s{sPASS}')
        a(f'    s_cmp_eq_u32 s{sT0}, 0')
        a('    s_cbranch_scc0 K2_NOPF')
        a(f'    buffer_load_dword v{vPF}, v{vPFA}, s[{SRD_PF}:{SRD_PF+3}], s{sJ} offen')
        a.label('K2_NOPF')
    a(f'    ds_read_b32 v{vNG}, v{vA+1} offset:{L2_CNT}')
    a(f'    ds_read_b32 v{vA+4}, v{vA} offset:{L2_FLG}')
    a('    s_waitcnt lgkmcnt(1)')
    a(f'    v_add_u32 v{vNG}, 3, v{vNG}')
    a(f'    v_lshrrev_b32 v{vNG}, 2, v{vNG}')
    a(f'    v_mov_b32 v{vGE}, v{vNG}')
    dpp_scan(a, vGE)
    a('    s_waitcnt lgkmcnt(0)')
    a(f'    v_readlane_b32 s{sGT}, v{vGE}, {NPB-1}')
    a(f'    v_sub_u32 v{vGS}, v{vGE}, v{vNG}')
    a(f'    v_readfirstlane_b32 s{sT0}, v{vA+4}')
    a(f'    v_lshlrev_b32 v{vA+6}, 4, v{vGS}')
    a(f'    v_cmp_lt_u32 vcc, {NPB}, v{vLANE}')
    a(f'    s_add_u32 s{sR}, s{sGT}, 15')
    a(f'    s_lshr_b32 s{sR}, s{sR}, 4')
    a(f'    v_cndmask_b32 v{vGS}, v{vGS}, -1, vcc')
    a(f'    s_cmp_eq_u32 s{sMODE}, 0')
    a('    s_cbranch_scc0 K2_NOSWITCH')
    a(f'    s_cmp_gt_u32 s{sGT}, {(CAP - 64)//4}')
    a(f'    s_cselect_b32 s{sT1}, 1, 0')
    a(f'    s_or_b32 s{sT0}, s{sT0}, s{sT1}')
    a(f'    s_cmp_eq_u32 s{sT0}, 0')
    a('    s_cbranch_scc1 K2_NOSWITCH')
    a(f'    s_mov_b32 s{sNR}, 0')
    a(f'    s_mov_b32 s{sGT}, 0')
    a(f'    s_mov_b32 s{sR}, 0')
    a(f'    s_mov_b32 s{sMODE}, 2')
    a.label('K2_NOSWITCH')
    for r in range(2):
        a(f'    s_cmp_le_u32 s{sNR}, {r}')
        a('    s_cbranch_scc1 K2_LK_DONE')
        for h in range(4):
            k = 4*r + h
            a(f'    ds_bpermute_b32 v{vB+k}, v{vLA+k}, v{vA+6}')
    a.label('K2_LK_DONE')
    a('    s_waitcnt lgkmcnt(0)')
    for r in range(2):
        a(f'    s_cmp_le_u32 s{sNR}, {r}')
        a('    s_cbranch_scc1 K2_SC_DONE')
        for h in range(4):
            k = 4*r + h
            a(f'    s_mov_b64 exec, s[{sM+2*k}:{sM+2*k+1}]')
            a(f'    v_lshl_add_u32 v{vB+k}, v{vRK+k}, 2, v{vB+k}')
            a(f'    ds_write_b32 v{vB+k}, v{vR+k} offset:{L2_LIST}')
    a.label('K2_SC_DONE')
    a('    s_mov_b64 exec, -1')
    a(f'    s_mul_i32 s{sG0}, s{sR}, s{sWAVE}')
    a(f'    s_add_u32 s{sG1}, s{sG0}, s{sR}')
    a(f'    s_min_u32 s{sG1}, s{sG1}, s{sGT}')
    a(f'    v_lshrrev_b32 v{vSA}, 4, v{vLANE}')
    a(f'    v_lshlrev_b32 v{vSA}, 2, v{vSA}         ; slot*4')
    a(f'    s_lshl_b32 s{sT0}, s{sG0}, 4')
    a(f'    v_add_u32 v{vSA}, s{sT0}, v{vSA}')
    a(f'    v_mov_b32 v{vA}, 0')
    a('    s_waitcnt lgkmcnt(0)')
    a('    s_barrier')
    if PRIO: a('    s_setprio 3')
    stamp(a, 5)

    def tload(k):
        d = vDAT + 4*k
        a(f'    buffer_load_dwordx4 v[{d}:{d+3}], v[{vP+2*k}:{vP+2*k+1}], s[{SRD_T}:{SRD_T+3}], 0 idxen offen')

    a(f'    s_cmp_ge_u32 s{sG0}, s{sG1}')
    a('    s_cbranch_scc1 K2_NOGATH')
    for k in range(U):
        a(f'    ds_read_u16 v{vP+2*k}, v{vSA} offset:{L2_LIST + 16*k}')
    a(f'    ds_read_u16_d16_hi v{vEV}, v{vSA} offset:{L2_LIST + 2}')
    a('    s_waitcnt lgkmcnt(0)')
    for k in range(G0N):
        tload(k)
    a(f'    ds_read_u16 v{vP}, v{vSA} offset:{L2_LIST + 16*U}')
    a.label('K2_NOGATH')
    a(f'    s_cmp_eq_u32 s{sPASS}, 0')
    a('    s_cbranch_scc0 K2_NOTAB')
    a(f'    s_cmp_eq_u32 s{sMODE}, 1')
    a('    s_cbranch_scc1 K2_NOTAB')
    if not ASTAGE:
        a(f'    s_cmp_lt_u32 s{sWAVE}, 12')
        a('    s_cbranch_scc0 K2_NOMFMA')
        a(f'    ds_read_b128 v[{vXO}:{vXO+3}], v{vXRA}')
        a(f'    ds_read_b64_tr_b16 v[{vOP2}:{vOP2+1}], v{vTRA}')
        a(f'    ds_read_b64_tr_b16 v[{vOP2+2}:{vOP2+3}], v{vTRA} offset:{0+512}')
        a(f'    ds_read_b128 v[{vXO+4}:{vXO+7}], v{vXRA} offset:64')
        a(f'    ds_read_b64_tr_b16 v[{vOP2+4}:{vOP2+5}], v{vTRA} offset:{0+4096}')
        a(f'    ds_read_b64_tr_b16 v[{vOP2+6}:{vOP2+7}], v{vTRA} offset:{0+4096+512}')
        a(f'    s_mov_b32 s{sT0}, {hex(f2u(-LOG2E))}')
        a(f'    s_mov_b32 s{sT1}, {hex(f2u(60.0))}')
        a('    s_waitcnt lgkmcnt(3)')
        a(f'    v_mfma_f32_16x16x32_bf16 v[{vAC2}:{vAC2+3}], v[{vOP2}:{vOP2+3}], v[{vXO}:{vXO+3}], 0')
        a('    s_waitcnt lgkmcnt(0)')
        a(f'    v_mfma_f32_16x16x32_bf16 v[{vAC2}:{vAC2+3}], v[{vOP2+4}:{vOP2+7}], v[{vXO+4}:{vXO+7}], v[{vAC2}:{vAC2+3}]')
        a('    s_nop 7')
        for i in range(4):
            a(f'    v_mul_f32 v{vAC2+i}, s{sT0}, v{vAC2+i}')
        for i in range(4):
            a(f'    v_exp_f32 v{vOP2+i}, v{vAC2+i}')
        a(f'    v_max3_f32 v{vA+5}, |v{vAC2}|, |v{vAC2+1}|, |v{vAC2+2}|')
        a(f'    v_max_f32 v{vA+5}, v{vA+5}, |v{vAC2+3}|')
        a(f'    ds_write_b128 v{vEAA}, v[{vOP2}:{vOP2+3}]')
        a(f'    v_cmp_nle_f32 vcc, v{vA+5}, s{sT1}')
        a(f'    v_cmp_gt_u32 s[{sEX}:{sEX+1}], s{sNN}, v{vROW}')
        a(f'    s_and_b64 vcc, vcc, s[{sEX}:{sEX+1}]')
        a(f'    s_and_saveexec_b64 s[{sEX}:{sEX+1}], vcc')
        a('    s_cbranch_execz K2_GUARD_OK')
        a(f'    v_mov_b32 v{vA+5}, 1')
        a(f'    v_mov_b32 v{vA+7}, 0')
        a(f'    ds_write_b32 v{vA+7}, v{vA+5} offset:{L2_FLG+4}')
        unmask(a, sEX, 'K2_GUARD_OK')
    a.label('K2_NOMFMA')
    if not ASTAGE:
        a(f'    v_mov_b32 v{vA}, 0')
        a('    s_waitcnt lgkmcnt(0)')
        a('    s_barrier')
        a(f'    ds_read_b32 v{vA+5}, v{vA} offset:{L2_FLG+4}')
    else:
        a(f'    v_mov_b32 v{vA}, 0')
        a(f'    ds_read_b32 v{vA+5}, v{vA} offset:{L2_FLG+4}')
    a(f'    s_cmp_ge_u32 s{sG0}, s{sG1}')
    a('    s_cbranch_scc1 K2_NOGATH2')
    for k in range(G0N, U):
        tload(k)
    a.label('K2_NOGATH2')
    a(f'    s_cmp_lt_u32 s{sWAVE}, 12')
    a('    s_cbranch_scc0 K2_NOU')
    a(f'    ds_read_b64_tr_b16 v[{vOP2}:{vOP2+1}], v{vTRA} offset:{0+8192}')
    a(f'    ds_read_b64_tr_b16 v[{vOP2+2}:{vOP2+3}], v{vTRA} offset:{0+8192+512}')
    a(f'    ds_read_b64_tr_b16 v[{vOP2+4}:{vOP2+5}], v{vTRA} offset:{0+8192+4096}')
    a(f'    ds_read_b64_tr_b16 v[{vOP2+6}:{vOP2+7}], v{vTRA} offset:{0+8192+4096+512}')
    a('    s_waitcnt lgkmcnt(2)')
    a(f'    v_mfma_f32_16x16x32_bf16 v[{vU}:{vU+3}], v[{vOP2}:{vOP2+3}], v[{vXO}:{vXO+3}], 0')
    a('    s_waitcnt lgkmcnt(0)')
    a(f'    v_mfma_f32_16x16x32_bf16 v[{vU}:{vU+3}], v[{vOP2+4}:{vOP2+7}], v[{vXO+4}:{vXO+7}], v[{vU}:{vU+3}]')
    a(f'    v_mov_b32 v{vUA}, v{vEAA}')
    a.label('K2_NOU')
    a('    s_waitcnt lgkmcnt(0)')
    a(f'    v_readfirstlane_b32 s{sSAFE}, v{vA+5}')
    a('    s_nop 0')
    a(f'    s_cmp_eq_u32 s{sSAFE}, 0')
    a('    s_cbranch_scc1 K2_WAITW')
    a('    s_barrier')
    a(f'    s_cmp_lt_u32 s{sWAVE}, 12')
    a('    s_cbranch_scc0 K2_SAFE_NOW')
    a(f'    ds_write_b128 v{vEAA}, v[{(vAK if ASTAGE else vAC2)}:{(vAK if ASTAGE else vAC2)+3}]')
    a.label('K2_SAFE_NOW')
    a('    s_waitcnt lgkmcnt(0)')
    a('    s_barrier')
    a.label('K2_WAITW')
    a('    s_branch K2_TABDONE')
    a.label('K2_NOTAB')
    a(f'    s_cmp_ge_u32 s{sG0}, s{sG1}')
    a('    s_cbranch_scc1 K2_TABDONE')
    for k in range(G0N, U):
        tload(k)
    a.label('K2_TABDONE')
    dstamp(a, 1)
    a(f'    v_cvt_f32_u32 v{vA}, s{sR}')
    a(f'    v_cvt_f32_u32 v{vA+1}, v{vGS}')
    a(f'    v_rcp_f32 v{vA}, v{vA}')
    a(f'    v_cvt_f32_u32 v{vA+2}, v{vGE}')
    a(f'    v_add_f32 v{vA+1}, 0.5, v{vA+1}')
    a(f'    v_add_f32 v{vA+2}, -0.5, v{vA+2}')
    a(f'    v_mul_f32 v{vA+1}, v{vA+1}, v{vA}')
    a(f'    v_mul_f32 v{vA+2}, v{vA+2}, v{vA}')
    a(f'    v_cvt_u32_f32 v{vA+1}, v{vA+1}          ; wlo')
    a(f'    v_cvt_u32_f32 v{vA+2}, v{vA+2}          ; whi')
    a(f'    v_sub_u32 v{vA+2}, v{vA+2}, v{vA+1}')
    a(f'    v_add_u32 v{vA+2}, 1, v{vA+2}')
    a(f'    v_cmp_eq_u32 vcc, 0, v{vNG}')
    a(f'    v_add_u32 v{vA+1}, v{vA+1}, v{vLANE}')
    a(f'    v_and_b32 v{vA+1}, 0xffff, v{vA+1}')
    a(f'    v_cndmask_b32 v{vA+2}, v{vA+2}, 0, vcc')
    a(f'    v_lshl_or_b32 v{vA+3}, v{vA+2}, 16, v{vA+1}')
    a(f'    v_lshrrev_b32 v{vA}, 4, v0')
    a(f'    v_and_b32 v{vA+4}, 63, v{vA}')
    a(f'    v_lshlrev_b32 v{vA+4}, 2, v{vA+4}')
    a(f'    ds_bpermute_b32 v{vA+1}, v{vA+4}, v{vA+3}')
    a(f'    v_mul_u32_u24 v{vUTA}, {TS}, v{vA}')
    a(f'    v_mul_u32_u24 v{vXTA}, {XS}, v{vA}')
    a(f'    v_lshrrev_b32 v{vA+7}, 1, v{vQ16}')
    a(f'    v_add_u32 v{vUTA}, v{vUTA}, v{vQ16}')
    a(f'    v_add_u32 v{vXTA}, v{vXTA}, v{vA+7}')
    a(f'    v_add_u32 v{vUTA}, {L2_UT}, v{vUTA}')
    a(f'    v_add_u32 v{vXTA}, {L2_XT}, v{vXTA}')
    a(f'    s_lshl_b32 s{sNT}, s{sNN}, 4')
    a(f'    v_cmp_gt_u32 vcc, s{sNT}, v0')
    a('    s_waitcnt lgkmcnt(0)')
    a(f'    v_lshrrev_b32 v{vFC}, 16, v{vA+1}')
    a(f'    v_and_b32 v{vA+1}, 0xffff, v{vA+1}')
    a(f'    v_cndmask_b32 v{vFC}, 0, v{vFC}, vcc')
    a(f'    v_lshl_add_u32 v{vFS}, v{vA+1}, 9, v{vQ16}')
    a(f'    v_cmp_lt_u32 s[{sM}:{sM+1}], 0, v{vFC}')
    a(f'    v_cmp_lt_u32 s[{sM+2}:{sM+3}], 1, v{vFC}')
    a(f'    v_cmp_lt_u32 s[{sM+4}:{sM+5}], 2, v{vFC}')
    a(f'    s_cmp_ge_u32 s{sG0}, s{sG1}')
    a('    s_cbranch_scc1 K2_MAIN_DONE')
    if PRIO:
        a(f'    s_add_u32 s{sT0}, s{sR}, 3')
        a(f'    s_lshr_b32 s{sT0}, s{sT0}, 2            ; iterations')
        for n, reg in zip(PRT, (sPR, sPQ, sPQ2)):
            a(f'    s_mul_i32 s{reg}, s{sT0}, {n}')
            a(f'    s_lshr_b32 s{reg}, s{reg}, 4')
            a(f'    s_add_u32 s{reg}, s{reg}, 1')
        a(f'    s_mov_b32 s{sLVL}, 3')
        a('    s_setprio 3')
    a(f'    s_mov_b32 s{sGEND}, s{sG0}')
    a(f'    s_mov_b32 s{sEAB}, {L2_EAT}')
    a(f'    s_cmp_eq_u32 s{sSAFE}, 0')
    a('    s_cbranch_scc0 K2S_ENTER')
    a('    s_branch K2F_ENTER')

    def next_node():
        a(f'    v_cmp_ge_u32 vcc, s{sGEND}, v{vGS}')
        a(f'    s_bcnt1_i32_b64 s{sT0}, vcc')
        a(f'    s_sub_u32 s{sNODE}, s{sT0}, 1')
        a(f'    v_readlane_b32 s{sT1}, v{vGS}, s{sT0}')
        a(f'    s_mul_i32 s{sT0}, s{sNODE}, {TS}')
        a(f'    s_add_u32 s{sT0}, s{sT0}, s{sEAB}')
        a(f'    v_add_u32 v{vEAA}, s{sT0}, v{vQ16}')
        a(f'    ds_read_b128 v[{vEA}:{vEA+3}], v{vEAA}')
        a(f'    s_min_u32 s{sT1}, s{sT1}, s{sG1}')
        a(f'    s_sub_u32 s{sLEFT}, s{sT1}, s{sGEND}')
        a(f'    s_sub_u32 s{sLEFT}, s{sLEFT}, 1')
        a(f'    s_mov_b32 s{sGEND}, s{sT1}')

    def set_slot():
        a(f'    s_add_u32 s{sSLOT}, s{sNODE}, s{sWAVE}')
        a(f'    s_lshl_b32 s{sSLOT}, s{sSLOT}, 9')

    def flush():
        a(f'    v_add_u32 v{vACC}, s{sSLOT}, v{vFL}')
        for i in range(4):
            a(f'    v_permlane32_swap_b32 v{vDEN+i}, v{vNUM+i}')
        a(f'    v_pk_add_f32 v[{vDEN}:{vDEN+1}], v[{vDEN}:{vDEN+1}], v[{vNUM}:{vNUM+1}]')
        a(f'    v_pk_add_f32 v[{vDEN+2}:{vDEN+3}], v[{vDEN+2}:{vDEN+3}], v[{vNUM+2}:{vNUM+3}]')
        a('    s_nop 1')
        a(f'    v_permlane16_swap_b32 v{vDEN}, v{vDEN+2}')
        a(f'    v_permlane16_swap_b32 v{vDEN+1}, v{vDEN+3}')
        a(f'    v_pk_add_f32 v[{vNUM}:{vNUM+1}], v[{vDEN}:{vDEN+1}], v[{vDEN+2}:{vDEN+3}]')
        a(f'    ds_write_b64 v{vACC}, v[{vNUM}:{vNUM+1}] offset:{L2_SLOT}')

    def step(k, safe, init):
        d = vDAT + 4*k
        ev = vEV + (k & 1); evn = vEV + ((k+1) & 1)
        pn = vP + 2*((k+1) % U)
        for i in range(4):
            a(f'    v_fma_mix_f32 v{vT+i}, v{ev}, v{vWC+i}, v{d+i} op_sel:[0,0,0] op_sel_hi:[0,0,1]')
        a(f'    ds_read_u16_d16_hi v{evn}, v{vSA} offset:{L2_LIST + 16*(k+1) + 2}')
        a(f'    ds_read_u16 v{pn}, v{vSA} offset:{L2_LIST + 16*(k+1+U)}')
        if init and safe:
            a('    s_waitcnt lgkmcnt(3)')
        if safe:
            a(f'    v_pk_add_f32 v[{vT}:{vT+1}], v[{vT}:{vT+1}], v[{vEA}:{vEA+1}]')
            a(f'    v_pk_add_f32 v[{vT+2}:{vT+3}], v[{vT+2}:{vT+3}], v[{vEA+2}:{vEA+3}]')
        for i in range(4):
            a(f'    v_exp_f32 v{vT+i}, v{vT+i}')
        if init and not safe:
            a('    s_waitcnt lgkmcnt(3)')
        if safe:
            a(f'    v_pk_add_f32 v[{vT}:{vT+1}], v[{vT}:{vT+1}], 1.0 op_sel_hi:[1,0]')
            a(f'    v_pk_add_f32 v[{vT+2}:{vT+3}], v[{vT+2}:{vT+3}], 1.0 op_sel_hi:[1,0]')
        else:
            a(f'    v_pk_fma_f32 v[{vT}:{vT+1}], v[{vEA}:{vEA+1}], v[{vT}:{vT+1}], 1.0 op_sel_hi:[1,1,0]')
            a(f'    v_pk_fma_f32 v[{vT+2}:{vT+3}], v[{vEA+2}:{vEA+3}], v[{vT+2}:{vT+3}], 1.0 op_sel_hi:[1,1,0]')
        if init:
            for i in range(4):
                a(f'    v_rcp_f32 v{vDEN+i}, v{vT+i}')
            a('    s_nop 0')
            a(f'    v_pk_mul_f32 v[{vNUM}:{vNUM+1}], v[{vDEN}:{vDEN+1}], v[{d}:{d+1}]')
            a(f'    v_pk_mul_f32 v[{vNUM+2}:{vNUM+3}], v[{vDEN+2}:{vDEN+3}], v[{d+2}:{d+3}]')
        else:
            for i in range(4):
                a(f'    v_rcp_f32 v{vT+i}, v{vT+i}')
            a(f'    v_pk_add_f32 v[{vDEN}:{vDEN+1}], v[{vDEN}:{vDEN+1}], v[{vT}:{vT+1}]')
            a(f'    v_pk_add_f32 v[{vDEN+2}:{vDEN+3}], v[{vDEN+2}:{vDEN+3}], v[{vT+2}:{vT+3}]')
            a(f'    v_pk_fma_f32 v[{vNUM}:{vNUM+1}], v[{vT}:{vT+1}], v[{d}:{d+1}], v[{vNUM}:{vNUM+1}]')
            a(f'    v_pk_fma_f32 v[{vNUM+2}:{vNUM+3}], v[{vT+2}:{vT+3}], v[{d+2}:{d+3}], v[{vNUM+2}:{vNUM+3}]')
        tload(k)
        if k == U-1:
            a(f'    v_add_u32 v{vSA}, {16*U}, v{vSA}')

    def loopback(pfx):
        if PRIO:
            a(f'    s_sub_u32 s{sPR}, s{sPR}, 1')
            a(f'    s_cmp_lg_u32 s{sPR}, 0')
            a(f'    s_cbranch_scc1 {pfx}_STEP0')
            a(f'    s_branch {pfx}_PRIO')
        else:
            a(f'    s_branch {pfx}_STEP0')

    for pfx, safe in (('K2F', False), ('K2S', True)):
        a.label(f'{pfx}_ENTER')
        next_node()
        set_slot()
        a('    s_waitcnt vmcnt(3) lgkmcnt(0)')
        dstamp(a, 2)
        step(0, safe, True)
        a(f'    s_branch {pfx}_STEP1')
        for k in range(U):
            a.label(f'{pfx}_STEP{k}')
            a(f'    s_waitcnt vmcnt({U-1}) lgkmcnt(0)')
            a(f'    s_sub_u32 s{sLEFT}, s{sLEFT}, 1')
            a(f'    s_cbranch_scc1 {pfx}_FLUSH{k}')
            step(k, safe, False)
            if k == U-1:
                loopback(pfx)
        for k in range(U):
            a.label(f'{pfx}_FLUSH{k}')
            a(f'    s_cmp_ge_u32 s{sGEND}, s{sG1}')
            a(f'    s_cbranch_scc1 K2_LAST')
            next_node()
            flush()
            set_slot()
            step(k, safe, True)
            if k == U-1:
                loopback(pfx)
            else:
                a(f'    s_branch {pfx}_STEP{k+1}')
        if PRIO:
            a.label(f'{pfx}_PRIO')
            a(f'    s_sub_u32 s{sLVL}, s{sLVL}, 1')
            a(f'    s_cmp_eq_u32 s{sLVL}, 2')
            a(f'    s_cbranch_scc1 {pfx}_PRIO2')
            a(f'    s_cmp_eq_u32 s{sLVL}, 1')
            a(f'    s_cbranch_scc1 {pfx}_PRIO1')
            a(f'    s_mov_b32 s{sPR}, 0x7fffffff')
            a('    s_setprio 0')
            a(f'    s_branch {pfx}_STEP0')
            a.label(f'{pfx}_PRIO2')
            a(f'    s_mov_b32 s{sPR}, s{sPQ}')
            a('    s_setprio 2')
            a(f'    s_branch {pfx}_STEP0')
            a.label(f'{pfx}_PRIO1')
            a(f'    s_mov_b32 s{sPR}, s{sPQ2}')
            a('    s_setprio 1')
            a(f'    s_branch {pfx}_STEP0')
    a.label('K2_LAST')
    dstamp(a, 3)
    flush()
    a.label('K2_MAIN_DONE')
    if PRIO: a('    s_setprio 0')
    a(f'    s_cmp_eq_u32 s{sPASS}, 0')
    a('    s_cbranch_scc0 K2_NOUST')
    a(f'    s_cmp_eq_u32 s{sMODE}, 1')
    a('    s_cbranch_scc1 K2_NOUST')
    a(f'    s_cmp_lt_u32 s{sWAVE}, 12')
    a('    s_cbranch_scc0 K2_NOUST')
    a(f'    ds_write_b128 v{vUA}, v[{vU}:{vU+3}] offset:{L2_UT-L2_EAT}')
    a.label('K2_NOUST')
    a(f'    s_cmp_eq_u32 s{sMODE}, 2')
    a('    s_cbranch_scc0 K2_NOABORT')
    a(f'    s_mov_b32 s{sMODE}, 1')
    a(f'    s_mov_b32 s{sPASS}, 0')
    a('    s_waitcnt vmcnt(0) lgkmcnt(0)')
    a('    s_barrier')
    a('    s_branch K2_PASS')
    a.label('K2_NOABORT')
    a('    s_waitcnt lgkmcnt(0)')
    stamp(a, 6)
    a('    s_barrier')
    S0 = 76; S1 = 84; UU = 92; XX = 104
    a(f'    s_mov_b64 exec, s[{sM}:{sM+1}]')
    a(f'    ds_read_b128 v[{S0}:{S0+3}], v{vFS} offset:{L2_SLOT}')
    a(f'    ds_read_b128 v[{S0+4}:{S0+7}], v{vFS} offset:{L2_SLOT+256}')
    a(f'    s_mov_b64 exec, s[{sM+2}:{sM+3}]')
    a(f'    ds_read_b128 v[{S1}:{S1+3}], v{vFS} offset:{L2_SLOT+512}')
    a(f'    ds_read_b128 v[{S1+4}:{S1+7}], v{vFS} offset:{L2_SLOT+512+256}')
    a('    s_mov_b64 exec, -1')
    a(f'    ds_read_b128 v[{UU}:{UU+3}], v{vUTA}')
    a(f'    ds_read_b64 v[{XX}:{XX+1}], v{vXTA}')
    a(f'    s_mov_b64 exec, s[{sM}:{sM+1}]')
    a('    s_waitcnt lgkmcnt(4)')
    for b, acc in ((S0, vDA), (S0+2, vDA+2), (S0+4, vNA), (S0+6, vNA+2)):
        a(f'    v_pk_add_f32 v[{acc}:{acc+1}], v[{acc}:{acc+1}], v[{b}:{b+1}]')
    a(f'    s_mov_b64 exec, s[{sM+2}:{sM+3}]')
    a('    s_waitcnt lgkmcnt(2)')
    for b, acc in ((S1, vDA), (S1+2, vDA+2), (S1+4, vNA), (S1+6, vNA+2)):
        a(f'    v_pk_add_f32 v[{acc}:{acc+1}], v[{acc}:{acc+1}], v[{b}:{b+1}]')
    a('    s_mov_b64 exec, -1')
    a(f'    s_cmp_eq_u64 s[{sM+4}:{sM+5}], 0')
    a('    s_cbranch_scc1 K2_FOLD_END')
    a(f'    v_add_u32 v{vFS}, 1024, v{vFS}')
    a(f'    v_add_u32 v{vFC}, -2, v{vFC}')
    a.label('K2_FOLD')
    masked(a, f'v_cmp_lt_i32 vcc, 0, v{vFC}', sEX, 'K2_FOLD_DONE')
    a(f'    ds_read_b128 v[{S0}:{S0+3}], v{vFS} offset:{L2_SLOT}')
    a(f'    ds_read_b128 v[{S0+4}:{S0+7}], v{vFS} offset:{L2_SLOT+256}')
    a(f'    v_add_u32 v{vFS}, 512, v{vFS}')
    a(f'    v_add_u32 v{vFC}, -1, v{vFC}')
    a('    s_waitcnt lgkmcnt(0)')
    for b, acc in ((S0, vDA), (S0+2, vDA+2), (S0+4, vNA), (S0+6, vNA+2)):
        a(f'    v_pk_add_f32 v[{acc}:{acc+1}], v[{acc}:{acc+1}], v[{b}:{b+1}]')
    unmask(a, sEX)
    a('    s_branch K2_FOLD')
    unmask(a, sEX, 'K2_FOLD_DONE')
    a.label('K2_FOLD_END')
    a(f'    s_cmp_eq_u32 s{sMODE}, 0')
    a('    s_cbranch_scc1 K2_EPI')
    a(f'    s_add_u32 s{sPASS}, s{sPASS}, 1')
    a(f'    s_cmp_lt_u32 s{sPASS}, {NC}')
    a('    s_cbranch_scc0 K2_EPI')
    a('    s_waitcnt vmcnt(0) lgkmcnt(0)')
    a('    s_barrier                               ; slots consumed before the next pass')
    a('    s_branch K2_PASS')
    a.label('K2_EPI')
    masked(a, f'v_cmp_gt_u32 vcc, s{sNT}, v0', sEX, 'K2_FIN')
    a(f'    s_mov_b32 s{sT0}, {hex(f2u(1e-6))}')
    for i in range(4):
        a(f'    v_add_f32 v{vDA+i}, s{sT0}, v{vDA+i}')
    for i in range(4):
        a(f'    v_rcp_f32 v{vDA+i}, v{vDA+i}')
    a('    s_waitcnt lgkmcnt(0)')
    a(f'    v_lshlrev_b32 v{vT}, 16, v{XX}')
    a(f'    v_and_b32 v{vT+1}, 0xffff0000, v{XX}')
    a(f'    v_lshlrev_b32 v{vT+2}, 16, v{XX+1}')
    a(f'    v_and_b32 v{vT+3}, 0xffff0000, v{XX+1}')
    for i in range(4):
        a(f'    v_fma_f32 v{vNA+i}, v{vNA+i}, v{vDA+i}, v{UU+i}    ; z = U + agg')
    for i in range(4):
        a(f'    v_cmp_lt_f32 s[{sM+2*i}:{sM+2*i+1}], 0, v{vNA+i}')
    for i in range(4):
        a(f'    v_mul_f32 v{vDEN+i}, 0, v{vNA+i}                     ; 0*z')
    for i in range(4):
        a(f'    v_cndmask_b32 v{vNA+i}, v{vDEN+i}, v{vNA+i}, s[{sM+2*i}:{sM+2*i+1}]')
    for i in range(4):
        a(f'    v_add_f32 v{vNA+i}, v{vNA+i}, v{vT+i}')
    a(f'    s_lshl_b32 s{sT1}, s{sN0}, 7')
    a(f'    v_lshlrev_b32 v{vA+1}, 3, v0')
    a(f'    v_cvt_pk_bf16_f32 v{vDEN}, v{vNA}, v{vNA+1}')
    a(f'    v_cvt_pk_bf16_f32 v{vDEN+1}, v{vNA+2}, v{vNA+3}')
    a(f'    buffer_store_dwordx2 v[{vDEN}:{vDEN+1}], v{vA+1}, s[{SRD_OUT}:{SRD_OUT+3}], s{sT1} offen {OUTST}')
    a.label('K2_FIN')
    if STAMP:
        a('    s_mov_b64 exec, -1')
        a('    s_waitcnt vmcnt(0)')
    stamp(a, 7); stamp(a, 1, True)
    stamp_flush(a, sWAVE, sB, 1, 6)
    a.label('K2_END')
    a('    s_endpgm')
    a.label('CODE_END')

def gen_k3(a):
    i, j = [int(x) for x in env('INTERVAL', '0,0').split(',')]
    inv = {0: True, 2: True}
    a('.globl k3_kernel')
    a('.p2align 8')
    a('.type k3_kernel,@function')
    a.label('k3_kernel')
    a('    s_cmp_ge_u32 s2, 1')
    a('    s_cbranch_scc1 K3_END')
    a('    s_load_dwordx2 s[4:5], s[0:1], 80')
    a('    s_waitcnt lgkmcnt(0)')
    a('    v_mov_b32 v1, 0')
    a(f'    global_load_dword v2, v1, s[4:5] offset:{4*i} sc1')
    a(f'    global_load_dword v3, v1, s[4:5] offset:{4*j} sc1')
    a('    s_waitcnt vmcnt(0)')
    if inv.get(i): a('    v_not_b32 v2, v2')
    if inv.get(j): a('    v_not_b32 v3, v3')
    a('    v_sub_u32 v3, v3, v2')
    a('    s_nop 1')
    a('    v_readfirstlane_b32 s8, v3')
    a('    s_nop 3')
    a('    s_mul_i32 s8, s8, 10')
    a('    s_min_u32 s8, s8, 50000')
    a('    s_memrealtime s[10:11]')
    a('    s_waitcnt lgkmcnt(0)')
    a.label('K3_SPIN')
    a('    s_memrealtime s[12:13]')
    a('    s_waitcnt lgkmcnt(0)')
    a('    s_sub_u32 s9, s12, s10')
    a('    s_cmp_lt_u32 s9, s8')
    a('    s_cbranch_scc1 K3_SPIN')
    a.label('K3_END')
    a('    s_endpgm')

def kd(a, name, vgpr, sgpr):
    a(f'.amdhsa_kernel {name}')
    a(f'  .amdhsa_next_free_vgpr {vgpr}')
    a(f'  .amdhsa_next_free_sgpr {sgpr}')
    a(f'  .amdhsa_accum_offset {((vgpr+3)//4)*4}')
    a('  .amdhsa_group_segment_fixed_size 0')
    a('  .amdhsa_kernarg_size 96')
    a('  .amdhsa_user_sgpr_count 2')
    a('  .amdhsa_user_sgpr_kernarg_segment_ptr 1')
    a('  .amdhsa_system_sgpr_workgroup_id_x 1')
    a('  .amdhsa_float_denorm_mode_32 3')
    a('.end_amdhsa_kernel')

def main(out):
    a = Asm()
    a(f'; @launch kernel=k1_kernel grid=({K1_GRID},1,1) block=(1024,1,1) lds={K1_LDS}')
    a(f'; @launch kernel=k2_kernel grid=({NB},1,1) block=(1024,1,1) lds={K2_LDS}')
    if STAMP == 4: a('; @launch kernel=k3_kernel grid=(1,1,1) block=(64,1,1) lds=0')
    a('.amdgcn_target "amdgcn-amd-amdhsa--gfx950"')
    a('.text')
    a('.globl k1_kernel')
    gen_k1(a)
    a('.globl k2_kernel')
    gen_k2(a)
    if STAMP == 4: gen_k3(a)
    a('.section .rodata,"a"')
    a('.p2align 6')
    kd(a, 'k1_kernel', 96, 102 if STAMP else 72)
    a('.p2align 6')
    kd(a, 'k2_kernel', 128, 102 if STAMP else 80)
    if STAMP == 4:
        a('.p2align 6')
        kd(a, 'k3_kernel', 8, 32)
    a.l = [x for x in a.l if x is not None]
    open(out, 'w').write(a.text())

if __name__ == '__main__':
    main(sys.argv[1] if len(sys.argv) > 1 else 'standalone__edge_featured_mpnn_gatedgcn__graph.s')
```

```python
import sys, os, struct
def env(n, d): return os.environ.get(n, d)

N = 10000; E = 640000
NPB = 40; NB = 256; EPC = 2500; NC = 256
TPC = EPC//4
BMAGIC = 109951163
LOG2E = 1.4426950408889634
WS_REC  = 0
REC_STRIDE = EPC*5
WS_DESC = 3407872
DESC_STRIDE = 1024
WS_T    = 4194304
T_BYTES = (N+1)*256

STAMP = int(env('STAMP', '0'))
K1ST = env('K1ST', 'sc1')
PRIO = int(env('PRIO', '1'))
TFIRST = int(env('TFIRST', '1'))
XLATE = int(env('XLATE', '1'))
WS_STAMP = 128 << 20
ST0 = 80

def f2u(f): return struct.unpack('<I', struct.pack('<f', f))[0]

class Asm:
    def __init__(self): self.l = []
    def __call__(self, s=''):
        for line in s.split('\n'): self.l.append(line)
    def label(self, n): self.l.append(n + ':')
    def text(self): return '\n'.join(self.l) + '\n'

DETAIL = int(env('DETAIL', '0'))
def dstamp(a, i):
    if DETAIL: stamp(a, i, False, True)
def stamp(a, i, real=False, force=False):
    if DETAIL and not force and not real and getattr(a, 'k2', False) and i in (1, 2, 3): return
    if STAMP:
        r = ST0 + 2*(8+i if real else i)
        a(f"    {'s_memrealtime' if (real or STAMP >= 3) else 's_memtime'} s[{r}:{r+1}]")
def stamp_flush(a, wave_sgpr, wg_sgpr, kern, ws_lo):
    if not STAMP: return
    a('    s_waitcnt lgkmcnt(0)')
    a('    s_mov_b64 exec, 1')
    a('    v_mov_b32 v2, 0')
    if STAMP == 4:
        lab = f'STSKIP{kern}_{len(a.l)}'
        a(f"    s_and_b32 s14, s{wg_sgpr}, {31 if kern == 0 else int(env('SAMP2', '31'))}")
        a('    s_cmp_eq_u32 s14, 0')
        a(f'    s_cbranch_scc0 {lab}')
        a(f'    s_cmp_eq_u32 s{wave_sgpr}, 0')
        a(f'    s_cbranch_scc0 {lab}')
        a('    s_load_dwordx2 s[12:13], s[0:1], 80')
        a('    s_waitcnt lgkmcnt(0)')
        a(f'    s_add_u32 s12, s12, {1024 if kern == 0 else 512}')
        a('    s_addc_u32 s13, s13, 0')
        slots = [(0, 8, True), (1, 9, False), (7, 4, False), (8, 2, False)] if kern == 0 else \
                [(2, 8, True), (3, 4, False), (4, 5, False), (5, 6, False), (6, 9, False), (9, 2, False)]
        for slot, st, inv in slots:
            a(f'    v_mov_b32 v3, s{ST0+2*st}')
            if inv: a('    v_not_b32 v3, v3')
            a(f'    global_atomic_umax v2, v3, s[12:13] offset:{4*slot}')
        a('    s_waitcnt vmcnt(0)')
        a.label(lab)
        return
    a(f'    s_add_u32 s12, s{ws_lo}, {WS_STAMP + kern*(4<<20)}')
    a(f'    s_addc_u32 s13, s{ws_lo+1}, 0')
    a(f'    s_mov_b32 s14, {4<<20}')
    a('    s_mov_b32 s15, 0x00020000')
    a(f'    s_lshl_b32 s16, s{wg_sgpr}, 4')
    a(f'    s_add_u32 s16, s16, s{wave_sgpr}')
    a(f'    s_lshl_b32 s16, s16, 6')
    for i in range(8):
        a(f'    v_mov_b32 v3, s{ST0+2*i}')
        a(f'    buffer_store_dword v3, v2, s[12:15], s16 offen offset:{4*i}')
    for i in range(2):
        a(f'    v_mov_b32 v3, s{ST0+2*(8+i)}')
        a(f'    buffer_store_dword v3, v2, s[12:15], s16 offen offset:{4*(10+i)}')
    a('    s_waitcnt vmcnt(0)')

def srd(a, sreg, lo, hi, nbytes, off=0, stride=0, nrec=None):
    if off:
        a(f'    s_add_u32 s{sreg}, s{lo}, {off}')
        a(f'    s_addc_u32 s{sreg+1}, s{hi}, 0')
    else:
        a(f'    s_mov_b32 s{sreg}, s{lo}')
        a(f'    s_mov_b32 s{sreg+1}, s{hi}')
    if stride:
        a(f'    s_and_b32 s{sreg+1}, s{sreg+1}, 0xffff')
        a(f'    s_or_b32 s{sreg+1}, s{sreg+1}, {stride << 16}')
        a(f'    s_mov_b32 s{sreg+2}, {nrec}')
    else:
        a(f'    s_mov_b32 s{sreg+2}, {nbytes}')
    a(f'    s_mov_b32 s{sreg+3}, 0x00020000')

def dpp_scan(a, v):
    for sh in (1, 2, 4, 8):
        a('    s_nop 1')
        a(f'    v_add_u32_dpp v{v}, v{v}, v{v} row_shr:{sh} row_mask:0xf bank_mask:0xf')
    a('    s_nop 1')
    a(f'    v_add_u32_dpp v{v}, v{v}, v{v} row_bcast:15 row_mask:0xa bank_mask:0xf')
    a('    s_nop 1')
    a(f'    v_add_u32_dpp v{v}, v{v}, v{v} row_bcast:31 row_mask:0xc bank_mask:0xf')

def masked(a, cond, exreg, skip=None):
    a(f'    {cond}')
    a(f'    s_and_saveexec_b64 s[{exreg}:{exreg+1}], vcc')
    if skip: a(f'    s_cbranch_execz {skip}')
def unmask(a, exreg, skip=None):
    if skip: a.label(skip)
    a(f'    s_mov_b64 exec, s[{exreg}:{exreg+1}]')

def lds_sync(a, name, off, n, vzero, vone, vt, st):
    a('    s_waitcnt lgkmcnt(0)')
    a('    s_mov_b64 exec, 1')
    a(f'    ds_add_u32 v{vzero}, v{vone} offset:{off}')
    a('    s_mov_b64 exec, -1')
    a.label(name)
    a(f'    ds_read_b32 v{vt}, v{vzero} offset:{off}')
    a('    s_waitcnt lgkmcnt(0)')
    a(f'    v_readfirstlane_b32 s{st}, v{vt}')
    a(f'    s_cmp_lt_u32 s{st}, {n}')
    a(f'    s_cbranch_scc1 {name}')

K1_GRID = NC
L1_HIST = 0; L1_START = 1024; L1_SYNC = 2048
L1_ST32 = 2304; L1_ST8 = L1_ST32 + 2560*4; L1_W = 15360
K1_LDS = L1_W + 16384
K1PF = int(env('K1PF', '0'))
CPF = int(env('CPF', '1'))
XMAP = int(env('XMAP', '1'))
DESCT = int(env('DESCT', '1'))
DESCST = env('DESCST', '')
OUTST = env('OUTST', '')
RECST = env('RECST', K1ST)
TST = env('TST', K1ST)
TFIRST = int(env('TFIRST', '1'))
XLATE = int(env('XLATE', '1'))

def gen_k1(a):
    a('.p2align 8')
    a('.type k1_kernel,@function')
    a.label('k1_kernel')
    a(f'    s_cmp_ge_u32 s2, {K1_GRID}')
    a('    s_cbranch_scc1 K1_END')
    stamp(a, 0); stamp(a, 0, True)
    if CPF:
        a('    s_getpc_b64 s[30:31]')
        a.label('K1_PC')
        a('    v_lshlrev_b32 v90, 7, v0')
        lim = 'CODE_END-K1_PC' if CPF >= 2 else 'k2_kernel-K1_PC'
        a(f'    v_cmp_gt_u32 vcc, {lim}, v90')
        a('    s_and_saveexec_b64 s[28:29], vcc')
        a('    s_cbranch_execz K1_NOCPF')
        a('    global_load_dword v91, v90, s[30:31]')
        a.label('K1_NOCPF')
        a('    s_mov_b64 exec, s[28:29]')
    if XMAP:
        a('    s_and_b32 s20, s2, 7')
        a('    s_lshr_b32 s21, s2, 3')
        a('    s_lshl_b32 s20, s20, 5')
        a('    s_add_u32 s2, s20, s21')
    a('    v_lshrrev_b32 v1, 6, v0')
    a('    s_load_dwordx4 s[8:11], s[0:1], 16')
    a('    v_readfirstlane_b32 s20, v1')
    a('    s_load_dwordx2 s[4:5], s[0:1], 8      ; e_attr')
    a('    s_load_dwordx2 s[6:7], s[0:1], 88     ; ws')
    a('    v_and_b32 v2, 63, v0                   ; lane')
    if TFIRST:
        a('    s_cmp_lt_u32 s20, 6')
        a('    s_cbranch_scc1 K1_TABLE')
        a('    v_subrev_u32 v0, 384, v0')
        a('    s_sub_u32 s20, s20, 6')
    else:
        a('    s_cmp_ge_u32 s20, 10')
        a('    s_cbranch_scc1 K1_TABLE')
    a('    v_mov_b32 v5, 0')
    a('    v_lshlrev_b32 v6, 2, v0               ; t*4')
    masked(a, 'v_cmp_gt_u32 vcc, 256, v0', 30)
    a(f'    ds_write_b32 v6, v5 offset:{L1_HIST}')
    unmask(a, 30)
    a('    v_lshlrev_b32 v3, 4, v0               ; t*16')
    a('    v_lshlrev_b32 v4, 3, v0               ; t*8')
    a(f'    s_mul_i32 s21, s2, {EPC*4}')
    a(f'    s_mul_i32 s22, s2, {EPC*2}')
    a(f'    s_mov_b32 s23, {BMAGIC}')
    a(f'    v_mov_b32 v19, {TPC}')
    a('    v_cmp_gt_u32 s[46:47], v19, v0')
    a('    s_waitcnt lgkmcnt(0)')
    srd(a, 12, 10, 11, E*4)
    a('    buffer_load_dwordx4 v[8:11], v3, s[12:15], s21 offen     ; dst x4')
    srd(a, 16, 8, 9, E*4)
    a('    buffer_load_dwordx4 v[12:15], v3, s[16:19], s21 offen    ; src x4')
    srd(a, 24, 4, 5, E*2)
    a('    buffer_load_dwordx2 v[16:17], v4, s[24:27], s22 offen')
    srd(a, 32, 6, 7, NC*REC_STRIDE, off=WS_REC)
    srd(a, 36, 6, 7, NB*DESC_STRIDE, off=WS_DESC)
    a('    v_lshlrev_b32 v6, 4, v2                ; lane*16')
    a('    v_mul_u32_u24 v7, 20, v0')
    a('    v_lshlrev_b32 v18, 12, v2')
    a(f'    s_mul_i32 s25, s2, {REC_STRIDE}')
    a('    s_lshl_b32 s26, s2, 2')
    a('    s_mov_b32 s40, 0x06050400')
    a('    s_mov_b32 s41, 0x05040003')
    a('    s_mov_b32 s42, 0x03020500')
    a('    s_mov_b32 s43, 0x04000302')
    a('    s_mov_b32 s44, 0x03060100')
    a('    s_mov_b32 s45, 0x07030201')
    stamp(a, 1)
    a('    s_barrier')
    a('    v_mov_b32 v5, 1')
    a('    v_mov_b32 v19, 0')
    a('    s_waitcnt vmcnt(2)')
    stamp(a, 2)
    for k in range(4):
        a(f'    v_mul_hi_u32 v{20+k}, s23, v{8+k}        ; bucket')
    for k in range(4):
        a(f'    v_lshlrev_b32 v{24+k}, 2, v{20+k}       ; bucket*4')
    a('    s_mov_b64 exec, s[46:47]')
    for k in range(4):
        a(f'    ds_add_rtn_u32 v{28+k}, v{24+k}, v5 offset:{L1_HIST}')
    a('    s_mov_b64 exec, -1')
    a('    s_movk_i32 s27, 625')
    for k in range(4):
        a(f'    v_mad_u32_u24 v{20+k}, v{20+k}, s27, 15')
    for k in range(4):
        a(f'    v_lshrrev_b32 v{20+k}, 4, v{20+k}')
    for k in range(4):
        a(f'    v_sub_u32 v{20+k}, v{8+k}, v{20+k}')
    for k in range(4):
        a(f'    v_lshlrev_b32 v{20+k}, 2, v{20+k}')
    a('    s_waitcnt vmcnt(0)')
    a('    v_lshl_or_b32 v32, v16, 16, v12')
    a('    s_mov_b32 s24, 0xffff0000')
    a('    v_and_or_b32 v33, v16, s24, v13')
    a('    v_lshl_or_b32 v34, v17, 16, v14')
    a('    v_and_or_b32 v35, v17, s24, v15')
    a('    s_waitcnt lgkmcnt(0)')
    stamp(a, 3)
    lds_sync(a, 'K1_SYNC2', L1_SYNC+4, 10, 19, 5, 25+40, 27)
    stamp(a, 4)
    a(f'    ds_read_b128 v[40:43], v6 offset:{L1_HIST}')
    a('    s_waitcnt lgkmcnt(0)')
    a('    v_add_u32 v44, v40, v41                ; h0+h1')
    a('    v_add_u32 v45, v44, v42')
    a('    v_add_u32 v46, v45, v43                ; sum4')
    a('    v_mov_b32 v47, v46')
    dpp_scan(a, 47)
    a('    v_sub_u32 v48, v47, v46')
    a('    v_add_u32 v49, v48, v40')
    a('    v_add_u32 v50, v48, v44')
    a('    v_add_u32 v51, v48, v45')
    a(f'    ds_write_b128 v6, v[48:51] offset:{L1_START}')
    a('    s_waitcnt lgkmcnt(0)')
    for k in range(4):
        a(f'    ds_read_b32 v{56+k}, v{24+k} offset:{L1_START}')
    for k in range(4):
        a(f'    v_lshl_or_b32 v{52+k}, v{40+k}, 16, v{48+k}')
    a('    s_waitcnt lgkmcnt(0)')
    for k in range(4):
        a(f'    v_add_u32 v{56+k}, v{56+k}, v{28+k}      ; position')
    a('    s_mov_b64 exec, s[46:47]')
    for k in range(4):
        a(f'    ds_write_b8 v{56+k}, v{20+k} offset:{L1_ST8}')
        a(f'    v_lshlrev_b32 v{60+k}, 2, v{56+k}')
    for k in range(4):
        a(f'    ds_write_b32 v{60+k}, v{32+k} offset:{L1_ST32}')
    a('    s_mov_b64 exec, -1')
    a('    s_waitcnt lgkmcnt(0)')
    stamp(a, 5)
    lds_sync(a, 'K1_SYNC3', L1_SYNC+8, 10, 19, 5, 25+40, 27)
    a(f'    ds_read_b128 v[8:11], v3 offset:{L1_ST32}')
    a('    v_lshrrev_b32 v4, 2, v3                ; t*4')
    a(f'    ds_read_b32 v12, v4 offset:{L1_ST8}')
    a('    s_waitcnt lgkmcnt(0)')
    a('    v_perm_b32 v21, v9, v12, s40           ; d1 = L0 r1.b0 r1.b1 r1.b2')
    a('    v_perm_b32 v22, v10, v9, s41           ; r1.b3 . r2.b0 r2.b1')
    a('    v_perm_b32 v23, v11, v10, s43          ; r2.b2 r2.b3 . r3.b0')
    a('    v_mov_b32 v20, v8')
    a('    v_perm_b32 v22, v12, v22, s42          ; d2 : insert L1')
    a('    v_perm_b32 v23, v12, v23, s44          ; d3 : insert L2')
    a('    v_perm_b32 v24, v12, v11, s45          ; d4 = r3.b1 r3.b2 r3.b3 L3')
    a('    s_mov_b64 exec, s[46:47]')
    a(f'    buffer_store_dwordx4 v[20:23], v7, s[32:35], s25 offen {RECST}')
    a(f'    buffer_store_dword v24, v7, s[32:35], s25 offen offset:16 {RECST}')
    a('    s_mov_b64 exec, -1')
    a('    s_cmp_eq_u32 s20, 0')
    a('    s_cbranch_scc0 K1_SFIN')
    if DESCT:
        for k in range(4):
            a(f'    buffer_store_dword v{52+k}, v18, s[36:39], s26 offen offset:{1024*k} {DESCST}')
    else:
        a('    s_lshl_b32 s26, s2, 10')
        a(f'    buffer_store_dwordx4 v[52:55], v6, s[36:39], s26 offen {DESCST}')
    a.label('K1_SFIN')
    if STAMP:
        stamp(a, 6)
        a('    s_waitcnt vmcnt(0)')
        stamp(a, 7); stamp(a, 1, True)
        stamp_flush(a, 20, 2, 0, 6)
    a('    s_endpgm')
    a.label('K1_TABLE')
    a('    s_load_dwordx2 s[40:41], s[0:1], 40   ; w_b')
    a('    s_load_dwordx2 s[42:43], s[0:1], 64   ; w_v')
    a('    s_load_dwordx2 s[44:45], s[0:1], 0    ; x')
    if K1PF:
        a('    s_load_dwordx2 s[60:61], s[0:1], 32   ; w_a')
        a('    s_load_dwordx4 s[64:67], s[0:1], 48   ; w_c, w_u')
        a('    s_load_dwordx2 s[62:63], s[0:1], 72   ; out')
    a('    s_mov_b32 s21, s20                     ; tw' if TFIRST else '    s_sub_u32 s21, s20, 10                 ; tw')
    a('    v_mov_b32 v5, 0')
    a('    v_lshlrev_b32 v6, 2, v2')
    a('    s_cmp_eq_u32 s21, 0')
    a('    s_cbranch_scc0 K1_T_NOZ')
    masked(a, 'v_cmp_gt_u32 vcc, 4, v2', 30)
    a(f'    ds_write_b32 v6, v5 offset:{L1_SYNC}')
    unmask(a, 30)
    a.label('K1_T_NOZ')
    a('    s_lshr_b32 s22, s21, 1')
    a('    s_lshl_b32 s22, s22, 4                 ; 16*rt')
    a('    v_and_b32 v4, 15, v2')
    a('    v_add_u32 v4, s22, v4')
    a('    v_lshrrev_b32 v5, 4, v2                ; g')
    a('    v_lshlrev_b32 v6, 7, v4')
    a('    v_lshl_add_u32 v6, v5, 4, v6')
    a('    s_mul_i32 s58, s2, 625')
    a('    s_add_u32 s59, s58, 640                ; 625*(c+1) + 15')
    a('    s_add_u32 s58, s58, 15')
    a('    s_lshr_b32 s58, s58, 4')
    a('    s_lshr_b32 s59, s59, 4')
    a('    s_sub_u32 s59, s59, s58')
    a('    s_lshl_b32 s24, s58, 7')
    a('    v_lshlrev_b32 v7, 4, v2                ; lane*16')
    a('    v_bfe_u32 v8, v2, 4, 1')
    a('    v_lshlrev_b32 v8, 1, v8')
    a('    v_and_b32 v9, 7, v2')
    a('    v_xor_b32 v8, v8, v9')
    a('    v_lshrrev_b32 v9, 3, v2')
    a('    v_lshlrev_b32 v9, 7, v9                ; (lane>>3)*128')
    a('    s_waitcnt lgkmcnt(0)')
    for i in range(3):
        a(f'    s_add_u32 s26, s21, {6*i}              ; p')
        a('    s_cmp_lt_u32 s26, 8')
        a('    s_cselect_b32 s48, s40, s42')
        a('    s_cselect_b32 s49, s41, s43')
        a('    s_mov_b32 s50, 8192')
        a('    s_mov_b32 s51, 0x00020000')
        a('    s_and_b32 s27, s26, 7')
        a('    s_lshl_b32 s27, s27, 10')
        a('    s_cmp_lt_u32 s26, 16')
        a(f'    s_cselect_b32 s27, s27, {1<<20}')
        a(f'    buffer_load_dwordx4 v[{48+4*i}:{51+4*i}], v7, s[48:51], s27 offen')
    if XLATE: a('    s_barrier')
    srd(a, 36, 44, 45, N*128)
    a('    buffer_load_dwordx4 v[24:27], v6, s[36:39], s24 offen')
    a('    buffer_load_dwordx4 v[28:31], v6, s[36:39], s24 offen offset:64')
    if K1PF:
        a('    s_cmp_eq_u32 s21, 5')
        a('    s_cbranch_scc0 K1_T_NOPF')
        a('    v_lshlrev_b32 v60, 8, v2')
        a('    v_lshlrev_b32 v61, 7, v2')
        a('    global_load_dword v62, v61, s[60:61]')
        a('    global_load_dword v62, v61, s[66:67]')
        a('    v_mov_b32 v63, 0')
        a('    global_load_dword v62, v63, s[64:65]')
        a('    s_lshl_b32 s26, s58, 7')
        a('    v_mov_b32 v63, s26')
        a('    global_load_dword v62, v63, s[62:63]')
        srd(a, 52, 6, 7, WS_T + T_BYTES, off=0)
        a(f'    s_mul_i32 s26, s2, {REC_STRIDE}')
        a('    v_mov_b32 v63, s26')
        a('    buffer_load_dword v62, v63, s[52:55], 0 offen')
        a('    s_lshl_b32 s26, s58, 8')
        a(f'    s_add_u32 s26, s26, {WS_T}')
        a('    v_mov_b32 v63, s26')
        a('    buffer_load_dword v62, v63, s[52:55], 0 offen')
        a(f'    s_lshl_b32 s26, s2, 2')
        a(f'    s_add_u32 s26, s26, {WS_DESC}')
        a('    v_mov_b32 v63, s26')
        a('    buffer_load_dword v62, v63, s[52:55], 0 offen')
        a.label('K1_T_NOPF')
    if not XLATE: a('    s_barrier')
    if K1PF: a.label('K1_T_PFJOIN0')
    srd(a, 44, 6, 7, T_BYTES, off=WS_T)
    for i in range(3):
        a(f'    s_add_u32 s26, s21, {6*i}              ; p')
        a('    s_and_b32 s27, s26, 1')
        a('    s_lshl_b32 s27, s27, 2')
        a(f'    v_xor_b32 v{18+i}, s27, v8')
        a(f'    v_lshl_add_u32 v{18+i}, v{18+i}, 4, v9')
        a('    s_lshl_b32 s27, s26, 10                ; m*8192 + (p&7)*1024 = p*1024')
        a(f'    v_add_u32 v{18+i}, s27, v{18+i}')
    a('    s_and_b32 s23, s21, 1                  ; half')
    a('    v_bfe_u32 v12, v2, 2, 2                ; r')
    a('    v_lshl_add_u32 v13, v5, 3, v12         ; rho')
    a('    v_lshlrev_b32 v13, 7, v13')
    a('    v_and_b32 v14, 1, v2')
    a('    v_lshl_add_u32 v13, v14, 3, v13        ; + (c&1)*8')
    a('    v_bfe_u32 v14, v2, 1, 1                ; c>>1')
    a('    v_lshrrev_b32 v12, 1, v12')
    a('    v_and_b32 v15, 1, v5                   ; g&1')
    a('    v_lshlrev_b32 v15, 1, v15')
    a('    v_or_b32 v12, v12, v15                 ; swz/2')
    a('    s_lshl_b32 s25, s23, 1')
    a('    v_xor_b32 v15, s25, v12')
    a('    v_lshl_or_b32 v15, v15, 1, v14')
    a('    v_lshl_add_u32 v16, v15, 4, v13')
    a('    s_add_u32 s25, s25, 1')
    a('    v_xor_b32 v15, s25, v12')
    a('    v_lshl_or_b32 v15, v15, 1, v14')
    a('    v_lshl_add_u32 v17, v15, 4, v13')
    a('    v_lshlrev_b32 v21, 8, v4')
    a('    v_lshl_add_u32 v21, v5, 4, v21')
    a('    s_lshl_b32 s25, s23, 7')
    a('    s_lshl_b32 s26, s58, 8')
    a('    s_add_u32 s25, s25, s26')
    a('    v_add_u32 v21, s25, v21')
    a('    v_cmp_gt_u32 vcc, s59, v4')
    a(f'    v_mov_b32 v22, {1<<30}')
    a(f'    s_mov_b32 s27, {hex(f2u(-LOG2E))}')
    a('    s_mov_b32 s28, 0xffff0000')
    a('    v_cndmask_b32 v9, v22, v21, vcc')
    a('    s_mov_b32 s29, 0x80000000')
    a('    v_mov_b32 v10, 0')
    a('    v_mov_b32 v11, 1')
    if K1PF:
        a('    s_cmp_eq_u32 s21, 5')
        a('    s_cbranch_scc0 K1_T_W2')
        a('    s_waitcnt vmcnt(9)')
        a('    s_branch K1_T_W9')
        a.label('K1_T_W2')
    a('    s_waitcnt vmcnt(2)')
    if K1PF: a.label('K1_T_W9')
    stamp(a, 1)
    for i in range(3):
        if i == 2:
            a('    s_cmp_lt_u32 s21, 4')
            a('    s_cbranch_scc0 K1_T_ST2')
        a(f'    ds_write_b128 v{18+i}, v[{48+4*i}:{51+4*i}] offset:{L1_W}')
    a.label('K1_T_ST2')
    lds_sync(a, 'K1_T_SPIN', L1_SYNC, 6, 10, 11, 12, 26)
    stamp(a, 3)
    order = [(jj, ks, m) for jj in range(2) for ks in range(2) for m in range(2)]
    for i, (jj, ks, m) in enumerate(order):
        b = 64 + 4*i
        off = L1_W + m*8192 + ks*32*128
        a(f'    ds_read_b64_tr_b16 v[{b}:{b+1}], v{16+jj} offset:{off}')
        a(f'    ds_read_b64_tr_b16 v[{b+2}:{b+3}], v{16+jj} offset:{off+512}')
    if K1PF:
        a('    s_cmp_eq_u32 s21, 5')
        a('    s_cbranch_scc0 K1_T_X0')
        a('    s_waitcnt vmcnt(7)')
        a('    s_branch K1_T_XOK')
        a.label('K1_T_X0')
    a('    s_waitcnt vmcnt(0)')
    if K1PF: a.label('K1_T_XOK')
    for i, (jj, ks, m) in enumerate(order):
        b = 64 + 4*i
        a(f'    s_waitcnt lgkmcnt({min(15, 2*(7-i))})')
        acc = 32 + 8*m + 4*jj
        x = 24 + 4*ks
        c = '0' if ks == 0 else f'v[{acc}:{acc+3}]'
        a(f'    v_mfma_f32_16x16x32_bf16 v[{acc}:{acc+3}], v[{b}:{b+3}], v[{x}:{x+3}], {c}')
    stamp(a, 4)
    a('    s_nop 4')
    for jj in range(2):
        R = range(4)
        p = lambda r: 32 + 4*jj + r
        q = lambda r: 40 + 4*jj + r
        t = lambda r: 10 + r
        if jj == 1: a('    s_nop 2')
        for r in R: a(f'    v_mul_f32 v{p(r)}, s27, v{p(r)}')
        for r in R: a(f'    v_cvt_f16_f32 v{p(r)}, v{p(r)}')
        for r in R: a(f'    v_and_b32 v{t(r)}, 0x7fffffff, v{q(r)}')
        for r in R: a(f'    v_and_b32 v{p(r)}, 0xffff, v{p(r)}')
        for r in R: a(f'    v_sub_u32 v{t(r)}, v{t(r)}, v{p(r)}')
        for r in R: a(f'    v_add_u32 v{t(r)}, 0x8000, v{t(r)}')
        for r in R: a(f'    v_max_i32 v{t(r)}, 0, v{t(r)}')
        for r in R: a(f'    v_and_or_b32 v{t(r)}, v{t(r)}, s28, v{p(r)}')
        for r in R: a(f'    v_and_or_b32 v{p(r)}, v{q(r)}, s29, v{t(r)}')
        a(f'    buffer_store_dwordx4 v[{32+4*jj}:{35+4*jj}], v9, s[44:47], 0 offen offset:{jj*64} {TST}')
    a('    s_cmp_eq_u32 s2, 0')
    a('    s_cbranch_scc0 K1_TFIN')
    a('    s_cmp_eq_u32 s21, 0')
    a('    s_cbranch_scc0 K1_TFIN')
    a('    v_mov_b32 v10, 0x7c00')
    a(f'    v_lshlrev_b32 v11, 2, v2')
    a(f'    v_add_u32 v11, {N*256}, v11')
    a(f'    buffer_store_dword v10, v11, s[44:47], 0 offen {TST}')
    a.label('K1_TFIN')
    stamp(a, 5)
    if STAMP:
        stamp(a, 6)
        a('    s_waitcnt vmcnt(0)')
        stamp(a, 7); stamp(a, 1, True)
        if STAMP >= 3:
            a('    s_waitcnt lgkmcnt(0)')
            a(f'    s_mov_b32 s{ST0+4}, s{ST0+16}')
        else: stamp(a, 2)
        if TFIRST: a('    s_add_u32 s20, s20, 10')
        stamp_flush(a, 20, 2, 0, 6)
    a.label('K1_END')
    a('    s_endpgm')

CAP = 4096
TS = 272
L2_CNT = 0; L2_FLG = 256
L2_LIST = 512
L2_SLOT = L2_LIST + CAP*4
L2_EAT = L2_SLOT + 56*512; L2_UT = L2_EAT + 48*TS
XS = 144
L2_XT = L2_UT + 48*TS
L2_W = L2_XT + 48*XS
K2_LDS = L2_W + 16384
U = 4
TPF = int(env('TPF', '1'))
PFPOS = int(env('PFPOS', '1'))
PGT = int(env('PGT', '0'))
ASTAGE = int(env('ASTAGE', '1'))
G0N = int(env('G0N', '1'))
PFS = [int(x) for x in env('PFS', '6,6,6,6,8,8').split(',')]
PFW = int(env('PFW', '4'))
PFE = int(env('PFE', '0'))
PFL = int(env('PFL', '640'))
PFN = int(env('PFN', '40'))
PRT = [int(x) for x in env('PRT', '4,4,4').split(',')]

def gen_k2(a):
    a.k2 = True
    sB = 2; sWAVE = 3
    SRD_DESC = 12; SRD_REC = 16; SRD_T = 20; SRD_W = 24; SRD_X = 28; SRD_OUT = 32; SRD_WC = 36
    sMODE = 40; sPASS = 41
    sG0 = 42; sG1 = 43; sGEND = 44; sLEFT = 45; sNODE = 46; sT0 = 47; sT1 = 48; sSAFE = 49; sGT = 50; sR = 51
    sEX = 52; sEAB = 54; sPR = 55; sPQ = 56; sLVL = 57; sSLOT = 58; sNR = 59; sPQ2 = 60; sN0 = 62; sNN = 63; sNT = 61; sJ = 58
    sM = 64
    vLANE = 1
    vWC = 4; vEA = 8; vDEN = 12; vNUM = 16; vT = 20; vDAT = 24; vP = 40; vEV = 48
    vSA = 50; vACC = 51; vEAA = 52; vGS = 53; vQ16 = 54; vNG = 55
    vDA = 56; vNA = 60
    vX = 64
    vFL = 66
    vGE = 67
    vXO = 68
    vR = 76
    vB = 84
    vRK = 92
    vLA = 100
    vA = 108
    vCNT = 118; vRO = 119; vI = 120; vRM = 121; vTRA = 122; vXRA = 123; vROW = 121; vPFA = 51
    vLC = 12
    vPF = 16
    vXO2 = vXO
    SRD_LOC = 8; SRD_PF = 24
    vW = 24; vOP = 24; vAC = 40
    vOP2 = 76; vAC2 = 92
    vFS = 101; vFC = 102; vUTA = 103; vXTA = 106
    vOP3 = 24; vAC3 = 20; vAK = 20
    vU = 96; vUA = 100

    pf_state = {'next': 0}
    def pf(i):
        if not (TPF and PFPOS == 4) or PFS[i] == 0: return 0
        n = PFS[i]; st = pf_state['next']; pf_state['next'] += n
        assert pf_state['next'] <= 40
        base, off = (sJ, st*128) if st*128 < 4096 else (9, st*128 - 4096)
        a(f'    s_mov_b64 exec, {hex((1 << n) - 1)}')
        a(f'    buffer_load_dword v{vPF}, v{vPFA}, s[36:39], s{base} offen offset:{off}')
        a('    s_mov_b64 exec, -1')
        return 1
    npf = lambda *idx: sum(1 for i in idx if TPF and PFPOS == 4 and PFS[i] > 0)
    a('.p2align 8')
    a('.type k2_kernel,@function')
    a.label('k2_kernel')
    a(f'    s_cmp_ge_u32 s2, {NB}')
    a('    s_cbranch_scc1 K2_END')
    stamp(a, 0); stamp(a, 0, True)
    if CPF:
        a('    s_getpc_b64 s[30:31]')
        a.label('K2_PC')
        a('    v_lshlrev_b32 v124, 7, v0')
        a('    v_cmp_gt_u32 vcc, CODE_END-K2_PC, v124')
        a('    s_and_saveexec_b64 s[28:29], vcc')
        a('    s_cbranch_execz K2_NOCPF')
        a('    global_load_dword v125, v124, s[30:31]')
        a.label('K2_NOCPF')
        a('    s_mov_b64 exec, s[28:29]')
    a(f'    s_lshr_b32 s{sJ}, s2, 3')
    if XMAP:
        a(f'    s_and_b32 s{sT0}, s2, 7')
        a(f'    s_lshl_b32 s{sT0}, s{sT0}, 5')
        a(f'    s_add_u32 s2, s{sT0}, s{sJ}')
    a(f'    s_mul_i32 s{sN0}, s2, 625')
    a(f'    s_add_u32 s{sNN}, s{sN0}, 640')
    a(f'    s_add_u32 s{sN0}, s{sN0}, 15')
    a(f'    s_lshr_b32 s{sN0}, s{sN0}, 4')
    a(f'    s_lshr_b32 s{sNN}, s{sNN}, 4')
    a(f'    s_sub_u32 s{sNN}, s{sNN}, s{sN0}')
    a('    s_load_dwordx2 s[6:7], s[0:1], 88      ; ws')
    a('    s_load_dwordx2 s[4:5], s[0:1], 0       ; x')
    a('    s_load_dwordx2 s[8:9], s[0:1], 32      ; w_a')
    a('    s_load_dwordx4 s[76:79], s[0:1], 48    ; w_c, w_u')
    a('    s_load_dwordx2 s[10:11], s[0:1], 72    ; out')
    a(f'    v_and_b32 v{vLANE}, 63, v0')
    a(f'    v_lshrrev_b32 v{vA}, 6, v0')
    a(f'    v_and_b32 v{vQ16}, 15, v0')
    a(f'    v_readfirstlane_b32 s{sWAVE}, v{vA}')
    a(f'    v_lshlrev_b32 v{vQ16}, 4, v{vQ16}      ; q*16')
    if DESCT:
        a(f'    v_and_b32 v{vA}, 0x3fc, v0             ; (t>>2)*4')
        a(f'    s_lshl_b32 s{sT0}, s{sB}, 10')
    else:
        a(f'    v_lshrrev_b32 v{vA}, 2, v0')
        a(f'    v_lshlrev_b32 v{vA}, 10, v{vA}')
        a(f'    s_lshl_b32 s{sT0}, s{sB}, 2')
    for i in range(4):
        a(f'    v_mov_b32 v{vDA+i}, 0')
        a(f'    v_mov_b32 v{vNA+i}, 0')
    masked(a, 'v_cmp_gt_u32 vcc, 4, v0', sEX)
    a(f'    v_lshlrev_b32 v{vA+5}, 2, v0')
    a(f'    ds_write_b32 v{vA+5}, v{vDA} offset:{L2_FLG}')
    unmask(a, sEX)
    a(f'    s_mov_b32 s{sMODE}, 0')
    a(f'    s_mov_b32 s{sPASS}, 0')
    a(f'    v_mov_b32 v{vEV}, 0')
    a(f'    v_mov_b32 v{vEV+1}, 0')
    for k in range(U):
        a(f'    v_mov_b32 v{vP+2*k}, {N}')
        a(f'    v_mov_b32 v{vP+2*k+1}, v{vQ16}')
    a(f'    v_lshrrev_b32 v{vA+1}, 5, v{vLANE}')
    a(f'    v_lshl_add_u32 v{vFL}, v{vA+1}, 8, v{vQ16}')
    a(f'    v_bfe_u32 v{vA+1}, v{vLANE}, 4, 1')
    a(f'    v_lshl_add_u32 v{vFL}, v{vA+1}, 3, v{vFL}')
    a.label('K2_PASS')
    for i in range(4):
        a(f'    v_mov_b32 v{vA+6+i}, {N}')
    a(f'    v_lshlrev_b32 v{vA+5}, 4, v0')
    a(f'    ds_write_b128 v{vA+5}, v[{vA+6}:{vA+9}] offset:{L2_LIST}')
    masked(a, 'v_cmp_gt_u32 vcc, 64, v0', sEX)
    a(f'    v_lshlrev_b32 v{vA+4}, 2, v0')
    a(f'    v_mov_b32 v{vA+3}, 0')
    a(f'    ds_write_b32 v{vA+4}, v{vA+3} offset:{L2_CNT}')
    unmask(a, sEX)
    a(f'    s_cmp_eq_u32 s{sMODE}, 0')
    a('    s_cbranch_scc0 K2_SLOWPARAM')
    a('    s_waitcnt lgkmcnt(0)')
    srd(a, SRD_DESC, 6, 7, NB*DESC_STRIDE, off=WS_DESC)
    a(f'    buffer_load_dword v{vCNT}, v{vA}, s[{SRD_DESC}:{SRD_DESC+3}], s{sT0} offen')
    a(f'    s_cmp_lt_u32 s{sWAVE}, 8')
    a(f'    s_cselect_b32 s{SRD_W}, s8, s78')
    a(f'    s_cselect_b32 s{SRD_W+1}, s9, s79')
    a(f'    s_mov_b32 s{SRD_W+2}, 8192')
    a(f'    s_mov_b32 s{SRD_W+3}, 0x00020000')
    srd(a, SRD_X, 4, 5, N*128)
    srd(a, SRD_WC, 76, 77, 128)
    a(f'    v_and_b32 v{vA+1}, 511, v0')
    a(f'    v_lshlrev_b32 v{vA+1}, 4, v{vA+1}')
    a(f'    buffer_load_dwordx4 v[{vW}:{vW+3}], v{vA+1}, s[{SRD_W}:{SRD_W+3}], 0 offen')
    a(f'    v_lshlrev_b32 v{vA+4}, 4, v0')
    a(f'    v_cmp_gt_u32 vcc, 384, v0')
    a(f'    v_mov_b32 v{vA+3}, {1<<30}')
    a(f'    s_lshl_b32 s{sT1}, s{sN0}, 7')
    a(f'    v_cndmask_b32 v{vA+4}, v{vA+3}, v{vA+4}, vcc')
    a(f'    buffer_load_dwordx4 v[{vXO}:{vXO+3}], v{vA+4}, s[{SRD_X}:{SRD_X+3}], s{sT1} offen')
    a(f'    v_lshrrev_b32 v{vA+7}, 1, v{vQ16}      ; q*8 (wc)')
    a(f'    buffer_load_dwordx2 v[{vWC}:{vWC+1}], v{vA+7}, s[{SRD_WC}:{SRD_WC+3}], 0 offen')
    if TPF and PFPOS == 4:
        srd(a, 36, 6, 7, T_BYTES, off=WS_T)
        a(f'    s_mul_i32 s{sJ}, s{sJ}, {640*128}')
        a(f'    s_mul_i32 s9, s{sWAVE}, {40*128}')
        a(f'    s_add_u32 s{sJ}, s{sJ}, s9')
        a(f'    s_add_u32 s9, s{sJ}, 4096')
        a(f'    v_lshlrev_b32 v{vPFA}, 7, v{vLANE}')
        pf(0)
    if PFE:
        srd(a, SRD_REC, 6, 7, T_BYTES, off=WS_T)
        a(f'    s_mul_i32 s{sT0}, s{sJ}, {640*128}')
        a(f'    s_mul_i32 s{sT1}, s{sWAVE}, {40*128}')
        a(f'    s_add_u32 s{sT0}, s{sT0}, s{sT1}')
        a(f'    s_add_u32 s{sT0}, s{sT0}, {PFN*128}')
        a(f'    v_lshlrev_b32 v{vPF+1}, 7, v{vLANE}')
        a(f'    v_cmp_gt_u32 vcc, {PFE}, v{vLANE}')
        a(f'    v_mov_b32 v{vPF+2}, {1<<30}')
        a('    s_nop 0')
        a(f'    v_cndmask_b32 v{vPF+1}, v{vPF+2}, v{vPF+1}, vcc')
        a(f'    buffer_load_dword v{vPF+1}, v{vPF+1}, s[{SRD_REC}:{SRD_REC+3}], s{sT0} offen')
    if PGT:
        srd(a, SRD_REC, 6, 7, WS_T + T_BYTES, off=0)
        a(f'    v_lshlrev_b32 v{vPF+1}, 21, v{vLANE}')
        a(f'    buffer_load_dword v{vPF+1}, v{vPF+1}, s[{SRD_REC}:{SRD_REC+3}], 0 offen')
    if not ASTAGE: a('    s_barrier')
    srd(a, SRD_OUT, 10, 11, N*128)
    srd(a, SRD_REC, 6, 7, NC*REC_STRIDE + 64, off=WS_REC)
    srd(a, SRD_T, 6, 7, 0, off=WS_T, stride=256, nrec=N+1)
    a(f'    v_lshrrev_b32 v{vA}, 2, v0             ; c')
    a(f'    v_mul_u32_u24 v{vRO}, {REC_STRIDE}, v{vA}')
    a(f'    v_and_b32 v{vI}, 3, v0')
    a(f'    v_lshlrev_b32 v{vI}, 2, v{vI}')
    a(f'    v_mad_u32_u24 v{vRO}, v{vI}, 5, v{vRO}')
    a(f'    s_mov_b32 s{sT1}, 16')
    a(f'    s_waitcnt vmcnt({3+PGT+(1 if PFE else 0)+npf(0)})                      ; descriptor')
    stamp(a, 1)
    a(f'    v_and_b32 v{vA+1}, 0xffff, v{vCNT}      ; start')
    a(f'    v_lshrrev_b32 v{vCNT}, 16, v{vCNT}      ; cnt')
    a(f'    v_mad_u32_u24 v{vRO}, v{vA+1}, 5, v{vRO}')
    a('    s_branch K2_PARAMDONE')
    a.label('K2_SLOWPARAM')
    a(f'    s_lshl_b32 s{sT0}, s{sB}, {10 if DESCT else 2}')
    a(f'    s_lshl_b32 s{sT1}, s{sPASS}, {2 if DESCT else 10}')
    a(f'    s_add_u32 s{sT0}, s{sT0}, s{sT1}')
    a(f'    v_mov_b32 v{vA}, 0')
    a(f'    buffer_load_dword v{vCNT}, v{vA}, s[{SRD_DESC}:{SRD_DESC+3}], s{sT0} offen')
    a(f'    s_mul_i32 s{sT0}, s{sPASS}, {REC_STRIDE}')
    a('    s_waitcnt vmcnt(0) lgkmcnt(0)')
    a('    s_barrier')
    a(f'    v_and_b32 v{vA+1}, 0xffff, v{vCNT}')
    a(f'    v_lshlrev_b32 v{vI}, 2, v0')
    a(f'    v_add_u32 v{vA+1}, v{vA+1}, v{vI}')
    a(f'    v_mul_u32_u24 v{vRO}, 5, v{vA+1}')
    a(f'    v_add_u32 v{vRO}, s{sT0}, v{vRO}')
    a(f'    v_lshrrev_b32 v{vCNT}, 16, v{vCNT}')
    a(f'    s_mov_b32 s{sT1}, 4096')
    a.label('K2_PARAMDONE')
    a(f'    v_sub_u32 v{vRM}, v{vCNT}, v{vI}')
    a(f'    s_mul_i32 s{sT0}, s{sT1}, 5')
    a(f'    s_mov_b32 s{sNR}, 0')
    for r in range(2):
        m0 = sM + 8*r
        if r == 1:
            a(f'    v_subrev_u32 v{vRM}, s{sT1}, v{vRM}')
        for h in range(4):
            a(f'    v_cmp_gt_i32 s[{m0+2*h}:{m0+2*h+1}], v{vRM}, {h}' if h else f'    v_cmp_lt_i32 s[{m0}:{m0+1}], 0, v{vRM}')
        a(f'    s_cmp_eq_u64 s[{m0}:{m0+1}], 0')
        a(f'    s_cbranch_scc1 K2_LD_DONE')
        a(f'    s_mov_b64 exec, s[{m0}:{m0+1}]')
        a(f'    buffer_load_dwordx4 v[{vR+4*r}:{vR+4*r+3}], v{vRO}, s[{SRD_REC}:{SRD_REC+3}], 0 offen')
        a(f'    buffer_load_dword v{vLC+r}, v{vRO}, s[{SRD_REC}:{SRD_REC+3}], 0 offen offset:16')
        a(f'    s_mov_b64 exec, -1')
        a(f'    s_mov_b32 s{sNR}, {r+1}')
        if r < 1:
            a(f'    v_add_u32 v{vRO}, s{sT0}, v{vRO}')
    a.label('K2_LD_DONE')
    a(f'    s_or_b32 s{sT0}, s{sMODE}, s{sPASS}')
    a(f'    s_cmp_eq_u32 s{sT0}, 0')
    a('    s_cbranch_scc0 K2_LATER_PASS')
    pf(1)
    if TPF and PFPOS == 3:
        a(f'    s_mul_i32 s{sT0}, s{sJ}, {640*128}')
        a(f'    s_mul_i32 s{sT1}, s{sWAVE}, {40*128}')
        a(f'    s_add_u32 s{sT0}, s{sT0}, s{sT1}')
        a(f'    s_add_u32 s{sT0}, s{sT0}, {WS_T}')
        a(f'    s_add_u32 s24, s6, s{sT0}')
        a(f'    s_addc_u32 s25, s7, 0')
        for i in range(PFN):
            a(f'    s_load_dword s26, s[24:25], {128*i}')
    if TPF and PFPOS == 2:
        W0 = 16 - PFW
        per = PFL // PFW
        a(f'    s_cmp_ge_u32 s{sWAVE}, {W0}')
        a('    s_cbranch_scc0 K2_NOPF2')
        srd(a, SRD_PF, 6, 7, T_BYTES, off=WS_T)
        a(f'    s_mul_i32 s{sT0}, s{sJ}, {640*128}')
        a(f'    s_sub_u32 s{sT1}, s{sWAVE}, {W0}')
        a(f'    s_mul_i32 s{sT1}, s{sT1}, {per*128}')
        a(f'    s_add_u32 s{sT0}, s{sT0}, s{sT1}')
        a(f'    v_lshlrev_b32 v{vPFA}, 7, v{vLANE}')
        nin = (per + 63)//64
        for i in range(nin):
            left = per - 64*i
            if left < 64:
                a(f'    v_cmp_gt_u32 vcc, {left}, v{vLANE}')
                a(f'    v_mov_b32 v{vPF+1}, {1<<30}')
                a('    s_nop 0')
                a(f'    v_cndmask_b32 v{vPFA}, v{vPF+1}, v{vPFA}, vcc')
            a(f'    buffer_load_dword v{vPF}, v{vPFA}, s[{SRD_PF}:{SRD_PF+3}], s{sT0} offen')
            if i + 1 < nin: a(f'    s_add_u32 s{sT0}, s{sT0}, 8192')
        a.label('K2_NOPF2')
    a(f'    v_lshrrev_b32 v{vA+8}, 3, v0')
    a(f'    v_mul_u32_u24 v{vA+8}, {XS}, v{vA+8}')
    a(f'    v_and_b32 v{vA+7}, 7, v0')
    a(f'    v_lshl_add_u32 v{vA+8}, v{vA+7}, 4, v{vA+8}')
    a(f'    v_add_u32 v{vA+8}, {L2_XT}, v{vA+8}')
    NPF = 1 if TPF else 0
    a(f'    v_bfe_u32 v{vA+1}, v0, 4, 1')
    a(f'    v_bfe_u32 v{vA+2}, v0, 6, 1')
    a(f'    v_lshlrev_b32 v{vA+1}, 1, v{vA+1}')
    a(f'    v_lshl_or_b32 v{vA+1}, v{vA+2}, 2, v{vA+1}')
    a(f'    v_and_b32 v{vA+2}, 7, v0')
    a(f'    v_xor_b32 v{vA+1}, v{vA+1}, v{vA+2}')
    a(f'    v_lshrrev_b32 v{vA+2}, 3, v0')
    a(f'    v_lshlrev_b32 v{vA+2}, 7, v{vA+2}')
    a(f'    v_lshl_add_u32 v{vA+9}, v{vA+1}, 4, v{vA+2}')
    a(f'    v_add_u32 v{vA+9}, {L2_W}, v{vA+9}')
    a(f'    v_lshrrev_b32 v{vA+3}, 4, v{vLANE}     ; g')
    a(f'    v_bfe_u32 v{vA}, v{vLANE}, 2, 2        ; r')
    a(f'    v_lshl_add_u32 v{vA+1}, v{vA+3}, 3, v{vA}')
    a(f'    v_lshlrev_b32 v{vA+1}, 7, v{vA+1}')
    a(f'    v_and_b32 v{vA+2}, 1, v{vLANE}')
    a(f'    v_lshl_add_u32 v{vA+1}, v{vA+2}, 3, v{vA+1}')
    a(f'    v_lshrrev_b32 v{vA}, 1, v{vA}')
    a(f'    v_and_b32 v{vA+2}, 1, v{vA+3}')
    a(f'    v_lshl_or_b32 v{vA}, v{vA+2}, 1, v{vA}     ; swz/2')
    a(f'    s_and_b32 s{sT0}, s{sWAVE}, 3')
    a(f'    v_xor_b32 v{vA}, s{sT0}, v{vA}')
    a(f'    v_bfe_u32 v{vA+2}, v{vLANE}, 1, 1')
    a(f'    v_lshl_or_b32 v{vA}, v{vA}, 1, v{vA+2}')
    a(f'    v_lshl_add_u32 v{vTRA}, v{vA}, 4, v{vA+1}')
    a(f'    v_add_u32 v{vTRA}, {L2_W}, v{vTRA}')
    a(f'    s_lshr_b32 s{sT1}, s{sWAVE}, 2')
    a(f'    s_lshl_b32 s{sT1}, s{sT1}, 4')
    a(f'    v_and_b32 v{vA+2}, 15, v{vLANE}')
    a(f'    v_add_u32 v{vROW}, s{sT1}, v{vA+2}     ; row')
    a(f'    v_mul_u32_u24 v{vA+1}, {XS}, v{vROW}')
    a(f'    v_lshl_add_u32 v{vA+1}, v{vA+3}, 4, v{vA+1}')
    a(f'    v_add_u32 v{vXRA}, {L2_XT}, v{vA+1}')
    a(f'    v_mul_u32_u24 v{vA+4}, {TS}, v{vROW}')
    a(f'    v_lshl_add_u32 v{vA+4}, v{vA+3}, 4, v{vA+4}')
    a(f'    s_lshl_b32 s{sT0}, s{sT0}, 6')
    a(f'    s_add_u32 s{sT0}, s{sT0}, {L2_EAT}')
    a(f'    v_add_u32 v{vEAA}, s{sT0}, v{vA+4}')
    if TPF and PFPOS < 2:
        srd(a, SRD_PF, 6, 7, T_BYTES, off=WS_T)
        a(f'    s_mul_i32 s{sT0}, s{sJ}, {640*128}')
        a(f'    s_mul_i32 s{sT1}, s{sWAVE}, {40*128}')
        a(f'    s_add_u32 s{sJ}, s{sT0}, s{sT1}')
        a(f'    v_lshlrev_b32 v{vA+3}, 7, v{vLANE}')
        a(f'    v_cmp_gt_u32 vcc, {PFN}, v{vLANE}')
        a(f'    v_mov_b32 v{vA+4}, {1<<30}')
        a('    s_nop 0')
        a(f'    v_cndmask_b32 v{vPFA}, v{vA+4}, v{vA+3}, vcc')
    if ASTAGE:
        a(f'    s_cmp_eq_u32 s{sNR}, 2')
        a('    s_cbranch_scc1 K2_WW4')
        a(f'    s_cmp_eq_u32 s{sNR}, 1')
        a('    s_cbranch_scc1 K2_WW2')
        a(f'    s_waitcnt vmcnt({npf(1)})')
        a('    s_branch K2_WWD')
        a.label('K2_WW4')
        a(f'    s_waitcnt vmcnt({4+npf(1)})')
        a('    s_branch K2_WWD')
        a.label('K2_WW2')
        a(f'    s_waitcnt vmcnt({2+npf(1)})')
        a.label('K2_WWD')
        a(f'    ds_write_b128 v{vA+9}, v[{vW}:{vW+3}]')
        a(f'    s_cmp_lt_u32 s{sWAVE}, 6')
        a('    s_cbranch_scc0 K2_NOXST0')
        a(f'    ds_write_b128 v{vA+8}, v[{vXO}:{vXO+3}]')
        a.label('K2_NOXST0')
        a('    s_waitcnt lgkmcnt(0)')
        a('    s_barrier')
        pf(2)
        a(f'    s_cmp_lt_u32 s{sWAVE}, 12')
        a('    s_cbranch_scc0 K2_NOMFMA0')
        a(f'    ds_read_b128 v[{vXO}:{vXO+3}], v{vXRA}')
        a(f'    ds_read_b64_tr_b16 v[{vOP3}:{vOP3+1}], v{vTRA}')
        a(f'    ds_read_b64_tr_b16 v[{vOP3+2}:{vOP3+3}], v{vTRA} offset:{0+512}')
        a(f'    ds_read_b128 v[{vXO+4}:{vXO+7}], v{vXRA} offset:64')
        a(f'    ds_read_b64_tr_b16 v[{vOP3+4}:{vOP3+5}], v{vTRA} offset:{0+4096}')
        a(f'    ds_read_b64_tr_b16 v[{vOP3+6}:{vOP3+7}], v{vTRA} offset:{0+4096+512}')
        a(f'    s_mov_b32 s{sT0}, {hex(f2u(-LOG2E))}')
        a(f'    s_mov_b32 s{sT1}, {hex(f2u(60.0))}')
        a('    s_waitcnt lgkmcnt(3)')
        a(f'    v_mfma_f32_16x16x32_bf16 v[{vAC3}:{vAC3+3}], v[{vOP3}:{vOP3+3}], v[{vXO}:{vXO+3}], 0')
        a('    s_waitcnt lgkmcnt(0)')
        a(f'    v_mfma_f32_16x16x32_bf16 v[{vAC3}:{vAC3+3}], v[{vOP3+4}:{vOP3+7}], v[{vXO+4}:{vXO+7}], v[{vAC3}:{vAC3+3}]')
        a('    s_nop 7')
        for i in range(4):
            a(f'    v_mul_f32 v{vAC3+i}, s{sT0}, v{vAC3+i}')
        for i in range(4):
            a(f'    v_exp_f32 v{vOP3+i}, v{vAC3+i}')
        a(f'    v_max3_f32 v{vA+5}, |v{vAC3}|, |v{vAC3+1}|, |v{vAC3+2}|')
        a(f'    v_max_f32 v{vA+5}, v{vA+5}, |v{vAC3+3}|')
        a(f'    ds_write_b128 v{vEAA}, v[{vOP3}:{vOP3+3}]')
        a(f'    v_cmp_nle_f32 vcc, v{vA+5}, s{sT1}')
        a(f'    v_cmp_gt_u32 s[{sEX}:{sEX+1}], s{sNN}, v{vROW}')
        a(f'    s_and_b64 vcc, vcc, s[{sEX}:{sEX+1}]')
        a(f'    s_and_saveexec_b64 s[{sEX}:{sEX+1}], vcc')
        a('    s_cbranch_execz K2_GUARD_OK0')
        a(f'    v_mov_b32 v{vA+5}, 1')
        a(f'    v_mov_b32 v{vA+7}, 0')
        a(f'    ds_write_b32 v{vA+7}, v{vA+5} offset:{L2_FLG+4}')
        unmask(a, sEX, 'K2_GUARD_OK0')
        a.label('K2_NOMFMA0')
        pf(3)
        if TPF and PFPOS == 4:
            a(f'    v_mov_b32 v{vA+2}, 1')
            a(f'    s_waitcnt vmcnt({npf(1,2,3)})')
            pf(4)
            a('    s_branch K2_RANKS')
    if TPF and PFPOS == 2:
        a(f'    v_mov_b32 v{vA+2}, 1')
        a(f'    s_cmp_ge_u32 s{sWAVE}, {16 - PFW}')
        a('    s_cbranch_scc0 K2_LATER_PASS')
        a(f'    s_waitcnt vmcnt({(PFL // PFW + 63)//64})')
        a('    s_branch K2_RANKS')
    a.label('K2_LATER_PASS')
    a(f'    v_mov_b32 v{vA+2}, 1')
    a('    s_waitcnt vmcnt(0)')
    if TPF and PFPOS == 1:
        a(f'    s_or_b32 s{sT0}, s{sMODE}, s{sPASS}')
        a(f'    s_cmp_eq_u32 s{sT0}, 0')
        a('    s_cbranch_scc0 K2_RANKS')
        a(f'    buffer_load_dword v{vPF}, v{vPFA}, s[{SRD_PF}:{SRD_PF+3}], s{sJ} offen')
    a.label('K2_RANKS')
    stamp(a, 2)
    for r in range(2):
        a(f'    s_cmp_le_u32 s{sNR}, {r}')
        a('    s_cbranch_scc1 K2_RK_DONE')
        d = vR + 4*r
        a(f'    v_and_b32 v{vLA+4*r}, 0xff, v{d+1}')
        a(f'    v_bfe_u32 v{vLA+4*r+1}, v{d+2}, 8, 8')
        a(f'    v_bfe_u32 v{vLA+4*r+2}, v{d+3}, 16, 8')
        a(f'    v_lshrrev_b32 v{vLA+4*r+3}, 24, v{vLC+r}')
        for h in range(4):
            k = 4*r + h
            a(f'    s_mov_b64 exec, s[{sM+2*k}:{sM+2*k+1}]')
            a(f'    ds_add_rtn_u32 v{vRK+k}, v{vLA+k}, v{vA+2} offset:{L2_CNT}')
        a('    s_mov_b64 exec, -1')
        a(f'    v_alignbyte_b32 v{d+1}, v{d+2}, v{d+1}, 1')
        a(f'    v_alignbyte_b32 v{d+2}, v{d+3}, v{d+2}, 2')
        a(f'    v_alignbyte_b32 v{d+3}, v{vLC+r}, v{d+3}, 3')
    a.label('K2_RK_DONE')
    masked(a, f'v_cmp_lt_u32 vcc, 32, v{vCNT}', sEX, 'K2_NOOVF')
    a(f'    v_mov_b32 v{vA+3}, 0')
    a(f'    ds_write_b32 v{vA+3}, v{vA+2} offset:{L2_FLG}')
    unmask(a, sEX, 'K2_NOOVF')
    a(f'    s_or_b32 s{sT0}, s{sMODE}, s{sPASS}')
    a(f'    s_cmp_eq_u32 s{sT0}, 0')
    a('    s_cbranch_scc0 K2_NOWST')
    pf(5)
    if not ASTAGE:
        a(f'    ds_write_b128 v{vA+9}, v[{vW}:{vW+3}]')
        a(f'    s_cmp_lt_u32 s{sWAVE}, 6')
        a('    s_cbranch_scc0 K2_NOXST')
        a(f'    ds_write_b128 v{vA+8}, v[{vXO}:{vXO+3}]')
        a.label('K2_NOXST')
    a(f'    s_mov_b32 s{sT0}, {hex(f2u(-LOG2E))}')
    a(f'    v_and_b32 v{vWC+3}, 0xffff0000, v{vWC+1}')
    a(f'    v_lshlrev_b32 v{vWC+2}, 16, v{vWC+1}')
    a(f'    v_and_b32 v{vWC+1}, 0xffff0000, v{vWC}')
    a(f'    v_lshlrev_b32 v{vWC}, 16, v{vWC}')
    for k in range(4):
        a(f'    v_mul_f32 v{vWC+k}, s{sT0}, v{vWC+k}')
    a.label('K2_NOWST')
    a(f'    v_lshlrev_b32 v{vA+1}, 2, v{vLANE}')
    a(f'    v_mov_b32 v{vA}, 0')
    a('    s_waitcnt lgkmcnt(0)')
    stamp(a, 3)
    a('    s_barrier')
    stamp(a, 4)
    if TPF and PFPOS == 0:
        a(f'    s_or_b32 s{sT0}, s{sMODE}, s{sPASS}')
        a(f'    s_cmp_eq_u32 s{sT0}, 0')
        a('    s_cbranch_scc0 K2_NOPF')
        a(f'    buffer_load_dword v{vPF}, v{vPFA}, s[{SRD_PF}:{SRD_PF+3}], s{sJ} offen')
        a.label('K2_NOPF')
    a(f'    ds_read_b32 v{vNG}, v{vA+1} offset:{L2_CNT}')
    a(f'    ds_read_b32 v{vA+4}, v{vA} offset:{L2_FLG}')
    a('    s_waitcnt lgkmcnt(1)')
    a(f'    v_add_u32 v{vNG}, 3, v{vNG}')
    a(f'    v_lshrrev_b32 v{vNG}, 2, v{vNG}')
    a(f'    v_mov_b32 v{vGE}, v{vNG}')
    dpp_scan(a, vGE)
    a('    s_waitcnt lgkmcnt(0)')
    a(f'    v_readlane_b32 s{sGT}, v{vGE}, {NPB-1}')
    a(f'    v_sub_u32 v{vGS}, v{vGE}, v{vNG}')
    a(f'    v_readfirstlane_b32 s{sT0}, v{vA+4}')
    a(f'    v_lshlrev_b32 v{vA+6}, 4, v{vGS}')
    a(f'    v_cmp_lt_u32 vcc, {NPB}, v{vLANE}')
    a(f'    s_add_u32 s{sR}, s{sGT}, 15')
    a(f'    s_lshr_b32 s{sR}, s{sR}, 4')
    a(f'    v_cndmask_b32 v{vGS}, v{vGS}, -1, vcc')
    a(f'    s_cmp_eq_u32 s{sMODE}, 0')
    a('    s_cbranch_scc0 K2_NOSWITCH')
    a(f'    s_cmp_gt_u32 s{sGT}, {(CAP - 64)//4}')
    a(f'    s_cselect_b32 s{sT1}, 1, 0')
    a(f'    s_or_b32 s{sT0}, s{sT0}, s{sT1}')
    a(f'    s_cmp_eq_u32 s{sT0}, 0')
    a('    s_cbranch_scc1 K2_NOSWITCH')
    a(f'    s_mov_b32 s{sNR}, 0')
    a(f'    s_mov_b32 s{sGT}, 0')
    a(f'    s_mov_b32 s{sR}, 0')
    a(f'    s_mov_b32 s{sMODE}, 2')
    a.label('K2_NOSWITCH')
    for r in range(2):
        a(f'    s_cmp_le_u32 s{sNR}, {r}')
        a('    s_cbranch_scc1 K2_LK_DONE')
        for h in range(4):
            k = 4*r + h
            a(f'    ds_bpermute_b32 v{vB+k}, v{vLA+k}, v{vA+6}')
    a.label('K2_LK_DONE')
    a('    s_waitcnt lgkmcnt(0)')
    for r in range(2):
        a(f'    s_cmp_le_u32 s{sNR}, {r}')
        a('    s_cbranch_scc1 K2_SC_DONE')
        for h in range(4):
            k = 4*r + h
            a(f'    s_mov_b64 exec, s[{sM+2*k}:{sM+2*k+1}]')
            a(f'    v_lshl_add_u32 v{vB+k}, v{vRK+k}, 2, v{vB+k}')
            a(f'    ds_write_b32 v{vB+k}, v{vR+k} offset:{L2_LIST}')
    a.label('K2_SC_DONE')
    a('    s_mov_b64 exec, -1')
    a(f'    s_mul_i32 s{sG0}, s{sR}, s{sWAVE}')
    a(f'    s_add_u32 s{sG1}, s{sG0}, s{sR}')
    a(f'    s_min_u32 s{sG1}, s{sG1}, s{sGT}')
    a(f'    v_lshrrev_b32 v{vSA}, 4, v{vLANE}')
    a(f'    v_lshlrev_b32 v{vSA}, 2, v{vSA}         ; slot*4')
    a(f'    s_lshl_b32 s{sT0}, s{sG0}, 4')
    a(f'    v_add_u32 v{vSA}, s{sT0}, v{vSA}')
    a(f'    v_mov_b32 v{vA}, 0')
    a('    s_waitcnt lgkmcnt(0)')
    a('    s_barrier')
    if PRIO: a('    s_setprio 3')
    stamp(a, 5)

    def tload(k):
        d = vDAT + 4*k
        a(f'    buffer_load_dwordx4 v[{d}:{d+3}], v[{vP+2*k}:{vP+2*k+1}], s[{SRD_T}:{SRD_T+3}], 0 idxen offen')

    a(f'    s_cmp_ge_u32 s{sG0}, s{sG1}')
    a('    s_cbranch_scc1 K2_NOGATH')
    for k in range(U):
        a(f'    ds_read_u16 v{vP+2*k}, v{vSA} offset:{L2_LIST + 16*k}')
    a(f'    ds_read_u16_d16_hi v{vEV}, v{vSA} offset:{L2_LIST + 2}')
    a('    s_waitcnt lgkmcnt(0)')
    for k in range(G0N):
        tload(k)
    a(f'    ds_read_u16 v{vP}, v{vSA} offset:{L2_LIST + 16*U}')
    a.label('K2_NOGATH')
    a(f'    s_cmp_eq_u32 s{sPASS}, 0')
    a('    s_cbranch_scc0 K2_NOTAB')
    a(f'    s_cmp_eq_u32 s{sMODE}, 1')
    a('    s_cbranch_scc1 K2_NOTAB')
    if not ASTAGE:
        a(f'    s_cmp_lt_u32 s{sWAVE}, 12')
        a('    s_cbranch_scc0 K2_NOMFMA')
        a(f'    ds_read_b128 v[{vXO}:{vXO+3}], v{vXRA}')
        a(f'    ds_read_b64_tr_b16 v[{vOP2}:{vOP2+1}], v{vTRA}')
        a(f'    ds_read_b64_tr_b16 v[{vOP2+2}:{vOP2+3}], v{vTRA} offset:{0+512}')
        a(f'    ds_read_b128 v[{vXO+4}:{vXO+7}], v{vXRA} offset:64')
        a(f'    ds_read_b64_tr_b16 v[{vOP2+4}:{vOP2+5}], v{vTRA} offset:{0+4096}')
        a(f'    ds_read_b64_tr_b16 v[{vOP2+6}:{vOP2+7}], v{vTRA} offset:{0+4096+512}')
        a(f'    s_mov_b32 s{sT0}, {hex(f2u(-LOG2E))}')
        a(f'    s_mov_b32 s{sT1}, {hex(f2u(60.0))}')
        a('    s_waitcnt lgkmcnt(3)')
        a(f'    v_mfma_f32_16x16x32_bf16 v[{vAC2}:{vAC2+3}], v[{vOP2}:{vOP2+3}], v[{vXO}:{vXO+3}], 0')
        a('    s_waitcnt lgkmcnt(0)')
        a(f'    v_mfma_f32_16x16x32_bf16 v[{vAC2}:{vAC2+3}], v[{vOP2+4}:{vOP2+7}], v[{vXO+4}:{vXO+7}], v[{vAC2}:{vAC2+3}]')
        a('    s_nop 7')
        for i in range(4):
            a(f'    v_mul_f32 v{vAC2+i}, s{sT0}, v{vAC2+i}')
        for i in range(4):
            a(f'    v_exp_f32 v{vOP2+i}, v{vAC2+i}')
        a(f'    v_max3_f32 v{vA+5}, |v{vAC2}|, |v{vAC2+1}|, |v{vAC2+2}|')
        a(f'    v_max_f32 v{vA+5}, v{vA+5}, |v{vAC2+3}|')
        a(f'    ds_write_b128 v{vEAA}, v[{vOP2}:{vOP2+3}]')
        a(f'    v_cmp_nle_f32 vcc, v{vA+5}, s{sT1}')
        a(f'    v_cmp_gt_u32 s[{sEX}:{sEX+1}], s{sNN}, v{vROW}')
        a(f'    s_and_b64 vcc, vcc, s[{sEX}:{sEX+1}]')
        a(f'    s_and_saveexec_b64 s[{sEX}:{sEX+1}], vcc')
        a('    s_cbranch_execz K2_GUARD_OK')
        a(f'    v_mov_b32 v{vA+5}, 1')
        a(f'    v_mov_b32 v{vA+7}, 0')
        a(f'    ds_write_b32 v{vA+7}, v{vA+5} offset:{L2_FLG+4}')
        unmask(a, sEX, 'K2_GUARD_OK')
    a.label('K2_NOMFMA')
    if not ASTAGE:
        a(f'    v_mov_b32 v{vA}, 0')
        a('    s_waitcnt lgkmcnt(0)')
        a('    s_barrier')
        a(f'    ds_read_b32 v{vA+5}, v{vA} offset:{L2_FLG+4}')
    else:
        a(f'    v_mov_b32 v{vA}, 0')
        a(f'    ds_read_b32 v{vA+5}, v{vA} offset:{L2_FLG+4}')
    a(f'    s_cmp_ge_u32 s{sG0}, s{sG1}')
    a('    s_cbranch_scc1 K2_NOGATH2')
    for k in range(G0N, U):
        tload(k)
    a.label('K2_NOGATH2')
    a(f'    s_cmp_lt_u32 s{sWAVE}, 12')
    a('    s_cbranch_scc0 K2_NOU')
    a(f'    ds_read_b64_tr_b16 v[{vOP2}:{vOP2+1}], v{vTRA} offset:{0+8192}')
    a(f'    ds_read_b64_tr_b16 v[{vOP2+2}:{vOP2+3}], v{vTRA} offset:{0+8192+512}')
    a(f'    ds_read_b64_tr_b16 v[{vOP2+4}:{vOP2+5}], v{vTRA} offset:{0+8192+4096}')
    a(f'    ds_read_b64_tr_b16 v[{vOP2+6}:{vOP2+7}], v{vTRA} offset:{0+8192+4096+512}')
    a('    s_waitcnt lgkmcnt(2)')
    a(f'    v_mfma_f32_16x16x32_bf16 v[{vU}:{vU+3}], v[{vOP2}:{vOP2+3}], v[{vXO}:{vXO+3}], 0')
    a('    s_waitcnt lgkmcnt(0)')
    a(f'    v_mfma_f32_16x16x32_bf16 v[{vU}:{vU+3}], v[{vOP2+4}:{vOP2+7}], v[{vXO+4}:{vXO+7}], v[{vU}:{vU+3}]')
    a(f'    v_mov_b32 v{vUA}, v{vEAA}')
    a.label('K2_NOU')
    a('    s_waitcnt lgkmcnt(0)')
    a(f'    v_readfirstlane_b32 s{sSAFE}, v{vA+5}')
    a('    s_nop 0')
    a(f'    s_cmp_eq_u32 s{sSAFE}, 0')
    a('    s_cbranch_scc1 K2_WAITW')
    a('    s_barrier')
    a(f'    s_cmp_lt_u32 s{sWAVE}, 12')
    a('    s_cbranch_scc0 K2_SAFE_NOW')
    a(f'    ds_write_b128 v{vEAA}, v[{(vAK if ASTAGE else vAC2)}:{(vAK if ASTAGE else vAC2)+3}]')
    a.label('K2_SAFE_NOW')
    a('    s_waitcnt lgkmcnt(0)')
    a('    s_barrier')
    a.label('K2_WAITW')
    a('    s_branch K2_TABDONE')
    a.label('K2_NOTAB')
    a(f'    s_cmp_ge_u32 s{sG0}, s{sG1}')
    a('    s_cbranch_scc1 K2_TABDONE')
    for k in range(G0N, U):
        tload(k)
    a.label('K2_TABDONE')
    dstamp(a, 1)
    a(f'    v_cvt_f32_u32 v{vA}, s{sR}')
    a(f'    v_cvt_f32_u32 v{vA+1}, v{vGS}')
    a(f'    v_rcp_f32 v{vA}, v{vA}')
    a(f'    v_cvt_f32_u32 v{vA+2}, v{vGE}')
    a(f'    v_add_f32 v{vA+1}, 0.5, v{vA+1}')
    a(f'    v_add_f32 v{vA+2}, -0.5, v{vA+2}')
    a(f'    v_mul_f32 v{vA+1}, v{vA+1}, v{vA}')
    a(f'    v_mul_f32 v{vA+2}, v{vA+2}, v{vA}')
    a(f'    v_cvt_u32_f32 v{vA+1}, v{vA+1}          ; wlo')
    a(f'    v_cvt_u32_f32 v{vA+2}, v{vA+2}          ; whi')
    a(f'    v_sub_u32 v{vA+2}, v{vA+2}, v{vA+1}')
    a(f'    v_add_u32 v{vA+2}, 1, v{vA+2}')
    a(f'    v_cmp_eq_u32 vcc, 0, v{vNG}')
    a(f'    v_add_u32 v{vA+1}, v{vA+1}, v{vLANE}')
    a(f'    v_and_b32 v{vA+1}, 0xffff, v{vA+1}')
    a(f'    v_cndmask_b32 v{vA+2}, v{vA+2}, 0, vcc')
    a(f'    v_lshl_or_b32 v{vA+3}, v{vA+2}, 16, v{vA+1}')
    a(f'    v_lshrrev_b32 v{vA}, 4, v0')
    a(f'    v_and_b32 v{vA+4}, 63, v{vA}')
    a(f'    v_lshlrev_b32 v{vA+4}, 2, v{vA+4}')
    a(f'    ds_bpermute_b32 v{vA+1}, v{vA+4}, v{vA+3}')
    a(f'    v_mul_u32_u24 v{vUTA}, {TS}, v{vA}')
    a(f'    v_mul_u32_u24 v{vXTA}, {XS}, v{vA}')
    a(f'    v_lshrrev_b32 v{vA+7}, 1, v{vQ16}')
    a(f'    v_add_u32 v{vUTA}, v{vUTA}, v{vQ16}')
    a(f'    v_add_u32 v{vXTA}, v{vXTA}, v{vA+7}')
    a(f'    v_add_u32 v{vUTA}, {L2_UT}, v{vUTA}')
    a(f'    v_add_u32 v{vXTA}, {L2_XT}, v{vXTA}')
    a(f'    s_lshl_b32 s{sNT}, s{sNN}, 4')
    a(f'    v_cmp_gt_u32 vcc, s{sNT}, v0')
    a('    s_waitcnt lgkmcnt(0)')
    a(f'    v_lshrrev_b32 v{vFC}, 16, v{vA+1}')
    a(f'    v_and_b32 v{vA+1}, 0xffff, v{vA+1}')
    a(f'    v_cndmask_b32 v{vFC}, 0, v{vFC}, vcc')
    a(f'    v_lshl_add_u32 v{vFS}, v{vA+1}, 9, v{vQ16}')
    a(f'    v_cmp_lt_u32 s[{sM}:{sM+1}], 0, v{vFC}')
    a(f'    v_cmp_lt_u32 s[{sM+2}:{sM+3}], 1, v{vFC}')
    a(f'    v_cmp_lt_u32 s[{sM+4}:{sM+5}], 2, v{vFC}')
    a(f'    s_cmp_ge_u32 s{sG0}, s{sG1}')
    a('    s_cbranch_scc1 K2_MAIN_DONE')
    if PRIO:
        a(f'    s_add_u32 s{sT0}, s{sR}, 3')
        a(f'    s_lshr_b32 s{sT0}, s{sT0}, 2            ; iterations')
        for n, reg in zip(PRT, (sPR, sPQ, sPQ2)):
            a(f'    s_mul_i32 s{reg}, s{sT0}, {n}')
            a(f'    s_lshr_b32 s{reg}, s{reg}, 4')
            a(f'    s_add_u32 s{reg}, s{reg}, 1')
        a(f'    s_mov_b32 s{sLVL}, 3')
        a('    s_setprio 3')
    a(f'    s_mov_b32 s{sGEND}, s{sG0}')
    a(f'    s_mov_b32 s{sEAB}, {L2_EAT}')
    a(f'    s_cmp_eq_u32 s{sSAFE}, 0')
    a('    s_cbranch_scc0 K2S_ENTER')
    a('    s_branch K2F_ENTER')

    def next_node():
        a(f'    v_cmp_ge_u32 vcc, s{sGEND}, v{vGS}')
        a(f'    s_bcnt1_i32_b64 s{sT0}, vcc')
        a(f'    s_sub_u32 s{sNODE}, s{sT0}, 1')
        a(f'    v_readlane_b32 s{sT1}, v{vGS}, s{sT0}')
        a(f'    s_mul_i32 s{sT0}, s{sNODE}, {TS}')
        a(f'    s_add_u32 s{sT0}, s{sT0}, s{sEAB}')
        a(f'    v_add_u32 v{vEAA}, s{sT0}, v{vQ16}')
        a(f'    ds_read_b128 v[{vEA}:{vEA+3}], v{vEAA}')
        a(f'    s_min_u32 s{sT1}, s{sT1}, s{sG1}')
        a(f'    s_sub_u32 s{sLEFT}, s{sT1}, s{sGEND}')
        a(f'    s_sub_u32 s{sLEFT}, s{sLEFT}, 1')
        a(f'    s_mov_b32 s{sGEND}, s{sT1}')

    def set_slot():
        a(f'    s_add_u32 s{sSLOT}, s{sNODE}, s{sWAVE}')
        a(f'    s_lshl_b32 s{sSLOT}, s{sSLOT}, 9')

    def flush():
        a(f'    v_add_u32 v{vACC}, s{sSLOT}, v{vFL}')
        for i in range(4):
            a(f'    v_permlane32_swap_b32 v{vDEN+i}, v{vNUM+i}')
        a(f'    v_pk_add_f32 v[{vDEN}:{vDEN+1}], v[{vDEN}:{vDEN+1}], v[{vNUM}:{vNUM+1}]')
        a(f'    v_pk_add_f32 v[{vDEN+2}:{vDEN+3}], v[{vDEN+2}:{vDEN+3}], v[{vNUM+2}:{vNUM+3}]')
        a('    s_nop 1')
        a(f'    v_permlane16_swap_b32 v{vDEN}, v{vDEN+2}')
        a(f'    v_permlane16_swap_b32 v{vDEN+1}, v{vDEN+3}')
        a(f'    v_pk_add_f32 v[{vNUM}:{vNUM+1}], v[{vDEN}:{vDEN+1}], v[{vDEN+2}:{vDEN+3}]')
        a(f'    ds_write_b64 v{vACC}, v[{vNUM}:{vNUM+1}] offset:{L2_SLOT}')

    def step(k, safe, init):
        d = vDAT + 4*k
        ev = vEV + (k & 1); evn = vEV + ((k+1) & 1)
        pn = vP + 2*((k+1) % U)
        for i in range(4):
            a(f'    v_fma_mix_f32 v{vT+i}, v{ev}, v{vWC+i}, v{d+i} op_sel:[0,0,0] op_sel_hi:[0,0,1]')
        a(f'    ds_read_u16_d16_hi v{evn}, v{vSA} offset:{L2_LIST + 16*(k+1) + 2}')
        a(f'    ds_read_u16 v{pn}, v{vSA} offset:{L2_LIST + 16*(k+1+U)}')
        if init and safe:
            a('    s_waitcnt lgkmcnt(3)')
        if safe:
            a(f'    v_pk_add_f32 v[{vT}:{vT+1}], v[{vT}:{vT+1}], v[{vEA}:{vEA+1}]')
            a(f'    v_pk_add_f32 v[{vT+2}:{vT+3}], v[{vT+2}:{vT+3}], v[{vEA+2}:{vEA+3}]')
        for i in range(4):
            a(f'    v_exp_f32 v{vT+i}, v{vT+i}')
        if init and not safe:
            a('    s_waitcnt lgkmcnt(3)')
        if safe:
            a(f'    v_pk_add_f32 v[{vT}:{vT+1}], v[{vT}:{vT+1}], 1.0 op_sel_hi:[1,0]')
            a(f'    v_pk_add_f32 v[{vT+2}:{vT+3}], v[{vT+2}:{vT+3}], 1.0 op_sel_hi:[1,0]')
        else:
            a(f'    v_pk_fma_f32 v[{vT}:{vT+1}], v[{vEA}:{vEA+1}], v[{vT}:{vT+1}], 1.0 op_sel_hi:[1,1,0]')
            a(f'    v_pk_fma_f32 v[{vT+2}:{vT+3}], v[{vEA+2}:{vEA+3}], v[{vT+2}:{vT+3}], 1.0 op_sel_hi:[1,1,0]')
        if init:
            for i in range(4):
                a(f'    v_rcp_f32 v{vDEN+i}, v{vT+i}')
            a('    s_nop 0')
            a(f'    v_pk_mul_f32 v[{vNUM}:{vNUM+1}], v[{vDEN}:{vDEN+1}], v[{d}:{d+1}]')
            a(f'    v_pk_mul_f32 v[{vNUM+2}:{vNUM+3}], v[{vDEN+2}:{vDEN+3}], v[{d+2}:{d+3}]')
        else:
            for i in range(4):
                a(f'    v_rcp_f32 v{vT+i}, v{vT+i}')
            a(f'    v_pk_add_f32 v[{vDEN}:{vDEN+1}], v[{vDEN}:{vDEN+1}], v[{vT}:{vT+1}]')
            a(f'    v_pk_add_f32 v[{vDEN+2}:{vDEN+3}], v[{vDEN+2}:{vDEN+3}], v[{vT+2}:{vT+3}]')
            a(f'    v_pk_fma_f32 v[{vNUM}:{vNUM+1}], v[{vT}:{vT+1}], v[{d}:{d+1}], v[{vNUM}:{vNUM+1}]')
            a(f'    v_pk_fma_f32 v[{vNUM+2}:{vNUM+3}], v[{vT+2}:{vT+3}], v[{d+2}:{d+3}], v[{vNUM+2}:{vNUM+3}]')
        tload(k)
        if k == U-1:
            a(f'    v_add_u32 v{vSA}, {16*U}, v{vSA}')

    def loopback(pfx):
        if PRIO:
            a(f'    s_sub_u32 s{sPR}, s{sPR}, 1')
            a(f'    s_cmp_lg_u32 s{sPR}, 0')
            a(f'    s_cbranch_scc1 {pfx}_STEP0')
            a(f'    s_branch {pfx}_PRIO')
        else:
            a(f'    s_branch {pfx}_STEP0')

    for pfx, safe in (('K2F', False), ('K2S', True)):
        a.label(f'{pfx}_ENTER')
        next_node()
        set_slot()
        a('    s_waitcnt vmcnt(3) lgkmcnt(0)')
        dstamp(a, 2)
        step(0, safe, True)
        a(f'    s_branch {pfx}_STEP1')
        for k in range(U):
            a.label(f'{pfx}_STEP{k}')
            a(f'    s_waitcnt vmcnt({U-1}) lgkmcnt(0)')
            a(f'    s_sub_u32 s{sLEFT}, s{sLEFT}, 1')
            a(f'    s_cbranch_scc1 {pfx}_FLUSH{k}')
            step(k, safe, False)
            if k == U-1:
                loopback(pfx)
        for k in range(U):
            a.label(f'{pfx}_FLUSH{k}')
            a(f'    s_cmp_ge_u32 s{sGEND}, s{sG1}')
            a(f'    s_cbranch_scc1 K2_LAST')
            next_node()
            flush()
            set_slot()
            step(k, safe, True)
            if k == U-1:
                loopback(pfx)
            else:
                a(f'    s_branch {pfx}_STEP{k+1}')
        if PRIO:
            a.label(f'{pfx}_PRIO')
            a(f'    s_sub_u32 s{sLVL}, s{sLVL}, 1')
            a(f'    s_cmp_eq_u32 s{sLVL}, 2')
            a(f'    s_cbranch_scc1 {pfx}_PRIO2')
            a(f'    s_cmp_eq_u32 s{sLVL}, 1')
            a(f'    s_cbranch_scc1 {pfx}_PRIO1')
            a(f'    s_mov_b32 s{sPR}, 0x7fffffff')
            a('    s_setprio 0')
            a(f'    s_branch {pfx}_STEP0')
            a.label(f'{pfx}_PRIO2')
            a(f'    s_mov_b32 s{sPR}, s{sPQ}')
            a('    s_setprio 2')
            a(f'    s_branch {pfx}_STEP0')
            a.label(f'{pfx}_PRIO1')
            a(f'    s_mov_b32 s{sPR}, s{sPQ2}')
            a('    s_setprio 1')
            a(f'    s_branch {pfx}_STEP0')
    a.label('K2_LAST')
    dstamp(a, 3)
    flush()
    a.label('K2_MAIN_DONE')
    if PRIO: a('    s_setprio 0')
    a(f'    s_cmp_eq_u32 s{sPASS}, 0')
    a('    s_cbranch_scc0 K2_NOUST')
    a(f'    s_cmp_eq_u32 s{sMODE}, 1')
    a('    s_cbranch_scc1 K2_NOUST')
    a(f'    s_cmp_lt_u32 s{sWAVE}, 12')
    a('    s_cbranch_scc0 K2_NOUST')
    a(f'    ds_write_b128 v{vUA}, v[{vU}:{vU+3}] offset:{L2_UT-L2_EAT}')
    a.label('K2_NOUST')
    a(f'    s_cmp_eq_u32 s{sMODE}, 2')
    a('    s_cbranch_scc0 K2_NOABORT')
    a(f'    s_mov_b32 s{sMODE}, 1')
    a(f'    s_mov_b32 s{sPASS}, 0')
    a('    s_waitcnt vmcnt(0) lgkmcnt(0)')
    a('    s_barrier')
    a('    s_branch K2_PASS')
    a.label('K2_NOABORT')
    a('    s_waitcnt lgkmcnt(0)')
    stamp(a, 6)
    a('    s_barrier')
    S0 = 76; S1 = 84; UU = 92; XX = 104
    a(f'    s_mov_b64 exec, s[{sM}:{sM+1}]')
    a(f'    ds_read_b128 v[{S0}:{S0+3}], v{vFS} offset:{L2_SLOT}')
    a(f'    ds_read_b128 v[{S0+4}:{S0+7}], v{vFS} offset:{L2_SLOT+256}')
    a(f'    s_mov_b64 exec, s[{sM+2}:{sM+3}]')
    a(f'    ds_read_b128 v[{S1}:{S1+3}], v{vFS} offset:{L2_SLOT+512}')
    a(f'    ds_read_b128 v[{S1+4}:{S1+7}], v{vFS} offset:{L2_SLOT+512+256}')
    a('    s_mov_b64 exec, -1')
    a(f'    ds_read_b128 v[{UU}:{UU+3}], v{vUTA}')
    a(f'    ds_read_b64 v[{XX}:{XX+1}], v{vXTA}')
    a(f'    s_mov_b64 exec, s[{sM}:{sM+1}]')
    a('    s_waitcnt lgkmcnt(4)')
    for b, acc in ((S0, vDA), (S0+2, vDA+2), (S0+4, vNA), (S0+6, vNA+2)):
        a(f'    v_pk_add_f32 v[{acc}:{acc+1}], v[{acc}:{acc+1}], v[{b}:{b+1}]')
    a(f'    s_mov_b64 exec, s[{sM+2}:{sM+3}]')
    a('    s_waitcnt lgkmcnt(2)')
    for b, acc in ((S1, vDA), (S1+2, vDA+2), (S1+4, vNA), (S1+6, vNA+2)):
        a(f'    v_pk_add_f32 v[{acc}:{acc+1}], v[{acc}:{acc+1}], v[{b}:{b+1}]')
    a('    s_mov_b64 exec, -1')
    a(f'    s_cmp_eq_u64 s[{sM+4}:{sM+5}], 0')
    a('    s_cbranch_scc1 K2_FOLD_END')
    a(f'    v_add_u32 v{vFS}, 1024, v{vFS}')
    a(f'    v_add_u32 v{vFC}, -2, v{vFC}')
    a.label('K2_FOLD')
    masked(a, f'v_cmp_lt_i32 vcc, 0, v{vFC}', sEX, 'K2_FOLD_DONE')
    a(f'    ds_read_b128 v[{S0}:{S0+3}], v{vFS} offset:{L2_SLOT}')
    a(f'    ds_read_b128 v[{S0+4}:{S0+7}], v{vFS} offset:{L2_SLOT+256}')
    a(f'    v_add_u32 v{vFS}, 512, v{vFS}')
    a(f'    v_add_u32 v{vFC}, -1, v{vFC}')
    a('    s_waitcnt lgkmcnt(0)')
    for b, acc in ((S0, vDA), (S0+2, vDA+2), (S0+4, vNA), (S0+6, vNA+2)):
        a(f'    v_pk_add_f32 v[{acc}:{acc+1}], v[{acc}:{acc+1}], v[{b}:{b+1}]')
    unmask(a, sEX)
    a('    s_branch K2_FOLD')
    unmask(a, sEX, 'K2_FOLD_DONE')
    a.label('K2_FOLD_END')
    a(f'    s_cmp_eq_u32 s{sMODE}, 0')
    a('    s_cbranch_scc1 K2_EPI')
    a(f'    s_add_u32 s{sPASS}, s{sPASS}, 1')
    a(f'    s_cmp_lt_u32 s{sPASS}, {NC}')
    a('    s_cbranch_scc0 K2_EPI')
    a('    s_waitcnt vmcnt(0) lgkmcnt(0)')
    a('    s_barrier                               ; slots consumed before the next pass')
    a('    s_branch K2_PASS')
    a.label('K2_EPI')
    masked(a, f'v_cmp_gt_u32 vcc, s{sNT}, v0', sEX, 'K2_FIN')
    a(f'    s_mov_b32 s{sT0}, {hex(f2u(1e-6))}')
    for i in range(4):
        a(f'    v_add_f32 v{vDA+i}, s{sT0}, v{vDA+i}')
    for i in range(4):
        a(f'    v_rcp_f32 v{vDA+i}, v{vDA+i}')
    a('    s_waitcnt lgkmcnt(0)')
    a(f'    v_lshlrev_b32 v{vT}, 16, v{XX}')
    a(f'    v_and_b32 v{vT+1}, 0xffff0000, v{XX}')
    a(f'    v_lshlrev_b32 v{vT+2}, 16, v{XX+1}')
    a(f'    v_and_b32 v{vT+3}, 0xffff0000, v{XX+1}')
    for i in range(4):
        a(f'    v_fma_f32 v{vNA+i}, v{vNA+i}, v{vDA+i}, v{UU+i}    ; z = U + agg')
    for i in range(4):
        a(f'    v_cmp_lt_f32 s[{sM+2*i}:{sM+2*i+1}], 0, v{vNA+i}')
    for i in range(4):
        a(f'    v_mul_f32 v{vDEN+i}, 0, v{vNA+i}                     ; 0*z')
    for i in range(4):
        a(f'    v_cndmask_b32 v{vNA+i}, v{vDEN+i}, v{vNA+i}, s[{sM+2*i}:{sM+2*i+1}]')
    for i in range(4):
        a(f'    v_add_f32 v{vNA+i}, v{vNA+i}, v{vT+i}')
    a(f'    s_lshl_b32 s{sT1}, s{sN0}, 7')
    a(f'    v_lshlrev_b32 v{vA+1}, 3, v0')
    a(f'    v_cvt_pk_bf16_f32 v{vDEN}, v{vNA}, v{vNA+1}')
    a(f'    v_cvt_pk_bf16_f32 v{vDEN+1}, v{vNA+2}, v{vNA+3}')
    a(f'    buffer_store_dwordx2 v[{vDEN}:{vDEN+1}], v{vA+1}, s[{SRD_OUT}:{SRD_OUT+3}], s{sT1} offen {OUTST}')
    a.label('K2_FIN')
    if STAMP:
        a('    s_mov_b64 exec, -1')
        a('    s_waitcnt vmcnt(0)')
    stamp(a, 7); stamp(a, 1, True)
    stamp_flush(a, sWAVE, sB, 1, 6)
    a.label('K2_END')
    a('    s_endpgm')
    a.label('CODE_END')

def gen_k3(a):
    i, j = [int(x) for x in env('INTERVAL', '0,0').split(',')]
    inv = {0: True, 2: True}
    a('.globl k3_kernel')
    a('.p2align 8')
    a('.type k3_kernel,@function')
    a.label('k3_kernel')
    a('    s_cmp_ge_u32 s2, 1')
    a('    s_cbranch_scc1 K3_END')
    a('    s_load_dwordx2 s[4:5], s[0:1], 80')
    a('    s_waitcnt lgkmcnt(0)')
    a('    v_mov_b32 v1, 0')
    a(f'    global_load_dword v2, v1, s[4:5] offset:{4*i} sc1')
    a(f'    global_load_dword v3, v1, s[4:5] offset:{4*j} sc1')
    a('    s_waitcnt vmcnt(0)')
    if inv.get(i): a('    v_not_b32 v2, v2')
    if inv.get(j): a('    v_not_b32 v3, v3')
    a('    v_sub_u32 v3, v3, v2')
    a('    s_nop 1')
    a('    v_readfirstlane_b32 s8, v3')
    a('    s_nop 3')
    a('    s_mul_i32 s8, s8, 10')
    a('    s_min_u32 s8, s8, 50000')
    a('    s_memrealtime s[10:11]')
    a('    s_waitcnt lgkmcnt(0)')
    a.label('K3_SPIN')
    a('    s_memrealtime s[12:13]')
    a('    s_waitcnt lgkmcnt(0)')
    a('    s_sub_u32 s9, s12, s10')
    a('    s_cmp_lt_u32 s9, s8')
    a('    s_cbranch_scc1 K3_SPIN')
    a.label('K3_END')
    a('    s_endpgm')

def kd(a, name, vgpr, sgpr):
    a(f'.amdhsa_kernel {name}')
    a(f'  .amdhsa_next_free_vgpr {vgpr}')
    a(f'  .amdhsa_next_free_sgpr {sgpr}')
    a(f'  .amdhsa_accum_offset {((vgpr+3)//4)*4}')
    a('  .amdhsa_group_segment_fixed_size 0')
    a('  .amdhsa_kernarg_size 96')
    a('  .amdhsa_user_sgpr_count 2')
    a('  .amdhsa_user_sgpr_kernarg_segment_ptr 1')
    a('  .amdhsa_system_sgpr_workgroup_id_x 1')
    a('  .amdhsa_float_denorm_mode_32 3')
    a('.end_amdhsa_kernel')

def main(out):
    a = Asm()
    a(f'; @launch kernel=k1_kernel grid=({K1_GRID},1,1) block=(1024,1,1) lds={K1_LDS}')
    a(f'; @launch kernel=k2_kernel grid=({NB},1,1) block=(1024,1,1) lds={K2_LDS}')
    if STAMP == 4: a('; @launch kernel=k3_kernel grid=(1,1,1) block=(64,1,1) lds=0')
    a('.amdgcn_target "amdgcn-amd-amdhsa--gfx950"')
    a('.text')
    a('.globl k1_kernel')
    gen_k1(a)
    a('.globl k2_kernel')
    gen_k2(a)
    if STAMP == 4: gen_k3(a)
    a('.section .rodata,"a"')
    a('.p2align 6')
    kd(a, 'k1_kernel', 96, 102 if STAMP else 72)
    a('.p2align 6')
    kd(a, 'k2_kernel', 128, 102 if STAMP else 80)
    if STAMP == 4:
        a('.p2align 6')
        kd(a, 'k3_kernel', 8, 32)
    a.l = [x for x in a.l if x is not None]
    open(out, 'w').write(a.text())

if __name__ == '__main__':
    main(sys.argv[1] if len(sys.argv) > 1 else 'standalone__edge_featured_mpnn_gatedgcn__graph.s')
```

```python
import sys, os, struct
def env(n, d): return os.environ.get(n, d)

N = 10000; E = 640000
NPB = 40; NB = 256; EPC = 2500; NC = 256
TPC = EPC//4
BMAGIC = 109951163
LOG2E = 1.4426950408889634
WS_REC  = 0
REC_STRIDE = EPC*5
WS_DESC = 3407872
DESC_STRIDE = 1024
WS_T    = 4194304
T_BYTES = (N+1)*256

STAMP = int(env('STAMP', '0'))
K1ST = env('K1ST', 'sc1')
PRIO = int(env('PRIO', '1'))
TFIRST = int(env('TFIRST', '1'))
XLATE = int(env('XLATE', '1'))
CPF2 = int(env('CPF2', '1'))
DESCE = int(env('DESCE', '1'))
WS_STAMP = 128 << 20
ST0 = 80

def f2u(f): return struct.unpack('<I', struct.pack('<f', f))[0]

class Asm:
    def __init__(self): self.l = []
    def __call__(self, s=''):
        for line in s.split('\n'): self.l.append(line)
    def label(self, n): self.l.append(n + ':')
    def text(self): return '\n'.join(self.l) + '\n'

DETAIL = int(env('DETAIL', '0'))
def dstamp(a, i):
    if DETAIL: stamp(a, i, False, True)
def stamp(a, i, real=False, force=False):
    if DETAIL and not force and not real and getattr(a, 'k2', False) and i in (1, 2, 3): return
    if STAMP:
        r = ST0 + 2*(8+i if real else i)
        a(f"    {'s_memrealtime' if (real or STAMP >= 3) else 's_memtime'} s[{r}:{r+1}]")
def stamp_flush(a, wave_sgpr, wg_sgpr, kern, ws_lo):
    if not STAMP: return
    a('    s_waitcnt lgkmcnt(0)')
    a('    s_mov_b64 exec, 1')
    a('    v_mov_b32 v2, 0')
    if STAMP == 4:
        lab = f'STSKIP{kern}_{len(a.l)}'
        a(f"    s_and_b32 s14, s{wg_sgpr}, {31 if kern == 0 else int(env('SAMP2', '31'))}")
        a('    s_cmp_eq_u32 s14, 0')
        a(f'    s_cbranch_scc0 {lab}')
        a(f'    s_cmp_eq_u32 s{wave_sgpr}, 0')
        a(f'    s_cbranch_scc0 {lab}')
        a('    s_load_dwordx2 s[12:13], s[0:1], 80')
        a('    s_waitcnt lgkmcnt(0)')
        a(f'    s_add_u32 s12, s12, {1024 if kern == 0 else 512}')
        a('    s_addc_u32 s13, s13, 0')
        slots = [(0, 8, True), (1, 9, False), (7, 4, False), (8, 2, False)] if kern == 0 else \
                [(2, 8, True), (3, 4, False), (4, 5, False), (5, 6, False), (6, 9, False), (9, 2, False)]
        for slot, st, inv in slots:
            a(f'    v_mov_b32 v3, s{ST0+2*st}')
            if inv: a('    v_not_b32 v3, v3')
            a(f'    global_atomic_umax v2, v3, s[12:13] offset:{4*slot}')
        a('    s_waitcnt vmcnt(0)')
        a.label(lab)
        return
    a(f'    s_add_u32 s12, s{ws_lo}, {WS_STAMP + kern*(4<<20)}')
    a(f'    s_addc_u32 s13, s{ws_lo+1}, 0')
    a(f'    s_mov_b32 s14, {4<<20}')
    a('    s_mov_b32 s15, 0x00020000')
    a(f'    s_lshl_b32 s16, s{wg_sgpr}, 4')
    a(f'    s_add_u32 s16, s16, s{wave_sgpr}')
    a(f'    s_lshl_b32 s16, s16, 6')
    for i in range(8):
        a(f'    v_mov_b32 v3, s{ST0+2*i}')
        a(f'    buffer_store_dword v3, v2, s[12:15], s16 offen offset:{4*i}')
    for i in range(2):
        a(f'    v_mov_b32 v3, s{ST0+2*(8+i)}')
        a(f'    buffer_store_dword v3, v2, s[12:15], s16 offen offset:{4*(10+i)}')
    a('    s_waitcnt vmcnt(0)')

def srd(a, sreg, lo, hi, nbytes, off=0, stride=0, nrec=None):
    if off:
        a(f'    s_add_u32 s{sreg}, s{lo}, {off}')
        a(f'    s_addc_u32 s{sreg+1}, s{hi}, 0')
    else:
        a(f'    s_mov_b32 s{sreg}, s{lo}')
        a(f'    s_mov_b32 s{sreg+1}, s{hi}')
    if stride:
        a(f'    s_and_b32 s{sreg+1}, s{sreg+1}, 0xffff')
        a(f'    s_or_b32 s{sreg+1}, s{sreg+1}, {stride << 16}')
        a(f'    s_mov_b32 s{sreg+2}, {nrec}')
    else:
        a(f'    s_mov_b32 s{sreg+2}, {nbytes}')
    a(f'    s_mov_b32 s{sreg+3}, 0x00020000')

def dpp_scan(a, v):
    for sh in (1, 2, 4, 8):
        a('    s_nop 1')
        a(f'    v_add_u32_dpp v{v}, v{v}, v{v} row_shr:{sh} row_mask:0xf bank_mask:0xf')
    a('    s_nop 1')
    a(f'    v_add_u32_dpp v{v}, v{v}, v{v} row_bcast:15 row_mask:0xa bank_mask:0xf')
    a('    s_nop 1')
    a(f'    v_add_u32_dpp v{v}, v{v}, v{v} row_bcast:31 row_mask:0xc bank_mask:0xf')

def masked(a, cond, exreg, skip=None):
    a(f'    {cond}')
    a(f'    s_and_saveexec_b64 s[{exreg}:{exreg+1}], vcc')
    if skip: a(f'    s_cbranch_execz {skip}')
def unmask(a, exreg, skip=None):
    if skip: a.label(skip)
    a(f'    s_mov_b64 exec, s[{exreg}:{exreg+1}]')

def lds_sync(a, name, off, n, vzero, vone, vt, st):
    a('    s_waitcnt lgkmcnt(0)')
    a('    s_mov_b64 exec, 1')
    a(f'    ds_add_u32 v{vzero}, v{vone} offset:{off}')
    a('    s_mov_b64 exec, -1')
    a.label(name)
    a(f'    ds_read_b32 v{vt}, v{vzero} offset:{off}')
    a('    s_waitcnt lgkmcnt(0)')
    a(f'    v_readfirstlane_b32 s{st}, v{vt}')
    a(f'    s_cmp_lt_u32 s{st}, {n}')
    a(f'    s_cbranch_scc1 {name}')

K1_GRID = NC
L1_HIST = 0; L1_START = 1024; L1_SYNC = 2048
L1_ST32 = 2304; L1_ST8 = L1_ST32 + 2560*4; L1_W = 15360
K1_LDS = L1_W + 16384
K1PF = int(env('K1PF', '0'))
CPF = int(env('CPF', '1'))
XMAP = int(env('XMAP', '1'))
DESCT = int(env('DESCT', '1'))
DESCST = env('DESCST', '')
OUTST = env('OUTST', '')
RECST = env('RECST', K1ST)
TST = env('TST', K1ST)
TFIRST = int(env('TFIRST', '1'))
XLATE = int(env('XLATE', '1'))
CPF2 = int(env('CPF2', '1'))
DESCE = int(env('DESCE', '1'))

def gen_k1(a):
    a('.p2align 8')
    a('.type k1_kernel,@function')
    a.label('k1_kernel')
    a(f'    s_cmp_ge_u32 s2, {K1_GRID}')
    a('    s_cbranch_scc1 K1_END')
    stamp(a, 0); stamp(a, 0, True)
    if CPF:
        a('    s_getpc_b64 s[30:31]')
        a.label('K1_PC')
        a('    v_lshlrev_b32 v90, 7, v0')
        lim = 'CODE_END-K1_PC' if CPF >= 2 else 'k2_kernel-K1_PC'
        a(f'    v_cmp_gt_u32 vcc, {lim}, v90')
        a('    s_and_saveexec_b64 s[28:29], vcc')
        a('    s_cbranch_execz K1_NOCPF')
        a('    global_load_dword v91, v90, s[30:31]')
        a.label('K1_NOCPF')
        a('    s_mov_b64 exec, s[28:29]')
    if XMAP:
        a('    s_and_b32 s20, s2, 7')
        a('    s_lshr_b32 s21, s2, 3')
        a('    s_lshl_b32 s20, s20, 5')
        a('    s_add_u32 s2, s20, s21')
    a('    v_lshrrev_b32 v1, 6, v0')
    a('    s_load_dwordx4 s[8:11], s[0:1], 16')
    a('    v_readfirstlane_b32 s20, v1')
    a('    s_load_dwordx2 s[4:5], s[0:1], 8      ; e_attr')
    a('    s_load_dwordx2 s[6:7], s[0:1], 88     ; ws')
    a('    v_and_b32 v2, 63, v0                   ; lane')
    if TFIRST:
        a('    s_cmp_lt_u32 s20, 6')
        a('    s_cbranch_scc1 K1_TABLE')
        a('    v_subrev_u32 v0, 384, v0')
        a('    s_sub_u32 s20, s20, 6')
    else:
        a('    s_cmp_ge_u32 s20, 10')
        a('    s_cbranch_scc1 K1_TABLE')
    a('    v_mov_b32 v5, 0')
    a('    v_lshlrev_b32 v6, 2, v0               ; t*4')
    masked(a, 'v_cmp_gt_u32 vcc, 256, v0', 30)
    a(f'    ds_write_b32 v6, v5 offset:{L1_HIST}')
    unmask(a, 30)
    a('    v_lshlrev_b32 v3, 4, v0               ; t*16')
    a('    v_lshlrev_b32 v4, 3, v0               ; t*8')
    a(f'    s_mul_i32 s21, s2, {EPC*4}')
    a(f'    s_mul_i32 s22, s2, {EPC*2}')
    a(f'    s_mov_b32 s23, {BMAGIC}')
    a(f'    v_mov_b32 v19, {TPC}')
    a('    v_cmp_gt_u32 s[46:47], v19, v0')
    a('    s_waitcnt lgkmcnt(0)')
    srd(a, 12, 10, 11, E*4)
    a('    buffer_load_dwordx4 v[8:11], v3, s[12:15], s21 offen     ; dst x4')
    srd(a, 16, 8, 9, E*4)
    a('    buffer_load_dwordx4 v[12:15], v3, s[16:19], s21 offen    ; src x4')
    srd(a, 24, 4, 5, E*2)
    a('    buffer_load_dwordx2 v[16:17], v4, s[24:27], s22 offen')
    srd(a, 32, 6, 7, NC*REC_STRIDE, off=WS_REC)
    srd(a, 36, 6, 7, NB*DESC_STRIDE, off=WS_DESC)
    a('    v_lshlrev_b32 v6, 4, v2                ; lane*16')
    a('    v_mul_u32_u24 v7, 20, v0')
    a('    v_lshlrev_b32 v18, 12, v2')
    a(f'    s_mul_i32 s25, s2, {REC_STRIDE}')
    a('    s_lshl_b32 s26, s2, 2')
    a('    s_mov_b32 s40, 0x06050400')
    a('    s_mov_b32 s41, 0x05040003')
    a('    s_mov_b32 s42, 0x03020500')
    a('    s_mov_b32 s43, 0x04000302')
    a('    s_mov_b32 s44, 0x03060100')
    a('    s_mov_b32 s45, 0x07030201')
    stamp(a, 1)
    a('    s_barrier')
    a('    v_mov_b32 v5, 1')
    a('    v_mov_b32 v19, 0')
    a('    s_waitcnt vmcnt(2)')
    stamp(a, 2)
    for k in range(4):
        a(f'    v_mul_hi_u32 v{20+k}, s23, v{8+k}        ; bucket')
    for k in range(4):
        a(f'    v_lshlrev_b32 v{24+k}, 2, v{20+k}       ; bucket*4')
    a('    s_mov_b64 exec, s[46:47]')
    for k in range(4):
        a(f'    ds_add_rtn_u32 v{28+k}, v{24+k}, v5 offset:{L1_HIST}')
    a('    s_mov_b64 exec, -1')
    a('    s_movk_i32 s27, 625')
    for k in range(4):
        a(f'    v_mad_u32_u24 v{20+k}, v{20+k}, s27, 15')
    for k in range(4):
        a(f'    v_lshrrev_b32 v{20+k}, 4, v{20+k}')
    for k in range(4):
        a(f'    v_sub_u32 v{20+k}, v{8+k}, v{20+k}')
    for k in range(4):
        a(f'    v_lshlrev_b32 v{20+k}, 2, v{20+k}')
    a('    s_waitcnt vmcnt(0)')
    a('    v_lshl_or_b32 v32, v16, 16, v12')
    a('    s_mov_b32 s24, 0xffff0000')
    a('    v_and_or_b32 v33, v16, s24, v13')
    a('    v_lshl_or_b32 v34, v17, 16, v14')
    a('    v_and_or_b32 v35, v17, s24, v15')
    a('    s_waitcnt lgkmcnt(0)')
    stamp(a, 3)
    lds_sync(a, 'K1_SYNC2', L1_SYNC+4, 10, 19, 5, 25+40, 27)
    stamp(a, 4)
    a(f'    ds_read_b128 v[40:43], v6 offset:{L1_HIST}')
    a('    s_waitcnt lgkmcnt(0)')
    a('    v_add_u32 v44, v40, v41                ; h0+h1')
    a('    v_add_u32 v45, v44, v42')
    a('    v_add_u32 v46, v45, v43                ; sum4')
    a('    v_mov_b32 v47, v46')
    dpp_scan(a, 47)
    a('    v_sub_u32 v48, v47, v46')
    a('    v_add_u32 v49, v48, v40')
    a('    v_add_u32 v50, v48, v44')
    a('    v_add_u32 v51, v48, v45')
    a(f'    ds_write_b128 v6, v[48:51] offset:{L1_START}')
    a('    s_waitcnt lgkmcnt(0)')
    for k in range(4):
        a(f'    ds_read_b32 v{56+k}, v{24+k} offset:{L1_START}')
    for k in range(4):
        a(f'    v_lshl_or_b32 v{52+k}, v{40+k}, 16, v{48+k}')
    if DESCT and DESCE:
        for k in range(4):
            a(f'    s_cmp_eq_u32 s20, {k}')
            a(f'    s_cbranch_scc0 K1_DE{k}')
            a(f'    buffer_store_dword v{52+k}, v18, s[36:39], s26 offen offset:{1024*k} {DESCST}')
            a.label(f'K1_DE{k}')
    a('    s_waitcnt lgkmcnt(0)')
    for k in range(4):
        a(f'    v_add_u32 v{56+k}, v{56+k}, v{28+k}      ; position')
    a('    s_mov_b64 exec, s[46:47]')
    for k in range(4):
        a(f'    ds_write_b8 v{56+k}, v{20+k} offset:{L1_ST8}')
        a(f'    v_lshlrev_b32 v{60+k}, 2, v{56+k}')
    for k in range(4):
        a(f'    ds_write_b32 v{60+k}, v{32+k} offset:{L1_ST32}')
    a('    s_mov_b64 exec, -1')
    a('    s_waitcnt lgkmcnt(0)')
    stamp(a, 5)
    lds_sync(a, 'K1_SYNC3', L1_SYNC+8, 10, 19, 5, 25+40, 27)
    a(f'    ds_read_b128 v[8:11], v3 offset:{L1_ST32}')
    a('    v_lshrrev_b32 v4, 2, v3                ; t*4')
    a(f'    ds_read_b32 v12, v4 offset:{L1_ST8}')
    a('    s_waitcnt lgkmcnt(0)')
    a('    v_perm_b32 v21, v9, v12, s40           ; d1 = L0 r1.b0 r1.b1 r1.b2')
    a('    v_perm_b32 v22, v10, v9, s41           ; r1.b3 . r2.b0 r2.b1')
    a('    v_perm_b32 v23, v11, v10, s43          ; r2.b2 r2.b3 . r3.b0')
    a('    v_mov_b32 v20, v8')
    a('    v_perm_b32 v22, v12, v22, s42          ; d2 : insert L1')
    a('    v_perm_b32 v23, v12, v23, s44          ; d3 : insert L2')
    a('    v_perm_b32 v24, v12, v11, s45          ; d4 = r3.b1 r3.b2 r3.b3 L3')
    a('    s_mov_b64 exec, s[46:47]')
    a(f'    buffer_store_dwordx4 v[20:23], v7, s[32:35], s25 offen {RECST}')
    a(f'    buffer_store_dword v24, v7, s[32:35], s25 offen offset:16 {RECST}')
    a('    s_mov_b64 exec, -1')
    a('    s_cmp_eq_u32 s20, 0')
    a('    s_cbranch_scc0 K1_SFIN')
    if DESCT and DESCE:
        pass
    elif DESCT:
        for k in range(4):
            a(f'    buffer_store_dword v{52+k}, v18, s[36:39], s26 offen offset:{1024*k} {DESCST}')
    else:
        a('    s_lshl_b32 s26, s2, 10')
        a(f'    buffer_store_dwordx4 v[52:55], v6, s[36:39], s26 offen {DESCST}')
    a.label('K1_SFIN')
    if STAMP:
        stamp(a, 6)
        a('    s_waitcnt vmcnt(0)')
        stamp(a, 7); stamp(a, 1, True)
        stamp_flush(a, 20, 2, 0, 6)
    a('    s_endpgm')
    a.label('K1_TABLE')
    a('    s_load_dwordx2 s[40:41], s[0:1], 40   ; w_b')
    a('    s_load_dwordx2 s[42:43], s[0:1], 64   ; w_v')
    a('    s_load_dwordx2 s[44:45], s[0:1], 0    ; x')
    if K1PF:
        a('    s_load_dwordx2 s[60:61], s[0:1], 32   ; w_a')
        a('    s_load_dwordx4 s[64:67], s[0:1], 48   ; w_c, w_u')
        a('    s_load_dwordx2 s[62:63], s[0:1], 72   ; out')
    a('    s_mov_b32 s21, s20                     ; tw' if TFIRST else '    s_sub_u32 s21, s20, 10                 ; tw')
    a('    v_mov_b32 v5, 0')
    a('    v_lshlrev_b32 v6, 2, v2')
    a('    s_cmp_eq_u32 s21, 0')
    a('    s_cbranch_scc0 K1_T_NOZ')
    masked(a, 'v_cmp_gt_u32 vcc, 4, v2', 30)
    a(f'    ds_write_b32 v6, v5 offset:{L1_SYNC}')
    unmask(a, 30)
    a.label('K1_T_NOZ')
    a('    s_lshr_b32 s22, s21, 1')
    a('    s_lshl_b32 s22, s22, 4                 ; 16*rt')
    a('    v_and_b32 v4, 15, v2')
    a('    v_add_u32 v4, s22, v4')
    a('    v_lshrrev_b32 v5, 4, v2                ; g')
    a('    v_lshlrev_b32 v6, 7, v4')
    a('    v_lshl_add_u32 v6, v5, 4, v6')
    a('    s_mul_i32 s58, s2, 625')
    a('    s_add_u32 s59, s58, 640                ; 625*(c+1) + 15')
    a('    s_add_u32 s58, s58, 15')
    a('    s_lshr_b32 s58, s58, 4')
    a('    s_lshr_b32 s59, s59, 4')
    a('    s_sub_u32 s59, s59, s58')
    a('    s_lshl_b32 s24, s58, 7')
    a('    v_lshlrev_b32 v7, 4, v2                ; lane*16')
    a('    v_bfe_u32 v8, v2, 4, 1')
    a('    v_lshlrev_b32 v8, 1, v8')
    a('    v_and_b32 v9, 7, v2')
    a('    v_xor_b32 v8, v8, v9')
    a('    v_lshrrev_b32 v9, 3, v2')
    a('    v_lshlrev_b32 v9, 7, v9                ; (lane>>3)*128')
    a('    s_waitcnt lgkmcnt(0)')
    for i in range(3):
        a(f'    s_add_u32 s26, s21, {6*i}              ; p')
        a('    s_cmp_lt_u32 s26, 8')
        a('    s_cselect_b32 s48, s40, s42')
        a('    s_cselect_b32 s49, s41, s43')
        a('    s_mov_b32 s50, 8192')
        a('    s_mov_b32 s51, 0x00020000')
        a('    s_and_b32 s27, s26, 7')
        a('    s_lshl_b32 s27, s27, 10')
        a('    s_cmp_lt_u32 s26, 16')
        a(f'    s_cselect_b32 s27, s27, {1<<20}')
        a(f'    buffer_load_dwordx4 v[{48+4*i}:{51+4*i}], v7, s[48:51], s27 offen')
    if XLATE: a('    s_barrier')
    srd(a, 36, 44, 45, N*128)
    a('    buffer_load_dwordx4 v[24:27], v6, s[36:39], s24 offen')
    a('    buffer_load_dwordx4 v[28:31], v6, s[36:39], s24 offen offset:64')
    if K1PF:
        a('    s_cmp_eq_u32 s21, 5')
        a('    s_cbranch_scc0 K1_T_NOPF')
        a('    v_lshlrev_b32 v60, 8, v2')
        a('    v_lshlrev_b32 v61, 7, v2')
        a('    global_load_dword v62, v61, s[60:61]')
        a('    global_load_dword v62, v61, s[66:67]')
        a('    v_mov_b32 v63, 0')
        a('    global_load_dword v62, v63, s[64:65]')
        a('    s_lshl_b32 s26, s58, 7')
        a('    v_mov_b32 v63, s26')
        a('    global_load_dword v62, v63, s[62:63]')
        srd(a, 52, 6, 7, WS_T + T_BYTES, off=0)
        a(f'    s_mul_i32 s26, s2, {REC_STRIDE}')
        a('    v_mov_b32 v63, s26')
        a('    buffer_load_dword v62, v63, s[52:55], 0 offen')
        a('    s_lshl_b32 s26, s58, 8')
        a(f'    s_add_u32 s26, s26, {WS_T}')
        a('    v_mov_b32 v63, s26')
        a('    buffer_load_dword v62, v63, s[52:55], 0 offen')
        a(f'    s_lshl_b32 s26, s2, 2')
        a(f'    s_add_u32 s26, s26, {WS_DESC}')
        a('    v_mov_b32 v63, s26')
        a('    buffer_load_dword v62, v63, s[52:55], 0 offen')
        a.label('K1_T_NOPF')
    if not XLATE: a('    s_barrier')
    if K1PF: a.label('K1_T_PFJOIN0')
    srd(a, 44, 6, 7, T_BYTES, off=WS_T)
    for i in range(3):
        a(f'    s_add_u32 s26, s21, {6*i}              ; p')
        a('    s_and_b32 s27, s26, 1')
        a('    s_lshl_b32 s27, s27, 2')
        a(f'    v_xor_b32 v{18+i}, s27, v8')
        a(f'    v_lshl_add_u32 v{18+i}, v{18+i}, 4, v9')
        a('    s_lshl_b32 s27, s26, 10                ; m*8192 + (p&7)*1024 = p*1024')
        a(f'    v_add_u32 v{18+i}, s27, v{18+i}')
    a('    s_and_b32 s23, s21, 1                  ; half')
    a('    v_bfe_u32 v12, v2, 2, 2                ; r')
    a('    v_lshl_add_u32 v13, v5, 3, v12         ; rho')
    a('    v_lshlrev_b32 v13, 7, v13')
    a('    v_and_b32 v14, 1, v2')
    a('    v_lshl_add_u32 v13, v14, 3, v13        ; + (c&1)*8')
    a('    v_bfe_u32 v14, v2, 1, 1                ; c>>1')
    a('    v_lshrrev_b32 v12, 1, v12')
    a('    v_and_b32 v15, 1, v5                   ; g&1')
    a('    v_lshlrev_b32 v15, 1, v15')
    a('    v_or_b32 v12, v12, v15                 ; swz/2')
    a('    s_lshl_b32 s25, s23, 1')
    a('    v_xor_b32 v15, s25, v12')
    a('    v_lshl_or_b32 v15, v15, 1, v14')
    a('    v_lshl_add_u32 v16, v15, 4, v13')
    a('    s_add_u32 s25, s25, 1')
    a('    v_xor_b32 v15, s25, v12')
    a('    v_lshl_or_b32 v15, v15, 1, v14')
    a('    v_lshl_add_u32 v17, v15, 4, v13')
    a('    v_lshlrev_b32 v21, 8, v4')
    a('    v_lshl_add_u32 v21, v5, 4, v21')
    a('    s_lshl_b32 s25, s23, 7')
    a('    s_lshl_b32 s26, s58, 8')
    a('    s_add_u32 s25, s25, s26')
    a('    v_add_u32 v21, s25, v21')
    a('    v_cmp_gt_u32 vcc, s59, v4')
    a(f'    v_mov_b32 v22, {1<<30}')
    a(f'    s_mov_b32 s27, {hex(f2u(-LOG2E))}')
    a('    s_mov_b32 s28, 0xffff0000')
    a('    v_cndmask_b32 v9, v22, v21, vcc')
    a('    s_mov_b32 s29, 0x80000000')
    a('    v_mov_b32 v10, 0')
    a('    v_mov_b32 v11, 1')
    if K1PF:
        a('    s_cmp_eq_u32 s21, 5')
        a('    s_cbranch_scc0 K1_T_W2')
        a('    s_waitcnt vmcnt(9)')
        a('    s_branch K1_T_W9')
        a.label('K1_T_W2')
    a('    s_waitcnt vmcnt(2)')
    if K1PF: a.label('K1_T_W9')
    stamp(a, 1)
    for i in range(3):
        if i == 2:
            a('    s_cmp_lt_u32 s21, 4')
            a('    s_cbranch_scc0 K1_T_ST2')
        a(f'    ds_write_b128 v{18+i}, v[{48+4*i}:{51+4*i}] offset:{L1_W}')
    a.label('K1_T_ST2')
    lds_sync(a, 'K1_T_SPIN', L1_SYNC, 6, 10, 11, 12, 26)
    stamp(a, 3)
    order = [(jj, ks, m) for jj in range(2) for ks in range(2) for m in range(2)]
    for i, (jj, ks, m) in enumerate(order):
        b = 64 + 4*i
        off = L1_W + m*8192 + ks*32*128
        a(f'    ds_read_b64_tr_b16 v[{b}:{b+1}], v{16+jj} offset:{off}')
        a(f'    ds_read_b64_tr_b16 v[{b+2}:{b+3}], v{16+jj} offset:{off+512}')
    if K1PF:
        a('    s_cmp_eq_u32 s21, 5')
        a('    s_cbranch_scc0 K1_T_X0')
        a('    s_waitcnt vmcnt(7)')
        a('    s_branch K1_T_XOK')
        a.label('K1_T_X0')
    a('    s_waitcnt vmcnt(0)')
    if K1PF: a.label('K1_T_XOK')
    for i, (jj, ks, m) in enumerate(order):
        b = 64 + 4*i
        a(f'    s_waitcnt lgkmcnt({min(15, 2*(7-i))})')
        acc = 32 + 8*m + 4*jj
        x = 24 + 4*ks
        c = '0' if ks == 0 else f'v[{acc}:{acc+3}]'
        a(f'    v_mfma_f32_16x16x32_bf16 v[{acc}:{acc+3}], v[{b}:{b+3}], v[{x}:{x+3}], {c}')
    stamp(a, 4)
    a('    s_nop 4')
    for jj in range(2):
        R = range(4)
        p = lambda r: 32 + 4*jj + r
        q = lambda r: 40 + 4*jj + r
        t = lambda r: 10 + r
        if jj == 1: a('    s_nop 2')
        for r in R: a(f'    v_mul_f32 v{p(r)}, s27, v{p(r)}')
        for r in R: a(f'    v_cvt_f16_f32 v{p(r)}, v{p(r)}')
        for r in R: a(f'    v_and_b32 v{t(r)}, 0x7fffffff, v{q(r)}')
        for r in R: a(f'    v_and_b32 v{p(r)}, 0xffff, v{p(r)}')
        for r in R: a(f'    v_sub_u32 v{t(r)}, v{t(r)}, v{p(r)}')
        for r in R: a(f'    v_add_u32 v{t(r)}, 0x8000, v{t(r)}')
        for r in R: a(f'    v_max_i32 v{t(r)}, 0, v{t(r)}')
        for r in R: a(f'    v_and_or_b32 v{t(r)}, v{t(r)}, s28, v{p(r)}')
        for r in R: a(f'    v_and_or_b32 v{p(r)}, v{q(r)}, s29, v{t(r)}')
        a(f'    buffer_store_dwordx4 v[{32+4*jj}:{35+4*jj}], v9, s[44:47], 0 offen offset:{jj*64} {TST}')
    a('    s_cmp_eq_u32 s2, 0')
    a('    s_cbranch_scc0 K1_TFIN')
    a('    s_cmp_eq_u32 s21, 0')
    a('    s_cbranch_scc0 K1_TFIN')
    a('    v_mov_b32 v10, 0x7c00')
    a(f'    v_lshlrev_b32 v11, 2, v2')
    a(f'    v_add_u32 v11, {N*256}, v11')
    a(f'    buffer_store_dword v10, v11, s[44:47], 0 offen {TST}')
    a.label('K1_TFIN')
    stamp(a, 5)
    if STAMP:
        stamp(a, 6)
        a('    s_waitcnt vmcnt(0)')
        stamp(a, 7); stamp(a, 1, True)
        if STAMP >= 3:
            a('    s_waitcnt lgkmcnt(0)')
            a(f'    s_mov_b32 s{ST0+4}, s{ST0+16}')
        else: stamp(a, 2)
        if TFIRST: a('    s_add_u32 s20, s20, 10')
        stamp_flush(a, 20, 2, 0, 6)
    a.label('K1_END')
    a('    s_endpgm')

CAP = 4096
TS = 272
L2_CNT = 0; L2_FLG = 256
L2_LIST = 512
L2_SLOT = L2_LIST + CAP*4
L2_EAT = L2_SLOT + 56*512; L2_UT = L2_EAT + 48*TS
XS = 144
L2_XT = L2_UT + 48*TS
L2_W = L2_XT + 48*XS
K2_LDS = L2_W + 16384
U = 4
TPF = int(env('TPF', '1'))
PFPOS = int(env('PFPOS', '1'))
PGT = int(env('PGT', '0'))
ASTAGE = int(env('ASTAGE', '1'))
G0N = int(env('G0N', '1'))
PFS = [int(x) for x in env('PFS', '6,6,6,6,8,8').split(',')]
PFW = int(env('PFW', '4'))
PFE = int(env('PFE', '0'))
PFL = int(env('PFL', '640'))
PFN = int(env('PFN', '40'))
PRT = [int(x) for x in env('PRT', '4,4,4').split(',')]

def gen_k2(a):
    a.k2 = True
    sB = 2; sWAVE = 3
    SRD_DESC = 12; SRD_REC = 16; SRD_T = 20; SRD_W = 24; SRD_X = 28; SRD_OUT = 32; SRD_WC = 36
    sMODE = 40; sPASS = 41
    sG0 = 42; sG1 = 43; sGEND = 44; sLEFT = 45; sNODE = 46; sT0 = 47; sT1 = 48; sSAFE = 49; sGT = 50; sR = 51
    sEX = 52; sEAB = 54; sPR = 55; sPQ = 56; sLVL = 57; sSLOT = 58; sNR = 59; sPQ2 = 60; sN0 = 62; sNN = 63; sNT = 61; sJ = 58
    sM = 64
    vLANE = 1
    vWC = 4; vEA = 8; vDEN = 12; vNUM = 16; vT = 20; vDAT = 24; vP = 40; vEV = 48
    vSA = 50; vACC = 51; vEAA = 52; vGS = 53; vQ16 = 54; vNG = 55
    vDA = 56; vNA = 60
    vX = 64
    vFL = 66
    vGE = 67
    vXO = 68
    vR = 76
    vB = 84
    vRK = 92
    vLA = 100
    vA = 108
    vCNT = 118; vRO = 119; vI = 120; vRM = 121; vTRA = 122; vXRA = 123; vROW = 121; vPFA = 51
    vLC = 12
    vPF = 16
    vXO2 = vXO
    SRD_LOC = 8; SRD_PF = 24
    vW = 24; vOP = 24; vAC = 40
    vOP2 = 76; vAC2 = 92
    vFS = 101; vFC = 102; vUTA = 103; vXTA = 106
    vOP3 = 24; vAC3 = 20; vAK = 20
    vU = 96; vUA = 100

    pf_state = {'next': 0}
    def pf(i):
        if not (TPF and PFPOS == 4) or PFS[i] == 0: return 0
        n = PFS[i]; st = pf_state['next']; pf_state['next'] += n
        assert pf_state['next'] <= 40
        base, off = (sJ, st*128) if st*128 < 4096 else (9, st*128 - 4096)
        a(f'    s_mov_b64 exec, {hex((1 << n) - 1)}')
        a(f'    buffer_load_dword v{vPF}, v{vPFA}, s[36:39], s{base} offen offset:{off}')
        a('    s_mov_b64 exec, -1')
        return 1
    npf = lambda *idx: sum(1 for i in idx if TPF and PFPOS == 4 and PFS[i] > 0)
    a('.p2align 8')
    a('.type k2_kernel,@function')
    a.label('k2_kernel')
    a(f'    s_cmp_ge_u32 s2, {NB}')
    a('    s_cbranch_scc1 K2_END')
    stamp(a, 0); stamp(a, 0, True)
    if CPF and CPF2:
        a('    s_getpc_b64 s[30:31]')
        a.label('K2_PC')
        a('    v_lshlrev_b32 v124, 7, v0')
        a('    v_cmp_gt_u32 vcc, CODE_END-K2_PC, v124')
        a('    s_and_saveexec_b64 s[28:29], vcc')
        a('    s_cbranch_execz K2_NOCPF')
        a('    global_load_dword v125, v124, s[30:31]')
        a.label('K2_NOCPF')
        a('    s_mov_b64 exec, s[28:29]')
    a(f'    s_lshr_b32 s{sJ}, s2, 3')
    if XMAP:
        a(f'    s_and_b32 s{sT0}, s2, 7')
        a(f'    s_lshl_b32 s{sT0}, s{sT0}, 5')
        a(f'    s_add_u32 s2, s{sT0}, s{sJ}')
    a(f'    s_mul_i32 s{sN0}, s2, 625')
    a(f'    s_add_u32 s{sNN}, s{sN0}, 640')
    a(f'    s_add_u32 s{sN0}, s{sN0}, 15')
    a(f'    s_lshr_b32 s{sN0}, s{sN0}, 4')
    a(f'    s_lshr_b32 s{sNN}, s{sNN}, 4')
    a(f'    s_sub_u32 s{sNN}, s{sNN}, s{sN0}')
    a('    s_load_dwordx2 s[6:7], s[0:1], 88      ; ws')
    a('    s_load_dwordx2 s[4:5], s[0:1], 0       ; x')
    a('    s_load_dwordx2 s[8:9], s[0:1], 32      ; w_a')
    a('    s_load_dwordx4 s[76:79], s[0:1], 48    ; w_c, w_u')
    a('    s_load_dwordx2 s[10:11], s[0:1], 72    ; out')
    a(f'    v_and_b32 v{vLANE}, 63, v0')
    a(f'    v_lshrrev_b32 v{vA}, 6, v0')
    a(f'    v_and_b32 v{vQ16}, 15, v0')
    a(f'    v_readfirstlane_b32 s{sWAVE}, v{vA}')
    a(f'    v_lshlrev_b32 v{vQ16}, 4, v{vQ16}      ; q*16')
    if DESCT:
        a(f'    v_and_b32 v{vA}, 0x3fc, v0             ; (t>>2)*4')
        a(f'    s_lshl_b32 s{sT0}, s{sB}, 10')
    else:
        a(f'    v_lshrrev_b32 v{vA}, 2, v0')
        a(f'    v_lshlrev_b32 v{vA}, 10, v{vA}')
        a(f'    s_lshl_b32 s{sT0}, s{sB}, 2')
    for i in range(4):
        a(f'    v_mov_b32 v{vDA+i}, 0')
        a(f'    v_mov_b32 v{vNA+i}, 0')
    masked(a, 'v_cmp_gt_u32 vcc, 4, v0', sEX)
    a(f'    v_lshlrev_b32 v{vA+5}, 2, v0')
    a(f'    ds_write_b32 v{vA+5}, v{vDA} offset:{L2_FLG}')
    unmask(a, sEX)
    a(f'    s_mov_b32 s{sMODE}, 0')
    a(f'    s_mov_b32 s{sPASS}, 0')
    a(f'    v_mov_b32 v{vEV}, 0')
    a(f'    v_mov_b32 v{vEV+1}, 0')
    for k in range(U):
        a(f'    v_mov_b32 v{vP+2*k}, {N}')
        a(f'    v_mov_b32 v{vP+2*k+1}, v{vQ16}')
    a(f'    v_lshrrev_b32 v{vA+1}, 5, v{vLANE}')
    a(f'    v_lshl_add_u32 v{vFL}, v{vA+1}, 8, v{vQ16}')
    a(f'    v_bfe_u32 v{vA+1}, v{vLANE}, 4, 1')
    a(f'    v_lshl_add_u32 v{vFL}, v{vA+1}, 3, v{vFL}')
    a.label('K2_PASS')
    for i in range(4):
        a(f'    v_mov_b32 v{vA+6+i}, {N}')
    a(f'    v_lshlrev_b32 v{vA+5}, 4, v0')
    a(f'    ds_write_b128 v{vA+5}, v[{vA+6}:{vA+9}] offset:{L2_LIST}')
    masked(a, 'v_cmp_gt_u32 vcc, 64, v0', sEX)
    a(f'    v_lshlrev_b32 v{vA+4}, 2, v0')
    a(f'    v_mov_b32 v{vA+3}, 0')
    a(f'    ds_write_b32 v{vA+4}, v{vA+3} offset:{L2_CNT}')
    unmask(a, sEX)
    a(f'    s_cmp_eq_u32 s{sMODE}, 0')
    a('    s_cbranch_scc0 K2_SLOWPARAM')
    a('    s_waitcnt lgkmcnt(0)')
    srd(a, SRD_DESC, 6, 7, NB*DESC_STRIDE, off=WS_DESC)
    a(f'    buffer_load_dword v{vCNT}, v{vA}, s[{SRD_DESC}:{SRD_DESC+3}], s{sT0} offen')
    a(f'    s_cmp_lt_u32 s{sWAVE}, 8')
    a(f'    s_cselect_b32 s{SRD_W}, s8, s78')
    a(f'    s_cselect_b32 s{SRD_W+1}, s9, s79')
    a(f'    s_mov_b32 s{SRD_W+2}, 8192')
    a(f'    s_mov_b32 s{SRD_W+3}, 0x00020000')
    srd(a, SRD_X, 4, 5, N*128)
    srd(a, SRD_WC, 76, 77, 128)
    a(f'    v_and_b32 v{vA+1}, 511, v0')
    a(f'    v_lshlrev_b32 v{vA+1}, 4, v{vA+1}')
    a(f'    buffer_load_dwordx4 v[{vW}:{vW+3}], v{vA+1}, s[{SRD_W}:{SRD_W+3}], 0 offen')
    a(f'    v_lshlrev_b32 v{vA+4}, 4, v0')
    a(f'    v_cmp_gt_u32 vcc, 384, v0')
    a(f'    v_mov_b32 v{vA+3}, {1<<30}')
    a(f'    s_lshl_b32 s{sT1}, s{sN0}, 7')
    a(f'    v_cndmask_b32 v{vA+4}, v{vA+3}, v{vA+4}, vcc')
    a(f'    buffer_load_dwordx4 v[{vXO}:{vXO+3}], v{vA+4}, s[{SRD_X}:{SRD_X+3}], s{sT1} offen')
    a(f'    v_lshrrev_b32 v{vA+7}, 1, v{vQ16}      ; q*8 (wc)')
    a(f'    buffer_load_dwordx2 v[{vWC}:{vWC+1}], v{vA+7}, s[{SRD_WC}:{SRD_WC+3}], 0 offen')
    if TPF and PFPOS == 4:
        srd(a, 36, 6, 7, T_BYTES, off=WS_T)
        a(f'    s_mul_i32 s{sJ}, s{sJ}, {640*128}')
        a(f'    s_mul_i32 s9, s{sWAVE}, {40*128}')
        a(f'    s_add_u32 s{sJ}, s{sJ}, s9')
        a(f'    s_add_u32 s9, s{sJ}, 4096')
        a(f'    v_lshlrev_b32 v{vPFA}, 7, v{vLANE}')
        pf(0)
    if PFE:
        srd(a, SRD_REC, 6, 7, T_BYTES, off=WS_T)
        a(f'    s_mul_i32 s{sT0}, s{sJ}, {640*128}')
        a(f'    s_mul_i32 s{sT1}, s{sWAVE}, {40*128}')
        a(f'    s_add_u32 s{sT0}, s{sT0}, s{sT1}')
        a(f'    s_add_u32 s{sT0}, s{sT0}, {PFN*128}')
        a(f'    v_lshlrev_b32 v{vPF+1}, 7, v{vLANE}')
        a(f'    v_cmp_gt_u32 vcc, {PFE}, v{vLANE}')
        a(f'    v_mov_b32 v{vPF+2}, {1<<30}')
        a('    s_nop 0')
        a(f'    v_cndmask_b32 v{vPF+1}, v{vPF+2}, v{vPF+1}, vcc')
        a(f'    buffer_load_dword v{vPF+1}, v{vPF+1}, s[{SRD_REC}:{SRD_REC+3}], s{sT0} offen')
    if PGT:
        srd(a, SRD_REC, 6, 7, WS_T + T_BYTES, off=0)
        a(f'    v_lshlrev_b32 v{vPF+1}, 21, v{vLANE}')
        a(f'    buffer_load_dword v{vPF+1}, v{vPF+1}, s[{SRD_REC}:{SRD_REC+3}], 0 offen')
    if not ASTAGE: a('    s_barrier')
    srd(a, SRD_OUT, 10, 11, N*128)
    srd(a, SRD_REC, 6, 7, NC*REC_STRIDE + 64, off=WS_REC)
    srd(a, SRD_T, 6, 7, 0, off=WS_T, stride=256, nrec=N+1)
    a(f'    v_lshrrev_b32 v{vA}, 2, v0             ; c')
    a(f'    v_mul_u32_u24 v{vRO}, {REC_STRIDE}, v{vA}')
    a(f'    v_and_b32 v{vI}, 3, v0')
    a(f'    v_lshlrev_b32 v{vI}, 2, v{vI}')
    a(f'    v_mad_u32_u24 v{vRO}, v{vI}, 5, v{vRO}')
    a(f'    s_mov_b32 s{sT1}, 16')
    a(f'    s_waitcnt vmcnt({3+PGT+(1 if PFE else 0)+npf(0)})                      ; descriptor')
    stamp(a, 1)
    a(f'    v_and_b32 v{vA+1}, 0xffff, v{vCNT}      ; start')
    a(f'    v_lshrrev_b32 v{vCNT}, 16, v{vCNT}      ; cnt')
    a(f'    v_mad_u32_u24 v{vRO}, v{vA+1}, 5, v{vRO}')
    a('    s_branch K2_PARAMDONE')
    a.label('K2_SLOWPARAM')
    a(f'    s_lshl_b32 s{sT0}, s{sB}, {10 if DESCT else 2}')
    a(f'    s_lshl_b32 s{sT1}, s{sPASS}, {2 if DESCT else 10}')
    a(f'    s_add_u32 s{sT0}, s{sT0}, s{sT1}')
    a(f'    v_mov_b32 v{vA}, 0')
    a(f'    buffer_load_dword v{vCNT}, v{vA}, s[{SRD_DESC}:{SRD_DESC+3}], s{sT0} offen')
    a(f'    s_mul_i32 s{sT0}, s{sPASS}, {REC_STRIDE}')
    a('    s_waitcnt vmcnt(0) lgkmcnt(0)')
    a('    s_barrier')
    a(f'    v_and_b32 v{vA+1}, 0xffff, v{vCNT}')
    a(f'    v_lshlrev_b32 v{vI}, 2, v0')
    a(f'    v_add_u32 v{vA+1}, v{vA+1}, v{vI}')
    a(f'    v_mul_u32_u24 v{vRO}, 5, v{vA+1}')
    a(f'    v_add_u32 v{vRO}, s{sT0}, v{vRO}')
    a(f'    v_lshrrev_b32 v{vCNT}, 16, v{vCNT}')
    a(f'    s_mov_b32 s{sT1}, 4096')
    a.label('K2_PARAMDONE')
    a(f'    v_sub_u32 v{vRM}, v{vCNT}, v{vI}')
    a(f'    s_mul_i32 s{sT0}, s{sT1}, 5')
    a(f'    s_mov_b32 s{sNR}, 0')
    for r in range(2):
        m0 = sM + 8*r
        if r == 1:
            a(f'    v_subrev_u32 v{vRM}, s{sT1}, v{vRM}')
        for h in range(4):
            a(f'    v_cmp_gt_i32 s[{m0+2*h}:{m0+2*h+1}], v{vRM}, {h}' if h else f'    v_cmp_lt_i32 s[{m0}:{m0+1}], 0, v{vRM}')
        a(f'    s_cmp_eq_u64 s[{m0}:{m0+1}], 0')
        a(f'    s_cbranch_scc1 K2_LD_DONE')
        a(f'    s_mov_b64 exec, s[{m0}:{m0+1}]')
        a(f'    buffer_load_dwordx4 v[{vR+4*r}:{vR+4*r+3}], v{vRO}, s[{SRD_REC}:{SRD_REC+3}], 0 offen')
        a(f'    buffer_load_dword v{vLC+r}, v{vRO}, s[{SRD_REC}:{SRD_REC+3}], 0 offen offset:16')
        a(f'    s_mov_b64 exec, -1')
        a(f'    s_mov_b32 s{sNR}, {r+1}')
        if r < 1:
            a(f'    v_add_u32 v{vRO}, s{sT0}, v{vRO}')
    a.label('K2_LD_DONE')
    a(f'    s_or_b32 s{sT0}, s{sMODE}, s{sPASS}')
    a(f'    s_cmp_eq_u32 s{sT0}, 0')
    a('    s_cbranch_scc0 K2_LATER_PASS')
    pf(1)
    if TPF and PFPOS == 3:
        a(f'    s_mul_i32 s{sT0}, s{sJ}, {640*128}')
        a(f'    s_mul_i32 s{sT1}, s{sWAVE}, {40*128}')
        a(f'    s_add_u32 s{sT0}, s{sT0}, s{sT1}')
        a(f'    s_add_u32 s{sT0}, s{sT0}, {WS_T}')
        a(f'    s_add_u32 s24, s6, s{sT0}')
        a(f'    s_addc_u32 s25, s7, 0')
        for i in range(PFN):
            a(f'    s_load_dword s26, s[24:25], {128*i}')
    if TPF and PFPOS == 2:
        W0 = 16 - PFW
        per = PFL // PFW
        a(f'    s_cmp_ge_u32 s{sWAVE}, {W0}')
        a('    s_cbranch_scc0 K2_NOPF2')
        srd(a, SRD_PF, 6, 7, T_BYTES, off=WS_T)
        a(f'    s_mul_i32 s{sT0}, s{sJ}, {640*128}')
        a(f'    s_sub_u32 s{sT1}, s{sWAVE}, {W0}')
        a(f'    s_mul_i32 s{sT1}, s{sT1}, {per*128}')
        a(f'    s_add_u32 s{sT0}, s{sT0}, s{sT1}')
        a(f'    v_lshlrev_b32 v{vPFA}, 7, v{vLANE}')
        nin = (per + 63)//64
        for i in range(nin):
            left = per - 64*i
            if left < 64:
                a(f'    v_cmp_gt_u32 vcc, {left}, v{vLANE}')
                a(f'    v_mov_b32 v{vPF+1}, {1<<30}')
                a('    s_nop 0')
                a(f'    v_cndmask_b32 v{vPFA}, v{vPF+1}, v{vPFA}, vcc')
            a(f'    buffer_load_dword v{vPF}, v{vPFA}, s[{SRD_PF}:{SRD_PF+3}], s{sT0} offen')
            if i + 1 < nin: a(f'    s_add_u32 s{sT0}, s{sT0}, 8192')
        a.label('K2_NOPF2')
    a(f'    v_lshrrev_b32 v{vA+8}, 3, v0')
    a(f'    v_mul_u32_u24 v{vA+8}, {XS}, v{vA+8}')
    a(f'    v_and_b32 v{vA+7}, 7, v0')
    a(f'    v_lshl_add_u32 v{vA+8}, v{vA+7}, 4, v{vA+8}')
    a(f'    v_add_u32 v{vA+8}, {L2_XT}, v{vA+8}')
    NPF = 1 if TPF else 0
    a(f'    v_bfe_u32 v{vA+1}, v0, 4, 1')
    a(f'    v_bfe_u32 v{vA+2}, v0, 6, 1')
    a(f'    v_lshlrev_b32 v{vA+1}, 1, v{vA+1}')
    a(f'    v_lshl_or_b32 v{vA+1}, v{vA+2}, 2, v{vA+1}')
    a(f'    v_and_b32 v{vA+2}, 7, v0')
    a(f'    v_xor_b32 v{vA+1}, v{vA+1}, v{vA+2}')
    a(f'    v_lshrrev_b32 v{vA+2}, 3, v0')
    a(f'    v_lshlrev_b32 v{vA+2}, 7, v{vA+2}')
    a(f'    v_lshl_add_u32 v{vA+9}, v{vA+1}, 4, v{vA+2}')
    a(f'    v_add_u32 v{vA+9}, {L2_W}, v{vA+9}')
    a(f'    v_lshrrev_b32 v{vA+3}, 4, v{vLANE}     ; g')
    a(f'    v_bfe_u32 v{vA}, v{vLANE}, 2, 2        ; r')
    a(f'    v_lshl_add_u32 v{vA+1}, v{vA+3}, 3, v{vA}')
    a(f'    v_lshlrev_b32 v{vA+1}, 7, v{vA+1}')
    a(f'    v_and_b32 v{vA+2}, 1, v{vLANE}')
    a(f'    v_lshl_add_u32 v{vA+1}, v{vA+2}, 3, v{vA+1}')
    a(f'    v_lshrrev_b32 v{vA}, 1, v{vA}')
    a(f'    v_and_b32 v{vA+2}, 1, v{vA+3}')
    a(f'    v_lshl_or_b32 v{vA}, v{vA+2}, 1, v{vA}     ; swz/2')
    a(f'    s_and_b32 s{sT0}, s{sWAVE}, 3')
    a(f'    v_xor_b32 v{vA}, s{sT0}, v{vA}')
    a(f'    v_bfe_u32 v{vA+2}, v{vLANE}, 1, 1')
    a(f'    v_lshl_or_b32 v{vA}, v{vA}, 1, v{vA+2}')
    a(f'    v_lshl_add_u32 v{vTRA}, v{vA}, 4, v{vA+1}')
    a(f'    v_add_u32 v{vTRA}, {L2_W}, v{vTRA}')
    a(f'    s_lshr_b32 s{sT1}, s{sWAVE}, 2')
    a(f'    s_lshl_b32 s{sT1}, s{sT1}, 4')
    a(f'    v_and_b32 v{vA+2}, 15, v{vLANE}')
    a(f'    v_add_u32 v{vROW}, s{sT1}, v{vA+2}     ; row')
    a(f'    v_mul_u32_u24 v{vA+1}, {XS}, v{vROW}')
    a(f'    v_lshl_add_u32 v{vA+1}, v{vA+3}, 4, v{vA+1}')
    a(f'    v_add_u32 v{vXRA}, {L2_XT}, v{vA+1}')
    a(f'    v_mul_u32_u24 v{vA+4}, {TS}, v{vROW}')
    a(f'    v_lshl_add_u32 v{vA+4}, v{vA+3}, 4, v{vA+4}')
    a(f'    s_lshl_b32 s{sT0}, s{sT0}, 6')
    a(f'    s_add_u32 s{sT0}, s{sT0}, {L2_EAT}')
    a(f'    v_add_u32 v{vEAA}, s{sT0}, v{vA+4}')
    if TPF and PFPOS < 2:
        srd(a, SRD_PF, 6, 7, T_BYTES, off=WS_T)
        a(f'    s_mul_i32 s{sT0}, s{sJ}, {640*128}')
        a(f'    s_mul_i32 s{sT1}, s{sWAVE}, {40*128}')
        a(f'    s_add_u32 s{sJ}, s{sT0}, s{sT1}')
        a(f'    v_lshlrev_b32 v{vA+3}, 7, v{vLANE}')
        a(f'    v_cmp_gt_u32 vcc, {PFN}, v{vLANE}')
        a(f'    v_mov_b32 v{vA+4}, {1<<30}')
        a('    s_nop 0')
        a(f'    v_cndmask_b32 v{vPFA}, v{vA+4}, v{vA+3}, vcc')
    if ASTAGE:
        a(f'    s_cmp_eq_u32 s{sNR}, 2')
        a('    s_cbranch_scc1 K2_WW4')
        a(f'    s_cmp_eq_u32 s{sNR}, 1')
        a('    s_cbranch_scc1 K2_WW2')
        a(f'    s_waitcnt vmcnt({npf(1)})')
        a('    s_branch K2_WWD')
        a.label('K2_WW4')
        a(f'    s_waitcnt vmcnt({4+npf(1)})')
        a('    s_branch K2_WWD')
        a.label('K2_WW2')
        a(f'    s_waitcnt vmcnt({2+npf(1)})')
        a.label('K2_WWD')
        a(f'    ds_write_b128 v{vA+9}, v[{vW}:{vW+3}]')
        a(f'    s_cmp_lt_u32 s{sWAVE}, 6')
        a('    s_cbranch_scc0 K2_NOXST0')
        a(f'    ds_write_b128 v{vA+8}, v[{vXO}:{vXO+3}]')
        a.label('K2_NOXST0')
        a('    s_waitcnt lgkmcnt(0)')
        a('    s_barrier')
        pf(2)
        a(f'    s_cmp_lt_u32 s{sWAVE}, 12')
        a('    s_cbranch_scc0 K2_NOMFMA0')
        a(f'    ds_read_b128 v[{vXO}:{vXO+3}], v{vXRA}')
        a(f'    ds_read_b64_tr_b16 v[{vOP3}:{vOP3+1}], v{vTRA}')
        a(f'    ds_read_b64_tr_b16 v[{vOP3+2}:{vOP3+3}], v{vTRA} offset:{0+512}')
        a(f'    ds_read_b128 v[{vXO+4}:{vXO+7}], v{vXRA} offset:64')
        a(f'    ds_read_b64_tr_b16 v[{vOP3+4}:{vOP3+5}], v{vTRA} offset:{0+4096}')
        a(f'    ds_read_b64_tr_b16 v[{vOP3+6}:{vOP3+7}], v{vTRA} offset:{0+4096+512}')
        a(f'    s_mov_b32 s{sT0}, {hex(f2u(-LOG2E))}')
        a(f'    s_mov_b32 s{sT1}, {hex(f2u(60.0))}')
        a('    s_waitcnt lgkmcnt(3)')
        a(f'    v_mfma_f32_16x16x32_bf16 v[{vAC3}:{vAC3+3}], v[{vOP3}:{vOP3+3}], v[{vXO}:{vXO+3}], 0')
        a('    s_waitcnt lgkmcnt(0)')
        a(f'    v_mfma_f32_16x16x32_bf16 v[{vAC3}:{vAC3+3}], v[{vOP3+4}:{vOP3+7}], v[{vXO+4}:{vXO+7}], v[{vAC3}:{vAC3+3}]')
        a('    s_nop 7')
        for i in range(4):
            a(f'    v_mul_f32 v{vAC3+i}, s{sT0}, v{vAC3+i}')
        for i in range(4):
            a(f'    v_exp_f32 v{vOP3+i}, v{vAC3+i}')
        a(f'    v_max3_f32 v{vA+5}, |v{vAC3}|, |v{vAC3+1}|, |v{vAC3+2}|')
        a(f'    v_max_f32 v{vA+5}, v{vA+5}, |v{vAC3+3}|')
        a(f'    ds_write_b128 v{vEAA}, v[{vOP3}:{vOP3+3}]')
        a(f'    v_cmp_nle_f32 vcc, v{vA+5}, s{sT1}')
        a(f'    v_cmp_gt_u32 s[{sEX}:{sEX+1}], s{sNN}, v{vROW}')
        a(f'    s_and_b64 vcc, vcc, s[{sEX}:{sEX+1}]')
        a(f'    s_and_saveexec_b64 s[{sEX}:{sEX+1}], vcc')
        a('    s_cbranch_execz K2_GUARD_OK0')
        a(f'    v_mov_b32 v{vA+5}, 1')
        a(f'    v_mov_b32 v{vA+7}, 0')
        a(f'    ds_write_b32 v{vA+7}, v{vA+5} offset:{L2_FLG+4}')
        unmask(a, sEX, 'K2_GUARD_OK0')
        a.label('K2_NOMFMA0')
        pf(3)
        if TPF and PFPOS == 4:
            a(f'    v_mov_b32 v{vA+2}, 1')
            a(f'    s_waitcnt vmcnt({npf(1,2,3)})')
            pf(4)
            a('    s_branch K2_RANKS')
    if TPF and PFPOS == 2:
        a(f'    v_mov_b32 v{vA+2}, 1')
        a(f'    s_cmp_ge_u32 s{sWAVE}, {16 - PFW}')
        a('    s_cbranch_scc0 K2_LATER_PASS')
        a(f'    s_waitcnt vmcnt({(PFL // PFW + 63)//64})')
        a('    s_branch K2_RANKS')
    a.label('K2_LATER_PASS')
    a(f'    v_mov_b32 v{vA+2}, 1')
    a('    s_waitcnt vmcnt(0)')
    if TPF and PFPOS == 1:
        a(f'    s_or_b32 s{sT0}, s{sMODE}, s{sPASS}')
        a(f'    s_cmp_eq_u32 s{sT0}, 0')
        a('    s_cbranch_scc0 K2_RANKS')
        a(f'    buffer_load_dword v{vPF}, v{vPFA}, s[{SRD_PF}:{SRD_PF+3}], s{sJ} offen')
    a.label('K2_RANKS')
    stamp(a, 2)
    for r in range(2):
        a(f'    s_cmp_le_u32 s{sNR}, {r}')
        a('    s_cbranch_scc1 K2_RK_DONE')
        d = vR + 4*r
        a(f'    v_and_b32 v{vLA+4*r}, 0xff, v{d+1}')
        a(f'    v_bfe_u32 v{vLA+4*r+1}, v{d+2}, 8, 8')
        a(f'    v_bfe_u32 v{vLA+4*r+2}, v{d+3}, 16, 8')
        a(f'    v_lshrrev_b32 v{vLA+4*r+3}, 24, v{vLC+r}')
        for h in range(4):
            k = 4*r + h
            a(f'    s_mov_b64 exec, s[{sM+2*k}:{sM+2*k+1}]')
            a(f'    ds_add_rtn_u32 v{vRK+k}, v{vLA+k}, v{vA+2} offset:{L2_CNT}')
        a('    s_mov_b64 exec, -1')
        a(f'    v_alignbyte_b32 v{d+1}, v{d+2}, v{d+1}, 1')
        a(f'    v_alignbyte_b32 v{d+2}, v{d+3}, v{d+2}, 2')
        a(f'    v_alignbyte_b32 v{d+3}, v{vLC+r}, v{d+3}, 3')
    a.label('K2_RK_DONE')
    masked(a, f'v_cmp_lt_u32 vcc, 32, v{vCNT}', sEX, 'K2_NOOVF')
    a(f'    v_mov_b32 v{vA+3}, 0')
    a(f'    ds_write_b32 v{vA+3}, v{vA+2} offset:{L2_FLG}')
    unmask(a, sEX, 'K2_NOOVF')
    a(f'    s_or_b32 s{sT0}, s{sMODE}, s{sPASS}')
    a(f'    s_cmp_eq_u32 s{sT0}, 0')
    a('    s_cbranch_scc0 K2_NOWST')
    pf(5)
    if not ASTAGE:
        a(f'    ds_write_b128 v{vA+9}, v[{vW}:{vW+3}]')
        a(f'    s_cmp_lt_u32 s{sWAVE}, 6')
        a('    s_cbranch_scc0 K2_NOXST')
        a(f'    ds_write_b128 v{vA+8}, v[{vXO}:{vXO+3}]')
        a.label('K2_NOXST')
    a(f'    s_mov_b32 s{sT0}, {hex(f2u(-LOG2E))}')
    a(f'    v_and_b32 v{vWC+3}, 0xffff0000, v{vWC+1}')
    a(f'    v_lshlrev_b32 v{vWC+2}, 16, v{vWC+1}')
    a(f'    v_and_b32 v{vWC+1}, 0xffff0000, v{vWC}')
    a(f'    v_lshlrev_b32 v{vWC}, 16, v{vWC}')
    for k in range(4):
        a(f'    v_mul_f32 v{vWC+k}, s{sT0}, v{vWC+k}')
    a.label('K2_NOWST')
    a(f'    v_lshlrev_b32 v{vA+1}, 2, v{vLANE}')
    a(f'    v_mov_b32 v{vA}, 0')
    a('    s_waitcnt lgkmcnt(0)')
    stamp(a, 3)
    a('    s_barrier')
    stamp(a, 4)
    if TPF and PFPOS == 0:
        a(f'    s_or_b32 s{sT0}, s{sMODE}, s{sPASS}')
        a(f'    s_cmp_eq_u32 s{sT0}, 0')
        a('    s_cbranch_scc0 K2_NOPF')
        a(f'    buffer_load_dword v{vPF}, v{vPFA}, s[{SRD_PF}:{SRD_PF+3}], s{sJ} offen')
        a.label('K2_NOPF')
    a(f'    ds_read_b32 v{vNG}, v{vA+1} offset:{L2_CNT}')
    a(f'    ds_read_b32 v{vA+4}, v{vA} offset:{L2_FLG}')
    a('    s_waitcnt lgkmcnt(1)')
    a(f'    v_add_u32 v{vNG}, 3, v{vNG}')
    a(f'    v_lshrrev_b32 v{vNG}, 2, v{vNG}')
    a(f'    v_mov_b32 v{vGE}, v{vNG}')
    dpp_scan(a, vGE)
    a('    s_waitcnt lgkmcnt(0)')
    a(f'    v_readlane_b32 s{sGT}, v{vGE}, {NPB-1}')
    a(f'    v_sub_u32 v{vGS}, v{vGE}, v{vNG}')
    a(f'    v_readfirstlane_b32 s{sT0}, v{vA+4}')
    a(f'    v_lshlrev_b32 v{vA+6}, 4, v{vGS}')
    a(f'    v_cmp_lt_u32 vcc, {NPB}, v{vLANE}')
    a(f'    s_add_u32 s{sR}, s{sGT}, 15')
    a(f'    s_lshr_b32 s{sR}, s{sR}, 4')
    a(f'    v_cndmask_b32 v{vGS}, v{vGS}, -1, vcc')
    a(f'    s_cmp_eq_u32 s{sMODE}, 0')
    a('    s_cbranch_scc0 K2_NOSWITCH')
    a(f'    s_cmp_gt_u32 s{sGT}, {(CAP - 64)//4}')
    a(f'    s_cselect_b32 s{sT1}, 1, 0')
    a(f'    s_or_b32 s{sT0}, s{sT0}, s{sT1}')
    a(f'    s_cmp_eq_u32 s{sT0}, 0')
    a('    s_cbranch_scc1 K2_NOSWITCH')
    a(f'    s_mov_b32 s{sNR}, 0')
    a(f'    s_mov_b32 s{sGT}, 0')
    a(f'    s_mov_b32 s{sR}, 0')
    a(f'    s_mov_b32 s{sMODE}, 2')
    a.label('K2_NOSWITCH')
    for r in range(2):
        a(f'    s_cmp_le_u32 s{sNR}, {r}')
        a('    s_cbranch_scc1 K2_LK_DONE')
        for h in range(4):
            k = 4*r + h
            a(f'    ds_bpermute_b32 v{vB+k}, v{vLA+k}, v{vA+6}')
    a.label('K2_LK_DONE')
    a('    s_waitcnt lgkmcnt(0)')
    for r in range(2):
        a(f'    s_cmp_le_u32 s{sNR}, {r}')
        a('    s_cbranch_scc1 K2_SC_DONE')
        for h in range(4):
            k = 4*r + h
            a(f'    s_mov_b64 exec, s[{sM+2*k}:{sM+2*k+1}]')
            a(f'    v_lshl_add_u32 v{vB+k}, v{vRK+k}, 2, v{vB+k}')
            a(f'    ds_write_b32 v{vB+k}, v{vR+k} offset:{L2_LIST}')
    a.label('K2_SC_DONE')
    a('    s_mov_b64 exec, -1')
    a(f'    s_mul_i32 s{sG0}, s{sR}, s{sWAVE}')
    a(f'    s_add_u32 s{sG1}, s{sG0}, s{sR}')
    a(f'    s_min_u32 s{sG1}, s{sG1}, s{sGT}')
    a(f'    v_lshrrev_b32 v{vSA}, 4, v{vLANE}')
    a(f'    v_lshlrev_b32 v{vSA}, 2, v{vSA}         ; slot*4')
    a(f'    s_lshl_b32 s{sT0}, s{sG0}, 4')
    a(f'    v_add_u32 v{vSA}, s{sT0}, v{vSA}')
    a(f'    v_mov_b32 v{vA}, 0')
    a('    s_waitcnt lgkmcnt(0)')
    a('    s_barrier')
    if PRIO: a('    s_setprio 3')
    stamp(a, 5)

    def tload(k):
        d = vDAT + 4*k
        a(f'    buffer_load_dwordx4 v[{d}:{d+3}], v[{vP+2*k}:{vP+2*k+1}], s[{SRD_T}:{SRD_T+3}], 0 idxen offen')

    a(f'    s_cmp_ge_u32 s{sG0}, s{sG1}')
    a('    s_cbranch_scc1 K2_NOGATH')
    for k in range(U):
        a(f'    ds_read_u16 v{vP+2*k}, v{vSA} offset:{L2_LIST + 16*k}')
    a(f'    ds_read_u16_d16_hi v{vEV}, v{vSA} offset:{L2_LIST + 2}')
    a('    s_waitcnt lgkmcnt(0)')
    for k in range(G0N):
        tload(k)
    a(f'    ds_read_u16 v{vP}, v{vSA} offset:{L2_LIST + 16*U}')
    a.label('K2_NOGATH')
    a(f'    s_cmp_eq_u32 s{sPASS}, 0')
    a('    s_cbranch_scc0 K2_NOTAB')
    a(f'    s_cmp_eq_u32 s{sMODE}, 1')
    a('    s_cbranch_scc1 K2_NOTAB')
    if not ASTAGE:
        a(f'    s_cmp_lt_u32 s{sWAVE}, 12')
        a('    s_cbranch_scc0 K2_NOMFMA')
        a(f'    ds_read_b128 v[{vXO}:{vXO+3}], v{vXRA}')
        a(f'    ds_read_b64_tr_b16 v[{vOP2}:{vOP2+1}], v{vTRA}')
        a(f'    ds_read_b64_tr_b16 v[{vOP2+2}:{vOP2+3}], v{vTRA} offset:{0+512}')
        a(f'    ds_read_b128 v[{vXO+4}:{vXO+7}], v{vXRA} offset:64')
        a(f'    ds_read_b64_tr_b16 v[{vOP2+4}:{vOP2+5}], v{vTRA} offset:{0+4096}')
        a(f'    ds_read_b64_tr_b16 v[{vOP2+6}:{vOP2+7}], v{vTRA} offset:{0+4096+512}')
        a(f'    s_mov_b32 s{sT0}, {hex(f2u(-LOG2E))}')
        a(f'    s_mov_b32 s{sT1}, {hex(f2u(60.0))}')
        a('    s_waitcnt lgkmcnt(3)')
        a(f'    v_mfma_f32_16x16x32_bf16 v[{vAC2}:{vAC2+3}], v[{vOP2}:{vOP2+3}], v[{vXO}:{vXO+3}], 0')
        a('    s_waitcnt lgkmcnt(0)')
        a(f'    v_mfma_f32_16x16x32_bf16 v[{vAC2}:{vAC2+3}], v[{vOP2+4}:{vOP2+7}], v[{vXO+4}:{vXO+7}], v[{vAC2}:{vAC2+3}]')
        a('    s_nop 7')
        for i in range(4):
            a(f'    v_mul_f32 v{vAC2+i}, s{sT0}, v{vAC2+i}')
        for i in range(4):
            a(f'    v_exp_f32 v{vOP2+i}, v{vAC2+i}')
        a(f'    v_max3_f32 v{vA+5}, |v{vAC2}|, |v{vAC2+1}|, |v{vAC2+2}|')
        a(f'    v_max_f32 v{vA+5}, v{vA+5}, |v{vAC2+3}|')
        a(f'    ds_write_b128 v{vEAA}, v[{vOP2}:{vOP2+3}]')
        a(f'    v_cmp_nle_f32 vcc, v{vA+5}, s{sT1}')
        a(f'    v_cmp_gt_u32 s[{sEX}:{sEX+1}], s{sNN}, v{vROW}')
        a(f'    s_and_b64 vcc, vcc, s[{sEX}:{sEX+1}]')
        a(f'    s_and_saveexec_b64 s[{sEX}:{sEX+1}], vcc')
        a('    s_cbranch_execz K2_GUARD_OK')
        a(f'    v_mov_b32 v{vA+5}, 1')
        a(f'    v_mov_b32 v{vA+7}, 0')
        a(f'    ds_write_b32 v{vA+7}, v{vA+5} offset:{L2_FLG+4}')
        unmask(a, sEX, 'K2_GUARD_OK')
    a.label('K2_NOMFMA')
    if not ASTAGE:
        a(f'    v_mov_b32 v{vA}, 0')
        a('    s_waitcnt lgkmcnt(0)')
        a('    s_barrier')
        a(f'    ds_read_b32 v{vA+5}, v{vA} offset:{L2_FLG+4}')
    else:
        a(f'    v_mov_b32 v{vA}, 0')
        a(f'    ds_read_b32 v{vA+5}, v{vA} offset:{L2_FLG+4}')
    a(f'    s_cmp_ge_u32 s{sG0}, s{sG1}')
    a('    s_cbranch_scc1 K2_NOGATH2')
    for k in range(G0N, U):
        tload(k)
    a.label('K2_NOGATH2')
    a(f'    s_cmp_lt_u32 s{sWAVE}, 12')
    a('    s_cbranch_scc0 K2_NOU')
    a(f'    ds_read_b64_tr_b16 v[{vOP2}:{vOP2+1}], v{vTRA} offset:{0+8192}')
    a(f'    ds_read_b64_tr_b16 v[{vOP2+2}:{vOP2+3}], v{vTRA} offset:{0+8192+512}')
    a(f'    ds_read_b64_tr_b16 v[{vOP2+4}:{vOP2+5}], v{vTRA} offset:{0+8192+4096}')
    a(f'    ds_read_b64_tr_b16 v[{vOP2+6}:{vOP2+7}], v{vTRA} offset:{0+8192+4096+512}')
    a('    s_waitcnt lgkmcnt(2)')
    a(f'    v_mfma_f32_16x16x32_bf16 v[{vU}:{vU+3}], v[{vOP2}:{vOP2+3}], v[{vXO}:{vXO+3}], 0')
    a('    s_waitcnt lgkmcnt(0)')
    a(f'    v_mfma_f32_16x16x32_bf16 v[{vU}:{vU+3}], v[{vOP2+4}:{vOP2+7}], v[{vXO+4}:{vXO+7}], v[{vU}:{vU+3}]')
    a(f'    v_mov_b32 v{vUA}, v{vEAA}')
    a.label('K2_NOU')
    a('    s_waitcnt lgkmcnt(0)')
    a(f'    v_readfirstlane_b32 s{sSAFE}, v{vA+5}')
    a('    s_nop 0')
    a(f'    s_cmp_eq_u32 s{sSAFE}, 0')
    a('    s_cbranch_scc1 K2_WAITW')
    a('    s_barrier')
    a(f'    s_cmp_lt_u32 s{sWAVE}, 12')
    a('    s_cbranch_scc0 K2_SAFE_NOW')
    a(f'    ds_write_b128 v{vEAA}, v[{(vAK if ASTAGE else vAC2)}:{(vAK if ASTAGE else vAC2)+3}]')
    a.label('K2_SAFE_NOW')
    a('    s_waitcnt lgkmcnt(0)')
    a('    s_barrier')
    a.label('K2_WAITW')
    a('    s_branch K2_TABDONE')
    a.label('K2_NOTAB')
    a(f'    s_cmp_ge_u32 s{sG0}, s{sG1}')
    a('    s_cbranch_scc1 K2_TABDONE')
    for k in range(G0N, U):
        tload(k)
    a.label('K2_TABDONE')
    dstamp(a, 1)
    a(f'    v_cvt_f32_u32 v{vA}, s{sR}')
    a(f'    v_cvt_f32_u32 v{vA+1}, v{vGS}')
    a(f'    v_rcp_f32 v{vA}, v{vA}')
    a(f'    v_cvt_f32_u32 v{vA+2}, v{vGE}')
    a(f'    v_add_f32 v{vA+1}, 0.5, v{vA+1}')
    a(f'    v_add_f32 v{vA+2}, -0.5, v{vA+2}')
    a(f'    v_mul_f32 v{vA+1}, v{vA+1}, v{vA}')
    a(f'    v_mul_f32 v{vA+2}, v{vA+2}, v{vA}')
    a(f'    v_cvt_u32_f32 v{vA+1}, v{vA+1}          ; wlo')
    a(f'    v_cvt_u32_f32 v{vA+2}, v{vA+2}          ; whi')
    a(f'    v_sub_u32 v{vA+2}, v{vA+2}, v{vA+1}')
    a(f'    v_add_u32 v{vA+2}, 1, v{vA+2}')
    a(f'    v_cmp_eq_u32 vcc, 0, v{vNG}')
    a(f'    v_add_u32 v{vA+1}, v{vA+1}, v{vLANE}')
    a(f'    v_and_b32 v{vA+1}, 0xffff, v{vA+1}')
    a(f'    v_cndmask_b32 v{vA+2}, v{vA+2}, 0, vcc')
    a(f'    v_lshl_or_b32 v{vA+3}, v{vA+2}, 16, v{vA+1}')
    a(f'    v_lshrrev_b32 v{vA}, 4, v0')
    a(f'    v_and_b32 v{vA+4}, 63, v{vA}')
    a(f'    v_lshlrev_b32 v{vA+4}, 2, v{vA+4}')
    a(f'    ds_bpermute_b32 v{vA+1}, v{vA+4}, v{vA+3}')
    a(f'    v_mul_u32_u24 v{vUTA}, {TS}, v{vA}')
    a(f'    v_mul_u32_u24 v{vXTA}, {XS}, v{vA}')
    a(f'    v_lshrrev_b32 v{vA+7}, 1, v{vQ16}')
    a(f'    v_add_u32 v{vUTA}, v{vUTA}, v{vQ16}')
    a(f'    v_add_u32 v{vXTA}, v{vXTA}, v{vA+7}')
    a(f'    v_add_u32 v{vUTA}, {L2_UT}, v{vUTA}')
    a(f'    v_add_u32 v{vXTA}, {L2_XT}, v{vXTA}')
    a(f'    s_lshl_b32 s{sNT}, s{sNN}, 4')
    a(f'    v_cmp_gt_u32 vcc, s{sNT}, v0')
    a('    s_waitcnt lgkmcnt(0)')
    a(f'    v_lshrrev_b32 v{vFC}, 16, v{vA+1}')
    a(f'    v_and_b32 v{vA+1}, 0xffff, v{vA+1}')
    a(f'    v_cndmask_b32 v{vFC}, 0, v{vFC}, vcc')
    a(f'    v_lshl_add_u32 v{vFS}, v{vA+1}, 9, v{vQ16}')
    a(f'    v_cmp_lt_u32 s[{sM}:{sM+1}], 0, v{vFC}')
    a(f'    v_cmp_lt_u32 s[{sM+2}:{sM+3}], 1, v{vFC}')
    a(f'    v_cmp_lt_u32 s[{sM+4}:{sM+5}], 2, v{vFC}')
    a(f'    s_cmp_ge_u32 s{sG0}, s{sG1}')
    a('    s_cbranch_scc1 K2_MAIN_DONE')
    if PRIO:
        a(f'    s_add_u32 s{sT0}, s{sR}, 3')
        a(f'    s_lshr_b32 s{sT0}, s{sT0}, 2            ; iterations')
        for n, reg in zip(PRT, (sPR, sPQ, sPQ2)):
            a(f'    s_mul_i32 s{reg}, s{sT0}, {n}')
            a(f'    s_lshr_b32 s{reg}, s{reg}, 4')
            a(f'    s_add_u32 s{reg}, s{reg}, 1')
        a(f'    s_mov_b32 s{sLVL}, 3')
        a('    s_setprio 3')
    a(f'    s_mov_b32 s{sGEND}, s{sG0}')
    a(f'    s_mov_b32 s{sEAB}, {L2_EAT}')
    a(f'    s_cmp_eq_u32 s{sSAFE}, 0')
    a('    s_cbranch_scc0 K2S_ENTER')
    a('    s_branch K2F_ENTER')

    def next_node():
        a(f'    v_cmp_ge_u32 vcc, s{sGEND}, v{vGS}')
        a(f'    s_bcnt1_i32_b64 s{sT0}, vcc')
        a(f'    s_sub_u32 s{sNODE}, s{sT0}, 1')
        a(f'    v_readlane_b32 s{sT1}, v{vGS}, s{sT0}')
        a(f'    s_mul_i32 s{sT0}, s{sNODE}, {TS}')
        a(f'    s_add_u32 s{sT0}, s{sT0}, s{sEAB}')
        a(f'    v_add_u32 v{vEAA}, s{sT0}, v{vQ16}')
        a(f'    ds_read_b128 v[{vEA}:{vEA+3}], v{vEAA}')
        a(f'    s_min_u32 s{sT1}, s{sT1}, s{sG1}')
        a(f'    s_sub_u32 s{sLEFT}, s{sT1}, s{sGEND}')
        a(f'    s_sub_u32 s{sLEFT}, s{sLEFT}, 1')
        a(f'    s_mov_b32 s{sGEND}, s{sT1}')

    def set_slot():
        a(f'    s_add_u32 s{sSLOT}, s{sNODE}, s{sWAVE}')
        a(f'    s_lshl_b32 s{sSLOT}, s{sSLOT}, 9')

    def flush():
        a(f'    v_add_u32 v{vACC}, s{sSLOT}, v{vFL}')
        for i in range(4):
            a(f'    v_permlane32_swap_b32 v{vDEN+i}, v{vNUM+i}')
        a(f'    v_pk_add_f32 v[{vDEN}:{vDEN+1}], v[{vDEN}:{vDEN+1}], v[{vNUM}:{vNUM+1}]')
        a(f'    v_pk_add_f32 v[{vDEN+2}:{vDEN+3}], v[{vDEN+2}:{vDEN+3}], v[{vNUM+2}:{vNUM+3}]')
        a('    s_nop 1')
        a(f'    v_permlane16_swap_b32 v{vDEN}, v{vDEN+2}')
        a(f'    v_permlane16_swap_b32 v{vDEN+1}, v{vDEN+3}')
        a(f'    v_pk_add_f32 v[{vNUM}:{vNUM+1}], v[{vDEN}:{vDEN+1}], v[{vDEN+2}:{vDEN+3}]')
        a(f'    ds_write_b64 v{vACC}, v[{vNUM}:{vNUM+1}] offset:{L2_SLOT}')

    def step(k, safe, init):
        d = vDAT + 4*k
        ev = vEV + (k & 1); evn = vEV + ((k+1) & 1)
        pn = vP + 2*((k+1) % U)
        for i in range(4):
            a(f'    v_fma_mix_f32 v{vT+i}, v{ev}, v{vWC+i}, v{d+i} op_sel:[0,0,0] op_sel_hi:[0,0,1]')
        a(f'    ds_read_u16_d16_hi v{evn}, v{vSA} offset:{L2_LIST + 16*(k+1) + 2}')
        a(f'    ds_read_u16 v{pn}, v{vSA} offset:{L2_LIST + 16*(k+1+U)}')
        if init and safe:
            a('    s_waitcnt lgkmcnt(3)')
        if safe:
            a(f'    v_pk_add_f32 v[{vT}:{vT+1}], v[{vT}:{vT+1}], v[{vEA}:{vEA+1}]')
            a(f'    v_pk_add_f32 v[{vT+2}:{vT+3}], v[{vT+2}:{vT+3}], v[{vEA+2}:{vEA+3}]')
        for i in range(4):
            a(f'    v_exp_f32 v{vT+i}, v{vT+i}')
        if init and not safe:
            a('    s_waitcnt lgkmcnt(3)')
        if safe:
            a(f'    v_pk_add_f32 v[{vT}:{vT+1}], v[{vT}:{vT+1}], 1.0 op_sel_hi:[1,0]')
            a(f'    v_pk_add_f32 v[{vT+2}:{vT+3}], v[{vT+2}:{vT+3}], 1.0 op_sel_hi:[1,0]')
        else:
            a(f'    v_pk_fma_f32 v[{vT}:{vT+1}], v[{vEA}:{vEA+1}], v[{vT}:{vT+1}], 1.0 op_sel_hi:[1,1,0]')
            a(f'    v_pk_fma_f32 v[{vT+2}:{vT+3}], v[{vEA+2}:{vEA+3}], v[{vT+2}:{vT+3}], 1.0 op_sel_hi:[1,1,0]')
        if init:
            for i in range(4):
                a(f'    v_rcp_f32 v{vDEN+i}, v{vT+i}')
            a('    s_nop 0')
            a(f'    v_pk_mul_f32 v[{vNUM}:{vNUM+1}], v[{vDEN}:{vDEN+1}], v[{d}:{d+1}]')
            a(f'    v_pk_mul_f32 v[{vNUM+2}:{vNUM+3}], v[{vDEN+2}:{vDEN+3}], v[{d+2}:{d+3}]')
        else:
            for i in range(4):
                a(f'    v_rcp_f32 v{vT+i}, v{vT+i}')
            a(f'    v_pk_add_f32 v[{vDEN}:{vDEN+1}], v[{vDEN}:{vDEN+1}], v[{vT}:{vT+1}]')
            a(f'    v_pk_add_f32 v[{vDEN+2}:{vDEN+3}], v[{vDEN+2}:{vDEN+3}], v[{vT+2}:{vT+3}]')
            a(f'    v_pk_fma_f32 v[{vNUM}:{vNUM+1}], v[{vT}:{vT+1}], v[{d}:{d+1}], v[{vNUM}:{vNUM+1}]')
            a(f'    v_pk_fma_f32 v[{vNUM+2}:{vNUM+3}], v[{vT+2}:{vT+3}], v[{d+2}:{d+3}], v[{vNUM+2}:{vNUM+3}]')
        tload(k)
        if k == U-1:
            a(f'    v_add_u32 v{vSA}, {16*U}, v{vSA}')

    def loopback(pfx):
        if PRIO:
            a(f'    s_sub_u32 s{sPR}, s{sPR}, 1')
            a(f'    s_cmp_lg_u32 s{sPR}, 0')
            a(f'    s_cbranch_scc1 {pfx}_STEP0')
            a(f'    s_branch {pfx}_PRIO')
        else:
            a(f'    s_branch {pfx}_STEP0')

    for pfx, safe in (('K2F', False), ('K2S', True)):
        a.label(f'{pfx}_ENTER')
        next_node()
        set_slot()
        a('    s_waitcnt vmcnt(3) lgkmcnt(0)')
        dstamp(a, 2)
        step(0, safe, True)
        a(f'    s_branch {pfx}_STEP1')
        for k in range(U):
            a.label(f'{pfx}_STEP{k}')
            a(f'    s_waitcnt vmcnt({U-1}) lgkmcnt(0)')
            a(f'    s_sub_u32 s{sLEFT}, s{sLEFT}, 1')
            a(f'    s_cbranch_scc1 {pfx}_FLUSH{k}')
            step(k, safe, False)
            if k == U-1:
                loopback(pfx)
        for k in range(U):
            a.label(f'{pfx}_FLUSH{k}')
            a(f'    s_cmp_ge_u32 s{sGEND}, s{sG1}')
            a(f'    s_cbranch_scc1 K2_LAST')
            next_node()
            flush()
            set_slot()
            step(k, safe, True)
            if k == U-1:
                loopback(pfx)
            else:
                a(f'    s_branch {pfx}_STEP{k+1}')
        if PRIO:
            a.label(f'{pfx}_PRIO')
            a(f'    s_sub_u32 s{sLVL}, s{sLVL}, 1')
            a(f'    s_cmp_eq_u32 s{sLVL}, 2')
            a(f'    s_cbranch_scc1 {pfx}_PRIO2')
            a(f'    s_cmp_eq_u32 s{sLVL}, 1')
            a(f'    s_cbranch_scc1 {pfx}_PRIO1')
            a(f'    s_mov_b32 s{sPR}, 0x7fffffff')
            a('    s_setprio 0')
            a(f'    s_branch {pfx}_STEP0')
            a.label(f'{pfx}_PRIO2')
            a(f'    s_mov_b32 s{sPR}, s{sPQ}')
            a('    s_setprio 2')
            a(f'    s_branch {pfx}_STEP0')
            a.label(f'{pfx}_PRIO1')
            a(f'    s_mov_b32 s{sPR}, s{sPQ2}')
            a('    s_setprio 1')
            a(f'    s_branch {pfx}_STEP0')
    a.label('K2_LAST')
    dstamp(a, 3)
    flush()
    a.label('K2_MAIN_DONE')
    if PRIO: a('    s_setprio 0')
    a(f'    s_cmp_eq_u32 s{sPASS}, 0')
    a('    s_cbranch_scc0 K2_NOUST')
    a(f'    s_cmp_eq_u32 s{sMODE}, 1')
    a('    s_cbranch_scc1 K2_NOUST')
    a(f'    s_cmp_lt_u32 s{sWAVE}, 12')
    a('    s_cbranch_scc0 K2_NOUST')
    a(f'    ds_write_b128 v{vUA}, v[{vU}:{vU+3}] offset:{L2_UT-L2_EAT}')
    a.label('K2_NOUST')
    a(f'    s_cmp_eq_u32 s{sMODE}, 2')
    a('    s_cbranch_scc0 K2_NOABORT')
    a(f'    s_mov_b32 s{sMODE}, 1')
    a(f'    s_mov_b32 s{sPASS}, 0')
    a('    s_waitcnt vmcnt(0) lgkmcnt(0)')
    a('    s_barrier')
    a('    s_branch K2_PASS')
    a.label('K2_NOABORT')
    a('    s_waitcnt lgkmcnt(0)')
    stamp(a, 6)
    a('    s_barrier')
    S0 = 76; S1 = 84; UU = 92; XX = 104
    a(f'    s_mov_b64 exec, s[{sM}:{sM+1}]')
    a(f'    ds_read_b128 v[{S0}:{S0+3}], v{vFS} offset:{L2_SLOT}')
    a(f'    ds_read_b128 v[{S0+4}:{S0+7}], v{vFS} offset:{L2_SLOT+256}')
    a(f'    s_mov_b64 exec, s[{sM+2}:{sM+3}]')
    a(f'    ds_read_b128 v[{S1}:{S1+3}], v{vFS} offset:{L2_SLOT+512}')
    a(f'    ds_read_b128 v[{S1+4}:{S1+7}], v{vFS} offset:{L2_SLOT+512+256}')
    a('    s_mov_b64 exec, -1')
    a(f'    ds_read_b128 v[{UU}:{UU+3}], v{vUTA}')
    a(f'    ds_read_b64 v[{XX}:{XX+1}], v{vXTA}')
    a(f'    s_mov_b64 exec, s[{sM}:{sM+1}]')
    a('    s_waitcnt lgkmcnt(4)')
    for b, acc in ((S0, vDA), (S0+2, vDA+2), (S0+4, vNA), (S0+6, vNA+2)):
        a(f'    v_pk_add_f32 v[{acc}:{acc+1}], v[{acc}:{acc+1}], v[{b}:{b+1}]')
    a(f'    s_mov_b64 exec, s[{sM+2}:{sM+3}]')
    a('    s_waitcnt lgkmcnt(2)')
    for b, acc in ((S1, vDA), (S1+2, vDA+2), (S1+4, vNA), (S1+6, vNA+2)):
        a(f'    v_pk_add_f32 v[{acc}:{acc+1}], v[{acc}:{acc+1}], v[{b}:{b+1}]')
    a('    s_mov_b64 exec, -1')
    a(f'    s_cmp_eq_u64 s[{sM+4}:{sM+5}], 0')
    a('    s_cbranch_scc1 K2_FOLD_END')
    a(f'    v_add_u32 v{vFS}, 1024, v{vFS}')
    a(f'    v_add_u32 v{vFC}, -2, v{vFC}')
    a.label('K2_FOLD')
    masked(a, f'v_cmp_lt_i32 vcc, 0, v{vFC}', sEX, 'K2_FOLD_DONE')
    a(f'    ds_read_b128 v[{S0}:{S0+3}], v{vFS} offset:{L2_SLOT}')
    a(f'    ds_read_b128 v[{S0+4}:{S0+7}], v{vFS} offset:{L2_SLOT+256}')
    a(f'    v_add_u32 v{vFS}, 512, v{vFS}')
    a(f'    v_add_u32 v{vFC}, -1, v{vFC}')
    a('    s_waitcnt lgkmcnt(0)')
    for b, acc in ((S0, vDA), (S0+2, vDA+2), (S0+4, vNA), (S0+6, vNA+2)):
        a(f'    v_pk_add_f32 v[{acc}:{acc+1}], v[{acc}:{acc+1}], v[{b}:{b+1}]')
    unmask(a, sEX)
    a('    s_branch K2_FOLD')
    unmask(a, sEX, 'K2_FOLD_DONE')
    a.label('K2_FOLD_END')
    a(f'    s_cmp_eq_u32 s{sMODE}, 0')
    a('    s_cbranch_scc1 K2_EPI')
    a(f'    s_add_u32 s{sPASS}, s{sPASS}, 1')
    a(f'    s_cmp_lt_u32 s{sPASS}, {NC}')
    a('    s_cbranch_scc0 K2_EPI')
    a('    s_waitcnt vmcnt(0) lgkmcnt(0)')
    a('    s_barrier                               ; slots consumed before the next pass')
    a('    s_branch K2_PASS')
    a.label('K2_EPI')
    masked(a, f'v_cmp_gt_u32 vcc, s{sNT}, v0', sEX, 'K2_FIN')
    a(f'    s_mov_b32 s{sT0}, {hex(f2u(1e-6))}')
    for i in range(4):
        a(f'    v_add_f32 v{vDA+i}, s{sT0}, v{vDA+i}')
    for i in range(4):
        a(f'    v_rcp_f32 v{vDA+i}, v{vDA+i}')
    a('    s_waitcnt lgkmcnt(0)')
    a(f'    v_lshlrev_b32 v{vT}, 16, v{XX}')
    a(f'    v_and_b32 v{vT+1}, 0xffff0000, v{XX}')
    a(f'    v_lshlrev_b32 v{vT+2}, 16, v{XX+1}')
    a(f'    v_and_b32 v{vT+3}, 0xffff0000, v{XX+1}')
    for i in range(4):
        a(f'    v_fma_f32 v{vNA+i}, v{vNA+i}, v{vDA+i}, v{UU+i}    ; z = U + agg')
    for i in range(4):
        a(f'    v_cmp_lt_f32 s[{sM+2*i}:{sM+2*i+1}], 0, v{vNA+i}')
    for i in range(4):
        a(f'    v_mul_f32 v{vDEN+i}, 0, v{vNA+i}                     ; 0*z')
    for i in range(4):
        a(f'    v_cndmask_b32 v{vNA+i}, v{vDEN+i}, v{vNA+i}, s[{sM+2*i}:{sM+2*i+1}]')
    for i in range(4):
        a(f'    v_add_f32 v{vNA+i}, v{vNA+i}, v{vT+i}')
    a(f'    s_lshl_b32 s{sT1}, s{sN0}, 7')
    a(f'    v_lshlrev_b32 v{vA+1}, 3, v0')
    a(f'    v_cvt_pk_bf16_f32 v{vDEN}, v{vNA}, v{vNA+1}')
    a(f'    v_cvt_pk_bf16_f32 v{vDEN+1}, v{vNA+2}, v{vNA+3}')
    a(f'    buffer_store_dwordx2 v[{vDEN}:{vDEN+1}], v{vA+1}, s[{SRD_OUT}:{SRD_OUT+3}], s{sT1} offen {OUTST}')
    a.label('K2_FIN')
    if STAMP:
        a('    s_mov_b64 exec, -1')
        a('    s_waitcnt vmcnt(0)')
    stamp(a, 7); stamp(a, 1, True)
    stamp_flush(a, sWAVE, sB, 1, 6)
    a.label('K2_END')
    a('    s_endpgm')
    a.label('CODE_END')

def gen_k3(a):
    i, j = [int(x) for x in env('INTERVAL', '0,0').split(',')]
    inv = {0: True, 2: True}
    a('.globl k3_kernel')
    a('.p2align 8')
    a('.type k3_kernel,@function')
    a.label('k3_kernel')
    a('    s_cmp_ge_u32 s2, 1')
    a('    s_cbranch_scc1 K3_END')
    a('    s_load_dwordx2 s[4:5], s[0:1], 80')
    a('    s_waitcnt lgkmcnt(0)')
    a('    v_mov_b32 v1, 0')
    a(f'    global_load_dword v2, v1, s[4:5] offset:{4*i} sc1')
    a(f'    global_load_dword v3, v1, s[4:5] offset:{4*j} sc1')
    a('    s_waitcnt vmcnt(0)')
    if inv.get(i): a('    v_not_b32 v2, v2')
    if inv.get(j): a('    v_not_b32 v3, v3')
    a('    v_sub_u32 v3, v3, v2')
    a('    s_nop 1')
    a('    v_readfirstlane_b32 s8, v3')
    a('    s_nop 3')
    a('    s_mul_i32 s8, s8, 10')
    a('    s_min_u32 s8, s8, 50000')
    a('    s_memrealtime s[10:11]')
    a('    s_waitcnt lgkmcnt(0)')
    a.label('K3_SPIN')
    a('    s_memrealtime s[12:13]')
    a('    s_waitcnt lgkmcnt(0)')
    a('    s_sub_u32 s9, s12, s10')
    a('    s_cmp_lt_u32 s9, s8')
    a('    s_cbranch_scc1 K3_SPIN')
    a.label('K3_END')
    a('    s_endpgm')

def kd(a, name, vgpr, sgpr):
    a(f'.amdhsa_kernel {name}')
    a(f'  .amdhsa_next_free_vgpr {vgpr}')
    a(f'  .amdhsa_next_free_sgpr {sgpr}')
    a(f'  .amdhsa_accum_offset {((vgpr+3)//4)*4}')
    a('  .amdhsa_group_segment_fixed_size 0')
    a('  .amdhsa_kernarg_size 96')
    a('  .amdhsa_user_sgpr_count 2')
    a('  .amdhsa_user_sgpr_kernarg_segment_ptr 1')
    a('  .amdhsa_system_sgpr_workgroup_id_x 1')
    a('  .amdhsa_float_denorm_mode_32 3')
    a('.end_amdhsa_kernel')

def main(out):
    a = Asm()
    a(f'; @launch kernel=k1_kernel grid=({K1_GRID},1,1) block=(1024,1,1) lds={K1_LDS}')
    a(f'; @launch kernel=k2_kernel grid=({NB},1,1) block=(1024,1,1) lds={K2_LDS}')
    if STAMP == 4: a('; @launch kernel=k3_kernel grid=(1,1,1) block=(64,1,1) lds=0')
    a('.amdgcn_target "amdgcn-amd-amdhsa--gfx950"')
    a('.text')
    a('.globl k1_kernel')
    gen_k1(a)
    a('.globl k2_kernel')
    gen_k2(a)
    if STAMP == 4: gen_k3(a)
    a('.section .rodata,"a"')
    a('.p2align 6')
    kd(a, 'k1_kernel', 96, 102 if STAMP else 72)
    a('.p2align 6')
    kd(a, 'k2_kernel', 128, 102 if STAMP else 80)
    if STAMP == 4:
        a('.p2align 6')
        kd(a, 'k3_kernel', 8, 32)
    a.l = [x for x in a.l if x is not None]
    open(out, 'w').write(a.text())

if __name__ == '__main__':
    main(sys.argv[1] if len(sys.argv) > 1 else 'standalone__edge_featured_mpnn_gatedgcn__graph.s')
```

```python
import sys, os, struct
def env(n, d): return os.environ.get(n, d)

N = 10000; E = 640000
NPB = 40; NB = 256; EPC = 2500; NC = 256
TPC = EPC//4
BMAGIC = 109951163
LOG2E = 1.4426950408889634
WS_REC  = 0
REC_STRIDE = EPC*5
WS_DESC = 3407872
DESC_STRIDE = 1024
WS_T    = 4194304
T_BYTES = (N+1)*256

STAMP = int(env('STAMP', '0'))
K1ST = env('K1ST', 'sc1')
PRIO = int(env('PRIO', '1'))
TFIRST = int(env('TFIRST', '1'))
XLATE = int(env('XLATE', '1'))
ELD = env('ELD', '')
RLD = env('RLD', '')
CPF2 = int(env('CPF2', '1'))
DESCE = int(env('DESCE', '1'))
WS_STAMP = 128 << 20
ST0 = 80

def f2u(f): return struct.unpack('<I', struct.pack('<f', f))[0]

class Asm:
    def __init__(self): self.l = []
    def __call__(self, s=''):
        for line in s.split('\n'): self.l.append(line)
    def label(self, n): self.l.append(n + ':')
    def text(self): return '\n'.join(self.l) + '\n'

DETAIL = int(env('DETAIL', '0'))
def dstamp(a, i):
    if DETAIL: stamp(a, i, False, True)
def stamp(a, i, real=False, force=False):
    if DETAIL and not force and not real and getattr(a, 'k2', False) and i in (1, 2, 3): return
    if STAMP:
        r = ST0 + 2*(8+i if real else i)
        a(f"    {'s_memrealtime' if (real or STAMP >= 3) else 's_memtime'} s[{r}:{r+1}]")
def stamp_flush(a, wave_sgpr, wg_sgpr, kern, ws_lo):
    if not STAMP: return
    a('    s_waitcnt lgkmcnt(0)')
    a('    s_mov_b64 exec, 1')
    a('    v_mov_b32 v2, 0')
    if STAMP == 4:
        lab = f'STSKIP{kern}_{len(a.l)}'
        a(f"    s_and_b32 s14, s{wg_sgpr}, {31 if kern == 0 else int(env('SAMP2', '31'))}")
        a('    s_cmp_eq_u32 s14, 0')
        a(f'    s_cbranch_scc0 {lab}')
        a(f'    s_cmp_eq_u32 s{wave_sgpr}, 0')
        a(f'    s_cbranch_scc0 {lab}')
        a('    s_load_dwordx2 s[12:13], s[0:1], 80')
        a('    s_waitcnt lgkmcnt(0)')
        a(f'    s_add_u32 s12, s12, {1024 if kern == 0 else 512}')
        a('    s_addc_u32 s13, s13, 0')
        slots = [(0, 8, True), (1, 9, False), (7, 4, False), (8, 2, False)] if kern == 0 else \
                [(2, 8, True), (3, 4, False), (4, 5, False), (5, 6, False), (6, 9, False), (9, 2, False)]
        for slot, st, inv in slots:
            a(f'    v_mov_b32 v3, s{ST0+2*st}')
            if inv: a('    v_not_b32 v3, v3')
            a(f'    global_atomic_umax v2, v3, s[12:13] offset:{4*slot}')
        a('    s_waitcnt vmcnt(0)')
        a.label(lab)
        return
    a(f'    s_add_u32 s12, s{ws_lo}, {WS_STAMP + kern*(4<<20)}')
    a(f'    s_addc_u32 s13, s{ws_lo+1}, 0')
    a(f'    s_mov_b32 s14, {4<<20}')
    a('    s_mov_b32 s15, 0x00020000')
    a(f'    s_lshl_b32 s16, s{wg_sgpr}, 4')
    a(f'    s_add_u32 s16, s16, s{wave_sgpr}')
    a(f'    s_lshl_b32 s16, s16, 6')
    for i in range(8):
        a(f'    v_mov_b32 v3, s{ST0+2*i}')
        a(f'    buffer_store_dword v3, v2, s[12:15], s16 offen offset:{4*i}')
    for i in range(2):
        a(f'    v_mov_b32 v3, s{ST0+2*(8+i)}')
        a(f'    buffer_store_dword v3, v2, s[12:15], s16 offen offset:{4*(10+i)}')
    a('    s_waitcnt vmcnt(0)')

def srd(a, sreg, lo, hi, nbytes, off=0, stride=0, nrec=None):
    if off:
        a(f'    s_add_u32 s{sreg}, s{lo}, {off}')
        a(f'    s_addc_u32 s{sreg+1}, s{hi}, 0')
    else:
        a(f'    s_mov_b32 s{sreg}, s{lo}')
        a(f'    s_mov_b32 s{sreg+1}, s{hi}')
    if stride:
        a(f'    s_and_b32 s{sreg+1}, s{sreg+1}, 0xffff')
        a(f'    s_or_b32 s{sreg+1}, s{sreg+1}, {stride << 16}')
        a(f'    s_mov_b32 s{sreg+2}, {nrec}')
    else:
        a(f'    s_mov_b32 s{sreg+2}, {nbytes}')
    a(f'    s_mov_b32 s{sreg+3}, 0x00020000')

def dpp_scan(a, v):
    for sh in (1, 2, 4, 8):
        a('    s_nop 1')
        a(f'    v_add_u32_dpp v{v}, v{v}, v{v} row_shr:{sh} row_mask:0xf bank_mask:0xf')
    a('    s_nop 1')
    a(f'    v_add_u32_dpp v{v}, v{v}, v{v} row_bcast:15 row_mask:0xa bank_mask:0xf')
    a('    s_nop 1')
    a(f'    v_add_u32_dpp v{v}, v{v}, v{v} row_bcast:31 row_mask:0xc bank_mask:0xf')

def masked(a, cond, exreg, skip=None):
    a(f'    {cond}')
    a(f'    s_and_saveexec_b64 s[{exreg}:{exreg+1}], vcc')
    if skip: a(f'    s_cbranch_execz {skip}')
def unmask(a, exreg, skip=None):
    if skip: a.label(skip)
    a(f'    s_mov_b64 exec, s[{exreg}:{exreg+1}]')

def lds_sync(a, name, off, n, vzero, vone, vt, st):
    a('    s_waitcnt lgkmcnt(0)')
    a('    s_mov_b64 exec, 1')
    a(f'    ds_add_u32 v{vzero}, v{vone} offset:{off}')
    a('    s_mov_b64 exec, -1')
    a.label(name)
    a(f'    ds_read_b32 v{vt}, v{vzero} offset:{off}')
    a('    s_waitcnt lgkmcnt(0)')
    a(f'    v_readfirstlane_b32 s{st}, v{vt}')
    a(f'    s_cmp_lt_u32 s{st}, {n}')
    a(f'    s_cbranch_scc1 {name}')

K1_GRID = NC
L1_HIST = 0; L1_START = 1024; L1_SYNC = 2048
L1_ST32 = 2304; L1_ST8 = L1_ST32 + 2560*4; L1_W = 15360
K1_LDS = L1_W + 16384
K1PF = int(env('K1PF', '0'))
CPF = int(env('CPF', '1'))
XMAP = int(env('XMAP', '1'))
DESCT = int(env('DESCT', '1'))
DESCST = env('DESCST', '')
OUTST = env('OUTST', '')
RECST = env('RECST', K1ST)
TST = env('TST', K1ST)
TFIRST = int(env('TFIRST', '1'))
XLATE = int(env('XLATE', '1'))
ELD = env('ELD', '')
RLD = env('RLD', '')
CPF2 = int(env('CPF2', '1'))
DESCE = int(env('DESCE', '1'))

def gen_k1(a):
    a('.p2align 8')
    a('.type k1_kernel,@function')
    a.label('k1_kernel')
    a(f'    s_cmp_ge_u32 s2, {K1_GRID}')
    a('    s_cbranch_scc1 K1_END')
    stamp(a, 0); stamp(a, 0, True)
    if CPF:
        a('    s_getpc_b64 s[30:31]')
        a.label('K1_PC')
        a('    v_lshlrev_b32 v90, 7, v0')
        lim = 'CODE_END-K1_PC' if CPF >= 2 else 'k2_kernel-K1_PC'
        a(f'    v_cmp_gt_u32 vcc, {lim}, v90')
        a('    s_and_saveexec_b64 s[28:29], vcc')
        a('    s_cbranch_execz K1_NOCPF')
        a('    global_load_dword v91, v90, s[30:31]')
        a.label('K1_NOCPF')
        a('    s_mov_b64 exec, s[28:29]')
    if XMAP:
        a('    s_and_b32 s20, s2, 7')
        a('    s_lshr_b32 s21, s2, 3')
        a('    s_lshl_b32 s20, s20, 5')
        a('    s_add_u32 s2, s20, s21')
    a('    v_lshrrev_b32 v1, 6, v0')
    a('    s_load_dwordx4 s[8:11], s[0:1], 16')
    a('    v_readfirstlane_b32 s20, v1')
    a('    s_load_dwordx2 s[4:5], s[0:1], 8      ; e_attr')
    a('    s_load_dwordx2 s[6:7], s[0:1], 88     ; ws')
    a('    v_and_b32 v2, 63, v0                   ; lane')
    if TFIRST:
        a('    s_cmp_lt_u32 s20, 6')
        a('    s_cbranch_scc1 K1_TABLE')
        a('    v_subrev_u32 v0, 384, v0')
        a('    s_sub_u32 s20, s20, 6')
    else:
        a('    s_cmp_ge_u32 s20, 10')
        a('    s_cbranch_scc1 K1_TABLE')
    a('    v_mov_b32 v5, 0')
    a('    v_lshlrev_b32 v6, 2, v0               ; t*4')
    masked(a, 'v_cmp_gt_u32 vcc, 256, v0', 30)
    a(f'    ds_write_b32 v6, v5 offset:{L1_HIST}')
    unmask(a, 30)
    a('    v_lshlrev_b32 v3, 4, v0               ; t*16')
    a('    v_lshlrev_b32 v4, 3, v0               ; t*8')
    a(f'    s_mul_i32 s21, s2, {EPC*4}')
    a(f'    s_mul_i32 s22, s2, {EPC*2}')
    a(f'    s_mov_b32 s23, {BMAGIC}')
    a(f'    v_mov_b32 v19, {TPC}')
    a('    v_cmp_gt_u32 s[46:47], v19, v0')
    a('    s_waitcnt lgkmcnt(0)')
    srd(a, 12, 10, 11, E*4)
    a('    buffer_load_dwordx4 v[8:11], v3, s[12:15], s21 offen ' + ELD)
    srd(a, 16, 8, 9, E*4)
    a('    buffer_load_dwordx4 v[12:15], v3, s[16:19], s21 offen ' + ELD)
    srd(a, 24, 4, 5, E*2)
    a('    buffer_load_dwordx2 v[16:17], v4, s[24:27], s22 offen ' + ELD)
    srd(a, 32, 6, 7, NC*REC_STRIDE, off=WS_REC)
    srd(a, 36, 6, 7, NB*DESC_STRIDE, off=WS_DESC)
    a('    v_lshlrev_b32 v6, 4, v2                ; lane*16')
    a('    v_mul_u32_u24 v7, 20, v0')
    a('    v_lshlrev_b32 v18, 12, v2')
    a(f'    s_mul_i32 s25, s2, {REC_STRIDE}')
    a('    s_lshl_b32 s26, s2, 2')
    a('    s_mov_b32 s40, 0x06050400')
    a('    s_mov_b32 s41, 0x05040003')
    a('    s_mov_b32 s42, 0x03020500')
    a('    s_mov_b32 s43, 0x04000302')
    a('    s_mov_b32 s44, 0x03060100')
    a('    s_mov_b32 s45, 0x07030201')
    stamp(a, 1)
    a('    s_barrier')
    a('    v_mov_b32 v5, 1')
    a('    v_mov_b32 v19, 0')
    a('    s_waitcnt vmcnt(2)')
    stamp(a, 2)
    for k in range(4):
        a(f'    v_mul_hi_u32 v{20+k}, s23, v{8+k}        ; bucket')
    for k in range(4):
        a(f'    v_lshlrev_b32 v{24+k}, 2, v{20+k}       ; bucket*4')
    a('    s_mov_b64 exec, s[46:47]')
    for k in range(4):
        a(f'    ds_add_rtn_u32 v{28+k}, v{24+k}, v5 offset:{L1_HIST}')
    a('    s_mov_b64 exec, -1')
    a('    s_movk_i32 s27, 625')
    for k in range(4):
        a(f'    v_mad_u32_u24 v{20+k}, v{20+k}, s27, 15')
    for k in range(4):
        a(f'    v_lshrrev_b32 v{20+k}, 4, v{20+k}')
    for k in range(4):
        a(f'    v_sub_u32 v{20+k}, v{8+k}, v{20+k}')
    for k in range(4):
        a(f'    v_lshlrev_b32 v{20+k}, 2, v{20+k}')
    a('    s_waitcnt vmcnt(0)')
    a('    v_lshl_or_b32 v32, v16, 16, v12')
    a('    s_mov_b32 s24, 0xffff0000')
    a('    v_and_or_b32 v33, v16, s24, v13')
    a('    v_lshl_or_b32 v34, v17, 16, v14')
    a('    v_and_or_b32 v35, v17, s24, v15')
    a('    s_waitcnt lgkmcnt(0)')
    stamp(a, 3)
    lds_sync(a, 'K1_SYNC2', L1_SYNC+4, 10, 19, 5, 25+40, 27)
    stamp(a, 4)
    a(f'    ds_read_b128 v[40:43], v6 offset:{L1_HIST}')
    a('    s_waitcnt lgkmcnt(0)')
    a('    v_add_u32 v44, v40, v41                ; h0+h1')
    a('    v_add_u32 v45, v44, v42')
    a('    v_add_u32 v46, v45, v43                ; sum4')
    a('    v_mov_b32 v47, v46')
    dpp_scan(a, 47)
    a('    v_sub_u32 v48, v47, v46')
    a('    v_add_u32 v49, v48, v40')
    a('    v_add_u32 v50, v48, v44')
    a('    v_add_u32 v51, v48, v45')
    a(f'    ds_write_b128 v6, v[48:51] offset:{L1_START}')
    a('    s_waitcnt lgkmcnt(0)')
    for k in range(4):
        a(f'    ds_read_b32 v{56+k}, v{24+k} offset:{L1_START}')
    for k in range(4):
        a(f'    v_lshl_or_b32 v{52+k}, v{40+k}, 16, v{48+k}')
    if DESCT and DESCE:
        for k in range(4):
            a(f'    s_cmp_eq_u32 s20, {k}')
            a(f'    s_cbranch_scc0 K1_DE{k}')
            a(f'    buffer_store_dword v{52+k}, v18, s[36:39], s26 offen offset:{1024*k} {DESCST}')
            a.label(f'K1_DE{k}')
    a('    s_waitcnt lgkmcnt(0)')
    for k in range(4):
        a(f'    v_add_u32 v{56+k}, v{56+k}, v{28+k}      ; position')
    a('    s_mov_b64 exec, s[46:47]')
    for k in range(4):
        a(f'    ds_write_b8 v{56+k}, v{20+k} offset:{L1_ST8}')
        a(f'    v_lshlrev_b32 v{60+k}, 2, v{56+k}')
    for k in range(4):
        a(f'    ds_write_b32 v{60+k}, v{32+k} offset:{L1_ST32}')
    a('    s_mov_b64 exec, -1')
    a('    s_waitcnt lgkmcnt(0)')
    stamp(a, 5)
    lds_sync(a, 'K1_SYNC3', L1_SYNC+8, 10, 19, 5, 25+40, 27)
    a(f'    ds_read_b128 v[8:11], v3 offset:{L1_ST32}')
    a('    v_lshrrev_b32 v4, 2, v3                ; t*4')
    a(f'    ds_read_b32 v12, v4 offset:{L1_ST8}')
    a('    s_waitcnt lgkmcnt(0)')
    a('    v_perm_b32 v21, v9, v12, s40           ; d1 = L0 r1.b0 r1.b1 r1.b2')
    a('    v_perm_b32 v22, v10, v9, s41           ; r1.b3 . r2.b0 r2.b1')
    a('    v_perm_b32 v23, v11, v10, s43          ; r2.b2 r2.b3 . r3.b0')
    a('    v_mov_b32 v20, v8')
    a('    v_perm_b32 v22, v12, v22, s42          ; d2 : insert L1')
    a('    v_perm_b32 v23, v12, v23, s44          ; d3 : insert L2')
    a('    v_perm_b32 v24, v12, v11, s45          ; d4 = r3.b1 r3.b2 r3.b3 L3')
    a('    s_mov_b64 exec, s[46:47]')
    a(f'    buffer_store_dwordx4 v[20:23], v7, s[32:35], s25 offen {RECST}')
    a(f'    buffer_store_dword v24, v7, s[32:35], s25 offen offset:16 {RECST}')
    a('    s_mov_b64 exec, -1')
    a('    s_cmp_eq_u32 s20, 0')
    a('    s_cbranch_scc0 K1_SFIN')
    if DESCT and DESCE:
        pass
    elif DESCT:
        for k in range(4):
            a(f'    buffer_store_dword v{52+k}, v18, s[36:39], s26 offen offset:{1024*k} {DESCST}')
    else:
        a('    s_lshl_b32 s26, s2, 10')
        a(f'    buffer_store_dwordx4 v[52:55], v6, s[36:39], s26 offen {DESCST}')
    a.label('K1_SFIN')
    if STAMP:
        stamp(a, 6)
        a('    s_waitcnt vmcnt(0)')
        stamp(a, 7); stamp(a, 1, True)
        stamp_flush(a, 20, 2, 0, 6)
    a('    s_endpgm')
    a.label('K1_TABLE')
    a('    s_load_dwordx2 s[40:41], s[0:1], 40   ; w_b')
    a('    s_load_dwordx2 s[42:43], s[0:1], 64   ; w_v')
    a('    s_load_dwordx2 s[44:45], s[0:1], 0    ; x')
    if K1PF:
        a('    s_load_dwordx2 s[60:61], s[0:1], 32   ; w_a')
        a('    s_load_dwordx4 s[64:67], s[0:1], 48   ; w_c, w_u')
        a('    s_load_dwordx2 s[62:63], s[0:1], 72   ; out')
    a('    s_mov_b32 s21, s20                     ; tw' if TFIRST else '    s_sub_u32 s21, s20, 10                 ; tw')
    a('    v_mov_b32 v5, 0')
    a('    v_lshlrev_b32 v6, 2, v2')
    a('    s_cmp_eq_u32 s21, 0')
    a('    s_cbranch_scc0 K1_T_NOZ')
    masked(a, 'v_cmp_gt_u32 vcc, 4, v2', 30)
    a(f'    ds_write_b32 v6, v5 offset:{L1_SYNC}')
    unmask(a, 30)
    a.label('K1_T_NOZ')
    a('    s_lshr_b32 s22, s21, 1')
    a('    s_lshl_b32 s22, s22, 4                 ; 16*rt')
    a('    v_and_b32 v4, 15, v2')
    a('    v_add_u32 v4, s22, v4')
    a('    v_lshrrev_b32 v5, 4, v2                ; g')
    a('    v_lshlrev_b32 v6, 7, v4')
    a('    v_lshl_add_u32 v6, v5, 4, v6')
    a('    s_mul_i32 s58, s2, 625')
    a('    s_add_u32 s59, s58, 640                ; 625*(c+1) + 15')
    a('    s_add_u32 s58, s58, 15')
    a('    s_lshr_b32 s58, s58, 4')
    a('    s_lshr_b32 s59, s59, 4')
    a('    s_sub_u32 s59, s59, s58')
    a('    s_lshl_b32 s24, s58, 7')
    a('    v_lshlrev_b32 v7, 4, v2                ; lane*16')
    a('    v_bfe_u32 v8, v2, 4, 1')
    a('    v_lshlrev_b32 v8, 1, v8')
    a('    v_and_b32 v9, 7, v2')
    a('    v_xor_b32 v8, v8, v9')
    a('    v_lshrrev_b32 v9, 3, v2')
    a('    v_lshlrev_b32 v9, 7, v9                ; (lane>>3)*128')
    a('    s_waitcnt lgkmcnt(0)')
    for i in range(3):
        a(f'    s_add_u32 s26, s21, {6*i}              ; p')
        a('    s_cmp_lt_u32 s26, 8')
        a('    s_cselect_b32 s48, s40, s42')
        a('    s_cselect_b32 s49, s41, s43')
        a('    s_mov_b32 s50, 8192')
        a('    s_mov_b32 s51, 0x00020000')
        a('    s_and_b32 s27, s26, 7')
        a('    s_lshl_b32 s27, s27, 10')
        a('    s_cmp_lt_u32 s26, 16')
        a(f'    s_cselect_b32 s27, s27, {1<<20}')
        a(f'    buffer_load_dwordx4 v[{48+4*i}:{51+4*i}], v7, s[48:51], s27 offen')
    if XLATE: a('    s_barrier')
    srd(a, 36, 44, 45, N*128)
    a('    buffer_load_dwordx4 v[24:27], v6, s[36:39], s24 offen')
    a('    buffer_load_dwordx4 v[28:31], v6, s[36:39], s24 offen offset:64')
    if K1PF:
        a('    s_cmp_eq_u32 s21, 5')
        a('    s_cbranch_scc0 K1_T_NOPF')
        a('    v_lshlrev_b32 v60, 8, v2')
        a('    v_lshlrev_b32 v61, 7, v2')
        a('    global_load_dword v62, v61, s[60:61]')
        a('    global_load_dword v62, v61, s[66:67]')
        a('    v_mov_b32 v63, 0')
        a('    global_load_dword v62, v63, s[64:65]')
        a('    s_lshl_b32 s26, s58, 7')
        a('    v_mov_b32 v63, s26')
        a('    global_load_dword v62, v63, s[62:63]')
        srd(a, 52, 6, 7, WS_T + T_BYTES, off=0)
        a(f'    s_mul_i32 s26, s2, {REC_STRIDE}')
        a('    v_mov_b32 v63, s26')
        a('    buffer_load_dword v62, v63, s[52:55], 0 offen')
        a('    s_lshl_b32 s26, s58, 8')
        a(f'    s_add_u32 s26, s26, {WS_T}')
        a('    v_mov_b32 v63, s26')
        a('    buffer_load_dword v62, v63, s[52:55], 0 offen')
        a(f'    s_lshl_b32 s26, s2, 2')
        a(f'    s_add_u32 s26, s26, {WS_DESC}')
        a('    v_mov_b32 v63, s26')
        a('    buffer_load_dword v62, v63, s[52:55], 0 offen')
        a.label('K1_T_NOPF')
    if not XLATE: a('    s_barrier')
    if K1PF: a.label('K1_T_PFJOIN0')
    srd(a, 44, 6, 7, T_BYTES, off=WS_T)
    for i in range(3):
        a(f'    s_add_u32 s26, s21, {6*i}              ; p')
        a('    s_and_b32 s27, s26, 1')
        a('    s_lshl_b32 s27, s27, 2')
        a(f'    v_xor_b32 v{18+i}, s27, v8')
        a(f'    v_lshl_add_u32 v{18+i}, v{18+i}, 4, v9')
        a('    s_lshl_b32 s27, s26, 10                ; m*8192 + (p&7)*1024 = p*1024')
        a(f'    v_add_u32 v{18+i}, s27, v{18+i}')
    a('    s_and_b32 s23, s21, 1                  ; half')
    a('    v_bfe_u32 v12, v2, 2, 2                ; r')
    a('    v_lshl_add_u32 v13, v5, 3, v12         ; rho')
    a('    v_lshlrev_b32 v13, 7, v13')
    a('    v_and_b32 v14, 1, v2')
    a('    v_lshl_add_u32 v13, v14, 3, v13        ; + (c&1)*8')
    a('    v_bfe_u32 v14, v2, 1, 1                ; c>>1')
    a('    v_lshrrev_b32 v12, 1, v12')
    a('    v_and_b32 v15, 1, v5                   ; g&1')
    a('    v_lshlrev_b32 v15, 1, v15')
    a('    v_or_b32 v12, v12, v15                 ; swz/2')
    a('    s_lshl_b32 s25, s23, 1')
    a('    v_xor_b32 v15, s25, v12')
    a('    v_lshl_or_b32 v15, v15, 1, v14')
    a('    v_lshl_add_u32 v16, v15, 4, v13')
    a('    s_add_u32 s25, s25, 1')
    a('    v_xor_b32 v15, s25, v12')
    a('    v_lshl_or_b32 v15, v15, 1, v14')
    a('    v_lshl_add_u32 v17, v15, 4, v13')
    a('    v_lshlrev_b32 v21, 8, v4')
    a('    v_lshl_add_u32 v21, v5, 4, v21')
    a('    s_lshl_b32 s25, s23, 7')
    a('    s_lshl_b32 s26, s58, 8')
    a('    s_add_u32 s25, s25, s26')
    a('    v_add_u32 v21, s25, v21')
    a('    v_cmp_gt_u32 vcc, s59, v4')
    a(f'    v_mov_b32 v22, {1<<30}')
    a(f'    s_mov_b32 s27, {hex(f2u(-LOG2E))}')
    a('    s_mov_b32 s28, 0xffff0000')
    a('    v_cndmask_b32 v9, v22, v21, vcc')
    a('    s_mov_b32 s29, 0x80000000')
    a('    v_mov_b32 v10, 0')
    a('    v_mov_b32 v11, 1')
    if K1PF:
        a('    s_cmp_eq_u32 s21, 5')
        a('    s_cbranch_scc0 K1_T_W2')
        a('    s_waitcnt vmcnt(9)')
        a('    s_branch K1_T_W9')
        a.label('K1_T_W2')
    a('    s_waitcnt vmcnt(2)')
    if K1PF: a.label('K1_T_W9')
    stamp(a, 1)
    for i in range(3):
        if i == 2:
            a('    s_cmp_lt_u32 s21, 4')
            a('    s_cbranch_scc0 K1_T_ST2')
        a(f'    ds_write_b128 v{18+i}, v[{48+4*i}:{51+4*i}] offset:{L1_W}')
    a.label('K1_T_ST2')
    lds_sync(a, 'K1_T_SPIN', L1_SYNC, 6, 10, 11, 12, 26)
    stamp(a, 3)
    order = [(jj, ks, m) for jj in range(2) for ks in range(2) for m in range(2)]
    for i, (jj, ks, m) in enumerate(order):
        b = 64 + 4*i
        off = L1_W + m*8192 + ks*32*128
        a(f'    ds_read_b64_tr_b16 v[{b}:{b+1}], v{16+jj} offset:{off}')
        a(f'    ds_read_b64_tr_b16 v[{b+2}:{b+3}], v{16+jj} offset:{off+512}')
    if K1PF:
        a('    s_cmp_eq_u32 s21, 5')
        a('    s_cbranch_scc0 K1_T_X0')
        a('    s_waitcnt vmcnt(7)')
        a('    s_branch K1_T_XOK')
        a.label('K1_T_X0')
    a('    s_waitcnt vmcnt(0)')
    if K1PF: a.label('K1_T_XOK')
    for i, (jj, ks, m) in enumerate(order):
        b = 64 + 4*i
        a(f'    s_waitcnt lgkmcnt({min(15, 2*(7-i))})')
        acc = 32 + 8*m + 4*jj
        x = 24 + 4*ks
        c = '0' if ks == 0 else f'v[{acc}:{acc+3}]'
        a(f'    v_mfma_f32_16x16x32_bf16 v[{acc}:{acc+3}], v[{b}:{b+3}], v[{x}:{x+3}], {c}')
    stamp(a, 4)
    a('    s_nop 4')
    for jj in range(2):
        R = range(4)
        p = lambda r: 32 + 4*jj + r
        q = lambda r: 40 + 4*jj + r
        t = lambda r: 10 + r
        if jj == 1: a('    s_nop 2')
        for r in R: a(f'    v_mul_f32 v{p(r)}, s27, v{p(r)}')
        for r in R: a(f'    v_cvt_f16_f32 v{p(r)}, v{p(r)}')
        for r in R: a(f'    v_and_b32 v{t(r)}, 0x7fffffff, v{q(r)}')
        for r in R: a(f'    v_and_b32 v{p(r)}, 0xffff, v{p(r)}')
        for r in R: a(f'    v_sub_u32 v{t(r)}, v{t(r)}, v{p(r)}')
        for r in R: a(f'    v_add_u32 v{t(r)}, 0x8000, v{t(r)}')
        for r in R: a(f'    v_max_i32 v{t(r)}, 0, v{t(r)}')
        for r in R: a(f'    v_and_or_b32 v{t(r)}, v{t(r)}, s28, v{p(r)}')
        for r in R: a(f'    v_and_or_b32 v{p(r)}, v{q(r)}, s29, v{t(r)}')
        a(f'    buffer_store_dwordx4 v[{32+4*jj}:{35+4*jj}], v9, s[44:47], 0 offen offset:{jj*64} {TST}')
    a('    s_cmp_eq_u32 s2, 0')
    a('    s_cbranch_scc0 K1_TFIN')
    a('    s_cmp_eq_u32 s21, 0')
    a('    s_cbranch_scc0 K1_TFIN')
    a('    v_mov_b32 v10, 0x7c00')
    a(f'    v_lshlrev_b32 v11, 2, v2')
    a(f'    v_add_u32 v11, {N*256}, v11')
    a(f'    buffer_store_dword v10, v11, s[44:47], 0 offen {TST}')
    a.label('K1_TFIN')
    stamp(a, 5)
    if STAMP:
        stamp(a, 6)
        a('    s_waitcnt vmcnt(0)')
        stamp(a, 7); stamp(a, 1, True)
        if STAMP >= 3:
            a('    s_waitcnt lgkmcnt(0)')
            a(f'    s_mov_b32 s{ST0+4}, s{ST0+16}')
        else: stamp(a, 2)
        if TFIRST: a('    s_add_u32 s20, s20, 10')
        stamp_flush(a, 20, 2, 0, 6)
    a.label('K1_END')
    a('    s_endpgm')

CAP = 4096
TS = 272
L2_CNT = 0; L2_FLG = 256
L2_LIST = 512
L2_SLOT = L2_LIST + CAP*4
L2_EAT = L2_SLOT + 56*512; L2_UT = L2_EAT + 48*TS
XS = 144
L2_XT = L2_UT + 48*TS
L2_W = L2_XT + 48*XS
K2_LDS = L2_W + 16384
U = 4
TPF = int(env('TPF', '1'))
PFPOS = int(env('PFPOS', '1'))
PGT = int(env('PGT', '0'))
ASTAGE = int(env('ASTAGE', '1'))
G0N = int(env('G0N', '1'))
PFS = [int(x) for x in env('PFS', '6,6,6,6,8,8').split(',')]
PFW = int(env('PFW', '4'))
PFE = int(env('PFE', '0'))
PFL = int(env('PFL', '640'))
PFN = int(env('PFN', '40'))
PRT = [int(x) for x in env('PRT', '4,4,4').split(',')]

def gen_k2(a):
    a.k2 = True
    sB = 2; sWAVE = 3
    SRD_DESC = 12; SRD_REC = 16; SRD_T = 20; SRD_W = 24; SRD_X = 28; SRD_OUT = 32; SRD_WC = 36
    sMODE = 40; sPASS = 41
    sG0 = 42; sG1 = 43; sGEND = 44; sLEFT = 45; sNODE = 46; sT0 = 47; sT1 = 48; sSAFE = 49; sGT = 50; sR = 51
    sEX = 52; sEAB = 54; sPR = 55; sPQ = 56; sLVL = 57; sSLOT = 58; sNR = 59; sPQ2 = 60; sN0 = 62; sNN = 63; sNT = 61; sJ = 58
    sM = 64
    vLANE = 1
    vWC = 4; vEA = 8; vDEN = 12; vNUM = 16; vT = 20; vDAT = 24; vP = 40; vEV = 48
    vSA = 50; vACC = 51; vEAA = 52; vGS = 53; vQ16 = 54; vNG = 55
    vDA = 56; vNA = 60
    vX = 64
    vFL = 66
    vGE = 67
    vXO = 68
    vR = 76
    vB = 84
    vRK = 92
    vLA = 100
    vA = 108
    vCNT = 118; vRO = 119; vI = 120; vRM = 121; vTRA = 122; vXRA = 123; vROW = 121; vPFA = 51
    vLC = 12
    vPF = 16
    vXO2 = vXO
    SRD_LOC = 8; SRD_PF = 24
    vW = 24; vOP = 24; vAC = 40
    vOP2 = 76; vAC2 = 92
    vFS = 101; vFC = 102; vUTA = 103; vXTA = 106
    vOP3 = 24; vAC3 = 20; vAK = 20
    vU = 96; vUA = 100

    pf_state = {'next': 0}
    def pf(i):
        if not (TPF and PFPOS == 4) or PFS[i] == 0: return 0
        n = PFS[i]; st = pf_state['next']; pf_state['next'] += n
        assert pf_state['next'] <= 40
        base, off = (sJ, st*128) if st*128 < 4096 else (9, st*128 - 4096)
        a(f'    s_mov_b64 exec, {hex((1 << n) - 1)}')
        a(f'    buffer_load_dword v{vPF}, v{vPFA}, s[36:39], s{base} offen offset:{off}')
        a('    s_mov_b64 exec, -1')
        return 1
    npf = lambda *idx: sum(1 for i in idx if TPF and PFPOS == 4 and PFS[i] > 0)
    a('.p2align 8')
    a('.type k2_kernel,@function')
    a.label('k2_kernel')
    a(f'    s_cmp_ge_u32 s2, {NB}')
    a('    s_cbranch_scc1 K2_END')
    stamp(a, 0); stamp(a, 0, True)
    if CPF and CPF2:
        a('    s_getpc_b64 s[30:31]')
        a.label('K2_PC')
        a('    v_lshlrev_b32 v124, 7, v0')
        a('    v_cmp_gt_u32 vcc, CODE_END-K2_PC, v124')
        a('    s_and_saveexec_b64 s[28:29], vcc')
        a('    s_cbranch_execz K2_NOCPF')
        a('    global_load_dword v125, v124, s[30:31]')
        a.label('K2_NOCPF')
        a('    s_mov_b64 exec, s[28:29]')
    a(f'    s_lshr_b32 s{sJ}, s2, 3')
    if XMAP:
        a(f'    s_and_b32 s{sT0}, s2, 7')
        a(f'    s_lshl_b32 s{sT0}, s{sT0}, 5')
        a(f'    s_add_u32 s2, s{sT0}, s{sJ}')
    a(f'    s_mul_i32 s{sN0}, s2, 625')
    a(f'    s_add_u32 s{sNN}, s{sN0}, 640')
    a(f'    s_add_u32 s{sN0}, s{sN0}, 15')
    a(f'    s_lshr_b32 s{sN0}, s{sN0}, 4')
    a(f'    s_lshr_b32 s{sNN}, s{sNN}, 4')
    a(f'    s_sub_u32 s{sNN}, s{sNN}, s{sN0}')
    a('    s_load_dwordx2 s[6:7], s[0:1], 88      ; ws')
    a('    s_load_dwordx2 s[4:5], s[0:1], 0       ; x')
    a('    s_load_dwordx2 s[8:9], s[0:1], 32      ; w_a')
    a('    s_load_dwordx4 s[76:79], s[0:1], 48    ; w_c, w_u')
    a('    s_load_dwordx2 s[10:11], s[0:1], 72    ; out')
    a(f'    v_and_b32 v{vLANE}, 63, v0')
    a(f'    v_lshrrev_b32 v{vA}, 6, v0')
    a(f'    v_and_b32 v{vQ16}, 15, v0')
    a(f'    v_readfirstlane_b32 s{sWAVE}, v{vA}')
    a(f'    v_lshlrev_b32 v{vQ16}, 4, v{vQ16}      ; q*16')
    if DESCT:
        a(f'    v_and_b32 v{vA}, 0x3fc, v0             ; (t>>2)*4')
        a(f'    s_lshl_b32 s{sT0}, s{sB}, 10')
    else:
        a(f'    v_lshrrev_b32 v{vA}, 2, v0')
        a(f'    v_lshlrev_b32 v{vA}, 10, v{vA}')
        a(f'    s_lshl_b32 s{sT0}, s{sB}, 2')
    for i in range(4):
        a(f'    v_mov_b32 v{vDA+i}, 0')
        a(f'    v_mov_b32 v{vNA+i}, 0')
    masked(a, 'v_cmp_gt_u32 vcc, 4, v0', sEX)
    a(f'    v_lshlrev_b32 v{vA+5}, 2, v0')
    a(f'    ds_write_b32 v{vA+5}, v{vDA} offset:{L2_FLG}')
    unmask(a, sEX)
    a(f'    s_mov_b32 s{sMODE}, 0')
    a(f'    s_mov_b32 s{sPASS}, 0')
    a(f'    v_mov_b32 v{vEV}, 0')
    a(f'    v_mov_b32 v{vEV+1}, 0')
    for k in range(U):
        a(f'    v_mov_b32 v{vP+2*k}, {N}')
        a(f'    v_mov_b32 v{vP+2*k+1}, v{vQ16}')
    a(f'    v_lshrrev_b32 v{vA+1}, 5, v{vLANE}')
    a(f'    v_lshl_add_u32 v{vFL}, v{vA+1}, 8, v{vQ16}')
    a(f'    v_bfe_u32 v{vA+1}, v{vLANE}, 4, 1')
    a(f'    v_lshl_add_u32 v{vFL}, v{vA+1}, 3, v{vFL}')
    a.label('K2_PASS')
    for i in range(4):
        a(f'    v_mov_b32 v{vA+6+i}, {N}')
    a(f'    v_lshlrev_b32 v{vA+5}, 4, v0')
    a(f'    ds_write_b128 v{vA+5}, v[{vA+6}:{vA+9}] offset:{L2_LIST}')
    masked(a, 'v_cmp_gt_u32 vcc, 64, v0', sEX)
    a(f'    v_lshlrev_b32 v{vA+4}, 2, v0')
    a(f'    v_mov_b32 v{vA+3}, 0')
    a(f'    ds_write_b32 v{vA+4}, v{vA+3} offset:{L2_CNT}')
    unmask(a, sEX)
    a(f'    s_cmp_eq_u32 s{sMODE}, 0')
    a('    s_cbranch_scc0 K2_SLOWPARAM')
    a('    s_waitcnt lgkmcnt(0)')
    srd(a, SRD_DESC, 6, 7, NB*DESC_STRIDE, off=WS_DESC)
    a(f'    buffer_load_dword v{vCNT}, v{vA}, s[{SRD_DESC}:{SRD_DESC+3}], s{sT0} offen')
    a(f'    s_cmp_lt_u32 s{sWAVE}, 8')
    a(f'    s_cselect_b32 s{SRD_W}, s8, s78')
    a(f'    s_cselect_b32 s{SRD_W+1}, s9, s79')
    a(f'    s_mov_b32 s{SRD_W+2}, 8192')
    a(f'    s_mov_b32 s{SRD_W+3}, 0x00020000')
    srd(a, SRD_X, 4, 5, N*128)
    srd(a, SRD_WC, 76, 77, 128)
    a(f'    v_and_b32 v{vA+1}, 511, v0')
    a(f'    v_lshlrev_b32 v{vA+1}, 4, v{vA+1}')
    a(f'    buffer_load_dwordx4 v[{vW}:{vW+3}], v{vA+1}, s[{SRD_W}:{SRD_W+3}], 0 offen')
    a(f'    v_lshlrev_b32 v{vA+4}, 4, v0')
    a(f'    v_cmp_gt_u32 vcc, 384, v0')
    a(f'    v_mov_b32 v{vA+3}, {1<<30}')
    a(f'    s_lshl_b32 s{sT1}, s{sN0}, 7')
    a(f'    v_cndmask_b32 v{vA+4}, v{vA+3}, v{vA+4}, vcc')
    a(f'    buffer_load_dwordx4 v[{vXO}:{vXO+3}], v{vA+4}, s[{SRD_X}:{SRD_X+3}], s{sT1} offen')
    a(f'    v_lshrrev_b32 v{vA+7}, 1, v{vQ16}      ; q*8 (wc)')
    a(f'    buffer_load_dwordx2 v[{vWC}:{vWC+1}], v{vA+7}, s[{SRD_WC}:{SRD_WC+3}], 0 offen')
    if TPF and PFPOS == 4:
        srd(a, 36, 6, 7, T_BYTES, off=WS_T)
        a(f'    s_mul_i32 s{sJ}, s{sJ}, {640*128}')
        a(f'    s_mul_i32 s9, s{sWAVE}, {40*128}')
        a(f'    s_add_u32 s{sJ}, s{sJ}, s9')
        a(f'    s_add_u32 s9, s{sJ}, 4096')
        a(f'    v_lshlrev_b32 v{vPFA}, 7, v{vLANE}')
        pf(0)
    if PFE:
        srd(a, SRD_REC, 6, 7, T_BYTES, off=WS_T)
        a(f'    s_mul_i32 s{sT0}, s{sJ}, {640*128}')
        a(f'    s_mul_i32 s{sT1}, s{sWAVE}, {40*128}')
        a(f'    s_add_u32 s{sT0}, s{sT0}, s{sT1}')
        a(f'    s_add_u32 s{sT0}, s{sT0}, {PFN*128}')
        a(f'    v_lshlrev_b32 v{vPF+1}, 7, v{vLANE}')
        a(f'    v_cmp_gt_u32 vcc, {PFE}, v{vLANE}')
        a(f'    v_mov_b32 v{vPF+2}, {1<<30}')
        a('    s_nop 0')
        a(f'    v_cndmask_b32 v{vPF+1}, v{vPF+2}, v{vPF+1}, vcc')
        a(f'    buffer_load_dword v{vPF+1}, v{vPF+1}, s[{SRD_REC}:{SRD_REC+3}], s{sT0} offen')
    if PGT:
        srd(a, SRD_REC, 6, 7, WS_T + T_BYTES, off=0)
        a(f'    v_lshlrev_b32 v{vPF+1}, 21, v{vLANE}')
        a(f'    buffer_load_dword v{vPF+1}, v{vPF+1}, s[{SRD_REC}:{SRD_REC+3}], 0 offen')
    if not ASTAGE: a('    s_barrier')
    srd(a, SRD_OUT, 10, 11, N*128)
    srd(a, SRD_REC, 6, 7, NC*REC_STRIDE + 64, off=WS_REC)
    srd(a, SRD_T, 6, 7, 0, off=WS_T, stride=256, nrec=N+1)
    a(f'    v_lshrrev_b32 v{vA}, 2, v0             ; c')
    a(f'    v_mul_u32_u24 v{vRO}, {REC_STRIDE}, v{vA}')
    a(f'    v_and_b32 v{vI}, 3, v0')
    a(f'    v_lshlrev_b32 v{vI}, 2, v{vI}')
    a(f'    v_mad_u32_u24 v{vRO}, v{vI}, 5, v{vRO}')
    a(f'    s_mov_b32 s{sT1}, 16')
    a(f'    s_waitcnt vmcnt({3+PGT+(1 if PFE else 0)+npf(0)})                      ; descriptor')
    stamp(a, 1)
    a(f'    v_and_b32 v{vA+1}, 0xffff, v{vCNT}      ; start')
    a(f'    v_lshrrev_b32 v{vCNT}, 16, v{vCNT}      ; cnt')
    a(f'    v_mad_u32_u24 v{vRO}, v{vA+1}, 5, v{vRO}')
    a('    s_branch K2_PARAMDONE')
    a.label('K2_SLOWPARAM')
    a(f'    s_lshl_b32 s{sT0}, s{sB}, {10 if DESCT else 2}')
    a(f'    s_lshl_b32 s{sT1}, s{sPASS}, {2 if DESCT else 10}')
    a(f'    s_add_u32 s{sT0}, s{sT0}, s{sT1}')
    a(f'    v_mov_b32 v{vA}, 0')
    a(f'    buffer_load_dword v{vCNT}, v{vA}, s[{SRD_DESC}:{SRD_DESC+3}], s{sT0} offen')
    a(f'    s_mul_i32 s{sT0}, s{sPASS}, {REC_STRIDE}')
    a('    s_waitcnt vmcnt(0) lgkmcnt(0)')
    a('    s_barrier')
    a(f'    v_and_b32 v{vA+1}, 0xffff, v{vCNT}')
    a(f'    v_lshlrev_b32 v{vI}, 2, v0')
    a(f'    v_add_u32 v{vA+1}, v{vA+1}, v{vI}')
    a(f'    v_mul_u32_u24 v{vRO}, 5, v{vA+1}')
    a(f'    v_add_u32 v{vRO}, s{sT0}, v{vRO}')
    a(f'    v_lshrrev_b32 v{vCNT}, 16, v{vCNT}')
    a(f'    s_mov_b32 s{sT1}, 4096')
    a.label('K2_PARAMDONE')
    a(f'    v_sub_u32 v{vRM}, v{vCNT}, v{vI}')
    a(f'    s_mul_i32 s{sT0}, s{sT1}, 5')
    a(f'    s_mov_b32 s{sNR}, 0')
    for r in range(2):
        m0 = sM + 8*r
        if r == 1:
            a(f'    v_subrev_u32 v{vRM}, s{sT1}, v{vRM}')
        for h in range(4):
            a(f'    v_cmp_gt_i32 s[{m0+2*h}:{m0+2*h+1}], v{vRM}, {h}' if h else f'    v_cmp_lt_i32 s[{m0}:{m0+1}], 0, v{vRM}')
        a(f'    s_cmp_eq_u64 s[{m0}:{m0+1}], 0')
        a(f'    s_cbranch_scc1 K2_LD_DONE')
        a(f'    s_mov_b64 exec, s[{m0}:{m0+1}]')
        a(f'    buffer_load_dwordx4 v[{vR+4*r}:{vR+4*r+3}], v{vRO}, s[{SRD_REC}:{SRD_REC+3}], 0 offen {RLD}')
        a(f'    buffer_load_dword v{vLC+r}, v{vRO}, s[{SRD_REC}:{SRD_REC+3}], 0 offen offset:16 {RLD}')
        a(f'    s_mov_b64 exec, -1')
        a(f'    s_mov_b32 s{sNR}, {r+1}')
        if r < 1:
            a(f'    v_add_u32 v{vRO}, s{sT0}, v{vRO}')
    a.label('K2_LD_DONE')
    a(f'    s_or_b32 s{sT0}, s{sMODE}, s{sPASS}')
    a(f'    s_cmp_eq_u32 s{sT0}, 0')
    a('    s_cbranch_scc0 K2_LATER_PASS')
    pf(1)
    if TPF and PFPOS == 3:
        a(f'    s_mul_i32 s{sT0}, s{sJ}, {640*128}')
        a(f'    s_mul_i32 s{sT1}, s{sWAVE}, {40*128}')
        a(f'    s_add_u32 s{sT0}, s{sT0}, s{sT1}')
        a(f'    s_add_u32 s{sT0}, s{sT0}, {WS_T}')
        a(f'    s_add_u32 s24, s6, s{sT0}')
        a(f'    s_addc_u32 s25, s7, 0')
        for i in range(PFN):
            a(f'    s_load_dword s26, s[24:25], {128*i}')
    if TPF and PFPOS == 2:
        W0 = 16 - PFW
        per = PFL // PFW
        a(f'    s_cmp_ge_u32 s{sWAVE}, {W0}')
        a('    s_cbranch_scc0 K2_NOPF2')
        srd(a, SRD_PF, 6, 7, T_BYTES, off=WS_T)
        a(f'    s_mul_i32 s{sT0}, s{sJ}, {640*128}')
        a(f'    s_sub_u32 s{sT1}, s{sWAVE}, {W0}')
        a(f'    s_mul_i32 s{sT1}, s{sT1}, {per*128}')
        a(f'    s_add_u32 s{sT0}, s{sT0}, s{sT1}')
        a(f'    v_lshlrev_b32 v{vPFA}, 7, v{vLANE}')
        nin = (per + 63)//64
        for i in range(nin):
            left = per - 64*i
            if left < 64:
                a(f'    v_cmp_gt_u32 vcc, {left}, v{vLANE}')
                a(f'    v_mov_b32 v{vPF+1}, {1<<30}')
                a('    s_nop 0')
                a(f'    v_cndmask_b32 v{vPFA}, v{vPF+1}, v{vPFA}, vcc')
            a(f'    buffer_load_dword v{vPF}, v{vPFA}, s[{SRD_PF}:{SRD_PF+3}], s{sT0} offen')
            if i + 1 < nin: a(f'    s_add_u32 s{sT0}, s{sT0}, 8192')
        a.label('K2_NOPF2')
    a(f'    v_lshrrev_b32 v{vA+8}, 3, v0')
    a(f'    v_mul_u32_u24 v{vA+8}, {XS}, v{vA+8}')
    a(f'    v_and_b32 v{vA+7}, 7, v0')
    a(f'    v_lshl_add_u32 v{vA+8}, v{vA+7}, 4, v{vA+8}')
    a(f'    v_add_u32 v{vA+8}, {L2_XT}, v{vA+8}')
    NPF = 1 if TPF else 0
    a(f'    v_bfe_u32 v{vA+1}, v0, 4, 1')
    a(f'    v_bfe_u32 v{vA+2}, v0, 6, 1')
    a(f'    v_lshlrev_b32 v{vA+1}, 1, v{vA+1}')
    a(f'    v_lshl_or_b32 v{vA+1}, v{vA+2}, 2, v{vA+1}')
    a(f'    v_and_b32 v{vA+2}, 7, v0')
    a(f'    v_xor_b32 v{vA+1}, v{vA+1}, v{vA+2}')
    a(f'    v_lshrrev_b32 v{vA+2}, 3, v0')
    a(f'    v_lshlrev_b32 v{vA+2}, 7, v{vA+2}')
    a(f'    v_lshl_add_u32 v{vA+9}, v{vA+1}, 4, v{vA+2}')
    a(f'    v_add_u32 v{vA+9}, {L2_W}, v{vA+9}')
    a(f'    v_lshrrev_b32 v{vA+3}, 4, v{vLANE}     ; g')
    a(f'    v_bfe_u32 v{vA}, v{vLANE}, 2, 2        ; r')
    a(f'    v_lshl_add_u32 v{vA+1}, v{vA+3}, 3, v{vA}')
    a(f'    v_lshlrev_b32 v{vA+1}, 7, v{vA+1}')
    a(f'    v_and_b32 v{vA+2}, 1, v{vLANE}')
    a(f'    v_lshl_add_u32 v{vA+1}, v{vA+2}, 3, v{vA+1}')
    a(f'    v_lshrrev_b32 v{vA}, 1, v{vA}')
    a(f'    v_and_b32 v{vA+2}, 1, v{vA+3}')
    a(f'    v_lshl_or_b32 v{vA}, v{vA+2}, 1, v{vA}     ; swz/2')
    a(f'    s_and_b32 s{sT0}, s{sWAVE}, 3')
    a(f'    v_xor_b32 v{vA}, s{sT0}, v{vA}')
    a(f'    v_bfe_u32 v{vA+2}, v{vLANE}, 1, 1')
    a(f'    v_lshl_or_b32 v{vA}, v{vA}, 1, v{vA+2}')
    a(f'    v_lshl_add_u32 v{vTRA}, v{vA}, 4, v{vA+1}')
    a(f'    v_add_u32 v{vTRA}, {L2_W}, v{vTRA}')
    a(f'    s_lshr_b32 s{sT1}, s{sWAVE}, 2')
    a(f'    s_lshl_b32 s{sT1}, s{sT1}, 4')
    a(f'    v_and_b32 v{vA+2}, 15, v{vLANE}')
    a(f'    v_add_u32 v{vROW}, s{sT1}, v{vA+2}     ; row')
    a(f'    v_mul_u32_u24 v{vA+1}, {XS}, v{vROW}')
    a(f'    v_lshl_add_u32 v{vA+1}, v{vA+3}, 4, v{vA+1}')
    a(f'    v_add_u32 v{vXRA}, {L2_XT}, v{vA+1}')
    a(f'    v_mul_u32_u24 v{vA+4}, {TS}, v{vROW}')
    a(f'    v_lshl_add_u32 v{vA+4}, v{vA+3}, 4, v{vA+4}')
    a(f'    s_lshl_b32 s{sT0}, s{sT0}, 6')
    a(f'    s_add_u32 s{sT0}, s{sT0}, {L2_EAT}')
    a(f'    v_add_u32 v{vEAA}, s{sT0}, v{vA+4}')
    if TPF and PFPOS < 2:
        srd(a, SRD_PF, 6, 7, T_BYTES, off=WS_T)
        a(f'    s_mul_i32 s{sT0}, s{sJ}, {640*128}')
        a(f'    s_mul_i32 s{sT1}, s{sWAVE}, {40*128}')
        a(f'    s_add_u32 s{sJ}, s{sT0}, s{sT1}')
        a(f'    v_lshlrev_b32 v{vA+3}, 7, v{vLANE}')
        a(f'    v_cmp_gt_u32 vcc, {PFN}, v{vLANE}')
        a(f'    v_mov_b32 v{vA+4}, {1<<30}')
        a('    s_nop 0')
        a(f'    v_cndmask_b32 v{vPFA}, v{vA+4}, v{vA+3}, vcc')
    if ASTAGE:
        a(f'    s_cmp_eq_u32 s{sNR}, 2')
        a('    s_cbranch_scc1 K2_WW4')
        a(f'    s_cmp_eq_u32 s{sNR}, 1')
        a('    s_cbranch_scc1 K2_WW2')
        a(f'    s_waitcnt vmcnt({npf(1)})')
        a('    s_branch K2_WWD')
        a.label('K2_WW4')
        a(f'    s_waitcnt vmcnt({4+npf(1)})')
        a('    s_branch K2_WWD')
        a.label('K2_WW2')
        a(f'    s_waitcnt vmcnt({2+npf(1)})')
        a.label('K2_WWD')
        a(f'    ds_write_b128 v{vA+9}, v[{vW}:{vW+3}]')
        a(f'    s_cmp_lt_u32 s{sWAVE}, 6')
        a('    s_cbranch_scc0 K2_NOXST0')
        a(f'    ds_write_b128 v{vA+8}, v[{vXO}:{vXO+3}]')
        a.label('K2_NOXST0')
        a('    s_waitcnt lgkmcnt(0)')
        a('    s_barrier')
        pf(2)
        a(f'    s_cmp_lt_u32 s{sWAVE}, 12')
        a('    s_cbranch_scc0 K2_NOMFMA0')
        a(f'    ds_read_b128 v[{vXO}:{vXO+3}], v{vXRA}')
        a(f'    ds_read_b64_tr_b16 v[{vOP3}:{vOP3+1}], v{vTRA}')
        a(f'    ds_read_b64_tr_b16 v[{vOP3+2}:{vOP3+3}], v{vTRA} offset:{0+512}')
        a(f'    ds_read_b128 v[{vXO+4}:{vXO+7}], v{vXRA} offset:64')
        a(f'    ds_read_b64_tr_b16 v[{vOP3+4}:{vOP3+5}], v{vTRA} offset:{0+4096}')
        a(f'    ds_read_b64_tr_b16 v[{vOP3+6}:{vOP3+7}], v{vTRA} offset:{0+4096+512}')
        a(f'    s_mov_b32 s{sT0}, {hex(f2u(-LOG2E))}')
        a(f'    s_mov_b32 s{sT1}, {hex(f2u(60.0))}')
        a('    s_waitcnt lgkmcnt(3)')
        a(f'    v_mfma_f32_16x16x32_bf16 v[{vAC3}:{vAC3+3}], v[{vOP3}:{vOP3+3}], v[{vXO}:{vXO+3}], 0')
        a('    s_waitcnt lgkmcnt(0)')
        a(f'    v_mfma_f32_16x16x32_bf16 v[{vAC3}:{vAC3+3}], v[{vOP3+4}:{vOP3+7}], v[{vXO+4}:{vXO+7}], v[{vAC3}:{vAC3+3}]')
        a('    s_nop 7')
        for i in range(4):
            a(f'    v_mul_f32 v{vAC3+i}, s{sT0}, v{vAC3+i}')
        for i in range(4):
            a(f'    v_exp_f32 v{vOP3+i}, v{vAC3+i}')
        a(f'    v_max3_f32 v{vA+5}, |v{vAC3}|, |v{vAC3+1}|, |v{vAC3+2}|')
        a(f'    v_max_f32 v{vA+5}, v{vA+5}, |v{vAC3+3}|')
        a(f'    ds_write_b128 v{vEAA}, v[{vOP3}:{vOP3+3}]')
        a(f'    v_cmp_nle_f32 vcc, v{vA+5}, s{sT1}')
        a(f'    v_cmp_gt_u32 s[{sEX}:{sEX+1}], s{sNN}, v{vROW}')
        a(f'    s_and_b64 vcc, vcc, s[{sEX}:{sEX+1}]')
        a(f'    s_and_saveexec_b64 s[{sEX}:{sEX+1}], vcc')
        a('    s_cbranch_execz K2_GUARD_OK0')
        a(f'    v_mov_b32 v{vA+5}, 1')
        a(f'    v_mov_b32 v{vA+7}, 0')
        a(f'    ds_write_b32 v{vA+7}, v{vA+5} offset:{L2_FLG+4}')
        unmask(a, sEX, 'K2_GUARD_OK0')
        a.label('K2_NOMFMA0')
        pf(3)
        if TPF and PFPOS == 4:
            a(f'    v_mov_b32 v{vA+2}, 1')
            a(f'    s_waitcnt vmcnt({npf(1,2,3)})')
            pf(4)
            a('    s_branch K2_RANKS')
    if TPF and PFPOS == 2:
        a(f'    v_mov_b32 v{vA+2}, 1')
        a(f'    s_cmp_ge_u32 s{sWAVE}, {16 - PFW}')
        a('    s_cbranch_scc0 K2_LATER_PASS')
        a(f'    s_waitcnt vmcnt({(PFL // PFW + 63)//64})')
        a('    s_branch K2_RANKS')
    a.label('K2_LATER_PASS')
    a(f'    v_mov_b32 v{vA+2}, 1')
    a('    s_waitcnt vmcnt(0)')
    if TPF and PFPOS == 1:
        a(f'    s_or_b32 s{sT0}, s{sMODE}, s{sPASS}')
        a(f'    s_cmp_eq_u32 s{sT0}, 0')
        a('    s_cbranch_scc0 K2_RANKS')
        a(f'    buffer_load_dword v{vPF}, v{vPFA}, s[{SRD_PF}:{SRD_PF+3}], s{sJ} offen')
    a.label('K2_RANKS')
    stamp(a, 2)
    for r in range(2):
        a(f'    s_cmp_le_u32 s{sNR}, {r}')
        a('    s_cbranch_scc1 K2_RK_DONE')
        d = vR + 4*r
        a(f'    v_and_b32 v{vLA+4*r}, 0xff, v{d+1}')
        a(f'    v_bfe_u32 v{vLA+4*r+1}, v{d+2}, 8, 8')
        a(f'    v_bfe_u32 v{vLA+4*r+2}, v{d+3}, 16, 8')
        a(f'    v_lshrrev_b32 v{vLA+4*r+3}, 24, v{vLC+r}')
        for h in range(4):
            k = 4*r + h
            a(f'    s_mov_b64 exec, s[{sM+2*k}:{sM+2*k+1}]')
            a(f'    ds_add_rtn_u32 v{vRK+k}, v{vLA+k}, v{vA+2} offset:{L2_CNT}')
        a('    s_mov_b64 exec, -1')
        a(f'    v_alignbyte_b32 v{d+1}, v{d+2}, v{d+1}, 1')
        a(f'    v_alignbyte_b32 v{d+2}, v{d+3}, v{d+2}, 2')
        a(f'    v_alignbyte_b32 v{d+3}, v{vLC+r}, v{d+3}, 3')
    a.label('K2_RK_DONE')
    masked(a, f'v_cmp_lt_u32 vcc, 32, v{vCNT}', sEX, 'K2_NOOVF')
    a(f'    v_mov_b32 v{vA+3}, 0')
    a(f'    ds_write_b32 v{vA+3}, v{vA+2} offset:{L2_FLG}')
    unmask(a, sEX, 'K2_NOOVF')
    a(f'    s_or_b32 s{sT0}, s{sMODE}, s{sPASS}')
    a(f'    s_cmp_eq_u32 s{sT0}, 0')
    a('    s_cbranch_scc0 K2_NOWST')
    pf(5)
    if not ASTAGE:
        a(f'    ds_write_b128 v{vA+9}, v[{vW}:{vW+3}]')
        a(f'    s_cmp_lt_u32 s{sWAVE}, 6')
        a('    s_cbranch_scc0 K2_NOXST')
        a(f'    ds_write_b128 v{vA+8}, v[{vXO}:{vXO+3}]')
        a.label('K2_NOXST')
    a(f'    s_mov_b32 s{sT0}, {hex(f2u(-LOG2E))}')
    a(f'    v_and_b32 v{vWC+3}, 0xffff0000, v{vWC+1}')
    a(f'    v_lshlrev_b32 v{vWC+2}, 16, v{vWC+1}')
    a(f'    v_and_b32 v{vWC+1}, 0xffff0000, v{vWC}')
    a(f'    v_lshlrev_b32 v{vWC}, 16, v{vWC}')
    for k in range(4):
        a(f'    v_mul_f32 v{vWC+k}, s{sT0}, v{vWC+k}')
    a.label('K2_NOWST')
    a(f'    v_lshlrev_b32 v{vA+1}, 2, v{vLANE}')
    a(f'    v_mov_b32 v{vA}, 0')
    a('    s_waitcnt lgkmcnt(0)')
    stamp(a, 3)
    a('    s_barrier')
    stamp(a, 4)
    if TPF and PFPOS == 0:
        a(f'    s_or_b32 s{sT0}, s{sMODE}, s{sPASS}')
        a(f'    s_cmp_eq_u32 s{sT0}, 0')
        a('    s_cbranch_scc0 K2_NOPF')
        a(f'    buffer_load_dword v{vPF}, v{vPFA}, s[{SRD_PF}:{SRD_PF+3}], s{sJ} offen')
        a.label('K2_NOPF')
    a(f'    ds_read_b32 v{vNG}, v{vA+1} offset:{L2_CNT}')
    a(f'    ds_read_b32 v{vA+4}, v{vA} offset:{L2_FLG}')
    a('    s_waitcnt lgkmcnt(1)')
    a(f'    v_add_u32 v{vNG}, 3, v{vNG}')
    a(f'    v_lshrrev_b32 v{vNG}, 2, v{vNG}')
    a(f'    v_mov_b32 v{vGE}, v{vNG}')
    dpp_scan(a, vGE)
    a('    s_waitcnt lgkmcnt(0)')
    a(f'    v_readlane_b32 s{sGT}, v{vGE}, {NPB-1}')
    a(f'    v_sub_u32 v{vGS}, v{vGE}, v{vNG}')
    a(f'    v_readfirstlane_b32 s{sT0}, v{vA+4}')
    a(f'    v_lshlrev_b32 v{vA+6}, 4, v{vGS}')
    a(f'    v_cmp_lt_u32 vcc, {NPB}, v{vLANE}')
    a(f'    s_add_u32 s{sR}, s{sGT}, 15')
    a(f'    s_lshr_b32 s{sR}, s{sR}, 4')
    a(f'    v_cndmask_b32 v{vGS}, v{vGS}, -1, vcc')
    a(f'    s_cmp_eq_u32 s{sMODE}, 0')
    a('    s_cbranch_scc0 K2_NOSWITCH')
    a(f'    s_cmp_gt_u32 s{sGT}, {(CAP - 64)//4}')
    a(f'    s_cselect_b32 s{sT1}, 1, 0')
    a(f'    s_or_b32 s{sT0}, s{sT0}, s{sT1}')
    a(f'    s_cmp_eq_u32 s{sT0}, 0')
    a('    s_cbranch_scc1 K2_NOSWITCH')
    a(f'    s_mov_b32 s{sNR}, 0')
    a(f'    s_mov_b32 s{sGT}, 0')
    a(f'    s_mov_b32 s{sR}, 0')
    a(f'    s_mov_b32 s{sMODE}, 2')
    a.label('K2_NOSWITCH')
    for r in range(2):
        a(f'    s_cmp_le_u32 s{sNR}, {r}')
        a('    s_cbranch_scc1 K2_LK_DONE')
        for h in range(4):
            k = 4*r + h
            a(f'    ds_bpermute_b32 v{vB+k}, v{vLA+k}, v{vA+6}')
    a.label('K2_LK_DONE')
    a('    s_waitcnt lgkmcnt(0)')
    for r in range(2):
        a(f'    s_cmp_le_u32 s{sNR}, {r}')
        a('    s_cbranch_scc1 K2_SC_DONE')
        for h in range(4):
            k = 4*r + h
            a(f'    s_mov_b64 exec, s[{sM+2*k}:{sM+2*k+1}]')
            a(f'    v_lshl_add_u32 v{vB+k}, v{vRK+k}, 2, v{vB+k}')
            a(f'    ds_write_b32 v{vB+k}, v{vR+k} offset:{L2_LIST}')
    a.label('K2_SC_DONE')
    a('    s_mov_b64 exec, -1')
    a(f'    s_mul_i32 s{sG0}, s{sR}, s{sWAVE}')
    a(f'    s_add_u32 s{sG1}, s{sG0}, s{sR}')
    a(f'    s_min_u32 s{sG1}, s{sG1}, s{sGT}')
    a(f'    v_lshrrev_b32 v{vSA}, 4, v{vLANE}')
    a(f'    v_lshlrev_b32 v{vSA}, 2, v{vSA}         ; slot*4')
    a(f'    s_lshl_b32 s{sT0}, s{sG0}, 4')
    a(f'    v_add_u32 v{vSA}, s{sT0}, v{vSA}')
    a(f'    v_mov_b32 v{vA}, 0')
    a('    s_waitcnt lgkmcnt(0)')
    a('    s_barrier')
    if PRIO: a('    s_setprio 3')
    stamp(a, 5)

    def tload(k):
        d = vDAT + 4*k
        a(f'    buffer_load_dwordx4 v[{d}:{d+3}], v[{vP+2*k}:{vP+2*k+1}], s[{SRD_T}:{SRD_T+3}], 0 idxen offen')

    a(f'    s_cmp_ge_u32 s{sG0}, s{sG1}')
    a('    s_cbranch_scc1 K2_NOGATH')
    for k in range(U):
        a(f'    ds_read_u16 v{vP+2*k}, v{vSA} offset:{L2_LIST + 16*k}')
    a(f'    ds_read_u16_d16_hi v{vEV}, v{vSA} offset:{L2_LIST + 2}')
    a('    s_waitcnt lgkmcnt(0)')
    for k in range(G0N):
        tload(k)
    a(f'    ds_read_u16 v{vP}, v{vSA} offset:{L2_LIST + 16*U}')
    a.label('K2_NOGATH')
    a(f'    s_cmp_eq_u32 s{sPASS}, 0')
    a('    s_cbranch_scc0 K2_NOTAB')
    a(f'    s_cmp_eq_u32 s{sMODE}, 1')
    a('    s_cbranch_scc1 K2_NOTAB')
    if not ASTAGE:
        a(f'    s_cmp_lt_u32 s{sWAVE}, 12')
        a('    s_cbranch_scc0 K2_NOMFMA')
        a(f'    ds_read_b128 v[{vXO}:{vXO+3}], v{vXRA}')
        a(f'    ds_read_b64_tr_b16 v[{vOP2}:{vOP2+1}], v{vTRA}')
        a(f'    ds_read_b64_tr_b16 v[{vOP2+2}:{vOP2+3}], v{vTRA} offset:{0+512}')
        a(f'    ds_read_b128 v[{vXO+4}:{vXO+7}], v{vXRA} offset:64')
        a(f'    ds_read_b64_tr_b16 v[{vOP2+4}:{vOP2+5}], v{vTRA} offset:{0+4096}')
        a(f'    ds_read_b64_tr_b16 v[{vOP2+6}:{vOP2+7}], v{vTRA} offset:{0+4096+512}')
        a(f'    s_mov_b32 s{sT0}, {hex(f2u(-LOG2E))}')
        a(f'    s_mov_b32 s{sT1}, {hex(f2u(60.0))}')
        a('    s_waitcnt lgkmcnt(3)')
        a(f'    v_mfma_f32_16x16x32_bf16 v[{vAC2}:{vAC2+3}], v[{vOP2}:{vOP2+3}], v[{vXO}:{vXO+3}], 0')
        a('    s_waitcnt lgkmcnt(0)')
        a(f'    v_mfma_f32_16x16x32_bf16 v[{vAC2}:{vAC2+3}], v[{vOP2+4}:{vOP2+7}], v[{vXO+4}:{vXO+7}], v[{vAC2}:{vAC2+3}]')
        a('    s_nop 7')
        for i in range(4):
            a(f'    v_mul_f32 v{vAC2+i}, s{sT0}, v{vAC2+i}')
        for i in range(4):
            a(f'    v_exp_f32 v{vOP2+i}, v{vAC2+i}')
        a(f'    v_max3_f32 v{vA+5}, |v{vAC2}|, |v{vAC2+1}|, |v{vAC2+2}|')
        a(f'    v_max_f32 v{vA+5}, v{vA+5}, |v{vAC2+3}|')
        a(f'    ds_write_b128 v{vEAA}, v[{vOP2}:{vOP2+3}]')
        a(f'    v_cmp_nle_f32 vcc, v{vA+5}, s{sT1}')
        a(f'    v_cmp_gt_u32 s[{sEX}:{sEX+1}], s{sNN}, v{vROW}')
        a(f'    s_and_b64 vcc, vcc, s[{sEX}:{sEX+1}]')
        a(f'    s_and_saveexec_b64 s[{sEX}:{sEX+1}], vcc')
        a('    s_cbranch_execz K2_GUARD_OK')
        a(f'    v_mov_b32 v{vA+5}, 1')
        a(f'    v_mov_b32 v{vA+7}, 0')
        a(f'    ds_write_b32 v{vA+7}, v{vA+5} offset:{L2_FLG+4}')
        unmask(a, sEX, 'K2_GUARD_OK')
    a.label('K2_NOMFMA')
    if not ASTAGE:
        a(f'    v_mov_b32 v{vA}, 0')
        a('    s_waitcnt lgkmcnt(0)')
        a('    s_barrier')
        a(f'    ds_read_b32 v{vA+5}, v{vA} offset:{L2_FLG+4}')
    else:
        a(f'    v_mov_b32 v{vA}, 0')
        a(f'    ds_read_b32 v{vA+5}, v{vA} offset:{L2_FLG+4}')
    a(f'    s_cmp_ge_u32 s{sG0}, s{sG1}')
    a('    s_cbranch_scc1 K2_NOGATH2')
    for k in range(G0N, U):
        tload(k)
    a.label('K2_NOGATH2')
    a(f'    s_cmp_lt_u32 s{sWAVE}, 12')
    a('    s_cbranch_scc0 K2_NOU')
    a(f'    ds_read_b64_tr_b16 v[{vOP2}:{vOP2+1}], v{vTRA} offset:{0+8192}')
    a(f'    ds_read_b64_tr_b16 v[{vOP2+2}:{vOP2+3}], v{vTRA} offset:{0+8192+512}')
    a(f'    ds_read_b64_tr_b16 v[{vOP2+4}:{vOP2+5}], v{vTRA} offset:{0+8192+4096}')
    a(f'    ds_read_b64_tr_b16 v[{vOP2+6}:{vOP2+7}], v{vTRA} offset:{0+8192+4096+512}')
    a('    s_waitcnt lgkmcnt(2)')
    a(f'    v_mfma_f32_16x16x32_bf16 v[{vU}:{vU+3}], v[{vOP2}:{vOP2+3}], v[{vXO}:{vXO+3}], 0')
    a('    s_waitcnt lgkmcnt(0)')
    a(f'    v_mfma_f32_16x16x32_bf16 v[{vU}:{vU+3}], v[{vOP2+4}:{vOP2+7}], v[{vXO+4}:{vXO+7}], v[{vU}:{vU+3}]')
    a(f'    v_mov_b32 v{vUA}, v{vEAA}')
    a.label('K2_NOU')
    a('    s_waitcnt lgkmcnt(0)')
    a(f'    v_readfirstlane_b32 s{sSAFE}, v{vA+5}')
    a('    s_nop 0')
    a(f'    s_cmp_eq_u32 s{sSAFE}, 0')
    a('    s_cbranch_scc1 K2_WAITW')
    a('    s_barrier')
    a(f'    s_cmp_lt_u32 s{sWAVE}, 12')
    a('    s_cbranch_scc0 K2_SAFE_NOW')
    a(f'    ds_write_b128 v{vEAA}, v[{(vAK if ASTAGE else vAC2)}:{(vAK if ASTAGE else vAC2)+3}]')
    a.label('K2_SAFE_NOW')
    a('    s_waitcnt lgkmcnt(0)')
    a('    s_barrier')
    a.label('K2_WAITW')
    a('    s_branch K2_TABDONE')
    a.label('K2_NOTAB')
    a(f'    s_cmp_ge_u32 s{sG0}, s{sG1}')
    a('    s_cbranch_scc1 K2_TABDONE')
    for k in range(G0N, U):
        tload(k)
    a.label('K2_TABDONE')
    dstamp(a, 1)
    a(f'    v_cvt_f32_u32 v{vA}, s{sR}')
    a(f'    v_cvt_f32_u32 v{vA+1}, v{vGS}')
    a(f'    v_rcp_f32 v{vA}, v{vA}')
    a(f'    v_cvt_f32_u32 v{vA+2}, v{vGE}')
    a(f'    v_add_f32 v{vA+1}, 0.5, v{vA+1}')
    a(f'    v_add_f32 v{vA+2}, -0.5, v{vA+2}')
    a(f'    v_mul_f32 v{vA+1}, v{vA+1}, v{vA}')
    a(f'    v_mul_f32 v{vA+2}, v{vA+2}, v{vA}')
    a(f'    v_cvt_u32_f32 v{vA+1}, v{vA+1}          ; wlo')
    a(f'    v_cvt_u32_f32 v{vA+2}, v{vA+2}          ; whi')
    a(f'    v_sub_u32 v{vA+2}, v{vA+2}, v{vA+1}')
    a(f'    v_add_u32 v{vA+2}, 1, v{vA+2}')
    a(f'    v_cmp_eq_u32 vcc, 0, v{vNG}')
    a(f'    v_add_u32 v{vA+1}, v{vA+1}, v{vLANE}')
    a(f'    v_and_b32 v{vA+1}, 0xffff, v{vA+1}')
    a(f'    v_cndmask_b32 v{vA+2}, v{vA+2}, 0, vcc')
    a(f'    v_lshl_or_b32 v{vA+3}, v{vA+2}, 16, v{vA+1}')
    a(f'    v_lshrrev_b32 v{vA}, 4, v0')
    a(f'    v_and_b32 v{vA+4}, 63, v{vA}')
    a(f'    v_lshlrev_b32 v{vA+4}, 2, v{vA+4}')
    a(f'    ds_bpermute_b32 v{vA+1}, v{vA+4}, v{vA+3}')
    a(f'    v_mul_u32_u24 v{vUTA}, {TS}, v{vA}')
    a(f'    v_mul_u32_u24 v{vXTA}, {XS}, v{vA}')
    a(f'    v_lshrrev_b32 v{vA+7}, 1, v{vQ16}')
    a(f'    v_add_u32 v{vUTA}, v{vUTA}, v{vQ16}')
    a(f'    v_add_u32 v{vXTA}, v{vXTA}, v{vA+7}')
    a(f'    v_add_u32 v{vUTA}, {L2_UT}, v{vUTA}')
    a(f'    v_add_u32 v{vXTA}, {L2_XT}, v{vXTA}')
    a(f'    s_lshl_b32 s{sNT}, s{sNN}, 4')
    a(f'    v_cmp_gt_u32 vcc, s{sNT}, v0')
    a('    s_waitcnt lgkmcnt(0)')
    a(f'    v_lshrrev_b32 v{vFC}, 16, v{vA+1}')
    a(f'    v_and_b32 v{vA+1}, 0xffff, v{vA+1}')
    a(f'    v_cndmask_b32 v{vFC}, 0, v{vFC}, vcc')
    a(f'    v_lshl_add_u32 v{vFS}, v{vA+1}, 9, v{vQ16}')
    a(f'    v_cmp_lt_u32 s[{sM}:{sM+1}], 0, v{vFC}')
    a(f'    v_cmp_lt_u32 s[{sM+2}:{sM+3}], 1, v{vFC}')
    a(f'    v_cmp_lt_u32 s[{sM+4}:{sM+5}], 2, v{vFC}')
    a(f'    s_cmp_ge_u32 s{sG0}, s{sG1}')
    a('    s_cbranch_scc1 K2_MAIN_DONE')
    if PRIO:
        a(f'    s_add_u32 s{sT0}, s{sR}, 3')
        a(f'    s_lshr_b32 s{sT0}, s{sT0}, 2            ; iterations')
        for n, reg in zip(PRT, (sPR, sPQ, sPQ2)):
            a(f'    s_mul_i32 s{reg}, s{sT0}, {n}')
            a(f'    s_lshr_b32 s{reg}, s{reg}, 4')
            a(f'    s_add_u32 s{reg}, s{reg}, 1')
        a(f'    s_mov_b32 s{sLVL}, 3')
        a('    s_setprio 3')
    a(f'    s_mov_b32 s{sGEND}, s{sG0}')
    a(f'    s_mov_b32 s{sEAB}, {L2_EAT}')
    a(f'    s_cmp_eq_u32 s{sSAFE}, 0')
    a('    s_cbranch_scc0 K2S_ENTER')
    a('    s_branch K2F_ENTER')

    def next_node():
        a(f'    v_cmp_ge_u32 vcc, s{sGEND}, v{vGS}')
        a(f'    s_bcnt1_i32_b64 s{sT0}, vcc')
        a(f'    s_sub_u32 s{sNODE}, s{sT0}, 1')
        a(f'    v_readlane_b32 s{sT1}, v{vGS}, s{sT0}')
        a(f'    s_mul_i32 s{sT0}, s{sNODE}, {TS}')
        a(f'    s_add_u32 s{sT0}, s{sT0}, s{sEAB}')
        a(f'    v_add_u32 v{vEAA}, s{sT0}, v{vQ16}')
        a(f'    ds_read_b128 v[{vEA}:{vEA+3}], v{vEAA}')
        a(f'    s_min_u32 s{sT1}, s{sT1}, s{sG1}')
        a(f'    s_sub_u32 s{sLEFT}, s{sT1}, s{sGEND}')
        a(f'    s_sub_u32 s{sLEFT}, s{sLEFT}, 1')
        a(f'    s_mov_b32 s{sGEND}, s{sT1}')

    def set_slot():
        a(f'    s_add_u32 s{sSLOT}, s{sNODE}, s{sWAVE}')
        a(f'    s_lshl_b32 s{sSLOT}, s{sSLOT}, 9')

    def flush():
        a(f'    v_add_u32 v{vACC}, s{sSLOT}, v{vFL}')
        for i in range(4):
            a(f'    v_permlane32_swap_b32 v{vDEN+i}, v{vNUM+i}')
        a(f'    v_pk_add_f32 v[{vDEN}:{vDEN+1}], v[{vDEN}:{vDEN+1}], v[{vNUM}:{vNUM+1}]')
        a(f'    v_pk_add_f32 v[{vDEN+2}:{vDEN+3}], v[{vDEN+2}:{vDEN+3}], v[{vNUM+2}:{vNUM+3}]')
        a('    s_nop 1')
        a(f'    v_permlane16_swap_b32 v{vDEN}, v{vDEN+2}')
        a(f'    v_permlane16_swap_b32 v{vDEN+1}, v{vDEN+3}')
        a(f'    v_pk_add_f32 v[{vNUM}:{vNUM+1}], v[{vDEN}:{vDEN+1}], v[{vDEN+2}:{vDEN+3}]')
        a(f'    ds_write_b64 v{vACC}, v[{vNUM}:{vNUM+1}] offset:{L2_SLOT}')

    def step(k, safe, init):
        d = vDAT + 4*k
        ev = vEV + (k & 1); evn = vEV + ((k+1) & 1)
        pn = vP + 2*((k+1) % U)
        for i in range(4):
            a(f'    v_fma_mix_f32 v{vT+i}, v{ev}, v{vWC+i}, v{d+i} op_sel:[0,0,0] op_sel_hi:[0,0,1]')
        a(f'    ds_read_u16_d16_hi v{evn}, v{vSA} offset:{L2_LIST + 16*(k+1) + 2}')
        a(f'    ds_read_u16 v{pn}, v{vSA} offset:{L2_LIST + 16*(k+1+U)}')
        if init and safe:
            a('    s_waitcnt lgkmcnt(3)')
        if safe:
            a(f'    v_pk_add_f32 v[{vT}:{vT+1}], v[{vT}:{vT+1}], v[{vEA}:{vEA+1}]')
            a(f'    v_pk_add_f32 v[{vT+2}:{vT+3}], v[{vT+2}:{vT+3}], v[{vEA+2}:{vEA+3}]')
        for i in range(4):
            a(f'    v_exp_f32 v{vT+i}, v{vT+i}')
        if init and not safe:
            a('    s_waitcnt lgkmcnt(3)')
        if safe:
            a(f'    v_pk_add_f32 v[{vT}:{vT+1}], v[{vT}:{vT+1}], 1.0 op_sel_hi:[1,0]')
            a(f'    v_pk_add_f32 v[{vT+2}:{vT+3}], v[{vT+2}:{vT+3}], 1.0 op_sel_hi:[1,0]')
        else:
            a(f'    v_pk_fma_f32 v[{vT}:{vT+1}], v[{vEA}:{vEA+1}], v[{vT}:{vT+1}], 1.0 op_sel_hi:[1,1,0]')
            a(f'    v_pk_fma_f32 v[{vT+2}:{vT+3}], v[{vEA+2}:{vEA+3}], v[{vT+2}:{vT+3}], 1.0 op_sel_hi:[1,1,0]')
        if init:
            for i in range(4):
                a(f'    v_rcp_f32 v{vDEN+i}, v{vT+i}')
            a('    s_nop 0')
            a(f'    v_pk_mul_f32 v[{vNUM}:{vNUM+1}], v[{vDEN}:{vDEN+1}], v[{d}:{d+1}]')
            a(f'    v_pk_mul_f32 v[{vNUM+2}:{vNUM+3}], v[{vDEN+2}:{vDEN+3}], v[{d+2}:{d+3}]')
        else:
            for i in range(4):
                a(f'    v_rcp_f32 v{vT+i}, v{vT+i}')
            a(f'    v_pk_add_f32 v[{vDEN}:{vDEN+1}], v[{vDEN}:{vDEN+1}], v[{vT}:{vT+1}]')
            a(f'    v_pk_add_f32 v[{vDEN+2}:{vDEN+3}], v[{vDEN+2}:{vDEN+3}], v[{vT+2}:{vT+3}]')
            a(f'    v_pk_fma_f32 v[{vNUM}:{vNUM+1}], v[{vT}:{vT+1}], v[{d}:{d+1}], v[{vNUM}:{vNUM+1}]')
            a(f'    v_pk_fma_f32 v[{vNUM+2}:{vNUM+3}], v[{vT+2}:{vT+3}], v[{d+2}:{d+3}], v[{vNUM+2}:{vNUM+3}]')
        tload(k)
        if k == U-1:
            a(f'    v_add_u32 v{vSA}, {16*U}, v{vSA}')

    def loopback(pfx):
        if PRIO:
            a(f'    s_sub_u32 s{sPR}, s{sPR}, 1')
            a(f'    s_cmp_lg_u32 s{sPR}, 0')
            a(f'    s_cbranch_scc1 {pfx}_STEP0')
            a(f'    s_branch {pfx}_PRIO')
        else:
            a(f'    s_branch {pfx}_STEP0')

    for pfx, safe in (('K2F', False), ('K2S', True)):
        a.label(f'{pfx}_ENTER')
        next_node()
        set_slot()
        a('    s_waitcnt vmcnt(3) lgkmcnt(0)')
        dstamp(a, 2)
        step(0, safe, True)
        a(f'    s_branch {pfx}_STEP1')
        for k in range(U):
            a.label(f'{pfx}_STEP{k}')
            a(f'    s_waitcnt vmcnt({U-1}) lgkmcnt(0)')
            a(f'    s_sub_u32 s{sLEFT}, s{sLEFT}, 1')
            a(f'    s_cbranch_scc1 {pfx}_FLUSH{k}')
            step(k, safe, False)
            if k == U-1:
                loopback(pfx)
        for k in range(U):
            a.label(f'{pfx}_FLUSH{k}')
            a(f'    s_cmp_ge_u32 s{sGEND}, s{sG1}')
            a(f'    s_cbranch_scc1 K2_LAST')
            next_node()
            flush()
            set_slot()
            step(k, safe, True)
            if k == U-1:
                loopback(pfx)
            else:
                a(f'    s_branch {pfx}_STEP{k+1}')
        if PRIO:
            a.label(f'{pfx}_PRIO')
            a(f'    s_sub_u32 s{sLVL}, s{sLVL}, 1')
            a(f'    s_cmp_eq_u32 s{sLVL}, 2')
            a(f'    s_cbranch_scc1 {pfx}_PRIO2')
            a(f'    s_cmp_eq_u32 s{sLVL}, 1')
            a(f'    s_cbranch_scc1 {pfx}_PRIO1')
            a(f'    s_mov_b32 s{sPR}, 0x7fffffff')
            a('    s_setprio 0')
            a(f'    s_branch {pfx}_STEP0')
            a.label(f'{pfx}_PRIO2')
            a(f'    s_mov_b32 s{sPR}, s{sPQ}')
            a('    s_setprio 2')
            a(f'    s_branch {pfx}_STEP0')
            a.label(f'{pfx}_PRIO1')
            a(f'    s_mov_b32 s{sPR}, s{sPQ2}')
            a('    s_setprio 1')
            a(f'    s_branch {pfx}_STEP0')
    a.label('K2_LAST')
    dstamp(a, 3)
    flush()
    a.label('K2_MAIN_DONE')
    if PRIO: a('    s_setprio 0')
    a(f'    s_cmp_eq_u32 s{sPASS}, 0')
    a('    s_cbranch_scc0 K2_NOUST')
    a(f'    s_cmp_eq_u32 s{sMODE}, 1')
    a('    s_cbranch_scc1 K2_NOUST')
    a(f'    s_cmp_lt_u32 s{sWAVE}, 12')
    a('    s_cbranch_scc0 K2_NOUST')
    a(f'    ds_write_b128 v{vUA}, v[{vU}:{vU+3}] offset:{L2_UT-L2_EAT}')
    a.label('K2_NOUST')
    a(f'    s_cmp_eq_u32 s{sMODE}, 2')
    a('    s_cbranch_scc0 K2_NOABORT')
    a(f'    s_mov_b32 s{sMODE}, 1')
    a(f'    s_mov_b32 s{sPASS}, 0')
    a('    s_waitcnt vmcnt(0) lgkmcnt(0)')
    a('    s_barrier')
    a('    s_branch K2_PASS')
    a.label('K2_NOABORT')
    a('    s_waitcnt lgkmcnt(0)')
    stamp(a, 6)
    a('    s_barrier')
    S0 = 76; S1 = 84; UU = 92; XX = 104
    a(f'    s_mov_b64 exec, s[{sM}:{sM+1}]')
    a(f'    ds_read_b128 v[{S0}:{S0+3}], v{vFS} offset:{L2_SLOT}')
    a(f'    ds_read_b128 v[{S0+4}:{S0+7}], v{vFS} offset:{L2_SLOT+256}')
    a(f'    s_mov_b64 exec, s[{sM+2}:{sM+3}]')
    a(f'    ds_read_b128 v[{S1}:{S1+3}], v{vFS} offset:{L2_SLOT+512}')
    a(f'    ds_read_b128 v[{S1+4}:{S1+7}], v{vFS} offset:{L2_SLOT+512+256}')
    a('    s_mov_b64 exec, -1')
    a(f'    ds_read_b128 v[{UU}:{UU+3}], v{vUTA}')
    a(f'    ds_read_b64 v[{XX}:{XX+1}], v{vXTA}')
    a(f'    s_mov_b64 exec, s[{sM}:{sM+1}]')
    a('    s_waitcnt lgkmcnt(4)')
    for b, acc in ((S0, vDA), (S0+2, vDA+2), (S0+4, vNA), (S0+6, vNA+2)):
        a(f'    v_pk_add_f32 v[{acc}:{acc+1}], v[{acc}:{acc+1}], v[{b}:{b+1}]')
    a(f'    s_mov_b64 exec, s[{sM+2}:{sM+3}]')
    a('    s_waitcnt lgkmcnt(2)')
    for b, acc in ((S1, vDA), (S1+2, vDA+2), (S1+4, vNA), (S1+6, vNA+2)):
        a(f'    v_pk_add_f32 v[{acc}:{acc+1}], v[{acc}:{acc+1}], v[{b}:{b+1}]')
    a('    s_mov_b64 exec, -1')
    a(f'    s_cmp_eq_u64 s[{sM+4}:{sM+5}], 0')
    a('    s_cbranch_scc1 K2_FOLD_END')
    a(f'    v_add_u32 v{vFS}, 1024, v{vFS}')
    a(f'    v_add_u32 v{vFC}, -2, v{vFC}')
    a.label('K2_FOLD')
    masked(a, f'v_cmp_lt_i32 vcc, 0, v{vFC}', sEX, 'K2_FOLD_DONE')
    a(f'    ds_read_b128 v[{S0}:{S0+3}], v{vFS} offset:{L2_SLOT}')
    a(f'    ds_read_b128 v[{S0+4}:{S0+7}], v{vFS} offset:{L2_SLOT+256}')
    a(f'    v_add_u32 v{vFS}, 512, v{vFS}')
    a(f'    v_add_u32 v{vFC}, -1, v{vFC}')
    a('    s_waitcnt lgkmcnt(0)')
    for b, acc in ((S0, vDA), (S0+2, vDA+2), (S0+4, vNA), (S0+6, vNA+2)):
        a(f'    v_pk_add_f32 v[{acc}:{acc+1}], v[{acc}:{acc+1}], v[{b}:{b+1}]')
    unmask(a, sEX)
    a('    s_branch K2_FOLD')
    unmask(a, sEX, 'K2_FOLD_DONE')
    a.label('K2_FOLD_END')
    a(f'    s_cmp_eq_u32 s{sMODE}, 0')
    a('    s_cbranch_scc1 K2_EPI')
    a(f'    s_add_u32 s{sPASS}, s{sPASS}, 1')
    a(f'    s_cmp_lt_u32 s{sPASS}, {NC}')
    a('    s_cbranch_scc0 K2_EPI')
    a('    s_waitcnt vmcnt(0) lgkmcnt(0)')
    a('    s_barrier                               ; slots consumed before the next pass')
    a('    s_branch K2_PASS')
    a.label('K2_EPI')
    masked(a, f'v_cmp_gt_u32 vcc, s{sNT}, v0', sEX, 'K2_FIN')
    a(f'    s_mov_b32 s{sT0}, {hex(f2u(1e-6))}')
    for i in range(4):
        a(f'    v_add_f32 v{vDA+i}, s{sT0}, v{vDA+i}')
    for i in range(4):
        a(f'    v_rcp_f32 v{vDA+i}, v{vDA+i}')
    a('    s_waitcnt lgkmcnt(0)')
    a(f'    v_lshlrev_b32 v{vT}, 16, v{XX}')
    a(f'    v_and_b32 v{vT+1}, 0xffff0000, v{XX}')
    a(f'    v_lshlrev_b32 v{vT+2}, 16, v{XX+1}')
    a(f'    v_and_b32 v{vT+3}, 0xffff0000, v{XX+1}')
    for i in range(4):
        a(f'    v_fma_f32 v{vNA+i}, v{vNA+i}, v{vDA+i}, v{UU+i}    ; z = U + agg')
    for i in range(4):
        a(f'    v_cmp_lt_f32 s[{sM+2*i}:{sM+2*i+1}], 0, v{vNA+i}')
    for i in range(4):
        a(f'    v_mul_f32 v{vDEN+i}, 0, v{vNA+i}                     ; 0*z')
    for i in range(4):
        a(f'    v_cndmask_b32 v{vNA+i}, v{vDEN+i}, v{vNA+i}, s[{sM+2*i}:{sM+2*i+1}]')
    for i in range(4):
        a(f'    v_add_f32 v{vNA+i}, v{vNA+i}, v{vT+i}')
    a(f'    s_lshl_b32 s{sT1}, s{sN0}, 7')
    a(f'    v_lshlrev_b32 v{vA+1}, 3, v0')
    a(f'    v_cvt_pk_bf16_f32 v{vDEN}, v{vNA}, v{vNA+1}')
    a(f'    v_cvt_pk_bf16_f32 v{vDEN+1}, v{vNA+2}, v{vNA+3}')
    a(f'    buffer_store_dwordx2 v[{vDEN}:{vDEN+1}], v{vA+1}, s[{SRD_OUT}:{SRD_OUT+3}], s{sT1} offen {OUTST}')
    a.label('K2_FIN')
    if STAMP:
        a('    s_mov_b64 exec, -1')
        a('    s_waitcnt vmcnt(0)')
    stamp(a, 7); stamp(a, 1, True)
    stamp_flush(a, sWAVE, sB, 1, 6)
    a.label('K2_END')
    a('    s_endpgm')
    a.label('CODE_END')

def gen_k3(a):
    i, j = [int(x) for x in env('INTERVAL', '0,0').split(',')]
    inv = {0: True, 2: True}
    a('.globl k3_kernel')
    a('.p2align 8')
    a('.type k3_kernel,@function')
    a.label('k3_kernel')
    a('    s_cmp_ge_u32 s2, 1')
    a('    s_cbranch_scc1 K3_END')
    a('    s_load_dwordx2 s[4:5], s[0:1], 80')
    a('    s_waitcnt lgkmcnt(0)')
    a('    v_mov_b32 v1, 0')
    a(f'    global_load_dword v2, v1, s[4:5] offset:{4*i} sc1')
    a(f'    global_load_dword v3, v1, s[4:5] offset:{4*j} sc1')
    a('    s_waitcnt vmcnt(0)')
    if inv.get(i): a('    v_not_b32 v2, v2')
    if inv.get(j): a('    v_not_b32 v3, v3')
    a('    v_sub_u32 v3, v3, v2')
    a('    s_nop 1')
    a('    v_readfirstlane_b32 s8, v3')
    a('    s_nop 3')
    a('    s_mul_i32 s8, s8, 10')
    a('    s_min_u32 s8, s8, 50000')
    a('    s_memrealtime s[10:11]')
    a('    s_waitcnt lgkmcnt(0)')
    a.label('K3_SPIN')
    a('    s_memrealtime s[12:13]')
    a('    s_waitcnt lgkmcnt(0)')
    a('    s_sub_u32 s9, s12, s10')
    a('    s_cmp_lt_u32 s9, s8')
    a('    s_cbranch_scc1 K3_SPIN')
    a.label('K3_END')
    a('    s_endpgm')

def kd(a, name, vgpr, sgpr):
    a(f'.amdhsa_kernel {name}')
    a(f'  .amdhsa_next_free_vgpr {vgpr}')
    a(f'  .amdhsa_next_free_sgpr {sgpr}')
    a(f'  .amdhsa_accum_offset {((vgpr+3)//4)*4}')
    a('  .amdhsa_group_segment_fixed_size 0')
    a('  .amdhsa_kernarg_size 96')
    a('  .amdhsa_user_sgpr_count 2')
    a('  .amdhsa_user_sgpr_kernarg_segment_ptr 1')
    a('  .amdhsa_system_sgpr_workgroup_id_x 1')
    a('  .amdhsa_float_denorm_mode_32 3')
    a('.end_amdhsa_kernel')

def main(out):
    a = Asm()
    a(f'; @launch kernel=k1_kernel grid=({K1_GRID},1,1) block=(1024,1,1) lds={K1_LDS}')
    a(f'; @launch kernel=k2_kernel grid=({NB},1,1) block=(1024,1,1) lds={K2_LDS}')
    if STAMP == 4: a('; @launch kernel=k3_kernel grid=(1,1,1) block=(64,1,1) lds=0')
    a('.amdgcn_target "amdgcn-amd-amdhsa--gfx950"')
    a('.text')
    a('.globl k1_kernel')
    gen_k1(a)
    a('.globl k2_kernel')
    gen_k2(a)
    if STAMP == 4: gen_k3(a)
    a('.section .rodata,"a"')
    a('.p2align 6')
    kd(a, 'k1_kernel', 96, 102 if STAMP else 72)
    a('.p2align 6')
    kd(a, 'k2_kernel', 128, 102 if STAMP else 80)
    if STAMP == 4:
        a('.p2align 6')
        kd(a, 'k3_kernel', 8, 32)
    a.l = [x for x in a.l if x is not None]
    open(out, 'w').write(a.text())

if __name__ == '__main__':
    main(sys.argv[1] if len(sys.argv) > 1 else 'standalone__edge_featured_mpnn_gatedgcn__graph.s')
```

```python
import sys, os, struct
def env(n, d): return os.environ.get(n, d)

N = 10000; E = 640000
NPB = 40; NB = 256; EPC = 2500; NC = 256
TPC = EPC//4
BMAGIC = 109951163
LOG2E = 1.4426950408889634
WS_REC  = 0
REC_STRIDE = EPC*5
WS_DESC = 3407872
DESC_STRIDE = 1024
WS_T    = 4194304
T_BYTES = (N+1)*256

STAMP = int(env('STAMP', '0'))
K1ST = env('K1ST', 'sc1')
PRIO = int(env('PRIO', '1'))
TFIRST = int(env('TFIRST', '1'))
XLATE = int(env('XLATE', '1'))
SPANW = int(env('SPANW', '1'))
ELD = env('ELD', '')
RLD = env('RLD', '')
CPF2 = int(env('CPF2', '1'))
DESCE = int(env('DESCE', '1'))
WS_STAMP = 128 << 20
ST0 = 80

def f2u(f): return struct.unpack('<I', struct.pack('<f', f))[0]

class Asm:
    def __init__(self): self.l = []
    def __call__(self, s=''):
        for line in s.split('\n'): self.l.append(line)
    def label(self, n): self.l.append(n + ':')
    def text(self): return '\n'.join(self.l) + '\n'

DETAIL = int(env('DETAIL', '0'))
def dstamp(a, i):
    if DETAIL: stamp(a, i, False, True)
def stamp(a, i, real=False, force=False):
    if DETAIL and not force and not real and getattr(a, 'k2', False) and i in (1, 2, 3): return
    if STAMP:
        r = ST0 + 2*(8+i if real else i)
        a(f"    {'s_memrealtime' if (real or STAMP >= 3) else 's_memtime'} s[{r}:{r+1}]")
def stamp_flush(a, wave_sgpr, wg_sgpr, kern, ws_lo):
    if not STAMP: return
    a('    s_waitcnt lgkmcnt(0)')
    a('    s_mov_b64 exec, 1')
    a('    v_mov_b32 v2, 0')
    if STAMP == 4:
        lab = f'STSKIP{kern}_{len(a.l)}'
        a(f"    s_and_b32 s14, s{wg_sgpr}, {31 if kern == 0 else int(env('SAMP2', '31'))}")
        a('    s_cmp_eq_u32 s14, 0')
        a(f'    s_cbranch_scc0 {lab}')
        a(f'    s_cmp_eq_u32 s{wave_sgpr}, 0')
        a(f'    s_cbranch_scc0 {lab}')
        a('    s_load_dwordx2 s[12:13], s[0:1], 80')
        a('    s_waitcnt lgkmcnt(0)')
        a(f'    s_add_u32 s12, s12, {1024 if kern == 0 else 512}')
        a('    s_addc_u32 s13, s13, 0')
        slots = [(0, 8, True), (1, 9, False), (7, 4, False), (8, 2, False)] if kern == 0 else \
                [(2, 8, True), (3, 4, False), (4, 5, False), (5, 6, False), (6, 9, False), (9, 2, False)]
        for slot, st, inv in slots:
            a(f'    v_mov_b32 v3, s{ST0+2*st}')
            if inv: a('    v_not_b32 v3, v3')
            a(f'    global_atomic_umax v2, v3, s[12:13] offset:{4*slot}')
        a('    s_waitcnt vmcnt(0)')
        a.label(lab)
        return
    a(f'    s_add_u32 s12, s{ws_lo}, {WS_STAMP + kern*(4<<20)}')
    a(f'    s_addc_u32 s13, s{ws_lo+1}, 0')
    a(f'    s_mov_b32 s14, {4<<20}')
    a('    s_mov_b32 s15, 0x00020000')
    a(f'    s_lshl_b32 s16, s{wg_sgpr}, 4')
    a(f'    s_add_u32 s16, s16, s{wave_sgpr}')
    a(f'    s_lshl_b32 s16, s16, 6')
    for i in range(8):
        a(f'    v_mov_b32 v3, s{ST0+2*i}')
        a(f'    buffer_store_dword v3, v2, s[12:15], s16 offen offset:{4*i}')
    for i in range(2):
        a(f'    v_mov_b32 v3, s{ST0+2*(8+i)}')
        a(f'    buffer_store_dword v3, v2, s[12:15], s16 offen offset:{4*(10+i)}')
    a('    s_waitcnt vmcnt(0)')

def srd(a, sreg, lo, hi, nbytes, off=0, stride=0, nrec=None):
    if off:
        a(f'    s_add_u32 s{sreg}, s{lo}, {off}')
        a(f'    s_addc_u32 s{sreg+1}, s{hi}, 0')
    else:
        a(f'    s_mov_b32 s{sreg}, s{lo}')
        a(f'    s_mov_b32 s{sreg+1}, s{hi}')
    if stride:
        a(f'    s_and_b32 s{sreg+1}, s{sreg+1}, 0xffff')
        a(f'    s_or_b32 s{sreg+1}, s{sreg+1}, {stride << 16}')
        a(f'    s_mov_b32 s{sreg+2}, {nrec}')
    else:
        a(f'    s_mov_b32 s{sreg+2}, {nbytes}')
    a(f'    s_mov_b32 s{sreg+3}, 0x00020000')

def dpp_scan(a, v):
    for sh in (1, 2, 4, 8):
        a('    s_nop 1')
        a(f'    v_add_u32_dpp v{v}, v{v}, v{v} row_shr:{sh} row_mask:0xf bank_mask:0xf')
    a('    s_nop 1')
    a(f'    v_add_u32_dpp v{v}, v{v}, v{v} row_bcast:15 row_mask:0xa bank_mask:0xf')
    a('    s_nop 1')
    a(f'    v_add_u32_dpp v{v}, v{v}, v{v} row_bcast:31 row_mask:0xc bank_mask:0xf')

def masked(a, cond, exreg, skip=None):
    a(f'    {cond}')
    a(f'    s_and_saveexec_b64 s[{exreg}:{exreg+1}], vcc')
    if skip: a(f'    s_cbranch_execz {skip}')
def unmask(a, exreg, skip=None):
    if skip: a.label(skip)
    a(f'    s_mov_b64 exec, s[{exreg}:{exreg+1}]')

def lds_sync(a, name, off, n, vzero, vone, vt, st):
    a('    s_waitcnt lgkmcnt(0)')
    a('    s_mov_b64 exec, 1')
    a(f'    ds_add_u32 v{vzero}, v{vone} offset:{off}')
    a('    s_mov_b64 exec, -1')
    a.label(name)
    a(f'    ds_read_b32 v{vt}, v{vzero} offset:{off}')
    a('    s_waitcnt lgkmcnt(0)')
    a(f'    v_readfirstlane_b32 s{st}, v{vt}')
    a(f'    s_cmp_lt_u32 s{st}, {n}')
    a(f'    s_cbranch_scc1 {name}')

K1_GRID = NC
L1_HIST = 0; L1_START = 1024; L1_SYNC = 2048
L1_ST32 = 2304; L1_ST8 = L1_ST32 + 2560*4; L1_W = 15360
K1_LDS = L1_W + 16384
K1PF = int(env('K1PF', '0'))
CPF = int(env('CPF', '1'))
XMAP = int(env('XMAP', '1'))
DESCT = int(env('DESCT', '1'))
DESCST = env('DESCST', '')
OUTST = env('OUTST', '')
RECST = env('RECST', K1ST)
TST = env('TST', K1ST)
TFIRST = int(env('TFIRST', '1'))
XLATE = int(env('XLATE', '1'))
SPANW = int(env('SPANW', '1'))
ELD = env('ELD', '')
RLD = env('RLD', '')
CPF2 = int(env('CPF2', '1'))
DESCE = int(env('DESCE', '1'))

def gen_k1(a):
    a('.p2align 8')
    a('.type k1_kernel,@function')
    a.label('k1_kernel')
    a(f'    s_cmp_ge_u32 s2, {K1_GRID}')
    a('    s_cbranch_scc1 K1_END')
    stamp(a, 0); stamp(a, 0, True)
    if CPF:
        a('    s_getpc_b64 s[30:31]')
        a.label('K1_PC')
        a('    v_lshlrev_b32 v90, 7, v0')
        lim = 'CODE_END-K1_PC' if CPF >= 2 else 'k2_kernel-K1_PC'
        a(f'    v_cmp_gt_u32 vcc, {lim}, v90')
        a('    s_and_saveexec_b64 s[28:29], vcc')
        a('    s_cbranch_execz K1_NOCPF')
        a('    global_load_dword v91, v90, s[30:31]')
        a.label('K1_NOCPF')
        a('    s_mov_b64 exec, s[28:29]')
    if XMAP:
        a('    s_and_b32 s20, s2, 7')
        a('    s_lshr_b32 s21, s2, 3')
        a('    s_lshl_b32 s20, s20, 5')
        a('    s_add_u32 s2, s20, s21')
    a('    v_lshrrev_b32 v1, 6, v0')
    a('    s_load_dwordx4 s[8:11], s[0:1], 16')
    a('    v_readfirstlane_b32 s20, v1')
    a('    s_load_dwordx2 s[4:5], s[0:1], 8      ; e_attr')
    a('    s_load_dwordx2 s[6:7], s[0:1], 88     ; ws')
    a('    v_and_b32 v2, 63, v0                   ; lane')
    if TFIRST:
        a('    s_cmp_lt_u32 s20, 6')
        a('    s_cbranch_scc1 K1_TABLE')
        a('    v_subrev_u32 v0, 384, v0')
        a('    s_sub_u32 s20, s20, 6')
    else:
        a('    s_cmp_ge_u32 s20, 10')
        a('    s_cbranch_scc1 K1_TABLE')
    a('    v_mov_b32 v5, 0')
    a('    v_lshlrev_b32 v6, 2, v0               ; t*4')
    masked(a, 'v_cmp_gt_u32 vcc, 256, v0', 30)
    a(f'    ds_write_b32 v6, v5 offset:{L1_HIST}')
    unmask(a, 30)
    a('    v_lshlrev_b32 v3, 4, v0               ; t*16')
    a('    v_lshlrev_b32 v4, 3, v0               ; t*8')
    a(f'    s_mul_i32 s21, s2, {EPC*4}')
    a(f'    s_mul_i32 s22, s2, {EPC*2}')
    a(f'    s_mov_b32 s23, {BMAGIC}')
    a(f'    v_mov_b32 v19, {TPC}')
    a('    v_cmp_gt_u32 s[46:47], v19, v0')
    a('    s_waitcnt lgkmcnt(0)')
    srd(a, 12, 10, 11, E*4)
    a('    buffer_load_dwordx4 v[8:11], v3, s[12:15], s21 offen ' + ELD)
    srd(a, 16, 8, 9, E*4)
    a('    buffer_load_dwordx4 v[12:15], v3, s[16:19], s21 offen ' + ELD)
    srd(a, 24, 4, 5, E*2)
    a('    buffer_load_dwordx2 v[16:17], v4, s[24:27], s22 offen ' + ELD)
    srd(a, 32, 6, 7, NC*REC_STRIDE, off=WS_REC)
    srd(a, 36, 6, 7, NB*DESC_STRIDE, off=WS_DESC)
    a('    v_lshlrev_b32 v6, 4, v2                ; lane*16')
    a('    v_mul_u32_u24 v7, 20, v0')
    a('    v_lshlrev_b32 v18, 12, v2')
    a(f'    s_mul_i32 s25, s2, {REC_STRIDE}')
    a('    s_lshl_b32 s26, s2, 2')
    a('    s_mov_b32 s40, 0x06050400')
    a('    s_mov_b32 s41, 0x05040003')
    a('    s_mov_b32 s42, 0x03020500')
    a('    s_mov_b32 s43, 0x04000302')
    a('    s_mov_b32 s44, 0x03060100')
    a('    s_mov_b32 s45, 0x07030201')
    stamp(a, 1)
    a('    s_barrier')
    a('    v_mov_b32 v5, 1')
    a('    v_mov_b32 v19, 0')
    a('    s_waitcnt vmcnt(2)')
    stamp(a, 2)
    for k in range(4):
        a(f'    v_mul_hi_u32 v{20+k}, s23, v{8+k}        ; bucket')
    for k in range(4):
        a(f'    v_lshlrev_b32 v{24+k}, 2, v{20+k}       ; bucket*4')
    a('    s_mov_b64 exec, s[46:47]')
    for k in range(4):
        a(f'    ds_add_rtn_u32 v{28+k}, v{24+k}, v5 offset:{L1_HIST}')
    a('    s_mov_b64 exec, -1')
    a('    s_movk_i32 s27, 625')
    for k in range(4):
        a(f'    v_mad_u32_u24 v{20+k}, v{20+k}, s27, 15')
    for k in range(4):
        a(f'    v_lshrrev_b32 v{20+k}, 4, v{20+k}')
    for k in range(4):
        a(f'    v_sub_u32 v{20+k}, v{8+k}, v{20+k}')
    for k in range(4):
        a(f'    v_lshlrev_b32 v{20+k}, 2, v{20+k}')
    a('    s_waitcnt vmcnt(0)')
    a('    v_lshl_or_b32 v32, v16, 16, v12')
    a('    s_mov_b32 s24, 0xffff0000')
    a('    v_and_or_b32 v33, v16, s24, v13')
    a('    v_lshl_or_b32 v34, v17, 16, v14')
    a('    v_and_or_b32 v35, v17, s24, v15')
    a('    s_waitcnt lgkmcnt(0)')
    stamp(a, 3)
    lds_sync(a, 'K1_SYNC2', L1_SYNC+4, 10, 19, 5, 25+40, 27)
    stamp(a, 4)
    a(f'    ds_read_b128 v[40:43], v6 offset:{L1_HIST}')
    a('    s_waitcnt lgkmcnt(0)')
    a('    v_add_u32 v44, v40, v41                ; h0+h1')
    a('    v_add_u32 v45, v44, v42')
    a('    v_add_u32 v46, v45, v43                ; sum4')
    a('    v_mov_b32 v47, v46')
    dpp_scan(a, 47)
    a('    v_sub_u32 v48, v47, v46')
    a('    v_add_u32 v49, v48, v40')
    a('    v_add_u32 v50, v48, v44')
    a('    v_add_u32 v51, v48, v45')
    a(f'    ds_write_b128 v6, v[48:51] offset:{L1_START}')
    a('    s_waitcnt lgkmcnt(0)')
    for k in range(4):
        a(f'    ds_read_b32 v{56+k}, v{24+k} offset:{L1_START}')
    for k in range(4):
        a(f'    v_lshl_or_b32 v{52+k}, v{40+k}, 16, v{48+k}')
    if DESCT and DESCE:
        for k in range(4):
            a(f'    s_cmp_eq_u32 s20, {k}')
            a(f'    s_cbranch_scc0 K1_DE{k}')
            a(f'    buffer_store_dword v{52+k}, v18, s[36:39], s26 offen offset:{1024*k} {DESCST}')
            a.label(f'K1_DE{k}')
    a('    s_waitcnt lgkmcnt(0)')
    for k in range(4):
        a(f'    v_add_u32 v{56+k}, v{56+k}, v{28+k}      ; position')
    a('    s_mov_b64 exec, s[46:47]')
    for k in range(4):
        a(f'    ds_write_b8 v{56+k}, v{20+k} offset:{L1_ST8}')
        a(f'    v_lshlrev_b32 v{60+k}, 2, v{56+k}')
    for k in range(4):
        a(f'    ds_write_b32 v{60+k}, v{32+k} offset:{L1_ST32}')
    a('    s_mov_b64 exec, -1')
    a('    s_waitcnt lgkmcnt(0)')
    stamp(a, 5)
    lds_sync(a, 'K1_SYNC3', L1_SYNC+8, 10, 19, 5, 25+40, 27)
    a(f'    ds_read_b128 v[8:11], v3 offset:{L1_ST32}')
    a('    v_lshrrev_b32 v4, 2, v3                ; t*4')
    a(f'    ds_read_b32 v12, v4 offset:{L1_ST8}')
    a('    s_waitcnt lgkmcnt(0)')
    a('    v_perm_b32 v21, v9, v12, s40           ; d1 = L0 r1.b0 r1.b1 r1.b2')
    a('    v_perm_b32 v22, v10, v9, s41           ; r1.b3 . r2.b0 r2.b1')
    a('    v_perm_b32 v23, v11, v10, s43          ; r2.b2 r2.b3 . r3.b0')
    a('    v_mov_b32 v20, v8')
    a('    v_perm_b32 v22, v12, v22, s42          ; d2 : insert L1')
    a('    v_perm_b32 v23, v12, v23, s44          ; d3 : insert L2')
    a('    v_perm_b32 v24, v12, v11, s45          ; d4 = r3.b1 r3.b2 r3.b3 L3')
    a('    s_mov_b64 exec, s[46:47]')
    a(f'    buffer_store_dwordx4 v[20:23], v7, s[32:35], s25 offen {RECST}')
    a(f'    buffer_store_dword v24, v7, s[32:35], s25 offen offset:16 {RECST}')
    a('    s_mov_b64 exec, -1')
    a('    s_cmp_eq_u32 s20, 0')
    a('    s_cbranch_scc0 K1_SFIN')
    if DESCT and DESCE:
        pass
    elif DESCT:
        for k in range(4):
            a(f'    buffer_store_dword v{52+k}, v18, s[36:39], s26 offen offset:{1024*k} {DESCST}')
    else:
        a('    s_lshl_b32 s26, s2, 10')
        a(f'    buffer_store_dwordx4 v[52:55], v6, s[36:39], s26 offen {DESCST}')
    a.label('K1_SFIN')
    if STAMP:
        stamp(a, 6)
        a('    s_waitcnt vmcnt(0)')
        stamp(a, 7); stamp(a, 1, True)
        stamp_flush(a, 20, 2, 0, 6)
    a('    s_endpgm')
    a.label('K1_TABLE')
    a('    s_load_dwordx2 s[40:41], s[0:1], 40   ; w_b')
    a('    s_load_dwordx2 s[42:43], s[0:1], 64   ; w_v')
    a('    s_load_dwordx2 s[44:45], s[0:1], 0    ; x')
    if K1PF:
        a('    s_load_dwordx2 s[60:61], s[0:1], 32   ; w_a')
        a('    s_load_dwordx4 s[64:67], s[0:1], 48   ; w_c, w_u')
        a('    s_load_dwordx2 s[62:63], s[0:1], 72   ; out')
    a('    s_mov_b32 s21, s20                     ; tw' if TFIRST else '    s_sub_u32 s21, s20, 10                 ; tw')
    a('    v_mov_b32 v5, 0')
    a('    v_lshlrev_b32 v6, 2, v2')
    a('    s_cmp_eq_u32 s21, 0')
    a('    s_cbranch_scc0 K1_T_NOZ')
    masked(a, 'v_cmp_gt_u32 vcc, 4, v2', 30)
    a(f'    ds_write_b32 v6, v5 offset:{L1_SYNC}')
    unmask(a, 30)
    a.label('K1_T_NOZ')
    a('    s_lshr_b32 s22, s21, 1')
    a('    s_lshl_b32 s22, s22, 4                 ; 16*rt')
    a('    v_and_b32 v4, 15, v2')
    a('    v_add_u32 v4, s22, v4')
    a('    v_lshrrev_b32 v5, 4, v2                ; g')
    a('    v_lshlrev_b32 v6, 7, v4')
    a('    v_lshl_add_u32 v6, v5, 4, v6')
    a('    s_mul_i32 s58, s2, 625')
    a('    s_add_u32 s59, s58, 640                ; 625*(c+1) + 15')
    a('    s_add_u32 s58, s58, 15')
    a('    s_lshr_b32 s58, s58, 4')
    a('    s_lshr_b32 s59, s59, 4')
    a('    s_sub_u32 s59, s59, s58')
    a('    s_lshl_b32 s24, s58, 7')
    a('    v_lshlrev_b32 v7, 4, v2                ; lane*16')
    a('    v_bfe_u32 v8, v2, 4, 1')
    a('    v_lshlrev_b32 v8, 1, v8')
    a('    v_and_b32 v9, 7, v2')
    a('    v_xor_b32 v8, v8, v9')
    a('    v_lshrrev_b32 v9, 3, v2')
    a('    v_lshlrev_b32 v9, 7, v9                ; (lane>>3)*128')
    a('    s_waitcnt lgkmcnt(0)')
    for i in range(3):
        a(f'    s_add_u32 s26, s21, {6*i}              ; p')
        a('    s_cmp_lt_u32 s26, 8')
        a('    s_cselect_b32 s48, s40, s42')
        a('    s_cselect_b32 s49, s41, s43')
        a('    s_mov_b32 s50, 8192')
        a('    s_mov_b32 s51, 0x00020000')
        a('    s_and_b32 s27, s26, 7')
        a('    s_lshl_b32 s27, s27, 10')
        a('    s_cmp_lt_u32 s26, 16')
        a(f'    s_cselect_b32 s27, s27, {1<<20}')
        a(f'    buffer_load_dwordx4 v[{48+4*i}:{51+4*i}], v7, s[48:51], s27 offen')
    if XLATE: a('    s_barrier')
    srd(a, 36, 44, 45, N*128)
    a('    buffer_load_dwordx4 v[24:27], v6, s[36:39], s24 offen')
    a('    buffer_load_dwordx4 v[28:31], v6, s[36:39], s24 offen offset:64')
    if K1PF:
        a('    s_cmp_eq_u32 s21, 5')
        a('    s_cbranch_scc0 K1_T_NOPF')
        a('    v_lshlrev_b32 v60, 8, v2')
        a('    v_lshlrev_b32 v61, 7, v2')
        a('    global_load_dword v62, v61, s[60:61]')
        a('    global_load_dword v62, v61, s[66:67]')
        a('    v_mov_b32 v63, 0')
        a('    global_load_dword v62, v63, s[64:65]')
        a('    s_lshl_b32 s26, s58, 7')
        a('    v_mov_b32 v63, s26')
        a('    global_load_dword v62, v63, s[62:63]')
        srd(a, 52, 6, 7, WS_T + T_BYTES, off=0)
        a(f'    s_mul_i32 s26, s2, {REC_STRIDE}')
        a('    v_mov_b32 v63, s26')
        a('    buffer_load_dword v62, v63, s[52:55], 0 offen')
        a('    s_lshl_b32 s26, s58, 8')
        a(f'    s_add_u32 s26, s26, {WS_T}')
        a('    v_mov_b32 v63, s26')
        a('    buffer_load_dword v62, v63, s[52:55], 0 offen')
        a(f'    s_lshl_b32 s26, s2, 2')
        a(f'    s_add_u32 s26, s26, {WS_DESC}')
        a('    v_mov_b32 v63, s26')
        a('    buffer_load_dword v62, v63, s[52:55], 0 offen')
        a.label('K1_T_NOPF')
    if not XLATE: a('    s_barrier')
    if K1PF: a.label('K1_T_PFJOIN0')
    srd(a, 44, 6, 7, T_BYTES, off=WS_T)
    for i in range(3):
        a(f'    s_add_u32 s26, s21, {6*i}              ; p')
        a('    s_and_b32 s27, s26, 1')
        a('    s_lshl_b32 s27, s27, 2')
        a(f'    v_xor_b32 v{18+i}, s27, v8')
        a(f'    v_lshl_add_u32 v{18+i}, v{18+i}, 4, v9')
        a('    s_lshl_b32 s27, s26, 10                ; m*8192 + (p&7)*1024 = p*1024')
        a(f'    v_add_u32 v{18+i}, s27, v{18+i}')
    a('    s_and_b32 s23, s21, 1                  ; half')
    a('    v_bfe_u32 v12, v2, 2, 2                ; r')
    a('    v_lshl_add_u32 v13, v5, 3, v12         ; rho')
    a('    v_lshlrev_b32 v13, 7, v13')
    a('    v_and_b32 v14, 1, v2')
    a('    v_lshl_add_u32 v13, v14, 3, v13        ; + (c&1)*8')
    a('    v_bfe_u32 v14, v2, 1, 1                ; c>>1')
    a('    v_lshrrev_b32 v12, 1, v12')
    a('    v_and_b32 v15, 1, v5                   ; g&1')
    a('    v_lshlrev_b32 v15, 1, v15')
    a('    v_or_b32 v12, v12, v15                 ; swz/2')
    a('    s_lshl_b32 s25, s23, 1')
    a('    v_xor_b32 v15, s25, v12')
    a('    v_lshl_or_b32 v15, v15, 1, v14')
    a('    v_lshl_add_u32 v16, v15, 4, v13')
    a('    s_add_u32 s25, s25, 1')
    a('    v_xor_b32 v15, s25, v12')
    a('    v_lshl_or_b32 v15, v15, 1, v14')
    a('    v_lshl_add_u32 v17, v15, 4, v13')
    a('    v_lshlrev_b32 v21, 8, v4')
    a('    v_lshl_add_u32 v21, v5, 4, v21')
    a('    s_lshl_b32 s25, s23, 7')
    a('    s_lshl_b32 s26, s58, 8')
    a('    s_add_u32 s25, s25, s26')
    a('    v_add_u32 v21, s25, v21')
    a('    v_cmp_gt_u32 vcc, s59, v4')
    a(f'    v_mov_b32 v22, {1<<30}')
    a(f'    s_mov_b32 s27, {hex(f2u(-LOG2E))}')
    a('    s_mov_b32 s28, 0xffff0000')
    a('    v_cndmask_b32 v9, v22, v21, vcc')
    a('    s_mov_b32 s29, 0x80000000')
    a('    v_mov_b32 v10, 0')
    a('    v_mov_b32 v11, 1')
    if K1PF:
        a('    s_cmp_eq_u32 s21, 5')
        a('    s_cbranch_scc0 K1_T_W2')
        a('    s_waitcnt vmcnt(9)')
        a('    s_branch K1_T_W9')
        a.label('K1_T_W2')
    a('    s_waitcnt vmcnt(2)')
    if K1PF: a.label('K1_T_W9')
    stamp(a, 1)
    for i in range(3):
        if i == 2:
            a('    s_cmp_lt_u32 s21, 4')
            a('    s_cbranch_scc0 K1_T_ST2')
        a(f'    ds_write_b128 v{18+i}, v[{48+4*i}:{51+4*i}] offset:{L1_W}')
    a.label('K1_T_ST2')
    lds_sync(a, 'K1_T_SPIN', L1_SYNC, 6, 10, 11, 12, 26)
    stamp(a, 3)
    order = [(jj, ks, m) for jj in range(2) for ks in range(2) for m in range(2)]
    for i, (jj, ks, m) in enumerate(order):
        b = 64 + 4*i
        off = L1_W + m*8192 + ks*32*128
        a(f'    ds_read_b64_tr_b16 v[{b}:{b+1}], v{16+jj} offset:{off}')
        a(f'    ds_read_b64_tr_b16 v[{b+2}:{b+3}], v{16+jj} offset:{off+512}')
    if K1PF:
        a('    s_cmp_eq_u32 s21, 5')
        a('    s_cbranch_scc0 K1_T_X0')
        a('    s_waitcnt vmcnt(7)')
        a('    s_branch K1_T_XOK')
        a.label('K1_T_X0')
    a('    s_waitcnt vmcnt(0)')
    if K1PF: a.label('K1_T_XOK')
    for i, (jj, ks, m) in enumerate(order):
        b = 64 + 4*i
        a(f'    s_waitcnt lgkmcnt({min(15, 2*(7-i))})')
        acc = 32 + 8*m + 4*jj
        x = 24 + 4*ks
        c = '0' if ks == 0 else f'v[{acc}:{acc+3}]'
        a(f'    v_mfma_f32_16x16x32_bf16 v[{acc}:{acc+3}], v[{b}:{b+3}], v[{x}:{x+3}], {c}')
    stamp(a, 4)
    a('    s_nop 4')
    for jj in range(2):
        R = range(4)
        p = lambda r: 32 + 4*jj + r
        q = lambda r: 40 + 4*jj + r
        t = lambda r: 10 + r
        if jj == 1: a('    s_nop 2')
        for r in R: a(f'    v_mul_f32 v{p(r)}, s27, v{p(r)}')
        for r in R: a(f'    v_cvt_f16_f32 v{p(r)}, v{p(r)}')
        for r in R: a(f'    v_and_b32 v{t(r)}, 0x7fffffff, v{q(r)}')
        for r in R: a(f'    v_and_b32 v{p(r)}, 0xffff, v{p(r)}')
        for r in R: a(f'    v_sub_u32 v{t(r)}, v{t(r)}, v{p(r)}')
        for r in R: a(f'    v_add_u32 v{t(r)}, 0x8000, v{t(r)}')
        for r in R: a(f'    v_max_i32 v{t(r)}, 0, v{t(r)}')
        for r in R: a(f'    v_and_or_b32 v{t(r)}, v{t(r)}, s28, v{p(r)}')
        for r in R: a(f'    v_and_or_b32 v{p(r)}, v{q(r)}, s29, v{t(r)}')
        a(f'    buffer_store_dwordx4 v[{32+4*jj}:{35+4*jj}], v9, s[44:47], 0 offen offset:{jj*64} {TST}')
    a('    s_cmp_eq_u32 s2, 0')
    a('    s_cbranch_scc0 K1_TFIN')
    a('    s_cmp_eq_u32 s21, 0')
    a('    s_cbranch_scc0 K1_TFIN')
    a('    v_mov_b32 v10, 0x7c00')
    a(f'    v_lshlrev_b32 v11, 2, v2')
    a(f'    v_add_u32 v11, {N*256}, v11')
    a(f'    buffer_store_dword v10, v11, s[44:47], 0 offen {TST}')
    a.label('K1_TFIN')
    stamp(a, 5)
    if STAMP:
        stamp(a, 6)
        a('    s_waitcnt vmcnt(0)')
        stamp(a, 7); stamp(a, 1, True)
        if STAMP >= 3:
            a('    s_waitcnt lgkmcnt(0)')
            a(f'    s_mov_b32 s{ST0+4}, s{ST0+16}')
        else: stamp(a, 2)
        if TFIRST: a('    s_add_u32 s20, s20, 10')
        stamp_flush(a, 20, 2, 0, 6)
    a.label('K1_END')
    a('    s_endpgm')

CAP = 4096
TS = 272
L2_CNT = 0; L2_FLG = 256
L2_LIST = 512
L2_SLOT = L2_LIST + CAP*4
L2_EAT = L2_SLOT + 56*512; L2_UT = L2_EAT + 48*TS
XS = 144
L2_XT = L2_UT + 48*TS
L2_W = L2_XT + 48*XS
K2_LDS = L2_W + 16384
U = 4
TPF = int(env('TPF', '1'))
PFPOS = int(env('PFPOS', '1'))
PGT = int(env('PGT', '0'))
ASTAGE = int(env('ASTAGE', '1'))
G0N = int(env('G0N', '1'))
PFS = [int(x) for x in env('PFS', '6,6,6,6,8,8').split(',')]
PFW = int(env('PFW', '4'))
PFE = int(env('PFE', '0'))
PFL = int(env('PFL', '640'))
PFN = int(env('PFN', '40'))
PRT = [int(x) for x in env('PRT', '4,4,4').split(',')]

def gen_k2(a):
    a.k2 = True
    sB = 2; sWAVE = 3
    SRD_DESC = 12; SRD_REC = 16; SRD_T = 20; SRD_W = 24; SRD_X = 28; SRD_OUT = 32; SRD_WC = 36
    sMODE = 40; sPASS = 41
    sG0 = 42; sG1 = 43; sGEND = 44; sLEFT = 45; sNODE = 46; sT0 = 47; sT1 = 48; sSAFE = 49; sGT = 50; sR = 51
    sEX = 52; sEAB = 54; sPR = 55; sPQ = 56; sLVL = 57; sSLOT = 58; sNR = 59; sPQ2 = 60; sN0 = 62; sNN = 63; sNT = 61; sJ = 58
    sM = 64
    vLANE = 1
    vWC = 4; vEA = 8; vDEN = 12; vNUM = 16; vT = 20; vDAT = 24; vP = 40; vEV = 48
    vSA = 50; vACC = 51; vEAA = 52; vGS = 53; vQ16 = 54; vNG = 55
    vDA = 56; vNA = 60
    vX = 64
    vFL = 66
    vGE = 67
    vXO = 68
    vR = 76
    vB = 84
    vRK = 92
    vLA = 100
    vA = 108
    vCNT = 118; vRO = 119; vI = 120; vRM = 121; vTRA = 122; vXRA = 123; vROW = 121; vPFA = 51
    vLC = 12
    vPF = 16
    vXO2 = vXO
    SRD_LOC = 8; SRD_PF = 24
    vW = 24; vOP = 24; vAC = 40
    vOP2 = 76; vAC2 = 92
    vFS = 101; vFC = 102; vUTA = 103; vXTA = 106
    vOP3 = 24; vAC3 = 20; vAK = 20
    vU = 96; vUA = 100

    pf_state = {'next': 0}
    def pf(i):
        if not (TPF and PFPOS == 4) or PFS[i] == 0: return 0
        n = PFS[i]; st = pf_state['next']; pf_state['next'] += n
        assert pf_state['next'] <= 40
        base, off = (sJ, st*128) if st*128 < 4096 else (9, st*128 - 4096)
        a(f'    s_mov_b64 exec, {hex((1 << n) - 1)}')
        a(f'    buffer_load_dword v{vPF}, v{vPFA}, s[36:39], s{base} offen offset:{off}')
        a('    s_mov_b64 exec, -1')
        return 1
    npf = lambda *idx: sum(1 for i in idx if TPF and PFPOS == 4 and PFS[i] > 0)
    a('.p2align 8')
    a('.type k2_kernel,@function')
    a.label('k2_kernel')
    a(f'    s_cmp_ge_u32 s2, {NB}')
    a('    s_cbranch_scc1 K2_END')
    stamp(a, 0); stamp(a, 0, True)
    if CPF and CPF2:
        a('    s_getpc_b64 s[30:31]')
        a.label('K2_PC')
        a('    v_lshlrev_b32 v124, 7, v0')
        a('    v_cmp_gt_u32 vcc, CODE_END-K2_PC, v124')
        a('    s_and_saveexec_b64 s[28:29], vcc')
        a('    s_cbranch_execz K2_NOCPF')
        a('    global_load_dword v125, v124, s[30:31]')
        a.label('K2_NOCPF')
        a('    s_mov_b64 exec, s[28:29]')
    a(f'    s_lshr_b32 s{sJ}, s2, 3')
    if XMAP:
        a(f'    s_and_b32 s{sT0}, s2, 7')
        a(f'    s_lshl_b32 s{sT0}, s{sT0}, 5')
        a(f'    s_add_u32 s2, s{sT0}, s{sJ}')
    a(f'    s_mul_i32 s{sN0}, s2, 625')
    a(f'    s_add_u32 s{sNN}, s{sN0}, 640')
    a(f'    s_add_u32 s{sN0}, s{sN0}, 15')
    a(f'    s_lshr_b32 s{sN0}, s{sN0}, 4')
    a(f'    s_lshr_b32 s{sNN}, s{sNN}, 4')
    a(f'    s_sub_u32 s{sNN}, s{sNN}, s{sN0}')
    a('    s_load_dwordx2 s[6:7], s[0:1], 88      ; ws')
    a('    s_load_dwordx2 s[4:5], s[0:1], 0       ; x')
    a('    s_load_dwordx2 s[8:9], s[0:1], 32      ; w_a')
    a('    s_load_dwordx4 s[76:79], s[0:1], 48    ; w_c, w_u')
    a('    s_load_dwordx2 s[10:11], s[0:1], 72    ; out')
    a(f'    v_and_b32 v{vLANE}, 63, v0')
    a(f'    v_lshrrev_b32 v{vA}, 6, v0')
    a(f'    v_and_b32 v{vQ16}, 15, v0')
    a(f'    v_readfirstlane_b32 s{sWAVE}, v{vA}')
    a(f'    v_lshlrev_b32 v{vQ16}, 4, v{vQ16}      ; q*16')
    if DESCT:
        a(f'    v_and_b32 v{vA}, 0x3fc, v0             ; (t>>2)*4')
        a(f'    s_lshl_b32 s{sT0}, s{sB}, 10')
    else:
        a(f'    v_lshrrev_b32 v{vA}, 2, v0')
        a(f'    v_lshlrev_b32 v{vA}, 10, v{vA}')
        a(f'    s_lshl_b32 s{sT0}, s{sB}, 2')
    for i in range(4):
        a(f'    v_mov_b32 v{vDA+i}, 0')
        a(f'    v_mov_b32 v{vNA+i}, 0')
    masked(a, 'v_cmp_gt_u32 vcc, 4, v0', sEX)
    a(f'    v_lshlrev_b32 v{vA+5}, 2, v0')
    a(f'    ds_write_b32 v{vA+5}, v{vDA} offset:{L2_FLG}')
    unmask(a, sEX)
    a(f'    s_mov_b32 s{sMODE}, 0')
    a(f'    s_mov_b32 s{sPASS}, 0')
    a(f'    v_mov_b32 v{vEV}, 0')
    a(f'    v_mov_b32 v{vEV+1}, 0')
    for k in range(U):
        a(f'    v_mov_b32 v{vP+2*k}, {N}')
        a(f'    v_mov_b32 v{vP+2*k+1}, v{vQ16}')
    a(f'    v_lshrrev_b32 v{vA+1}, 5, v{vLANE}')
    a(f'    v_lshl_add_u32 v{vFL}, v{vA+1}, 8, v{vQ16}')
    a(f'    v_bfe_u32 v{vA+1}, v{vLANE}, 4, 1')
    a(f'    v_lshl_add_u32 v{vFL}, v{vA+1}, 3, v{vFL}')
    a.label('K2_PASS')
    for i in range(4):
        a(f'    v_mov_b32 v{vA+6+i}, {N}')
    a(f'    v_lshlrev_b32 v{vA+5}, 4, v0')
    a(f'    ds_write_b128 v{vA+5}, v[{vA+6}:{vA+9}] offset:{L2_LIST}')
    masked(a, 'v_cmp_gt_u32 vcc, 64, v0', sEX)
    a(f'    v_lshlrev_b32 v{vA+4}, 2, v0')
    a(f'    v_mov_b32 v{vA+3}, 0')
    a(f'    ds_write_b32 v{vA+4}, v{vA+3} offset:{L2_CNT}')
    unmask(a, sEX)
    a(f'    s_cmp_eq_u32 s{sMODE}, 0')
    a('    s_cbranch_scc0 K2_SLOWPARAM')
    a('    s_waitcnt lgkmcnt(0)')
    srd(a, SRD_DESC, 6, 7, NB*DESC_STRIDE, off=WS_DESC)
    a(f'    buffer_load_dword v{vCNT}, v{vA}, s[{SRD_DESC}:{SRD_DESC+3}], s{sT0} offen')
    a(f'    s_cmp_lt_u32 s{sWAVE}, 8')
    a(f'    s_cselect_b32 s{SRD_W}, s8, s78')
    a(f'    s_cselect_b32 s{SRD_W+1}, s9, s79')
    a(f'    s_mov_b32 s{SRD_W+2}, 8192')
    a(f'    s_mov_b32 s{SRD_W+3}, 0x00020000')
    srd(a, SRD_X, 4, 5, N*128)
    srd(a, SRD_WC, 76, 77, 128)
    a(f'    v_and_b32 v{vA+1}, 511, v0')
    a(f'    v_lshlrev_b32 v{vA+1}, 4, v{vA+1}')
    a(f'    buffer_load_dwordx4 v[{vW}:{vW+3}], v{vA+1}, s[{SRD_W}:{SRD_W+3}], 0 offen')
    a(f'    v_lshlrev_b32 v{vA+4}, 4, v0')
    a(f'    v_cmp_gt_u32 vcc, 384, v0')
    a(f'    v_mov_b32 v{vA+3}, {1<<30}')
    a(f'    s_lshl_b32 s{sT1}, s{sN0}, 7')
    a(f'    v_cndmask_b32 v{vA+4}, v{vA+3}, v{vA+4}, vcc')
    a(f'    buffer_load_dwordx4 v[{vXO}:{vXO+3}], v{vA+4}, s[{SRD_X}:{SRD_X+3}], s{sT1} offen')
    a(f'    v_lshrrev_b32 v{vA+7}, 1, v{vQ16}      ; q*8 (wc)')
    a(f'    buffer_load_dwordx2 v[{vWC}:{vWC+1}], v{vA+7}, s[{SRD_WC}:{SRD_WC+3}], 0 offen')
    if TPF and PFPOS == 4:
        srd(a, 36, 6, 7, T_BYTES, off=WS_T)
        a(f'    s_mul_i32 s{sJ}, s{sJ}, {640*128}')
        a(f'    s_mul_i32 s9, s{sWAVE}, {40*128}')
        a(f'    s_add_u32 s{sJ}, s{sJ}, s9')
        a(f'    s_add_u32 s9, s{sJ}, 4096')
        a(f'    v_lshlrev_b32 v{vPFA}, 7, v{vLANE}')
        pf(0)
    if PFE:
        srd(a, SRD_REC, 6, 7, T_BYTES, off=WS_T)
        a(f'    s_mul_i32 s{sT0}, s{sJ}, {640*128}')
        a(f'    s_mul_i32 s{sT1}, s{sWAVE}, {40*128}')
        a(f'    s_add_u32 s{sT0}, s{sT0}, s{sT1}')
        a(f'    s_add_u32 s{sT0}, s{sT0}, {PFN*128}')
        a(f'    v_lshlrev_b32 v{vPF+1}, 7, v{vLANE}')
        a(f'    v_cmp_gt_u32 vcc, {PFE}, v{vLANE}')
        a(f'    v_mov_b32 v{vPF+2}, {1<<30}')
        a('    s_nop 0')
        a(f'    v_cndmask_b32 v{vPF+1}, v{vPF+2}, v{vPF+1}, vcc')
        a(f'    buffer_load_dword v{vPF+1}, v{vPF+1}, s[{SRD_REC}:{SRD_REC+3}], s{sT0} offen')
    if PGT:
        srd(a, SRD_REC, 6, 7, WS_T + T_BYTES, off=0)
        a(f'    v_lshlrev_b32 v{vPF+1}, 21, v{vLANE}')
        a(f'    buffer_load_dword v{vPF+1}, v{vPF+1}, s[{SRD_REC}:{SRD_REC+3}], 0 offen')
    if not ASTAGE: a('    s_barrier')
    srd(a, SRD_OUT, 10, 11, N*128)
    srd(a, SRD_REC, 6, 7, NC*REC_STRIDE + 64, off=WS_REC)
    srd(a, SRD_T, 6, 7, 0, off=WS_T, stride=256, nrec=N+1)
    a(f'    v_lshrrev_b32 v{vA}, 2, v0             ; c')
    a(f'    v_mul_u32_u24 v{vRO}, {REC_STRIDE}, v{vA}')
    a(f'    v_and_b32 v{vI}, 3, v0')
    a(f'    v_lshlrev_b32 v{vI}, 2, v{vI}')
    a(f'    v_mad_u32_u24 v{vRO}, v{vI}, 5, v{vRO}')
    a(f'    s_mov_b32 s{sT1}, 16')
    a(f'    s_waitcnt vmcnt({3+PGT+(1 if PFE else 0)+npf(0)})                      ; descriptor')
    stamp(a, 1)
    a(f'    v_and_b32 v{vA+1}, 0xffff, v{vCNT}      ; start')
    a(f'    v_lshrrev_b32 v{vCNT}, 16, v{vCNT}      ; cnt')
    a(f'    v_mad_u32_u24 v{vRO}, v{vA+1}, 5, v{vRO}')
    a('    s_branch K2_PARAMDONE')
    a.label('K2_SLOWPARAM')
    a(f'    s_lshl_b32 s{sT0}, s{sB}, {10 if DESCT else 2}')
    a(f'    s_lshl_b32 s{sT1}, s{sPASS}, {2 if DESCT else 10}')
    a(f'    s_add_u32 s{sT0}, s{sT0}, s{sT1}')
    a(f'    v_mov_b32 v{vA}, 0')
    a(f'    buffer_load_dword v{vCNT}, v{vA}, s[{SRD_DESC}:{SRD_DESC+3}], s{sT0} offen')
    a(f'    s_mul_i32 s{sT0}, s{sPASS}, {REC_STRIDE}')
    a('    s_waitcnt vmcnt(0) lgkmcnt(0)')
    a('    s_barrier')
    a(f'    v_and_b32 v{vA+1}, 0xffff, v{vCNT}')
    a(f'    v_lshlrev_b32 v{vI}, 2, v0')
    a(f'    v_add_u32 v{vA+1}, v{vA+1}, v{vI}')
    a(f'    v_mul_u32_u24 v{vRO}, 5, v{vA+1}')
    a(f'    v_add_u32 v{vRO}, s{sT0}, v{vRO}')
    a(f'    v_lshrrev_b32 v{vCNT}, 16, v{vCNT}')
    a(f'    s_mov_b32 s{sT1}, 4096')
    a.label('K2_PARAMDONE')
    a(f'    v_sub_u32 v{vRM}, v{vCNT}, v{vI}')
    a(f'    s_mul_i32 s{sT0}, s{sT1}, 5')
    a(f'    s_mov_b32 s{sNR}, 0')
    for r in range(2):
        m0 = sM + 8*r
        if r == 1:
            a(f'    v_subrev_u32 v{vRM}, s{sT1}, v{vRM}')
        for h in range(4):
            a(f'    v_cmp_gt_i32 s[{m0+2*h}:{m0+2*h+1}], v{vRM}, {h}' if h else f'    v_cmp_lt_i32 s[{m0}:{m0+1}], 0, v{vRM}')
        a(f'    s_cmp_eq_u64 s[{m0}:{m0+1}], 0')
        a(f'    s_cbranch_scc1 K2_LD_DONE')
        a(f'    s_mov_b64 exec, s[{m0}:{m0+1}]')
        a(f'    buffer_load_dwordx4 v[{vR+4*r}:{vR+4*r+3}], v{vRO}, s[{SRD_REC}:{SRD_REC+3}], 0 offen {RLD}')
        a(f'    buffer_load_dword v{vLC+r}, v{vRO}, s[{SRD_REC}:{SRD_REC+3}], 0 offen offset:16 {RLD}')
        a(f'    s_mov_b64 exec, -1')
        a(f'    s_mov_b32 s{sNR}, {r+1}')
        if r < 1:
            a(f'    v_add_u32 v{vRO}, s{sT0}, v{vRO}')
    a.label('K2_LD_DONE')
    a(f'    s_or_b32 s{sT0}, s{sMODE}, s{sPASS}')
    a(f'    s_cmp_eq_u32 s{sT0}, 0')
    a('    s_cbranch_scc0 K2_LATER_PASS')
    pf(1)
    if TPF and PFPOS == 3:
        a(f'    s_mul_i32 s{sT0}, s{sJ}, {640*128}')
        a(f'    s_mul_i32 s{sT1}, s{sWAVE}, {40*128}')
        a(f'    s_add_u32 s{sT0}, s{sT0}, s{sT1}')
        a(f'    s_add_u32 s{sT0}, s{sT0}, {WS_T}')
        a(f'    s_add_u32 s24, s6, s{sT0}')
        a(f'    s_addc_u32 s25, s7, 0')
        for i in range(PFN):
            a(f'    s_load_dword s26, s[24:25], {128*i}')
    if TPF and PFPOS == 2:
        W0 = 16 - PFW
        per = PFL // PFW
        a(f'    s_cmp_ge_u32 s{sWAVE}, {W0}')
        a('    s_cbranch_scc0 K2_NOPF2')
        srd(a, SRD_PF, 6, 7, T_BYTES, off=WS_T)
        a(f'    s_mul_i32 s{sT0}, s{sJ}, {640*128}')
        a(f'    s_sub_u32 s{sT1}, s{sWAVE}, {W0}')
        a(f'    s_mul_i32 s{sT1}, s{sT1}, {per*128}')
        a(f'    s_add_u32 s{sT0}, s{sT0}, s{sT1}')
        a(f'    v_lshlrev_b32 v{vPFA}, 7, v{vLANE}')
        nin = (per + 63)//64
        for i in range(nin):
            left = per - 64*i
            if left < 64:
                a(f'    v_cmp_gt_u32 vcc, {left}, v{vLANE}')
                a(f'    v_mov_b32 v{vPF+1}, {1<<30}')
                a('    s_nop 0')
                a(f'    v_cndmask_b32 v{vPFA}, v{vPF+1}, v{vPFA}, vcc')
            a(f'    buffer_load_dword v{vPF}, v{vPFA}, s[{SRD_PF}:{SRD_PF+3}], s{sT0} offen')
            if i + 1 < nin: a(f'    s_add_u32 s{sT0}, s{sT0}, 8192')
        a.label('K2_NOPF2')
    a(f'    v_lshrrev_b32 v{vA+8}, 3, v0')
    a(f'    v_mul_u32_u24 v{vA+8}, {XS}, v{vA+8}')
    a(f'    v_and_b32 v{vA+7}, 7, v0')
    a(f'    v_lshl_add_u32 v{vA+8}, v{vA+7}, 4, v{vA+8}')
    a(f'    v_add_u32 v{vA+8}, {L2_XT}, v{vA+8}')
    NPF = 1 if TPF else 0
    a(f'    v_bfe_u32 v{vA+1}, v0, 4, 1')
    a(f'    v_bfe_u32 v{vA+2}, v0, 6, 1')
    a(f'    v_lshlrev_b32 v{vA+1}, 1, v{vA+1}')
    a(f'    v_lshl_or_b32 v{vA+1}, v{vA+2}, 2, v{vA+1}')
    a(f'    v_and_b32 v{vA+2}, 7, v0')
    a(f'    v_xor_b32 v{vA+1}, v{vA+1}, v{vA+2}')
    a(f'    v_lshrrev_b32 v{vA+2}, 3, v0')
    a(f'    v_lshlrev_b32 v{vA+2}, 7, v{vA+2}')
    a(f'    v_lshl_add_u32 v{vA+9}, v{vA+1}, 4, v{vA+2}')
    a(f'    v_add_u32 v{vA+9}, {L2_W}, v{vA+9}')
    a(f'    v_lshrrev_b32 v{vA+3}, 4, v{vLANE}     ; g')
    a(f'    v_bfe_u32 v{vA}, v{vLANE}, 2, 2        ; r')
    a(f'    v_lshl_add_u32 v{vA+1}, v{vA+3}, 3, v{vA}')
    a(f'    v_lshlrev_b32 v{vA+1}, 7, v{vA+1}')
    a(f'    v_and_b32 v{vA+2}, 1, v{vLANE}')
    a(f'    v_lshl_add_u32 v{vA+1}, v{vA+2}, 3, v{vA+1}')
    a(f'    v_lshrrev_b32 v{vA}, 1, v{vA}')
    a(f'    v_and_b32 v{vA+2}, 1, v{vA+3}')
    a(f'    v_lshl_or_b32 v{vA}, v{vA+2}, 1, v{vA}     ; swz/2')
    a(f'    s_and_b32 s{sT0}, s{sWAVE}, 3')
    a(f'    v_xor_b32 v{vA}, s{sT0}, v{vA}')
    a(f'    v_bfe_u32 v{vA+2}, v{vLANE}, 1, 1')
    a(f'    v_lshl_or_b32 v{vA}, v{vA}, 1, v{vA+2}')
    a(f'    v_lshl_add_u32 v{vTRA}, v{vA}, 4, v{vA+1}')
    a(f'    v_add_u32 v{vTRA}, {L2_W}, v{vTRA}')
    a(f'    s_lshr_b32 s{sT1}, s{sWAVE}, 2')
    a(f'    s_lshl_b32 s{sT1}, s{sT1}, 4')
    a(f'    v_and_b32 v{vA+2}, 15, v{vLANE}')
    a(f'    v_add_u32 v{vROW}, s{sT1}, v{vA+2}     ; row')
    a(f'    v_mul_u32_u24 v{vA+1}, {XS}, v{vROW}')
    a(f'    v_lshl_add_u32 v{vA+1}, v{vA+3}, 4, v{vA+1}')
    a(f'    v_add_u32 v{vXRA}, {L2_XT}, v{vA+1}')
    a(f'    v_mul_u32_u24 v{vA+4}, {TS}, v{vROW}')
    a(f'    v_lshl_add_u32 v{vA+4}, v{vA+3}, 4, v{vA+4}')
    a(f'    s_lshl_b32 s{sT0}, s{sT0}, 6')
    a(f'    s_add_u32 s{sT0}, s{sT0}, {L2_EAT}')
    a(f'    v_add_u32 v{vEAA}, s{sT0}, v{vA+4}')
    if TPF and PFPOS < 2:
        srd(a, SRD_PF, 6, 7, T_BYTES, off=WS_T)
        a(f'    s_mul_i32 s{sT0}, s{sJ}, {640*128}')
        a(f'    s_mul_i32 s{sT1}, s{sWAVE}, {40*128}')
        a(f'    s_add_u32 s{sJ}, s{sT0}, s{sT1}')
        a(f'    v_lshlrev_b32 v{vA+3}, 7, v{vLANE}')
        a(f'    v_cmp_gt_u32 vcc, {PFN}, v{vLANE}')
        a(f'    v_mov_b32 v{vA+4}, {1<<30}')
        a('    s_nop 0')
        a(f'    v_cndmask_b32 v{vPFA}, v{vA+4}, v{vA+3}, vcc')
    if ASTAGE:
        a(f'    s_cmp_eq_u32 s{sNR}, 2')
        a('    s_cbranch_scc1 K2_WW4')
        a(f'    s_cmp_eq_u32 s{sNR}, 1')
        a('    s_cbranch_scc1 K2_WW2')
        a(f'    s_waitcnt vmcnt({npf(1)})')
        a('    s_branch K2_WWD')
        a.label('K2_WW4')
        a(f'    s_waitcnt vmcnt({4+npf(1)})')
        a('    s_branch K2_WWD')
        a.label('K2_WW2')
        a(f'    s_waitcnt vmcnt({2+npf(1)})')
        a.label('K2_WWD')
        a(f'    ds_write_b128 v{vA+9}, v[{vW}:{vW+3}]')
        a(f'    s_cmp_lt_u32 s{sWAVE}, 6')
        a('    s_cbranch_scc0 K2_NOXST0')
        a(f'    ds_write_b128 v{vA+8}, v[{vXO}:{vXO+3}]')
        a.label('K2_NOXST0')
        a('    s_waitcnt lgkmcnt(0)')
        a('    s_barrier')
        pf(2)
        a(f'    s_cmp_lt_u32 s{sWAVE}, 12')
        a('    s_cbranch_scc0 K2_NOMFMA0')
        a(f'    ds_read_b128 v[{vXO}:{vXO+3}], v{vXRA}')
        a(f'    ds_read_b64_tr_b16 v[{vOP3}:{vOP3+1}], v{vTRA}')
        a(f'    ds_read_b64_tr_b16 v[{vOP3+2}:{vOP3+3}], v{vTRA} offset:{0+512}')
        a(f'    ds_read_b128 v[{vXO+4}:{vXO+7}], v{vXRA} offset:64')
        a(f'    ds_read_b64_tr_b16 v[{vOP3+4}:{vOP3+5}], v{vTRA} offset:{0+4096}')
        a(f'    ds_read_b64_tr_b16 v[{vOP3+6}:{vOP3+7}], v{vTRA} offset:{0+4096+512}')
        a(f'    s_mov_b32 s{sT0}, {hex(f2u(-LOG2E))}')
        a(f'    s_mov_b32 s{sT1}, {hex(f2u(60.0))}')
        a('    s_waitcnt lgkmcnt(3)')
        a(f'    v_mfma_f32_16x16x32_bf16 v[{vAC3}:{vAC3+3}], v[{vOP3}:{vOP3+3}], v[{vXO}:{vXO+3}], 0')
        a('    s_waitcnt lgkmcnt(0)')
        a(f'    v_mfma_f32_16x16x32_bf16 v[{vAC3}:{vAC3+3}], v[{vOP3+4}:{vOP3+7}], v[{vXO+4}:{vXO+7}], v[{vAC3}:{vAC3+3}]')
        a('    s_nop 7')
        for i in range(4):
            a(f'    v_mul_f32 v{vAC3+i}, s{sT0}, v{vAC3+i}')
        for i in range(4):
            a(f'    v_exp_f32 v{vOP3+i}, v{vAC3+i}')
        a(f'    v_max3_f32 v{vA+5}, |v{vAC3}|, |v{vAC3+1}|, |v{vAC3+2}|')
        a(f'    v_max_f32 v{vA+5}, v{vA+5}, |v{vAC3+3}|')
        a(f'    ds_write_b128 v{vEAA}, v[{vOP3}:{vOP3+3}]')
        a(f'    v_cmp_nle_f32 vcc, v{vA+5}, s{sT1}')
        a(f'    v_cmp_gt_u32 s[{sEX}:{sEX+1}], s{sNN}, v{vROW}')
        a(f'    s_and_b64 vcc, vcc, s[{sEX}:{sEX+1}]')
        a(f'    s_and_saveexec_b64 s[{sEX}:{sEX+1}], vcc')
        a('    s_cbranch_execz K2_GUARD_OK0')
        a(f'    v_mov_b32 v{vA+5}, 1')
        a(f'    v_mov_b32 v{vA+7}, 0')
        a(f'    ds_write_b32 v{vA+7}, v{vA+5} offset:{L2_FLG+4}')
        unmask(a, sEX, 'K2_GUARD_OK0')
        a.label('K2_NOMFMA0')
        pf(3)
        if TPF and PFPOS == 4:
            a(f'    v_mov_b32 v{vA+2}, 1')
            a(f'    s_waitcnt vmcnt({npf(1,2,3)})')
            pf(4)
            a('    s_branch K2_RANKS')
    if TPF and PFPOS == 2:
        a(f'    v_mov_b32 v{vA+2}, 1')
        a(f'    s_cmp_ge_u32 s{sWAVE}, {16 - PFW}')
        a('    s_cbranch_scc0 K2_LATER_PASS')
        a(f'    s_waitcnt vmcnt({(PFL // PFW + 63)//64})')
        a('    s_branch K2_RANKS')
    a.label('K2_LATER_PASS')
    a(f'    v_mov_b32 v{vA+2}, 1')
    a('    s_waitcnt vmcnt(0)')
    if TPF and PFPOS == 1:
        a(f'    s_or_b32 s{sT0}, s{sMODE}, s{sPASS}')
        a(f'    s_cmp_eq_u32 s{sT0}, 0')
        a('    s_cbranch_scc0 K2_RANKS')
        a(f'    buffer_load_dword v{vPF}, v{vPFA}, s[{SRD_PF}:{SRD_PF+3}], s{sJ} offen')
    a.label('K2_RANKS')
    stamp(a, 2)
    for r in range(2):
        a(f'    s_cmp_le_u32 s{sNR}, {r}')
        a('    s_cbranch_scc1 K2_RK_DONE')
        d = vR + 4*r
        a(f'    v_and_b32 v{vLA+4*r}, 0xff, v{d+1}')
        a(f'    v_bfe_u32 v{vLA+4*r+1}, v{d+2}, 8, 8')
        a(f'    v_bfe_u32 v{vLA+4*r+2}, v{d+3}, 16, 8')
        a(f'    v_lshrrev_b32 v{vLA+4*r+3}, 24, v{vLC+r}')
        for h in range(4):
            k = 4*r + h
            a(f'    s_mov_b64 exec, s[{sM+2*k}:{sM+2*k+1}]')
            a(f'    ds_add_rtn_u32 v{vRK+k}, v{vLA+k}, v{vA+2} offset:{L2_CNT}')
        a('    s_mov_b64 exec, -1')
        a(f'    v_alignbyte_b32 v{d+1}, v{d+2}, v{d+1}, 1')
        a(f'    v_alignbyte_b32 v{d+2}, v{d+3}, v{d+2}, 2')
        a(f'    v_alignbyte_b32 v{d+3}, v{vLC+r}, v{d+3}, 3')
    a.label('K2_RK_DONE')
    masked(a, f'v_cmp_lt_u32 vcc, 32, v{vCNT}', sEX, 'K2_NOOVF')
    a(f'    v_mov_b32 v{vA+3}, 0')
    a(f'    ds_write_b32 v{vA+3}, v{vA+2} offset:{L2_FLG}')
    unmask(a, sEX, 'K2_NOOVF')
    a(f'    s_or_b32 s{sT0}, s{sMODE}, s{sPASS}')
    a(f'    s_cmp_eq_u32 s{sT0}, 0')
    a('    s_cbranch_scc0 K2_NOWST')
    pf(5)
    if not ASTAGE:
        a(f'    ds_write_b128 v{vA+9}, v[{vW}:{vW+3}]')
        a(f'    s_cmp_lt_u32 s{sWAVE}, 6')
        a('    s_cbranch_scc0 K2_NOXST')
        a(f'    ds_write_b128 v{vA+8}, v[{vXO}:{vXO+3}]')
        a.label('K2_NOXST')
    a(f'    s_mov_b32 s{sT0}, {hex(f2u(-LOG2E))}')
    a(f'    v_and_b32 v{vWC+3}, 0xffff0000, v{vWC+1}')
    a(f'    v_lshlrev_b32 v{vWC+2}, 16, v{vWC+1}')
    a(f'    v_and_b32 v{vWC+1}, 0xffff0000, v{vWC}')
    a(f'    v_lshlrev_b32 v{vWC}, 16, v{vWC}')
    for k in range(4):
        a(f'    v_mul_f32 v{vWC+k}, s{sT0}, v{vWC+k}')
    a.label('K2_NOWST')
    a(f'    v_lshlrev_b32 v{vA+1}, 2, v{vLANE}')
    a(f'    v_mov_b32 v{vA}, 0')
    a('    s_waitcnt lgkmcnt(0)')
    stamp(a, 3)
    a('    s_barrier')
    stamp(a, 4)
    if TPF and PFPOS == 0:
        a(f'    s_or_b32 s{sT0}, s{sMODE}, s{sPASS}')
        a(f'    s_cmp_eq_u32 s{sT0}, 0')
        a('    s_cbranch_scc0 K2_NOPF')
        a(f'    buffer_load_dword v{vPF}, v{vPFA}, s[{SRD_PF}:{SRD_PF+3}], s{sJ} offen')
        a.label('K2_NOPF')
    a(f'    ds_read_b32 v{vNG}, v{vA+1} offset:{L2_CNT}')
    a(f'    ds_read_b32 v{vA+4}, v{vA} offset:{L2_FLG}')
    a('    s_waitcnt lgkmcnt(1)')
    a(f'    v_add_u32 v{vNG}, 3, v{vNG}')
    a(f'    v_lshrrev_b32 v{vNG}, 2, v{vNG}')
    a(f'    v_mov_b32 v{vGE}, v{vNG}')
    dpp_scan(a, vGE)
    a('    s_waitcnt lgkmcnt(0)')
    a(f'    v_readlane_b32 s{sGT}, v{vGE}, {NPB-1}')
    a(f'    v_sub_u32 v{vGS}, v{vGE}, v{vNG}')
    a(f'    v_readfirstlane_b32 s{sT0}, v{vA+4}')
    a(f'    v_lshlrev_b32 v{vA+6}, 4, v{vGS}')
    a(f'    v_cmp_lt_u32 vcc, {NPB}, v{vLANE}')
    a(f'    s_add_u32 s{sR}, s{sGT}, 15')
    a(f'    s_lshr_b32 s{sR}, s{sR}, 4')
    a(f'    v_cndmask_b32 v{vGS}, v{vGS}, -1, vcc')
    a(f'    s_cmp_eq_u32 s{sMODE}, 0')
    a('    s_cbranch_scc0 K2_NOSWITCH')
    a(f'    s_cmp_gt_u32 s{sGT}, {(CAP - 64)//4}')
    a(f'    s_cselect_b32 s{sT1}, 1, 0')
    a(f'    s_or_b32 s{sT0}, s{sT0}, s{sT1}')
    a(f'    s_cmp_eq_u32 s{sT0}, 0')
    a('    s_cbranch_scc1 K2_NOSWITCH')
    a(f'    s_mov_b32 s{sNR}, 0')
    a(f'    s_mov_b32 s{sGT}, 0')
    a(f'    s_mov_b32 s{sR}, 0')
    a(f'    s_mov_b32 s{sMODE}, 2')
    a.label('K2_NOSWITCH')
    for r in range(2):
        a(f'    s_cmp_le_u32 s{sNR}, {r}')
        a('    s_cbranch_scc1 K2_LK_DONE')
        for h in range(4):
            k = 4*r + h
            a(f'    ds_bpermute_b32 v{vB+k}, v{vLA+k}, v{vA+6}')
    a.label('K2_LK_DONE')
    a('    s_waitcnt lgkmcnt(0)')
    for r in range(2):
        a(f'    s_cmp_le_u32 s{sNR}, {r}')
        a('    s_cbranch_scc1 K2_SC_DONE')
        for h in range(4):
            k = 4*r + h
            a(f'    s_mov_b64 exec, s[{sM+2*k}:{sM+2*k+1}]')
            a(f'    v_lshl_add_u32 v{vB+k}, v{vRK+k}, 2, v{vB+k}')
            a(f'    ds_write_b32 v{vB+k}, v{vR+k} offset:{L2_LIST}')
    a.label('K2_SC_DONE')
    a('    s_mov_b64 exec, -1')
    a(f'    s_mul_i32 s{sG0}, s{sR}, s{sWAVE}')
    a(f'    s_add_u32 s{sG1}, s{sG0}, s{sR}')
    a(f'    s_min_u32 s{sG1}, s{sG1}, s{sGT}')
    a(f'    v_lshrrev_b32 v{vSA}, 4, v{vLANE}')
    a(f'    v_lshlrev_b32 v{vSA}, 2, v{vSA}         ; slot*4')
    a(f'    s_lshl_b32 s{sT0}, s{sG0}, 4')
    a(f'    v_add_u32 v{vSA}, s{sT0}, v{vSA}')
    a(f'    v_mov_b32 v{vA}, 0')
    a('    s_waitcnt lgkmcnt(0)')
    a('    s_barrier')
    if PRIO: a('    s_setprio 3')
    stamp(a, 5)

    def tload(k):
        d = vDAT + 4*k
        a(f'    buffer_load_dwordx4 v[{d}:{d+3}], v[{vP+2*k}:{vP+2*k+1}], s[{SRD_T}:{SRD_T+3}], 0 idxen offen')

    a(f'    s_cmp_ge_u32 s{sG0}, s{sG1}')
    a('    s_cbranch_scc1 K2_NOGATH')
    for k in range(U):
        a(f'    ds_read_u16 v{vP+2*k}, v{vSA} offset:{L2_LIST + 16*k}')
    a(f'    ds_read_u16_d16_hi v{vEV}, v{vSA} offset:{L2_LIST + 2}')
    a('    s_waitcnt lgkmcnt(0)')
    for k in range(G0N):
        tload(k)
    a(f'    ds_read_u16 v{vP}, v{vSA} offset:{L2_LIST + 16*U}')
    a.label('K2_NOGATH')
    a(f'    s_cmp_eq_u32 s{sPASS}, 0')
    a('    s_cbranch_scc0 K2_NOTAB')
    a(f'    s_cmp_eq_u32 s{sMODE}, 1')
    a('    s_cbranch_scc1 K2_NOTAB')
    if not ASTAGE:
        a(f'    s_cmp_lt_u32 s{sWAVE}, 12')
        a('    s_cbranch_scc0 K2_NOMFMA')
        a(f'    ds_read_b128 v[{vXO}:{vXO+3}], v{vXRA}')
        a(f'    ds_read_b64_tr_b16 v[{vOP2}:{vOP2+1}], v{vTRA}')
        a(f'    ds_read_b64_tr_b16 v[{vOP2+2}:{vOP2+3}], v{vTRA} offset:{0+512}')
        a(f'    ds_read_b128 v[{vXO+4}:{vXO+7}], v{vXRA} offset:64')
        a(f'    ds_read_b64_tr_b16 v[{vOP2+4}:{vOP2+5}], v{vTRA} offset:{0+4096}')
        a(f'    ds_read_b64_tr_b16 v[{vOP2+6}:{vOP2+7}], v{vTRA} offset:{0+4096+512}')
        a(f'    s_mov_b32 s{sT0}, {hex(f2u(-LOG2E))}')
        a(f'    s_mov_b32 s{sT1}, {hex(f2u(60.0))}')
        a('    s_waitcnt lgkmcnt(3)')
        a(f'    v_mfma_f32_16x16x32_bf16 v[{vAC2}:{vAC2+3}], v[{vOP2}:{vOP2+3}], v[{vXO}:{vXO+3}], 0')
        a('    s_waitcnt lgkmcnt(0)')
        a(f'    v_mfma_f32_16x16x32_bf16 v[{vAC2}:{vAC2+3}], v[{vOP2+4}:{vOP2+7}], v[{vXO+4}:{vXO+7}], v[{vAC2}:{vAC2+3}]')
        a('    s_nop 7')
        for i in range(4):
            a(f'    v_mul_f32 v{vAC2+i}, s{sT0}, v{vAC2+i}')
        for i in range(4):
            a(f'    v_exp_f32 v{vOP2+i}, v{vAC2+i}')
        a(f'    v_max3_f32 v{vA+5}, |v{vAC2}|, |v{vAC2+1}|, |v{vAC2+2}|')
        a(f'    v_max_f32 v{vA+5}, v{vA+5}, |v{vAC2+3}|')
        a(f'    ds_write_b128 v{vEAA}, v[{vOP2}:{vOP2+3}]')
        a(f'    v_cmp_nle_f32 vcc, v{vA+5}, s{sT1}')
        a(f'    v_cmp_gt_u32 s[{sEX}:{sEX+1}], s{sNN}, v{vROW}')
        a(f'    s_and_b64 vcc, vcc, s[{sEX}:{sEX+1}]')
        a(f'    s_and_saveexec_b64 s[{sEX}:{sEX+1}], vcc')
        a('    s_cbranch_execz K2_GUARD_OK')
        a(f'    v_mov_b32 v{vA+5}, 1')
        a(f'    v_mov_b32 v{vA+7}, 0')
        a(f'    ds_write_b32 v{vA+7}, v{vA+5} offset:{L2_FLG+4}')
        unmask(a, sEX, 'K2_GUARD_OK')
    a.label('K2_NOMFMA')
    if not ASTAGE:
        a(f'    v_mov_b32 v{vA}, 0')
        a('    s_waitcnt lgkmcnt(0)')
        a('    s_barrier')
        a(f'    ds_read_b32 v{vA+5}, v{vA} offset:{L2_FLG+4}')
    else:
        a(f'    v_mov_b32 v{vA}, 0')
        a(f'    ds_read_b32 v{vA+5}, v{vA} offset:{L2_FLG+4}')
    a(f'    s_cmp_ge_u32 s{sG0}, s{sG1}')
    a('    s_cbranch_scc1 K2_NOGATH2')
    for k in range(G0N, U):
        tload(k)
    a.label('K2_NOGATH2')
    a(f'    s_cmp_lt_u32 s{sWAVE}, 12')
    a('    s_cbranch_scc0 K2_NOU')
    a(f'    ds_read_b64_tr_b16 v[{vOP2}:{vOP2+1}], v{vTRA} offset:{0+8192}')
    a(f'    ds_read_b64_tr_b16 v[{vOP2+2}:{vOP2+3}], v{vTRA} offset:{0+8192+512}')
    a(f'    ds_read_b64_tr_b16 v[{vOP2+4}:{vOP2+5}], v{vTRA} offset:{0+8192+4096}')
    a(f'    ds_read_b64_tr_b16 v[{vOP2+6}:{vOP2+7}], v{vTRA} offset:{0+8192+4096+512}')
    a('    s_waitcnt lgkmcnt(2)')
    a(f'    v_mfma_f32_16x16x32_bf16 v[{vU}:{vU+3}], v[{vOP2}:{vOP2+3}], v[{vXO}:{vXO+3}], 0')
    a('    s_waitcnt lgkmcnt(0)')
    a(f'    v_mfma_f32_16x16x32_bf16 v[{vU}:{vU+3}], v[{vOP2+4}:{vOP2+7}], v[{vXO+4}:{vXO+7}], v[{vU}:{vU+3}]')
    a(f'    v_mov_b32 v{vUA}, v{vEAA}')
    a.label('K2_NOU')
    a('    s_waitcnt lgkmcnt(0)')
    a(f'    v_readfirstlane_b32 s{sSAFE}, v{vA+5}')
    a('    s_nop 0')
    a(f'    s_cmp_eq_u32 s{sSAFE}, 0')
    a('    s_cbranch_scc1 K2_WAITW')
    a('    s_barrier')
    a(f'    s_cmp_lt_u32 s{sWAVE}, 12')
    a('    s_cbranch_scc0 K2_SAFE_NOW')
    a(f'    ds_write_b128 v{vEAA}, v[{(vAK if ASTAGE else vAC2)}:{(vAK if ASTAGE else vAC2)+3}]')
    a.label('K2_SAFE_NOW')
    a('    s_waitcnt lgkmcnt(0)')
    a('    s_barrier')
    a.label('K2_WAITW')
    a('    s_branch K2_TABDONE')
    a.label('K2_NOTAB')
    a(f'    s_cmp_ge_u32 s{sG0}, s{sG1}')
    a('    s_cbranch_scc1 K2_TABDONE')
    for k in range(G0N, U):
        tload(k)
    a.label('K2_TABDONE')
    dstamp(a, 1)
    if SPANW:
        a(f'    s_mov_b64 s[{sM}:{sM+1}], 0')
        a(f'    s_mov_b64 s[{sM+2}:{sM+3}], 0')
        a(f'    s_mov_b64 s[{sM+4}:{sM+5}], 0')
        a(f'    s_lshl_b32 s{sNT}, s{sNN}, 4')
        a(f'    s_cmp_lt_u32 s{sWAVE}, 10')
        a('    s_cbranch_scc0 K2_NOSPAN')
    a(f'    v_cvt_f32_u32 v{vA}, s{sR}')
    a(f'    v_cvt_f32_u32 v{vA+1}, v{vGS}')
    a(f'    v_rcp_f32 v{vA}, v{vA}')
    a(f'    v_cvt_f32_u32 v{vA+2}, v{vGE}')
    a(f'    v_add_f32 v{vA+1}, 0.5, v{vA+1}')
    a(f'    v_add_f32 v{vA+2}, -0.5, v{vA+2}')
    a(f'    v_mul_f32 v{vA+1}, v{vA+1}, v{vA}')
    a(f'    v_mul_f32 v{vA+2}, v{vA+2}, v{vA}')
    a(f'    v_cvt_u32_f32 v{vA+1}, v{vA+1}          ; wlo')
    a(f'    v_cvt_u32_f32 v{vA+2}, v{vA+2}          ; whi')
    a(f'    v_sub_u32 v{vA+2}, v{vA+2}, v{vA+1}')
    a(f'    v_add_u32 v{vA+2}, 1, v{vA+2}')
    a(f'    v_cmp_eq_u32 vcc, 0, v{vNG}')
    a(f'    v_add_u32 v{vA+1}, v{vA+1}, v{vLANE}')
    a(f'    v_and_b32 v{vA+1}, 0xffff, v{vA+1}')
    a(f'    v_cndmask_b32 v{vA+2}, v{vA+2}, 0, vcc')
    a(f'    v_lshl_or_b32 v{vA+3}, v{vA+2}, 16, v{vA+1}')
    a(f'    v_lshrrev_b32 v{vA}, 4, v0')
    a(f'    v_and_b32 v{vA+4}, 63, v{vA}')
    a(f'    v_lshlrev_b32 v{vA+4}, 2, v{vA+4}')
    a(f'    ds_bpermute_b32 v{vA+1}, v{vA+4}, v{vA+3}')
    a(f'    v_mul_u32_u24 v{vUTA}, {TS}, v{vA}')
    a(f'    v_mul_u32_u24 v{vXTA}, {XS}, v{vA}')
    a(f'    v_lshrrev_b32 v{vA+7}, 1, v{vQ16}')
    a(f'    v_add_u32 v{vUTA}, v{vUTA}, v{vQ16}')
    a(f'    v_add_u32 v{vXTA}, v{vXTA}, v{vA+7}')
    a(f'    v_add_u32 v{vUTA}, {L2_UT}, v{vUTA}')
    a(f'    v_add_u32 v{vXTA}, {L2_XT}, v{vXTA}')
    a(f'    s_lshl_b32 s{sNT}, s{sNN}, 4')
    a(f'    v_cmp_gt_u32 vcc, s{sNT}, v0')
    a('    s_waitcnt lgkmcnt(0)')
    a(f'    v_lshrrev_b32 v{vFC}, 16, v{vA+1}')
    a(f'    v_and_b32 v{vA+1}, 0xffff, v{vA+1}')
    a(f'    v_cndmask_b32 v{vFC}, 0, v{vFC}, vcc')
    a(f'    v_lshl_add_u32 v{vFS}, v{vA+1}, 9, v{vQ16}')
    a(f'    v_cmp_lt_u32 s[{sM}:{sM+1}], 0, v{vFC}')
    a(f'    v_cmp_lt_u32 s[{sM+2}:{sM+3}], 1, v{vFC}')
    a(f'    v_cmp_lt_u32 s[{sM+4}:{sM+5}], 2, v{vFC}')
    if SPANW: a.label('K2_NOSPAN')
    a(f'    s_cmp_ge_u32 s{sG0}, s{sG1}')
    a('    s_cbranch_scc1 K2_MAIN_DONE')
    if PRIO:
        a(f'    s_add_u32 s{sT0}, s{sR}, 3')
        a(f'    s_lshr_b32 s{sT0}, s{sT0}, 2            ; iterations')
        for n, reg in zip(PRT, (sPR, sPQ, sPQ2)):
            a(f'    s_mul_i32 s{reg}, s{sT0}, {n}')
            a(f'    s_lshr_b32 s{reg}, s{reg}, 4')
            a(f'    s_add_u32 s{reg}, s{reg}, 1')
        a(f'    s_mov_b32 s{sLVL}, 3')
        a('    s_setprio 3')
    a(f'    s_mov_b32 s{sGEND}, s{sG0}')
    a(f'    s_mov_b32 s{sEAB}, {L2_EAT}')
    a(f'    s_cmp_eq_u32 s{sSAFE}, 0')
    a('    s_cbranch_scc0 K2S_ENTER')
    a('    s_branch K2F_ENTER')

    def next_node():
        a(f'    v_cmp_ge_u32 vcc, s{sGEND}, v{vGS}')
        a(f'    s_bcnt1_i32_b64 s{sT0}, vcc')
        a(f'    s_sub_u32 s{sNODE}, s{sT0}, 1')
        a(f'    v_readlane_b32 s{sT1}, v{vGS}, s{sT0}')
        a(f'    s_mul_i32 s{sT0}, s{sNODE}, {TS}')
        a(f'    s_add_u32 s{sT0}, s{sT0}, s{sEAB}')
        a(f'    v_add_u32 v{vEAA}, s{sT0}, v{vQ16}')
        a(f'    ds_read_b128 v[{vEA}:{vEA+3}], v{vEAA}')
        a(f'    s_min_u32 s{sT1}, s{sT1}, s{sG1}')
        a(f'    s_sub_u32 s{sLEFT}, s{sT1}, s{sGEND}')
        a(f'    s_sub_u32 s{sLEFT}, s{sLEFT}, 1')
        a(f'    s_mov_b32 s{sGEND}, s{sT1}')

    def set_slot():
        a(f'    s_add_u32 s{sSLOT}, s{sNODE}, s{sWAVE}')
        a(f'    s_lshl_b32 s{sSLOT}, s{sSLOT}, 9')

    def flush():
        a(f'    v_add_u32 v{vACC}, s{sSLOT}, v{vFL}')
        for i in range(4):
            a(f'    v_permlane32_swap_b32 v{vDEN+i}, v{vNUM+i}')
        a(f'    v_pk_add_f32 v[{vDEN}:{vDEN+1}], v[{vDEN}:{vDEN+1}], v[{vNUM}:{vNUM+1}]')
        a(f'    v_pk_add_f32 v[{vDEN+2}:{vDEN+3}], v[{vDEN+2}:{vDEN+3}], v[{vNUM+2}:{vNUM+3}]')
        a('    s_nop 1')
        a(f'    v_permlane16_swap_b32 v{vDEN}, v{vDEN+2}')
        a(f'    v_permlane16_swap_b32 v{vDEN+1}, v{vDEN+3}')
        a(f'    v_pk_add_f32 v[{vNUM}:{vNUM+1}], v[{vDEN}:{vDEN+1}], v[{vDEN+2}:{vDEN+3}]')
        a(f'    ds_write_b64 v{vACC}, v[{vNUM}:{vNUM+1}] offset:{L2_SLOT}')

    def step(k, safe, init):
        d = vDAT + 4*k
        ev = vEV + (k & 1); evn = vEV + ((k+1) & 1)
        pn = vP + 2*((k+1) % U)
        for i in range(4):
            a(f'    v_fma_mix_f32 v{vT+i}, v{ev}, v{vWC+i}, v{d+i} op_sel:[0,0,0] op_sel_hi:[0,0,1]')
        a(f'    ds_read_u16_d16_hi v{evn}, v{vSA} offset:{L2_LIST + 16*(k+1) + 2}')
        a(f'    ds_read_u16 v{pn}, v{vSA} offset:{L2_LIST + 16*(k+1+U)}')
        if init and safe:
            a('    s_waitcnt lgkmcnt(3)')
        if safe:
            a(f'    v_pk_add_f32 v[{vT}:{vT+1}], v[{vT}:{vT+1}], v[{vEA}:{vEA+1}]')
            a(f'    v_pk_add_f32 v[{vT+2}:{vT+3}], v[{vT+2}:{vT+3}], v[{vEA+2}:{vEA+3}]')
        for i in range(4):
            a(f'    v_exp_f32 v{vT+i}, v{vT+i}')
        if init and not safe:
            a('    s_waitcnt lgkmcnt(3)')
        if safe:
            a(f'    v_pk_add_f32 v[{vT}:{vT+1}], v[{vT}:{vT+1}], 1.0 op_sel_hi:[1,0]')
            a(f'    v_pk_add_f32 v[{vT+2}:{vT+3}], v[{vT+2}:{vT+3}], 1.0 op_sel_hi:[1,0]')
        else:
            a(f'    v_pk_fma_f32 v[{vT}:{vT+1}], v[{vEA}:{vEA+1}], v[{vT}:{vT+1}], 1.0 op_sel_hi:[1,1,0]')
            a(f'    v_pk_fma_f32 v[{vT+2}:{vT+3}], v[{vEA+2}:{vEA+3}], v[{vT+2}:{vT+3}], 1.0 op_sel_hi:[1,1,0]')
        if init:
            for i in range(4):
                a(f'    v_rcp_f32 v{vDEN+i}, v{vT+i}')
            a('    s_nop 0')
            a(f'    v_pk_mul_f32 v[{vNUM}:{vNUM+1}], v[{vDEN}:{vDEN+1}], v[{d}:{d+1}]')
            a(f'    v_pk_mul_f32 v[{vNUM+2}:{vNUM+3}], v[{vDEN+2}:{vDEN+3}], v[{d+2}:{d+3}]')
        else:
            for i in range(4):
                a(f'    v_rcp_f32 v{vT+i}, v{vT+i}')
            a(f'    v_pk_add_f32 v[{vDEN}:{vDEN+1}], v[{vDEN}:{vDEN+1}], v[{vT}:{vT+1}]')
            a(f'    v_pk_add_f32 v[{vDEN+2}:{vDEN+3}], v[{vDEN+2}:{vDEN+3}], v[{vT+2}:{vT+3}]')
            a(f'    v_pk_fma_f32 v[{vNUM}:{vNUM+1}], v[{vT}:{vT+1}], v[{d}:{d+1}], v[{vNUM}:{vNUM+1}]')
            a(f'    v_pk_fma_f32 v[{vNUM+2}:{vNUM+3}], v[{vT+2}:{vT+3}], v[{d+2}:{d+3}], v[{vNUM+2}:{vNUM+3}]')
        tload(k)
        if k == U-1:
            a(f'    v_add_u32 v{vSA}, {16*U}, v{vSA}')

    def loopback(pfx):
        if PRIO:
            a(f'    s_sub_u32 s{sPR}, s{sPR}, 1')
            a(f'    s_cmp_lg_u32 s{sPR}, 0')
            a(f'    s_cbranch_scc1 {pfx}_STEP0')
            a(f'    s_branch {pfx}_PRIO')
        else:
            a(f'    s_branch {pfx}_STEP0')

    for pfx, safe in (('K2F', False), ('K2S', True)):
        a.label(f'{pfx}_ENTER')
        next_node()
        set_slot()
        a('    s_waitcnt vmcnt(3) lgkmcnt(0)')
        dstamp(a, 2)
        step(0, safe, True)
        a(f'    s_branch {pfx}_STEP1')
        for k in range(U):
            a.label(f'{pfx}_STEP{k}')
            a(f'    s_waitcnt vmcnt({U-1}) lgkmcnt(0)')
            a(f'    s_sub_u32 s{sLEFT}, s{sLEFT}, 1')
            a(f'    s_cbranch_scc1 {pfx}_FLUSH{k}')
            step(k, safe, False)
            if k == U-1:
                loopback(pfx)
        for k in range(U):
            a.label(f'{pfx}_FLUSH{k}')
            a(f'    s_cmp_ge_u32 s{sGEND}, s{sG1}')
            a(f'    s_cbranch_scc1 K2_LAST')
            next_node()
            flush()
            set_slot()
            step(k, safe, True)
            if k == U-1:
                loopback(pfx)
            else:
                a(f'    s_branch {pfx}_STEP{k+1}')
        if PRIO:
            a.label(f'{pfx}_PRIO')
            a(f'    s_sub_u32 s{sLVL}, s{sLVL}, 1')
            a(f'    s_cmp_eq_u32 s{sLVL}, 2')
            a(f'    s_cbranch_scc1 {pfx}_PRIO2')
            a(f'    s_cmp_eq_u32 s{sLVL}, 1')
            a(f'    s_cbranch_scc1 {pfx}_PRIO1')
            a(f'    s_mov_b32 s{sPR}, 0x7fffffff')
            a('    s_setprio 0')
            a(f'    s_branch {pfx}_STEP0')
            a.label(f'{pfx}_PRIO2')
            a(f'    s_mov_b32 s{sPR}, s{sPQ}')
            a('    s_setprio 2')
            a(f'    s_branch {pfx}_STEP0')
            a.label(f'{pfx}_PRIO1')
            a(f'    s_mov_b32 s{sPR}, s{sPQ2}')
            a('    s_setprio 1')
            a(f'    s_branch {pfx}_STEP0')
    a.label('K2_LAST')
    dstamp(a, 3)
    flush()
    a.label('K2_MAIN_DONE')
    if PRIO: a('    s_setprio 0')
    a(f'    s_cmp_eq_u32 s{sPASS}, 0')
    a('    s_cbranch_scc0 K2_NOUST')
    a(f'    s_cmp_eq_u32 s{sMODE}, 1')
    a('    s_cbranch_scc1 K2_NOUST')
    a(f'    s_cmp_lt_u32 s{sWAVE}, 12')
    a('    s_cbranch_scc0 K2_NOUST')
    a(f'    ds_write_b128 v{vUA}, v[{vU}:{vU+3}] offset:{L2_UT-L2_EAT}')
    a.label('K2_NOUST')
    a(f'    s_cmp_eq_u32 s{sMODE}, 2')
    a('    s_cbranch_scc0 K2_NOABORT')
    a(f'    s_mov_b32 s{sMODE}, 1')
    a(f'    s_mov_b32 s{sPASS}, 0')
    a('    s_waitcnt vmcnt(0) lgkmcnt(0)')
    a('    s_barrier')
    a('    s_branch K2_PASS')
    a.label('K2_NOABORT')
    a('    s_waitcnt lgkmcnt(0)')
    stamp(a, 6)
    a('    s_barrier')
    S0 = 76; S1 = 84; UU = 92; XX = 104
    if SPANW:
        a(f'    s_cmp_lt_u32 s{sWAVE}, 10')
        a('    s_cbranch_scc0 K2_FOLD_END')
    a(f'    s_mov_b64 exec, s[{sM}:{sM+1}]')
    a(f'    ds_read_b128 v[{S0}:{S0+3}], v{vFS} offset:{L2_SLOT}')
    a(f'    ds_read_b128 v[{S0+4}:{S0+7}], v{vFS} offset:{L2_SLOT+256}')
    a(f'    s_mov_b64 exec, s[{sM+2}:{sM+3}]')
    a(f'    ds_read_b128 v[{S1}:{S1+3}], v{vFS} offset:{L2_SLOT+512}')
    a(f'    ds_read_b128 v[{S1+4}:{S1+7}], v{vFS} offset:{L2_SLOT+512+256}')
    a('    s_mov_b64 exec, -1')
    a(f'    ds_read_b128 v[{UU}:{UU+3}], v{vUTA}')
    a(f'    ds_read_b64 v[{XX}:{XX+1}], v{vXTA}')
    a(f'    s_mov_b64 exec, s[{sM}:{sM+1}]')
    a('    s_waitcnt lgkmcnt(4)')
    for b, acc in ((S0, vDA), (S0+2, vDA+2), (S0+4, vNA), (S0+6, vNA+2)):
        a(f'    v_pk_add_f32 v[{acc}:{acc+1}], v[{acc}:{acc+1}], v[{b}:{b+1}]')
    a(f'    s_mov_b64 exec, s[{sM+2}:{sM+3}]')
    a('    s_waitcnt lgkmcnt(2)')
    for b, acc in ((S1, vDA), (S1+2, vDA+2), (S1+4, vNA), (S1+6, vNA+2)):
        a(f'    v_pk_add_f32 v[{acc}:{acc+1}], v[{acc}:{acc+1}], v[{b}:{b+1}]')
    a('    s_mov_b64 exec, -1')
    a(f'    s_cmp_eq_u64 s[{sM+4}:{sM+5}], 0')
    a('    s_cbranch_scc1 K2_FOLD_END')
    a(f'    v_add_u32 v{vFS}, 1024, v{vFS}')
    a(f'    v_add_u32 v{vFC}, -2, v{vFC}')
    a.label('K2_FOLD')
    masked(a, f'v_cmp_lt_i32 vcc, 0, v{vFC}', sEX, 'K2_FOLD_DONE')
    a(f'    ds_read_b128 v[{S0}:{S0+3}], v{vFS} offset:{L2_SLOT}')
    a(f'    ds_read_b128 v[{S0+4}:{S0+7}], v{vFS} offset:{L2_SLOT+256}')
    a(f'    v_add_u32 v{vFS}, 512, v{vFS}')
    a(f'    v_add_u32 v{vFC}, -1, v{vFC}')
    a('    s_waitcnt lgkmcnt(0)')
    for b, acc in ((S0, vDA), (S0+2, vDA+2), (S0+4, vNA), (S0+6, vNA+2)):
        a(f'    v_pk_add_f32 v[{acc}:{acc+1}], v[{acc}:{acc+1}], v[{b}:{b+1}]')
    unmask(a, sEX)
    a('    s_branch K2_FOLD')
    unmask(a, sEX, 'K2_FOLD_DONE')
    a.label('K2_FOLD_END')
    a(f'    s_cmp_eq_u32 s{sMODE}, 0')
    a('    s_cbranch_scc1 K2_EPI')
    a(f'    s_add_u32 s{sPASS}, s{sPASS}, 1')
    a(f'    s_cmp_lt_u32 s{sPASS}, {NC}')
    a('    s_cbranch_scc0 K2_EPI')
    a('    s_waitcnt vmcnt(0) lgkmcnt(0)')
    a('    s_barrier                               ; slots consumed before the next pass')
    a('    s_branch K2_PASS')
    a.label('K2_EPI')
    masked(a, f'v_cmp_gt_u32 vcc, s{sNT}, v0', sEX, 'K2_FIN')
    a(f'    s_mov_b32 s{sT0}, {hex(f2u(1e-6))}')
    for i in range(4):
        a(f'    v_add_f32 v{vDA+i}, s{sT0}, v{vDA+i}')
    for i in range(4):
        a(f'    v_rcp_f32 v{vDA+i}, v{vDA+i}')
    a('    s_waitcnt lgkmcnt(0)')
    a(f'    v_lshlrev_b32 v{vT}, 16, v{XX}')
    a(f'    v_and_b32 v{vT+1}, 0xffff0000, v{XX}')
    a(f'    v_lshlrev_b32 v{vT+2}, 16, v{XX+1}')
    a(f'    v_and_b32 v{vT+3}, 0xffff0000, v{XX+1}')
    for i in range(4):
        a(f'    v_fma_f32 v{vNA+i}, v{vNA+i}, v{vDA+i}, v{UU+i}    ; z = U + agg')
    for i in range(4):
        a(f'    v_cmp_lt_f32 s[{sM+2*i}:{sM+2*i+1}], 0, v{vNA+i}')
    for i in range(4):
        a(f'    v_mul_f32 v{vDEN+i}, 0, v{vNA+i}                     ; 0*z')
    for i in range(4):
        a(f'    v_cndmask_b32 v{vNA+i}, v{vDEN+i}, v{vNA+i}, s[{sM+2*i}:{sM+2*i+1}]')
    for i in range(4):
        a(f'    v_add_f32 v{vNA+i}, v{vNA+i}, v{vT+i}')
    a(f'    s_lshl_b32 s{sT1}, s{sN0}, 7')
    a(f'    v_lshlrev_b32 v{vA+1}, 3, v0')
    a(f'    v_cvt_pk_bf16_f32 v{vDEN}, v{vNA}, v{vNA+1}')
    a(f'    v_cvt_pk_bf16_f32 v{vDEN+1}, v{vNA+2}, v{vNA+3}')
    a(f'    buffer_store_dwordx2 v[{vDEN}:{vDEN+1}], v{vA+1}, s[{SRD_OUT}:{SRD_OUT+3}], s{sT1} offen {OUTST}')
    a.label('K2_FIN')
    if STAMP:
        a('    s_mov_b64 exec, -1')
        a('    s_waitcnt vmcnt(0)')
    stamp(a, 7); stamp(a, 1, True)
    stamp_flush(a, sWAVE, sB, 1, 6)
    a.label('K2_END')
    a('    s_endpgm')
    a.label('CODE_END')

def gen_k3(a):
    i, j = [int(x) for x in env('INTERVAL', '0,0').split(',')]
    inv = {0: True, 2: True}
    a('.globl k3_kernel')
    a('.p2align 8')
    a('.type k3_kernel,@function')
    a.label('k3_kernel')
    a('    s_cmp_ge_u32 s2, 1')
    a('    s_cbranch_scc1 K3_END')
    a('    s_load_dwordx2 s[4:5], s[0:1], 80')
    a('    s_waitcnt lgkmcnt(0)')
    a('    v_mov_b32 v1, 0')
    a(f'    global_load_dword v2, v1, s[4:5] offset:{4*i} sc1')
    a(f'    global_load_dword v3, v1, s[4:5] offset:{4*j} sc1')
    a('    s_waitcnt vmcnt(0)')
    if inv.get(i): a('    v_not_b32 v2, v2')
    if inv.get(j): a('    v_not_b32 v3, v3')
    a('    v_sub_u32 v3, v3, v2')
    a('    s_nop 1')
    a('    v_readfirstlane_b32 s8, v3')
    a('    s_nop 3')
    a('    s_mul_i32 s8, s8, 10')
    a('    s_min_u32 s8, s8, 50000')
    a('    s_memrealtime s[10:11]')
    a('    s_waitcnt lgkmcnt(0)')
    a.label('K3_SPIN')
    a('    s_memrealtime s[12:13]')
    a('    s_waitcnt lgkmcnt(0)')
    a('    s_sub_u32 s9, s12, s10')
    a('    s_cmp_lt_u32 s9, s8')
    a('    s_cbranch_scc1 K3_SPIN')
    a.label('K3_END')
    a('    s_endpgm')

def kd(a, name, vgpr, sgpr):
    a(f'.amdhsa_kernel {name}')
    a(f'  .amdhsa_next_free_vgpr {vgpr}')
    a(f'  .amdhsa_next_free_sgpr {sgpr}')
    a(f'  .amdhsa_accum_offset {((vgpr+3)//4)*4}')
    a('  .amdhsa_group_segment_fixed_size 0')
    a('  .amdhsa_kernarg_size 96')
    a('  .amdhsa_user_sgpr_count 2')
    a('  .amdhsa_user_sgpr_kernarg_segment_ptr 1')
    a('  .amdhsa_system_sgpr_workgroup_id_x 1')
    a('  .amdhsa_float_denorm_mode_32 3')
    a('.end_amdhsa_kernel')

def main(out):
    a = Asm()
    a(f'; @launch kernel=k1_kernel grid=({K1_GRID},1,1) block=(1024,1,1) lds={K1_LDS}')
    a(f'; @launch kernel=k2_kernel grid=({NB},1,1) block=(1024,1,1) lds={K2_LDS}')
    if STAMP == 4: a('; @launch kernel=k3_kernel grid=(1,1,1) block=(64,1,1) lds=0')
    a('.amdgcn_target "amdgcn-amd-amdhsa--gfx950"')
    a('.text')
    a('.globl k1_kernel')
    gen_k1(a)
    a('.globl k2_kernel')
    gen_k2(a)
    if STAMP == 4: gen_k3(a)
    a('.section .rodata,"a"')
    a('.p2align 6')
    kd(a, 'k1_kernel', 96, 102 if STAMP else 72)
    a('.p2align 6')
    kd(a, 'k2_kernel', 128, 102 if STAMP else 80)
    if STAMP == 4:
        a('.p2align 6')
        kd(a, 'k3_kernel', 8, 32)
    a.l = [x for x in a.l if x is not None]
    open(out, 'w').write(a.text())

if __name__ == '__main__':
    main(sys.argv[1] if len(sys.argv) > 1 else 'standalone__edge_featured_mpnn_gatedgcn__graph.s')
```

```python
import sys, os, struct
def env(n, d): return os.environ.get(n, d)

N = 10000; E = 640000
NPB = 40; NB = 256; EPC = 2500; NC = 256
TPC = EPC//4
BMAGIC = 109951163
LOG2E = 1.4426950408889634
WS_REC  = 0
REC_STRIDE = EPC*5
WS_DESC = 3407872
DESC_STRIDE = 1024
WS_T    = 4194304
T_BYTES = (N+1)*256

STAMP = int(env('STAMP', '0'))
K1ST = env('K1ST', 'nt')
PRIO = int(env('PRIO', '1'))
TFIRST = int(env('TFIRST', '1'))
XLATE = int(env('XLATE', '1'))
WULATE = int(env('WULATE', '1'))
SPANW = int(env('SPANW', '1'))
ELD = env('ELD', '')
RLD = env('RLD', '')
CPF2 = int(env('CPF2', '0'))
DESCE = int(env('DESCE', '1'))
WS_STAMP = 128 << 20
ST0 = 80

def f2u(f): return struct.unpack('<I', struct.pack('<f', f))[0]

class Asm:
    def __init__(self): self.l = []
    def __call__(self, s=''):
        for line in s.split('\n'): self.l.append(line)
    def label(self, n): self.l.append(n + ':')
    def text(self): return '\n'.join(self.l) + '\n'

DETAIL = int(env('DETAIL', '0'))
def dstamp(a, i):
    if DETAIL: stamp(a, i, False, True)
def stamp(a, i, real=False, force=False):
    if DETAIL and not force and not real and getattr(a, 'k2', False) and i in (1, 2, 3): return
    if STAMP:
        r = ST0 + 2*(8+i if real else i)
        a(f"    {'s_memrealtime' if (real or STAMP >= 3) else 's_memtime'} s[{r}:{r+1}]")
def stamp_flush(a, wave_sgpr, wg_sgpr, kern, ws_lo):
    if not STAMP: return
    a('    s_waitcnt lgkmcnt(0)')
    a('    s_mov_b64 exec, 1')
    a('    v_mov_b32 v2, 0')
    if STAMP == 4:
        lab = f'STSKIP{kern}_{len(a.l)}'
        a(f"    s_and_b32 s14, s{wg_sgpr}, {31 if kern == 0 else int(env('SAMP2', '31'))}")
        a('    s_cmp_eq_u32 s14, 0')
        a(f'    s_cbranch_scc0 {lab}')
        a(f'    s_cmp_eq_u32 s{wave_sgpr}, 0')
        a(f'    s_cbranch_scc0 {lab}')
        a('    s_load_dwordx2 s[12:13], s[0:1], 80')
        a('    s_waitcnt lgkmcnt(0)')
        a(f'    s_add_u32 s12, s12, {1024 if kern == 0 else 512}')
        a('    s_addc_u32 s13, s13, 0')
        slots = [(0, 8, True), (1, 9, False), (7, 4, False), (8, 2, False)] if kern == 0 else \
                [(2, 8, True), (3, 4, False), (4, 5, False), (5, 6, False), (6, 9, False), (9, 2, False)]
        for slot, st, inv in slots:
            a(f'    v_mov_b32 v3, s{ST0+2*st}')
            if inv: a('    v_not_b32 v3, v3')
            a(f'    global_atomic_umax v2, v3, s[12:13] offset:{4*slot}')
        a('    s_waitcnt vmcnt(0)')
        a.label(lab)
        return
    a(f'    s_add_u32 s12, s{ws_lo}, {WS_STAMP + kern*(4<<20)}')
    a(f'    s_addc_u32 s13, s{ws_lo+1}, 0')
    a(f'    s_mov_b32 s14, {4<<20}')
    a('    s_mov_b32 s15, 0x00020000')
    a(f'    s_lshl_b32 s16, s{wg_sgpr}, 4')
    a(f'    s_add_u32 s16, s16, s{wave_sgpr}')
    a(f'    s_lshl_b32 s16, s16, 6')
    for i in range(8):
        a(f'    v_mov_b32 v3, s{ST0+2*i}')
        a(f'    buffer_store_dword v3, v2, s[12:15], s16 offen offset:{4*i}')
    for i in range(2):
        a(f'    v_mov_b32 v3, s{ST0+2*(8+i)}')
        a(f'    buffer_store_dword v3, v2, s[12:15], s16 offen offset:{4*(10+i)}')
    a('    s_waitcnt vmcnt(0)')

def srd(a, sreg, lo, hi, nbytes, off=0, stride=0, nrec=None):
    if off:
        a(f'    s_add_u32 s{sreg}, s{lo}, {off}')
        a(f'    s_addc_u32 s{sreg+1}, s{hi}, 0')
    else:
        a(f'    s_mov_b32 s{sreg}, s{lo}')
        a(f'    s_mov_b32 s{sreg+1}, s{hi}')
    if stride:
        a(f'    s_and_b32 s{sreg+1}, s{sreg+1}, 0xffff')
        a(f'    s_or_b32 s{sreg+1}, s{sreg+1}, {stride << 16}')
        a(f'    s_mov_b32 s{sreg+2}, {nrec}')
    else:
        a(f'    s_mov_b32 s{sreg+2}, {nbytes}')
    a(f'    s_mov_b32 s{sreg+3}, 0x00020000')

def dpp_scan(a, v):
    for sh in (1, 2, 4, 8):
        a('    s_nop 1')
        a(f'    v_add_u32_dpp v{v}, v{v}, v{v} row_shr:{sh} row_mask:0xf bank_mask:0xf')
    a('    s_nop 1')
    a(f'    v_add_u32_dpp v{v}, v{v}, v{v} row_bcast:15 row_mask:0xa bank_mask:0xf')
    a('    s_nop 1')
    a(f'    v_add_u32_dpp v{v}, v{v}, v{v} row_bcast:31 row_mask:0xc bank_mask:0xf')

def masked(a, cond, exreg, skip=None):
    a(f'    {cond}')
    a(f'    s_and_saveexec_b64 s[{exreg}:{exreg+1}], vcc')
    if skip: a(f'    s_cbranch_execz {skip}')
def unmask(a, exreg, skip=None):
    if skip: a.label(skip)
    a(f'    s_mov_b64 exec, s[{exreg}:{exreg+1}]')

def lds_sync(a, name, off, n, vzero, vone, vt, st):
    a('    s_waitcnt lgkmcnt(0)')
    a('    s_mov_b64 exec, 1')
    a(f'    ds_add_u32 v{vzero}, v{vone} offset:{off}')
    a('    s_mov_b64 exec, -1')
    a.label(name)
    a(f'    ds_read_b32 v{vt}, v{vzero} offset:{off}')
    a('    s_waitcnt lgkmcnt(0)')
    a(f'    v_readfirstlane_b32 s{st}, v{vt}')
    a(f'    s_cmp_lt_u32 s{st}, {n}')
    a(f'    s_cbranch_scc1 {name}')

K1_GRID = NC
L1_HIST = 0; L1_START = 1024; L1_SYNC = 2048
L1_ST32 = 2304; L1_ST8 = L1_ST32 + 2560*4; L1_W = 15360
K1_LDS = L1_W + 16384
K1PF = int(env('K1PF', '0'))
CPF = int(env('CPF', '2'))
XMAP = int(env('XMAP', '1'))
DESCT = int(env('DESCT', '1'))
DESCST = env('DESCST', '')
OUTST = env('OUTST', 'sc1')
RECST = env('RECST', 'sc0')
TST = env('TST', K1ST)
TFIRST = int(env('TFIRST', '1'))
XLATE = int(env('XLATE', '1'))
WULATE = int(env('WULATE', '1'))
SPANW = int(env('SPANW', '1'))
ELD = env('ELD', '')
RLD = env('RLD', '')
CPF2 = int(env('CPF2', '0'))
DESCE = int(env('DESCE', '1'))

def gen_k1(a):
    a('.p2align 8')
    a('.type k1_kernel,@function')
    a.label('k1_kernel')
    a(f'    s_cmp_ge_u32 s2, {K1_GRID}')
    a('    s_cbranch_scc1 K1_END')
    stamp(a, 0); stamp(a, 0, True)
    if CPF:
        a('    s_getpc_b64 s[30:31]')
        a.label('K1_PC')
        a('    v_lshlrev_b32 v90, 7, v0')
        lim = 'CODE_END-K1_PC' if CPF >= 2 else 'k2_kernel-K1_PC'
        a(f'    v_cmp_gt_u32 vcc, {lim}, v90')
        a('    s_and_saveexec_b64 s[28:29], vcc')
        a('    s_cbranch_execz K1_NOCPF')
        a('    global_load_dword v91, v90, s[30:31]')
        a.label('K1_NOCPF')
        a('    s_mov_b64 exec, s[28:29]')
    if XMAP:
        a('    s_and_b32 s20, s2, 7')
        a('    s_lshr_b32 s21, s2, 3')
        a('    s_lshl_b32 s20, s20, 5')
        a('    s_add_u32 s2, s20, s21')
    a('    v_lshrrev_b32 v1, 6, v0')
    a('    s_load_dwordx4 s[8:11], s[0:1], 16')
    a('    v_readfirstlane_b32 s20, v1')
    a('    s_load_dwordx2 s[4:5], s[0:1], 8      ; e_attr')
    a('    s_load_dwordx2 s[6:7], s[0:1], 88     ; ws')
    a('    v_and_b32 v2, 63, v0                   ; lane')
    if TFIRST:
        a('    s_cmp_lt_u32 s20, 6')
        a('    s_cbranch_scc1 K1_TABLE')
        a('    v_subrev_u32 v0, 384, v0')
        a('    s_sub_u32 s20, s20, 6')
    else:
        a('    s_cmp_ge_u32 s20, 10')
        a('    s_cbranch_scc1 K1_TABLE')
    a('    v_mov_b32 v5, 0')
    a('    v_lshlrev_b32 v6, 2, v0               ; t*4')
    masked(a, 'v_cmp_gt_u32 vcc, 256, v0', 30)
    a(f'    ds_write_b32 v6, v5 offset:{L1_HIST}')
    unmask(a, 30)
    a('    v_lshlrev_b32 v3, 4, v0               ; t*16')
    a('    v_lshlrev_b32 v4, 3, v0               ; t*8')
    a(f'    s_mul_i32 s21, s2, {EPC*4}')
    a(f'    s_mul_i32 s22, s2, {EPC*2}')
    a(f'    s_mov_b32 s23, {BMAGIC}')
    a(f'    v_mov_b32 v19, {TPC}')
    a('    v_cmp_gt_u32 s[46:47], v19, v0')
    a('    s_waitcnt lgkmcnt(0)')
    srd(a, 12, 10, 11, E*4)
    a('    buffer_load_dwordx4 v[8:11], v3, s[12:15], s21 offen ' + ELD)
    srd(a, 16, 8, 9, E*4)
    a('    buffer_load_dwordx4 v[12:15], v3, s[16:19], s21 offen ' + ELD)
    srd(a, 24, 4, 5, E*2)
    a('    buffer_load_dwordx2 v[16:17], v4, s[24:27], s22 offen ' + ELD)
    srd(a, 32, 6, 7, NC*REC_STRIDE, off=WS_REC)
    srd(a, 36, 6, 7, NB*DESC_STRIDE, off=WS_DESC)
    a('    v_lshlrev_b32 v6, 4, v2                ; lane*16')
    a('    v_mul_u32_u24 v7, 20, v0')
    a('    v_lshlrev_b32 v18, 12, v2')
    a(f'    s_mul_i32 s25, s2, {REC_STRIDE}')
    a('    s_lshl_b32 s26, s2, 2')
    a('    s_mov_b32 s40, 0x06050400')
    a('    s_mov_b32 s41, 0x05040003')
    a('    s_mov_b32 s42, 0x03020500')
    a('    s_mov_b32 s43, 0x04000302')
    a('    s_mov_b32 s44, 0x03060100')
    a('    s_mov_b32 s45, 0x07030201')
    stamp(a, 1)
    a('    s_barrier')
    a('    v_mov_b32 v5, 1')
    a('    v_mov_b32 v19, 0')
    a('    s_waitcnt vmcnt(2)')
    stamp(a, 2)
    for k in range(4):
        a(f'    v_mul_hi_u32 v{20+k}, s23, v{8+k}        ; bucket')
    for k in range(4):
        a(f'    v_lshlrev_b32 v{24+k}, 2, v{20+k}       ; bucket*4')
    a('    s_mov_b64 exec, s[46:47]')
    for k in range(4):
        a(f'    ds_add_rtn_u32 v{28+k}, v{24+k}, v5 offset:{L1_HIST}')
    a('    s_mov_b64 exec, -1')
    a('    s_movk_i32 s27, 625')
    for k in range(4):
        a(f'    v_mad_u32_u24 v{20+k}, v{20+k}, s27, 15')
    for k in range(4):
        a(f'    v_lshrrev_b32 v{20+k}, 4, v{20+k}')
    for k in range(4):
        a(f'    v_sub_u32 v{20+k}, v{8+k}, v{20+k}')
    for k in range(4):
        a(f'    v_lshlrev_b32 v{20+k}, 2, v{20+k}')
    a('    s_waitcnt vmcnt(0)')
    a('    v_lshl_or_b32 v32, v16, 16, v12')
    a('    s_mov_b32 s24, 0xffff0000')
    a('    v_and_or_b32 v33, v16, s24, v13')
    a('    v_lshl_or_b32 v34, v17, 16, v14')
    a('    v_and_or_b32 v35, v17, s24, v15')
    a('    s_waitcnt lgkmcnt(0)')
    stamp(a, 3)
    lds_sync(a, 'K1_SYNC2', L1_SYNC+4, 10, 19, 5, 25+40, 27)
    stamp(a, 4)
    a(f'    ds_read_b128 v[40:43], v6 offset:{L1_HIST}')
    a('    s_waitcnt lgkmcnt(0)')
    a('    v_add_u32 v44, v40, v41                ; h0+h1')
    a('    v_add_u32 v45, v44, v42')
    a('    v_add_u32 v46, v45, v43                ; sum4')
    a('    v_mov_b32 v47, v46')
    dpp_scan(a, 47)
    a('    v_sub_u32 v48, v47, v46')
    a('    v_add_u32 v49, v48, v40')
    a('    v_add_u32 v50, v48, v44')
    a('    v_add_u32 v51, v48, v45')
    a(f'    ds_write_b128 v6, v[48:51] offset:{L1_START}')
    a('    s_waitcnt lgkmcnt(0)')
    for k in range(4):
        a(f'    ds_read_b32 v{56+k}, v{24+k} offset:{L1_START}')
    for k in range(4):
        a(f'    v_lshl_or_b32 v{52+k}, v{40+k}, 16, v{48+k}')
    if DESCT and DESCE:
        for k in range(4):
            a(f'    s_cmp_eq_u32 s20, {k}')
            a(f'    s_cbranch_scc0 K1_DE{k}')
            a(f'    buffer_store_dword v{52+k}, v18, s[36:39], s26 offen offset:{1024*k} {DESCST}')
            a.label(f'K1_DE{k}')
    a('    s_waitcnt lgkmcnt(0)')
    for k in range(4):
        a(f'    v_add_u32 v{56+k}, v{56+k}, v{28+k}      ; position')
    a('    s_mov_b64 exec, s[46:47]')
    for k in range(4):
        a(f'    ds_write_b8 v{56+k}, v{20+k} offset:{L1_ST8}')
        a(f'    v_lshlrev_b32 v{60+k}, 2, v{56+k}')
    for k in range(4):
        a(f'    ds_write_b32 v{60+k}, v{32+k} offset:{L1_ST32}')
    a('    s_mov_b64 exec, -1')
    a('    s_waitcnt lgkmcnt(0)')
    stamp(a, 5)
    lds_sync(a, 'K1_SYNC3', L1_SYNC+8, 10, 19, 5, 25+40, 27)
    a(f'    ds_read_b128 v[8:11], v3 offset:{L1_ST32}')
    a('    v_lshrrev_b32 v4, 2, v3                ; t*4')
    a(f'    ds_read_b32 v12, v4 offset:{L1_ST8}')
    a('    s_waitcnt lgkmcnt(0)')
    a('    v_perm_b32 v21, v9, v12, s40           ; d1 = L0 r1.b0 r1.b1 r1.b2')
    a('    v_perm_b32 v22, v10, v9, s41           ; r1.b3 . r2.b0 r2.b1')
    a('    v_perm_b32 v23, v11, v10, s43          ; r2.b2 r2.b3 . r3.b0')
    a('    v_mov_b32 v20, v8')
    a('    v_perm_b32 v22, v12, v22, s42          ; d2 : insert L1')
    a('    v_perm_b32 v23, v12, v23, s44          ; d3 : insert L2')
    a('    v_perm_b32 v24, v12, v11, s45          ; d4 = r3.b1 r3.b2 r3.b3 L3')
    a('    s_mov_b64 exec, s[46:47]')
    a(f'    buffer_store_dwordx4 v[20:23], v7, s[32:35], s25 offen {RECST}')
    a(f'    buffer_store_dword v24, v7, s[32:35], s25 offen offset:16 {RECST}')
    a('    s_mov_b64 exec, -1')
    a('    s_cmp_eq_u32 s20, 0')
    a('    s_cbranch_scc0 K1_SFIN')
    if DESCT and DESCE:
        pass
    elif DESCT:
        for k in range(4):
            a(f'    buffer_store_dword v{52+k}, v18, s[36:39], s26 offen offset:{1024*k} {DESCST}')
    else:
        a('    s_lshl_b32 s26, s2, 10')
        a(f'    buffer_store_dwordx4 v[52:55], v6, s[36:39], s26 offen {DESCST}')
    a.label('K1_SFIN')
    if STAMP:
        stamp(a, 6)
        a('    s_waitcnt vmcnt(0)')
        stamp(a, 7); stamp(a, 1, True)
        stamp_flush(a, 20, 2, 0, 6)
    a('    s_endpgm')
    a.label('K1_TABLE')
    a('    s_load_dwordx2 s[40:41], s[0:1], 40   ; w_b')
    a('    s_load_dwordx2 s[42:43], s[0:1], 64   ; w_v')
    a('    s_load_dwordx2 s[44:45], s[0:1], 0    ; x')
    if K1PF:
        a('    s_load_dwordx2 s[60:61], s[0:1], 32   ; w_a')
        a('    s_load_dwordx4 s[64:67], s[0:1], 48   ; w_c, w_u')
        a('    s_load_dwordx2 s[62:63], s[0:1], 72   ; out')
    a('    s_mov_b32 s21, s20                     ; tw' if TFIRST else '    s_sub_u32 s21, s20, 10                 ; tw')
    a('    v_mov_b32 v5, 0')
    a('    v_lshlrev_b32 v6, 2, v2')
    a('    s_cmp_eq_u32 s21, 0')
    a('    s_cbranch_scc0 K1_T_NOZ')
    masked(a, 'v_cmp_gt_u32 vcc, 4, v2', 30)
    a(f'    ds_write_b32 v6, v5 offset:{L1_SYNC}')
    unmask(a, 30)
    a.label('K1_T_NOZ')
    a('    s_lshr_b32 s22, s21, 1')
    a('    s_lshl_b32 s22, s22, 4                 ; 16*rt')
    a('    v_and_b32 v4, 15, v2')
    a('    v_add_u32 v4, s22, v4')
    a('    v_lshrrev_b32 v5, 4, v2                ; g')
    a('    v_lshlrev_b32 v6, 7, v4')
    a('    v_lshl_add_u32 v6, v5, 4, v6')
    a('    s_mul_i32 s58, s2, 625')
    a('    s_add_u32 s59, s58, 640                ; 625*(c+1) + 15')
    a('    s_add_u32 s58, s58, 15')
    a('    s_lshr_b32 s58, s58, 4')
    a('    s_lshr_b32 s59, s59, 4')
    a('    s_sub_u32 s59, s59, s58')
    a('    s_lshl_b32 s24, s58, 7')
    a('    v_lshlrev_b32 v7, 4, v2                ; lane*16')
    a('    v_bfe_u32 v8, v2, 4, 1')
    a('    v_lshlrev_b32 v8, 1, v8')
    a('    v_and_b32 v9, 7, v2')
    a('    v_xor_b32 v8, v8, v9')
    a('    v_lshrrev_b32 v9, 3, v2')
    a('    v_lshlrev_b32 v9, 7, v9                ; (lane>>3)*128')
    a('    s_waitcnt lgkmcnt(0)')
    for i in range(3):
        a(f'    s_add_u32 s26, s21, {6*i}              ; p')
        a('    s_cmp_lt_u32 s26, 8')
        a('    s_cselect_b32 s48, s40, s42')
        a('    s_cselect_b32 s49, s41, s43')
        a('    s_mov_b32 s50, 8192')
        a('    s_mov_b32 s51, 0x00020000')
        a('    s_and_b32 s27, s26, 7')
        a('    s_lshl_b32 s27, s27, 10')
        a('    s_cmp_lt_u32 s26, 16')
        a(f'    s_cselect_b32 s27, s27, {1<<20}')
        a(f'    buffer_load_dwordx4 v[{48+4*i}:{51+4*i}], v7, s[48:51], s27 offen')
    if XLATE: a('    s_barrier')
    srd(a, 36, 44, 45, N*128)
    a('    buffer_load_dwordx4 v[24:27], v6, s[36:39], s24 offen')
    a('    buffer_load_dwordx4 v[28:31], v6, s[36:39], s24 offen offset:64')
    if K1PF:
        a('    s_cmp_eq_u32 s21, 5')
        a('    s_cbranch_scc0 K1_T_NOPF')
        a('    v_lshlrev_b32 v60, 8, v2')
        a('    v_lshlrev_b32 v61, 7, v2')
        a('    global_load_dword v62, v61, s[60:61]')
        a('    global_load_dword v62, v61, s[66:67]')
        a('    v_mov_b32 v63, 0')
        a('    global_load_dword v62, v63, s[64:65]')
        a('    s_lshl_b32 s26, s58, 7')
        a('    v_mov_b32 v63, s26')
        a('    global_load_dword v62, v63, s[62:63]')
        srd(a, 52, 6, 7, WS_T + T_BYTES, off=0)
        a(f'    s_mul_i32 s26, s2, {REC_STRIDE}')
        a('    v_mov_b32 v63, s26')
        a('    buffer_load_dword v62, v63, s[52:55], 0 offen')
        a('    s_lshl_b32 s26, s58, 8')
        a(f'    s_add_u32 s26, s26, {WS_T}')
        a('    v_mov_b32 v63, s26')
        a('    buffer_load_dword v62, v63, s[52:55], 0 offen')
        a(f'    s_lshl_b32 s26, s2, 2')
        a(f'    s_add_u32 s26, s26, {WS_DESC}')
        a('    v_mov_b32 v63, s26')
        a('    buffer_load_dword v62, v63, s[52:55], 0 offen')
        a.label('K1_T_NOPF')
    if not XLATE: a('    s_barrier')
    if K1PF: a.label('K1_T_PFJOIN0')
    srd(a, 44, 6, 7, T_BYTES, off=WS_T)
    for i in range(3):
        a(f'    s_add_u32 s26, s21, {6*i}              ; p')
        a('    s_and_b32 s27, s26, 1')
        a('    s_lshl_b32 s27, s27, 2')
        a(f'    v_xor_b32 v{18+i}, s27, v8')
        a(f'    v_lshl_add_u32 v{18+i}, v{18+i}, 4, v9')
        a('    s_lshl_b32 s27, s26, 10                ; m*8192 + (p&7)*1024 = p*1024')
        a(f'    v_add_u32 v{18+i}, s27, v{18+i}')
    a('    s_and_b32 s23, s21, 1                  ; half')
    a('    v_bfe_u32 v12, v2, 2, 2                ; r')
    a('    v_lshl_add_u32 v13, v5, 3, v12         ; rho')
    a('    v_lshlrev_b32 v13, 7, v13')
    a('    v_and_b32 v14, 1, v2')
    a('    v_lshl_add_u32 v13, v14, 3, v13        ; + (c&1)*8')
    a('    v_bfe_u32 v14, v2, 1, 1                ; c>>1')
    a('    v_lshrrev_b32 v12, 1, v12')
    a('    v_and_b32 v15, 1, v5                   ; g&1')
    a('    v_lshlrev_b32 v15, 1, v15')
    a('    v_or_b32 v12, v12, v15                 ; swz/2')
    a('    s_lshl_b32 s25, s23, 1')
    a('    v_xor_b32 v15, s25, v12')
    a('    v_lshl_or_b32 v15, v15, 1, v14')
    a('    v_lshl_add_u32 v16, v15, 4, v13')
    a('    s_add_u32 s25, s25, 1')
    a('    v_xor_b32 v15, s25, v12')
    a('    v_lshl_or_b32 v15, v15, 1, v14')
    a('    v_lshl_add_u32 v17, v15, 4, v13')
    a('    v_lshlrev_b32 v21, 8, v4')
    a('    v_lshl_add_u32 v21, v5, 4, v21')
    a('    s_lshl_b32 s25, s23, 7')
    a('    s_lshl_b32 s26, s58, 8')
    a('    s_add_u32 s25, s25, s26')
    a('    v_add_u32 v21, s25, v21')
    a('    v_cmp_gt_u32 vcc, s59, v4')
    a(f'    v_mov_b32 v22, {1<<30}')
    a(f'    s_mov_b32 s27, {hex(f2u(-LOG2E))}')
    a('    s_mov_b32 s28, 0xffff0000')
    a('    v_cndmask_b32 v9, v22, v21, vcc')
    a('    s_mov_b32 s29, 0x80000000')
    a('    v_mov_b32 v10, 0')
    a('    v_mov_b32 v11, 1')
    if K1PF:
        a('    s_cmp_eq_u32 s21, 5')
        a('    s_cbranch_scc0 K1_T_W2')
        a('    s_waitcnt vmcnt(9)')
        a('    s_branch K1_T_W9')
        a.label('K1_T_W2')
    a('    s_waitcnt vmcnt(2)')
    if K1PF: a.label('K1_T_W9')
    stamp(a, 1)
    for i in range(3):
        if i == 2:
            a('    s_cmp_lt_u32 s21, 4')
            a('    s_cbranch_scc0 K1_T_ST2')
        a(f'    ds_write_b128 v{18+i}, v[{48+4*i}:{51+4*i}] offset:{L1_W}')
    a.label('K1_T_ST2')
    lds_sync(a, 'K1_T_SPIN', L1_SYNC, 6, 10, 11, 12, 26)
    stamp(a, 3)
    order = [(jj, ks, m) for jj in range(2) for ks in range(2) for m in range(2)]
    for i, (jj, ks, m) in enumerate(order):
        b = 64 + 4*i
        off = L1_W + m*8192 + ks*32*128
        a(f'    ds_read_b64_tr_b16 v[{b}:{b+1}], v{16+jj} offset:{off}')
        a(f'    ds_read_b64_tr_b16 v[{b+2}:{b+3}], v{16+jj} offset:{off+512}')
    if K1PF:
        a('    s_cmp_eq_u32 s21, 5')
        a('    s_cbranch_scc0 K1_T_X0')
        a('    s_waitcnt vmcnt(7)')
        a('    s_branch K1_T_XOK')
        a.label('K1_T_X0')
    a('    s_waitcnt vmcnt(0)')
    if K1PF: a.label('K1_T_XOK')
    for i, (jj, ks, m) in enumerate(order):
        b = 64 + 4*i
        a(f'    s_waitcnt lgkmcnt({min(15, 2*(7-i))})')
        acc = 32 + 8*m + 4*jj
        x = 24 + 4*ks
        c = '0' if ks == 0 else f'v[{acc}:{acc+3}]'
        a(f'    v_mfma_f32_16x16x32_bf16 v[{acc}:{acc+3}], v[{b}:{b+3}], v[{x}:{x+3}], {c}')
    stamp(a, 4)
    a('    s_nop 4')
    for jj in range(2):
        R = range(4)
        p = lambda r: 32 + 4*jj + r
        q = lambda r: 40 + 4*jj + r
        t = lambda r: 10 + r
        if jj == 1: a('    s_nop 2')
        for r in R: a(f'    v_mul_f32 v{p(r)}, s27, v{p(r)}')
        for r in R: a(f'    v_cvt_f16_f32 v{p(r)}, v{p(r)}')
        for r in R: a(f'    v_and_b32 v{t(r)}, 0x7fffffff, v{q(r)}')
        for r in R: a(f'    v_and_b32 v{p(r)}, 0xffff, v{p(r)}')
        for r in R: a(f'    v_sub_u32 v{t(r)}, v{t(r)}, v{p(r)}')
        for r in R: a(f'    v_add_u32 v{t(r)}, 0x8000, v{t(r)}')
        for r in R: a(f'    v_max_i32 v{t(r)}, 0, v{t(r)}')
        for r in R: a(f'    v_and_or_b32 v{t(r)}, v{t(r)}, s28, v{p(r)}')
        for r in R: a(f'    v_and_or_b32 v{p(r)}, v{q(r)}, s29, v{t(r)}')
        a(f'    buffer_store_dwordx4 v[{32+4*jj}:{35+4*jj}], v9, s[44:47], 0 offen offset:{jj*64} {TST}')
    a('    s_cmp_eq_u32 s2, 0')
    a('    s_cbranch_scc0 K1_TFIN')
    a('    s_cmp_eq_u32 s21, 0')
    a('    s_cbranch_scc0 K1_TFIN')
    a('    v_mov_b32 v10, 0x7c00')
    a(f'    v_lshlrev_b32 v11, 2, v2')
    a(f'    v_add_u32 v11, {N*256}, v11')
    a(f'    buffer_store_dword v10, v11, s[44:47], 0 offen {TST}')
    a.label('K1_TFIN')
    stamp(a, 5)
    if STAMP:
        stamp(a, 6)
        a('    s_waitcnt vmcnt(0)')
        stamp(a, 7); stamp(a, 1, True)
        if STAMP >= 3:
            a('    s_waitcnt lgkmcnt(0)')
            a(f'    s_mov_b32 s{ST0+4}, s{ST0+16}')
        else: stamp(a, 2)
        if TFIRST: a('    s_add_u32 s20, s20, 10')
        stamp_flush(a, 20, 2, 0, 6)
    a.label('K1_END')
    a('    s_endpgm')

CAP = 4096
TS = 272
L2_CNT = 0; L2_FLG = 256
L2_LIST = 512
L2_SLOT = L2_LIST + CAP*4
L2_EAT = L2_SLOT + 56*512; L2_UT = L2_EAT + 48*TS
XS = 144
L2_XT = L2_UT + 48*TS
L2_W = L2_XT + 48*XS
K2_LDS = L2_W + 16384
U = 4
TPF = int(env('TPF', '1'))
PFPOS = int(env('PFPOS', '1'))
PGT = int(env('PGT', '0'))
ASTAGE = int(env('ASTAGE', '1'))
G0N = int(env('G0N', '1'))
PFS = [int(x) for x in env('PFS', '6,6,6,6,8,8').split(',')]
PFW = int(env('PFW', '4'))
PFE = int(env('PFE', '0'))
PFL = int(env('PFL', '640'))
PFN = int(env('PFN', '20'))
PRT = [int(x) for x in env('PRT', '9,4,2').split(',')]

def gen_k2(a):
    assert not WULATE or (TPF and PFPOS == 1 and ASTAGE)
    a.k2 = True
    sB = 2; sWAVE = 3
    SRD_DESC = 12; SRD_REC = 16; SRD_T = 20; SRD_W = 24; SRD_X = 28; SRD_OUT = 32; SRD_WC = 36
    sMODE = 40; sPASS = 41
    sG0 = 42; sG1 = 43; sGEND = 44; sLEFT = 45; sNODE = 46; sT0 = 47; sT1 = 48; sSAFE = 49; sGT = 50; sR = 51
    sEX = 52; sEAB = 54; sPR = 55; sPQ = 56; sLVL = 57; sSLOT = 58; sNR = 59; sPQ2 = 60; sN0 = 62; sNN = 63; sNT = 61; sJ = 58
    sM = 64
    vLANE = 1
    vWC = 4; vEA = 8; vDEN = 12; vNUM = 16; vT = 20; vDAT = 24; vP = 40; vEV = 48
    vSA = 50; vACC = 51; vEAA = 52; vGS = 53; vQ16 = 54; vNG = 55
    vDA = 56; vNA = 60
    vX = 64
    vFL = 66
    vGE = 67
    vXO = 68
    vR = 76
    vB = 84
    vRK = 92
    vLA = 100
    vA = 108
    vCNT = 118; vRO = 119; vI = 120; vRM = 121; vTRA = 122; vXRA = 123; vROW = 121; vPFA = 51
    vLC = 12
    vPF = 16
    vXO2 = vXO
    SRD_LOC = 8; SRD_PF = 24
    vW = 24; vOP = 24; vAC = 40
    vOP2 = 76; vAC2 = 92
    vFS = 101; vFC = 102; vUTA = 103; vXTA = 106
    vOP3 = 24; vAC3 = 20; vAK = 20
    vU = 96; vUA = 100

    pf_state = {'next': 0}
    def pf(i):
        if not (TPF and PFPOS == 4) or PFS[i] == 0: return 0
        n = PFS[i]; st = pf_state['next']; pf_state['next'] += n
        assert pf_state['next'] <= 40
        base, off = (sJ, st*128) if st*128 < 4096 else (9, st*128 - 4096)
        a(f'    s_mov_b64 exec, {hex((1 << n) - 1)}')
        a(f'    buffer_load_dword v{vPF}, v{vPFA}, s[36:39], s{base} offen offset:{off}')
        a('    s_mov_b64 exec, -1')
        return 1
    npf = lambda *idx: sum(1 for i in idx if TPF and PFPOS == 4 and PFS[i] > 0)
    a('.p2align 8')
    a('.type k2_kernel,@function')
    a.label('k2_kernel')
    a(f'    s_cmp_ge_u32 s2, {NB}')
    a('    s_cbranch_scc1 K2_END')
    stamp(a, 0); stamp(a, 0, True)
    if CPF and CPF2:
        a('    s_getpc_b64 s[30:31]')
        a.label('K2_PC')
        a('    v_lshlrev_b32 v124, 7, v0')
        a('    v_cmp_gt_u32 vcc, CODE_END-K2_PC, v124')
        a('    s_and_saveexec_b64 s[28:29], vcc')
        a('    s_cbranch_execz K2_NOCPF')
        a('    global_load_dword v125, v124, s[30:31]')
        a.label('K2_NOCPF')
        a('    s_mov_b64 exec, s[28:29]')
    a(f'    s_lshr_b32 s{sJ}, s2, 3')
    if XMAP:
        a(f'    s_and_b32 s{sT0}, s2, 7')
        a(f'    s_lshl_b32 s{sT0}, s{sT0}, 5')
        a(f'    s_add_u32 s2, s{sT0}, s{sJ}')
    a(f'    s_mul_i32 s{sN0}, s2, 625')
    a(f'    s_add_u32 s{sNN}, s{sN0}, 640')
    a(f'    s_add_u32 s{sN0}, s{sN0}, 15')
    a(f'    s_lshr_b32 s{sN0}, s{sN0}, 4')
    a(f'    s_lshr_b32 s{sNN}, s{sNN}, 4')
    a(f'    s_sub_u32 s{sNN}, s{sNN}, s{sN0}')
    a('    s_load_dwordx2 s[6:7], s[0:1], 88      ; ws')
    a('    s_load_dwordx2 s[4:5], s[0:1], 0       ; x')
    a('    s_load_dwordx2 s[8:9], s[0:1], 32      ; w_a')
    a('    s_load_dwordx4 s[76:79], s[0:1], 48    ; w_c, w_u')
    a('    s_load_dwordx2 s[10:11], s[0:1], 72    ; out')
    a(f'    v_and_b32 v{vLANE}, 63, v0')
    a(f'    v_lshrrev_b32 v{vA}, 6, v0')
    a(f'    v_and_b32 v{vQ16}, 15, v0')
    a(f'    v_readfirstlane_b32 s{sWAVE}, v{vA}')
    a(f'    v_lshlrev_b32 v{vQ16}, 4, v{vQ16}      ; q*16')
    if DESCT:
        a(f'    v_and_b32 v{vA}, 0x3fc, v0             ; (t>>2)*4')
        a(f'    s_lshl_b32 s{sT0}, s{sB}, 10')
    else:
        a(f'    v_lshrrev_b32 v{vA}, 2, v0')
        a(f'    v_lshlrev_b32 v{vA}, 10, v{vA}')
        a(f'    s_lshl_b32 s{sT0}, s{sB}, 2')
    for i in range(4):
        a(f'    v_mov_b32 v{vDA+i}, 0')
        a(f'    v_mov_b32 v{vNA+i}, 0')
    masked(a, 'v_cmp_gt_u32 vcc, 4, v0', sEX)
    a(f'    v_lshlrev_b32 v{vA+5}, 2, v0')
    a(f'    ds_write_b32 v{vA+5}, v{vDA} offset:{L2_FLG}')
    unmask(a, sEX)
    a(f'    s_mov_b32 s{sMODE}, 0')
    a(f'    s_mov_b32 s{sPASS}, 0')
    a(f'    v_mov_b32 v{vEV}, 0')
    a(f'    v_mov_b32 v{vEV+1}, 0')
    for k in range(U):
        a(f'    v_mov_b32 v{vP+2*k}, {N}')
        a(f'    v_mov_b32 v{vP+2*k+1}, v{vQ16}')
    a(f'    v_lshrrev_b32 v{vA+1}, 5, v{vLANE}')
    a(f'    v_lshl_add_u32 v{vFL}, v{vA+1}, 8, v{vQ16}')
    a(f'    v_bfe_u32 v{vA+1}, v{vLANE}, 4, 1')
    a(f'    v_lshl_add_u32 v{vFL}, v{vA+1}, 3, v{vFL}')
    a.label('K2_PASS')
    for i in range(4):
        a(f'    v_mov_b32 v{vA+6+i}, {N}')
    a(f'    v_lshlrev_b32 v{vA+5}, 4, v0')
    a(f'    ds_write_b128 v{vA+5}, v[{vA+6}:{vA+9}] offset:{L2_LIST}')
    masked(a, 'v_cmp_gt_u32 vcc, 64, v0', sEX)
    a(f'    v_lshlrev_b32 v{vA+4}, 2, v0')
    a(f'    v_mov_b32 v{vA+3}, 0')
    a(f'    ds_write_b32 v{vA+4}, v{vA+3} offset:{L2_CNT}')
    unmask(a, sEX)
    a(f'    s_cmp_eq_u32 s{sMODE}, 0')
    a('    s_cbranch_scc0 K2_SLOWPARAM')
    a('    s_waitcnt lgkmcnt(0)')
    srd(a, SRD_DESC, 6, 7, NB*DESC_STRIDE, off=WS_DESC)
    a(f'    buffer_load_dword v{vCNT}, v{vA}, s[{SRD_DESC}:{SRD_DESC+3}], s{sT0} offen')
    a(f'    s_cmp_lt_u32 s{sWAVE}, 8')
    a(f'    s_cselect_b32 s{SRD_W}, s8, s78')
    a(f'    s_cselect_b32 s{SRD_W+1}, s9, s79')
    a(f'    s_mov_b32 s{SRD_W+2}, 8192')
    a(f'    s_mov_b32 s{SRD_W+3}, 0x00020000')
    srd(a, SRD_X, 4, 5, N*128)
    srd(a, SRD_WC, 76, 77, 128)
    a(f'    v_and_b32 v{vA+1}, 511, v0')
    a(f'    v_lshlrev_b32 v{vA+1}, 4, v{vA+1}')
    if WULATE:
        a(f'    s_cmp_lt_u32 s{sWAVE}, 8')
        a(f'    s_cselect_b32 s{sT1}, 0, {1<<20}')
    a(f'    buffer_load_dwordx4 v[{vW}:{vW+3}], v{vA+1}, s[{SRD_W}:{SRD_W+3}], ' + (f's{sT1}' if WULATE else '0') + ' offen')
    a(f'    v_lshlrev_b32 v{vA+4}, 4, v0')
    a(f'    v_cmp_gt_u32 vcc, 384, v0')
    a(f'    v_mov_b32 v{vA+3}, {1<<30}')
    a(f'    s_lshl_b32 s{sT1}, s{sN0}, 7')
    a(f'    v_cndmask_b32 v{vA+4}, v{vA+3}, v{vA+4}, vcc')
    a(f'    buffer_load_dwordx4 v[{vXO}:{vXO+3}], v{vA+4}, s[{SRD_X}:{SRD_X+3}], s{sT1} offen')
    a(f'    v_lshrrev_b32 v{vA+7}, 1, v{vQ16}      ; q*8 (wc)')
    a(f'    buffer_load_dwordx2 v[{vWC}:{vWC+1}], v{vA+7}, s[{SRD_WC}:{SRD_WC+3}], 0 offen')
    if WULATE:
        srd(a, 36, 78, 79, 8192)
    if TPF and PFPOS == 4:
        srd(a, 36, 6, 7, T_BYTES, off=WS_T)
        a(f'    s_mul_i32 s{sJ}, s{sJ}, {640*128}')
        a(f'    s_mul_i32 s9, s{sWAVE}, {40*128}')
        a(f'    s_add_u32 s{sJ}, s{sJ}, s9')
        a(f'    s_add_u32 s9, s{sJ}, 4096')
        a(f'    v_lshlrev_b32 v{vPFA}, 7, v{vLANE}')
        pf(0)
    if PFE:
        srd(a, SRD_REC, 6, 7, T_BYTES, off=WS_T)
        a(f'    s_mul_i32 s{sT0}, s{sJ}, {640*128}')
        a(f'    s_mul_i32 s{sT1}, s{sWAVE}, {40*128}')
        a(f'    s_add_u32 s{sT0}, s{sT0}, s{sT1}')
        a(f'    s_add_u32 s{sT0}, s{sT0}, {PFN*128}')
        a(f'    v_lshlrev_b32 v{vPF+1}, 7, v{vLANE}')
        a(f'    v_cmp_gt_u32 vcc, {PFE}, v{vLANE}')
        a(f'    v_mov_b32 v{vPF+2}, {1<<30}')
        a('    s_nop 0')
        a(f'    v_cndmask_b32 v{vPF+1}, v{vPF+2}, v{vPF+1}, vcc')
        a(f'    buffer_load_dword v{vPF+1}, v{vPF+1}, s[{SRD_REC}:{SRD_REC+3}], s{sT0} offen')
    if PGT:
        srd(a, SRD_REC, 6, 7, WS_T + T_BYTES, off=0)
        a(f'    v_lshlrev_b32 v{vPF+1}, 21, v{vLANE}')
        a(f'    buffer_load_dword v{vPF+1}, v{vPF+1}, s[{SRD_REC}:{SRD_REC+3}], 0 offen')
    if not ASTAGE: a('    s_barrier')
    srd(a, SRD_OUT, 10, 11, N*128)
    srd(a, SRD_REC, 6, 7, NC*REC_STRIDE + 64, off=WS_REC)
    srd(a, SRD_T, 6, 7, 0, off=WS_T, stride=256, nrec=N+1)
    a(f'    v_lshrrev_b32 v{vA}, 2, v0             ; c')
    a(f'    v_mul_u32_u24 v{vRO}, {REC_STRIDE}, v{vA}')
    a(f'    v_and_b32 v{vI}, 3, v0')
    a(f'    v_lshlrev_b32 v{vI}, 2, v{vI}')
    a(f'    v_mad_u32_u24 v{vRO}, v{vI}, 5, v{vRO}')
    a(f'    s_mov_b32 s{sT1}, 16')
    a(f'    s_waitcnt vmcnt({3+PGT+(1 if PFE else 0)+npf(0)})                      ; descriptor')
    stamp(a, 1)
    a(f'    v_and_b32 v{vA+1}, 0xffff, v{vCNT}      ; start')
    a(f'    v_lshrrev_b32 v{vCNT}, 16, v{vCNT}      ; cnt')
    a(f'    v_mad_u32_u24 v{vRO}, v{vA+1}, 5, v{vRO}')
    a('    s_branch K2_PARAMDONE')
    a.label('K2_SLOWPARAM')
    a(f'    s_lshl_b32 s{sT0}, s{sB}, {10 if DESCT else 2}')
    a(f'    s_lshl_b32 s{sT1}, s{sPASS}, {2 if DESCT else 10}')
    a(f'    s_add_u32 s{sT0}, s{sT0}, s{sT1}')
    a(f'    v_mov_b32 v{vA}, 0')
    a(f'    buffer_load_dword v{vCNT}, v{vA}, s[{SRD_DESC}:{SRD_DESC+3}], s{sT0} offen')
    a(f'    s_mul_i32 s{sT0}, s{sPASS}, {REC_STRIDE}')
    a('    s_waitcnt vmcnt(0) lgkmcnt(0)')
    a('    s_barrier')
    a(f'    v_and_b32 v{vA+1}, 0xffff, v{vCNT}')
    a(f'    v_lshlrev_b32 v{vI}, 2, v0')
    a(f'    v_add_u32 v{vA+1}, v{vA+1}, v{vI}')
    a(f'    v_mul_u32_u24 v{vRO}, 5, v{vA+1}')
    a(f'    v_add_u32 v{vRO}, s{sT0}, v{vRO}')
    a(f'    v_lshrrev_b32 v{vCNT}, 16, v{vCNT}')
    a(f'    s_mov_b32 s{sT1}, 4096')
    a.label('K2_PARAMDONE')
    a(f'    v_sub_u32 v{vRM}, v{vCNT}, v{vI}')
    a(f'    s_mul_i32 s{sT0}, s{sT1}, 5')
    a(f'    s_mov_b32 s{sNR}, 0')
    for r in range(2):
        m0 = sM + 8*r
        if r == 1:
            a(f'    v_subrev_u32 v{vRM}, s{sT1}, v{vRM}')
        for h in range(4):
            a(f'    v_cmp_gt_i32 s[{m0+2*h}:{m0+2*h+1}], v{vRM}, {h}' if h else f'    v_cmp_lt_i32 s[{m0}:{m0+1}], 0, v{vRM}')
        a(f'    s_cmp_eq_u64 s[{m0}:{m0+1}], 0')
        a(f'    s_cbranch_scc1 K2_LD_DONE')
        a(f'    s_mov_b64 exec, s[{m0}:{m0+1}]')
        a(f'    buffer_load_dwordx4 v[{vR+4*r}:{vR+4*r+3}], v{vRO}, s[{SRD_REC}:{SRD_REC+3}], 0 offen {RLD}')
        a(f'    buffer_load_dword v{vLC+r}, v{vRO}, s[{SRD_REC}:{SRD_REC+3}], 0 offen offset:16 {RLD}')
        a(f'    s_mov_b64 exec, -1')
        a(f'    s_mov_b32 s{sNR}, {r+1}')
        if r < 1:
            a(f'    v_add_u32 v{vRO}, s{sT0}, v{vRO}')
    a.label('K2_LD_DONE')
    a(f'    s_or_b32 s{sT0}, s{sMODE}, s{sPASS}')
    a(f'    s_cmp_eq_u32 s{sT0}, 0')
    a('    s_cbranch_scc0 K2_LATER_PASS')
    pf(1)
    if TPF and PFPOS == 3:
        a(f'    s_mul_i32 s{sT0}, s{sJ}, {640*128}')
        a(f'    s_mul_i32 s{sT1}, s{sWAVE}, {40*128}')
        a(f'    s_add_u32 s{sT0}, s{sT0}, s{sT1}')
        a(f'    s_add_u32 s{sT0}, s{sT0}, {WS_T}')
        a(f'    s_add_u32 s24, s6, s{sT0}')
        a(f'    s_addc_u32 s25, s7, 0')
        for i in range(PFN):
            a(f'    s_load_dword s26, s[24:25], {128*i}')
    if TPF and PFPOS == 2:
        W0 = 16 - PFW
        per = PFL // PFW
        a(f'    s_cmp_ge_u32 s{sWAVE}, {W0}')
        a('    s_cbranch_scc0 K2_NOPF2')
        srd(a, SRD_PF, 6, 7, T_BYTES, off=WS_T)
        a(f'    s_mul_i32 s{sT0}, s{sJ}, {640*128}')
        a(f'    s_sub_u32 s{sT1}, s{sWAVE}, {W0}')
        a(f'    s_mul_i32 s{sT1}, s{sT1}, {per*128}')
        a(f'    s_add_u32 s{sT0}, s{sT0}, s{sT1}')
        a(f'    v_lshlrev_b32 v{vPFA}, 7, v{vLANE}')
        nin = (per + 63)//64
        for i in range(nin):
            left = per - 64*i
            if left < 64:
                a(f'    v_cmp_gt_u32 vcc, {left}, v{vLANE}')
                a(f'    v_mov_b32 v{vPF+1}, {1<<30}')
                a('    s_nop 0')
                a(f'    v_cndmask_b32 v{vPFA}, v{vPF+1}, v{vPFA}, vcc')
            a(f'    buffer_load_dword v{vPF}, v{vPFA}, s[{SRD_PF}:{SRD_PF+3}], s{sT0} offen')
            if i + 1 < nin: a(f'    s_add_u32 s{sT0}, s{sT0}, 8192')
        a.label('K2_NOPF2')
    a(f'    v_lshrrev_b32 v{vA+8}, 3, v0')
    a(f'    v_mul_u32_u24 v{vA+8}, {XS}, v{vA+8}')
    a(f'    v_and_b32 v{vA+7}, 7, v0')
    a(f'    v_lshl_add_u32 v{vA+8}, v{vA+7}, 4, v{vA+8}')
    a(f'    v_add_u32 v{vA+8}, {L2_XT}, v{vA+8}')
    NPF = 1 if TPF else 0
    a(f'    v_bfe_u32 v{vA+1}, v0, 4, 1')
    a(f'    v_bfe_u32 v{vA+2}, v0, 6, 1')
    a(f'    v_lshlrev_b32 v{vA+1}, 1, v{vA+1}')
    a(f'    v_lshl_or_b32 v{vA+1}, v{vA+2}, 2, v{vA+1}')
    a(f'    v_and_b32 v{vA+2}, 7, v0')
    a(f'    v_xor_b32 v{vA+1}, v{vA+1}, v{vA+2}')
    a(f'    v_lshrrev_b32 v{vA+2}, 3, v0')
    a(f'    v_lshlrev_b32 v{vA+2}, 7, v{vA+2}')
    a(f'    v_lshl_add_u32 v{vA+9}, v{vA+1}, 4, v{vA+2}')
    a(f'    v_add_u32 v{vA+9}, {L2_W}, v{vA+9}')
    a(f'    v_lshrrev_b32 v{vA+3}, 4, v{vLANE}     ; g')
    a(f'    v_bfe_u32 v{vA}, v{vLANE}, 2, 2        ; r')
    a(f'    v_lshl_add_u32 v{vA+1}, v{vA+3}, 3, v{vA}')
    a(f'    v_lshlrev_b32 v{vA+1}, 7, v{vA+1}')
    a(f'    v_and_b32 v{vA+2}, 1, v{vLANE}')
    a(f'    v_lshl_add_u32 v{vA+1}, v{vA+2}, 3, v{vA+1}')
    a(f'    v_lshrrev_b32 v{vA}, 1, v{vA}')
    a(f'    v_and_b32 v{vA+2}, 1, v{vA+3}')
    a(f'    v_lshl_or_b32 v{vA}, v{vA+2}, 1, v{vA}     ; swz/2')
    a(f'    s_and_b32 s{sT0}, s{sWAVE}, 3')
    a(f'    v_xor_b32 v{vA}, s{sT0}, v{vA}')
    a(f'    v_bfe_u32 v{vA+2}, v{vLANE}, 1, 1')
    a(f'    v_lshl_or_b32 v{vA}, v{vA}, 1, v{vA+2}')
    a(f'    v_lshl_add_u32 v{vTRA}, v{vA}, 4, v{vA+1}')
    a(f'    v_add_u32 v{vTRA}, {L2_W}, v{vTRA}')
    a(f'    s_lshr_b32 s{sT1}, s{sWAVE}, 2')
    a(f'    s_lshl_b32 s{sT1}, s{sT1}, 4')
    a(f'    v_and_b32 v{vA+2}, 15, v{vLANE}')
    a(f'    v_add_u32 v{vROW}, s{sT1}, v{vA+2}     ; row')
    a(f'    v_mul_u32_u24 v{vA+1}, {XS}, v{vROW}')
    a(f'    v_lshl_add_u32 v{vA+1}, v{vA+3}, 4, v{vA+1}')
    a(f'    v_add_u32 v{vXRA}, {L2_XT}, v{vA+1}')
    a(f'    v_mul_u32_u24 v{vA+4}, {TS}, v{vROW}')
    a(f'    v_lshl_add_u32 v{vA+4}, v{vA+3}, 4, v{vA+4}')
    a(f'    s_lshl_b32 s{sT0}, s{sT0}, 6')
    a(f'    s_add_u32 s{sT0}, s{sT0}, {L2_EAT}')
    a(f'    v_add_u32 v{vEAA}, s{sT0}, v{vA+4}')
    if TPF and PFPOS < 2:
        srd(a, SRD_PF, 6, 7, T_BYTES, off=WS_T)
        a(f'    s_mul_i32 s{sT0}, s{sJ}, {640*128}')
        a(f'    s_mul_i32 s{sT1}, s{sWAVE}, {40*128}')
        a(f'    s_add_u32 s{sJ}, s{sT0}, s{sT1}')
        a(f'    v_lshlrev_b32 v{vA+3}, 7, v{vLANE}')
        a(f'    v_cmp_gt_u32 vcc, {PFN}, v{vLANE}')
        a(f'    v_mov_b32 v{vA+4}, {1<<30}')
        a('    s_nop 0')
        a(f'    v_cndmask_b32 v{vPFA}, v{vA+4}, v{vA+3}, vcc')
    if ASTAGE:
        a(f'    s_cmp_eq_u32 s{sNR}, 2')
        a('    s_cbranch_scc1 K2_WW4')
        a(f'    s_cmp_eq_u32 s{sNR}, 1')
        a('    s_cbranch_scc1 K2_WW2')
        a(f'    s_waitcnt vmcnt({npf(1)})')
        a('    s_branch K2_WWD')
        a.label('K2_WW4')
        a(f'    s_waitcnt vmcnt({4+npf(1)})')
        a('    s_branch K2_WWD')
        a.label('K2_WW2')
        a(f'    s_waitcnt vmcnt({2+npf(1)})')
        a.label('K2_WWD')
        if WULATE:
            a(f'    s_cmp_lt_u32 s{sWAVE}, 8')
            a('    s_cbranch_scc0 K2_NOXST0')
        a(f'    ds_write_b128 v{vA+9}, v[{vW}:{vW+3}]')
        a(f'    s_cmp_lt_u32 s{sWAVE}, 6')
        a('    s_cbranch_scc0 K2_NOXST0')
        a(f'    ds_write_b128 v{vA+8}, v[{vXO}:{vXO+3}]')
        a.label('K2_NOXST0')
        a('    s_waitcnt lgkmcnt(0)')
        a('    s_barrier')
        pf(2)
        a(f'    s_cmp_lt_u32 s{sWAVE}, 12')
        a('    s_cbranch_scc0 K2_NOMFMA0')
        a(f'    ds_read_b128 v[{vXO}:{vXO+3}], v{vXRA}')
        a(f'    ds_read_b64_tr_b16 v[{vOP3}:{vOP3+1}], v{vTRA}')
        a(f'    ds_read_b64_tr_b16 v[{vOP3+2}:{vOP3+3}], v{vTRA} offset:{0+512}')
        a(f'    ds_read_b128 v[{vXO+4}:{vXO+7}], v{vXRA} offset:64')
        a(f'    ds_read_b64_tr_b16 v[{vOP3+4}:{vOP3+5}], v{vTRA} offset:{0+4096}')
        a(f'    ds_read_b64_tr_b16 v[{vOP3+6}:{vOP3+7}], v{vTRA} offset:{0+4096+512}')
        a(f'    s_mov_b32 s{sT0}, {hex(f2u(-LOG2E))}')
        a(f'    s_mov_b32 s{sT1}, {hex(f2u(60.0))}')
        a('    s_waitcnt lgkmcnt(3)')
        a(f'    v_mfma_f32_16x16x32_bf16 v[{vAC3}:{vAC3+3}], v[{vOP3}:{vOP3+3}], v[{vXO}:{vXO+3}], 0')
        a('    s_waitcnt lgkmcnt(0)')
        a(f'    v_mfma_f32_16x16x32_bf16 v[{vAC3}:{vAC3+3}], v[{vOP3+4}:{vOP3+7}], v[{vXO+4}:{vXO+7}], v[{vAC3}:{vAC3+3}]')
        a('    s_nop 7')
        for i in range(4):
            a(f'    v_mul_f32 v{vAC3+i}, s{sT0}, v{vAC3+i}')
        for i in range(4):
            a(f'    v_exp_f32 v{vOP3+i}, v{vAC3+i}')
        a(f'    v_max3_f32 v{vA+5}, |v{vAC3}|, |v{vAC3+1}|, |v{vAC3+2}|')
        a(f'    v_max_f32 v{vA+5}, v{vA+5}, |v{vAC3+3}|')
        a(f'    ds_write_b128 v{vEAA}, v[{vOP3}:{vOP3+3}]')
        a(f'    v_cmp_nle_f32 vcc, v{vA+5}, s{sT1}')
        a(f'    v_cmp_gt_u32 s[{sEX}:{sEX+1}], s{sNN}, v{vROW}')
        a(f'    s_and_b64 vcc, vcc, s[{sEX}:{sEX+1}]')
        a(f'    s_and_saveexec_b64 s[{sEX}:{sEX+1}], vcc')
        a('    s_cbranch_execz K2_GUARD_OK0')
        a(f'    v_mov_b32 v{vA+5}, 1')
        a(f'    v_mov_b32 v{vA+7}, 0')
        a(f'    ds_write_b32 v{vA+7}, v{vA+5} offset:{L2_FLG+4}')
        unmask(a, sEX, 'K2_GUARD_OK0')
        a.label('K2_NOMFMA0')
        pf(3)
        if TPF and PFPOS == 4:
            a(f'    v_mov_b32 v{vA+2}, 1')
            a(f'    s_waitcnt vmcnt({npf(1,2,3)})')
            pf(4)
            a('    s_branch K2_RANKS')
    if TPF and PFPOS == 2:
        a(f'    v_mov_b32 v{vA+2}, 1')
        a(f'    s_cmp_ge_u32 s{sWAVE}, {16 - PFW}')
        a('    s_cbranch_scc0 K2_LATER_PASS')
        a(f'    s_waitcnt vmcnt({(PFL // PFW + 63)//64})')
        a('    s_branch K2_RANKS')
    a.label('K2_LATER_PASS')
    a(f'    v_mov_b32 v{vA+2}, 1')
    a('    s_waitcnt vmcnt(0)')
    if TPF and PFPOS == 1:
        a(f'    s_or_b32 s{sT0}, s{sMODE}, s{sPASS}')
        a(f'    s_cmp_eq_u32 s{sT0}, 0')
        a('    s_cbranch_scc0 K2_RANKS')
        if WULATE:
            a(f'    s_cmp_ge_u32 s{sWAVE}, 8')
            a('    s_cbranch_scc0 K2_NOWU')
            a(f'    v_and_b32 v{vA+3}, 511, v0')
            a(f'    v_lshlrev_b32 v{vA+3}, 4, v{vA+3}')
            a(f'    buffer_load_dwordx4 v[{vW}:{vW+3}], v{vA+3}, s[36:39], 0 offen')
            a.label('K2_NOWU')
        a(f'    buffer_load_dword v{vPF}, v{vPFA}, s[{SRD_PF}:{SRD_PF+3}], s{sJ} offen')
    a.label('K2_RANKS')
    stamp(a, 2)
    for r in range(2):
        a(f'    s_cmp_le_u32 s{sNR}, {r}')
        a('    s_cbranch_scc1 K2_RK_DONE')
        d = vR + 4*r
        a(f'    v_and_b32 v{vLA+4*r}, 0xff, v{d+1}')
        a(f'    v_bfe_u32 v{vLA+4*r+1}, v{d+2}, 8, 8')
        a(f'    v_bfe_u32 v{vLA+4*r+2}, v{d+3}, 16, 8')
        a(f'    v_lshrrev_b32 v{vLA+4*r+3}, 24, v{vLC+r}')
        for h in range(4):
            k = 4*r + h
            a(f'    s_mov_b64 exec, s[{sM+2*k}:{sM+2*k+1}]')
            a(f'    ds_add_rtn_u32 v{vRK+k}, v{vLA+k}, v{vA+2} offset:{L2_CNT}')
        a('    s_mov_b64 exec, -1')
        a(f'    v_alignbyte_b32 v{d+1}, v{d+2}, v{d+1}, 1')
        a(f'    v_alignbyte_b32 v{d+2}, v{d+3}, v{d+2}, 2')
        a(f'    v_alignbyte_b32 v{d+3}, v{vLC+r}, v{d+3}, 3')
    a.label('K2_RK_DONE')
    masked(a, f'v_cmp_lt_u32 vcc, 32, v{vCNT}', sEX, 'K2_NOOVF')
    a(f'    v_mov_b32 v{vA+3}, 0')
    a(f'    ds_write_b32 v{vA+3}, v{vA+2} offset:{L2_FLG}')
    unmask(a, sEX, 'K2_NOOVF')
    a(f'    s_or_b32 s{sT0}, s{sMODE}, s{sPASS}')
    a(f'    s_cmp_eq_u32 s{sT0}, 0')
    a('    s_cbranch_scc0 K2_NOWST')
    pf(5)
    if not ASTAGE:
        a(f'    ds_write_b128 v{vA+9}, v[{vW}:{vW+3}]')
        a(f'    s_cmp_lt_u32 s{sWAVE}, 6')
        a('    s_cbranch_scc0 K2_NOXST')
        a(f'    ds_write_b128 v{vA+8}, v[{vXO}:{vXO+3}]')
        a.label('K2_NOXST')
    a(f'    s_mov_b32 s{sT0}, {hex(f2u(-LOG2E))}')
    a(f'    v_and_b32 v{vWC+3}, 0xffff0000, v{vWC+1}')
    a(f'    v_lshlrev_b32 v{vWC+2}, 16, v{vWC+1}')
    a(f'    v_and_b32 v{vWC+1}, 0xffff0000, v{vWC}')
    a(f'    v_lshlrev_b32 v{vWC}, 16, v{vWC}')
    for k in range(4):
        a(f'    v_mul_f32 v{vWC+k}, s{sT0}, v{vWC+k}')
    a.label('K2_NOWST')
    a(f'    v_lshlrev_b32 v{vA+1}, 2, v{vLANE}')
    a(f'    v_mov_b32 v{vA}, 0')
    a('    s_waitcnt lgkmcnt(0)')
    stamp(a, 3)
    a('    s_barrier')
    stamp(a, 4)
    if TPF and PFPOS == 0:
        a(f'    s_or_b32 s{sT0}, s{sMODE}, s{sPASS}')
        a(f'    s_cmp_eq_u32 s{sT0}, 0')
        a('    s_cbranch_scc0 K2_NOPF')
        a(f'    buffer_load_dword v{vPF}, v{vPFA}, s[{SRD_PF}:{SRD_PF+3}], s{sJ} offen')
        a.label('K2_NOPF')
    a(f'    ds_read_b32 v{vNG}, v{vA+1} offset:{L2_CNT}')
    a(f'    ds_read_b32 v{vA+4}, v{vA} offset:{L2_FLG}')
    a('    s_waitcnt lgkmcnt(1)')
    a(f'    v_add_u32 v{vNG}, 3, v{vNG}')
    a(f'    v_lshrrev_b32 v{vNG}, 2, v{vNG}')
    a(f'    v_mov_b32 v{vGE}, v{vNG}')
    dpp_scan(a, vGE)
    a('    s_waitcnt lgkmcnt(0)')
    a(f'    v_readlane_b32 s{sGT}, v{vGE}, {NPB-1}')
    a(f'    v_sub_u32 v{vGS}, v{vGE}, v{vNG}')
    a(f'    v_readfirstlane_b32 s{sT0}, v{vA+4}')
    a(f'    v_lshlrev_b32 v{vA+6}, 4, v{vGS}')
    a(f'    v_cmp_lt_u32 vcc, {NPB}, v{vLANE}')
    a(f'    s_add_u32 s{sR}, s{sGT}, 15')
    a(f'    s_lshr_b32 s{sR}, s{sR}, 4')
    a(f'    v_cndmask_b32 v{vGS}, v{vGS}, -1, vcc')
    a(f'    s_cmp_eq_u32 s{sMODE}, 0')
    a('    s_cbranch_scc0 K2_NOSWITCH')
    a(f'    s_cmp_gt_u32 s{sGT}, {(CAP - 64)//4}')
    a(f'    s_cselect_b32 s{sT1}, 1, 0')
    a(f'    s_or_b32 s{sT0}, s{sT0}, s{sT1}')
    a(f'    s_cmp_eq_u32 s{sT0}, 0')
    a('    s_cbranch_scc1 K2_NOSWITCH')
    a(f'    s_mov_b32 s{sNR}, 0')
    a(f'    s_mov_b32 s{sGT}, 0')
    a(f'    s_mov_b32 s{sR}, 0')
    a(f'    s_mov_b32 s{sMODE}, 2')
    a.label('K2_NOSWITCH')
    for r in range(2):
        a(f'    s_cmp_le_u32 s{sNR}, {r}')
        a('    s_cbranch_scc1 K2_LK_DONE')
        for h in range(4):
            k = 4*r + h
            a(f'    ds_bpermute_b32 v{vB+k}, v{vLA+k}, v{vA+6}')
    a.label('K2_LK_DONE')
    a('    s_waitcnt lgkmcnt(0)')
    for r in range(2):
        a(f'    s_cmp_le_u32 s{sNR}, {r}')
        a('    s_cbranch_scc1 K2_SC_DONE')
        for h in range(4):
            k = 4*r + h
            a(f'    s_mov_b64 exec, s[{sM+2*k}:{sM+2*k+1}]')
            a(f'    v_lshl_add_u32 v{vB+k}, v{vRK+k}, 2, v{vB+k}')
            a(f'    ds_write_b32 v{vB+k}, v{vR+k} offset:{L2_LIST}')
    a.label('K2_SC_DONE')
    a('    s_mov_b64 exec, -1')
    a(f'    s_mul_i32 s{sG0}, s{sR}, s{sWAVE}')
    a(f'    s_add_u32 s{sG1}, s{sG0}, s{sR}')
    a(f'    s_min_u32 s{sG1}, s{sG1}, s{sGT}')
    a(f'    v_lshrrev_b32 v{vSA}, 4, v{vLANE}')
    a(f'    v_lshlrev_b32 v{vSA}, 2, v{vSA}         ; slot*4')
    a(f'    s_lshl_b32 s{sT0}, s{sG0}, 4')
    a(f'    v_add_u32 v{vSA}, s{sT0}, v{vSA}')
    if WULATE:
        a(f'    s_cmp_eq_u32 s{sPASS}, 0')
        a('    s_cbranch_scc0 K2_NOWU2')
        a(f'    s_cmp_eq_u32 s{sMODE}, 1')
        a('    s_cbranch_scc1 K2_NOWU2')
        a(f'    s_cmp_ge_u32 s{sWAVE}, 8')
        a('    s_cbranch_scc0 K2_NOWU2')
        a('    s_waitcnt vmcnt(1)')
        a(f'    ds_write_b128 v{vA+9}, v[{vW}:{vW+3}]')
        a.label('K2_NOWU2')
    a(f'    v_mov_b32 v{vA}, 0')
    a('    s_waitcnt lgkmcnt(0)')
    a('    s_barrier')
    if PRIO: a('    s_setprio 3')
    stamp(a, 5)

    def tload(k):
        d = vDAT + 4*k
        a(f'    buffer_load_dwordx4 v[{d}:{d+3}], v[{vP+2*k}:{vP+2*k+1}], s[{SRD_T}:{SRD_T+3}], 0 idxen offen')

    a(f'    s_cmp_ge_u32 s{sG0}, s{sG1}')
    a('    s_cbranch_scc1 K2_NOGATH')
    for k in range(U):
        a(f'    ds_read_u16 v{vP+2*k}, v{vSA} offset:{L2_LIST + 16*k}')
    a(f'    ds_read_u16_d16_hi v{vEV}, v{vSA} offset:{L2_LIST + 2}')
    a('    s_waitcnt lgkmcnt(0)')
    for k in range(G0N):
        tload(k)
    a(f'    ds_read_u16 v{vP}, v{vSA} offset:{L2_LIST + 16*U}')
    a.label('K2_NOGATH')
    a(f'    s_cmp_eq_u32 s{sPASS}, 0')
    a('    s_cbranch_scc0 K2_NOTAB')
    a(f'    s_cmp_eq_u32 s{sMODE}, 1')
    a('    s_cbranch_scc1 K2_NOTAB')
    if not ASTAGE:
        a(f'    s_cmp_lt_u32 s{sWAVE}, 12')
        a('    s_cbranch_scc0 K2_NOMFMA')
        a(f'    ds_read_b128 v[{vXO}:{vXO+3}], v{vXRA}')
        a(f'    ds_read_b64_tr_b16 v[{vOP2}:{vOP2+1}], v{vTRA}')
        a(f'    ds_read_b64_tr_b16 v[{vOP2+2}:{vOP2+3}], v{vTRA} offset:{0+512}')
        a(f'    ds_read_b128 v[{vXO+4}:{vXO+7}], v{vXRA} offset:64')
        a(f'    ds_read_b64_tr_b16 v[{vOP2+4}:{vOP2+5}], v{vTRA} offset:{0+4096}')
        a(f'    ds_read_b64_tr_b16 v[{vOP2+6}:{vOP2+7}], v{vTRA} offset:{0+4096+512}')
        a(f'    s_mov_b32 s{sT0}, {hex(f2u(-LOG2E))}')
        a(f'    s_mov_b32 s{sT1}, {hex(f2u(60.0))}')
        a('    s_waitcnt lgkmcnt(3)')
        a(f'    v_mfma_f32_16x16x32_bf16 v[{vAC2}:{vAC2+3}], v[{vOP2}:{vOP2+3}], v[{vXO}:{vXO+3}], 0')
        a('    s_waitcnt lgkmcnt(0)')
        a(f'    v_mfma_f32_16x16x32_bf16 v[{vAC2}:{vAC2+3}], v[{vOP2+4}:{vOP2+7}], v[{vXO+4}:{vXO+7}], v[{vAC2}:{vAC2+3}]')
        a('    s_nop 7')
        for i in range(4):
            a(f'    v_mul_f32 v{vAC2+i}, s{sT0}, v{vAC2+i}')
        for i in range(4):
            a(f'    v_exp_f32 v{vOP2+i}, v{vAC2+i}')
        a(f'    v_max3_f32 v{vA+5}, |v{vAC2}|, |v{vAC2+1}|, |v{vAC2+2}|')
        a(f'    v_max_f32 v{vA+5}, v{vA+5}, |v{vAC2+3}|')
        a(f'    ds_write_b128 v{vEAA}, v[{vOP2}:{vOP2+3}]')
        a(f'    v_cmp_nle_f32 vcc, v{vA+5}, s{sT1}')
        a(f'    v_cmp_gt_u32 s[{sEX}:{sEX+1}], s{sNN}, v{vROW}')
        a(f'    s_and_b64 vcc, vcc, s[{sEX}:{sEX+1}]')
        a(f'    s_and_saveexec_b64 s[{sEX}:{sEX+1}], vcc')
        a('    s_cbranch_execz K2_GUARD_OK')
        a(f'    v_mov_b32 v{vA+5}, 1')
        a(f'    v_mov_b32 v{vA+7}, 0')
        a(f'    ds_write_b32 v{vA+7}, v{vA+5} offset:{L2_FLG+4}')
        unmask(a, sEX, 'K2_GUARD_OK')
    a.label('K2_NOMFMA')
    if not ASTAGE:
        a(f'    v_mov_b32 v{vA}, 0')
        a('    s_waitcnt lgkmcnt(0)')
        a('    s_barrier')
        a(f'    ds_read_b32 v{vA+5}, v{vA} offset:{L2_FLG+4}')
    else:
        a(f'    v_mov_b32 v{vA}, 0')
        a(f'    ds_read_b32 v{vA+5}, v{vA} offset:{L2_FLG+4}')
    a(f'    s_cmp_ge_u32 s{sG0}, s{sG1}')
    a('    s_cbranch_scc1 K2_NOGATH2')
    for k in range(G0N, U):
        tload(k)
    a.label('K2_NOGATH2')
    a(f'    s_cmp_lt_u32 s{sWAVE}, 12')
    a('    s_cbranch_scc0 K2_NOU')
    a(f'    ds_read_b64_tr_b16 v[{vOP2}:{vOP2+1}], v{vTRA} offset:{0+8192}')
    a(f'    ds_read_b64_tr_b16 v[{vOP2+2}:{vOP2+3}], v{vTRA} offset:{0+8192+512}')
    a(f'    ds_read_b64_tr_b16 v[{vOP2+4}:{vOP2+5}], v{vTRA} offset:{0+8192+4096}')
    a(f'    ds_read_b64_tr_b16 v[{vOP2+6}:{vOP2+7}], v{vTRA} offset:{0+8192+4096+512}')
    a('    s_waitcnt lgkmcnt(2)')
    a(f'    v_mfma_f32_16x16x32_bf16 v[{vU}:{vU+3}], v[{vOP2}:{vOP2+3}], v[{vXO}:{vXO+3}], 0')
    a('    s_waitcnt lgkmcnt(0)')
    a(f'    v_mfma_f32_16x16x32_bf16 v[{vU}:{vU+3}], v[{vOP2+4}:{vOP2+7}], v[{vXO+4}:{vXO+7}], v[{vU}:{vU+3}]')
    a(f'    v_mov_b32 v{vUA}, v{vEAA}')
    a.label('K2_NOU')
    a('    s_waitcnt lgkmcnt(0)')
    a(f'    v_readfirstlane_b32 s{sSAFE}, v{vA+5}')
    a('    s_nop 0')
    a(f'    s_cmp_eq_u32 s{sSAFE}, 0')
    a('    s_cbranch_scc1 K2_WAITW')
    a('    s_barrier')
    a(f'    s_cmp_lt_u32 s{sWAVE}, 12')
    a('    s_cbranch_scc0 K2_SAFE_NOW')
    a(f'    ds_write_b128 v{vEAA}, v[{(vAK if ASTAGE else vAC2)}:{(vAK if ASTAGE else vAC2)+3}]')
    a.label('K2_SAFE_NOW')
    a('    s_waitcnt lgkmcnt(0)')
    a('    s_barrier')
    a.label('K2_WAITW')
    a('    s_branch K2_TABDONE')
    a.label('K2_NOTAB')
    a(f'    s_cmp_ge_u32 s{sG0}, s{sG1}')
    a('    s_cbranch_scc1 K2_TABDONE')
    for k in range(G0N, U):
        tload(k)
    a.label('K2_TABDONE')
    dstamp(a, 1)
    if SPANW:
        a(f'    s_mov_b64 s[{sM}:{sM+1}], 0')
        a(f'    s_mov_b64 s[{sM+2}:{sM+3}], 0')
        a(f'    s_mov_b64 s[{sM+4}:{sM+5}], 0')
        a(f'    s_lshl_b32 s{sNT}, s{sNN}, 4')
        a(f'    s_cmp_lt_u32 s{sWAVE}, 10')
        a('    s_cbranch_scc0 K2_NOSPAN')
    a(f'    v_cvt_f32_u32 v{vA}, s{sR}')
    a(f'    v_cvt_f32_u32 v{vA+1}, v{vGS}')
    a(f'    v_rcp_f32 v{vA}, v{vA}')
    a(f'    v_cvt_f32_u32 v{vA+2}, v{vGE}')
    a(f'    v_add_f32 v{vA+1}, 0.5, v{vA+1}')
    a(f'    v_add_f32 v{vA+2}, -0.5, v{vA+2}')
    a(f'    v_mul_f32 v{vA+1}, v{vA+1}, v{vA}')
    a(f'    v_mul_f32 v{vA+2}, v{vA+2}, v{vA}')
    a(f'    v_cvt_u32_f32 v{vA+1}, v{vA+1}          ; wlo')
    a(f'    v_cvt_u32_f32 v{vA+2}, v{vA+2}          ; whi')
    a(f'    v_sub_u32 v{vA+2}, v{vA+2}, v{vA+1}')
    a(f'    v_add_u32 v{vA+2}, 1, v{vA+2}')
    a(f'    v_cmp_eq_u32 vcc, 0, v{vNG}')
    a(f'    v_add_u32 v{vA+1}, v{vA+1}, v{vLANE}')
    a(f'    v_and_b32 v{vA+1}, 0xffff, v{vA+1}')
    a(f'    v_cndmask_b32 v{vA+2}, v{vA+2}, 0, vcc')
    a(f'    v_lshl_or_b32 v{vA+3}, v{vA+2}, 16, v{vA+1}')
    a(f'    v_lshrrev_b32 v{vA}, 4, v0')
    a(f'    v_and_b32 v{vA+4}, 63, v{vA}')
    a(f'    v_lshlrev_b32 v{vA+4}, 2, v{vA+4}')
    a(f'    ds_bpermute_b32 v{vA+1}, v{vA+4}, v{vA+3}')
    a(f'    v_mul_u32_u24 v{vUTA}, {TS}, v{vA}')
    a(f'    v_mul_u32_u24 v{vXTA}, {XS}, v{vA}')
    a(f'    v_lshrrev_b32 v{vA+7}, 1, v{vQ16}')
    a(f'    v_add_u32 v{vUTA}, v{vUTA}, v{vQ16}')
    a(f'    v_add_u32 v{vXTA}, v{vXTA}, v{vA+7}')
    a(f'    v_add_u32 v{vUTA}, {L2_UT}, v{vUTA}')
    a(f'    v_add_u32 v{vXTA}, {L2_XT}, v{vXTA}')
    a(f'    s_lshl_b32 s{sNT}, s{sNN}, 4')
    a(f'    v_cmp_gt_u32 vcc, s{sNT}, v0')
    a('    s_waitcnt lgkmcnt(0)')
    a(f'    v_lshrrev_b32 v{vFC}, 16, v{vA+1}')
    a(f'    v_and_b32 v{vA+1}, 0xffff, v{vA+1}')
    a(f'    v_cndmask_b32 v{vFC}, 0, v{vFC}, vcc')
    a(f'    v_lshl_add_u32 v{vFS}, v{vA+1}, 9, v{vQ16}')
    a(f'    v_cmp_lt_u32 s[{sM}:{sM+1}], 0, v{vFC}')
    a(f'    v_cmp_lt_u32 s[{sM+2}:{sM+3}], 1, v{vFC}')
    a(f'    v_cmp_lt_u32 s[{sM+4}:{sM+5}], 2, v{vFC}')
    if SPANW: a.label('K2_NOSPAN')
    a(f'    s_cmp_ge_u32 s{sG0}, s{sG1}')
    a('    s_cbranch_scc1 K2_MAIN_DONE')
    if PRIO:
        a(f'    s_add_u32 s{sT0}, s{sR}, 3')
        a(f'    s_lshr_b32 s{sT0}, s{sT0}, 2            ; iterations')
        for n, reg in zip(PRT, (sPR, sPQ, sPQ2)):
            a(f'    s_mul_i32 s{reg}, s{sT0}, {n}')
            a(f'    s_lshr_b32 s{reg}, s{reg}, 4')
            a(f'    s_add_u32 s{reg}, s{reg}, 1')
        a(f'    s_mov_b32 s{sLVL}, 3')
        a('    s_setprio 3')
    a(f'    s_mov_b32 s{sGEND}, s{sG0}')
    a(f'    s_mov_b32 s{sEAB}, {L2_EAT}')
    a(f'    s_cmp_eq_u32 s{sSAFE}, 0')
    a('    s_cbranch_scc0 K2S_ENTER')
    a('    s_branch K2F_ENTER')

    def next_node():
        a(f'    v_cmp_ge_u32 vcc, s{sGEND}, v{vGS}')
        a(f'    s_bcnt1_i32_b64 s{sT0}, vcc')
        a(f'    s_sub_u32 s{sNODE}, s{sT0}, 1')
        a(f'    v_readlane_b32 s{sT1}, v{vGS}, s{sT0}')
        a(f'    s_mul_i32 s{sT0}, s{sNODE}, {TS}')
        a(f'    s_add_u32 s{sT0}, s{sT0}, s{sEAB}')
        a(f'    v_add_u32 v{vEAA}, s{sT0}, v{vQ16}')
        a(f'    ds_read_b128 v[{vEA}:{vEA+3}], v{vEAA}')
        a(f'    s_min_u32 s{sT1}, s{sT1}, s{sG1}')
        a(f'    s_sub_u32 s{sLEFT}, s{sT1}, s{sGEND}')
        a(f'    s_sub_u32 s{sLEFT}, s{sLEFT}, 1')
        a(f'    s_mov_b32 s{sGEND}, s{sT1}')

    def set_slot():
        a(f'    s_add_u32 s{sSLOT}, s{sNODE}, s{sWAVE}')
        a(f'    s_lshl_b32 s{sSLOT}, s{sSLOT}, 9')

    def flush():
        a(f'    v_add_u32 v{vACC}, s{sSLOT}, v{vFL}')
        for i in range(4):
            a(f'    v_permlane32_swap_b32 v{vDEN+i}, v{vNUM+i}')
        a(f'    v_pk_add_f32 v[{vDEN}:{vDEN+1}], v[{vDEN}:{vDEN+1}], v[{vNUM}:{vNUM+1}]')
        a(f'    v_pk_add_f32 v[{vDEN+2}:{vDEN+3}], v[{vDEN+2}:{vDEN+3}], v[{vNUM+2}:{vNUM+3}]')
        a('    s_nop 1')
        a(f'    v_permlane16_swap_b32 v{vDEN}, v{vDEN+2}')
        a(f'    v_permlane16_swap_b32 v{vDEN+1}, v{vDEN+3}')
        a(f'    v_pk_add_f32 v[{vNUM}:{vNUM+1}], v[{vDEN}:{vDEN+1}], v[{vDEN+2}:{vDEN+3}]')
        a(f'    ds_write_b64 v{vACC}, v[{vNUM}:{vNUM+1}] offset:{L2_SLOT}')

    def step(k, safe, init):
        d = vDAT + 4*k
        ev = vEV + (k & 1); evn = vEV + ((k+1) & 1)
        pn = vP + 2*((k+1) % U)
        for i in range(4):
            a(f'    v_fma_mix_f32 v{vT+i}, v{ev}, v{vWC+i}, v{d+i} op_sel:[0,0,0] op_sel_hi:[0,0,1]')
        a(f'    ds_read_u16_d16_hi v{evn}, v{vSA} offset:{L2_LIST + 16*(k+1) + 2}')
        a(f'    ds_read_u16 v{pn}, v{vSA} offset:{L2_LIST + 16*(k+1+U)}')
        if init and safe:
            a('    s_waitcnt lgkmcnt(3)')
        if safe:
            a(f'    v_pk_add_f32 v[{vT}:{vT+1}], v[{vT}:{vT+1}], v[{vEA}:{vEA+1}]')
            a(f'    v_pk_add_f32 v[{vT+2}:{vT+3}], v[{vT+2}:{vT+3}], v[{vEA+2}:{vEA+3}]')
        for i in range(4):
            a(f'    v_exp_f32 v{vT+i}, v{vT+i}')
        if init and not safe:
            a('    s_waitcnt lgkmcnt(3)')
        if safe:
            a(f'    v_pk_add_f32 v[{vT}:{vT+1}], v[{vT}:{vT+1}], 1.0 op_sel_hi:[1,0]')
            a(f'    v_pk_add_f32 v[{vT+2}:{vT+3}], v[{vT+2}:{vT+3}], 1.0 op_sel_hi:[1,0]')
        else:
            a(f'    v_pk_fma_f32 v[{vT}:{vT+1}], v[{vEA}:{vEA+1}], v[{vT}:{vT+1}], 1.0 op_sel_hi:[1,1,0]')
            a(f'    v_pk_fma_f32 v[{vT+2}:{vT+3}], v[{vEA+2}:{vEA+3}], v[{vT+2}:{vT+3}], 1.0 op_sel_hi:[1,1,0]')
        if init:
            for i in range(4):
                a(f'    v_rcp_f32 v{vDEN+i}, v{vT+i}')
            a('    s_nop 0')
            a(f'    v_pk_mul_f32 v[{vNUM}:{vNUM+1}], v[{vDEN}:{vDEN+1}], v[{d}:{d+1}]')
            a(f'    v_pk_mul_f32 v[{vNUM+2}:{vNUM+3}], v[{vDEN+2}:{vDEN+3}], v[{d+2}:{d+3}]')
        else:
            for i in range(4):
                a(f'    v_rcp_f32 v{vT+i}, v{vT+i}')
            a(f'    v_pk_add_f32 v[{vDEN}:{vDEN+1}], v[{vDEN}:{vDEN+1}], v[{vT}:{vT+1}]')
            a(f'    v_pk_add_f32 v[{vDEN+2}:{vDEN+3}], v[{vDEN+2}:{vDEN+3}], v[{vT+2}:{vT+3}]')
            a(f'    v_pk_fma_f32 v[{vNUM}:{vNUM+1}], v[{vT}:{vT+1}], v[{d}:{d+1}], v[{vNUM}:{vNUM+1}]')
            a(f'    v_pk_fma_f32 v[{vNUM+2}:{vNUM+3}], v[{vT+2}:{vT+3}], v[{d+2}:{d+3}], v[{vNUM+2}:{vNUM+3}]')
        tload(k)
        if k == U-1:
            a(f'    v_add_u32 v{vSA}, {16*U}, v{vSA}')

    def loopback(pfx):
        if PRIO:
            a(f'    s_sub_u32 s{sPR}, s{sPR}, 1')
            a(f'    s_cmp_lg_u32 s{sPR}, 0')
            a(f'    s_cbranch_scc1 {pfx}_STEP0')
            a(f'    s_branch {pfx}_PRIO')
        else:
            a(f'    s_branch {pfx}_STEP0')

    for pfx, safe in (('K2F', False), ('K2S', True)):
        a.label(f'{pfx}_ENTER')
        next_node()
        set_slot()
        a('    s_waitcnt vmcnt(3) lgkmcnt(0)')
        dstamp(a, 2)
        step(0, safe, True)
        a(f'    s_branch {pfx}_STEP1')
        for k in range(U):
            a.label(f'{pfx}_STEP{k}')
            a(f'    s_waitcnt vmcnt({U-1}) lgkmcnt(0)')
            a(f'    s_sub_u32 s{sLEFT}, s{sLEFT}, 1')
            a(f'    s_cbranch_scc1 {pfx}_FLUSH{k}')
            step(k, safe, False)
            if k == U-1:
                loopback(pfx)
        for k in range(U):
            a.label(f'{pfx}_FLUSH{k}')
            a(f'    s_cmp_ge_u32 s{sGEND}, s{sG1}')
            a(f'    s_cbranch_scc1 K2_LAST')
            next_node()
            flush()
            set_slot()
            step(k, safe, True)
            if k == U-1:
                loopback(pfx)
            else:
                a(f'    s_branch {pfx}_STEP{k+1}')
        if PRIO:
            a.label(f'{pfx}_PRIO')
            a(f'    s_sub_u32 s{sLVL}, s{sLVL}, 1')
            a(f'    s_cmp_eq_u32 s{sLVL}, 2')
            a(f'    s_cbranch_scc1 {pfx}_PRIO2')
            a(f'    s_cmp_eq_u32 s{sLVL}, 1')
            a(f'    s_cbranch_scc1 {pfx}_PRIO1')
            a(f'    s_mov_b32 s{sPR}, 0x7fffffff')
            a('    s_setprio 0')
            a(f'    s_branch {pfx}_STEP0')
            a.label(f'{pfx}_PRIO2')
            a(f'    s_mov_b32 s{sPR}, s{sPQ}')
            a('    s_setprio 2')
            a(f'    s_branch {pfx}_STEP0')
            a.label(f'{pfx}_PRIO1')
            a(f'    s_mov_b32 s{sPR}, s{sPQ2}')
            a('    s_setprio 1')
            a(f'    s_branch {pfx}_STEP0')
    a.label('K2_LAST')
    dstamp(a, 3)
    flush()
    a.label('K2_MAIN_DONE')
    if PRIO: a('    s_setprio 0')
    a(f'    s_cmp_eq_u32 s{sPASS}, 0')
    a('    s_cbranch_scc0 K2_NOUST')
    a(f'    s_cmp_eq_u32 s{sMODE}, 1')
    a('    s_cbranch_scc1 K2_NOUST')
    a(f'    s_cmp_lt_u32 s{sWAVE}, 12')
    a('    s_cbranch_scc0 K2_NOUST')
    a(f'    ds_write_b128 v{vUA}, v[{vU}:{vU+3}] offset:{L2_UT-L2_EAT}')
    a.label('K2_NOUST')
    a(f'    s_cmp_eq_u32 s{sMODE}, 2')
    a('    s_cbranch_scc0 K2_NOABORT')
    a(f'    s_mov_b32 s{sMODE}, 1')
    a(f'    s_mov_b32 s{sPASS}, 0')
    a('    s_waitcnt vmcnt(0) lgkmcnt(0)')
    a('    s_barrier')
    a('    s_branch K2_PASS')
    a.label('K2_NOABORT')
    a('    s_waitcnt lgkmcnt(0)')
    stamp(a, 6)
    a('    s_barrier')
    S0 = 76; S1 = 84; UU = 92; XX = 104
    if SPANW:
        a(f'    s_cmp_lt_u32 s{sWAVE}, 10')
        a('    s_cbranch_scc0 K2_FOLD_END')
    a(f'    s_mov_b64 exec, s[{sM}:{sM+1}]')
    a(f'    ds_read_b128 v[{S0}:{S0+3}], v{vFS} offset:{L2_SLOT}')
    a(f'    ds_read_b128 v[{S0+4}:{S0+7}], v{vFS} offset:{L2_SLOT+256}')
    a(f'    s_mov_b64 exec, s[{sM+2}:{sM+3}]')
    a(f'    ds_read_b128 v[{S1}:{S1+3}], v{vFS} offset:{L2_SLOT+512}')
    a(f'    ds_read_b128 v[{S1+4}:{S1+7}], v{vFS} offset:{L2_SLOT+512+256}')
    a('    s_mov_b64 exec, -1')
    a(f'    ds_read_b128 v[{UU}:{UU+3}], v{vUTA}')
    a(f'    ds_read_b64 v[{XX}:{XX+1}], v{vXTA}')
    a(f'    s_mov_b64 exec, s[{sM}:{sM+1}]')
    a('    s_waitcnt lgkmcnt(4)')
    for b, acc in ((S0, vDA), (S0+2, vDA+2), (S0+4, vNA), (S0+6, vNA+2)):
        a(f'    v_pk_add_f32 v[{acc}:{acc+1}], v[{acc}:{acc+1}], v[{b}:{b+1}]')
    a(f'    s_mov_b64 exec, s[{sM+2}:{sM+3}]')
    a('    s_waitcnt lgkmcnt(2)')
    for b, acc in ((S1, vDA), (S1+2, vDA+2), (S1+4, vNA), (S1+6, vNA+2)):
        a(f'    v_pk_add_f32 v[{acc}:{acc+1}], v[{acc}:{acc+1}], v[{b}:{b+1}]')
    a('    s_mov_b64 exec, -1')
    a(f'    s_cmp_eq_u64 s[{sM+4}:{sM+5}], 0')
    a('    s_cbranch_scc1 K2_FOLD_END')
    a(f'    v_add_u32 v{vFS}, 1024, v{vFS}')
    a(f'    v_add_u32 v{vFC}, -2, v{vFC}')
    a.label('K2_FOLD')
    masked(a, f'v_cmp_lt_i32 vcc, 0, v{vFC}', sEX, 'K2_FOLD_DONE')
    a(f'    ds_read_b128 v[{S0}:{S0+3}], v{vFS} offset:{L2_SLOT}')
    a(f'    ds_read_b128 v[{S0+4}:{S0+7}], v{vFS} offset:{L2_SLOT+256}')
    a(f'    v_add_u32 v{vFS}, 512, v{vFS}')
    a(f'    v_add_u32 v{vFC}, -1, v{vFC}')
    a('    s_waitcnt lgkmcnt(0)')
    for b, acc in ((S0, vDA), (S0+2, vDA+2), (S0+4, vNA), (S0+6, vNA+2)):
        a(f'    v_pk_add_f32 v[{acc}:{acc+1}], v[{acc}:{acc+1}], v[{b}:{b+1}]')
    unmask(a, sEX)
    a('    s_branch K2_FOLD')
    unmask(a, sEX, 'K2_FOLD_DONE')
    a.label('K2_FOLD_END')
    a(f'    s_cmp_eq_u32 s{sMODE}, 0')
    a('    s_cbranch_scc1 K2_EPI')
    a(f'    s_add_u32 s{sPASS}, s{sPASS}, 1')
    a(f'    s_cmp_lt_u32 s{sPASS}, {NC}')
    a('    s_cbranch_scc0 K2_EPI')
    a('    s_waitcnt vmcnt(0) lgkmcnt(0)')
    a('    s_barrier                               ; slots consumed before the next pass')
    a('    s_branch K2_PASS')
    a.label('K2_EPI')
    masked(a, f'v_cmp_gt_u32 vcc, s{sNT}, v0', sEX, 'K2_FIN')
    a(f'    s_mov_b32 s{sT0}, {hex(f2u(1e-6))}')
    for i in range(4):
        a(f'    v_add_f32 v{vDA+i}, s{sT0}, v{vDA+i}')
    for i in range(4):
        a(f'    v_rcp_f32 v{vDA+i}, v{vDA+i}')
    a('    s_waitcnt lgkmcnt(0)')
    a(f'    v_lshlrev_b32 v{vT}, 16, v{XX}')
    a(f'    v_and_b32 v{vT+1}, 0xffff0000, v{XX}')
    a(f'    v_lshlrev_b32 v{vT+2}, 16, v{XX+1}')
    a(f'    v_and_b32 v{vT+3}, 0xffff0000, v{XX+1}')
    for i in range(4):
        a(f'    v_fma_f32 v{vNA+i}, v{vNA+i}, v{vDA+i}, v{UU+i}    ; z = U + agg')
    for i in range(4):
        a(f'    v_cmp_lt_f32 s[{sM+2*i}:{sM+2*i+1}], 0, v{vNA+i}')
    for i in range(4):
        a(f'    v_mul_f32 v{vDEN+i}, 0, v{vNA+i}                     ; 0*z')
    for i in range(4):
        a(f'    v_cndmask_b32 v{vNA+i}, v{vDEN+i}, v{vNA+i}, s[{sM+2*i}:{sM+2*i+1}]')
    for i in range(4):
        a(f'    v_add_f32 v{vNA+i}, v{vNA+i}, v{vT+i}')
    a(f'    s_lshl_b32 s{sT1}, s{sN0}, 7')
    a(f'    v_lshlrev_b32 v{vA+1}, 3, v0')
    a(f'    v_cvt_pk_bf16_f32 v{vDEN}, v{vNA}, v{vNA+1}')
    a(f'    v_cvt_pk_bf16_f32 v{vDEN+1}, v{vNA+2}, v{vNA+3}')
    a(f'    buffer_store_dwordx2 v[{vDEN}:{vDEN+1}], v{vA+1}, s[{SRD_OUT}:{SRD_OUT+3}], s{sT1} offen {OUTST}')
    a.label('K2_FIN')
    if STAMP:
        a('    s_mov_b64 exec, -1')
        a('    s_waitcnt vmcnt(0)')
    stamp(a, 7); stamp(a, 1, True)
    stamp_flush(a, sWAVE, sB, 1, 6)
    a.label('K2_END')
    a('    s_endpgm')
    a.label('CODE_END')

def gen_k3(a):
    i, j = [int(x) for x in env('INTERVAL', '0,0').split(',')]
    inv = {0: True, 2: True}
    a('.globl k3_kernel')
    a('.p2align 8')
    a('.type k3_kernel,@function')
    a.label('k3_kernel')
    a('    s_cmp_ge_u32 s2, 1')
    a('    s_cbranch_scc1 K3_END')
    a('    s_load_dwordx2 s[4:5], s[0:1], 80')
    a('    s_waitcnt lgkmcnt(0)')
    a('    v_mov_b32 v1, 0')
    a(f'    global_load_dword v2, v1, s[4:5] offset:{4*i} sc1')
    a(f'    global_load_dword v3, v1, s[4:5] offset:{4*j} sc1')
    a('    s_waitcnt vmcnt(0)')
    if inv.get(i): a('    v_not_b32 v2, v2')
    if inv.get(j): a('    v_not_b32 v3, v3')
    a('    v_sub_u32 v3, v3, v2')
    a('    s_nop 1')
    a('    v_readfirstlane_b32 s8, v3')
    a('    s_nop 3')
    a('    s_mul_i32 s8, s8, 10')
    a('    s_min_u32 s8, s8, 50000')
    a('    s_memrealtime s[10:11]')
    a('    s_waitcnt lgkmcnt(0)')
    a.label('K3_SPIN')
    a('    s_memrealtime s[12:13]')
    a('    s_waitcnt lgkmcnt(0)')
    a('    s_sub_u32 s9, s12, s10')
    a('    s_cmp_lt_u32 s9, s8')
    a('    s_cbranch_scc1 K3_SPIN')
    a.label('K3_END')
    a('    s_endpgm')

def kd(a, name, vgpr, sgpr):
    a(f'.amdhsa_kernel {name}')
    a(f'  .amdhsa_next_free_vgpr {vgpr}')
    a(f'  .amdhsa_next_free_sgpr {sgpr}')
    a(f'  .amdhsa_accum_offset {((vgpr+3)//4)*4}')
    a('  .amdhsa_group_segment_fixed_size 0')
    a('  .amdhsa_kernarg_size 96')
    a('  .amdhsa_user_sgpr_count 2')
    a('  .amdhsa_user_sgpr_kernarg_segment_ptr 1')
    a('  .amdhsa_system_sgpr_workgroup_id_x 1')
    a('  .amdhsa_float_denorm_mode_32 3')
    a('.end_amdhsa_kernel')

HEADER = """
"""

def main(out):
    a = Asm()
    for l in HEADER.strip('\n').split('\n'): a(l)
    a(f'; @launch kernel=k1_kernel grid=({K1_GRID},1,1) block=(1024,1,1) lds={K1_LDS}')
    a(f'; @launch kernel=k2_kernel grid=({NB},1,1) block=(1024,1,1) lds={K2_LDS}')
    if STAMP == 4: a('; @launch kernel=k3_kernel grid=(1,1,1) block=(64,1,1) lds=0')
    a('.amdgcn_target "amdgcn-amd-amdhsa--gfx950"')
    a('.text')
    a('.globl k1_kernel')
    gen_k1(a)
    a('.globl k2_kernel')
    gen_k2(a)
    if STAMP == 4: gen_k3(a)
    a('.section .rodata,"a"')
    a('.p2align 6')
    kd(a, 'k1_kernel', 96, 102 if STAMP else 72)
    a('.p2align 6')
    kd(a, 'k2_kernel', 128, 102 if STAMP else 80)
    if STAMP == 4:
        a('.p2align 6')
        kd(a, 'k3_kernel', 8, 32)
    a.l = [x for x in a.l if x is not None]
    open(out, 'w').write(a.text())

if __name__ == '__main__':
    main(sys.argv[1] if len(sys.argv) > 1 else 'standalone__edge_featured_mpnn_gatedgcn__graph.s')
```

```python
import sys, os, struct
def env(n, d): return os.environ.get(n, d)

N = 10000; E = 640000
NPB = 40; NB = 256; EPC = 2500; NC = 256
TPC = EPC//4
BMAGIC = 109951163
LOG2E = 1.4426950408889634
WS_REC  = 0
REC_STRIDE = EPC*5
WS_DESC = 3407872
DESC_STRIDE = 1024
WS_T    = 4194304
T_BYTES = (N+1)*256

STAMP = int(env('STAMP', '0'))
K1ST = env('K1ST', 'nt')
PRIO = int(env('PRIO', '1'))
TFIRST = int(env('TFIRST', '1'))
XLATE = int(env('XLATE', '1'))
SPANW = int(env('SPANW', '1'))
ELD = env('ELD', '')
RLD = env('RLD', '')
CPF2 = int(env('CPF2', '0'))
DESCE = int(env('DESCE', '1'))
WS_STAMP = 128 << 20
ST0 = 80

def f2u(f): return struct.unpack('<I', struct.pack('<f', f))[0]

class Asm:
    def __init__(self): self.l = []
    def __call__(self, s=''):
        for line in s.split('\n'): self.l.append(line)
    def label(self, n): self.l.append(n + ':')
    def text(self): return '\n'.join(self.l) + '\n'

DETAIL = int(env('DETAIL', '0'))
def dstamp(a, i):
    if DETAIL: stamp(a, i, False, True)
def stamp(a, i, real=False, force=False):
    if DETAIL and not force and not real and getattr(a, 'k2', False) and i in (1, 2, 3): return
    if STAMP:
        r = ST0 + 2*(8+i if real else i)
        a(f"    {'s_memrealtime' if (real or STAMP >= 3) else 's_memtime'} s[{r}:{r+1}]")
def stamp_flush(a, wave_sgpr, wg_sgpr, kern, ws_lo):
    if not STAMP: return
    a('    s_waitcnt lgkmcnt(0)')
    a('    s_mov_b64 exec, 1')
    a('    v_mov_b32 v2, 0')
    if STAMP == 4:
        lab = f'STSKIP{kern}_{len(a.l)}'
        a(f"    s_and_b32 s14, s{wg_sgpr}, {31 if kern == 0 else int(env('SAMP2', '31'))}")
        a('    s_cmp_eq_u32 s14, 0')
        a(f'    s_cbranch_scc0 {lab}')
        a(f'    s_cmp_eq_u32 s{wave_sgpr}, 0')
        a(f'    s_cbranch_scc0 {lab}')
        a('    s_load_dwordx2 s[12:13], s[0:1], 80')
        a('    s_waitcnt lgkmcnt(0)')
        a(f'    s_add_u32 s12, s12, {1024 if kern == 0 else 512}')
        a('    s_addc_u32 s13, s13, 0')
        slots = [(0, 8, True), (1, 9, False), (7, 4, False), (8, 2, False)] if kern == 0 else \
                [(2, 8, True), (3, 4, False), (4, 5, False), (5, 6, False), (6, 9, False), (9, 2, False)]
        for slot, st, inv in slots:
            a(f'    v_mov_b32 v3, s{ST0+2*st}')
            if inv: a('    v_not_b32 v3, v3')
            a(f'    global_atomic_umax v2, v3, s[12:13] offset:{4*slot}')
        a('    s_waitcnt vmcnt(0)')
        a.label(lab)
        return
    a(f'    s_add_u32 s12, s{ws_lo}, {WS_STAMP + kern*(4<<20)}')
    a(f'    s_addc_u32 s13, s{ws_lo+1}, 0')
    a(f'    s_mov_b32 s14, {4<<20}')
    a('    s_mov_b32 s15, 0x00020000')
    a(f'    s_lshl_b32 s16, s{wg_sgpr}, 4')
    a(f'    s_add_u32 s16, s16, s{wave_sgpr}')
    a(f'    s_lshl_b32 s16, s16, 6')
    for i in range(8):
        a(f'    v_mov_b32 v3, s{ST0+2*i}')
        a(f'    buffer_store_dword v3, v2, s[12:15], s16 offen offset:{4*i}')
    for i in range(2):
        a(f'    v_mov_b32 v3, s{ST0+2*(8+i)}')
        a(f'    buffer_store_dword v3, v2, s[12:15], s16 offen offset:{4*(10+i)}')
    a('    s_waitcnt vmcnt(0)')

def srd(a, sreg, lo, hi, nbytes, off=0, stride=0, nrec=None):
    if off:
        a(f'    s_add_u32 s{sreg}, s{lo}, {off}')
        a(f'    s_addc_u32 s{sreg+1}, s{hi}, 0')
    else:
        a(f'    s_mov_b32 s{sreg}, s{lo}')
        a(f'    s_mov_b32 s{sreg+1}, s{hi}')
    if stride:
        a(f'    s_and_b32 s{sreg+1}, s{sreg+1}, 0xffff')
        a(f'    s_or_b32 s{sreg+1}, s{sreg+1}, {stride << 16}')
        a(f'    s_mov_b32 s{sreg+2}, {nrec}')
    else:
        a(f'    s_mov_b32 s{sreg+2}, {nbytes}')
    a(f'    s_mov_b32 s{sreg+3}, 0x00020000')

def dpp_scan(a, v):
    for sh in (1, 2, 4, 8):
        a('    s_nop 1')
        a(f'    v_add_u32_dpp v{v}, v{v}, v{v} row_shr:{sh} row_mask:0xf bank_mask:0xf')
    a('    s_nop 1')
    a(f'    v_add_u32_dpp v{v}, v{v}, v{v} row_bcast:15 row_mask:0xa bank_mask:0xf')
    a('    s_nop 1')
    a(f'    v_add_u32_dpp v{v}, v{v}, v{v} row_bcast:31 row_mask:0xc bank_mask:0xf')

def masked(a, cond, exreg, skip=None):
    a(f'    {cond}')
    a(f'    s_and_saveexec_b64 s[{exreg}:{exreg+1}], vcc')
    if skip: a(f'    s_cbranch_execz {skip}')
def unmask(a, exreg, skip=None):
    if skip: a.label(skip)
    a(f'    s_mov_b64 exec, s[{exreg}:{exreg+1}]')

def lds_sync(a, name, off, n, vzero, vone, vt, st):
    a('    s_waitcnt lgkmcnt(0)')
    a('    s_mov_b64 exec, 1')
    a(f'    ds_add_u32 v{vzero}, v{vone} offset:{off}')
    a('    s_mov_b64 exec, -1')
    a.label(name)
    a(f'    ds_read_b32 v{vt}, v{vzero} offset:{off}')
    a('    s_waitcnt lgkmcnt(0)')
    a(f'    v_readfirstlane_b32 s{st}, v{vt}')
    a(f'    s_cmp_lt_u32 s{st}, {n}')
    a(f'    s_cbranch_scc1 {name}')

K1_GRID = NC
L1_HIST = 0; L1_START = 1024; L1_SYNC = 2048
L1_ST32 = 2304; L1_ST8 = L1_ST32 + 2560*4; L1_W = 15360
K1_LDS = L1_W + 16384
K1PF = int(env('K1PF', '0'))
CPF = int(env('CPF', '2'))
XMAP = int(env('XMAP', '1'))
DESCT = int(env('DESCT', '1'))
DESCST = env('DESCST', '')
OUTST = env('OUTST', 'sc1')
RECST = env('RECST', 'sc0')
TST = env('TST', K1ST)
TFIRST = int(env('TFIRST', '1'))
XLATE = int(env('XLATE', '1'))
SPANW = int(env('SPANW', '1'))
ELD = env('ELD', '')
RLD = env('RLD', '')
CPF2 = int(env('CPF2', '0'))
DESCE = int(env('DESCE', '1'))

def gen_k1(a):
    a('.p2align 8')
    a('.type k1_kernel,@function')
    a.label('k1_kernel')
    a(f'    s_cmp_ge_u32 s2, {K1_GRID}')
    a('    s_cbranch_scc1 K1_END')
    stamp(a, 0); stamp(a, 0, True)
    if CPF:
        a('    s_getpc_b64 s[30:31]')
        a.label('K1_PC')
        a('    v_lshlrev_b32 v90, 7, v0')
        lim = 'CODE_END-K1_PC' if CPF >= 2 else 'k2_kernel-K1_PC'
        a(f'    v_cmp_gt_u32 vcc, {lim}, v90')
        a('    s_and_saveexec_b64 s[28:29], vcc')
        a('    s_cbranch_execz K1_NOCPF')
        a('    global_load_dword v91, v90, s[30:31]')
        a.label('K1_NOCPF')
        a('    s_mov_b64 exec, s[28:29]')
    if XMAP:
        a('    s_and_b32 s20, s2, 7')
        a('    s_lshr_b32 s21, s2, 3')
        a('    s_lshl_b32 s20, s20, 5')
        a('    s_add_u32 s2, s20, s21')
    a('    v_lshrrev_b32 v1, 6, v0')
    a('    s_load_dwordx4 s[8:11], s[0:1], 16')
    a('    v_readfirstlane_b32 s20, v1')
    a('    s_load_dwordx2 s[4:5], s[0:1], 8      ; e_attr')
    a('    s_load_dwordx2 s[6:7], s[0:1], 88     ; ws')
    a('    v_and_b32 v2, 63, v0                   ; lane')
    if TFIRST:
        a('    s_cmp_lt_u32 s20, 6')
        a('    s_cbranch_scc1 K1_TABLE')
        a('    v_subrev_u32 v0, 384, v0')
        a('    s_sub_u32 s20, s20, 6')
    else:
        a('    s_cmp_ge_u32 s20, 10')
        a('    s_cbranch_scc1 K1_TABLE')
    a('    v_mov_b32 v5, 0')
    a('    v_lshlrev_b32 v6, 2, v0               ; t*4')
    masked(a, 'v_cmp_gt_u32 vcc, 256, v0', 30)
    a(f'    ds_write_b32 v6, v5 offset:{L1_HIST}')
    unmask(a, 30)
    a('    v_lshlrev_b32 v3, 4, v0               ; t*16')
    a('    v_lshlrev_b32 v4, 3, v0               ; t*8')
    a(f'    s_mul_i32 s21, s2, {EPC*4}')
    a(f'    s_mul_i32 s22, s2, {EPC*2}')
    a(f'    s_mov_b32 s23, {BMAGIC}')
    a(f'    v_mov_b32 v19, {TPC}')
    a('    v_cmp_gt_u32 s[46:47], v19, v0')
    a('    s_waitcnt lgkmcnt(0)')
    srd(a, 12, 10, 11, E*4)
    a('    buffer_load_dwordx4 v[8:11], v3, s[12:15], s21 offen ' + ELD)
    srd(a, 16, 8, 9, E*4)
    a('    buffer_load_dwordx4 v[12:15], v3, s[16:19], s21 offen ' + ELD)
    srd(a, 24, 4, 5, E*2)
    a('    buffer_load_dwordx2 v[16:17], v4, s[24:27], s22 offen ' + ELD)
    srd(a, 32, 6, 7, NC*REC_STRIDE, off=WS_REC)
    srd(a, 36, 6, 7, NB*DESC_STRIDE, off=WS_DESC)
    a('    v_lshlrev_b32 v6, 4, v2                ; lane*16')
    a('    v_mul_u32_u24 v7, 20, v0')
    a('    v_lshlrev_b32 v18, 12, v2')
    a(f'    s_mul_i32 s25, s2, {REC_STRIDE}')
    a('    s_lshl_b32 s26, s2, 2')
    a('    s_mov_b32 s40, 0x06050400')
    a('    s_mov_b32 s41, 0x05040003')
    a('    s_mov_b32 s42, 0x03020500')
    a('    s_mov_b32 s43, 0x04000302')
    a('    s_mov_b32 s44, 0x03060100')
    a('    s_mov_b32 s45, 0x07030201')
    stamp(a, 1)
    a('    s_barrier')
    a('    v_mov_b32 v5, 1')
    a('    v_mov_b32 v19, 0')
    a('    s_waitcnt vmcnt(2)')
    stamp(a, 2)
    for k in range(4):
        a(f'    v_mul_hi_u32 v{20+k}, s23, v{8+k}        ; bucket')
    for k in range(4):
        a(f'    v_lshlrev_b32 v{24+k}, 2, v{20+k}       ; bucket*4')
    a('    s_mov_b64 exec, s[46:47]')
    for k in range(4):
        a(f'    ds_add_rtn_u32 v{28+k}, v{24+k}, v5 offset:{L1_HIST}')
    a('    s_mov_b64 exec, -1')
    a('    s_movk_i32 s27, 625')
    for k in range(4):
        a(f'    v_mad_u32_u24 v{20+k}, v{20+k}, s27, 15')
    for k in range(4):
        a(f'    v_lshrrev_b32 v{20+k}, 4, v{20+k}')
    for k in range(4):
        a(f'    v_sub_u32 v{20+k}, v{8+k}, v{20+k}')
    for k in range(4):
        a(f'    v_lshlrev_b32 v{20+k}, 2, v{20+k}')
    a('    s_waitcnt vmcnt(0)')
    a('    v_lshl_or_b32 v32, v16, 16, v12')
    a('    s_mov_b32 s24, 0xffff0000')
    a('    v_and_or_b32 v33, v16, s24, v13')
    a('    v_lshl_or_b32 v34, v17, 16, v14')
    a('    v_and_or_b32 v35, v17, s24, v15')
    a('    s_waitcnt lgkmcnt(0)')
    stamp(a, 3)
    lds_sync(a, 'K1_SYNC2', L1_SYNC+4, 10, 19, 5, 25+40, 27)
    stamp(a, 4)
    a(f'    ds_read_b128 v[40:43], v6 offset:{L1_HIST}')
    a('    s_waitcnt lgkmcnt(0)')
    a('    v_add_u32 v44, v40, v41                ; h0+h1')
    a('    v_add_u32 v45, v44, v42')
    a('    v_add_u32 v46, v45, v43                ; sum4')
    a('    v_mov_b32 v47, v46')
    dpp_scan(a, 47)
    a('    v_sub_u32 v48, v47, v46')
    a('    v_add_u32 v49, v48, v40')
    a('    v_add_u32 v50, v48, v44')
    a('    v_add_u32 v51, v48, v45')
    a(f'    ds_write_b128 v6, v[48:51] offset:{L1_START}')
    a('    s_waitcnt lgkmcnt(0)')
    for k in range(4):
        a(f'    ds_read_b32 v{56+k}, v{24+k} offset:{L1_START}')
    for k in range(4):
        a(f'    v_lshl_or_b32 v{52+k}, v{40+k}, 16, v{48+k}')
    if DESCT and DESCE:
        for k in range(4):
            a(f'    s_cmp_eq_u32 s20, {k}')
            a(f'    s_cbranch_scc0 K1_DE{k}')
            a(f'    buffer_store_dword v{52+k}, v18, s[36:39], s26 offen offset:{1024*k} {DESCST}')
            a.label(f'K1_DE{k}')
    a('    s_waitcnt lgkmcnt(0)')
    for k in range(4):
        a(f'    v_add_u32 v{56+k}, v{56+k}, v{28+k}      ; position')
    a('    s_mov_b64 exec, s[46:47]')
    for k in range(4):
        a(f'    ds_write_b8 v{56+k}, v{20+k} offset:{L1_ST8}')
        a(f'    v_lshlrev_b32 v{60+k}, 2, v{56+k}')
    for k in range(4):
        a(f'    ds_write_b32 v{60+k}, v{32+k} offset:{L1_ST32}')
    a('    s_mov_b64 exec, -1')
    a('    s_waitcnt lgkmcnt(0)')
    stamp(a, 5)
    lds_sync(a, 'K1_SYNC3', L1_SYNC+8, 10, 19, 5, 25+40, 27)
    a(f'    ds_read_b128 v[8:11], v3 offset:{L1_ST32}')
    a('    v_lshrrev_b32 v4, 2, v3                ; t*4')
    a(f'    ds_read_b32 v12, v4 offset:{L1_ST8}')
    a('    s_waitcnt lgkmcnt(0)')
    a('    v_perm_b32 v21, v9, v12, s40           ; d1 = L0 r1.b0 r1.b1 r1.b2')
    a('    v_perm_b32 v22, v10, v9, s41           ; r1.b3 . r2.b0 r2.b1')
    a('    v_perm_b32 v23, v11, v10, s43          ; r2.b2 r2.b3 . r3.b0')
    a('    v_mov_b32 v20, v8')
    a('    v_perm_b32 v22, v12, v22, s42          ; d2 : insert L1')
    a('    v_perm_b32 v23, v12, v23, s44          ; d3 : insert L2')
    a('    v_perm_b32 v24, v12, v11, s45          ; d4 = r3.b1 r3.b2 r3.b3 L3')
    a('    s_mov_b64 exec, s[46:47]')
    a(f'    buffer_store_dwordx4 v[20:23], v7, s[32:35], s25 offen {RECST}')
    a(f'    buffer_store_dword v24, v7, s[32:35], s25 offen offset:16 {RECST}')
    a('    s_mov_b64 exec, -1')
    a('    s_cmp_eq_u32 s20, 0')
    a('    s_cbranch_scc0 K1_SFIN')
    if DESCT and DESCE:
        pass
    elif DESCT:
        for k in range(4):
            a(f'    buffer_store_dword v{52+k}, v18, s[36:39], s26 offen offset:{1024*k} {DESCST}')
    else:
        a('    s_lshl_b32 s26, s2, 10')
        a(f'    buffer_store_dwordx4 v[52:55], v6, s[36:39], s26 offen {DESCST}')
    a.label('K1_SFIN')
    if STAMP:
        stamp(a, 6)
        a('    s_waitcnt vmcnt(0)')
        stamp(a, 7); stamp(a, 1, True)
        stamp_flush(a, 20, 2, 0, 6)
    a('    s_endpgm')
    a.label('K1_TABLE')
    a('    s_load_dwordx2 s[40:41], s[0:1], 40   ; w_b')
    a('    s_load_dwordx2 s[42:43], s[0:1], 64   ; w_v')
    a('    s_load_dwordx2 s[44:45], s[0:1], 0    ; x')
    if K1PF:
        a('    s_load_dwordx2 s[60:61], s[0:1], 32   ; w_a')
        a('    s_load_dwordx4 s[64:67], s[0:1], 48   ; w_c, w_u')
        a('    s_load_dwordx2 s[62:63], s[0:1], 72   ; out')
    a('    s_mov_b32 s21, s20                     ; tw' if TFIRST else '    s_sub_u32 s21, s20, 10                 ; tw')
    a('    v_mov_b32 v5, 0')
    a('    v_lshlrev_b32 v6, 2, v2')
    a('    s_cmp_eq_u32 s21, 0')
    a('    s_cbranch_scc0 K1_T_NOZ')
    masked(a, 'v_cmp_gt_u32 vcc, 4, v2', 30)
    a(f'    ds_write_b32 v6, v5 offset:{L1_SYNC}')
    unmask(a, 30)
    a.label('K1_T_NOZ')
    a('    s_lshr_b32 s22, s21, 1')
    a('    s_lshl_b32 s22, s22, 4                 ; 16*rt')
    a('    v_and_b32 v4, 15, v2')
    a('    v_add_u32 v4, s22, v4')
    a('    v_lshrrev_b32 v5, 4, v2                ; g')
    a('    v_lshlrev_b32 v6, 7, v4')
    a('    v_lshl_add_u32 v6, v5, 4, v6')
    a('    s_mul_i32 s58, s2, 625')
    a('    s_add_u32 s59, s58, 640                ; 625*(c+1) + 15')
    a('    s_add_u32 s58, s58, 15')
    a('    s_lshr_b32 s58, s58, 4')
    a('    s_lshr_b32 s59, s59, 4')
    a('    s_sub_u32 s59, s59, s58')
    a('    s_lshl_b32 s24, s58, 7')
    a('    v_lshlrev_b32 v7, 4, v2                ; lane*16')
    a('    v_bfe_u32 v8, v2, 4, 1')
    a('    v_lshlrev_b32 v8, 1, v8')
    a('    v_and_b32 v9, 7, v2')
    a('    v_xor_b32 v8, v8, v9')
    a('    v_lshrrev_b32 v9, 3, v2')
    a('    v_lshlrev_b32 v9, 7, v9                ; (lane>>3)*128')
    a('    s_waitcnt lgkmcnt(0)')
    for i in range(3):
        a(f'    s_add_u32 s26, s21, {6*i}              ; p')
        a('    s_cmp_lt_u32 s26, 8')
        a('    s_cselect_b32 s48, s40, s42')
        a('    s_cselect_b32 s49, s41, s43')
        a('    s_mov_b32 s50, 8192')
        a('    s_mov_b32 s51, 0x00020000')
        a('    s_and_b32 s27, s26, 7')
        a('    s_lshl_b32 s27, s27, 10')
        a('    s_cmp_lt_u32 s26, 16')
        a(f'    s_cselect_b32 s27, s27, {1<<20}')
        a(f'    buffer_load_dwordx4 v[{48+4*i}:{51+4*i}], v7, s[48:51], s27 offen')
    if XLATE: a('    s_barrier')
    srd(a, 36, 44, 45, N*128)
    a('    buffer_load_dwordx4 v[24:27], v6, s[36:39], s24 offen')
    a('    buffer_load_dwordx4 v[28:31], v6, s[36:39], s24 offen offset:64')
    if K1PF:
        a('    s_cmp_eq_u32 s21, 5')
        a('    s_cbranch_scc0 K1_T_NOPF')
        a('    v_lshlrev_b32 v60, 8, v2')
        a('    v_lshlrev_b32 v61, 7, v2')
        a('    global_load_dword v62, v61, s[60:61]')
        a('    global_load_dword v62, v61, s[66:67]')
        a('    v_mov_b32 v63, 0')
        a('    global_load_dword v62, v63, s[64:65]')
        a('    s_lshl_b32 s26, s58, 7')
        a('    v_mov_b32 v63, s26')
        a('    global_load_dword v62, v63, s[62:63]')
        srd(a, 52, 6, 7, WS_T + T_BYTES, off=0)
        a(f'    s_mul_i32 s26, s2, {REC_STRIDE}')
        a('    v_mov_b32 v63, s26')
        a('    buffer_load_dword v62, v63, s[52:55], 0 offen')
        a('    s_lshl_b32 s26, s58, 8')
        a(f'    s_add_u32 s26, s26, {WS_T}')
        a('    v_mov_b32 v63, s26')
        a('    buffer_load_dword v62, v63, s[52:55], 0 offen')
        a(f'    s_lshl_b32 s26, s2, 2')
        a(f'    s_add_u32 s26, s26, {WS_DESC}')
        a('    v_mov_b32 v63, s26')
        a('    buffer_load_dword v62, v63, s[52:55], 0 offen')
        a.label('K1_T_NOPF')
    if not XLATE: a('    s_barrier')
    if K1PF: a.label('K1_T_PFJOIN0')
    srd(a, 44, 6, 7, T_BYTES, off=WS_T)
    for i in range(3):
        a(f'    s_add_u32 s26, s21, {6*i}              ; p')
        a('    s_and_b32 s27, s26, 1')
        a('    s_lshl_b32 s27, s27, 2')
        a(f'    v_xor_b32 v{18+i}, s27, v8')
        a(f'    v_lshl_add_u32 v{18+i}, v{18+i}, 4, v9')
        a('    s_lshl_b32 s27, s26, 10                ; m*8192 + (p&7)*1024 = p*1024')
        a(f'    v_add_u32 v{18+i}, s27, v{18+i}')
    a('    s_and_b32 s23, s21, 1                  ; half')
    a('    v_bfe_u32 v12, v2, 2, 2                ; r')
    a('    v_lshl_add_u32 v13, v5, 3, v12         ; rho')
    a('    v_lshlrev_b32 v13, 7, v13')
    a('    v_and_b32 v14, 1, v2')
    a('    v_lshl_add_u32 v13, v14, 3, v13        ; + (c&1)*8')
    a('    v_bfe_u32 v14, v2, 1, 1                ; c>>1')
    a('    v_lshrrev_b32 v12, 1, v12')
    a('    v_and_b32 v15, 1, v5                   ; g&1')
    a('    v_lshlrev_b32 v15, 1, v15')
    a('    v_or_b32 v12, v12, v15                 ; swz/2')
    a('    s_lshl_b32 s25, s23, 1')
    a('    v_xor_b32 v15, s25, v12')
    a('    v_lshl_or_b32 v15, v15, 1, v14')
    a('    v_lshl_add_u32 v16, v15, 4, v13')
    a('    s_add_u32 s25, s25, 1')
    a('    v_xor_b32 v15, s25, v12')
    a('    v_lshl_or_b32 v15, v15, 1, v14')
    a('    v_lshl_add_u32 v17, v15, 4, v13')
    a('    v_lshlrev_b32 v21, 8, v4')
    a('    v_lshl_add_u32 v21, v5, 4, v21')
    a('    s_lshl_b32 s25, s23, 7')
    a('    s_lshl_b32 s26, s58, 8')
    a('    s_add_u32 s25, s25, s26')
    a('    v_add_u32 v21, s25, v21')
    a('    v_cmp_gt_u32 vcc, s59, v4')
    a(f'    v_mov_b32 v22, {1<<30}')
    a(f'    s_mov_b32 s27, {hex(f2u(-LOG2E))}')
    a('    s_mov_b32 s28, 0xffff0000')
    a('    v_cndmask_b32 v9, v22, v21, vcc')
    a('    s_mov_b32 s29, 0x80000000')
    a('    v_mov_b32 v10, 0')
    a('    v_mov_b32 v11, 1')
    if K1PF:
        a('    s_cmp_eq_u32 s21, 5')
        a('    s_cbranch_scc0 K1_T_W2')
        a('    s_waitcnt vmcnt(9)')
        a('    s_branch K1_T_W9')
        a.label('K1_T_W2')
    a('    s_waitcnt vmcnt(2)')
    if K1PF: a.label('K1_T_W9')
    stamp(a, 1)
    for i in range(3):
        if i == 2:
            a('    s_cmp_lt_u32 s21, 4')
            a('    s_cbranch_scc0 K1_T_ST2')
        a(f'    ds_write_b128 v{18+i}, v[{48+4*i}:{51+4*i}] offset:{L1_W}')
    a.label('K1_T_ST2')
    lds_sync(a, 'K1_T_SPIN', L1_SYNC, 6, 10, 11, 12, 26)
    stamp(a, 3)
    order = [(jj, ks, m) for jj in range(2) for ks in range(2) for m in range(2)]
    for i, (jj, ks, m) in enumerate(order):
        b = 64 + 4*i
        off = L1_W + m*8192 + ks*32*128
        a(f'    ds_read_b64_tr_b16 v[{b}:{b+1}], v{16+jj} offset:{off}')
        a(f'    ds_read_b64_tr_b16 v[{b+2}:{b+3}], v{16+jj} offset:{off+512}')
    if K1PF:
        a('    s_cmp_eq_u32 s21, 5')
        a('    s_cbranch_scc0 K1_T_X0')
        a('    s_waitcnt vmcnt(7)')
        a('    s_branch K1_T_XOK')
        a.label('K1_T_X0')
    a('    s_waitcnt vmcnt(0)')
    if K1PF: a.label('K1_T_XOK')
    for i, (jj, ks, m) in enumerate(order):
        b = 64 + 4*i
        a(f'    s_waitcnt lgkmcnt({min(15, 2*(7-i))})')
        acc = 32 + 8*m + 4*jj
        x = 24 + 4*ks
        c = '0' if ks == 0 else f'v[{acc}:{acc+3}]'
        a(f'    v_mfma_f32_16x16x32_bf16 v[{acc}:{acc+3}], v[{b}:{b+3}], v[{x}:{x+3}], {c}')
    stamp(a, 4)
    a('    s_nop 4')
    for jj in range(2):
        R = range(4)
        p = lambda r: 32 + 4*jj + r
        q = lambda r: 40 + 4*jj + r
        t = lambda r: 10 + r
        if jj == 1: a('    s_nop 2')
        for r in R: a(f'    v_mul_f32 v{p(r)}, s27, v{p(r)}')
        for r in R: a(f'    v_cvt_f16_f32 v{p(r)}, v{p(r)}')
        for r in R: a(f'    v_and_b32 v{t(r)}, 0x7fffffff, v{q(r)}')
        for r in R: a(f'    v_and_b32 v{p(r)}, 0xffff, v{p(r)}')
        for r in R: a(f'    v_sub_u32 v{t(r)}, v{t(r)}, v{p(r)}')
        for r in R: a(f'    v_add_u32 v{t(r)}, 0x8000, v{t(r)}')
        for r in R: a(f'    v_max_i32 v{t(r)}, 0, v{t(r)}')
        for r in R: a(f'    v_and_or_b32 v{t(r)}, v{t(r)}, s28, v{p(r)}')
        for r in R: a(f'    v_and_or_b32 v{p(r)}, v{q(r)}, s29, v{t(r)}')
        a(f'    buffer_store_dwordx4 v[{32+4*jj}:{35+4*jj}], v9, s[44:47], 0 offen offset:{jj*64} {TST}')
    a('    s_cmp_eq_u32 s2, 0')
    a('    s_cbranch_scc0 K1_TFIN')
    a('    s_cmp_eq_u32 s21, 0')
    a('    s_cbranch_scc0 K1_TFIN')
    a('    v_mov_b32 v10, 0x7c00')
    a(f'    v_lshlrev_b32 v11, 2, v2')
    a(f'    v_add_u32 v11, {N*256}, v11')
    a(f'    buffer_store_dword v10, v11, s[44:47], 0 offen {TST}')
    a.label('K1_TFIN')
    stamp(a, 5)
    if STAMP:
        stamp(a, 6)
        a('    s_waitcnt vmcnt(0)')
        stamp(a, 7); stamp(a, 1, True)
        if STAMP >= 3:
            a('    s_waitcnt lgkmcnt(0)')
            a(f'    s_mov_b32 s{ST0+4}, s{ST0+16}')
        else: stamp(a, 2)
        if TFIRST: a('    s_add_u32 s20, s20, 10')
        stamp_flush(a, 20, 2, 0, 6)
    a.label('K1_END')
    a('    s_endpgm')

CAP = 4096
TS = 272
L2_CNT = 0; L2_FLG = 256
L2_LIST = 512
L2_SLOT = L2_LIST + CAP*4
L2_EAT = L2_SLOT + 56*512; L2_UT = L2_EAT + 48*TS
XS = 144
L2_XT = L2_UT + 48*TS
L2_W = L2_XT + 48*XS
K2_LDS = L2_W + 16384
U = 4
TPF = int(env('TPF', '1'))
PFPOS = int(env('PFPOS', '1'))
PGT = int(env('PGT', '0'))
ASTAGE = int(env('ASTAGE', '1'))
G0N = int(env('G0N', '1'))
PFS = [int(x) for x in env('PFS', '6,6,6,6,8,8').split(',')]
PFW = int(env('PFW', '4'))
PFE = int(env('PFE', '0'))
PFL = int(env('PFL', '640'))
PFN = int(env('PFN', '20'))
PRT = [int(x) for x in env('PRT', '9,4,2').split(',')]

def gen_k2(a):
    a.k2 = True
    sB = 2; sWAVE = 3
    SRD_DESC = 12; SRD_REC = 16; SRD_T = 20; SRD_W = 24; SRD_X = 28; SRD_OUT = 32; SRD_WC = 36
    sMODE = 40; sPASS = 41
    sG0 = 42; sG1 = 43; sGEND = 44; sLEFT = 45; sNODE = 46; sT0 = 47; sT1 = 48; sSAFE = 49; sGT = 50; sR = 51
    sEX = 52; sEAB = 54; sPR = 55; sPQ = 56; sLVL = 57; sSLOT = 58; sNR = 59; sPQ2 = 60; sN0 = 62; sNN = 63; sNT = 61; sJ = 58
    sM = 64
    vLANE = 1
    vWC = 4; vEA = 8; vDEN = 12; vNUM = 16; vT = 20; vDAT = 24; vP = 40; vEV = 48
    vSA = 50; vACC = 51; vEAA = 52; vGS = 53; vQ16 = 54; vNG = 55
    vDA = 56; vNA = 60
    vX = 64
    vFL = 66
    vGE = 67
    vXO = 68
    vR = 76
    vB = 84
    vRK = 92
    vLA = 100
    vA = 108
    vCNT = 118; vRO = 119; vI = 120; vRM = 121; vTRA = 122; vXRA = 123; vROW = 121; vPFA = 51
    vLC = 12
    vPF = 16
    vXO2 = vXO
    SRD_LOC = 8; SRD_PF = 24
    vW = 24; vOP = 24; vAC = 40
    vOP2 = 76; vAC2 = 92
    vFS = 101; vFC = 102; vUTA = 103; vXTA = 106
    vOP3 = 24; vAC3 = 20; vAK = 20
    vU = 96; vUA = 100

    pf_state = {'next': 0}
    def pf(i):
        if not (TPF and PFPOS == 4) or PFS[i] == 0: return 0
        n = PFS[i]; st = pf_state['next']; pf_state['next'] += n
        assert pf_state['next'] <= 40
        base, off = (sJ, st*128) if st*128 < 4096 else (9, st*128 - 4096)
        a(f'    s_mov_b64 exec, {hex((1 << n) - 1)}')
        a(f'    buffer_load_dword v{vPF}, v{vPFA}, s[36:39], s{base} offen offset:{off}')
        a('    s_mov_b64 exec, -1')
        return 1
    npf = lambda *idx: sum(1 for i in idx if TPF and PFPOS == 4 and PFS[i] > 0)
    a('.p2align 8')
    a('.type k2_kernel,@function')
    a.label('k2_kernel')
    a(f'    s_cmp_ge_u32 s2, {NB}')
    a('    s_cbranch_scc1 K2_END')
    stamp(a, 0); stamp(a, 0, True)
    if CPF and CPF2:
        a('    s_getpc_b64 s[30:31]')
        a.label('K2_PC')
        a('    v_lshlrev_b32 v124, 7, v0')
        a('    v_cmp_gt_u32 vcc, CODE_END-K2_PC, v124')
        a('    s_and_saveexec_b64 s[28:29], vcc')
        a('    s_cbranch_execz K2_NOCPF')
        a('    global_load_dword v125, v124, s[30:31]')
        a.label('K2_NOCPF')
        a('    s_mov_b64 exec, s[28:29]')
    a(f'    s_lshr_b32 s{sJ}, s2, 3')
    if XMAP:
        a(f'    s_and_b32 s{sT0}, s2, 7')
        a(f'    s_lshl_b32 s{sT0}, s{sT0}, 5')
        a(f'    s_add_u32 s2, s{sT0}, s{sJ}')
    a(f'    s_mul_i32 s{sN0}, s2, 625')
    a(f'    s_add_u32 s{sNN}, s{sN0}, 640')
    a(f'    s_add_u32 s{sN0}, s{sN0}, 15')
    a(f'    s_lshr_b32 s{sN0}, s{sN0}, 4')
    a(f'    s_lshr_b32 s{sNN}, s{sNN}, 4')
    a(f'    s_sub_u32 s{sNN}, s{sNN}, s{sN0}')
    a('    s_load_dwordx2 s[6:7], s[0:1], 88      ; ws')
    a('    s_load_dwordx2 s[4:5], s[0:1], 0       ; x')
    a('    s_load_dwordx2 s[8:9], s[0:1], 32      ; w_a')
    a('    s_load_dwordx4 s[76:79], s[0:1], 48    ; w_c, w_u')
    a('    s_load_dwordx2 s[10:11], s[0:1], 72    ; out')
    a(f'    v_and_b32 v{vLANE}, 63, v0')
    a(f'    v_lshrrev_b32 v{vA}, 6, v0')
    a(f'    v_and_b32 v{vQ16}, 15, v0')
    a(f'    v_readfirstlane_b32 s{sWAVE}, v{vA}')
    a(f'    v_lshlrev_b32 v{vQ16}, 4, v{vQ16}      ; q*16')
    if DESCT:
        a(f'    v_and_b32 v{vA}, 0x3fc, v0             ; (t>>2)*4')
        a(f'    s_lshl_b32 s{sT0}, s{sB}, 10')
    else:
        a(f'    v_lshrrev_b32 v{vA}, 2, v0')
        a(f'    v_lshlrev_b32 v{vA}, 10, v{vA}')
        a(f'    s_lshl_b32 s{sT0}, s{sB}, 2')
    for i in range(4):
        a(f'    v_mov_b32 v{vDA+i}, 0')
        a(f'    v_mov_b32 v{vNA+i}, 0')
    masked(a, 'v_cmp_gt_u32 vcc, 4, v0', sEX)
    a(f'    v_lshlrev_b32 v{vA+5}, 2, v0')
    a(f'    ds_write_b32 v{vA+5}, v{vDA} offset:{L2_FLG}')
    unmask(a, sEX)
    a(f'    s_mov_b32 s{sMODE}, 0')
    a(f'    s_mov_b32 s{sPASS}, 0')
    a(f'    v_mov_b32 v{vEV}, 0')
    a(f'    v_mov_b32 v{vEV+1}, 0')
    for k in range(U):
        a(f'    v_mov_b32 v{vP+2*k}, {N}')
        a(f'    v_mov_b32 v{vP+2*k+1}, v{vQ16}')
    a(f'    v_lshrrev_b32 v{vA+1}, 5, v{vLANE}')
    a(f'    v_lshl_add_u32 v{vFL}, v{vA+1}, 8, v{vQ16}')
    a(f'    v_bfe_u32 v{vA+1}, v{vLANE}, 4, 1')
    a(f'    v_lshl_add_u32 v{vFL}, v{vA+1}, 3, v{vFL}')
    a.label('K2_PASS')
    for i in range(4):
        a(f'    v_mov_b32 v{vA+6+i}, {N}')
    a(f'    v_lshlrev_b32 v{vA+5}, 4, v0')
    a(f'    ds_write_b128 v{vA+5}, v[{vA+6}:{vA+9}] offset:{L2_LIST}')
    masked(a, 'v_cmp_gt_u32 vcc, 64, v0', sEX)
    a(f'    v_lshlrev_b32 v{vA+4}, 2, v0')
    a(f'    v_mov_b32 v{vA+3}, 0')
    a(f'    ds_write_b32 v{vA+4}, v{vA+3} offset:{L2_CNT}')
    unmask(a, sEX)
    a(f'    s_cmp_eq_u32 s{sMODE}, 0')
    a('    s_cbranch_scc0 K2_SLOWPARAM')
    a('    s_waitcnt lgkmcnt(0)')
    srd(a, SRD_DESC, 6, 7, NB*DESC_STRIDE, off=WS_DESC)
    a(f'    buffer_load_dword v{vCNT}, v{vA}, s[{SRD_DESC}:{SRD_DESC+3}], s{sT0} offen')
    a(f'    s_cmp_lt_u32 s{sWAVE}, 8')
    a(f'    s_cselect_b32 s{SRD_W}, s8, s78')
    a(f'    s_cselect_b32 s{SRD_W+1}, s9, s79')
    a(f'    s_mov_b32 s{SRD_W+2}, 8192')
    a(f'    s_mov_b32 s{SRD_W+3}, 0x00020000')
    srd(a, SRD_X, 4, 5, N*128)
    srd(a, SRD_WC, 76, 77, 128)
    a(f'    v_and_b32 v{vA+1}, 511, v0')
    a(f'    v_lshlrev_b32 v{vA+1}, 4, v{vA+1}')
    a(f'    buffer_load_dwordx4 v[{vW}:{vW+3}], v{vA+1}, s[{SRD_W}:{SRD_W+3}], 0 offen')
    a(f'    v_lshlrev_b32 v{vA+4}, 4, v0')
    a(f'    v_cmp_gt_u32 vcc, 384, v0')
    a(f'    v_mov_b32 v{vA+3}, {1<<30}')
    a(f'    s_lshl_b32 s{sT1}, s{sN0}, 7')
    a(f'    v_cndmask_b32 v{vA+4}, v{vA+3}, v{vA+4}, vcc')
    a(f'    buffer_load_dwordx4 v[{vXO}:{vXO+3}], v{vA+4}, s[{SRD_X}:{SRD_X+3}], s{sT1} offen')
    a(f'    v_lshrrev_b32 v{vA+7}, 1, v{vQ16}      ; q*8 (wc)')
    a(f'    buffer_load_dwordx2 v[{vWC}:{vWC+1}], v{vA+7}, s[{SRD_WC}:{SRD_WC+3}], 0 offen')
    if TPF and PFPOS == 4:
        srd(a, 36, 6, 7, T_BYTES, off=WS_T)
        a(f'    s_mul_i32 s{sJ}, s{sJ}, {640*128}')
        a(f'    s_mul_i32 s9, s{sWAVE}, {40*128}')
        a(f'    s_add_u32 s{sJ}, s{sJ}, s9')
        a(f'    s_add_u32 s9, s{sJ}, 4096')
        a(f'    v_lshlrev_b32 v{vPFA}, 7, v{vLANE}')
        pf(0)
    if PFE:
        srd(a, SRD_REC, 6, 7, T_BYTES, off=WS_T)
        a(f'    s_mul_i32 s{sT0}, s{sJ}, {640*128}')
        a(f'    s_mul_i32 s{sT1}, s{sWAVE}, {40*128}')
        a(f'    s_add_u32 s{sT0}, s{sT0}, s{sT1}')
        a(f'    s_add_u32 s{sT0}, s{sT0}, {PFN*128}')
        a(f'    v_lshlrev_b32 v{vPF+1}, 7, v{vLANE}')
        a(f'    v_cmp_gt_u32 vcc, {PFE}, v{vLANE}')
        a(f'    v_mov_b32 v{vPF+2}, {1<<30}')
        a('    s_nop 0')
        a(f'    v_cndmask_b32 v{vPF+1}, v{vPF+2}, v{vPF+1}, vcc')
        a(f'    buffer_load_dword v{vPF+1}, v{vPF+1}, s[{SRD_REC}:{SRD_REC+3}], s{sT0} offen')
    if PGT:
        srd(a, SRD_REC, 6, 7, WS_T + T_BYTES, off=0)
        a(f'    v_lshlrev_b32 v{vPF+1}, 21, v{vLANE}')
        a(f'    buffer_load_dword v{vPF+1}, v{vPF+1}, s[{SRD_REC}:{SRD_REC+3}], 0 offen')
    if not ASTAGE: a('    s_barrier')
    srd(a, SRD_OUT, 10, 11, N*128)
    srd(a, SRD_REC, 6, 7, NC*REC_STRIDE + 64, off=WS_REC)
    srd(a, SRD_T, 6, 7, 0, off=WS_T, stride=256, nrec=N+1)
    a(f'    v_lshrrev_b32 v{vA}, 2, v0             ; c')
    a(f'    v_mul_u32_u24 v{vRO}, {REC_STRIDE}, v{vA}')
    a(f'    v_and_b32 v{vI}, 3, v0')
    a(f'    v_lshlrev_b32 v{vI}, 2, v{vI}')
    a(f'    v_mad_u32_u24 v{vRO}, v{vI}, 5, v{vRO}')
    a(f'    s_mov_b32 s{sT1}, 16')
    a(f'    s_waitcnt vmcnt({3+PGT+(1 if PFE else 0)+npf(0)})                      ; descriptor')
    stamp(a, 1)
    a(f'    v_and_b32 v{vA+1}, 0xffff, v{vCNT}      ; start')
    a(f'    v_lshrrev_b32 v{vCNT}, 16, v{vCNT}      ; cnt')
    a(f'    v_mad_u32_u24 v{vRO}, v{vA+1}, 5, v{vRO}')
    a('    s_branch K2_PARAMDONE')
    a.label('K2_SLOWPARAM')
    a(f'    s_lshl_b32 s{sT0}, s{sB}, {10 if DESCT else 2}')
    a(f'    s_lshl_b32 s{sT1}, s{sPASS}, {2 if DESCT else 10}')
    a(f'    s_add_u32 s{sT0}, s{sT0}, s{sT1}')
    a(f'    v_mov_b32 v{vA}, 0')
    a(f'    buffer_load_dword v{vCNT}, v{vA}, s[{SRD_DESC}:{SRD_DESC+3}], s{sT0} offen')
    a(f'    s_mul_i32 s{sT0}, s{sPASS}, {REC_STRIDE}')
    a('    s_waitcnt vmcnt(0) lgkmcnt(0)')
    a('    s_barrier')
    a(f'    v_and_b32 v{vA+1}, 0xffff, v{vCNT}')
    a(f'    v_lshlrev_b32 v{vI}, 2, v0')
    a(f'    v_add_u32 v{vA+1}, v{vA+1}, v{vI}')
    a(f'    v_mul_u32_u24 v{vRO}, 5, v{vA+1}')
    a(f'    v_add_u32 v{vRO}, s{sT0}, v{vRO}')
    a(f'    v_lshrrev_b32 v{vCNT}, 16, v{vCNT}')
    a(f'    s_mov_b32 s{sT1}, 4096')
    a.label('K2_PARAMDONE')
    a(f'    v_sub_u32 v{vRM}, v{vCNT}, v{vI}')
    a(f'    s_mul_i32 s{sT0}, s{sT1}, 5')
    a(f'    s_mov_b32 s{sNR}, 0')
    for r in range(2):
        m0 = sM + 8*r
        if r == 1:
            a(f'    v_subrev_u32 v{vRM}, s{sT1}, v{vRM}')
        for h in range(4):
            a(f'    v_cmp_gt_i32 s[{m0+2*h}:{m0+2*h+1}], v{vRM}, {h}' if h else f'    v_cmp_lt_i32 s[{m0}:{m0+1}], 0, v{vRM}')
        a(f'    s_cmp_eq_u64 s[{m0}:{m0+1}], 0')
        a(f'    s_cbranch_scc1 K2_LD_DONE')
        a(f'    s_mov_b64 exec, s[{m0}:{m0+1}]')
        a(f'    buffer_load_dwordx4 v[{vR+4*r}:{vR+4*r+3}], v{vRO}, s[{SRD_REC}:{SRD_REC+3}], 0 offen {RLD}')
        a(f'    buffer_load_dword v{vLC+r}, v{vRO}, s[{SRD_REC}:{SRD_REC+3}], 0 offen offset:16 {RLD}')
        a(f'    s_mov_b64 exec, -1')
        a(f'    s_mov_b32 s{sNR}, {r+1}')
        if r < 1:
            a(f'    v_add_u32 v{vRO}, s{sT0}, v{vRO}')
    a.label('K2_LD_DONE')
    a(f'    s_or_b32 s{sT0}, s{sMODE}, s{sPASS}')
    a(f'    s_cmp_eq_u32 s{sT0}, 0')
    a('    s_cbranch_scc0 K2_LATER_PASS')
    pf(1)
    if TPF and PFPOS == 3:
        a(f'    s_mul_i32 s{sT0}, s{sJ}, {640*128}')
        a(f'    s_mul_i32 s{sT1}, s{sWAVE}, {40*128}')
        a(f'    s_add_u32 s{sT0}, s{sT0}, s{sT1}')
        a(f'    s_add_u32 s{sT0}, s{sT0}, {WS_T}')
        a(f'    s_add_u32 s24, s6, s{sT0}')
        a(f'    s_addc_u32 s25, s7, 0')
        for i in range(PFN):
            a(f'    s_load_dword s26, s[24:25], {128*i}')
    if TPF and PFPOS == 2:
        W0 = 16 - PFW
        per = PFL // PFW
        a(f'    s_cmp_ge_u32 s{sWAVE}, {W0}')
        a('    s_cbranch_scc0 K2_NOPF2')
        srd(a, SRD_PF, 6, 7, T_BYTES, off=WS_T)
        a(f'    s_mul_i32 s{sT0}, s{sJ}, {640*128}')
        a(f'    s_sub_u32 s{sT1}, s{sWAVE}, {W0}')
        a(f'    s_mul_i32 s{sT1}, s{sT1}, {per*128}')
        a(f'    s_add_u32 s{sT0}, s{sT0}, s{sT1}')
        a(f'    v_lshlrev_b32 v{vPFA}, 7, v{vLANE}')
        nin = (per + 63)//64
        for i in range(nin):
            left = per - 64*i
            if left < 64:
                a(f'    v_cmp_gt_u32 vcc, {left}, v{vLANE}')
                a(f'    v_mov_b32 v{vPF+1}, {1<<30}')
                a('    s_nop 0')
                a(f'    v_cndmask_b32 v{vPFA}, v{vPF+1}, v{vPFA}, vcc')
            a(f'    buffer_load_dword v{vPF}, v{vPFA}, s[{SRD_PF}:{SRD_PF+3}], s{sT0} offen')
            if i + 1 < nin: a(f'    s_add_u32 s{sT0}, s{sT0}, 8192')
        a.label('K2_NOPF2')
    a(f'    v_lshrrev_b32 v{vA+8}, 3, v0')
    a(f'    v_mul_u32_u24 v{vA+8}, {XS}, v{vA+8}')
    a(f'    v_and_b32 v{vA+7}, 7, v0')
    a(f'    v_lshl_add_u32 v{vA+8}, v{vA+7}, 4, v{vA+8}')
    a(f'    v_add_u32 v{vA+8}, {L2_XT}, v{vA+8}')
    NPF = 1 if TPF else 0
    a(f'    v_bfe_u32 v{vA+1}, v0, 4, 1')
    a(f'    v_bfe_u32 v{vA+2}, v0, 6, 1')
    a(f'    v_lshlrev_b32 v{vA+1}, 1, v{vA+1}')
    a(f'    v_lshl_or_b32 v{vA+1}, v{vA+2}, 2, v{vA+1}')
    a(f'    v_and_b32 v{vA+2}, 7, v0')
    a(f'    v_xor_b32 v{vA+1}, v{vA+1}, v{vA+2}')
    a(f'    v_lshrrev_b32 v{vA+2}, 3, v0')
    a(f'    v_lshlrev_b32 v{vA+2}, 7, v{vA+2}')
    a(f'    v_lshl_add_u32 v{vA+9}, v{vA+1}, 4, v{vA+2}')
    a(f'    v_add_u32 v{vA+9}, {L2_W}, v{vA+9}')
    a(f'    v_lshrrev_b32 v{vA+3}, 4, v{vLANE}     ; g')
    a(f'    v_bfe_u32 v{vA}, v{vLANE}, 2, 2        ; r')
    a(f'    v_lshl_add_u32 v{vA+1}, v{vA+3}, 3, v{vA}')
    a(f'    v_lshlrev_b32 v{vA+1}, 7, v{vA+1}')
    a(f'    v_and_b32 v{vA+2}, 1, v{vLANE}')
    a(f'    v_lshl_add_u32 v{vA+1}, v{vA+2}, 3, v{vA+1}')
    a(f'    v_lshrrev_b32 v{vA}, 1, v{vA}')
    a(f'    v_and_b32 v{vA+2}, 1, v{vA+3}')
    a(f'    v_lshl_or_b32 v{vA}, v{vA+2}, 1, v{vA}     ; swz/2')
    a(f'    s_and_b32 s{sT0}, s{sWAVE}, 3')
    a(f'    v_xor_b32 v{vA}, s{sT0}, v{vA}')
    a(f'    v_bfe_u32 v{vA+2}, v{vLANE}, 1, 1')
    a(f'    v_lshl_or_b32 v{vA}, v{vA}, 1, v{vA+2}')
    a(f'    v_lshl_add_u32 v{vTRA}, v{vA}, 4, v{vA+1}')
    a(f'    v_add_u32 v{vTRA}, {L2_W}, v{vTRA}')
    a(f'    s_lshr_b32 s{sT1}, s{sWAVE}, 2')
    a(f'    s_lshl_b32 s{sT1}, s{sT1}, 4')
    a(f'    v_and_b32 v{vA+2}, 15, v{vLANE}')
    a(f'    v_add_u32 v{vROW}, s{sT1}, v{vA+2}     ; row')
    a(f'    v_mul_u32_u24 v{vA+1}, {XS}, v{vROW}')
    a(f'    v_lshl_add_u32 v{vA+1}, v{vA+3}, 4, v{vA+1}')
    a(f'    v_add_u32 v{vXRA}, {L2_XT}, v{vA+1}')
    a(f'    v_mul_u32_u24 v{vA+4}, {TS}, v{vROW}')
    a(f'    v_lshl_add_u32 v{vA+4}, v{vA+3}, 4, v{vA+4}')
    a(f'    s_lshl_b32 s{sT0}, s{sT0}, 6')
    a(f'    s_add_u32 s{sT0}, s{sT0}, {L2_EAT}')
    a(f'    v_add_u32 v{vEAA}, s{sT0}, v{vA+4}')
    if TPF and PFPOS < 2:
        srd(a, SRD_PF, 6, 7, T_BYTES, off=WS_T)
        a(f'    s_mul_i32 s{sT0}, s{sJ}, {640*128}')
        a(f'    s_mul_i32 s{sT1}, s{sWAVE}, {40*128}')
        a(f'    s_add_u32 s{sJ}, s{sT0}, s{sT1}')
        a(f'    v_lshlrev_b32 v{vA+3}, 7, v{vLANE}')
        a(f'    v_cmp_gt_u32 vcc, {PFN}, v{vLANE}')
        a(f'    v_mov_b32 v{vA+4}, {1<<30}')
        a('    s_nop 0')
        a(f'    v_cndmask_b32 v{vPFA}, v{vA+4}, v{vA+3}, vcc')
    if ASTAGE:
        a(f'    s_cmp_eq_u32 s{sNR}, 2')
        a('    s_cbranch_scc1 K2_WW4')
        a(f'    s_cmp_eq_u32 s{sNR}, 1')
        a('    s_cbranch_scc1 K2_WW2')
        a(f'    s_waitcnt vmcnt({npf(1)})')
        a('    s_branch K2_WWD')
        a.label('K2_WW4')
        a(f'    s_waitcnt vmcnt({4+npf(1)})')
        a('    s_branch K2_WWD')
        a.label('K2_WW2')
        a(f'    s_waitcnt vmcnt({2+npf(1)})')
        a.label('K2_WWD')
        a(f'    ds_write_b128 v{vA+9}, v[{vW}:{vW+3}]')
        a(f'    s_cmp_lt_u32 s{sWAVE}, 6')
        a('    s_cbranch_scc0 K2_NOXST0')
        a(f'    ds_write_b128 v{vA+8}, v[{vXO}:{vXO+3}]')
        a.label('K2_NOXST0')
        a('    s_waitcnt lgkmcnt(0)')
        a('    s_barrier')
        pf(2)
        a(f'    s_cmp_lt_u32 s{sWAVE}, 12')
        a('    s_cbranch_scc0 K2_NOMFMA0')
        a(f'    ds_read_b128 v[{vXO}:{vXO+3}], v{vXRA}')
        a(f'    ds_read_b64_tr_b16 v[{vOP3}:{vOP3+1}], v{vTRA}')
        a(f'    ds_read_b64_tr_b16 v[{vOP3+2}:{vOP3+3}], v{vTRA} offset:{0+512}')
        a(f'    ds_read_b128 v[{vXO+4}:{vXO+7}], v{vXRA} offset:64')
        a(f'    ds_read_b64_tr_b16 v[{vOP3+4}:{vOP3+5}], v{vTRA} offset:{0+4096}')
        a(f'    ds_read_b64_tr_b16 v[{vOP3+6}:{vOP3+7}], v{vTRA} offset:{0+4096+512}')
        a(f'    s_mov_b32 s{sT0}, {hex(f2u(-LOG2E))}')
        a(f'    s_mov_b32 s{sT1}, {hex(f2u(60.0))}')
        a('    s_waitcnt lgkmcnt(3)')
        a(f'    v_mfma_f32_16x16x32_bf16 v[{vAC3}:{vAC3+3}], v[{vOP3}:{vOP3+3}], v[{vXO}:{vXO+3}], 0')
        a('    s_waitcnt lgkmcnt(0)')
        a(f'    v_mfma_f32_16x16x32_bf16 v[{vAC3}:{vAC3+3}], v[{vOP3+4}:{vOP3+7}], v[{vXO+4}:{vXO+7}], v[{vAC3}:{vAC3+3}]')
        a('    s_nop 7')
        for i in range(4):
            a(f'    v_mul_f32 v{vAC3+i}, s{sT0}, v{vAC3+i}')
        for i in range(4):
            a(f'    v_exp_f32 v{vOP3+i}, v{vAC3+i}')
        a(f'    v_max3_f32 v{vA+5}, |v{vAC3}|, |v{vAC3+1}|, |v{vAC3+2}|')
        a(f'    v_max_f32 v{vA+5}, v{vA+5}, |v{vAC3+3}|')
        a(f'    ds_write_b128 v{vEAA}, v[{vOP3}:{vOP3+3}]')
        a(f'    v_cmp_nle_f32 vcc, v{vA+5}, s{sT1}')
        a(f'    v_cmp_gt_u32 s[{sEX}:{sEX+1}], s{sNN}, v{vROW}')
        a(f'    s_and_b64 vcc, vcc, s[{sEX}:{sEX+1}]')
        a(f'    s_and_saveexec_b64 s[{sEX}:{sEX+1}], vcc')
        a('    s_cbranch_execz K2_GUARD_OK0')
        a(f'    v_mov_b32 v{vA+5}, 1')
        a(f'    v_mov_b32 v{vA+7}, 0')
        a(f'    ds_write_b32 v{vA+7}, v{vA+5} offset:{L2_FLG+4}')
        unmask(a, sEX, 'K2_GUARD_OK0')
        a.label('K2_NOMFMA0')
        pf(3)
        if TPF and PFPOS == 4:
            a(f'    v_mov_b32 v{vA+2}, 1')
            a(f'    s_waitcnt vmcnt({npf(1,2,3)})')
            pf(4)
            a('    s_branch K2_RANKS')
    if TPF and PFPOS == 2:
        a(f'    v_mov_b32 v{vA+2}, 1')
        a(f'    s_cmp_ge_u32 s{sWAVE}, {16 - PFW}')
        a('    s_cbranch_scc0 K2_LATER_PASS')
        a(f'    s_waitcnt vmcnt({(PFL // PFW + 63)//64})')
        a('    s_branch K2_RANKS')
    a.label('K2_LATER_PASS')
    a(f'    v_mov_b32 v{vA+2}, 1')
    a('    s_waitcnt vmcnt(0)')
    if TPF and PFPOS == 1:
        a(f'    s_or_b32 s{sT0}, s{sMODE}, s{sPASS}')
        a(f'    s_cmp_eq_u32 s{sT0}, 0')
        a('    s_cbranch_scc0 K2_RANKS')
        a(f'    buffer_load_dword v{vPF}, v{vPFA}, s[{SRD_PF}:{SRD_PF+3}], s{sJ} offen')
    a.label('K2_RANKS')
    stamp(a, 2)
    for r in range(2):
        a(f'    s_cmp_le_u32 s{sNR}, {r}')
        a('    s_cbranch_scc1 K2_RK_DONE')
        d = vR + 4*r
        a(f'    v_and_b32 v{vLA+4*r}, 0xff, v{d+1}')
        a(f'    v_bfe_u32 v{vLA+4*r+1}, v{d+2}, 8, 8')
        a(f'    v_bfe_u32 v{vLA+4*r+2}, v{d+3}, 16, 8')
        a(f'    v_lshrrev_b32 v{vLA+4*r+3}, 24, v{vLC+r}')
        for h in range(4):
            k = 4*r + h
            a(f'    s_mov_b64 exec, s[{sM+2*k}:{sM+2*k+1}]')
            a(f'    ds_add_rtn_u32 v{vRK+k}, v{vLA+k}, v{vA+2} offset:{L2_CNT}')
        a('    s_mov_b64 exec, -1')
        a(f'    v_alignbyte_b32 v{d+1}, v{d+2}, v{d+1}, 1')
        a(f'    v_alignbyte_b32 v{d+2}, v{d+3}, v{d+2}, 2')
        a(f'    v_alignbyte_b32 v{d+3}, v{vLC+r}, v{d+3}, 3')
    a.label('K2_RK_DONE')
    masked(a, f'v_cmp_lt_u32 vcc, 32, v{vCNT}', sEX, 'K2_NOOVF')
    a(f'    v_mov_b32 v{vA+3}, 0')
    a(f'    ds_write_b32 v{vA+3}, v{vA+2} offset:{L2_FLG}')
    unmask(a, sEX, 'K2_NOOVF')
    a(f'    s_or_b32 s{sT0}, s{sMODE}, s{sPASS}')
    a(f'    s_cmp_eq_u32 s{sT0}, 0')
    a('    s_cbranch_scc0 K2_NOWST')
    pf(5)
    if not ASTAGE:
        a(f'    ds_write_b128 v{vA+9}, v[{vW}:{vW+3}]')
        a(f'    s_cmp_lt_u32 s{sWAVE}, 6')
        a('    s_cbranch_scc0 K2_NOXST')
        a(f'    ds_write_b128 v{vA+8}, v[{vXO}:{vXO+3}]')
        a.label('K2_NOXST')
    a(f'    s_mov_b32 s{sT0}, {hex(f2u(-LOG2E))}')
    a(f'    v_and_b32 v{vWC+3}, 0xffff0000, v{vWC+1}')
    a(f'    v_lshlrev_b32 v{vWC+2}, 16, v{vWC+1}')
    a(f'    v_and_b32 v{vWC+1}, 0xffff0000, v{vWC}')
    a(f'    v_lshlrev_b32 v{vWC}, 16, v{vWC}')
    for k in range(4):
        a(f'    v_mul_f32 v{vWC+k}, s{sT0}, v{vWC+k}')
    a.label('K2_NOWST')
    a(f'    v_lshlrev_b32 v{vA+1}, 2, v{vLANE}')
    a(f'    v_mov_b32 v{vA}, 0')
    a('    s_waitcnt lgkmcnt(0)')
    stamp(a, 3)
    a('    s_barrier')
    stamp(a, 4)
    if TPF and PFPOS == 0:
        a(f'    s_or_b32 s{sT0}, s{sMODE}, s{sPASS}')
        a(f'    s_cmp_eq_u32 s{sT0}, 0')
        a('    s_cbranch_scc0 K2_NOPF')
        a(f'    buffer_load_dword v{vPF}, v{vPFA}, s[{SRD_PF}:{SRD_PF+3}], s{sJ} offen')
        a.label('K2_NOPF')
    a(f'    ds_read_b32 v{vNG}, v{vA+1} offset:{L2_CNT}')
    a(f'    ds_read_b32 v{vA+4}, v{vA} offset:{L2_FLG}')
    a('    s_waitcnt lgkmcnt(1)')
    a(f'    v_add_u32 v{vNG}, 3, v{vNG}')
    a(f'    v_lshrrev_b32 v{vNG}, 2, v{vNG}')
    a(f'    v_mov_b32 v{vGE}, v{vNG}')
    dpp_scan(a, vGE)
    a('    s_waitcnt lgkmcnt(0)')
    a(f'    v_readlane_b32 s{sGT}, v{vGE}, {NPB-1}')
    a(f'    v_sub_u32 v{vGS}, v{vGE}, v{vNG}')
    a(f'    v_readfirstlane_b32 s{sT0}, v{vA+4}')
    a(f'    v_lshlrev_b32 v{vA+6}, 4, v{vGS}')
    a(f'    v_cmp_lt_u32 vcc, {NPB}, v{vLANE}')
    a(f'    s_add_u32 s{sR}, s{sGT}, 15')
    a(f'    s_lshr_b32 s{sR}, s{sR}, 4')
    a(f'    v_cndmask_b32 v{vGS}, v{vGS}, -1, vcc')
    a(f'    s_cmp_eq_u32 s{sMODE}, 0')
    a('    s_cbranch_scc0 K2_NOSWITCH')
    a(f'    s_cmp_gt_u32 s{sGT}, {(CAP - 64)//4}')
    a(f'    s_cselect_b32 s{sT1}, 1, 0')
    a(f'    s_or_b32 s{sT0}, s{sT0}, s{sT1}')
    a(f'    s_cmp_eq_u32 s{sT0}, 0')
    a('    s_cbranch_scc1 K2_NOSWITCH')
    a(f'    s_mov_b32 s{sNR}, 0')
    a(f'    s_mov_b32 s{sGT}, 0')
    a(f'    s_mov_b32 s{sR}, 0')
    a(f'    s_mov_b32 s{sMODE}, 2')
    a.label('K2_NOSWITCH')
    for r in range(2):
        a(f'    s_cmp_le_u32 s{sNR}, {r}')
        a('    s_cbranch_scc1 K2_LK_DONE')
        for h in range(4):
            k = 4*r + h
            a(f'    ds_bpermute_b32 v{vB+k}, v{vLA+k}, v{vA+6}')
    a.label('K2_LK_DONE')
    a('    s_waitcnt lgkmcnt(0)')
    for r in range(2):
        a(f'    s_cmp_le_u32 s{sNR}, {r}')
        a('    s_cbranch_scc1 K2_SC_DONE')
        for h in range(4):
            k = 4*r + h
            a(f'    s_mov_b64 exec, s[{sM+2*k}:{sM+2*k+1}]')
            a(f'    v_lshl_add_u32 v{vB+k}, v{vRK+k}, 2, v{vB+k}')
            a(f'    ds_write_b32 v{vB+k}, v{vR+k} offset:{L2_LIST}')
    a.label('K2_SC_DONE')
    a('    s_mov_b64 exec, -1')
    a(f'    s_mul_i32 s{sG0}, s{sR}, s{sWAVE}')
    a(f'    s_add_u32 s{sG1}, s{sG0}, s{sR}')
    a(f'    s_min_u32 s{sG1}, s{sG1}, s{sGT}')
    a(f'    v_lshrrev_b32 v{vSA}, 4, v{vLANE}')
    a(f'    v_lshlrev_b32 v{vSA}, 2, v{vSA}         ; slot*4')
    a(f'    s_lshl_b32 s{sT0}, s{sG0}, 4')
    a(f'    v_add_u32 v{vSA}, s{sT0}, v{vSA}')
    a(f'    v_mov_b32 v{vA}, 0')
    a('    s_waitcnt lgkmcnt(0)')
    a('    s_barrier')
    if PRIO: a('    s_setprio 3')
    stamp(a, 5)

    def tload(k):
        d = vDAT + 4*k
        a(f'    buffer_load_dwordx4 v[{d}:{d+3}], v[{vP+2*k}:{vP+2*k+1}], s[{SRD_T}:{SRD_T+3}], 0 idxen offen')

    a(f'    s_cmp_ge_u32 s{sG0}, s{sG1}')
    a('    s_cbranch_scc1 K2_NOGATH')
    for k in range(U):
        a(f'    ds_read_u16 v{vP+2*k}, v{vSA} offset:{L2_LIST + 16*k}')
    a(f'    ds_read_u16_d16_hi v{vEV}, v{vSA} offset:{L2_LIST + 2}')
    a('    s_waitcnt lgkmcnt(0)')
    for k in range(G0N):
        tload(k)
    a(f'    ds_read_u16 v{vP}, v{vSA} offset:{L2_LIST + 16*U}')
    a.label('K2_NOGATH')
    a(f'    s_cmp_eq_u32 s{sPASS}, 0')
    a('    s_cbranch_scc0 K2_NOTAB')
    a(f'    s_cmp_eq_u32 s{sMODE}, 1')
    a('    s_cbranch_scc1 K2_NOTAB')
    if not ASTAGE:
        a(f'    s_cmp_lt_u32 s{sWAVE}, 12')
        a('    s_cbranch_scc0 K2_NOMFMA')
        a(f'    ds_read_b128 v[{vXO}:{vXO+3}], v{vXRA}')
        a(f'    ds_read_b64_tr_b16 v[{vOP2}:{vOP2+1}], v{vTRA}')
        a(f'    ds_read_b64_tr_b16 v[{vOP2+2}:{vOP2+3}], v{vTRA} offset:{0+512}')
        a(f'    ds_read_b128 v[{vXO+4}:{vXO+7}], v{vXRA} offset:64')
        a(f'    ds_read_b64_tr_b16 v[{vOP2+4}:{vOP2+5}], v{vTRA} offset:{0+4096}')
        a(f'    ds_read_b64_tr_b16 v[{vOP2+6}:{vOP2+7}], v{vTRA} offset:{0+4096+512}')
        a(f'    s_mov_b32 s{sT0}, {hex(f2u(-LOG2E))}')
        a(f'    s_mov_b32 s{sT1}, {hex(f2u(60.0))}')
        a('    s_waitcnt lgkmcnt(3)')
        a(f'    v_mfma_f32_16x16x32_bf16 v[{vAC2}:{vAC2+3}], v[{vOP2}:{vOP2+3}], v[{vXO}:{vXO+3}], 0')
        a('    s_waitcnt lgkmcnt(0)')
        a(f'    v_mfma_f32_16x16x32_bf16 v[{vAC2}:{vAC2+3}], v[{vOP2+4}:{vOP2+7}], v[{vXO+4}:{vXO+7}], v[{vAC2}:{vAC2+3}]')
        a('    s_nop 7')
        for i in range(4):
            a(f'    v_mul_f32 v{vAC2+i}, s{sT0}, v{vAC2+i}')
        for i in range(4):
            a(f'    v_exp_f32 v{vOP2+i}, v{vAC2+i}')
        a(f'    v_max3_f32 v{vA+5}, |v{vAC2}|, |v{vAC2+1}|, |v{vAC2+2}|')
        a(f'    v_max_f32 v{vA+5}, v{vA+5}, |v{vAC2+3}|')
        a(f'    ds_write_b128 v{vEAA}, v[{vOP2}:{vOP2+3}]')
        a(f'    v_cmp_nle_f32 vcc, v{vA+5}, s{sT1}')
        a(f'    v_cmp_gt_u32 s[{sEX}:{sEX+1}], s{sNN}, v{vROW}')
        a(f'    s_and_b64 vcc, vcc, s[{sEX}:{sEX+1}]')
        a(f'    s_and_saveexec_b64 s[{sEX}:{sEX+1}], vcc')
        a('    s_cbranch_execz K2_GUARD_OK')
        a(f'    v_mov_b32 v{vA+5}, 1')
        a(f'    v_mov_b32 v{vA+7}, 0')
        a(f'    ds_write_b32 v{vA+7}, v{vA+5} offset:{L2_FLG+4}')
        unmask(a, sEX, 'K2_GUARD_OK')
    a.label('K2_NOMFMA')
    if not ASTAGE:
        a(f'    v_mov_b32 v{vA}, 0')
        a('    s_waitcnt lgkmcnt(0)')
        a('    s_barrier')
        a(f'    ds_read_b32 v{vA+5}, v{vA} offset:{L2_FLG+4}')
    else:
        a(f'    v_mov_b32 v{vA}, 0')
        a(f'    ds_read_b32 v{vA+5}, v{vA} offset:{L2_FLG+4}')
    a(f'    s_cmp_ge_u32 s{sG0}, s{sG1}')
    a('    s_cbranch_scc1 K2_NOGATH2')
    for k in range(G0N, U):
        tload(k)
    a.label('K2_NOGATH2')
    a(f'    s_cmp_lt_u32 s{sWAVE}, 12')
    a('    s_cbranch_scc0 K2_NOU')
    a(f'    ds_read_b64_tr_b16 v[{vOP2}:{vOP2+1}], v{vTRA} offset:{0+8192}')
    a(f'    ds_read_b64_tr_b16 v[{vOP2+2}:{vOP2+3}], v{vTRA} offset:{0+8192+512}')
    a(f'    ds_read_b64_tr_b16 v[{vOP2+4}:{vOP2+5}], v{vTRA} offset:{0+8192+4096}')
    a(f'    ds_read_b64_tr_b16 v[{vOP2+6}:{vOP2+7}], v{vTRA} offset:{0+8192+4096+512}')
    a('    s_waitcnt lgkmcnt(2)')
    a(f'    v_mfma_f32_16x16x32_bf16 v[{vU}:{vU+3}], v[{vOP2}:{vOP2+3}], v[{vXO}:{vXO+3}], 0')
    a('    s_waitcnt lgkmcnt(0)')
    a(f'    v_mfma_f32_16x16x32_bf16 v[{vU}:{vU+3}], v[{vOP2+4}:{vOP2+7}], v[{vXO+4}:{vXO+7}], v[{vU}:{vU+3}]')
    a(f'    v_mov_b32 v{vUA}, v{vEAA}')
    a.label('K2_NOU')
    a('    s_waitcnt lgkmcnt(0)')
    a(f'    v_readfirstlane_b32 s{sSAFE}, v{vA+5}')
    a('    s_nop 0')
    a(f'    s_cmp_eq_u32 s{sSAFE}, 0')
    a('    s_cbranch_scc1 K2_WAITW')
    a('    s_barrier')
    a(f'    s_cmp_lt_u32 s{sWAVE}, 12')
    a('    s_cbranch_scc0 K2_SAFE_NOW')
    a(f'    ds_write_b128 v{vEAA}, v[{(vAK if ASTAGE else vAC2)}:{(vAK if ASTAGE else vAC2)+3}]')
    a.label('K2_SAFE_NOW')
    a('    s_waitcnt lgkmcnt(0)')
    a('    s_barrier')
    a.label('K2_WAITW')
    a('    s_branch K2_TABDONE')
    a.label('K2_NOTAB')
    a(f'    s_cmp_ge_u32 s{sG0}, s{sG1}')
    a('    s_cbranch_scc1 K2_TABDONE')
    for k in range(G0N, U):
        tload(k)
    a.label('K2_TABDONE')
    dstamp(a, 1)
    if SPANW:
        a(f'    s_mov_b64 s[{sM}:{sM+1}], 0')
        a(f'    s_mov_b64 s[{sM+2}:{sM+3}], 0')
        a(f'    s_mov_b64 s[{sM+4}:{sM+5}], 0')
        a(f'    s_lshl_b32 s{sNT}, s{sNN}, 4')
        a(f'    s_cmp_lt_u32 s{sWAVE}, 10')
        a('    s_cbranch_scc0 K2_NOSPAN')
    a(f'    v_cvt_f32_u32 v{vA}, s{sR}')
    a(f'    v_cvt_f32_u32 v{vA+1}, v{vGS}')
    a(f'    v_rcp_f32 v{vA}, v{vA}')
    a(f'    v_cvt_f32_u32 v{vA+2}, v{vGE}')
    a(f'    v_add_f32 v{vA+1}, 0.5, v{vA+1}')
    a(f'    v_add_f32 v{vA+2}, -0.5, v{vA+2}')
    a(f'    v_mul_f32 v{vA+1}, v{vA+1}, v{vA}')
    a(f'    v_mul_f32 v{vA+2}, v{vA+2}, v{vA}')
    a(f'    v_cvt_u32_f32 v{vA+1}, v{vA+1}          ; wlo')
    a(f'    v_cvt_u32_f32 v{vA+2}, v{vA+2}          ; whi')
    a(f'    v_sub_u32 v{vA+2}, v{vA+2}, v{vA+1}')
    a(f'    v_add_u32 v{vA+2}, 1, v{vA+2}')
    a(f'    v_cmp_eq_u32 vcc, 0, v{vNG}')
    a(f'    v_add_u32 v{vA+1}, v{vA+1}, v{vLANE}')
    a(f'    v_and_b32 v{vA+1}, 0xffff, v{vA+1}')
    a(f'    v_cndmask_b32 v{vA+2}, v{vA+2}, 0, vcc')
    a(f'    v_lshl_or_b32 v{vA+3}, v{vA+2}, 16, v{vA+1}')
    a(f'    v_lshrrev_b32 v{vA}, 4, v0')
    a(f'    v_and_b32 v{vA+4}, 63, v{vA}')
    a(f'    v_lshlrev_b32 v{vA+4}, 2, v{vA+4}')
    a(f'    ds_bpermute_b32 v{vA+1}, v{vA+4}, v{vA+3}')
    a(f'    v_mul_u32_u24 v{vUTA}, {TS}, v{vA}')
    a(f'    v_mul_u32_u24 v{vXTA}, {XS}, v{vA}')
    a(f'    v_lshrrev_b32 v{vA+7}, 1, v{vQ16}')
    a(f'    v_add_u32 v{vUTA}, v{vUTA}, v{vQ16}')
    a(f'    v_add_u32 v{vXTA}, v{vXTA}, v{vA+7}')
    a(f'    v_add_u32 v{vUTA}, {L2_UT}, v{vUTA}')
    a(f'    v_add_u32 v{vXTA}, {L2_XT}, v{vXTA}')
    a(f'    s_lshl_b32 s{sNT}, s{sNN}, 4')
    a(f'    v_cmp_gt_u32 vcc, s{sNT}, v0')
    a('    s_waitcnt lgkmcnt(0)')
    a(f'    v_lshrrev_b32 v{vFC}, 16, v{vA+1}')
    a(f'    v_and_b32 v{vA+1}, 0xffff, v{vA+1}')
    a(f'    v_cndmask_b32 v{vFC}, 0, v{vFC}, vcc')
    a(f'    v_lshl_add_u32 v{vFS}, v{vA+1}, 9, v{vQ16}')
    a(f'    v_cmp_lt_u32 s[{sM}:{sM+1}], 0, v{vFC}')
    a(f'    v_cmp_lt_u32 s[{sM+2}:{sM+3}], 1, v{vFC}')
    a(f'    v_cmp_lt_u32 s[{sM+4}:{sM+5}], 2, v{vFC}')
    if SPANW: a.label('K2_NOSPAN')
    a(f'    s_cmp_ge_u32 s{sG0}, s{sG1}')
    a('    s_cbranch_scc1 K2_MAIN_DONE')
    if PRIO:
        a(f'    s_add_u32 s{sT0}, s{sR}, 3')
        a(f'    s_lshr_b32 s{sT0}, s{sT0}, 2            ; iterations')
        for n, reg in zip(PRT, (sPR, sPQ, sPQ2)):
            a(f'    s_mul_i32 s{reg}, s{sT0}, {n}')
            a(f'    s_lshr_b32 s{reg}, s{reg}, 4')
            a(f'    s_add_u32 s{reg}, s{reg}, 1')
        a(f'    s_mov_b32 s{sLVL}, 3')
        a('    s_setprio 3')
    a(f'    s_mov_b32 s{sGEND}, s{sG0}')
    a(f'    s_mov_b32 s{sEAB}, {L2_EAT}')
    a(f'    s_cmp_eq_u32 s{sSAFE}, 0')
    a('    s_cbranch_scc0 K2S_ENTER')
    a('    s_branch K2F_ENTER')

    def next_node():
        a(f'    v_cmp_ge_u32 vcc, s{sGEND}, v{vGS}')
        a(f'    s_bcnt1_i32_b64 s{sT0}, vcc')
        a(f'    s_sub_u32 s{sNODE}, s{sT0}, 1')
        a(f'    v_readlane_b32 s{sT1}, v{vGS}, s{sT0}')
        a(f'    s_mul_i32 s{sT0}, s{sNODE}, {TS}')
        a(f'    s_add_u32 s{sT0}, s{sT0}, s{sEAB}')
        a(f'    v_add_u32 v{vEAA}, s{sT0}, v{vQ16}')
        a(f'    ds_read_b128 v[{vEA}:{vEA+3}], v{vEAA}')
        a(f'    s_min_u32 s{sT1}, s{sT1}, s{sG1}')
        a(f'    s_sub_u32 s{sLEFT}, s{sT1}, s{sGEND}')
        a(f'    s_sub_u32 s{sLEFT}, s{sLEFT}, 1')
        a(f'    s_mov_b32 s{sGEND}, s{sT1}')

    def set_slot():
        a(f'    s_add_u32 s{sSLOT}, s{sNODE}, s{sWAVE}')
        a(f'    s_lshl_b32 s{sSLOT}, s{sSLOT}, 9')

    def flush():
        a(f'    v_add_u32 v{vACC}, s{sSLOT}, v{vFL}')
        for i in range(4):
            a(f'    v_permlane32_swap_b32 v{vDEN+i}, v{vNUM+i}')
        a(f'    v_pk_add_f32 v[{vDEN}:{vDEN+1}], v[{vDEN}:{vDEN+1}], v[{vNUM}:{vNUM+1}]')
        a(f'    v_pk_add_f32 v[{vDEN+2}:{vDEN+3}], v[{vDEN+2}:{vDEN+3}], v[{vNUM+2}:{vNUM+3}]')
        a('    s_nop 1')
        a(f'    v_permlane16_swap_b32 v{vDEN}, v{vDEN+2}')
        a(f'    v_permlane16_swap_b32 v{vDEN+1}, v{vDEN+3}')
        a(f'    v_pk_add_f32 v[{vNUM}:{vNUM+1}], v[{vDEN}:{vDEN+1}], v[{vDEN+2}:{vDEN+3}]')
        a(f'    ds_write_b64 v{vACC}, v[{vNUM}:{vNUM+1}] offset:{L2_SLOT}')

    def step(k, safe, init):
        d = vDAT + 4*k
        ev = vEV + (k & 1); evn = vEV + ((k+1) & 1)
        pn = vP + 2*((k+1) % U)
        for i in range(4):
            a(f'    v_fma_mix_f32 v{vT+i}, v{ev}, v{vWC+i}, v{d+i} op_sel:[0,0,0] op_sel_hi:[0,0,1]')
        a(f'    ds_read_u16_d16_hi v{evn}, v{vSA} offset:{L2_LIST + 16*(k+1) + 2}')
        a(f'    ds_read_u16 v{pn}, v{vSA} offset:{L2_LIST + 16*(k+1+U)}')
        if init and safe:
            a('    s_waitcnt lgkmcnt(3)')
        if safe:
            a(f'    v_pk_add_f32 v[{vT}:{vT+1}], v[{vT}:{vT+1}], v[{vEA}:{vEA+1}]')
            a(f'    v_pk_add_f32 v[{vT+2}:{vT+3}], v[{vT+2}:{vT+3}], v[{vEA+2}:{vEA+3}]')
        for i in range(4):
            a(f'    v_exp_f32 v{vT+i}, v{vT+i}')
        if init and not safe:
            a('    s_waitcnt lgkmcnt(3)')
        if safe:
            a(f'    v_pk_add_f32 v[{vT}:{vT+1}], v[{vT}:{vT+1}], 1.0 op_sel_hi:[1,0]')
            a(f'    v_pk_add_f32 v[{vT+2}:{vT+3}], v[{vT+2}:{vT+3}], 1.0 op_sel_hi:[1,0]')
        else:
            a(f'    v_pk_fma_f32 v[{vT}:{vT+1}], v[{vEA}:{vEA+1}], v[{vT}:{vT+1}], 1.0 op_sel_hi:[1,1,0]')
            a(f'    v_pk_fma_f32 v[{vT+2}:{vT+3}], v[{vEA+2}:{vEA+3}], v[{vT+2}:{vT+3}], 1.0 op_sel_hi:[1,1,0]')
        if init:
            for i in range(4):
                a(f'    v_rcp_f32 v{vDEN+i}, v{vT+i}')
            a('    s_nop 0')
            a(f'    v_pk_mul_f32 v[{vNUM}:{vNUM+1}], v[{vDEN}:{vDEN+1}], v[{d}:{d+1}]')
            a(f'    v_pk_mul_f32 v[{vNUM+2}:{vNUM+3}], v[{vDEN+2}:{vDEN+3}], v[{d+2}:{d+3}]')
        else:
            for i in range(4):
                a(f'    v_rcp_f32 v{vT+i}, v{vT+i}')
            a(f'    v_pk_add_f32 v[{vDEN}:{vDEN+1}], v[{vDEN}:{vDEN+1}], v[{vT}:{vT+1}]')
            a(f'    v_pk_add_f32 v[{vDEN+2}:{vDEN+3}], v[{vDEN+2}:{vDEN+3}], v[{vT+2}:{vT+3}]')
            a(f'    v_pk_fma_f32 v[{vNUM}:{vNUM+1}], v[{vT}:{vT+1}], v[{d}:{d+1}], v[{vNUM}:{vNUM+1}]')
            a(f'    v_pk_fma_f32 v[{vNUM+2}:{vNUM+3}], v[{vT+2}:{vT+3}], v[{d+2}:{d+3}], v[{vNUM+2}:{vNUM+3}]')
        tload(k)
        if k == U-1:
            a(f'    v_add_u32 v{vSA}, {16*U}, v{vSA}')

    def loopback(pfx):
        if PRIO:
            a(f'    s_sub_u32 s{sPR}, s{sPR}, 1')
            a(f'    s_cmp_lg_u32 s{sPR}, 0')
            a(f'    s_cbranch_scc1 {pfx}_STEP0')
            a(f'    s_branch {pfx}_PRIO')
        else:
            a(f'    s_branch {pfx}_STEP0')

    for pfx, safe in (('K2F', False), ('K2S', True)):
        a.label(f'{pfx}_ENTER')
        next_node()
        set_slot()
        a('    s_waitcnt vmcnt(3) lgkmcnt(0)')
        dstamp(a, 2)
        step(0, safe, True)
        a(f'    s_branch {pfx}_STEP1')
        for k in range(U):
            a.label(f'{pfx}_STEP{k}')
            a(f'    s_waitcnt vmcnt({U-1}) lgkmcnt(0)')
            a(f'    s_sub_u32 s{sLEFT}, s{sLEFT}, 1')
            a(f'    s_cbranch_scc1 {pfx}_FLUSH{k}')
            step(k, safe, False)
            if k == U-1:
                loopback(pfx)
        for k in range(U):
            a.label(f'{pfx}_FLUSH{k}')
            a(f'    s_cmp_ge_u32 s{sGEND}, s{sG1}')
            a(f'    s_cbranch_scc1 K2_LAST')
            next_node()
            flush()
            set_slot()
            step(k, safe, True)
            if k == U-1:
                loopback(pfx)
            else:
                a(f'    s_branch {pfx}_STEP{k+1}')
        if PRIO:
            a.label(f'{pfx}_PRIO')
            a(f'    s_sub_u32 s{sLVL}, s{sLVL}, 1')
            a(f'    s_cmp_eq_u32 s{sLVL}, 2')
            a(f'    s_cbranch_scc1 {pfx}_PRIO2')
            a(f'    s_cmp_eq_u32 s{sLVL}, 1')
            a(f'    s_cbranch_scc1 {pfx}_PRIO1')
            a(f'    s_mov_b32 s{sPR}, 0x7fffffff')
            a('    s_setprio 0')
            a(f'    s_branch {pfx}_STEP0')
            a.label(f'{pfx}_PRIO2')
            a(f'    s_mov_b32 s{sPR}, s{sPQ}')
            a('    s_setprio 2')
            a(f'    s_branch {pfx}_STEP0')
            a.label(f'{pfx}_PRIO1')
            a(f'    s_mov_b32 s{sPR}, s{sPQ2}')
            a('    s_setprio 1')
            a(f'    s_branch {pfx}_STEP0')
    a.label('K2_LAST')
    dstamp(a, 3)
    flush()
    a.label('K2_MAIN_DONE')
    if PRIO: a('    s_setprio 0')
    a(f'    s_cmp_eq_u32 s{sPASS}, 0')
    a('    s_cbranch_scc0 K2_NOUST')
    a(f'    s_cmp_eq_u32 s{sMODE}, 1')
    a('    s_cbranch_scc1 K2_NOUST')
    a(f'    s_cmp_lt_u32 s{sWAVE}, 12')
    a('    s_cbranch_scc0 K2_NOUST')
    a(f'    ds_write_b128 v{vUA}, v[{vU}:{vU+3}] offset:{L2_UT-L2_EAT}')
    a.label('K2_NOUST')
    a(f'    s_cmp_eq_u32 s{sMODE}, 2')
    a('    s_cbranch_scc0 K2_NOABORT')
    a(f'    s_mov_b32 s{sMODE}, 1')
    a(f'    s_mov_b32 s{sPASS}, 0')
    a('    s_waitcnt vmcnt(0) lgkmcnt(0)')
    a('    s_barrier')
    a('    s_branch K2_PASS')
    a.label('K2_NOABORT')
    a('    s_waitcnt lgkmcnt(0)')
    stamp(a, 6)
    a('    s_barrier')
    S0 = 76; S1 = 84; UU = 92; XX = 104
    if SPANW:
        a(f'    s_cmp_lt_u32 s{sWAVE}, 10')
        a('    s_cbranch_scc0 K2_FOLD_END')
    a(f'    s_mov_b64 exec, s[{sM}:{sM+1}]')
    a(f'    ds_read_b128 v[{S0}:{S0+3}], v{vFS} offset:{L2_SLOT}')
    a(f'    ds_read_b128 v[{S0+4}:{S0+7}], v{vFS} offset:{L2_SLOT+256}')
    a(f'    s_mov_b64 exec, s[{sM+2}:{sM+3}]')
    a(f'    ds_read_b128 v[{S1}:{S1+3}], v{vFS} offset:{L2_SLOT+512}')
    a(f'    ds_read_b128 v[{S1+4}:{S1+7}], v{vFS} offset:{L2_SLOT+512+256}')
    a('    s_mov_b64 exec, -1')
    a(f'    ds_read_b128 v[{UU}:{UU+3}], v{vUTA}')
    a(f'    ds_read_b64 v[{XX}:{XX+1}], v{vXTA}')
    a(f'    s_mov_b64 exec, s[{sM}:{sM+1}]')
    a('    s_waitcnt lgkmcnt(4)')
    for b, acc in ((S0, vDA), (S0+2, vDA+2), (S0+4, vNA), (S0+6, vNA+2)):
        a(f'    v_pk_add_f32 v[{acc}:{acc+1}], v[{acc}:{acc+1}], v[{b}:{b+1}]')
    a(f'    s_mov_b64 exec, s[{sM+2}:{sM+3}]')
    a('    s_waitcnt lgkmcnt(2)')
    for b, acc in ((S1, vDA), (S1+2, vDA+2), (S1+4, vNA), (S1+6, vNA+2)):
        a(f'    v_pk_add_f32 v[{acc}:{acc+1}], v[{acc}:{acc+1}], v[{b}:{b+1}]')
    a('    s_mov_b64 exec, -1')
    a(f'    s_cmp_eq_u64 s[{sM+4}:{sM+5}], 0')
    a('    s_cbranch_scc1 K2_FOLD_END')
    a(f'    v_add_u32 v{vFS}, 1024, v{vFS}')
    a(f'    v_add_u32 v{vFC}, -2, v{vFC}')
    a.label('K2_FOLD')
    masked(a, f'v_cmp_lt_i32 vcc, 0, v{vFC}', sEX, 'K2_FOLD_DONE')
    a(f'    ds_read_b128 v[{S0}:{S0+3}], v{vFS} offset:{L2_SLOT}')
    a(f'    ds_read_b128 v[{S0+4}:{S0+7}], v{vFS} offset:{L2_SLOT+256}')
    a(f'    v_add_u32 v{vFS}, 512, v{vFS}')
    a(f'    v_add_u32 v{vFC}, -1, v{vFC}')
    a('    s_waitcnt lgkmcnt(0)')
    for b, acc in ((S0, vDA), (S0+2, vDA+2), (S0+4, vNA), (S0+6, vNA+2)):
        a(f'    v_pk_add_f32 v[{acc}:{acc+1}], v[{acc}:{acc+1}], v[{b}:{b+1}]')
    unmask(a, sEX)
    a('    s_branch K2_FOLD')
    unmask(a, sEX, 'K2_FOLD_DONE')
    a.label('K2_FOLD_END')
    a(f'    s_cmp_eq_u32 s{sMODE}, 0')
    a('    s_cbranch_scc1 K2_EPI')
    a(f'    s_add_u32 s{sPASS}, s{sPASS}, 1')
    a(f'    s_cmp_lt_u32 s{sPASS}, {NC}')
    a('    s_cbranch_scc0 K2_EPI')
    a('    s_waitcnt vmcnt(0) lgkmcnt(0)')
    a('    s_barrier                               ; slots consumed before the next pass')
    a('    s_branch K2_PASS')
    a.label('K2_EPI')
    masked(a, f'v_cmp_gt_u32 vcc, s{sNT}, v0', sEX, 'K2_FIN')
    a(f'    s_mov_b32 s{sT0}, {hex(f2u(1e-6))}')
    for i in range(4):
        a(f'    v_add_f32 v{vDA+i}, s{sT0}, v{vDA+i}')
    for i in range(4):
        a(f'    v_rcp_f32 v{vDA+i}, v{vDA+i}')
    a('    s_waitcnt lgkmcnt(0)')
    a(f'    v_lshlrev_b32 v{vT}, 16, v{XX}')
    a(f'    v_and_b32 v{vT+1}, 0xffff0000, v{XX}')
    a(f'    v_lshlrev_b32 v{vT+2}, 16, v{XX+1}')
    a(f'    v_and_b32 v{vT+3}, 0xffff0000, v{XX+1}')
    for i in range(4):
        a(f'    v_fma_f32 v{vNA+i}, v{vNA+i}, v{vDA+i}, v{UU+i}    ; z = U + agg')
    for i in range(4):
        a(f'    v_cmp_lt_f32 s[{sM+2*i}:{sM+2*i+1}], 0, v{vNA+i}')
    for i in range(4):
        a(f'    v_mul_f32 v{vDEN+i}, 0, v{vNA+i}                     ; 0*z')
    for i in range(4):
        a(f'    v_cndmask_b32 v{vNA+i}, v{vDEN+i}, v{vNA+i}, s[{sM+2*i}:{sM+2*i+1}]')
    for i in range(4):
        a(f'    v_add_f32 v{vNA+i}, v{vNA+i}, v{vT+i}')
    a(f'    s_lshl_b32 s{sT1}, s{sN0}, 7')
    a(f'    v_lshlrev_b32 v{vA+1}, 3, v0')
    a(f'    v_cvt_pk_bf16_f32 v{vDEN}, v{vNA}, v{vNA+1}')
    a(f'    v_cvt_pk_bf16_f32 v{vDEN+1}, v{vNA+2}, v{vNA+3}')
    a(f'    buffer_store_dwordx2 v[{vDEN}:{vDEN+1}], v{vA+1}, s[{SRD_OUT}:{SRD_OUT+3}], s{sT1} offen {OUTST}')
    a.label('K2_FIN')
    if STAMP:
        a('    s_mov_b64 exec, -1')
        a('    s_waitcnt vmcnt(0)')
    stamp(a, 7); stamp(a, 1, True)
    stamp_flush(a, sWAVE, sB, 1, 6)
    a.label('K2_END')
    a('    s_endpgm')
    a.label('CODE_END')

def gen_k3(a):
    i, j = [int(x) for x in env('INTERVAL', '0,0').split(',')]
    inv = {0: True, 2: True}
    a('.globl k3_kernel')
    a('.p2align 8')
    a('.type k3_kernel,@function')
    a.label('k3_kernel')
    a('    s_cmp_ge_u32 s2, 1')
    a('    s_cbranch_scc1 K3_END')
    a('    s_load_dwordx2 s[4:5], s[0:1], 80')
    a('    s_waitcnt lgkmcnt(0)')
    a('    v_mov_b32 v1, 0')
    a(f'    global_load_dword v2, v1, s[4:5] offset:{4*i} sc1')
    a(f'    global_load_dword v3, v1, s[4:5] offset:{4*j} sc1')
    a('    s_waitcnt vmcnt(0)')
    if inv.get(i): a('    v_not_b32 v2, v2')
    if inv.get(j): a('    v_not_b32 v3, v3')
    a('    v_sub_u32 v3, v3, v2')
    a('    s_nop 1')
    a('    v_readfirstlane_b32 s8, v3')
    a('    s_nop 3')
    a('    s_mul_i32 s8, s8, 10')
    a('    s_min_u32 s8, s8, 50000')
    a('    s_memrealtime s[10:11]')
    a('    s_waitcnt lgkmcnt(0)')
    a.label('K3_SPIN')
    a('    s_memrealtime s[12:13]')
    a('    s_waitcnt lgkmcnt(0)')
    a('    s_sub_u32 s9, s12, s10')
    a('    s_cmp_lt_u32 s9, s8')
    a('    s_cbranch_scc1 K3_SPIN')
    a.label('K3_END')
    a('    s_endpgm')

def kd(a, name, vgpr, sgpr):
    a(f'.amdhsa_kernel {name}')
    a(f'  .amdhsa_next_free_vgpr {vgpr}')
    a(f'  .amdhsa_next_free_sgpr {sgpr}')
    a(f'  .amdhsa_accum_offset {((vgpr+3)//4)*4}')
    a('  .amdhsa_group_segment_fixed_size 0')
    a('  .amdhsa_kernarg_size 96')
    a('  .amdhsa_user_sgpr_count 2')
    a('  .amdhsa_user_sgpr_kernarg_segment_ptr 1')
    a('  .amdhsa_system_sgpr_workgroup_id_x 1')
    a('  .amdhsa_float_denorm_mode_32 3')
    a('.end_amdhsa_kernel')

HEADER = """
"""

def main(out):
    a = Asm()
    for l in HEADER.strip('\n').split('\n'): a(l)
    a(f'; @launch kernel=k1_kernel grid=({K1_GRID},1,1) block=(1024,1,1) lds={K1_LDS}')
    a(f'; @launch kernel=k2_kernel grid=({NB},1,1) block=(1024,1,1) lds={K2_LDS}')
    if STAMP == 4: a('; @launch kernel=k3_kernel grid=(1,1,1) block=(64,1,1) lds=0')
    a('.amdgcn_target "amdgcn-amd-amdhsa--gfx950"')
    a('.text')
    a('.globl k1_kernel')
    gen_k1(a)
    a('.globl k2_kernel')
    gen_k2(a)
    if STAMP == 4: gen_k3(a)
    a('.section .rodata,"a"')
    a('.p2align 6')
    kd(a, 'k1_kernel', 96, 102 if STAMP else 72)
    a('.p2align 6')
    kd(a, 'k2_kernel', 128, 102 if STAMP else 80)
    if STAMP == 4:
        a('.p2align 6')
        kd(a, 'k3_kernel', 8, 32)
    a.l = [x for x in a.l if x is not None]
    open(out, 'w').write(a.text())

if __name__ == '__main__':
    main(sys.argv[1] if len(sys.argv) > 1 else 'standalone__edge_featured_mpnn_gatedgcn__graph.s')
```
